```python
import torch

def _softmax(x, axis=-1):
    return torch.softmax(x, dim=axis)
def _gelu(x):
    return torch.nn.functional.gelu(x, approximate="tanh")
def _silu(x):
    return torch.nn.functional.silu(x)
def _sigmoid(x):
    return torch.sigmoid(x)
def _layernorm(x, axis=-1, eps=1e-5):
    m = x.mean(dim=axis, keepdim=True)
    v = x.var(dim=axis, keepdim=True, unbiased=False)
    return (x - m) / torch.sqrt(v + eps)
def _scatter_add(tgt, idx, src, axis=0):
    return tgt.clone().index_add_(axis, idx, src)
def _segment_sum(src, seg, n):
    out = torch.zeros((n,) + src.shape[1:], dtype=src.dtype)
    return out.index_add_(0, seg, src)
def _pad(x, pw):
    flat = tuple(v for pair in reversed(pw) for v in pair)
    return torch.nn.functional.pad(x, flat)

kernel_name = 'recurrent_scan__gqa_block_cached__mixer_token_mlp__decode'

def setup_inputs():

    _w = (lambda a: (lambda t: t.to(torch.bfloat16) if t.is_floating_point() else t)(torch.as_tensor(a)))
    def _A_setup():
        B, Sq, D = 8, 1, 512
        Hq, Hkv, Sk, Dh = 32, 8, 4096, 128
        assert Hq % Hkv == 0, (Hq, Hkv)
        return {
            "x": _w((lambda *s: torch.randn(*s, dtype=torch.bfloat16) * 0.4)(B, Sq, D)),
            "k_cache": _w((lambda *s: torch.randn(*s, dtype=torch.bfloat16) * 1.6)(B, Hkv, Sk, Dh)),
            "v_cache": _w((lambda *s: torch.randn(*s, dtype=torch.bfloat16) * 1.6)(B, Hkv, Sk, Dh)),
            "wq": _w((lambda *s: torch.randn(*s, dtype=torch.bfloat16) * 1.6)(D, Hq * Dh) * (D ** -0.5)),
            "wo": _w((lambda *s: torch.randn(*s, dtype=torch.bfloat16) * 1.6)(Hq * Dh, D) * ((Hq * Dh) ** -0.5)),
        }
    _A_in = _A_setup()

    def _B_setup():
        B, S, D, F = 8, 1, 512, 1792
        return {
            "x": _w((lambda *s: torch.randn(*s, dtype=torch.bfloat16) * 0.4)(B, S, D)),
            "w1": _w((lambda *s: torch.randn(*s, dtype=torch.bfloat16) * 1.6)(S, F) * (S ** -0.5)),
            "b1": _w((lambda *s: torch.randn(*s, dtype=torch.bfloat16) * 1.6)(F) * 0.02),
            "w2": _w((lambda *s: torch.randn(*s, dtype=torch.bfloat16) * 1.6)(F, S) * (F ** -0.5)),
            "b2": _w((lambda *s: torch.randn(*s, dtype=torch.bfloat16) * 1.6)(S) * 0.02),
        }
    _B_in = _B_setup()

    return {
        "A_x": _A_in["x"],
        "A_k_cache": _A_in["k_cache"],
        "A_v_cache": _A_in["v_cache"],
        "A_wq": _A_in["wq"],
        "A_wo": _A_in["wo"],
        "B_x": _B_in["x"],
        "B_w1": _B_in["w1"],
        "B_b1": _B_in["b1"],
        "B_w2": _B_in["w2"],
        "B_b2": _B_in["b2"],
    }

def reference(A_x, A_k_cache, A_v_cache, A_wq, A_wo, B_x, B_w1, B_b1, B_w2, B_b2):
    def _A_ref(x, k_cache, v_cache, wq, wo):
        B, Sq, D = x.shape
        Hq, Dh = 32, 128
        Hkv = k_cache.shape[1]
        rep = Hq // Hkv
        q = (lambda x, *d: x.permute(*d))((x @ wq).reshape(B, Sq, Hq, Dh), 0, 2, 1, 3)
        k = (lambda x, n, axis: torch.repeat_interleave(x, n, dim=axis))(k_cache, rep, axis=1)
        v = (lambda x, n, axis: torch.repeat_interleave(x, n, dim=axis))(v_cache, rep, axis=1)
        scores = torch.einsum("bhqd,bhkd->bhqk", q, k) * (Dh ** -0.5)
        p = _softmax(scores, axis=-1)
        o = torch.einsum("bhqk,bhkd->bhqd", p, v)
        return (lambda x, *d: x.permute(*d))(o, 0, 2, 1, 3).reshape(B, Sq, Hq * Dh) @ wo

    def _B_ref(x, w1, b1, w2, b2):
        B, S, D = x.shape
        h = _layernorm(x, axis=-1)
        u = torch.einsum("bsd,sf->bdf", h, w1) + b1
        u = _gelu(u)
        y = torch.einsum("bdf,fs->bds", u, w2) + b2
        return (lambda x, *d: x.permute(*d))(y, 0, 2, 1)

    x = A_x
    xn = _layernorm(x, axis=-1)
    s = _A_ref(xn, A_k_cache, A_v_cache, A_wq, A_wo)
    g = _silu(_B_ref(xn, B_w1, B_b1, B_w2, B_b2))
    return x + s * g
```

```python
import re

def regs_of(tok):
    tok = tok.strip()
    neg = tok.startswith("-")
    if neg: tok = tok[1:]
    if tok.startswith("abs(") or tok.startswith("|"):
        tok = tok.strip("|").replace("abs(", "").rstrip(")")
    m = re.fullmatch(r"([vsa])(\d+)", tok)
    if m: return [(m.group(1), int(m.group(2)))]
    m = re.fullmatch(r"([vsa])\[(\d+):(\d+)\]", tok)
    if m: return [(m.group(1), i) for i in range(int(m.group(2)), int(m.group(3)) + 1)]
    if tok == "vcc": return [("s", 106), ("s", 107)]
    if tok == "exec": return [("s", 126), ("s", 127)]
    if tok == "m0": return [("s", 124)]
    return []

TRANS = ("v_exp_f32", "v_log_f32", "v_rcp_f32", "v_rsq_f32", "v_sqrt_f32", "v_sin_f32", "v_cos_f32")

class Ins:
    def __init__(self, text):
        self.text = text
        t = text.split(";")[0].strip()
        self.label = t.endswith(":")
        parts = t.split(None, 1)
        self.op = parts[0] if parts else ""
        rest = parts[1] if len(parts) > 1 else ""
        ops = []; cur = ""; depth = 0
        for ch in rest:
            if ch == "[": depth += 1
            if ch == "]": depth -= 1
            if ch == "," and depth == 0: ops.append(cur.strip()); cur = ""
            else: cur += ch
        if cur.strip(): ops.append(cur.strip())
        self.mods = ""
        if ops:
            l = ops[-1].split(None, 1)
            ops[-1] = l[0]
            if len(l) > 1: self.mods = l[1]
        self.ops = ops
        op = self.op
        self.kind = "other"
        R = lambda toks: [r for t_ in toks for r in regs_of(t_)]
        self.w = []; self.r = []
        self.dpp = "_dpp" in op or "quad_perm" in self.mods or "row_" in self.mods
        if self.label or op.startswith("."):
            self.kind = "label"
        elif op.startswith("v_mfma"):
            self.kind = "mfma"; self.w = R(ops[:1]); self.ab = R(ops[1:3]); self.c = R(ops[3:4]); self.r = self.ab + self.c
            self.passes = 4 if "16x16x32" in op or "16x16x16" in op else 8
        elif op.startswith("v_permlane"):
            self.kind = "valu"; self.w = R(ops[:2]); self.r = R(ops[:2])
        elif op.startswith("v_cmp"):
            self.kind = "valu"; self.w = R(ops[:1]); self.r = R(ops[1:])
        elif op.startswith("v_"):
            self.kind = "valu"; self.w = R(ops[:1]); self.r = R(ops[1:])
            if op.startswith("v_fmac") or op.startswith("v_pk_fmac") or self.dpp or op.startswith("v_dot2c"): self.r += self.w
            if op.startswith("v_cndmask") and len(ops) == 3: self.r += regs_of("vcc")
            if "_co_" in op: self.w += R(ops[1:2])
        elif op.startswith("ds_"):
            self.kind = "ds"
            if op.startswith("ds_read") or op.startswith("ds_bpermute") or op.startswith("ds_swizzle"):
                self.w = R(ops[:1]); self.r = R(ops[1:])
            else:
                self.r = R(ops)
        elif op.startswith("buffer_") or op.startswith("global_"):
            self.kind = "vmem"
            lds = " lds" in (" " + self.mods) or "load_lds" in op
            self.lds = lds
            if "load" in op and not lds:
                self.w = R(ops[:1]); self.r = R(ops[1:])
            else:
                self.r = R(ops)
            if lds: self.r += regs_of("m0")
            self.store = "store" in op or "atomic" in op
            self.wide = self.store and ("x3" in op or "x4" in op)
            if self.store:
                self.data = R(ops[:1]) if op.startswith("buffer_") else R(ops[1:2])
        elif op.startswith("s_"):
            self.kind = "salu"
            if op in ("s_nop", "s_waitcnt", "s_barrier", "s_endpgm", "s_sleep", "s_setprio") or op.startswith("s_cbranch") or op == "s_branch":
                pass
            elif op.startswith("s_cmp"):
                self.r = R(ops)
            else:
                self.w = R(ops[:1]); self.r = R(ops[1:])
                if "saveexec" in op: self.w += regs_of("exec")
        self.trans = any(op.startswith(x) for x in TRANS)
    def states(self):
        if self.kind == "label": return 0
        if self.op == "s_nop": return int(self.ops[0]) + 1
        return 1

def need(p, c):
    n = 0
    pw = set(p.w); cr = set(c.r); cw = set(c.w)
    pvw = {r for r in pw if r[0] in "va"}; psw = {r for r in pw if r[0] == "s"}
    if p.kind == "valu":
        if pvw & cr:
            if c.kind == "valu" and c.dpp: n = max(n, 2)
            if c.op.startswith("v_permlane"): n = max(n, 2)
            if c.op.startswith("v_readlane") or c.op.startswith("v_readfirstlane"): n = max(n, 1)
            if c.kind == "mfma": n = max(n, 2)
            if p.trans and c.kind == "valu" and not c.trans: n = max(n, 1)
            if p.trans and c.kind in ("valu",): n = max(n, 1)
        if psw & cr:
            if c.kind == "valu": n = max(n, 2)
            if c.kind == "vmem": n = max(n, 5)
            if c.op.startswith("v_readlane") or c.op.startswith("v_writelane"): n = max(n, 4)
            if c.kind == "salu": n = max(n, 1)
    if p.kind == "mfma":
        big = {4: 8, 8: 12}[p.passes]
        if c.kind == "mfma":
            if pw & set(c.ab): n = max(n, big)
            if pw & set(c.c):
                if not (sorted(p.w) == sorted(c.c)): n = max(n, {4: 6, 8: 10}[p.passes])
            if (pw & cw) and not (pw & set(c.c)): n = max(n, big)
        elif c.kind in ("valu", "vmem", "ds"):
            if pw & (cr | cw): n = max(n, big)
        if c.kind == "valu" and set(p.c) & cw: n = max(n, {4: 3, 8: 7}[p.passes])
    if p.kind == "salu":
        if ("s", 124) in pw and c.kind == "vmem" and getattr(c, "lds", False): n = max(n, 1)
    if p.kind == "vmem" and getattr(p, "wide", False):
        if set(p.data) & cw: n = max(n, 2)
    return n

class Asm:
    def __init__(self):
        self.ins = []
        self.vm = []
        self.uid = 0
    def __call__(self, text):
        for line in text.split("\n"):
            line = line.strip()
            if line: self.ins.append(Ins(line))
    def vmem(self, text, tag=None, optional=False):
        self(text)
        if not optional:
            self.vm.append(tag if tag is not None else "_")
    def wait_vm(self, tag):
        if tag not in self.vm: return
        i = len(self.vm) - 1 - self.vm[::-1].index(tag)
        n = len(self.vm) - 1 - i
        assert n <= 63
        self("s_waitcnt vmcnt(%d)" % n)
        self.vm = self.vm[i + 1:]
    def wait_depth(self, n):
        if len(self.vm) > n:
            self("s_waitcnt vmcnt(%d)" % n)
            self.vm = self.vm[len(self.vm) - n:] if n else []
    def label(self, base):
        self.uid += 1
        return "L_%s_%d" % (base, self.uid)
    def finalize(self):
        out = []
        hist = []
        snaps = {}
        nn = 0
        for x in self.ins:
            if x.label:
                name = x.op[:-1]
                if name in snaps:
                    merged = {}
                    for (i_, a) in hist + snaps[name]:
                        k = id(i_)
                        if k not in merged or a < merged[k][1]: merged[k] = (i_, a)
                    hist = list(merged.values())
                out.append(x); continue
            if x.kind == "label":
                out.append(x); continue
            req = 0
            for (p, a) in hist:
                r = need(p, x) - a
                if r > req: req = r
            if req > 0:
                nop = Ins("s_nop %d" % (req - 1)); out.append(nop); nn += 1
                hist = [(p, a + req) for (p, a) in hist]
            out.append(x)
            st = x.states()
            hist = [(p, a + st) for (p, a) in hist if a + st < 24]
            hist.append((x, 0))
            if x.op.startswith("s_cbranch") or x.op == "s_branch":
                tgt = x.ops[0]
                snaps.setdefault(tgt, [])
                snaps[tgt] = snaps[tgt] + list(hist)
        self.nops = nn
        return "\n".join((i.text if i.label or i.op.startswith(".") else "    " + i.text) for i in out) + "\n"
```

```python
import sys, struct
from asmlib import Asm

NAME = "recurrent_scan__gqa_block_cached__mixer_token_mlp__decode_kernel"
def f2u(x): return struct.unpack("<I", struct.pack("<f", x))[0]

WS_Q, WS_ST, WS_OP, WS_SP = 0x0, 0x10000, 0x20000, 0x60000
WS_STAMP = 128 << 20
L_XN, XN_STRIDE = 0, 1040
L_H = 8448
L_WQ = 17408
L_WO = 33792
L_QP = 50176
L_YP = 58368
L_OW = L_WQ
L_OI = 0
LDS_BYTES = 58880
sWAVE = 3
sBASE = 4
sOFF = 5
sT0, sT1, sT2 = 6, 7, 8
sR = 9
sSPIN = 10
sEX = 12
sMU, sMB = 14, 15
SRD = dict(K=44, V=48, X=52, WQ=56, WO=60, W1=64, B1=68, W2=72, OUT=76, DBG=80, WS=84)
KARG = dict(X=0, K=8, V=16, WQ=24, WO=32, W1=48, B1=56, W2=64, OUT=80, DBG=88, WS=96)
SIZE = dict(X=8192, K=1 << 26, V=1 << 26, WQ=1 << 22, WO=1 << 22, W1=3584, B1=3584, W2=3584, OUT=8192, DBG=256, WS=1 << 28)
sSELLO, sSELHI, sMASK, sSCALE, sL2E, sC0, sC1, sB2P = 88, 89, 90, 91, 92, 93, 94, 96
sOPOFF, sSPOFF, sSTOFF = 98, 99, 100
sB2 = 95
def srd(n): return "s[%d:%d]" % (SRD[n], SRD[n] + 3)
vL, vK, vL16, vOP, vSP = 0, 1, 2, 3, 4
vM, vLs, vMO, vF = 5, 6, 7, 8
vA0 = 9
vG = 16
vT = 20
vQ = 28
vD = 32
vP = 48
vS = 64
vB0 = 96
vKR = 128
def vr(a, n=1): return "v%d" % a if n == 1 else "v[%d:%d]" % (a, a + n - 1)

def gen(D=6, D0=6, stamps=0, pol="nt", poll_at=26, q_at=31, qk_at=37, st_poll=54, spin=1 << 17, mimic=1, regmap="xcd"):
    A = Asm()
    stamp_n = [0]
    def stamp():
        if stamps:
            k = stamp_n[0]; assert k < 14
            A("s_memrealtime s[%d:%d]" % (16 + 2 * k, 17 + 2 * k)); stamp_n[0] += 1
    nxt = [0]
    def ldreg(n):
        if n < 32: return vKR + 4 * n
        n -= 32
        return vB0 + 4 * n if n < 8 else vKR + 4 * (n - 8)
    def pump(cnt=1, depth=None):
        for _ in range(cnt):
            n = nxt[0]
            if n >= 64: return
            i = n % 32
            if i % 4 == 0:
                A("s_add_u32 s%d, s%d, %d" % (sOFF, sBASE, (i // 4) * 32768) if i else "s_mov_b32 s%d, s%d" % (sOFF, sBASE))
            A.wait_depth((depth or D) - 1)
            isk = n < 32
            A.vmem("buffer_load_dwordx4 %s, v%d, %s, s%d offen offset:%d %s" % (
                vr(ldreg(n), 4), vK if isk else vL16, srd("K" if isk else "V"), sOFF, (i % 4) * 1024, pol), tag="L%d" % n)
            nxt[0] += 1
    def pump_to(n):
        while nxt[0] <= n and nxt[0] < 64: pump(1)

    def red64(v, op="v_add_f32"):
        for m in ("quad_perm:[1,0,3,2]", "quad_perm:[2,3,0,1]", "row_half_mirror", "row_mirror"):
            A("%s_dpp v%d, v%d, v%d %s row_mask:0xf bank_mask:0xf" % (op, v, v, v, m))
        A("%s_dpp v%d, v%d, v%d row_bcast:15 row_mask:0xa bank_mask:0xf" % (op, v, v, v))
        A("%s_dpp v%d, v%d, v%d row_bcast:31 row_mask:0xc bank_mask:0xf" % (op, v, v, v))
    def red16(v, op):
        for m in ("quad_perm:[1,0,3,2]", "quad_perm:[2,3,0,1]", "row_half_mirror", "row_mirror"):
            A("%s_dpp v%d, v%d, v%d %s row_mask:0xf bank_mask:0xf" % (op, v, v, v, m))
    def red_rows(v, t, op):
        A("v_mov_b32 v%d, v%d" % (t, v)); A("v_permlane32_swap_b32 v%d, v%d" % (v, t)); A("%s v%d, v%d, v%d" % (op, v, v, t))
        A("v_mov_b32 v%d, v%d" % (t, v)); A("v_permlane16_swap_b32 v%d, v%d" % (v, t)); A("%s v%d, v%d, v%d" % (op, v, v, t))
    def rbf(v):
        A("v_cvt_pk_bf16_f32 v%d, v%d, v%d" % (v, v, v)); A("v_lshlrev_b32 v%d, 16, v%d" % (v, v))
    def unpack(dlo, dhi, src):
        A("v_lshlrev_b32 v%d, 16, v%d" % (dlo, src)); A("v_and_b32 v%d, s%d, v%d" % (dhi, sMASK, src))
    def layernorm(pk, x, t):
        for i in range(4): unpack(x + 2 * i, x + 2 * i + 1, pk + i)
        A("v_add_f32 v%d, v%d, v%d" % (t, x, x + 1))
        for i in range(2, 8): A("v_add_f32 v%d, v%d, v%d" % (t, t, x + i))
        red64(t)
        A("v_mul_f32 v%d, 0x3b000000, v%d" % (t, t))
        A("v_cvt_pk_bf16_f32 v%d, v%d, v%d" % (t + 1, t, t)); A("v_readlane_b32 s%d, v%d, 63" % (sMU, t))
        A("v_lshlrev_b32 v%d, 16, v%d" % (t + 1, t + 1)); A("v_readlane_b32 s%d, v%d, 63" % (sMB, t + 1))
        for i in range(8): A("v_subrev_f32 v%d, s%d, v%d" % (t + 1 + i, sMU, x + i))
        A("v_mul_f32 v%d, v%d, v%d" % (t, t + 1, t + 1))
        for i in range(1, 8): A("v_fmac_f32 v%d, v%d, v%d" % (t, t + 1 + i, t + 1 + i))
        for i in range(8): A("v_subrev_f32 v%d, s%d, v%d" % (x + i, sMB, x + i))
        red64(t)
        for i in range(4): A("v_cvt_pk_bf16_f32 v%d, v%d, v%d" % (pk + i, x + 2 * i, x + 2 * i + 1))
        A("v_mul_f32 v%d, 0x3b000000, v%d" % (t, t)); rbf(t)
        A("v_add_f32 v%d, 0x%x, v%d" % (t, f2u(1e-5), t)); rbf(t)
        A("v_sqrt_f32 v%d, v%d" % (t, t)); rbf(t)
        A("v_rcp_f32 v%d, v%d" % (t, t))
        for i in range(4): unpack(x + 2 * i, x + 2 * i + 1, pk + i)
        A("v_readlane_b32 s%d, v%d, 63" % (sMU, t))
        for i in range(8): A("v_mul_f32 v%d, s%d, v%d" % (x + i, sMU, x + i))
        for i in range(4): A("v_cvt_pk_bf16_f32 v%d, v%d, v%d" % (pk + i, x + 2 * i, x + 2 * i + 1))
    def check_loop(issue, regs, first_tag, cond="sent"):
        ok = A.label("ok"); again = A.label("again")
        A.wait_vm(first_tag)
        A("s_mov_b32 s%d, 0" % sSPIN)
        A(again + ":")
        if cond == "sent":
            t = vT + 7
            A("v_max3_u32 v%d, v%d, v%d, v%d" % (t, regs[0], regs[1], regs[2]))
            k = 3
            while k < len(regs):
                if k + 1 < len(regs): A("v_max3_u32 v%d, v%d, v%d, v%d" % (t, t, regs[k], regs[k + 1])); k += 2
                else: A("v_max_u32 v%d, v%d, v%d" % (t, t, regs[k])); k += 1
            A("v_cmp_ne_u32 vcc, -1, v%d" % t)
        else:
            A("v_cmp_eq_u32 vcc, 64, v%d" % regs[0])
        A("s_cmp_eq_u64 vcc, -1"); A("s_cbranch_scc1 " + ok)
        A("s_add_u32 s%d, s%d, 1" % (sSPIN, sSPIN)); A("s_cmp_ge_u32 s%d, %d" % (sSPIN, spin)); A("s_cbranch_scc1 " + ok)
        issue(True)
        A("s_waitcnt vmcnt(0)")
        A("s_branch " + again)
        A(ok + ":")

    A("s_cmp_ge_u32 s2, 256"); A("s_cbranch_scc1 L_end")
    stamp()
    if stamps: A("s_mov_b64 s[38:39], 0")
    for n in ("K", "WS", "X", "WQ", "V", "WO", "W1", "B1", "W2", "DBG", "OUT"):
        A("s_load_dwordx2 s[%d:%d], s[0:1], %d" % (SRD[n], SRD[n] + 1, KARG[n]))
    A("s_load_dwordx2 s[%d:%d], s[0:1], 72" % (sB2P, sB2P + 1))
    A("v_lshrrev_b32 v1, 6, v0"); A("v_and_b32 v0, 63, v0"); A("v_readfirstlane_b32 s%d, v1" % sWAVE)
    for n in SRD:
        A("s_mov_b32 s%d, 0x%x" % (SRD[n] + 2, SIZE[n])); A("s_mov_b32 s%d, 0x20000" % (SRD[n] + 3))
    if regmap == "xcd":
        A("s_and_b32 s%d, s2, 7" % sR); A("s_lshl_b32 s%d, s%d, 5" % (sR, sR)); A("s_lshr_b32 s%d, s2, 3" % sT0); A("s_add_u32 s%d, s%d, s%d" % (sR, sR, sT0))
    else:
        A("s_mov_b32 s%d, s2" % sR)
    A("s_lshl_b32 s%d, s%d, 18" % (sBASE, sR)); A("s_lshl_b32 s%d, s%d, 12" % (sT0, sWAVE)); A("s_add_u32 s%d, s%d, s%d" % (sBASE, sBASE, sT0))
    A("v_lshrrev_b32 v%d, 4, v0" % vA0)
    A("v_bfe_u32 v%d, v0, 2, 2" % (vA0 + 1))
    A("v_and_b32 v%d, 3, v0" % (vA0 + 2))
    A("v_lshlrev_b32 v%d, 6, v%d" % (vK, vA0)); A("v_lshl_add_u32 v%d, v%d, 8, v%d" % (vK, vA0 + 1, vK)); A("v_lshl_add_u32 v%d, v%d, 4, v%d" % (vK, vA0 + 2, vK))
    A("v_lshlrev_b32 v%d, 4, v0" % vL16)
    A("s_waitcnt lgkmcnt(0)")
    pump(D0, depth=99)
    A("s_load_dword s%d, s[%d:%d], 0" % (sB2, sB2P, sB2P + 1))
    A("s_mov_b32 s%d, 0x05040100" % sSELLO); A("s_mov_b32 s%d, 0x07060302" % sSELHI); A("s_mov_b32 s%d, 0xffff0000" % sMASK)
    A("s_mov_b32 s%d, 0x%x" % (sSCALE, f2u(128 ** -0.5))); A("s_mov_b32 s%d, 0x%x" % (sL2E, f2u(1.4426950408889634)))
    c0 = -2.0 * 0.7978845608028654 * 1.4426950408889634
    A("s_mov_b32 s%d, 0x%x" % (sC0, f2u(c0))); A("s_mov_b32 s%d, 0x%x" % (sC1, f2u(c0 * 0.044715)))
    vX = vS
    A("s_lshl_b32 s%d, s%d, 10" % (sT0, sWAVE))
    A.vmem("buffer_load_dwordx4 %s, v%d, %s, s%d offen" % (vr(vX, 4), vL16, srd("X"), sT0), tag="x")
    A("v_lshrrev_b32 v%d, 1, v0" % (vA0 + 3)); A("v_lshlrev_b32 v%d, 13, v%d" % (vA0 + 3, vA0 + 3))
    A("v_and_b32 v%d, 1, v0" % (vA0 + 4)); A("v_lshl_add_u32 v%d, v%d, 4, v%d" % (vA0 + 3, vA0 + 4, vA0 + 3))
    A("s_lshl_b32 s%d, s%d, 19" % (sT0, sWAVE)); A("s_lshl_b32 s%d, s%d, 5" % (sT1, sR)); A("s_add_u32 s%d, s%d, s%d" % (sT0, sT0, sT1))
    A("s_lshl_b32 s%d, s%d, 11" % (sT2, sWAVE)); A("s_add_u32 m0, s%d, %d" % (sT2, L_WQ))
    A.vmem("buffer_load_dwordx4 v%d, %s, s%d offen %s lds" % (vA0 + 3, srd("WQ"), sT0, pol), tag="wq0")
    A("s_add_u32 s%d, s%d, 0x40000" % (sT0, sT0)); A("s_add_u32 m0, s%d, %d" % (sT2, L_WQ + 1024))
    A.vmem("buffer_load_dwordx4 v%d, %s, s%d offen %s lds" % (vA0 + 3, srd("WQ"), sT0, pol), tag="wq1")
    A("v_lshrrev_b32 v%d, 3, v0" % (vA0 + 5)); A("v_lshlrev_b32 v%d, 10, v%d" % (vA0 + 5, vA0 + 5))
    A("v_and_b32 v%d, 7, v0" % (vA0 + 6)); A("v_lshl_add_u32 v%d, v%d, 4, v%d" % (vA0 + 5, vA0 + 6, vA0 + 5))
    A("s_lshr_b32 s%d, s%d, 3" % (sT0, sR)); A("s_lshl_b32 s%d, s%d, 17" % (sT0, sT0))
    A("s_and_b32 s%d, s%d, 7" % (sT1, sR)); A("s_lshl_b32 s%d, s%d, 7" % (sT1, sT1)); A("s_add_u32 s%d, s%d, s%d" % (sT0, sT0, sT1))
    A("s_lshl_b32 s%d, s%d, 14" % (sT1, sWAVE)); A("s_add_u32 s%d, s%d, s%d" % (sT0, sT0, sT1))
    A("s_add_u32 m0, s%d, %d" % (sT2, L_WO))
    A.vmem("buffer_load_dwordx4 v%d, %s, s%d offen %s lds" % (vA0 + 5, srd("WO"), sT0, pol), tag="wo0")
    A("s_add_u32 s%d, s%d, 0x2000" % (sT0, sT0)); A("s_add_u32 m0, s%d, %d" % (sT2, L_WO + 1024))
    A.vmem("buffer_load_dwordx4 v%d, %s, s%d offen %s lds" % (vA0 + 5, srd("WO"), sT0, pol), tag="wo1")
    vW = vB0
    A("v_and_b32 v%d, 15, v0" % (vA0 + 3)); A("v_mul_u32_u24 v%d, 12, v%d" % (vA0 + 4, vA0 + 3)); A("v_lshlrev_b32 v%d, 4, v%d" % (vA0 + 3, vA0 + 3))
    A("s_mul_i32 s%d, s%d, 448" % (sT0, sWAVE))
    for k, n in enumerate(("W1", "B1", "W2")):
        A.vmem("buffer_load_dwordx4 %s, v%d, %s, s%d offen" % (vr(vW + 8 * k, 4), vA0 + 3, srd(n), sT0), tag="mw%da" % k)
        A.vmem("buffer_load_dwordx3 %s, v%d, %s, s%d offen offset:256" % (vr(vW + 8 * k + 4, 3), vA0 + 4, srd(n), sT0), tag="mw%db" % k)
    A.vmem("buffer_load_dword v%d, off, %s, s%d %s" % (vT, srd("V"), sBASE, pol), tag="vt")
    A("v_and_b32 v%d, 15, v0" % (vA0 + 5))
    A("v_lshlrev_b32 v%d, 13, v%d" % (vOP, vA0)); A("v_lshl_add_u32 v%d, v%d, 4, v%d" % (vOP, vA0 + 5, vOP))
    A("v_lshrrev_b32 v%d, 1, v%d" % (vSP, vA0 + 5)); A("v_lshlrev_b32 v%d, 16, v%d" % (vSP, vSP))
    A("v_lshl_add_u32 v%d, v%d, 4, v%d" % (vSP, vA0, vSP))
    A("v_and_b32 v%d, 1, v0" % (vA0 + 6)); A("v_lshl_add_u32 v%d, v%d, 11, v%d" % (vSP, vA0 + 6, vSP))
    A("s_bfe_u32 s%d, s%d, 0x30002" % (sT0, sR)); A("s_lshl_b32 s%d, s%d, 15" % (sT0, sT0))
    A("s_lshr_b32 s%d, s%d, 5" % (sT1, sR)); A("s_lshl_b32 s%d, s%d, 10" % (sT1, sT1)); A("s_add_u32 s%d, s%d, s%d" % (sT0, sT0, sT1))
    A("s_and_b32 s%d, s%d, 3" % (sT1, sR)); A("s_lshl_b32 s%d, s%d, 8" % (sT1, sT1)); A("s_add_u32 s%d, s%d, s%d" % (sT0, sT0, sT1))
    A("s_add_u32 s%d, s%d, 0x%x" % (sOPOFF, sT0, WS_OP))
    A("s_and_b32 s%d, s%d, 7" % (sT0, sR)); A("s_lshl_b32 s%d, s%d, 13" % (sT0, sT0))
    A("s_lshr_b32 s%d, s%d, 3" % (sT1, sR)); A("s_lshl_b32 s%d, s%d, 6" % (sT1, sT1)); A("s_add_u32 s%d, s%d, s%d" % (sT0, sT0, sT1))
    A("s_add_u32 s%d, s%d, 0x%x" % (sSPOFF, sT0, WS_SP))
    A("s_lshr_b32 s%d, s%d, 2" % (sT0, sR)); A("s_lshl_b32 s%d, s%d, 10" % (sT0, sT0)); A("s_add_u32 s%d, s%d, 0x%x" % (sSTOFF, sT0, WS_ST))
    skip = A.label("noclean")
    A("s_cmp_lg_u32 s%d, 0" % sWAVE); A("s_cbranch_scc1 " + skip)
    for i in range(4): A("v_mov_b32 v%d, -1" % (vG + i))
    A.vmem("buffer_store_dwordx4 %s, v%d, %s, s%d offen sc1" % (vr(vG, 4), vOP, srd("WS"), sOPOFF), optional=True)
    A.vmem("buffer_store_dwordx4 %s, v%d, %s, s%d offen sc1" % (vr(vG, 4), vSP, srd("WS"), sSPOFF), optional=True)
    A("s_add_u32 s%d, s%d, 4096" % (sT0, sSPOFF))
    A.vmem("buffer_store_dwordx4 %s, v%d, %s, s%d offen sc1" % (vr(vG, 4), vSP, srd("WS"), sT0), optional=True)
    A("v_lshlrev_b32 v%d, 8, v%d" % (vA0 + 3, vA0 + 1)); A("v_lshl_add_u32 v%d, v%d, 4, v%d" % (vA0 + 3, vA0 + 2, vA0 + 3))
    A("s_and_b32 s%d, s%d, 3" % (sT0, sR)); A("s_lshl_b32 s%d, s%d, 6" % (sT0, sT0)); A("s_add_u32 s%d, s%d, s%d" % (sT0, sT0, sSTOFF))
    A("s_mov_b64 exec, 0xffff")
    A.vmem("buffer_store_dwordx4 %s, v%d, %s, s%d offen sc1" % (vr(vG, 4), vA0 + 3, srd("WS"), sT0), optional=True)
    A("s_mov_b64 exec, -1")
    A(skip + ":")

    A.wait_vm("x")
    stamp()
    layernorm(vX, vX + 4, vX + 12)
    A("s_mul_i32 s%d, s%d, %d" % (sT0, sWAVE, XN_STRIDE)); A("v_add_u32 v%d, s%d, v%d" % (vA0 + 3, sT0, vL16))
    A("ds_write_b128 v%d, %s offset:%d" % (vA0 + 3, vr(vX, 4), L_XN))
    A("v_and_b32 v%d, 7, v0" % (vA0 + 4)); A("v_mul_u32_u24 v%d, %d, v%d" % (vA0 + 4, XN_STRIDE, vA0 + 4))
    A("v_lshl_add_u32 v%d, v%d, 4, v%d" % (vA0 + 4, vA0, vA0 + 4)); A("s_lshl_b32 s%d, s%d, 7" % (sT0, sWAVE)); A("v_add_u32 v%d, s%d, v%d" % (vA0 + 4, sT0, vA0 + 4))
    A("v_lshlrev_b32 v%d, 8, v%d" % (vA0 + 6, vA0)); A("v_lshl_add_u32 v%d, v%d, 3, v%d" % (vA0 + 6, vA0 + 5, vA0 + 6))
    A("s_lshl_b32 s%d, s%d, 11" % (sT0, sWAVE)); A("v_add_u32 v%d, s%d, v%d" % (vA0 + 6, sT0, vA0 + 6))
    A.wait_vm("wq1")
    A("s_waitcnt lgkmcnt(0)")
    A("s_barrier")
    for m in range(2):
        A("ds_read_b64_tr_b16 %s, v%d offset:%d" % (vr(vD + 4 * m, 2), vA0 + 6, L_WQ + m * 1024))
        A("ds_read_b64_tr_b16 %s, v%d offset:%d" % (vr(vD + 4 * m + 2, 2), vA0 + 6, L_WQ + m * 1024 + 128))
        A("ds_read_b128 %s, v%d offset:%d" % (vr(vD + 8 + 4 * m, 4), vA0 + 4, L_XN + m * 64))
    pump(1)
    A("s_waitcnt lgkmcnt(0)")
    A("v_mfma_f32_16x16x32_bf16 %s, %s, %s, 0" % (vr(vP, 4), vr(vD, 4), vr(vD + 8, 4)))
    A("v_mfma_f32_16x16x32_bf16 %s, %s, %s, %s" % (vr(vP, 4), vr(vD + 4, 4), vr(vD + 12, 4), vr(vP, 4)))
    layernorm(vX, vX + 4, vX + 12)
    A("s_lshl_b32 s%d, s%d, 10" % (sT0, sWAVE)); A("v_add_u32 v%d, s%d, v%d" % (vA0 + 3, sT0, vL16))
    A("ds_write_b128 v%d, %s offset:%d" % (vA0 + 3, vr(vP, 4), L_QP))
    A("ds_write_b128 v%d, %s offset:%d" % (vA0 + 3, vr(vX, 4), L_H))
    A.wait_vm("wo1")
    A("s_waitcnt lgkmcnt(0)")
    A("s_barrier")
    skip = A.label("nopub")
    A("s_cmp_lg_u32 s%d, 0" % sWAVE); A("s_cbranch_scc1 " + skip)
    for w in range(8): A("ds_read_b128 %s, v%d offset:%d" % (vr(vD + 4 * w, 4), vL16, L_QP + w * 1024))
    A("v_and_b32 v%d, 7, v0" % (vA0 + 3)); A("v_lshlrev_b32 v%d, 13, v%d" % (vA0 + 3, vA0 + 3)); A("v_lshl_add_u32 v%d, v%d, 3, v%d" % (vA0 + 3, vA0, vA0 + 3))
    A("s_lshl_b32 s%d, s%d, 5" % (sT0, sR))
    A("s_waitcnt lgkmcnt(0)")
    for w in range(1, 8):
        for i in range(4): A("v_add_f32 v%d, v%d, v%d" % (vD + i, vD + i, vD + 4 * w + i))
    A("v_cvt_pk_bf16_f32 v%d, v%d, v%d" % (vD + 4, vD, vD + 1)); A("v_cvt_pk_bf16_f32 v%d, v%d, v%d" % (vD + 5, vD + 2, vD + 3))
    A("s_mov_b32 exec_lo, 0x00ff00ff"); A("s_mov_b32 exec_hi, 0x00ff00ff")
    A.vmem("buffer_store_dwordx2 %s, v%d, %s, s%d offen sc1" % (vr(vD + 4, 2), vA0 + 3, srd("WS"), sT0), optional=True)
    A("s_mov_b64 exec, 1")
    A("v_mov_b32 v%d, 1" % (vD + 6))
    A("s_and_b32 s%d, s2, 3" % sT0); A("s_lshl_b32 s%d, s%d, 6" % (sT0, sT0))
    A("s_waitcnt vmcnt(0)")
    A.vmem("buffer_atomic_add v%d, off, %s, s%d" % (vD + 6, srd("DBG"), sT0), optional=True)
    A("s_mov_b64 exec, -1")
    A(skip + ":")
    stamp()

    vH = vS
    A("s_lshr_b32 s%d, s%d, 5" % (sT0, sR)); A("s_lshl_b32 s%d, s%d, 10" % (sT0, sT0))
    A("s_and_b32 s%d, s%d, 31" % (sT1, sR)); A("s_lshl_b32 s%d, s%d, 5" % (sT1, sT1)); A("s_add_u32 s%d, s%d, s%d" % (sT0, sT0, sT1))
    A("v_lshlrev_b32 v%d, 3, v%d" % (vA0 + 3, vA0)); A("v_add_u32 v%d, s%d, v%d" % (vA0 + 3, sT0, vA0 + 3))
    A("ds_read_b64 %s, v%d offset:%d" % (vr(vH + 8, 2), vA0 + 3, L_H))
    A.wait_vm("mw2b")
    for i in range(4): A("v_mov_b32 v%d, 0" % (vH + 4 + i))
    A("s_waitcnt lgkmcnt(0)")
    unpack(vH, vH + 1, vH + 8); unpack(vH + 2, vH + 3, vH + 9)
    cw, cb, c2, U, T, E = vH + 8, vH + 9, vH + 10, vH + 12, vH + 16, vH + 20
    vC0 = vH + 11
    A("v_mov_b32 v%d, s%d" % (vC0, sC0))
    for t in range(14):
        for k, d in enumerate((cw, cb, c2)):
            src = vW + 8 * k + t // 2
            if t % 2 == 0: A("v_lshlrev_b32 v%d, 16, v%d" % (d, src))
            else: A("v_and_b32 v%d, s%d, v%d" % (d, sMASK, src))
        for p in range(4): A("v_fma_f32 v%d, v%d, v%d, v%d" % (U + p, vH + p, cw, cb))
        for p in range(4): A("v_mul_f32 v%d, v%d, v%d" % (T + p, U + p, U + p))
        for p in range(4): A("v_fma_f32 v%d, v%d, s%d, v%d" % (T + p, T + p, sC1, vC0))
        for p in range(4): A("v_mul_f32 v%d, v%d, v%d" % (T + p, T + p, U + p))
        for p in range(4): A("v_exp_f32 v%d, v%d" % (E + p, T + p))
        for p in range(4): A("v_mul_f32 v%d, v%d, v%d" % (U + p, U + p, c2))
        for p in range(4): A("v_add_f32 v%d, 1.0, v%d" % (E + p, E + p))
        for p in range(4): A("v_rcp_f32 v%d, v%d" % (E + p, E + p))
        pump(1)
        for p in range(4): A("v_fmac_f32 v%d, v%d, v%d" % (vH + 4 + p, U + p, E + p))
    for m in ("quad_perm:[1,0,3,2]", "quad_perm:[2,3,0,1]", "row_half_mirror", "row_mirror"):
        for p in range(4): A("v_add_f32_dpp v%d, v%d, v%d %s row_mask:0xf bank_mask:0xf" % (vH + 4 + p, vH + 4 + p, vH + 4 + p, m))
    A("s_lshl_b32 s%d, s%d, 6" % (sT0, sWAVE)); A("v_lshlrev_b32 v%d, 4, v%d" % (vA0 + 3, vA0)); A("v_add_u32 v%d, s%d, v%d" % (vA0 + 3, sT0, vA0 + 3))
    A("s_mov_b32 exec_lo, 0x00010001"); A("s_mov_b32 exec_hi, 0x00010001")
    A("ds_write_b128 v%d, %s offset:%d" % (vA0 + 3, vr(vH + 4, 4), L_YP))
    A("s_mov_b64 exec, -1")
    stamp()

    pump_to(poll_at)
    A("v_lshlrev_b32 v%d, 6, v%d" % (vA0 + 3, vA0 + 2))
    def issue_flag(opt=False):
        A.vmem("buffer_load_dword v%d, v%d, %s, 0 offen sc1" % (vG, vA0 + 3, srd("DBG")), tag="flag", optional=opt)
    issue_flag()
    A("v_lshlrev_b32 v%d, 8, v%d" % (vA0 + 4, vA0 + 1)); A("v_lshl_add_u32 v%d, v%d, 6, v%d" % (vA0 + 4, vA0, vA0 + 4)); A("v_lshl_add_u32 v%d, v%d, 4, v%d" % (vA0 + 4, vA0 + 2, vA0 + 4))
    pump_to(q_at)
    check_loop(issue_flag, [vG], "flag", cond="flag")
    stamp()
    A("s_sub_u32 s%d, s%d, 0x%x" % (sT0, sSTOFF, WS_ST - WS_Q))
    A.vmem("buffer_load_dwordx4 %s, v%d, %s, s%d offen sc1" % (vr(vQ, 4), vA0 + 4, srd("WS"), sT0), tag="q")
    pump_to(qk_at)
    A.wait_vm("q")
    stamp()
    def qk(i): A("v_mfma_f32_16x16x32_bf16 %s, %s, %s, 0" % (vr(vD + 4 * (i % 4), 4), vr(vKR + 4 * i, 4), vr(vQ, 4)))
    def diag(i, step):
        d = vD + 4 * (i % 4) + step
        qp = "quad_perm:[%d,%d,%d,%d] row_mask:0xf bank_mask:0xf" % ((step,) * 4)
        if step == 0: A("v_mov_b32_dpp v%d, v%d %s" % (vS + i, d, qp))
        else: A("v_add_f32_dpp v%d, v%d, v%d %s" % (vS + i, d, vS + i, qp))
    A.wait_vm("L31")
    qk(0); qk(1)
    for j in range(16):
        if j + 1 < 16: qk(2 * j + 2); qk(2 * j + 3)
        for step in range(4):
            diag(2 * j, step); diag(2 * j + 1, step)
        if j >= 1:
            a, b, t = vS + 2 * j - 2, vS + 2 * j - 1, vT
            if mimic:
                A("v_cvt_pk_bf16_f32 v%d, v%d, v%d" % (t, a, b)); unpack(a, b, t)
            A("v_mul_f32 v%d, s%d, v%d" % (a, sSCALE, a)); A("v_mul_f32 v%d, s%d, v%d" % (b, sSCALE, b))
            if mimic:
                A("v_cvt_pk_bf16_f32 v%d, v%d, v%d" % (t, a, b)); unpack(a, b, t)
            if j == 1: A("v_max_f32 v%d, v%d, v%d" % (vM, a, b))
            else: A("v_max3_f32 v%d, v%d, v%d, v%d" % (vM, a, b, vM))
        if j % 2 == 1 and nxt[0] < 40 + 2 * j: pump(1)
    a, b, t = vS + 30, vS + 31, vT
    if mimic:
        A("v_cvt_pk_bf16_f32 v%d, v%d, v%d" % (t, a, b)); unpack(a, b, t)
    A("v_mul_f32 v%d, s%d, v%d" % (a, sSCALE, a)); A("v_mul_f32 v%d, s%d, v%d" % (b, sSCALE, b))
    if mimic:
        A("v_cvt_pk_bf16_f32 v%d, v%d, v%d" % (t, a, b)); unpack(a, b, t)
    A("v_max3_f32 v%d, v%d, v%d, v%d" % (vM, a, b, vM))
    red_rows(vM, vT, "v_max_f32")
    A("v_mul_f32 v%d, s%d, v%d" % (vM, sL2E, vM))
    A("v_lshlrev_b32 v%d, 4, v%d" % (vT + 1, vA0)); A("ds_bpermute_b32 v%d, v%d, v%d" % (vMO, vT + 1, vM))
    for j in range(16):
        a, b = vS + 2 * j, vS + 2 * j + 1
        A("v_fma_f32 v%d, v%d, s%d, -v%d" % (a, a, sL2E, vM)); A("v_fma_f32 v%d, v%d, s%d, -v%d" % (b, b, sL2E, vM))
        A("v_exp_f32 v%d, v%d" % (a, a)); A("v_exp_f32 v%d, v%d" % (b, b))
        if j >= 1:
            pa, pb = a - 2, b - 2
            if j == 1: A("v_add_f32 v%d, v%d, v%d" % (vLs, pa, pb))
            else: A("v_add_f32 v%d, v%d, v%d" % (vLs, vLs, pa)); A("v_add_f32 v%d, v%d, v%d" % (vLs, vLs, pb))
            A("v_cvt_pk_bf16_f32 v%d, v%d, v%d" % (vP + j - 1, pa, pb))
        if j % 4 == 3: pump(1)
    A("v_add_f32 v%d, v%d, v%d" % (vLs, vLs, vS + 30)); A("v_add_f32 v%d, v%d, v%d" % (vLs, vLs, vS + 31))
    A("v_cvt_pk_bf16_f32 v%d, v%d, v%d" % (vP + 15, vS + 30, vS + 31))
    red_rows(vLs, vT, "v_add_f32")
    A("v_lshlrev_b32 v%d, 8, v%d" % (vA0 + 3, vA0 + 1))
    A("s_and_b32 s%d, s%d, 3" % (sT0, sR)); A("s_lshl_b32 s%d, s%d, 3" % (sT0, sT0)); A("s_add_u32 s%d, s%d, s%d" % (sT0, sT0, sWAVE))
    A("s_lshl_b32 s%d, s%d, 3" % (sT0, sT0)); A("s_add_u32 s%d, s%d, s%d" % (sT0, sT0, sSTOFF))
    A("v_mov_b32 v%d, v%d" % (vG, vM)); A("v_mov_b32 v%d, v%d" % (vG + 1, vLs))
    A("s_mov_b64 exec, 0x1111")
    A.vmem("buffer_store_dwordx2 %s, v%d, %s, s%d offen sc1" % (vr(vG, 2), vA0 + 3, srd("WS"), sT0), tag="ststore")
    A("s_mov_b64 exec, -1")
    stamp()

    def pv_perm(beta, q, T):
        base = ldreg(32 + 8 * beta)
        for a in range(4):
            lo, hi = base + 8 * a + q, base + 8 * a + 4 + q
            A("v_perm_b32 v%d, v%d, v%d, s%d" % (T + a, hi, lo, sSELLO))
            A("v_perm_b32 v%d, v%d, v%d, s%d" % (T + 4 + a, hi, lo, sSELHI))
    def pv_mfma(beta, q, T):
        for s in range(2):
            acc = vr(vS + 4 * (2 * q + s), 4)
            A("v_mfma_f32_16x16x32_bf16 %s, %s, %s, %s" % (acc, vr(vP + 4 * beta, 4), vr(T + 4 * s, 4), "0" if beta == 0 else acc))
    def pv_block(beta, pumps):
        A.wait_vm("L%d" % (32 + 8 * beta + 7))
        pv_perm(beta, 0, vD)
        for q in range(4):
            if q + 1 < 4: pv_perm(beta, q + 1, vD + 8 * ((q + 1) % 2))
            pv_mfma(beta, q, vD + 8 * (q % 2))
            if pumps: pump(1)
    pump_to(47)
    pv_block(0, True)
    vWO = vB0
    A("v_lshrrev_b32 v%d, 2, v%d" % (vA0 + 3, vA0 + 5)); A("v_lshlrev_b32 v%d, 7, v%d" % (vA0 + 3, vA0 + 3))
    A("v_lshl_add_u32 v%d, v%d, 10, v%d" % (vA0 + 3, vA0, vA0 + 3)); A("v_lshl_add_u32 v%d, v%d, 3, v%d" % (vA0 + 3, vA0 + 2, vA0 + 3))
    A("s_and_b32 s%d, s%d, 3" % (sT0, sWAVE)); A("s_lshl_b32 s%d, s%d, 5" % (sT0, sT0)); A("v_add_u32 v%d, s%d, v%d" % (vA0 + 3, sT0, vA0 + 3))
    A("s_nop 7")
    for m in range(4):
        A("ds_read_b64_tr_b16 %s, v%d offset:%d" % (vr(vWO + 4 * m, 2), vA0 + 3, L_WO + m * 4096))
        A("ds_read_b64_tr_b16 %s, v%d offset:%d" % (vr(vWO + 4 * m + 2, 2), vA0 + 3, L_WO + m * 4096 + 512))
    vOIW, vOIR = vB0 + 16, vB0 + 17
    A("v_and_b32 v%d, 1, v%d" % (vT, vA0)); A("s_lshl_b32 s%d, s%d, 1" % (sT0, sWAVE)); A("v_add_u32 v%d, s%d, v%d" % (vT, sT0, vT))
    A("v_xor_b32 v%d, v%d, v%d" % (vT, vT, vA0 + 5)); A("v_lshlrev_b32 v%d, 4, v%d" % (vT, vT)); A("v_lshl_add_u32 v%d, v%d, 8, v%d" % (vT, vA0, vT))
    A("s_lshl_b32 s%d, s%d, 10" % (sT0, sWAVE)); A("v_add_u32 v%d, s%d, v%d" % (vOIW, sT0, vT))
    A("v_lshrrev_b32 v%d, 1, v%d" % (vT, vA0 + 5)); A("v_lshlrev_b32 v%d, 10, v%d" % (vT, vT)); A("v_and_b32 v%d, 1, v0" % (vT + 1)); A("v_lshl_add_u32 v%d, v%d, 8, v%d" % (vT, vT + 1, vT))
    for m in range(4):
        A("v_add_u32 v%d, %d, v%d" % (vT + 1, 4 * m, vA0)); A("v_xor_b32 v%d, v%d, v%d" % (vT + 1, vT + 1, vA0 + 5))
        A("v_lshl_add_u32 v%d, v%d, 4, v%d" % (vOIR + m, vT + 1, vT))
    pump_to(st_poll)
    def issue_st(opt=False):
        A.vmem("buffer_load_dwordx4 %s, v%d, %s, s%d offen sc1" % (vr(vG, 4), vL16, srd("WS"), sSTOFF), tag="st", optional=opt)
    issue_st()
    pump_to(55)
    pv_block(1, True)
    pump_to(63)
    check_loop(issue_st, [vG, vG + 1, vG + 2, vG + 3], "st")
    stamp()
    A("v_max_f32 v%d, v%d, v%d" % (vT, vG, vG + 2)); red16(vT, "v_max_f32")
    A("v_sub_f32 v%d, v%d, v%d" % (vG, vG, vT)); A("v_sub_f32 v%d, v%d, v%d" % (vG + 2, vG + 2, vT))
    A("s_waitcnt lgkmcnt(0)")
    A("v_sub_f32 v%d, v%d, v%d" % (vF, vMO, vT))
    A("v_exp_f32 v%d, v%d" % (vG, vG)); A("v_exp_f32 v%d, v%d" % (vG + 2, vG + 2)); A("v_exp_f32 v%d, v%d" % (vF, vF))
    A("v_mul_f32 v%d, v%d, v%d" % (vG, vG, vG + 1)); A("v_fmac_f32 v%d, v%d, v%d" % (vG, vG + 2, vG + 3))
    red16(vG, "v_add_f32")
    A("v_rcp_f32 v%d, v%d" % (vG, vG)); A("v_mul_f32 v%d, v%d, v%d" % (vF, vF, vG))
    pv_block(2, False)
    TB = vKR + 96
    base = ldreg(56)
    A("s_lshl_b32 s%d, s%d, 11" % (sT0, sWAVE)); A("v_add_u32 v%d, s%d, v%d" % (vA0 + 3, sT0, vL16))
    for a in range(4):
        A.wait_vm("L%d" % (56 + 2 * a + 1))
        if a == 3: stamp()
        for q in range(4):
            lo, hi = base + 8 * a + q, base + 8 * a + 4 + q
            A("v_perm_b32 v%d, v%d, v%d, s%d" % (TB + 8 * q + a, hi, lo, sSELLO))
            A("v_perm_b32 v%d, v%d, v%d, s%d" % (TB + 8 * q + 4 + a, hi, lo, sSELHI))
    for q in range(4): pv_mfma(3, q, TB + 8 * q)
    for d in range(8): A("v_mul_f32 v%d, v%d, v%d" % (vD + d, vF, vS + 4 * d))
    A("ds_write_b128 v%d, %s offset:%d" % (vA0 + 3, vr(vD, 4), L_OW))
    A("ds_write_b128 v%d, %s offset:%d" % (vA0 + 3, vr(vD + 4, 4), L_OW + 1024))
    A("s_waitcnt lgkmcnt(0)")
    A("s_barrier")
    stamp()
    skip = A.label("noop")
    A("s_cmp_gt_u32 s%d, 1" % sWAVE); A("s_cbranch_scc1 " + skip)
    A("s_lshl_b32 s%d, s%d, 10" % (sT0, sWAVE)); A("v_add_u32 v%d, s%d, v%d" % (vA0 + 3, sT0, vL16))
    for w in range(8): A("ds_read_b128 %s, v%d offset:%d" % (vr(vS + 4 * w, 4), vA0 + 3, L_OW + w * 2048))
    A("s_lshl_b32 s%d, s%d, 3" % (sT0, sWAVE)); A("s_add_u32 s%d, s%d, s%d" % (sT0, sT0, sOPOFF))
    for w, cnt in ((1, 6), (3, 4), (5, 2), (7, 0)):
        A("s_waitcnt lgkmcnt(%d)" % cnt)
        for i in range(4): A("v_add_f32 v%d, v%d, v%d" % (vS + 4 * w + i, vS + 4 * (w - 1) + i, vS + 4 * w + i))
        if w in (3, 7):
            for i in range(4): A("v_add_f32 v%d, v%d, v%d" % (vS + 4 * w + i, vS + 4 * (w - 2) + i, vS + 4 * w + i))
    for i in range(4): A("v_add_f32 v%d, v%d, v%d" % (vS + 28 + i, vS + 12 + i, vS + 28 + i))
    A("v_cvt_pk_bf16_f32 v%d, v%d, v%d" % (vD, vS + 28, vS + 29)); A("v_cvt_pk_bf16_f32 v%d, v%d, v%d" % (vD + 1, vS + 30, vS + 31))
    A.vmem("buffer_store_dwordx2 %s, v%d, %s, s%d offen sc1" % (vr(vD, 2), vOP, srd("WS"), sT0), optional=True)
    A(skip + ":")
    A("s_lshr_b32 s%d, s%d, 3" % (sT1, sR)); A("s_lshl_b32 s%d, s%d, 13" % (sT1, sT1)); A("s_lshl_b32 s%d, s%d, 10" % (sT0, sWAVE))
    A("s_add_u32 s%d, s%d, s%d" % (sT1, sT1, sT0)); A("s_add_u32 s%d, s%d, 0x%x" % (sT1, sT1, WS_OP))
    def issue_op(opt=False):
        A.vmem("buffer_load_dwordx4 %s, v%d, %s, s%d offen sc1" % (vr(vG, 4), vL16, srd("WS"), sT1), tag="op", optional=opt)
    issue_op()
    A.vm = ["op"]; A("s_waitcnt vmcnt(0)"); A.vm = []
    check_loop(issue_op, [vG, vG + 1, vG + 2, vG + 3], "op")
    A("ds_write_b128 v%d, %s offset:%d" % (vOIW, vr(vG, 4), L_OI))
    A("s_waitcnt lgkmcnt(0)")
    A("s_barrier")
    stamp()
    fin = A.label("fin")
    A("s_cmp_gt_u32 s%d, 3" % sWAVE); A("s_cbranch_scc1 " + fin)
    for u in range(2):
        for m in range(4):
            A("ds_read_b128 %s, v%d offset:%d" % (vr(vS + 16 * u + 4 * m, 4), vOIR + m, L_OI + u * 512))
    A("s_lshl_b32 s%d, s%d, 11" % (sT0, sWAVE)); A("s_add_u32 s%d, s%d, s%d" % (sT0, sT0, sSPOFF))
    for u in range(2):
        for m in range(4):
            A("s_waitcnt lgkmcnt(%d)" % (7 - 4 * u - m))
            acc = vr(vD + 4 * u, 4)
            A("v_mfma_f32_16x16x32_bf16 %s, %s, %s, %s" % (acc, vr(vWO + 4 * m, 4), vr(vS + 16 * u + 4 * m, 4), "0" if m == 0 else acc))
    for i in range(4): A("v_add_f32 v%d, v%d, v%d" % (vD + i, vD + i, vD + 4 + i))
    for i in range(4): A("v_add_f32_dpp v%d, v%d, v%d quad_perm:[1,0,3,2] row_mask:0xf bank_mask:0xf" % (vD + i, vD + i, vD + i))
    A("s_mov_b32 exec_lo, 0x55555555"); A("s_mov_b32 exec_hi, 0x55555555")
    A.vmem("buffer_store_dwordx4 %s, v%d, %s, s%d offen sc1" % (vr(vD, 4), vSP, srd("WS"), sT0), optional=True)
    A("s_mov_b64 exec, -1")
    A("s_branch L_done")
    A(fin + ":")
    A("s_cmp_lg_u32 s%d, 4" % sWAVE); A("s_cbranch_scc1 L_done")
    A("s_lshl_b32 s%d, s%d, 11" % (sT1, sR)); A("s_add_u32 s%d, s%d, 0x%x" % (sT1, sT1, WS_SP))
    def issue_sp(opt=False):
        A.vmem("buffer_load_dwordx4 %s, v%d, %s, s%d offen sc1" % (vr(vD, 4), vL16, srd("WS"), sT1), tag="sp0", optional=opt)
        A.vmem("buffer_load_dwordx4 %s, v%d, %s, s%d offen offset:1024 sc1" % (vr(vD + 4, 4), vL16, srd("WS"), sT1), tag="sp1", optional=opt)
    A("v_lshl_add_u32 v%d, v%d, 2, v%d" % (vA0 + 3, vA0 + 2, vA0))
    A("v_lshlrev_b32 v%d, 1, v%d" % (vA0 + 4, vA0 + 3)); A("s_lshl_b32 s%d, s%d, 5" % (sT0, sR))
    A.vmem("buffer_load_ushort v%d, v%d, %s, s%d offen" % (vT + 1, vA0 + 4, srd("X"), sT0), tag="xf")
    issue_sp()
    A("v_lshlrev_b32 v%d, 2, v%d" % (vA0 + 3, vA0 + 3))
    for w in range(8): A("ds_read_b32 v%d, v%d offset:%d" % (vS + w, vA0 + 3, L_YP + w * 64))
    A("s_waitcnt lgkmcnt(0)")
    for w in range(1, 8): A("v_add_f32 v%d, v%d, v%d" % (vS, vS, vS + w))
    rbf(vS)
    A("s_lshl_b32 s%d, s%d, 16" % (sB2, sB2)); A("v_add_f32 v%d, s%d, v%d" % (vS, sB2, vS)); rbf(vS)
    A("v_mul_f32 v%d, s%d, v%d" % (vS + 1, sL2E, vS)); A("v_exp_f32 v%d, -v%d" % (vS + 1, vS + 1)); A("v_add_f32 v%d, 1.0, v%d" % (vS + 1, vS + 1))
    A("v_rcp_f32 v%d, v%d" % (vS + 1, vS + 1)); A("v_mul_f32 v%d, v%d, v%d" % (vS, vS, vS + 1)); rbf(vS)
    check_loop(issue_sp, list(range(vD, vD + 8)), "sp1")
    stamp()
    for i in range(4): A("v_add_f32 v%d, v%d, v%d" % (vD + i, vD + i, vD + 4 + i))
    A("v_lshlrev_b32 v%d, 16, v%d" % (vT + 1, vT + 1))
    A("v_permlane32_swap_b32 v%d, v%d" % (vD, vD + 2)); A("v_permlane32_swap_b32 v%d, v%d" % (vD + 1, vD + 3))
    A("v_add_f32 v%d, v%d, v%d" % (vD, vD, vD + 2)); A("v_add_f32 v%d, v%d, v%d" % (vD + 1, vD + 1, vD + 3))
    A("v_permlane16_swap_b32 v%d, v%d" % (vD, vD + 1)); A("v_add_f32 v%d, v%d, v%d" % (vD, vD, vD + 1))
    A("v_add_f32_dpp v%d, v%d, v%d row_ror:8 row_mask:0xf bank_mask:0xf" % (vD, vD, vD))
    A("v_add_f32_dpp v%d, v%d, v%d row_ror:4 row_mask:0xf bank_mask:0xf" % (vD, vD, vD))
    rbf(vD); A("v_mul_f32 v%d, v%d, v%d" % (vD, vD, vS)); rbf(vD)
    A("v_add_f32 v%d, v%d, v%d" % (vD, vD, vT + 1)); A("v_cvt_pk_bf16_f32 v%d, v%d, v%d" % (vD, vD, vD))
    A("s_mov_b32 exec_lo, 0x000f000f"); A("s_mov_b32 exec_hi, 0x000f000f")
    A.vmem("buffer_store_short v%d, v%d, %s, s%d offen" % (vD, vA0 + 4, srd("OUT"), sT0), optional=True)
    A("s_mov_b64 exec, -1")
    A("L_done:")
    if stamps:
        A("s_waitcnt vmcnt(0)")
        A("s_memrealtime s[42:43]")
        A("s_waitcnt lgkmcnt(0)")
        ns = 14
        A("s_lshl_b32 s%d, s2, 3" % sT0); A("s_add_u32 s%d, s%d, s%d" % (sT0, sT0, sWAVE)); A("s_mul_i32 s%d, s%d, %d" % (sT0, sT0, ns * 8)); A("s_add_u32 s%d, s%d, 0x%x" % (sT0, sT0, WS_STAMP))
        A("s_mov_b64 exec, 1")
        for k in range(14):
            kk = k if k < stamp_n[0] else 13
            A("v_mov_b32 v2, s%d" % (16 + 2 * kk)); A("v_mov_b32 v3, s%d" % (17 + 2 * kk))
            A("buffer_store_dwordx2 v[2:3], off, %s, s%d offset:%d" % (srd("WS"), sT0, k * 8)); A("s_nop 1")
    A("L_end:")
    A("s_endpgm")
    body = A.finalize()
    hdr = open("recurrent_scan__gqa_block_cached__mixer_token_mlp__decode.s.ref").read().split("; Override launch")[0]
    s = hdr + "; @launch grid=(256,1,1) block=(512,1,1) lds=%d\n" % LDS_BYTES
    s += '.amdgcn_target "amdgcn-amd-amdhsa--gfx950"\n.text\n.globl %s\n.p2align 8\n.type %s,@function\n%s:\n' % (NAME, NAME, NAME)
    s += body
    s += '.section .rodata,"a"\n.p2align 6\n.amdhsa_kernel %s\n  .amdhsa_next_free_vgpr 256\n  .amdhsa_next_free_sgpr 102\n  .amdhsa_accum_offset 256\n' % NAME
    s += "  .amdhsa_group_segment_fixed_size 0\n  .amdhsa_kernarg_size 104\n  .amdhsa_user_sgpr_count 2\n  .amdhsa_user_sgpr_kernarg_segment_ptr 1\n  .amdhsa_system_sgpr_workgroup_id_x 1\n.end_amdhsa_kernel\n"
    return s, A

if __name__ == "__main__":
    out = sys.argv[1]
    kw = {}
    for p in sys.argv[2:]:
        k, v = p.split("=")
        kw[k] = int(v) if v.lstrip("-").isdigit() else v.replace("+", " ")
    s, A = gen(**kw)
    open(out, "w").write(s)
    print("wrote", out, "instructions", len(A.ins), "nops", A.nops)
```

```python
import sys, struct
from asmlib import Asm

NAME = "recurrent_scan__gqa_block_cached__mixer_token_mlp__decode_kernel"
def f2u(x): return struct.unpack("<I", struct.pack("<f", x))[0]

WS_Q, WS_ST, WS_OP, WS_SP = 0x0, 0x10000, 0x20000, 0x60000
WS_STAMP = 128 << 20
L_XN, XN_STRIDE = 0, 1040
L_H = 8448
L_WQ = 17408
L_WO = 33792
L_QP = 50176
L_YP = 58368
L_OW = L_WQ
L_OI = 0
LDS_BYTES = 58880
sWAVE = 3
sBASE = 4
sOFF = 5
sT0, sT1, sT2 = 6, 7, 8
sR = 9
sSPIN = 10
sEX = 12
sMU, sMB = 14, 15
SRD = dict(K=44, V=48, X=52, WQ=56, WO=60, W1=64, B1=68, W2=72, OUT=76, DBG=80, WS=84)
KARG = dict(X=0, K=8, V=16, WQ=24, WO=32, W1=48, B1=56, W2=64, OUT=80, DBG=88, WS=96)
SIZE = dict(X=8192, K=1 << 26, V=1 << 26, WQ=1 << 22, WO=1 << 22, W1=3584, B1=3584, W2=3584, OUT=8192, DBG=256, WS=1 << 28)
sSELLO, sSELHI, sMASK, sSCALE, sL2E, sC0, sC1, sB2P = 88, 89, 90, 91, 92, 93, 94, 96
sOPOFF, sSPOFF, sSTOFF = 98, 99, 100
sB2 = 95
def srd(n): return "s[%d:%d]" % (SRD[n], SRD[n] + 3)
vL, vK, vL16, vOP, vSP = 0, 1, 2, 3, 4
vM, vLs, vMO, vF = 5, 6, 7, 8
vA0 = 9
vG = 16
vT = 20
vQ = 28
vD = 32
vP = 48
vS = 64
vB0 = 96
vKR = 128
def vr(a, n=1): return "v%d" % a if n == 1 else "v[%d:%d]" % (a, a + n - 1)

def gen(D=6, D0=6, stamps=0, pol="nt", poll_at=26, q_at=31, qk_at=37, st_poll=54, spin=1 << 17, mimic=1, regmap="xcd", K0=0, lnpump=1, dbgspan=0):
    A = Asm()
    stamp_n = [0]
    def stamp():
        if stamps or dbgspan:
            k = stamp_n[0]; assert k < 14
            A("s_memrealtime s[%d:%d]" % (16 + 2 * k, 17 + 2 * k)); stamp_n[0] += 1
    nxt = [0]
    def ldreg(n):
        if n < 32: return vKR + 4 * n
        n -= 32
        return vB0 + 4 * n if n < 8 else vKR + 4 * (n - 8)
    def pump(cnt=1, depth=None):
        for _ in range(cnt):
            n = nxt[0]
            if n >= 64: return
            i = n % 32
            if i % 4 == 0:
                A("s_add_u32 s%d, s%d, %d" % (sOFF, sBASE, (i // 4) * 32768) if i else "s_mov_b32 s%d, s%d" % (sOFF, sBASE))
            A.wait_depth((depth or D) - 1)
            isk = n < 32
            A.vmem("buffer_load_dwordx4 %s, v%d, %s, s%d offen offset:%d %s" % (
                vr(ldreg(n), 4), vK if isk else vL16, srd("K" if isk else "V"), sOFF, (i % 4) * 1024, pol), tag="L%d" % n)
            nxt[0] += 1
    def pump_to(n):
        while nxt[0] <= n and nxt[0] < 64: pump(1)

    def red64(v, op="v_add_f32"):
        for m in ("quad_perm:[1,0,3,2]", "quad_perm:[2,3,0,1]", "row_half_mirror", "row_mirror"):
            A("%s_dpp v%d, v%d, v%d %s row_mask:0xf bank_mask:0xf" % (op, v, v, v, m))
        A("%s_dpp v%d, v%d, v%d row_bcast:15 row_mask:0xa bank_mask:0xf" % (op, v, v, v))
        A("%s_dpp v%d, v%d, v%d row_bcast:31 row_mask:0xc bank_mask:0xf" % (op, v, v, v))
    def red16(v, op):
        for m in ("quad_perm:[1,0,3,2]", "quad_perm:[2,3,0,1]", "row_half_mirror", "row_mirror"):
            A("%s_dpp v%d, v%d, v%d %s row_mask:0xf bank_mask:0xf" % (op, v, v, v, m))
    def red_rows(v, t, op):
        A("v_mov_b32 v%d, v%d" % (t, v)); A("v_permlane32_swap_b32 v%d, v%d" % (v, t)); A("%s v%d, v%d, v%d" % (op, v, v, t))
        A("v_mov_b32 v%d, v%d" % (t, v)); A("v_permlane16_swap_b32 v%d, v%d" % (v, t)); A("%s v%d, v%d, v%d" % (op, v, v, t))
    def rbf(v):
        A("v_cvt_pk_bf16_f32 v%d, v%d, v%d" % (v, v, v)); A("v_lshlrev_b32 v%d, 16, v%d" % (v, v))
    def unpack(dlo, dhi, src):
        A("v_lshlrev_b32 v%d, 16, v%d" % (dlo, src)); A("v_and_b32 v%d, s%d, v%d" % (dhi, sMASK, src))
    def layernorm(pk, x, t):
        for i in range(4): unpack(x + 2 * i, x + 2 * i + 1, pk + i)
        A("v_add_f32 v%d, v%d, v%d" % (t, x, x + 1))
        for i in range(2, 8): A("v_add_f32 v%d, v%d, v%d" % (t, t, x + i))
        red64(t)
        A("v_mul_f32 v%d, 0x3b000000, v%d" % (t, t))
        A("v_cvt_pk_bf16_f32 v%d, v%d, v%d" % (t + 1, t, t)); A("v_readlane_b32 s%d, v%d, 63" % (sMU, t))
        A("v_lshlrev_b32 v%d, 16, v%d" % (t + 1, t + 1)); A("v_readlane_b32 s%d, v%d, 63" % (sMB, t + 1))
        for i in range(8): A("v_subrev_f32 v%d, s%d, v%d" % (t + 1 + i, sMU, x + i))
        A("v_mul_f32 v%d, v%d, v%d" % (t, t + 1, t + 1))
        for i in range(1, 8): A("v_fmac_f32 v%d, v%d, v%d" % (t, t + 1 + i, t + 1 + i))
        for i in range(8): A("v_subrev_f32 v%d, s%d, v%d" % (x + i, sMB, x + i))
        if lnpump: pump(1, depth=D0 + 6)
        red64(t)
        for i in range(4): A("v_cvt_pk_bf16_f32 v%d, v%d, v%d" % (pk + i, x + 2 * i, x + 2 * i + 1))
        A("v_mul_f32 v%d, 0x3b000000, v%d" % (t, t)); rbf(t)
        A("v_add_f32 v%d, 0x%x, v%d" % (t, f2u(1e-5), t)); rbf(t)
        A("v_sqrt_f32 v%d, v%d" % (t, t)); rbf(t)
        A("v_rcp_f32 v%d, v%d" % (t, t))
        for i in range(4): unpack(x + 2 * i, x + 2 * i + 1, pk + i)
        A("v_readlane_b32 s%d, v%d, 63" % (sMU, t))
        for i in range(8): A("v_mul_f32 v%d, s%d, v%d" % (x + i, sMU, x + i))
        for i in range(4): A("v_cvt_pk_bf16_f32 v%d, v%d, v%d" % (pk + i, x + 2 * i, x + 2 * i + 1))
    def check_loop(issue, regs, first_tag, cond="sent"):
        ok = A.label("ok"); again = A.label("again")
        A.wait_vm(first_tag)
        A("s_mov_b32 s%d, 0" % sSPIN)
        A(again + ":")
        if cond == "sent":
            t = vT + 7
            A("v_max3_u32 v%d, v%d, v%d, v%d" % (t, regs[0], regs[1], regs[2]))
            k = 3
            while k < len(regs):
                if k + 1 < len(regs): A("v_max3_u32 v%d, v%d, v%d, v%d" % (t, t, regs[k], regs[k + 1])); k += 2
                else: A("v_max_u32 v%d, v%d, v%d" % (t, t, regs[k])); k += 1
            A("v_cmp_ne_u32 vcc, -1, v%d" % t)
        else:
            A("v_cmp_eq_u32 vcc, 64, v%d" % regs[0])
        A("s_cmp_eq_u64 vcc, -1"); A("s_cbranch_scc1 " + ok)
        A("s_add_u32 s%d, s%d, 1" % (sSPIN, sSPIN)); A("s_cmp_ge_u32 s%d, %d" % (sSPIN, spin)); A("s_cbranch_scc1 " + ok)
        issue(True)
        A("s_waitcnt vmcnt(0)")
        A("s_branch " + again)
        A(ok + ":")

    A("s_cmp_ge_u32 s2, 256"); A("s_cbranch_scc1 L_end")
    stamp()
    if stamps or dbgspan: A("s_mov_b64 s[38:39], 0")
    for n in ("K", "WS", "X", "WQ", "V", "WO", "W1", "B1", "W2", "DBG", "OUT"):
        A("s_load_dwordx2 s[%d:%d], s[0:1], %d" % (SRD[n], SRD[n] + 1, KARG[n]))
    A("s_load_dwordx2 s[%d:%d], s[0:1], 72" % (sB2P, sB2P + 1))
    A("v_lshrrev_b32 v1, 6, v0"); A("v_and_b32 v0, 63, v0"); A("v_readfirstlane_b32 s%d, v1" % sWAVE)
    for n in SRD:
        A("s_mov_b32 s%d, 0x%x" % (SRD[n] + 2, SIZE[n])); A("s_mov_b32 s%d, 0x20000" % (SRD[n] + 3))
    if regmap == "xcd":
        A("s_and_b32 s%d, s2, 7" % sR); A("s_lshl_b32 s%d, s%d, 5" % (sR, sR)); A("s_lshr_b32 s%d, s2, 3" % sT0); A("s_add_u32 s%d, s%d, s%d" % (sR, sR, sT0))
    else:
        A("s_mov_b32 s%d, s2" % sR)
    A("s_lshl_b32 s%d, s%d, 18" % (sBASE, sR)); A("s_lshl_b32 s%d, s%d, 12" % (sT0, sWAVE)); A("s_add_u32 s%d, s%d, s%d" % (sBASE, sBASE, sT0))
    A("v_lshrrev_b32 v%d, 4, v0" % vA0)
    A("v_bfe_u32 v%d, v0, 2, 2" % (vA0 + 1))
    A("v_and_b32 v%d, 3, v0" % (vA0 + 2))
    A("v_lshlrev_b32 v%d, 6, v%d" % (vK, vA0)); A("v_lshl_add_u32 v%d, v%d, 8, v%d" % (vK, vA0 + 1, vK)); A("v_lshl_add_u32 v%d, v%d, 4, v%d" % (vK, vA0 + 2, vK))
    A("v_lshlrev_b32 v%d, 4, v0" % vL16)
    A("s_waitcnt lgkmcnt(0)")
    pump(K0, depth=99)
    A("s_load_dword s%d, s[%d:%d], 0" % (sB2, sB2P, sB2P + 1))
    A("s_mov_b32 s%d, 0x05040100" % sSELLO); A("s_mov_b32 s%d, 0x07060302" % sSELHI); A("s_mov_b32 s%d, 0xffff0000" % sMASK)
    A("s_mov_b32 s%d, 0x%x" % (sSCALE, f2u(128 ** -0.5))); A("s_mov_b32 s%d, 0x%x" % (sL2E, f2u(1.4426950408889634)))
    c0 = -2.0 * 0.7978845608028654 * 1.4426950408889634
    A("s_mov_b32 s%d, 0x%x" % (sC0, f2u(c0))); A("s_mov_b32 s%d, 0x%x" % (sC1, f2u(c0 * 0.044715)))
    vX = vS
    A("s_lshl_b32 s%d, s%d, 10" % (sT0, sWAVE))
    A.vmem("buffer_load_dwordx4 %s, v%d, %s, s%d offen" % (vr(vX, 4), vL16, srd("X"), sT0), tag="x")
    A("v_lshrrev_b32 v%d, 1, v0" % (vA0 + 3)); A("v_lshlrev_b32 v%d, 13, v%d" % (vA0 + 3, vA0 + 3))
    A("v_and_b32 v%d, 1, v0" % (vA0 + 4)); A("v_lshl_add_u32 v%d, v%d, 4, v%d" % (vA0 + 3, vA0 + 4, vA0 + 3))
    A("s_lshl_b32 s%d, s%d, 19" % (sT0, sWAVE)); A("s_lshl_b32 s%d, s%d, 5" % (sT1, sR)); A("s_add_u32 s%d, s%d, s%d" % (sT0, sT0, sT1))
    A("s_lshl_b32 s%d, s%d, 11" % (sT2, sWAVE)); A("s_add_u32 m0, s%d, %d" % (sT2, L_WQ))
    A.vmem("buffer_load_dwordx4 v%d, %s, s%d offen %s lds" % (vA0 + 3, srd("WQ"), sT0, pol), tag="wq0")
    A("s_add_u32 s%d, s%d, 0x40000" % (sT0, sT0)); A("s_add_u32 m0, s%d, %d" % (sT2, L_WQ + 1024))
    A.vmem("buffer_load_dwordx4 v%d, %s, s%d offen %s lds" % (vA0 + 3, srd("WQ"), sT0, pol), tag="wq1")
    A("v_lshrrev_b32 v%d, 3, v0" % (vA0 + 5)); A("v_lshlrev_b32 v%d, 10, v%d" % (vA0 + 5, vA0 + 5))
    A("v_and_b32 v%d, 7, v0" % (vA0 + 6)); A("v_lshl_add_u32 v%d, v%d, 4, v%d" % (vA0 + 5, vA0 + 6, vA0 + 5))
    A("s_lshr_b32 s%d, s%d, 3" % (sT0, sR)); A("s_lshl_b32 s%d, s%d, 17" % (sT0, sT0))
    A("s_and_b32 s%d, s%d, 7" % (sT1, sR)); A("s_lshl_b32 s%d, s%d, 7" % (sT1, sT1)); A("s_add_u32 s%d, s%d, s%d" % (sT0, sT0, sT1))
    A("s_lshl_b32 s%d, s%d, 14" % (sT1, sWAVE)); A("s_add_u32 s%d, s%d, s%d" % (sT0, sT0, sT1))
    A("s_add_u32 m0, s%d, %d" % (sT2, L_WO))
    A.vmem("buffer_load_dwordx4 v%d, %s, s%d offen %s lds" % (vA0 + 5, srd("WO"), sT0, pol), tag="wo0")
    A("s_add_u32 s%d, s%d, 0x2000" % (sT0, sT0)); A("s_add_u32 m0, s%d, %d" % (sT2, L_WO + 1024))
    A.vmem("buffer_load_dwordx4 v%d, %s, s%d offen %s lds" % (vA0 + 5, srd("WO"), sT0, pol), tag="wo1")
    vW = vB0
    A("v_and_b32 v%d, 15, v0" % (vA0 + 3)); A("v_mul_u32_u24 v%d, 12, v%d" % (vA0 + 4, vA0 + 3)); A("v_lshlrev_b32 v%d, 4, v%d" % (vA0 + 3, vA0 + 3))
    A("s_mul_i32 s%d, s%d, 448" % (sT0, sWAVE))
    for k, n in enumerate(("W1", "B1", "W2")):
        A.vmem("buffer_load_dwordx4 %s, v%d, %s, s%d offen" % (vr(vW + 8 * k, 4), vA0 + 3, srd(n), sT0), tag="mw%da" % k)
        A.vmem("buffer_load_dwordx3 %s, v%d, %s, s%d offen offset:256" % (vr(vW + 8 * k + 4, 3), vA0 + 4, srd(n), sT0), tag="mw%db" % k)
    A.vmem("buffer_load_dword v%d, off, %s, s%d %s" % (vT, srd("V"), sBASE, pol), tag="vt")
    pump(D0 - K0, depth=99)
    A("v_and_b32 v%d, 15, v0" % (vA0 + 5))
    A("v_lshlrev_b32 v%d, 13, v%d" % (vOP, vA0)); A("v_lshl_add_u32 v%d, v%d, 4, v%d" % (vOP, vA0 + 5, vOP))
    A("v_lshrrev_b32 v%d, 1, v%d" % (vSP, vA0 + 5)); A("v_lshlrev_b32 v%d, 16, v%d" % (vSP, vSP))
    A("v_lshl_add_u32 v%d, v%d, 4, v%d" % (vSP, vA0, vSP))
    A("v_and_b32 v%d, 1, v0" % (vA0 + 6)); A("v_lshl_add_u32 v%d, v%d, 11, v%d" % (vSP, vA0 + 6, vSP))
    A("s_bfe_u32 s%d, s%d, 0x30002" % (sT0, sR)); A("s_lshl_b32 s%d, s%d, 15" % (sT0, sT0))
    A("s_lshr_b32 s%d, s%d, 5" % (sT1, sR)); A("s_lshl_b32 s%d, s%d, 10" % (sT1, sT1)); A("s_add_u32 s%d, s%d, s%d" % (sT0, sT0, sT1))
    A("s_and_b32 s%d, s%d, 3" % (sT1, sR)); A("s_lshl_b32 s%d, s%d, 8" % (sT1, sT1)); A("s_add_u32 s%d, s%d, s%d" % (sT0, sT0, sT1))
    A("s_add_u32 s%d, s%d, 0x%x" % (sOPOFF, sT0, WS_OP))
    A("s_and_b32 s%d, s%d, 7" % (sT0, sR)); A("s_lshl_b32 s%d, s%d, 13" % (sT0, sT0))
    A("s_lshr_b32 s%d, s%d, 3" % (sT1, sR)); A("s_lshl_b32 s%d, s%d, 6" % (sT1, sT1)); A("s_add_u32 s%d, s%d, s%d" % (sT0, sT0, sT1))
    A("s_add_u32 s%d, s%d, 0x%x" % (sSPOFF, sT0, WS_SP))
    A("s_lshr_b32 s%d, s%d, 2" % (sT0, sR)); A("s_lshl_b32 s%d, s%d, 10" % (sT0, sT0)); A("s_add_u32 s%d, s%d, 0x%x" % (sSTOFF, sT0, WS_ST))
    skip = A.label("noclean")
    A("s_cmp_lg_u32 s%d, 0" % sWAVE); A("s_cbranch_scc1 " + skip)
    for i in range(4): A("v_mov_b32 v%d, -1" % (vG + i))
    A.vmem("buffer_store_dwordx4 %s, v%d, %s, s%d offen sc1" % (vr(vG, 4), vOP, srd("WS"), sOPOFF), optional=True)
    A.vmem("buffer_store_dwordx4 %s, v%d, %s, s%d offen sc1" % (vr(vG, 4), vSP, srd("WS"), sSPOFF), optional=True)
    A("s_add_u32 s%d, s%d, 4096" % (sT0, sSPOFF))
    A.vmem("buffer_store_dwordx4 %s, v%d, %s, s%d offen sc1" % (vr(vG, 4), vSP, srd("WS"), sT0), optional=True)
    A("v_lshlrev_b32 v%d, 8, v%d" % (vA0 + 3, vA0 + 1)); A("v_lshl_add_u32 v%d, v%d, 4, v%d" % (vA0 + 3, vA0 + 2, vA0 + 3))
    A("s_and_b32 s%d, s%d, 3" % (sT0, sR)); A("s_lshl_b32 s%d, s%d, 6" % (sT0, sT0)); A("s_add_u32 s%d, s%d, s%d" % (sT0, sT0, sSTOFF))
    A("s_mov_b64 exec, 0xffff")
    A.vmem("buffer_store_dwordx4 %s, v%d, %s, s%d offen sc1" % (vr(vG, 4), vA0 + 3, srd("WS"), sT0), optional=True)
    A("s_mov_b64 exec, -1")
    A(skip + ":")

    A.wait_vm("x")
    stamp()
    layernorm(vX, vX + 4, vX + 12)
    A("s_mul_i32 s%d, s%d, %d" % (sT0, sWAVE, XN_STRIDE)); A("v_add_u32 v%d, s%d, v%d" % (vA0 + 3, sT0, vL16))
    A("ds_write_b128 v%d, %s offset:%d" % (vA0 + 3, vr(vX, 4), L_XN))
    A("v_and_b32 v%d, 7, v0" % (vA0 + 4)); A("v_mul_u32_u24 v%d, %d, v%d" % (vA0 + 4, XN_STRIDE, vA0 + 4))
    A("v_lshl_add_u32 v%d, v%d, 4, v%d" % (vA0 + 4, vA0, vA0 + 4)); A("s_lshl_b32 s%d, s%d, 7" % (sT0, sWAVE)); A("v_add_u32 v%d, s%d, v%d" % (vA0 + 4, sT0, vA0 + 4))
    A("v_lshlrev_b32 v%d, 8, v%d" % (vA0 + 6, vA0)); A("v_lshl_add_u32 v%d, v%d, 3, v%d" % (vA0 + 6, vA0 + 5, vA0 + 6))
    A("s_lshl_b32 s%d, s%d, 11" % (sT0, sWAVE)); A("v_add_u32 v%d, s%d, v%d" % (vA0 + 6, sT0, vA0 + 6))
    A.wait_vm("wq1")
    A("s_waitcnt lgkmcnt(0)")
    A("s_barrier")
    for m in range(2):
        A("ds_read_b64_tr_b16 %s, v%d offset:%d" % (vr(vD + 4 * m, 2), vA0 + 6, L_WQ + m * 1024))
        A("ds_read_b64_tr_b16 %s, v%d offset:%d" % (vr(vD + 4 * m + 2, 2), vA0 + 6, L_WQ + m * 1024 + 128))
        A("ds_read_b128 %s, v%d offset:%d" % (vr(vD + 8 + 4 * m, 4), vA0 + 4, L_XN + m * 64))
    if lnpump: pump(1, depth=D0 + 6)
    A("s_waitcnt lgkmcnt(0)")
    A("v_mfma_f32_16x16x32_bf16 %s, %s, %s, 0" % (vr(vP, 4), vr(vD, 4), vr(vD + 8, 4)))
    A("v_mfma_f32_16x16x32_bf16 %s, %s, %s, %s" % (vr(vP, 4), vr(vD + 4, 4), vr(vD + 12, 4), vr(vP, 4)))
    layernorm(vX, vX + 4, vX + 12)
    A("s_lshl_b32 s%d, s%d, 10" % (sT0, sWAVE)); A("v_add_u32 v%d, s%d, v%d" % (vA0 + 3, sT0, vL16))
    A("ds_write_b128 v%d, %s offset:%d" % (vA0 + 3, vr(vP, 4), L_QP))
    A("ds_write_b128 v%d, %s offset:%d" % (vA0 + 3, vr(vX, 4), L_H))
    A.wait_vm("wo1")
    A("s_waitcnt lgkmcnt(0)")
    A("s_barrier")
    skip = A.label("nopub")
    A("s_cmp_lg_u32 s%d, 0" % sWAVE); A("s_cbranch_scc1 " + skip)
    for w in range(8): A("ds_read_b128 %s, v%d offset:%d" % (vr(vD + 4 * w, 4), vL16, L_QP + w * 1024))
    A("v_and_b32 v%d, 7, v0" % (vA0 + 3)); A("v_lshlrev_b32 v%d, 13, v%d" % (vA0 + 3, vA0 + 3)); A("v_lshl_add_u32 v%d, v%d, 3, v%d" % (vA0 + 3, vA0, vA0 + 3))
    A("s_lshl_b32 s%d, s%d, 5" % (sT0, sR))
    A("s_waitcnt lgkmcnt(0)")
    for w in range(1, 8):
        for i in range(4): A("v_add_f32 v%d, v%d, v%d" % (vD + i, vD + i, vD + 4 * w + i))
    A("v_cvt_pk_bf16_f32 v%d, v%d, v%d" % (vD + 4, vD, vD + 1)); A("v_cvt_pk_bf16_f32 v%d, v%d, v%d" % (vD + 5, vD + 2, vD + 3))
    A("s_mov_b32 exec_lo, 0x00ff00ff"); A("s_mov_b32 exec_hi, 0x00ff00ff")
    A.vmem("buffer_store_dwordx2 %s, v%d, %s, s%d offen sc1" % (vr(vD + 4, 2), vA0 + 3, srd("WS"), sT0), optional=True)
    A("s_mov_b64 exec, 1")
    A("v_mov_b32 v%d, 1" % (vD + 6))
    A("s_and_b32 s%d, s2, 3" % sT0); A("s_lshl_b32 s%d, s%d, 6" % (sT0, sT0))
    A("s_waitcnt vmcnt(0)")
    A.vmem("buffer_atomic_add v%d, off, %s, s%d" % (vD + 6, srd("DBG"), sT0), optional=True)
    A("s_mov_b64 exec, -1")
    A(skip + ":")
    stamp()

    vH = vS
    A("s_lshr_b32 s%d, s%d, 5" % (sT0, sR)); A("s_lshl_b32 s%d, s%d, 10" % (sT0, sT0))
    A("s_and_b32 s%d, s%d, 31" % (sT1, sR)); A("s_lshl_b32 s%d, s%d, 5" % (sT1, sT1)); A("s_add_u32 s%d, s%d, s%d" % (sT0, sT0, sT1))
    A("v_lshlrev_b32 v%d, 3, v%d" % (vA0 + 3, vA0)); A("v_add_u32 v%d, s%d, v%d" % (vA0 + 3, sT0, vA0 + 3))
    A("ds_read_b64 %s, v%d offset:%d" % (vr(vH + 8, 2), vA0 + 3, L_H))
    A.wait_vm("mw2b")
    for i in range(4): A("v_mov_b32 v%d, 0" % (vH + 4 + i))
    A("s_waitcnt lgkmcnt(0)")
    unpack(vH, vH + 1, vH + 8); unpack(vH + 2, vH + 3, vH + 9)
    cw, cb, c2, U, T, E = vH + 8, vH + 9, vH + 10, vH + 12, vH + 16, vH + 20
    vC0 = vH + 11
    A("v_mov_b32 v%d, s%d" % (vC0, sC0))
    for t in range(14):
        for k, d in enumerate((cw, cb, c2)):
            src = vW + 8 * k + t // 2
            if t % 2 == 0: A("v_lshlrev_b32 v%d, 16, v%d" % (d, src))
            else: A("v_and_b32 v%d, s%d, v%d" % (d, sMASK, src))
        for p in range(4): A("v_fma_f32 v%d, v%d, v%d, v%d" % (U + p, vH + p, cw, cb))
        for p in range(4): A("v_mul_f32 v%d, v%d, v%d" % (T + p, U + p, U + p))
        for p in range(4): A("v_fma_f32 v%d, v%d, s%d, v%d" % (T + p, T + p, sC1, vC0))
        for p in range(4): A("v_mul_f32 v%d, v%d, v%d" % (T + p, T + p, U + p))
        for p in range(4): A("v_exp_f32 v%d, v%d" % (E + p, T + p))
        for p in range(4): A("v_mul_f32 v%d, v%d, v%d" % (U + p, U + p, c2))
        for p in range(4): A("v_add_f32 v%d, 1.0, v%d" % (E + p, E + p))
        for p in range(4): A("v_rcp_f32 v%d, v%d" % (E + p, E + p))
        pump(1)
        for p in range(4): A("v_fmac_f32 v%d, v%d, v%d" % (vH + 4 + p, U + p, E + p))
    for m in ("quad_perm:[1,0,3,2]", "quad_perm:[2,3,0,1]", "row_half_mirror", "row_mirror"):
        for p in range(4): A("v_add_f32_dpp v%d, v%d, v%d %s row_mask:0xf bank_mask:0xf" % (vH + 4 + p, vH + 4 + p, vH + 4 + p, m))
    A("s_lshl_b32 s%d, s%d, 6" % (sT0, sWAVE)); A("v_lshlrev_b32 v%d, 4, v%d" % (vA0 + 3, vA0)); A("v_add_u32 v%d, s%d, v%d" % (vA0 + 3, sT0, vA0 + 3))
    A("s_mov_b32 exec_lo, 0x00010001"); A("s_mov_b32 exec_hi, 0x00010001")
    A("ds_write_b128 v%d, %s offset:%d" % (vA0 + 3, vr(vH + 4, 4), L_YP))
    A("s_mov_b64 exec, -1")
    stamp()

    pump_to(poll_at)
    A("v_lshlrev_b32 v%d, 6, v%d" % (vA0 + 3, vA0 + 2))
    def issue_flag(opt=False):
        A.vmem("buffer_load_dword v%d, v%d, %s, 0 offen sc1" % (vG, vA0 + 3, srd("DBG")), tag="flag", optional=opt)
    issue_flag()
    A("v_lshlrev_b32 v%d, 8, v%d" % (vA0 + 4, vA0 + 1)); A("v_lshl_add_u32 v%d, v%d, 6, v%d" % (vA0 + 4, vA0, vA0 + 4)); A("v_lshl_add_u32 v%d, v%d, 4, v%d" % (vA0 + 4, vA0 + 2, vA0 + 4))
    pump_to(q_at)
    check_loop(issue_flag, [vG], "flag", cond="flag")
    stamp()
    A("s_sub_u32 s%d, s%d, 0x%x" % (sT0, sSTOFF, WS_ST - WS_Q))
    A.vmem("buffer_load_dwordx4 %s, v%d, %s, s%d offen sc1" % (vr(vQ, 4), vA0 + 4, srd("WS"), sT0), tag="q")
    pump_to(qk_at)
    A.wait_vm("q")
    stamp()
    def qk(i): A("v_mfma_f32_16x16x32_bf16 %s, %s, %s, 0" % (vr(vD + 4 * (i % 4), 4), vr(vKR + 4 * i, 4), vr(vQ, 4)))
    def diag(i, step):
        d = vD + 4 * (i % 4) + step
        qp = "quad_perm:[%d,%d,%d,%d] row_mask:0xf bank_mask:0xf" % ((step,) * 4)
        if step == 0: A("v_mov_b32_dpp v%d, v%d %s" % (vS + i, d, qp))
        else: A("v_add_f32_dpp v%d, v%d, v%d %s" % (vS + i, d, vS + i, qp))
    A.wait_vm("L31")
    qk(0); qk(1)
    for j in range(16):
        if j + 1 < 16: qk(2 * j + 2); qk(2 * j + 3)
        for step in range(4):
            diag(2 * j, step); diag(2 * j + 1, step)
        if j >= 1:
            a, b, t = vS + 2 * j - 2, vS + 2 * j - 1, vT
            if mimic:
                A("v_cvt_pk_bf16_f32 v%d, v%d, v%d" % (t, a, b)); unpack(a, b, t)
            A("v_mul_f32 v%d, s%d, v%d" % (a, sSCALE, a)); A("v_mul_f32 v%d, s%d, v%d" % (b, sSCALE, b))
            if mimic:
                A("v_cvt_pk_bf16_f32 v%d, v%d, v%d" % (t, a, b)); unpack(a, b, t)
            if j == 1: A("v_max_f32 v%d, v%d, v%d" % (vM, a, b))
            else: A("v_max3_f32 v%d, v%d, v%d, v%d" % (vM, a, b, vM))
        if j % 2 == 1 and nxt[0] < 40 + 2 * j: pump(1)
    a, b, t = vS + 30, vS + 31, vT
    if mimic:
        A("v_cvt_pk_bf16_f32 v%d, v%d, v%d" % (t, a, b)); unpack(a, b, t)
    A("v_mul_f32 v%d, s%d, v%d" % (a, sSCALE, a)); A("v_mul_f32 v%d, s%d, v%d" % (b, sSCALE, b))
    if mimic:
        A("v_cvt_pk_bf16_f32 v%d, v%d, v%d" % (t, a, b)); unpack(a, b, t)
    A("v_max3_f32 v%d, v%d, v%d, v%d" % (vM, a, b, vM))
    red_rows(vM, vT, "v_max_f32")
    A("v_mul_f32 v%d, s%d, v%d" % (vM, sL2E, vM))
    A("v_lshlrev_b32 v%d, 4, v%d" % (vT + 1, vA0)); A("ds_bpermute_b32 v%d, v%d, v%d" % (vMO, vT + 1, vM))
    for j in range(16):
        a, b = vS + 2 * j, vS + 2 * j + 1
        A("v_fma_f32 v%d, v%d, s%d, -v%d" % (a, a, sL2E, vM)); A("v_fma_f32 v%d, v%d, s%d, -v%d" % (b, b, sL2E, vM))
        A("v_exp_f32 v%d, v%d" % (a, a)); A("v_exp_f32 v%d, v%d" % (b, b))
        if j >= 1:
            pa, pb = a - 2, b - 2
            if j == 1: A("v_add_f32 v%d, v%d, v%d" % (vLs, pa, pb))
            else: A("v_add_f32 v%d, v%d, v%d" % (vLs, vLs, pa)); A("v_add_f32 v%d, v%d, v%d" % (vLs, vLs, pb))
            A("v_cvt_pk_bf16_f32 v%d, v%d, v%d" % (vP + j - 1, pa, pb))
        if j % 4 == 3: pump(1)
    A("v_add_f32 v%d, v%d, v%d" % (vLs, vLs, vS + 30)); A("v_add_f32 v%d, v%d, v%d" % (vLs, vLs, vS + 31))
    A("v_cvt_pk_bf16_f32 v%d, v%d, v%d" % (vP + 15, vS + 30, vS + 31))
    red_rows(vLs, vT, "v_add_f32")
    A("v_lshlrev_b32 v%d, 8, v%d" % (vA0 + 3, vA0 + 1))
    A("s_and_b32 s%d, s%d, 3" % (sT0, sR)); A("s_lshl_b32 s%d, s%d, 3" % (sT0, sT0)); A("s_add_u32 s%d, s%d, s%d" % (sT0, sT0, sWAVE))
    A("s_lshl_b32 s%d, s%d, 3" % (sT0, sT0)); A("s_add_u32 s%d, s%d, s%d" % (sT0, sT0, sSTOFF))
    A("v_mov_b32 v%d, v%d" % (vG, vM)); A("v_mov_b32 v%d, v%d" % (vG + 1, vLs))
    A("s_mov_b64 exec, 0x1111")
    A.vmem("buffer_store_dwordx2 %s, v%d, %s, s%d offen sc1" % (vr(vG, 2), vA0 + 3, srd("WS"), sT0), tag="ststore")
    A("s_mov_b64 exec, -1")
    stamp()

    def pv_perm(beta, q, T):
        base = ldreg(32 + 8 * beta)
        for a in range(4):
            lo, hi = base + 8 * a + q, base + 8 * a + 4 + q
            A("v_perm_b32 v%d, v%d, v%d, s%d" % (T + a, hi, lo, sSELLO))
            A("v_perm_b32 v%d, v%d, v%d, s%d" % (T + 4 + a, hi, lo, sSELHI))
    def pv_mfma(beta, q, T):
        for s in range(2):
            acc = vr(vS + 4 * (2 * q + s), 4)
            A("v_mfma_f32_16x16x32_bf16 %s, %s, %s, %s" % (acc, vr(vP + 4 * beta, 4), vr(T + 4 * s, 4), "0" if beta == 0 else acc))
    def pv_block(beta, pumps):
        A.wait_vm("L%d" % (32 + 8 * beta + 7))
        pv_perm(beta, 0, vD)
        for q in range(4):
            if q + 1 < 4: pv_perm(beta, q + 1, vD + 8 * ((q + 1) % 2))
            pv_mfma(beta, q, vD + 8 * (q % 2))
            if pumps: pump(1)
    pump_to(47)
    pv_block(0, True)
    vWO = vB0
    A("v_lshrrev_b32 v%d, 2, v%d" % (vA0 + 3, vA0 + 5)); A("v_lshlrev_b32 v%d, 7, v%d" % (vA0 + 3, vA0 + 3))
    A("v_lshl_add_u32 v%d, v%d, 10, v%d" % (vA0 + 3, vA0, vA0 + 3)); A("v_lshl_add_u32 v%d, v%d, 3, v%d" % (vA0 + 3, vA0 + 2, vA0 + 3))
    A("s_and_b32 s%d, s%d, 3" % (sT0, sWAVE)); A("s_lshl_b32 s%d, s%d, 5" % (sT0, sT0)); A("v_add_u32 v%d, s%d, v%d" % (vA0 + 3, sT0, vA0 + 3))
    A("s_nop 7")
    for m in range(4):
        A("ds_read_b64_tr_b16 %s, v%d offset:%d" % (vr(vWO + 4 * m, 2), vA0 + 3, L_WO + m * 4096))
        A("ds_read_b64_tr_b16 %s, v%d offset:%d" % (vr(vWO + 4 * m + 2, 2), vA0 + 3, L_WO + m * 4096 + 512))
    vOIW, vOIR = vB0 + 16, vB0 + 17
    A("v_and_b32 v%d, 1, v%d" % (vT, vA0)); A("s_lshl_b32 s%d, s%d, 1" % (sT0, sWAVE)); A("v_add_u32 v%d, s%d, v%d" % (vT, sT0, vT))
    A("v_xor_b32 v%d, v%d, v%d" % (vT, vT, vA0 + 5)); A("v_lshlrev_b32 v%d, 4, v%d" % (vT, vT)); A("v_lshl_add_u32 v%d, v%d, 8, v%d" % (vT, vA0, vT))
    A("s_lshl_b32 s%d, s%d, 10" % (sT0, sWAVE)); A("v_add_u32 v%d, s%d, v%d" % (vOIW, sT0, vT))
    A("v_lshrrev_b32 v%d, 1, v%d" % (vT, vA0 + 5)); A("v_lshlrev_b32 v%d, 10, v%d" % (vT, vT)); A("v_and_b32 v%d, 1, v0" % (vT + 1)); A("v_lshl_add_u32 v%d, v%d, 8, v%d" % (vT, vT + 1, vT))
    for m in range(4):
        A("v_add_u32 v%d, %d, v%d" % (vT + 1, 4 * m, vA0)); A("v_xor_b32 v%d, v%d, v%d" % (vT + 1, vT + 1, vA0 + 5))
        A("v_lshl_add_u32 v%d, v%d, 4, v%d" % (vOIR + m, vT + 1, vT))
    pump_to(st_poll)
    def issue_st(opt=False):
        A.vmem("buffer_load_dwordx4 %s, v%d, %s, s%d offen sc1" % (vr(vG, 4), vL16, srd("WS"), sSTOFF), tag="st", optional=opt)
    issue_st()
    pump_to(55)
    pv_block(1, True)
    pump_to(63)
    check_loop(issue_st, [vG, vG + 1, vG + 2, vG + 3], "st")
    stamp()
    A("v_max_f32 v%d, v%d, v%d" % (vT, vG, vG + 2)); red16(vT, "v_max_f32")
    A("v_sub_f32 v%d, v%d, v%d" % (vG, vG, vT)); A("v_sub_f32 v%d, v%d, v%d" % (vG + 2, vG + 2, vT))
    A("s_waitcnt lgkmcnt(0)")
    A("v_sub_f32 v%d, v%d, v%d" % (vF, vMO, vT))
    A("v_exp_f32 v%d, v%d" % (vG, vG)); A("v_exp_f32 v%d, v%d" % (vG + 2, vG + 2)); A("v_exp_f32 v%d, v%d" % (vF, vF))
    A("v_mul_f32 v%d, v%d, v%d" % (vG, vG, vG + 1)); A("v_fmac_f32 v%d, v%d, v%d" % (vG, vG + 2, vG + 3))
    red16(vG, "v_add_f32")
    A("v_rcp_f32 v%d, v%d" % (vG, vG)); A("v_mul_f32 v%d, v%d, v%d" % (vF, vF, vG))
    pv_block(2, False)
    TB = vKR + 96
    base = ldreg(56)
    A("s_lshl_b32 s%d, s%d, 11" % (sT0, sWAVE)); A("v_add_u32 v%d, s%d, v%d" % (vA0 + 3, sT0, vL16))
    for a in range(4):
        A.wait_vm("L%d" % (56 + 2 * a + 1))
        if a == 3: stamp()
        for q in range(4):
            lo, hi = base + 8 * a + q, base + 8 * a + 4 + q
            A("v_perm_b32 v%d, v%d, v%d, s%d" % (TB + 8 * q + a, hi, lo, sSELLO))
            A("v_perm_b32 v%d, v%d, v%d, s%d" % (TB + 8 * q + 4 + a, hi, lo, sSELHI))
    for q in range(4): pv_mfma(3, q, TB + 8 * q)
    for d in range(8): A("v_mul_f32 v%d, v%d, v%d" % (vD + d, vF, vS + 4 * d))
    A("ds_write_b128 v%d, %s offset:%d" % (vA0 + 3, vr(vD, 4), L_OW))
    A("ds_write_b128 v%d, %s offset:%d" % (vA0 + 3, vr(vD + 4, 4), L_OW + 1024))
    A("s_waitcnt lgkmcnt(0)")
    A("s_barrier")
    stamp()
    skip = A.label("noop")
    A("s_cmp_gt_u32 s%d, 1" % sWAVE); A("s_cbranch_scc1 " + skip)
    A("s_lshl_b32 s%d, s%d, 10" % (sT0, sWAVE)); A("v_add_u32 v%d, s%d, v%d" % (vA0 + 3, sT0, vL16))
    for w in range(8): A("ds_read_b128 %s, v%d offset:%d" % (vr(vS + 4 * w, 4), vA0 + 3, L_OW + w * 2048))
    A("s_lshl_b32 s%d, s%d, 3" % (sT0, sWAVE)); A("s_add_u32 s%d, s%d, s%d" % (sT0, sT0, sOPOFF))
    for w, cnt in ((1, 6), (3, 4), (5, 2), (7, 0)):
        A("s_waitcnt lgkmcnt(%d)" % cnt)
        for i in range(4): A("v_add_f32 v%d, v%d, v%d" % (vS + 4 * w + i, vS + 4 * (w - 1) + i, vS + 4 * w + i))
        if w in (3, 7):
            for i in range(4): A("v_add_f32 v%d, v%d, v%d" % (vS + 4 * w + i, vS + 4 * (w - 2) + i, vS + 4 * w + i))
    for i in range(4): A("v_add_f32 v%d, v%d, v%d" % (vS + 28 + i, vS + 12 + i, vS + 28 + i))
    A("v_cvt_pk_bf16_f32 v%d, v%d, v%d" % (vD, vS + 28, vS + 29)); A("v_cvt_pk_bf16_f32 v%d, v%d, v%d" % (vD + 1, vS + 30, vS + 31))
    A.vmem("buffer_store_dwordx2 %s, v%d, %s, s%d offen sc1" % (vr(vD, 2), vOP, srd("WS"), sT0), optional=True)
    A(skip + ":")
    A("s_lshr_b32 s%d, s%d, 3" % (sT1, sR)); A("s_lshl_b32 s%d, s%d, 13" % (sT1, sT1)); A("s_lshl_b32 s%d, s%d, 10" % (sT0, sWAVE))
    A("s_add_u32 s%d, s%d, s%d" % (sT1, sT1, sT0)); A("s_add_u32 s%d, s%d, 0x%x" % (sT1, sT1, WS_OP))
    def issue_op(opt=False):
        A.vmem("buffer_load_dwordx4 %s, v%d, %s, s%d offen sc1" % (vr(vG, 4), vL16, srd("WS"), sT1), tag="op", optional=opt)
    issue_op()
    A.vm = ["op"]; A("s_waitcnt vmcnt(0)"); A.vm = []
    check_loop(issue_op, [vG, vG + 1, vG + 2, vG + 3], "op")
    A("ds_write_b128 v%d, %s offset:%d" % (vOIW, vr(vG, 4), L_OI))
    A("s_waitcnt lgkmcnt(0)")
    A("s_barrier")
    stamp()
    fin = A.label("fin")
    A("s_cmp_gt_u32 s%d, 3" % sWAVE); A("s_cbranch_scc1 " + fin)
    for u in range(2):
        for m in range(4):
            A("ds_read_b128 %s, v%d offset:%d" % (vr(vS + 16 * u + 4 * m, 4), vOIR + m, L_OI + u * 512))
    A("s_lshl_b32 s%d, s%d, 11" % (sT0, sWAVE)); A("s_add_u32 s%d, s%d, s%d" % (sT0, sT0, sSPOFF))
    for u in range(2):
        for m in range(4):
            A("s_waitcnt lgkmcnt(%d)" % (7 - 4 * u - m))
            acc = vr(vD + 4 * u, 4)
            A("v_mfma_f32_16x16x32_bf16 %s, %s, %s, %s" % (acc, vr(vWO + 4 * m, 4), vr(vS + 16 * u + 4 * m, 4), "0" if m == 0 else acc))
    for i in range(4): A("v_add_f32 v%d, v%d, v%d" % (vD + i, vD + i, vD + 4 + i))
    for i in range(4): A("v_add_f32_dpp v%d, v%d, v%d quad_perm:[1,0,3,2] row_mask:0xf bank_mask:0xf" % (vD + i, vD + i, vD + i))
    A("s_mov_b32 exec_lo, 0x55555555"); A("s_mov_b32 exec_hi, 0x55555555")
    A.vmem("buffer_store_dwordx4 %s, v%d, %s, s%d offen sc1" % (vr(vD, 4), vSP, srd("WS"), sT0), optional=True)
    A("s_mov_b64 exec, -1")
    A("s_branch L_done")
    A(fin + ":")
    A("s_cmp_lg_u32 s%d, 4" % sWAVE); A("s_cbranch_scc1 L_done")
    A("s_lshl_b32 s%d, s%d, 11" % (sT1, sR)); A("s_add_u32 s%d, s%d, 0x%x" % (sT1, sT1, WS_SP))
    def issue_sp(opt=False):
        A.vmem("buffer_load_dwordx4 %s, v%d, %s, s%d offen sc1" % (vr(vD, 4), vL16, srd("WS"), sT1), tag="sp0", optional=opt)
        A.vmem("buffer_load_dwordx4 %s, v%d, %s, s%d offen offset:1024 sc1" % (vr(vD + 4, 4), vL16, srd("WS"), sT1), tag="sp1", optional=opt)
    A("v_lshl_add_u32 v%d, v%d, 2, v%d" % (vA0 + 3, vA0 + 2, vA0))
    A("v_lshlrev_b32 v%d, 1, v%d" % (vA0 + 4, vA0 + 3)); A("s_lshl_b32 s%d, s%d, 5" % (sT0, sR))
    A.vmem("buffer_load_ushort v%d, v%d, %s, s%d offen" % (vT + 1, vA0 + 4, srd("X"), sT0), tag="xf")
    issue_sp()
    A("v_lshlrev_b32 v%d, 2, v%d" % (vA0 + 3, vA0 + 3))
    for w in range(8): A("ds_read_b32 v%d, v%d offset:%d" % (vS + w, vA0 + 3, L_YP + w * 64))
    A("s_waitcnt lgkmcnt(0)")
    for w in range(1, 8): A("v_add_f32 v%d, v%d, v%d" % (vS, vS, vS + w))
    rbf(vS)
    A("s_lshl_b32 s%d, s%d, 16" % (sB2, sB2)); A("v_add_f32 v%d, s%d, v%d" % (vS, sB2, vS)); rbf(vS)
    A("v_mul_f32 v%d, s%d, v%d" % (vS + 1, sL2E, vS)); A("v_exp_f32 v%d, -v%d" % (vS + 1, vS + 1)); A("v_add_f32 v%d, 1.0, v%d" % (vS + 1, vS + 1))
    A("v_rcp_f32 v%d, v%d" % (vS + 1, vS + 1)); A("v_mul_f32 v%d, v%d, v%d" % (vS, vS, vS + 1)); rbf(vS)
    check_loop(issue_sp, list(range(vD, vD + 8)), "sp1")
    stamp()
    for i in range(4): A("v_add_f32 v%d, v%d, v%d" % (vD + i, vD + i, vD + 4 + i))
    A("v_lshlrev_b32 v%d, 16, v%d" % (vT + 1, vT + 1))
    A("v_permlane32_swap_b32 v%d, v%d" % (vD, vD + 2)); A("v_permlane32_swap_b32 v%d, v%d" % (vD + 1, vD + 3))
    A("v_add_f32 v%d, v%d, v%d" % (vD, vD, vD + 2)); A("v_add_f32 v%d, v%d, v%d" % (vD + 1, vD + 1, vD + 3))
    A("v_permlane16_swap_b32 v%d, v%d" % (vD, vD + 1)); A("v_add_f32 v%d, v%d, v%d" % (vD, vD, vD + 1))
    A("v_add_f32_dpp v%d, v%d, v%d row_ror:8 row_mask:0xf bank_mask:0xf" % (vD, vD, vD))
    A("v_add_f32_dpp v%d, v%d, v%d row_ror:4 row_mask:0xf bank_mask:0xf" % (vD, vD, vD))
    rbf(vD); A("v_mul_f32 v%d, v%d, v%d" % (vD, vD, vS)); rbf(vD)
    A("v_add_f32 v%d, v%d, v%d" % (vD, vD, vT + 1)); A("v_cvt_pk_bf16_f32 v%d, v%d, v%d" % (vD, vD, vD))
    A("s_mov_b32 exec_lo, 0x000f000f"); A("s_mov_b32 exec_hi, 0x000f000f")
    A.vmem("buffer_store_short v%d, v%d, %s, s%d offen" % (vD, vA0 + 4, srd("OUT"), sT0), optional=True)
    A("s_mov_b64 exec, -1")
    A("L_done:")
    if stamps:
        A("s_waitcnt vmcnt(0)")
        A("s_memrealtime s[42:43]")
        A("s_waitcnt lgkmcnt(0)")
        ns = 14
        A("s_lshl_b32 s%d, s2, 3" % sT0); A("s_add_u32 s%d, s%d, s%d" % (sT0, sT0, sWAVE)); A("s_mul_i32 s%d, s%d, %d" % (sT0, sT0, ns * 8)); A("s_add_u32 s%d, s%d, 0x%x" % (sT0, sT0, WS_STAMP))
        A("s_mov_b64 exec, 1")
        for k in range(14):
            kk = k if k < stamp_n[0] else 13
            A("v_mov_b32 v2, s%d" % (16 + 2 * kk)); A("v_mov_b32 v3, s%d" % (17 + 2 * kk))
            A("buffer_store_dwordx2 v[2:3], off, %s, s%d offset:%d" % (srd("WS"), sT0, k * 8)); A("s_nop 1")
    if dbgspan:
        A("s_waitcnt vmcnt(0)")
        A("s_memrealtime s[42:43]")
        A("s_waitcnt lgkmcnt(0)")
        A("s_mov_b64 exec, 1")
        A("s_not_b32 s16, s16")
        for k, slot in ((0, 4), (13, 5), (1, 6), (2, 7), (4, 8), (5, 9), (6, 10), (8, 11), (9, 12), (10, 13), (11, 14)):
            A("v_mov_b32 v2, s%d" % (16 + 2 * k))
            A("buffer_atomic_umax v2, off, %s, 0 offset:%d" % (srd("DBG"), slot * 4)); A("s_nop 1")
    A("L_end:")
    A("s_endpgm")
    body = A.finalize()
    hdr = open("recurrent_scan__gqa_block_cached__mixer_token_mlp__decode.s.ref").read().split("; Override launch")[0]
    s = hdr + "; @launch grid=(256,1,1) block=(512,1,1) lds=%d\n" % LDS_BYTES
    s += '.amdgcn_target "amdgcn-amd-amdhsa--gfx950"\n.text\n.globl %s\n.p2align 8\n.type %s,@function\n%s:\n' % (NAME, NAME, NAME)
    s += body
    s += '.section .rodata,"a"\n.p2align 6\n.amdhsa_kernel %s\n  .amdhsa_next_free_vgpr 256\n  .amdhsa_next_free_sgpr 102\n  .amdhsa_accum_offset 256\n' % NAME
    s += "  .amdhsa_group_segment_fixed_size 0\n  .amdhsa_kernarg_size 104\n  .amdhsa_user_sgpr_count 2\n  .amdhsa_user_sgpr_kernarg_segment_ptr 1\n  .amdhsa_system_sgpr_workgroup_id_x 1\n.end_amdhsa_kernel\n"
    return s, A

if __name__ == "__main__":
    out = sys.argv[1]
    kw = {}
    for p in sys.argv[2:]:
        k, v = p.split("=")
        kw[k] = int(v) if v.lstrip("-").isdigit() else v.replace("+", " ")
    s, A = gen(**kw)
    open(out, "w").write(s)
    print("wrote", out, "instructions", len(A.ins), "nops", A.nops)
```

```python
import re

def regs_of(tok):
    tok = tok.strip()
    neg = tok.startswith("-")
    if neg: tok = tok[1:]
    if tok.startswith("abs(") or tok.startswith("|"):
        tok = tok.strip("|").replace("abs(", "").rstrip(")")
    m = re.fullmatch(r"([vsa])(\d+)", tok)
    if m: return [(m.group(1), int(m.group(2)))]
    m = re.fullmatch(r"([vsa])\[(\d+):(\d+)\]", tok)
    if m: return [(m.group(1), i) for i in range(int(m.group(2)), int(m.group(3)) + 1)]
    if tok == "vcc": return [("s", 106), ("s", 107)]
    if tok == "exec": return [("s", 126), ("s", 127)]
    if tok == "m0": return [("s", 124)]
    if tok in ("vcc_lo", "vcc_hi", "exec_lo", "exec_hi"): return [("s", {"vcc_lo": 106, "vcc_hi": 107, "exec_lo": 126, "exec_hi": 127}[tok])]
    return []

TRANS = ("v_exp_f32", "v_log_f32", "v_rcp_f32", "v_rsq_f32", "v_sqrt_f32", "v_sin_f32", "v_cos_f32")

class Ins:
    def __init__(self, text):
        self.text = text
        t = text.split(";")[0].strip()
        self.label = t.endswith(":")
        parts = t.split(None, 1)
        self.op = parts[0] if parts else ""
        rest = parts[1] if len(parts) > 1 else ""
        ops = []; cur = ""; depth = 0
        for ch in rest:
            if ch == "[": depth += 1
            if ch == "]": depth -= 1
            if ch == "," and depth == 0: ops.append(cur.strip()); cur = ""
            else: cur += ch
        if cur.strip(): ops.append(cur.strip())
        self.mods = ""
        if ops:
            l = ops[-1].split(None, 1)
            ops[-1] = l[0]
            if len(l) > 1: self.mods = l[1]
        self.ops = ops
        op = self.op
        self.kind = "other"
        R = lambda toks: [r for t_ in toks for r in regs_of(t_)]
        self.w = []; self.r = []
        self.dpp = "_dpp" in op or "quad_perm" in self.mods or "row_" in self.mods
        if self.label or op.startswith("."):
            self.kind = "label"
        elif op.startswith("v_mfma"):
            self.kind = "mfma"; self.w = R(ops[:1]); self.ab = R(ops[1:3]); self.c = R(ops[3:4]); self.r = self.ab + self.c
            self.passes = 4 if "16x16x32" in op or "16x16x16" in op else 8
        elif op.startswith("v_permlane"):
            self.kind = "valu"; self.w = R(ops[:2]); self.r = R(ops[:2])
        elif op.startswith("v_cmp"):
            self.kind = "valu"; self.w = R(ops[:1]); self.r = R(ops[1:])
        elif op.startswith("v_"):
            self.kind = "valu"; self.w = R(ops[:1]); self.r = R(ops[1:])
            if op.startswith("v_fmac") or op.startswith("v_pk_fmac") or self.dpp or op.startswith("v_dot2c"): self.r += self.w
            if op.startswith("v_cndmask") and len(ops) == 3: self.r += regs_of("vcc")
            if "_co_" in op: self.w += R(ops[1:2])
        elif op.startswith("ds_"):
            self.kind = "ds"
            if op.startswith("ds_read") or op.startswith("ds_bpermute") or op.startswith("ds_swizzle"):
                self.w = R(ops[:1]); self.r = R(ops[1:])
            else:
                self.r = R(ops)
        elif op.startswith("buffer_") or op.startswith("global_"):
            self.kind = "vmem"
            lds = " lds" in (" " + self.mods) or "load_lds" in op
            self.lds = lds
            if "load" in op and not lds:
                self.w = R(ops[:1]); self.r = R(ops[1:])
            else:
                self.r = R(ops)
                if "atomic" in op and "sc0" in self.mods: self.w = R(ops[:1])
            if lds: self.r += regs_of("m0")
            self.store = "store" in op or "atomic" in op
            self.wide = self.store and ("x3" in op or "x4" in op)
            if self.store:
                self.data = R(ops[:1]) if op.startswith("buffer_") else R(ops[1:2])
        elif op.startswith("s_"):
            self.kind = "salu"
            if op in ("s_nop", "s_waitcnt", "s_barrier", "s_endpgm", "s_sleep", "s_setprio") or op.startswith("s_cbranch") or op == "s_branch":
                pass
            elif op.startswith("s_cmp"):
                self.r = R(ops)
            else:
                self.w = R(ops[:1]); self.r = R(ops[1:])
                if "saveexec" in op: self.w += regs_of("exec")
        self.trans = any(op.startswith(x) for x in TRANS)
    def states(self):
        if self.kind == "label": return 0
        if self.op == "s_nop": return int(self.ops[0]) + 1
        return 1

def need(p, c):
    n = 0
    pw = set(p.w); cr = set(c.r); cw = set(c.w)
    pvw = {r for r in pw if r[0] in "va"}; psw = {r for r in pw if r[0] == "s"}
    if p.kind == "valu":
        if pvw & cr:
            if c.kind == "valu" and c.dpp: n = max(n, 2)
            if c.op.startswith("v_permlane"): n = max(n, 2)
            if c.op.startswith("v_readlane") or c.op.startswith("v_readfirstlane"): n = max(n, 1)
            if c.kind == "mfma": n = max(n, 2)
            if p.trans and c.kind == "valu" and not c.trans: n = max(n, 1)
            if p.trans and c.kind in ("valu",): n = max(n, 1)
        if psw & cr:
            if c.kind == "valu": n = max(n, 2)
            if c.kind == "vmem": n = max(n, 5)
            if c.op.startswith("v_readlane") or c.op.startswith("v_writelane"): n = max(n, 4)
            if c.kind == "salu": n = max(n, 1)
    if p.kind == "mfma":
        big = {4: 8, 8: 12}[p.passes]
        if c.kind == "mfma":
            if pw & set(c.ab): n = max(n, big)
            if pw & set(c.c):
                if not (sorted(p.w) == sorted(c.c)): n = max(n, {4: 6, 8: 10}[p.passes])
            if (pw & cw) and not (pw & set(c.c)): n = max(n, big)
        elif c.kind in ("valu", "vmem", "ds"):
            if pw & (cr | cw): n = max(n, big)
        if c.kind == "valu" and set(p.c) & cw: n = max(n, {4: 3, 8: 7}[p.passes])
    if p.kind == "salu":
        if ("s", 124) in pw and c.kind == "vmem" and getattr(c, "lds", False): n = max(n, 1)
    if p.kind == "vmem" and getattr(p, "wide", False):
        if set(p.data) & cw: n = max(n, 2)
    return n

class Asm:
    def __init__(self, wave_sgpr=3):
        self.ins = []
        self.vm = {"A": [], "B": []}
        self.ctx = "AB"
        self.uid = 0
        self.wave_sgpr = wave_sgpr
    def __call__(self, text):
        for line in text.split("\n"):
            line = line.strip()
            if line: self.ins.append(Ins(line))
    def vmem(self, text, tag=None, optional=False):
        self(text)
        if not optional:
            for c in self.ctx: self.vm[c].append(tag if tag is not None else "_")
    def _emit(self, n):
        vals = {c: v for c, v in n.items() if v is not None}
        if not vals: return
        assert all(v <= 63 for v in vals.values())
        if len(self.ctx) == 2 and "B" in vals and ("A" not in vals or vals["B"] < vals["A"]):
            if "A" in vals: self("s_waitcnt vmcnt(%d)" % vals["A"])
            skip = self.label("w0")
            self("s_cmp_lg_u32 s%d, 0" % self.wave_sgpr); self("s_cbranch_scc1 " + skip)
            self("s_waitcnt vmcnt(%d)" % vals["B"]); self(skip + ":")
            eff = vals
        else:
            m = min(vals.values())
            self("s_waitcnt vmcnt(%d)" % m)
            eff = {c: m for c in self.ctx}
        for c, v in eff.items():
            l = self.vm[c]
            if len(l) > v: self.vm[c] = l[len(l) - v:] if v else []
    def wait_vm(self, tag):
        n = {}
        for c in self.ctx:
            l = self.vm[c]
            n[c] = l[::-1].index(tag) if tag in l else None
        self._emit(n)
    def wait_depth(self, d):
        self._emit({c: (d if len(self.vm[c]) > d else None) for c in self.ctx})
    def drained(self):
        for c in self.ctx: self.vm[c] = []
    def label(self, base):
        self.uid += 1
        return "L_%s_%d" % (base, self.uid)
    def finalize(self):
        out = []
        hist = []
        snaps = {}
        nn = 0
        for x in self.ins:
            if x.label:
                name = x.op[:-1]
                if name in snaps:
                    merged = {}
                    for (i_, a) in hist + snaps[name]:
                        k = id(i_)
                        if k not in merged or a < merged[k][1]: merged[k] = (i_, a)
                    hist = list(merged.values())
                out.append(x); continue
            if x.kind == "label":
                out.append(x); continue
            req = 0
            for (p, a) in hist:
                r = need(p, x) - a
                if r > req: req = r
            if req > 0:
                nop = Ins("s_nop %d" % (req - 1)); out.append(nop); nn += 1
                hist = [(p, a + req) for (p, a) in hist]
            out.append(x)
            st = x.states()
            hist = [(p, a + st) for (p, a) in hist if a + st < 24]
            hist.append((x, 0))
            if x.op.startswith("s_cbranch") or x.op == "s_branch":
                tgt = x.ops[0]
                snaps.setdefault(tgt, [])
                snaps[tgt] = snaps[tgt] + list(hist)
        self.nops = nn
        return "\n".join((i.text if i.label or i.op.startswith(".") else "    " + i.text) for i in out) + "\n"
```

```python
import sys, struct
from asmlib import Asm

NAME = "recurrent_scan__gqa_block_cached__mixer_token_mlp__decode_kernel"
def f2u(x): return struct.unpack("<I", struct.pack("<f", x))[0]

WS_ST, WS_OP, WS_SP, WS_Q, WS_EP = 0x10000, 0x20000, 0x60000, 0xE0000, 0x0
EP_STEP = 0x9E3779B97F4A7C15
WS_STAMP = 128 << 20
HI = 131072
L_WO = 0
L_XN, XN_STRIDE = 16384, 1040
L_OW = L_XN
L_QP = 24704
L_QB = 28800
L_FLG = 29824
L_ST = L_FLG + 64
L_GS = L_ST + 128
L_YP = L_GS + 32
LDS_BYTES = HI + L_YP + 128
F_FULL, F_FREED, F_XN, F_QP, F_QR, F_ST, F_GR, F_FL, F_CL = [L_FLG + 4 * i for i in (0, 4, 8, 9, 10, 11, 12, 13, 14)]

sWAVE, sBASE, sOFF = 3, 4, 5
sT0, sT1, sT2 = 6, 7, 8
sR, sSPIN, sT3 = 9, 10, 11
sMU, sMB = 14, 15
SRD = dict(K=44, V=48, X=52, WQ=56, WO=60, W1=64, B1=68, W2=72, OUT=76, DBG=80, WS=84)
KARG = dict(X=0, K=8, V=16, WQ=24, WO=32, W1=48, B1=56, W2=64, OUT=80, DBG=88, WS=96)
SIZE = dict(X=8192, K=1 << 26, V=1 << 26, WQ=1 << 22, WO=1 << 22, W1=3584, B1=3584, W2=3584, OUT=8192, DBG=256, WS=1 << 28)
sSELLO, sSELHI, sMASK, sSCALE, sL2E, sC0, sC1, sB2, sB2P = 88, 89, 90, 91, 92, 93, 94, 95, 96
sOPOFF, sSPOFF, sSTOFF, sFULL = 98, 99, 100, 101
def srd(n): return "s[%d:%d]" % (SRD[n], SRD[n] + 3)
def vr(a, n=1): return "v%d" % a if n == 1 else "v[%d:%d]" % (a, a + n - 1)
vL16, vG4, vC4, vR4, vN16, vHI, vONE = 1, 2, 3, 4, 5, 6, 7
vT = 8
vPOLL = 16

def gen(F=4, stamps=0, pol="nt", spin=1 << 17, lspin=1 << 22, mimic=1, pre=0, lsleep=1, ldprio=3, fsleep=8, qsleep=2, ssleep=8, tsleep=0, xmap=1, polq=None, polo=None, ldst=0, abl=''):
    polq = pol if polq is None else polq.replace('def', '')
    polo = pol if polo is None else polo.replace('def', '')
    A = Asm()
    NST = 14
    def stamp(k):
        if stamps: A("s_memrealtime s[%d:%d]" % (16 + 2 * k, 17 + 2 * k))
    QUADS = ("quad_perm:[1,0,3,2]", "quad_perm:[2,3,0,1]", "row_half_mirror", "row_mirror")
    def dpp(op, v, m, rm="0xf"): A("%s_dpp v%d, v%d, v%d %s row_mask:%s bank_mask:0xf" % (op, v, v, v, m, rm))
    def red16(v, op):
        for m in QUADS: dpp(op, v, m)
    def swap_red(v, t, op, which):
        A("v_mov_b32 v%d, v%d" % (t, v)); A("v_permlane%d_swap_b32 v%d, v%d" % (which, v, t)); A("%s v%d, v%d, v%d" % (op, v, v, t))
    def rbf(v):
        A("v_cvt_pk_bf16_f32 v%d, v%d, v%d" % (v, v, v)); A("v_lshlrev_b32 v%d, 16, v%d" % (v, v))
    def unpack(dlo, dhi, src):
        A("v_lshlrev_b32 v%d, 16, v%d" % (dlo, src)); A("v_and_b32 v%d, s%d, v%d" % (dhi, sMASK, src))
    def layernorm(pk, n, x, d, t, halves):
        def allred(v):
            red16(v, "v_add_f32"); swap_red(v, t + 2, "v_add_f32", 16)
            if halves == 1: swap_red(v, t + 2, "v_add_f32", 32)
        for i in range(n): unpack(x + 2 * i, x + 2 * i + 1, pk + i)
        A("v_add_f32 v%d, v%d, v%d" % (t, x, x + 1)); A("v_add_f32 v%d, v%d, v%d" % (t + 1, x + 2, x + 3))
        for i in range(4, 2 * n): A("v_add_f32 v%d, v%d, v%d" % (t + (i & 1), t + (i & 1), x + i))
        A("v_add_f32 v%d, v%d, v%d" % (t, t, t + 1))
        allred(t)
        A("v_mul_f32 v%d, 0x3b000000, v%d" % (t, t))
        A("v_cvt_pk_bf16_f32 v%d, v%d, v%d" % (t + 1, t, t))
        for i in range(2 * n): A("v_sub_f32 v%d, v%d, v%d" % (d + i, x + i, t))
        A("v_lshlrev_b32 v%d, 16, v%d" % (t + 1, t + 1))
        A("v_mul_f32 v%d, v%d, v%d" % (t, d, d)); A("v_mul_f32 v%d, v%d, v%d" % (d, d + 1, d + 1))
        for i in range(2, 2 * n): A("v_fmac_f32 v%d, v%d, v%d" % (t if i & 1 else d, d + i, d + i))
        A("v_add_f32 v%d, v%d, v%d" % (t, t, d))
        for i in range(2 * n): A("v_sub_f32 v%d, v%d, v%d" % (x + i, x + i, t + 1))
        allred(t)
        for i in range(n): A("v_cvt_pk_bf16_f32 v%d, v%d, v%d" % (pk + i, x + 2 * i, x + 2 * i + 1))
        A("v_mul_f32 v%d, 0x3b000000, v%d" % (t, t)); rbf(t)
        A("v_add_f32 v%d, 0x%x, v%d" % (t, f2u(1e-5), t)); rbf(t)
        A("v_sqrt_f32 v%d, v%d" % (t, t)); rbf(t)
        A("v_rcp_f32 v%d, v%d" % (t, t))
        for i in range(n): unpack(x + 2 * i, x + 2 * i + 1, pk + i)
        for i in range(2 * n): A("v_mul_f32 v%d, v%d, v%d" % (x + i, t, x + i))
        for i in range(n): A("v_cvt_pk_bf16_f32 v%d, v%d, v%d" % (pk + i, x + 2 * i, x + 2 * i + 1))
    def lds_wait(flag, val, keep=None):
        ok = A.label("lok"); again = A.label("lagain")
        dst = keep if keep is not None else sT3
        if keep is not None:
            A("s_cmp_ge_u32 s%d, %s" % (keep, val)); A("s_cbranch_scc1 " + ok)
        A("s_mov_b32 s%d, 0" % sSPIN)
        A(again + ":")
        A("ds_read_b32 v%d, v%d offset:%d" % (vPOLL, vHI, flag)); A("s_waitcnt lgkmcnt(0)")
        A("v_readfirstlane_b32 s%d, v%d" % (dst, vPOLL))
        A("s_cmp_ge_u32 s%d, %s" % (dst, val)); A("s_cbranch_scc1 " + ok)
        if lsleep: A("s_sleep %d" % lsleep)
        A("s_add_u32 s%d, s%d, 1" % (sSPIN, sSPIN)); A("s_cmp_lt_u32 s%d, %d" % (sSPIN, lspin)); A("s_cbranch_scc1 " + again)
        A(ok + ":")
    def lds_add(flag_addr_reg, off):
        A("s_waitcnt lgkmcnt(0)")
        A("s_mov_b64 exec, 1"); A("ds_add_u32 v%d, v%d offset:%d" % (flag_addr_reg, vONE, off)); A("s_mov_b64 exec, -1")
    def gpoll(loads, first=True, sleep=0, full="-1", tag=None):
        ok = A.label("ok"); again = A.label("again")
        masks = ["vcc", "s[12:13]"]
        A("s_mov_b32 s%d, 0" % sSPIN)
        if first:
            for issue, regs in loads: issue()
        A(again + ":")
        A("s_waitcnt vmcnt(0)")
        for (issue, regs), mk in zip(loads, masks):
            t = vT + 7
            if tag is not None:
                A("v_cmp_ne_u64 %s, %s, v[%d:%d]" % (mk, tag, regs[2], regs[3])); continue
            if len(regs) == 2: A("v_max_u32 v%d, v%d, v%d" % (t, regs[0], regs[1]))
            else:
                A("v_max3_u32 v%d, v%d, v%d, v%d" % (t, regs[0], regs[1], regs[2])); A("v_max_u32 v%d, v%d, v%d" % (t, t, regs[3]))
            A("v_cmp_eq_u32 %s, -1, v%d" % (mk, t))
        if len(loads) == 2:
            A("s_or_b32 s%d, vcc_lo, vcc_hi" % sT3); A("s_or_b32 s%d, s%d, s12" % (sT3, sT3)); A("s_or_b32 s%d, s%d, s13" % (sT3, sT3))
        else:
            A("s_or_b32 s%d, vcc_lo, vcc_hi" % sT3)
        A("s_cbranch_scc0 " + ok)
        if sleep: A("s_sleep %d" % sleep)
        for (issue, regs), mk in zip(loads, masks):
            A("s_mov_b64 exec, %s" % mk); issue()
        A("s_mov_b64 exec, %s" % full)
        A("s_add_u32 s%d, s%d, 1" % (sSPIN, sSPIN)); A("s_cmp_lt_u32 s%d, %d" % (sSPIN, spin)); A("s_cbranch_scc1 " + again)
        A("s_waitcnt vmcnt(0)")
        A(ok + ":")
    def word_poll(load, vd, lanes, cmp, sleep):
        ok = A.label("fok"); again = A.label("fagain")
        A("s_mov_b32 s%d, 0" % sSPIN); A("s_mov_b64 exec, %s" % lanes)
        A(again + ":")
        A(load)
        A("s_waitcnt vmcnt(0)")
        A(cmp % vd)
        A("s_cmp_eq_u64 vcc, 0"); A("s_cbranch_scc1 " + ok)
        if sleep: A("s_sleep %d" % sleep)
        A("s_add_u32 s%d, s%d, 1" % (sSPIN, sSPIN)); A("s_cmp_lt_u32 s%d, %d" % (sSPIN, spin)); A("s_cbranch_scc1 " + again)
        A(ok + ":")
        A("s_mov_b64 exec, -1")

    A("s_cmp_ge_u32 s2, 256"); A("s_cbranch_scc1 L_end")
    if stamps:
        for k in range(1, NST): A("s_mov_b64 s[%d:%d], 0" % (16 + 2 * k, 17 + 2 * k))
    stamp(0)
    for n in ("K", "X", "WQ", "WS", "V", "WO", "W1", "B1", "W2", "DBG", "OUT"):
        A("s_load_dwordx2 s[%d:%d], s[0:1], %d" % (SRD[n], SRD[n] + 1, KARG[n]))
    A("s_load_dwordx2 s[%d:%d], s[0:1], 72" % (sB2P, sB2P + 1))
    A("v_lshrrev_b32 v1, 6, v0"); A("v_and_b32 v0, 63, v0"); A("v_readfirstlane_b32 s%d, v1" % sWAVE)
    for n in SRD:
        A("s_mov_b32 s%d, 0x%x" % (SRD[n] + 2, SIZE[n])); A("s_mov_b32 s%d, 0x20000" % (SRD[n] + 3))
    if xmap == 0:
        A("s_and_b32 s%d, s2, 7" % sR); A("s_lshl_b32 s%d, s%d, 5" % (sR, sR)); A("s_lshr_b32 s%d, s2, 3" % sT0); A("s_add_u32 s%d, s%d, s%d" % (sR, sR, sT0))
    else:
        A("s_and_b32 s%d, s2, 7" % sR); A("s_lshl_b32 s%d, s%d, 2" % (sR, sR)); A("s_and_b32 s%d, s2, 0xe0" % sT0); A("s_add_u32 s%d, s%d, s%d" % (sR, sR, sT0))
        A("s_bfe_u32 s%d, s2, 0x20003" % sT0); A("s_add_u32 s%d, s%d, s%d" % (sR, sR, sT0))
    A("v_lshlrev_b32 v%d, 4, v0" % vL16); A("v_lshrrev_b32 v%d, 4, v0" % vG4); A("v_bfe_u32 v%d, v0, 2, 2" % vC4)
    A("v_and_b32 v%d, 3, v0" % vR4); A("v_and_b32 v%d, 15, v0" % vN16); A("v_mov_b32 v%d, 0x%x" % (vHI, HI)); A("v_mov_b32 v%d, 1" % vONE)
    A("s_mov_b32 s%d, 0x05040100" % sSELLO); A("s_mov_b32 s%d, 0x07060302" % sSELHI); A("s_mov_b32 s%d, 0xffff0000" % sMASK)
    A("s_mov_b32 s%d, 0x%x" % (sSCALE, f2u(128 ** -0.5))); A("s_mov_b32 s%d, 0x%x" % (sL2E, f2u(1.4426950408889634)))
    c0 = -2.0 * 0.7978845608028654 * 1.4426950408889634
    A("s_mov_b32 s%d, 0x%x" % (sC0, f2u(c0))); A("s_mov_b32 s%d, 0x%x" % (sC1, f2u(c0 * 0.044715)))
    A("s_lshr_b32 s%d, s%d, 5" % (sT0, sR)); A("s_lshl_b32 s%d, s%d, 15" % (sT0, sT0))
    A("s_and_b32 s%d, s%d, 31" % (sT1, sR)); A("s_lshl_b32 s%d, s%d, 8" % (sT1, sT1)); A("s_add_u32 s%d, s%d, s%d" % (sT0, sT0, sT1))
    A("s_add_u32 s%d, s%d, 0x%x" % (sOPOFF, sT0, WS_OP))
    A("s_and_b32 s%d, s%d, 7" % (sT0, sR)); A("s_lshl_b32 s%d, s%d, 13" % (sT0, sT0))
    A("s_lshr_b32 s%d, s%d, 3" % (sT1, sR)); A("s_lshl_b32 s%d, s%d, 6" % (sT1, sT1)); A("s_add_u32 s%d, s%d, s%d" % (sT0, sT0, sT1))
    A("s_add_u32 s%d, s%d, 0x%x" % (sSPOFF, sT0, WS_SP))
    A("s_lshr_b32 s%d, s%d, 2" % (sT0, sR)); A("s_lshl_b32 s%d, s%d, 7" % (sT0, sT0)); A("s_add_u32 s%d, s%d, 0x%x" % (sSTOFF, sT0, WS_ST))
    A("s_cmp_eq_u32 s%d, 4" % sWAVE); A("s_cbranch_scc1 L_loader")
    A("s_cmp_eq_u32 s%d, 5" % sWAVE); A("s_cbranch_scc1 L_comm")
    A("s_cmp_gt_u32 s%d, 5" % sWAVE); A("s_cbranch_scc1 L_mlp")

    vQ, vS, vTMP, vK = 32, 48, 112, 128
    vKA, vVA = 17, 17
    vM, vLs, vMO, vF, vOWA = 25, 26, 27, 28, 29
    vX = vS
    A("v_lshlrev_b32 v%d, 5, v0" % vT)
    A("v_lshrrev_b32 v%d, 1, v0" % (vT + 1)); A("v_lshlrev_b32 v%d, 13, v%d" % (vT + 1, vT + 1))
    A("v_and_b32 v%d, 1, v0" % (vT + 2)); A("v_lshl_add_u32 v%d, v%d, 4, v%d" % (vT + 1, vT + 2, vT + 1))
    A("s_lshl_b32 s%d, s%d, 11" % (sT2, sWAVE))
    A("s_lshl_b32 s%d, s%d, 20" % (sT0, sWAVE)); A("s_lshl_b32 s%d, s%d, 5" % (sT1, sR)); A("s_add_u32 s%d, s%d, s%d" % (sT0, sT0, sT1))
    A("s_lshl_b32 s%d, s%d, 13" % (sT1, sWAVE)); A("s_add_u32 s%d, s%d, %d" % (sT1, sT1, 12 * 8192))
    A("s_waitcnt lgkmcnt(0)")
    A("buffer_load_dwordx4 %s, v%d, %s, s%d offen" % (vr(vX, 4), vT, srd("X"), sT2))
    A("buffer_load_dwordx4 %s, v%d, %s, s%d offen offset:16" % (vr(vX + 4, 4), vT, srd("X"), sT2))
    for a in range(4):
        A("s_add_u32 m0, s%d, %d" % (sT1, a * 1024))
        if 'q' in abl: A("buffer_load_dwordx4 v%d, %s, 0 offen lds" % (vL16, srd("X")))
        else: A("buffer_load_dwordx4 v%d, %s, s%d offen %s lds" % (vT + 1, srd("WQ"), sT0, polq))
        if a < 3: A("s_add_u32 s%d, s%d, 0x40000" % (sT0, sT0))
    A("s_barrier")
    A("v_lshrrev_b32 v%d, 5, v0" % (vT + 3)); A("s_lshl_b32 s%d, s%d, 1" % (sT0, sWAVE)); A("v_add_u32 v%d, s%d, v%d" % (vT + 3, sT0, vT + 3))
    A("v_mul_u32_u24 v%d, %d, v%d" % (vT + 3, XN_STRIDE, vT + 3)); A("v_and_b32 v%d, 31, v0" % (vT + 4)); A("v_lshl_add_u32 v%d, v%d, 5, v%d" % (vT + 3, vT + 4, vT + 3))
    A("v_add_u32 v%d, v%d, v%d" % (vT + 3, vHI, vT + 3))
    A("v_and_b32 v%d, 7, v0" % (vT + 4)); A("v_mul_u32_u24 v%d, %d, v%d" % (vT + 4, XN_STRIDE, vT + 4)); A("v_lshl_add_u32 v%d, v%d, 4, v%d" % (vT + 4, vG4, vT + 4))
    A("s_lshl_b32 s%d, s%d, 8" % (sT0, sWAVE)); A("s_add_u32 s%d, s%d, %d" % (sT0, sT0, HI)); A("v_add_u32 v%d, s%d, v%d" % (vT + 4, sT0, vT + 4))
    A("v_lshlrev_b32 v%d, 8, v%d" % (vT + 5, vG4)); A("v_lshl_add_u32 v%d, v%d, 3, v%d" % (vT + 5, vN16, vT + 5)); A("v_add_u32 v%d, s%d, v%d" % (vT + 5, sT1, vT + 5))
    A("s_lshl_b32 s%d, s%d, 10" % (sT0, sWAVE)); A("s_add_u32 s%d, s%d, %d" % (sT0, sT0, HI)); A("v_add_u32 v%d, s%d, v%d" % (vT + 6, sT0, vL16))
    A("s_lshl_b32 s%d, s%d, 13" % (sT0, sWAVE)); A("v_lshlrev_b32 v%d, 8, v%d" % (vT, vN16)); A("v_add_u32 v%d, s%d, v%d" % (vT, sT0, vT))
    for m in range(4):
        A("v_add_u32 v%d, %d, v%d" % (vT + 1, 4 * m, vG4)); A("v_xor_b32 v%d, v%d, v%d" % (vT + 1, vT + 1, vN16))
        A("v_lshl_add_u32 v%d, v%d, 4, v%d" % (vKA + m, vT + 1, vT)); A("v_add_u32 v%d, 0x10000, v%d" % (vKA + 4 + m, vKA + m))
    A("s_lshl_b32 s%d, s%d, 2" % (sT0, sWAVE)); A("s_add_u32 s%d, s%d, %d" % (sT0, sT0, HI)); A("v_mov_b32 v%d, s%d" % (30, sT0))
    A("s_mov_b32 s%d, 0" % sFULL)
    A("s_waitcnt vmcnt(4)")
    stamp(1)
    layernorm(vX, 8, vX + 8, vX + 24, vX + 40, 2)
    A("ds_write_b128 v%d, %s offset:%d" % (vT + 3, vr(vX, 4), L_XN)); A("ds_write_b128 v%d, %s offset:%d" % (vT + 3, vr(vX + 4, 4), L_XN + 16))
    lds_add(vHI, F_XN)
    A("s_waitcnt vmcnt(0)")
    for m in range(4):
        A("ds_read_b64_tr_b16 %s, v%d offset:%d" % (vr(vK + 4 * m, 2), vT + 5, m * 1024))
        A("ds_read_b64_tr_b16 %s, v%d offset:%d" % (vr(vK + 4 * m + 2, 2), vT + 5, m * 1024 + 128))
    lds_wait(F_XN, 4)
    for m in range(4): A("ds_read_b128 %s, v%d offset:%d" % (vr(vK + 16 + 4 * m, 4), vT + 4, L_XN + m * 64))
    for m in range(4):
        A("s_waitcnt lgkmcnt(%d)" % (3 - m))
        A("v_mfma_f32_16x16x32_bf16 %s, %s, %s, %s" % (vr(vTMP, 4), vr(vK + 4 * m, 4), vr(vK + 16 + 4 * m, 4), "0" if m == 0 else vr(vTMP, 4)))
    A("ds_write_b128 v%d, %s offset:%d" % (vT + 6, vr(vTMP, 4), L_QP))
    lds_add(vHI, F_QP)
    A("s_mov_b64 exec, 1"); A("ds_add_u32 v30, v%d offset:%d" % (vONE, F_FREED)); A("s_mov_b64 exec, -1")
    stamp(2)
    def wait_block(n4):
        A("s_add_u32 s%d, s%d, %d" % (sT0, sWAVE, 4 * n4 + 1))
        lds_wait(F_FULL, "s%d" % sT0, keep=sFULL)
    def read_k(j):
        base = vK + 32 * (j % 4)
        for t in range(2):
            for m in range(4):
                A("ds_read_b128 %s, v%d offset:%d" % (vr(base + 16 * t + 4 * m, 4), vKA + m + (4 if (j & 2) else 0), (j & 1) * 32768 + t * 4096))
    def qk_block(j):
        base = vK + 32 * (j % 4)
        for m in range(4):
            for t in range(2):
                acc = vr(vS + 8 * j + 4 * t, 4)
                A("v_mfma_f32_16x16x32_bf16 %s, %s, %s, %s" % (acc, vr(base + 16 * t + 4 * m, 4), vr(vQ + 4 * m, 4), "0" if m == 0 else acc))
    def round_block(j):
        for p in range(4):
            a, b, t = vS + 8 * j + 2 * p, vS + 8 * j + 2 * p + 1, vT + (p & 1)
            if mimic:
                A("v_cvt_pk_bf16_f32 v%d, v%d, v%d" % (t, a, b)); unpack(a, b, t)
            A("v_mul_f32 v%d, s%d, v%d" % (a, sSCALE, a)); A("v_mul_f32 v%d, s%d, v%d" % (b, sSCALE, b))
            if mimic:
                A("v_cvt_pk_bf16_f32 v%d, v%d, v%d" % (t, a, b)); unpack(a, b, t)
            if j == 0 and p == 0: A("v_max_f32 v%d, v%d, v%d" % (vM, a, b))
            else: A("v_max3_f32 v%d, v%d, v%d, v%d" % (vM, a, b, vM))
    for j in range(4):
        wait_block(j); read_k(j); lds_add(30, F_FREED)
    stamp(3)
    lds_wait(F_QR, 1)
    stamp(4)
    A("v_lshlrev_b32 v%d, 8, v%d" % (vT, vC4)); A("v_lshl_add_u32 v%d, v%d, 4, v%d" % (vT, vG4, vT)); A("v_add_u32 v%d, v%d, v%d" % (vT, vHI, vT))
    for m in range(4): A("ds_read_b128 %s, v%d offset:%d" % (vr(vQ + 4 * m, 4), vT, L_QB + m * 64))
    A("s_waitcnt lgkmcnt(0)")
    for j in range(4):
        qk_block(j)
        wait_block(4 + j); A("s_nop 3"); read_k(4 + j)
        if j >= 1: round_block(j - 1)
        lds_add(30, F_FREED)
    for j in range(4, 8):
        qk_block(j); round_block(j - 1)
    A("v_lshl_add_u32 v%d, v%d, 2, v%d" % (vT + 2, vG4, vC4))
    A("v_and_b32 v%d, 7, v%d" % (vT + 3, vT + 2)); A("v_lshlrev_b32 v%d, 1, v%d" % (vT + 3, vT + 3))
    A("v_lshrrev_b32 v%d, 1, v%d" % (vT + 4, vR4)); A("v_xor_b32 v%d, v%d, v%d" % (vT + 3, vT + 3, vT + 4))
    A("v_lshlrev_b32 v%d, 8, v%d" % (vT + 2, vT + 2)); A("v_lshl_add_u32 v%d, v%d, 4, v%d" % (vT + 2, vT + 3, vT + 2))
    A("v_and_b32 v%d, 1, v0" % (vT + 4)); A("v_lshl_add_u32 v%d, v%d, 3, v%d" % (vT + 2, vT + 4, vT + 2))
    A("s_lshl_b32 s%d, s%d, 13" % (sT0, sWAVE)); A("v_add_u32 v%d, s%d, v%d" % (vVA, sT0, vT + 2))
    for d in range(1, 8): A("v_xor_b32 v%d, %d, v%d" % (vVA + d, 32 * d, vVA))
    round_block(7)
    swap_red(vM, vT, "v_max_f32", 32); swap_red(vM, vT, "v_max_f32", 16)
    A("v_mul_f32 v%d, s%d, v%d" % (vM, sL2E, vM))
    A("v_lshlrev_b32 v%d, 4, v%d" % (vT + 1, vG4)); A("ds_bpermute_b32 v%d, v%d, v%d" % (vMO, vT + 1, vM))
    vP = vK
    for j in range(32):
        a, b = vS + 2 * j, vS + 2 * j + 1
        A("v_fma_f32 v%d, v%d, s%d, -v%d" % (a, a, sL2E, vM)); A("v_fma_f32 v%d, v%d, s%d, -v%d" % (b, b, sL2E, vM))
        A("v_exp_f32 v%d, v%d" % (a, a)); A("v_exp_f32 v%d, v%d" % (b, b))
        if j >= 1:
            pa, pb = a - 2, b - 2
            if j == 1: A("v_add_f32 v%d, v%d, v%d" % (vLs, pa, pb))
            else: A("v_add_f32 v%d, v%d, v%d" % (vLs, vLs, pa)); A("v_add_f32 v%d, v%d, v%d" % (vLs, vLs, pb))
            A("v_cvt_pk_bf16_f32 v%d, v%d, v%d" % (vP + j - 1, pa, pb))
    A("v_add_f32 v%d, v%d, v%d" % (vLs, vLs, vS + 62)); A("v_add_f32 v%d, v%d, v%d" % (vLs, vLs, vS + 63))
    A("v_cvt_pk_bf16_f32 v%d, v%d, v%d" % (vP + 31, vS + 62, vS + 63))
    swap_red(vLs, vT, "v_add_f32", 32); swap_red(vLs, vT, "v_add_f32", 16)
    A("s_lshl_b32 s%d, s%d, 5" % (sT0, sWAVE)); A("s_add_u32 s%d, s%d, %d" % (sT0, sT0, HI)); A("v_lshlrev_b32 v%d, 3, v%d" % (vT, vC4)); A("v_add_u32 v%d, s%d, v%d" % (vT, sT0, vT))
    A("v_mov_b32 v%d, v%d" % (vT + 2, vM)); A("v_mov_b32 v%d, v%d" % (vT + 3, vLs))
    A("s_mov_b64 exec, 0x1111"); A("ds_write_b64 v%d, %s offset:%d" % (vT, vr(vT + 2, 2), L_ST)); A("s_mov_b64 exec, -1")
    lds_add(vHI, F_ST)
    stamp(5)
    A("s_lshl_b32 s%d, s%d, 11" % (sT0, sWAVE)); A("s_add_u32 s%d, s%d, %d" % (sT0, sT0, HI + L_OW))
    A("v_lshlrev_b32 v%d, 9, v%d" % (vOWA, vG4)); A("v_lshl_add_u32 v%d, v%d, 2, v%d" % (vOWA, vN16, vOWA)); A("v_add_u32 v%d, s%d, v%d" % (vOWA, sT0, vOWA))
    vVB = vK + 32
    def read_v(j):
        base = vVB + 32 * (j & 1)
        for d in range(8):
            for t in range(2):
                A("ds_read_b64_tr_b16 %s, v%d offset:%d" % (vr(base + 4 * d + 2 * t, 2), vVA + d, (j & 1) * 32768 + t * 4096))
    def pv(j, d):
        base = vVB + 32 * (j & 1)
        acc = vr(vS + 4 * d, 4)
        A("v_mfma_f32_16x16x32_bf16 %s, %s, %s, %s" % (acc, vr(vP + 4 * j, 4), vr(base + 4 * d, 4), "0" if j == 0 else acc))
    for j in range(8):
        if j == 7:
            lds_wait(F_GR, 1)
            A("v_lshl_add_u32 v%d, v%d, 3, v%d" % (vT, vG4, vHI)); A("ds_read_b64 %s, v%d offset:%d" % (vr(vT + 2, 2), vT, L_GS)); A("s_waitcnt lgkmcnt(0)")
            A("v_sub_f32 v%d, v%d, v%d" % (vF, vMO, vT + 2)); A("v_exp_f32 v%d, v%d" % (vF, vF)); A("v_mul_f32 v%d, v%d, v%d" % (vF, vF, vT + 3))
            stamp(6)
        wait_block(8 + j)
        if j == 7: stamp(7)
        read_v(j)
        if j in (1, 5):
            for d in range(8): A("v_add_u32 v%d, 0x10000, v%d" % (vVA + d, vVA + d))
        if j == 3:
            for d in range(8): A("v_subrev_u32 v%d, 0x10000, v%d" % (vVA + d, vVA + d))
        for d in range(8):
            A("s_waitcnt lgkmcnt(%d)" % (14 - 2 * d))
            if d == 7 and j < 4:
                A("s_mov_b64 exec, 1"); A("ds_add_u32 v30, v%d offset:%d" % (vONE, F_FREED)); A("s_mov_b64 exec, -1")
            pv(j, d)
    for d in range(8): A("v_mul_f32 v%d, v%d, v%d" % (vTMP + d, vF, vS + 4 * d))
    for d in range(0, 8, 2): A("ds_write2_b32 v%d, v%d, v%d offset0:%d offset1:%d" % (vOWA, vTMP + d, vTMP + d + 1, 16 * d, 16 * d + 16))
    vWOA, vOIR, vWO = 17, 18, vK
    A("v_lshlrev_b32 v%d, 7, v%d" % (vWOA, vC4)); A("v_lshl_add_u32 v%d, v%d, 10, v%d" % (vWOA, vG4, vWOA)); A("v_lshl_add_u32 v%d, v%d, 3, v%d" % (vWOA, vR4, vWOA))
    A("s_lshl_b32 s%d, s%d, 5" % (sT0, sWAVE)); A("s_add_u32 s%d, s%d, %d" % (sT0, sT0, HI + L_WO)); A("v_add_u32 v%d, s%d, v%d" % (vWOA, sT0, vWOA))
    A("s_waitcnt lgkmcnt(0)")
    A("s_barrier")
    stamp(8)
    def wo_reads():
        for m in range(4):
            A("ds_read_b64_tr_b16 %s, v%d offset:%d" % (vr(vWO + 4 * m, 2), vWOA, m * 4096))
            A("ds_read_b64_tr_b16 %s, v%d offset:%d" % (vr(vWO + 4 * m + 2, 2), vWOA, m * 4096 + 512))
    def oir_addr():
        A("v_lshrrev_b32 v%d, 1, v%d" % (vT, vN16)); A("v_lshlrev_b32 v%d, 10, v%d" % (vT, vT)); A("v_and_b32 v%d, 1, v0" % (vT + 1)); A("v_lshl_add_u32 v%d, v%d, 8, v%d" % (vT, vT + 1, vT))
        for m in range(4):
            A("v_add_u32 v%d, %d, v%d" % (vT + 1, 4 * m, vG4)); A("v_xor_b32 v%d, v%d, v%d" % (vT + 1, vT + 1, vN16))
            A("v_lshl_add_u32 v%d, v%d, 4, v%d" % (vOIR + m, vT + 1, vT))
        A("v_lshrrev_b32 v%d, 1, v%d" % (22, vN16)); A("v_lshlrev_b32 v22, 16, v22"); A("v_lshl_add_u32 v22, v%d, 4, v22" % vG4)
    A("s_cmp_gt_u32 s%d, 1" % sWAVE); A("s_cbranch_scc1 L_gather23")
    A("s_lshl_b32 s%d, s%d, 10" % (sT0, sWAVE)); A("s_add_u32 s%d, s%d, %d" % (sT0, sT0, HI + L_OW)); A("v_add_u32 v%d, s%d, v%d" % (vT, sT0, vL16))
    for w in range(4): A("ds_read_b128 %s, v%d offset:%d" % (vr(vS + 4 * w, 4), vT, w * 2048))
    A("v_lshrrev_b32 v%d, 5, v0" % (vT + 1)); A("v_lshlrev_b32 v%d, 13, v%d" % (vT + 1, vT + 1)); A("v_and_b32 v%d, 31, v0" % (vT + 2)); A("v_lshl_add_u32 v%d, v%d, 3, v%d" % (vT + 1, vT + 2, vT + 1))
    A("s_lshl_b32 s%d, s%d, 14" % (sT0, sWAVE)); A("s_add_u32 s%d, s%d, s%d" % (sT0, sT0, sOPOFF))
    A("s_waitcnt lgkmcnt(2)")
    for i in range(4): A("v_add_f32 v%d, v%d, v%d" % (vS + i, vS + i, vS + 4 + i))
    A("s_waitcnt lgkmcnt(0)")
    for i in range(4): A("v_add_f32 v%d, v%d, v%d" % (vS + 8 + i, vS + 8 + i, vS + 12 + i))
    for i in range(4): A("v_add_f32 v%d, v%d, v%d" % (vS + i, vS + i, vS + 8 + i))
    A("v_cvt_pk_bf16_f32 v%d, v%d, v%d" % (vTMP, vS, vS + 1)); A("v_cvt_pk_bf16_f32 v%d, v%d, v%d" % (vTMP + 1, vS + 2, vS + 3))
    A("buffer_store_dwordx2 %s, v%d, %s, s%d offen sc1" % (vr(vTMP, 2), vT + 1, srd("WS"), sT0))
    wo_reads(); oir_addr()
    A("s_branch L_barE_c")
    def gather(idx_sgpr, extra):
        vGa = 40
        A("s_lshr_b32 s%d, s%d, 3" % (sT1, sR)); A("s_lshl_b32 s%d, s%d, 13" % (sT1, sT1)); A("s_lshl_b32 s%d, s%d, 11" % (sT0, idx_sgpr))
        A("s_add_u32 s%d, s%d, s%d" % (sT1, sT1, sT0)); A("s_add_u32 s%d, s%d, 0x%x" % (sT1, sT1, WS_OP))
        lds_ = [(lambda: A("buffer_load_dwordx4 %s, v%d, %s, s%d offen sc1" % (vr(vGa, 4), vL16, srd("WS"), sT1)), list(range(vGa, vGa + 4))),
                (lambda: A("buffer_load_dwordx4 %s, v%d, %s, s%d offen offset:1024 sc1" % (vr(vGa + 4, 4), vL16, srd("WS"), sT1)), list(range(vGa + 4, vGa + 8)))]
        for i_, _ in lds_: i_()
        A("v_and_b32 v%d, 1, v%d" % (vT + 2, vG4)); A("s_lshl_b32 s%d, s%d, 2" % (sT2, idx_sgpr)); A("v_add_u32 v%d, s%d, v%d" % (vT + 2, sT2, vT + 2))
        A("v_xor_b32 v%d, v%d, v%d" % (vT + 3, vT + 2, vN16)); A("v_xor_b32 v%d, 2, v%d" % (vT + 4, vT + 3))
        A("v_lshlrev_b32 v%d, 8, v%d" % (vT + 2, vG4)); A("v_add_u32 v%d, s%d, v%d" % (vT + 2, sT0, vT + 2))
        A("v_lshl_add_u32 v%d, v%d, 4, v%d" % (vT + 5, vT + 3, vT + 2)); A("v_lshl_add_u32 v%d, v%d, 4, v%d" % (vT + 6, vT + 4, vT + 2))
        extra()
        gpoll(lds_, first=False, sleep=tsleep)
        A("ds_write_b128 v%d, %s" % (vT + 5, vr(vGa, 4))); A("ds_write_b128 v%d, %s offset:1024" % (vT + 6, vr(vGa + 4, 4)))
    A("L_gather23:")
    A("s_sub_u32 s%d, s%d, 2" % (sMU, sWAVE))
    gather(sMU, lambda: (wo_reads(), oir_addr()))
    A("L_barE_c:")
    A("s_waitcnt lgkmcnt(0)")
    A("s_barrier")
    stamp(9)
    for u in range(2):
        for m in range(4): A("ds_read_b128 %s, v%d offset:%d" % (vr(vS + 16 * u + 4 * m, 4), vOIR + m, u * 512))
    A("s_lshl_b32 s%d, s%d, 11" % (sT0, sWAVE)); A("s_add_u32 s%d, s%d, s%d" % (sT0, sT0, sSPOFF))
    for u in range(2):
        for m in range(4):
            A("s_waitcnt lgkmcnt(%d)" % (7 - 4 * u - m))
            acc = vr(vTMP + 4 * u, 4)
            A("v_mfma_f32_16x16x32_bf16 %s, %s, %s, %s" % (acc, vr(vWO + 4 * m, 4), vr(vS + 16 * u + 4 * m, 4), "0" if m == 0 else acc))
    for i in range(4): A("v_add_f32 v%d, v%d, v%d" % (vTMP + i, vTMP + i, vTMP + 4 + i))
    for i in range(4): dpp("v_add_f32", vTMP + i, "quad_perm:[1,0,3,2]")
    A("s_mov_b32 exec_lo, 0x55555555"); A("s_mov_b32 exec_hi, 0x55555555")
    A("buffer_store_dwordx4 %s, v22, %s, s%d offen sc1" % (vr(vTMP, 4), srd("WS"), sT0))
    A("s_mov_b64 exec, -1")
    A("s_branch L_done")

    A("L_loader:")
    if ldprio: A("s_setprio %d" % ldprio)
    vO = 17
    A("v_lshlrev_b32 v%d, 8, v%d" % (vT, vG4))
    for i in range(4):
        A("v_add_u32 v%d, %d, v%d" % (vT + 1, 4 * i, vG4)); A("v_xor_b32 v%d, v%d, v%d" % (vT + 1, vT + 1, vN16)); A("v_lshl_add_u32 v%d, v%d, 4, v%d" % (vO + i, vT + 1, vT))
    for i in range(2):
        A("v_add_u32 v%d, %d, v%d" % (vT + 1, 4 * i, vG4)); A("v_lshlrev_b32 v%d, 1, v%d" % (vT + 1, vT + 1))
        A("v_xor_b32 v%d, v%d, v%d" % (vT + 1, vT + 1, vN16)); A("v_lshl_add_u32 v%d, v%d, 4, v%d" % (vO + 4 + i, vT + 1, vT))
    sG, sSLOT, sFR, sN = 12, 13, 88, 92
    A("s_bfe_u32 s%d, s%d, 0x30002" % (sBASE, sR)); A("s_lshl_b32 s%d, s%d, 23" % (sBASE, sBASE)); A("s_lshr_b32 s%d, s%d, 5" % (sT0, sR)); A("s_lshl_b32 s%d, s%d, 20" % (sT0, sT0))
    A("s_add_u32 s%d, s%d, s%d" % (sBASE, sBASE, sT0)); A("s_and_b32 s%d, s%d, 3" % (sT0, sR)); A("s_lshl_b32 s%d, s%d, 18" % (sT0, sT0)); A("s_add_u32 s%d, s%d, s%d" % (sBASE, sBASE, sT0))
    A("s_mov_b32 s93, 0"); A("s_mov_b32 s%d, s%d" % (sOFF, sBASE)); A("s_mov_b32 s%d, 0" % sG); A("s_mov_b32 s%d, 0" % sSLOT); A("s_mov_b32 s%d, 0" % sN)
    A("s_waitcnt lgkmcnt(0)")
    def dma_block(isk):
        for half in range(2):
            A("s_mov_b32 m0, s%d" % sSLOT)
            for i in range(4):
                A("buffer_load_dwordx4 v%d, %s, s%d offen offset:%d %s lds" % (vO + i if isk else vO + 4 + (i & 1), srd("K" if isk else "V"), sOFF, i * 1024, pol))
            A("s_add_u32 s%d, s%d, 4096" % (sOFF, sOFF)); A("s_add_u32 s%d, s%d, 4096" % (sSLOT, sSLOT))
        A("s_and_b32 s%d, s%d, 0x1ffff" % (sSLOT, sSLOT)); A("s_add_u32 s%d, s%d, 1" % (sN, sN))
    def publish_full(sgpr):
        A("v_mov_b32 v%d, s%d" % (vT, sgpr)); A("s_mov_b64 exec, 1"); A("ds_write_b32 v%d, v%d offset:%d" % (vHI, vT, F_FULL)); A("s_mov_b64 exec, -1")
    for _ in range(pre): dma_block(True)
    A("s_barrier")
    for _ in range(4 - pre): dma_block(True)
    A("s_mov_b32 s%d, 1" % sG)
    def read_freed():
        A("ds_read_b128 %s, v%d offset:%d" % (vr(vT + 4, 4), vHI, F_FREED)); A("s_waitcnt lgkmcnt(0)")
        for c in range(4): A("v_readfirstlane_b32 s%d, v%d" % (sFR + c, vT + 4 + c))
    for isk, last in ((True, 8), (False, 16)):
        loop = "L_ld_k" if isk else "L_ld_v"
        if not isk: A("s_mov_b32 s%d, s%d" % (sOFF, sBASE))
        A(loop + ":")
        if ldst:
            for k, g in enumerate((2, 3, 4, 5, 6, 7) if isk else (8, 10, 12, 14)):
                sk = A.label("st"); A("s_cmp_lg_u32 s%d, %d" % (sG, g)); A("s_cbranch_scc1 " + sk); stamp(k + 1 if isk else k + 7); A(sk + ":")
        read_freed()
        A("s_sub_i32 s%d, s%d, 2" % (sT1, sG))
        for c in range(4):
            go = A.label("go"); sl = A.label("slow")
            A("s_cmp_ge_i32 s%d, s%d" % (sFR + c, sT1)); A("s_cbranch_scc1 " + go)
            A("s_waitcnt vmcnt(0)"); publish_full(sN)
            if ldst: A("s_add_u32 s93, s93, 100")
            A("s_mov_b32 s%d, 0" % sSPIN)
            A(sl + ":")
            read_freed()
            A("s_cmp_ge_i32 s%d, s%d" % (sFR + c, sT1)); A("s_cbranch_scc1 " + go)
            A("s_add_u32 s%d, s%d, 1" % (sSPIN, sSPIN)); A("s_cmp_lt_u32 s%d, %d" % (sSPIN, lspin)); A("s_cbranch_scc1 " + sl)
            A(go + ":")
            dma_block(isk)
            A("s_sub_i32 s%d, s%d, %d" % (sT0, sN, F))
            if F > 5: A("s_max_i32 s%d, s%d, 0" % (sT0, sT0))
            A("s_waitcnt vmcnt(%d)" % (8 * F)); publish_full(sT0)
        if stamps:
            pass
        A("s_add_u32 s%d, s%d, 1" % (sG, sG)); A("s_cmp_lt_u32 s%d, %d" % (sG, last)); A("s_cbranch_scc1 " + loop)
        if not ldst: stamp(1 if isk else 2)
    for k in range(F - 1, -1, -1):
        A("s_mov_b32 s%d, %d" % (sT0, 64 - k)); A("s_waitcnt vmcnt(%d)" % (8 * k)); publish_full(sT0)
    if ldst:
        stamp(11); A("s_waitcnt lgkmcnt(0)"); A("s_add_u32 s40, s16, s93"); A("s_addc_u32 s41, s17, 0")
    else: stamp(3)
    A("s_waitcnt lgkmcnt(0)")
    A("s_branch L_done")

    def slot_addrs():
        A("v_lshlrev_b32 v28, 5, v0")
        A("s_and_b32 s%d, s%d, 3" % (sT0, sR)); A("s_lshl_b32 s%d, s%d, 3" % (sT0, sT0)); A("s_add_u32 s%d, s%d, s%d" % (sMU, sT0, sSTOFF))
    A("L_comm:")
    vZ = 20
    for i in range(4): A("v_mov_b32 v%d, 0" % (vZ + i))
    A("v_lshl_add_u32 v%d, v0, 2, v%d" % (vT, vHI))
    A("s_mov_b64 exec, 0xffff"); A("ds_write_b32 v%d, v%d offset:%d" % (vT, vZ, L_FLG)); A("s_mov_b64 exec, -1")
    slot_addrs()
    sEP = 4
    def epoch():
        A("s_waitcnt vmcnt(0)")
        A("v_readfirstlane_b32 s%d, v30" % sEP); A("v_readfirstlane_b32 s%d, v31" % (sEP + 1))
        A("s_add_u32 s%d, s%d, 0x%x" % (sEP, sEP, EP_STEP & 0xffffffff)); A("s_addc_u32 s%d, s%d, 0x%x" % (sEP + 1, sEP + 1, EP_STEP >> 32))
    A("s_waitcnt lgkmcnt(0)")
    A("buffer_load_dwordx2 v[30:31], off, %s, 0 offset:%d sc1" % (srd("WS"), WS_EP))
    A("s_barrier")
    A("v_add_u32 v%d, v%d, v%d" % (vT, vHI, vL16))
    A("v_and_b32 v29, 7, v0"); A("v_lshlrev_b32 v29, 14, v29"); A("v_lshl_add_u32 v29, v%d, 4, v29" % vG4)
    A("s_lshl_b32 s%d, s%d, 6" % (sT2, sR)); A("s_add_u32 s%d, s%d, 0x%x" % (sT2, sT2, WS_Q))
    A("s_bfe_u32 s%d, s%d, 0x30002" % (sT0, sR)); A("s_lshl_b32 s%d, s%d, 14" % (sT0, sT0)); A("s_lshr_b32 s%d, s%d, 5" % (sT1, sR)); A("s_lshl_b32 s%d, s%d, 11" % (sT1, sT1))
    A("s_add_u32 s%d, s%d, s%d" % (sT0, sT0, sT1)); A("s_add_u32 s%d, s%d, 0x%x" % (sT0, sT0, WS_Q))
    A("v_lshl_add_u32 v27, v0, 3, v%d" % vHI)
    epoch()
    A("v_mov_b32 v38, s%d" % sEP); A("v_mov_b32 v39, s%d" % (sEP + 1))
    stamp(1)
    lds_wait(F_QP, 4)
    for w in range(4): A("ds_read_b128 %s, v%d offset:%d" % (vr(40 + 4 * w, 4), vT, L_QP + w * 1024))
    A("s_waitcnt lgkmcnt(0)")
    for i in range(4): A("v_add_f32 v%d, v%d, v%d" % (40 + i, 40 + i, 44 + i)); A("v_add_f32 v%d, v%d, v%d" % (48 + i, 48 + i, 52 + i))
    for i in range(4): A("v_add_f32 v%d, v%d, v%d" % (40 + i, 40 + i, 48 + i))
    A("v_cvt_pk_bf16_f32 v36, v40, v41"); A("v_cvt_pk_bf16_f32 v37, v42, v43")
    A("s_mov_b32 exec_lo, 0x00ff00ff"); A("s_mov_b32 exec_hi, 0x00ff00ff")
    A("buffer_store_dwordx4 v[36:39], v29, %s, s%d offen sc1" % (srd("WS"), sT2))
    A("s_mov_b64 exec, -1")
    stamp(2)
    gpoll([(lambda: A("buffer_load_dwordx4 v[32:35], v%d, %s, s%d offen sc1" % (vL16, srd("WS"), sT0)), [32, 33, 34, 35]),
           (lambda: A("buffer_load_dwordx4 v[40:43], v%d, %s, s%d offen offset:1024 sc1" % (vL16, srd("WS"), sT0)), [40, 41, 42, 43])], sleep=qsleep, tag="s[%d:%d]" % (sEP, sEP + 1))
    A("ds_write_b64 v27, v[32:33] offset:%d" % L_QB); A("ds_write_b64 v27, v[40:41] offset:%d" % (L_QB + 512))
    lds_add(vHI, F_QR)
    stamp(4)
    A("v_lshlrev_b32 v%d, 5, v0" % (vT + 1))
    word_poll("buffer_load_dword v32, v%d, %s, 0 offen sc1" % (vT + 1, srd("DBG")), 32, "0xff", "v_cmp_gt_u32 vcc, 32, v%d", fsleep)
    stamp(3)
    A("v_lshlrev_b32 v%d, 3, v%d" % (vT + 1, vN16)); A("v_add_u32 v%d, v%d, v%d" % (vT + 2, vHI, vT + 1))
    lds_wait(F_ST, 4)
    A("ds_read_b64 v[32:33], v%d offset:%d" % (vT + 2, L_ST)); A("s_waitcnt lgkmcnt(0)")
    def combine(modes):
        A("v_mov_b32 v34, v32")
        for m in modes: dpp("v_max_f32", 34, m)
        A("v_sub_f32 v32, v32, v34"); A("v_exp_f32 v32, v32"); A("v_mul_f32 v35, v32, v33")
        for m in modes: dpp("v_add_f32", 35, m)
    combine(("row_ror:4", "row_ror:8"))
    A("s_mov_b64 exec, 0xf"); A("buffer_store_dwordx2 v[34:35], v28, %s, s%d offen sc1" % (srd("WS"), sMU)); A("s_mov_b64 exec, -1")
    stamp(5)
    gpoll([(lambda: A("buffer_load_dwordx2 v[32:33], v%d, %s, s%d offen sc1" % (vT + 1, srd("WS"), sSTOFF)), [32, 33])], sleep=ssleep)
    combine(("quad_perm:[1,0,3,2]", "quad_perm:[2,3,0,1]"))
    A("v_rcp_f32 v35, v35"); A("v_lshl_add_u32 v%d, v%d, 3, v%d" % (vT + 2, vC4, vHI))
    A("s_mov_b64 exec, 0x1111"); A("ds_write_b64 v%d, v[34:35] offset:%d" % (vT + 2, L_GS)); A("s_mov_b64 exec, -1")
    lds_add(vHI, F_GR)
    stamp(6)
    A("s_mov_b32 s%d, 2" % sMU)
    A("L_gather56:")
    A("s_waitcnt lgkmcnt(0)")
    A("s_barrier")
    stamp(8)
    gather(sMU, lambda: None)
    A("s_waitcnt lgkmcnt(0)")
    A("s_barrier")
    stamp(9)
    A("s_branch L_done")

    A("L_mlp:")
    vW, vU = 32, 64
    A("s_cmp_lg_u32 s%d, 7" % sWAVE); A("s_cbranch_scc1 L_noclean")
    for i in range(4): A("v_mov_b32 v%d, -1" % (60 + i))
    slot_addrs()
    A("v_lshlrev_b32 v%d, 13, v%d" % (vT + 1, vG4)); A("v_lshl_add_u32 v%d, v%d, 4, v%d" % (vT + 1, vN16, vT + 1))
    A("s_lshl_b32 s%d, s%d, 11" % (sT1, sR)); A("s_add_u32 s%d, s%d, 0x%x" % (sT1, sT1, WS_SP))
    A("s_waitcnt lgkmcnt(0)")
    A("buffer_load_dwordx2 v[30:31], off, %s, 0 offset:%d sc1" % (srd("WS"), WS_EP))
    A("s_mov_b64 exec, 0xf"); A("buffer_store_dwordx2 v[60:61], v28, %s, s%d offen sc1" % (srd("WS"), sMU)); A("s_mov_b64 exec, -1")
    A("buffer_store_dwordx4 v[60:63], v%d, %s, s%d offen sc1" % (vT + 1, srd("WS"), sOPOFF))
    A("buffer_store_dwordx4 v[60:63], v%d, %s, s%d offen sc1" % (vL16, srd("WS"), sT1))
    A("buffer_store_dwordx4 v[60:63], v%d, %s, s%d offen offset:1024 sc1" % (vL16, srd("WS"), sT1))
    A("L_noclean:")
    A("s_sub_u32 s%d, s%d, 6" % (sMB, sWAVE))
    A("v_mul_u32_u24 v%d, 12, v0" % vT); A("s_mul_i32 s%d, s%d, 1792" % (sT1, sMB))
    A("s_waitcnt lgkmcnt(0)")
    A("s_load_dword s%d, s[%d:%d], 0" % (sB2, sB2P, sB2P + 1))
    A("s_barrier")
    for k, n in enumerate(("W1", "B1", "W2")):
        A("buffer_load_dwordx4 %s, v%d, %s, s%d offen" % (vr(vW + 8 * k, 4), vL16, srd(n), sT1))
        A("buffer_load_dwordx3 %s, v%d, %s, s%d offen offset:1024" % (vr(vW + 8 * k + 4, 3), vT, srd(n), sT1))
    A("s_cmp_lg_u32 s%d, 7" % sWAVE); A("s_cbranch_scc1 L_noflag")
    A("s_lshr_b32 s%d, s%d, 5" % (sT0, sR)); A("s_lshl_b32 s%d, s%d, 5" % (sT0, sT0))
    A("s_mov_b64 exec, 1")
    A("s_waitcnt vmcnt(6)")
    A("buffer_atomic_add v%d, off, %s, s%d" % (vONE, srd("DBG"), sT0))
    A("s_mov_b64 exec, -1")
    stamp(4)
    A("L_noflag:")
    A("s_lshr_b32 s%d, s%d, 5" % (sT0, sR)); A("s_mul_i32 s%d, s%d, %d" % (sT0, sT0, XN_STRIDE)); A("s_add_u32 s%d, s%d, %d" % (sT0, sT0, HI)); A("v_add_u32 v%d, s%d, v%d" % (vT + 1, sT0, vL16))
    A("s_lshl_b32 s%d, s%d, 13" % (sT2, sMB)); A("s_add_u32 s%d, s%d, %d" % (sT2, sT2, HI + L_WO)); A("v_add_u32 v%d, s%d, v%d" % (vT + 2, sT2, vL16))
    A("s_and_b32 s%d, s%d, 31" % (sT0, sR)); A("s_lshl_b32 s%d, s%d, 5" % (sT0, sT0)); A("s_add_u32 s%d, s%d, s%d" % (sT0, sT0, sT2))
    A("v_lshlrev_b32 v%d, 1, v%d" % (vT + 3, vN16)); A("v_add_u32 v%d, s%d, v%d" % (vT + 3, sT0, vT + 3))
    lds_wait(F_XN, 4)
    vXm = 112
    A("ds_read_b128 %s, v%d offset:%d" % (vr(vXm, 4), vT + 1, L_XN)); A("s_waitcnt lgkmcnt(0)")
    layernorm(vXm, 4, vXm + 4, vXm + 12, vXm + 20, 1)
    A("ds_write_b128 v%d, %s" % (vT + 2, vr(vXm, 4)))
    vH = 24
    A("ds_read_u16 v%d, v%d" % (vH, vT + 3))
    A("v_lshrrev_b32 v%d, 3, v0" % (vT + 4)); A("v_lshlrev_b32 v%d, 10, v%d" % (vT + 4, vT + 4)); A("v_and_b32 v%d, 7, v0" % (vT + 5)); A("v_lshl_add_u32 v%d, v%d, 4, v%d" % (vT + 4, vT + 5, vT + 4))
    A("s_lshr_b32 s%d, s%d, 3" % (sT0, sR)); A("s_lshl_b32 s%d, s%d, 17" % (sT0, sT0)); A("s_and_b32 s%d, s%d, 7" % (sT1, sR)); A("s_lshl_b32 s%d, s%d, 7" % (sT1, sT1))
    A("s_add_u32 s%d, s%d, s%d" % (sT0, sT0, sT1)); A("s_lshl_b32 s%d, s%d, 16" % (sT1, sMB)); A("s_add_u32 s%d, s%d, s%d" % (sT0, sT0, sT1))
    A("s_waitcnt vmcnt(0) lgkmcnt(0)")
    for a in range(8):
        A("s_add_u32 m0, s%d, %d" % (sT2, a * 1024))
        if 'o' not in abl: A("buffer_load_dwordx4 v%d, %s, s%d offen %s lds" % (vT + 4, srd("WO"), sT0, polo))
        if a < 7: A("s_add_u32 s%d, s%d, 0x2000" % (sT0, sT0))
    stamp(1)
    A("v_lshlrev_b32 v%d, 16, v%d" % (vH, vH))
    for k in range(3):
        for i in range(7): unpack(vU + 14 * k + 2 * i, vU + 14 * k + 2 * i + 1, vW + 8 * k + i)
    vC0, vACC, U, T_ = 25, 26, 112, 128
    A("v_mov_b32 v%d, s%d" % (vC0, sC0))
    A("s_lshl_b32 s%d, s%d, 6" % (sT0, sMB)); A("s_add_u32 s%d, s%d, %d" % (sT0, sT0, HI + L_YP)); A("v_mov_b32 v27, s%d" % sT0)
    A("s_mov_b32 s%d, 0" % sT1)
    A("s_nop 3")
    A("L_mlp_loop:")
    A("v_readlane_b32 s%d, v%d, s%d" % (sMU, vH, sT1))
    for t in range(14): A("v_fma_f32 v%d, s%d, v%d, v%d" % (U + t, sMU, vU + t, vU + 14 + t))
    for t in range(14): A("v_mul_f32 v%d, v%d, v%d" % (T_ + t, U + t, U + t))
    for t in range(14): A("v_fma_f32 v%d, v%d, s%d, v%d" % (T_ + t, T_ + t, sC1, vC0))
    for t in range(14): A("v_mul_f32 v%d, v%d, v%d" % (T_ + t, T_ + t, U + t))
    for t in range(14):
        A("v_exp_f32 v%d, v%d" % (T_ + t, T_ + t)); A("v_mul_f32 v%d, v%d, v%d" % (U + t, U + t, vU + 28 + t))
    for t in range(14): A("v_add_f32 v%d, 1.0, v%d" % (T_ + t, T_ + t))
    for t in range(14): A("v_rcp_f32 v%d, v%d" % (T_ + t, T_ + t))
    A("v_mul_f32 v%d, v%d, v%d" % (vACC, U, T_)); A("v_mul_f32 v%d, v%d, v%d" % (U, U + 1, T_ + 1))
    for t in range(2, 14): A("v_fmac_f32 v%d, v%d, v%d" % (vACC if t & 1 else U, U + t, T_ + t))
    A("v_add_f32 v%d, v%d, v%d" % (vACC, vACC, U))
    red16(vACC, "v_add_f32"); dpp("v_add_f32", vACC, "row_bcast:15", "0xa"); dpp("v_add_f32", vACC, "row_bcast:31", "0xc")
    A("s_mov_b32 exec_lo, 0"); A("s_mov_b32 exec_hi, 0x80000000")
    A("ds_write_b32 v27, v%d" % vACC); A("v_add_u32 v27, 4, v27")
    A("s_mov_b64 exec, -1")
    A("s_add_u32 s%d, s%d, 1" % (sT1, sT1)); A("s_cmp_lt_u32 s%d, 16" % sT1); A("s_cbranch_scc1 L_mlp_loop")
    stamp(2)
    A("s_waitcnt vmcnt(0)")
    A("s_mov_b32 s%d, 3" % sMU)
    A("s_cmp_eq_u32 s%d, 6" % sWAVE); A("s_cbranch_scc1 L_gather56")
    A("v_lshl_add_u32 v%d, v%d, 2, v%d" % (vT + 1, vR4, vG4)); A("v_lshlrev_b32 v%d, 1, v%d" % (vT + 2, vT + 1)); A("s_lshl_b32 s%d, s%d, 5" % (sT0, sR))
    A("buffer_load_ushort v%d, v%d, %s, s%d offen" % (vT + 3, vT + 2, srd("X"), sT0))
    A("v_lshl_add_u32 v%d, v%d, 2, v%d" % (vT + 1, vT + 1, vHI))
    A("s_lshl_b32 s%d, s%d, 11" % (sT1, sR)); A("s_add_u32 s%d, s%d, 0x%x" % (sT1, sT1, WS_SP))
    A("s_waitcnt lgkmcnt(0)")
    A("s_barrier")
    stamp(8)
    A("ds_read_b32 v40, v%d offset:%d" % (vT + 1, L_YP)); A("ds_read_b32 v41, v%d offset:%d" % (vT + 1, L_YP + 64)); A("s_waitcnt lgkmcnt(0)")
    A("v_add_f32 v40, v40, v41"); rbf(40)
    A("s_lshl_b32 s%d, s%d, 16" % (sB2, sB2)); A("v_add_f32 v40, s%d, v40" % sB2); rbf(40)
    A("v_mul_f32 v41, s%d, v40" % sL2E); A("v_exp_f32 v41, -v41"); A("v_add_f32 v41, 1.0, v41"); A("v_rcp_f32 v41, v41"); A("v_mul_f32 v40, v40, v41"); rbf(40)
    A("s_barrier")
    stamp(9)
    gpoll([(lambda: A("buffer_load_dwordx4 v[32:35], v%d, %s, s%d offen sc1" % (vL16, srd("WS"), sT1)), [32, 33, 34, 35]),
           (lambda: A("buffer_load_dwordx4 v[36:39], v%d, %s, s%d offen offset:1024 sc1" % (vL16, srd("WS"), sT1)), [36, 37, 38, 39])], sleep=tsleep)
    stamp(10)
    for i in range(4): A("v_add_f32 v%d, v%d, v%d" % (32 + i, 32 + i, 36 + i))
    A("v_lshlrev_b32 v%d, 16, v%d" % (vT + 3, vT + 3))
    A("v_permlane32_swap_b32 v32, v34"); A("v_permlane32_swap_b32 v33, v35")
    A("v_add_f32 v32, v32, v34"); A("v_add_f32 v33, v33, v35")
    A("v_permlane16_swap_b32 v32, v33"); A("v_add_f32 v32, v32, v33")
    dpp("v_add_f32", 32, "row_ror:8"); dpp("v_add_f32", 32, "row_ror:4")
    rbf(32); A("v_mul_f32 v32, v32, v40"); rbf(32)
    A("v_add_f32 v32, v32, v%d" % (vT + 3)); A("v_cvt_pk_bf16_f32 v32, v32, v32")
    A("s_mov_b32 exec_lo, 0x000f000f"); A("s_mov_b32 exec_hi, 0x000f000f")
    A("buffer_store_short v32, v%d, %s, s%d offen" % (vT + 2, srd("OUT"), sT0))
    A("s_mov_b64 exec, -1")
    A("s_cmp_lg_u32 s%d, 0" % sR); A("s_cbranch_scc1 L_done")
    epoch()
    A("v_mov_b32 v30, s%d" % sEP); A("v_mov_b32 v31, s%d" % (sEP + 1)); A("s_mov_b64 exec, 1")
    A("buffer_store_dwordx2 v[30:31], off, %s, 0 offset:%d sc1" % (srd("WS"), WS_EP))
    A("s_mov_b64 exec, -1")
    A("L_done:")
    if stamps:
        A("s_waitcnt vmcnt(0)")
        stamp(NST - 1)
        A("s_waitcnt lgkmcnt(0)")
        A("s_lshl_b32 s%d, s2, 3" % sT0); A("s_add_u32 s%d, s%d, s%d" % (sT0, sT0, sWAVE)); A("s_mul_i32 s%d, s%d, %d" % (sT0, sT0, NST * 8)); A("s_add_u32 s%d, s%d, 0x%x" % (sT0, sT0, WS_STAMP))
        A("s_mov_b64 exec, 1")
        for k in range(NST):
            A("v_mov_b32 v2, s%d" % (16 + 2 * k)); A("v_mov_b32 v3, s%d" % (17 + 2 * k))
            A("buffer_store_dwordx2 v[2:3], off, %s, s%d offset:%d" % (srd("WS"), sT0, k * 8)); A("s_nop 1")
    A("L_end:")
    A("s_endpgm")
    body = A.finalize()
    hdr = open("recurrent_scan__gqa_block_cached__mixer_token_mlp__decode.s.ref").read().split("; Override launch")[0]
    s = hdr + "; @launch grid=(256,1,1) block=(512,1,1) lds=%d\n" % LDS_BYTES
    s += '.amdgcn_target "amdgcn-amd-amdhsa--gfx950"\n.text\n.globl %s\n.p2align 8\n.type %s,@function\n%s:\n' % (NAME, NAME, NAME)
    s += body
    s += '.section .rodata,"a"\n.p2align 6\n.amdhsa_kernel %s\n  .amdhsa_next_free_vgpr 256\n  .amdhsa_next_free_sgpr 102\n  .amdhsa_accum_offset 256\n' % NAME
    s += "  .amdhsa_group_segment_fixed_size 0\n  .amdhsa_kernarg_size 104\n  .amdhsa_user_sgpr_count 2\n  .amdhsa_user_sgpr_kernarg_segment_ptr 1\n  .amdhsa_system_sgpr_workgroup_id_x 1\n.end_amdhsa_kernel\n"
    return s, A

if __name__ == "__main__":
    out = sys.argv[1]
    kw = {}
    for p in sys.argv[2:]:
        k, v = p.split("=")
        kw[k] = int(v) if v.lstrip("-").isdigit() else v.replace("+", " ")
    s, A = gen(**kw)
    open(out, "w").write(s)
    print("wrote", out, "instructions", len(A.ins), "nops", A.nops, "lds", LDS_BYTES)
```

```python
import sys, struct
from asmlib import Asm

NAME = "recurrent_scan__gqa_block_cached__mixer_token_mlp__decode_kernel"
def f2u(x): return struct.unpack("<I", struct.pack("<f", x))[0]

WS_ST, WS_OP, WS_SP, WS_Q, WS_EP = 0x10000, 0x20000, 0x100000, 0x60000, 0x0
EP_STEP = 0x9E3779B97F4A7C15
WS_STAMP = 128 << 20
HI = 131072
L_WO = 0
L_XN, XN_STRIDE = 16384, 1040
L_OW = L_XN
L_QP = 24704
L_QB = 28800
L_FLG = 29824
L_ST = L_FLG + 64
L_GS = L_ST + 128
L_YP = L_GS + 32
LDS_BYTES = HI + L_YP + 128
F_FULL, F_FREED, F_XN, F_QP, F_QR, F_ST, F_GR, F_FL, F_CL = [L_FLG + 4 * i for i in (0, 4, 8, 9, 10, 11, 12, 13, 14)]

sWAVE, sBASE, sOFF = 3, 4, 5
sT0, sT1, sT2 = 6, 7, 8
sR, sSPIN, sT3 = 9, 10, 11
sMU, sMB = 14, 15
SRD = dict(K=44, V=48, X=52, WQ=56, WO=60, W1=64, B1=68, W2=72, OUT=76, DBG=80, WS=84)
KARG = dict(X=0, K=8, V=16, WQ=24, WO=32, W1=48, B1=56, W2=64, OUT=80, DBG=88, WS=96)
SIZE = dict(X=8192, K=1 << 26, V=1 << 26, WQ=1 << 22, WO=1 << 22, W1=3584, B1=3584, W2=3584, OUT=8192, DBG=256, WS=1 << 28)
sSELLO, sSELHI, sMASK, sSCALE, sL2E, sC0, sC1, sB2, sB2P = 88, 89, 90, 91, 92, 93, 94, 95, 96
sOPOFF, sSPOFF, sSTOFF, sFULL = 98, 99, 100, 101
def srd(n): return "s[%d:%d]" % (SRD[n], SRD[n] + 3)
def vr(a, n=1): return "v%d" % a if n == 1 else "v[%d:%d]" % (a, a + n - 1)
vL16, vG4, vC4, vR4, vN16, vHI, vONE = 1, 2, 3, 4, 5, 6, 7
vT = 8
vPOLL = 16

def gen(F=4, stamps=0, pol="nt", spin=1 << 17, lspin=1 << 22, mimic=1, pre=0, lsleep=1, ldprio=3, fsleep=8, qsleep=2, ssleep=8, tsleep=0, xmap=1, polq=None, polo=None, ldst=0, abl='', rot=0, pad=0, P1=1, P2=1, pd=5, qmap=0, tl='sc1', ts='sc1', tsleep2=None, Fhi=0, himask=0xf8, hiend=16, spad=0, at2=1, td2=8, td1=0, at1=0, qdelay=0, sdelay=0, qtrig=8, strig=48, bshift=0):
    tsleep2 = tsleep if tsleep2 is None else tsleep2
    polq = pol if polq is None else polq.replace('def', '')
    polo = pol if polo is None else polo.replace('def', '')
    A = Asm()
    NST = 14
    def stamp(k):
        if stamps: A("s_memrealtime s[%d:%d]" % (16 + 2 * k, 17 + 2 * k))
    QUADS = ("quad_perm:[1,0,3,2]", "quad_perm:[2,3,0,1]", "row_half_mirror", "row_mirror")
    def dpp(op, v, m, rm="0xf"): A("%s_dpp v%d, v%d, v%d %s row_mask:%s bank_mask:0xf" % (op, v, v, v, m, rm))
    def red16(v, op):
        for m in QUADS: dpp(op, v, m)
    def swap_red(v, t, op, which):
        A("v_mov_b32 v%d, v%d" % (t, v)); A("v_permlane%d_swap_b32 v%d, v%d" % (which, v, t)); A("%s v%d, v%d, v%d" % (op, v, v, t))
    def rbf(v):
        A("v_cvt_pk_bf16_f32 v%d, v%d, v%d" % (v, v, v)); A("v_lshlrev_b32 v%d, 16, v%d" % (v, v))
    def unpack(dlo, dhi, src):
        A("v_lshlrev_b32 v%d, 16, v%d" % (dlo, src)); A("v_and_b32 v%d, s%d, v%d" % (dhi, sMASK, src))
    def layernorm(pk, n, x, d, t, halves):
        def allred(v):
            red16(v, "v_add_f32"); swap_red(v, t + 2, "v_add_f32", 16)
            if halves == 1: swap_red(v, t + 2, "v_add_f32", 32)
        for i in range(n): unpack(x + 2 * i, x + 2 * i + 1, pk + i)
        A("v_add_f32 v%d, v%d, v%d" % (t, x, x + 1)); A("v_add_f32 v%d, v%d, v%d" % (t + 1, x + 2, x + 3))
        for i in range(4, 2 * n): A("v_add_f32 v%d, v%d, v%d" % (t + (i & 1), t + (i & 1), x + i))
        A("v_add_f32 v%d, v%d, v%d" % (t, t, t + 1))
        allred(t)
        A("v_mul_f32 v%d, 0x3b000000, v%d" % (t, t))
        A("v_cvt_pk_bf16_f32 v%d, v%d, v%d" % (t + 1, t, t))
        for i in range(2 * n): A("v_sub_f32 v%d, v%d, v%d" % (d + i, x + i, t))
        A("v_lshlrev_b32 v%d, 16, v%d" % (t + 1, t + 1))
        A("v_mul_f32 v%d, v%d, v%d" % (t, d, d)); A("v_mul_f32 v%d, v%d, v%d" % (d, d + 1, d + 1))
        for i in range(2, 2 * n): A("v_fmac_f32 v%d, v%d, v%d" % (t if i & 1 else d, d + i, d + i))
        A("v_add_f32 v%d, v%d, v%d" % (t, t, d))
        for i in range(2 * n): A("v_sub_f32 v%d, v%d, v%d" % (x + i, x + i, t + 1))
        allred(t)
        for i in range(n): A("v_cvt_pk_bf16_f32 v%d, v%d, v%d" % (pk + i, x + 2 * i, x + 2 * i + 1))
        A("v_mul_f32 v%d, 0x3b000000, v%d" % (t, t)); rbf(t)
        A("v_add_f32 v%d, 0x%x, v%d" % (t, f2u(1e-5), t)); rbf(t)
        A("v_sqrt_f32 v%d, v%d" % (t, t)); rbf(t)
        A("v_rcp_f32 v%d, v%d" % (t, t))
        for i in range(n): unpack(x + 2 * i, x + 2 * i + 1, pk + i)
        for i in range(2 * n): A("v_mul_f32 v%d, v%d, v%d" % (x + i, t, x + i))
        for i in range(n): A("v_cvt_pk_bf16_f32 v%d, v%d, v%d" % (pk + i, x + 2 * i, x + 2 * i + 1))
    def lds_wait(flag, val, keep=None, sl=None):
        ok = A.label("lok"); again = A.label("lagain")
        dst = keep if keep is not None else sT3
        if keep is not None:
            A("s_cmp_ge_u32 s%d, %s" % (keep, val)); A("s_cbranch_scc1 " + ok)
        A("s_mov_b32 s%d, 0" % sSPIN)
        A(again + ":")
        A("ds_read_b32 v%d, v%d offset:%d" % (vPOLL, vHI, flag)); A("s_waitcnt lgkmcnt(0)")
        A("v_readfirstlane_b32 s%d, v%d" % (dst, vPOLL))
        A("s_cmp_ge_u32 s%d, %s" % (dst, val)); A("s_cbranch_scc1 " + ok)
        if sl is None: sl = lsleep
        if sl: A("s_sleep %d" % sl)
        A("s_add_u32 s%d, s%d, 1" % (sSPIN, sSPIN)); A("s_cmp_lt_u32 s%d, %d" % (sSPIN, lspin)); A("s_cbranch_scc1 " + again)
        A(ok + ":")
    def lds_add(flag_addr_reg, off):
        A("s_waitcnt lgkmcnt(0)")
        A("s_mov_b64 exec, 1"); A("ds_add_u32 v%d, v%d offset:%d" % (flag_addr_reg, vONE, off)); A("s_mov_b64 exec, -1")
    def gpoll(loads, first=True, sleep=0, full="-1", tag=None, P=1):
        ok = A.label("ok"); again = A.label("again")
        masks = ["vcc", "s[12:13]"]
        A("s_mov_b32 s%d, 0" % sSPIN)
        if first:
            for issue, regs in loads: issue()
        for _ in range(P - 1):
            A("s_sleep %d" % pd)
            for issue, regs in loads: issue()
        A(again + ":")
        A("s_waitcnt vmcnt(%d)" % (len(loads) * (P - 1)))
        for (issue, regs), mk in zip(loads, masks):
            t = vT + 7
            if tag is not None:
                A("v_cmp_ne_u64 %s, %s, v[%d:%d]" % (mk, tag, regs[2], regs[3])); continue
            if len(regs) == 2: A("v_max_u32 v%d, v%d, v%d" % (t, regs[0], regs[1]))
            else:
                A("v_max3_u32 v%d, v%d, v%d, v%d" % (t, regs[0], regs[1], regs[2])); A("v_max_u32 v%d, v%d, v%d" % (t, t, regs[3]))
            A("v_cmp_eq_u32 %s, -1, v%d" % (mk, t))
        if len(loads) == 2:
            A("s_or_b32 s%d, vcc_lo, vcc_hi" % sT3); A("s_or_b32 s%d, s%d, s12" % (sT3, sT3)); A("s_or_b32 s%d, s%d, s13" % (sT3, sT3))
        else:
            A("s_or_b32 s%d, vcc_lo, vcc_hi" % sT3)
        A("s_cbranch_scc0 " + ok)
        if sleep: A("s_sleep %d" % sleep)
        for (issue, regs), mk in zip(loads, masks):
            A("s_mov_b64 exec, %s" % mk); issue()
        A("s_mov_b64 exec, %s" % full)
        A("s_add_u32 s%d, s%d, 1" % (sSPIN, sSPIN)); A("s_cmp_lt_u32 s%d, %d" % (sSPIN, spin)); A("s_cbranch_scc1 " + again)
        A("s_waitcnt vmcnt(0)")
        A(ok + ":")
    def apoll(vd, vaddr, soff, vtmp, sleep, first=True):
        ms = ["vcc", "s[12:13]", "s[88:89]", "s[90:91]"]
        ok = A.label("aok"); again = A.label("aagain")
        def iss(k):
            A("v_mov_b32 v%d, 0" % (vd + 2 * k)); A("v_mov_b32 v%d, 0" % (vd + 1 + 2 * k))
            A("buffer_atomic_or_x2 v[%d:%d], v%d, %s, s%d offen offset:%d sc0" % (vd + 2 * k, vd + 1 + 2 * k, vaddr, srd("WS"), soff, 512 * k))
        if first == "only":
            for k in range(4): iss(k)
            return
        A("s_mov_b32 s%d, 0" % sSPIN)
        if first:
            for k in range(4): iss(k)
        A(again + ":")
        A("s_waitcnt vmcnt(0)")
        for k in range(4): A("v_max_u32 v%d, v%d, v%d" % (vtmp + k, vd + 2 * k, vd + 1 + 2 * k))
        for k in range(4): A("v_cmp_eq_u32 %s, -1, v%d" % (ms[k], vtmp + k))
        A("s_or_b64 s[92:93], vcc, s[12:13]"); A("s_or_b64 s[94:95], s[88:89], s[90:91]"); A("s_or_b64 s[92:93], s[92:93], s[94:95]")
        A("s_cbranch_scc0 " + ok)
        if sleep: A("s_sleep %d" % sleep)
        for k in range(4):
            A("s_mov_b64 exec, %s" % ms[k]); iss(k)
        A("s_mov_b64 exec, -1")
        A("s_add_u32 s%d, s%d, 1" % (sSPIN, sSPIN)); A("s_cmp_lt_u32 s%d, %d" % (sSPIN, spin)); A("s_cbranch_scc1 " + again)
        A("s_waitcnt vmcnt(0)")
        A(ok + ":")
    def word_poll(load, vd, lanes, cmp, sleep):
        ok = A.label("fok"); again = A.label("fagain")
        A("s_mov_b32 s%d, 0" % sSPIN); A("s_mov_b64 exec, %s" % lanes)
        A(again + ":")
        A(load)
        A("s_waitcnt vmcnt(0)")
        A(cmp % vd)
        A("s_cmp_eq_u64 vcc, 0"); A("s_cbranch_scc1 " + ok)
        if sleep: A("s_sleep %d" % sleep)
        A("s_add_u32 s%d, s%d, 1" % (sSPIN, sSPIN)); A("s_cmp_lt_u32 s%d, %d" % (sSPIN, spin)); A("s_cbranch_scc1 " + again)
        A(ok + ":")
        A("s_mov_b64 exec, -1")

    A("s_cmp_ge_u32 s2, 256"); A("s_cbranch_scc1 L_end")
    if stamps:
        for k in range(1, NST): A("s_mov_b64 s[%d:%d], 0" % (16 + 2 * k, 17 + 2 * k))
    stamp(0)
    if pad and not stamps: A("s_memrealtime s[16:17]")
    for n in ("K", "X", "WQ", "WS", "V", "WO", "W1", "B1", "W2", "DBG", "OUT"):
        A("s_load_dwordx2 s[%d:%d], s[0:1], %d" % (SRD[n], SRD[n] + 1, KARG[n]))
    A("s_load_dwordx2 s[%d:%d], s[0:1], 72" % (sB2P, sB2P + 1))
    A("v_lshrrev_b32 v1, 6, v0"); A("v_and_b32 v0, 63, v0"); A("v_readfirstlane_b32 s%d, v1" % sWAVE)
    for n in SRD:
        A("s_mov_b32 s%d, 0x%x" % (SRD[n] + 2, SIZE[n])); A("s_mov_b32 s%d, 0x20000" % (SRD[n] + 3))
    if xmap == 0:
        A("s_and_b32 s%d, s2, 7" % sR); A("s_lshl_b32 s%d, s%d, 5" % (sR, sR)); A("s_lshr_b32 s%d, s2, 3" % sT0); A("s_add_u32 s%d, s%d, s%d" % (sR, sR, sT0))
    else:
        if xmap == 2:
            A("s_lshr_b32 s%d, s2, 5" % sT0); A("s_add_u32 s%d, s2, s%d" % (sR, sT0))
        elif xmap == 3:
            A("s_bfe_u32 s%d, s2, 0x20003" % sT0); A("s_lshl_b32 s%d, s%d, 1" % (sT0, sT0)); A("s_add_u32 s%d, s2, s%d" % (sR, sT0))
        else: A("s_add_u32 s%d, s2, %d" % (sR, bshift))
        A("s_and_b32 s%d, s%d, 7" % (sR, sR)); A("s_lshl_b32 s%d, s%d, 2" % (sR, sR)); A("s_and_b32 s%d, s2, 0xe0" % sT0); A("s_add_u32 s%d, s%d, s%d" % (sR, sR, sT0))
        A("s_bfe_u32 s%d, s2, 0x20003" % sT0); A("s_add_u32 s%d, s%d, s%d" % (sR, sR, sT0))
    sRQ = sMB
    if qmap == 0: A("s_mov_b32 s%d, s%d" % (sRQ, sR))
    elif qmap == 1:
        A("s_and_b32 s%d, s2, 7" % sRQ); A("s_lshl_b32 s%d, s%d, 5" % (sRQ, sRQ)); A("s_lshr_b32 s%d, s2, 3" % sT0); A("s_add_u32 s%d, s%d, s%d" % (sRQ, sRQ, sT0))
    elif qmap == 2:
        A("s_lshr_b32 s%d, s%d, 3" % (sT0, sR)); A("s_and_b32 s%d, s%d, 0x1c" % (sT0, sT0)); A("s_add_u32 s%d, s%d, s%d" % (sT0, sT0, sR)); A("s_and_b32 s%d, s%d, 0x1c" % (sT0, sT0))
        A("s_and_b32 s%d, s%d, 0xe3" % (sRQ, sR)); A("s_or_b32 s%d, s%d, s%d" % (sRQ, sRQ, sT0))
    elif qmap == 4:
        A("s_lshr_b32 s%d, s%d, 5" % (sT0, sR)); A("s_lshl_b32 s%d, s%d, 1" % (sT0, sT0)); A("s_bfe_u32 s%d, s%d, 0x10001" % (sT1, sR)); A("s_add_u32 s%d, s%d, s%d" % (sT0, sT0, sT1))
        A("s_lshr_b32 s%d, s%d, 2" % (sT1, sT0)); A("s_lshl_b32 s%d, s%d, 1" % (sT1, sT1)); A("s_bfe_u32 s%d, s%d, 0x30002" % (sT2, sR)); A("s_add_u32 s%d, s%d, s%d" % (sT1, sT1, sT2))
        A("s_and_b32 s%d, s%d, 7" % (sT1, sT1)); A("s_lshl_b32 s%d, s%d, 3" % (sT0, sT0)); A("s_add_u32 s%d, s%d, s%d" % (sT0, sT0, sT1)); A("s_lshl_b32 s%d, s%d, 1" % (sT0, sT0))
        A("s_and_b32 s%d, s%d, 1" % (sT1, sR)); A("s_add_u32 s%d, s%d, s%d" % (sRQ, sT0, sT1))
    A("v_lshlrev_b32 v%d, 4, v0" % vL16); A("v_lshrrev_b32 v%d, 4, v0" % vG4); A("v_bfe_u32 v%d, v0, 2, 2" % vC4)
    A("v_and_b32 v%d, 3, v0" % vR4); A("v_and_b32 v%d, 15, v0" % vN16); A("v_mov_b32 v%d, 0x%x" % (vHI, HI)); A("v_mov_b32 v%d, 1" % vONE)
    A("s_mov_b32 s%d, 0x05040100" % sSELLO); A("s_mov_b32 s%d, 0x07060302" % sSELHI); A("s_mov_b32 s%d, 0xffff0000" % sMASK)
    A("s_mov_b32 s%d, 0x%x" % (sSCALE, f2u(128 ** -0.5))); A("s_mov_b32 s%d, 0x%x" % (sL2E, f2u(1.4426950408889634)))
    c0 = -2.0 * 0.7978845608028654 * 1.4426950408889634
    A("s_mov_b32 s%d, 0x%x" % (sC0, f2u(c0))); A("s_mov_b32 s%d, 0x%x" % (sC1, f2u(c0 * 0.044715)))
    A("s_lshr_b32 s%d, s%d, 5" % (sT0, sR)); A("s_lshl_b32 s%d, s%d, 15" % (sT0, sT0))
    A("s_and_b32 s%d, s%d, 31" % (sT1, sR)); A("s_lshl_b32 s%d, s%d, 8" % (sT1, sT1)); A("s_add_u32 s%d, s%d, s%d" % (sT0, sT0, sT1))
    A("s_add_u32 s%d, s%d, 0x%x" % (sOPOFF, sT0, WS_OP))
    A("s_and_b32 s%d, s%d, 7" % (sT0, sR)); A("s_lshl_b32 s%d, s%d, %d" % (sT0, sT0, 13 + spad))
    A("s_lshr_b32 s%d, s%d, 3" % (sT1, sR)); A("s_lshl_b32 s%d, s%d, %d" % (sT1, sT1, 6 + spad)); A("s_add_u32 s%d, s%d, s%d" % (sT0, sT0, sT1))
    A("s_add_u32 s%d, s%d, 0x%x" % (sSPOFF, sT0, WS_SP))
    A("s_lshr_b32 s%d, s%d, 2" % (sT0, sR)); A("s_lshl_b32 s%d, s%d, 7" % (sT0, sT0)); A("s_add_u32 s%d, s%d, 0x%x" % (sSTOFF, sT0, WS_ST))
    A("s_cmp_eq_u32 s%d, 4" % sWAVE); A("s_cbranch_scc1 L_loader")
    A("s_cmp_eq_u32 s%d, 5" % sWAVE); A("s_cbranch_scc1 L_comm")
    A("s_cmp_gt_u32 s%d, 5" % sWAVE); A("s_cbranch_scc1 L_mlp")

    vQ, vS, vTMP, vK = 32, 48, 112, 128
    vKA, vVA = 17, 17
    vM, vLs, vMO, vF, vOWA = 25, 26, 27, 28, 29
    vX = vS
    A("v_lshlrev_b32 v%d, 5, v0" % vT)
    A("v_lshrrev_b32 v%d, 1, v0" % (vT + 1)); A("v_lshlrev_b32 v%d, 13, v%d" % (vT + 1, vT + 1))
    A("v_and_b32 v%d, 1, v0" % (vT + 2)); A("v_lshl_add_u32 v%d, v%d, 4, v%d" % (vT + 1, vT + 2, vT + 1))
    A("s_lshl_b32 s%d, s%d, 11" % (sT2, sWAVE))
    A("s_lshl_b32 s%d, s%d, 20" % (sT0, sWAVE)); A("s_lshl_b32 s%d, s%d, 5" % (sT1, sRQ)); A("s_add_u32 s%d, s%d, s%d" % (sT0, sT0, sT1))
    A("s_lshl_b32 s%d, s%d, 13" % (sT1, sWAVE)); A("s_add_u32 s%d, s%d, %d" % (sT1, sT1, 12 * 8192))
    A("s_waitcnt lgkmcnt(0)")
    if ldst == 2: stamp(12)
    A("buffer_load_dwordx4 %s, v%d, %s, s%d offen" % (vr(vX, 4), vT, srd("X"), sT2))
    A("buffer_load_dwordx4 %s, v%d, %s, s%d offen offset:16" % (vr(vX + 4, 4), vT, srd("X"), sT2))
    for a in range(4):
        A("s_add_u32 m0, s%d, %d" % (sT1, a * 1024))
        if 'q' in abl: A("buffer_load_dwordx4 v%d, %s, 0 offen lds" % (vL16, srd("X")))
        else: A("buffer_load_dwordx4 v%d, %s, s%d offen %s lds" % (vT + 1, srd("WQ"), sT0, polq))
        if a < 3: A("s_add_u32 s%d, s%d, 0x40000" % (sT0, sT0))
    A("s_barrier")
    A("v_lshrrev_b32 v%d, 5, v0" % (vT + 3)); A("s_lshl_b32 s%d, s%d, 1" % (sT0, sWAVE)); A("v_add_u32 v%d, s%d, v%d" % (vT + 3, sT0, vT + 3))
    A("v_mul_u32_u24 v%d, %d, v%d" % (vT + 3, XN_STRIDE, vT + 3)); A("v_and_b32 v%d, 31, v0" % (vT + 4)); A("v_lshl_add_u32 v%d, v%d, 5, v%d" % (vT + 3, vT + 4, vT + 3))
    A("v_add_u32 v%d, v%d, v%d" % (vT + 3, vHI, vT + 3))
    A("v_and_b32 v%d, 7, v0" % (vT + 4)); A("v_mul_u32_u24 v%d, %d, v%d" % (vT + 4, XN_STRIDE, vT + 4)); A("v_lshl_add_u32 v%d, v%d, 4, v%d" % (vT + 4, vG4, vT + 4))
    A("s_lshl_b32 s%d, s%d, 8" % (sT0, sWAVE)); A("s_add_u32 s%d, s%d, %d" % (sT0, sT0, HI)); A("v_add_u32 v%d, s%d, v%d" % (vT + 4, sT0, vT + 4))
    A("v_lshlrev_b32 v%d, 8, v%d" % (vT + 5, vG4)); A("v_lshl_add_u32 v%d, v%d, 3, v%d" % (vT + 5, vN16, vT + 5)); A("v_add_u32 v%d, s%d, v%d" % (vT + 5, sT1, vT + 5))
    A("s_lshl_b32 s%d, s%d, 10" % (sT0, sWAVE)); A("s_add_u32 s%d, s%d, %d" % (sT0, sT0, HI)); A("v_add_u32 v%d, s%d, v%d" % (vT + 6, sT0, vL16))
    A("s_lshl_b32 s%d, s%d, 13" % (sT0, sWAVE)); A("v_lshlrev_b32 v%d, 8, v%d" % (vT, vN16)); A("v_add_u32 v%d, s%d, v%d" % (vT, sT0, vT))
    for m in range(4):
        A("v_add_u32 v%d, %d, v%d" % (vT + 1, 4 * m, vG4)); A("v_xor_b32 v%d, v%d, v%d" % (vT + 1, vT + 1, vN16))
        A("v_lshl_add_u32 v%d, v%d, 4, v%d" % (vKA + m, vT + 1, vT)); A("v_add_u32 v%d, 0x10000, v%d" % (vKA + 4 + m, vKA + m))
    A("s_lshl_b32 s%d, s%d, 2" % (sT0, sWAVE)); A("s_add_u32 s%d, s%d, %d" % (sT0, sT0, HI)); A("v_mov_b32 v%d, s%d" % (30, sT0))
    A("s_mov_b32 s%d, 0" % sFULL)
    A("s_waitcnt vmcnt(4)")
    stamp(1)
    layernorm(vX, 8, vX + 8, vX + 24, vX + 40, 2)
    A("ds_write_b128 v%d, %s offset:%d" % (vT + 3, vr(vX, 4), L_XN)); A("ds_write_b128 v%d, %s offset:%d" % (vT + 3, vr(vX + 4, 4), L_XN + 16))
    lds_add(vHI, F_XN)
    A("s_waitcnt vmcnt(0)")
    for m in range(4):
        A("ds_read_b64_tr_b16 %s, v%d offset:%d" % (vr(vK + 4 * m, 2), vT + 5, m * 1024))
        A("ds_read_b64_tr_b16 %s, v%d offset:%d" % (vr(vK + 4 * m + 2, 2), vT + 5, m * 1024 + 128))
    lds_wait(F_XN, 4)
    for m in range(4): A("ds_read_b128 %s, v%d offset:%d" % (vr(vK + 16 + 4 * m, 4), vT + 4, L_XN + m * 64))
    for m in range(4):
        A("s_waitcnt lgkmcnt(%d)" % (3 - m))
        A("v_mfma_f32_16x16x32_bf16 %s, %s, %s, %s" % (vr(vTMP, 4), vr(vK + 4 * m, 4), vr(vK + 16 + 4 * m, 4), "0" if m == 0 else vr(vTMP, 4)))
    A("ds_write_b128 v%d, %s offset:%d" % (vT + 6, vr(vTMP, 4), L_QP))
    lds_add(vHI, F_QP)
    A("s_mov_b64 exec, 1"); A("ds_add_u32 v30, v%d offset:%d" % (vONE, F_FREED)); A("s_mov_b64 exec, -1")
    stamp(2)
    def wait_block(n4):
        A("s_add_u32 s%d, s%d, %d" % (sT0, sWAVE, 4 * n4 + 1))
        lds_wait(F_FULL, "s%d" % sT0, keep=sFULL)
    def read_k(j):
        base = vK + 32 * (j % 4)
        for t in range(2):
            for m in range(4):
                A("ds_read_b128 %s, v%d offset:%d" % (vr(base + 16 * t + 4 * m, 4), vKA + m + (4 if (j & 2) else 0), (j & 1) * 32768 + t * 4096))
    def qk_block(j):
        base = vK + 32 * (j % 4)
        for m in range(4):
            for t in range(2):
                acc = vr(vS + 8 * j + 4 * t, 4)
                A("v_mfma_f32_16x16x32_bf16 %s, %s, %s, %s" % (acc, vr(base + 16 * t + 4 * m, 4), vr(vQ + 4 * m, 4), "0" if m == 0 else acc))
    def round_block(j):
        for p in range(4):
            a, b, t = vS + 8 * j + 2 * p, vS + 8 * j + 2 * p + 1, vT + (p & 1)
            if mimic:
                A("v_cvt_pk_bf16_f32 v%d, v%d, v%d" % (t, a, b)); unpack(a, b, t)
            A("v_mul_f32 v%d, s%d, v%d" % (a, sSCALE, a)); A("v_mul_f32 v%d, s%d, v%d" % (b, sSCALE, b))
            if mimic:
                A("v_cvt_pk_bf16_f32 v%d, v%d, v%d" % (t, a, b)); unpack(a, b, t)
            if j == 0 and p == 0: A("v_max_f32 v%d, v%d, v%d" % (vM, a, b))
            else: A("v_max3_f32 v%d, v%d, v%d, v%d" % (vM, a, b, vM))
    for j in range(4):
        wait_block(j); read_k(j); lds_add(30, F_FREED)
    stamp(3)
    lds_wait(F_QR, 1)
    stamp(4)
    A("v_lshlrev_b32 v%d, 8, v%d" % (vT, vC4)); A("v_lshl_add_u32 v%d, v%d, 4, v%d" % (vT, vG4, vT)); A("v_add_u32 v%d, v%d, v%d" % (vT, vHI, vT))
    for m in range(4): A("ds_read_b128 %s, v%d offset:%d" % (vr(vQ + 4 * m, 4), vT, L_QB + m * 64))
    A("s_waitcnt lgkmcnt(0)")
    for j in range(4):
        qk_block(j)
        wait_block(4 + j); A("s_nop 3"); read_k(4 + j)
        if j >= 1: round_block(j - 1)
        lds_add(30, F_FREED)
    for j in range(4, 8):
        qk_block(j); round_block(j - 1)
    A("v_lshl_add_u32 v%d, v%d, 2, v%d" % (vT + 2, vG4, vC4))
    A("v_and_b32 v%d, 7, v%d" % (vT + 3, vT + 2)); A("v_lshlrev_b32 v%d, 1, v%d" % (vT + 3, vT + 3))
    A("v_lshrrev_b32 v%d, 1, v%d" % (vT + 4, vR4)); A("v_xor_b32 v%d, v%d, v%d" % (vT + 3, vT + 3, vT + 4))
    A("v_lshlrev_b32 v%d, 8, v%d" % (vT + 2, vT + 2)); A("v_lshl_add_u32 v%d, v%d, 4, v%d" % (vT + 2, vT + 3, vT + 2))
    A("v_and_b32 v%d, 1, v0" % (vT + 4)); A("v_lshl_add_u32 v%d, v%d, 3, v%d" % (vT + 2, vT + 4, vT + 2))
    A("s_lshl_b32 s%d, s%d, 13" % (sT0, sWAVE)); A("v_add_u32 v%d, s%d, v%d" % (vVA, sT0, vT + 2))
    for d in range(1, 8): A("v_xor_b32 v%d, %d, v%d" % (vVA + d, 32 * d, vVA))
    round_block(7)
    swap_red(vM, vT, "v_max_f32", 32); swap_red(vM, vT, "v_max_f32", 16)
    A("v_mul_f32 v%d, s%d, v%d" % (vM, sL2E, vM))
    A("v_lshlrev_b32 v%d, 4, v%d" % (vT + 1, vG4)); A("ds_bpermute_b32 v%d, v%d, v%d" % (vMO, vT + 1, vM))
    vP = vK
    for j in range(32):
        a, b = vS + 2 * j, vS + 2 * j + 1
        A("v_fma_f32 v%d, v%d, s%d, -v%d" % (a, a, sL2E, vM)); A("v_fma_f32 v%d, v%d, s%d, -v%d" % (b, b, sL2E, vM))
        A("v_exp_f32 v%d, v%d" % (a, a)); A("v_exp_f32 v%d, v%d" % (b, b))
        if j >= 1:
            pa, pb = a - 2, b - 2
            if j == 1: A("v_add_f32 v%d, v%d, v%d" % (vLs, pa, pb))
            else: A("v_add_f32 v%d, v%d, v%d" % (vLs, vLs, pa)); A("v_add_f32 v%d, v%d, v%d" % (vLs, vLs, pb))
            A("v_cvt_pk_bf16_f32 v%d, v%d, v%d" % (vP + j - 1, pa, pb))
    A("v_add_f32 v%d, v%d, v%d" % (vLs, vLs, vS + 62)); A("v_add_f32 v%d, v%d, v%d" % (vLs, vLs, vS + 63))
    A("v_cvt_pk_bf16_f32 v%d, v%d, v%d" % (vP + 31, vS + 62, vS + 63))
    swap_red(vLs, vT, "v_add_f32", 32); swap_red(vLs, vT, "v_add_f32", 16)
    A("s_lshl_b32 s%d, s%d, 5" % (sT0, sWAVE)); A("s_add_u32 s%d, s%d, %d" % (sT0, sT0, HI)); A("v_lshlrev_b32 v%d, 3, v%d" % (vT, vC4)); A("v_add_u32 v%d, s%d, v%d" % (vT, sT0, vT))
    A("v_mov_b32 v%d, v%d" % (vT + 2, vM)); A("v_mov_b32 v%d, v%d" % (vT + 3, vLs))
    A("s_mov_b64 exec, 0x1111"); A("ds_write_b64 v%d, %s offset:%d" % (vT, vr(vT + 2, 2), L_ST)); A("s_mov_b64 exec, -1")
    lds_add(vHI, F_ST)
    stamp(5)
    A("s_lshl_b32 s%d, s%d, 11" % (sT0, sWAVE)); A("s_add_u32 s%d, s%d, %d" % (sT0, sT0, HI + L_OW))
    A("v_lshlrev_b32 v%d, 9, v%d" % (vOWA, vG4)); A("v_lshl_add_u32 v%d, v%d, 2, v%d" % (vOWA, vN16, vOWA)); A("v_add_u32 v%d, s%d, v%d" % (vOWA, sT0, vOWA))
    vVB = vK + 32
    def read_v(j):
        base = vVB + 32 * (j & 1)
        for d in range(8):
            for t in range(2):
                A("ds_read_b64_tr_b16 %s, v%d offset:%d" % (vr(base + 4 * d + 2 * t, 2), vVA + d, (j & 1) * 32768 + t * 4096))
    def pv(j, d):
        base = vVB + 32 * (j & 1)
        acc = vr(vS + 4 * d, 4)
        A("v_mfma_f32_16x16x32_bf16 %s, %s, %s, %s" % (acc, vr(vP + 4 * j, 4), vr(base + 4 * d, 4), "0" if j == 0 else acc))
    for j in range(8):
        if j == 7:
            lds_wait(F_GR, 1)
            A("v_lshl_add_u32 v%d, v%d, 3, v%d" % (vT, vG4, vHI)); A("ds_read_b64 %s, v%d offset:%d" % (vr(vT + 2, 2), vT, L_GS)); A("s_waitcnt lgkmcnt(0)")
            A("v_sub_f32 v%d, v%d, v%d" % (vF, vMO, vT + 2)); A("v_exp_f32 v%d, v%d" % (vF, vF)); A("v_mul_f32 v%d, v%d, v%d" % (vF, vF, vT + 3))
            stamp(6)
        wait_block(8 + j)
        if j == 7: stamp(7)
        read_v(j)
        if j in (1, 5):
            for d in range(8): A("v_add_u32 v%d, 0x10000, v%d" % (vVA + d, vVA + d))
        if j == 3:
            for d in range(8): A("v_subrev_u32 v%d, 0x10000, v%d" % (vVA + d, vVA + d))
        for d in range(8):
            A("s_waitcnt lgkmcnt(%d)" % (14 - 2 * d))
            if d == 7 and j < 4:
                A("s_mov_b64 exec, 1"); A("ds_add_u32 v30, v%d offset:%d" % (vONE, F_FREED)); A("s_mov_b64 exec, -1")
            pv(j, d)
    for d in range(8): A("v_mul_f32 v%d, v%d, v%d" % (vTMP + d, vF, vS + 4 * d))
    for d in range(0, 8, 2): A("ds_write2_b32 v%d, v%d, v%d offset0:%d offset1:%d" % (vOWA, vTMP + d, vTMP + d + 1, 16 * d, 16 * d + 16))
    vWOA, vOIR, vWO = 17, 18, vK
    A("v_lshlrev_b32 v%d, 7, v%d" % (vWOA, vC4)); A("v_lshl_add_u32 v%d, v%d, 10, v%d" % (vWOA, vG4, vWOA)); A("v_lshl_add_u32 v%d, v%d, 3, v%d" % (vWOA, vR4, vWOA))
    A("s_lshl_b32 s%d, s%d, 5" % (sT0, sWAVE)); A("s_add_u32 s%d, s%d, %d" % (sT0, sT0, HI + L_WO)); A("v_add_u32 v%d, s%d, v%d" % (vWOA, sT0, vWOA))
    A("s_waitcnt lgkmcnt(0)")
    A("s_barrier")
    stamp(8)
    def wo_reads():
        for m in range(4):
            A("ds_read_b64_tr_b16 %s, v%d offset:%d" % (vr(vWO + 4 * m, 2), vWOA, m * 4096))
            A("ds_read_b64_tr_b16 %s, v%d offset:%d" % (vr(vWO + 4 * m + 2, 2), vWOA, m * 4096 + 512))
    def oir_addr():
        A("v_lshrrev_b32 v%d, 1, v%d" % (vT, vN16)); A("v_lshlrev_b32 v%d, 10, v%d" % (vT, vT)); A("v_and_b32 v%d, 1, v0" % (vT + 1)); A("v_lshl_add_u32 v%d, v%d, 8, v%d" % (vT, vT + 1, vT))
        for m in range(4):
            A("v_add_u32 v%d, %d, v%d" % (vT + 1, 4 * m, vG4)); A("v_xor_b32 v%d, v%d, v%d" % (vT + 1, vT + 1, vN16))
            A("v_lshl_add_u32 v%d, v%d, 4, v%d" % (vOIR + m, vT + 1, vT))
        A("v_lshrrev_b32 v%d, 1, v%d" % (22, vN16)); A("v_lshlrev_b32 v22, %d, v22" % (16 + spad)); A("v_lshl_add_u32 v22, v%d, 4, v22" % vG4)
    A("s_cmp_gt_u32 s%d, 1" % sWAVE); A("s_cbranch_scc1 L_gather23")
    A("s_lshl_b32 s%d, s%d, 10" % (sT0, sWAVE)); A("s_add_u32 s%d, s%d, %d" % (sT0, sT0, HI + L_OW)); A("v_add_u32 v%d, s%d, v%d" % (vT, sT0, vL16))
    for w in range(4): A("ds_read_b128 %s, v%d offset:%d" % (vr(vS + 4 * w, 4), vT, w * 2048))
    A("v_lshrrev_b32 v%d, 5, v0" % (vT + 1)); A("v_lshlrev_b32 v%d, 13, v%d" % (vT + 1, vT + 1)); A("v_and_b32 v%d, 31, v0" % (vT + 2)); A("v_lshl_add_u32 v%d, v%d, 3, v%d" % (vT + 1, vT + 2, vT + 1))
    A("s_lshl_b32 s%d, s%d, 14" % (sT0, sWAVE)); A("s_add_u32 s%d, s%d, s%d" % (sT0, sT0, sOPOFF))
    A("s_waitcnt lgkmcnt(2)")
    for i in range(4): A("v_add_f32 v%d, v%d, v%d" % (vS + i, vS + i, vS + 4 + i))
    A("s_waitcnt lgkmcnt(0)")
    for i in range(4): A("v_add_f32 v%d, v%d, v%d" % (vS + 8 + i, vS + 8 + i, vS + 12 + i))
    for i in range(4): A("v_add_f32 v%d, v%d, v%d" % (vS + i, vS + i, vS + 8 + i))
    A("v_cvt_pk_bf16_f32 v%d, v%d, v%d" % (vTMP, vS, vS + 1)); A("v_cvt_pk_bf16_f32 v%d, v%d, v%d" % (vTMP + 1, vS + 2, vS + 3))
    A("buffer_store_dwordx2 %s, v%d, %s, s%d offen %s" % (vr(vTMP, 2), vT + 1, srd("WS"), sT0, ts))
    stamp(11)
    wo_reads(); oir_addr()
    A("s_branch L_barE_c")
    def gather(idx_sgpr, extra):
        vGa = 40
        A("s_lshr_b32 s%d, s%d, 3" % (sT1, sR)); A("s_lshl_b32 s%d, s%d, 13" % (sT1, sT1)); A("s_lshl_b32 s%d, s%d, 11" % (sT0, idx_sgpr))
        A("s_add_u32 s%d, s%d, s%d" % (sT1, sT1, sT0)); A("s_add_u32 s%d, s%d, 0x%x" % (sT1, sT1, WS_OP))
        lds_ = [(lambda: A("buffer_load_dwordx4 %s, v%d, %s, s%d offen %s" % (vr(vGa, 4), vL16, srd("WS"), sT1, tl)), list(range(vGa, vGa + 4))),
                (lambda: A("buffer_load_dwordx4 %s, v%d, %s, s%d offen offset:1024 %s" % (vr(vGa + 4, 4), vL16, srd("WS"), sT1, tl)), list(range(vGa + 4, vGa + 8)))]
        if td1: A("s_sleep %d" % td1)
        if at1:
            A("v_lshlrev_b32 v%d, 3, v0" % (vT + 7))
            apoll(vGa, vT + 7, sT1, 0, 0, first="only")
            extra()
            A("v_lshrrev_b32 v%d, 5, v0" % (vT + 2)); A("s_lshl_b32 s%d, s%d, 2" % (sT2, idx_sgpr)); A("v_add_u32 v%d, s%d, v%d" % (vT + 3, sT2, vT + 2))
            A("v_bfe_u32 v%d, v0, 1, 4" % (vT + 4)); A("v_xor_b32 v%d, v%d, v%d" % (vT + 3, vT + 3, vT + 4))
            A("v_lshlrev_b32 v%d, 8, v%d" % (vT + 2, vT + 2)); A("v_add_u32 v%d, s%d, v%d" % (vT + 2, sT0, vT + 2))
            A("v_and_b32 v%d, 1, v0" % (vT + 4)); A("v_lshl_add_u32 v%d, v%d, 3, v%d" % (vT + 2, vT + 4, vT + 2))
            A("v_lshl_add_u32 v%d, v%d, 4, v%d" % (vT + 5, vT + 3, vT + 2)); A("v_xor_b32 v%d, 32, v%d" % (vT + 6, vT + 5))
            apoll(vGa, vT + 7, sT1, 24, tsleep, first=False)
            stamp(11)
            for k in range(4): A("ds_write_b64 v%d, %s offset:%d" % (vT + 5 + (k >> 1), vr(vGa + 2 * k, 2), 512 * k))
            return
        for i_, _ in lds_: i_()
        A("v_and_b32 v%d, 1, v%d" % (vT + 2, vG4)); A("s_lshl_b32 s%d, s%d, 2" % (sT2, idx_sgpr)); A("v_add_u32 v%d, s%d, v%d" % (vT + 2, sT2, vT + 2))
        A("v_xor_b32 v%d, v%d, v%d" % (vT + 3, vT + 2, vN16)); A("v_xor_b32 v%d, 2, v%d" % (vT + 4, vT + 3))
        A("v_lshlrev_b32 v%d, 8, v%d" % (vT + 2, vG4)); A("v_add_u32 v%d, s%d, v%d" % (vT + 2, sT0, vT + 2))
        A("v_lshl_add_u32 v%d, v%d, 4, v%d" % (vT + 5, vT + 3, vT + 2)); A("v_lshl_add_u32 v%d, v%d, 4, v%d" % (vT + 6, vT + 4, vT + 2))
        extra()
        gpoll(lds_, first=False, sleep=tsleep, P=P1)
        stamp(11)
        A("ds_write_b128 v%d, %s" % (vT + 5, vr(vGa, 4))); A("ds_write_b128 v%d, %s offset:1024" % (vT + 6, vr(vGa + 4, 4)))
    A("L_gather23:")
    A("s_sub_u32 s%d, s%d, 2" % (sMU, sWAVE))
    gather(sMU, lambda: (wo_reads(), oir_addr()))
    A("L_barE_c:")
    A("s_waitcnt lgkmcnt(0)")
    A("s_barrier")
    stamp(9)
    for u in range(2):
        for m in range(4): A("ds_read_b128 %s, v%d offset:%d" % (vr(vS + 16 * u + 4 * m, 4), vOIR + m, u * 512))
    A("s_lshl_b32 s%d, s%d, %d" % (sT0, sWAVE, 11 + spad)); A("s_add_u32 s%d, s%d, s%d" % (sT0, sT0, sSPOFF))
    for u in range(2):
        for m in range(4):
            A("s_waitcnt lgkmcnt(%d)" % (7 - 4 * u - m))
            acc = vr(vTMP + 4 * u, 4)
            A("v_mfma_f32_16x16x32_bf16 %s, %s, %s, %s" % (acc, vr(vWO + 4 * m, 4), vr(vS + 16 * u + 4 * m, 4), "0" if m == 0 else acc))
    for i in range(4): A("v_add_f32 v%d, v%d, v%d" % (vTMP + i, vTMP + i, vTMP + 4 + i))
    for i in range(4): dpp("v_add_f32", vTMP + i, "quad_perm:[1,0,3,2]")
    A("s_mov_b32 exec_lo, 0x55555555"); A("s_mov_b32 exec_hi, 0x55555555")
    stamp(10)
    A("buffer_store_dwordx4 %s, v22, %s, s%d offen %s" % (vr(vTMP, 4), srd("WS"), sT0, ts))
    A("s_mov_b64 exec, -1")
    A("s_branch L_done")

    A("L_loader:")
    if ldprio: A("s_setprio %d" % ldprio)
    vO = 17
    A("v_lshlrev_b32 v%d, 8, v%d" % (vT, vG4))
    for i in range(4):
        A("v_add_u32 v%d, %d, v%d" % (vT + 1, 4 * i, vG4)); A("v_xor_b32 v%d, v%d, v%d" % (vT + 1, vT + 1, vN16)); A("v_lshl_add_u32 v%d, v%d, 4, v%d" % (vO + i, vT + 1, vT))
    for i in range(2):
        A("v_add_u32 v%d, %d, v%d" % (vT + 1, 4 * i, vG4)); A("v_lshlrev_b32 v%d, 1, v%d" % (vT + 1, vT + 1))
        A("v_xor_b32 v%d, v%d, v%d" % (vT + 1, vT + 1, vN16)); A("v_lshl_add_u32 v%d, v%d, 4, v%d" % (vO + 4 + i, vT + 1, vT))
    sG, sSLOT, sFR, sN = 12, 13, 88, 92
    A("s_bfe_u32 s%d, s%d, 0x30002" % (sBASE, sR)); A("s_lshl_b32 s%d, s%d, 23" % (sBASE, sBASE)); A("s_lshr_b32 s%d, s%d, 5" % (sT0, sR)); A("s_lshl_b32 s%d, s%d, 20" % (sT0, sT0))
    A("s_add_u32 s%d, s%d, s%d" % (sBASE, sBASE, sT0)); A("s_and_b32 s%d, s%d, 3" % (sT0, sR)); A("s_lshl_b32 s%d, s%d, 18" % (sT0, sT0)); A("s_add_u32 s%d, s%d, s%d" % (sBASE, sBASE, sT0))
    if rot:
        A("s_mov_b32 s94, s%d" % sBASE)
        A("s_mul_i32 s%d, s%d, %d" % (sT0, sR, rot)); A("s_lshr_b32 s%d, s%d, 5" % (sT1, sR)); A("s_add_u32 s%d, s%d, s%d" % (sT0, sT0, sT1))
        A("s_and_b32 s%d, s%d, 31" % (sT0, sT0)); A("s_lshl_b32 s%d, s%d, 13" % (sT0, sT0)); A("s_add_u32 s%d, s%d, s%d" % (sBASE, sBASE, sT0))
    if Fhi:
        A("s_and_b32 s%d, s2, 7" % sT0); A("s_lshr_b32 s%d, %d, s%d" % (sT0, himask, sT0)); A("s_and_b32 s%d, s%d, 1" % (sT0, sT0)); A("s_cselect_b32 s95, %d, %d" % (Fhi, F))
    A("s_mov_b32 s93, 0"); A("s_mov_b32 s%d, s%d" % (sOFF, sBASE)); A("s_mov_b32 s%d, 0" % sG); A("s_mov_b32 s%d, 0" % sSLOT); A("s_mov_b32 s%d, 0" % sN)
    A("s_waitcnt lgkmcnt(0)")
    def dma_block(isk):
        for half in range(2):
            A("s_mov_b32 m0, s%d" % sSLOT)
            for i in range(4):
                A("buffer_load_dwordx4 v%d, %s, s%d offen offset:%d %s lds" % (vO + i if isk else vO + 4 + (i & 1), srd("K" if isk else "V"), sOFF, i * 1024, pol))
            A("s_add_u32 s%d, s%d, 4096" % (sOFF, sOFF)); A("s_add_u32 s%d, s%d, 4096" % (sSLOT, sSLOT))
        if rot:
            A("s_and_b32 s%d, s%d, 0x3ffff" % (sOFF, sOFF)); A("s_or_b32 s%d, s%d, s94" % (sOFF, sOFF))
        A("s_and_b32 s%d, s%d, 0x1ffff" % (sSLOT, sSLOT)); A("s_add_u32 s%d, s%d, 1" % (sN, sN))
    def publish_full(sgpr):
        A("v_mov_b32 v%d, s%d" % (vT, sgpr)); A("s_mov_b64 exec, 1"); A("ds_write_b32 v%d, v%d offset:%d" % (vHI, vT, F_FULL)); A("s_mov_b64 exec, -1")
    if ldst == 2: stamp(1)
    for _ in range(pre): dma_block(True)
    A("s_barrier")
    if ldst == 2: stamp(2)
    for _ in range(4 - pre): dma_block(True)
    A("s_mov_b32 s%d, 1" % sG)
    if ldst == 2: stamp(3)
    def read_freed():
        A("ds_read_b128 %s, v%d offset:%d" % (vr(vT + 4, 4), vHI, F_FREED)); A("s_waitcnt lgkmcnt(0)")
        for c in range(4): A("v_readfirstlane_b32 s%d, v%d" % (sFR + c, vT + 4 + c))
    for isk, last in ((True, 8), (False, 16)):
        loop = "L_ld_k" if isk else "L_ld_v"
        if not isk: A("s_mov_b32 s%d, s%d" % (sOFF, sBASE))
        A(loop + ":")
        if ldst == 1:
            for k, g in enumerate((2, 3, 4, 5, 6, 7) if isk else (8, 10, 12, 14)):
                sk = A.label("st"); A("s_cmp_lg_u32 s%d, %d" % (sG, g)); A("s_cbranch_scc1 " + sk); stamp(k + 1 if isk else k + 7); A(sk + ":")
        read_freed()
        A("s_sub_i32 s%d, s%d, 2" % (sT1, sG))
        if Fhi and hiend < 16:
            A("s_cmp_ge_u32 s%d, %d" % (sG, hiend)); A("s_cselect_b32 s95, %d, s95" % F)
        for c in range(4):
            go = A.label("go"); sl = A.label("slow")
            A("s_cmp_ge_i32 s%d, s%d" % (sFR + c, sT1)); A("s_cbranch_scc1 " + go)
            A("s_waitcnt vmcnt(0)"); publish_full(sN)
            if ldst: A("s_add_u32 s93, s93, 100")
            A("s_mov_b32 s%d, 0" % sSPIN)
            A(sl + ":")
            read_freed()
            A("s_cmp_ge_i32 s%d, s%d" % (sFR + c, sT1)); A("s_cbranch_scc1 " + go)
            A("s_add_u32 s%d, s%d, 1" % (sSPIN, sSPIN)); A("s_cmp_lt_u32 s%d, %d" % (sSPIN, lspin)); A("s_cbranch_scc1 " + sl)
            A(go + ":")
            dma_block(isk)
            if Fhi:
                hi = A.label("hi")
                A("s_sub_i32 s%d, s%d, s95" % (sT0, sN)); A("s_max_i32 s%d, s%d, 0" % (sT0, sT0))
                A("s_waitcnt vmcnt(%d)" % (8 * Fhi)); A("s_cmp_eq_u32 s95, %d" % Fhi); A("s_cbranch_scc1 " + hi)
                A("s_waitcnt vmcnt(%d)" % (8 * F)); A(hi + ":"); publish_full(sT0)
            else:
                A("s_sub_i32 s%d, s%d, %d" % (sT0, sN, F))
                if F > 5: A("s_max_i32 s%d, s%d, 0" % (sT0, sT0))
                A("s_waitcnt vmcnt(%d)" % (8 * F)); publish_full(sT0)
        if stamps:
            pass
        A("s_add_u32 s%d, s%d, 1" % (sG, sG)); A("s_cmp_lt_u32 s%d, %d" % (sG, last)); A("s_cbranch_scc1 " + loop)
        if not ldst: stamp(1 if isk else 2)
    for k in range(max(F, Fhi) - 1, -1, -1):
        A("s_mov_b32 s%d, %d" % (sT0, 64 - k)); A("s_waitcnt vmcnt(%d)" % (8 * k)); publish_full(sT0)
    if ldst:
        stamp(11); A("s_waitcnt lgkmcnt(0)"); A("s_add_u32 s40, s16, s93"); A("s_addc_u32 s41, s17, 0")
    else: stamp(3)
    A("s_waitcnt lgkmcnt(0)")
    A("s_branch L_done")

    def slot_addrs():
        A("v_lshlrev_b32 v28, 5, v0")
        A("s_and_b32 s%d, s%d, 3" % (sT0, sR)); A("s_lshl_b32 s%d, s%d, 3" % (sT0, sT0)); A("s_add_u32 s%d, s%d, s%d" % (sMU, sT0, sSTOFF))
    A("L_comm:")
    vZ = 20
    for i in range(4): A("v_mov_b32 v%d, 0" % (vZ + i))
    A("v_lshl_add_u32 v%d, v0, 2, v%d" % (vT, vHI))
    A("s_mov_b64 exec, 0xffff"); A("ds_write_b32 v%d, v%d offset:%d" % (vT, vZ, L_FLG)); A("s_mov_b64 exec, -1")
    slot_addrs()
    sEP = 4
    def epoch():
        A("s_waitcnt vmcnt(0)")
        A("v_readfirstlane_b32 s%d, v30" % sEP); A("v_readfirstlane_b32 s%d, v31" % (sEP + 1))
        A("s_add_u32 s%d, s%d, 0x%x" % (sEP, sEP, EP_STEP & 0xffffffff)); A("s_addc_u32 s%d, s%d, 0x%x" % (sEP + 1, sEP + 1, EP_STEP >> 32))
    A("s_waitcnt lgkmcnt(0)")
    A("buffer_load_dwordx2 v[30:31], off, %s, 0 offset:%d sc1" % (srd("WS"), WS_EP))
    A("s_barrier")
    A("v_add_u32 v%d, v%d, v%d" % (vT, vHI, vL16))
    A("v_and_b32 v29, 7, v0"); A("v_lshlrev_b32 v29, 14, v29"); A("v_lshl_add_u32 v29, v%d, 4, v29" % vG4)
    A("s_lshl_b32 s%d, s%d, 6" % (sT2, sRQ)); A("s_add_u32 s%d, s%d, 0x%x" % (sT2, sT2, WS_Q))
    A("s_bfe_u32 s%d, s%d, 0x30002" % (sT0, sR)); A("s_lshl_b32 s%d, s%d, 14" % (sT0, sT0)); A("s_lshr_b32 s%d, s%d, 5" % (sT1, sR)); A("s_lshl_b32 s%d, s%d, 11" % (sT1, sT1))
    A("s_add_u32 s%d, s%d, s%d" % (sT0, sT0, sT1)); A("s_add_u32 s%d, s%d, 0x%x" % (sT0, sT0, WS_Q))
    A("v_lshl_add_u32 v27, v0, 3, v%d" % vHI)
    epoch()
    A("v_mov_b32 v38, s%d" % sEP); A("v_mov_b32 v39, s%d" % (sEP + 1))
    stamp(1)
    lds_wait(F_QP, 4)
    for w in range(4): A("ds_read_b128 %s, v%d offset:%d" % (vr(40 + 4 * w, 4), vT, L_QP + w * 1024))
    A("s_waitcnt lgkmcnt(0)")
    for i in range(4): A("v_add_f32 v%d, v%d, v%d" % (40 + i, 40 + i, 44 + i)); A("v_add_f32 v%d, v%d, v%d" % (48 + i, 48 + i, 52 + i))
    for i in range(4): A("v_add_f32 v%d, v%d, v%d" % (40 + i, 40 + i, 48 + i))
    A("v_cvt_pk_bf16_f32 v36, v40, v41"); A("v_cvt_pk_bf16_f32 v37, v42, v43")
    A("s_mov_b32 exec_lo, 0x00ff00ff"); A("s_mov_b32 exec_hi, 0x00ff00ff")
    A("buffer_store_dwordx4 v[36:39], v29, %s, s%d offen sc1" % (srd("WS"), sT2))
    A("s_mov_b64 exec, -1")
    stamp(2)
    if qdelay: A("s_sleep %d" % qdelay)
    if qtrig: lds_wait(F_FULL, qtrig, sl=4)
    gpoll([(lambda: A("buffer_load_dwordx4 v[32:35], v%d, %s, s%d offen sc1" % (vL16, srd("WS"), sT0)), [32, 33, 34, 35]),
           (lambda: A("buffer_load_dwordx4 v[40:43], v%d, %s, s%d offen offset:1024 sc1" % (vL16, srd("WS"), sT0)), [40, 41, 42, 43])], sleep=qsleep, tag="s[%d:%d]" % (sEP, sEP + 1))
    A("ds_write_b64 v27, v[32:33] offset:%d" % L_QB); A("ds_write_b64 v27, v[40:41] offset:%d" % (L_QB + 512))
    lds_add(vHI, F_QR)
    stamp(4)
    def all_marked():
        A("v_lshlrev_b32 v%d, 5, v0" % (vT + 3))
        word_poll("buffer_load_dword v32, v%d, %s, 0 offen sc1" % (vT + 3, srd("DBG")), 32, "0xff", "v_cmp_gt_u32 vcc, 32, v%d", fsleep)
        stamp(3)
    if not strig: all_marked()
    A("v_lshlrev_b32 v%d, 3, v%d" % (vT + 1, vN16)); A("v_add_u32 v%d, v%d, v%d" % (vT + 2, vHI, vT + 1))
    lds_wait(F_ST, 4)
    A("ds_read_b64 v[32:33], v%d offset:%d" % (vT + 2, L_ST)); A("s_waitcnt lgkmcnt(0)")
    def combine(modes):
        A("v_mov_b32 v34, v32")
        for m in modes: dpp("v_max_f32", 34, m)
        A("v_sub_f32 v32, v32, v34"); A("v_exp_f32 v32, v32"); A("v_mul_f32 v35, v32, v33")
        for m in modes: dpp("v_add_f32", 35, m)
    combine(("row_ror:4", "row_ror:8"))
    A("s_mov_b64 exec, 0xf"); A("buffer_store_dwordx2 v[34:35], v28, %s, s%d offen sc1" % (srd("WS"), sMU)); A("s_mov_b64 exec, -1")
    stamp(5)
    if sdelay: A("s_sleep %d" % sdelay)
    if strig:
        all_marked()
        lds_wait(F_FULL, strig, sl=8)
    gpoll([(lambda: A("buffer_load_dwordx2 v[32:33], v%d, %s, s%d offen sc1" % (vT + 1, srd("WS"), sSTOFF)), [32, 33])], sleep=ssleep)
    combine(("quad_perm:[1,0,3,2]", "quad_perm:[2,3,0,1]"))
    A("v_rcp_f32 v35, v35"); A("v_lshl_add_u32 v%d, v%d, 3, v%d" % (vT + 2, vC4, vHI))
    A("s_mov_b64 exec, 0x1111"); A("ds_write_b64 v%d, v[34:35] offset:%d" % (vT + 2, L_GS)); A("s_mov_b64 exec, -1")
    lds_add(vHI, F_GR)
    stamp(6)
    A("s_mov_b32 s%d, 2" % sMU)
    A("L_gather56:")
    A("s_waitcnt lgkmcnt(0)")
    A("s_barrier")
    stamp(8)
    gather(sMU, lambda: None)
    A("s_waitcnt lgkmcnt(0)")
    A("s_barrier")
    stamp(9)
    A("s_branch L_done")

    A("L_mlp:")
    vW, vU = 32, 64
    A("s_cmp_lg_u32 s%d, 7" % sWAVE); A("s_cbranch_scc1 L_noclean")
    for i in range(4): A("v_mov_b32 v%d, -1" % (60 + i))
    slot_addrs()
    A("v_lshlrev_b32 v%d, 13, v%d" % (vT + 1, vG4)); A("v_lshl_add_u32 v%d, v%d, 4, v%d" % (vT + 1, vN16, vT + 1))
    A("s_lshl_b32 s%d, s%d, %d" % (sT1, sR, 11 + spad)); A("s_add_u32 s%d, s%d, 0x%x" % (sT1, sT1, WS_SP))
    A("v_lshrrev_b32 v29, 2, v0"); A("v_lshlrev_b32 v29, %d, v29" % (6 + spad)); A("v_lshl_add_u32 v29, v%d, 4, v29" % vR4)
    A("s_waitcnt lgkmcnt(0)")
    A("buffer_load_dwordx2 v[30:31], off, %s, 0 offset:%d sc1" % (srd("WS"), WS_EP))
    A("s_mov_b64 exec, 0xf"); A("buffer_store_dwordx2 v[60:61], v28, %s, s%d offen sc1" % (srd("WS"), sMU)); A("s_mov_b64 exec, -1")
    A("buffer_store_dwordx4 v[60:63], v%d, %s, s%d offen sc1" % (vT + 1, srd("WS"), sOPOFF))
    A("buffer_store_dwordx4 v[60:63], v29, %s, s%d offen sc1" % (srd("WS"), sT1))
    A("buffer_store_dwordx4 v[60:63], v29, %s, s%d offen offset:%d sc1" % (srd("WS"), sT1, 1024 << spad))
    A("L_noclean:")
    A("s_sub_u32 s%d, s%d, 6" % (sMB, sWAVE))
    A("v_mul_u32_u24 v%d, 12, v0" % vT); A("s_mul_i32 s%d, s%d, 1792" % (sT1, sMB))
    A("s_waitcnt lgkmcnt(0)")
    A("s_load_dword s%d, s[%d:%d], 0" % (sB2, sB2P, sB2P + 1))
    A("s_barrier")
    for k, n in enumerate(("W1", "B1", "W2")):
        A("buffer_load_dwordx4 %s, v%d, %s, s%d offen" % (vr(vW + 8 * k, 4), vL16, srd(n), sT1))
        A("buffer_load_dwordx3 %s, v%d, %s, s%d offen offset:1024" % (vr(vW + 8 * k + 4, 3), vT, srd(n), sT1))
    A("s_cmp_lg_u32 s%d, 7" % sWAVE); A("s_cbranch_scc1 L_noflag")
    A("s_lshr_b32 s%d, s%d, 5" % (sT0, sR)); A("s_lshl_b32 s%d, s%d, 5" % (sT0, sT0))
    A("s_mov_b64 exec, 1")
    A("s_waitcnt vmcnt(6)")
    A("buffer_atomic_add v%d, off, %s, s%d" % (vONE, srd("DBG"), sT0))
    A("s_mov_b64 exec, -1")
    stamp(4)
    A("L_noflag:")
    A("s_lshr_b32 s%d, s%d, 5" % (sT0, sR)); A("s_mul_i32 s%d, s%d, %d" % (sT0, sT0, XN_STRIDE)); A("s_add_u32 s%d, s%d, %d" % (sT0, sT0, HI)); A("v_add_u32 v%d, s%d, v%d" % (vT + 1, sT0, vL16))
    A("s_lshl_b32 s%d, s%d, 13" % (sT2, sMB)); A("s_add_u32 s%d, s%d, %d" % (sT2, sT2, HI + L_WO)); A("v_add_u32 v%d, s%d, v%d" % (vT + 2, sT2, vL16))
    A("s_and_b32 s%d, s%d, 31" % (sT0, sR)); A("s_lshl_b32 s%d, s%d, 5" % (sT0, sT0)); A("s_add_u32 s%d, s%d, s%d" % (sT0, sT0, sT2))
    A("v_lshlrev_b32 v%d, 1, v%d" % (vT + 3, vN16)); A("v_add_u32 v%d, s%d, v%d" % (vT + 3, sT0, vT + 3))
    lds_wait(F_XN, 4)
    vXm = 112
    A("ds_read_b128 %s, v%d offset:%d" % (vr(vXm, 4), vT + 1, L_XN)); A("s_waitcnt lgkmcnt(0)")
    layernorm(vXm, 4, vXm + 4, vXm + 12, vXm + 20, 1)
    A("ds_write_b128 v%d, %s" % (vT + 2, vr(vXm, 4)))
    vH = 24
    A("ds_read_u16 v%d, v%d" % (vH, vT + 3))
    A("v_lshrrev_b32 v%d, 3, v0" % (vT + 4)); A("v_lshlrev_b32 v%d, 10, v%d" % (vT + 4, vT + 4)); A("v_and_b32 v%d, 7, v0" % (vT + 5)); A("v_lshl_add_u32 v%d, v%d, 4, v%d" % (vT + 4, vT + 5, vT + 4))
    A("s_lshr_b32 s%d, s%d, 3" % (sT0, sR)); A("s_lshl_b32 s%d, s%d, 17" % (sT0, sT0)); A("s_and_b32 s%d, s%d, 7" % (sT1, sR)); A("s_lshl_b32 s%d, s%d, 7" % (sT1, sT1))
    A("s_add_u32 s%d, s%d, s%d" % (sT0, sT0, sT1)); A("s_lshl_b32 s%d, s%d, 16" % (sT1, sMB)); A("s_add_u32 s%d, s%d, s%d" % (sT0, sT0, sT1))
    A("s_waitcnt vmcnt(0) lgkmcnt(0)")
    for a in range(8):
        A("s_add_u32 m0, s%d, %d" % (sT2, a * 1024))
        if 'o' not in abl: A("buffer_load_dwordx4 v%d, %s, s%d offen %s lds" % (vT + 4, srd("WO"), sT0, polo))
        if a < 7: A("s_add_u32 s%d, s%d, 0x2000" % (sT0, sT0))
    stamp(1)
    A("v_lshlrev_b32 v%d, 16, v%d" % (vH, vH))
    for k in range(3):
        for i in range(7): unpack(vU + 14 * k + 2 * i, vU + 14 * k + 2 * i + 1, vW + 8 * k + i)
    vC0, vACC, U, T_ = 25, 26, 112, 128
    A("v_mov_b32 v%d, s%d" % (vC0, sC0))
    A("s_lshl_b32 s%d, s%d, 6" % (sT0, sMB)); A("s_add_u32 s%d, s%d, %d" % (sT0, sT0, HI + L_YP)); A("v_mov_b32 v27, s%d" % sT0)
    A("s_mov_b32 s%d, 0" % sT1)
    A("s_nop 3")
    A("L_mlp_loop:")
    A("v_readlane_b32 s%d, v%d, s%d" % (sMU, vH, sT1))
    for t in range(14): A("v_fma_f32 v%d, s%d, v%d, v%d" % (U + t, sMU, vU + t, vU + 14 + t))
    for t in range(14): A("v_mul_f32 v%d, v%d, v%d" % (T_ + t, U + t, U + t))
    for t in range(14): A("v_fma_f32 v%d, v%d, s%d, v%d" % (T_ + t, T_ + t, sC1, vC0))
    for t in range(14): A("v_mul_f32 v%d, v%d, v%d" % (T_ + t, T_ + t, U + t))
    for t in range(14):
        A("v_exp_f32 v%d, v%d" % (T_ + t, T_ + t)); A("v_mul_f32 v%d, v%d, v%d" % (U + t, U + t, vU + 28 + t))
    for t in range(14): A("v_add_f32 v%d, 1.0, v%d" % (T_ + t, T_ + t))
    for t in range(14): A("v_rcp_f32 v%d, v%d" % (T_ + t, T_ + t))
    A("v_mul_f32 v%d, v%d, v%d" % (vACC, U, T_)); A("v_mul_f32 v%d, v%d, v%d" % (U, U + 1, T_ + 1))
    for t in range(2, 14): A("v_fmac_f32 v%d, v%d, v%d" % (vACC if t & 1 else U, U + t, T_ + t))
    A("v_add_f32 v%d, v%d, v%d" % (vACC, vACC, U))
    red16(vACC, "v_add_f32"); dpp("v_add_f32", vACC, "row_bcast:15", "0xa"); dpp("v_add_f32", vACC, "row_bcast:31", "0xc")
    A("s_mov_b32 exec_lo, 0"); A("s_mov_b32 exec_hi, 0x80000000")
    A("ds_write_b32 v27, v%d" % vACC); A("v_add_u32 v27, 4, v27")
    A("s_mov_b64 exec, -1")
    A("s_add_u32 s%d, s%d, 1" % (sT1, sT1)); A("s_cmp_lt_u32 s%d, 16" % sT1); A("s_cbranch_scc1 L_mlp_loop")
    stamp(2)
    A("s_waitcnt vmcnt(0)")
    A("s_mov_b32 s%d, 3" % sMU)
    A("s_cmp_eq_u32 s%d, 6" % sWAVE); A("s_cbranch_scc1 L_gather56")
    if at2:
        A("v_and_b32 v%d, 7, v0" % (vT + 1)); A("v_lshrrev_b32 v%d, 5, v0" % (vT + 2)); A("v_lshl_add_u32 v%d, v%d, 1, v%d" % (vT + 1, vT + 1, vT + 2))
    else: A("v_lshl_add_u32 v%d, v%d, 2, v%d" % (vT + 1, vR4, vG4))
    A("v_lshlrev_b32 v%d, 1, v%d" % (vT + 2, vT + 1)); A("s_lshl_b32 s%d, s%d, 5" % (sT0, sR))
    A("buffer_load_ushort v%d, v%d, %s, s%d offen" % (vT + 3, vT + 2, srd("X"), sT0))
    A("v_lshl_add_u32 v%d, v%d, 2, v%d" % (vT + 1, vT + 1, vHI))
    A("s_lshl_b32 s%d, s%d, %d" % (sT1, sR, 11 + spad)); A("s_add_u32 s%d, s%d, 0x%x" % (sT1, sT1, WS_SP))
    A("v_lshrrev_b32 v29, 2, v0"); A("v_lshlrev_b32 v29, %d, v29" % (6 + spad)); A("v_lshl_add_u32 v29, v%d, 4, v29" % vR4)
    A("s_waitcnt lgkmcnt(0)")
    A("s_barrier")
    stamp(8)
    A("ds_read_b32 v40, v%d offset:%d" % (vT + 1, L_YP)); A("ds_read_b32 v41, v%d offset:%d" % (vT + 1, L_YP + 64)); A("s_waitcnt lgkmcnt(0)")
    A("v_add_f32 v40, v40, v41"); rbf(40)
    A("s_lshl_b32 s%d, s%d, 16" % (sB2, sB2)); A("v_add_f32 v40, s%d, v40" % sB2); rbf(40)
    A("v_mul_f32 v41, s%d, v40" % sL2E); A("v_exp_f32 v41, -v41"); A("v_add_f32 v41, 1.0, v41"); A("v_rcp_f32 v41, v41"); A("v_mul_f32 v40, v40, v41"); rbf(40)
    A("s_waitcnt vmcnt(0)"); A("v_lshlrev_b32 v%d, 16, v%d" % (vT + 3, vT + 3))
    A("s_barrier")
    stamp(9)
    if td2: A("s_sleep %d" % td2)
    if at2:
        A("v_lshlrev_b32 v29, 3, v0")
        apoll(32, 29, sT1, 44, tsleep2)
        stamp(10)
        A("v_add_f32 v44, v32, v34"); A("v_add_f32 v45, v33, v35"); A("v_add_f32 v46, v36, v38"); A("v_add_f32 v47, v37, v39")
        A("v_add_f32 v44, v44, v46"); A("v_add_f32 v45, v45, v47")
        A("v_permlane32_swap_b32 v44, v45"); A("v_add_f32 v44, v44, v45")
        swap_red(44, 45, "v_add_f32", 16)
        dpp("v_add_f32", 44, "row_ror:8")
    else:
        gpoll([(lambda: A("buffer_load_dwordx4 v[32:35], v29, %s, s%d offen %s" % (srd("WS"), sT1, tl)), [32, 33, 34, 35]),
               (lambda: A("buffer_load_dwordx4 v[36:39], v29, %s, s%d offen offset:%d %s" % (srd("WS"), sT1, 1024 << spad, tl)), [36, 37, 38, 39])], sleep=tsleep2, P=P2)
        stamp(10)
        for i in range(4): A("v_add_f32 v%d, v%d, v%d" % (44 + i, 32 + i, 36 + i))
        A("v_permlane32_swap_b32 v44, v46"); A("v_permlane32_swap_b32 v45, v47")
        A("v_add_f32 v44, v44, v46"); A("v_add_f32 v45, v45, v47")
        A("v_permlane16_swap_b32 v44, v45"); A("v_add_f32 v44, v44, v45")
        dpp("v_add_f32", 44, "row_ror:8"); dpp("v_add_f32", 44, "row_ror:4")
    rbf(44); A("v_mul_f32 v44, v44, v40"); rbf(44)
    A("v_add_f32 v44, v44, v%d" % (vT + 3)); A("v_cvt_pk_bf16_f32 v44, v44, v44")
    em = "0xff" if at2 else "0x000f000f"
    A("s_mov_b32 exec_lo, %s" % em); A("s_mov_b32 exec_hi, %s" % em)
    A("buffer_store_short v44, v%d, %s, s%d offen" % (vT + 2, srd("OUT"), sT0))
    A("s_mov_b64 exec, -1")
    A("s_cmp_lg_u32 s%d, 0" % sR); A("s_cbranch_scc1 L_done")
    epoch()
    A("v_mov_b32 v30, s%d" % sEP); A("v_mov_b32 v31, s%d" % (sEP + 1)); A("s_mov_b64 exec, 1")
    A("buffer_store_dwordx2 v[30:31], off, %s, 0 offset:%d sc1" % (srd("WS"), WS_EP))
    A("s_mov_b64 exec, -1")
    A("L_done:")
    A("s_waitcnt vmcnt(0)")
    if pad:
        A("s_waitcnt lgkmcnt(0)"); A("s_add_u32 s16, s16, %d" % pad)
        A("L_pad:"); A("s_memrealtime s[18:19]"); A("s_waitcnt lgkmcnt(0)"); A("s_sub_u32 s18, s18, s16"); A("s_cmp_lt_i32 s18, 0"); A("s_cbranch_scc1 L_pad")
    if stamps:
        A("s_waitcnt vmcnt(0)")
        stamp(NST - 1)
        A("s_waitcnt lgkmcnt(0)")
        A("s_lshl_b32 s%d, s2, 3" % sT0); A("s_add_u32 s%d, s%d, s%d" % (sT0, sT0, sWAVE)); A("s_mul_i32 s%d, s%d, %d" % (sT0, sT0, NST * 8)); A("s_add_u32 s%d, s%d, 0x%x" % (sT0, sT0, WS_STAMP))
        A("s_mov_b64 exec, 1")
        for k in range(NST):
            A("v_mov_b32 v2, s%d" % (16 + 2 * k)); A("v_mov_b32 v3, s%d" % (17 + 2 * k))
            A("buffer_store_dwordx2 v[2:3], off, %s, s%d offset:%d" % (srd("WS"), sT0, k * 8)); A("s_nop 1")
    A("L_end:")
    A("s_endpgm")
    body = A.finalize()
    hdr = open("recurrent_scan__gqa_block_cached__mixer_token_mlp__decode.s.ref").read().split("; Override launch")[0]
    s = hdr + "; @launch grid=(256,1,1) block=(512,1,1) lds=%d\n" % LDS_BYTES
    s += '.amdgcn_target "amdgcn-amd-amdhsa--gfx950"\n.text\n.globl %s\n.p2align 8\n.type %s,@function\n%s:\n' % (NAME, NAME, NAME)
    s += body
    s += '.section .rodata,"a"\n.p2align 6\n.amdhsa_kernel %s\n  .amdhsa_next_free_vgpr 256\n  .amdhsa_next_free_sgpr 102\n  .amdhsa_accum_offset 256\n' % NAME
    s += "  .amdhsa_group_segment_fixed_size 0\n  .amdhsa_kernarg_size 104\n  .amdhsa_user_sgpr_count 2\n  .amdhsa_user_sgpr_kernarg_segment_ptr 1\n  .amdhsa_system_sgpr_workgroup_id_x 1\n.end_amdhsa_kernel\n"
    return s, A

if __name__ == "__main__":
    out = sys.argv[1]
    kw = {}
    for p in sys.argv[2:]:
        k, v = p.split("=")
        kw[k] = int(v) if v.lstrip("-").isdigit() else v.replace("+", " ")
    s, A = gen(**kw)
    open(out, "w").write(s)
    print("wrote", out, "instructions", len(A.ins), "nops", A.nops, "lds", LDS_BYTES)
```

```python
import sys, struct
from asmlib import Asm

NAME = "recurrent_scan__gqa_block_cached__mixer_token_mlp__decode_kernel"
def f2u(x): return struct.unpack("<I", struct.pack("<f", x))[0]

WS_ST, WS_OP, WS_SP, WS_Q, WS_EP = 0x10000, 0x20000, 0x100000, 0x60000, 0x0
EP_STEP = 0x9E3779B97F4A7C15
WS_STAMP = 128 << 20
HI = 131072
L_WO = 0
L_XN, XN_STRIDE = 16384, 1040
L_OW = L_XN
L_QP = 24704
L_QB = 28800
L_FLG = 29824
L_ST = L_FLG + 64
L_GS = L_ST + 128
L_YP = L_GS + 32
LDS_BYTES = HI + L_YP + 128
F_FULL, F_FREED, F_XN, F_QP, F_QR, F_ST, F_GR, F_WO, F_CL = [L_FLG + 4 * i for i in (0, 4, 8, 9, 10, 11, 12, 13, 14)]

sWAVE, sBASE, sOFF = 3, 4, 5
sT0, sT1, sT2 = 6, 7, 8
sR, sSPIN, sT3 = 9, 10, 11
sMU, sMB = 14, 15
SRD = dict(K=44, V=48, X=52, WQ=56, WO=60, W1=64, B1=68, W2=72, OUT=76, DBG=80, WS=84)
KARG = dict(X=0, K=8, V=16, WQ=24, WO=32, W1=48, B1=56, W2=64, OUT=80, DBG=88, WS=96)
SIZE = dict(X=8192, K=1 << 26, V=1 << 26, WQ=1 << 22, WO=1 << 22, W1=3584, B1=3584, W2=3584, OUT=8192, DBG=256, WS=1 << 28)
sSELLO, sSELHI, sMASK, sSCALE, sL2E, sC0, sC1, sB2, sB2P = 88, 89, 90, 91, 92, 93, 94, 95, 96
sOPOFF, sSPOFF, sSTOFF, sFULL = 98, 99, 100, 101
def srd(n): return "s[%d:%d]" % (SRD[n], SRD[n] + 3)
def vr(a, n=1): return "v%d" % a if n == 1 else "v[%d:%d]" % (a, a + n - 1)
vL16, vG4, vC4, vR4, vN16, vHI, vONE = 1, 2, 3, 4, 5, 6, 7
vT = 8
vPOLL = 16

def gen(F=4, stamps=0, pol="nt", spin=1 << 17, lspin=1 << 22, mimic=1, pre=0, lsleep=1, ldprio=3, fsleep=8, qsleep=2, ssleep=8, tsleep=0, xmap=1, polq=None, polo=None, ldst=0, abl='', rot=0, pad=0, P1=1, P2=1, pd=5, qmap=0, tl='sc1', ts='sc1', tsleep2=None, Fhi=0, himask=0xf8, hiend=16, spad=0, at2=1, td2=8, td1=0, at1=0, qdelay=0, sdelay=0, qtrig=8, strig=48, bshift=0, wolate=2, wqsplit=0, wotrig=60, D=0, DV=0, probe=0):
    DV = DV if DV else D
    tsleep2 = tsleep if tsleep2 is None else tsleep2
    polq = pol if polq is None else polq.replace('def', '')
    polo = pol if polo is None else polo.replace('def', '')
    A = Asm()
    NST = 14
    def stamp(k):
        if stamps: A("s_memrealtime s[%d:%d]" % (16 + 2 * k, 17 + 2 * k))
    QUADS = ("quad_perm:[1,0,3,2]", "quad_perm:[2,3,0,1]", "row_half_mirror", "row_mirror")
    def dpp(op, v, m, rm="0xf"): A("%s_dpp v%d, v%d, v%d %s row_mask:%s bank_mask:0xf" % (op, v, v, v, m, rm))
    def red16(v, op):
        for m in QUADS: dpp(op, v, m)
    def swap_red(v, t, op, which):
        A("v_mov_b32 v%d, v%d" % (t, v)); A("v_permlane%d_swap_b32 v%d, v%d" % (which, v, t)); A("%s v%d, v%d, v%d" % (op, v, v, t))
    def rbf(v):
        A("v_cvt_pk_bf16_f32 v%d, v%d, v%d" % (v, v, v)); A("v_lshlrev_b32 v%d, 16, v%d" % (v, v))
    def unpack(dlo, dhi, src):
        A("v_lshlrev_b32 v%d, 16, v%d" % (dlo, src)); A("v_and_b32 v%d, s%d, v%d" % (dhi, sMASK, src))
    def layernorm(pk, n, x, d, t, halves):
        def allred(v):
            red16(v, "v_add_f32"); swap_red(v, t + 2, "v_add_f32", 16)
            if halves == 1: swap_red(v, t + 2, "v_add_f32", 32)
        for i in range(n): unpack(x + 2 * i, x + 2 * i + 1, pk + i)
        A("v_add_f32 v%d, v%d, v%d" % (t, x, x + 1)); A("v_add_f32 v%d, v%d, v%d" % (t + 1, x + 2, x + 3))
        for i in range(4, 2 * n): A("v_add_f32 v%d, v%d, v%d" % (t + (i & 1), t + (i & 1), x + i))
        A("v_add_f32 v%d, v%d, v%d" % (t, t, t + 1))
        allred(t)
        A("v_mul_f32 v%d, 0x3b000000, v%d" % (t, t))
        A("v_cvt_pk_bf16_f32 v%d, v%d, v%d" % (t + 1, t, t))
        for i in range(2 * n): A("v_sub_f32 v%d, v%d, v%d" % (d + i, x + i, t))
        A("v_lshlrev_b32 v%d, 16, v%d" % (t + 1, t + 1))
        A("v_mul_f32 v%d, v%d, v%d" % (t, d, d)); A("v_mul_f32 v%d, v%d, v%d" % (d, d + 1, d + 1))
        for i in range(2, 2 * n): A("v_fmac_f32 v%d, v%d, v%d" % (t if i & 1 else d, d + i, d + i))
        A("v_add_f32 v%d, v%d, v%d" % (t, t, d))
        for i in range(2 * n): A("v_sub_f32 v%d, v%d, v%d" % (x + i, x + i, t + 1))
        allred(t)
        for i in range(n): A("v_cvt_pk_bf16_f32 v%d, v%d, v%d" % (pk + i, x + 2 * i, x + 2 * i + 1))
        A("v_mul_f32 v%d, 0x3b000000, v%d" % (t, t)); rbf(t)
        A("v_add_f32 v%d, 0x%x, v%d" % (t, f2u(1e-5), t)); rbf(t)
        A("v_sqrt_f32 v%d, v%d" % (t, t)); rbf(t)
        A("v_rcp_f32 v%d, v%d" % (t, t))
        for i in range(n): unpack(x + 2 * i, x + 2 * i + 1, pk + i)
        for i in range(2 * n): A("v_mul_f32 v%d, v%d, v%d" % (x + i, t, x + i))
        for i in range(n): A("v_cvt_pk_bf16_f32 v%d, v%d, v%d" % (pk + i, x + 2 * i, x + 2 * i + 1))
    def lds_wait(flag, val, keep=None, sl=None):
        ok = A.label("lok"); again = A.label("lagain")
        dst = keep if keep is not None else sT3
        if keep is not None:
            A("s_cmp_ge_u32 s%d, %s" % (keep, val)); A("s_cbranch_scc1 " + ok)
        A("s_mov_b32 s%d, 0" % sSPIN)
        A(again + ":")
        A("ds_read_b32 v%d, v%d offset:%d" % (vPOLL, vHI, flag)); A("s_waitcnt lgkmcnt(0)")
        A("v_readfirstlane_b32 s%d, v%d" % (dst, vPOLL))
        A("s_cmp_ge_u32 s%d, %s" % (dst, val)); A("s_cbranch_scc1 " + ok)
        if sl is None: sl = lsleep
        if sl: A("s_sleep %d" % sl)
        A("s_add_u32 s%d, s%d, 1" % (sSPIN, sSPIN)); A("s_cmp_lt_u32 s%d, %d" % (sSPIN, lspin)); A("s_cbranch_scc1 " + again)
        A(ok + ":")
    def lds_add(flag_addr_reg, off):
        A("s_waitcnt lgkmcnt(0)")
        A("s_mov_b64 exec, 1"); A("ds_add_u32 v%d, v%d offset:%d" % (flag_addr_reg, vONE, off)); A("s_mov_b64 exec, -1")
    def gpoll(loads, first=True, sleep=0, full="-1", tag=None, P=1):
        ok = A.label("ok"); again = A.label("again")
        masks = ["vcc", "s[12:13]"]
        A("s_mov_b32 s%d, 0" % sSPIN)
        if first:
            for issue, regs in loads: issue()
        for _ in range(P - 1):
            A("s_sleep %d" % pd)
            for issue, regs in loads: issue()
        A(again + ":")
        A("s_waitcnt vmcnt(%d)" % (len(loads) * (P - 1)))
        for (issue, regs), mk in zip(loads, masks):
            t = vT + 7
            if tag is not None:
                A("v_cmp_ne_u64 %s, %s, v[%d:%d]" % (mk, tag, regs[2], regs[3])); continue
            if len(regs) == 2: A("v_max_u32 v%d, v%d, v%d" % (t, regs[0], regs[1]))
            else:
                A("v_max3_u32 v%d, v%d, v%d, v%d" % (t, regs[0], regs[1], regs[2])); A("v_max_u32 v%d, v%d, v%d" % (t, t, regs[3]))
            A("v_cmp_eq_u32 %s, -1, v%d" % (mk, t))
        if len(loads) == 2:
            A("s_or_b32 s%d, vcc_lo, vcc_hi" % sT3); A("s_or_b32 s%d, s%d, s12" % (sT3, sT3)); A("s_or_b32 s%d, s%d, s13" % (sT3, sT3))
        else:
            A("s_or_b32 s%d, vcc_lo, vcc_hi" % sT3)
        A("s_cbranch_scc0 " + ok)
        if sleep: A("s_sleep %d" % sleep)
        for (issue, regs), mk in zip(loads, masks):
            A("s_mov_b64 exec, %s" % mk); issue()
        A("s_mov_b64 exec, %s" % full)
        A("s_add_u32 s%d, s%d, 1" % (sSPIN, sSPIN)); A("s_cmp_lt_u32 s%d, %d" % (sSPIN, spin)); A("s_cbranch_scc1 " + again)
        A("s_waitcnt vmcnt(0)")
        A(ok + ":")
    def apoll(vd, vaddr, soff, vtmp, sleep, first=True):
        ms = ["vcc", "s[12:13]", "s[88:89]", "s[90:91]"]
        ok = A.label("aok"); again = A.label("aagain")
        def iss(k):
            A("v_mov_b32 v%d, 0" % (vd + 2 * k)); A("v_mov_b32 v%d, 0" % (vd + 1 + 2 * k))
            A("buffer_atomic_or_x2 v[%d:%d], v%d, %s, s%d offen offset:%d sc0" % (vd + 2 * k, vd + 1 + 2 * k, vaddr, srd("WS"), soff, 512 * k))
        if first == "only":
            for k in range(4): iss(k)
            return
        A("s_mov_b32 s%d, 0" % sSPIN)
        if first:
            for k in range(4): iss(k)
        A(again + ":")
        A("s_waitcnt vmcnt(0)")
        for k in range(4): A("v_max_u32 v%d, v%d, v%d" % (vtmp + k, vd + 2 * k, vd + 1 + 2 * k))
        for k in range(4): A("v_cmp_eq_u32 %s, -1, v%d" % (ms[k], vtmp + k))
        A("s_or_b64 s[92:93], vcc, s[12:13]"); A("s_or_b64 s[94:95], s[88:89], s[90:91]"); A("s_or_b64 s[92:93], s[92:93], s[94:95]")
        A("s_cbranch_scc0 " + ok)
        if sleep: A("s_sleep %d" % sleep)
        for k in range(4):
            A("s_mov_b64 exec, %s" % ms[k]); iss(k)
        A("s_mov_b64 exec, -1")
        A("s_add_u32 s%d, s%d, 1" % (sSPIN, sSPIN)); A("s_cmp_lt_u32 s%d, %d" % (sSPIN, spin)); A("s_cbranch_scc1 " + again)
        A("s_waitcnt vmcnt(0)")
        A(ok + ":")
    def word_poll(load, vd, lanes, cmp, sleep):
        ok = A.label("fok"); again = A.label("fagain")
        A("s_mov_b32 s%d, 0" % sSPIN); A("s_mov_b64 exec, %s" % lanes)
        A(again + ":")
        A(load)
        A("s_waitcnt vmcnt(0)")
        A(cmp % vd)
        A("s_cmp_eq_u64 vcc, 0"); A("s_cbranch_scc1 " + ok)
        if sleep: A("s_sleep %d" % sleep)
        A("s_add_u32 s%d, s%d, 1" % (sSPIN, sSPIN)); A("s_cmp_lt_u32 s%d, %d" % (sSPIN, spin)); A("s_cbranch_scc1 " + again)
        A(ok + ":")
        A("s_mov_b64 exec, -1")

    A("s_cmp_ge_u32 s2, 256"); A("s_cbranch_scc1 L_end")
    if stamps:
        for k in range(1, NST): A("s_mov_b64 s[%d:%d], 0" % (16 + 2 * k, 17 + 2 * k))
    stamp(0)
    if pad and not stamps: A("s_memrealtime s[16:17]")
    for n in ("K", "X", "WQ", "WS", "V", "WO", "W1", "B1", "W2", "DBG", "OUT"):
        A("s_load_dwordx2 s[%d:%d], s[0:1], %d" % (SRD[n], SRD[n] + 1, KARG[n]))
    A("s_load_dwordx2 s[%d:%d], s[0:1], 72" % (sB2P, sB2P + 1))
    A("v_lshrrev_b32 v1, 6, v0"); A("v_and_b32 v0, 63, v0"); A("v_readfirstlane_b32 s%d, v1" % sWAVE)
    for n in SRD:
        A("s_mov_b32 s%d, 0x%x" % (SRD[n] + 2, SIZE[n])); A("s_mov_b32 s%d, 0x20000" % (SRD[n] + 3))
    if xmap == 0:
        A("s_and_b32 s%d, s2, 7" % sR); A("s_lshl_b32 s%d, s%d, 5" % (sR, sR)); A("s_lshr_b32 s%d, s2, 3" % sT0); A("s_add_u32 s%d, s%d, s%d" % (sR, sR, sT0))
    else:
        if xmap == 2:
            A("s_lshr_b32 s%d, s2, 5" % sT0); A("s_add_u32 s%d, s2, s%d" % (sR, sT0))
        elif xmap == 3:
            A("s_bfe_u32 s%d, s2, 0x20003" % sT0); A("s_lshl_b32 s%d, s%d, 1" % (sT0, sT0)); A("s_add_u32 s%d, s2, s%d" % (sR, sT0))
        else: A("s_add_u32 s%d, s2, %d" % (sR, bshift))
        A("s_and_b32 s%d, s%d, 7" % (sR, sR)); A("s_lshl_b32 s%d, s%d, 2" % (sR, sR)); A("s_and_b32 s%d, s2, 0xe0" % sT0); A("s_add_u32 s%d, s%d, s%d" % (sR, sR, sT0))
        A("s_bfe_u32 s%d, s2, 0x20003" % sT0); A("s_add_u32 s%d, s%d, s%d" % (sR, sR, sT0))
    sRQ = sMB
    if qmap == 0: A("s_mov_b32 s%d, s%d" % (sRQ, sR))
    elif qmap == 1:
        A("s_and_b32 s%d, s2, 7" % sRQ); A("s_lshl_b32 s%d, s%d, 5" % (sRQ, sRQ)); A("s_lshr_b32 s%d, s2, 3" % sT0); A("s_add_u32 s%d, s%d, s%d" % (sRQ, sRQ, sT0))
    elif qmap == 2:
        A("s_lshr_b32 s%d, s%d, 3" % (sT0, sR)); A("s_and_b32 s%d, s%d, 0x1c" % (sT0, sT0)); A("s_add_u32 s%d, s%d, s%d" % (sT0, sT0, sR)); A("s_and_b32 s%d, s%d, 0x1c" % (sT0, sT0))
        A("s_and_b32 s%d, s%d, 0xe3" % (sRQ, sR)); A("s_or_b32 s%d, s%d, s%d" % (sRQ, sRQ, sT0))
    elif qmap == 4:
        A("s_lshr_b32 s%d, s%d, 5" % (sT0, sR)); A("s_lshl_b32 s%d, s%d, 1" % (sT0, sT0)); A("s_bfe_u32 s%d, s%d, 0x10001" % (sT1, sR)); A("s_add_u32 s%d, s%d, s%d" % (sT0, sT0, sT1))
        A("s_lshr_b32 s%d, s%d, 2" % (sT1, sT0)); A("s_lshl_b32 s%d, s%d, 1" % (sT1, sT1)); A("s_bfe_u32 s%d, s%d, 0x30002" % (sT2, sR)); A("s_add_u32 s%d, s%d, s%d" % (sT1, sT1, sT2))
        A("s_and_b32 s%d, s%d, 7" % (sT1, sT1)); A("s_lshl_b32 s%d, s%d, 3" % (sT0, sT0)); A("s_add_u32 s%d, s%d, s%d" % (sT0, sT0, sT1)); A("s_lshl_b32 s%d, s%d, 1" % (sT0, sT0))
        A("s_and_b32 s%d, s%d, 1" % (sT1, sR)); A("s_add_u32 s%d, s%d, s%d" % (sRQ, sT0, sT1))
    A("v_lshlrev_b32 v%d, 4, v0" % vL16); A("v_lshrrev_b32 v%d, 4, v0" % vG4); A("v_bfe_u32 v%d, v0, 2, 2" % vC4)
    A("v_and_b32 v%d, 3, v0" % vR4); A("v_and_b32 v%d, 15, v0" % vN16); A("v_mov_b32 v%d, 0x%x" % (vHI, HI)); A("v_mov_b32 v%d, 1" % vONE)
    A("s_mov_b32 s%d, 0x05040100" % sSELLO); A("s_mov_b32 s%d, 0x07060302" % sSELHI); A("s_mov_b32 s%d, 0xffff0000" % sMASK)
    A("s_mov_b32 s%d, 0x%x" % (sSCALE, f2u(128 ** -0.5))); A("s_mov_b32 s%d, 0x%x" % (sL2E, f2u(1.4426950408889634)))
    c0 = -2.0 * 0.7978845608028654 * 1.4426950408889634
    A("s_mov_b32 s%d, 0x%x" % (sC0, f2u(c0))); A("s_mov_b32 s%d, 0x%x" % (sC1, f2u(c0 * 0.044715)))
    A("s_lshr_b32 s%d, s%d, 5" % (sT0, sR)); A("s_lshl_b32 s%d, s%d, 15" % (sT0, sT0))
    A("s_and_b32 s%d, s%d, 31" % (sT1, sR)); A("s_lshl_b32 s%d, s%d, 8" % (sT1, sT1)); A("s_add_u32 s%d, s%d, s%d" % (sT0, sT0, sT1))
    A("s_add_u32 s%d, s%d, 0x%x" % (sOPOFF, sT0, WS_OP))
    A("s_and_b32 s%d, s%d, 7" % (sT0, sR)); A("s_lshl_b32 s%d, s%d, %d" % (sT0, sT0, 13 + spad))
    A("s_lshr_b32 s%d, s%d, 3" % (sT1, sR)); A("s_lshl_b32 s%d, s%d, %d" % (sT1, sT1, 6 + spad)); A("s_add_u32 s%d, s%d, s%d" % (sT0, sT0, sT1))
    A("s_add_u32 s%d, s%d, 0x%x" % (sSPOFF, sT0, WS_SP))
    A("s_lshr_b32 s%d, s%d, 2" % (sT0, sR)); A("s_lshl_b32 s%d, s%d, 7" % (sT0, sT0)); A("s_add_u32 s%d, s%d, 0x%x" % (sSTOFF, sT0, WS_ST))
    A("s_cmp_eq_u32 s%d, 4" % sWAVE); A("s_cbranch_scc1 L_loader")
    A("s_cmp_eq_u32 s%d, 5" % sWAVE); A("s_cbranch_scc1 L_comm")
    A("s_cmp_gt_u32 s%d, 5" % sWAVE); A("s_cbranch_scc1 L_mlp")

    vQ, vS, vTMP, vK = 32, 48, 112, 128
    vKA, vVA = 17, 17
    vM, vLs, vMO, vF, vOWA = 25, 26, 27, 28, 29
    vX = vS
    A("v_lshlrev_b32 v%d, 5, v0" % vT)
    A("v_lshrrev_b32 v%d, 1, v0" % (vT + 1)); A("v_lshlrev_b32 v%d, 13, v%d" % (vT + 1, vT + 1))
    A("v_and_b32 v%d, 1, v0" % (vT + 2)); A("v_lshl_add_u32 v%d, v%d, 4, v%d" % (vT + 1, vT + 2, vT + 1))
    A("s_lshl_b32 s%d, s%d, 11" % (sT2, sWAVE))
    A("s_lshl_b32 s%d, s%d, 20" % (sT0, sWAVE)); A("s_lshl_b32 s%d, s%d, 5" % (sT1, sRQ)); A("s_add_u32 s%d, s%d, s%d" % (sT0, sT0, sT1))
    A("s_lshl_b32 s%d, s%d, 13" % (sT1, sWAVE)); A("s_add_u32 s%d, s%d, %d" % (sT1, sT1, 12 * 8192))
    A("s_waitcnt lgkmcnt(0)")
    if ldst == 2: stamp(12)
    A("buffer_load_dwordx4 %s, v%d, %s, s%d offen" % (vr(vX, 4), vT, srd("X"), sT2))
    A("buffer_load_dwordx4 %s, v%d, %s, s%d offen offset:16" % (vr(vX + 4, 4), vT, srd("X"), sT2))
    nq0 = wqsplit if wqsplit else 4
    for a in range(nq0):
        A("s_add_u32 m0, s%d, %d" % (sT1, a * 1024))
        if 'q' in abl: A("buffer_load_dwordx4 v%d, %s, 0 offen lds" % (vL16, srd("X")))
        else: A("buffer_load_dwordx4 v%d, %s, s%d offen %s lds" % (vT + 1, srd("WQ"), sT0, polq))
        if a < 3: A("s_add_u32 s%d, s%d, 0x40000" % (sT0, sT0))
    if nq0 < 4: A("v_mov_b32 v31, v%d" % (vT + 1)); A("s_mov_b32 s12, s%d" % sT0)
    A("s_barrier")
    A("v_lshrrev_b32 v%d, 5, v0" % (vT + 3)); A("s_lshl_b32 s%d, s%d, 1" % (sT0, sWAVE)); A("v_add_u32 v%d, s%d, v%d" % (vT + 3, sT0, vT + 3))
    A("v_mul_u32_u24 v%d, %d, v%d" % (vT + 3, XN_STRIDE, vT + 3)); A("v_and_b32 v%d, 31, v0" % (vT + 4)); A("v_lshl_add_u32 v%d, v%d, 5, v%d" % (vT + 3, vT + 4, vT + 3))
    A("v_add_u32 v%d, v%d, v%d" % (vT + 3, vHI, vT + 3))
    A("v_and_b32 v%d, 7, v0" % (vT + 4)); A("v_mul_u32_u24 v%d, %d, v%d" % (vT + 4, XN_STRIDE, vT + 4)); A("v_lshl_add_u32 v%d, v%d, 4, v%d" % (vT + 4, vG4, vT + 4))
    A("s_lshl_b32 s%d, s%d, 8" % (sT0, sWAVE)); A("s_add_u32 s%d, s%d, %d" % (sT0, sT0, HI)); A("v_add_u32 v%d, s%d, v%d" % (vT + 4, sT0, vT + 4))
    A("v_lshlrev_b32 v%d, 8, v%d" % (vT + 5, vG4)); A("v_lshl_add_u32 v%d, v%d, 3, v%d" % (vT + 5, vN16, vT + 5)); A("v_add_u32 v%d, s%d, v%d" % (vT + 5, sT1, vT + 5))
    A("s_lshl_b32 s%d, s%d, 10" % (sT0, sWAVE)); A("s_add_u32 s%d, s%d, %d" % (sT0, sT0, HI)); A("v_add_u32 v%d, s%d, v%d" % (vT + 6, sT0, vL16))
    A("s_lshl_b32 s%d, s%d, 13" % (sT0, sWAVE)); A("v_lshlrev_b32 v%d, 8, v%d" % (vT, vN16)); A("v_add_u32 v%d, s%d, v%d" % (vT, sT0, vT))
    for m in range(4):
        A("v_add_u32 v%d, %d, v%d" % (vT + 1, 4 * m, vG4)); A("v_xor_b32 v%d, v%d, v%d" % (vT + 1, vT + 1, vN16))
        A("v_lshl_add_u32 v%d, v%d, 4, v%d" % (vKA + m, vT + 1, vT)); A("v_add_u32 v%d, 0x10000, v%d" % (vKA + 4 + m, vKA + m))
    A("s_lshl_b32 s%d, s%d, 2" % (sT0, sWAVE)); A("s_add_u32 s%d, s%d, %d" % (sT0, sT0, HI)); A("v_mov_b32 v%d, s%d" % (30, sT0))
    A("s_mov_b32 s%d, 0" % sFULL)
    A("s_waitcnt vmcnt(%d)" % nq0)
    for a in range(nq0, 4):
        A("s_add_u32 m0, s%d, %d" % (sT1, a * 1024))
        A("buffer_load_dwordx4 v31, %s, s12 offen %s lds" % (srd("WQ"), polq))
        if a < 3: A("s_add_u32 s12, s12, 0x40000")
    stamp(1)
    layernorm(vX, 8, vX + 8, vX + 24, vX + 40, 2)
    A("ds_write_b128 v%d, %s offset:%d" % (vT + 3, vr(vX, 4), L_XN)); A("ds_write_b128 v%d, %s offset:%d" % (vT + 3, vr(vX + 4, 4), L_XN + 16))
    lds_add(vHI, F_XN)
    A("s_waitcnt vmcnt(0)")
    for m in range(4):
        A("ds_read_b64_tr_b16 %s, v%d offset:%d" % (vr(vK + 4 * m, 2), vT + 5, m * 1024))
        A("ds_read_b64_tr_b16 %s, v%d offset:%d" % (vr(vK + 4 * m + 2, 2), vT + 5, m * 1024 + 128))
    lds_wait(F_XN, 4)
    for m in range(4): A("ds_read_b128 %s, v%d offset:%d" % (vr(vK + 16 + 4 * m, 4), vT + 4, L_XN + m * 64))
    for m in range(4):
        A("s_waitcnt lgkmcnt(%d)" % (3 - m))
        A("v_mfma_f32_16x16x32_bf16 %s, %s, %s, %s" % (vr(vTMP, 4), vr(vK + 4 * m, 4), vr(vK + 16 + 4 * m, 4), "0" if m == 0 else vr(vTMP, 4)))
    A("ds_write_b128 v%d, %s offset:%d" % (vT + 6, vr(vTMP, 4), L_QP))
    lds_add(vHI, F_QP)
    A("s_mov_b64 exec, 1"); A("ds_add_u32 v30, v%d offset:%d" % (vONE, F_FREED)); A("s_mov_b64 exec, -1")
    stamp(2)
    def wait_block(n4):
        A("s_add_u32 s%d, s%d, %d" % (sT0, sWAVE, 4 * n4 + 1))
        lds_wait(F_FULL, "s%d" % sT0, keep=sFULL)
    def read_k(j):
        base = vK + 32 * (j % 4)
        for t in range(2):
            for m in range(4):
                A("ds_read_b128 %s, v%d offset:%d" % (vr(base + 16 * t + 4 * m, 4), vKA + m + (4 if (j & 2) else 0), (j & 1) * 32768 + t * 4096))
    def qk_block(j):
        base = vK + 32 * (j % 4)
        for m in range(4):
            for t in range(2):
                acc = vr(vS + 8 * j + 4 * t, 4)
                A("v_mfma_f32_16x16x32_bf16 %s, %s, %s, %s" % (acc, vr(base + 16 * t + 4 * m, 4), vr(vQ + 4 * m, 4), "0" if m == 0 else acc))
    def round_block(j):
        for p in range(4):
            a, b, t = vS + 8 * j + 2 * p, vS + 8 * j + 2 * p + 1, vT + (p & 1)
            if mimic:
                A("v_cvt_pk_bf16_f32 v%d, v%d, v%d" % (t, a, b)); unpack(a, b, t)
            A("v_mul_f32 v%d, s%d, v%d" % (a, sSCALE, a)); A("v_mul_f32 v%d, s%d, v%d" % (b, sSCALE, b))
            if mimic:
                A("v_cvt_pk_bf16_f32 v%d, v%d, v%d" % (t, a, b)); unpack(a, b, t)
            if j == 0 and p == 0: A("v_max_f32 v%d, v%d, v%d" % (vM, a, b))
            else: A("v_max3_f32 v%d, v%d, v%d, v%d" % (vM, a, b, vM))
    for j in range(4):
        wait_block(j); read_k(j); lds_add(30, F_FREED)
    stamp(3)
    lds_wait(F_QR, 1)
    stamp(4)
    A("v_lshlrev_b32 v%d, 8, v%d" % (vT, vC4)); A("v_lshl_add_u32 v%d, v%d, 4, v%d" % (vT, vG4, vT)); A("v_add_u32 v%d, v%d, v%d" % (vT, vHI, vT))
    for m in range(4): A("ds_read_b128 %s, v%d offset:%d" % (vr(vQ + 4 * m, 4), vT, L_QB + m * 64))
    A("s_waitcnt lgkmcnt(0)")
    for j in range(4):
        qk_block(j)
        wait_block(4 + j); A("s_nop 3"); read_k(4 + j)
        if j >= 1: round_block(j - 1)
        lds_add(30, F_FREED)
    for j in range(4, 8):
        qk_block(j); round_block(j - 1)
    A("v_lshl_add_u32 v%d, v%d, 2, v%d" % (vT + 2, vG4, vC4))
    A("v_and_b32 v%d, 7, v%d" % (vT + 3, vT + 2)); A("v_lshlrev_b32 v%d, 1, v%d" % (vT + 3, vT + 3))
    A("v_lshrrev_b32 v%d, 1, v%d" % (vT + 4, vR4)); A("v_xor_b32 v%d, v%d, v%d" % (vT + 3, vT + 3, vT + 4))
    A("v_lshlrev_b32 v%d, 8, v%d" % (vT + 2, vT + 2)); A("v_lshl_add_u32 v%d, v%d, 4, v%d" % (vT + 2, vT + 3, vT + 2))
    A("v_and_b32 v%d, 1, v0" % (vT + 4)); A("v_lshl_add_u32 v%d, v%d, 3, v%d" % (vT + 2, vT + 4, vT + 2))
    A("s_lshl_b32 s%d, s%d, 13" % (sT0, sWAVE)); A("v_add_u32 v%d, s%d, v%d" % (vVA, sT0, vT + 2))
    for d in range(1, 8): A("v_xor_b32 v%d, %d, v%d" % (vVA + d, 32 * d, vVA))
    round_block(7)
    swap_red(vM, vT, "v_max_f32", 32); swap_red(vM, vT, "v_max_f32", 16)
    A("v_mul_f32 v%d, s%d, v%d" % (vM, sL2E, vM))
    A("v_lshlrev_b32 v%d, 4, v%d" % (vT + 1, vG4)); A("ds_bpermute_b32 v%d, v%d, v%d" % (vMO, vT + 1, vM))
    vP = vK
    for j in range(32):
        a, b = vS + 2 * j, vS + 2 * j + 1
        A("v_fma_f32 v%d, v%d, s%d, -v%d" % (a, a, sL2E, vM)); A("v_fma_f32 v%d, v%d, s%d, -v%d" % (b, b, sL2E, vM))
        A("v_exp_f32 v%d, v%d" % (a, a)); A("v_exp_f32 v%d, v%d" % (b, b))
        if j >= 1:
            pa, pb = a - 2, b - 2
            if j == 1: A("v_add_f32 v%d, v%d, v%d" % (vLs, pa, pb))
            else: A("v_add_f32 v%d, v%d, v%d" % (vLs, vLs, pa)); A("v_add_f32 v%d, v%d, v%d" % (vLs, vLs, pb))
            A("v_cvt_pk_bf16_f32 v%d, v%d, v%d" % (vP + j - 1, pa, pb))
    A("v_add_f32 v%d, v%d, v%d" % (vLs, vLs, vS + 62)); A("v_add_f32 v%d, v%d, v%d" % (vLs, vLs, vS + 63))
    A("v_cvt_pk_bf16_f32 v%d, v%d, v%d" % (vP + 31, vS + 62, vS + 63))
    swap_red(vLs, vT, "v_add_f32", 32); swap_red(vLs, vT, "v_add_f32", 16)
    A("s_lshl_b32 s%d, s%d, 5" % (sT0, sWAVE)); A("s_add_u32 s%d, s%d, %d" % (sT0, sT0, HI)); A("v_lshlrev_b32 v%d, 3, v%d" % (vT, vC4)); A("v_add_u32 v%d, s%d, v%d" % (vT, sT0, vT))
    A("v_mov_b32 v%d, v%d" % (vT + 2, vM)); A("v_mov_b32 v%d, v%d" % (vT + 3, vLs))
    A("s_mov_b64 exec, 0x1111"); A("ds_write_b64 v%d, %s offset:%d" % (vT, vr(vT + 2, 2), L_ST)); A("s_mov_b64 exec, -1")
    lds_add(vHI, F_ST)
    stamp(5)
    A("s_lshl_b32 s%d, s%d, 11" % (sT0, sWAVE)); A("s_add_u32 s%d, s%d, %d" % (sT0, sT0, HI + L_OW))
    A("v_lshlrev_b32 v%d, 9, v%d" % (vOWA, vG4)); A("v_lshl_add_u32 v%d, v%d, 2, v%d" % (vOWA, vN16, vOWA)); A("v_add_u32 v%d, s%d, v%d" % (vOWA, sT0, vOWA))
    vVB = vK + 32
    def read_v(j):
        base = vVB + 32 * (j & 1)
        for d in range(8):
            for t in range(2):
                A("ds_read_b64_tr_b16 %s, v%d offset:%d" % (vr(base + 4 * d + 2 * t, 2), vVA + d, (j & 1) * 32768 + t * 4096))
    def pv(j, d):
        base = vVB + 32 * (j & 1)
        acc = vr(vS + 4 * d, 4)
        A("v_mfma_f32_16x16x32_bf16 %s, %s, %s, %s" % (acc, vr(vP + 4 * j, 4), vr(base + 4 * d, 4), "0" if j == 0 else acc))
    for j in range(8):
        if j == 7:
            lds_wait(F_GR, 1)
            A("v_lshl_add_u32 v%d, v%d, 3, v%d" % (vT, vG4, vHI)); A("ds_read_b64 %s, v%d offset:%d" % (vr(vT + 2, 2), vT, L_GS)); A("s_waitcnt lgkmcnt(0)")
            A("v_sub_f32 v%d, v%d, v%d" % (vF, vMO, vT + 2)); A("v_exp_f32 v%d, v%d" % (vF, vF)); A("v_mul_f32 v%d, v%d, v%d" % (vF, vF, vT + 3))
            stamp(6)
        wait_block(8 + j)
        if j == 7: stamp(7)
        read_v(j)
        if j in (1, 5):
            for d in range(8): A("v_add_u32 v%d, 0x10000, v%d" % (vVA + d, vVA + d))
        if j == 3:
            for d in range(8): A("v_subrev_u32 v%d, 0x10000, v%d" % (vVA + d, vVA + d))
        for d in range(8):
            A("s_waitcnt lgkmcnt(%d)" % (14 - 2 * d))
            if d == 7 and j < 4:
                A("s_mov_b64 exec, 1"); A("ds_add_u32 v30, v%d offset:%d" % (vONE, F_FREED)); A("s_mov_b64 exec, -1")
            pv(j, d)
    for d in range(8): A("v_mul_f32 v%d, v%d, v%d" % (vTMP + d, vF, vS + 4 * d))
    for d in range(0, 8, 2): A("ds_write2_b32 v%d, v%d, v%d offset0:%d offset1:%d" % (vOWA, vTMP + d, vTMP + d + 1, 16 * d, 16 * d + 16))
    vWOA, vOIR, vWO = 17, 18, vK
    A("v_lshlrev_b32 v%d, 7, v%d" % (vWOA, vC4)); A("v_lshl_add_u32 v%d, v%d, 10, v%d" % (vWOA, vG4, vWOA)); A("v_lshl_add_u32 v%d, v%d, 3, v%d" % (vWOA, vR4, vWOA))
    A("s_lshl_b32 s%d, s%d, 5" % (sT0, sWAVE)); A("s_add_u32 s%d, s%d, %d" % (sT0, sT0, HI + L_WO)); A("v_add_u32 v%d, s%d, v%d" % (vWOA, sT0, vWOA))
    A("s_waitcnt lgkmcnt(0)")
    A("s_barrier")
    stamp(8)
    def wo_reads():
        if wolate: lds_wait(F_WO, 1, sl=0)
        for m in range(4):
            A("ds_read_b64_tr_b16 %s, v%d offset:%d" % (vr(vWO + 4 * m, 2), vWOA, m * 4096))
            A("ds_read_b64_tr_b16 %s, v%d offset:%d" % (vr(vWO + 4 * m + 2, 2), vWOA, m * 4096 + 512))
    def oir_addr():
        A("v_lshrrev_b32 v%d, 1, v%d" % (vT, vN16)); A("v_lshlrev_b32 v%d, 10, v%d" % (vT, vT)); A("v_and_b32 v%d, 1, v0" % (vT + 1)); A("v_lshl_add_u32 v%d, v%d, 8, v%d" % (vT, vT + 1, vT))
        for m in range(4):
            A("v_add_u32 v%d, %d, v%d" % (vT + 1, 4 * m, vG4)); A("v_xor_b32 v%d, v%d, v%d" % (vT + 1, vT + 1, vN16))
            A("v_lshl_add_u32 v%d, v%d, 4, v%d" % (vOIR + m, vT + 1, vT))
        A("v_lshrrev_b32 v%d, 1, v%d" % (22, vN16)); A("v_lshlrev_b32 v22, %d, v22" % (16 + spad)); A("v_lshl_add_u32 v22, v%d, 4, v22" % vG4)
    A("s_cmp_gt_u32 s%d, 1" % sWAVE); A("s_cbranch_scc1 L_gather23")
    A("s_lshl_b32 s%d, s%d, 10" % (sT0, sWAVE)); A("s_add_u32 s%d, s%d, %d" % (sT0, sT0, HI + L_OW)); A("v_add_u32 v%d, s%d, v%d" % (vT, sT0, vL16))
    for w in range(4): A("ds_read_b128 %s, v%d offset:%d" % (vr(vS + 4 * w, 4), vT, w * 2048))
    A("v_lshrrev_b32 v%d, 5, v0" % (vT + 1)); A("v_lshlrev_b32 v%d, 13, v%d" % (vT + 1, vT + 1)); A("v_and_b32 v%d, 31, v0" % (vT + 2)); A("v_lshl_add_u32 v%d, v%d, 3, v%d" % (vT + 1, vT + 2, vT + 1))
    A("s_lshl_b32 s%d, s%d, 14" % (sT0, sWAVE)); A("s_add_u32 s%d, s%d, s%d" % (sT0, sT0, sOPOFF))
    A("s_waitcnt lgkmcnt(2)")
    for i in range(4): A("v_add_f32 v%d, v%d, v%d" % (vS + i, vS + i, vS + 4 + i))
    A("s_waitcnt lgkmcnt(0)")
    for i in range(4): A("v_add_f32 v%d, v%d, v%d" % (vS + 8 + i, vS + 8 + i, vS + 12 + i))
    for i in range(4): A("v_add_f32 v%d, v%d, v%d" % (vS + i, vS + i, vS + 8 + i))
    A("v_cvt_pk_bf16_f32 v%d, v%d, v%d" % (vTMP, vS, vS + 1)); A("v_cvt_pk_bf16_f32 v%d, v%d, v%d" % (vTMP + 1, vS + 2, vS + 3))
    A("buffer_store_dwordx2 %s, v%d, %s, s%d offen %s" % (vr(vTMP, 2), vT + 1, srd("WS"), sT0, ts))
    stamp(11)
    wo_reads(); oir_addr()
    A("s_branch L_barE_c")
    def gather(idx_sgpr, extra):
        vGa = 40
        A("s_lshr_b32 s%d, s%d, 3" % (sT1, sR)); A("s_lshl_b32 s%d, s%d, 13" % (sT1, sT1)); A("s_lshl_b32 s%d, s%d, 11" % (sT0, idx_sgpr))
        A("s_add_u32 s%d, s%d, s%d" % (sT1, sT1, sT0)); A("s_add_u32 s%d, s%d, 0x%x" % (sT1, sT1, WS_OP))
        lds_ = [(lambda: A("buffer_load_dwordx4 %s, v%d, %s, s%d offen %s" % (vr(vGa, 4), vL16, srd("WS"), sT1, tl)), list(range(vGa, vGa + 4))),
                (lambda: A("buffer_load_dwordx4 %s, v%d, %s, s%d offen offset:1024 %s" % (vr(vGa + 4, 4), vL16, srd("WS"), sT1, tl)), list(range(vGa + 4, vGa + 8)))]
        if td1: A("s_sleep %d" % td1)
        if at1:
            A("v_lshlrev_b32 v%d, 3, v0" % (vT + 7))
            apoll(vGa, vT + 7, sT1, 0, 0, first="only")
            extra()
            A("v_lshrrev_b32 v%d, 5, v0" % (vT + 2)); A("s_lshl_b32 s%d, s%d, 2" % (sT2, idx_sgpr)); A("v_add_u32 v%d, s%d, v%d" % (vT + 3, sT2, vT + 2))
            A("v_bfe_u32 v%d, v0, 1, 4" % (vT + 4)); A("v_xor_b32 v%d, v%d, v%d" % (vT + 3, vT + 3, vT + 4))
            A("v_lshlrev_b32 v%d, 8, v%d" % (vT + 2, vT + 2)); A("v_add_u32 v%d, s%d, v%d" % (vT + 2, sT0, vT + 2))
            A("v_and_b32 v%d, 1, v0" % (vT + 4)); A("v_lshl_add_u32 v%d, v%d, 3, v%d" % (vT + 2, vT + 4, vT + 2))
            A("v_lshl_add_u32 v%d, v%d, 4, v%d" % (vT + 5, vT + 3, vT + 2)); A("v_xor_b32 v%d, 32, v%d" % (vT + 6, vT + 5))
            apoll(vGa, vT + 7, sT1, 24, tsleep, first=False)
            stamp(11)
            for k in range(4): A("ds_write_b64 v%d, %s offset:%d" % (vT + 5 + (k >> 1), vr(vGa + 2 * k, 2), 512 * k))
            return
        for i_, _ in lds_: i_()
        A("v_and_b32 v%d, 1, v%d" % (vT + 2, vG4)); A("s_lshl_b32 s%d, s%d, 2" % (sT2, idx_sgpr)); A("v_add_u32 v%d, s%d, v%d" % (vT + 2, sT2, vT + 2))
        A("v_xor_b32 v%d, v%d, v%d" % (vT + 3, vT + 2, vN16)); A("v_xor_b32 v%d, 2, v%d" % (vT + 4, vT + 3))
        A("v_lshlrev_b32 v%d, 8, v%d" % (vT + 2, vG4)); A("v_add_u32 v%d, s%d, v%d" % (vT + 2, sT0, vT + 2))
        A("v_lshl_add_u32 v%d, v%d, 4, v%d" % (vT + 5, vT + 3, vT + 2)); A("v_lshl_add_u32 v%d, v%d, 4, v%d" % (vT + 6, vT + 4, vT + 2))
        extra()
        gpoll(lds_, first=False, sleep=tsleep, P=P1)
        stamp(11)
        A("ds_write_b128 v%d, %s" % (vT + 5, vr(vGa, 4))); A("ds_write_b128 v%d, %s offset:1024" % (vT + 6, vr(vGa + 4, 4)))
    A("L_gather23:")
    A("s_sub_u32 s%d, s%d, 2" % (sMU, sWAVE))
    gather(sMU, lambda: (wo_reads(), oir_addr()))
    A("L_barE_c:")
    A("s_waitcnt lgkmcnt(0)")
    A("s_barrier")
    stamp(9)
    for u in range(2):
        for m in range(4): A("ds_read_b128 %s, v%d offset:%d" % (vr(vS + 16 * u + 4 * m, 4), vOIR + m, u * 512))
    A("s_lshl_b32 s%d, s%d, %d" % (sT0, sWAVE, 11 + spad)); A("s_add_u32 s%d, s%d, s%d" % (sT0, sT0, sSPOFF))
    for u in range(2):
        for m in range(4):
            A("s_waitcnt lgkmcnt(%d)" % (7 - 4 * u - m))
            acc = vr(vTMP + 4 * u, 4)
            A("v_mfma_f32_16x16x32_bf16 %s, %s, %s, %s" % (acc, vr(vWO + 4 * m, 4), vr(vS + 16 * u + 4 * m, 4), "0" if m == 0 else acc))
    for i in range(4): A("v_add_f32 v%d, v%d, v%d" % (vTMP + i, vTMP + i, vTMP + 4 + i))
    for i in range(4): dpp("v_add_f32", vTMP + i, "quad_perm:[1,0,3,2]")
    A("s_mov_b32 exec_lo, 0x55555555"); A("s_mov_b32 exec_hi, 0x55555555")
    stamp(10)
    A("buffer_store_dwordx4 %s, v22, %s, s%d offen %s" % (vr(vTMP, 4), srd("WS"), sT0, ts))
    A("s_mov_b64 exec, -1")
    A("s_branch L_done")

    A("L_loader:")
    if ldprio: A("s_setprio %d" % ldprio)
    vO = 17
    A("v_lshlrev_b32 v%d, 8, v%d" % (vT, vG4))
    for i in range(4):
        A("v_add_u32 v%d, %d, v%d" % (vT + 1, 4 * i, vG4)); A("v_xor_b32 v%d, v%d, v%d" % (vT + 1, vT + 1, vN16)); A("v_lshl_add_u32 v%d, v%d, 4, v%d" % (vO + i, vT + 1, vT))
    for i in range(2):
        A("v_add_u32 v%d, %d, v%d" % (vT + 1, 4 * i, vG4)); A("v_lshlrev_b32 v%d, 1, v%d" % (vT + 1, vT + 1))
        A("v_xor_b32 v%d, v%d, v%d" % (vT + 1, vT + 1, vN16)); A("v_lshl_add_u32 v%d, v%d, 4, v%d" % (vO + 4 + i, vT + 1, vT))
    sG, sSLOT, sFR, sN = 12, 13, 88, 92
    A("s_bfe_u32 s%d, s%d, 0x30002" % (sBASE, sR)); A("s_lshl_b32 s%d, s%d, 23" % (sBASE, sBASE)); A("s_lshr_b32 s%d, s%d, 5" % (sT0, sR)); A("s_lshl_b32 s%d, s%d, 20" % (sT0, sT0))
    A("s_add_u32 s%d, s%d, s%d" % (sBASE, sBASE, sT0)); A("s_and_b32 s%d, s%d, 3" % (sT0, sR)); A("s_lshl_b32 s%d, s%d, 18" % (sT0, sT0)); A("s_add_u32 s%d, s%d, s%d" % (sBASE, sBASE, sT0))
    if rot:
        A("s_mov_b32 s94, s%d" % sBASE)
        A("s_mul_i32 s%d, s%d, %d" % (sT0, sR, rot)); A("s_lshr_b32 s%d, s%d, 5" % (sT1, sR)); A("s_add_u32 s%d, s%d, s%d" % (sT0, sT0, sT1))
        A("s_and_b32 s%d, s%d, 31" % (sT0, sT0)); A("s_lshl_b32 s%d, s%d, 13" % (sT0, sT0)); A("s_add_u32 s%d, s%d, s%d" % (sBASE, sBASE, sT0))
    if Fhi:
        A("s_and_b32 s%d, s2, 7" % sT0); A("s_lshr_b32 s%d, %d, s%d" % (sT0, himask, sT0)); A("s_and_b32 s%d, s%d, 1" % (sT0, sT0)); A("s_cselect_b32 s95, %d, %d" % (Fhi, F))
    A("s_mov_b32 s93, 0"); A("s_mov_b32 s%d, s%d" % (sOFF, sBASE)); A("s_mov_b32 s%d, 0" % sG); A("s_mov_b32 s%d, 0" % sSLOT); A("s_mov_b32 s%d, 0" % sN)
    A("s_waitcnt lgkmcnt(0)")
    def publish_full(sgpr):
        A("v_mov_b32 v%d, s%d" % (vT, sgpr)); A("s_mov_b64 exec, 1"); A("ds_write_b32 v%d, v%d offset:%d" % (vHI, vT, F_FULL)); A("s_mov_b64 exec, -1")
    def dma_block(isk):
        Dm = D if isk else DV
        for half in range(2):
            A("s_mov_b32 m0, s%d" % sSLOT)
            if Dm: A("s_waitcnt vmcnt(%d)" % Dm)
            for i in range(4):
                A("buffer_load_dwordx4 v%d, %s, s%d offen offset:%d %s lds" % (vO + i if isk else vO + 4 + (i & 1), srd("K" if isk else "V"), sOFF, i * 1024, pol))
            A("s_add_u32 s%d, s%d, 4096" % (sOFF, sOFF)); A("s_add_u32 s%d, s%d, 4096" % (sSLOT, sSLOT))
            if Dm and (4 * half - Dm) % 8 < 4:
                A("s_add_i32 s%d, s%d, %d" % (sT0, sN, (4 * half - Dm) // 8)); A("s_max_i32 s%d, s%d, 0" % (sT0, sT0)); publish_full(sT0)
        if rot:
            A("s_and_b32 s%d, s%d, 0x3ffff" % (sOFF, sOFF)); A("s_or_b32 s%d, s%d, s94" % (sOFF, sOFF))
        A("s_and_b32 s%d, s%d, 0x1ffff" % (sSLOT, sSLOT)); A("s_add_u32 s%d, s%d, 1" % (sN, sN))
    if ldst == 2: stamp(1)
    for _ in range(pre): dma_block(True)
    A("s_barrier")
    if ldst == 2: stamp(2)
    for _ in range(4 - pre): dma_block(True)
    A("s_mov_b32 s%d, 1" % sG)
    if ldst == 2: stamp(3)
    def read_freed():
        A("ds_read_b128 %s, v%d offset:%d" % (vr(vT + 4, 4), vHI, F_FREED)); A("s_waitcnt lgkmcnt(0)")
        for c in range(4): A("v_readfirstlane_b32 s%d, v%d" % (sFR + c, vT + 4 + c))
    for isk, last in ((True, 8), (False, 16)):
        loop = "L_ld_k" if isk else "L_ld_v"
        if not isk: A("s_mov_b32 s%d, s%d" % (sOFF, sBASE))
        A(loop + ":")
        if ldst == 1:
            for k, g in enumerate((2, 3, 4, 5, 6, 7) if isk else (8, 10, 12, 14)):
                sk = A.label("st"); A("s_cmp_lg_u32 s%d, %d" % (sG, g)); A("s_cbranch_scc1 " + sk); stamp(k + 1 if isk else k + 7); A(sk + ":")
        read_freed()
        A("s_sub_i32 s%d, s%d, 2" % (sT1, sG))
        if Fhi and hiend < 16:
            A("s_cmp_ge_u32 s%d, %d" % (sG, hiend)); A("s_cselect_b32 s95, %d, s95" % F)
        for c in range(4):
            go = A.label("go"); sl = A.label("slow")
            A("s_cmp_ge_i32 s%d, s%d" % (sFR + c, sT1)); A("s_cbranch_scc1 " + go)
            A("s_waitcnt vmcnt(0)"); publish_full(sN)
            if ldst: A("s_add_u32 s93, s93, 100")
            A("s_mov_b32 s%d, 0" % sSPIN)
            A(sl + ":")
            read_freed()
            A("s_cmp_ge_i32 s%d, s%d" % (sFR + c, sT1)); A("s_cbranch_scc1 " + go)
            A("s_add_u32 s%d, s%d, 1" % (sSPIN, sSPIN)); A("s_cmp_lt_u32 s%d, %d" % (sSPIN, lspin)); A("s_cbranch_scc1 " + sl)
            A(go + ":")
            dma_block(isk)
            if D: pass
            elif Fhi:
                hi = A.label("hi")
                A("s_sub_i32 s%d, s%d, s95" % (sT0, sN)); A("s_max_i32 s%d, s%d, 0" % (sT0, sT0))
                A("s_waitcnt vmcnt(%d)" % (8 * Fhi)); A("s_cmp_eq_u32 s95, %d" % Fhi); A("s_cbranch_scc1 " + hi)
                A("s_waitcnt vmcnt(%d)" % (8 * F)); A(hi + ":"); publish_full(sT0)
            else:
                A("s_sub_i32 s%d, s%d, %d" % (sT0, sN, F))
                if F > 5: A("s_max_i32 s%d, s%d, 0" % (sT0, sT0))
                A("s_waitcnt vmcnt(%d)" % (8 * F)); publish_full(sT0)
        if stamps:
            pass
        A("s_add_u32 s%d, s%d, 1" % (sG, sG)); A("s_cmp_lt_u32 s%d, %d" % (sG, last)); A("s_cbranch_scc1 " + loop)
        if not ldst: stamp(1 if isk else 2)
    def wo_dma():
        A("v_lshrrev_b32 v%d, 3, v0" % (vT + 4)); A("v_lshlrev_b32 v%d, 10, v%d" % (vT + 4, vT + 4)); A("v_and_b32 v%d, 7, v0" % (vT + 5)); A("v_lshl_add_u32 v%d, v%d, 4, v%d" % (vT + 4, vT + 5, vT + 4))
        A("s_lshr_b32 s%d, s%d, 3" % (sT0, sR)); A("s_lshl_b32 s%d, s%d, 17" % (sT0, sT0)); A("s_and_b32 s%d, s%d, 7" % (sT1, sR)); A("s_lshl_b32 s%d, s%d, 7" % (sT1, sT1))
        A("s_add_u32 s%d, s%d, s%d" % (sT0, sT0, sT1))
        for a in range(16):
            A("s_mov_b32 m0, %d" % (HI + L_WO + a * 1024))
            A("buffer_load_dwordx4 v%d, %s, s%d offen %s lds" % (vT + 4, srd("WO"), sT0, polo))
            if a < 15: A("s_add_u32 s%d, s%d, 0x2000" % (sT0, sT0))
    if wolate == 1: wo_dma()
    for k in range((DV + 4 + 7) // 8 - 1 if D else max(F, Fhi) - 1, -1, -1):
        A("s_mov_b32 s%d, %d" % (sT0, 64 - k)); A("s_waitcnt vmcnt(%d)" % (8 * k + (16 if wolate == 1 else 0))); publish_full(sT0)
    if wolate == 1:
        if ldst: stamp(11)
        A("s_waitcnt vmcnt(0)"); A("s_mov_b64 exec, 1"); A("ds_write_b32 v%d, v%d offset:%d" % (vHI, vONE, F_WO)); A("s_mov_b64 exec, -1")
    if ldst:
        if wolate == 1: stamp(12)
        else: stamp(11)
    else: stamp(3)
    if probe:
        A("s_memrealtime s[20:21]"); A("s_and_b32 s6, s2, 7"); A("s_lshr_b32 s6, %d, s6" % probe); A("s_and_b32 s6, s6, 1"); A("s_lshl_b32 s6, s6, 2"); A("s_add_u32 s6, s6, 4")
        A("s_waitcnt lgkmcnt(0)"); A("v_mov_b32 v8, s20"); A("s_mov_b64 exec, 1"); A("buffer_atomic_add v8, off, %s, s6" % srd("DBG")); A("s_mov_b64 exec, -1")
    A("s_waitcnt lgkmcnt(0)")
    A("s_branch L_done")

    def slot_addrs():
        A("v_lshlrev_b32 v28, 5, v0")
        A("s_and_b32 s%d, s%d, 3" % (sT0, sR)); A("s_lshl_b32 s%d, s%d, 3" % (sT0, sT0)); A("s_add_u32 s%d, s%d, s%d" % (sMU, sT0, sSTOFF))
    A("L_comm:")
    vZ = 20
    for i in range(4): A("v_mov_b32 v%d, 0" % (vZ + i))
    A("v_lshl_add_u32 v%d, v0, 2, v%d" % (vT, vHI))
    A("s_mov_b64 exec, 0xffff"); A("ds_write_b32 v%d, v%d offset:%d" % (vT, vZ, L_FLG)); A("s_mov_b64 exec, -1")
    slot_addrs()
    sEP = 4
    def epoch():
        A("s_waitcnt vmcnt(0)")
        A("v_readfirstlane_b32 s%d, v30" % sEP); A("v_readfirstlane_b32 s%d, v31" % (sEP + 1))
        A("s_add_u32 s%d, s%d, 0x%x" % (sEP, sEP, EP_STEP & 0xffffffff)); A("s_addc_u32 s%d, s%d, 0x%x" % (sEP + 1, sEP + 1, EP_STEP >> 32))
    A("s_waitcnt lgkmcnt(0)")
    A("buffer_load_dwordx2 v[30:31], off, %s, 0 offset:%d sc1" % (srd("WS"), WS_EP))
    A("s_barrier")
    A("v_add_u32 v%d, v%d, v%d" % (vT, vHI, vL16))
    A("v_and_b32 v29, 7, v0"); A("v_lshlrev_b32 v29, 14, v29"); A("v_lshl_add_u32 v29, v%d, 4, v29" % vG4)
    A("s_lshl_b32 s%d, s%d, 6" % (sT2, sRQ)); A("s_add_u32 s%d, s%d, 0x%x" % (sT2, sT2, WS_Q))
    A("s_bfe_u32 s%d, s%d, 0x30002" % (sT0, sR)); A("s_lshl_b32 s%d, s%d, 14" % (sT0, sT0)); A("s_lshr_b32 s%d, s%d, 5" % (sT1, sR)); A("s_lshl_b32 s%d, s%d, 11" % (sT1, sT1))
    A("s_add_u32 s%d, s%d, s%d" % (sT0, sT0, sT1)); A("s_add_u32 s%d, s%d, 0x%x" % (sT0, sT0, WS_Q))
    A("v_lshl_add_u32 v27, v0, 3, v%d" % vHI)
    epoch()
    A("v_mov_b32 v38, s%d" % sEP); A("v_mov_b32 v39, s%d" % (sEP + 1))
    stamp(1)
    lds_wait(F_QP, 4)
    for w in range(4): A("ds_read_b128 %s, v%d offset:%d" % (vr(40 + 4 * w, 4), vT, L_QP + w * 1024))
    A("s_waitcnt lgkmcnt(0)")
    for i in range(4): A("v_add_f32 v%d, v%d, v%d" % (40 + i, 40 + i, 44 + i)); A("v_add_f32 v%d, v%d, v%d" % (48 + i, 48 + i, 52 + i))
    for i in range(4): A("v_add_f32 v%d, v%d, v%d" % (40 + i, 40 + i, 48 + i))
    A("v_cvt_pk_bf16_f32 v36, v40, v41"); A("v_cvt_pk_bf16_f32 v37, v42, v43")
    A("s_mov_b32 exec_lo, 0x00ff00ff"); A("s_mov_b32 exec_hi, 0x00ff00ff")
    A("buffer_store_dwordx4 v[36:39], v29, %s, s%d offen sc1" % (srd("WS"), sT2))
    A("s_mov_b64 exec, -1")
    stamp(2)
    if qdelay: A("s_sleep %d" % qdelay)
    if qtrig: lds_wait(F_FULL, qtrig, sl=4)
    gpoll([(lambda: A("buffer_load_dwordx4 v[32:35], v%d, %s, s%d offen sc1" % (vL16, srd("WS"), sT0)), [32, 33, 34, 35]),
           (lambda: A("buffer_load_dwordx4 v[40:43], v%d, %s, s%d offen offset:1024 sc1" % (vL16, srd("WS"), sT0)), [40, 41, 42, 43])], sleep=qsleep, tag="s[%d:%d]" % (sEP, sEP + 1))
    A("ds_write_b64 v27, v[32:33] offset:%d" % L_QB); A("ds_write_b64 v27, v[40:41] offset:%d" % (L_QB + 512))
    lds_add(vHI, F_QR)
    stamp(4)
    def all_marked():
        A("v_lshlrev_b32 v%d, 5, v0" % (vT + 3))
        word_poll("buffer_load_dword v32, v%d, %s, 0 offen sc1" % (vT + 3, srd("DBG")), 32, "0xff", "v_cmp_gt_u32 vcc, 32, v%d", fsleep)
        stamp(3)
    if not strig: all_marked()
    A("v_lshlrev_b32 v%d, 3, v%d" % (vT + 1, vN16)); A("v_add_u32 v%d, v%d, v%d" % (vT + 2, vHI, vT + 1))
    lds_wait(F_ST, 4)
    A("ds_read_b64 v[32:33], v%d offset:%d" % (vT + 2, L_ST)); A("s_waitcnt lgkmcnt(0)")
    def combine(modes):
        A("v_mov_b32 v34, v32")
        for m in modes: dpp("v_max_f32", 34, m)
        A("v_sub_f32 v32, v32, v34"); A("v_exp_f32 v32, v32"); A("v_mul_f32 v35, v32, v33")
        for m in modes: dpp("v_add_f32", 35, m)
    combine(("row_ror:4", "row_ror:8"))
    A("s_mov_b64 exec, 0xf"); A("buffer_store_dwordx2 v[34:35], v28, %s, s%d offen sc1" % (srd("WS"), sMU)); A("s_mov_b64 exec, -1")
    stamp(5)
    if sdelay: A("s_sleep %d" % sdelay)
    if strig:
        all_marked()
        lds_wait(F_FULL, strig, sl=8)
    gpoll([(lambda: A("buffer_load_dwordx2 v[32:33], v%d, %s, s%d offen sc1" % (vT + 1, srd("WS"), sSTOFF)), [32, 33])], sleep=ssleep)
    combine(("quad_perm:[1,0,3,2]", "quad_perm:[2,3,0,1]"))
    A("v_rcp_f32 v35, v35"); A("v_lshl_add_u32 v%d, v%d, 3, v%d" % (vT + 2, vC4, vHI))
    A("s_mov_b64 exec, 0x1111"); A("ds_write_b64 v%d, v[34:35] offset:%d" % (vT + 2, L_GS)); A("s_mov_b64 exec, -1")
    lds_add(vHI, F_GR)
    stamp(6)
    A("s_mov_b32 s%d, 2" % sMU)
    A("L_gather56:")
    A("s_waitcnt lgkmcnt(0)")
    A("s_barrier")
    stamp(8)
    gather(sMU, lambda: None)
    A("s_waitcnt lgkmcnt(0)")
    A("s_barrier")
    stamp(9)
    A("s_branch L_done")

    A("L_mlp:")
    vW, vU = 32, 64
    A("s_cmp_lg_u32 s%d, 7" % sWAVE); A("s_cbranch_scc1 L_noclean")
    for i in range(4): A("v_mov_b32 v%d, -1" % (60 + i))
    slot_addrs()
    A("v_lshlrev_b32 v%d, 13, v%d" % (vT + 1, vG4)); A("v_lshl_add_u32 v%d, v%d, 4, v%d" % (vT + 1, vN16, vT + 1))
    A("s_lshl_b32 s%d, s%d, %d" % (sT1, sR, 11 + spad)); A("s_add_u32 s%d, s%d, 0x%x" % (sT1, sT1, WS_SP))
    A("v_lshrrev_b32 v29, 2, v0"); A("v_lshlrev_b32 v29, %d, v29" % (6 + spad)); A("v_lshl_add_u32 v29, v%d, 4, v29" % vR4)
    A("s_waitcnt lgkmcnt(0)")
    A("buffer_load_dwordx2 v[30:31], off, %s, 0 offset:%d sc1" % (srd("WS"), WS_EP))
    A("s_mov_b64 exec, 0xf"); A("buffer_store_dwordx2 v[60:61], v28, %s, s%d offen sc1" % (srd("WS"), sMU)); A("s_mov_b64 exec, -1")
    A("buffer_store_dwordx4 v[60:63], v%d, %s, s%d offen sc1" % (vT + 1, srd("WS"), sOPOFF))
    A("buffer_store_dwordx4 v[60:63], v29, %s, s%d offen sc1" % (srd("WS"), sT1))
    A("buffer_store_dwordx4 v[60:63], v29, %s, s%d offen offset:%d sc1" % (srd("WS"), sT1, 1024 << spad))
    A("L_noclean:")
    A("s_sub_u32 s%d, s%d, 6" % (sMB, sWAVE))
    A("v_mul_u32_u24 v%d, 12, v0" % vT); A("s_mul_i32 s%d, s%d, 1792" % (sT1, sMB))
    A("s_waitcnt lgkmcnt(0)")
    A("s_load_dword s%d, s[%d:%d], 0" % (sB2, sB2P, sB2P + 1))
    A("s_barrier")
    for k, n in enumerate(("W1", "B1", "W2")):
        A("buffer_load_dwordx4 %s, v%d, %s, s%d offen" % (vr(vW + 8 * k, 4), vL16, srd(n), sT1))
        A("buffer_load_dwordx3 %s, v%d, %s, s%d offen offset:1024" % (vr(vW + 8 * k + 4, 3), vT, srd(n), sT1))
    A("s_cmp_lg_u32 s%d, 7" % sWAVE); A("s_cbranch_scc1 L_noflag")
    A("s_lshr_b32 s%d, s%d, 5" % (sT0, sR)); A("s_lshl_b32 s%d, s%d, 5" % (sT0, sT0))
    A("s_mov_b64 exec, 1")
    A("s_waitcnt vmcnt(6)")
    A("buffer_atomic_add v%d, off, %s, s%d" % (vONE, srd("DBG"), sT0))
    A("s_mov_b64 exec, -1")
    stamp(4)
    A("L_noflag:")
    A("s_lshr_b32 s%d, s%d, 5" % (sT0, sR)); A("s_mul_i32 s%d, s%d, %d" % (sT0, sT0, XN_STRIDE)); A("s_add_u32 s%d, s%d, %d" % (sT0, sT0, HI)); A("v_add_u32 v%d, s%d, v%d" % (vT + 1, sT0, vL16))
    A("s_lshl_b32 s%d, s%d, 13" % (sT2, sMB)); A("s_add_u32 s%d, s%d, %d" % (sT2, sT2, HI + L_WO)); A("v_add_u32 v%d, s%d, v%d" % (vT + 2, sT2, vL16))
    A("s_and_b32 s%d, s%d, 31" % (sT0, sR)); A("s_lshl_b32 s%d, s%d, 5" % (sT0, sT0)); A("s_add_u32 s%d, s%d, s%d" % (sT0, sT0, sT2))
    A("v_lshlrev_b32 v%d, 1, v%d" % (vT + 3, vN16)); A("v_add_u32 v%d, s%d, v%d" % (vT + 3, sT0, vT + 3))
    lds_wait(F_XN, 4)
    vXm = 112
    A("ds_read_b128 %s, v%d offset:%d" % (vr(vXm, 4), vT + 1, L_XN)); A("s_waitcnt lgkmcnt(0)")
    layernorm(vXm, 4, vXm + 4, vXm + 12, vXm + 20, 1)
    A("ds_write_b128 v%d, %s" % (vT + 2, vr(vXm, 4)))
    vH = 24
    A("ds_read_u16 v%d, v%d" % (vH, vT + 3))
    A("v_lshrrev_b32 v%d, 3, v0" % (vT + 4)); A("v_lshlrev_b32 v%d, 10, v%d" % (vT + 4, vT + 4)); A("v_and_b32 v%d, 7, v0" % (vT + 5)); A("v_lshl_add_u32 v%d, v%d, 4, v%d" % (vT + 4, vT + 5, vT + 4))
    A("s_lshr_b32 s%d, s%d, 3" % (sT0, sR)); A("s_lshl_b32 s%d, s%d, 17" % (sT0, sT0)); A("s_and_b32 s%d, s%d, 7" % (sT1, sR)); A("s_lshl_b32 s%d, s%d, 7" % (sT1, sT1))
    A("s_add_u32 s%d, s%d, s%d" % (sT0, sT0, sT1)); A("s_lshl_b32 s%d, s%d, 16" % (sT1, sMB)); A("s_add_u32 s%d, s%d, s%d" % (sT0, sT0, sT1))
    A("s_waitcnt vmcnt(0) lgkmcnt(0)")
    for a in range(8):
        A("s_add_u32 m0, s%d, %d" % (sT2, a * 1024))
        if 'o' not in abl and not wolate: A("buffer_load_dwordx4 v%d, %s, s%d offen %s lds" % (vT + 4, srd("WO"), sT0, polo))
        if a < 7: A("s_add_u32 s%d, s%d, 0x2000" % (sT0, sT0))
    stamp(1)
    A("v_lshlrev_b32 v%d, 16, v%d" % (vH, vH))
    for k in range(3):
        for i in range(7): unpack(vU + 14 * k + 2 * i, vU + 14 * k + 2 * i + 1, vW + 8 * k + i)
    vC0, vACC, U, T_ = 25, 26, 112, 128
    A("v_mov_b32 v%d, s%d" % (vC0, sC0))
    A("s_lshl_b32 s%d, s%d, 6" % (sT0, sMB)); A("s_add_u32 s%d, s%d, %d" % (sT0, sT0, HI + L_YP)); A("v_mov_b32 v27, s%d" % sT0)
    A("s_mov_b32 s%d, 0" % sT1)
    A("s_nop 3")
    A("L_mlp_loop:")
    A("v_readlane_b32 s%d, v%d, s%d" % (sMU, vH, sT1))
    for t in range(14): A("v_fma_f32 v%d, s%d, v%d, v%d" % (U + t, sMU, vU + t, vU + 14 + t))
    for t in range(14): A("v_mul_f32 v%d, v%d, v%d" % (T_ + t, U + t, U + t))
    for t in range(14): A("v_fma_f32 v%d, v%d, s%d, v%d" % (T_ + t, T_ + t, sC1, vC0))
    for t in range(14): A("v_mul_f32 v%d, v%d, v%d" % (T_ + t, T_ + t, U + t))
    for t in range(14):
        A("v_exp_f32 v%d, v%d" % (T_ + t, T_ + t)); A("v_mul_f32 v%d, v%d, v%d" % (U + t, U + t, vU + 28 + t))
    for t in range(14): A("v_add_f32 v%d, 1.0, v%d" % (T_ + t, T_ + t))
    for t in range(14): A("v_rcp_f32 v%d, v%d" % (T_ + t, T_ + t))
    A("v_mul_f32 v%d, v%d, v%d" % (vACC, U, T_)); A("v_mul_f32 v%d, v%d, v%d" % (U, U + 1, T_ + 1))
    for t in range(2, 14): A("v_fmac_f32 v%d, v%d, v%d" % (vACC if t & 1 else U, U + t, T_ + t))
    A("v_add_f32 v%d, v%d, v%d" % (vACC, vACC, U))
    red16(vACC, "v_add_f32"); dpp("v_add_f32", vACC, "row_bcast:15", "0xa"); dpp("v_add_f32", vACC, "row_bcast:31", "0xc")
    A("s_mov_b32 exec_lo, 0"); A("s_mov_b32 exec_hi, 0x80000000")
    A("ds_write_b32 v27, v%d" % vACC); A("v_add_u32 v27, 4, v27")
    A("s_mov_b64 exec, -1")
    A("s_add_u32 s%d, s%d, 1" % (sT1, sT1)); A("s_cmp_lt_u32 s%d, 16" % sT1); A("s_cbranch_scc1 L_mlp_loop")
    stamp(2)
    A("s_waitcnt vmcnt(0)")
    A("s_mov_b32 s%d, 3" % sMU)
    A("s_cmp_eq_u32 s%d, 6" % sWAVE); A("s_cbranch_scc1 L_gather56")
    if at2:
        A("v_and_b32 v%d, 7, v0" % (vT + 1)); A("v_lshrrev_b32 v%d, 5, v0" % (vT + 2)); A("v_lshl_add_u32 v%d, v%d, 1, v%d" % (vT + 1, vT + 1, vT + 2))
    else: A("v_lshl_add_u32 v%d, v%d, 2, v%d" % (vT + 1, vR4, vG4))
    A("v_lshlrev_b32 v%d, 1, v%d" % (vT + 2, vT + 1)); A("s_lshl_b32 s%d, s%d, 5" % (sT0, sR))
    A("buffer_load_ushort v%d, v%d, %s, s%d offen" % (vT + 3, vT + 2, srd("X"), sT0))
    A("v_lshl_add_u32 v%d, v%d, 2, v%d" % (vT + 1, vT + 1, vHI))
    A("s_lshl_b32 s%d, s%d, %d" % (sT1, sR, 11 + spad)); A("s_add_u32 s%d, s%d, 0x%x" % (sT1, sT1, WS_SP))
    A("v_lshrrev_b32 v29, 2, v0"); A("v_lshlrev_b32 v29, %d, v29" % (6 + spad)); A("v_lshl_add_u32 v29, v%d, 4, v29" % vR4)
    if wolate == 2:
        A("s_mov_b32 s12, s%d" % sT0); A("s_mov_b32 s13, s%d" % sT1)
        lds_wait(F_FULL, wotrig, sl=2)
        wo_dma()
        A("s_mov_b32 s%d, s12" % sT0); A("s_mov_b32 s%d, s13" % sT1)
    A("s_waitcnt lgkmcnt(0)")
    A("s_barrier")
    stamp(8)
    A("ds_read_b32 v40, v%d offset:%d" % (vT + 1, L_YP)); A("ds_read_b32 v41, v%d offset:%d" % (vT + 1, L_YP + 64)); A("s_waitcnt lgkmcnt(0)")
    A("v_add_f32 v40, v40, v41"); rbf(40)
    A("s_lshl_b32 s%d, s%d, 16" % (sB2, sB2)); A("v_add_f32 v40, s%d, v40" % sB2); rbf(40)
    A("v_mul_f32 v41, s%d, v40" % sL2E); A("v_exp_f32 v41, -v41"); A("v_add_f32 v41, 1.0, v41"); A("v_rcp_f32 v41, v41"); A("v_mul_f32 v40, v40, v41"); rbf(40)
    A("s_waitcnt vmcnt(0)"); A("v_lshlrev_b32 v%d, 16, v%d" % (vT + 3, vT + 3))
    if wolate == 2:
        A("s_mov_b64 exec, 1"); A("ds_write_b32 v%d, v%d offset:%d" % (vHI, vONE, F_WO)); A("s_mov_b64 exec, -1")
        stamp(11)
    A("s_barrier")
    stamp(9)
    if td2: A("s_sleep %d" % td2)
    if at2:
        A("v_lshlrev_b32 v29, 3, v0")
        apoll(32, 29, sT1, 44, tsleep2)
        stamp(10)
        A("v_add_f32 v44, v32, v34"); A("v_add_f32 v45, v33, v35"); A("v_add_f32 v46, v36, v38"); A("v_add_f32 v47, v37, v39")
        A("v_add_f32 v44, v44, v46"); A("v_add_f32 v45, v45, v47")
        A("v_permlane32_swap_b32 v44, v45"); A("v_add_f32 v44, v44, v45")
        swap_red(44, 45, "v_add_f32", 16)
        dpp("v_add_f32", 44, "row_ror:8")
    else:
        gpoll([(lambda: A("buffer_load_dwordx4 v[32:35], v29, %s, s%d offen %s" % (srd("WS"), sT1, tl)), [32, 33, 34, 35]),
               (lambda: A("buffer_load_dwordx4 v[36:39], v29, %s, s%d offen offset:%d %s" % (srd("WS"), sT1, 1024 << spad, tl)), [36, 37, 38, 39])], sleep=tsleep2, P=P2)
        stamp(10)
        for i in range(4): A("v_add_f32 v%d, v%d, v%d" % (44 + i, 32 + i, 36 + i))
        A("v_permlane32_swap_b32 v44, v46"); A("v_permlane32_swap_b32 v45, v47")
        A("v_add_f32 v44, v44, v46"); A("v_add_f32 v45, v45, v47")
        A("v_permlane16_swap_b32 v44, v45"); A("v_add_f32 v44, v44, v45")
        dpp("v_add_f32", 44, "row_ror:8"); dpp("v_add_f32", 44, "row_ror:4")
    rbf(44); A("v_mul_f32 v44, v44, v40"); rbf(44)
    A("v_add_f32 v44, v44, v%d" % (vT + 3)); A("v_cvt_pk_bf16_f32 v44, v44, v44")
    em = "0xff" if at2 else "0x000f000f"
    A("s_mov_b32 exec_lo, %s" % em); A("s_mov_b32 exec_hi, %s" % em)
    A("buffer_store_short v44, v%d, %s, s%d offen" % (vT + 2, srd("OUT"), sT0))
    A("s_mov_b64 exec, -1")
    A("s_cmp_lg_u32 s%d, 0" % sR); A("s_cbranch_scc1 L_done")
    epoch()
    A("v_mov_b32 v30, s%d" % sEP); A("v_mov_b32 v31, s%d" % (sEP + 1)); A("s_mov_b64 exec, 1")
    A("buffer_store_dwordx2 v[30:31], off, %s, 0 offset:%d sc1" % (srd("WS"), WS_EP))
    A("s_mov_b64 exec, -1")
    if probe:
        A("buffer_load_dwordx2 v[30:31], off, %s, 0 offset:4 sc1" % srd("DBG")); A("s_memrealtime s[16:17]"); A("s_waitcnt vmcnt(0) lgkmcnt(0)")
        A("v_readfirstlane_b32 s6, v30"); A("v_readfirstlane_b32 s7, v31"); A("s_sub_i32 s6, s6, s7"); A("s_abs_i32 s6, s6"); A("s_lshr_b32 s6, s6, 4"); A("s_min_u32 s6, s6, 20000")
        A("s_add_u32 s16, s16, s6")
        A("L_pad2:"); A("s_memrealtime s[18:19]"); A("s_waitcnt lgkmcnt(0)"); A("s_sub_u32 s18, s18, s16"); A("s_cmp_lt_i32 s18, 0"); A("s_cbranch_scc1 L_pad2")
    A("L_done:")
    A("s_waitcnt vmcnt(0)")
    if pad:
        A("s_waitcnt lgkmcnt(0)"); A("s_add_u32 s16, s16, %d" % pad)
        A("L_pad:"); A("s_memrealtime s[18:19]"); A("s_waitcnt lgkmcnt(0)"); A("s_sub_u32 s18, s18, s16"); A("s_cmp_lt_i32 s18, 0"); A("s_cbranch_scc1 L_pad")
    if stamps:
        A("s_waitcnt vmcnt(0)")
        stamp(NST - 1)
        A("s_waitcnt lgkmcnt(0)")
        A("s_lshl_b32 s%d, s2, 3" % sT0); A("s_add_u32 s%d, s%d, s%d" % (sT0, sT0, sWAVE)); A("s_mul_i32 s%d, s%d, %d" % (sT0, sT0, NST * 8)); A("s_add_u32 s%d, s%d, 0x%x" % (sT0, sT0, WS_STAMP))
        A("s_mov_b64 exec, 1")
        for k in range(NST):
            A("v_mov_b32 v2, s%d" % (16 + 2 * k)); A("v_mov_b32 v3, s%d" % (17 + 2 * k))
            A("buffer_store_dwordx2 v[2:3], off, %s, s%d offset:%d" % (srd("WS"), sT0, k * 8)); A("s_nop 1")
    A("L_end:")
    A("s_endpgm")
    body = A.finalize()
    hdr = open("recurrent_scan__gqa_block_cached__mixer_token_mlp__decode.s.ref").read().split("; Override launch")[0]
    s = hdr + "; @launch grid=(256,1,1) block=(512,1,1) lds=%d\n" % LDS_BYTES
    s += '.amdgcn_target "amdgcn-amd-amdhsa--gfx950"\n.text\n.globl %s\n.p2align 8\n.type %s,@function\n%s:\n' % (NAME, NAME, NAME)
    s += body
    s += '.section .rodata,"a"\n.p2align 6\n.amdhsa_kernel %s\n  .amdhsa_next_free_vgpr 256\n  .amdhsa_next_free_sgpr 102\n  .amdhsa_accum_offset 256\n' % NAME
    s += "  .amdhsa_group_segment_fixed_size 0\n  .amdhsa_kernarg_size 104\n  .amdhsa_user_sgpr_count 2\n  .amdhsa_user_sgpr_kernarg_segment_ptr 1\n  .amdhsa_system_sgpr_workgroup_id_x 1\n.end_amdhsa_kernel\n"
    return s, A

if __name__ == "__main__":
    out = sys.argv[1]
    kw = {}
    for p in sys.argv[2:]:
        k, v = p.split("=")
        kw[k] = int(v) if v.lstrip("-").isdigit() else v.replace("+", " ")
    s, A = gen(**kw)
    open(out, "w").write(s)
    print("wrote", out, "instructions", len(A.ins), "nops", A.nops, "lds", LDS_BYTES)
```

```python
import sys, struct
from asmlib import Asm

NAME = "recurrent_scan__gqa_block_cached__mixer_token_mlp__decode_kernel"
def f2u(x): return struct.unpack("<I", struct.pack("<f", x))[0]

WS_ST, WS_OP, WS_SP, WS_Q, WS_EP = 0x10000, 0x20000, 0x100000, 0x60000, 0x0
WS_CW, WS_PR = 0x80000, 0x200000
EP_STEP = 0x9E3779B97F4A7C15
WS_STAMP = 128 << 20
HI = 131072
L_WO = 0
L_XN, XN_STRIDE = 16384, 1040
L_OW = L_XN
L_QP = 24704
L_QB = 28800
L_FLG = 29824
L_ST = L_FLG + 64
L_GS = L_ST + 128
L_YP = L_GS + 32
LDS_BYTES = HI + L_YP + 128
F_FULL, F_FREED, F_XN, F_QP, F_QR, F_ST, F_GR, F_WO, F_AM, F_PLAN, F_LI = [L_FLG + 4 * i for i in (0, 4, 8, 9, 10, 11, 12, 13, 14, 1, 15)]
L_PP = L_QP

sWAVE, sBASE, sOFF = 3, 4, 5
sT0, sT1, sT2 = 6, 7, 8
sR, sSPIN, sT3 = 9, 10, 11
sMU, sMB = 14, 15
SRD = dict(K=44, V=48, X=52, WQ=56, WO=60, W1=64, B1=68, W2=72, OUT=76, DBG=80, WS=84)
KARG = dict(X=0, K=8, V=16, WQ=24, WO=32, W1=48, B1=56, W2=64, OUT=80, DBG=88, WS=96)
SIZE = dict(X=8192, K=1 << 26, V=1 << 26, WQ=1 << 22, WO=1 << 22, W1=3584, B1=3584, W2=3584, OUT=8192, DBG=256, WS=1 << 28)
sSELLO, sSELHI, sMASK, sSCALE, sL2E, sC0, sC1, sB2, sB2P = 88, 89, 90, 91, 92, 93, 94, 95, 96
sOPOFF, sSPOFF, sSTOFF, sFULL = 98, 99, 100, 101
def srd(n): return "s[%d:%d]" % (SRD[n], SRD[n] + 3)
def vr(a, n=1): return "v%d" % a if n == 1 else "v[%d:%d]" % (a, a + n - 1)
vL16, vG4, vC4, vR4, vN16, vHI, vONE = 1, 2, 3, 4, 5, 6, 7
vT = 8
vPOLL = 16

def gen(F=4, stamps=0, pol="nt", spin=1 << 17, lspin=1 << 22, mimic=1, pre=0, lsleep=1, ldprio=3, fsleep=8, qsleep=2, ssleep=8, tsleep=0, xmap=1, polq=None, polo=None, ldst=0, abl='', rot=0, pad=0, P1=1, P2=1, pd=5, qmap=0, tl='sc1', ts='sc1', tsleep2=None, Fhi=0, himask=0xf8, hiend=16, spad=0, at2=1, td2=8, td1=0, at1=0, qdelay=0, sdelay=0, qtrig=8, strig=48, bshift=0, wolate=2, wqsplit=0, wotrig=60, D=0, DV=0, probe=0, steal=0, cth=23, cllate=1, bias=0, rtrig=48):
    NOWN = 5 if steal else 8
    sPLAN = 13
    DV = DV if DV else D
    tsleep2 = tsleep if tsleep2 is None else tsleep2
    polq = pol if polq is None else polq.replace('def', '')
    polo = pol if polo is None else polo.replace('def', '')
    A = Asm()
    NST = 14
    def stamp(k):
        if stamps: A("s_memrealtime s[%d:%d]" % (16 + 2 * k, 17 + 2 * k))
    QUADS = ("quad_perm:[1,0,3,2]", "quad_perm:[2,3,0,1]", "row_half_mirror", "row_mirror")
    def dpp(op, v, m, rm="0xf"): A("%s_dpp v%d, v%d, v%d %s row_mask:%s bank_mask:0xf" % (op, v, v, v, m, rm))
    def red16(v, op):
        for m in QUADS: dpp(op, v, m)
    def swap_red(v, t, op, which):
        A("v_mov_b32 v%d, v%d" % (t, v)); A("v_permlane%d_swap_b32 v%d, v%d" % (which, v, t)); A("%s v%d, v%d, v%d" % (op, v, v, t))
    def rbf(v):
        A("v_cvt_pk_bf16_f32 v%d, v%d, v%d" % (v, v, v)); A("v_lshlrev_b32 v%d, 16, v%d" % (v, v))
    def unpack(dlo, dhi, src):
        A("v_lshlrev_b32 v%d, 16, v%d" % (dlo, src)); A("v_and_b32 v%d, s%d, v%d" % (dhi, sMASK, src))
    def layernorm(pk, n, x, d, t, halves):
        def allred(v):
            red16(v, "v_add_f32"); swap_red(v, t + 2, "v_add_f32", 16)
            if halves == 1: swap_red(v, t + 2, "v_add_f32", 32)
        for i in range(n): unpack(x + 2 * i, x + 2 * i + 1, pk + i)
        A("v_add_f32 v%d, v%d, v%d" % (t, x, x + 1)); A("v_add_f32 v%d, v%d, v%d" % (t + 1, x + 2, x + 3))
        for i in range(4, 2 * n): A("v_add_f32 v%d, v%d, v%d" % (t + (i & 1), t + (i & 1), x + i))
        A("v_add_f32 v%d, v%d, v%d" % (t, t, t + 1))
        allred(t)
        A("v_mul_f32 v%d, 0x3b000000, v%d" % (t, t))
        A("v_cvt_pk_bf16_f32 v%d, v%d, v%d" % (t + 1, t, t))
        for i in range(2 * n): A("v_sub_f32 v%d, v%d, v%d" % (d + i, x + i, t))
        A("v_lshlrev_b32 v%d, 16, v%d" % (t + 1, t + 1))
        A("v_mul_f32 v%d, v%d, v%d" % (t, d, d)); A("v_mul_f32 v%d, v%d, v%d" % (d, d + 1, d + 1))
        for i in range(2, 2 * n): A("v_fmac_f32 v%d, v%d, v%d" % (t if i & 1 else d, d + i, d + i))
        A("v_add_f32 v%d, v%d, v%d" % (t, t, d))
        for i in range(2 * n): A("v_sub_f32 v%d, v%d, v%d" % (x + i, x + i, t + 1))
        allred(t)
        for i in range(n): A("v_cvt_pk_bf16_f32 v%d, v%d, v%d" % (pk + i, x + 2 * i, x + 2 * i + 1))
        A("v_mul_f32 v%d, 0x3b000000, v%d" % (t, t)); rbf(t)
        A("v_add_f32 v%d, 0x%x, v%d" % (t, f2u(1e-5), t)); rbf(t)
        A("v_sqrt_f32 v%d, v%d" % (t, t)); rbf(t)
        A("v_rcp_f32 v%d, v%d" % (t, t))
        for i in range(n): unpack(x + 2 * i, x + 2 * i + 1, pk + i)
        for i in range(2 * n): A("v_mul_f32 v%d, v%d, v%d" % (x + i, t, x + i))
        for i in range(n): A("v_cvt_pk_bf16_f32 v%d, v%d, v%d" % (pk + i, x + 2 * i, x + 2 * i + 1))
    def lds_wait(flag, val, keep=None, sl=None):
        ok = A.label("lok"); again = A.label("lagain")
        dst = keep if keep is not None else sT3
        if keep is not None:
            A("s_cmp_ge_u32 s%d, %s" % (keep, val)); A("s_cbranch_scc1 " + ok)
        A("s_mov_b32 s%d, 0" % sSPIN)
        A(again + ":")
        A("ds_read_b32 v%d, v%d offset:%d" % (vPOLL, vHI, flag)); A("s_waitcnt lgkmcnt(0)")
        A("v_readfirstlane_b32 s%d, v%d" % (dst, vPOLL))
        A("s_cmp_ge_u32 s%d, %s" % (dst, val)); A("s_cbranch_scc1 " + ok)
        if sl is None: sl = lsleep
        if sl: A("s_sleep %d" % sl)
        A("s_add_u32 s%d, s%d, 1" % (sSPIN, sSPIN)); A("s_cmp_lt_u32 s%d, %d" % (sSPIN, lspin)); A("s_cbranch_scc1 " + again)
        A(ok + ":")
    def lds_add(flag_addr_reg, off):
        A("s_waitcnt lgkmcnt(0)")
        A("s_mov_b64 exec, 1"); A("ds_add_u32 v%d, v%d offset:%d" % (flag_addr_reg, vONE, off)); A("s_mov_b64 exec, -1")
    def gpoll(loads, first=True, sleep=0, full="-1", tag=None, P=1):
        ok = A.label("ok"); again = A.label("again")
        masks = ["vcc", "s[12:13]"]
        A("s_mov_b32 s%d, 0" % sSPIN)
        if first:
            for issue, regs in loads: issue()
        for _ in range(P - 1):
            A("s_sleep %d" % pd)
            for issue, regs in loads: issue()
        A(again + ":")
        A("s_waitcnt vmcnt(%d)" % (len(loads) * (P - 1)))
        for (issue, regs), mk in zip(loads, masks):
            t = vT + 7
            if tag is not None:
                A("v_cmp_ne_u64 %s, %s, v[%d:%d]" % (mk, tag, regs[2], regs[3])); continue
            if len(regs) == 2: A("v_max_u32 v%d, v%d, v%d" % (t, regs[0], regs[1]))
            else:
                A("v_max3_u32 v%d, v%d, v%d, v%d" % (t, regs[0], regs[1], regs[2])); A("v_max_u32 v%d, v%d, v%d" % (t, t, regs[3]))
            A("v_cmp_eq_u32 %s, -1, v%d" % (mk, t))
        if len(loads) == 2:
            A("s_or_b32 s%d, vcc_lo, vcc_hi" % sT3); A("s_or_b32 s%d, s%d, s12" % (sT3, sT3)); A("s_or_b32 s%d, s%d, s13" % (sT3, sT3))
        else:
            A("s_or_b32 s%d, vcc_lo, vcc_hi" % sT3)
        A("s_cbranch_scc0 " + ok)
        if sleep: A("s_sleep %d" % sleep)
        for (issue, regs), mk in zip(loads, masks):
            A("s_mov_b64 exec, %s" % mk); issue()
        if full == "PARTIAL": A("s_mov_b32 exec_lo, -1"); A("s_mov_b32 exec_hi, 0x1ffff")
        else: A("s_mov_b64 exec, %s" % full)
        A("s_add_u32 s%d, s%d, 1" % (sSPIN, sSPIN)); A("s_cmp_lt_u32 s%d, %d" % (sSPIN, spin)); A("s_cbranch_scc1 " + again)
        A("s_waitcnt vmcnt(0)")
        A(ok + ":")
    def apoll(vd, vaddr, soff, vtmp, sleep, first=True):
        ms = ["vcc", "s[12:13]", "s[88:89]", "s[90:91]"]
        ok = A.label("aok"); again = A.label("aagain")
        def iss(k):
            A("v_mov_b32 v%d, 0" % (vd + 2 * k)); A("v_mov_b32 v%d, 0" % (vd + 1 + 2 * k))
            A("buffer_atomic_or_x2 v[%d:%d], v%d, %s, s%d offen offset:%d sc0" % (vd + 2 * k, vd + 1 + 2 * k, vaddr, srd("WS"), soff, 512 * k))
        if first == "only":
            for k in range(4): iss(k)
            return
        A("s_mov_b32 s%d, 0" % sSPIN)
        if first:
            for k in range(4): iss(k)
        A(again + ":")
        A("s_waitcnt vmcnt(0)")
        for k in range(4): A("v_max_u32 v%d, v%d, v%d" % (vtmp + k, vd + 2 * k, vd + 1 + 2 * k))
        for k in range(4): A("v_cmp_eq_u32 %s, -1, v%d" % (ms[k], vtmp + k))
        A("s_or_b64 s[92:93], vcc, s[12:13]"); A("s_or_b64 s[94:95], s[88:89], s[90:91]"); A("s_or_b64 s[92:93], s[92:93], s[94:95]")
        A("s_cbranch_scc0 " + ok)
        if sleep: A("s_sleep %d" % sleep)
        for k in range(4):
            A("s_mov_b64 exec, %s" % ms[k]); iss(k)
        A("s_mov_b64 exec, -1")
        A("s_add_u32 s%d, s%d, 1" % (sSPIN, sSPIN)); A("s_cmp_lt_u32 s%d, %d" % (sSPIN, spin)); A("s_cbranch_scc1 " + again)
        A("s_waitcnt vmcnt(0)")
        A(ok + ":")
    def word_poll(load, vd, lanes, cmp, sleep):
        ok = A.label("fok"); again = A.label("fagain")
        A("s_mov_b32 s%d, 0" % sSPIN); A("s_mov_b64 exec, %s" % lanes)
        A(again + ":")
        A(load)
        A("s_waitcnt vmcnt(0)")
        A(cmp % vd)
        A("s_cmp_eq_u64 vcc, 0"); A("s_cbranch_scc1 " + ok)
        if sleep: A("s_sleep %d" % sleep)
        A("s_add_u32 s%d, s%d, 1" % (sSPIN, sSPIN)); A("s_cmp_lt_u32 s%d, %d" % (sSPIN, spin)); A("s_cbranch_scc1 " + again)
        A(ok + ":")
        A("s_mov_b64 exec, -1")

    A("s_cmp_ge_u32 s2, 256"); A("s_cbranch_scc1 L_end")
    if stamps:
        for k in range(1, NST): A("s_mov_b64 s[%d:%d], 0" % (16 + 2 * k, 17 + 2 * k))
    stamp(0)
    if pad and not stamps: A("s_memrealtime s[16:17]")
    for n in ("K", "X", "WQ", "WS", "V", "WO", "W1", "B1", "W2", "DBG", "OUT"):
        A("s_load_dwordx2 s[%d:%d], s[0:1], %d" % (SRD[n], SRD[n] + 1, KARG[n]))
    A("s_load_dwordx2 s[%d:%d], s[0:1], 72" % (sB2P, sB2P + 1))
    A("v_lshrrev_b32 v1, 6, v0"); A("v_and_b32 v0, 63, v0"); A("v_readfirstlane_b32 s%d, v1" % sWAVE)
    for n in SRD:
        A("s_mov_b32 s%d, 0x%x" % (SRD[n] + 2, SIZE[n])); A("s_mov_b32 s%d, 0x20000" % (SRD[n] + 3))
    if xmap == 0:
        A("s_and_b32 s%d, s2, 7" % sR); A("s_lshl_b32 s%d, s%d, 5" % (sR, sR)); A("s_lshr_b32 s%d, s2, 3" % sT0); A("s_add_u32 s%d, s%d, s%d" % (sR, sR, sT0))
    elif xmap >= 4:
        A("s_lshr_b32 s%d, s2, 1" % sT0); A("s_xor_b32 s%d, s%d, s2" % (sT0, sT0)); A("s_and_b32 s%d, s%d, 1" % (sT0, sT0)); A("s_lshl_b32 s%d, s%d, 3" % (sT0, sT0))
        A("s_and_b32 s%d, s2, 4" % sT1); A("s_lshl_b32 s%d, s%d, 2" % (sT1, sT1)); A("s_add_u32 s%d, s%d, s%d" % (sT0, sT0, sT1))
        A("s_bfe_u32 s%d, s2, 0x10003" % sT1); A("s_lshl_b32 s%d, s%d, 2" % (sT1, sT1)); A("s_add_u32 s%d, s%d, s%d" % (sT0, sT0, sT1))
        A("s_and_b32 s%d, s2, 0xe0" % sR); A("s_add_u32 s%d, s%d, s%d" % (sR, sR, sT0))
        if xmap == 6:
            A("s_lshr_b32 s%d, s2, 5" % sT0); A("s_xor_b32 s%d, s%d, s2" % (sT0, sT0)); A("s_and_b32 s%d, s%d, 1" % (sT0, sT0))
        elif xmap == 7:
            A("s_lshr_b32 s%d, s2, 3" % sT0); A("s_xor_b32 s%d, s%d, s2" % (sT0, sT0)); A("s_and_b32 s%d, s%d, 1" % (sT0, sT0))
        else: A("s_and_b32 s%d, s2, 1" % sT0)
        A("s_bfe_u32 s%d, s2, 0x10004" % sT1)
        A("s_lshl_b32 s%d, s%d, 1" % ((sT0, sT0) if xmap != 5 else (sT1, sT1)))
        A("s_add_u32 s%d, s%d, s%d" % (sR, sR, sT0)); A("s_add_u32 s%d, s%d, s%d" % (sR, sR, sT1))
    else:
        if xmap == 2:
            A("s_lshr_b32 s%d, s2, 5" % sT0); A("s_add_u32 s%d, s2, s%d" % (sR, sT0))
        elif xmap == 3:
            A("s_bfe_u32 s%d, s2, 0x20003" % sT0); A("s_lshl_b32 s%d, s%d, 1" % (sT0, sT0)); A("s_add_u32 s%d, s2, s%d" % (sR, sT0))
        else: A("s_add_u32 s%d, s2, %d" % (sR, bshift))
        A("s_and_b32 s%d, s%d, 7" % (sR, sR)); A("s_lshl_b32 s%d, s%d, 2" % (sR, sR)); A("s_and_b32 s%d, s2, 0xe0" % sT0); A("s_add_u32 s%d, s%d, s%d" % (sR, sR, sT0))
        A("s_bfe_u32 s%d, s2, 0x20003" % sT0); A("s_add_u32 s%d, s%d, s%d" % (sR, sR, sT0))
    sRQ = sMB
    if xmap >= 4:
        A("s_and_b32 s%d, s2, 7" % sRQ); A("s_lshl_b32 s%d, s%d, 2" % (sRQ, sRQ)); A("s_and_b32 s%d, s2, 0xe0" % sT0); A("s_add_u32 s%d, s%d, s%d" % (sRQ, sRQ, sT0))
        A("s_bfe_u32 s%d, s2, 0x20003" % sT0); A("s_add_u32 s%d, s%d, s%d" % (sRQ, sRQ, sT0))
    elif qmap == 0: A("s_mov_b32 s%d, s%d" % (sRQ, sR))
    elif qmap == 1:
        A("s_and_b32 s%d, s2, 7" % sRQ); A("s_lshl_b32 s%d, s%d, 5" % (sRQ, sRQ)); A("s_lshr_b32 s%d, s2, 3" % sT0); A("s_add_u32 s%d, s%d, s%d" % (sRQ, sRQ, sT0))
    elif qmap == 2:
        A("s_lshr_b32 s%d, s%d, 3" % (sT0, sR)); A("s_and_b32 s%d, s%d, 0x1c" % (sT0, sT0)); A("s_add_u32 s%d, s%d, s%d" % (sT0, sT0, sR)); A("s_and_b32 s%d, s%d, 0x1c" % (sT0, sT0))
        A("s_and_b32 s%d, s%d, 0xe3" % (sRQ, sR)); A("s_or_b32 s%d, s%d, s%d" % (sRQ, sRQ, sT0))
    elif qmap == 4:
        A("s_lshr_b32 s%d, s%d, 5" % (sT0, sR)); A("s_lshl_b32 s%d, s%d, 1" % (sT0, sT0)); A("s_bfe_u32 s%d, s%d, 0x10001" % (sT1, sR)); A("s_add_u32 s%d, s%d, s%d" % (sT0, sT0, sT1))
        A("s_lshr_b32 s%d, s%d, 2" % (sT1, sT0)); A("s_lshl_b32 s%d, s%d, 1" % (sT1, sT1)); A("s_bfe_u32 s%d, s%d, 0x30002" % (sT2, sR)); A("s_add_u32 s%d, s%d, s%d" % (sT1, sT1, sT2))
        A("s_and_b32 s%d, s%d, 7" % (sT1, sT1)); A("s_lshl_b32 s%d, s%d, 3" % (sT0, sT0)); A("s_add_u32 s%d, s%d, s%d" % (sT0, sT0, sT1)); A("s_lshl_b32 s%d, s%d, 1" % (sT0, sT0))
        A("s_and_b32 s%d, s%d, 1" % (sT1, sR)); A("s_add_u32 s%d, s%d, s%d" % (sRQ, sT0, sT1))
    A("v_lshlrev_b32 v%d, 4, v0" % vL16); A("v_lshrrev_b32 v%d, 4, v0" % vG4); A("v_bfe_u32 v%d, v0, 2, 2" % vC4)
    A("v_and_b32 v%d, 3, v0" % vR4); A("v_and_b32 v%d, 15, v0" % vN16); A("v_mov_b32 v%d, 0x%x" % (vHI, HI)); A("v_mov_b32 v%d, 1" % vONE)
    A("s_mov_b32 s%d, 0x05040100" % sSELLO); A("s_mov_b32 s%d, 0x07060302" % sSELHI); A("s_mov_b32 s%d, 0xffff0000" % sMASK)
    A("s_mov_b32 s%d, 0x%x" % (sSCALE, f2u(128 ** -0.5))); A("s_mov_b32 s%d, 0x%x" % (sL2E, f2u(1.4426950408889634)))
    c0 = -2.0 * 0.7978845608028654 * 1.4426950408889634
    A("s_mov_b32 s%d, 0x%x" % (sC0, f2u(c0))); A("s_mov_b32 s%d, 0x%x" % (sC1, f2u(c0 * 0.044715)))
    A("s_lshr_b32 s%d, s%d, 5" % (sT0, sR)); A("s_lshl_b32 s%d, s%d, 15" % (sT0, sT0))
    A("s_and_b32 s%d, s%d, 31" % (sT1, sR)); A("s_lshl_b32 s%d, s%d, 8" % (sT1, sT1)); A("s_add_u32 s%d, s%d, s%d" % (sT0, sT0, sT1))
    A("s_add_u32 s%d, s%d, 0x%x" % (sOPOFF, sT0, WS_OP))
    A("s_and_b32 s%d, s%d, 7" % (sT0, sR)); A("s_lshl_b32 s%d, s%d, %d" % (sT0, sT0, 13 + spad))
    A("s_lshr_b32 s%d, s%d, 3" % (sT1, sR)); A("s_lshl_b32 s%d, s%d, %d" % (sT1, sT1, 6 + spad)); A("s_add_u32 s%d, s%d, s%d" % (sT0, sT0, sT1))
    A("s_add_u32 s%d, s%d, 0x%x" % (sSPOFF, sT0, WS_SP))
    A("s_lshr_b32 s%d, s%d, 2" % (sT0, sR)); A("s_lshl_b32 s%d, s%d, 7" % (sT0, sT0)); A("s_add_u32 s%d, s%d, 0x%x" % (sSTOFF, sT0, WS_ST))
    A("s_cmp_eq_u32 s%d, 4" % sWAVE); A("s_cbranch_scc1 L_loader")
    A("s_cmp_eq_u32 s%d, 5" % sWAVE); A("s_cbranch_scc1 L_comm")
    A("s_cmp_gt_u32 s%d, 5" % sWAVE); A("s_cbranch_scc1 L_mlp")

    vQ, vS, vTMP, vK = 32, 48, 112, 128
    vKA, vVA = 17, 17
    vM, vLs, vMO, vF, vOWA = 25, 26, 27, 28, 29
    vX = vS
    A("v_lshlrev_b32 v%d, 5, v0" % vT)
    A("v_lshrrev_b32 v%d, 1, v0" % (vT + 1)); A("v_lshlrev_b32 v%d, 13, v%d" % (vT + 1, vT + 1))
    A("v_and_b32 v%d, 1, v0" % (vT + 2)); A("v_lshl_add_u32 v%d, v%d, 4, v%d" % (vT + 1, vT + 2, vT + 1))
    A("s_lshl_b32 s%d, s%d, 11" % (sT2, sWAVE))
    A("s_lshl_b32 s%d, s%d, 20" % (sT0, sWAVE)); A("s_lshl_b32 s%d, s%d, 5" % (sT1, sRQ)); A("s_add_u32 s%d, s%d, s%d" % (sT0, sT0, sT1))
    A("s_lshl_b32 s%d, s%d, 13" % (sT1, sWAVE)); A("s_add_u32 s%d, s%d, %d" % (sT1, sT1, 12 * 8192))
    A("s_waitcnt lgkmcnt(0)")
    if ldst == 2: stamp(12)
    A("buffer_load_dwordx4 %s, v%d, %s, s%d offen" % (vr(vX, 4), vT, srd("X"), sT2))
    A("buffer_load_dwordx4 %s, v%d, %s, s%d offen offset:16" % (vr(vX + 4, 4), vT, srd("X"), sT2))
    nq0 = wqsplit if wqsplit else 4
    for a in range(nq0):
        A("s_add_u32 m0, s%d, %d" % (sT1, a * 1024))
        if 'q' in abl: A("buffer_load_dwordx4 v%d, %s, 0 offen lds" % (vL16, srd("X")))
        else: A("buffer_load_dwordx4 v%d, %s, s%d offen %s lds" % (vT + 1, srd("WQ"), sT0, polq))
        if a < 3: A("s_add_u32 s%d, s%d, 0x40000" % (sT0, sT0))
    if nq0 < 4: A("v_mov_b32 v31, v%d" % (vT + 1)); A("s_mov_b32 s12, s%d" % sT0)
    A("s_barrier")
    A("v_lshrrev_b32 v%d, 5, v0" % (vT + 3)); A("s_lshl_b32 s%d, s%d, 1" % (sT0, sWAVE)); A("v_add_u32 v%d, s%d, v%d" % (vT + 3, sT0, vT + 3))
    A("v_mul_u32_u24 v%d, %d, v%d" % (vT + 3, XN_STRIDE, vT + 3)); A("v_and_b32 v%d, 31, v0" % (vT + 4)); A("v_lshl_add_u32 v%d, v%d, 5, v%d" % (vT + 3, vT + 4, vT + 3))
    A("v_add_u32 v%d, v%d, v%d" % (vT + 3, vHI, vT + 3))
    A("v_and_b32 v%d, 7, v0" % (vT + 4)); A("v_mul_u32_u24 v%d, %d, v%d" % (vT + 4, XN_STRIDE, vT + 4)); A("v_lshl_add_u32 v%d, v%d, 4, v%d" % (vT + 4, vG4, vT + 4))
    A("s_lshl_b32 s%d, s%d, 8" % (sT0, sWAVE)); A("s_add_u32 s%d, s%d, %d" % (sT0, sT0, HI)); A("v_add_u32 v%d, s%d, v%d" % (vT + 4, sT0, vT + 4))
    A("v_lshlrev_b32 v%d, 8, v%d" % (vT + 5, vG4)); A("v_lshl_add_u32 v%d, v%d, 3, v%d" % (vT + 5, vN16, vT + 5)); A("v_add_u32 v%d, s%d, v%d" % (vT + 5, sT1, vT + 5))
    A("s_lshl_b32 s%d, s%d, 10" % (sT0, sWAVE)); A("s_add_u32 s%d, s%d, %d" % (sT0, sT0, HI)); A("v_add_u32 v%d, s%d, v%d" % (vT + 6, sT0, vL16))
    A("s_lshl_b32 s%d, s%d, 13" % (sT0, sWAVE)); A("v_lshlrev_b32 v%d, 8, v%d" % (vT, vN16)); A("v_add_u32 v%d, s%d, v%d" % (vT, sT0, vT))
    for m in range(4):
        A("v_add_u32 v%d, %d, v%d" % (vT + 1, 4 * m, vG4)); A("v_xor_b32 v%d, v%d, v%d" % (vT + 1, vT + 1, vN16))
        A("v_lshl_add_u32 v%d, v%d, 4, v%d" % (vKA + m, vT + 1, vT)); A("v_add_u32 v%d, 0x10000, v%d" % (vKA + 4 + m, vKA + m))
    A("s_lshl_b32 s%d, s%d, 2" % (sT0, sWAVE)); A("s_add_u32 s%d, s%d, %d" % (sT0, sT0, HI)); A("v_mov_b32 v%d, s%d" % (30, sT0))
    A("s_mov_b32 s%d, 0" % sFULL)
    A("s_waitcnt vmcnt(%d)" % nq0)
    for a in range(nq0, 4):
        A("s_add_u32 m0, s%d, %d" % (sT1, a * 1024))
        A("buffer_load_dwordx4 v31, %s, s12 offen %s lds" % (srd("WQ"), polq))
        if a < 3: A("s_add_u32 s12, s12, 0x40000")
    stamp(1)
    layernorm(vX, 8, vX + 8, vX + 24, vX + 40, 2)
    A("ds_write_b128 v%d, %s offset:%d" % (vT + 3, vr(vX, 4), L_XN)); A("ds_write_b128 v%d, %s offset:%d" % (vT + 3, vr(vX + 4, 4), L_XN + 16))
    lds_add(vHI, F_XN)
    A("s_waitcnt vmcnt(0)")
    for m in range(4):
        A("ds_read_b64_tr_b16 %s, v%d offset:%d" % (vr(vK + 4 * m, 2), vT + 5, m * 1024))
        A("ds_read_b64_tr_b16 %s, v%d offset:%d" % (vr(vK + 4 * m + 2, 2), vT + 5, m * 1024 + 128))
    lds_wait(F_XN, 4)
    for m in range(4): A("ds_read_b128 %s, v%d offset:%d" % (vr(vK + 16 + 4 * m, 4), vT + 4, L_XN + m * 64))
    for m in range(4):
        A("s_waitcnt lgkmcnt(%d)" % (3 - m))
        A("v_mfma_f32_16x16x32_bf16 %s, %s, %s, %s" % (vr(vTMP, 4), vr(vK + 4 * m, 4), vr(vK + 16 + 4 * m, 4), "0" if m == 0 else vr(vTMP, 4)))
    A("ds_write_b128 v%d, %s offset:%d" % (vT + 6, vr(vTMP, 4), L_QP))
    lds_add(vHI, F_QP)
    A("s_mov_b64 exec, 1"); A("ds_add_u32 v30, v%d offset:%d" % (vONE, F_FREED)); A("s_mov_b64 exec, -1")
    stamp(2)
    def wait_block(n4):
        A("s_add_u32 s%d, s%d, %d" % (sT0, sWAVE, 4 * n4 + 1))
        lds_wait(F_FULL, "s%d" % sT0, keep=sFULL)
    def read_k(j):
        base = vK + 32 * (j % 4)
        for t in range(2):
            for m in range(4):
                A("ds_read_b128 %s, v%d offset:%d" % (vr(base + 16 * t + 4 * m, 4), vKA + m + (4 if (j & 2) else 0), (j & 1) * 32768 + t * 4096))
    def qk_block(j):
        base = vK + 32 * (j % 4)
        for m in range(4):
            for t in range(2):
                acc = vr(vS + 8 * j + 4 * t, 4)
                A("v_mfma_f32_16x16x32_bf16 %s, %s, %s, %s" % (acc, vr(base + 16 * t + 4 * m, 4), vr(vQ + 4 * m, 4), "0" if m == 0 else acc))
    def round_block(j):
        for p in range(4):
            a, b, t = vS + 8 * j + 2 * p, vS + 8 * j + 2 * p + 1, vT + (p & 1)
            if mimic:
                A("v_cvt_pk_bf16_f32 v%d, v%d, v%d" % (t, a, b)); unpack(a, b, t)
            A("v_mul_f32 v%d, s%d, v%d" % (a, sSCALE, a)); A("v_mul_f32 v%d, s%d, v%d" % (b, sSCALE, b))
            if mimic:
                A("v_cvt_pk_bf16_f32 v%d, v%d, v%d" % (t, a, b)); unpack(a, b, t)
            if j == 0 and p == 0: A("v_max_f32 v%d, v%d, v%d" % (vM, a, b))
            else: A("v_max3_f32 v%d, v%d, v%d, v%d" % (vM, a, b, vM))
    for j in range(4):
        wait_block(j); read_k(j); lds_add(30, F_FREED)
    stamp(3)
    lds_wait(F_QR, 1)
    stamp(4)
    A("v_lshlrev_b32 v%d, 8, v%d" % (vT, vC4)); A("v_lshl_add_u32 v%d, v%d, 4, v%d" % (vT, vG4, vT)); A("v_add_u32 v%d, v%d, v%d" % (vT, vHI, vT))
    for m in range(4): A("ds_read_b128 %s, v%d offset:%d" % (vr(vQ + 4 * m, 4), vT, L_QB + m * 64))
    A("s_waitcnt lgkmcnt(0)")
    for j in range(4):
        qk_block(j)
        wait_block(4 + j); A("s_nop 3"); read_k(4 + j)
        if j >= 1: round_block(j - 1)
        lds_add(30, F_FREED)
    for j in range(4, 8):
        qk_block(j); round_block(j - 1)
    A("v_lshl_add_u32 v%d, v%d, 2, v%d" % (vT + 2, vG4, vC4))
    A("v_and_b32 v%d, 7, v%d" % (vT + 3, vT + 2)); A("v_lshlrev_b32 v%d, 1, v%d" % (vT + 3, vT + 3))
    A("v_lshrrev_b32 v%d, 1, v%d" % (vT + 4, vR4)); A("v_xor_b32 v%d, v%d, v%d" % (vT + 3, vT + 3, vT + 4))
    A("v_lshlrev_b32 v%d, 8, v%d" % (vT + 2, vT + 2)); A("v_lshl_add_u32 v%d, v%d, 4, v%d" % (vT + 2, vT + 3, vT + 2))
    A("v_and_b32 v%d, 1, v0" % (vT + 4)); A("v_lshl_add_u32 v%d, v%d, 3, v%d" % (vT + 2, vT + 4, vT + 2))
    A("s_lshl_b32 s%d, s%d, 13" % (sT0, sWAVE)); A("v_add_u32 v%d, s%d, v%d" % (vVA, sT0, vT + 2))
    for d in range(1, 8): A("v_xor_b32 v%d, %d, v%d" % (vVA + d, 32 * d, vVA))
    round_block(7)
    swap_red(vM, vT, "v_max_f32", 32); swap_red(vM, vT, "v_max_f32", 16)
    A("v_mul_f32 v%d, s%d, v%d" % (vM, sL2E, vM))
    A("v_lshlrev_b32 v%d, 4, v%d" % (vT + 1, vG4)); A("ds_bpermute_b32 v%d, v%d, v%d" % (vMO, vT + 1, vM))
    vP = vK
    for j in range(32):
        a, b = vS + 2 * j, vS + 2 * j + 1
        A("v_fma_f32 v%d, v%d, s%d, -v%d" % (a, a, sL2E, vM)); A("v_fma_f32 v%d, v%d, s%d, -v%d" % (b, b, sL2E, vM))
        A("v_exp_f32 v%d, v%d" % (a, a)); A("v_exp_f32 v%d, v%d" % (b, b))
        if j >= 1:
            pa, pb = a - 2, b - 2
            if j == 1: A("v_add_f32 v%d, v%d, v%d" % (vLs, pa, pb))
            else: A("v_add_f32 v%d, v%d, v%d" % (vLs, vLs, pa)); A("v_add_f32 v%d, v%d, v%d" % (vLs, vLs, pb))
            A("v_cvt_pk_bf16_f32 v%d, v%d, v%d" % (vP + j - 1, pa, pb))
    A("v_add_f32 v%d, v%d, v%d" % (vLs, vLs, vS + 62)); A("v_add_f32 v%d, v%d, v%d" % (vLs, vLs, vS + 63))
    A("v_cvt_pk_bf16_f32 v%d, v%d, v%d" % (vP + 31, vS + 62, vS + 63))
    swap_red(vLs, vT, "v_add_f32", 32); swap_red(vLs, vT, "v_add_f32", 16)
    A("s_lshl_b32 s%d, s%d, 5" % (sT0, sWAVE)); A("s_add_u32 s%d, s%d, %d" % (sT0, sT0, HI)); A("v_lshlrev_b32 v%d, 3, v%d" % (vT, vC4)); A("v_add_u32 v%d, s%d, v%d" % (vT, sT0, vT))
    A("v_mov_b32 v%d, v%d" % (vT + 2, vM)); A("v_mov_b32 v%d, v%d" % (vT + 3, vLs))
    A("s_mov_b64 exec, 0x1111"); A("ds_write_b64 v%d, %s offset:%d" % (vT, vr(vT + 2, 2), L_ST)); A("s_mov_b64 exec, -1")
    lds_add(vHI, F_ST)
    stamp(5)
    A("s_lshl_b32 s%d, s%d, 11" % (sT0, sWAVE)); A("s_add_u32 s%d, s%d, %d" % (sT0, sT0, HI + L_OW))
    A("v_lshlrev_b32 v%d, 9, v%d" % (vOWA, vG4)); A("v_lshl_add_u32 v%d, v%d, 2, v%d" % (vOWA, vN16, vOWA)); A("v_add_u32 v%d, s%d, v%d" % (vOWA, sT0, vOWA))
    vVB = vK + 32
    def read_v(j):
        base = vVB + 32 * (j & 1)
        for d in range(8):
            for t in range(2):
                A("ds_read_b64_tr_b16 %s, v%d offset:%d" % (vr(base + 4 * d + 2 * t, 2), vVA + d, (j & 1) * 32768 + t * 4096))
    def pv(j, d):
        base = vVB + 32 * (j & 1)
        acc = vr(vS + 4 * d, 4)
        A("v_mfma_f32_16x16x32_bf16 %s, %s, %s, %s" % (acc, vr(vP + 4 * j, 4), vr(base + 4 * d, 4), "0" if j == 0 else acc))
    vS2, vF2 = vS + 32, 31
    def factor(dst, m):
        lds_wait(F_GR, 1)
        A("v_lshl_add_u32 v%d, v%d, 3, v%d" % (vT, vG4, vHI)); A("ds_read_b64 %s, v%d offset:%d" % (vr(vT + 2, 2), vT, L_GS)); A("s_waitcnt lgkmcnt(0)")
        A("v_sub_f32 v%d, v%d, v%d" % (dst, m, vT + 2)); A("v_exp_f32 v%d, v%d" % (dst, dst)); A("v_mul_f32 v%d, v%d, v%d" % (dst, dst, vT + 3))
    def wait_pos(j, out):
        ok = A.label("pok"); again = A.label("pagain"); chk = A.label("pchk")
        A("s_add_u32 s%d, s%d, %d" % (sT0, sWAVE, 32 + 4 * j + 1))
        A("s_mov_b32 s%d, 0" % sSPIN)
        A("s_branch " + chk)
        A(again + ":")
        A("ds_read_b64 %s, v%d offset:%d" % (vr(vT + 2, 2), vHI, F_FULL)); A("s_waitcnt lgkmcnt(0)")
        A("v_readfirstlane_b32 s%d, v%d" % (sFULL, vT + 2)); A("v_readfirstlane_b32 s%d, v%d" % (sPLAN, vT + 3))
        A(chk + ":")
        A("s_cmp_ge_u32 s%d, s%d" % (sFULL, sT0)); A("s_cbranch_scc1 " + ok)
        A("s_sub_u32 s%d, s%d, 0x100" % (sT1, sPLAN)); A("s_cmp_le_u32 s%d, %d" % (sT1, j)); A("s_cbranch_scc1 " + out)
        A("s_add_u32 s%d, s%d, 1" % (sSPIN, sSPIN)); A("s_cmp_lt_u32 s%d, %d" % (sSPIN, lspin)); A("s_cbranch_scc1 " + again)
        A("s_branch " + out)
        A(ok + ":")
    if steal:
        lds_wait(F_AM, 1)
        A("v_lshrrev_b32 v%d, 2, v0" % vT); A("v_lshlrev_b32 v%d, 4, v%d" % (vT, vT))
        A("s_lshl_b32 s%d, s%d, 12" % (sT0, sR)); A("s_lshl_b32 s%d, s%d, 10" % (sT1, sWAVE)); A("s_add_u32 s%d, s%d, s%d" % (sT0, sT0, sT1)); A("s_add_u32 s%d, s%d, 0x%x" % (sT0, sT0, WS_PR))
        A("s_mov_b32 exec_lo, 0x11111111"); A("s_mov_b32 exec_hi, 0x11111111")
        for u in range(3): A("buffer_store_dwordx4 %s, v%d, %s, s%d offen offset:%d sc1" % (vr(vP + 4 * (5 + u), 4), vT, srd("WS"), sT0, 256 * u))
        A("s_mov_b64 exec, 0x1111")
        A("buffer_store_dword v%d, v0, %s, s%d offen offset:768 sc1" % (vM, srd("WS"), sT0))
        A("s_mov_b64 exec, -1")
        A("s_mov_b32 s%d, 0" % sPLAN)
    for j in range(11 if steal else 8):
        if j == 7:
            factor(vF, vMO)
            stamp(6)
        if j < NOWN: wait_block(8 + j)
        else: wait_pos(j, "L_vout%d" % j)
        if j == 7: stamp(7)
        if j >= 8:
            if j == 8:
                A("v_lshrrev_b32 v%d, 2, v0" % (vT + 4)); A("v_lshlrev_b32 v%d, 4, v%d" % (vT + 4, vT + 4))
                A("s_lshl_b32 s%d, s%d, 10" % (sT1, sWAVE)); A("s_add_u32 s%d, s%d, %d" % (sT1, sT1, HI + L_PP)); A("v_add_u32 v%d, s%d, v%d" % (vT + 4, sT1, vT + 4))
                A("v_lshl_add_u32 v%d, v%d, 2, s%d" % (vT + 5, vG4, sT1))
                for u in range(3): A("ds_read_b128 %s, v%d offset:%d" % (vr(vP + 4 * u, 4), vT + 4, 256 * (2 - u)))
                A("ds_read_b32 v%d, v%d offset:768" % (vF2, vT + 5)); A("s_waitcnt lgkmcnt(0)")
                factor(vF2, vF2)
        read_v(j)
        if j % 4 == 1:
            for d in range(8): A("v_add_u32 v%d, 0x10000, v%d" % (vVA + d, vVA + d))
        if j % 4 == 3 and (steal or j < 7):
            for d in range(8): A("v_subrev_u32 v%d, 0x10000, v%d" % (vVA + d, vVA + d))
        for d in range(8):
            A("s_waitcnt lgkmcnt(%d)" % (14 - 2 * d))
            if d == 7 and j < (7 if steal else 4):
                A("s_mov_b64 exec, 1"); A("ds_add_u32 v30, v%d offset:%d" % (vONE, F_FREED)); A("s_mov_b64 exec, -1")
            if j < 8: pv(j, d)
            else:
                acc = vr(vS2 + 4 * d, 4)
                A("v_mfma_f32_16x16x32_bf16 %s, %s, %s, %s" % (acc, vr(vP + 4 * (j - 8), 4), vr(vVB + 32 * (j & 1) + 4 * d, 4), "0" if j == 8 else acc))
    if steal:
        A("L_vout9:"); A("L_vout10:")
        A("s_nop 7")
        for d in range(8): A("v_mul_f32 v%d, v%d, v%d" % (vTMP + d, vF, vS + 4 * d))
        for d in range(8): A("v_fmac_f32 v%d, v%d, v%d" % (vTMP + d, vF2, vS2 + 4 * d))
        A("s_branch L_vsum")
        A("L_vout5:"); A("L_vout6:")
        factor(vF, vMO)
        A("L_vout7:"); A("L_vout8:")
        A("s_nop 7")
    for d in range(8): A("v_mul_f32 v%d, v%d, v%d" % (vTMP + d, vF, vS + 4 * d))
    if steal: A("L_vsum:")
    for d in range(0, 8, 2): A("ds_write2_b32 v%d, v%d, v%d offset0:%d offset1:%d" % (vOWA, vTMP + d, vTMP + d + 1, 16 * d, 16 * d + 16))
    vWOA, vOIR, vWO = 17, 18, vK
    A("v_lshlrev_b32 v%d, 7, v%d" % (vWOA, vC4)); A("v_lshl_add_u32 v%d, v%d, 10, v%d" % (vWOA, vG4, vWOA)); A("v_lshl_add_u32 v%d, v%d, 3, v%d" % (vWOA, vR4, vWOA))
    A("s_lshl_b32 s%d, s%d, 5" % (sT0, sWAVE)); A("s_add_u32 s%d, s%d, %d" % (sT0, sT0, HI + L_WO)); A("v_add_u32 v%d, s%d, v%d" % (vWOA, sT0, vWOA))
    A("s_waitcnt lgkmcnt(0)")
    A("s_barrier")
    stamp(8)
    def wo_reads():
        if wolate: lds_wait(F_WO, 1, sl=0)
        for m in range(4):
            A("ds_read_b64_tr_b16 %s, v%d offset:%d" % (vr(vWO + 4 * m, 2), vWOA, m * 4096))
            A("ds_read_b64_tr_b16 %s, v%d offset:%d" % (vr(vWO + 4 * m + 2, 2), vWOA, m * 4096 + 512))
    def oir_addr():
        A("v_lshrrev_b32 v%d, 1, v%d" % (vT, vN16)); A("v_lshlrev_b32 v%d, 10, v%d" % (vT, vT)); A("v_and_b32 v%d, 1, v0" % (vT + 1)); A("v_lshl_add_u32 v%d, v%d, 8, v%d" % (vT, vT + 1, vT))
        for m in range(4):
            A("v_add_u32 v%d, %d, v%d" % (vT + 1, 4 * m, vG4)); A("v_xor_b32 v%d, v%d, v%d" % (vT + 1, vT + 1, vN16))
            A("v_lshl_add_u32 v%d, v%d, 4, v%d" % (vOIR + m, vT + 1, vT))
        A("v_lshrrev_b32 v%d, 1, v%d" % (22, vN16)); A("v_lshlrev_b32 v22, %d, v22" % (16 + spad)); A("v_lshl_add_u32 v22, v%d, 4, v22" % vG4)
    A("s_cmp_gt_u32 s%d, 1" % sWAVE); A("s_cbranch_scc1 L_gather23")
    A("s_lshl_b32 s%d, s%d, 10" % (sT0, sWAVE)); A("s_add_u32 s%d, s%d, %d" % (sT0, sT0, HI + L_OW)); A("v_add_u32 v%d, s%d, v%d" % (vT, sT0, vL16))
    for w in range(4): A("ds_read_b128 %s, v%d offset:%d" % (vr(vS + 4 * w, 4), vT, w * 2048))
    A("v_lshrrev_b32 v%d, 5, v0" % (vT + 1)); A("v_lshlrev_b32 v%d, 13, v%d" % (vT + 1, vT + 1)); A("v_and_b32 v%d, 31, v0" % (vT + 2)); A("v_lshl_add_u32 v%d, v%d, 3, v%d" % (vT + 1, vT + 2, vT + 1))
    A("s_lshl_b32 s%d, s%d, 14" % (sT0, sWAVE)); A("s_add_u32 s%d, s%d, s%d" % (sT0, sT0, sOPOFF))
    A("s_waitcnt lgkmcnt(2)")
    for i in range(4): A("v_add_f32 v%d, v%d, v%d" % (vS + i, vS + i, vS + 4 + i))
    A("s_waitcnt lgkmcnt(0)")
    for i in range(4): A("v_add_f32 v%d, v%d, v%d" % (vS + 8 + i, vS + 8 + i, vS + 12 + i))
    for i in range(4): A("v_add_f32 v%d, v%d, v%d" % (vS + i, vS + i, vS + 8 + i))
    A("v_cvt_pk_bf16_f32 v%d, v%d, v%d" % (vTMP, vS, vS + 1)); A("v_cvt_pk_bf16_f32 v%d, v%d, v%d" % (vTMP + 1, vS + 2, vS + 3))
    A("buffer_store_dwordx2 %s, v%d, %s, s%d offen %s" % (vr(vTMP, 2), vT + 1, srd("WS"), sT0, ts))
    stamp(11)
    wo_reads(); oir_addr()
    A("s_branch L_barE_c")
    def gather(idx_sgpr, extra):
        vGa = 40
        A("s_lshr_b32 s%d, s%d, 3" % (sT1, sR)); A("s_lshl_b32 s%d, s%d, 13" % (sT1, sT1)); A("s_lshl_b32 s%d, s%d, 11" % (sT0, idx_sgpr))
        A("s_add_u32 s%d, s%d, s%d" % (sT1, sT1, sT0)); A("s_add_u32 s%d, s%d, 0x%x" % (sT1, sT1, WS_OP))
        lds_ = [(lambda: A("buffer_load_dwordx4 %s, v%d, %s, s%d offen %s" % (vr(vGa, 4), vL16, srd("WS"), sT1, tl)), list(range(vGa, vGa + 4))),
                (lambda: A("buffer_load_dwordx4 %s, v%d, %s, s%d offen offset:1024 %s" % (vr(vGa + 4, 4), vL16, srd("WS"), sT1, tl)), list(range(vGa + 4, vGa + 8)))]
        if td1: A("s_sleep %d" % td1)
        if at1:
            A("v_lshlrev_b32 v%d, 3, v0" % (vT + 7))
            apoll(vGa, vT + 7, sT1, 0, 0, first="only")
            extra()
            A("v_lshrrev_b32 v%d, 5, v0" % (vT + 2)); A("s_lshl_b32 s%d, s%d, 2" % (sT2, idx_sgpr)); A("v_add_u32 v%d, s%d, v%d" % (vT + 3, sT2, vT + 2))
            A("v_bfe_u32 v%d, v0, 1, 4" % (vT + 4)); A("v_xor_b32 v%d, v%d, v%d" % (vT + 3, vT + 3, vT + 4))
            A("v_lshlrev_b32 v%d, 8, v%d" % (vT + 2, vT + 2)); A("v_add_u32 v%d, s%d, v%d" % (vT + 2, sT0, vT + 2))
            A("v_and_b32 v%d, 1, v0" % (vT + 4)); A("v_lshl_add_u32 v%d, v%d, 3, v%d" % (vT + 2, vT + 4, vT + 2))
            A("v_lshl_add_u32 v%d, v%d, 4, v%d" % (vT + 5, vT + 3, vT + 2)); A("v_xor_b32 v%d, 32, v%d" % (vT + 6, vT + 5))
            apoll(vGa, vT + 7, sT1, 24, tsleep, first=False)
            stamp(11)
            for k in range(4): A("ds_write_b64 v%d, %s offset:%d" % (vT + 5 + (k >> 1), vr(vGa + 2 * k, 2), 512 * k))
            return
        for i_, _ in lds_: i_()
        A("v_and_b32 v%d, 1, v%d" % (vT + 2, vG4)); A("s_lshl_b32 s%d, s%d, 2" % (sT2, idx_sgpr)); A("v_add_u32 v%d, s%d, v%d" % (vT + 2, sT2, vT + 2))
        A("v_xor_b32 v%d, v%d, v%d" % (vT + 3, vT + 2, vN16)); A("v_xor_b32 v%d, 2, v%d" % (vT + 4, vT + 3))
        A("v_lshlrev_b32 v%d, 8, v%d" % (vT + 2, vG4)); A("v_add_u32 v%d, s%d, v%d" % (vT + 2, sT0, vT + 2))
        A("v_lshl_add_u32 v%d, v%d, 4, v%d" % (vT + 5, vT + 3, vT + 2)); A("v_lshl_add_u32 v%d, v%d, 4, v%d" % (vT + 6, vT + 4, vT + 2))
        extra()
        gpoll(lds_, first=False, sleep=tsleep, P=P1)
        stamp(11)
        A("ds_write_b128 v%d, %s" % (vT + 5, vr(vGa, 4))); A("ds_write_b128 v%d, %s offset:1024" % (vT + 6, vr(vGa + 4, 4)))
    A("L_gather23:")
    A("s_sub_u32 s%d, s%d, 2" % (sMU, sWAVE))
    gather(sMU, lambda: (wo_reads(), oir_addr()))
    A("L_barE_c:")
    A("s_waitcnt lgkmcnt(0)")
    A("s_barrier")
    stamp(9)
    for u in range(2):
        for m in range(4): A("ds_read_b128 %s, v%d offset:%d" % (vr(vS + 16 * u + 4 * m, 4), vOIR + m, u * 512))
    A("s_lshl_b32 s%d, s%d, %d" % (sT0, sWAVE, 11 + spad)); A("s_add_u32 s%d, s%d, s%d" % (sT0, sT0, sSPOFF))
    for u in range(2):
        for m in range(4):
            A("s_waitcnt lgkmcnt(%d)" % (7 - 4 * u - m))
            acc = vr(vTMP + 4 * u, 4)
            A("v_mfma_f32_16x16x32_bf16 %s, %s, %s, %s" % (acc, vr(vWO + 4 * m, 4), vr(vS + 16 * u + 4 * m, 4), "0" if m == 0 else acc))
    for i in range(4): A("v_add_f32 v%d, v%d, v%d" % (vTMP + i, vTMP + i, vTMP + 4 + i))
    for i in range(4): dpp("v_add_f32", vTMP + i, "quad_perm:[1,0,3,2]")
    A("s_mov_b32 exec_lo, 0x55555555"); A("s_mov_b32 exec_hi, 0x55555555")
    stamp(10)
    A("buffer_store_dwordx4 %s, v22, %s, s%d offen %s" % (vr(vTMP, 4), srd("WS"), sT0, ts))
    A("s_mov_b64 exec, -1")
    A("s_branch L_done")

    A("L_loader:")
    if ldprio: A("s_setprio %d" % ldprio)
    vO = 17
    A("v_lshlrev_b32 v%d, 8, v%d" % (vT, vG4))
    for i in range(4):
        A("v_add_u32 v%d, %d, v%d" % (vT + 1, 4 * i, vG4)); A("v_xor_b32 v%d, v%d, v%d" % (vT + 1, vT + 1, vN16)); A("v_lshl_add_u32 v%d, v%d, 4, v%d" % (vO + i, vT + 1, vT))
    for i in range(2):
        A("v_add_u32 v%d, %d, v%d" % (vT + 1, 4 * i, vG4)); A("v_lshlrev_b32 v%d, 1, v%d" % (vT + 1, vT + 1))
        A("v_xor_b32 v%d, v%d, v%d" % (vT + 1, vT + 1, vN16)); A("v_lshl_add_u32 v%d, v%d, 4, v%d" % (vO + 4 + i, vT + 1, vT))
    sG, sSLOT, sFR, sN = 12, 13, 88, 92
    A("s_bfe_u32 s%d, s%d, 0x30002" % (sBASE, sR)); A("s_lshl_b32 s%d, s%d, 23" % (sBASE, sBASE)); A("s_lshr_b32 s%d, s%d, 5" % (sT0, sR)); A("s_lshl_b32 s%d, s%d, 20" % (sT0, sT0))
    A("s_add_u32 s%d, s%d, s%d" % (sBASE, sBASE, sT0)); A("s_and_b32 s%d, s%d, 3" % (sT0, sR)); A("s_lshl_b32 s%d, s%d, 18" % (sT0, sT0)); A("s_add_u32 s%d, s%d, s%d" % (sBASE, sBASE, sT0))
    if rot:
        A("s_mov_b32 s94, s%d" % sBASE)
        A("s_mul_i32 s%d, s%d, %d" % (sT0, sR, rot)); A("s_lshr_b32 s%d, s%d, 5" % (sT1, sR)); A("s_add_u32 s%d, s%d, s%d" % (sT0, sT0, sT1))
        A("s_and_b32 s%d, s%d, 31" % (sT0, sT0)); A("s_lshl_b32 s%d, s%d, 13" % (sT0, sT0)); A("s_add_u32 s%d, s%d, s%d" % (sBASE, sBASE, sT0))
    if Fhi:
        A("s_and_b32 s%d, s2, 7" % sT0); A("s_lshr_b32 s%d, %d, s%d" % (sT0, himask, sT0)); A("s_and_b32 s%d, s%d, 1" % (sT0, sT0)); A("s_cselect_b32 s95, %d, %d" % (Fhi, F))
    A("s_mov_b32 s94, 0"); A("s_mov_b32 s93, 0"); A("s_mov_b32 s%d, s%d" % (sOFF, sBASE)); A("s_mov_b32 s%d, 0" % sG); A("s_mov_b32 s%d, 0" % sSLOT); A("s_mov_b32 s%d, 0" % sN)
    A("s_waitcnt lgkmcnt(0)")
    def publish_full(sgpr):
        A("v_mov_b32 v%d, s%d" % (vT, sgpr)); A("s_mov_b64 exec, 1"); A("ds_max_u32 v%d, v%d offset:%d" % (vHI, vT, F_FULL)); A("s_mov_b64 exec, -1")
    def dma_block(isk):
        Dm = D if isk else DV
        for half in range(2):
            A("s_mov_b32 m0, s%d" % sSLOT)
            if Dm: A("s_waitcnt vmcnt(%d)" % Dm)
            for i in range(4):
                A("buffer_load_dwordx4 v%d, %s, s%d offen offset:%d %s lds" % (vO + i if isk else vO + 4 + (i & 1), srd("K" if isk else "V"), sOFF, i * 1024, pol))
            A("s_add_u32 s%d, s%d, 4096" % (sOFF, sOFF)); A("s_add_u32 s%d, s%d, 4096" % (sSLOT, sSLOT))
            if Dm and (4 * half - Dm) % 8 < 4:
                A("s_add_i32 s%d, s%d, %d" % (sT0, sN, (4 * half - Dm) // 8)); A("s_max_i32 s%d, s%d, 0" % (sT0, sT0)); publish_full(sT0)
        if rot:
            A("s_and_b32 s%d, s%d, 0x3ffff" % (sOFF, sOFF)); A("s_or_b32 s%d, s%d, s94" % (sOFF, sOFF))
        A("s_and_b32 s%d, s%d, 0x1ffff" % (sSLOT, sSLOT)); A("s_add_u32 s%d, s%d, 1" % (sN, sN))
    if ldst == 2: stamp(1)
    for _ in range(pre): dma_block(True)
    A("s_barrier")
    if ldst == 2: stamp(2)
    for _ in range(4 - pre): dma_block(True)
    A("s_mov_b32 s%d, 1" % sG)
    if ldst == 2: stamp(3)
    def read_freed():
        A("ds_read_b128 %s, v%d offset:%d" % (vr(vT + 4, 4), vHI, F_FREED)); A("s_waitcnt lgkmcnt(0)")
        for c in range(4): A("v_readfirstlane_b32 s%d, v%d" % (sFR + c, vT + 4 + c))
    for isk, last in ((True, 8), (False, 19 if steal else 16)):
        loop = "L_ld_k" if isk else "L_ld_v"
        if not isk: A("s_mov_b32 s%d, s%d" % (sOFF, sBASE))
        A(loop + ":")
        if ldst == 1:
            for k, g in enumerate((2, 3, 4, 5, 6, 7) if isk else (8, 10, 12, 14)):
                sk = A.label("st"); A("s_cmp_lg_u32 s%d, %d" % (sG, g)); A("s_cbranch_scc1 " + sk); stamp(k + 1 if isk else k + 7); A(sk + ":")
        if steal and not isk:
            go = A.label("pgo"); again = A.label("pagain")
            A("s_cmp_lt_u32 s%d, %d" % (sG, 8 + NOWN)); A("s_cbranch_scc1 " + go)
            A("s_mov_b32 s%d, 0" % sSPIN); A("s_sub_u32 s%d, s%d, 8" % (sT1, sG))
            if ldst: A("s_memrealtime s[14:15]")
            A(again + ":")
            A("ds_read_b32 v%d, v%d offset:%d" % (vPOLL, vHI, F_PLAN)); A("s_waitcnt lgkmcnt(0)"); A("v_readfirstlane_b32 s%d, v%d" % (sT0, vPOLL))
            A("s_and_b32 s%d, s%d, 0xff" % (sT2, sT0)); A("s_cmp_gt_u32 s%d, s%d" % (sT2, sT1)); A("s_cbranch_scc1 L_granted")
            A("s_cmp_ge_u32 s%d, 0x100" % sT0); A("s_cbranch_scc1 L_ld_end")
            for k in range(F - 1, -1, -1):
                A("s_cmp_eq_u32 s%d, %d" % (sSPIN, F - 1 - k)); nx = A.label("nx"); A("s_cbranch_scc0 " + nx)
                A("s_sub_u32 s%d, s%d, %d" % (sT0, sN, k)); A("s_waitcnt vmcnt(%d)" % (8 * k)); publish_full(sT0); A(nx + ":")
            if ldst: A("s_add_u32 s93, s93, 1")
            A("s_add_u32 s%d, s%d, 1" % (sSPIN, sSPIN)); A("s_cmp_lt_u32 s%d, %d" % (sSPIN, lspin)); A("s_cbranch_scc1 " + again)
            A("s_branch L_ld_end")
            A("L_granted:")
            if ldst:
                A("s_memrealtime s[36:37]"); A("s_waitcnt lgkmcnt(0)"); A("s_sub_u32 s36, s36, s14"); A("s_add_u32 s94, s94, s36")
            A("s_cmp_lt_u32 s%d, 16" % sG); A("s_cbranch_scc1 " + go)
            A("s_sub_u32 s%d, 23, s%d" % (sT0, sG)); A("s_lshl_b32 s%d, s%d, 15" % (sT0, sT0)); A("s_xor_b32 s%d, s%d, 0x80000" % (sOFF, sBASE)); A("s_add_u32 s%d, s%d, s%d" % (sOFF, sOFF, sT0))
            A(go + ":")
        read_freed()
        A("s_sub_i32 s%d, s%d, 2" % (sT1, sG))
        if Fhi and hiend < 16:
            A("s_cmp_ge_u32 s%d, %d" % (sG, hiend)); A("s_cselect_b32 s95, %d, s95" % F)
        for c in range(4):
            go = A.label("go"); sl = A.label("slow")
            A("s_cmp_ge_i32 s%d, s%d" % (sFR + c, sT1)); A("s_cbranch_scc1 " + go)
            A("s_waitcnt vmcnt(0)"); publish_full(sN)
            if ldst: A("s_add_u32 s93, s93, 100")
            A("s_mov_b32 s%d, 0" % sSPIN)
            A(sl + ":")
            read_freed()
            A("s_cmp_ge_i32 s%d, s%d" % (sFR + c, sT1)); A("s_cbranch_scc1 " + go)
            A("s_add_u32 s%d, s%d, 1" % (sSPIN, sSPIN)); A("s_cmp_lt_u32 s%d, %d" % (sSPIN, lspin)); A("s_cbranch_scc1 " + sl)
            A(go + ":")
            dma_block(isk)
            if D: pass
            elif Fhi:
                hi = A.label("hi")
                A("s_sub_i32 s%d, s%d, s95" % (sT0, sN)); A("s_max_i32 s%d, s%d, 0" % (sT0, sT0))
                A("s_waitcnt vmcnt(%d)" % (8 * Fhi)); A("s_cmp_eq_u32 s95, %d" % Fhi); A("s_cbranch_scc1 " + hi)
                A("s_waitcnt vmcnt(%d)" % (8 * F)); A(hi + ":"); publish_full(sT0)
            else:
                A("s_sub_i32 s%d, s%d, %d" % (sT0, sN, F))
                if F > 5: A("s_max_i32 s%d, s%d, 0" % (sT0, sT0))
                A("s_waitcnt vmcnt(%d)" % (8 * F)); publish_full(sT0)
        if stamps:
            pass
        A("s_add_u32 s%d, s%d, 1" % (sG, sG)); A("s_cmp_lt_u32 s%d, %d" % (sG, last)); A("s_cbranch_scc1 " + loop)
        if not ldst: stamp(1 if isk else 2)
    def wo_dma():
        A("v_lshrrev_b32 v%d, 3, v0" % (vT + 4)); A("v_lshlrev_b32 v%d, 10, v%d" % (vT + 4, vT + 4)); A("v_and_b32 v%d, 7, v0" % (vT + 5)); A("v_lshl_add_u32 v%d, v%d, 4, v%d" % (vT + 4, vT + 5, vT + 4))
        A("s_lshr_b32 s%d, s%d, 3" % (sT0, sR)); A("s_lshl_b32 s%d, s%d, 17" % (sT0, sT0)); A("s_and_b32 s%d, s%d, 7" % (sT1, sR)); A("s_lshl_b32 s%d, s%d, 7" % (sT1, sT1))
        A("s_add_u32 s%d, s%d, s%d" % (sT0, sT0, sT1))
        for a in range(16):
            A("s_mov_b32 m0, %d" % (HI + L_WO + a * 1024))
            A("buffer_load_dwordx4 v%d, %s, s%d offen %s lds" % (vT + 4, srd("WO"), sT0, polo))
            if a < 15: A("s_add_u32 s%d, s%d, 0x2000" % (sT0, sT0))
    if steal:
        A("L_ld_end:")
        A("s_mov_b64 exec, 1"); A("ds_write_b32 v%d, v%d offset:%d" % (vHI, vONE, F_LI)); A("s_mov_b64 exec, -1")
    if wolate == 1: wo_dma()
    for k in range((DV + 4 + 7) // 8 - 1 if D else max(F, Fhi) - 1, -1, -1):
        A("s_sub_u32 s%d, s%d, %d" % (sT0, sN, k)); A("s_waitcnt vmcnt(%d)" % (8 * k + (16 if wolate == 1 else 0))); publish_full(sT0)
    if wolate == 1:
        if ldst: stamp(11)
        A("s_waitcnt vmcnt(0)"); A("s_mov_b64 exec, 1"); A("ds_write_b32 v%d, v%d offset:%d" % (vHI, vONE, F_WO)); A("s_mov_b64 exec, -1")
    if ldst:
        if wolate == 1: stamp(12)
        else:
            stamp(11)
            A("s_waitcnt lgkmcnt(0)"); A("s_mul_i32 s%d, s%d, 25" % (sT0, sN)); A("s_add_u32 s40, s16, s%d" % sT0); A("s_addc_u32 s41, s17, 0")
            if steal: A("s_add_u32 s36, s16, s94"); A("s_addc_u32 s37, s17, 0")
    else: stamp(3)
    if probe:
        A("s_memrealtime s[20:21]"); A("s_and_b32 s6, s2, 7"); A("s_lshr_b32 s6, %d, s6" % probe); A("s_and_b32 s6, s6, 1"); A("s_lshl_b32 s6, s6, 2"); A("s_add_u32 s6, s6, 4")
        A("s_waitcnt lgkmcnt(0)"); A("v_mov_b32 v8, s20"); A("s_mov_b64 exec, 1"); A("buffer_atomic_add v8, off, %s, s6" % srd("DBG")); A("s_mov_b64 exec, -1")
    A("s_waitcnt lgkmcnt(0)")
    A("s_branch L_done")

    def slot_addrs():
        A("v_lshlrev_b32 v28, 5, v0")
        A("s_and_b32 s%d, s%d, 3" % (sT0, sR)); A("s_lshl_b32 s%d, s%d, 3" % (sT0, sT0)); A("s_add_u32 s%d, s%d, s%d" % (sMU, sT0, sSTOFF))
    A("L_comm:")
    vZ = 20
    for i in range(4): A("v_mov_b32 v%d, 0" % (vZ + i))
    A("v_lshl_add_u32 v%d, v0, 2, v%d" % (vT, vHI))
    A("s_mov_b64 exec, 0xffff"); A("ds_write_b32 v%d, v%d offset:%d" % (vT, vZ, L_FLG)); A("s_mov_b64 exec, -1")
    slot_addrs()
    sEP = 4
    def epoch():
        A("s_waitcnt vmcnt(0)")
        A("v_readfirstlane_b32 s%d, v30" % sEP); A("v_readfirstlane_b32 s%d, v31" % (sEP + 1))
        A("s_add_u32 s%d, s%d, 0x%x" % (sEP, sEP, EP_STEP & 0xffffffff)); A("s_addc_u32 s%d, s%d, 0x%x" % (sEP + 1, sEP + 1, EP_STEP >> 32))
    A("s_waitcnt lgkmcnt(0)")
    A("buffer_load_dwordx2 v[30:31], off, %s, 0 offset:%d sc1" % (srd("WS"), WS_EP))
    A("s_barrier")
    A("v_add_u32 v%d, v%d, v%d" % (vT, vHI, vL16))
    A("v_and_b32 v29, 7, v0"); A("v_lshlrev_b32 v29, 14, v29"); A("v_lshl_add_u32 v29, v%d, 4, v29" % vG4)
    A("s_lshl_b32 s%d, s%d, 6" % (sT2, sRQ)); A("s_add_u32 s%d, s%d, 0x%x" % (sT2, sT2, WS_Q))
    A("s_bfe_u32 s%d, s%d, 0x30002" % (sT0, sR)); A("s_lshl_b32 s%d, s%d, 14" % (sT0, sT0)); A("s_lshr_b32 s%d, s%d, 5" % (sT1, sR)); A("s_lshl_b32 s%d, s%d, 11" % (sT1, sT1))
    A("s_add_u32 s%d, s%d, s%d" % (sT0, sT0, sT1)); A("s_add_u32 s%d, s%d, 0x%x" % (sT0, sT0, WS_Q))
    A("v_lshl_add_u32 v27, v0, 3, v%d" % vHI)
    epoch()
    A("v_mov_b32 v38, s%d" % sEP); A("v_mov_b32 v39, s%d" % (sEP + 1))
    stamp(1)
    lds_wait(F_QP, 4)
    for w in range(4): A("ds_read_b128 %s, v%d offset:%d" % (vr(40 + 4 * w, 4), vT, L_QP + w * 1024))
    A("s_waitcnt lgkmcnt(0)")
    for i in range(4): A("v_add_f32 v%d, v%d, v%d" % (40 + i, 40 + i, 44 + i)); A("v_add_f32 v%d, v%d, v%d" % (48 + i, 48 + i, 52 + i))
    for i in range(4): A("v_add_f32 v%d, v%d, v%d" % (40 + i, 40 + i, 48 + i))
    A("v_cvt_pk_bf16_f32 v36, v40, v41"); A("v_cvt_pk_bf16_f32 v37, v42, v43")
    A("s_mov_b32 exec_lo, 0x00ff00ff"); A("s_mov_b32 exec_hi, 0x00ff00ff")
    A("buffer_store_dwordx4 v[36:39], v29, %s, s%d offen sc1" % (srd("WS"), sT2))
    A("s_mov_b64 exec, -1")
    stamp(2)
    if qdelay: A("s_sleep %d" % qdelay)
    if qtrig: lds_wait(F_FULL, qtrig, sl=4)
    gpoll([(lambda: A("buffer_load_dwordx4 v[32:35], v%d, %s, s%d offen sc1" % (vL16, srd("WS"), sT0)), [32, 33, 34, 35]),
           (lambda: A("buffer_load_dwordx4 v[40:43], v%d, %s, s%d offen offset:1024 sc1" % (vL16, srd("WS"), sT0)), [40, 41, 42, 43])], sleep=qsleep, tag="s[%d:%d]" % (sEP, sEP + 1))
    A("ds_write_b64 v27, v[32:33] offset:%d" % L_QB); A("ds_write_b64 v27, v[40:41] offset:%d" % (L_QB + 512))
    lds_add(vHI, F_QR)
    stamp(4)
    def all_marked():
        A("v_lshlrev_b32 v%d, 5, v0" % (vT + 3))
        word_poll("buffer_load_dword v32, v%d, %s, 0 offen sc1" % (vT + 3, srd("DBG")), 32, "0xff", "v_cmp_gt_u32 vcc, 32, v%d", fsleep)
        stamp(3)
    all_marked()
    lds_add(vHI, F_AM)
    A("v_lshlrev_b32 v%d, 3, v%d" % (vT + 1, vN16)); A("v_add_u32 v%d, v%d, v%d" % (vT + 2, vHI, vT + 1))
    lds_wait(F_ST, 4)
    A("ds_read_b64 v[32:33], v%d offset:%d" % (vT + 2, L_ST)); A("s_waitcnt lgkmcnt(0)")
    def combine(modes):
        A("v_mov_b32 v34, v32")
        for m in modes: dpp("v_max_f32", 34, m)
        A("v_sub_f32 v32, v32, v34"); A("v_exp_f32 v32, v32"); A("v_mul_f32 v35, v32, v33")
        for m in modes: dpp("v_add_f32", 35, m)
    combine(("row_ror:4", "row_ror:8"))
    A("s_mov_b64 exec, 0xf"); A("buffer_store_dwordx2 v[34:35], v28, %s, s%d offen sc1" % (srd("WS"), sMU)); A("s_mov_b64 exec, -1")
    stamp(5)
    if sdelay: A("s_sleep %d" % sdelay)
    if strig:
        lds_wait(F_FULL, strig, sl=8)
    gpoll([(lambda: A("buffer_load_dwordx2 v[32:33], v%d, %s, s%d offen sc1" % (vT + 1, srd("WS"), sSTOFF)), [32, 33])], sleep=ssleep)
    combine(("quad_perm:[1,0,3,2]", "quad_perm:[2,3,0,1]"))
    A("v_rcp_f32 v35, v35"); A("v_lshl_add_u32 v%d, v%d, 3, v%d" % (vT + 2, vC4, vHI))
    A("s_mov_b64 exec, 0x1111"); A("ds_write_b64 v%d, v[34:35] offset:%d" % (vT + 2, L_GS)); A("s_mov_b64 exec, -1")
    lds_add(vHI, F_GR)
    stamp(6)
    A("s_mov_b32 s%d, 2" % sMU)
    A("L_gather56:")
    A("s_waitcnt lgkmcnt(0)")
    A("s_barrier")
    stamp(8)
    gather(sMU, lambda: None)
    A("s_waitcnt lgkmcnt(0)")
    A("s_barrier")
    stamp(9)
    A("s_branch L_done")

    A("L_mlp:")
    vW, vU = 32, 64
    def clean():
        A("s_cmp_lg_u32 s%d, 7" % sWAVE); A("s_cbranch_scc1 L_noclean")
        for i in range(4): A("v_mov_b32 v%d, -1" % (60 + i))
        slot_addrs()
        A("v_lshlrev_b32 v%d, 13, v%d" % (59, vG4)); A("v_lshl_add_u32 v%d, v%d, 4, v%d" % (59, vN16, 59))
        A("s_lshl_b32 s%d, s%d, %d" % (sT1, sR, 11 + spad)); A("s_add_u32 s%d, s%d, 0x%x" % (sT1, sT1, WS_SP))
        A("v_lshrrev_b32 v29, 2, v0"); A("v_lshlrev_b32 v29, %d, v29" % (6 + spad)); A("v_lshl_add_u32 v29, v%d, 4, v29" % vR4)
        A("s_waitcnt lgkmcnt(0)")
        A("buffer_load_dwordx2 v[30:31], off, %s, 0 offset:%d sc1" % (srd("WS"), WS_EP))
        A("s_mov_b64 exec, 0xf"); A("buffer_store_dwordx2 v[60:61], v28, %s, s%d offen sc1" % (srd("WS"), sMU)); A("s_mov_b64 exec, -1")
        A("buffer_store_dwordx4 v[60:63], v%d, %s, s%d offen sc1" % (59, srd("WS"), sOPOFF))
        A("buffer_store_dwordx4 v[60:63], v29, %s, s%d offen sc1" % (srd("WS"), sT1))
        A("buffer_store_dwordx4 v[60:63], v29, %s, s%d offen offset:%d sc1" % (srd("WS"), sT1, 1024 << spad))
        if steal:
            A("s_lshl_b32 s%d, s%d, 12" % (sT1, sR)); A("s_add_u32 s%d, s%d, 0x%x" % (sT1, sT1, WS_PR))
            for k in range(4): A("buffer_store_dwordx4 v[60:63], v%d, %s, s%d offen offset:%d sc1" % (vL16, srd("WS"), sT1, 1024 * k))
            A("s_lshl_b32 s%d, s%d, 7" % (sT1, sR)); A("s_add_u32 s%d, s%d, 0x%x" % (sT1, sT1, WS_CW))
            A("s_mov_b64 exec, 1"); A("buffer_store_dword v60, off, %s, s%d sc1" % (srd("WS"), sT1)); A("s_mov_b64 exec, -1")
        A("L_noclean:")
    def arrive(cnt, lbl):
        A("s_cmp_lg_u32 s%d, 7" % sWAVE); A("s_cbranch_scc1 " + lbl)
        A("s_lshr_b32 s%d, s%d, 5" % (sT3, sR)); A("s_lshl_b32 s%d, s%d, 5" % (sT3, sT3))
        A("s_mov_b64 exec, 1")
        A("s_waitcnt vmcnt(%d)" % cnt)
        A("buffer_atomic_add v%d, off, %s, s%d" % (vONE, srd("DBG"), sT3))
        A("s_mov_b64 exec, -1")
        stamp(4)
        A(lbl + ":")
    if not cllate: clean()
    A("s_sub_u32 s%d, s%d, 6" % (sMB, sWAVE))
    A("v_mul_u32_u24 v%d, 12, v0" % vT); A("s_mul_i32 s%d, s%d, 1792" % (sT1, sMB))
    A("s_waitcnt lgkmcnt(0)")
    A("s_load_dword s%d, s[%d:%d], 0" % (sB2, sB2P, sB2P + 1))
    A("s_barrier")
    for k, n in enumerate(("W1", "B1", "W2")):
        A("buffer_load_dwordx4 %s, v%d, %s, s%d offen" % (vr(vW + 8 * k, 4), vL16, srd(n), sT1))
        A("buffer_load_dwordx3 %s, v%d, %s, s%d offen offset:1024" % (vr(vW + 8 * k + 4, 3), vT, srd(n), sT1))
    if not cllate: arrive(6, "L_noflag")
    A("s_lshr_b32 s%d, s%d, 5" % (sT0, sR)); A("s_mul_i32 s%d, s%d, %d" % (sT0, sT0, XN_STRIDE)); A("s_add_u32 s%d, s%d, %d" % (sT0, sT0, HI)); A("v_add_u32 v%d, s%d, v%d" % (vT + 1, sT0, vL16))
    A("s_lshl_b32 s%d, s%d, 13" % (sT2, sMB)); A("s_add_u32 s%d, s%d, %d" % (sT2, sT2, HI + L_WO)); A("v_add_u32 v%d, s%d, v%d" % (vT + 2, sT2, vL16))
    A("s_and_b32 s%d, s%d, 31" % (sT0, sR)); A("s_lshl_b32 s%d, s%d, 5" % (sT0, sT0)); A("s_add_u32 s%d, s%d, s%d" % (sT0, sT0, sT2))
    A("v_lshlrev_b32 v%d, 1, v%d" % (vT + 3, vN16)); A("v_add_u32 v%d, s%d, v%d" % (vT + 3, sT0, vT + 3))
    lds_wait(F_XN, 4)
    if cllate: clean()
    vXm = 112
    A("ds_read_b128 %s, v%d offset:%d" % (vr(vXm, 4), vT + 1, L_XN)); A("s_waitcnt lgkmcnt(0)")
    layernorm(vXm, 4, vXm + 4, vXm + 12, vXm + 20, 1)
    A("ds_write_b128 v%d, %s" % (vT + 2, vr(vXm, 4)))
    vH = 24
    A("ds_read_u16 v%d, v%d" % (vH, vT + 3))
    A("v_lshrrev_b32 v%d, 3, v0" % (vT + 4)); A("v_lshlrev_b32 v%d, 10, v%d" % (vT + 4, vT + 4)); A("v_and_b32 v%d, 7, v0" % (vT + 5)); A("v_lshl_add_u32 v%d, v%d, 4, v%d" % (vT + 4, vT + 5, vT + 4))
    A("s_lshr_b32 s%d, s%d, 3" % (sT0, sR)); A("s_lshl_b32 s%d, s%d, 17" % (sT0, sT0)); A("s_and_b32 s%d, s%d, 7" % (sT1, sR)); A("s_lshl_b32 s%d, s%d, 7" % (sT1, sT1))
    A("s_add_u32 s%d, s%d, s%d" % (sT0, sT0, sT1)); A("s_lshl_b32 s%d, s%d, 16" % (sT1, sMB)); A("s_add_u32 s%d, s%d, s%d" % (sT0, sT0, sT1))
    A("s_waitcnt vmcnt(0) lgkmcnt(0)")
    if cllate: arrive(0, "L_noflag")
    for a in range(8):
        A("s_add_u32 m0, s%d, %d" % (sT2, a * 1024))
        if 'o' not in abl and not wolate: A("buffer_load_dwordx4 v%d, %s, s%d offen %s lds" % (vT + 4, srd("WO"), sT0, polo))
        if a < 7: A("s_add_u32 s%d, s%d, 0x2000" % (sT0, sT0))
    stamp(1)
    A("v_lshlrev_b32 v%d, 16, v%d" % (vH, vH))
    for k in range(3):
        for i in range(7): unpack(vU + 14 * k + 2 * i, vU + 14 * k + 2 * i + 1, vW + 8 * k + i)
    vC0, vACC, U, T_ = 25, 26, 112, 128
    A("v_mov_b32 v%d, s%d" % (vC0, sC0))
    A("s_lshl_b32 s%d, s%d, 6" % (sT0, sMB)); A("s_add_u32 s%d, s%d, %d" % (sT0, sT0, HI + L_YP)); A("v_mov_b32 v27, s%d" % sT0)
    A("s_mov_b32 s%d, 0" % sT1)
    A("s_nop 3")
    A("L_mlp_loop:")
    A("v_readlane_b32 s%d, v%d, s%d" % (sMU, vH, sT1))
    for t in range(14): A("v_fma_f32 v%d, s%d, v%d, v%d" % (U + t, sMU, vU + t, vU + 14 + t))
    for t in range(14): A("v_mul_f32 v%d, v%d, v%d" % (T_ + t, U + t, U + t))
    for t in range(14): A("v_fma_f32 v%d, v%d, s%d, v%d" % (T_ + t, T_ + t, sC1, vC0))
    for t in range(14): A("v_mul_f32 v%d, v%d, v%d" % (T_ + t, T_ + t, U + t))
    for t in range(14):
        A("v_exp_f32 v%d, v%d" % (T_ + t, T_ + t)); A("v_mul_f32 v%d, v%d, v%d" % (U + t, U + t, vU + 28 + t))
    for t in range(14): A("v_add_f32 v%d, 1.0, v%d" % (T_ + t, T_ + t))
    for t in range(14): A("v_rcp_f32 v%d, v%d" % (T_ + t, T_ + t))
    A("v_mul_f32 v%d, v%d, v%d" % (vACC, U, T_)); A("v_mul_f32 v%d, v%d, v%d" % (U, U + 1, T_ + 1))
    for t in range(2, 14): A("v_fmac_f32 v%d, v%d, v%d" % (vACC if t & 1 else U, U + t, T_ + t))
    A("v_add_f32 v%d, v%d, v%d" % (vACC, vACC, U))
    red16(vACC, "v_add_f32"); dpp("v_add_f32", vACC, "row_bcast:15", "0xa"); dpp("v_add_f32", vACC, "row_bcast:31", "0xc")
    A("s_mov_b32 exec_lo, 0"); A("s_mov_b32 exec_hi, 0x80000000")
    A("ds_write_b32 v27, v%d" % vACC); A("v_add_u32 v27, 4, v27")
    A("s_mov_b64 exec, -1")
    A("s_add_u32 s%d, s%d, 1" % (sT1, sT1)); A("s_cmp_lt_u32 s%d, 16" % sT1); A("s_cbranch_scc1 L_mlp_loop")
    stamp(2)
    A("s_waitcnt vmcnt(0)")
    A("s_mov_b32 s%d, 3" % sMU)
    if steal:
        A("s_cmp_eq_u32 s%d, 7" % sWAVE); A("s_cbranch_scc1 L_final")
        lds_wait(F_AM, 1, sl=8)
        sCW = 4
        A("s_lshl_b32 s%d, s%d, 7" % (sCW, sR)); A("s_add_u32 s%d, s%d, 0x%x" % (sCW, sCW, WS_CW))
        def set_plan(val):
            A("v_mov_b32 v%d, %s" % (vT, val)); A("s_mov_b64 exec, 1"); A("ds_write_b32 v%d, v%d offset:%d" % (vHI, vT, F_PLAN)); A("s_mov_b64 exec, -1")
        for k in range(5, 11):
            if k == 8:
                A("s_xor_b32 s%d, s%d, 0x100" % (sCW, sCW))
            if k == 8:
                A("s_xor_b32 s%d, s%d, 2" % (sT1, sR)); A("s_lshl_b32 s%d, s%d, 12" % (sT1, sT1)); A("s_add_u32 s%d, s%d, 0x%x" % (sT1, sT1, WS_PR))
                A("v_add_u32 v%d, v%d, v%d" % (vT + 1, vHI, vL16))
                rec = [((lambda q=q: A("buffer_load_dwordx4 %s, v%d, %s, s%d offen offset:%d sc1" % (vr(36 + 4 * q, 4), vL16, srd("WS"), sT1, 1024 * q))), list(range(36 + 4 * q, 40 + 4 * q))) for q in range(4)]
                lds_wait(F_FULL, rtrig, sl=2)
                A("s_mov_b32 exec_hi, 0x1ffff")
                for i_, _ in rec: i_()
                A("s_mov_b64 exec, -1")
            lds_wait(F_FULL, 4 * k + cth + (bias if k >= 8 else 0), sl=2)
            A("v_mov_b32 v32, 1"); A("s_mov_b64 exec, 1")
            A("buffer_atomic_add v32, off, %s, s%d sc0" % (srd("WS"), sCW))
            A("s_mov_b64 exec, -1")
            A("s_mov_b32 s%d, 0x%x" % (sT2, 0x100 + k))
            A("s_waitcnt vmcnt(0)")
            A("v_readfirstlane_b32 s%d, v32" % sT0); A("s_add_u32 s%d, s%d, 1" % (sT0, sT0))
            if stamps and k < 9: stamp(k - 2)
            A("s_cmp_ge_u32 s%d, 3" % sT0); A("s_cbranch_scc1 L_close")
            if k == 8:
                A("s_mov_b32 exec_hi, 0x1ffff")
                gpoll(rec[:2], first=False, sleep=8, full="PARTIAL"); gpoll(rec[2:], first=False, sleep=8, full="PARTIAL")
                for q in range(4): A("ds_write_b128 v%d, %s offset:%d" % (vT + 1, vr(36 + 4 * q, 4), L_PP + 1024 * q))
                A("s_mov_b64 exec, -1")
                A("s_waitcnt lgkmcnt(0)")
            set_plan("%d" % (k + 1))
        A("s_mov_b32 s%d, 0x%x" % (sT2, 0x100 + 11))
        A("L_close:")
        set_plan("s%d" % sT2)
        A("s_branch L_gather56")
        A("L_final:")
    else:
        A("s_cmp_eq_u32 s%d, 6" % sWAVE); A("s_cbranch_scc1 L_gather56")
    if at2:
        A("v_and_b32 v%d, 7, v0" % (vT + 1)); A("v_lshrrev_b32 v%d, 5, v0" % (vT + 2)); A("v_lshl_add_u32 v%d, v%d, 1, v%d" % (vT + 1, vT + 1, vT + 2))
    else: A("v_lshl_add_u32 v%d, v%d, 2, v%d" % (vT + 1, vR4, vG4))
    A("v_lshlrev_b32 v%d, 1, v%d" % (vT + 2, vT + 1)); A("s_lshl_b32 s%d, s%d, 5" % (sT0, sR))
    A("buffer_load_ushort v%d, v%d, %s, s%d offen" % (vT + 3, vT + 2, srd("X"), sT0))
    A("v_lshl_add_u32 v%d, v%d, 2, v%d" % (vT + 1, vT + 1, vHI))
    A("s_lshl_b32 s%d, s%d, %d" % (sT1, sR, 11 + spad)); A("s_add_u32 s%d, s%d, 0x%x" % (sT1, sT1, WS_SP))
    A("v_lshrrev_b32 v29, 2, v0"); A("v_lshlrev_b32 v29, %d, v29" % (6 + spad)); A("v_lshl_add_u32 v29, v%d, 4, v29" % vR4)
    if wolate == 2:
        A("s_mov_b32 s12, s%d" % sT0); A("s_mov_b32 s13, s%d" % sT1)
        if steal: lds_wait(F_LI, 1, sl=2)
        else: lds_wait(F_FULL, wotrig, sl=2)
        wo_dma()
        A("s_mov_b32 s%d, s12" % sT0); A("s_mov_b32 s%d, s13" % sT1)
    A("s_waitcnt lgkmcnt(0)")
    A("s_barrier")
    stamp(8)
    A("ds_read_b32 v40, v%d offset:%d" % (vT + 1, L_YP)); A("ds_read_b32 v41, v%d offset:%d" % (vT + 1, L_YP + 64)); A("s_waitcnt lgkmcnt(0)")
    A("v_add_f32 v40, v40, v41"); rbf(40)
    A("s_lshl_b32 s%d, s%d, 16" % (sB2, sB2)); A("v_add_f32 v40, s%d, v40" % sB2); rbf(40)
    A("v_mul_f32 v41, s%d, v40" % sL2E); A("v_exp_f32 v41, -v41"); A("v_add_f32 v41, 1.0, v41"); A("v_rcp_f32 v41, v41"); A("v_mul_f32 v40, v40, v41"); rbf(40)
    A("s_waitcnt vmcnt(0)"); A("v_lshlrev_b32 v%d, 16, v%d" % (vT + 3, vT + 3))
    if wolate == 2:
        A("s_mov_b64 exec, 1"); A("ds_write_b32 v%d, v%d offset:%d" % (vHI, vONE, F_WO)); A("s_mov_b64 exec, -1")
        stamp(11)
    A("s_barrier")
    stamp(9)
    if td2: A("s_sleep %d" % td2)
    if at2:
        A("v_lshlrev_b32 v29, 3, v0")
        apoll(32, 29, sT1, 44, tsleep2)
        stamp(10)
        A("v_add_f32 v44, v32, v34"); A("v_add_f32 v45, v33, v35"); A("v_add_f32 v46, v36, v38"); A("v_add_f32 v47, v37, v39")
        A("v_add_f32 v44, v44, v46"); A("v_add_f32 v45, v45, v47")
        A("v_permlane32_swap_b32 v44, v45"); A("v_add_f32 v44, v44, v45")
        swap_red(44, 45, "v_add_f32", 16)
        dpp("v_add_f32", 44, "row_ror:8")
    else:
        gpoll([(lambda: A("buffer_load_dwordx4 v[32:35], v29, %s, s%d offen %s" % (srd("WS"), sT1, tl)), [32, 33, 34, 35]),
               (lambda: A("buffer_load_dwordx4 v[36:39], v29, %s, s%d offen offset:%d %s" % (srd("WS"), sT1, 1024 << spad, tl)), [36, 37, 38, 39])], sleep=tsleep2, P=P2)
        stamp(10)
        for i in range(4): A("v_add_f32 v%d, v%d, v%d" % (44 + i, 32 + i, 36 + i))
        A("v_permlane32_swap_b32 v44, v46"); A("v_permlane32_swap_b32 v45, v47")
        A("v_add_f32 v44, v44, v46"); A("v_add_f32 v45, v45, v47")
        A("v_permlane16_swap_b32 v44, v45"); A("v_add_f32 v44, v44, v45")
        dpp("v_add_f32", 44, "row_ror:8"); dpp("v_add_f32", 44, "row_ror:4")
    rbf(44); A("v_mul_f32 v44, v44, v40"); rbf(44)
    A("v_add_f32 v44, v44, v%d" % (vT + 3)); A("v_cvt_pk_bf16_f32 v44, v44, v44")
    em = "0xff" if at2 else "0x000f000f"
    A("s_mov_b32 exec_lo, %s" % em); A("s_mov_b32 exec_hi, %s" % em)
    A("buffer_store_short v44, v%d, %s, s%d offen" % (vT + 2, srd("OUT"), sT0))
    A("s_mov_b64 exec, -1")
    A("s_cmp_lg_u32 s%d, 0" % sR); A("s_cbranch_scc1 L_done")
    epoch()
    A("v_mov_b32 v30, s%d" % sEP); A("v_mov_b32 v31, s%d" % (sEP + 1)); A("s_mov_b64 exec, 1")
    A("buffer_store_dwordx2 v[30:31], off, %s, 0 offset:%d sc1" % (srd("WS"), WS_EP))
    A("s_mov_b64 exec, -1")
    if probe:
        A("buffer_load_dwordx2 v[30:31], off, %s, 0 offset:4 sc1" % srd("DBG")); A("s_memrealtime s[16:17]"); A("s_waitcnt vmcnt(0) lgkmcnt(0)")
        A("v_readfirstlane_b32 s6, v30"); A("v_readfirstlane_b32 s7, v31"); A("s_sub_i32 s6, s6, s7"); A("s_abs_i32 s6, s6"); A("s_lshr_b32 s6, s6, 4"); A("s_min_u32 s6, s6, 20000")
        A("s_add_u32 s16, s16, s6")
        A("L_pad2:"); A("s_memrealtime s[18:19]"); A("s_waitcnt lgkmcnt(0)"); A("s_sub_u32 s18, s18, s16"); A("s_cmp_lt_i32 s18, 0"); A("s_cbranch_scc1 L_pad2")
    A("L_done:")
    A("s_waitcnt vmcnt(0)")
    if pad:
        A("s_waitcnt lgkmcnt(0)"); A("s_add_u32 s16, s16, %d" % pad)
        A("L_pad:"); A("s_memrealtime s[18:19]"); A("s_waitcnt lgkmcnt(0)"); A("s_sub_u32 s18, s18, s16"); A("s_cmp_lt_i32 s18, 0"); A("s_cbranch_scc1 L_pad")
    if stamps:
        A("s_waitcnt vmcnt(0)")
        stamp(NST - 1)
        A("s_waitcnt lgkmcnt(0)")
        A("s_lshl_b32 s%d, s2, 3" % sT0); A("s_add_u32 s%d, s%d, s%d" % (sT0, sT0, sWAVE)); A("s_mul_i32 s%d, s%d, %d" % (sT0, sT0, NST * 8)); A("s_add_u32 s%d, s%d, 0x%x" % (sT0, sT0, WS_STAMP))
        A("s_mov_b64 exec, 1")
        for k in range(NST):
            A("v_mov_b32 v2, s%d" % (16 + 2 * k)); A("v_mov_b32 v3, s%d" % (17 + 2 * k))
            A("buffer_store_dwordx2 v[2:3], off, %s, s%d offset:%d" % (srd("WS"), sT0, k * 8)); A("s_nop 1")
    A("L_end:")
    A("s_endpgm")
    body = A.finalize()
    hdr = open("recurrent_scan__gqa_block_cached__mixer_token_mlp__decode.s.ref").read().split("; Override launch")[0]
    s = hdr + "; @launch grid=(256,1,1) block=(512,1,1) lds=%d\n" % LDS_BYTES
    s += '.amdgcn_target "amdgcn-amd-amdhsa--gfx950"\n.text\n.globl %s\n.p2align 8\n.type %s,@function\n%s:\n' % (NAME, NAME, NAME)
    s += body
    s += '.section .rodata,"a"\n.p2align 6\n.amdhsa_kernel %s\n  .amdhsa_next_free_vgpr 256\n  .amdhsa_next_free_sgpr 102\n  .amdhsa_accum_offset 256\n' % NAME
    s += "  .amdhsa_group_segment_fixed_size 0\n  .amdhsa_kernarg_size 104\n  .amdhsa_user_sgpr_count 2\n  .amdhsa_user_sgpr_kernarg_segment_ptr 1\n  .amdhsa_system_sgpr_workgroup_id_x 1\n.end_amdhsa_kernel\n"
    return s, A

if __name__ == "__main__":
    out = sys.argv[1]
    kw = {}
    for p in sys.argv[2:]:
        k, v = p.split("=")
        kw[k] = int(v) if v.lstrip("-").isdigit() else v.replace("+", " ")
    s, A = gen(**kw)
    open(out, "w").write(s)
    print("wrote", out, "instructions", len(A.ins), "nops", A.nops, "lds", LDS_BYTES)
```

```python
import sys, struct
from asmlib import Asm

NAME = "recurrent_scan__gqa_block_cached__mixer_token_mlp__decode_kernel"
def f2u(x): return struct.unpack("<I", struct.pack("<f", x))[0]

WS_ST, WS_OP, WS_SP, WS_Q, WS_EP = 0x10000, 0x20000, 0x100000, 0x60000, 0x0
WS_CW, WS_PR = 0x80000, 0x200000
EP_STEP = 0x9E3779B97F4A7C15
WS_STAMP = 128 << 20
HI = 131072
L_WO = 0
L_XN, XN_STRIDE = 16384, 1040
L_OW = L_XN
L_QP = 24704
L_QB = 28800
L_FLG = 29824
L_ST = L_FLG + 64
L_GS = L_ST + 128
L_YP = L_GS + 32
LDS_BYTES = HI + L_YP + 128
F_FULL, F_FREED, F_XN, F_QP, F_QR, F_ST, F_GR, F_WO, F_AM, F_PLAN, F_LI = [L_FLG + 4 * i for i in (0, 4, 8, 9, 10, 11, 12, 13, 14, 1, 15)]
L_PP = L_QP

sWAVE, sBASE, sOFF = 3, 4, 5
sT0, sT1, sT2 = 6, 7, 8
sR, sSPIN, sT3 = 9, 10, 11
sMU, sMB = 14, 15
SRD = dict(K=44, V=48, X=52, WQ=56, WO=60, W1=64, B1=68, W2=72, OUT=76, DBG=80, WS=84)
KARG = dict(X=0, K=8, V=16, WQ=24, WO=32, W1=48, B1=56, W2=64, OUT=80, DBG=88, WS=96)
SIZE = dict(X=8192, K=1 << 26, V=1 << 26, WQ=1 << 22, WO=1 << 22, W1=3584, B1=3584, W2=3584, OUT=8192, DBG=256, WS=1 << 28)
sSELLO, sSELHI, sMASK, sSCALE, sL2E, sC0, sC1, sB2, sB2P = 88, 89, 90, 91, 92, 93, 94, 95, 96
sOPOFF, sSPOFF, sSTOFF, sFULL = 98, 99, 100, 101
def srd(n): return "s[%d:%d]" % (SRD[n], SRD[n] + 3)
def vr(a, n=1): return "v%d" % a if n == 1 else "v[%d:%d]" % (a, a + n - 1)
vL16, vG4, vC4, vR4, vN16, vHI, vONE = 1, 2, 3, 4, 5, 6, 7
vT = 8
vPOLL = 16

def gen(F=4, stamps=0, pol="nt", spin=1 << 17, lspin=1 << 22, mimic=1, pre=0, lsleep=1, ldprio=3, fsleep=8, qsleep=2, ssleep=8, tsleep=0, xmap=1, polq=None, polo=None, ldst=0, abl='', rot=0, pad=0, P1=1, P2=1, pd=5, qmap=0, tl='sc1', ts='sc1', tsleep2=None, Fhi=0, himask=0xf8, hiend=16, spad=0, at2=1, td2=8, td1=0, at1=0, qdelay=0, sdelay=0, qtrig=8, strig=48, bshift=0, wolate=2, wqsplit=0, wotrig=60, D=0, DV=0, probe=0, steal=0, cth=23, cllate=0, bias=0, rtrig=48, pa=-1, pb=-1, pspan=0):
    NOWN = 5 if steal else 8
    sPLAN = 13
    DV = DV if DV else D
    tsleep2 = tsleep if tsleep2 is None else tsleep2
    polq = pol if polq is None else polq.replace('def', '')
    polo = pol if polo is None else polo.replace('def', '')
    A = Asm()
    NST = 14
    def stamp(k):
        if stamps: A("s_memrealtime s[%d:%d]" % (16 + 2 * k, 17 + 2 * k))
    QUADS = ("quad_perm:[1,0,3,2]", "quad_perm:[2,3,0,1]", "row_half_mirror", "row_mirror")
    def dpp(op, v, m, rm="0xf"): A("%s_dpp v%d, v%d, v%d %s row_mask:%s bank_mask:0xf" % (op, v, v, v, m, rm))
    def red16(v, op):
        for m in QUADS: dpp(op, v, m)
    def swap_red(v, t, op, which):
        A("v_mov_b32 v%d, v%d" % (t, v)); A("v_permlane%d_swap_b32 v%d, v%d" % (which, v, t)); A("%s v%d, v%d, v%d" % (op, v, v, t))
    def rbf(v):
        A("v_cvt_pk_bf16_f32 v%d, v%d, v%d" % (v, v, v)); A("v_lshlrev_b32 v%d, 16, v%d" % (v, v))
    def unpack(dlo, dhi, src):
        A("v_lshlrev_b32 v%d, 16, v%d" % (dlo, src)); A("v_and_b32 v%d, s%d, v%d" % (dhi, sMASK, src))
    def layernorm(pk, n, x, d, t, halves):
        def allred(v):
            red16(v, "v_add_f32"); swap_red(v, t + 2, "v_add_f32", 16)
            if halves == 1: swap_red(v, t + 2, "v_add_f32", 32)
        for i in range(n): unpack(x + 2 * i, x + 2 * i + 1, pk + i)
        A("v_add_f32 v%d, v%d, v%d" % (t, x, x + 1)); A("v_add_f32 v%d, v%d, v%d" % (t + 1, x + 2, x + 3))
        for i in range(4, 2 * n): A("v_add_f32 v%d, v%d, v%d" % (t + (i & 1), t + (i & 1), x + i))
        A("v_add_f32 v%d, v%d, v%d" % (t, t, t + 1))
        allred(t)
        A("v_mul_f32 v%d, 0x3b000000, v%d" % (t, t))
        A("v_cvt_pk_bf16_f32 v%d, v%d, v%d" % (t + 1, t, t))
        for i in range(2 * n): A("v_sub_f32 v%d, v%d, v%d" % (d + i, x + i, t))
        A("v_lshlrev_b32 v%d, 16, v%d" % (t + 1, t + 1))
        A("v_mul_f32 v%d, v%d, v%d" % (t, d, d)); A("v_mul_f32 v%d, v%d, v%d" % (d, d + 1, d + 1))
        for i in range(2, 2 * n): A("v_fmac_f32 v%d, v%d, v%d" % (t if i & 1 else d, d + i, d + i))
        A("v_add_f32 v%d, v%d, v%d" % (t, t, d))
        for i in range(2 * n): A("v_sub_f32 v%d, v%d, v%d" % (x + i, x + i, t + 1))
        allred(t)
        for i in range(n): A("v_cvt_pk_bf16_f32 v%d, v%d, v%d" % (pk + i, x + 2 * i, x + 2 * i + 1))
        A("v_mul_f32 v%d, 0x3b000000, v%d" % (t, t)); rbf(t)
        A("v_add_f32 v%d, 0x%x, v%d" % (t, f2u(1e-5), t)); rbf(t)
        A("v_sqrt_f32 v%d, v%d" % (t, t)); rbf(t)
        A("v_rcp_f32 v%d, v%d" % (t, t))
        for i in range(n): unpack(x + 2 * i, x + 2 * i + 1, pk + i)
        for i in range(2 * n): A("v_mul_f32 v%d, v%d, v%d" % (x + i, t, x + i))
        for i in range(n): A("v_cvt_pk_bf16_f32 v%d, v%d, v%d" % (pk + i, x + 2 * i, x + 2 * i + 1))
    def lds_wait(flag, val, keep=None, sl=None):
        ok = A.label("lok"); again = A.label("lagain")
        dst = keep if keep is not None else sT3
        if keep is not None:
            A("s_cmp_ge_u32 s%d, %s" % (keep, val)); A("s_cbranch_scc1 " + ok)
        A("s_mov_b32 s%d, 0" % sSPIN)
        A(again + ":")
        A("ds_read_b32 v%d, v%d offset:%d" % (vPOLL, vHI, flag)); A("s_waitcnt lgkmcnt(0)")
        A("v_readfirstlane_b32 s%d, v%d" % (dst, vPOLL))
        A("s_cmp_ge_u32 s%d, %s" % (dst, val)); A("s_cbranch_scc1 " + ok)
        if sl is None: sl = lsleep
        if sl: A("s_sleep %d" % sl)
        A("s_add_u32 s%d, s%d, 1" % (sSPIN, sSPIN)); A("s_cmp_lt_u32 s%d, %d" % (sSPIN, lspin)); A("s_cbranch_scc1 " + again)
        A(ok + ":")
    def lds_add(flag_addr_reg, off):
        A("s_waitcnt lgkmcnt(0)")
        A("s_mov_b64 exec, 1"); A("ds_add_u32 v%d, v%d offset:%d" % (flag_addr_reg, vONE, off)); A("s_mov_b64 exec, -1")
    def gpoll(loads, first=True, sleep=0, full="-1", tag=None, P=1):
        ok = A.label("ok"); again = A.label("again")
        masks = ["vcc", "s[12:13]"]
        A("s_mov_b32 s%d, 0" % sSPIN)
        if first:
            for issue, regs in loads: issue()
        for _ in range(P - 1):
            A("s_sleep %d" % pd)
            for issue, regs in loads: issue()
        A(again + ":")
        A("s_waitcnt vmcnt(%d)" % (len(loads) * (P - 1)))
        for (issue, regs), mk in zip(loads, masks):
            t = vT + 7
            if tag is not None:
                A("v_cmp_ne_u64 %s, %s, v[%d:%d]" % (mk, tag, regs[2], regs[3])); continue
            if len(regs) == 2: A("v_max_u32 v%d, v%d, v%d" % (t, regs[0], regs[1]))
            else:
                A("v_max3_u32 v%d, v%d, v%d, v%d" % (t, regs[0], regs[1], regs[2])); A("v_max_u32 v%d, v%d, v%d" % (t, t, regs[3]))
            A("v_cmp_eq_u32 %s, -1, v%d" % (mk, t))
        if len(loads) == 2:
            A("s_or_b32 s%d, vcc_lo, vcc_hi" % sT3); A("s_or_b32 s%d, s%d, s12" % (sT3, sT3)); A("s_or_b32 s%d, s%d, s13" % (sT3, sT3))
        else:
            A("s_or_b32 s%d, vcc_lo, vcc_hi" % sT3)
        A("s_cbranch_scc0 " + ok)
        if sleep: A("s_sleep %d" % sleep)
        for (issue, regs), mk in zip(loads, masks):
            A("s_mov_b64 exec, %s" % mk); issue()
        if full == "PARTIAL": A("s_mov_b32 exec_lo, -1"); A("s_mov_b32 exec_hi, 0x1ffff")
        else: A("s_mov_b64 exec, %s" % full)
        A("s_add_u32 s%d, s%d, 1" % (sSPIN, sSPIN)); A("s_cmp_lt_u32 s%d, %d" % (sSPIN, spin)); A("s_cbranch_scc1 " + again)
        A("s_waitcnt vmcnt(0)")
        A(ok + ":")
    def apoll(vd, vaddr, soff, vtmp, sleep, first=True):
        ms = ["vcc", "s[12:13]", "s[88:89]", "s[90:91]"]
        ok = A.label("aok"); again = A.label("aagain")
        def iss(k):
            A("v_mov_b32 v%d, 0" % (vd + 2 * k)); A("v_mov_b32 v%d, 0" % (vd + 1 + 2 * k))
            A("buffer_atomic_or_x2 v[%d:%d], v%d, %s, s%d offen offset:%d sc0" % (vd + 2 * k, vd + 1 + 2 * k, vaddr, srd("WS"), soff, 512 * k))
        if first == "only":
            for k in range(4): iss(k)
            return
        A("s_mov_b32 s%d, 0" % sSPIN)
        if first:
            for k in range(4): iss(k)
        A(again + ":")
        A("s_waitcnt vmcnt(0)")
        for k in range(4): A("v_max_u32 v%d, v%d, v%d" % (vtmp + k, vd + 2 * k, vd + 1 + 2 * k))
        for k in range(4): A("v_cmp_eq_u32 %s, -1, v%d" % (ms[k], vtmp + k))
        A("s_or_b64 s[92:93], vcc, s[12:13]"); A("s_or_b64 s[94:95], s[88:89], s[90:91]"); A("s_or_b64 s[92:93], s[92:93], s[94:95]")
        A("s_cbranch_scc0 " + ok)
        if sleep: A("s_sleep %d" % sleep)
        for k in range(4):
            A("s_mov_b64 exec, %s" % ms[k]); iss(k)
        A("s_mov_b64 exec, -1")
        A("s_add_u32 s%d, s%d, 1" % (sSPIN, sSPIN)); A("s_cmp_lt_u32 s%d, %d" % (sSPIN, spin)); A("s_cbranch_scc1 " + again)
        A("s_waitcnt vmcnt(0)")
        A(ok + ":")
    def word_poll(load, vd, lanes, cmp, sleep):
        ok = A.label("fok"); again = A.label("fagain")
        A("s_mov_b32 s%d, 0" % sSPIN); A("s_mov_b64 exec, %s" % lanes)
        A(again + ":")
        A(load)
        A("s_waitcnt vmcnt(0)")
        A(cmp % vd)
        A("s_cmp_eq_u64 vcc, 0"); A("s_cbranch_scc1 " + ok)
        if sleep: A("s_sleep %d" % sleep)
        A("s_add_u32 s%d, s%d, 1" % (sSPIN, sSPIN)); A("s_cmp_lt_u32 s%d, %d" % (sSPIN, spin)); A("s_cbranch_scc1 " + again)
        A(ok + ":")
        A("s_mov_b64 exec, -1")

    A("s_cmp_ge_u32 s2, 256"); A("s_cbranch_scc1 L_end")
    if stamps:
        for k in range(1, NST): A("s_mov_b64 s[%d:%d], 0" % (16 + 2 * k, 17 + 2 * k))
    stamp(0)
    if (pad or pb >= 0 or pspan) and not stamps: A("s_memrealtime s[16:17]")
    for n in ("K", "X", "WQ", "WS", "V", "WO", "W1", "B1", "W2", "DBG", "OUT"):
        A("s_load_dwordx2 s[%d:%d], s[0:1], %d" % (SRD[n], SRD[n] + 1, KARG[n]))
    A("s_load_dwordx2 s[%d:%d], s[0:1], 72" % (sB2P, sB2P + 1))
    A("v_lshrrev_b32 v1, 6, v0"); A("v_and_b32 v0, 63, v0"); A("v_readfirstlane_b32 s%d, v1" % sWAVE)
    for n in SRD:
        A("s_mov_b32 s%d, 0x%x" % (SRD[n] + 2, SIZE[n])); A("s_mov_b32 s%d, 0x20000" % (SRD[n] + 3))
    if xmap == 0:
        A("s_and_b32 s%d, s2, 7" % sR); A("s_lshl_b32 s%d, s%d, 5" % (sR, sR)); A("s_lshr_b32 s%d, s2, 3" % sT0); A("s_add_u32 s%d, s%d, s%d" % (sR, sR, sT0))
    elif xmap >= 4:
        A("s_lshr_b32 s%d, s2, 1" % sT0); A("s_xor_b32 s%d, s%d, s2" % (sT0, sT0)); A("s_and_b32 s%d, s%d, 1" % (sT0, sT0)); A("s_lshl_b32 s%d, s%d, 3" % (sT0, sT0))
        A("s_and_b32 s%d, s2, 4" % sT1); A("s_lshl_b32 s%d, s%d, 2" % (sT1, sT1)); A("s_add_u32 s%d, s%d, s%d" % (sT0, sT0, sT1))
        A("s_bfe_u32 s%d, s2, 0x10003" % sT1); A("s_lshl_b32 s%d, s%d, 2" % (sT1, sT1)); A("s_add_u32 s%d, s%d, s%d" % (sT0, sT0, sT1))
        A("s_and_b32 s%d, s2, 0xe0" % sR); A("s_add_u32 s%d, s%d, s%d" % (sR, sR, sT0))
        if xmap == 6:
            A("s_lshr_b32 s%d, s2, 5" % sT0); A("s_xor_b32 s%d, s%d, s2" % (sT0, sT0)); A("s_and_b32 s%d, s%d, 1" % (sT0, sT0))
        elif xmap == 7:
            A("s_lshr_b32 s%d, s2, 3" % sT0); A("s_xor_b32 s%d, s%d, s2" % (sT0, sT0)); A("s_and_b32 s%d, s%d, 1" % (sT0, sT0))
        else: A("s_and_b32 s%d, s2, 1" % sT0)
        A("s_bfe_u32 s%d, s2, 0x10004" % sT1)
        A("s_lshl_b32 s%d, s%d, 1" % ((sT0, sT0) if xmap != 5 else (sT1, sT1)))
        A("s_add_u32 s%d, s%d, s%d" % (sR, sR, sT0)); A("s_add_u32 s%d, s%d, s%d" % (sR, sR, sT1))
    else:
        if xmap == 2:
            A("s_lshr_b32 s%d, s2, 5" % sT0); A("s_add_u32 s%d, s2, s%d" % (sR, sT0))
        elif xmap == 3:
            A("s_bfe_u32 s%d, s2, 0x20003" % sT0); A("s_lshl_b32 s%d, s%d, 1" % (sT0, sT0)); A("s_add_u32 s%d, s2, s%d" % (sR, sT0))
        else: A("s_add_u32 s%d, s2, %d" % (sR, bshift))
        A("s_and_b32 s%d, s%d, 7" % (sR, sR)); A("s_lshl_b32 s%d, s%d, 2" % (sR, sR)); A("s_and_b32 s%d, s2, 0xe0" % sT0); A("s_add_u32 s%d, s%d, s%d" % (sR, sR, sT0))
        A("s_bfe_u32 s%d, s2, 0x20003" % sT0); A("s_add_u32 s%d, s%d, s%d" % (sR, sR, sT0))
    sRQ = sMB
    if xmap >= 4:
        A("s_and_b32 s%d, s2, 7" % sRQ); A("s_lshl_b32 s%d, s%d, 2" % (sRQ, sRQ)); A("s_and_b32 s%d, s2, 0xe0" % sT0); A("s_add_u32 s%d, s%d, s%d" % (sRQ, sRQ, sT0))
        A("s_bfe_u32 s%d, s2, 0x20003" % sT0); A("s_add_u32 s%d, s%d, s%d" % (sRQ, sRQ, sT0))
    elif qmap == 0: A("s_mov_b32 s%d, s%d" % (sRQ, sR))
    elif qmap == 1:
        A("s_and_b32 s%d, s2, 7" % sRQ); A("s_lshl_b32 s%d, s%d, 5" % (sRQ, sRQ)); A("s_lshr_b32 s%d, s2, 3" % sT0); A("s_add_u32 s%d, s%d, s%d" % (sRQ, sRQ, sT0))
    elif qmap == 2:
        A("s_lshr_b32 s%d, s%d, 3" % (sT0, sR)); A("s_and_b32 s%d, s%d, 0x1c" % (sT0, sT0)); A("s_add_u32 s%d, s%d, s%d" % (sT0, sT0, sR)); A("s_and_b32 s%d, s%d, 0x1c" % (sT0, sT0))
        A("s_and_b32 s%d, s%d, 0xe3" % (sRQ, sR)); A("s_or_b32 s%d, s%d, s%d" % (sRQ, sRQ, sT0))
    elif qmap == 4:
        A("s_lshr_b32 s%d, s%d, 5" % (sT0, sR)); A("s_lshl_b32 s%d, s%d, 1" % (sT0, sT0)); A("s_bfe_u32 s%d, s%d, 0x10001" % (sT1, sR)); A("s_add_u32 s%d, s%d, s%d" % (sT0, sT0, sT1))
        A("s_lshr_b32 s%d, s%d, 2" % (sT1, sT0)); A("s_lshl_b32 s%d, s%d, 1" % (sT1, sT1)); A("s_bfe_u32 s%d, s%d, 0x30002" % (sT2, sR)); A("s_add_u32 s%d, s%d, s%d" % (sT1, sT1, sT2))
        A("s_and_b32 s%d, s%d, 7" % (sT1, sT1)); A("s_lshl_b32 s%d, s%d, 3" % (sT0, sT0)); A("s_add_u32 s%d, s%d, s%d" % (sT0, sT0, sT1)); A("s_lshl_b32 s%d, s%d, 1" % (sT0, sT0))
        A("s_and_b32 s%d, s%d, 1" % (sT1, sR)); A("s_add_u32 s%d, s%d, s%d" % (sRQ, sT0, sT1))
    A("v_lshlrev_b32 v%d, 4, v0" % vL16); A("v_lshrrev_b32 v%d, 4, v0" % vG4); A("v_bfe_u32 v%d, v0, 2, 2" % vC4)
    A("v_and_b32 v%d, 3, v0" % vR4); A("v_and_b32 v%d, 15, v0" % vN16); A("v_mov_b32 v%d, 0x%x" % (vHI, HI)); A("v_mov_b32 v%d, 1" % vONE)
    A("s_mov_b32 s%d, 0x05040100" % sSELLO); A("s_mov_b32 s%d, 0x07060302" % sSELHI); A("s_mov_b32 s%d, 0xffff0000" % sMASK)
    A("s_mov_b32 s%d, 0x%x" % (sSCALE, f2u(128 ** -0.5))); A("s_mov_b32 s%d, 0x%x" % (sL2E, f2u(1.4426950408889634)))
    c0 = -2.0 * 0.7978845608028654 * 1.4426950408889634
    A("s_mov_b32 s%d, 0x%x" % (sC0, f2u(c0))); A("s_mov_b32 s%d, 0x%x" % (sC1, f2u(c0 * 0.044715)))
    A("s_lshr_b32 s%d, s%d, 5" % (sT0, sR)); A("s_lshl_b32 s%d, s%d, 15" % (sT0, sT0))
    A("s_and_b32 s%d, s%d, 31" % (sT1, sR)); A("s_lshl_b32 s%d, s%d, 8" % (sT1, sT1)); A("s_add_u32 s%d, s%d, s%d" % (sT0, sT0, sT1))
    A("s_add_u32 s%d, s%d, 0x%x" % (sOPOFF, sT0, WS_OP))
    A("s_and_b32 s%d, s%d, 7" % (sT0, sR)); A("s_lshl_b32 s%d, s%d, %d" % (sT0, sT0, 13 + spad))
    A("s_lshr_b32 s%d, s%d, 3" % (sT1, sR)); A("s_lshl_b32 s%d, s%d, %d" % (sT1, sT1, 6 + spad)); A("s_add_u32 s%d, s%d, s%d" % (sT0, sT0, sT1))
    A("s_add_u32 s%d, s%d, 0x%x" % (sSPOFF, sT0, WS_SP))
    A("s_lshr_b32 s%d, s%d, 2" % (sT0, sR)); A("s_lshl_b32 s%d, s%d, 7" % (sT0, sT0)); A("s_add_u32 s%d, s%d, 0x%x" % (sSTOFF, sT0, WS_ST))
    A("s_cmp_eq_u32 s%d, 4" % sWAVE); A("s_cbranch_scc1 L_loader")
    A("s_cmp_eq_u32 s%d, 5" % sWAVE); A("s_cbranch_scc1 L_comm")
    A("s_cmp_gt_u32 s%d, 5" % sWAVE); A("s_cbranch_scc1 L_mlp")

    vQ, vS, vTMP, vK = 32, 48, 112, 128
    vKA, vVA = 17, 17
    vM, vLs, vMO, vF, vOWA = 25, 26, 27, 28, 29
    vX = vS
    A("v_lshlrev_b32 v%d, 5, v0" % vT)
    A("v_lshrrev_b32 v%d, 1, v0" % (vT + 1)); A("v_lshlrev_b32 v%d, 13, v%d" % (vT + 1, vT + 1))
    A("v_and_b32 v%d, 1, v0" % (vT + 2)); A("v_lshl_add_u32 v%d, v%d, 4, v%d" % (vT + 1, vT + 2, vT + 1))
    A("s_lshl_b32 s%d, s%d, 11" % (sT2, sWAVE))
    A("s_lshl_b32 s%d, s%d, 20" % (sT0, sWAVE)); A("s_lshl_b32 s%d, s%d, 5" % (sT1, sRQ)); A("s_add_u32 s%d, s%d, s%d" % (sT0, sT0, sT1))
    A("s_lshl_b32 s%d, s%d, 13" % (sT1, sWAVE)); A("s_add_u32 s%d, s%d, %d" % (sT1, sT1, 12 * 8192))
    A("s_waitcnt lgkmcnt(0)")
    if ldst == 2: stamp(12)
    A("buffer_load_dwordx4 %s, v%d, %s, s%d offen" % (vr(vX, 4), vT, srd("X"), sT2))
    A("buffer_load_dwordx4 %s, v%d, %s, s%d offen offset:16" % (vr(vX + 4, 4), vT, srd("X"), sT2))
    nq0 = wqsplit if wqsplit else 4
    for a in range(nq0):
        A("s_add_u32 m0, s%d, %d" % (sT1, a * 1024))
        if 'q' in abl: A("buffer_load_dwordx4 v%d, %s, 0 offen lds" % (vL16, srd("X")))
        else: A("buffer_load_dwordx4 v%d, %s, s%d offen %s lds" % (vT + 1, srd("WQ"), sT0, polq))
        if a < 3: A("s_add_u32 s%d, s%d, 0x40000" % (sT0, sT0))
    if nq0 < 4: A("v_mov_b32 v31, v%d" % (vT + 1)); A("s_mov_b32 s12, s%d" % sT0)
    A("s_barrier")
    A("v_lshrrev_b32 v%d, 5, v0" % (vT + 3)); A("s_lshl_b32 s%d, s%d, 1" % (sT0, sWAVE)); A("v_add_u32 v%d, s%d, v%d" % (vT + 3, sT0, vT + 3))
    A("v_mul_u32_u24 v%d, %d, v%d" % (vT + 3, XN_STRIDE, vT + 3)); A("v_and_b32 v%d, 31, v0" % (vT + 4)); A("v_lshl_add_u32 v%d, v%d, 5, v%d" % (vT + 3, vT + 4, vT + 3))
    A("v_add_u32 v%d, v%d, v%d" % (vT + 3, vHI, vT + 3))
    A("v_and_b32 v%d, 7, v0" % (vT + 4)); A("v_mul_u32_u24 v%d, %d, v%d" % (vT + 4, XN_STRIDE, vT + 4)); A("v_lshl_add_u32 v%d, v%d, 4, v%d" % (vT + 4, vG4, vT + 4))
    A("s_lshl_b32 s%d, s%d, 8" % (sT0, sWAVE)); A("s_add_u32 s%d, s%d, %d" % (sT0, sT0, HI)); A("v_add_u32 v%d, s%d, v%d" % (vT + 4, sT0, vT + 4))
    A("v_lshlrev_b32 v%d, 8, v%d" % (vT + 5, vG4)); A("v_lshl_add_u32 v%d, v%d, 3, v%d" % (vT + 5, vN16, vT + 5)); A("v_add_u32 v%d, s%d, v%d" % (vT + 5, sT1, vT + 5))
    A("s_lshl_b32 s%d, s%d, 10" % (sT0, sWAVE)); A("s_add_u32 s%d, s%d, %d" % (sT0, sT0, HI)); A("v_add_u32 v%d, s%d, v%d" % (vT + 6, sT0, vL16))
    A("s_lshl_b32 s%d, s%d, 13" % (sT0, sWAVE)); A("v_lshlrev_b32 v%d, 8, v%d" % (vT, vN16)); A("v_add_u32 v%d, s%d, v%d" % (vT, sT0, vT))
    for m in range(4):
        A("v_add_u32 v%d, %d, v%d" % (vT + 1, 4 * m, vG4)); A("v_xor_b32 v%d, v%d, v%d" % (vT + 1, vT + 1, vN16))
        A("v_lshl_add_u32 v%d, v%d, 4, v%d" % (vKA + m, vT + 1, vT)); A("v_add_u32 v%d, 0x10000, v%d" % (vKA + 4 + m, vKA + m))
    A("s_lshl_b32 s%d, s%d, 2" % (sT0, sWAVE)); A("s_add_u32 s%d, s%d, %d" % (sT0, sT0, HI)); A("v_mov_b32 v%d, s%d" % (30, sT0))
    A("s_mov_b32 s%d, 0" % sFULL)
    A("s_waitcnt vmcnt(%d)" % nq0)
    for a in range(nq0, 4):
        A("s_add_u32 m0, s%d, %d" % (sT1, a * 1024))
        A("buffer_load_dwordx4 v31, %s, s12 offen %s lds" % (srd("WQ"), polq))
        if a < 3: A("s_add_u32 s12, s12, 0x40000")
    stamp(1)
    layernorm(vX, 8, vX + 8, vX + 24, vX + 40, 2)
    A("ds_write_b128 v%d, %s offset:%d" % (vT + 3, vr(vX, 4), L_XN)); A("ds_write_b128 v%d, %s offset:%d" % (vT + 3, vr(vX + 4, 4), L_XN + 16))
    lds_add(vHI, F_XN)
    A("s_waitcnt vmcnt(0)")
    for m in range(4):
        A("ds_read_b64_tr_b16 %s, v%d offset:%d" % (vr(vK + 4 * m, 2), vT + 5, m * 1024))
        A("ds_read_b64_tr_b16 %s, v%d offset:%d" % (vr(vK + 4 * m + 2, 2), vT + 5, m * 1024 + 128))
    lds_wait(F_XN, 4)
    for m in range(4): A("ds_read_b128 %s, v%d offset:%d" % (vr(vK + 16 + 4 * m, 4), vT + 4, L_XN + m * 64))
    for m in range(4):
        A("s_waitcnt lgkmcnt(%d)" % (3 - m))
        A("v_mfma_f32_16x16x32_bf16 %s, %s, %s, %s" % (vr(vTMP, 4), vr(vK + 4 * m, 4), vr(vK + 16 + 4 * m, 4), "0" if m == 0 else vr(vTMP, 4)))
    A("ds_write_b128 v%d, %s offset:%d" % (vT + 6, vr(vTMP, 4), L_QP))
    lds_add(vHI, F_QP)
    A("s_mov_b64 exec, 1"); A("ds_add_u32 v30, v%d offset:%d" % (vONE, F_FREED)); A("s_mov_b64 exec, -1")
    stamp(2)
    def wait_block(n4):
        A("s_add_u32 s%d, s%d, %d" % (sT0, sWAVE, 4 * n4 + 1))
        lds_wait(F_FULL, "s%d" % sT0, keep=sFULL)
    def read_k(j):
        base = vK + 32 * (j % 4)
        for t in range(2):
            for m in range(4):
                A("ds_read_b128 %s, v%d offset:%d" % (vr(base + 16 * t + 4 * m, 4), vKA + m + (4 if (j & 2) else 0), (j & 1) * 32768 + t * 4096))
    def qk_block(j):
        base = vK + 32 * (j % 4)
        for m in range(4):
            for t in range(2):
                acc = vr(vS + 8 * j + 4 * t, 4)
                A("v_mfma_f32_16x16x32_bf16 %s, %s, %s, %s" % (acc, vr(base + 16 * t + 4 * m, 4), vr(vQ + 4 * m, 4), "0" if m == 0 else acc))
    def round_block(j):
        for p in range(4):
            a, b, t = vS + 8 * j + 2 * p, vS + 8 * j + 2 * p + 1, vT + (p & 1)
            if mimic:
                A("v_cvt_pk_bf16_f32 v%d, v%d, v%d" % (t, a, b)); unpack(a, b, t)
            A("v_mul_f32 v%d, s%d, v%d" % (a, sSCALE, a)); A("v_mul_f32 v%d, s%d, v%d" % (b, sSCALE, b))
            if mimic:
                A("v_cvt_pk_bf16_f32 v%d, v%d, v%d" % (t, a, b)); unpack(a, b, t)
            if j == 0 and p == 0: A("v_max_f32 v%d, v%d, v%d" % (vM, a, b))
            else: A("v_max3_f32 v%d, v%d, v%d, v%d" % (vM, a, b, vM))
    for j in range(4):
        wait_block(j); read_k(j); lds_add(30, F_FREED)
    stamp(3)
    lds_wait(F_QR, 1)
    stamp(4)
    A("v_lshlrev_b32 v%d, 8, v%d" % (vT, vC4)); A("v_lshl_add_u32 v%d, v%d, 4, v%d" % (vT, vG4, vT)); A("v_add_u32 v%d, v%d, v%d" % (vT, vHI, vT))
    for m in range(4): A("ds_read_b128 %s, v%d offset:%d" % (vr(vQ + 4 * m, 4), vT, L_QB + m * 64))
    A("s_waitcnt lgkmcnt(0)")
    for j in range(4):
        qk_block(j)
        wait_block(4 + j); A("s_nop 3"); read_k(4 + j)
        if j >= 1: round_block(j - 1)
        lds_add(30, F_FREED)
    for j in range(4, 8):
        qk_block(j); round_block(j - 1)
    A("v_lshl_add_u32 v%d, v%d, 2, v%d" % (vT + 2, vG4, vC4))
    A("v_and_b32 v%d, 7, v%d" % (vT + 3, vT + 2)); A("v_lshlrev_b32 v%d, 1, v%d" % (vT + 3, vT + 3))
    A("v_lshrrev_b32 v%d, 1, v%d" % (vT + 4, vR4)); A("v_xor_b32 v%d, v%d, v%d" % (vT + 3, vT + 3, vT + 4))
    A("v_lshlrev_b32 v%d, 8, v%d" % (vT + 2, vT + 2)); A("v_lshl_add_u32 v%d, v%d, 4, v%d" % (vT + 2, vT + 3, vT + 2))
    A("v_and_b32 v%d, 1, v0" % (vT + 4)); A("v_lshl_add_u32 v%d, v%d, 3, v%d" % (vT + 2, vT + 4, vT + 2))
    A("s_lshl_b32 s%d, s%d, 13" % (sT0, sWAVE)); A("v_add_u32 v%d, s%d, v%d" % (vVA, sT0, vT + 2))
    for d in range(1, 8): A("v_xor_b32 v%d, %d, v%d" % (vVA + d, 32 * d, vVA))
    round_block(7)
    swap_red(vM, vT, "v_max_f32", 32); swap_red(vM, vT, "v_max_f32", 16)
    A("v_mul_f32 v%d, s%d, v%d" % (vM, sL2E, vM))
    A("v_lshlrev_b32 v%d, 4, v%d" % (vT + 1, vG4)); A("ds_bpermute_b32 v%d, v%d, v%d" % (vMO, vT + 1, vM))
    vP = vK
    for j in range(32):
        a, b = vS + 2 * j, vS + 2 * j + 1
        A("v_fma_f32 v%d, v%d, s%d, -v%d" % (a, a, sL2E, vM)); A("v_fma_f32 v%d, v%d, s%d, -v%d" % (b, b, sL2E, vM))
        A("v_exp_f32 v%d, v%d" % (a, a)); A("v_exp_f32 v%d, v%d" % (b, b))
        if j >= 1:
            pa, pb = a - 2, b - 2
            if j == 1: A("v_add_f32 v%d, v%d, v%d" % (vLs, pa, pb))
            else: A("v_add_f32 v%d, v%d, v%d" % (vLs, vLs, pa)); A("v_add_f32 v%d, v%d, v%d" % (vLs, vLs, pb))
            A("v_cvt_pk_bf16_f32 v%d, v%d, v%d" % (vP + j - 1, pa, pb))
    A("v_add_f32 v%d, v%d, v%d" % (vLs, vLs, vS + 62)); A("v_add_f32 v%d, v%d, v%d" % (vLs, vLs, vS + 63))
    A("v_cvt_pk_bf16_f32 v%d, v%d, v%d" % (vP + 31, vS + 62, vS + 63))
    swap_red(vLs, vT, "v_add_f32", 32); swap_red(vLs, vT, "v_add_f32", 16)
    A("s_lshl_b32 s%d, s%d, 5" % (sT0, sWAVE)); A("s_add_u32 s%d, s%d, %d" % (sT0, sT0, HI)); A("v_lshlrev_b32 v%d, 3, v%d" % (vT, vC4)); A("v_add_u32 v%d, s%d, v%d" % (vT, sT0, vT))
    A("v_mov_b32 v%d, v%d" % (vT + 2, vM)); A("v_mov_b32 v%d, v%d" % (vT + 3, vLs))
    A("s_mov_b64 exec, 0x1111"); A("ds_write_b64 v%d, %s offset:%d" % (vT, vr(vT + 2, 2), L_ST)); A("s_mov_b64 exec, -1")
    lds_add(vHI, F_ST)
    stamp(5)
    A("s_lshl_b32 s%d, s%d, 11" % (sT0, sWAVE)); A("s_add_u32 s%d, s%d, %d" % (sT0, sT0, HI + L_OW))
    A("v_lshlrev_b32 v%d, 9, v%d" % (vOWA, vG4)); A("v_lshl_add_u32 v%d, v%d, 2, v%d" % (vOWA, vN16, vOWA)); A("v_add_u32 v%d, s%d, v%d" % (vOWA, sT0, vOWA))
    vVB = vK + 32
    def read_v(j):
        base = vVB + 32 * (j & 1)
        for d in range(8):
            for t in range(2):
                A("ds_read_b64_tr_b16 %s, v%d offset:%d" % (vr(base + 4 * d + 2 * t, 2), vVA + d, (j & 1) * 32768 + t * 4096))
    def pv(j, d):
        base = vVB + 32 * (j & 1)
        acc = vr(vS + 4 * d, 4)
        A("v_mfma_f32_16x16x32_bf16 %s, %s, %s, %s" % (acc, vr(vP + 4 * j, 4), vr(base + 4 * d, 4), "0" if j == 0 else acc))
    vS2, vF2 = vS + 32, 31
    def factor(dst, m):
        lds_wait(F_GR, 1)
        A("v_lshl_add_u32 v%d, v%d, 3, v%d" % (vT, vG4, vHI)); A("ds_read_b64 %s, v%d offset:%d" % (vr(vT + 2, 2), vT, L_GS)); A("s_waitcnt lgkmcnt(0)")
        A("v_sub_f32 v%d, v%d, v%d" % (dst, m, vT + 2)); A("v_exp_f32 v%d, v%d" % (dst, dst)); A("v_mul_f32 v%d, v%d, v%d" % (dst, dst, vT + 3))
    def wait_pos(j, out):
        ok = A.label("pok"); again = A.label("pagain"); chk = A.label("pchk")
        A("s_add_u32 s%d, s%d, %d" % (sT0, sWAVE, 32 + 4 * j + 1))
        A("s_mov_b32 s%d, 0" % sSPIN)
        A("s_branch " + chk)
        A(again + ":")
        A("ds_read_b64 %s, v%d offset:%d" % (vr(vT + 2, 2), vHI, F_FULL)); A("s_waitcnt lgkmcnt(0)")
        A("v_readfirstlane_b32 s%d, v%d" % (sFULL, vT + 2)); A("v_readfirstlane_b32 s%d, v%d" % (sPLAN, vT + 3))
        A(chk + ":")
        A("s_cmp_ge_u32 s%d, s%d" % (sFULL, sT0)); A("s_cbranch_scc1 " + ok)
        A("s_sub_u32 s%d, s%d, 0x100" % (sT1, sPLAN)); A("s_cmp_le_u32 s%d, %d" % (sT1, j)); A("s_cbranch_scc1 " + out)
        A("s_add_u32 s%d, s%d, 1" % (sSPIN, sSPIN)); A("s_cmp_lt_u32 s%d, %d" % (sSPIN, lspin)); A("s_cbranch_scc1 " + again)
        A("s_branch " + out)
        A(ok + ":")
    if steal:
        lds_wait(F_AM, 1)
        A("v_lshrrev_b32 v%d, 2, v0" % vT); A("v_lshlrev_b32 v%d, 4, v%d" % (vT, vT))
        A("s_lshl_b32 s%d, s%d, 12" % (sT0, sR)); A("s_lshl_b32 s%d, s%d, 10" % (sT1, sWAVE)); A("s_add_u32 s%d, s%d, s%d" % (sT0, sT0, sT1)); A("s_add_u32 s%d, s%d, 0x%x" % (sT0, sT0, WS_PR))
        A("s_mov_b32 exec_lo, 0x11111111"); A("s_mov_b32 exec_hi, 0x11111111")
        for u in range(3): A("buffer_store_dwordx4 %s, v%d, %s, s%d offen offset:%d sc1" % (vr(vP + 4 * (5 + u), 4), vT, srd("WS"), sT0, 256 * u))
        A("s_mov_b64 exec, 0x1111")
        A("buffer_store_dword v%d, v0, %s, s%d offen offset:768 sc1" % (vM, srd("WS"), sT0))
        A("s_mov_b64 exec, -1")
        A("s_mov_b32 s%d, 0" % sPLAN)
    for j in range(11 if steal else 8):
        if j == 7:
            factor(vF, vMO)
            stamp(6)
        if j < NOWN: wait_block(8 + j)
        else: wait_pos(j, "L_vout%d" % j)
        if j == 7: stamp(7)
        if j >= 8:
            if j == 8:
                A("v_lshrrev_b32 v%d, 2, v0" % (vT + 4)); A("v_lshlrev_b32 v%d, 4, v%d" % (vT + 4, vT + 4))
                A("s_lshl_b32 s%d, s%d, 10" % (sT1, sWAVE)); A("s_add_u32 s%d, s%d, %d" % (sT1, sT1, HI + L_PP)); A("v_add_u32 v%d, s%d, v%d" % (vT + 4, sT1, vT + 4))
                A("v_lshl_add_u32 v%d, v%d, 2, s%d" % (vT + 5, vG4, sT1))
                for u in range(3): A("ds_read_b128 %s, v%d offset:%d" % (vr(vP + 4 * u, 4), vT + 4, 256 * (2 - u)))
                A("ds_read_b32 v%d, v%d offset:768" % (vF2, vT + 5)); A("s_waitcnt lgkmcnt(0)")
                factor(vF2, vF2)
        read_v(j)
        if j % 4 == 1:
            for d in range(8): A("v_add_u32 v%d, 0x10000, v%d" % (vVA + d, vVA + d))
        if j % 4 == 3 and (steal or j < 7):
            for d in range(8): A("v_subrev_u32 v%d, 0x10000, v%d" % (vVA + d, vVA + d))
        for d in range(8):
            A("s_waitcnt lgkmcnt(%d)" % (14 - 2 * d))
            if d == 7 and j < (7 if steal else 4):
                A("s_mov_b64 exec, 1"); A("ds_add_u32 v30, v%d offset:%d" % (vONE, F_FREED)); A("s_mov_b64 exec, -1")
            if j < 8: pv(j, d)
            else:
                acc = vr(vS2 + 4 * d, 4)
                A("v_mfma_f32_16x16x32_bf16 %s, %s, %s, %s" % (acc, vr(vP + 4 * (j - 8), 4), vr(vVB + 32 * (j & 1) + 4 * d, 4), "0" if j == 8 else acc))
    if steal:
        A("L_vout9:"); A("L_vout10:")
        A("s_nop 7")
        for d in range(8): A("v_mul_f32 v%d, v%d, v%d" % (vTMP + d, vF, vS + 4 * d))
        for d in range(8): A("v_fmac_f32 v%d, v%d, v%d" % (vTMP + d, vF2, vS2 + 4 * d))
        A("s_branch L_vsum")
        A("L_vout5:"); A("L_vout6:")
        factor(vF, vMO)
        A("L_vout7:"); A("L_vout8:")
        A("s_nop 7")
    for d in range(8): A("v_mul_f32 v%d, v%d, v%d" % (vTMP + d, vF, vS + 4 * d))
    if steal: A("L_vsum:")
    for d in range(0, 8, 2): A("ds_write2_b32 v%d, v%d, v%d offset0:%d offset1:%d" % (vOWA, vTMP + d, vTMP + d + 1, 16 * d, 16 * d + 16))
    vWOA, vOIR, vWO = 17, 18, vK
    A("v_lshlrev_b32 v%d, 7, v%d" % (vWOA, vC4)); A("v_lshl_add_u32 v%d, v%d, 10, v%d" % (vWOA, vG4, vWOA)); A("v_lshl_add_u32 v%d, v%d, 3, v%d" % (vWOA, vR4, vWOA))
    A("s_lshl_b32 s%d, s%d, 5" % (sT0, sWAVE)); A("s_add_u32 s%d, s%d, %d" % (sT0, sT0, HI + L_WO)); A("v_add_u32 v%d, s%d, v%d" % (vWOA, sT0, vWOA))
    A("s_waitcnt lgkmcnt(0)")
    A("s_barrier")
    stamp(8)
    def wo_reads():
        if wolate: lds_wait(F_WO, 1, sl=0)
        for m in range(4):
            A("ds_read_b64_tr_b16 %s, v%d offset:%d" % (vr(vWO + 4 * m, 2), vWOA, m * 4096))
            A("ds_read_b64_tr_b16 %s, v%d offset:%d" % (vr(vWO + 4 * m + 2, 2), vWOA, m * 4096 + 512))
    def oir_addr():
        A("v_lshrrev_b32 v%d, 1, v%d" % (vT, vN16)); A("v_lshlrev_b32 v%d, 10, v%d" % (vT, vT)); A("v_and_b32 v%d, 1, v0" % (vT + 1)); A("v_lshl_add_u32 v%d, v%d, 8, v%d" % (vT, vT + 1, vT))
        for m in range(4):
            A("v_add_u32 v%d, %d, v%d" % (vT + 1, 4 * m, vG4)); A("v_xor_b32 v%d, v%d, v%d" % (vT + 1, vT + 1, vN16))
            A("v_lshl_add_u32 v%d, v%d, 4, v%d" % (vOIR + m, vT + 1, vT))
        A("v_lshrrev_b32 v%d, 1, v%d" % (22, vN16)); A("v_lshlrev_b32 v22, %d, v22" % (16 + spad)); A("v_lshl_add_u32 v22, v%d, 4, v22" % vG4)
    A("s_cmp_gt_u32 s%d, 1" % sWAVE); A("s_cbranch_scc1 L_gather23")
    A("s_lshl_b32 s%d, s%d, 10" % (sT0, sWAVE)); A("s_add_u32 s%d, s%d, %d" % (sT0, sT0, HI + L_OW)); A("v_add_u32 v%d, s%d, v%d" % (vT, sT0, vL16))
    for w in range(4): A("ds_read_b128 %s, v%d offset:%d" % (vr(vS + 4 * w, 4), vT, w * 2048))
    A("v_lshrrev_b32 v%d, 5, v0" % (vT + 1)); A("v_lshlrev_b32 v%d, 13, v%d" % (vT + 1, vT + 1)); A("v_and_b32 v%d, 31, v0" % (vT + 2)); A("v_lshl_add_u32 v%d, v%d, 3, v%d" % (vT + 1, vT + 2, vT + 1))
    A("s_lshl_b32 s%d, s%d, 14" % (sT0, sWAVE)); A("s_add_u32 s%d, s%d, s%d" % (sT0, sT0, sOPOFF))
    A("s_waitcnt lgkmcnt(2)")
    for i in range(4): A("v_add_f32 v%d, v%d, v%d" % (vS + i, vS + i, vS + 4 + i))
    A("s_waitcnt lgkmcnt(0)")
    for i in range(4): A("v_add_f32 v%d, v%d, v%d" % (vS + 8 + i, vS + 8 + i, vS + 12 + i))
    for i in range(4): A("v_add_f32 v%d, v%d, v%d" % (vS + i, vS + i, vS + 8 + i))
    A("v_cvt_pk_bf16_f32 v%d, v%d, v%d" % (vTMP, vS, vS + 1)); A("v_cvt_pk_bf16_f32 v%d, v%d, v%d" % (vTMP + 1, vS + 2, vS + 3))
    A("buffer_store_dwordx2 %s, v%d, %s, s%d offen %s" % (vr(vTMP, 2), vT + 1, srd("WS"), sT0, ts))
    stamp(11)
    wo_reads(); oir_addr()
    A("s_branch L_barE_c")
    def gather(idx_sgpr, extra):
        vGa = 40
        A("s_lshr_b32 s%d, s%d, 3" % (sT1, sR)); A("s_lshl_b32 s%d, s%d, 13" % (sT1, sT1)); A("s_lshl_b32 s%d, s%d, 11" % (sT0, idx_sgpr))
        A("s_add_u32 s%d, s%d, s%d" % (sT1, sT1, sT0)); A("s_add_u32 s%d, s%d, 0x%x" % (sT1, sT1, WS_OP))
        lds_ = [(lambda: A("buffer_load_dwordx4 %s, v%d, %s, s%d offen %s" % (vr(vGa, 4), vL16, srd("WS"), sT1, tl)), list(range(vGa, vGa + 4))),
                (lambda: A("buffer_load_dwordx4 %s, v%d, %s, s%d offen offset:1024 %s" % (vr(vGa + 4, 4), vL16, srd("WS"), sT1, tl)), list(range(vGa + 4, vGa + 8)))]
        if td1: A("s_sleep %d" % td1)
        if at1:
            A("v_lshlrev_b32 v%d, 3, v0" % (vT + 7))
            apoll(vGa, vT + 7, sT1, 0, 0, first="only")
            extra()
            A("v_lshrrev_b32 v%d, 5, v0" % (vT + 2)); A("s_lshl_b32 s%d, s%d, 2" % (sT2, idx_sgpr)); A("v_add_u32 v%d, s%d, v%d" % (vT + 3, sT2, vT + 2))
            A("v_bfe_u32 v%d, v0, 1, 4" % (vT + 4)); A("v_xor_b32 v%d, v%d, v%d" % (vT + 3, vT + 3, vT + 4))
            A("v_lshlrev_b32 v%d, 8, v%d" % (vT + 2, vT + 2)); A("v_add_u32 v%d, s%d, v%d" % (vT + 2, sT0, vT + 2))
            A("v_and_b32 v%d, 1, v0" % (vT + 4)); A("v_lshl_add_u32 v%d, v%d, 3, v%d" % (vT + 2, vT + 4, vT + 2))
            A("v_lshl_add_u32 v%d, v%d, 4, v%d" % (vT + 5, vT + 3, vT + 2)); A("v_xor_b32 v%d, 32, v%d" % (vT + 6, vT + 5))
            apoll(vGa, vT + 7, sT1, 24, tsleep, first=False)
            stamp(11)
            for k in range(4): A("ds_write_b64 v%d, %s offset:%d" % (vT + 5 + (k >> 1), vr(vGa + 2 * k, 2), 512 * k))
            return
        for i_, _ in lds_: i_()
        A("v_and_b32 v%d, 1, v%d" % (vT + 2, vG4)); A("s_lshl_b32 s%d, s%d, 2" % (sT2, idx_sgpr)); A("v_add_u32 v%d, s%d, v%d" % (vT + 2, sT2, vT + 2))
        A("v_xor_b32 v%d, v%d, v%d" % (vT + 3, vT + 2, vN16)); A("v_xor_b32 v%d, 2, v%d" % (vT + 4, vT + 3))
        A("v_lshlrev_b32 v%d, 8, v%d" % (vT + 2, vG4)); A("v_add_u32 v%d, s%d, v%d" % (vT + 2, sT0, vT + 2))
        A("v_lshl_add_u32 v%d, v%d, 4, v%d" % (vT + 5, vT + 3, vT + 2)); A("v_lshl_add_u32 v%d, v%d, 4, v%d" % (vT + 6, vT + 4, vT + 2))
        extra()
        gpoll(lds_, first=False, sleep=tsleep, P=P1)
        stamp(11)
        A("ds_write_b128 v%d, %s" % (vT + 5, vr(vGa, 4))); A("ds_write_b128 v%d, %s offset:1024" % (vT + 6, vr(vGa + 4, 4)))
    A("L_gather23:")
    A("s_sub_u32 s%d, s%d, 2" % (sMU, sWAVE))
    gather(sMU, lambda: (wo_reads(), oir_addr()))
    A("L_barE_c:")
    A("s_waitcnt lgkmcnt(0)")
    A("s_barrier")
    stamp(9)
    for u in range(2):
        for m in range(4): A("ds_read_b128 %s, v%d offset:%d" % (vr(vS + 16 * u + 4 * m, 4), vOIR + m, u * 512))
    A("s_lshl_b32 s%d, s%d, %d" % (sT0, sWAVE, 11 + spad)); A("s_add_u32 s%d, s%d, s%d" % (sT0, sT0, sSPOFF))
    for u in range(2):
        for m in range(4):
            A("s_waitcnt lgkmcnt(%d)" % (7 - 4 * u - m))
            acc = vr(vTMP + 4 * u, 4)
            A("v_mfma_f32_16x16x32_bf16 %s, %s, %s, %s" % (acc, vr(vWO + 4 * m, 4), vr(vS + 16 * u + 4 * m, 4), "0" if m == 0 else acc))
    for i in range(4): A("v_add_f32 v%d, v%d, v%d" % (vTMP + i, vTMP + i, vTMP + 4 + i))
    for i in range(4): dpp("v_add_f32", vTMP + i, "quad_perm:[1,0,3,2]")
    A("s_mov_b32 exec_lo, 0x55555555"); A("s_mov_b32 exec_hi, 0x55555555")
    stamp(10)
    A("buffer_store_dwordx4 %s, v22, %s, s%d offen %s" % (vr(vTMP, 4), srd("WS"), sT0, ts))
    A("s_mov_b64 exec, -1")
    A("s_branch L_done")

    A("L_loader:")
    if ldprio: A("s_setprio %d" % ldprio)
    vO = 17
    A("v_lshlrev_b32 v%d, 8, v%d" % (vT, vG4))
    for i in range(4):
        A("v_add_u32 v%d, %d, v%d" % (vT + 1, 4 * i, vG4)); A("v_xor_b32 v%d, v%d, v%d" % (vT + 1, vT + 1, vN16)); A("v_lshl_add_u32 v%d, v%d, 4, v%d" % (vO + i, vT + 1, vT))
    for i in range(2):
        A("v_add_u32 v%d, %d, v%d" % (vT + 1, 4 * i, vG4)); A("v_lshlrev_b32 v%d, 1, v%d" % (vT + 1, vT + 1))
        A("v_xor_b32 v%d, v%d, v%d" % (vT + 1, vT + 1, vN16)); A("v_lshl_add_u32 v%d, v%d, 4, v%d" % (vO + 4 + i, vT + 1, vT))
    sG, sSLOT, sFR, sN = 12, 13, 88, 92
    A("s_bfe_u32 s%d, s%d, 0x30002" % (sBASE, sR)); A("s_lshl_b32 s%d, s%d, 23" % (sBASE, sBASE)); A("s_lshr_b32 s%d, s%d, 5" % (sT0, sR)); A("s_lshl_b32 s%d, s%d, 20" % (sT0, sT0))
    A("s_add_u32 s%d, s%d, s%d" % (sBASE, sBASE, sT0)); A("s_and_b32 s%d, s%d, 3" % (sT0, sR)); A("s_lshl_b32 s%d, s%d, 18" % (sT0, sT0)); A("s_add_u32 s%d, s%d, s%d" % (sBASE, sBASE, sT0))
    if rot:
        A("s_mov_b32 s94, s%d" % sBASE)
        A("s_mul_i32 s%d, s%d, %d" % (sT0, sR, rot)); A("s_lshr_b32 s%d, s%d, 5" % (sT1, sR)); A("s_add_u32 s%d, s%d, s%d" % (sT0, sT0, sT1))
        A("s_and_b32 s%d, s%d, 31" % (sT0, sT0)); A("s_lshl_b32 s%d, s%d, 13" % (sT0, sT0)); A("s_add_u32 s%d, s%d, s%d" % (sBASE, sBASE, sT0))
    if Fhi:
        A("s_and_b32 s%d, s2, 7" % sT0); A("s_lshr_b32 s%d, %d, s%d" % (sT0, himask, sT0)); A("s_and_b32 s%d, s%d, 1" % (sT0, sT0)); A("s_cselect_b32 s95, %d, %d" % (Fhi, F))
    A("s_mov_b32 s94, 0"); A("s_mov_b32 s93, 0"); A("s_mov_b32 s%d, s%d" % (sOFF, sBASE)); A("s_mov_b32 s%d, 0" % sG); A("s_mov_b32 s%d, 0" % sSLOT); A("s_mov_b32 s%d, 0" % sN)
    A("s_waitcnt lgkmcnt(0)")
    def publish_full(sgpr):
        A("v_mov_b32 v%d, s%d" % (vT, sgpr)); A("s_mov_b64 exec, 1"); A("ds_max_u32 v%d, v%d offset:%d" % (vHI, vT, F_FULL)); A("s_mov_b64 exec, -1")
    def dma_block(isk):
        Dm = D if isk else DV
        for half in range(2):
            A("s_mov_b32 m0, s%d" % sSLOT)
            if Dm: A("s_waitcnt vmcnt(%d)" % Dm)
            for i in range(4):
                A("buffer_load_dwordx4 v%d, %s, s%d offen offset:%d %s lds" % (vO + i if isk else vO + 4 + (i & 1), srd("K" if isk else "V"), sOFF, i * 1024, pol))
            A("s_add_u32 s%d, s%d, 4096" % (sOFF, sOFF)); A("s_add_u32 s%d, s%d, 4096" % (sSLOT, sSLOT))
            if Dm and (4 * half - Dm) % 8 < 4:
                A("s_add_i32 s%d, s%d, %d" % (sT0, sN, (4 * half - Dm) // 8)); A("s_max_i32 s%d, s%d, 0" % (sT0, sT0)); publish_full(sT0)
        if rot:
            A("s_and_b32 s%d, s%d, 0x3ffff" % (sOFF, sOFF)); A("s_or_b32 s%d, s%d, s94" % (sOFF, sOFF))
        A("s_and_b32 s%d, s%d, 0x1ffff" % (sSLOT, sSLOT)); A("s_add_u32 s%d, s%d, 1" % (sN, sN))
    if ldst == 2: stamp(1)
    for _ in range(pre): dma_block(True)
    A("s_barrier")
    if ldst == 2: stamp(2)
    for _ in range(4 - pre): dma_block(True)
    A("s_mov_b32 s%d, 1" % sG)
    if ldst == 2: stamp(3)
    def read_freed():
        A("ds_read_b128 %s, v%d offset:%d" % (vr(vT + 4, 4), vHI, F_FREED)); A("s_waitcnt lgkmcnt(0)")
        for c in range(4): A("v_readfirstlane_b32 s%d, v%d" % (sFR + c, vT + 4 + c))
    for isk, last in ((True, 8), (False, 19 if steal else 16)):
        loop = "L_ld_k" if isk else "L_ld_v"
        if not isk: A("s_mov_b32 s%d, s%d" % (sOFF, sBASE))
        A(loop + ":")
        for g_, reg in ((pa, 16), (pb, 18)):
            if g_ > 0 and g_ < 16 and (g_ < 8) == isk:
                sk = A.label("st"); A("s_cmp_lg_u32 s%d, %d" % (sG, g_)); A("s_cbranch_scc1 " + sk); A("s_memrealtime s[%d:%d]" % (reg, reg + 1)); A(sk + ":")
        if ldst == 1:
            for k, g in enumerate((2, 3, 4, 5, 6, 7) if isk else (8, 10, 12, 14)):
                sk = A.label("st"); A("s_cmp_lg_u32 s%d, %d" % (sG, g)); A("s_cbranch_scc1 " + sk); stamp(k + 1 if isk else k + 7); A(sk + ":")
        if steal and not isk:
            go = A.label("pgo"); again = A.label("pagain")
            A("s_cmp_lt_u32 s%d, %d" % (sG, 8 + NOWN)); A("s_cbranch_scc1 " + go)
            A("s_mov_b32 s%d, 0" % sSPIN); A("s_sub_u32 s%d, s%d, 8" % (sT1, sG))
            if ldst: A("s_memrealtime s[14:15]")
            A(again + ":")
            A("ds_read_b32 v%d, v%d offset:%d" % (vPOLL, vHI, F_PLAN)); A("s_waitcnt lgkmcnt(0)"); A("v_readfirstlane_b32 s%d, v%d" % (sT0, vPOLL))
            A("s_and_b32 s%d, s%d, 0xff" % (sT2, sT0)); A("s_cmp_gt_u32 s%d, s%d" % (sT2, sT1)); A("s_cbranch_scc1 L_granted")
            A("s_cmp_ge_u32 s%d, 0x100" % sT0); A("s_cbranch_scc1 L_ld_end")
            for k in range(F - 1, -1, -1):
                A("s_cmp_eq_u32 s%d, %d" % (sSPIN, F - 1 - k)); nx = A.label("nx"); A("s_cbranch_scc0 " + nx)
                A("s_sub_u32 s%d, s%d, %d" % (sT0, sN, k)); A("s_waitcnt vmcnt(%d)" % (8 * k)); publish_full(sT0); A(nx + ":")
            if ldst: A("s_add_u32 s93, s93, 1")
            A("s_add_u32 s%d, s%d, 1" % (sSPIN, sSPIN)); A("s_cmp_lt_u32 s%d, %d" % (sSPIN, lspin)); A("s_cbranch_scc1 " + again)
            A("s_branch L_ld_end")
            A("L_granted:")
            if ldst:
                A("s_memrealtime s[36:37]"); A("s_waitcnt lgkmcnt(0)"); A("s_sub_u32 s36, s36, s14"); A("s_add_u32 s94, s94, s36")
            A("s_cmp_lt_u32 s%d, 16" % sG); A("s_cbranch_scc1 " + go)
            A("s_sub_u32 s%d, 23, s%d" % (sT0, sG)); A("s_lshl_b32 s%d, s%d, 15" % (sT0, sT0)); A("s_xor_b32 s%d, s%d, 0x80000" % (sOFF, sBASE)); A("s_add_u32 s%d, s%d, s%d" % (sOFF, sOFF, sT0))
            A(go + ":")
        read_freed()
        A("s_sub_i32 s%d, s%d, 2" % (sT1, sG))
        if Fhi and hiend < 16:
            A("s_cmp_ge_u32 s%d, %d" % (sG, hiend)); A("s_cselect_b32 s95, %d, s95" % F)
        for c in range(4):
            go = A.label("go"); sl = A.label("slow")
            A("s_cmp_ge_i32 s%d, s%d" % (sFR + c, sT1)); A("s_cbranch_scc1 " + go)
            A("s_waitcnt vmcnt(0)"); publish_full(sN)
            if ldst: A("s_add_u32 s93, s93, 100")
            A("s_mov_b32 s%d, 0" % sSPIN)
            A(sl + ":")
            read_freed()
            A("s_cmp_ge_i32 s%d, s%d" % (sFR + c, sT1)); A("s_cbranch_scc1 " + go)
            A("s_add_u32 s%d, s%d, 1" % (sSPIN, sSPIN)); A("s_cmp_lt_u32 s%d, %d" % (sSPIN, lspin)); A("s_cbranch_scc1 " + sl)
            A(go + ":")
            dma_block(isk)
            if D: pass
            elif Fhi:
                hi = A.label("hi")
                A("s_sub_i32 s%d, s%d, s95" % (sT0, sN)); A("s_max_i32 s%d, s%d, 0" % (sT0, sT0))
                A("s_waitcnt vmcnt(%d)" % (8 * Fhi)); A("s_cmp_eq_u32 s95, %d" % Fhi); A("s_cbranch_scc1 " + hi)
                A("s_waitcnt vmcnt(%d)" % (8 * F)); A(hi + ":"); publish_full(sT0)
            else:
                A("s_sub_i32 s%d, s%d, %d" % (sT0, sN, F))
                if F > 5: A("s_max_i32 s%d, s%d, 0" % (sT0, sT0))
                A("s_waitcnt vmcnt(%d)" % (8 * F)); publish_full(sT0)
        if stamps:
            pass
        A("s_add_u32 s%d, s%d, 1" % (sG, sG)); A("s_cmp_lt_u32 s%d, %d" % (sG, last)); A("s_cbranch_scc1 " + loop)
        if not ldst: stamp(1 if isk else 2)
    def wo_dma():
        A("v_lshrrev_b32 v%d, 3, v0" % (vT + 4)); A("v_lshlrev_b32 v%d, 10, v%d" % (vT + 4, vT + 4)); A("v_and_b32 v%d, 7, v0" % (vT + 5)); A("v_lshl_add_u32 v%d, v%d, 4, v%d" % (vT + 4, vT + 5, vT + 4))
        A("s_lshr_b32 s%d, s%d, 3" % (sT0, sR)); A("s_lshl_b32 s%d, s%d, 17" % (sT0, sT0)); A("s_and_b32 s%d, s%d, 7" % (sT1, sR)); A("s_lshl_b32 s%d, s%d, 7" % (sT1, sT1))
        A("s_add_u32 s%d, s%d, s%d" % (sT0, sT0, sT1))
        for a in range(16):
            A("s_mov_b32 m0, %d" % (HI + L_WO + a * 1024))
            A("buffer_load_dwordx4 v%d, %s, s%d offen %s lds" % (vT + 4, srd("WO"), sT0, polo))
            if a < 15: A("s_add_u32 s%d, s%d, 0x2000" % (sT0, sT0))
    if steal:
        A("L_ld_end:")
        A("s_mov_b64 exec, 1"); A("ds_write_b32 v%d, v%d offset:%d" % (vHI, vONE, F_LI)); A("s_mov_b64 exec, -1")
    if wolate == 1: wo_dma()
    for k in range((DV + 4 + 7) // 8 - 1 if D else max(F, Fhi) - 1, -1, -1):
        A("s_sub_u32 s%d, s%d, %d" % (sT0, sN, k)); A("s_waitcnt vmcnt(%d)" % (8 * k + (16 if wolate == 1 else 0))); publish_full(sT0)
    if wolate == 1:
        if ldst: stamp(11)
        A("s_waitcnt vmcnt(0)"); A("s_mov_b64 exec, 1"); A("ds_write_b32 v%d, v%d offset:%d" % (vHI, vONE, F_WO)); A("s_mov_b64 exec, -1")
    if ldst:
        if wolate == 1: stamp(12)
        else:
            stamp(11)
            A("s_waitcnt lgkmcnt(0)"); A("s_mul_i32 s%d, s%d, 25" % (sT0, sN)); A("s_add_u32 s40, s16, s%d" % sT0); A("s_addc_u32 s41, s17, 0")
            if steal: A("s_add_u32 s36, s16, s94"); A("s_addc_u32 s37, s17, 0")
    else: stamp(3)
    if pb >= 0:
        if pb == 16: A("s_memrealtime s[18:19]")
        A("s_waitcnt lgkmcnt(0)"); A("s_sub_u32 s18, s18, s16"); A("v_mov_b32 v8, s18"); A("s_mov_b64 exec, 1"); A("buffer_atomic_add v8, off, %s, 0 offset:4" % srd("DBG")); A("s_mov_b64 exec, -1")
    if pspan:
        A("s_memrealtime s[18:19]"); A("s_waitcnt lgkmcnt(0)"); A("s_not_b32 s16, s16"); A("v_mov_b32 v8, s18"); A("v_mov_b32 v9, s16"); A("s_mov_b64 exec, 1")
        A("buffer_atomic_umax v8, off, %s, 0 offset:4" % srd("DBG")); A("buffer_atomic_umax v9, off, %s, 0 offset:8" % srd("DBG")); A("s_mov_b64 exec, -1")
    if probe:
        A("s_memrealtime s[20:21]"); A("s_and_b32 s6, s2, 7"); A("s_lshr_b32 s6, %d, s6" % probe); A("s_and_b32 s6, s6, 1"); A("s_lshl_b32 s6, s6, 2"); A("s_add_u32 s6, s6, 4")
        A("s_waitcnt lgkmcnt(0)"); A("v_mov_b32 v8, s20"); A("s_mov_b64 exec, 1"); A("buffer_atomic_add v8, off, %s, s6" % srd("DBG")); A("s_mov_b64 exec, -1")
    A("s_waitcnt lgkmcnt(0)")
    A("s_branch L_done")

    def slot_addrs():
        A("v_lshlrev_b32 v28, 5, v0")
        A("s_and_b32 s%d, s%d, 3" % (sT0, sR)); A("s_lshl_b32 s%d, s%d, 3" % (sT0, sT0)); A("s_add_u32 s%d, s%d, s%d" % (sMU, sT0, sSTOFF))
    A("L_comm:")
    vZ = 20
    for i in range(4): A("v_mov_b32 v%d, 0" % (vZ + i))
    A("v_lshl_add_u32 v%d, v0, 2, v%d" % (vT, vHI))
    A("s_mov_b64 exec, 0xffff"); A("ds_write_b32 v%d, v%d offset:%d" % (vT, vZ, L_FLG)); A("s_mov_b64 exec, -1")
    slot_addrs()
    sEP = 4
    def epoch():
        A("s_waitcnt vmcnt(0)")
        A("v_readfirstlane_b32 s%d, v30" % sEP); A("v_readfirstlane_b32 s%d, v31" % (sEP + 1))
        A("s_add_u32 s%d, s%d, 0x%x" % (sEP, sEP, EP_STEP & 0xffffffff)); A("s_addc_u32 s%d, s%d, 0x%x" % (sEP + 1, sEP + 1, EP_STEP >> 32))
    A("s_waitcnt lgkmcnt(0)")
    A("buffer_load_dwordx2 v[30:31], off, %s, 0 offset:%d sc1" % (srd("WS"), WS_EP))
    A("s_barrier")
    A("v_add_u32 v%d, v%d, v%d" % (vT, vHI, vL16))
    A("v_and_b32 v29, 7, v0"); A("v_lshlrev_b32 v29, 14, v29"); A("v_lshl_add_u32 v29, v%d, 4, v29" % vG4)
    A("s_lshl_b32 s%d, s%d, 6" % (sT2, sRQ)); A("s_add_u32 s%d, s%d, 0x%x" % (sT2, sT2, WS_Q))
    A("s_bfe_u32 s%d, s%d, 0x30002" % (sT0, sR)); A("s_lshl_b32 s%d, s%d, 14" % (sT0, sT0)); A("s_lshr_b32 s%d, s%d, 5" % (sT1, sR)); A("s_lshl_b32 s%d, s%d, 11" % (sT1, sT1))
    A("s_add_u32 s%d, s%d, s%d" % (sT0, sT0, sT1)); A("s_add_u32 s%d, s%d, 0x%x" % (sT0, sT0, WS_Q))
    A("v_lshl_add_u32 v27, v0, 3, v%d" % vHI)
    epoch()
    A("v_mov_b32 v38, s%d" % sEP); A("v_mov_b32 v39, s%d" % (sEP + 1))
    stamp(1)
    lds_wait(F_QP, 4)
    for w in range(4): A("ds_read_b128 %s, v%d offset:%d" % (vr(40 + 4 * w, 4), vT, L_QP + w * 1024))
    A("s_waitcnt lgkmcnt(0)")
    for i in range(4): A("v_add_f32 v%d, v%d, v%d" % (40 + i, 40 + i, 44 + i)); A("v_add_f32 v%d, v%d, v%d" % (48 + i, 48 + i, 52 + i))
    for i in range(4): A("v_add_f32 v%d, v%d, v%d" % (40 + i, 40 + i, 48 + i))
    A("v_cvt_pk_bf16_f32 v36, v40, v41"); A("v_cvt_pk_bf16_f32 v37, v42, v43")
    A("s_mov_b32 exec_lo, 0x00ff00ff"); A("s_mov_b32 exec_hi, 0x00ff00ff")
    A("buffer_store_dwordx4 v[36:39], v29, %s, s%d offen sc1" % (srd("WS"), sT2))
    A("s_mov_b64 exec, -1")
    stamp(2)
    if qdelay: A("s_sleep %d" % qdelay)
    if qtrig: lds_wait(F_FULL, qtrig, sl=4)
    gpoll([(lambda: A("buffer_load_dwordx4 v[32:35], v%d, %s, s%d offen sc1" % (vL16, srd("WS"), sT0)), [32, 33, 34, 35]),
           (lambda: A("buffer_load_dwordx4 v[40:43], v%d, %s, s%d offen offset:1024 sc1" % (vL16, srd("WS"), sT0)), [40, 41, 42, 43])], sleep=qsleep, tag="s[%d:%d]" % (sEP, sEP + 1))
    A("ds_write_b64 v27, v[32:33] offset:%d" % L_QB); A("ds_write_b64 v27, v[40:41] offset:%d" % (L_QB + 512))
    lds_add(vHI, F_QR)
    stamp(4)
    def all_marked():
        A("v_lshlrev_b32 v%d, 5, v0" % (vT + 3))
        word_poll("buffer_load_dword v32, v%d, %s, 0 offen sc1" % (vT + 3, srd("DBG")), 32, "0xff", "v_cmp_gt_u32 vcc, 32, v%d", fsleep)
        stamp(3)
    all_marked()
    lds_add(vHI, F_AM)
    A("v_lshlrev_b32 v%d, 3, v%d" % (vT + 1, vN16)); A("v_add_u32 v%d, v%d, v%d" % (vT + 2, vHI, vT + 1))
    lds_wait(F_ST, 4)
    A("ds_read_b64 v[32:33], v%d offset:%d" % (vT + 2, L_ST)); A("s_waitcnt lgkmcnt(0)")
    def combine(modes):
        A("v_mov_b32 v34, v32")
        for m in modes: dpp("v_max_f32", 34, m)
        A("v_sub_f32 v32, v32, v34"); A("v_exp_f32 v32, v32"); A("v_mul_f32 v35, v32, v33")
        for m in modes: dpp("v_add_f32", 35, m)
    combine(("row_ror:4", "row_ror:8"))
    A("s_mov_b64 exec, 0xf"); A("buffer_store_dwordx2 v[34:35], v28, %s, s%d offen sc1" % (srd("WS"), sMU)); A("s_mov_b64 exec, -1")
    stamp(5)
    if sdelay: A("s_sleep %d" % sdelay)
    if strig:
        lds_wait(F_FULL, strig, sl=8)
    gpoll([(lambda: A("buffer_load_dwordx2 v[32:33], v%d, %s, s%d offen sc1" % (vT + 1, srd("WS"), sSTOFF)), [32, 33])], sleep=ssleep)
    combine(("quad_perm:[1,0,3,2]", "quad_perm:[2,3,0,1]"))
    A("v_rcp_f32 v35, v35"); A("v_lshl_add_u32 v%d, v%d, 3, v%d" % (vT + 2, vC4, vHI))
    A("s_mov_b64 exec, 0x1111"); A("ds_write_b64 v%d, v[34:35] offset:%d" % (vT + 2, L_GS)); A("s_mov_b64 exec, -1")
    lds_add(vHI, F_GR)
    stamp(6)
    A("s_mov_b32 s%d, 2" % sMU)
    A("L_gather56:")
    A("s_waitcnt lgkmcnt(0)")
    A("s_barrier")
    stamp(8)
    gather(sMU, lambda: None)
    A("s_waitcnt lgkmcnt(0)")
    A("s_barrier")
    stamp(9)
    A("s_branch L_done")

    A("L_mlp:")
    vW, vU = 32, 64
    def clean():
        A("s_cmp_lg_u32 s%d, 7" % sWAVE); A("s_cbranch_scc1 L_noclean")
        for i in range(4): A("v_mov_b32 v%d, -1" % (60 + i))
        slot_addrs()
        A("v_lshlrev_b32 v%d, 13, v%d" % (59, vG4)); A("v_lshl_add_u32 v%d, v%d, 4, v%d" % (59, vN16, 59))
        A("s_lshl_b32 s%d, s%d, %d" % (sT1, sR, 11 + spad)); A("s_add_u32 s%d, s%d, 0x%x" % (sT1, sT1, WS_SP))
        A("v_lshrrev_b32 v29, 2, v0"); A("v_lshlrev_b32 v29, %d, v29" % (6 + spad)); A("v_lshl_add_u32 v29, v%d, 4, v29" % vR4)
        A("s_waitcnt lgkmcnt(0)")
        A("buffer_load_dwordx2 v[30:31], off, %s, 0 offset:%d sc1" % (srd("WS"), WS_EP))
        A("s_mov_b64 exec, 0xf"); A("buffer_store_dwordx2 v[60:61], v28, %s, s%d offen sc1" % (srd("WS"), sMU)); A("s_mov_b64 exec, -1")
        A("buffer_store_dwordx4 v[60:63], v%d, %s, s%d offen sc1" % (59, srd("WS"), sOPOFF))
        A("buffer_store_dwordx4 v[60:63], v29, %s, s%d offen sc1" % (srd("WS"), sT1))
        A("buffer_store_dwordx4 v[60:63], v29, %s, s%d offen offset:%d sc1" % (srd("WS"), sT1, 1024 << spad))
        if steal:
            A("s_lshl_b32 s%d, s%d, 12" % (sT1, sR)); A("s_add_u32 s%d, s%d, 0x%x" % (sT1, sT1, WS_PR))
            for k in range(4): A("buffer_store_dwordx4 v[60:63], v%d, %s, s%d offen offset:%d sc1" % (vL16, srd("WS"), sT1, 1024 * k))
            A("s_lshl_b32 s%d, s%d, 7" % (sT1, sR)); A("s_add_u32 s%d, s%d, 0x%x" % (sT1, sT1, WS_CW))
            A("s_mov_b64 exec, 1"); A("buffer_store_dword v60, off, %s, s%d sc1" % (srd("WS"), sT1)); A("s_mov_b64 exec, -1")
        A("L_noclean:")
    def arrive(cnt, lbl):
        A("s_cmp_lg_u32 s%d, 7" % sWAVE); A("s_cbranch_scc1 " + lbl)
        A("s_lshr_b32 s%d, s%d, 5" % (sT3, sR)); A("s_lshl_b32 s%d, s%d, 5" % (sT3, sT3))
        A("s_mov_b64 exec, 1")
        A("s_waitcnt vmcnt(%d)" % cnt)
        A("buffer_atomic_add v%d, off, %s, s%d" % (vONE, srd("DBG"), sT3))
        A("s_mov_b64 exec, -1")
        stamp(4)
        A(lbl + ":")
    if not cllate: clean()
    A("s_sub_u32 s%d, s%d, 6" % (sMB, sWAVE))
    A("v_mul_u32_u24 v%d, 12, v0" % vT); A("s_mul_i32 s%d, s%d, 1792" % (sT1, sMB))
    A("s_waitcnt lgkmcnt(0)")
    A("s_load_dword s%d, s[%d:%d], 0" % (sB2, sB2P, sB2P + 1))
    A("s_barrier")
    for k, n in enumerate(("W1", "B1", "W2")):
        A("buffer_load_dwordx4 %s, v%d, %s, s%d offen" % (vr(vW + 8 * k, 4), vL16, srd(n), sT1))
        A("buffer_load_dwordx3 %s, v%d, %s, s%d offen offset:1024" % (vr(vW + 8 * k + 4, 3), vT, srd(n), sT1))
    if not cllate: arrive(6, "L_noflag")
    A("s_lshr_b32 s%d, s%d, 5" % (sT0, sR)); A("s_mul_i32 s%d, s%d, %d" % (sT0, sT0, XN_STRIDE)); A("s_add_u32 s%d, s%d, %d" % (sT0, sT0, HI)); A("v_add_u32 v%d, s%d, v%d" % (vT + 1, sT0, vL16))
    A("s_lshl_b32 s%d, s%d, 13" % (sT2, sMB)); A("s_add_u32 s%d, s%d, %d" % (sT2, sT2, HI + L_WO)); A("v_add_u32 v%d, s%d, v%d" % (vT + 2, sT2, vL16))
    A("s_and_b32 s%d, s%d, 31" % (sT0, sR)); A("s_lshl_b32 s%d, s%d, 5" % (sT0, sT0)); A("s_add_u32 s%d, s%d, s%d" % (sT0, sT0, sT2))
    A("v_lshlrev_b32 v%d, 1, v%d" % (vT + 3, vN16)); A("v_add_u32 v%d, s%d, v%d" % (vT + 3, sT0, vT + 3))
    lds_wait(F_XN, 4)
    if cllate: clean()
    vXm = 112
    A("ds_read_b128 %s, v%d offset:%d" % (vr(vXm, 4), vT + 1, L_XN)); A("s_waitcnt lgkmcnt(0)")
    layernorm(vXm, 4, vXm + 4, vXm + 12, vXm + 20, 1)
    A("ds_write_b128 v%d, %s" % (vT + 2, vr(vXm, 4)))
    vH = 24
    A("ds_read_u16 v%d, v%d" % (vH, vT + 3))
    A("v_lshrrev_b32 v%d, 3, v0" % (vT + 4)); A("v_lshlrev_b32 v%d, 10, v%d" % (vT + 4, vT + 4)); A("v_and_b32 v%d, 7, v0" % (vT + 5)); A("v_lshl_add_u32 v%d, v%d, 4, v%d" % (vT + 4, vT + 5, vT + 4))
    A("s_lshr_b32 s%d, s%d, 3" % (sT0, sR)); A("s_lshl_b32 s%d, s%d, 17" % (sT0, sT0)); A("s_and_b32 s%d, s%d, 7" % (sT1, sR)); A("s_lshl_b32 s%d, s%d, 7" % (sT1, sT1))
    A("s_add_u32 s%d, s%d, s%d" % (sT0, sT0, sT1)); A("s_lshl_b32 s%d, s%d, 16" % (sT1, sMB)); A("s_add_u32 s%d, s%d, s%d" % (sT0, sT0, sT1))
    A("s_waitcnt vmcnt(0) lgkmcnt(0)")
    if cllate: arrive(0, "L_noflag")
    for a in range(8):
        A("s_add_u32 m0, s%d, %d" % (sT2, a * 1024))
        if 'o' not in abl and not wolate: A("buffer_load_dwordx4 v%d, %s, s%d offen %s lds" % (vT + 4, srd("WO"), sT0, polo))
        if a < 7: A("s_add_u32 s%d, s%d, 0x2000" % (sT0, sT0))
    stamp(1)
    A("v_lshlrev_b32 v%d, 16, v%d" % (vH, vH))
    for k in range(3):
        for i in range(7): unpack(vU + 14 * k + 2 * i, vU + 14 * k + 2 * i + 1, vW + 8 * k + i)
    vC0, vACC, U, T_ = 25, 26, 112, 128
    A("v_mov_b32 v%d, s%d" % (vC0, sC0))
    A("s_lshl_b32 s%d, s%d, 6" % (sT0, sMB)); A("s_add_u32 s%d, s%d, %d" % (sT0, sT0, HI + L_YP)); A("v_mov_b32 v27, s%d" % sT0)
    A("s_mov_b32 s%d, 0" % sT1)
    A("s_nop 3")
    A("L_mlp_loop:")
    A("v_readlane_b32 s%d, v%d, s%d" % (sMU, vH, sT1))
    for t in range(14): A("v_fma_f32 v%d, s%d, v%d, v%d" % (U + t, sMU, vU + t, vU + 14 + t))
    for t in range(14): A("v_mul_f32 v%d, v%d, v%d" % (T_ + t, U + t, U + t))
    for t in range(14): A("v_fma_f32 v%d, v%d, s%d, v%d" % (T_ + t, T_ + t, sC1, vC0))
    for t in range(14): A("v_mul_f32 v%d, v%d, v%d" % (T_ + t, T_ + t, U + t))
    for t in range(14):
        A("v_exp_f32 v%d, v%d" % (T_ + t, T_ + t)); A("v_mul_f32 v%d, v%d, v%d" % (U + t, U + t, vU + 28 + t))
    for t in range(14): A("v_add_f32 v%d, 1.0, v%d" % (T_ + t, T_ + t))
    for t in range(14): A("v_rcp_f32 v%d, v%d" % (T_ + t, T_ + t))
    A("v_mul_f32 v%d, v%d, v%d" % (vACC, U, T_)); A("v_mul_f32 v%d, v%d, v%d" % (U, U + 1, T_ + 1))
    for t in range(2, 14): A("v_fmac_f32 v%d, v%d, v%d" % (vACC if t & 1 else U, U + t, T_ + t))
    A("v_add_f32 v%d, v%d, v%d" % (vACC, vACC, U))
    red16(vACC, "v_add_f32"); dpp("v_add_f32", vACC, "row_bcast:15", "0xa"); dpp("v_add_f32", vACC, "row_bcast:31", "0xc")
    A("s_mov_b32 exec_lo, 0"); A("s_mov_b32 exec_hi, 0x80000000")
    A("ds_write_b32 v27, v%d" % vACC); A("v_add_u32 v27, 4, v27")
    A("s_mov_b64 exec, -1")
    A("s_add_u32 s%d, s%d, 1" % (sT1, sT1)); A("s_cmp_lt_u32 s%d, 16" % sT1); A("s_cbranch_scc1 L_mlp_loop")
    stamp(2)
    A("s_waitcnt vmcnt(0)")
    A("s_mov_b32 s%d, 3" % sMU)
    if steal:
        A("s_cmp_eq_u32 s%d, 7" % sWAVE); A("s_cbranch_scc1 L_final")
        lds_wait(F_AM, 1, sl=8)
        sCW = 4
        A("s_lshl_b32 s%d, s%d, 7" % (sCW, sR)); A("s_add_u32 s%d, s%d, 0x%x" % (sCW, sCW, WS_CW))
        def set_plan(val):
            A("v_mov_b32 v%d, %s" % (vT, val)); A("s_mov_b64 exec, 1"); A("ds_write_b32 v%d, v%d offset:%d" % (vHI, vT, F_PLAN)); A("s_mov_b64 exec, -1")
        for k in range(5, 11):
            if k == 8:
                A("s_xor_b32 s%d, s%d, 0x100" % (sCW, sCW))
            if k == 8:
                A("s_xor_b32 s%d, s%d, 2" % (sT1, sR)); A("s_lshl_b32 s%d, s%d, 12" % (sT1, sT1)); A("s_add_u32 s%d, s%d, 0x%x" % (sT1, sT1, WS_PR))
                A("v_add_u32 v%d, v%d, v%d" % (vT + 1, vHI, vL16))
                rec = [((lambda q=q: A("buffer_load_dwordx4 %s, v%d, %s, s%d offen offset:%d sc1" % (vr(36 + 4 * q, 4), vL16, srd("WS"), sT1, 1024 * q))), list(range(36 + 4 * q, 40 + 4 * q))) for q in range(4)]
                lds_wait(F_FULL, rtrig, sl=2)
                A("s_mov_b32 exec_hi, 0x1ffff")
                for i_, _ in rec: i_()
                A("s_mov_b64 exec, -1")
            lds_wait(F_FULL, 4 * k + cth + (bias if k >= 8 else 0), sl=2)
            A("v_mov_b32 v32, 1"); A("s_mov_b64 exec, 1")
            A("buffer_atomic_add v32, off, %s, s%d sc0" % (srd("WS"), sCW))
            A("s_mov_b64 exec, -1")
            A("s_mov_b32 s%d, 0x%x" % (sT2, 0x100 + k))
            A("s_waitcnt vmcnt(0)")
            A("v_readfirstlane_b32 s%d, v32" % sT0); A("s_add_u32 s%d, s%d, 1" % (sT0, sT0))
            if stamps and k < 9: stamp(k - 2)
            A("s_cmp_ge_u32 s%d, 3" % sT0); A("s_cbranch_scc1 L_close")
            if k == 8:
                A("s_mov_b32 exec_hi, 0x1ffff")
                gpoll(rec[:2], first=False, sleep=8, full="PARTIAL"); gpoll(rec[2:], first=False, sleep=8, full="PARTIAL")
                for q in range(4): A("ds_write_b128 v%d, %s offset:%d" % (vT + 1, vr(36 + 4 * q, 4), L_PP + 1024 * q))
                A("s_mov_b64 exec, -1")
                A("s_waitcnt lgkmcnt(0)")
            set_plan("%d" % (k + 1))
        A("s_mov_b32 s%d, 0x%x" % (sT2, 0x100 + 11))
        A("L_close:")
        set_plan("s%d" % sT2)
        A("s_branch L_gather56")
        A("L_final:")
    else:
        A("s_cmp_eq_u32 s%d, 6" % sWAVE); A("s_cbranch_scc1 L_gather56")
    if at2:
        A("v_and_b32 v%d, 7, v0" % (vT + 1)); A("v_lshrrev_b32 v%d, 5, v0" % (vT + 2)); A("v_lshl_add_u32 v%d, v%d, 1, v%d" % (vT + 1, vT + 1, vT + 2))
    else: A("v_lshl_add_u32 v%d, v%d, 2, v%d" % (vT + 1, vR4, vG4))
    A("v_lshlrev_b32 v%d, 1, v%d" % (vT + 2, vT + 1)); A("s_lshl_b32 s%d, s%d, 5" % (sT0, sR))
    A("buffer_load_ushort v%d, v%d, %s, s%d offen" % (vT + 3, vT + 2, srd("X"), sT0))
    A("v_lshl_add_u32 v%d, v%d, 2, v%d" % (vT + 1, vT + 1, vHI))
    A("s_lshl_b32 s%d, s%d, %d" % (sT1, sR, 11 + spad)); A("s_add_u32 s%d, s%d, 0x%x" % (sT1, sT1, WS_SP))
    A("v_lshrrev_b32 v29, 2, v0"); A("v_lshlrev_b32 v29, %d, v29" % (6 + spad)); A("v_lshl_add_u32 v29, v%d, 4, v29" % vR4)
    if wolate == 2:
        A("s_mov_b32 s12, s%d" % sT0); A("s_mov_b32 s13, s%d" % sT1)
        if steal: lds_wait(F_LI, 1, sl=2)
        else: lds_wait(F_FULL, wotrig, sl=2)
        wo_dma()
        A("s_mov_b32 s%d, s12" % sT0); A("s_mov_b32 s%d, s13" % sT1)
    A("s_waitcnt lgkmcnt(0)")
    A("s_barrier")
    stamp(8)
    A("ds_read_b32 v40, v%d offset:%d" % (vT + 1, L_YP)); A("ds_read_b32 v41, v%d offset:%d" % (vT + 1, L_YP + 64)); A("s_waitcnt lgkmcnt(0)")
    A("v_add_f32 v40, v40, v41"); rbf(40)
    A("s_lshl_b32 s%d, s%d, 16" % (sB2, sB2)); A("v_add_f32 v40, s%d, v40" % sB2); rbf(40)
    A("v_mul_f32 v41, s%d, v40" % sL2E); A("v_exp_f32 v41, -v41"); A("v_add_f32 v41, 1.0, v41"); A("v_rcp_f32 v41, v41"); A("v_mul_f32 v40, v40, v41"); rbf(40)
    A("s_waitcnt vmcnt(0)"); A("v_lshlrev_b32 v%d, 16, v%d" % (vT + 3, vT + 3))
    if wolate == 2:
        A("s_mov_b64 exec, 1"); A("ds_write_b32 v%d, v%d offset:%d" % (vHI, vONE, F_WO)); A("s_mov_b64 exec, -1")
        stamp(11)
    A("s_barrier")
    stamp(9)
    if td2: A("s_sleep %d" % td2)
    if at2:
        A("v_lshlrev_b32 v29, 3, v0")
        apoll(32, 29, sT1, 44, tsleep2)
        stamp(10)
        A("v_add_f32 v44, v32, v34"); A("v_add_f32 v45, v33, v35"); A("v_add_f32 v46, v36, v38"); A("v_add_f32 v47, v37, v39")
        A("v_add_f32 v44, v44, v46"); A("v_add_f32 v45, v45, v47")
        A("v_permlane32_swap_b32 v44, v45"); A("v_add_f32 v44, v44, v45")
        swap_red(44, 45, "v_add_f32", 16)
        dpp("v_add_f32", 44, "row_ror:8")
    else:
        gpoll([(lambda: A("buffer_load_dwordx4 v[32:35], v29, %s, s%d offen %s" % (srd("WS"), sT1, tl)), [32, 33, 34, 35]),
               (lambda: A("buffer_load_dwordx4 v[36:39], v29, %s, s%d offen offset:%d %s" % (srd("WS"), sT1, 1024 << spad, tl)), [36, 37, 38, 39])], sleep=tsleep2, P=P2)
        stamp(10)
        for i in range(4): A("v_add_f32 v%d, v%d, v%d" % (44 + i, 32 + i, 36 + i))
        A("v_permlane32_swap_b32 v44, v46"); A("v_permlane32_swap_b32 v45, v47")
        A("v_add_f32 v44, v44, v46"); A("v_add_f32 v45, v45, v47")
        A("v_permlane16_swap_b32 v44, v45"); A("v_add_f32 v44, v44, v45")
        dpp("v_add_f32", 44, "row_ror:8"); dpp("v_add_f32", 44, "row_ror:4")
    rbf(44); A("v_mul_f32 v44, v44, v40"); rbf(44)
    A("v_add_f32 v44, v44, v%d" % (vT + 3)); A("v_cvt_pk_bf16_f32 v44, v44, v44")
    em = "0xff" if at2 else "0x000f000f"
    A("s_mov_b32 exec_lo, %s" % em); A("s_mov_b32 exec_hi, %s" % em)
    A("buffer_store_short v44, v%d, %s, s%d offen" % (vT + 2, srd("OUT"), sT0))
    A("s_mov_b64 exec, -1")
    A("s_cmp_lg_u32 s%d, 0" % sR); A("s_cbranch_scc1 L_done")
    epoch()
    A("v_mov_b32 v30, s%d" % sEP); A("v_mov_b32 v31, s%d" % (sEP + 1)); A("s_mov_b64 exec, 1")
    A("buffer_store_dwordx2 v[30:31], off, %s, 0 offset:%d sc1" % (srd("WS"), WS_EP))
    A("s_mov_b64 exec, -1")
    if probe or pb >= 0 or pspan:
        A("buffer_load_dwordx2 v[30:31], off, %s, 0 offset:4 sc1" % srd("DBG")); A("s_memrealtime s[16:17]"); A("s_waitcnt vmcnt(0) lgkmcnt(0)")
        A("v_readfirstlane_b32 s6, v30"); A("v_readfirstlane_b32 s7, v31")
        if probe: A("s_sub_i32 s6, s6, s7"); A("s_abs_i32 s6, s6"); A("s_lshr_b32 s6, s6, 4")
        elif pspan == 1: A("s_not_b32 s7, s7"); A("s_sub_u32 s6, s6, s7"); A("s_lshl_b32 s6, s6, 2")
        elif pspan == 2: A("s_sub_u32 s6, s16, s6"); A("s_lshl_b32 s6, s6, 3")
        else: A("s_lshr_b32 s6, s6, 5")
        A("s_min_u32 s6, s6, 20000")
        A("s_add_u32 s16, s16, s6")
        A("L_pad2:"); A("s_memrealtime s[18:19]"); A("s_waitcnt lgkmcnt(0)"); A("s_sub_u32 s18, s18, s16"); A("s_cmp_lt_i32 s18, 0"); A("s_cbranch_scc1 L_pad2")
    A("L_done:")
    A("s_waitcnt vmcnt(0)")
    if pad:
        A("s_waitcnt lgkmcnt(0)"); A("s_add_u32 s16, s16, %d" % pad)
        A("L_pad:"); A("s_memrealtime s[18:19]"); A("s_waitcnt lgkmcnt(0)"); A("s_sub_u32 s18, s18, s16"); A("s_cmp_lt_i32 s18, 0"); A("s_cbranch_scc1 L_pad")
    if stamps:
        A("s_waitcnt vmcnt(0)")
        stamp(NST - 1)
        A("s_waitcnt lgkmcnt(0)")
        A("s_lshl_b32 s%d, s2, 3" % sT0); A("s_add_u32 s%d, s%d, s%d" % (sT0, sT0, sWAVE)); A("s_mul_i32 s%d, s%d, %d" % (sT0, sT0, NST * 8)); A("s_add_u32 s%d, s%d, 0x%x" % (sT0, sT0, WS_STAMP))
        A("s_mov_b64 exec, 1")
        for k in range(NST):
            A("v_mov_b32 v2, s%d" % (16 + 2 * k)); A("v_mov_b32 v3, s%d" % (17 + 2 * k))
            A("buffer_store_dwordx2 v[2:3], off, %s, s%d offset:%d" % (srd("WS"), sT0, k * 8)); A("s_nop 1")
    A("L_end:")
    A("s_endpgm")
    body = A.finalize()
    hdr = open("recurrent_scan__gqa_block_cached__mixer_token_mlp__decode.s.ref").read().split("; Override launch")[0]
    s = hdr + "; @launch grid=(256,1,1) block=(512,1,1) lds=%d\n" % LDS_BYTES
    s += '.amdgcn_target "amdgcn-amd-amdhsa--gfx950"\n.text\n.globl %s\n.p2align 8\n.type %s,@function\n%s:\n' % (NAME, NAME, NAME)
    s += body
    s += '.section .rodata,"a"\n.p2align 6\n.amdhsa_kernel %s\n  .amdhsa_next_free_vgpr 256\n  .amdhsa_next_free_sgpr 102\n  .amdhsa_accum_offset 256\n' % NAME
    s += "  .amdhsa_group_segment_fixed_size 0\n  .amdhsa_kernarg_size 104\n  .amdhsa_user_sgpr_count 2\n  .amdhsa_user_sgpr_kernarg_segment_ptr 1\n  .amdhsa_system_sgpr_workgroup_id_x 1\n.end_amdhsa_kernel\n"
    return s, A

if __name__ == "__main__":
    out = sys.argv[1]
    kw = {}
    for p in sys.argv[2:]:
        k, v = p.split("=")
        kw[k] = int(v) if v.lstrip("-").isdigit() else v.replace("+", " ")
    s, A = gen(**kw)
    open(out, "w").write(s)
    print("wrote", out, "instructions", len(A.ins), "nops", A.nops, "lds", LDS_BYTES)
```

```python
import sys, struct
from asmlib import Asm

NAME = "recurrent_scan__gqa_block_cached__mixer_token_mlp__decode_kernel"
def f2u(x): return struct.unpack("<I", struct.pack("<f", x))[0]

WS_ST, WS_OP, WS_SP, WS_Q, WS_EP = 0x10000, 0x20000, 0x100000, 0x60000, 0x0
WS_CW, WS_PR = 0x80000, 0x200000
EP_STEP = 0x9E3779B97F4A7C15
WS_STAMP = 128 << 20
HI = 131072
L_WO = 0
L_XN, XN_STRIDE = 16384, 1040
L_OW = L_XN
L_QP = 24704
L_QB = 28800
L_FLG = 29824
L_ST = L_FLG + 64
L_GS = L_ST + 128
L_YP = L_GS + 32
LDS_BYTES = HI + L_YP + 128
F_FULL, F_FREED, F_XN, F_QP, F_QR, F_ST, F_GR, F_WO, F_AM, F_PLAN, F_LI = [L_FLG + 4 * i for i in (0, 4, 8, 9, 10, 11, 12, 13, 14, 1, 15)]
L_PP = L_QP

sWAVE, sBASE, sOFF = 3, 4, 5
sT0, sT1, sT2 = 6, 7, 8
sR, sSPIN, sT3 = 9, 10, 11
sMU, sMB = 14, 15
SRD = dict(K=44, V=48, X=52, WQ=56, WO=60, W1=64, B1=68, W2=72, OUT=76, DBG=80, WS=84)
KARG = dict(X=0, K=8, V=16, WQ=24, WO=32, W1=48, B1=56, W2=64, OUT=80, DBG=88, WS=96)
SIZE = dict(X=8192, K=1 << 26, V=1 << 26, WQ=1 << 22, WO=1 << 22, W1=3584, B1=3584, W2=3584, OUT=8192, DBG=256, WS=1 << 28)
sSELLO, sSELHI, sMASK, sSCALE, sL2E, sC0, sC1, sB2, sB2P = 88, 89, 90, 91, 92, 93, 94, 95, 96
sOPOFF, sSPOFF, sSTOFF, sFULL = 98, 99, 100, 101
def srd(n): return "s[%d:%d]" % (SRD[n], SRD[n] + 3)
def vr(a, n=1): return "v%d" % a if n == 1 else "v[%d:%d]" % (a, a + n - 1)
vL16, vG4, vC4, vR4, vN16, vHI, vONE = 1, 2, 3, 4, 5, 6, 7
vT = 8
vPOLL = 16

def gen(F=4, stamps=0, pol="nt", spin=1 << 17, lspin=1 << 22, mimic=1, pre=0, lsleep=1, ldprio=3, fsleep=8, qsleep=2, ssleep=8, tsleep=0, xmap=1, polq=None, polo=None, ldst=0, abl='', rot=0, pad=0, P1=1, P2=1, pd=5, qmap=0, tl='sc1', ts='sc1', tsleep2=None, Fhi=0, himask=0xf8, hiend=16, spad=0, at2=1, td2=8, td1=0, at1=0, qdelay=0, sdelay=0, qtrig=8, strig=48, bshift=0, wolate=2, wqsplit=0, wotrig=60, D=0, DV=0, probe=0, steal=0, cth=23, cllate=0, bias=0, rtrig=48, p_a=-1, p_b=-1, pspan=0):
    NOWN = 5 if steal else 8
    sPLAN = 13
    DV = DV if DV else D
    tsleep2 = tsleep if tsleep2 is None else tsleep2
    polq = pol if polq is None else polq.replace('def', '')
    polo = pol if polo is None else polo.replace('def', '')
    A = Asm()
    NST = 14
    def stamp(k):
        if stamps: A("s_memrealtime s[%d:%d]" % (16 + 2 * k, 17 + 2 * k))
    QUADS = ("quad_perm:[1,0,3,2]", "quad_perm:[2,3,0,1]", "row_half_mirror", "row_mirror")
    def dpp(op, v, m, rm="0xf"): A("%s_dpp v%d, v%d, v%d %s row_mask:%s bank_mask:0xf" % (op, v, v, v, m, rm))
    def red16(v, op):
        for m in QUADS: dpp(op, v, m)
    def swap_red(v, t, op, which):
        A("v_mov_b32 v%d, v%d" % (t, v)); A("v_permlane%d_swap_b32 v%d, v%d" % (which, v, t)); A("%s v%d, v%d, v%d" % (op, v, v, t))
    def rbf(v):
        A("v_cvt_pk_bf16_f32 v%d, v%d, v%d" % (v, v, v)); A("v_lshlrev_b32 v%d, 16, v%d" % (v, v))
    def unpack(dlo, dhi, src):
        A("v_lshlrev_b32 v%d, 16, v%d" % (dlo, src)); A("v_and_b32 v%d, s%d, v%d" % (dhi, sMASK, src))
    def layernorm(pk, n, x, d, t, halves):
        def allred(v):
            red16(v, "v_add_f32"); swap_red(v, t + 2, "v_add_f32", 16)
            if halves == 1: swap_red(v, t + 2, "v_add_f32", 32)
        for i in range(n): unpack(x + 2 * i, x + 2 * i + 1, pk + i)
        A("v_add_f32 v%d, v%d, v%d" % (t, x, x + 1)); A("v_add_f32 v%d, v%d, v%d" % (t + 1, x + 2, x + 3))
        for i in range(4, 2 * n): A("v_add_f32 v%d, v%d, v%d" % (t + (i & 1), t + (i & 1), x + i))
        A("v_add_f32 v%d, v%d, v%d" % (t, t, t + 1))
        allred(t)
        A("v_mul_f32 v%d, 0x3b000000, v%d" % (t, t))
        A("v_cvt_pk_bf16_f32 v%d, v%d, v%d" % (t + 1, t, t))
        for i in range(2 * n): A("v_sub_f32 v%d, v%d, v%d" % (d + i, x + i, t))
        A("v_lshlrev_b32 v%d, 16, v%d" % (t + 1, t + 1))
        A("v_mul_f32 v%d, v%d, v%d" % (t, d, d)); A("v_mul_f32 v%d, v%d, v%d" % (d, d + 1, d + 1))
        for i in range(2, 2 * n): A("v_fmac_f32 v%d, v%d, v%d" % (t if i & 1 else d, d + i, d + i))
        A("v_add_f32 v%d, v%d, v%d" % (t, t, d))
        for i in range(2 * n): A("v_sub_f32 v%d, v%d, v%d" % (x + i, x + i, t + 1))
        allred(t)
        for i in range(n): A("v_cvt_pk_bf16_f32 v%d, v%d, v%d" % (pk + i, x + 2 * i, x + 2 * i + 1))
        A("v_mul_f32 v%d, 0x3b000000, v%d" % (t, t)); rbf(t)
        A("v_add_f32 v%d, 0x%x, v%d" % (t, f2u(1e-5), t)); rbf(t)
        A("v_sqrt_f32 v%d, v%d" % (t, t)); rbf(t)
        A("v_rcp_f32 v%d, v%d" % (t, t))
        for i in range(n): unpack(x + 2 * i, x + 2 * i + 1, pk + i)
        for i in range(2 * n): A("v_mul_f32 v%d, v%d, v%d" % (x + i, t, x + i))
        for i in range(n): A("v_cvt_pk_bf16_f32 v%d, v%d, v%d" % (pk + i, x + 2 * i, x + 2 * i + 1))
    def lds_wait(flag, val, keep=None, sl=None):
        ok = A.label("lok"); again = A.label("lagain")
        dst = keep if keep is not None else sT3
        if keep is not None:
            A("s_cmp_ge_u32 s%d, %s" % (keep, val)); A("s_cbranch_scc1 " + ok)
        A("s_mov_b32 s%d, 0" % sSPIN)
        A(again + ":")
        A("ds_read_b32 v%d, v%d offset:%d" % (vPOLL, vHI, flag)); A("s_waitcnt lgkmcnt(0)")
        A("v_readfirstlane_b32 s%d, v%d" % (dst, vPOLL))
        A("s_cmp_ge_u32 s%d, %s" % (dst, val)); A("s_cbranch_scc1 " + ok)
        if sl is None: sl = lsleep
        if sl: A("s_sleep %d" % sl)
        A("s_add_u32 s%d, s%d, 1" % (sSPIN, sSPIN)); A("s_cmp_lt_u32 s%d, %d" % (sSPIN, lspin)); A("s_cbranch_scc1 " + again)
        A(ok + ":")
    def lds_add(flag_addr_reg, off):
        A("s_waitcnt lgkmcnt(0)")
        A("s_mov_b64 exec, 1"); A("ds_add_u32 v%d, v%d offset:%d" % (flag_addr_reg, vONE, off)); A("s_mov_b64 exec, -1")
    def gpoll(loads, first=True, sleep=0, full="-1", tag=None, P=1):
        ok = A.label("ok"); again = A.label("again")
        masks = ["vcc", "s[12:13]"]
        A("s_mov_b32 s%d, 0" % sSPIN)
        if first:
            for issue, regs in loads: issue()
        for _ in range(P - 1):
            A("s_sleep %d" % pd)
            for issue, regs in loads: issue()
        A(again + ":")
        A("s_waitcnt vmcnt(%d)" % (len(loads) * (P - 1)))
        for (issue, regs), mk in zip(loads, masks):
            t = vT + 7
            if tag is not None:
                A("v_cmp_ne_u64 %s, %s, v[%d:%d]" % (mk, tag, regs[2], regs[3])); continue
            if len(regs) == 2: A("v_max_u32 v%d, v%d, v%d" % (t, regs[0], regs[1]))
            else:
                A("v_max3_u32 v%d, v%d, v%d, v%d" % (t, regs[0], regs[1], regs[2])); A("v_max_u32 v%d, v%d, v%d" % (t, t, regs[3]))
            A("v_cmp_eq_u32 %s, -1, v%d" % (mk, t))
        if len(loads) == 2:
            A("s_or_b32 s%d, vcc_lo, vcc_hi" % sT3); A("s_or_b32 s%d, s%d, s12" % (sT3, sT3)); A("s_or_b32 s%d, s%d, s13" % (sT3, sT3))
        else:
            A("s_or_b32 s%d, vcc_lo, vcc_hi" % sT3)
        A("s_cbranch_scc0 " + ok)
        if sleep: A("s_sleep %d" % sleep)
        for (issue, regs), mk in zip(loads, masks):
            A("s_mov_b64 exec, %s" % mk); issue()
        if full == "PARTIAL": A("s_mov_b32 exec_lo, -1"); A("s_mov_b32 exec_hi, 0x1ffff")
        else: A("s_mov_b64 exec, %s" % full)
        A("s_add_u32 s%d, s%d, 1" % (sSPIN, sSPIN)); A("s_cmp_lt_u32 s%d, %d" % (sSPIN, spin)); A("s_cbranch_scc1 " + again)
        A("s_waitcnt vmcnt(0)")
        A(ok + ":")
    def apoll(vd, vaddr, soff, vtmp, sleep, first=True):
        ms = ["vcc", "s[12:13]", "s[88:89]", "s[90:91]"]
        ok = A.label("aok"); again = A.label("aagain")
        def iss(k):
            A("v_mov_b32 v%d, 0" % (vd + 2 * k)); A("v_mov_b32 v%d, 0" % (vd + 1 + 2 * k))
            A("buffer_atomic_or_x2 v[%d:%d], v%d, %s, s%d offen offset:%d sc0" % (vd + 2 * k, vd + 1 + 2 * k, vaddr, srd("WS"), soff, 512 * k))
        if first == "only":
            for k in range(4): iss(k)
            return
        A("s_mov_b32 s%d, 0" % sSPIN)
        if first:
            for k in range(4): iss(k)
        A(again + ":")
        A("s_waitcnt vmcnt(0)")
        for k in range(4): A("v_max_u32 v%d, v%d, v%d" % (vtmp + k, vd + 2 * k, vd + 1 + 2 * k))
        for k in range(4): A("v_cmp_eq_u32 %s, -1, v%d" % (ms[k], vtmp + k))
        A("s_or_b64 s[92:93], vcc, s[12:13]"); A("s_or_b64 s[94:95], s[88:89], s[90:91]"); A("s_or_b64 s[92:93], s[92:93], s[94:95]")
        A("s_cbranch_scc0 " + ok)
        if sleep: A("s_sleep %d" % sleep)
        for k in range(4):
            A("s_mov_b64 exec, %s" % ms[k]); iss(k)
        A("s_mov_b64 exec, -1")
        A("s_add_u32 s%d, s%d, 1" % (sSPIN, sSPIN)); A("s_cmp_lt_u32 s%d, %d" % (sSPIN, spin)); A("s_cbranch_scc1 " + again)
        A("s_waitcnt vmcnt(0)")
        A(ok + ":")
    def word_poll(load, vd, lanes, cmp, sleep):
        ok = A.label("fok"); again = A.label("fagain")
        A("s_mov_b32 s%d, 0" % sSPIN); A("s_mov_b64 exec, %s" % lanes)
        A(again + ":")
        A(load)
        A("s_waitcnt vmcnt(0)")
        A(cmp % vd)
        A("s_cmp_eq_u64 vcc, 0"); A("s_cbranch_scc1 " + ok)
        if sleep: A("s_sleep %d" % sleep)
        A("s_add_u32 s%d, s%d, 1" % (sSPIN, sSPIN)); A("s_cmp_lt_u32 s%d, %d" % (sSPIN, spin)); A("s_cbranch_scc1 " + again)
        A(ok + ":")
        A("s_mov_b64 exec, -1")

    A("s_cmp_ge_u32 s2, 256"); A("s_cbranch_scc1 L_end")
    if stamps:
        for k in range(1, NST): A("s_mov_b64 s[%d:%d], 0" % (16 + 2 * k, 17 + 2 * k))
    stamp(0)
    if (pad or p_b >= 0 or pspan) and not stamps: A("s_memrealtime s[16:17]")
    for n in ("K", "X", "WQ", "WS", "V", "WO", "W1", "B1", "W2", "DBG", "OUT"):
        A("s_load_dwordx2 s[%d:%d], s[0:1], %d" % (SRD[n], SRD[n] + 1, KARG[n]))
    A("s_load_dwordx2 s[%d:%d], s[0:1], 72" % (sB2P, sB2P + 1))
    A("v_lshrrev_b32 v1, 6, v0"); A("v_and_b32 v0, 63, v0"); A("v_readfirstlane_b32 s%d, v1" % sWAVE)
    for n in SRD:
        A("s_mov_b32 s%d, 0x%x" % (SRD[n] + 2, SIZE[n])); A("s_mov_b32 s%d, 0x20000" % (SRD[n] + 3))
    if xmap == 0:
        A("s_and_b32 s%d, s2, 7" % sR); A("s_lshl_b32 s%d, s%d, 5" % (sR, sR)); A("s_lshr_b32 s%d, s2, 3" % sT0); A("s_add_u32 s%d, s%d, s%d" % (sR, sR, sT0))
    elif xmap >= 4:
        A("s_lshr_b32 s%d, s2, 1" % sT0); A("s_xor_b32 s%d, s%d, s2" % (sT0, sT0)); A("s_and_b32 s%d, s%d, 1" % (sT0, sT0)); A("s_lshl_b32 s%d, s%d, 3" % (sT0, sT0))
        A("s_and_b32 s%d, s2, 4" % sT1); A("s_lshl_b32 s%d, s%d, 2" % (sT1, sT1)); A("s_add_u32 s%d, s%d, s%d" % (sT0, sT0, sT1))
        A("s_bfe_u32 s%d, s2, 0x10003" % sT1); A("s_lshl_b32 s%d, s%d, 2" % (sT1, sT1)); A("s_add_u32 s%d, s%d, s%d" % (sT0, sT0, sT1))
        A("s_and_b32 s%d, s2, 0xe0" % sR); A("s_add_u32 s%d, s%d, s%d" % (sR, sR, sT0))
        if xmap == 6:
            A("s_lshr_b32 s%d, s2, 5" % sT0); A("s_xor_b32 s%d, s%d, s2" % (sT0, sT0)); A("s_and_b32 s%d, s%d, 1" % (sT0, sT0))
        elif xmap == 7:
            A("s_lshr_b32 s%d, s2, 3" % sT0); A("s_xor_b32 s%d, s%d, s2" % (sT0, sT0)); A("s_and_b32 s%d, s%d, 1" % (sT0, sT0))
        else: A("s_and_b32 s%d, s2, 1" % sT0)
        A("s_bfe_u32 s%d, s2, 0x10004" % sT1)
        A("s_lshl_b32 s%d, s%d, 1" % ((sT0, sT0) if xmap != 5 else (sT1, sT1)))
        A("s_add_u32 s%d, s%d, s%d" % (sR, sR, sT0)); A("s_add_u32 s%d, s%d, s%d" % (sR, sR, sT1))
    else:
        if xmap == 2:
            A("s_lshr_b32 s%d, s2, 5" % sT0); A("s_add_u32 s%d, s2, s%d" % (sR, sT0))
        elif xmap == 3:
            A("s_bfe_u32 s%d, s2, 0x20003" % sT0); A("s_lshl_b32 s%d, s%d, 1" % (sT0, sT0)); A("s_add_u32 s%d, s2, s%d" % (sR, sT0))
        else: A("s_add_u32 s%d, s2, %d" % (sR, bshift))
        A("s_and_b32 s%d, s%d, 7" % (sR, sR)); A("s_lshl_b32 s%d, s%d, 2" % (sR, sR)); A("s_and_b32 s%d, s2, 0xe0" % sT0); A("s_add_u32 s%d, s%d, s%d" % (sR, sR, sT0))
        A("s_bfe_u32 s%d, s2, 0x20003" % sT0); A("s_add_u32 s%d, s%d, s%d" % (sR, sR, sT0))
    sRQ = sMB
    if xmap >= 4:
        A("s_and_b32 s%d, s2, 7" % sRQ); A("s_lshl_b32 s%d, s%d, 2" % (sRQ, sRQ)); A("s_and_b32 s%d, s2, 0xe0" % sT0); A("s_add_u32 s%d, s%d, s%d" % (sRQ, sRQ, sT0))
        A("s_bfe_u32 s%d, s2, 0x20003" % sT0); A("s_add_u32 s%d, s%d, s%d" % (sRQ, sRQ, sT0))
    elif qmap == 0: A("s_mov_b32 s%d, s%d" % (sRQ, sR))
    elif qmap == 1:
        A("s_and_b32 s%d, s2, 7" % sRQ); A("s_lshl_b32 s%d, s%d, 5" % (sRQ, sRQ)); A("s_lshr_b32 s%d, s2, 3" % sT0); A("s_add_u32 s%d, s%d, s%d" % (sRQ, sRQ, sT0))
    elif qmap == 2:
        A("s_lshr_b32 s%d, s%d, 3" % (sT0, sR)); A("s_and_b32 s%d, s%d, 0x1c" % (sT0, sT0)); A("s_add_u32 s%d, s%d, s%d" % (sT0, sT0, sR)); A("s_and_b32 s%d, s%d, 0x1c" % (sT0, sT0))
        A("s_and_b32 s%d, s%d, 0xe3" % (sRQ, sR)); A("s_or_b32 s%d, s%d, s%d" % (sRQ, sRQ, sT0))
    elif qmap == 4:
        A("s_lshr_b32 s%d, s%d, 5" % (sT0, sR)); A("s_lshl_b32 s%d, s%d, 1" % (sT0, sT0)); A("s_bfe_u32 s%d, s%d, 0x10001" % (sT1, sR)); A("s_add_u32 s%d, s%d, s%d" % (sT0, sT0, sT1))
        A("s_lshr_b32 s%d, s%d, 2" % (sT1, sT0)); A("s_lshl_b32 s%d, s%d, 1" % (sT1, sT1)); A("s_bfe_u32 s%d, s%d, 0x30002" % (sT2, sR)); A("s_add_u32 s%d, s%d, s%d" % (sT1, sT1, sT2))
        A("s_and_b32 s%d, s%d, 7" % (sT1, sT1)); A("s_lshl_b32 s%d, s%d, 3" % (sT0, sT0)); A("s_add_u32 s%d, s%d, s%d" % (sT0, sT0, sT1)); A("s_lshl_b32 s%d, s%d, 1" % (sT0, sT0))
        A("s_and_b32 s%d, s%d, 1" % (sT1, sR)); A("s_add_u32 s%d, s%d, s%d" % (sRQ, sT0, sT1))
    A("v_lshlrev_b32 v%d, 4, v0" % vL16); A("v_lshrrev_b32 v%d, 4, v0" % vG4); A("v_bfe_u32 v%d, v0, 2, 2" % vC4)
    A("v_and_b32 v%d, 3, v0" % vR4); A("v_and_b32 v%d, 15, v0" % vN16); A("v_mov_b32 v%d, 0x%x" % (vHI, HI)); A("v_mov_b32 v%d, 1" % vONE)
    A("s_mov_b32 s%d, 0x05040100" % sSELLO); A("s_mov_b32 s%d, 0x07060302" % sSELHI); A("s_mov_b32 s%d, 0xffff0000" % sMASK)
    A("s_mov_b32 s%d, 0x%x" % (sSCALE, f2u(128 ** -0.5))); A("s_mov_b32 s%d, 0x%x" % (sL2E, f2u(1.4426950408889634)))
    c0 = -2.0 * 0.7978845608028654 * 1.4426950408889634
    A("s_mov_b32 s%d, 0x%x" % (sC0, f2u(c0))); A("s_mov_b32 s%d, 0x%x" % (sC1, f2u(c0 * 0.044715)))
    A("s_lshr_b32 s%d, s%d, 5" % (sT0, sR)); A("s_lshl_b32 s%d, s%d, 15" % (sT0, sT0))
    A("s_and_b32 s%d, s%d, 31" % (sT1, sR)); A("s_lshl_b32 s%d, s%d, 8" % (sT1, sT1)); A("s_add_u32 s%d, s%d, s%d" % (sT0, sT0, sT1))
    A("s_add_u32 s%d, s%d, 0x%x" % (sOPOFF, sT0, WS_OP))
    A("s_and_b32 s%d, s%d, 7" % (sT0, sR)); A("s_lshl_b32 s%d, s%d, %d" % (sT0, sT0, 13 + spad))
    A("s_lshr_b32 s%d, s%d, 3" % (sT1, sR)); A("s_lshl_b32 s%d, s%d, %d" % (sT1, sT1, 6 + spad)); A("s_add_u32 s%d, s%d, s%d" % (sT0, sT0, sT1))
    A("s_add_u32 s%d, s%d, 0x%x" % (sSPOFF, sT0, WS_SP))
    A("s_lshr_b32 s%d, s%d, 2" % (sT0, sR)); A("s_lshl_b32 s%d, s%d, 7" % (sT0, sT0)); A("s_add_u32 s%d, s%d, 0x%x" % (sSTOFF, sT0, WS_ST))
    A("s_cmp_eq_u32 s%d, 4" % sWAVE); A("s_cbranch_scc1 L_loader")
    A("s_cmp_eq_u32 s%d, 5" % sWAVE); A("s_cbranch_scc1 L_comm")
    A("s_cmp_gt_u32 s%d, 5" % sWAVE); A("s_cbranch_scc1 L_mlp")

    vQ, vS, vTMP, vK = 32, 48, 112, 128
    vKA, vVA = 17, 17
    vM, vLs, vMO, vF, vOWA = 25, 26, 27, 28, 29
    vX = vS
    A("v_lshlrev_b32 v%d, 5, v0" % vT)
    A("v_lshrrev_b32 v%d, 1, v0" % (vT + 1)); A("v_lshlrev_b32 v%d, 13, v%d" % (vT + 1, vT + 1))
    A("v_and_b32 v%d, 1, v0" % (vT + 2)); A("v_lshl_add_u32 v%d, v%d, 4, v%d" % (vT + 1, vT + 2, vT + 1))
    A("s_lshl_b32 s%d, s%d, 11" % (sT2, sWAVE))
    A("s_lshl_b32 s%d, s%d, 20" % (sT0, sWAVE)); A("s_lshl_b32 s%d, s%d, 5" % (sT1, sRQ)); A("s_add_u32 s%d, s%d, s%d" % (sT0, sT0, sT1))
    A("s_lshl_b32 s%d, s%d, 13" % (sT1, sWAVE)); A("s_add_u32 s%d, s%d, %d" % (sT1, sT1, 12 * 8192))
    A("s_waitcnt lgkmcnt(0)")
    if ldst == 2: stamp(12)
    A("buffer_load_dwordx4 %s, v%d, %s, s%d offen" % (vr(vX, 4), vT, srd("X"), sT2))
    A("buffer_load_dwordx4 %s, v%d, %s, s%d offen offset:16" % (vr(vX + 4, 4), vT, srd("X"), sT2))
    nq0 = wqsplit if wqsplit else 4
    for a in range(nq0):
        A("s_add_u32 m0, s%d, %d" % (sT1, a * 1024))
        if 'q' in abl: A("buffer_load_dwordx4 v%d, %s, 0 offen lds" % (vL16, srd("X")))
        else: A("buffer_load_dwordx4 v%d, %s, s%d offen %s lds" % (vT + 1, srd("WQ"), sT0, polq))
        if a < 3: A("s_add_u32 s%d, s%d, 0x40000" % (sT0, sT0))
    if nq0 < 4: A("v_mov_b32 v31, v%d" % (vT + 1)); A("s_mov_b32 s12, s%d" % sT0)
    A("s_barrier")
    A("v_lshrrev_b32 v%d, 5, v0" % (vT + 3)); A("s_lshl_b32 s%d, s%d, 1" % (sT0, sWAVE)); A("v_add_u32 v%d, s%d, v%d" % (vT + 3, sT0, vT + 3))
    A("v_mul_u32_u24 v%d, %d, v%d" % (vT + 3, XN_STRIDE, vT + 3)); A("v_and_b32 v%d, 31, v0" % (vT + 4)); A("v_lshl_add_u32 v%d, v%d, 5, v%d" % (vT + 3, vT + 4, vT + 3))
    A("v_add_u32 v%d, v%d, v%d" % (vT + 3, vHI, vT + 3))
    A("v_and_b32 v%d, 7, v0" % (vT + 4)); A("v_mul_u32_u24 v%d, %d, v%d" % (vT + 4, XN_STRIDE, vT + 4)); A("v_lshl_add_u32 v%d, v%d, 4, v%d" % (vT + 4, vG4, vT + 4))
    A("s_lshl_b32 s%d, s%d, 8" % (sT0, sWAVE)); A("s_add_u32 s%d, s%d, %d" % (sT0, sT0, HI)); A("v_add_u32 v%d, s%d, v%d" % (vT + 4, sT0, vT + 4))
    A("v_lshlrev_b32 v%d, 8, v%d" % (vT + 5, vG4)); A("v_lshl_add_u32 v%d, v%d, 3, v%d" % (vT + 5, vN16, vT + 5)); A("v_add_u32 v%d, s%d, v%d" % (vT + 5, sT1, vT + 5))
    A("s_lshl_b32 s%d, s%d, 10" % (sT0, sWAVE)); A("s_add_u32 s%d, s%d, %d" % (sT0, sT0, HI)); A("v_add_u32 v%d, s%d, v%d" % (vT + 6, sT0, vL16))
    A("s_lshl_b32 s%d, s%d, 13" % (sT0, sWAVE)); A("v_lshlrev_b32 v%d, 8, v%d" % (vT, vN16)); A("v_add_u32 v%d, s%d, v%d" % (vT, sT0, vT))
    for m in range(4):
        A("v_add_u32 v%d, %d, v%d" % (vT + 1, 4 * m, vG4)); A("v_xor_b32 v%d, v%d, v%d" % (vT + 1, vT + 1, vN16))
        A("v_lshl_add_u32 v%d, v%d, 4, v%d" % (vKA + m, vT + 1, vT)); A("v_add_u32 v%d, 0x10000, v%d" % (vKA + 4 + m, vKA + m))
    A("s_lshl_b32 s%d, s%d, 2" % (sT0, sWAVE)); A("s_add_u32 s%d, s%d, %d" % (sT0, sT0, HI)); A("v_mov_b32 v%d, s%d" % (30, sT0))
    A("s_mov_b32 s%d, 0" % sFULL)
    A("s_waitcnt vmcnt(%d)" % nq0)
    for a in range(nq0, 4):
        A("s_add_u32 m0, s%d, %d" % (sT1, a * 1024))
        A("buffer_load_dwordx4 v31, %s, s12 offen %s lds" % (srd("WQ"), polq))
        if a < 3: A("s_add_u32 s12, s12, 0x40000")
    stamp(1)
    layernorm(vX, 8, vX + 8, vX + 24, vX + 40, 2)
    A("ds_write_b128 v%d, %s offset:%d" % (vT + 3, vr(vX, 4), L_XN)); A("ds_write_b128 v%d, %s offset:%d" % (vT + 3, vr(vX + 4, 4), L_XN + 16))
    lds_add(vHI, F_XN)
    A("s_waitcnt vmcnt(0)")
    for m in range(4):
        A("ds_read_b64_tr_b16 %s, v%d offset:%d" % (vr(vK + 4 * m, 2), vT + 5, m * 1024))
        A("ds_read_b64_tr_b16 %s, v%d offset:%d" % (vr(vK + 4 * m + 2, 2), vT + 5, m * 1024 + 128))
    lds_wait(F_XN, 4)
    for m in range(4): A("ds_read_b128 %s, v%d offset:%d" % (vr(vK + 16 + 4 * m, 4), vT + 4, L_XN + m * 64))
    for m in range(4):
        A("s_waitcnt lgkmcnt(%d)" % (3 - m))
        A("v_mfma_f32_16x16x32_bf16 %s, %s, %s, %s" % (vr(vTMP, 4), vr(vK + 4 * m, 4), vr(vK + 16 + 4 * m, 4), "0" if m == 0 else vr(vTMP, 4)))
    A("ds_write_b128 v%d, %s offset:%d" % (vT + 6, vr(vTMP, 4), L_QP))
    lds_add(vHI, F_QP)
    A("s_mov_b64 exec, 1"); A("ds_add_u32 v30, v%d offset:%d" % (vONE, F_FREED)); A("s_mov_b64 exec, -1")
    stamp(2)
    def wait_block(n4):
        A("s_add_u32 s%d, s%d, %d" % (sT0, sWAVE, 4 * n4 + 1))
        lds_wait(F_FULL, "s%d" % sT0, keep=sFULL)
    def read_k(j):
        base = vK + 32 * (j % 4)
        for t in range(2):
            for m in range(4):
                A("ds_read_b128 %s, v%d offset:%d" % (vr(base + 16 * t + 4 * m, 4), vKA + m + (4 if (j & 2) else 0), (j & 1) * 32768 + t * 4096))
    def qk_block(j):
        base = vK + 32 * (j % 4)
        for m in range(4):
            for t in range(2):
                acc = vr(vS + 8 * j + 4 * t, 4)
                A("v_mfma_f32_16x16x32_bf16 %s, %s, %s, %s" % (acc, vr(base + 16 * t + 4 * m, 4), vr(vQ + 4 * m, 4), "0" if m == 0 else acc))
    def round_block(j):
        for p in range(4):
            a, b, t = vS + 8 * j + 2 * p, vS + 8 * j + 2 * p + 1, vT + (p & 1)
            if mimic:
                A("v_cvt_pk_bf16_f32 v%d, v%d, v%d" % (t, a, b)); unpack(a, b, t)
            A("v_mul_f32 v%d, s%d, v%d" % (a, sSCALE, a)); A("v_mul_f32 v%d, s%d, v%d" % (b, sSCALE, b))
            if mimic:
                A("v_cvt_pk_bf16_f32 v%d, v%d, v%d" % (t, a, b)); unpack(a, b, t)
            if j == 0 and p == 0: A("v_max_f32 v%d, v%d, v%d" % (vM, a, b))
            else: A("v_max3_f32 v%d, v%d, v%d, v%d" % (vM, a, b, vM))
    for j in range(4):
        wait_block(j); read_k(j); lds_add(30, F_FREED)
    stamp(3)
    lds_wait(F_QR, 1)
    stamp(4)
    A("v_lshlrev_b32 v%d, 8, v%d" % (vT, vC4)); A("v_lshl_add_u32 v%d, v%d, 4, v%d" % (vT, vG4, vT)); A("v_add_u32 v%d, v%d, v%d" % (vT, vHI, vT))
    for m in range(4): A("ds_read_b128 %s, v%d offset:%d" % (vr(vQ + 4 * m, 4), vT, L_QB + m * 64))
    A("s_waitcnt lgkmcnt(0)")
    for j in range(4):
        qk_block(j)
        wait_block(4 + j); A("s_nop 3"); read_k(4 + j)
        if j >= 1: round_block(j - 1)
        lds_add(30, F_FREED)
    for j in range(4, 8):
        qk_block(j); round_block(j - 1)
    A("v_lshl_add_u32 v%d, v%d, 2, v%d" % (vT + 2, vG4, vC4))
    A("v_and_b32 v%d, 7, v%d" % (vT + 3, vT + 2)); A("v_lshlrev_b32 v%d, 1, v%d" % (vT + 3, vT + 3))
    A("v_lshrrev_b32 v%d, 1, v%d" % (vT + 4, vR4)); A("v_xor_b32 v%d, v%d, v%d" % (vT + 3, vT + 3, vT + 4))
    A("v_lshlrev_b32 v%d, 8, v%d" % (vT + 2, vT + 2)); A("v_lshl_add_u32 v%d, v%d, 4, v%d" % (vT + 2, vT + 3, vT + 2))
    A("v_and_b32 v%d, 1, v0" % (vT + 4)); A("v_lshl_add_u32 v%d, v%d, 3, v%d" % (vT + 2, vT + 4, vT + 2))
    A("s_lshl_b32 s%d, s%d, 13" % (sT0, sWAVE)); A("v_add_u32 v%d, s%d, v%d" % (vVA, sT0, vT + 2))
    for d in range(1, 8): A("v_xor_b32 v%d, %d, v%d" % (vVA + d, 32 * d, vVA))
    round_block(7)
    swap_red(vM, vT, "v_max_f32", 32); swap_red(vM, vT, "v_max_f32", 16)
    A("v_mul_f32 v%d, s%d, v%d" % (vM, sL2E, vM))
    A("v_lshlrev_b32 v%d, 4, v%d" % (vT + 1, vG4)); A("ds_bpermute_b32 v%d, v%d, v%d" % (vMO, vT + 1, vM))
    vP = vK
    for j in range(32):
        a, b = vS + 2 * j, vS + 2 * j + 1
        A("v_fma_f32 v%d, v%d, s%d, -v%d" % (a, a, sL2E, vM)); A("v_fma_f32 v%d, v%d, s%d, -v%d" % (b, b, sL2E, vM))
        A("v_exp_f32 v%d, v%d" % (a, a)); A("v_exp_f32 v%d, v%d" % (b, b))
        if j >= 1:
            pa, pb = a - 2, b - 2
            if j == 1: A("v_add_f32 v%d, v%d, v%d" % (vLs, pa, pb))
            else: A("v_add_f32 v%d, v%d, v%d" % (vLs, vLs, pa)); A("v_add_f32 v%d, v%d, v%d" % (vLs, vLs, pb))
            A("v_cvt_pk_bf16_f32 v%d, v%d, v%d" % (vP + j - 1, pa, pb))
    A("v_add_f32 v%d, v%d, v%d" % (vLs, vLs, vS + 62)); A("v_add_f32 v%d, v%d, v%d" % (vLs, vLs, vS + 63))
    A("v_cvt_pk_bf16_f32 v%d, v%d, v%d" % (vP + 31, vS + 62, vS + 63))
    swap_red(vLs, vT, "v_add_f32", 32); swap_red(vLs, vT, "v_add_f32", 16)
    A("s_lshl_b32 s%d, s%d, 5" % (sT0, sWAVE)); A("s_add_u32 s%d, s%d, %d" % (sT0, sT0, HI)); A("v_lshlrev_b32 v%d, 3, v%d" % (vT, vC4)); A("v_add_u32 v%d, s%d, v%d" % (vT, sT0, vT))
    A("v_mov_b32 v%d, v%d" % (vT + 2, vM)); A("v_mov_b32 v%d, v%d" % (vT + 3, vLs))
    A("s_mov_b64 exec, 0x1111"); A("ds_write_b64 v%d, %s offset:%d" % (vT, vr(vT + 2, 2), L_ST)); A("s_mov_b64 exec, -1")
    lds_add(vHI, F_ST)
    stamp(5)
    A("s_lshl_b32 s%d, s%d, 11" % (sT0, sWAVE)); A("s_add_u32 s%d, s%d, %d" % (sT0, sT0, HI + L_OW))
    A("v_lshlrev_b32 v%d, 9, v%d" % (vOWA, vG4)); A("v_lshl_add_u32 v%d, v%d, 2, v%d" % (vOWA, vN16, vOWA)); A("v_add_u32 v%d, s%d, v%d" % (vOWA, sT0, vOWA))
    vVB = vK + 32
    def read_v(j):
        base = vVB + 32 * (j & 1)
        for d in range(8):
            for t in range(2):
                A("ds_read_b64_tr_b16 %s, v%d offset:%d" % (vr(base + 4 * d + 2 * t, 2), vVA + d, (j & 1) * 32768 + t * 4096))
    def pv(j, d):
        base = vVB + 32 * (j & 1)
        acc = vr(vS + 4 * d, 4)
        A("v_mfma_f32_16x16x32_bf16 %s, %s, %s, %s" % (acc, vr(vP + 4 * j, 4), vr(base + 4 * d, 4), "0" if j == 0 else acc))
    vS2, vF2 = vS + 32, 31
    def factor(dst, m):
        lds_wait(F_GR, 1)
        A("v_lshl_add_u32 v%d, v%d, 3, v%d" % (vT, vG4, vHI)); A("ds_read_b64 %s, v%d offset:%d" % (vr(vT + 2, 2), vT, L_GS)); A("s_waitcnt lgkmcnt(0)")
        A("v_sub_f32 v%d, v%d, v%d" % (dst, m, vT + 2)); A("v_exp_f32 v%d, v%d" % (dst, dst)); A("v_mul_f32 v%d, v%d, v%d" % (dst, dst, vT + 3))
    def wait_pos(j, out):
        ok = A.label("pok"); again = A.label("pagain"); chk = A.label("pchk")
        A("s_add_u32 s%d, s%d, %d" % (sT0, sWAVE, 32 + 4 * j + 1))
        A("s_mov_b32 s%d, 0" % sSPIN)
        A("s_branch " + chk)
        A(again + ":")
        A("ds_read_b64 %s, v%d offset:%d" % (vr(vT + 2, 2), vHI, F_FULL)); A("s_waitcnt lgkmcnt(0)")
        A("v_readfirstlane_b32 s%d, v%d" % (sFULL, vT + 2)); A("v_readfirstlane_b32 s%d, v%d" % (sPLAN, vT + 3))
        A(chk + ":")
        A("s_cmp_ge_u32 s%d, s%d" % (sFULL, sT0)); A("s_cbranch_scc1 " + ok)
        A("s_sub_u32 s%d, s%d, 0x100" % (sT1, sPLAN)); A("s_cmp_le_u32 s%d, %d" % (sT1, j)); A("s_cbranch_scc1 " + out)
        A("s_add_u32 s%d, s%d, 1" % (sSPIN, sSPIN)); A("s_cmp_lt_u32 s%d, %d" % (sSPIN, lspin)); A("s_cbranch_scc1 " + again)
        A("s_branch " + out)
        A(ok + ":")
    if steal:
        lds_wait(F_AM, 1)
        A("v_lshrrev_b32 v%d, 2, v0" % vT); A("v_lshlrev_b32 v%d, 4, v%d" % (vT, vT))
        A("s_lshl_b32 s%d, s%d, 12" % (sT0, sR)); A("s_lshl_b32 s%d, s%d, 10" % (sT1, sWAVE)); A("s_add_u32 s%d, s%d, s%d" % (sT0, sT0, sT1)); A("s_add_u32 s%d, s%d, 0x%x" % (sT0, sT0, WS_PR))
        A("s_mov_b32 exec_lo, 0x11111111"); A("s_mov_b32 exec_hi, 0x11111111")
        for u in range(3): A("buffer_store_dwordx4 %s, v%d, %s, s%d offen offset:%d sc1" % (vr(vP + 4 * (5 + u), 4), vT, srd("WS"), sT0, 256 * u))
        A("s_mov_b64 exec, 0x1111")
        A("buffer_store_dword v%d, v0, %s, s%d offen offset:768 sc1" % (vM, srd("WS"), sT0))
        A("s_mov_b64 exec, -1")
        A("s_mov_b32 s%d, 0" % sPLAN)
    for j in range(11 if steal else 8):
        if j == 7:
            factor(vF, vMO)
            stamp(6)
        if j < NOWN: wait_block(8 + j)
        else: wait_pos(j, "L_vout%d" % j)
        if j == 7: stamp(7)
        if j >= 8:
            if j == 8:
                A("v_lshrrev_b32 v%d, 2, v0" % (vT + 4)); A("v_lshlrev_b32 v%d, 4, v%d" % (vT + 4, vT + 4))
                A("s_lshl_b32 s%d, s%d, 10" % (sT1, sWAVE)); A("s_add_u32 s%d, s%d, %d" % (sT1, sT1, HI + L_PP)); A("v_add_u32 v%d, s%d, v%d" % (vT + 4, sT1, vT + 4))
                A("v_lshl_add_u32 v%d, v%d, 2, s%d" % (vT + 5, vG4, sT1))
                for u in range(3): A("ds_read_b128 %s, v%d offset:%d" % (vr(vP + 4 * u, 4), vT + 4, 256 * (2 - u)))
                A("ds_read_b32 v%d, v%d offset:768" % (vF2, vT + 5)); A("s_waitcnt lgkmcnt(0)")
                factor(vF2, vF2)
        read_v(j)
        if j % 4 == 1:
            for d in range(8): A("v_add_u32 v%d, 0x10000, v%d" % (vVA + d, vVA + d))
        if j % 4 == 3 and (steal or j < 7):
            for d in range(8): A("v_subrev_u32 v%d, 0x10000, v%d" % (vVA + d, vVA + d))
        for d in range(8):
            A("s_waitcnt lgkmcnt(%d)" % (14 - 2 * d))
            if d == 7 and j < (7 if steal else 4):
                A("s_mov_b64 exec, 1"); A("ds_add_u32 v30, v%d offset:%d" % (vONE, F_FREED)); A("s_mov_b64 exec, -1")
            if j < 8: pv(j, d)
            else:
                acc = vr(vS2 + 4 * d, 4)
                A("v_mfma_f32_16x16x32_bf16 %s, %s, %s, %s" % (acc, vr(vP + 4 * (j - 8), 4), vr(vVB + 32 * (j & 1) + 4 * d, 4), "0" if j == 8 else acc))
    if steal:
        A("L_vout9:"); A("L_vout10:")
        A("s_nop 7")
        for d in range(8): A("v_mul_f32 v%d, v%d, v%d" % (vTMP + d, vF, vS + 4 * d))
        for d in range(8): A("v_fmac_f32 v%d, v%d, v%d" % (vTMP + d, vF2, vS2 + 4 * d))
        A("s_branch L_vsum")
        A("L_vout5:"); A("L_vout6:")
        factor(vF, vMO)
        A("L_vout7:"); A("L_vout8:")
        A("s_nop 7")
    for d in range(8): A("v_mul_f32 v%d, v%d, v%d" % (vTMP + d, vF, vS + 4 * d))
    if steal: A("L_vsum:")
    for d in range(0, 8, 2): A("ds_write2_b32 v%d, v%d, v%d offset0:%d offset1:%d" % (vOWA, vTMP + d, vTMP + d + 1, 16 * d, 16 * d + 16))
    vWOA, vOIR, vWO = 17, 18, vK
    A("v_lshlrev_b32 v%d, 7, v%d" % (vWOA, vC4)); A("v_lshl_add_u32 v%d, v%d, 10, v%d" % (vWOA, vG4, vWOA)); A("v_lshl_add_u32 v%d, v%d, 3, v%d" % (vWOA, vR4, vWOA))
    A("s_lshl_b32 s%d, s%d, 5" % (sT0, sWAVE)); A("s_add_u32 s%d, s%d, %d" % (sT0, sT0, HI + L_WO)); A("v_add_u32 v%d, s%d, v%d" % (vWOA, sT0, vWOA))
    A("s_waitcnt lgkmcnt(0)")
    A("s_barrier")
    stamp(8)
    def wo_reads():
        if wolate: lds_wait(F_WO, 1, sl=0)
        for m in range(4):
            A("ds_read_b64_tr_b16 %s, v%d offset:%d" % (vr(vWO + 4 * m, 2), vWOA, m * 4096))
            A("ds_read_b64_tr_b16 %s, v%d offset:%d" % (vr(vWO + 4 * m + 2, 2), vWOA, m * 4096 + 512))
    def oir_addr():
        A("v_lshrrev_b32 v%d, 1, v%d" % (vT, vN16)); A("v_lshlrev_b32 v%d, 10, v%d" % (vT, vT)); A("v_and_b32 v%d, 1, v0" % (vT + 1)); A("v_lshl_add_u32 v%d, v%d, 8, v%d" % (vT, vT + 1, vT))
        for m in range(4):
            A("v_add_u32 v%d, %d, v%d" % (vT + 1, 4 * m, vG4)); A("v_xor_b32 v%d, v%d, v%d" % (vT + 1, vT + 1, vN16))
            A("v_lshl_add_u32 v%d, v%d, 4, v%d" % (vOIR + m, vT + 1, vT))
        A("v_lshrrev_b32 v%d, 1, v%d" % (22, vN16)); A("v_lshlrev_b32 v22, %d, v22" % (16 + spad)); A("v_lshl_add_u32 v22, v%d, 4, v22" % vG4)
    A("s_cmp_gt_u32 s%d, 1" % sWAVE); A("s_cbranch_scc1 L_gather23")
    A("s_lshl_b32 s%d, s%d, 10" % (sT0, sWAVE)); A("s_add_u32 s%d, s%d, %d" % (sT0, sT0, HI + L_OW)); A("v_add_u32 v%d, s%d, v%d" % (vT, sT0, vL16))
    for w in range(4): A("ds_read_b128 %s, v%d offset:%d" % (vr(vS + 4 * w, 4), vT, w * 2048))
    A("v_lshrrev_b32 v%d, 5, v0" % (vT + 1)); A("v_lshlrev_b32 v%d, 13, v%d" % (vT + 1, vT + 1)); A("v_and_b32 v%d, 31, v0" % (vT + 2)); A("v_lshl_add_u32 v%d, v%d, 3, v%d" % (vT + 1, vT + 2, vT + 1))
    A("s_lshl_b32 s%d, s%d, 14" % (sT0, sWAVE)); A("s_add_u32 s%d, s%d, s%d" % (sT0, sT0, sOPOFF))
    A("s_waitcnt lgkmcnt(2)")
    for i in range(4): A("v_add_f32 v%d, v%d, v%d" % (vS + i, vS + i, vS + 4 + i))
    A("s_waitcnt lgkmcnt(0)")
    for i in range(4): A("v_add_f32 v%d, v%d, v%d" % (vS + 8 + i, vS + 8 + i, vS + 12 + i))
    for i in range(4): A("v_add_f32 v%d, v%d, v%d" % (vS + i, vS + i, vS + 8 + i))
    A("v_cvt_pk_bf16_f32 v%d, v%d, v%d" % (vTMP, vS, vS + 1)); A("v_cvt_pk_bf16_f32 v%d, v%d, v%d" % (vTMP + 1, vS + 2, vS + 3))
    A("buffer_store_dwordx2 %s, v%d, %s, s%d offen %s" % (vr(vTMP, 2), vT + 1, srd("WS"), sT0, ts))
    stamp(11)
    wo_reads(); oir_addr()
    A("s_branch L_barE_c")
    def gather(idx_sgpr, extra):
        vGa = 40
        A("s_lshr_b32 s%d, s%d, 3" % (sT1, sR)); A("s_lshl_b32 s%d, s%d, 13" % (sT1, sT1)); A("s_lshl_b32 s%d, s%d, 11" % (sT0, idx_sgpr))
        A("s_add_u32 s%d, s%d, s%d" % (sT1, sT1, sT0)); A("s_add_u32 s%d, s%d, 0x%x" % (sT1, sT1, WS_OP))
        lds_ = [(lambda: A("buffer_load_dwordx4 %s, v%d, %s, s%d offen %s" % (vr(vGa, 4), vL16, srd("WS"), sT1, tl)), list(range(vGa, vGa + 4))),
                (lambda: A("buffer_load_dwordx4 %s, v%d, %s, s%d offen offset:1024 %s" % (vr(vGa + 4, 4), vL16, srd("WS"), sT1, tl)), list(range(vGa + 4, vGa + 8)))]
        if td1: A("s_sleep %d" % td1)
        if at1:
            A("v_lshlrev_b32 v%d, 3, v0" % (vT + 7))
            apoll(vGa, vT + 7, sT1, 0, 0, first="only")
            extra()
            A("v_lshrrev_b32 v%d, 5, v0" % (vT + 2)); A("s_lshl_b32 s%d, s%d, 2" % (sT2, idx_sgpr)); A("v_add_u32 v%d, s%d, v%d" % (vT + 3, sT2, vT + 2))
            A("v_bfe_u32 v%d, v0, 1, 4" % (vT + 4)); A("v_xor_b32 v%d, v%d, v%d" % (vT + 3, vT + 3, vT + 4))
            A("v_lshlrev_b32 v%d, 8, v%d" % (vT + 2, vT + 2)); A("v_add_u32 v%d, s%d, v%d" % (vT + 2, sT0, vT + 2))
            A("v_and_b32 v%d, 1, v0" % (vT + 4)); A("v_lshl_add_u32 v%d, v%d, 3, v%d" % (vT + 2, vT + 4, vT + 2))
            A("v_lshl_add_u32 v%d, v%d, 4, v%d" % (vT + 5, vT + 3, vT + 2)); A("v_xor_b32 v%d, 32, v%d" % (vT + 6, vT + 5))
            apoll(vGa, vT + 7, sT1, 24, tsleep, first=False)
            stamp(11)
            for k in range(4): A("ds_write_b64 v%d, %s offset:%d" % (vT + 5 + (k >> 1), vr(vGa + 2 * k, 2), 512 * k))
            return
        for i_, _ in lds_: i_()
        A("v_and_b32 v%d, 1, v%d" % (vT + 2, vG4)); A("s_lshl_b32 s%d, s%d, 2" % (sT2, idx_sgpr)); A("v_add_u32 v%d, s%d, v%d" % (vT + 2, sT2, vT + 2))
        A("v_xor_b32 v%d, v%d, v%d" % (vT + 3, vT + 2, vN16)); A("v_xor_b32 v%d, 2, v%d" % (vT + 4, vT + 3))
        A("v_lshlrev_b32 v%d, 8, v%d" % (vT + 2, vG4)); A("v_add_u32 v%d, s%d, v%d" % (vT + 2, sT0, vT + 2))
        A("v_lshl_add_u32 v%d, v%d, 4, v%d" % (vT + 5, vT + 3, vT + 2)); A("v_lshl_add_u32 v%d, v%d, 4, v%d" % (vT + 6, vT + 4, vT + 2))
        extra()
        gpoll(lds_, first=False, sleep=tsleep, P=P1)
        stamp(11)
        A("ds_write_b128 v%d, %s" % (vT + 5, vr(vGa, 4))); A("ds_write_b128 v%d, %s offset:1024" % (vT + 6, vr(vGa + 4, 4)))
    A("L_gather23:")
    A("s_sub_u32 s%d, s%d, 2" % (sMU, sWAVE))
    gather(sMU, lambda: (wo_reads(), oir_addr()))
    A("L_barE_c:")
    A("s_waitcnt lgkmcnt(0)")
    A("s_barrier")
    stamp(9)
    for u in range(2):
        for m in range(4): A("ds_read_b128 %s, v%d offset:%d" % (vr(vS + 16 * u + 4 * m, 4), vOIR + m, u * 512))
    A("s_lshl_b32 s%d, s%d, %d" % (sT0, sWAVE, 11 + spad)); A("s_add_u32 s%d, s%d, s%d" % (sT0, sT0, sSPOFF))
    for u in range(2):
        for m in range(4):
            A("s_waitcnt lgkmcnt(%d)" % (7 - 4 * u - m))
            acc = vr(vTMP + 4 * u, 4)
            A("v_mfma_f32_16x16x32_bf16 %s, %s, %s, %s" % (acc, vr(vWO + 4 * m, 4), vr(vS + 16 * u + 4 * m, 4), "0" if m == 0 else acc))
    for i in range(4): A("v_add_f32 v%d, v%d, v%d" % (vTMP + i, vTMP + i, vTMP + 4 + i))
    for i in range(4): dpp("v_add_f32", vTMP + i, "quad_perm:[1,0,3,2]")
    A("s_mov_b32 exec_lo, 0x55555555"); A("s_mov_b32 exec_hi, 0x55555555")
    stamp(10)
    A("buffer_store_dwordx4 %s, v22, %s, s%d offen %s" % (vr(vTMP, 4), srd("WS"), sT0, ts))
    A("s_mov_b64 exec, -1")
    A("s_branch L_done")

    A("L_loader:")
    if ldprio: A("s_setprio %d" % ldprio)
    vO = 17
    A("v_lshlrev_b32 v%d, 8, v%d" % (vT, vG4))
    for i in range(4):
        A("v_add_u32 v%d, %d, v%d" % (vT + 1, 4 * i, vG4)); A("v_xor_b32 v%d, v%d, v%d" % (vT + 1, vT + 1, vN16)); A("v_lshl_add_u32 v%d, v%d, 4, v%d" % (vO + i, vT + 1, vT))
    for i in range(2):
        A("v_add_u32 v%d, %d, v%d" % (vT + 1, 4 * i, vG4)); A("v_lshlrev_b32 v%d, 1, v%d" % (vT + 1, vT + 1))
        A("v_xor_b32 v%d, v%d, v%d" % (vT + 1, vT + 1, vN16)); A("v_lshl_add_u32 v%d, v%d, 4, v%d" % (vO + 4 + i, vT + 1, vT))
    sG, sSLOT, sFR, sN = 12, 13, 88, 92
    A("s_bfe_u32 s%d, s%d, 0x30002" % (sBASE, sR)); A("s_lshl_b32 s%d, s%d, 23" % (sBASE, sBASE)); A("s_lshr_b32 s%d, s%d, 5" % (sT0, sR)); A("s_lshl_b32 s%d, s%d, 20" % (sT0, sT0))
    A("s_add_u32 s%d, s%d, s%d" % (sBASE, sBASE, sT0)); A("s_and_b32 s%d, s%d, 3" % (sT0, sR)); A("s_lshl_b32 s%d, s%d, 18" % (sT0, sT0)); A("s_add_u32 s%d, s%d, s%d" % (sBASE, sBASE, sT0))
    if rot:
        A("s_mov_b32 s94, s%d" % sBASE)
        A("s_mul_i32 s%d, s%d, %d" % (sT0, sR, rot)); A("s_lshr_b32 s%d, s%d, 5" % (sT1, sR)); A("s_add_u32 s%d, s%d, s%d" % (sT0, sT0, sT1))
        A("s_and_b32 s%d, s%d, 31" % (sT0, sT0)); A("s_lshl_b32 s%d, s%d, 13" % (sT0, sT0)); A("s_add_u32 s%d, s%d, s%d" % (sBASE, sBASE, sT0))
    if Fhi:
        A("s_and_b32 s%d, s2, 7" % sT0); A("s_lshr_b32 s%d, %d, s%d" % (sT0, himask, sT0)); A("s_and_b32 s%d, s%d, 1" % (sT0, sT0)); A("s_cselect_b32 s95, %d, %d" % (Fhi, F))
    A("s_mov_b32 s94, 0"); A("s_mov_b32 s93, 0"); A("s_mov_b32 s%d, s%d" % (sOFF, sBASE)); A("s_mov_b32 s%d, 0" % sG); A("s_mov_b32 s%d, 0" % sSLOT); A("s_mov_b32 s%d, 0" % sN)
    A("s_waitcnt lgkmcnt(0)")
    def publish_full(sgpr):
        A("v_mov_b32 v%d, s%d" % (vT, sgpr)); A("s_mov_b64 exec, 1"); A("ds_max_u32 v%d, v%d offset:%d" % (vHI, vT, F_FULL)); A("s_mov_b64 exec, -1")
    def dma_block(isk):
        Dm = D if isk else DV
        for half in range(2):
            A("s_mov_b32 m0, s%d" % sSLOT)
            if Dm: A("s_waitcnt vmcnt(%d)" % Dm)
            for i in range(4):
                A("buffer_load_dwordx4 v%d, %s, s%d offen offset:%d %s lds" % (vO + i if isk else vO + 4 + (i & 1), srd("K" if isk else "V"), sOFF, i * 1024, pol))
            A("s_add_u32 s%d, s%d, 4096" % (sOFF, sOFF)); A("s_add_u32 s%d, s%d, 4096" % (sSLOT, sSLOT))
            if Dm and (4 * half - Dm) % 8 < 4:
                A("s_add_i32 s%d, s%d, %d" % (sT0, sN, (4 * half - Dm) // 8)); A("s_max_i32 s%d, s%d, 0" % (sT0, sT0)); publish_full(sT0)
        if rot:
            A("s_and_b32 s%d, s%d, 0x3ffff" % (sOFF, sOFF)); A("s_or_b32 s%d, s%d, s94" % (sOFF, sOFF))
        A("s_and_b32 s%d, s%d, 0x1ffff" % (sSLOT, sSLOT)); A("s_add_u32 s%d, s%d, 1" % (sN, sN))
    if ldst == 2: stamp(1)
    for _ in range(pre): dma_block(True)
    A("s_barrier")
    if ldst == 2: stamp(2)
    for _ in range(4 - pre): dma_block(True)
    A("s_mov_b32 s%d, 1" % sG)
    if ldst == 2: stamp(3)
    def read_freed():
        A("ds_read_b128 %s, v%d offset:%d" % (vr(vT + 4, 4), vHI, F_FREED)); A("s_waitcnt lgkmcnt(0)")
        for c in range(4): A("v_readfirstlane_b32 s%d, v%d" % (sFR + c, vT + 4 + c))
    for isk, last in ((True, 8), (False, 19 if steal else 16)):
        loop = "L_ld_k" if isk else "L_ld_v"
        if not isk: A("s_mov_b32 s%d, s%d" % (sOFF, sBASE))
        A(loop + ":")
        for g_, reg in ((p_a, 16), (p_b, 18)):
            if g_ > 0 and g_ < 16 and (g_ < 8) == isk:
                sk = A.label("st"); A("s_cmp_lg_u32 s%d, %d" % (sG, g_)); A("s_cbranch_scc1 " + sk); A("s_memrealtime s[%d:%d]" % (reg, reg + 1)); A(sk + ":")
        if ldst == 1:
            for k, g in enumerate((2, 3, 4, 5, 6, 7) if isk else (8, 10, 12, 14)):
                sk = A.label("st"); A("s_cmp_lg_u32 s%d, %d" % (sG, g)); A("s_cbranch_scc1 " + sk); stamp(k + 1 if isk else k + 7); A(sk + ":")
        if steal and not isk:
            go = A.label("pgo"); again = A.label("pagain")
            A("s_cmp_lt_u32 s%d, %d" % (sG, 8 + NOWN)); A("s_cbranch_scc1 " + go)
            A("s_mov_b32 s%d, 0" % sSPIN); A("s_sub_u32 s%d, s%d, 8" % (sT1, sG))
            if ldst: A("s_memrealtime s[14:15]")
            A(again + ":")
            A("ds_read_b32 v%d, v%d offset:%d" % (vPOLL, vHI, F_PLAN)); A("s_waitcnt lgkmcnt(0)"); A("v_readfirstlane_b32 s%d, v%d" % (sT0, vPOLL))
            A("s_and_b32 s%d, s%d, 0xff" % (sT2, sT0)); A("s_cmp_gt_u32 s%d, s%d" % (sT2, sT1)); A("s_cbranch_scc1 L_granted")
            A("s_cmp_ge_u32 s%d, 0x100" % sT0); A("s_cbranch_scc1 L_ld_end")
            for k in range(F - 1, -1, -1):
                A("s_cmp_eq_u32 s%d, %d" % (sSPIN, F - 1 - k)); nx = A.label("nx"); A("s_cbranch_scc0 " + nx)
                A("s_sub_u32 s%d, s%d, %d" % (sT0, sN, k)); A("s_waitcnt vmcnt(%d)" % (8 * k)); publish_full(sT0); A(nx + ":")
            if ldst: A("s_add_u32 s93, s93, 1")
            A("s_add_u32 s%d, s%d, 1" % (sSPIN, sSPIN)); A("s_cmp_lt_u32 s%d, %d" % (sSPIN, lspin)); A("s_cbranch_scc1 " + again)
            A("s_branch L_ld_end")
            A("L_granted:")
            if ldst:
                A("s_memrealtime s[36:37]"); A("s_waitcnt lgkmcnt(0)"); A("s_sub_u32 s36, s36, s14"); A("s_add_u32 s94, s94, s36")
            A("s_cmp_lt_u32 s%d, 16" % sG); A("s_cbranch_scc1 " + go)
            A("s_sub_u32 s%d, 23, s%d" % (sT0, sG)); A("s_lshl_b32 s%d, s%d, 15" % (sT0, sT0)); A("s_xor_b32 s%d, s%d, 0x80000" % (sOFF, sBASE)); A("s_add_u32 s%d, s%d, s%d" % (sOFF, sOFF, sT0))
            A(go + ":")
        read_freed()
        A("s_sub_i32 s%d, s%d, 2" % (sT1, sG))
        if Fhi and hiend < 16:
            A("s_cmp_ge_u32 s%d, %d" % (sG, hiend)); A("s_cselect_b32 s95, %d, s95" % F)
        for c in range(4):
            go = A.label("go"); sl = A.label("slow")
            A("s_cmp_ge_i32 s%d, s%d" % (sFR + c, sT1)); A("s_cbranch_scc1 " + go)
            A("s_waitcnt vmcnt(0)"); publish_full(sN)
            if ldst: A("s_add_u32 s93, s93, 100")
            A("s_mov_b32 s%d, 0" % sSPIN)
            A(sl + ":")
            read_freed()
            A("s_cmp_ge_i32 s%d, s%d" % (sFR + c, sT1)); A("s_cbranch_scc1 " + go)
            A("s_add_u32 s%d, s%d, 1" % (sSPIN, sSPIN)); A("s_cmp_lt_u32 s%d, %d" % (sSPIN, lspin)); A("s_cbranch_scc1 " + sl)
            A(go + ":")
            dma_block(isk)
            if D: pass
            elif Fhi:
                hi = A.label("hi")
                A("s_sub_i32 s%d, s%d, s95" % (sT0, sN)); A("s_max_i32 s%d, s%d, 0" % (sT0, sT0))
                A("s_waitcnt vmcnt(%d)" % (8 * Fhi)); A("s_cmp_eq_u32 s95, %d" % Fhi); A("s_cbranch_scc1 " + hi)
                A("s_waitcnt vmcnt(%d)" % (8 * F)); A(hi + ":"); publish_full(sT0)
            else:
                A("s_sub_i32 s%d, s%d, %d" % (sT0, sN, F))
                if F > 5: A("s_max_i32 s%d, s%d, 0" % (sT0, sT0))
                A("s_waitcnt vmcnt(%d)" % (8 * F)); publish_full(sT0)
        if stamps:
            pass
        A("s_add_u32 s%d, s%d, 1" % (sG, sG)); A("s_cmp_lt_u32 s%d, %d" % (sG, last)); A("s_cbranch_scc1 " + loop)
        if not ldst: stamp(1 if isk else 2)
    def wo_dma():
        A("v_lshrrev_b32 v%d, 3, v0" % (vT + 4)); A("v_lshlrev_b32 v%d, 10, v%d" % (vT + 4, vT + 4)); A("v_and_b32 v%d, 7, v0" % (vT + 5)); A("v_lshl_add_u32 v%d, v%d, 4, v%d" % (vT + 4, vT + 5, vT + 4))
        A("s_lshr_b32 s%d, s%d, 3" % (sT0, sR)); A("s_lshl_b32 s%d, s%d, 17" % (sT0, sT0)); A("s_and_b32 s%d, s%d, 7" % (sT1, sR)); A("s_lshl_b32 s%d, s%d, 7" % (sT1, sT1))
        A("s_add_u32 s%d, s%d, s%d" % (sT0, sT0, sT1))
        for a in range(16):
            A("s_mov_b32 m0, %d" % (HI + L_WO + a * 1024))
            A("buffer_load_dwordx4 v%d, %s, s%d offen %s lds" % (vT + 4, srd("WO"), sT0, polo))
            if a < 15: A("s_add_u32 s%d, s%d, 0x2000" % (sT0, sT0))
    if steal:
        A("L_ld_end:")
        A("s_mov_b64 exec, 1"); A("ds_write_b32 v%d, v%d offset:%d" % (vHI, vONE, F_LI)); A("s_mov_b64 exec, -1")
    if wolate == 1: wo_dma()
    for k in range((DV + 4 + 7) // 8 - 1 if D else max(F, Fhi) - 1, -1, -1):
        A("s_sub_u32 s%d, s%d, %d" % (sT0, sN, k)); A("s_waitcnt vmcnt(%d)" % (8 * k + (16 if wolate == 1 else 0))); publish_full(sT0)
    if wolate == 1:
        if ldst: stamp(11)
        A("s_waitcnt vmcnt(0)"); A("s_mov_b64 exec, 1"); A("ds_write_b32 v%d, v%d offset:%d" % (vHI, vONE, F_WO)); A("s_mov_b64 exec, -1")
    if ldst:
        if wolate == 1: stamp(12)
        else:
            stamp(11)
            A("s_waitcnt lgkmcnt(0)"); A("s_mul_i32 s%d, s%d, 25" % (sT0, sN)); A("s_add_u32 s40, s16, s%d" % sT0); A("s_addc_u32 s41, s17, 0")
            if steal: A("s_add_u32 s36, s16, s94"); A("s_addc_u32 s37, s17, 0")
    else: stamp(3)
    if p_b >= 0:
        if p_b == 16: A("s_memrealtime s[18:19]")
        A("s_waitcnt lgkmcnt(0)"); A("s_sub_u32 s18, s18, s16"); A("v_mov_b32 v8, s18"); A("s_mov_b64 exec, 1"); A("buffer_atomic_add v8, off, %s, 0 offset:4" % srd("DBG")); A("s_mov_b64 exec, -1")
    if pspan:
        A("s_memrealtime s[18:19]"); A("s_waitcnt lgkmcnt(0)"); A("s_not_b32 s16, s16"); A("v_mov_b32 v8, s18"); A("v_mov_b32 v9, s16"); A("s_mov_b64 exec, 1")
        A("buffer_atomic_umax v8, off, %s, 0 offset:4" % srd("DBG")); A("buffer_atomic_umax v9, off, %s, 0 offset:8" % srd("DBG")); A("s_mov_b64 exec, -1")
    if probe:
        A("s_memrealtime s[20:21]"); A("s_and_b32 s6, s2, 7"); A("s_lshr_b32 s6, %d, s6" % probe); A("s_and_b32 s6, s6, 1"); A("s_lshl_b32 s6, s6, 2"); A("s_add_u32 s6, s6, 4")
        A("s_waitcnt lgkmcnt(0)"); A("v_mov_b32 v8, s20"); A("s_mov_b64 exec, 1"); A("buffer_atomic_add v8, off, %s, s6" % srd("DBG")); A("s_mov_b64 exec, -1")
    A("s_waitcnt lgkmcnt(0)")
    A("s_branch L_done")

    def slot_addrs():
        A("v_lshlrev_b32 v28, 5, v0")
        A("s_and_b32 s%d, s%d, 3" % (sT0, sR)); A("s_lshl_b32 s%d, s%d, 3" % (sT0, sT0)); A("s_add_u32 s%d, s%d, s%d" % (sMU, sT0, sSTOFF))
    A("L_comm:")
    vZ = 20
    for i in range(4): A("v_mov_b32 v%d, 0" % (vZ + i))
    A("v_lshl_add_u32 v%d, v0, 2, v%d" % (vT, vHI))
    A("s_mov_b64 exec, 0xffff"); A("ds_write_b32 v%d, v%d offset:%d" % (vT, vZ, L_FLG)); A("s_mov_b64 exec, -1")
    slot_addrs()
    sEP = 4
    def epoch():
        A("s_waitcnt vmcnt(0)")
        A("v_readfirstlane_b32 s%d, v30" % sEP); A("v_readfirstlane_b32 s%d, v31" % (sEP + 1))
        A("s_add_u32 s%d, s%d, 0x%x" % (sEP, sEP, EP_STEP & 0xffffffff)); A("s_addc_u32 s%d, s%d, 0x%x" % (sEP + 1, sEP + 1, EP_STEP >> 32))
    A("s_waitcnt lgkmcnt(0)")
    A("buffer_load_dwordx2 v[30:31], off, %s, 0 offset:%d sc1" % (srd("WS"), WS_EP))
    A("s_barrier")
    A("v_add_u32 v%d, v%d, v%d" % (vT, vHI, vL16))
    A("v_and_b32 v29, 7, v0"); A("v_lshlrev_b32 v29, 14, v29"); A("v_lshl_add_u32 v29, v%d, 4, v29" % vG4)
    A("s_lshl_b32 s%d, s%d, 6" % (sT2, sRQ)); A("s_add_u32 s%d, s%d, 0x%x" % (sT2, sT2, WS_Q))
    A("s_bfe_u32 s%d, s%d, 0x30002" % (sT0, sR)); A("s_lshl_b32 s%d, s%d, 14" % (sT0, sT0)); A("s_lshr_b32 s%d, s%d, 5" % (sT1, sR)); A("s_lshl_b32 s%d, s%d, 11" % (sT1, sT1))
    A("s_add_u32 s%d, s%d, s%d" % (sT0, sT0, sT1)); A("s_add_u32 s%d, s%d, 0x%x" % (sT0, sT0, WS_Q))
    A("v_lshl_add_u32 v27, v0, 3, v%d" % vHI)
    epoch()
    A("v_mov_b32 v38, s%d" % sEP); A("v_mov_b32 v39, s%d" % (sEP + 1))
    stamp(1)
    lds_wait(F_QP, 4)
    for w in range(4): A("ds_read_b128 %s, v%d offset:%d" % (vr(40 + 4 * w, 4), vT, L_QP + w * 1024))
    A("s_waitcnt lgkmcnt(0)")
    for i in range(4): A("v_add_f32 v%d, v%d, v%d" % (40 + i, 40 + i, 44 + i)); A("v_add_f32 v%d, v%d, v%d" % (48 + i, 48 + i, 52 + i))
    for i in range(4): A("v_add_f32 v%d, v%d, v%d" % (40 + i, 40 + i, 48 + i))
    A("v_cvt_pk_bf16_f32 v36, v40, v41"); A("v_cvt_pk_bf16_f32 v37, v42, v43")
    A("s_mov_b32 exec_lo, 0x00ff00ff"); A("s_mov_b32 exec_hi, 0x00ff00ff")
    A("buffer_store_dwordx4 v[36:39], v29, %s, s%d offen sc1" % (srd("WS"), sT2))
    A("s_mov_b64 exec, -1")
    stamp(2)
    if qdelay: A("s_sleep %d" % qdelay)
    if qtrig: lds_wait(F_FULL, qtrig, sl=4)
    gpoll([(lambda: A("buffer_load_dwordx4 v[32:35], v%d, %s, s%d offen sc1" % (vL16, srd("WS"), sT0)), [32, 33, 34, 35]),
           (lambda: A("buffer_load_dwordx4 v[40:43], v%d, %s, s%d offen offset:1024 sc1" % (vL16, srd("WS"), sT0)), [40, 41, 42, 43])], sleep=qsleep, tag="s[%d:%d]" % (sEP, sEP + 1))
    A("ds_write_b64 v27, v[32:33] offset:%d" % L_QB); A("ds_write_b64 v27, v[40:41] offset:%d" % (L_QB + 512))
    lds_add(vHI, F_QR)
    stamp(4)
    def all_marked():
        A("v_lshlrev_b32 v%d, 5, v0" % (vT + 3))
        word_poll("buffer_load_dword v32, v%d, %s, 0 offen sc1" % (vT + 3, srd("DBG")), 32, "0xff", "v_cmp_gt_u32 vcc, 32, v%d", fsleep)
        stamp(3)
    all_marked()
    lds_add(vHI, F_AM)
    A("v_lshlrev_b32 v%d, 3, v%d" % (vT + 1, vN16)); A("v_add_u32 v%d, v%d, v%d" % (vT + 2, vHI, vT + 1))
    lds_wait(F_ST, 4)
    A("ds_read_b64 v[32:33], v%d offset:%d" % (vT + 2, L_ST)); A("s_waitcnt lgkmcnt(0)")
    def combine(modes):
        A("v_mov_b32 v34, v32")
        for m in modes: dpp("v_max_f32", 34, m)
        A("v_sub_f32 v32, v32, v34"); A("v_exp_f32 v32, v32"); A("v_mul_f32 v35, v32, v33")
        for m in modes: dpp("v_add_f32", 35, m)
    combine(("row_ror:4", "row_ror:8"))
    A("s_mov_b64 exec, 0xf"); A("buffer_store_dwordx2 v[34:35], v28, %s, s%d offen sc1" % (srd("WS"), sMU)); A("s_mov_b64 exec, -1")
    stamp(5)
    if sdelay: A("s_sleep %d" % sdelay)
    if strig:
        lds_wait(F_FULL, strig, sl=8)
    gpoll([(lambda: A("buffer_load_dwordx2 v[32:33], v%d, %s, s%d offen sc1" % (vT + 1, srd("WS"), sSTOFF)), [32, 33])], sleep=ssleep)
    combine(("quad_perm:[1,0,3,2]", "quad_perm:[2,3,0,1]"))
    A("v_rcp_f32 v35, v35"); A("v_lshl_add_u32 v%d, v%d, 3, v%d" % (vT + 2, vC4, vHI))
    A("s_mov_b64 exec, 0x1111"); A("ds_write_b64 v%d, v[34:35] offset:%d" % (vT + 2, L_GS)); A("s_mov_b64 exec, -1")
    lds_add(vHI, F_GR)
    stamp(6)
    A("s_mov_b32 s%d, 2" % sMU)
    A("L_gather56:")
    A("s_waitcnt lgkmcnt(0)")
    A("s_barrier")
    stamp(8)
    gather(sMU, lambda: None)
    A("s_waitcnt lgkmcnt(0)")
    A("s_barrier")
    stamp(9)
    A("s_branch L_done")

    A("L_mlp:")
    vW, vU = 32, 64
    def clean():
        A("s_cmp_lg_u32 s%d, 7" % sWAVE); A("s_cbranch_scc1 L_noclean")
        for i in range(4): A("v_mov_b32 v%d, -1" % (60 + i))
        slot_addrs()
        A("v_lshlrev_b32 v%d, 13, v%d" % (59, vG4)); A("v_lshl_add_u32 v%d, v%d, 4, v%d" % (59, vN16, 59))
        A("s_lshl_b32 s%d, s%d, %d" % (sT1, sR, 11 + spad)); A("s_add_u32 s%d, s%d, 0x%x" % (sT1, sT1, WS_SP))
        A("v_lshrrev_b32 v29, 2, v0"); A("v_lshlrev_b32 v29, %d, v29" % (6 + spad)); A("v_lshl_add_u32 v29, v%d, 4, v29" % vR4)
        A("s_waitcnt lgkmcnt(0)")
        A("buffer_load_dwordx2 v[30:31], off, %s, 0 offset:%d sc1" % (srd("WS"), WS_EP))
        A("s_mov_b64 exec, 0xf"); A("buffer_store_dwordx2 v[60:61], v28, %s, s%d offen sc1" % (srd("WS"), sMU)); A("s_mov_b64 exec, -1")
        A("buffer_store_dwordx4 v[60:63], v%d, %s, s%d offen sc1" % (59, srd("WS"), sOPOFF))
        A("buffer_store_dwordx4 v[60:63], v29, %s, s%d offen sc1" % (srd("WS"), sT1))
        A("buffer_store_dwordx4 v[60:63], v29, %s, s%d offen offset:%d sc1" % (srd("WS"), sT1, 1024 << spad))
        if steal:
            A("s_lshl_b32 s%d, s%d, 12" % (sT1, sR)); A("s_add_u32 s%d, s%d, 0x%x" % (sT1, sT1, WS_PR))
            for k in range(4): A("buffer_store_dwordx4 v[60:63], v%d, %s, s%d offen offset:%d sc1" % (vL16, srd("WS"), sT1, 1024 * k))
            A("s_lshl_b32 s%d, s%d, 7" % (sT1, sR)); A("s_add_u32 s%d, s%d, 0x%x" % (sT1, sT1, WS_CW))
            A("s_mov_b64 exec, 1"); A("buffer_store_dword v60, off, %s, s%d sc1" % (srd("WS"), sT1)); A("s_mov_b64 exec, -1")
        A("L_noclean:")
    def arrive(cnt, lbl):
        A("s_cmp_lg_u32 s%d, 7" % sWAVE); A("s_cbranch_scc1 " + lbl)
        A("s_lshr_b32 s%d, s%d, 5" % (sT3, sR)); A("s_lshl_b32 s%d, s%d, 5" % (sT3, sT3))
        A("s_mov_b64 exec, 1")
        A("s_waitcnt vmcnt(%d)" % cnt)
        A("buffer_atomic_add v%d, off, %s, s%d" % (vONE, srd("DBG"), sT3))
        A("s_mov_b64 exec, -1")
        stamp(4)
        A(lbl + ":")
    if not cllate: clean()
    A("s_sub_u32 s%d, s%d, 6" % (sMB, sWAVE))
    A("v_mul_u32_u24 v%d, 12, v0" % vT); A("s_mul_i32 s%d, s%d, 1792" % (sT1, sMB))
    A("s_waitcnt lgkmcnt(0)")
    A("s_load_dword s%d, s[%d:%d], 0" % (sB2, sB2P, sB2P + 1))
    A("s_barrier")
    for k, n in enumerate(("W1", "B1", "W2")):
        A("buffer_load_dwordx4 %s, v%d, %s, s%d offen" % (vr(vW + 8 * k, 4), vL16, srd(n), sT1))
        A("buffer_load_dwordx3 %s, v%d, %s, s%d offen offset:1024" % (vr(vW + 8 * k + 4, 3), vT, srd(n), sT1))
    if not cllate: arrive(6, "L_noflag")
    A("s_lshr_b32 s%d, s%d, 5" % (sT0, sR)); A("s_mul_i32 s%d, s%d, %d" % (sT0, sT0, XN_STRIDE)); A("s_add_u32 s%d, s%d, %d" % (sT0, sT0, HI)); A("v_add_u32 v%d, s%d, v%d" % (vT + 1, sT0, vL16))
    A("s_lshl_b32 s%d, s%d, 13" % (sT2, sMB)); A("s_add_u32 s%d, s%d, %d" % (sT2, sT2, HI + L_WO)); A("v_add_u32 v%d, s%d, v%d" % (vT + 2, sT2, vL16))
    A("s_and_b32 s%d, s%d, 31" % (sT0, sR)); A("s_lshl_b32 s%d, s%d, 5" % (sT0, sT0)); A("s_add_u32 s%d, s%d, s%d" % (sT0, sT0, sT2))
    A("v_lshlrev_b32 v%d, 1, v%d" % (vT + 3, vN16)); A("v_add_u32 v%d, s%d, v%d" % (vT + 3, sT0, vT + 3))
    lds_wait(F_XN, 4)
    if cllate: clean()
    vXm = 112
    A("ds_read_b128 %s, v%d offset:%d" % (vr(vXm, 4), vT + 1, L_XN)); A("s_waitcnt lgkmcnt(0)")
    layernorm(vXm, 4, vXm + 4, vXm + 12, vXm + 20, 1)
    A("ds_write_b128 v%d, %s" % (vT + 2, vr(vXm, 4)))
    vH = 24
    A("ds_read_u16 v%d, v%d" % (vH, vT + 3))
    A("v_lshrrev_b32 v%d, 3, v0" % (vT + 4)); A("v_lshlrev_b32 v%d, 10, v%d" % (vT + 4, vT + 4)); A("v_and_b32 v%d, 7, v0" % (vT + 5)); A("v_lshl_add_u32 v%d, v%d, 4, v%d" % (vT + 4, vT + 5, vT + 4))
    A("s_lshr_b32 s%d, s%d, 3" % (sT0, sR)); A("s_lshl_b32 s%d, s%d, 17" % (sT0, sT0)); A("s_and_b32 s%d, s%d, 7" % (sT1, sR)); A("s_lshl_b32 s%d, s%d, 7" % (sT1, sT1))
    A("s_add_u32 s%d, s%d, s%d" % (sT0, sT0, sT1)); A("s_lshl_b32 s%d, s%d, 16" % (sT1, sMB)); A("s_add_u32 s%d, s%d, s%d" % (sT0, sT0, sT1))
    A("s_waitcnt vmcnt(0) lgkmcnt(0)")
    if cllate: arrive(0, "L_noflag")
    for a in range(8):
        A("s_add_u32 m0, s%d, %d" % (sT2, a * 1024))
        if 'o' not in abl and not wolate: A("buffer_load_dwordx4 v%d, %s, s%d offen %s lds" % (vT + 4, srd("WO"), sT0, polo))
        if a < 7: A("s_add_u32 s%d, s%d, 0x2000" % (sT0, sT0))
    stamp(1)
    A("v_lshlrev_b32 v%d, 16, v%d" % (vH, vH))
    for k in range(3):
        for i in range(7): unpack(vU + 14 * k + 2 * i, vU + 14 * k + 2 * i + 1, vW + 8 * k + i)
    vC0, vACC, U, T_ = 25, 26, 112, 128
    A("v_mov_b32 v%d, s%d" % (vC0, sC0))
    A("s_lshl_b32 s%d, s%d, 6" % (sT0, sMB)); A("s_add_u32 s%d, s%d, %d" % (sT0, sT0, HI + L_YP)); A("v_mov_b32 v27, s%d" % sT0)
    A("s_mov_b32 s%d, 0" % sT1)
    A("s_nop 3")
    A("L_mlp_loop:")
    A("v_readlane_b32 s%d, v%d, s%d" % (sMU, vH, sT1))
    for t in range(14): A("v_fma_f32 v%d, s%d, v%d, v%d" % (U + t, sMU, vU + t, vU + 14 + t))
    for t in range(14): A("v_mul_f32 v%d, v%d, v%d" % (T_ + t, U + t, U + t))
    for t in range(14): A("v_fma_f32 v%d, v%d, s%d, v%d" % (T_ + t, T_ + t, sC1, vC0))
    for t in range(14): A("v_mul_f32 v%d, v%d, v%d" % (T_ + t, T_ + t, U + t))
    for t in range(14):
        A("v_exp_f32 v%d, v%d" % (T_ + t, T_ + t)); A("v_mul_f32 v%d, v%d, v%d" % (U + t, U + t, vU + 28 + t))
    for t in range(14): A("v_add_f32 v%d, 1.0, v%d" % (T_ + t, T_ + t))
    for t in range(14): A("v_rcp_f32 v%d, v%d" % (T_ + t, T_ + t))
    A("v_mul_f32 v%d, v%d, v%d" % (vACC, U, T_)); A("v_mul_f32 v%d, v%d, v%d" % (U, U + 1, T_ + 1))
    for t in range(2, 14): A("v_fmac_f32 v%d, v%d, v%d" % (vACC if t & 1 else U, U + t, T_ + t))
    A("v_add_f32 v%d, v%d, v%d" % (vACC, vACC, U))
    red16(vACC, "v_add_f32"); dpp("v_add_f32", vACC, "row_bcast:15", "0xa"); dpp("v_add_f32", vACC, "row_bcast:31", "0xc")
    A("s_mov_b32 exec_lo, 0"); A("s_mov_b32 exec_hi, 0x80000000")
    A("ds_write_b32 v27, v%d" % vACC); A("v_add_u32 v27, 4, v27")
    A("s_mov_b64 exec, -1")
    A("s_add_u32 s%d, s%d, 1" % (sT1, sT1)); A("s_cmp_lt_u32 s%d, 16" % sT1); A("s_cbranch_scc1 L_mlp_loop")
    stamp(2)
    A("s_waitcnt vmcnt(0)")
    A("s_mov_b32 s%d, 3" % sMU)
    if steal:
        A("s_cmp_eq_u32 s%d, 7" % sWAVE); A("s_cbranch_scc1 L_final")
        lds_wait(F_AM, 1, sl=8)
        sCW = 4
        A("s_lshl_b32 s%d, s%d, 7" % (sCW, sR)); A("s_add_u32 s%d, s%d, 0x%x" % (sCW, sCW, WS_CW))
        def set_plan(val):
            A("v_mov_b32 v%d, %s" % (vT, val)); A("s_mov_b64 exec, 1"); A("ds_write_b32 v%d, v%d offset:%d" % (vHI, vT, F_PLAN)); A("s_mov_b64 exec, -1")
        for k in range(5, 11):
            if k == 8:
                A("s_xor_b32 s%d, s%d, 0x100" % (sCW, sCW))
            if k == 8:
                A("s_xor_b32 s%d, s%d, 2" % (sT1, sR)); A("s_lshl_b32 s%d, s%d, 12" % (sT1, sT1)); A("s_add_u32 s%d, s%d, 0x%x" % (sT1, sT1, WS_PR))
                A("v_add_u32 v%d, v%d, v%d" % (vT + 1, vHI, vL16))
                rec = [((lambda q=q: A("buffer_load_dwordx4 %s, v%d, %s, s%d offen offset:%d sc1" % (vr(36 + 4 * q, 4), vL16, srd("WS"), sT1, 1024 * q))), list(range(36 + 4 * q, 40 + 4 * q))) for q in range(4)]
                lds_wait(F_FULL, rtrig, sl=2)
                A("s_mov_b32 exec_hi, 0x1ffff")
                for i_, _ in rec: i_()
                A("s_mov_b64 exec, -1")
            lds_wait(F_FULL, 4 * k + cth + (bias if k >= 8 else 0), sl=2)
            A("v_mov_b32 v32, 1"); A("s_mov_b64 exec, 1")
            A("buffer_atomic_add v32, off, %s, s%d sc0" % (srd("WS"), sCW))
            A("s_mov_b64 exec, -1")
            A("s_mov_b32 s%d, 0x%x" % (sT2, 0x100 + k))
            A("s_waitcnt vmcnt(0)")
            A("v_readfirstlane_b32 s%d, v32" % sT0); A("s_add_u32 s%d, s%d, 1" % (sT0, sT0))
            if stamps and k < 9: stamp(k - 2)
            A("s_cmp_ge_u32 s%d, 3" % sT0); A("s_cbranch_scc1 L_close")
            if k == 8:
                A("s_mov_b32 exec_hi, 0x1ffff")
                gpoll(rec[:2], first=False, sleep=8, full="PARTIAL"); gpoll(rec[2:], first=False, sleep=8, full="PARTIAL")
                for q in range(4): A("ds_write_b128 v%d, %s offset:%d" % (vT + 1, vr(36 + 4 * q, 4), L_PP + 1024 * q))
                A("s_mov_b64 exec, -1")
                A("s_waitcnt lgkmcnt(0)")
            set_plan("%d" % (k + 1))
        A("s_mov_b32 s%d, 0x%x" % (sT2, 0x100 + 11))
        A("L_close:")
        set_plan("s%d" % sT2)
        A("s_branch L_gather56")
        A("L_final:")
    else:
        A("s_cmp_eq_u32 s%d, 6" % sWAVE); A("s_cbranch_scc1 L_gather56")
    if at2:
        A("v_and_b32 v%d, 7, v0" % (vT + 1)); A("v_lshrrev_b32 v%d, 5, v0" % (vT + 2)); A("v_lshl_add_u32 v%d, v%d, 1, v%d" % (vT + 1, vT + 1, vT + 2))
    else: A("v_lshl_add_u32 v%d, v%d, 2, v%d" % (vT + 1, vR4, vG4))
    A("v_lshlrev_b32 v%d, 1, v%d" % (vT + 2, vT + 1)); A("s_lshl_b32 s%d, s%d, 5" % (sT0, sR))
    A("buffer_load_ushort v%d, v%d, %s, s%d offen" % (vT + 3, vT + 2, srd("X"), sT0))
    A("v_lshl_add_u32 v%d, v%d, 2, v%d" % (vT + 1, vT + 1, vHI))
    A("s_lshl_b32 s%d, s%d, %d" % (sT1, sR, 11 + spad)); A("s_add_u32 s%d, s%d, 0x%x" % (sT1, sT1, WS_SP))
    A("v_lshrrev_b32 v29, 2, v0"); A("v_lshlrev_b32 v29, %d, v29" % (6 + spad)); A("v_lshl_add_u32 v29, v%d, 4, v29" % vR4)
    if wolate == 2:
        A("s_mov_b32 s12, s%d" % sT0); A("s_mov_b32 s13, s%d" % sT1)
        if steal: lds_wait(F_LI, 1, sl=2)
        else: lds_wait(F_FULL, wotrig, sl=2)
        wo_dma()
        A("s_mov_b32 s%d, s12" % sT0); A("s_mov_b32 s%d, s13" % sT1)
    A("s_waitcnt lgkmcnt(0)")
    A("s_barrier")
    stamp(8)
    A("ds_read_b32 v40, v%d offset:%d" % (vT + 1, L_YP)); A("ds_read_b32 v41, v%d offset:%d" % (vT + 1, L_YP + 64)); A("s_waitcnt lgkmcnt(0)")
    A("v_add_f32 v40, v40, v41"); rbf(40)
    A("s_lshl_b32 s%d, s%d, 16" % (sB2, sB2)); A("v_add_f32 v40, s%d, v40" % sB2); rbf(40)
    A("v_mul_f32 v41, s%d, v40" % sL2E); A("v_exp_f32 v41, -v41"); A("v_add_f32 v41, 1.0, v41"); A("v_rcp_f32 v41, v41"); A("v_mul_f32 v40, v40, v41"); rbf(40)
    A("s_waitcnt vmcnt(0)"); A("v_lshlrev_b32 v%d, 16, v%d" % (vT + 3, vT + 3))
    if wolate == 2:
        A("s_mov_b64 exec, 1"); A("ds_write_b32 v%d, v%d offset:%d" % (vHI, vONE, F_WO)); A("s_mov_b64 exec, -1")
        stamp(11)
    A("s_barrier")
    stamp(9)
    if td2: A("s_sleep %d" % td2)
    if at2:
        A("v_lshlrev_b32 v29, 3, v0")
        apoll(32, 29, sT1, 44, tsleep2)
        stamp(10)
        A("v_add_f32 v44, v32, v34"); A("v_add_f32 v45, v33, v35"); A("v_add_f32 v46, v36, v38"); A("v_add_f32 v47, v37, v39")
        A("v_add_f32 v44, v44, v46"); A("v_add_f32 v45, v45, v47")
        A("v_permlane32_swap_b32 v44, v45"); A("v_add_f32 v44, v44, v45")
        swap_red(44, 45, "v_add_f32", 16)
        dpp("v_add_f32", 44, "row_ror:8")
    else:
        gpoll([(lambda: A("buffer_load_dwordx4 v[32:35], v29, %s, s%d offen %s" % (srd("WS"), sT1, tl)), [32, 33, 34, 35]),
               (lambda: A("buffer_load_dwordx4 v[36:39], v29, %s, s%d offen offset:%d %s" % (srd("WS"), sT1, 1024 << spad, tl)), [36, 37, 38, 39])], sleep=tsleep2, P=P2)
        stamp(10)
        for i in range(4): A("v_add_f32 v%d, v%d, v%d" % (44 + i, 32 + i, 36 + i))
        A("v_permlane32_swap_b32 v44, v46"); A("v_permlane32_swap_b32 v45, v47")
        A("v_add_f32 v44, v44, v46"); A("v_add_f32 v45, v45, v47")
        A("v_permlane16_swap_b32 v44, v45"); A("v_add_f32 v44, v44, v45")
        dpp("v_add_f32", 44, "row_ror:8"); dpp("v_add_f32", 44, "row_ror:4")
    rbf(44); A("v_mul_f32 v44, v44, v40"); rbf(44)
    A("v_add_f32 v44, v44, v%d" % (vT + 3)); A("v_cvt_pk_bf16_f32 v44, v44, v44")
    em = "0xff" if at2 else "0x000f000f"
    A("s_mov_b32 exec_lo, %s" % em); A("s_mov_b32 exec_hi, %s" % em)
    A("buffer_store_short v44, v%d, %s, s%d offen" % (vT + 2, srd("OUT"), sT0))
    A("s_mov_b64 exec, -1")
    A("s_cmp_lg_u32 s%d, 0" % sR); A("s_cbranch_scc1 L_done")
    epoch()
    A("v_mov_b32 v30, s%d" % sEP); A("v_mov_b32 v31, s%d" % (sEP + 1)); A("s_mov_b64 exec, 1")
    A("buffer_store_dwordx2 v[30:31], off, %s, 0 offset:%d sc1" % (srd("WS"), WS_EP))
    A("s_mov_b64 exec, -1")
    if probe or p_b >= 0 or pspan:
        A("buffer_load_dwordx2 v[30:31], off, %s, 0 offset:4 sc1" % srd("DBG")); A("s_memrealtime s[16:17]"); A("s_waitcnt vmcnt(0) lgkmcnt(0)")
        A("v_readfirstlane_b32 s6, v30"); A("v_readfirstlane_b32 s7, v31")
        if probe: A("s_sub_i32 s6, s6, s7"); A("s_abs_i32 s6, s6"); A("s_lshr_b32 s6, s6, 4")
        elif pspan == 1: A("s_not_b32 s7, s7"); A("s_sub_u32 s6, s6, s7"); A("s_lshl_b32 s6, s6, 2")
        elif pspan == 2: A("s_sub_u32 s6, s16, s6"); A("s_lshl_b32 s6, s6, 3")
        else: A("s_lshr_b32 s6, s6, 5")
        A("s_min_u32 s6, s6, 20000")
        A("s_add_u32 s16, s16, s6")
        A("L_pad2:"); A("s_memrealtime s[18:19]"); A("s_waitcnt lgkmcnt(0)"); A("s_sub_u32 s18, s18, s16"); A("s_cmp_lt_i32 s18, 0"); A("s_cbranch_scc1 L_pad2")
    A("L_done:")
    A("s_waitcnt vmcnt(0)")
    if pad:
        A("s_waitcnt lgkmcnt(0)"); A("s_add_u32 s16, s16, %d" % pad)
        A("L_pad:"); A("s_memrealtime s[18:19]"); A("s_waitcnt lgkmcnt(0)"); A("s_sub_u32 s18, s18, s16"); A("s_cmp_lt_i32 s18, 0"); A("s_cbranch_scc1 L_pad")
    if stamps:
        A("s_waitcnt vmcnt(0)")
        stamp(NST - 1)
        A("s_waitcnt lgkmcnt(0)")
        A("s_lshl_b32 s%d, s2, 3" % sT0); A("s_add_u32 s%d, s%d, s%d" % (sT0, sT0, sWAVE)); A("s_mul_i32 s%d, s%d, %d" % (sT0, sT0, NST * 8)); A("s_add_u32 s%d, s%d, 0x%x" % (sT0, sT0, WS_STAMP))
        A("s_mov_b64 exec, 1")
        for k in range(NST):
            A("v_mov_b32 v2, s%d" % (16 + 2 * k)); A("v_mov_b32 v3, s%d" % (17 + 2 * k))
            A("buffer_store_dwordx2 v[2:3], off, %s, s%d offset:%d" % (srd("WS"), sT0, k * 8)); A("s_nop 1")
    A("L_end:")
    A("s_endpgm")
    body = A.finalize()
    hdr = open("recurrent_scan__gqa_block_cached__mixer_token_mlp__decode.s.ref").read().split("; Override launch")[0]
    s = hdr + "; @launch grid=(256,1,1) block=(512,1,1) lds=%d\n" % LDS_BYTES
    s += '.amdgcn_target "amdgcn-amd-amdhsa--gfx950"\n.text\n.globl %s\n.p2align 8\n.type %s,@function\n%s:\n' % (NAME, NAME, NAME)
    s += body
    s += '.section .rodata,"a"\n.p2align 6\n.amdhsa_kernel %s\n  .amdhsa_next_free_vgpr 256\n  .amdhsa_next_free_sgpr 102\n  .amdhsa_accum_offset 256\n' % NAME
    s += "  .amdhsa_group_segment_fixed_size 0\n  .amdhsa_kernarg_size 104\n  .amdhsa_user_sgpr_count 2\n  .amdhsa_user_sgpr_kernarg_segment_ptr 1\n  .amdhsa_system_sgpr_workgroup_id_x 1\n.end_amdhsa_kernel\n"
    return s, A

if __name__ == "__main__":
    out = sys.argv[1]
    kw = {}
    for p in sys.argv[2:]:
        k, v = p.split("=")
        kw[k] = int(v) if v.lstrip("-").isdigit() else v.replace("+", " ")
    s, A = gen(**kw)
    open(out, "w").write(s)
    print("wrote", out, "instructions", len(A.ins), "nops", A.nops, "lds", LDS_BYTES)
```

```python
import sys, struct
from asmlib import Asm

NAME = "recurrent_scan__gqa_block_cached__mixer_token_mlp__decode_kernel"
def f2u(x): return struct.unpack("<I", struct.pack("<f", x))[0]

WS_ST, WS_OP, WS_SP, WS_Q, WS_EP = 0x10000, 0x20000, 0x100000, 0x60000, 0x0
WS_CW, WS_PR = 0x80000, 0x200000
EP_STEP = 0x9E3779B97F4A7C15
WS_STAMP = 128 << 20
HI = 131072
L_WO = 0
L_XN, XN_STRIDE = 16384, 1040
L_OW = L_XN
L_QP = 24704
L_QB = 28800
L_FLG = 29824
L_ST = L_FLG + 64
L_GS = L_ST + 128
L_YP = L_GS + 32
LDS_BYTES = HI + L_YP + 128
F_FULL, F_FREED, F_XN, F_QP, F_QR, F_ST, F_GR, F_WO, F_AM, F_PLAN, F_LI = [L_FLG + 4 * i for i in (0, 4, 8, 9, 10, 11, 12, 13, 14, 1, 15)]
L_PP = L_QP

sWAVE, sBASE, sOFF = 3, 4, 5
sT0, sT1, sT2 = 6, 7, 8
sR, sSPIN, sT3 = 9, 10, 11
sMU, sMB = 14, 15
SRD = dict(K=44, V=48, X=52, WQ=56, WO=60, W1=64, B1=68, W2=72, OUT=76, DBG=80, WS=84)
KARG = dict(X=0, K=8, V=16, WQ=24, WO=32, W1=48, B1=56, W2=64, OUT=80, DBG=88, WS=96)
SIZE = dict(X=8192, K=1 << 26, V=1 << 26, WQ=1 << 22, WO=1 << 22, W1=3584, B1=3584, W2=3584, OUT=8192, DBG=256, WS=1 << 28)
sSELLO, sSELHI, sMASK, sSCALE, sL2E, sC0, sC1, sB2, sB2P = 88, 89, 90, 91, 92, 93, 94, 95, 96
sOPOFF, sSPOFF, sSTOFF, sFULL = 98, 99, 100, 101
def srd(n): return "s[%d:%d]" % (SRD[n], SRD[n] + 3)
def vr(a, n=1): return "v%d" % a if n == 1 else "v[%d:%d]" % (a, a + n - 1)
vL16, vG4, vC4, vR4, vN16, vHI, vONE = 1, 2, 3, 4, 5, 6, 7
vT = 8
vPOLL = 16

def gen(F=4, stamps=0, pol="nt", spin=1 << 17, lspin=1 << 22, mimic=1, pre=0, lsleep=1, ldprio=3, fsleep=8, qsleep=2, ssleep=8, tsleep=0, xmap=1, polq=None, polo=None, ldst=0, abl='', rot=0, pad=0, P1=1, P2=1, pd=5, qmap=0, tl='sc1', ts='sc1', tsleep2=None, Fhi=0, himask=0xf8, hiend=16, spad=0, at2=1, td2=8, td1=0, at1=0, qdelay=0, sdelay=0, qtrig=8, strig=48, bshift=0, wolate=2, wqsplit=0, wotrig=60, D=0, DV=0, probe=0, steal=0, cth=23, cllate=0, bias=0, rtrig=48, p_a=-1, p_b=-1, pspan=0, pstart=0):
    NOWN = 5 if steal else 8
    sPLAN = 13
    DV = DV if DV else D
    tsleep2 = tsleep if tsleep2 is None else tsleep2
    polq = pol if polq is None else polq.replace('def', '')
    polo = pol if polo is None else polo.replace('def', '')
    A = Asm()
    NST = 14
    def stamp(k):
        if stamps: A("s_memrealtime s[%d:%d]" % (16 + 2 * k, 17 + 2 * k))
    QUADS = ("quad_perm:[1,0,3,2]", "quad_perm:[2,3,0,1]", "row_half_mirror", "row_mirror")
    def dpp(op, v, m, rm="0xf"): A("%s_dpp v%d, v%d, v%d %s row_mask:%s bank_mask:0xf" % (op, v, v, v, m, rm))
    def red16(v, op):
        for m in QUADS: dpp(op, v, m)
    def swap_red(v, t, op, which):
        A("v_mov_b32 v%d, v%d" % (t, v)); A("v_permlane%d_swap_b32 v%d, v%d" % (which, v, t)); A("%s v%d, v%d, v%d" % (op, v, v, t))
    def rbf(v):
        A("v_cvt_pk_bf16_f32 v%d, v%d, v%d" % (v, v, v)); A("v_lshlrev_b32 v%d, 16, v%d" % (v, v))
    def unpack(dlo, dhi, src):
        A("v_lshlrev_b32 v%d, 16, v%d" % (dlo, src)); A("v_and_b32 v%d, s%d, v%d" % (dhi, sMASK, src))
    def layernorm(pk, n, x, d, t, halves):
        def allred(v):
            red16(v, "v_add_f32"); swap_red(v, t + 2, "v_add_f32", 16)
            if halves == 1: swap_red(v, t + 2, "v_add_f32", 32)
        for i in range(n): unpack(x + 2 * i, x + 2 * i + 1, pk + i)
        A("v_add_f32 v%d, v%d, v%d" % (t, x, x + 1)); A("v_add_f32 v%d, v%d, v%d" % (t + 1, x + 2, x + 3))
        for i in range(4, 2 * n): A("v_add_f32 v%d, v%d, v%d" % (t + (i & 1), t + (i & 1), x + i))
        A("v_add_f32 v%d, v%d, v%d" % (t, t, t + 1))
        allred(t)
        A("v_mul_f32 v%d, 0x3b000000, v%d" % (t, t))
        A("v_cvt_pk_bf16_f32 v%d, v%d, v%d" % (t + 1, t, t))
        for i in range(2 * n): A("v_sub_f32 v%d, v%d, v%d" % (d + i, x + i, t))
        A("v_lshlrev_b32 v%d, 16, v%d" % (t + 1, t + 1))
        A("v_mul_f32 v%d, v%d, v%d" % (t, d, d)); A("v_mul_f32 v%d, v%d, v%d" % (d, d + 1, d + 1))
        for i in range(2, 2 * n): A("v_fmac_f32 v%d, v%d, v%d" % (t if i & 1 else d, d + i, d + i))
        A("v_add_f32 v%d, v%d, v%d" % (t, t, d))
        for i in range(2 * n): A("v_sub_f32 v%d, v%d, v%d" % (x + i, x + i, t + 1))
        allred(t)
        for i in range(n): A("v_cvt_pk_bf16_f32 v%d, v%d, v%d" % (pk + i, x + 2 * i, x + 2 * i + 1))
        A("v_mul_f32 v%d, 0x3b000000, v%d" % (t, t)); rbf(t)
        A("v_add_f32 v%d, 0x%x, v%d" % (t, f2u(1e-5), t)); rbf(t)
        A("v_sqrt_f32 v%d, v%d" % (t, t)); rbf(t)
        A("v_rcp_f32 v%d, v%d" % (t, t))
        for i in range(n): unpack(x + 2 * i, x + 2 * i + 1, pk + i)
        for i in range(2 * n): A("v_mul_f32 v%d, v%d, v%d" % (x + i, t, x + i))
        for i in range(n): A("v_cvt_pk_bf16_f32 v%d, v%d, v%d" % (pk + i, x + 2 * i, x + 2 * i + 1))
    def lds_wait(flag, val, keep=None, sl=None):
        ok = A.label("lok"); again = A.label("lagain")
        dst = keep if keep is not None else sT3
        if keep is not None:
            A("s_cmp_ge_u32 s%d, %s" % (keep, val)); A("s_cbranch_scc1 " + ok)
        A("s_mov_b32 s%d, 0" % sSPIN)
        A(again + ":")
        A("ds_read_b32 v%d, v%d offset:%d" % (vPOLL, vHI, flag)); A("s_waitcnt lgkmcnt(0)")
        A("v_readfirstlane_b32 s%d, v%d" % (dst, vPOLL))
        A("s_cmp_ge_u32 s%d, %s" % (dst, val)); A("s_cbranch_scc1 " + ok)
        if sl is None: sl = lsleep
        if sl: A("s_sleep %d" % sl)
        A("s_add_u32 s%d, s%d, 1" % (sSPIN, sSPIN)); A("s_cmp_lt_u32 s%d, %d" % (sSPIN, lspin)); A("s_cbranch_scc1 " + again)
        A(ok + ":")
    def lds_add(flag_addr_reg, off):
        A("s_waitcnt lgkmcnt(0)")
        A("s_mov_b64 exec, 1"); A("ds_add_u32 v%d, v%d offset:%d" % (flag_addr_reg, vONE, off)); A("s_mov_b64 exec, -1")
    def gpoll(loads, first=True, sleep=0, full="-1", tag=None, P=1):
        ok = A.label("ok"); again = A.label("again")
        masks = ["vcc", "s[12:13]"]
        A("s_mov_b32 s%d, 0" % sSPIN)
        if first:
            for issue, regs in loads: issue()
        for _ in range(P - 1):
            A("s_sleep %d" % pd)
            for issue, regs in loads: issue()
        A(again + ":")
        A("s_waitcnt vmcnt(%d)" % (len(loads) * (P - 1)))
        for (issue, regs), mk in zip(loads, masks):
            t = vT + 7
            if tag is not None:
                A("v_cmp_ne_u64 %s, %s, v[%d:%d]" % (mk, tag, regs[2], regs[3])); continue
            if len(regs) == 2: A("v_max_u32 v%d, v%d, v%d" % (t, regs[0], regs[1]))
            else:
                A("v_max3_u32 v%d, v%d, v%d, v%d" % (t, regs[0], regs[1], regs[2])); A("v_max_u32 v%d, v%d, v%d" % (t, t, regs[3]))
            A("v_cmp_eq_u32 %s, -1, v%d" % (mk, t))
        if len(loads) == 2:
            A("s_or_b32 s%d, vcc_lo, vcc_hi" % sT3); A("s_or_b32 s%d, s%d, s12" % (sT3, sT3)); A("s_or_b32 s%d, s%d, s13" % (sT3, sT3))
        else:
            A("s_or_b32 s%d, vcc_lo, vcc_hi" % sT3)
        A("s_cbranch_scc0 " + ok)
        if sleep: A("s_sleep %d" % sleep)
        for (issue, regs), mk in zip(loads, masks):
            A("s_mov_b64 exec, %s" % mk); issue()
        if full == "PARTIAL": A("s_mov_b32 exec_lo, -1"); A("s_mov_b32 exec_hi, 0x1ffff")
        else: A("s_mov_b64 exec, %s" % full)
        A("s_add_u32 s%d, s%d, 1" % (sSPIN, sSPIN)); A("s_cmp_lt_u32 s%d, %d" % (sSPIN, spin)); A("s_cbranch_scc1 " + again)
        A("s_waitcnt vmcnt(0)")
        A(ok + ":")
    def apoll(vd, vaddr, soff, vtmp, sleep, first=True):
        ms = ["vcc", "s[12:13]", "s[88:89]", "s[90:91]"]
        ok = A.label("aok"); again = A.label("aagain")
        def iss(k):
            A("v_mov_b32 v%d, 0" % (vd + 2 * k)); A("v_mov_b32 v%d, 0" % (vd + 1 + 2 * k))
            A("buffer_atomic_or_x2 v[%d:%d], v%d, %s, s%d offen offset:%d sc0" % (vd + 2 * k, vd + 1 + 2 * k, vaddr, srd("WS"), soff, 512 * k))
        if first == "only":
            for k in range(4): iss(k)
            return
        A("s_mov_b32 s%d, 0" % sSPIN)
        if first:
            for k in range(4): iss(k)
        A(again + ":")
        A("s_waitcnt vmcnt(0)")
        for k in range(4): A("v_max_u32 v%d, v%d, v%d" % (vtmp + k, vd + 2 * k, vd + 1 + 2 * k))
        for k in range(4): A("v_cmp_eq_u32 %s, -1, v%d" % (ms[k], vtmp + k))
        A("s_or_b64 s[92:93], vcc, s[12:13]"); A("s_or_b64 s[94:95], s[88:89], s[90:91]"); A("s_or_b64 s[92:93], s[92:93], s[94:95]")
        A("s_cbranch_scc0 " + ok)
        if sleep: A("s_sleep %d" % sleep)
        for k in range(4):
            A("s_mov_b64 exec, %s" % ms[k]); iss(k)
        A("s_mov_b64 exec, -1")
        A("s_add_u32 s%d, s%d, 1" % (sSPIN, sSPIN)); A("s_cmp_lt_u32 s%d, %d" % (sSPIN, spin)); A("s_cbranch_scc1 " + again)
        A("s_waitcnt vmcnt(0)")
        A(ok + ":")
    def word_poll(load, vd, lanes, cmp, sleep):
        ok = A.label("fok"); again = A.label("fagain")
        A("s_mov_b32 s%d, 0" % sSPIN); A("s_mov_b64 exec, %s" % lanes)
        A(again + ":")
        A(load)
        A("s_waitcnt vmcnt(0)")
        A(cmp % vd)
        A("s_cmp_eq_u64 vcc, 0"); A("s_cbranch_scc1 " + ok)
        if sleep: A("s_sleep %d" % sleep)
        A("s_add_u32 s%d, s%d, 1" % (sSPIN, sSPIN)); A("s_cmp_lt_u32 s%d, %d" % (sSPIN, spin)); A("s_cbranch_scc1 " + again)
        A(ok + ":")
        A("s_mov_b64 exec, -1")

    A("s_cmp_ge_u32 s2, 256"); A("s_cbranch_scc1 L_end")
    if stamps:
        for k in range(1, NST): A("s_mov_b64 s[%d:%d], 0" % (16 + 2 * k, 17 + 2 * k))
    stamp(0)
    if (pad or p_b >= 0 or pspan or pstart) and not stamps: A("s_memrealtime s[16:17]")
    for n in ("K", "X", "WQ", "WS", "V", "WO", "W1", "B1", "W2", "DBG", "OUT"):
        A("s_load_dwordx2 s[%d:%d], s[0:1], %d" % (SRD[n], SRD[n] + 1, KARG[n]))
    A("s_load_dwordx2 s[%d:%d], s[0:1], 72" % (sB2P, sB2P + 1))
    A("v_lshrrev_b32 v1, 6, v0"); A("v_and_b32 v0, 63, v0"); A("v_readfirstlane_b32 s%d, v1" % sWAVE)
    for n in SRD:
        A("s_mov_b32 s%d, 0x%x" % (SRD[n] + 2, SIZE[n])); A("s_mov_b32 s%d, 0x20000" % (SRD[n] + 3))
    if xmap == 0:
        A("s_and_b32 s%d, s2, 7" % sR); A("s_lshl_b32 s%d, s%d, 5" % (sR, sR)); A("s_lshr_b32 s%d, s2, 3" % sT0); A("s_add_u32 s%d, s%d, s%d" % (sR, sR, sT0))
    elif xmap >= 4:
        A("s_lshr_b32 s%d, s2, 1" % sT0); A("s_xor_b32 s%d, s%d, s2" % (sT0, sT0)); A("s_and_b32 s%d, s%d, 1" % (sT0, sT0)); A("s_lshl_b32 s%d, s%d, 3" % (sT0, sT0))
        A("s_and_b32 s%d, s2, 4" % sT1); A("s_lshl_b32 s%d, s%d, 2" % (sT1, sT1)); A("s_add_u32 s%d, s%d, s%d" % (sT0, sT0, sT1))
        A("s_bfe_u32 s%d, s2, 0x10003" % sT1); A("s_lshl_b32 s%d, s%d, 2" % (sT1, sT1)); A("s_add_u32 s%d, s%d, s%d" % (sT0, sT0, sT1))
        A("s_and_b32 s%d, s2, 0xe0" % sR); A("s_add_u32 s%d, s%d, s%d" % (sR, sR, sT0))
        if xmap == 6:
            A("s_lshr_b32 s%d, s2, 5" % sT0); A("s_xor_b32 s%d, s%d, s2" % (sT0, sT0)); A("s_and_b32 s%d, s%d, 1" % (sT0, sT0))
        elif xmap == 7:
            A("s_lshr_b32 s%d, s2, 3" % sT0); A("s_xor_b32 s%d, s%d, s2" % (sT0, sT0)); A("s_and_b32 s%d, s%d, 1" % (sT0, sT0))
        else: A("s_and_b32 s%d, s2, 1" % sT0)
        A("s_bfe_u32 s%d, s2, 0x10004" % sT1)
        A("s_lshl_b32 s%d, s%d, 1" % ((sT0, sT0) if xmap != 5 else (sT1, sT1)))
        A("s_add_u32 s%d, s%d, s%d" % (sR, sR, sT0)); A("s_add_u32 s%d, s%d, s%d" % (sR, sR, sT1))
    else:
        if xmap == 2:
            A("s_lshr_b32 s%d, s2, 5" % sT0); A("s_add_u32 s%d, s2, s%d" % (sR, sT0))
        elif xmap == 3:
            A("s_bfe_u32 s%d, s2, 0x20003" % sT0); A("s_lshl_b32 s%d, s%d, 1" % (sT0, sT0)); A("s_add_u32 s%d, s2, s%d" % (sR, sT0))
        else: A("s_add_u32 s%d, s2, %d" % (sR, bshift))
        A("s_and_b32 s%d, s%d, 7" % (sR, sR)); A("s_lshl_b32 s%d, s%d, 2" % (sR, sR)); A("s_and_b32 s%d, s2, 0xe0" % sT0); A("s_add_u32 s%d, s%d, s%d" % (sR, sR, sT0))
        A("s_bfe_u32 s%d, s2, 0x20003" % sT0); A("s_add_u32 s%d, s%d, s%d" % (sR, sR, sT0))
    sRQ = sMB
    if xmap >= 4:
        A("s_and_b32 s%d, s2, 7" % sRQ); A("s_lshl_b32 s%d, s%d, 2" % (sRQ, sRQ)); A("s_and_b32 s%d, s2, 0xe0" % sT0); A("s_add_u32 s%d, s%d, s%d" % (sRQ, sRQ, sT0))
        A("s_bfe_u32 s%d, s2, 0x20003" % sT0); A("s_add_u32 s%d, s%d, s%d" % (sRQ, sRQ, sT0))
    elif qmap == 0: A("s_mov_b32 s%d, s%d" % (sRQ, sR))
    elif qmap == 1:
        A("s_and_b32 s%d, s2, 7" % sRQ); A("s_lshl_b32 s%d, s%d, 5" % (sRQ, sRQ)); A("s_lshr_b32 s%d, s2, 3" % sT0); A("s_add_u32 s%d, s%d, s%d" % (sRQ, sRQ, sT0))
    elif qmap == 2:
        A("s_lshr_b32 s%d, s%d, 3" % (sT0, sR)); A("s_and_b32 s%d, s%d, 0x1c" % (sT0, sT0)); A("s_add_u32 s%d, s%d, s%d" % (sT0, sT0, sR)); A("s_and_b32 s%d, s%d, 0x1c" % (sT0, sT0))
        A("s_and_b32 s%d, s%d, 0xe3" % (sRQ, sR)); A("s_or_b32 s%d, s%d, s%d" % (sRQ, sRQ, sT0))
    elif qmap == 4:
        A("s_lshr_b32 s%d, s%d, 5" % (sT0, sR)); A("s_lshl_b32 s%d, s%d, 1" % (sT0, sT0)); A("s_bfe_u32 s%d, s%d, 0x10001" % (sT1, sR)); A("s_add_u32 s%d, s%d, s%d" % (sT0, sT0, sT1))
        A("s_lshr_b32 s%d, s%d, 2" % (sT1, sT0)); A("s_lshl_b32 s%d, s%d, 1" % (sT1, sT1)); A("s_bfe_u32 s%d, s%d, 0x30002" % (sT2, sR)); A("s_add_u32 s%d, s%d, s%d" % (sT1, sT1, sT2))
        A("s_and_b32 s%d, s%d, 7" % (sT1, sT1)); A("s_lshl_b32 s%d, s%d, 3" % (sT0, sT0)); A("s_add_u32 s%d, s%d, s%d" % (sT0, sT0, sT1)); A("s_lshl_b32 s%d, s%d, 1" % (sT0, sT0))
        A("s_and_b32 s%d, s%d, 1" % (sT1, sR)); A("s_add_u32 s%d, s%d, s%d" % (sRQ, sT0, sT1))
    A("v_lshlrev_b32 v%d, 4, v0" % vL16); A("v_lshrrev_b32 v%d, 4, v0" % vG4); A("v_bfe_u32 v%d, v0, 2, 2" % vC4)
    A("v_and_b32 v%d, 3, v0" % vR4); A("v_and_b32 v%d, 15, v0" % vN16); A("v_mov_b32 v%d, 0x%x" % (vHI, HI)); A("v_mov_b32 v%d, 1" % vONE)
    A("s_mov_b32 s%d, 0x05040100" % sSELLO); A("s_mov_b32 s%d, 0x07060302" % sSELHI); A("s_mov_b32 s%d, 0xffff0000" % sMASK)
    A("s_mov_b32 s%d, 0x%x" % (sSCALE, f2u(128 ** -0.5))); A("s_mov_b32 s%d, 0x%x" % (sL2E, f2u(1.4426950408889634)))
    c0 = -2.0 * 0.7978845608028654 * 1.4426950408889634
    A("s_mov_b32 s%d, 0x%x" % (sC0, f2u(c0))); A("s_mov_b32 s%d, 0x%x" % (sC1, f2u(c0 * 0.044715)))
    A("s_lshr_b32 s%d, s%d, 5" % (sT0, sR)); A("s_lshl_b32 s%d, s%d, 15" % (sT0, sT0))
    A("s_and_b32 s%d, s%d, 31" % (sT1, sR)); A("s_lshl_b32 s%d, s%d, 8" % (sT1, sT1)); A("s_add_u32 s%d, s%d, s%d" % (sT0, sT0, sT1))
    A("s_add_u32 s%d, s%d, 0x%x" % (sOPOFF, sT0, WS_OP))
    A("s_and_b32 s%d, s%d, 7" % (sT0, sR)); A("s_lshl_b32 s%d, s%d, %d" % (sT0, sT0, 13 + spad))
    A("s_lshr_b32 s%d, s%d, 3" % (sT1, sR)); A("s_lshl_b32 s%d, s%d, %d" % (sT1, sT1, 6 + spad)); A("s_add_u32 s%d, s%d, s%d" % (sT0, sT0, sT1))
    A("s_add_u32 s%d, s%d, 0x%x" % (sSPOFF, sT0, WS_SP))
    A("s_lshr_b32 s%d, s%d, 2" % (sT0, sR)); A("s_lshl_b32 s%d, s%d, 7" % (sT0, sT0)); A("s_add_u32 s%d, s%d, 0x%x" % (sSTOFF, sT0, WS_ST))
    A("s_cmp_eq_u32 s%d, 4" % sWAVE); A("s_cbranch_scc1 L_loader")
    A("s_cmp_eq_u32 s%d, 5" % sWAVE); A("s_cbranch_scc1 L_comm")
    A("s_cmp_gt_u32 s%d, 5" % sWAVE); A("s_cbranch_scc1 L_mlp")

    vQ, vS, vTMP, vK = 32, 48, 112, 128
    vKA, vVA = 17, 17
    vM, vLs, vMO, vF, vOWA = 25, 26, 27, 28, 29
    vX = vS
    A("v_lshlrev_b32 v%d, 5, v0" % vT)
    A("v_lshrrev_b32 v%d, 1, v0" % (vT + 1)); A("v_lshlrev_b32 v%d, 13, v%d" % (vT + 1, vT + 1))
    A("v_and_b32 v%d, 1, v0" % (vT + 2)); A("v_lshl_add_u32 v%d, v%d, 4, v%d" % (vT + 1, vT + 2, vT + 1))
    A("s_lshl_b32 s%d, s%d, 11" % (sT2, sWAVE))
    A("s_lshl_b32 s%d, s%d, 20" % (sT0, sWAVE)); A("s_lshl_b32 s%d, s%d, 5" % (sT1, sRQ)); A("s_add_u32 s%d, s%d, s%d" % (sT0, sT0, sT1))
    A("s_lshl_b32 s%d, s%d, 13" % (sT1, sWAVE)); A("s_add_u32 s%d, s%d, %d" % (sT1, sT1, 12 * 8192))
    A("s_waitcnt lgkmcnt(0)")
    if ldst == 2: stamp(12)
    A("buffer_load_dwordx4 %s, v%d, %s, s%d offen" % (vr(vX, 4), vT, srd("X"), sT2))
    A("buffer_load_dwordx4 %s, v%d, %s, s%d offen offset:16" % (vr(vX + 4, 4), vT, srd("X"), sT2))
    nq0 = wqsplit if wqsplit else 4
    for a in range(nq0):
        A("s_add_u32 m0, s%d, %d" % (sT1, a * 1024))
        if 'q' in abl: A("buffer_load_dwordx4 v%d, %s, 0 offen lds" % (vL16, srd("X")))
        else: A("buffer_load_dwordx4 v%d, %s, s%d offen %s lds" % (vT + 1, srd("WQ"), sT0, polq))
        if a < 3: A("s_add_u32 s%d, s%d, 0x40000" % (sT0, sT0))
    if nq0 < 4: A("v_mov_b32 v31, v%d" % (vT + 1)); A("s_mov_b32 s12, s%d" % sT0)
    A("s_barrier")
    A("v_lshrrev_b32 v%d, 5, v0" % (vT + 3)); A("s_lshl_b32 s%d, s%d, 1" % (sT0, sWAVE)); A("v_add_u32 v%d, s%d, v%d" % (vT + 3, sT0, vT + 3))
    A("v_mul_u32_u24 v%d, %d, v%d" % (vT + 3, XN_STRIDE, vT + 3)); A("v_and_b32 v%d, 31, v0" % (vT + 4)); A("v_lshl_add_u32 v%d, v%d, 5, v%d" % (vT + 3, vT + 4, vT + 3))
    A("v_add_u32 v%d, v%d, v%d" % (vT + 3, vHI, vT + 3))
    A("v_and_b32 v%d, 7, v0" % (vT + 4)); A("v_mul_u32_u24 v%d, %d, v%d" % (vT + 4, XN_STRIDE, vT + 4)); A("v_lshl_add_u32 v%d, v%d, 4, v%d" % (vT + 4, vG4, vT + 4))
    A("s_lshl_b32 s%d, s%d, 8" % (sT0, sWAVE)); A("s_add_u32 s%d, s%d, %d" % (sT0, sT0, HI)); A("v_add_u32 v%d, s%d, v%d" % (vT + 4, sT0, vT + 4))
    A("v_lshlrev_b32 v%d, 8, v%d" % (vT + 5, vG4)); A("v_lshl_add_u32 v%d, v%d, 3, v%d" % (vT + 5, vN16, vT + 5)); A("v_add_u32 v%d, s%d, v%d" % (vT + 5, sT1, vT + 5))
    A("s_lshl_b32 s%d, s%d, 10" % (sT0, sWAVE)); A("s_add_u32 s%d, s%d, %d" % (sT0, sT0, HI)); A("v_add_u32 v%d, s%d, v%d" % (vT + 6, sT0, vL16))
    A("s_lshl_b32 s%d, s%d, 13" % (sT0, sWAVE)); A("v_lshlrev_b32 v%d, 8, v%d" % (vT, vN16)); A("v_add_u32 v%d, s%d, v%d" % (vT, sT0, vT))
    for m in range(4):
        A("v_add_u32 v%d, %d, v%d" % (vT + 1, 4 * m, vG4)); A("v_xor_b32 v%d, v%d, v%d" % (vT + 1, vT + 1, vN16))
        A("v_lshl_add_u32 v%d, v%d, 4, v%d" % (vKA + m, vT + 1, vT)); A("v_add_u32 v%d, 0x10000, v%d" % (vKA + 4 + m, vKA + m))
    A("s_lshl_b32 s%d, s%d, 2" % (sT0, sWAVE)); A("s_add_u32 s%d, s%d, %d" % (sT0, sT0, HI)); A("v_mov_b32 v%d, s%d" % (30, sT0))
    A("s_mov_b32 s%d, 0" % sFULL)
    A("s_waitcnt vmcnt(%d)" % nq0)
    for a in range(nq0, 4):
        A("s_add_u32 m0, s%d, %d" % (sT1, a * 1024))
        A("buffer_load_dwordx4 v31, %s, s12 offen %s lds" % (srd("WQ"), polq))
        if a < 3: A("s_add_u32 s12, s12, 0x40000")
    stamp(1)
    layernorm(vX, 8, vX + 8, vX + 24, vX + 40, 2)
    A("ds_write_b128 v%d, %s offset:%d" % (vT + 3, vr(vX, 4), L_XN)); A("ds_write_b128 v%d, %s offset:%d" % (vT + 3, vr(vX + 4, 4), L_XN + 16))
    lds_add(vHI, F_XN)
    A("s_waitcnt vmcnt(0)")
    for m in range(4):
        A("ds_read_b64_tr_b16 %s, v%d offset:%d" % (vr(vK + 4 * m, 2), vT + 5, m * 1024))
        A("ds_read_b64_tr_b16 %s, v%d offset:%d" % (vr(vK + 4 * m + 2, 2), vT + 5, m * 1024 + 128))
    lds_wait(F_XN, 4)
    for m in range(4): A("ds_read_b128 %s, v%d offset:%d" % (vr(vK + 16 + 4 * m, 4), vT + 4, L_XN + m * 64))
    for m in range(4):
        A("s_waitcnt lgkmcnt(%d)" % (3 - m))
        A("v_mfma_f32_16x16x32_bf16 %s, %s, %s, %s" % (vr(vTMP, 4), vr(vK + 4 * m, 4), vr(vK + 16 + 4 * m, 4), "0" if m == 0 else vr(vTMP, 4)))
    A("ds_write_b128 v%d, %s offset:%d" % (vT + 6, vr(vTMP, 4), L_QP))
    lds_add(vHI, F_QP)
    A("s_mov_b64 exec, 1"); A("ds_add_u32 v30, v%d offset:%d" % (vONE, F_FREED)); A("s_mov_b64 exec, -1")
    stamp(2)
    def wait_block(n4):
        A("s_add_u32 s%d, s%d, %d" % (sT0, sWAVE, 4 * n4 + 1))
        lds_wait(F_FULL, "s%d" % sT0, keep=sFULL)
    def read_k(j):
        base = vK + 32 * (j % 4)
        for t in range(2):
            for m in range(4):
                A("ds_read_b128 %s, v%d offset:%d" % (vr(base + 16 * t + 4 * m, 4), vKA + m + (4 if (j & 2) else 0), (j & 1) * 32768 + t * 4096))
    def qk_block(j):
        base = vK + 32 * (j % 4)
        for m in range(4):
            for t in range(2):
                acc = vr(vS + 8 * j + 4 * t, 4)
                A("v_mfma_f32_16x16x32_bf16 %s, %s, %s, %s" % (acc, vr(base + 16 * t + 4 * m, 4), vr(vQ + 4 * m, 4), "0" if m == 0 else acc))
    def round_block(j):
        for p in range(4):
            a, b, t = vS + 8 * j + 2 * p, vS + 8 * j + 2 * p + 1, vT + (p & 1)
            if mimic:
                A("v_cvt_pk_bf16_f32 v%d, v%d, v%d" % (t, a, b)); unpack(a, b, t)
            A("v_mul_f32 v%d, s%d, v%d" % (a, sSCALE, a)); A("v_mul_f32 v%d, s%d, v%d" % (b, sSCALE, b))
            if mimic:
                A("v_cvt_pk_bf16_f32 v%d, v%d, v%d" % (t, a, b)); unpack(a, b, t)
            if j == 0 and p == 0: A("v_max_f32 v%d, v%d, v%d" % (vM, a, b))
            else: A("v_max3_f32 v%d, v%d, v%d, v%d" % (vM, a, b, vM))
    for j in range(4):
        wait_block(j); read_k(j); lds_add(30, F_FREED)
    stamp(3)
    lds_wait(F_QR, 1)
    stamp(4)
    A("v_lshlrev_b32 v%d, 8, v%d" % (vT, vC4)); A("v_lshl_add_u32 v%d, v%d, 4, v%d" % (vT, vG4, vT)); A("v_add_u32 v%d, v%d, v%d" % (vT, vHI, vT))
    for m in range(4): A("ds_read_b128 %s, v%d offset:%d" % (vr(vQ + 4 * m, 4), vT, L_QB + m * 64))
    A("s_waitcnt lgkmcnt(0)")
    for j in range(4):
        qk_block(j)
        wait_block(4 + j); A("s_nop 3"); read_k(4 + j)
        if j >= 1: round_block(j - 1)
        lds_add(30, F_FREED)
    for j in range(4, 8):
        qk_block(j); round_block(j - 1)
    A("v_lshl_add_u32 v%d, v%d, 2, v%d" % (vT + 2, vG4, vC4))
    A("v_and_b32 v%d, 7, v%d" % (vT + 3, vT + 2)); A("v_lshlrev_b32 v%d, 1, v%d" % (vT + 3, vT + 3))
    A("v_lshrrev_b32 v%d, 1, v%d" % (vT + 4, vR4)); A("v_xor_b32 v%d, v%d, v%d" % (vT + 3, vT + 3, vT + 4))
    A("v_lshlrev_b32 v%d, 8, v%d" % (vT + 2, vT + 2)); A("v_lshl_add_u32 v%d, v%d, 4, v%d" % (vT + 2, vT + 3, vT + 2))
    A("v_and_b32 v%d, 1, v0" % (vT + 4)); A("v_lshl_add_u32 v%d, v%d, 3, v%d" % (vT + 2, vT + 4, vT + 2))
    A("s_lshl_b32 s%d, s%d, 13" % (sT0, sWAVE)); A("v_add_u32 v%d, s%d, v%d" % (vVA, sT0, vT + 2))
    for d in range(1, 8): A("v_xor_b32 v%d, %d, v%d" % (vVA + d, 32 * d, vVA))
    round_block(7)
    swap_red(vM, vT, "v_max_f32", 32); swap_red(vM, vT, "v_max_f32", 16)
    A("v_mul_f32 v%d, s%d, v%d" % (vM, sL2E, vM))
    A("v_lshlrev_b32 v%d, 4, v%d" % (vT + 1, vG4)); A("ds_bpermute_b32 v%d, v%d, v%d" % (vMO, vT + 1, vM))
    vP = vK
    for j in range(32):
        a, b = vS + 2 * j, vS + 2 * j + 1
        A("v_fma_f32 v%d, v%d, s%d, -v%d" % (a, a, sL2E, vM)); A("v_fma_f32 v%d, v%d, s%d, -v%d" % (b, b, sL2E, vM))
        A("v_exp_f32 v%d, v%d" % (a, a)); A("v_exp_f32 v%d, v%d" % (b, b))
        if j >= 1:
            pa, pb = a - 2, b - 2
            if j == 1: A("v_add_f32 v%d, v%d, v%d" % (vLs, pa, pb))
            else: A("v_add_f32 v%d, v%d, v%d" % (vLs, vLs, pa)); A("v_add_f32 v%d, v%d, v%d" % (vLs, vLs, pb))
            A("v_cvt_pk_bf16_f32 v%d, v%d, v%d" % (vP + j - 1, pa, pb))
    A("v_add_f32 v%d, v%d, v%d" % (vLs, vLs, vS + 62)); A("v_add_f32 v%d, v%d, v%d" % (vLs, vLs, vS + 63))
    A("v_cvt_pk_bf16_f32 v%d, v%d, v%d" % (vP + 31, vS + 62, vS + 63))
    swap_red(vLs, vT, "v_add_f32", 32); swap_red(vLs, vT, "v_add_f32", 16)
    A("s_lshl_b32 s%d, s%d, 5" % (sT0, sWAVE)); A("s_add_u32 s%d, s%d, %d" % (sT0, sT0, HI)); A("v_lshlrev_b32 v%d, 3, v%d" % (vT, vC4)); A("v_add_u32 v%d, s%d, v%d" % (vT, sT0, vT))
    A("v_mov_b32 v%d, v%d" % (vT + 2, vM)); A("v_mov_b32 v%d, v%d" % (vT + 3, vLs))
    A("s_mov_b64 exec, 0x1111"); A("ds_write_b64 v%d, %s offset:%d" % (vT, vr(vT + 2, 2), L_ST)); A("s_mov_b64 exec, -1")
    lds_add(vHI, F_ST)
    stamp(5)
    A("s_lshl_b32 s%d, s%d, 11" % (sT0, sWAVE)); A("s_add_u32 s%d, s%d, %d" % (sT0, sT0, HI + L_OW))
    A("v_lshlrev_b32 v%d, 9, v%d" % (vOWA, vG4)); A("v_lshl_add_u32 v%d, v%d, 2, v%d" % (vOWA, vN16, vOWA)); A("v_add_u32 v%d, s%d, v%d" % (vOWA, sT0, vOWA))
    vVB = vK + 32
    def read_v(j):
        base = vVB + 32 * (j & 1)
        for d in range(8):
            for t in range(2):
                A("ds_read_b64_tr_b16 %s, v%d offset:%d" % (vr(base + 4 * d + 2 * t, 2), vVA + d, (j & 1) * 32768 + t * 4096))
    def pv(j, d):
        base = vVB + 32 * (j & 1)
        acc = vr(vS + 4 * d, 4)
        A("v_mfma_f32_16x16x32_bf16 %s, %s, %s, %s" % (acc, vr(vP + 4 * j, 4), vr(base + 4 * d, 4), "0" if j == 0 else acc))
    vS2, vF2 = vS + 32, 31
    def factor(dst, m):
        lds_wait(F_GR, 1)
        A("v_lshl_add_u32 v%d, v%d, 3, v%d" % (vT, vG4, vHI)); A("ds_read_b64 %s, v%d offset:%d" % (vr(vT + 2, 2), vT, L_GS)); A("s_waitcnt lgkmcnt(0)")
        A("v_sub_f32 v%d, v%d, v%d" % (dst, m, vT + 2)); A("v_exp_f32 v%d, v%d" % (dst, dst)); A("v_mul_f32 v%d, v%d, v%d" % (dst, dst, vT + 3))
    def wait_pos(j, out):
        ok = A.label("pok"); again = A.label("pagain"); chk = A.label("pchk")
        A("s_add_u32 s%d, s%d, %d" % (sT0, sWAVE, 32 + 4 * j + 1))
        A("s_mov_b32 s%d, 0" % sSPIN)
        A("s_branch " + chk)
        A(again + ":")
        A("ds_read_b64 %s, v%d offset:%d" % (vr(vT + 2, 2), vHI, F_FULL)); A("s_waitcnt lgkmcnt(0)")
        A("v_readfirstlane_b32 s%d, v%d" % (sFULL, vT + 2)); A("v_readfirstlane_b32 s%d, v%d" % (sPLAN, vT + 3))
        A(chk + ":")
        A("s_cmp_ge_u32 s%d, s%d" % (sFULL, sT0)); A("s_cbranch_scc1 " + ok)
        A("s_sub_u32 s%d, s%d, 0x100" % (sT1, sPLAN)); A("s_cmp_le_u32 s%d, %d" % (sT1, j)); A("s_cbranch_scc1 " + out)
        A("s_add_u32 s%d, s%d, 1" % (sSPIN, sSPIN)); A("s_cmp_lt_u32 s%d, %d" % (sSPIN, lspin)); A("s_cbranch_scc1 " + again)
        A("s_branch " + out)
        A(ok + ":")
    if steal:
        lds_wait(F_AM, 1)
        A("v_lshrrev_b32 v%d, 2, v0" % vT); A("v_lshlrev_b32 v%d, 4, v%d" % (vT, vT))
        A("s_lshl_b32 s%d, s%d, 12" % (sT0, sR)); A("s_lshl_b32 s%d, s%d, 10" % (sT1, sWAVE)); A("s_add_u32 s%d, s%d, s%d" % (sT0, sT0, sT1)); A("s_add_u32 s%d, s%d, 0x%x" % (sT0, sT0, WS_PR))
        A("s_mov_b32 exec_lo, 0x11111111"); A("s_mov_b32 exec_hi, 0x11111111")
        for u in range(3): A("buffer_store_dwordx4 %s, v%d, %s, s%d offen offset:%d sc1" % (vr(vP + 4 * (5 + u), 4), vT, srd("WS"), sT0, 256 * u))
        A("s_mov_b64 exec, 0x1111")
        A("buffer_store_dword v%d, v0, %s, s%d offen offset:768 sc1" % (vM, srd("WS"), sT0))
        A("s_mov_b64 exec, -1")
        A("s_mov_b32 s%d, 0" % sPLAN)
    for j in range(11 if steal else 8):
        if j == 7:
            factor(vF, vMO)
            stamp(6)
        if j < NOWN: wait_block(8 + j)
        else: wait_pos(j, "L_vout%d" % j)
        if j == 7: stamp(7)
        if j >= 8:
            if j == 8:
                A("v_lshrrev_b32 v%d, 2, v0" % (vT + 4)); A("v_lshlrev_b32 v%d, 4, v%d" % (vT + 4, vT + 4))
                A("s_lshl_b32 s%d, s%d, 10" % (sT1, sWAVE)); A("s_add_u32 s%d, s%d, %d" % (sT1, sT1, HI + L_PP)); A("v_add_u32 v%d, s%d, v%d" % (vT + 4, sT1, vT + 4))
                A("v_lshl_add_u32 v%d, v%d, 2, s%d" % (vT + 5, vG4, sT1))
                for u in range(3): A("ds_read_b128 %s, v%d offset:%d" % (vr(vP + 4 * u, 4), vT + 4, 256 * (2 - u)))
                A("ds_read_b32 v%d, v%d offset:768" % (vF2, vT + 5)); A("s_waitcnt lgkmcnt(0)")
                factor(vF2, vF2)
        read_v(j)
        if j % 4 == 1:
            for d in range(8): A("v_add_u32 v%d, 0x10000, v%d" % (vVA + d, vVA + d))
        if j % 4 == 3 and (steal or j < 7):
            for d in range(8): A("v_subrev_u32 v%d, 0x10000, v%d" % (vVA + d, vVA + d))
        for d in range(8):
            A("s_waitcnt lgkmcnt(%d)" % (14 - 2 * d))
            if d == 7 and j < (7 if steal else 4):
                A("s_mov_b64 exec, 1"); A("ds_add_u32 v30, v%d offset:%d" % (vONE, F_FREED)); A("s_mov_b64 exec, -1")
            if j < 8: pv(j, d)
            else:
                acc = vr(vS2 + 4 * d, 4)
                A("v_mfma_f32_16x16x32_bf16 %s, %s, %s, %s" % (acc, vr(vP + 4 * (j - 8), 4), vr(vVB + 32 * (j & 1) + 4 * d, 4), "0" if j == 8 else acc))
    if steal:
        A("L_vout9:"); A("L_vout10:")
        A("s_nop 7")
        for d in range(8): A("v_mul_f32 v%d, v%d, v%d" % (vTMP + d, vF, vS + 4 * d))
        for d in range(8): A("v_fmac_f32 v%d, v%d, v%d" % (vTMP + d, vF2, vS2 + 4 * d))
        A("s_branch L_vsum")
        A("L_vout5:"); A("L_vout6:")
        factor(vF, vMO)
        A("L_vout7:"); A("L_vout8:")
        A("s_nop 7")
    for d in range(8): A("v_mul_f32 v%d, v%d, v%d" % (vTMP + d, vF, vS + 4 * d))
    if steal: A("L_vsum:")
    for d in range(0, 8, 2): A("ds_write2_b32 v%d, v%d, v%d offset0:%d offset1:%d" % (vOWA, vTMP + d, vTMP + d + 1, 16 * d, 16 * d + 16))
    vWOA, vOIR, vWO = 17, 18, vK
    A("v_lshlrev_b32 v%d, 7, v%d" % (vWOA, vC4)); A("v_lshl_add_u32 v%d, v%d, 10, v%d" % (vWOA, vG4, vWOA)); A("v_lshl_add_u32 v%d, v%d, 3, v%d" % (vWOA, vR4, vWOA))
    A("s_lshl_b32 s%d, s%d, 5" % (sT0, sWAVE)); A("s_add_u32 s%d, s%d, %d" % (sT0, sT0, HI + L_WO)); A("v_add_u32 v%d, s%d, v%d" % (vWOA, sT0, vWOA))
    A("s_waitcnt lgkmcnt(0)")
    A("s_barrier")
    stamp(8)
    def wo_reads():
        if wolate: lds_wait(F_WO, 1, sl=0)
        for m in range(4):
            A("ds_read_b64_tr_b16 %s, v%d offset:%d" % (vr(vWO + 4 * m, 2), vWOA, m * 4096))
            A("ds_read_b64_tr_b16 %s, v%d offset:%d" % (vr(vWO + 4 * m + 2, 2), vWOA, m * 4096 + 512))
    def oir_addr():
        A("v_lshrrev_b32 v%d, 1, v%d" % (vT, vN16)); A("v_lshlrev_b32 v%d, 10, v%d" % (vT, vT)); A("v_and_b32 v%d, 1, v0" % (vT + 1)); A("v_lshl_add_u32 v%d, v%d, 8, v%d" % (vT, vT + 1, vT))
        for m in range(4):
            A("v_add_u32 v%d, %d, v%d" % (vT + 1, 4 * m, vG4)); A("v_xor_b32 v%d, v%d, v%d" % (vT + 1, vT + 1, vN16))
            A("v_lshl_add_u32 v%d, v%d, 4, v%d" % (vOIR + m, vT + 1, vT))
        A("v_lshrrev_b32 v%d, 1, v%d" % (22, vN16)); A("v_lshlrev_b32 v22, %d, v22" % (16 + spad)); A("v_lshl_add_u32 v22, v%d, 4, v22" % vG4)
    A("s_cmp_gt_u32 s%d, 1" % sWAVE); A("s_cbranch_scc1 L_gather23")
    A("s_lshl_b32 s%d, s%d, 10" % (sT0, sWAVE)); A("s_add_u32 s%d, s%d, %d" % (sT0, sT0, HI + L_OW)); A("v_add_u32 v%d, s%d, v%d" % (vT, sT0, vL16))
    for w in range(4): A("ds_read_b128 %s, v%d offset:%d" % (vr(vS + 4 * w, 4), vT, w * 2048))
    A("v_lshrrev_b32 v%d, 5, v0" % (vT + 1)); A("v_lshlrev_b32 v%d, 13, v%d" % (vT + 1, vT + 1)); A("v_and_b32 v%d, 31, v0" % (vT + 2)); A("v_lshl_add_u32 v%d, v%d, 3, v%d" % (vT + 1, vT + 2, vT + 1))
    A("s_lshl_b32 s%d, s%d, 14" % (sT0, sWAVE)); A("s_add_u32 s%d, s%d, s%d" % (sT0, sT0, sOPOFF))
    A("s_waitcnt lgkmcnt(2)")
    for i in range(4): A("v_add_f32 v%d, v%d, v%d" % (vS + i, vS + i, vS + 4 + i))
    A("s_waitcnt lgkmcnt(0)")
    for i in range(4): A("v_add_f32 v%d, v%d, v%d" % (vS + 8 + i, vS + 8 + i, vS + 12 + i))
    for i in range(4): A("v_add_f32 v%d, v%d, v%d" % (vS + i, vS + i, vS + 8 + i))
    A("v_cvt_pk_bf16_f32 v%d, v%d, v%d" % (vTMP, vS, vS + 1)); A("v_cvt_pk_bf16_f32 v%d, v%d, v%d" % (vTMP + 1, vS + 2, vS + 3))
    A("buffer_store_dwordx2 %s, v%d, %s, s%d offen %s" % (vr(vTMP, 2), vT + 1, srd("WS"), sT0, ts))
    stamp(11)
    wo_reads(); oir_addr()
    A("s_branch L_barE_c")
    def gather(idx_sgpr, extra):
        vGa = 40
        A("s_lshr_b32 s%d, s%d, 3" % (sT1, sR)); A("s_lshl_b32 s%d, s%d, 13" % (sT1, sT1)); A("s_lshl_b32 s%d, s%d, 11" % (sT0, idx_sgpr))
        A("s_add_u32 s%d, s%d, s%d" % (sT1, sT1, sT0)); A("s_add_u32 s%d, s%d, 0x%x" % (sT1, sT1, WS_OP))
        lds_ = [(lambda: A("buffer_load_dwordx4 %s, v%d, %s, s%d offen %s" % (vr(vGa, 4), vL16, srd("WS"), sT1, tl)), list(range(vGa, vGa + 4))),
                (lambda: A("buffer_load_dwordx4 %s, v%d, %s, s%d offen offset:1024 %s" % (vr(vGa + 4, 4), vL16, srd("WS"), sT1, tl)), list(range(vGa + 4, vGa + 8)))]
        if td1: A("s_sleep %d" % td1)
        if at1:
            A("v_lshlrev_b32 v%d, 3, v0" % (vT + 7))
            apoll(vGa, vT + 7, sT1, 0, 0, first="only")
            extra()
            A("v_lshrrev_b32 v%d, 5, v0" % (vT + 2)); A("s_lshl_b32 s%d, s%d, 2" % (sT2, idx_sgpr)); A("v_add_u32 v%d, s%d, v%d" % (vT + 3, sT2, vT + 2))
            A("v_bfe_u32 v%d, v0, 1, 4" % (vT + 4)); A("v_xor_b32 v%d, v%d, v%d" % (vT + 3, vT + 3, vT + 4))
            A("v_lshlrev_b32 v%d, 8, v%d" % (vT + 2, vT + 2)); A("v_add_u32 v%d, s%d, v%d" % (vT + 2, sT0, vT + 2))
            A("v_and_b32 v%d, 1, v0" % (vT + 4)); A("v_lshl_add_u32 v%d, v%d, 3, v%d" % (vT + 2, vT + 4, vT + 2))
            A("v_lshl_add_u32 v%d, v%d, 4, v%d" % (vT + 5, vT + 3, vT + 2)); A("v_xor_b32 v%d, 32, v%d" % (vT + 6, vT + 5))
            apoll(vGa, vT + 7, sT1, 24, tsleep, first=False)
            stamp(11)
            for k in range(4): A("ds_write_b64 v%d, %s offset:%d" % (vT + 5 + (k >> 1), vr(vGa + 2 * k, 2), 512 * k))
            return
        for i_, _ in lds_: i_()
        A("v_and_b32 v%d, 1, v%d" % (vT + 2, vG4)); A("s_lshl_b32 s%d, s%d, 2" % (sT2, idx_sgpr)); A("v_add_u32 v%d, s%d, v%d" % (vT + 2, sT2, vT + 2))
        A("v_xor_b32 v%d, v%d, v%d" % (vT + 3, vT + 2, vN16)); A("v_xor_b32 v%d, 2, v%d" % (vT + 4, vT + 3))
        A("v_lshlrev_b32 v%d, 8, v%d" % (vT + 2, vG4)); A("v_add_u32 v%d, s%d, v%d" % (vT + 2, sT0, vT + 2))
        A("v_lshl_add_u32 v%d, v%d, 4, v%d" % (vT + 5, vT + 3, vT + 2)); A("v_lshl_add_u32 v%d, v%d, 4, v%d" % (vT + 6, vT + 4, vT + 2))
        extra()
        gpoll(lds_, first=False, sleep=tsleep, P=P1)
        stamp(11)
        A("ds_write_b128 v%d, %s" % (vT + 5, vr(vGa, 4))); A("ds_write_b128 v%d, %s offset:1024" % (vT + 6, vr(vGa + 4, 4)))
    A("L_gather23:")
    A("s_sub_u32 s%d, s%d, 2" % (sMU, sWAVE))
    gather(sMU, lambda: (wo_reads(), oir_addr()))
    A("L_barE_c:")
    A("s_waitcnt lgkmcnt(0)")
    A("s_barrier")
    stamp(9)
    for u in range(2):
        for m in range(4): A("ds_read_b128 %s, v%d offset:%d" % (vr(vS + 16 * u + 4 * m, 4), vOIR + m, u * 512))
    A("s_lshl_b32 s%d, s%d, %d" % (sT0, sWAVE, 11 + spad)); A("s_add_u32 s%d, s%d, s%d" % (sT0, sT0, sSPOFF))
    for u in range(2):
        for m in range(4):
            A("s_waitcnt lgkmcnt(%d)" % (7 - 4 * u - m))
            acc = vr(vTMP + 4 * u, 4)
            A("v_mfma_f32_16x16x32_bf16 %s, %s, %s, %s" % (acc, vr(vWO + 4 * m, 4), vr(vS + 16 * u + 4 * m, 4), "0" if m == 0 else acc))
    for i in range(4): A("v_add_f32 v%d, v%d, v%d" % (vTMP + i, vTMP + i, vTMP + 4 + i))
    for i in range(4): dpp("v_add_f32", vTMP + i, "quad_perm:[1,0,3,2]")
    A("s_mov_b32 exec_lo, 0x55555555"); A("s_mov_b32 exec_hi, 0x55555555")
    stamp(10)
    A("buffer_store_dwordx4 %s, v22, %s, s%d offen %s" % (vr(vTMP, 4), srd("WS"), sT0, ts))
    A("s_mov_b64 exec, -1")
    A("s_branch L_done")

    A("L_loader:")
    if ldprio: A("s_setprio %d" % ldprio)
    vO = 17
    A("v_lshlrev_b32 v%d, 8, v%d" % (vT, vG4))
    for i in range(4):
        A("v_add_u32 v%d, %d, v%d" % (vT + 1, 4 * i, vG4)); A("v_xor_b32 v%d, v%d, v%d" % (vT + 1, vT + 1, vN16)); A("v_lshl_add_u32 v%d, v%d, 4, v%d" % (vO + i, vT + 1, vT))
    for i in range(2):
        A("v_add_u32 v%d, %d, v%d" % (vT + 1, 4 * i, vG4)); A("v_lshlrev_b32 v%d, 1, v%d" % (vT + 1, vT + 1))
        A("v_xor_b32 v%d, v%d, v%d" % (vT + 1, vT + 1, vN16)); A("v_lshl_add_u32 v%d, v%d, 4, v%d" % (vO + 4 + i, vT + 1, vT))
    sG, sSLOT, sFR, sN = 12, 13, 88, 92
    A("s_bfe_u32 s%d, s%d, 0x30002" % (sBASE, sR)); A("s_lshl_b32 s%d, s%d, 23" % (sBASE, sBASE)); A("s_lshr_b32 s%d, s%d, 5" % (sT0, sR)); A("s_lshl_b32 s%d, s%d, 20" % (sT0, sT0))
    A("s_add_u32 s%d, s%d, s%d" % (sBASE, sBASE, sT0)); A("s_and_b32 s%d, s%d, 3" % (sT0, sR)); A("s_lshl_b32 s%d, s%d, 18" % (sT0, sT0)); A("s_add_u32 s%d, s%d, s%d" % (sBASE, sBASE, sT0))
    if rot:
        A("s_mov_b32 s94, s%d" % sBASE)
        A("s_mul_i32 s%d, s%d, %d" % (sT0, sR, rot)); A("s_lshr_b32 s%d, s%d, 5" % (sT1, sR)); A("s_add_u32 s%d, s%d, s%d" % (sT0, sT0, sT1))
        A("s_and_b32 s%d, s%d, 31" % (sT0, sT0)); A("s_lshl_b32 s%d, s%d, 13" % (sT0, sT0)); A("s_add_u32 s%d, s%d, s%d" % (sBASE, sBASE, sT0))
    if Fhi:
        A("s_and_b32 s%d, s2, 7" % sT0); A("s_lshr_b32 s%d, %d, s%d" % (sT0, himask, sT0)); A("s_and_b32 s%d, s%d, 1" % (sT0, sT0)); A("s_cselect_b32 s95, %d, %d" % (Fhi, F))
    A("s_mov_b32 s94, 0"); A("s_mov_b32 s93, 0"); A("s_mov_b32 s%d, s%d" % (sOFF, sBASE)); A("s_mov_b32 s%d, 0" % sG); A("s_mov_b32 s%d, 0" % sSLOT); A("s_mov_b32 s%d, 0" % sN)
    A("s_waitcnt lgkmcnt(0)")
    def publish_full(sgpr):
        A("v_mov_b32 v%d, s%d" % (vT, sgpr)); A("s_mov_b64 exec, 1"); A("ds_max_u32 v%d, v%d offset:%d" % (vHI, vT, F_FULL)); A("s_mov_b64 exec, -1")
    def dma_block(isk):
        Dm = D if isk else DV
        for half in range(2):
            A("s_mov_b32 m0, s%d" % sSLOT)
            if Dm: A("s_waitcnt vmcnt(%d)" % Dm)
            for i in range(4):
                A("buffer_load_dwordx4 v%d, %s, s%d offen offset:%d %s lds" % (vO + i if isk else vO + 4 + (i & 1), srd("K" if isk else "V"), sOFF, i * 1024, pol))
            A("s_add_u32 s%d, s%d, 4096" % (sOFF, sOFF)); A("s_add_u32 s%d, s%d, 4096" % (sSLOT, sSLOT))
            if Dm and (4 * half - Dm) % 8 < 4:
                A("s_add_i32 s%d, s%d, %d" % (sT0, sN, (4 * half - Dm) // 8)); A("s_max_i32 s%d, s%d, 0" % (sT0, sT0)); publish_full(sT0)
        if rot:
            A("s_and_b32 s%d, s%d, 0x3ffff" % (sOFF, sOFF)); A("s_or_b32 s%d, s%d, s94" % (sOFF, sOFF))
        A("s_and_b32 s%d, s%d, 0x1ffff" % (sSLOT, sSLOT)); A("s_add_u32 s%d, s%d, 1" % (sN, sN))
    if ldst == 2: stamp(1)
    for _ in range(pre): dma_block(True)
    A("s_barrier")
    if ldst == 2: stamp(2)
    for _ in range(4 - pre): dma_block(True)
    A("s_mov_b32 s%d, 1" % sG)
    if ldst == 2: stamp(3)
    def read_freed():
        A("ds_read_b128 %s, v%d offset:%d" % (vr(vT + 4, 4), vHI, F_FREED)); A("s_waitcnt lgkmcnt(0)")
        for c in range(4): A("v_readfirstlane_b32 s%d, v%d" % (sFR + c, vT + 4 + c))
    for isk, last in ((True, 8), (False, 19 if steal else 16)):
        loop = "L_ld_k" if isk else "L_ld_v"
        if not isk: A("s_mov_b32 s%d, s%d" % (sOFF, sBASE))
        A(loop + ":")
        for g_, reg in ((p_a, 16), (p_b, 18)):
            if g_ > 0 and g_ < 16 and (g_ < 8) == isk:
                sk = A.label("st"); A("s_cmp_lg_u32 s%d, %d" % (sG, g_)); A("s_cbranch_scc1 " + sk); A("s_memrealtime s[%d:%d]" % (reg, reg + 1)); A(sk + ":")
        if ldst == 1:
            for k, g in enumerate((2, 3, 4, 5, 6, 7) if isk else (8, 10, 12, 14)):
                sk = A.label("st"); A("s_cmp_lg_u32 s%d, %d" % (sG, g)); A("s_cbranch_scc1 " + sk); stamp(k + 1 if isk else k + 7); A(sk + ":")
        if steal and not isk:
            go = A.label("pgo"); again = A.label("pagain")
            A("s_cmp_lt_u32 s%d, %d" % (sG, 8 + NOWN)); A("s_cbranch_scc1 " + go)
            A("s_mov_b32 s%d, 0" % sSPIN); A("s_sub_u32 s%d, s%d, 8" % (sT1, sG))
            if ldst: A("s_memrealtime s[14:15]")
            A(again + ":")
            A("ds_read_b32 v%d, v%d offset:%d" % (vPOLL, vHI, F_PLAN)); A("s_waitcnt lgkmcnt(0)"); A("v_readfirstlane_b32 s%d, v%d" % (sT0, vPOLL))
            A("s_and_b32 s%d, s%d, 0xff" % (sT2, sT0)); A("s_cmp_gt_u32 s%d, s%d" % (sT2, sT1)); A("s_cbranch_scc1 L_granted")
            A("s_cmp_ge_u32 s%d, 0x100" % sT0); A("s_cbranch_scc1 L_ld_end")
            for k in range(F - 1, -1, -1):
                A("s_cmp_eq_u32 s%d, %d" % (sSPIN, F - 1 - k)); nx = A.label("nx"); A("s_cbranch_scc0 " + nx)
                A("s_sub_u32 s%d, s%d, %d" % (sT0, sN, k)); A("s_waitcnt vmcnt(%d)" % (8 * k)); publish_full(sT0); A(nx + ":")
            if ldst: A("s_add_u32 s93, s93, 1")
            A("s_add_u32 s%d, s%d, 1" % (sSPIN, sSPIN)); A("s_cmp_lt_u32 s%d, %d" % (sSPIN, lspin)); A("s_cbranch_scc1 " + again)
            A("s_branch L_ld_end")
            A("L_granted:")
            if ldst:
                A("s_memrealtime s[36:37]"); A("s_waitcnt lgkmcnt(0)"); A("s_sub_u32 s36, s36, s14"); A("s_add_u32 s94, s94, s36")
            A("s_cmp_lt_u32 s%d, 16" % sG); A("s_cbranch_scc1 " + go)
            A("s_sub_u32 s%d, 23, s%d" % (sT0, sG)); A("s_lshl_b32 s%d, s%d, 15" % (sT0, sT0)); A("s_xor_b32 s%d, s%d, 0x80000" % (sOFF, sBASE)); A("s_add_u32 s%d, s%d, s%d" % (sOFF, sOFF, sT0))
            A(go + ":")
        read_freed()
        A("s_sub_i32 s%d, s%d, 2" % (sT1, sG))
        if Fhi and hiend < 16:
            A("s_cmp_ge_u32 s%d, %d" % (sG, hiend)); A("s_cselect_b32 s95, %d, s95" % F)
        for c in range(4):
            go = A.label("go"); sl = A.label("slow")
            A("s_cmp_ge_i32 s%d, s%d" % (sFR + c, sT1)); A("s_cbranch_scc1 " + go)
            A("s_waitcnt vmcnt(0)"); publish_full(sN)
            if ldst: A("s_add_u32 s93, s93, 100")
            A("s_mov_b32 s%d, 0" % sSPIN)
            A(sl + ":")
            read_freed()
            A("s_cmp_ge_i32 s%d, s%d" % (sFR + c, sT1)); A("s_cbranch_scc1 " + go)
            A("s_add_u32 s%d, s%d, 1" % (sSPIN, sSPIN)); A("s_cmp_lt_u32 s%d, %d" % (sSPIN, lspin)); A("s_cbranch_scc1 " + sl)
            A(go + ":")
            dma_block(isk)
            if D: pass
            elif Fhi:
                hi = A.label("hi")
                A("s_sub_i32 s%d, s%d, s95" % (sT0, sN)); A("s_max_i32 s%d, s%d, 0" % (sT0, sT0))
                A("s_waitcnt vmcnt(%d)" % (8 * Fhi)); A("s_cmp_eq_u32 s95, %d" % Fhi); A("s_cbranch_scc1 " + hi)
                A("s_waitcnt vmcnt(%d)" % (8 * F)); A(hi + ":"); publish_full(sT0)
            else:
                A("s_sub_i32 s%d, s%d, %d" % (sT0, sN, F))
                if F > 5: A("s_max_i32 s%d, s%d, 0" % (sT0, sT0))
                A("s_waitcnt vmcnt(%d)" % (8 * F)); publish_full(sT0)
        if stamps:
            pass
        A("s_add_u32 s%d, s%d, 1" % (sG, sG)); A("s_cmp_lt_u32 s%d, %d" % (sG, last)); A("s_cbranch_scc1 " + loop)
        if not ldst: stamp(1 if isk else 2)
    def wo_dma():
        A("v_lshrrev_b32 v%d, 3, v0" % (vT + 4)); A("v_lshlrev_b32 v%d, 10, v%d" % (vT + 4, vT + 4)); A("v_and_b32 v%d, 7, v0" % (vT + 5)); A("v_lshl_add_u32 v%d, v%d, 4, v%d" % (vT + 4, vT + 5, vT + 4))
        A("s_lshr_b32 s%d, s%d, 3" % (sT0, sR)); A("s_lshl_b32 s%d, s%d, 17" % (sT0, sT0)); A("s_and_b32 s%d, s%d, 7" % (sT1, sR)); A("s_lshl_b32 s%d, s%d, 7" % (sT1, sT1))
        A("s_add_u32 s%d, s%d, s%d" % (sT0, sT0, sT1))
        for a in range(16):
            A("s_mov_b32 m0, %d" % (HI + L_WO + a * 1024))
            A("buffer_load_dwordx4 v%d, %s, s%d offen %s lds" % (vT + 4, srd("WO"), sT0, polo))
            if a < 15: A("s_add_u32 s%d, s%d, 0x2000" % (sT0, sT0))
    if steal:
        A("L_ld_end:")
        A("s_mov_b64 exec, 1"); A("ds_write_b32 v%d, v%d offset:%d" % (vHI, vONE, F_LI)); A("s_mov_b64 exec, -1")
    if wolate == 1: wo_dma()
    for k in range((DV + 4 + 7) // 8 - 1 if D else max(F, Fhi) - 1, -1, -1):
        A("s_sub_u32 s%d, s%d, %d" % (sT0, sN, k)); A("s_waitcnt vmcnt(%d)" % (8 * k + (16 if wolate == 1 else 0))); publish_full(sT0)
    if wolate == 1:
        if ldst: stamp(11)
        A("s_waitcnt vmcnt(0)"); A("s_mov_b64 exec, 1"); A("ds_write_b32 v%d, v%d offset:%d" % (vHI, vONE, F_WO)); A("s_mov_b64 exec, -1")
    if ldst:
        if wolate == 1: stamp(12)
        else:
            stamp(11)
            A("s_waitcnt lgkmcnt(0)"); A("s_mul_i32 s%d, s%d, 25" % (sT0, sN)); A("s_add_u32 s40, s16, s%d" % sT0); A("s_addc_u32 s41, s17, 0")
            if steal: A("s_add_u32 s36, s16, s94"); A("s_addc_u32 s37, s17, 0")
    else: stamp(3)
    if p_b >= 0:
        if p_b == 16: A("s_memrealtime s[18:19]")
        A("s_waitcnt lgkmcnt(0)"); A("s_sub_u32 s18, s18, s16"); A("v_mov_b32 v8, s18"); A("s_mov_b64 exec, 1"); A("buffer_atomic_add v8, off, %s, 0 offset:4" % srd("DBG")); A("s_mov_b64 exec, -1")
    if pspan:
        A("s_memrealtime s[18:19]"); A("s_waitcnt lgkmcnt(0)")
        if pspan in (3, 4): A("s_mov_b32 s18, s16")
        A("s_not_b32 s16, s16"); A("v_mov_b32 v8, s18"); A("v_mov_b32 v9, s16"); A("s_mov_b64 exec, 1")
        A("buffer_atomic_%s v8, off, %s, 0 offset:4" % ("add" if pspan in (4, 5) else "umax", srd("DBG"))); A("buffer_atomic_umax v9, off, %s, 0 offset:8" % srd("DBG")); A("s_mov_b64 exec, -1")
    if probe:
        A("s_memrealtime s[20:21]"); A("s_waitcnt lgkmcnt(0)")
        if pstart: A("s_mov_b32 s20, s16")
        A("s_and_b32 s6, s2, 7"); A("s_lshr_b32 s6, %d, s6" % probe); A("s_and_b32 s6, s6, 1"); A("s_lshl_b32 s6, s6, 2"); A("s_add_u32 s6, s6, 4")
        A("s_waitcnt lgkmcnt(0)"); A("v_mov_b32 v8, s20"); A("s_mov_b64 exec, 1"); A("buffer_atomic_add v8, off, %s, s6" % srd("DBG")); A("s_mov_b64 exec, -1")
    A("s_waitcnt lgkmcnt(0)")
    A("s_branch L_done")

    def slot_addrs():
        A("v_lshlrev_b32 v28, 5, v0")
        A("s_and_b32 s%d, s%d, 3" % (sT0, sR)); A("s_lshl_b32 s%d, s%d, 3" % (sT0, sT0)); A("s_add_u32 s%d, s%d, s%d" % (sMU, sT0, sSTOFF))
    A("L_comm:")
    vZ = 20
    for i in range(4): A("v_mov_b32 v%d, 0" % (vZ + i))
    A("v_lshl_add_u32 v%d, v0, 2, v%d" % (vT, vHI))
    A("s_mov_b64 exec, 0xffff"); A("ds_write_b32 v%d, v%d offset:%d" % (vT, vZ, L_FLG)); A("s_mov_b64 exec, -1")
    slot_addrs()
    sEP = 4
    def epoch():
        A("s_waitcnt vmcnt(0)")
        A("v_readfirstlane_b32 s%d, v30" % sEP); A("v_readfirstlane_b32 s%d, v31" % (sEP + 1))
        A("s_add_u32 s%d, s%d, 0x%x" % (sEP, sEP, EP_STEP & 0xffffffff)); A("s_addc_u32 s%d, s%d, 0x%x" % (sEP + 1, sEP + 1, EP_STEP >> 32))
    A("s_waitcnt lgkmcnt(0)")
    A("buffer_load_dwordx2 v[30:31], off, %s, 0 offset:%d sc1" % (srd("WS"), WS_EP))
    A("s_barrier")
    A("v_add_u32 v%d, v%d, v%d" % (vT, vHI, vL16))
    A("v_and_b32 v29, 7, v0"); A("v_lshlrev_b32 v29, 14, v29"); A("v_lshl_add_u32 v29, v%d, 4, v29" % vG4)
    A("s_lshl_b32 s%d, s%d, 6" % (sT2, sRQ)); A("s_add_u32 s%d, s%d, 0x%x" % (sT2, sT2, WS_Q))
    A("s_bfe_u32 s%d, s%d, 0x30002" % (sT0, sR)); A("s_lshl_b32 s%d, s%d, 14" % (sT0, sT0)); A("s_lshr_b32 s%d, s%d, 5" % (sT1, sR)); A("s_lshl_b32 s%d, s%d, 11" % (sT1, sT1))
    A("s_add_u32 s%d, s%d, s%d" % (sT0, sT0, sT1)); A("s_add_u32 s%d, s%d, 0x%x" % (sT0, sT0, WS_Q))
    A("v_lshl_add_u32 v27, v0, 3, v%d" % vHI)
    epoch()
    A("v_mov_b32 v38, s%d" % sEP); A("v_mov_b32 v39, s%d" % (sEP + 1))
    stamp(1)
    lds_wait(F_QP, 4)
    for w in range(4): A("ds_read_b128 %s, v%d offset:%d" % (vr(40 + 4 * w, 4), vT, L_QP + w * 1024))
    A("s_waitcnt lgkmcnt(0)")
    for i in range(4): A("v_add_f32 v%d, v%d, v%d" % (40 + i, 40 + i, 44 + i)); A("v_add_f32 v%d, v%d, v%d" % (48 + i, 48 + i, 52 + i))
    for i in range(4): A("v_add_f32 v%d, v%d, v%d" % (40 + i, 40 + i, 48 + i))
    A("v_cvt_pk_bf16_f32 v36, v40, v41"); A("v_cvt_pk_bf16_f32 v37, v42, v43")
    A("s_mov_b32 exec_lo, 0x00ff00ff"); A("s_mov_b32 exec_hi, 0x00ff00ff")
    A("buffer_store_dwordx4 v[36:39], v29, %s, s%d offen sc1" % (srd("WS"), sT2))
    A("s_mov_b64 exec, -1")
    stamp(2)
    if qdelay: A("s_sleep %d" % qdelay)
    if qtrig: lds_wait(F_FULL, qtrig, sl=4)
    gpoll([(lambda: A("buffer_load_dwordx4 v[32:35], v%d, %s, s%d offen sc1" % (vL16, srd("WS"), sT0)), [32, 33, 34, 35]),
           (lambda: A("buffer_load_dwordx4 v[40:43], v%d, %s, s%d offen offset:1024 sc1" % (vL16, srd("WS"), sT0)), [40, 41, 42, 43])], sleep=qsleep, tag="s[%d:%d]" % (sEP, sEP + 1))
    A("ds_write_b64 v27, v[32:33] offset:%d" % L_QB); A("ds_write_b64 v27, v[40:41] offset:%d" % (L_QB + 512))
    lds_add(vHI, F_QR)
    stamp(4)
    def all_marked():
        A("v_lshlrev_b32 v%d, 5, v0" % (vT + 3))
        word_poll("buffer_load_dword v32, v%d, %s, 0 offen sc1" % (vT + 3, srd("DBG")), 32, "0xff", "v_cmp_gt_u32 vcc, 32, v%d", fsleep)
        stamp(3)
    all_marked()
    lds_add(vHI, F_AM)
    A("v_lshlrev_b32 v%d, 3, v%d" % (vT + 1, vN16)); A("v_add_u32 v%d, v%d, v%d" % (vT + 2, vHI, vT + 1))
    lds_wait(F_ST, 4)
    A("ds_read_b64 v[32:33], v%d offset:%d" % (vT + 2, L_ST)); A("s_waitcnt lgkmcnt(0)")
    def combine(modes):
        A("v_mov_b32 v34, v32")
        for m in modes: dpp("v_max_f32", 34, m)
        A("v_sub_f32 v32, v32, v34"); A("v_exp_f32 v32, v32"); A("v_mul_f32 v35, v32, v33")
        for m in modes: dpp("v_add_f32", 35, m)
    combine(("row_ror:4", "row_ror:8"))
    A("s_mov_b64 exec, 0xf"); A("buffer_store_dwordx2 v[34:35], v28, %s, s%d offen sc1" % (srd("WS"), sMU)); A("s_mov_b64 exec, -1")
    stamp(5)
    if sdelay: A("s_sleep %d" % sdelay)
    if strig:
        lds_wait(F_FULL, strig, sl=8)
    gpoll([(lambda: A("buffer_load_dwordx2 v[32:33], v%d, %s, s%d offen sc1" % (vT + 1, srd("WS"), sSTOFF)), [32, 33])], sleep=ssleep)
    combine(("quad_perm:[1,0,3,2]", "quad_perm:[2,3,0,1]"))
    A("v_rcp_f32 v35, v35"); A("v_lshl_add_u32 v%d, v%d, 3, v%d" % (vT + 2, vC4, vHI))
    A("s_mov_b64 exec, 0x1111"); A("ds_write_b64 v%d, v[34:35] offset:%d" % (vT + 2, L_GS)); A("s_mov_b64 exec, -1")
    lds_add(vHI, F_GR)
    stamp(6)
    A("s_mov_b32 s%d, 2" % sMU)
    A("L_gather56:")
    A("s_waitcnt lgkmcnt(0)")
    A("s_barrier")
    stamp(8)
    gather(sMU, lambda: None)
    A("s_waitcnt lgkmcnt(0)")
    A("s_barrier")
    stamp(9)
    A("s_branch L_done")

    A("L_mlp:")
    vW, vU = 32, 64
    def clean():
        A("s_cmp_lg_u32 s%d, 7" % sWAVE); A("s_cbranch_scc1 L_noclean")
        for i in range(4): A("v_mov_b32 v%d, -1" % (60 + i))
        slot_addrs()
        A("v_lshlrev_b32 v%d, 13, v%d" % (59, vG4)); A("v_lshl_add_u32 v%d, v%d, 4, v%d" % (59, vN16, 59))
        A("s_lshl_b32 s%d, s%d, %d" % (sT1, sR, 11 + spad)); A("s_add_u32 s%d, s%d, 0x%x" % (sT1, sT1, WS_SP))
        A("v_lshrrev_b32 v29, 2, v0"); A("v_lshlrev_b32 v29, %d, v29" % (6 + spad)); A("v_lshl_add_u32 v29, v%d, 4, v29" % vR4)
        A("s_waitcnt lgkmcnt(0)")
        A("buffer_load_dwordx2 v[30:31], off, %s, 0 offset:%d sc1" % (srd("WS"), WS_EP))
        A("s_mov_b64 exec, 0xf"); A("buffer_store_dwordx2 v[60:61], v28, %s, s%d offen sc1" % (srd("WS"), sMU)); A("s_mov_b64 exec, -1")
        A("buffer_store_dwordx4 v[60:63], v%d, %s, s%d offen sc1" % (59, srd("WS"), sOPOFF))
        A("buffer_store_dwordx4 v[60:63], v29, %s, s%d offen sc1" % (srd("WS"), sT1))
        A("buffer_store_dwordx4 v[60:63], v29, %s, s%d offen offset:%d sc1" % (srd("WS"), sT1, 1024 << spad))
        if steal:
            A("s_lshl_b32 s%d, s%d, 12" % (sT1, sR)); A("s_add_u32 s%d, s%d, 0x%x" % (sT1, sT1, WS_PR))
            for k in range(4): A("buffer_store_dwordx4 v[60:63], v%d, %s, s%d offen offset:%d sc1" % (vL16, srd("WS"), sT1, 1024 * k))
            A("s_lshl_b32 s%d, s%d, 7" % (sT1, sR)); A("s_add_u32 s%d, s%d, 0x%x" % (sT1, sT1, WS_CW))
            A("s_mov_b64 exec, 1"); A("buffer_store_dword v60, off, %s, s%d sc1" % (srd("WS"), sT1)); A("s_mov_b64 exec, -1")
        A("L_noclean:")
    def arrive(cnt, lbl):
        A("s_cmp_lg_u32 s%d, 7" % sWAVE); A("s_cbranch_scc1 " + lbl)
        A("s_lshr_b32 s%d, s%d, 5" % (sT3, sR)); A("s_lshl_b32 s%d, s%d, 5" % (sT3, sT3))
        A("s_mov_b64 exec, 1")
        A("s_waitcnt vmcnt(%d)" % cnt)
        A("buffer_atomic_add v%d, off, %s, s%d" % (vONE, srd("DBG"), sT3))
        A("s_mov_b64 exec, -1")
        stamp(4)
        A(lbl + ":")
    if not cllate: clean()
    A("s_sub_u32 s%d, s%d, 6" % (sMB, sWAVE))
    A("v_mul_u32_u24 v%d, 12, v0" % vT); A("s_mul_i32 s%d, s%d, 1792" % (sT1, sMB))
    A("s_waitcnt lgkmcnt(0)")
    A("s_load_dword s%d, s[%d:%d], 0" % (sB2, sB2P, sB2P + 1))
    A("s_barrier")
    for k, n in enumerate(("W1", "B1", "W2")):
        A("buffer_load_dwordx4 %s, v%d, %s, s%d offen" % (vr(vW + 8 * k, 4), vL16, srd(n), sT1))
        A("buffer_load_dwordx3 %s, v%d, %s, s%d offen offset:1024" % (vr(vW + 8 * k + 4, 3), vT, srd(n), sT1))
    if not cllate: arrive(6, "L_noflag")
    A("s_lshr_b32 s%d, s%d, 5" % (sT0, sR)); A("s_mul_i32 s%d, s%d, %d" % (sT0, sT0, XN_STRIDE)); A("s_add_u32 s%d, s%d, %d" % (sT0, sT0, HI)); A("v_add_u32 v%d, s%d, v%d" % (vT + 1, sT0, vL16))
    A("s_lshl_b32 s%d, s%d, 13" % (sT2, sMB)); A("s_add_u32 s%d, s%d, %d" % (sT2, sT2, HI + L_WO)); A("v_add_u32 v%d, s%d, v%d" % (vT + 2, sT2, vL16))
    A("s_and_b32 s%d, s%d, 31" % (sT0, sR)); A("s_lshl_b32 s%d, s%d, 5" % (sT0, sT0)); A("s_add_u32 s%d, s%d, s%d" % (sT0, sT0, sT2))
    A("v_lshlrev_b32 v%d, 1, v%d" % (vT + 3, vN16)); A("v_add_u32 v%d, s%d, v%d" % (vT + 3, sT0, vT + 3))
    lds_wait(F_XN, 4)
    if cllate: clean()
    vXm = 112
    A("ds_read_b128 %s, v%d offset:%d" % (vr(vXm, 4), vT + 1, L_XN)); A("s_waitcnt lgkmcnt(0)")
    layernorm(vXm, 4, vXm + 4, vXm + 12, vXm + 20, 1)
    A("ds_write_b128 v%d, %s" % (vT + 2, vr(vXm, 4)))
    vH = 24
    A("ds_read_u16 v%d, v%d" % (vH, vT + 3))
    A("v_lshrrev_b32 v%d, 3, v0" % (vT + 4)); A("v_lshlrev_b32 v%d, 10, v%d" % (vT + 4, vT + 4)); A("v_and_b32 v%d, 7, v0" % (vT + 5)); A("v_lshl_add_u32 v%d, v%d, 4, v%d" % (vT + 4, vT + 5, vT + 4))
    A("s_lshr_b32 s%d, s%d, 3" % (sT0, sR)); A("s_lshl_b32 s%d, s%d, 17" % (sT0, sT0)); A("s_and_b32 s%d, s%d, 7" % (sT1, sR)); A("s_lshl_b32 s%d, s%d, 7" % (sT1, sT1))
    A("s_add_u32 s%d, s%d, s%d" % (sT0, sT0, sT1)); A("s_lshl_b32 s%d, s%d, 16" % (sT1, sMB)); A("s_add_u32 s%d, s%d, s%d" % (sT0, sT0, sT1))
    A("s_waitcnt vmcnt(0) lgkmcnt(0)")
    if cllate: arrive(0, "L_noflag")
    for a in range(8):
        A("s_add_u32 m0, s%d, %d" % (sT2, a * 1024))
        if 'o' not in abl and not wolate: A("buffer_load_dwordx4 v%d, %s, s%d offen %s lds" % (vT + 4, srd("WO"), sT0, polo))
        if a < 7: A("s_add_u32 s%d, s%d, 0x2000" % (sT0, sT0))
    stamp(1)
    A("v_lshlrev_b32 v%d, 16, v%d" % (vH, vH))
    for k in range(3):
        for i in range(7): unpack(vU + 14 * k + 2 * i, vU + 14 * k + 2 * i + 1, vW + 8 * k + i)
    vC0, vACC, U, T_ = 25, 26, 112, 128
    A("v_mov_b32 v%d, s%d" % (vC0, sC0))
    A("s_lshl_b32 s%d, s%d, 6" % (sT0, sMB)); A("s_add_u32 s%d, s%d, %d" % (sT0, sT0, HI + L_YP)); A("v_mov_b32 v27, s%d" % sT0)
    A("s_mov_b32 s%d, 0" % sT1)
    A("s_nop 3")
    A("L_mlp_loop:")
    A("v_readlane_b32 s%d, v%d, s%d" % (sMU, vH, sT1))
    for t in range(14): A("v_fma_f32 v%d, s%d, v%d, v%d" % (U + t, sMU, vU + t, vU + 14 + t))
    for t in range(14): A("v_mul_f32 v%d, v%d, v%d" % (T_ + t, U + t, U + t))
    for t in range(14): A("v_fma_f32 v%d, v%d, s%d, v%d" % (T_ + t, T_ + t, sC1, vC0))
    for t in range(14): A("v_mul_f32 v%d, v%d, v%d" % (T_ + t, T_ + t, U + t))
    for t in range(14):
        A("v_exp_f32 v%d, v%d" % (T_ + t, T_ + t)); A("v_mul_f32 v%d, v%d, v%d" % (U + t, U + t, vU + 28 + t))
    for t in range(14): A("v_add_f32 v%d, 1.0, v%d" % (T_ + t, T_ + t))
    for t in range(14): A("v_rcp_f32 v%d, v%d" % (T_ + t, T_ + t))
    A("v_mul_f32 v%d, v%d, v%d" % (vACC, U, T_)); A("v_mul_f32 v%d, v%d, v%d" % (U, U + 1, T_ + 1))
    for t in range(2, 14): A("v_fmac_f32 v%d, v%d, v%d" % (vACC if t & 1 else U, U + t, T_ + t))
    A("v_add_f32 v%d, v%d, v%d" % (vACC, vACC, U))
    red16(vACC, "v_add_f32"); dpp("v_add_f32", vACC, "row_bcast:15", "0xa"); dpp("v_add_f32", vACC, "row_bcast:31", "0xc")
    A("s_mov_b32 exec_lo, 0"); A("s_mov_b32 exec_hi, 0x80000000")
    A("ds_write_b32 v27, v%d" % vACC); A("v_add_u32 v27, 4, v27")
    A("s_mov_b64 exec, -1")
    A("s_add_u32 s%d, s%d, 1" % (sT1, sT1)); A("s_cmp_lt_u32 s%d, 16" % sT1); A("s_cbranch_scc1 L_mlp_loop")
    stamp(2)
    A("s_waitcnt vmcnt(0)")
    A("s_mov_b32 s%d, 3" % sMU)
    if steal:
        A("s_cmp_eq_u32 s%d, 7" % sWAVE); A("s_cbranch_scc1 L_final")
        lds_wait(F_AM, 1, sl=8)
        sCW = 4
        A("s_lshl_b32 s%d, s%d, 7" % (sCW, sR)); A("s_add_u32 s%d, s%d, 0x%x" % (sCW, sCW, WS_CW))
        def set_plan(val):
            A("v_mov_b32 v%d, %s" % (vT, val)); A("s_mov_b64 exec, 1"); A("ds_write_b32 v%d, v%d offset:%d" % (vHI, vT, F_PLAN)); A("s_mov_b64 exec, -1")
        for k in range(5, 11):
            if k == 8:
                A("s_xor_b32 s%d, s%d, 0x100" % (sCW, sCW))
            if k == 8:
                A("s_xor_b32 s%d, s%d, 2" % (sT1, sR)); A("s_lshl_b32 s%d, s%d, 12" % (sT1, sT1)); A("s_add_u32 s%d, s%d, 0x%x" % (sT1, sT1, WS_PR))
                A("v_add_u32 v%d, v%d, v%d" % (vT + 1, vHI, vL16))
                rec = [((lambda q=q: A("buffer_load_dwordx4 %s, v%d, %s, s%d offen offset:%d sc1" % (vr(36 + 4 * q, 4), vL16, srd("WS"), sT1, 1024 * q))), list(range(36 + 4 * q, 40 + 4 * q))) for q in range(4)]
                lds_wait(F_FULL, rtrig, sl=2)
                A("s_mov_b32 exec_hi, 0x1ffff")
                for i_, _ in rec: i_()
                A("s_mov_b64 exec, -1")
            lds_wait(F_FULL, 4 * k + cth + (bias if k >= 8 else 0), sl=2)
            A("v_mov_b32 v32, 1"); A("s_mov_b64 exec, 1")
            A("buffer_atomic_add v32, off, %s, s%d sc0" % (srd("WS"), sCW))
            A("s_mov_b64 exec, -1")
            A("s_mov_b32 s%d, 0x%x" % (sT2, 0x100 + k))
            A("s_waitcnt vmcnt(0)")
            A("v_readfirstlane_b32 s%d, v32" % sT0); A("s_add_u32 s%d, s%d, 1" % (sT0, sT0))
            if stamps and k < 9: stamp(k - 2)
            A("s_cmp_ge_u32 s%d, 3" % sT0); A("s_cbranch_scc1 L_close")
            if k == 8:
                A("s_mov_b32 exec_hi, 0x1ffff")
                gpoll(rec[:2], first=False, sleep=8, full="PARTIAL"); gpoll(rec[2:], first=False, sleep=8, full="PARTIAL")
                for q in range(4): A("ds_write_b128 v%d, %s offset:%d" % (vT + 1, vr(36 + 4 * q, 4), L_PP + 1024 * q))
                A("s_mov_b64 exec, -1")
                A("s_waitcnt lgkmcnt(0)")
            set_plan("%d" % (k + 1))
        A("s_mov_b32 s%d, 0x%x" % (sT2, 0x100 + 11))
        A("L_close:")
        set_plan("s%d" % sT2)
        A("s_branch L_gather56")
        A("L_final:")
    else:
        A("s_cmp_eq_u32 s%d, 6" % sWAVE); A("s_cbranch_scc1 L_gather56")
    if at2:
        A("v_and_b32 v%d, 7, v0" % (vT + 1)); A("v_lshrrev_b32 v%d, 5, v0" % (vT + 2)); A("v_lshl_add_u32 v%d, v%d, 1, v%d" % (vT + 1, vT + 1, vT + 2))
    else: A("v_lshl_add_u32 v%d, v%d, 2, v%d" % (vT + 1, vR4, vG4))
    A("v_lshlrev_b32 v%d, 1, v%d" % (vT + 2, vT + 1)); A("s_lshl_b32 s%d, s%d, 5" % (sT0, sR))
    A("buffer_load_ushort v%d, v%d, %s, s%d offen" % (vT + 3, vT + 2, srd("X"), sT0))
    A("v_lshl_add_u32 v%d, v%d, 2, v%d" % (vT + 1, vT + 1, vHI))
    A("s_lshl_b32 s%d, s%d, %d" % (sT1, sR, 11 + spad)); A("s_add_u32 s%d, s%d, 0x%x" % (sT1, sT1, WS_SP))
    A("v_lshrrev_b32 v29, 2, v0"); A("v_lshlrev_b32 v29, %d, v29" % (6 + spad)); A("v_lshl_add_u32 v29, v%d, 4, v29" % vR4)
    if wolate == 2:
        A("s_mov_b32 s12, s%d" % sT0); A("s_mov_b32 s13, s%d" % sT1)
        if steal: lds_wait(F_LI, 1, sl=2)
        else: lds_wait(F_FULL, wotrig, sl=2)
        wo_dma()
        A("s_mov_b32 s%d, s12" % sT0); A("s_mov_b32 s%d, s13" % sT1)
    A("s_waitcnt lgkmcnt(0)")
    A("s_barrier")
    stamp(8)
    A("ds_read_b32 v40, v%d offset:%d" % (vT + 1, L_YP)); A("ds_read_b32 v41, v%d offset:%d" % (vT + 1, L_YP + 64)); A("s_waitcnt lgkmcnt(0)")
    A("v_add_f32 v40, v40, v41"); rbf(40)
    A("s_lshl_b32 s%d, s%d, 16" % (sB2, sB2)); A("v_add_f32 v40, s%d, v40" % sB2); rbf(40)
    A("v_mul_f32 v41, s%d, v40" % sL2E); A("v_exp_f32 v41, -v41"); A("v_add_f32 v41, 1.0, v41"); A("v_rcp_f32 v41, v41"); A("v_mul_f32 v40, v40, v41"); rbf(40)
    A("s_waitcnt vmcnt(0)"); A("v_lshlrev_b32 v%d, 16, v%d" % (vT + 3, vT + 3))
    if wolate == 2:
        A("s_mov_b64 exec, 1"); A("ds_write_b32 v%d, v%d offset:%d" % (vHI, vONE, F_WO)); A("s_mov_b64 exec, -1")
        stamp(11)
    A("s_barrier")
    stamp(9)
    if td2: A("s_sleep %d" % td2)
    if at2:
        A("v_lshlrev_b32 v29, 3, v0")
        apoll(32, 29, sT1, 44, tsleep2)
        stamp(10)
        A("v_add_f32 v44, v32, v34"); A("v_add_f32 v45, v33, v35"); A("v_add_f32 v46, v36, v38"); A("v_add_f32 v47, v37, v39")
        A("v_add_f32 v44, v44, v46"); A("v_add_f32 v45, v45, v47")
        A("v_permlane32_swap_b32 v44, v45"); A("v_add_f32 v44, v44, v45")
        swap_red(44, 45, "v_add_f32", 16)
        dpp("v_add_f32", 44, "row_ror:8")
    else:
        gpoll([(lambda: A("buffer_load_dwordx4 v[32:35], v29, %s, s%d offen %s" % (srd("WS"), sT1, tl)), [32, 33, 34, 35]),
               (lambda: A("buffer_load_dwordx4 v[36:39], v29, %s, s%d offen offset:%d %s" % (srd("WS"), sT1, 1024 << spad, tl)), [36, 37, 38, 39])], sleep=tsleep2, P=P2)
        stamp(10)
        for i in range(4): A("v_add_f32 v%d, v%d, v%d" % (44 + i, 32 + i, 36 + i))
        A("v_permlane32_swap_b32 v44, v46"); A("v_permlane32_swap_b32 v45, v47")
        A("v_add_f32 v44, v44, v46"); A("v_add_f32 v45, v45, v47")
        A("v_permlane16_swap_b32 v44, v45"); A("v_add_f32 v44, v44, v45")
        dpp("v_add_f32", 44, "row_ror:8"); dpp("v_add_f32", 44, "row_ror:4")
    rbf(44); A("v_mul_f32 v44, v44, v40"); rbf(44)
    A("v_add_f32 v44, v44, v%d" % (vT + 3)); A("v_cvt_pk_bf16_f32 v44, v44, v44")
    em = "0xff" if at2 else "0x000f000f"
    A("s_mov_b32 exec_lo, %s" % em); A("s_mov_b32 exec_hi, %s" % em)
    A("buffer_store_short v44, v%d, %s, s%d offen" % (vT + 2, srd("OUT"), sT0))
    A("s_mov_b64 exec, -1")
    A("s_cmp_lg_u32 s%d, 0" % sR); A("s_cbranch_scc1 L_done")
    epoch()
    A("v_mov_b32 v30, s%d" % sEP); A("v_mov_b32 v31, s%d" % (sEP + 1)); A("s_mov_b64 exec, 1")
    A("buffer_store_dwordx2 v[30:31], off, %s, 0 offset:%d sc1" % (srd("WS"), WS_EP))
    A("s_mov_b64 exec, -1")
    if probe or p_b >= 0 or pspan:
        A("buffer_load_dwordx2 v[30:31], off, %s, 0 offset:4 sc1" % srd("DBG")); A("s_memrealtime s[16:17]"); A("s_waitcnt vmcnt(0) lgkmcnt(0)")
        A("v_readfirstlane_b32 s6, v30"); A("v_readfirstlane_b32 s7, v31")
        if probe: A("s_sub_i32 s6, s6, s7"); A("s_abs_i32 s6, s6"); A("s_lshr_b32 s6, s6, 4")
        elif pspan == 1: A("s_not_b32 s7, s7"); A("s_sub_u32 s6, s6, s7"); A("s_lshl_b32 s6, s6, 2")
        elif pspan == 2: A("s_sub_u32 s6, s16, s6"); A("s_lshl_b32 s6, s6, 3")
        elif pspan == 3: A("s_not_b32 s7, s7"); A("s_sub_u32 s6, s6, s7"); A("s_lshl_b32 s6, s6, 3")
        elif pspan in (4, 5): A("s_not_b32 s7, s7"); A("s_lshl_b32 s7, s7, 8"); A("s_sub_u32 s6, s6, s7"); A("s_lshr_b32 s6, s6, %d" % (5 if pspan == 4 else 6))
        else: A("s_lshr_b32 s6, s6, 5")
        A("s_min_u32 s6, s6, 20000")
        A("s_add_u32 s16, s16, s6")
        A("L_pad2:"); A("s_memrealtime s[18:19]"); A("s_waitcnt lgkmcnt(0)"); A("s_sub_u32 s18, s18, s16"); A("s_cmp_lt_i32 s18, 0"); A("s_cbranch_scc1 L_pad2")
    A("L_done:")
    A("s_waitcnt vmcnt(0)")
    if pad:
        A("s_waitcnt lgkmcnt(0)"); A("s_add_u32 s16, s16, %d" % pad)
        A("L_pad:"); A("s_memrealtime s[18:19]"); A("s_waitcnt lgkmcnt(0)"); A("s_sub_u32 s18, s18, s16"); A("s_cmp_lt_i32 s18, 0"); A("s_cbranch_scc1 L_pad")
    if stamps:
        A("s_waitcnt vmcnt(0)")
        stamp(NST - 1)
        A("s_waitcnt lgkmcnt(0)")
        A("s_lshl_b32 s%d, s2, 3" % sT0); A("s_add_u32 s%d, s%d, s%d" % (sT0, sT0, sWAVE)); A("s_mul_i32 s%d, s%d, %d" % (sT0, sT0, NST * 8)); A("s_add_u32 s%d, s%d, 0x%x" % (sT0, sT0, WS_STAMP))
        A("s_mov_b64 exec, 1")
        for k in range(NST):
            A("v_mov_b32 v2, s%d" % (16 + 2 * k)); A("v_mov_b32 v3, s%d" % (17 + 2 * k))
            A("buffer_store_dwordx2 v[2:3], off, %s, s%d offset:%d" % (srd("WS"), sT0, k * 8)); A("s_nop 1")
    A("L_end:")
    A("s_endpgm")
    body = A.finalize()
    hdr = open("recurrent_scan__gqa_block_cached__mixer_token_mlp__decode.s.ref").read().split("; Override launch")[0]
    s = hdr + "; @launch grid=(256,1,1) block=(512,1,1) lds=%d\n" % LDS_BYTES
    s += '.amdgcn_target "amdgcn-amd-amdhsa--gfx950"\n.text\n.globl %s\n.p2align 8\n.type %s,@function\n%s:\n' % (NAME, NAME, NAME)
    s += body
    s += '.section .rodata,"a"\n.p2align 6\n.amdhsa_kernel %s\n  .amdhsa_next_free_vgpr 256\n  .amdhsa_next_free_sgpr 102\n  .amdhsa_accum_offset 256\n' % NAME
    s += "  .amdhsa_group_segment_fixed_size 0\n  .amdhsa_kernarg_size 104\n  .amdhsa_user_sgpr_count 2\n  .amdhsa_user_sgpr_kernarg_segment_ptr 1\n  .amdhsa_system_sgpr_workgroup_id_x 1\n.end_amdhsa_kernel\n"
    return s, A

if __name__ == "__main__":
    out = sys.argv[1]
    kw = {}
    for p in sys.argv[2:]:
        k, v = p.split("=")
        kw[k] = int(v) if v.lstrip("-").isdigit() else v.replace("+", " ")
    s, A = gen(**kw)
    open(out, "w").write(s)
    print("wrote", out, "instructions", len(A.ins), "nops", A.nops, "lds", LDS_BYTES)
```

```python
import sys, struct
from asmlib import Asm

NAME = "recurrent_scan__gqa_block_cached__mixer_token_mlp__decode_kernel"
def f2u(x): return struct.unpack("<I", struct.pack("<f", x))[0]

WS_ST, WS_OP, WS_SP, WS_Q, WS_EP = 0x10000, 0x20000, 0x100000, 0x60000, 0x0
WS_CW = 0x80000
EP_STEP = 0x9E3779B97F4A7C15
WS_STAMP = 128 << 20
HI = 131072
L_WO = 0
L_XN, XN_STRIDE = 16384, 1040
L_OW = L_XN
L_QP = 24704
L_QB = 28800
L_FLG = 29824
L_ST = L_FLG + 256
L_GS = L_ST + 128
L_YP = L_GS + 32
LDS_BYTES = HI + L_YP + 128
F_FULL, F_XN, F_QP, F_QR, F_ST, F_GR, F_WO, F_AM, F_SL, F_PLAN = [L_FLG + 4 * i for i in (0, 8, 9, 10, 11, 12, 13, 14, 16, 32)]

sWAVE, sBASE, sOFF = 3, 4, 5
sT0, sT1, sT2 = 6, 7, 8
sR, sSPIN, sT3 = 9, 10, 11
sMU, sMB = 14, 15
SRD = dict(K=44, V=48, X=52, WQ=56, WO=60, W1=64, B1=68, W2=72, OUT=76, DBG=80, WS=84)
KARG = dict(X=0, K=8, V=16, WQ=24, WO=32, W1=48, B1=56, W2=64, OUT=80, DBG=88, WS=96)
SIZE = dict(X=8192, K=1 << 26, V=1 << 26, WQ=1 << 22, WO=1 << 22, W1=3584, B1=3584, W2=3584, OUT=8192, DBG=256, WS=1 << 28)
sSELLO, sSELHI, sMASK, sSCALE, sL2E, sC0, sC1, sB2, sB2P = 88, 89, 90, 91, 92, 93, 94, 95, 96
sOPOFF, sSPOFF, sSTOFF, sFULL = 98, 99, 100, 101
def srd(n): return "s[%d:%d]" % (SRD[n], SRD[n] + 3)
def vr(a, n=1): return "v%d" % a if n == 1 else "v[%d:%d]" % (a, a + n - 1)
vL16, vG4, vC4, vR4, vN16, vHI, vONE = 1, 2, 3, 4, 5, 6, 7
vT = 8
vPOLL = 16

def gen(F=4, stamps=0, pol="nt", spin=1 << 17, lspin=1 << 22, mimic=1, lsleep=1, ldprio=3, fsleep=8, qsleep=2, ssleep=8, tsleep=0, xmap=8, ldst=0,
        td2=8, qtrig=8, wotrig=4, nf=24, maxt=16, n1=20, t0=34, tstep=2, tamt=2, lag=1, force="", tlist="", sdelay=0, noat=0, pg=2, cws=128):
    NF, POOL, MAXT = nf, 128 - 4 * nf, maxt
    NU = MAXT // 4
    NB = n1 // 4
    NW = NF // 4
    A = Asm()
    NST = 14
    def stamp(k):
        if stamps: A("s_memrealtime s[%d:%d]" % (16 + 2 * k, 17 + 2 * k))
    QUADS = ("quad_perm:[1,0,3,2]", "quad_perm:[2,3,0,1]", "row_half_mirror", "row_mirror")
    def dpp(op, v, m, rm="0xf"): A("%s_dpp v%d, v%d, v%d %s row_mask:%s bank_mask:0xf" % (op, v, v, v, m, rm))
    def red16(v, op):
        for m in QUADS: dpp(op, v, m)
    def swap_red(v, t, op, which):
        A("v_mov_b32 v%d, v%d" % (t, v)); A("v_permlane%d_swap_b32 v%d, v%d" % (which, v, t)); A("%s v%d, v%d, v%d" % (op, v, v, t))
    def rbf(v):
        A("v_cvt_pk_bf16_f32 v%d, v%d, v%d" % (v, v, v)); A("v_lshlrev_b32 v%d, 16, v%d" % (v, v))
    def unpack(dlo, dhi, src):
        A("v_lshlrev_b32 v%d, 16, v%d" % (dlo, src)); A("v_and_b32 v%d, s%d, v%d" % (dhi, sMASK, src))
    def one_lane(text):
        A("s_mov_b64 exec, 1"); A(text); A("s_mov_b64 exec, -1")
    def layernorm(pk, n, x, d, t, halves):
        def allred(v):
            red16(v, "v_add_f32"); swap_red(v, t + 2, "v_add_f32", 16)
            if halves == 1: swap_red(v, t + 2, "v_add_f32", 32)
        for i in range(n): unpack(x + 2 * i, x + 2 * i + 1, pk + i)
        A("v_add_f32 v%d, v%d, v%d" % (t, x, x + 1)); A("v_add_f32 v%d, v%d, v%d" % (t + 1, x + 2, x + 3))
        for i in range(4, 2 * n): A("v_add_f32 v%d, v%d, v%d" % (t + (i & 1), t + (i & 1), x + i))
        A("v_add_f32 v%d, v%d, v%d" % (t, t, t + 1))
        allred(t)
        A("v_mul_f32 v%d, 0x3b000000, v%d" % (t, t))
        A("v_cvt_pk_bf16_f32 v%d, v%d, v%d" % (t + 1, t, t))
        for i in range(2 * n): A("v_sub_f32 v%d, v%d, v%d" % (d + i, x + i, t))
        A("v_lshlrev_b32 v%d, 16, v%d" % (t + 1, t + 1))
        A("v_mul_f32 v%d, v%d, v%d" % (t, d, d)); A("v_mul_f32 v%d, v%d, v%d" % (d, d + 1, d + 1))
        for i in range(2, 2 * n): A("v_fmac_f32 v%d, v%d, v%d" % (t if i & 1 else d, d + i, d + i))
        A("v_add_f32 v%d, v%d, v%d" % (t, t, d))
        for i in range(2 * n): A("v_sub_f32 v%d, v%d, v%d" % (x + i, x + i, t + 1))
        allred(t)
        for i in range(n): A("v_cvt_pk_bf16_f32 v%d, v%d, v%d" % (pk + i, x + 2 * i, x + 2 * i + 1))
        A("v_mul_f32 v%d, 0x3b000000, v%d" % (t, t)); rbf(t)
        A("v_add_f32 v%d, 0x%x, v%d" % (t, f2u(1e-5), t)); rbf(t)
        A("v_sqrt_f32 v%d, v%d" % (t, t)); rbf(t)
        A("v_rcp_f32 v%d, v%d" % (t, t))
        for i in range(n): unpack(x + 2 * i, x + 2 * i + 1, pk + i)
        for i in range(2 * n): A("v_mul_f32 v%d, v%d, v%d" % (x + i, t, x + i))
        for i in range(n): A("v_cvt_pk_bf16_f32 v%d, v%d, v%d" % (pk + i, x + 2 * i, x + 2 * i + 1))
    def lds_wait(flag, val, keep=None, sl=None):
        ok = A.label("lok"); again = A.label("lagain")
        dst = keep if keep is not None else sT3
        if keep is not None:
            A("s_cmp_ge_u32 s%d, %s" % (keep, val)); A("s_cbranch_scc1 " + ok)
        A("s_mov_b32 s%d, 0" % sSPIN)
        A(again + ":")
        A("ds_read_b32 v%d, v%d offset:%d" % (vPOLL, vHI, flag)); A("s_waitcnt lgkmcnt(0)")
        A("v_readfirstlane_b32 s%d, v%d" % (dst, vPOLL))
        A("s_cmp_ge_u32 s%d, %s" % (dst, val)); A("s_cbranch_scc1 " + ok)
        if sl is None: sl = lsleep
        if sl: A("s_sleep %d" % sl)
        A("s_add_u32 s%d, s%d, 1" % (sSPIN, sSPIN)); A("s_cmp_lt_u32 s%d, %d" % (sSPIN, lspin)); A("s_cbranch_scc1 " + again)
        A(ok + ":")
    def lds_add(flag_addr_reg, off):
        A("s_waitcnt lgkmcnt(0)")
        one_lane("ds_add_u32 v%d, v%d offset:%d" % (flag_addr_reg, vONE, off))
    def wait_near_end(dist, sl):
        lds_wait(F_PLAN, "0x100", sl=sl)
        A("s_and_b32 s%d, s%d, 31" % (sT3, sT3)); A("s_lshl_b32 s%d, s%d, 1" % (sT3, sT3)); A("s_add_u32 s4, s%d, %d" % (sT3, 2 * NF - dist))
        lds_wait(F_FULL, "s4", sl=sl)
    def gpoll(loads, first=True, sleep=0, tag=None):
        ok = A.label("ok"); again = A.label("again")
        masks = ["vcc", "s[12:13]"]
        A("s_mov_b32 s%d, 0" % sSPIN)
        if first:
            for issue, regs in loads: issue()
        A(again + ":")
        A("s_waitcnt vmcnt(0)")
        for (issue, regs), mk in zip(loads, masks):
            t = vT + 7
            if tag is not None:
                A("v_cmp_ne_u64 %s, %s, v[%d:%d]" % (mk, tag, regs[2], regs[3])); continue
            if len(regs) == 2: A("v_max_u32 v%d, v%d, v%d" % (t, regs[0], regs[1]))
            else:
                A("v_max3_u32 v%d, v%d, v%d, v%d" % (t, regs[0], regs[1], regs[2])); A("v_max_u32 v%d, v%d, v%d" % (t, t, regs[3]))
            A("v_cmp_eq_u32 %s, -1, v%d" % (mk, t))
        if len(loads) == 2:
            A("s_or_b32 s%d, vcc_lo, vcc_hi" % sT3); A("s_or_b32 s%d, s%d, s12" % (sT3, sT3)); A("s_or_b32 s%d, s%d, s13" % (sT3, sT3))
        else:
            A("s_or_b32 s%d, vcc_lo, vcc_hi" % sT3)
        A("s_cbranch_scc0 " + ok)
        if sleep: A("s_sleep %d" % sleep)
        for (issue, regs), mk in zip(loads, masks):
            A("s_mov_b64 exec, %s" % mk); issue()
        A("s_mov_b64 exec, -1")
        A("s_add_u32 s%d, s%d, 1" % (sSPIN, sSPIN)); A("s_cmp_lt_u32 s%d, %d" % (sSPIN, spin)); A("s_cbranch_scc1 " + again)
        A("s_waitcnt vmcnt(0)")
        A(ok + ":")
    def apoll(vd, vaddr, soff, vtmp, sleep):
        ms = ["vcc", "s[12:13]", "s[88:89]", "s[90:91]"]
        ok = A.label("aok"); again = A.label("aagain")
        def iss(k):
            A("v_mov_b32 v%d, 0" % (vd + 2 * k)); A("v_mov_b32 v%d, 0" % (vd + 1 + 2 * k))
            A("buffer_atomic_or_x2 v[%d:%d], v%d, %s, s%d offen offset:%d sc0" % (vd + 2 * k, vd + 1 + 2 * k, vaddr, srd("WS"), soff, 512 * k))
        A("s_mov_b32 s%d, 0" % sSPIN)
        for k in range(4): iss(k)
        A(again + ":")
        A("s_waitcnt vmcnt(0)")
        for k in range(4): A("v_max_u32 v%d, v%d, v%d" % (vtmp + k, vd + 2 * k, vd + 1 + 2 * k))
        for k in range(4): A("v_cmp_eq_u32 %s, -1, v%d" % (ms[k], vtmp + k))
        A("s_or_b64 s[92:93], vcc, s[12:13]"); A("s_or_b64 s[94:95], s[88:89], s[90:91]"); A("s_or_b64 s[92:93], s[92:93], s[94:95]")
        A("s_cbranch_scc0 " + ok)
        if sleep: A("s_sleep %d" % sleep)
        for k in range(4):
            A("s_mov_b64 exec, %s" % ms[k]); iss(k)
        A("s_mov_b64 exec, -1")
        A("s_add_u32 s%d, s%d, 1" % (sSPIN, sSPIN)); A("s_cmp_lt_u32 s%d, %d" % (sSPIN, spin)); A("s_cbranch_scc1 " + again)
        A("s_waitcnt vmcnt(0)")
        A(ok + ":")
    def word_poll(load, vd, lanes, cmp, sleep):
        ok = A.label("fok"); again = A.label("fagain")
        A("s_mov_b32 s%d, 0" % sSPIN); A("s_mov_b64 exec, %s" % lanes)
        A(again + ":")
        A(load)
        A("s_waitcnt vmcnt(0)")
        A(cmp % vd)
        A("s_cmp_eq_u64 vcc, 0"); A("s_cbranch_scc1 " + ok)
        if sleep: A("s_sleep %d" % sleep)
        A("s_add_u32 s%d, s%d, 1" % (sSPIN, sSPIN)); A("s_cmp_lt_u32 s%d, %d" % (sSPIN, spin)); A("s_cbranch_scc1 " + again)
        A(ok + ":")
        A("s_mov_b64 exec, -1")

    A("s_cmp_ge_u32 s2, 256"); A("s_cbranch_scc1 L_end")
    if stamps:
        for k in range(1, NST): A("s_mov_b64 s[%d:%d], 0" % (16 + 2 * k, 17 + 2 * k))
    stamp(0)
    for n in ("K", "X", "WQ", "WS", "V", "WO", "W1", "B1", "W2", "DBG", "OUT"):
        A("s_load_dwordx2 s[%d:%d], s[0:1], %d" % (SRD[n], SRD[n] + 1, KARG[n]))
    A("s_load_dwordx2 s[%d:%d], s[0:1], 72" % (sB2P, sB2P + 1))
    A("v_lshrrev_b32 v1, 6, v0"); A("v_and_b32 v0, 63, v0"); A("v_readfirstlane_b32 s%d, v1" % sWAVE)
    for n in SRD:
        A("s_mov_b32 s%d, 0x%x" % (SRD[n] + 2, SIZE[n])); A("s_mov_b32 s%d, 0x20000" % (SRD[n] + 3))
    sRQ = sMB
    A("s_and_b32 s%d, s2, 7" % sRQ); A("s_lshl_b32 s%d, s%d, 2" % (sRQ, sRQ)); A("s_and_b32 s%d, s2, 0xe0" % sT2); A("s_add_u32 s%d, s%d, s%d" % (sRQ, sRQ, sT2))
    A("s_bfe_u32 s%d, s2, 0x20003" % sT0); A("s_add_u32 s%d, s%d, s%d" % (sRQ, sRQ, sT0)); A("s_add_u32 s%d, s%d, s%d" % (sT2, sT2, sT0))
    if xmap == 8:
        A("s_bfe_u32 s%d, s2, 0x10003" % sT0); A("s_bfe_u32 s%d, s2, 0x10004" % sT1); A("s_lshl_b32 s%d, s%d, 2" % (sT1, sT1)); A("s_add_u32 s%d, s%d, s%d" % (sT0, sT0, sT1))
        A("s_sub_u32 s%d, s2, s%d" % (sR, sT0))
        A("s_and_b32 s%d, s%d, 7" % (sR, sR)); A("s_lshl_b32 s%d, s%d, 2" % (sR, sR)); A("s_add_u32 s%d, s%d, s%d" % (sR, sR, sT2))
    else: A("s_mov_b32 s%d, s%d" % (sR, sRQ))
    A("v_lshlrev_b32 v%d, 4, v0" % vL16); A("v_lshrrev_b32 v%d, 4, v0" % vG4); A("v_bfe_u32 v%d, v0, 2, 2" % vC4)
    A("v_and_b32 v%d, 3, v0" % vR4); A("v_and_b32 v%d, 15, v0" % vN16); A("v_mov_b32 v%d, 0x%x" % (vHI, HI)); A("v_mov_b32 v%d, 1" % vONE)
    A("s_mov_b32 s%d, 0xffff0000" % sMASK)
    A("s_mov_b32 s%d, 0x%x" % (sSCALE, f2u(128 ** -0.5))); A("s_mov_b32 s%d, 0x%x" % (sL2E, f2u(1.4426950408889634)))
    c0 = -2.0 * 0.7978845608028654 * 1.4426950408889634
    A("s_mov_b32 s%d, 0x%x" % (sC0, f2u(c0))); A("s_mov_b32 s%d, 0x%x" % (sC1, f2u(c0 * 0.044715)))
    A("s_lshr_b32 s%d, s%d, 5" % (sT0, sR)); A("s_lshl_b32 s%d, s%d, 15" % (sT0, sT0))
    A("s_and_b32 s%d, s%d, 31" % (sT1, sR)); A("s_lshl_b32 s%d, s%d, 8" % (sT1, sT1)); A("s_add_u32 s%d, s%d, s%d" % (sT0, sT0, sT1))
    A("s_add_u32 s%d, s%d, 0x%x" % (sOPOFF, sT0, WS_OP))
    A("s_and_b32 s%d, s%d, 7" % (sT0, sR)); A("s_lshl_b32 s%d, s%d, %d" % (sT0, sT0, 13))
    A("s_lshr_b32 s%d, s%d, 3" % (sT1, sR)); A("s_lshl_b32 s%d, s%d, %d" % (sT1, sT1, 6)); A("s_add_u32 s%d, s%d, s%d" % (sT0, sT0, sT1))
    A("s_add_u32 s%d, s%d, 0x%x" % (sSPOFF, sT0, WS_SP))
    A("s_cmp_eq_u32 s%d, 4" % sWAVE); A("s_cbranch_scc1 L_loader")
    A("s_cmp_eq_u32 s%d, 5" % sWAVE); A("s_cbranch_scc1 L_comm")
    A("s_cmp_gt_u32 s%d, 5" % sWAVE); A("s_cbranch_scc1 L_mlp")

    vQ, vS, vTMP, vK = 32, 48, 112, 128
    vKA, vVP = 17, 17
    vM, vLs, vMO, vF, vOWA = 25, 26, 27, 28, 29
    vS2, vP2, vVT = vS + 8 * NW, 224, 248
    assert vS2 + 8 * NU <= 128 and NB >= 4
    sPLAN, sI, sNX = 13, 12, 14
    vX = vS
    A("v_lshlrev_b32 v%d, 5, v0" % vT)
    A("v_lshrrev_b32 v%d, 1, v0" % (vT + 1)); A("v_lshlrev_b32 v%d, 13, v%d" % (vT + 1, vT + 1))
    A("v_and_b32 v%d, 1, v0" % (vT + 2)); A("v_lshl_add_u32 v%d, v%d, 4, v%d" % (vT + 1, vT + 2, vT + 1))
    A("s_lshl_b32 s%d, s%d, 11" % (sT2, sWAVE))
    A("s_lshl_b32 s%d, s%d, 20" % (sT0, sWAVE)); A("s_lshl_b32 s%d, s%d, 5" % (sT1, sRQ)); A("s_add_u32 s%d, s%d, s%d" % (sT0, sT0, sT1))
    A("s_lshl_b32 s%d, s%d, 13" % (sT1, sWAVE)); A("s_add_u32 s%d, s%d, %d" % (sT1, sT1, 12 * 8192))
    A("s_waitcnt lgkmcnt(0)")
    A("buffer_load_dwordx4 %s, v%d, %s, s%d offen" % (vr(vX, 4), vT, srd("X"), sT2))
    A("buffer_load_dwordx4 %s, v%d, %s, s%d offen offset:16" % (vr(vX + 4, 4), vT, srd("X"), sT2))
    for a in range(4):
        A("s_add_u32 m0, s%d, %d" % (sT1, a * 1024))
        A("buffer_load_dwordx4 v%d, %s, s%d offen %s lds" % (vT + 1, srd("WQ"), sT0, pol))
        if a < 3: A("s_add_u32 s%d, s%d, 0x40000" % (sT0, sT0))
    A("s_barrier")
    A("v_lshrrev_b32 v%d, 5, v0" % (vT + 3)); A("s_lshl_b32 s%d, s%d, 1" % (sT0, sWAVE)); A("v_add_u32 v%d, s%d, v%d" % (vT + 3, sT0, vT + 3))
    A("v_mul_u32_u24 v%d, %d, v%d" % (vT + 3, XN_STRIDE, vT + 3)); A("v_and_b32 v%d, 31, v0" % (vT + 4)); A("v_lshl_add_u32 v%d, v%d, 5, v%d" % (vT + 3, vT + 4, vT + 3))
    A("v_add_u32 v%d, v%d, v%d" % (vT + 3, vHI, vT + 3))
    A("v_and_b32 v%d, 7, v0" % (vT + 4)); A("v_mul_u32_u24 v%d, %d, v%d" % (vT + 4, XN_STRIDE, vT + 4)); A("v_lshl_add_u32 v%d, v%d, 4, v%d" % (vT + 4, vG4, vT + 4))
    A("s_lshl_b32 s%d, s%d, 8" % (sT0, sWAVE)); A("s_add_u32 s%d, s%d, %d" % (sT0, sT0, HI)); A("v_add_u32 v%d, s%d, v%d" % (vT + 4, sT0, vT + 4))
    A("v_lshlrev_b32 v%d, 8, v%d" % (vT + 5, vG4)); A("v_lshl_add_u32 v%d, v%d, 3, v%d" % (vT + 5, vN16, vT + 5)); A("v_add_u32 v%d, s%d, v%d" % (vT + 5, sT1, vT + 5))
    A("s_lshl_b32 s%d, s%d, 10" % (sT0, sWAVE)); A("s_add_u32 s%d, s%d, %d" % (sT0, sT0, HI)); A("v_add_u32 v%d, s%d, v%d" % (vT + 6, sT0, vL16))
    def k_addrs(dst, sbase, t, twin):
        A("v_lshlrev_b32 v%d, 8, v%d" % (t, vN16)); A("v_add_u32 v%d, s%d, v%d" % (t, sbase, t))
        for m in range(4):
            A("v_add_u32 v%d, %d, v%d" % (t + 1, 4 * m, vG4)); A("v_xor_b32 v%d, v%d, v%d" % (t + 1, t + 1, vN16))
            A("v_lshl_add_u32 v%d, v%d, 4, v%d" % (dst + m, t + 1, t))
            if twin: A("v_add_u32 v%d, 0x10000, v%d" % (dst + 4 + m, dst + m))
    A("s_lshl_b32 s%d, s%d, 13" % (sT0, sWAVE)); k_addrs(vKA, sT0, vT, True)
    A("s_lshl_b32 s%d, s%d, 2" % (sT0, sWAVE)); A("s_add_u32 s%d, s%d, %d" % (sT0, sT0, HI)); A("v_mov_b32 v%d, s%d" % (30, sT0))
    A("s_mov_b32 s%d, 0" % sFULL); A("s_mov_b32 s%d, 0" % sPLAN)
    A("s_waitcnt vmcnt(4)")
    stamp(1)
    layernorm(vX, 8, vX + 8, vX + 24, vX + 40, 2)
    A("ds_write_b128 v%d, %s offset:%d" % (vT + 3, vr(vX, 4), L_XN)); A("ds_write_b128 v%d, %s offset:%d" % (vT + 3, vr(vX + 4, 4), L_XN + 16))
    lds_add(vHI, F_XN)
    A("s_waitcnt vmcnt(0)")
    for m in range(4):
        A("ds_read_b64_tr_b16 %s, v%d offset:%d" % (vr(vK + 4 * m, 2), vT + 5, m * 1024))
        A("ds_read_b64_tr_b16 %s, v%d offset:%d" % (vr(vK + 4 * m + 2, 2), vT + 5, m * 1024 + 128))
    lds_wait(F_XN, 4)
    for m in range(4): A("ds_read_b128 %s, v%d offset:%d" % (vr(vK + 16 + 4 * m, 4), vT + 4, L_XN + m * 64))
    for m in range(4):
        A("s_waitcnt lgkmcnt(%d)" % (3 - m))
        A("v_mfma_f32_16x16x32_bf16 %s, %s, %s, %s" % (vr(vTMP, 4), vr(vK + 4 * m, 4), vr(vK + 16 + 4 * m, 4), "0" if m == 0 else vr(vTMP, 4)))
    A("ds_write_b128 v%d, %s offset:%d" % (vT + 6, vr(vTMP, 4), L_QP))
    lds_add(vHI, F_QP)
    one_lane("ds_add_u32 v30, v%d offset:%d" % (vONE, F_SL + 48))
    stamp(2)
    def wait_block(n4):
        A("s_add_u32 s%d, s%d, %d" % (sT0, sWAVE, 4 * n4 + 1))
        lds_wait(F_FULL, "s%d" % sT0, keep=sFULL)
    def read_k(j):
        base = vK + 32 * (j % 4)
        for t in range(2):
            for m in range(4):
                A("ds_read_b128 %s, v%d offset:%d" % (vr(base + 16 * t + 4 * m, 4), vKA + m + (4 if (j & 2) else 0), (j & 1) * 32768 + t * 4096))
    def qk_block(base, sc):
        for m in range(4):
            for t in range(2):
                acc = vr(sc + 4 * t, 4)
                A("v_mfma_f32_16x16x32_bf16 %s, %s, %s, %s" % (acc, vr(base + 16 * t + 4 * m, 4), vr(vQ + 4 * m, 4), "0" if m == 0 else acc))
    def round_block(sc, mx, first):
        for p in range(4):
            a, b, t = sc + 2 * p, sc + 2 * p + 1, vT + (p & 1)
            if mimic:
                A("v_cvt_pk_bf16_f32 v%d, v%d, v%d" % (t, a, b)); unpack(a, b, t)
            A("v_mul_f32 v%d, s%d, v%d" % (a, sSCALE, a)); A("v_mul_f32 v%d, s%d, v%d" % (b, sSCALE, b))
            if mimic:
                A("v_cvt_pk_bf16_f32 v%d, v%d, v%d" % (t, a, b)); unpack(a, b, t)
            if first and p == 0: A("v_max_f32 v%d, v%d, v%d" % (mx, a, b))
            else: A("v_max3_f32 v%d, v%d, v%d, v%d" % (mx, a, b, mx))
    for j in range(4):
        wait_block(j); read_k(j); lds_add(30, F_SL + 16 * j)
    stamp(3)
    lds_wait(F_QR, 1)
    stamp(4)
    A("v_lshlrev_b32 v%d, 8, v%d" % (vT, vC4)); A("v_lshl_add_u32 v%d, v%d, 4, v%d" % (vT, vG4, vT)); A("v_add_u32 v%d, v%d, v%d" % (vT, vHI, vT))
    for m in range(4): A("ds_read_b128 %s, v%d offset:%d" % (vr(vQ + 4 * m, 4), vT, L_QB + m * 64))
    A("s_waitcnt lgkmcnt(0)")
    for j in range(NW):
        qk_block(vK + 32 * (j % 4), vS + 8 * j)
        if 4 + j < NW:
            wait_block(4 + j); A("s_nop 3"); read_k(4 + j)
        if j >= 1: round_block(vS + 8 * (j - 1), vM, j == 1)
        if 4 + j < NW: lds_add(30, F_SL + 16 * j)
    A("v_lshl_add_u32 v%d, v%d, 2, v%d" % (vT + 2, vG4, vC4))
    A("v_and_b32 v%d, 7, v%d" % (vT + 3, vT + 2)); A("v_lshlrev_b32 v%d, 1, v%d" % (vT + 3, vT + 3))
    A("v_lshrrev_b32 v%d, 1, v%d" % (vT + 4, vR4)); A("v_xor_b32 v%d, v%d, v%d" % (vT + 3, vT + 3, vT + 4))
    A("v_lshlrev_b32 v%d, 8, v%d" % (vT + 2, vT + 2)); A("v_lshl_add_u32 v%d, v%d, 4, v%d" % (vT + 2, vT + 3, vT + 2))
    A("v_and_b32 v%d, 1, v0" % (vT + 4)); A("v_lshl_add_u32 v%d, v%d, 3, v%d" % (vVP, vT + 4, vT + 2))
    for d in range(1, 8): A("v_xor_b32 v%d, %d, v%d" % (vVP + d, 32 * d, vVP))
    round_block(vS + 8 * (NW - 1), vM, False)
    swap_red(vM, vT, "v_max_f32", 32); swap_red(vM, vT, "v_max_f32", 16)
    A("v_mul_f32 v%d, s%d, v%d" % (vM, sL2E, vM))
    A("v_lshlrev_b32 v31, 4, v%d" % vG4); A("ds_bpermute_b32 v%d, v31, v%d" % (vMO, vM))
    vP = vK
    def exps(sc, n, mx, ls, first, pdst, npk):
        for j in range(n + 1):
            a, b = sc + 2 * j, sc + 2 * j + 1
            if j < n:
                A("v_fma_f32 v%d, v%d, s%d, -v%d" % (a, a, sL2E, mx)); A("v_fma_f32 v%d, v%d, s%d, -v%d" % (b, b, sL2E, mx))
                A("v_exp_f32 v%d, v%d" % (a, a)); A("v_exp_f32 v%d, v%d" % (b, b))
            if j >= 1:
                pa, pb = a - 2, b - 2
                if j == 1 and first: A("v_add_f32 v%d, v%d, v%d" % (ls, pa, pb))
                else: A("v_add_f32 v%d, v%d, v%d" % (ls, ls, pa)); A("v_add_f32 v%d, v%d, v%d" % (ls, ls, pb))
                if j - 1 < npk: A("v_cvt_pk_bf16_f32 v%d, v%d, v%d" % (pdst + j - 1, pa, pb))
    exps(vS, 4 * NW, vM, vLs, True, vP, 4 * NB)
    stamp(5)
    A("s_lshl_b32 s%d, s%d, 11" % (sT0, sWAVE)); A("s_add_u32 s%d, s%d, %d" % (sT0, sT0, HI + L_OW))
    A("v_lshlrev_b32 v%d, 9, v%d" % (vOWA, vG4)); A("v_lshl_add_u32 v%d, v%d, 2, v%d" % (vOWA, vN16, vOWA)); A("v_add_u32 v%d, s%d, v%d" % (vOWA, sT0, vOWA))
    for i in range(8 * NU): A("v_mov_b32 v%d, 0xff800000" % (vS2 + i))
    vVB = vK + 32
    par = [0]
    def slot_of():
        A("s_and_b32 s%d, s%d, 15" % (sT1, sI)); A("s_lshl_b32 s%d, s%d, 13" % (sT1, sT1))
    def landed():
        A("s_add_u32 s%d, s%d, 1" % (sT0, sI)); lds_wait(F_FULL, "s%d" % sT0, keep=sFULL)
    def release_addr():
        A("s_lshr_b32 s%d, s%d, 11" % (sT1, sT1)); A("s_add_u32 s%d, s%d, %d" % (sT1, sT1, HI)); A("v_mov_b32 v30, s%d" % sT1)
    def v_block(preg, first, release, mid=None):
        base = vVB + 32 * par[0]; par[0] ^= 1
        slot_of()
        for d in range(8): A("v_add_u32 v%d, s%d, v%d" % (vVT + d, sT1, vVP + d))
        if release: release_addr()
        if mid: mid()
        landed()
        for d in range(8):
            for t in range(2):
                A("ds_read_b64_tr_b16 %s, v%d offset:%d" % (vr(base + 4 * d + 2 * t, 2), vVT + d, t * 4096))
        for d in range(8):
            A("s_waitcnt lgkmcnt(%d)" % (14 - 2 * d))
            if d == 7 and release: one_lane("ds_add_u32 v30, v%d offset:%d" % (vONE, F_SL))
            acc = vr(vS + 4 * d, 4)
            A("v_mfma_f32_16x16x32_bf16 %s, %s, %s, %s" % (acc, vr(preg, 4), vr(base + 4 * d, 4), "0" if first else acc))
    def factor():
        lds_wait(F_GR, 1)
        A("v_lshl_add_u32 v%d, v%d, 3, v%d" % (vT, vG4, vHI)); A("ds_read_b64 %s, v%d offset:%d" % (vr(vT + 2, 2), vT, L_GS)); A("s_waitcnt lgkmcnt(0)")
        A("v_sub_f32 v%d, v%d, v%d" % (vF, vMO, vT + 2)); A("v_exp_f32 v%d, v%d" % (vF, vF)); A("v_mul_f32 v%d, v%d, v%d" % (vF, vF, vT + 3))
        stamp(6)
    for j in range(NB):
        A("s_add_u32 s%d, s%d, %d" % (sI, sWAVE, NF + 4 * j))
        v_block(vP + 4 * j, j == 0, True)
    vM2, vAL = 240, 241
    A("v_mov_b32 v%d, 0xff800000" % vM2); A("s_mov_b32 s%d, 0" % sNX)
    for u in range(NU):
        A("s_add_u32 s%d, s%d, %d" % (sT0, sWAVE, 4 * u + 1))
        lds_wait(F_PLAN, "s%d" % sT0, keep=sPLAN)
        A("s_and_b32 s%d, s%d, 0xff" % (sT1, sPLAN)); A("s_cmp_lt_u32 s%d, s%d" % (sT1, sT0)); A("s_cbranch_scc1 L_noshare")
        A("s_add_u32 s%d, s%d, %d" % (sI, sWAVE, NF + n1 + 4 * u))
        base = vVB + 32 * par[0]; par[0] ^= 1
        slot_of(); k_addrs(vVT, sT1, vT, False); release_addr()
        landed()
        for t in range(2):
            for m in range(4): A("ds_read_b128 %s, v%d offset:%d" % (vr(base + 16 * t + 4 * m, 4), vVT + m, t * 4096))
        lds_add(30, F_SL)
        qk_block(base, vS2 + 8 * u)
        A("s_add_u32 s%d, s%d, 1" % (sNX, sNX))
        round_block(vS2 + 8 * u, vM2, False)
    A("L_noshare:")
    A("s_nop 7")
    swap_red(vM2, vT, "v_max_f32", 32); swap_red(vM2, vT, "v_max_f32", 16)
    A("v_mul_f32 v%d, s%d, v%d" % (vM2, sL2E, vM2)); A("v_max_f32 v%d, v%d, v%d" % (vM2, vM2, vM))
    A("ds_bpermute_b32 v%d, v31, v%d" % (vT + 4, vM2))
    A("v_sub_f32 v%d, v%d, v%d" % (vAL, vM, vM2)); A("v_exp_f32 v%d, v%d" % (vAL, vAL))
    A("v_mul_f32 v%d, v%d, v%d" % (vLs, vLs, vAL))
    exps(vS2, 4 * NU, vM2, vLs, False, vP2, 4 * NU)
    swap_red(vLs, vT, "v_add_f32", 32); swap_red(vLs, vT, "v_add_f32", 16)
    A("s_lshl_b32 s%d, s%d, 5" % (sT0, sWAVE)); A("s_add_u32 s%d, s%d, %d" % (sT0, sT0, HI)); A("v_lshlrev_b32 v%d, 3, v%d" % (vT, vC4)); A("v_add_u32 v%d, s%d, v%d" % (vT, sT0, vT))
    A("v_mov_b32 v%d, v%d" % (vT + 2, vM2)); A("v_mov_b32 v%d, v%d" % (vT + 3, vLs))
    A("s_mov_b64 exec, 0x1111"); A("ds_write_b64 v%d, %s offset:%d" % (vT, vr(vT + 2, 2), L_ST)); A("s_mov_b64 exec, -1")
    lds_add(vHI, F_ST)
    stamp(7)
    A("v_sub_f32 v%d, v%d, v%d" % (vMO, vMO, vT + 4)); A("v_exp_f32 v%d, v%d" % (vT + 5, vMO)); A("v_mov_b32 v%d, v%d" % (vMO, vT + 4))
    for i in range(8 * NB, 8 * NW): A("v_mul_f32 v%d, v%d, v%d" % (vS + i, vS + i, vAL))
    for i in range(4 * NB, 4 * NW): A("v_cvt_pk_bf16_f32 v%d, v%d, v%d" % (vP + i, vS + 2 * i, vS + 2 * i + 1))
    for d in range(8): A("v_mul_f32 v%d, v%d, v%d" % (vS + 4 * d, vS + 4 * d, vT + 5))
    lds_wait(F_PLAN, "0x100", keep=sPLAN)
    A("s_and_b32 s%d, s%d, 31" % (sPLAN, sPLAN)); A("s_add_u32 s%d, s%d, s%d" % (sPLAN, sPLAN, sWAVE))
    for j in range(NB, NW):
        A("s_add_u32 s%d, s%d, %d" % (sI, sPLAN, NF + 4 * j))
        v_block(vP + 4 * j, False, 4 * j + 16 < NF + MAXT, factor if j == NW - 1 else None)
    for u in range(NU):
        A("s_cmp_le_u32 s%d, %d" % (sNX, u)); A("s_cbranch_scc1 L_vdone")
        A("s_add_u32 s%d, s%d, %d" % (sI, sPLAN, 2 * NF + 4 * u))
        v_block(vP2 + 4 * u, False, False)
    A("L_vdone:")
    for d in range(8): A("v_mul_f32 v%d, v%d, v%d" % (vTMP + d, vF, vS + 4 * d))
    for d in range(0, 8, 2): A("ds_write2_b32 v%d, v%d, v%d offset0:%d offset1:%d" % (vOWA, vTMP + d, vTMP + d + 1, 16 * d, 16 * d + 16))
    vWOA, vOIR, vWO = 17, 18, vK
    A("v_lshlrev_b32 v%d, 7, v%d" % (vWOA, vC4)); A("v_lshl_add_u32 v%d, v%d, 10, v%d" % (vWOA, vG4, vWOA)); A("v_lshl_add_u32 v%d, v%d, 3, v%d" % (vWOA, vR4, vWOA))
    A("s_lshl_b32 s%d, s%d, 5" % (sT0, sWAVE)); A("s_add_u32 s%d, s%d, %d" % (sT0, sT0, HI + L_WO)); A("v_add_u32 v%d, s%d, v%d" % (vWOA, sT0, vWOA))
    A("s_waitcnt lgkmcnt(0)")
    A("s_barrier")
    stamp(8)
    def wo_reads():
        lds_wait(F_WO, 1, sl=0)
        for m in range(4):
            A("ds_read_b64_tr_b16 %s, v%d offset:%d" % (vr(vWO + 4 * m, 2), vWOA, m * 4096))
            A("ds_read_b64_tr_b16 %s, v%d offset:%d" % (vr(vWO + 4 * m + 2, 2), vWOA, m * 4096 + 512))
    def oir_addr():
        A("v_lshrrev_b32 v%d, 1, v%d" % (vT, vN16)); A("v_lshlrev_b32 v%d, 10, v%d" % (vT, vT)); A("v_and_b32 v%d, 1, v0" % (vT + 1)); A("v_lshl_add_u32 v%d, v%d, 8, v%d" % (vT, vT + 1, vT))
        for m in range(4):
            A("v_add_u32 v%d, %d, v%d" % (vT + 1, 4 * m, vG4)); A("v_xor_b32 v%d, v%d, v%d" % (vT + 1, vT + 1, vN16))
            A("v_lshl_add_u32 v%d, v%d, 4, v%d" % (vOIR + m, vT + 1, vT))
        A("v_lshrrev_b32 v%d, 1, v%d" % (22, vN16)); A("v_and_b32 v23, 1, v0"); A("v_lshl_add_u32 v23, v22, 2, v23"); A("v_lshl_add_u32 v23, v23, 2, v%d" % vHI)
        A("v_lshlrev_b32 v22, 16, v22"); A("v_lshl_add_u32 v22, v%d, 4, v22" % vG4)
    A("s_cmp_gt_u32 s%d, 1" % sWAVE); A("s_cbranch_scc1 L_gather23")
    A("s_lshl_b32 s%d, s%d, 10" % (sT0, sWAVE)); A("s_add_u32 s%d, s%d, %d" % (sT0, sT0, HI + L_OW)); A("v_add_u32 v%d, s%d, v%d" % (vT, sT0, vL16))
    for w in range(4): A("ds_read_b128 %s, v%d offset:%d" % (vr(vS + 4 * w, 4), vT, w * 2048))
    A("v_lshrrev_b32 v%d, 5, v0" % (vT + 1)); A("v_lshlrev_b32 v%d, 13, v%d" % (vT + 1, vT + 1)); A("v_and_b32 v%d, 31, v0" % (vT + 2)); A("v_lshl_add_u32 v%d, v%d, 3, v%d" % (vT + 1, vT + 2, vT + 1))
    A("s_lshl_b32 s%d, s%d, 14" % (sT0, sWAVE)); A("s_add_u32 s%d, s%d, s%d" % (sT0, sT0, sOPOFF))
    A("s_waitcnt lgkmcnt(2)")
    for i in range(4): A("v_add_f32 v%d, v%d, v%d" % (vS + i, vS + i, vS + 4 + i))
    A("s_waitcnt lgkmcnt(0)")
    for i in range(4): A("v_add_f32 v%d, v%d, v%d" % (vS + 8 + i, vS + 8 + i, vS + 12 + i))
    for i in range(4): A("v_add_f32 v%d, v%d, v%d" % (vS + i, vS + i, vS + 8 + i))
    A("v_cvt_pk_bf16_f32 v%d, v%d, v%d" % (vTMP, vS, vS + 1)); A("v_cvt_pk_bf16_f32 v%d, v%d, v%d" % (vTMP + 1, vS + 2, vS + 3))
    A("buffer_store_dwordx2 %s, v%d, %s, s%d offen sc1" % (vr(vTMP, 2), vT + 1, srd("WS"), sT0))
    stamp(11)
    wo_reads(); oir_addr()
    A("s_branch L_barE_c")
    def gather(idx_sgpr, extra):
        vGa = 40
        A("s_lshr_b32 s%d, s%d, 3" % (sT1, sR)); A("s_lshl_b32 s%d, s%d, 13" % (sT1, sT1)); A("s_lshl_b32 s%d, s%d, 11" % (sT0, idx_sgpr))
        A("s_add_u32 s%d, s%d, s%d" % (sT1, sT1, sT0)); A("s_add_u32 s%d, s%d, 0x%x" % (sT1, sT1, WS_OP))
        lds_ = [(lambda: A("buffer_load_dwordx4 %s, v%d, %s, s%d offen sc1" % (vr(vGa, 4), vL16, srd("WS"), sT1)), list(range(vGa, vGa + 4))),
                (lambda: A("buffer_load_dwordx4 %s, v%d, %s, s%d offen offset:1024 sc1" % (vr(vGa + 4, 4), vL16, srd("WS"), sT1)), list(range(vGa + 4, vGa + 8)))]
        for i_, _ in lds_: i_()
        A("v_and_b32 v%d, 1, v%d" % (vT + 2, vG4)); A("s_lshl_b32 s%d, s%d, 2" % (sT2, idx_sgpr)); A("v_add_u32 v%d, s%d, v%d" % (vT + 2, sT2, vT + 2))
        A("v_xor_b32 v%d, v%d, v%d" % (vT + 3, vT + 2, vN16)); A("v_xor_b32 v%d, 2, v%d" % (vT + 4, vT + 3))
        A("v_lshlrev_b32 v%d, 8, v%d" % (vT + 2, vG4)); A("v_add_u32 v%d, s%d, v%d" % (vT + 2, sT0, vT + 2))
        A("v_lshl_add_u32 v%d, v%d, 4, v%d" % (vT + 5, vT + 3, vT + 2)); A("v_lshl_add_u32 v%d, v%d, 4, v%d" % (vT + 6, vT + 4, vT + 2))
        extra()
        gpoll(lds_, first=False, sleep=tsleep)
        stamp(11)
        A("ds_write_b128 v%d, %s" % (vT + 5, vr(vGa, 4))); A("ds_write_b128 v%d, %s offset:1024" % (vT + 6, vr(vGa + 4, 4)))
    A("L_gather23:")
    A("s_sub_u32 s%d, s%d, 2" % (sMU, sWAVE))
    gather(sMU, lambda: (wo_reads(), oir_addr()))
    A("L_barE_c:")
    A("s_waitcnt lgkmcnt(0)")
    A("s_barrier")
    stamp(9)
    for u in range(2):
        for m in range(4): A("ds_read_b128 %s, v%d offset:%d" % (vr(vS + 16 * u + 4 * m, 4), vOIR + m, u * 512))
    A("v_add_u32 v23, %d, v23" % L_ST); A("ds_read2_b32 v[24:25], v23 offset0:0 offset1:2")
    A("s_lshl_b32 s%d, s%d, %d" % (sT0, sWAVE, 11)); A("s_add_u32 s%d, s%d, s%d" % (sT0, sT0, sSPOFF))
    for u in range(2):
        for m in range(4):
            A("s_waitcnt lgkmcnt(%d)" % (8 - 4 * u - m))
            acc = vr(vTMP + 4 * u, 4)
            A("v_mfma_f32_16x16x32_bf16 %s, %s, %s, %s" % (acc, vr(vWO + 4 * m, 4), vr(vS + 16 * u + 4 * m, 4), "0" if m == 0 else acc))
    A("s_waitcnt lgkmcnt(0)")
    for i in range(4): A("v_mul_f32 v%d, v24, v%d" % (vTMP + i, vTMP + i))
    for i in range(4): A("v_fmac_f32 v%d, v25, v%d" % (vTMP + i, vTMP + 4 + i))
    for i in range(4): dpp("v_add_f32", vTMP + i, "quad_perm:[1,0,3,2]")
    A("s_mov_b32 exec_lo, 0x55555555"); A("s_mov_b32 exec_hi, 0x55555555")
    stamp(10)
    A("buffer_store_dwordx4 %s, v22, %s, s%d offen sc1" % (vr(vTMP, 4), srd("WS"), sT0))
    A("s_mov_b64 exec, -1")
    A("s_branch L_done")

    A("L_loader:")
    if ldprio: A("s_setprio %d" % ldprio)
    vO, vFR, vFA, vPL, vPA = 17, 24, 25, 26, 27
    A("v_lshlrev_b32 v%d, 8, v%d" % (vT, vG4))
    for i in range(4):
        A("v_add_u32 v%d, %d, v%d" % (vT + 1, 4 * i, vG4)); A("v_xor_b32 v%d, v%d, v%d" % (vT + 1, vT + 1, vN16)); A("v_lshl_add_u32 v%d, v%d, 4, v%d" % (vO + i, vT + 1, vT))
    for i in range(2):
        A("v_add_u32 v%d, %d, v%d" % (vT + 1, 4 * i, vG4)); A("v_lshlrev_b32 v%d, 1, v%d" % (vT + 1, vT + 1))
        A("v_xor_b32 v%d, v%d, v%d" % (vT + 1, vT + 1, vN16)); A("v_lshl_add_u32 v%d, v%d, 4, v%d" % (vO + 4 + i, vT + 1, vT))
    A("v_lshl_add_u32 v%d, v%d, 2, v%d" % (vFA, vN16, vHI)); A("v_and_b32 v%d, 31, v0" % vPA); A("v_lshlrev_b32 v28, 3, v%d" % vPA); A("v_lshl_add_u32 v%d, v%d, 2, v%d" % (vPA, vPA, vHI))
    sK, sSLOT, sPOOL, sVO, sEND, sN = 12, 13, 88, 89, 90, 91
    A("s_bfe_u32 s%d, s%d, 0x30002" % (sBASE, sR)); A("s_lshl_b32 s%d, s%d, 23" % (sBASE, sBASE)); A("s_lshr_b32 s%d, s%d, 5" % (sT0, sR)); A("s_lshl_b32 s%d, s%d, 20" % (sT0, sT0))
    A("s_add_u32 s%d, s%d, s%d" % (sBASE, sBASE, sT0)); A("s_add_u32 s%d, s%d, 0x%x" % (sPOOL, sBASE, NF * 8192))
    A("s_and_b32 s%d, s%d, 3" % (sT0, sR)); A("s_lshl_b32 s%d, s%d, 18" % (sT0, sT0)); A("s_add_u32 s%d, s%d, s%d" % (sBASE, sBASE, sT0))
    A("s_mov_b32 s%d, s%d" % (sOFF, sBASE)); A("s_mov_b32 s%d, 0" % sSLOT); A("s_mov_b32 s%d, 0" % sN)
    if ldst: A("s_mov_b32 s94, 0")
    A("s_waitcnt lgkmcnt(0)")
    def publish_full(sgpr):
        A("v_mov_b32 v%d, s%d" % (vT, sgpr)); one_lane("ds_max_u32 v%d, v%d offset:%d" % (vHI, vT, F_FULL))
    def dma_block(isk):
        for half in range(2):
            A("s_mov_b32 m0, s%d" % sSLOT)
            for i in range(4):
                A("buffer_load_dwordx4 v%d, %s, s%d offen offset:%d %s lds" % (vO + i if isk else vO + 4 + (i & 1), srd("K" if isk else "V"), sOFF, i * 1024, pol))
            A("s_add_u32 s%d, s%d, 4096" % (sOFF, sOFF)); A("s_add_u32 s%d, s%d, 4096" % (sSLOT, sSLOT))
        A("s_and_b32 s%d, s%d, 0x1ffff" % (sSLOT, sSLOT)); A("s_add_u32 s%d, s%d, 1" % (sN, sN))
    def read_rel(): A("ds_read_b32 v%d, v%d offset:%d" % (vFR, vFA, F_SL))
    def block(isk):
        go = A.label("go"); sl = A.label("slow")
        def chk():
            A("v_readlane_b32 s%d, v%d, s%d" % (sT1, vFR, sT0)); A("s_cmp_gt_u32 s%d, s%d" % (sT1, sT2)); A("s_cbranch_scc1 " + go)
        A("s_lshr_b32 s%d, s%d, 13" % (sT0, sSLOT)); A("s_lshr_b32 s%d, s%d, 4" % (sT2, sN))
        A("s_waitcnt lgkmcnt(1)")
        chk()
        read_rel(); A("s_waitcnt lgkmcnt(0)"); chk()
        A("s_waitcnt vmcnt(0)"); publish_full(sN)
        if ldst: A("s_add_u32 s94, s94, 100")
        A("s_mov_b32 s%d, 0" % sSPIN)
        A(sl + ":")
        read_rel(); A("s_waitcnt lgkmcnt(0)"); chk()
        A("s_add_u32 s%d, s%d, 1" % (sSPIN, sSPIN)); A("s_cmp_lt_u32 s%d, %d" % (sSPIN, lspin)); A("s_cbranch_scc1 " + sl)
        A(go + ":")
        dma_block(isk)
        read_rel()
        A("s_sub_i32 s%d, s%d, %d" % (sT0, sN, F))
        A("s_waitcnt vmcnt(%d)" % (8 * F)); publish_full(sT0)
    def lstamps(lst):
        if ldst:
            for k, g in lst:
                sk = A.label("st"); A("s_cmp_lg_u32 s%d, %d" % (sN, g)); A("s_cbranch_scc1 " + sk); stamp(k); A(sk + ":")
    A("s_barrier")
    for _ in range(4): dma_block(True)
    read_rel(); A("s_waitcnt lgkmcnt(0)")
    A("L_ld_a:")
    lstamps([(1, 8), (4, 20)])
    block(True)
    A("s_cmp_lt_u32 s%d, %d" % (sN, NF)); A("s_cbranch_scc1 L_ld_a")
    A("s_mov_b32 s%d, s%d" % (sOFF, sBASE))
    A("L_ld_b:")
    lstamps([(6, 28), (7, 32), (8, 40)])
    block(False)
    A("s_cmp_lt_u32 s%d, %d" % (sN, NF + n1)); A("s_cbranch_scc1 L_ld_b")
    A("s_mov_b32 s%d, s%d" % (sVO, sOFF)); A("s_mov_b32 s%d, 0" % sK)
    if ldst: stamp(9)
    def pool_addr():
        A("s_add_u32 s%d, s%d, 1" % (sK, sK)); A("v_readlane_b32 s%d, v%d, s%d" % (sT0, vPL, sK))
        A("s_min_u32 s%d, s%d, %d" % (sT0, sT0, POOL - 1))
        if pg == 1:
            A("s_and_b32 s%d, s%d, 3" % (sT1, sT0)); A("s_lshr_b32 s%d, s%d, 2" % (sT0, sT0))
        elif pg == 2:
            A("s_bfe_u32 s%d, s%d, 0x20001" % (sT1, sT0)); A("s_and_b32 s%d, s%d, 1" % (sT2, sT0)); A("s_lshr_b32 s%d, s%d, 3" % (sT0, sT0)); A("s_lshl_b32 s%d, s%d, 1" % (sT0, sT0)); A("s_add_u32 s%d, s%d, s%d" % (sT0, sT0, sT2))
        else:
            A("s_lshr_b32 s%d, s%d, 3" % (sT1, sT0)); A("s_and_b32 s%d, s%d, 7" % (sT0, sT0))
            if pg == 4: A("s_add_u32 s%d, s%d, 1" % (sT1, sT1)); A("s_and_b32 s%d, s%d, 3" % (sT1, sT1))
            if pg == 5: A("s_lshr_b32 s%d, s%d, 2" % (sT2, sR)); A("s_add_u32 s%d, s%d, s%d" % (sT1, sT1, sT2)); A("s_lshr_b32 s%d, s%d, 5" % (sT2, sR)); A("s_add_u32 s%d, s%d, s%d" % (sT1, sT1, sT2)); A("s_and_b32 s%d, s%d, 3" % (sT1, sT1))
        A("s_lshl_b32 s%d, s%d, 18" % (sT1, sT1)); A("s_lshl_b32 s%d, s%d, 13" % (sT0, sT0)); A("s_add_u32 s%d, s%d, s%d" % (sOFF, sPOOL, sT0)); A("s_add_u32 s%d, s%d, s%d" % (sOFF, sOFF, sT1))
    A("L_ld_c:")
    A("s_mov_b32 s%d, 0" % sSPIN)
    if ldst == 3: A("s_memrealtime s[14:15]")
    A("L_ld_plan:")
    A("ds_read_b32 v%d, v%d offset:%d" % (vPL, vPA, F_PLAN)); A("s_waitcnt lgkmcnt(0)"); A("v_readfirstlane_b32 s%d, v%d" % (sT0, vPL))
    A("s_cmp_gt_u32 s%d, s%d" % (sT0, sK)); A("s_cbranch_scc1 L_ld_known")
    for k in range(F - 1, -1, -1):
        nx = A.label("nx"); A("s_cmp_eq_u32 s%d, %d" % (sSPIN, F - 1 - k)); A("s_cbranch_scc0 " + nx)
        A("s_sub_u32 s%d, s%d, %d" % (sT1, sN, k)); A("s_waitcnt vmcnt(%d)" % (8 * k)); publish_full(sT1); A(nx + ":")
    A("s_add_u32 s%d, s%d, 1" % (sSPIN, sSPIN)); A("s_cmp_lt_u32 s%d, %d" % (sSPIN, lspin)); A("s_cbranch_scc1 L_ld_plan")
    A("L_ld_known:")
    if ldst == 1: A("s_add_u32 s94, s94, s%d" % sSPIN)
    if ldst == 3:
        A("s_memrealtime s[92:93]"); A("s_waitcnt lgkmcnt(0)"); A("s_sub_u32 s92, s92, s14"); A("s_add_u32 s94, s94, s92")
    A("s_and_b32 s%d, s%d, 0xff" % (sT0, sT0)); A("s_cmp_le_u32 s%d, s%d" % (sT0, sK)); A("s_cbranch_scc1 L_ld_cend")
    pool_addr()
    block(True)
    A("s_cmp_lt_u32 s%d, %d" % (sK, MAXT)); A("s_cbranch_scc1 L_ld_c")
    A("L_ld_cend:")
    if ldst: stamp(2)
    A("s_mov_b32 s%d, s%d" % (sOFF, sVO)); A("s_add_u32 s%d, s%d, %d" % (sEND, sK, 2 * NF))
    A("L_ld_d:")
    block(False)
    A("s_cmp_lt_u32 s%d, s%d" % (sN, sEND)); A("s_cbranch_scc1 L_ld_d")
    A("s_add_u32 s%d, s%d, s%d" % (sEND, sEND, sK))
    if ldst: stamp(3)
    if ldst:
        A("s_mul_i32 s%d, s%d, 100" % (sT0, sK)); A("s_add_u32 s40, s16, s%d" % sT0); A("s_addc_u32 s41, s17, 0")
    A("s_mov_b32 s%d, 0" % sK)
    A("L_ld_e:")
    A("s_cmp_ge_u32 s%d, s%d" % (sN, sEND)); A("s_cbranch_scc1 L_ld_end")
    pool_addr()
    block(False)
    A("s_branch L_ld_e")
    A("L_ld_end:")
    for k in range(F - 1, -1, -1):
        A("s_sub_u32 s%d, s%d, %d" % (sT0, sN, k)); A("s_waitcnt vmcnt(%d)" % (8 * k)); publish_full(sT0)
    stamp(11)
    if ldst: A("s_add_u32 s36, s16, s94"); A("s_addc_u32 s37, s17, 0")
    A("s_lshr_b32 s%d, s%d, 3" % (sT1, sR)); A("s_lshl_b32 s%d, s%d, 8" % (sT1, sT1)); A("s_add_u32 s%d, s%d, 0x%x" % (sT1, sT1, WS_ST))
    stl = [(lambda: A("buffer_load_dwordx2 v[32:33], v28, %s, s%d offen sc1" % (srd("WS"), sT1)), [32, 33])]
    if not sdelay: stl[0][0]()
    A("s_waitcnt lgkmcnt(0)")
    A("s_barrier")
    gpoll(stl, first=bool(sdelay), sleep=ssleep)
    stamp(5)
    def combine(modes):
        A("v_mov_b32 v34, v32")
        for m in modes: dpp("v_max_f32", 34, m)
        A("v_sub_f32 v32, v32, v34"); A("v_exp_f32 v32, v32"); A("v_mul_f32 v32, v32, v33"); A("v_mov_b32 v35, v32")
        for m in modes: dpp("v_add_f32", 35, m)
    combine(("quad_perm:[1,0,3,2]", "quad_perm:[2,3,0,1]"))
    A("v_rcp_f32 v35, v35"); A("v_mul_f32 v32, v32, v35")
    A("ds_write_b32 v%d, v32 offset:%d" % (vPA, L_ST))
    A("s_waitcnt lgkmcnt(0)")
    A("s_barrier")
    A("s_branch L_done")

    def slot_addrs():
        A("v_lshlrev_b32 v28, 8, v0")
        A("s_lshr_b32 s%d, s%d, 5" % (sT0, sR)); A("s_lshl_b32 s%d, s%d, 10" % (sT0, sT0)); A("s_and_b32 s%d, s%d, 31" % (sMU, sR)); A("s_lshl_b32 s%d, s%d, 3" % (sMU, sMU))
        A("s_add_u32 s%d, s%d, s%d" % (sMU, sMU, sT0)); A("s_add_u32 s%d, s%d, 0x%x" % (sMU, sMU, WS_ST))
    A("L_comm:")
    vZ = 20
    A("v_subrev_u32 v%d, 16, v0" % vZ); A("v_cmp_gt_u32 vcc, 12, v%d" % vZ); A("v_cndmask_b32 v%d, 0, v%d, vcc" % (vZ, vONE))
    A("v_lshl_add_u32 v%d, v0, 2, v%d" % (vT, vHI))
    A("ds_write_b32 v%d, v%d offset:%d" % (vT, vZ, L_FLG))
    slot_addrs()
    sEP = 4
    def epoch():
        A("s_waitcnt vmcnt(0)")
        A("v_readfirstlane_b32 s%d, v30" % sEP); A("v_readfirstlane_b32 s%d, v31" % (sEP + 1))
        A("s_add_u32 s%d, s%d, 0x%x" % (sEP, sEP, EP_STEP & 0xffffffff)); A("s_addc_u32 s%d, s%d, 0x%x" % (sEP + 1, sEP + 1, EP_STEP >> 32))
    A("s_waitcnt lgkmcnt(0)")
    A("buffer_load_dwordx2 v[30:31], off, %s, 0 offset:%d sc1" % (srd("WS"), WS_EP))
    A("s_barrier")
    A("v_add_u32 v%d, v%d, v%d" % (vT, vHI, vL16))
    A("v_and_b32 v29, 7, v0"); A("v_lshlrev_b32 v29, 14, v29"); A("v_lshl_add_u32 v29, v%d, 4, v29" % vG4)
    A("s_lshl_b32 s%d, s%d, 6" % (sT2, sRQ)); A("s_add_u32 s%d, s%d, 0x%x" % (sT2, sT2, WS_Q))
    A("s_bfe_u32 s%d, s%d, 0x30002" % (sT0, sR)); A("s_lshl_b32 s%d, s%d, 14" % (sT0, sT0)); A("s_lshr_b32 s%d, s%d, 5" % (sT1, sR)); A("s_lshl_b32 s%d, s%d, 11" % (sT1, sT1))
    A("s_add_u32 s%d, s%d, s%d" % (sT0, sT0, sT1)); A("s_add_u32 s%d, s%d, 0x%x" % (sT0, sT0, WS_Q))
    A("v_lshl_add_u32 v27, v0, 3, v%d" % vHI)
    epoch()
    A("v_mov_b32 v38, s%d" % sEP); A("v_mov_b32 v39, s%d" % (sEP + 1))
    stamp(1)
    lds_wait(F_QP, 4)
    for w in range(4): A("ds_read_b128 %s, v%d offset:%d" % (vr(40 + 4 * w, 4), vT, L_QP + w * 1024))
    A("s_waitcnt lgkmcnt(0)")
    for i in range(4): A("v_add_f32 v%d, v%d, v%d" % (40 + i, 40 + i, 44 + i)); A("v_add_f32 v%d, v%d, v%d" % (48 + i, 48 + i, 52 + i))
    for i in range(4): A("v_add_f32 v%d, v%d, v%d" % (40 + i, 40 + i, 48 + i))
    A("v_cvt_pk_bf16_f32 v36, v40, v41"); A("v_cvt_pk_bf16_f32 v37, v42, v43")
    A("s_mov_b32 exec_lo, 0x00ff00ff"); A("s_mov_b32 exec_hi, 0x00ff00ff")
    A("buffer_store_dwordx4 v[36:39], v29, %s, s%d offen sc1" % (srd("WS"), sT2))
    A("s_mov_b64 exec, -1")
    stamp(2)
    lds_wait(F_FULL, qtrig, sl=4)
    gpoll([(lambda: A("buffer_load_dwordx4 v[32:35], v%d, %s, s%d offen sc1" % (vL16, srd("WS"), sT0)), [32, 33, 34, 35]),
           (lambda: A("buffer_load_dwordx4 v[40:43], v%d, %s, s%d offen offset:1024 sc1" % (vL16, srd("WS"), sT0)), [40, 41, 42, 43])], sleep=qsleep, tag="s[%d:%d]" % (sEP, sEP + 1))
    A("ds_write_b64 v27, v[32:33] offset:%d" % L_QB); A("ds_write_b64 v27, v[40:41] offset:%d" % (L_QB + 512))
    lds_add(vHI, F_QR)
    stamp(4)
    A("v_lshlrev_b32 v%d, 5, v0" % (vT + 3))
    word_poll("buffer_load_dword v32, v%d, %s, 0 offen sc1" % (vT + 3, srd("DBG")), 32, "0xff", "v_cmp_gt_u32 vcc, 32, v%d", fsleep)
    stamp(3)
    lds_add(vHI, F_AM)
    A("v_lshlrev_b32 v%d, 3, v%d" % (vT + 1, vN16)); A("v_add_u32 v%d, v%d, v%d" % (vT + 2, vHI, vT + 1))
    lds_wait(F_ST, 4, sl=4)
    A("ds_read_b64 v[32:33], v%d offset:%d" % (vT + 2, L_ST)); A("s_waitcnt lgkmcnt(0)")
    combine(("row_ror:4", "row_ror:8"))
    A("v_rcp_f32 v37, v35"); A("v_mov_b32 v36, v34"); A("v_lshl_add_u32 v%d, v0, 3, v%d" % (vT + 2, vHI))
    A("s_mov_b64 exec, 0xf"); A("buffer_store_dwordx2 v[34:35], v28, %s, s%d offen sc1" % (srd("WS"), sMU))
    A("ds_write_b64 v%d, v[36:37] offset:%d" % (vT + 2, L_GS)); A("s_mov_b64 exec, -1")
    lds_add(vHI, F_GR)
    stamp(5)
    A("s_mov_b32 s%d, 2" % sMU)
    A("L_gather56:")
    A("s_waitcnt lgkmcnt(0)")
    A("s_barrier")
    stamp(8)
    gather(sMU, lambda: None)
    A("s_waitcnt lgkmcnt(0)")
    A("s_barrier")
    stamp(9)
    A("s_branch L_done")

    A("L_mlp:")
    vW, vU = 32, 64
    def cw_addr(dst): A("s_lshr_b32 s%d, s%d, 2" % (dst, sR)); A("s_mul_i32 s%d, s%d, %d" % (dst, dst, cws)); A("s_add_u32 s%d, s%d, 0x%x" % (dst, dst, WS_CW))
    A("s_cmp_lg_u32 s%d, 7" % sWAVE); A("s_cbranch_scc1 L_noclean")
    for i in range(4): A("v_mov_b32 v%d, -1" % (60 + i))
    slot_addrs()
    A("v_lshlrev_b32 v%d, 13, v%d" % (59, vG4)); A("v_lshl_add_u32 v%d, v%d, 4, v%d" % (59, vN16, 59))
    A("s_lshl_b32 s%d, s%d, %d" % (sT1, sR, 11)); A("s_add_u32 s%d, s%d, 0x%x" % (sT1, sT1, WS_SP))
    A("v_lshrrev_b32 v29, 2, v0"); A("v_lshlrev_b32 v29, 6, v29"); A("v_lshl_add_u32 v29, v%d, 4, v29" % vR4)
    cw_addr(sT2); A("s_and_b32 s%d, s%d, 3" % (sT3, sR)); A("s_cmp_eq_u32 s%d, 0" % sT3); A("s_cselect_b32 s12, 1, 0"); A("s_mov_b32 s13, 0")
    A("s_waitcnt lgkmcnt(0)")
    A("buffer_load_dwordx2 v[30:31], off, %s, 0 offset:%d sc1" % (srd("WS"), WS_EP))
    A("s_mov_b64 exec, 0xf"); A("buffer_store_dwordx2 v[60:61], v28, %s, s%d offen sc1" % (srd("WS"), sMU)); A("s_mov_b64 exec, -1")
    A("buffer_store_dwordx4 v[60:63], v%d, %s, s%d offen sc1" % (59, srd("WS"), sOPOFF))
    A("buffer_store_dwordx4 v[60:63], v29, %s, s%d offen sc1" % (srd("WS"), sT1))
    A("buffer_store_dwordx4 v[60:63], v29, %s, s%d offen offset:1024 sc1" % (srd("WS"), sT1))
    A("s_mov_b64 exec, s[12:13]"); A("buffer_store_dword v60, off, %s, s%d sc1" % (srd("WS"), sT2)); A("s_mov_b64 exec, -1")
    A("L_noclean:")
    A("s_sub_u32 s%d, s%d, 6" % (sMB, sWAVE))
    A("v_mul_u32_u24 v%d, 12, v0" % vT); A("s_mul_i32 s%d, s%d, 1792" % (sT1, sMB))
    A("s_waitcnt lgkmcnt(0)")
    A("s_load_dword s%d, s[%d:%d], 0" % (sB2, sB2P, sB2P + 1))
    A("s_barrier")
    for k, n in enumerate(("W1", "B1", "W2")):
        A("buffer_load_dwordx4 %s, v%d, %s, s%d offen" % (vr(vW + 8 * k, 4), vL16, srd(n), sT1))
        A("buffer_load_dwordx3 %s, v%d, %s, s%d offen offset:1024" % (vr(vW + 8 * k + 4, 3), vT, srd(n), sT1))
    A("s_cmp_lg_u32 s%d, 7" % sWAVE); A("s_cbranch_scc1 L_noflag")
    A("s_lshr_b32 s%d, s%d, 5" % (sT3, sR)); A("s_lshl_b32 s%d, s%d, 5" % (sT3, sT3))
    A("s_mov_b64 exec, 1")
    A("s_waitcnt vmcnt(6)")
    A("buffer_atomic_add v%d, off, %s, s%d" % (vONE, srd("DBG"), sT3))
    A("s_mov_b64 exec, -1")
    stamp(4)
    A("L_noflag:")
    A("s_lshr_b32 s%d, s%d, 5" % (sT0, sR)); A("s_mul_i32 s%d, s%d, %d" % (sT0, sT0, XN_STRIDE)); A("s_add_u32 s%d, s%d, %d" % (sT0, sT0, HI)); A("v_add_u32 v%d, s%d, v%d" % (vT + 1, sT0, vL16))
    A("s_lshl_b32 s%d, s%d, 13" % (sT2, sMB)); A("s_add_u32 s%d, s%d, %d" % (sT2, sT2, HI + L_WO)); A("v_add_u32 v%d, s%d, v%d" % (vT + 2, sT2, vL16))
    A("s_and_b32 s%d, s%d, 31" % (sT0, sR)); A("s_lshl_b32 s%d, s%d, 5" % (sT0, sT0)); A("s_add_u32 s%d, s%d, s%d" % (sT0, sT0, sT2))
    A("v_lshlrev_b32 v%d, 1, v%d" % (vT + 3, vN16)); A("v_add_u32 v%d, s%d, v%d" % (vT + 3, sT0, vT + 3))
    lds_wait(F_XN, 4)
    vXm = 112
    A("ds_read_b128 %s, v%d offset:%d" % (vr(vXm, 4), vT + 1, L_XN)); A("s_waitcnt lgkmcnt(0)")
    layernorm(vXm, 4, vXm + 4, vXm + 12, vXm + 20, 1)
    A("ds_write_b128 v%d, %s" % (vT + 2, vr(vXm, 4)))
    vH = 24
    A("ds_read_u16 v%d, v%d" % (vH, vT + 3))
    A("s_waitcnt vmcnt(0) lgkmcnt(0)")
    stamp(1)
    A("v_lshlrev_b32 v%d, 16, v%d" % (vH, vH))
    for k in range(3):
        for i in range(7): unpack(vU + 14 * k + 2 * i, vU + 14 * k + 2 * i + 1, vW + 8 * k + i)
    vC0, vACC, U, T_ = 25, 26, 112, 128
    A("v_mov_b32 v%d, s%d" % (vC0, sC0))
    A("s_lshl_b32 s%d, s%d, 6" % (sT0, sMB)); A("s_add_u32 s%d, s%d, %d" % (sT0, sT0, HI + L_YP)); A("v_mov_b32 v27, s%d" % sT0)
    A("s_mov_b32 s%d, 0" % sT1)
    A("s_nop 3")
    A("L_mlp_loop:")
    A("v_readlane_b32 s%d, v%d, s%d" % (sMU, vH, sT1))
    for t in range(14): A("v_fma_f32 v%d, s%d, v%d, v%d" % (U + t, sMU, vU + t, vU + 14 + t))
    for t in range(14): A("v_mul_f32 v%d, v%d, v%d" % (T_ + t, U + t, U + t))
    for t in range(14): A("v_fma_f32 v%d, v%d, s%d, v%d" % (T_ + t, T_ + t, sC1, vC0))
    for t in range(14): A("v_mul_f32 v%d, v%d, v%d" % (T_ + t, T_ + t, U + t))
    for t in range(14):
        A("v_exp_f32 v%d, v%d" % (T_ + t, T_ + t)); A("v_mul_f32 v%d, v%d, v%d" % (U + t, U + t, vU + 28 + t))
    for t in range(14): A("v_add_f32 v%d, 1.0, v%d" % (T_ + t, T_ + t))
    for t in range(14): A("v_rcp_f32 v%d, v%d" % (T_ + t, T_ + t))
    A("v_mul_f32 v%d, v%d, v%d" % (vACC, U, T_)); A("v_mul_f32 v%d, v%d, v%d" % (U, U + 1, T_ + 1))
    for t in range(2, 14): A("v_fmac_f32 v%d, v%d, v%d" % (vACC if t & 1 else U, U + t, T_ + t))
    A("v_add_f32 v%d, v%d, v%d" % (vACC, vACC, U))
    red16(vACC, "v_add_f32"); dpp("v_add_f32", vACC, "row_bcast:15", "0xa"); dpp("v_add_f32", vACC, "row_bcast:31", "0xc")
    A("s_mov_b32 exec_lo, 0"); A("s_mov_b32 exec_hi, 0x80000000")
    A("ds_write_b32 v27, v%d" % vACC); A("v_add_u32 v27, 4, v27")
    A("s_mov_b64 exec, -1")
    A("s_add_u32 s%d, s%d, 1" % (sT1, sT1)); A("s_cmp_lt_u32 s%d, 16" % sT1); A("s_cbranch_scc1 L_mlp_loop")
    stamp(2)
    A("s_waitcnt vmcnt(0)")
    A("s_cmp_eq_u32 s%d, 7" % sWAVE); A("s_cbranch_scc1 L_final")
    sCW, sCNT, sFU = 4, 5, 12
    if tlist: reqs = [tuple(int(y) for y in x.split(":")) for x in tlist.split(",")]
    else: reqs = [(t0 + tstep * r, tamt) for r in range(MAXT // tamt)]
    assert sum(a for _, a in reqs) == MAXT and all(t <= NF + n1 + sum(a for _, a in reqs[:max(i - lag, 0)]) for i, (t, _) in enumerate(reqs))
    cw_addr(sCW); A("s_mov_b32 s%d, 0" % sCNT); A("s_mov_b32 s%d, 0" % sFU)
    A("v_lshl_add_u32 v30, v0, 2, v%d" % vHI)
    lds_wait(F_AM, 1, sl=8)
    def set_plan(sg):
        A("v_mov_b32 v%d, s%d" % (vT, sg)); one_lane("ds_write_b32 v%d, v%d offset:%d" % (vHI, vT, F_PLAN))
    def take(r):
        amt = reqs[r][1]
        A("v_readfirstlane_b32 s%d, v%d" % (sT0, 32 + r)); A("s_add_u32 s%d, s%d, 1" % (sT0, sT0))
        if force:
            f = [int(x) for x in force.split(",")]; pre = [sum(f[:i]) for i in range(4)]
            A("s_and_b32 s%d, s%d, 3" % (sT1, sR)); A("s_lshl_b32 s%d, s%d, 3" % (sT1, sT1)); A("s_lshr_b32 s%d, 0x%x, s%d" % (sT2, sum(p << (8 * i) for i, p in enumerate(f)), sT1)); A("s_and_b32 s%d, s%d, 255" % (sT2, sT2))
            A("s_lshr_b32 s%d, 0x%x, s%d" % (sT0, sum(p << (8 * i) for i, p in enumerate(pre)), sT1)); A("s_and_b32 s%d, s%d, 255" % (sT0, sT0)); A("s_add_u32 s%d, s%d, s%d" % (sT0, sT0, sCNT))
            A("s_cmp_ge_u32 s%d, s%d" % (sCNT, sT2)); A("s_cselect_b32 s%d, %d, s%d" % (sT0, POOL, sT0))
        A("s_min_u32 s%d, s%d, %d" % (sT0, sT0, POOL)); A("s_sub_u32 s%d, %d, s%d" % (sT1, POOL, sT0)); A("s_min_u32 s%d, s%d, %d" % (sT1, sT1, amt))
        A("v_add_u32 v%d, s%d, v0" % (vT, sT0)); A("s_lshl_b32 s%d, s%d, 2" % (sT2, sCNT)); A("v_add_u32 v%d, s%d, v30" % (vT + 1, sT2))
        A("s_mov_b64 exec, %d" % ((1 << amt) - 1)); A("ds_write_b32 v%d, v%d offset:%d" % (vT + 1, vT, F_PLAN + 4)); A("s_mov_b64 exec, -1")
        A("s_add_u32 s%d, s%d, s%d" % (sCNT, sCNT, sT1))
        A("s_cmp_lt_u32 s%d, %d" % (sT1, amt)); A("s_cbranch_scc1 L_close")
        if r < len(reqs) - 1: set_plan(sCNT)
    for r, (thr, amt) in enumerate(reqs):
        lds_wait(F_FULL, thr, keep=sFU, sl=2)
        A("v_mov_b32 v%d, %d" % (32 + r, amt))
        if not noat: one_lane("buffer_atomic_add v%d, off, %s, s%d sc0" % (32 + r, srd("WS"), sCW))
        if r == 0: stamp(3)
        if r >= lag:
            A("s_waitcnt vmcnt(%d)" % lag); take(r - lag)
    for r in range(max(len(reqs) - lag, 0), len(reqs)):
        A("s_waitcnt vmcnt(%d)" % (len(reqs) - 1 - r)); take(r)
    A("L_close:")
    A("s_add_u32 s%d, s%d, 0x100" % (sCNT, sCNT)); set_plan(sCNT)
    stamp(4)
    A("s_waitcnt vmcnt(0)")
    A("s_mov_b32 s%d, 3" % sMU)
    A("s_branch L_gather56")
    A("L_final:")
    A("v_and_b32 v%d, 7, v0" % (vT + 1)); A("v_lshrrev_b32 v%d, 5, v0" % (vT + 2)); A("v_lshl_add_u32 v%d, v%d, 1, v%d" % (vT + 1, vT + 1, vT + 2))
    A("v_lshlrev_b32 v%d, 1, v%d" % (vT + 2, vT + 1)); A("s_lshl_b32 s12, s%d, 5" % sR)
    A("buffer_load_ushort v%d, v%d, %s, s12 offen" % (vT + 3, vT + 2, srd("X")))
    A("v_lshl_add_u32 v%d, v%d, 2, v%d" % (vT + 1, vT + 1, vHI))
    A("v_lshrrev_b32 v%d, 3, v0" % (vT + 4)); A("v_lshlrev_b32 v%d, 10, v%d" % (vT + 4, vT + 4)); A("v_and_b32 v%d, 7, v0" % (vT + 5)); A("v_lshl_add_u32 v%d, v%d, 4, v%d" % (vT + 4, vT + 5, vT + 4))
    A("s_lshr_b32 s%d, s%d, 3" % (sT0, sR)); A("s_lshl_b32 s%d, s%d, 17" % (sT0, sT0)); A("s_and_b32 s%d, s%d, 7" % (sT1, sR)); A("s_lshl_b32 s%d, s%d, 7" % (sT1, sT1))
    A("s_add_u32 s%d, s%d, s%d" % (sT0, sT0, sT1))
    wait_near_end(wotrig, 2)
    for a in range(16):
        A("s_mov_b32 m0, %d" % (HI + L_WO + a * 1024))
        A("buffer_load_dwordx4 v%d, %s, s%d offen %s lds" % (vT + 4, srd("WO"), sT0, pol))
        if a < 15: A("s_add_u32 s%d, s%d, 0x2000" % (sT0, sT0))
    A("s_mov_b32 s%d, s12" % sT0); A("s_lshl_b32 s%d, s%d, %d" % (sT1, sR, 11)); A("s_add_u32 s%d, s%d, 0x%x" % (sT1, sT1, WS_SP))
    A("s_waitcnt lgkmcnt(0)")
    A("s_barrier")
    stamp(8)
    A("ds_read_b32 v40, v%d offset:%d" % (vT + 1, L_YP)); A("ds_read_b32 v41, v%d offset:%d" % (vT + 1, L_YP + 64)); A("s_waitcnt lgkmcnt(0)")
    A("v_add_f32 v40, v40, v41"); rbf(40)
    A("s_lshl_b32 s%d, s%d, 16" % (sB2, sB2)); A("v_add_f32 v40, s%d, v40" % sB2); rbf(40)
    A("v_mul_f32 v41, s%d, v40" % sL2E); A("v_exp_f32 v41, -v41"); A("v_add_f32 v41, 1.0, v41"); A("v_rcp_f32 v41, v41"); A("v_mul_f32 v40, v40, v41"); rbf(40)
    A("s_waitcnt vmcnt(0)"); A("v_lshlrev_b32 v%d, 16, v%d" % (vT + 3, vT + 3))
    one_lane("ds_write_b32 v%d, v%d offset:%d" % (vHI, vONE, F_WO))
    stamp(11)
    A("s_barrier")
    stamp(9)
    if td2: A("s_sleep %d" % td2)
    A("v_lshlrev_b32 v29, 3, v0")
    apoll(32, 29, sT1, 44, tsleep)
    stamp(10)
    A("v_add_f32 v44, v32, v34"); A("v_add_f32 v45, v33, v35"); A("v_add_f32 v46, v36, v38"); A("v_add_f32 v47, v37, v39")
    A("v_add_f32 v44, v44, v46"); A("v_add_f32 v45, v45, v47")
    A("v_permlane32_swap_b32 v44, v45"); A("v_add_f32 v44, v44, v45")
    swap_red(44, 45, "v_add_f32", 16)
    dpp("v_add_f32", 44, "row_ror:8")
    rbf(44); A("v_mul_f32 v44, v44, v40"); rbf(44)
    A("v_add_f32 v44, v44, v%d" % (vT + 3)); A("v_cvt_pk_bf16_f32 v44, v44, v44")
    A("s_mov_b32 exec_lo, 0xff"); A("s_mov_b32 exec_hi, 0xff")
    A("buffer_store_short v44, v%d, %s, s%d offen" % (vT + 2, srd("OUT"), sT0))
    A("s_mov_b64 exec, -1")
    A("s_cmp_lg_u32 s%d, 0" % sR); A("s_cbranch_scc1 L_done")
    epoch()
    A("v_mov_b32 v30, s%d" % sEP); A("v_mov_b32 v31, s%d" % (sEP + 1))
    one_lane("buffer_store_dwordx2 v[30:31], off, %s, 0 offset:%d sc1" % (srd("WS"), WS_EP))
    A("L_done:")
    A("s_waitcnt vmcnt(0)")
    if stamps:
        stamp(NST - 1)
        A("s_waitcnt lgkmcnt(0)")
        A("s_lshl_b32 s%d, s2, 3" % sT0); A("s_add_u32 s%d, s%d, s%d" % (sT0, sT0, sWAVE)); A("s_mul_i32 s%d, s%d, %d" % (sT0, sT0, NST * 8)); A("s_add_u32 s%d, s%d, 0x%x" % (sT0, sT0, WS_STAMP))
        A("s_mov_b64 exec, 1")
        for k in range(NST):
            A("v_mov_b32 v2, s%d" % (16 + 2 * k)); A("v_mov_b32 v3, s%d" % (17 + 2 * k))
            A("buffer_store_dwordx2 v[2:3], off, %s, s%d offset:%d" % (srd("WS"), sT0, k * 8)); A("s_nop 1")
    A("L_end:")
    A("s_endpgm")
    body = A.finalize()
    hdr = open("recurrent_scan__gqa_block_cached__mixer_token_mlp__decode.s.ref").read().split("; Override launch")[0]
    s = hdr + "; @launch grid=(256,1,1) block=(512,1,1) lds=%d\n" % LDS_BYTES
    s += '.amdgcn_target "amdgcn-amd-amdhsa--gfx950"\n.text\n.globl %s\n.p2align 8\n.type %s,@function\n%s:\n' % (NAME, NAME, NAME)
    s += body
    s += '.section .rodata,"a"\n.p2align 6\n.amdhsa_kernel %s\n  .amdhsa_next_free_vgpr 256\n  .amdhsa_next_free_sgpr 102\n  .amdhsa_accum_offset 256\n' % NAME
    s += "  .amdhsa_group_segment_fixed_size 0\n  .amdhsa_kernarg_size 104\n  .amdhsa_user_sgpr_count 2\n  .amdhsa_user_sgpr_kernarg_segment_ptr 1\n  .amdhsa_system_sgpr_workgroup_id_x 1\n.end_amdhsa_kernel\n"
    return s, A

if __name__ == "__main__":
    out = sys.argv[1]
    kw = {}
    for p in sys.argv[2:]:
        k, v = p.split("=")
        kw[k] = int(v) if v.lstrip("-").isdigit() else v.replace("+", " ")
    s, A = gen(**kw)
    open(out, "w").write(s)
    print("wrote", out, "instructions", len(A.ins), "nops", A.nops, "lds", LDS_BYTES)
```

```python
import sys, struct
from asmlib import Asm

NAME = "recurrent_scan__gqa_block_cached__mixer_token_mlp__decode_kernel"
def f2u(x): return struct.unpack("<I", struct.pack("<f", x))[0]

WS_ST, WS_OP, WS_SP, WS_Q, WS_EP = 0x10000, 0x20000, 0x100000, 0x60000, 0x0
WS_PG = 0x90000
WS_CW, WS_PR = 0x80000, 0x200000
EP_STEP = 0x9E3779B97F4A7C15
WS_STAMP = 128 << 20
HI = 131072
L_WO = 0
L_XN, XN_STRIDE = 16384, 1040
L_OW = L_XN
L_QP = 24704
L_QB = 28800
L_FLG = 29824
L_ST = L_FLG + 64
L_GS = L_ST + 128
L_YP = L_GS + 32
LDS_BYTES = HI + L_YP + 128
F_FULL, F_FREED, F_XN, F_QP, F_QR, F_ST, F_GR, F_WO, F_AM, F_PLAN, F_LI, F_MODE = [L_FLG + 4 * i for i in (0, 4, 8, 9, 10, 11, 12, 13, 14, 1, 15, 2)]
L_PP = L_QP

sWAVE, sBASE, sOFF = 3, 4, 5
sT0, sT1, sT2 = 6, 7, 8
sR, sSPIN, sT3 = 9, 10, 11
sMU, sMB = 14, 15
SRD = dict(K=44, V=48, X=52, WQ=56, WO=60, W1=64, B1=68, W2=72, OUT=76, DBG=80, WS=84)
KARG = dict(X=0, K=8, V=16, WQ=24, WO=32, W1=48, B1=56, W2=64, OUT=80, DBG=88, WS=96)
SIZE = dict(X=8192, K=1 << 26, V=1 << 26, WQ=1 << 22, WO=1 << 22, W1=3584, B1=3584, W2=3584, OUT=8192, DBG=256, WS=1 << 28)
sSELLO, sSELHI, sMASK, sSCALE, sL2E, sC0, sC1, sB2, sB2P = 88, 89, 90, 91, 92, 93, 94, 95, 96
sOPOFF, sSPOFF, sSTOFF, sFULL = 98, 99, 100, 101
def srd(n): return "s[%d:%d]" % (SRD[n], SRD[n] + 3)
def vr(a, n=1): return "v%d" % a if n == 1 else "v[%d:%d]" % (a, a + n - 1)
vL16, vG4, vC4, vR4, vN16, vHI, vONE = 1, 2, 3, 4, 5, 6, 7
vT = 8
vPOLL = 16

def gen(F=4, stamps=0, pol="nt", spin=1 << 17, lspin=1 << 22, mimic=1, pre=0, lsleep=1, ldprio=3, fsleep=8, qsleep=2, ssleep=8, tsleep=0, xmap=1, polq=None, polo=None, ldst=0, abl='', rot=0, pad=0, P1=1, P2=1, pd=5, qmap=0, tl='sc1', ts='sc1', tsleep2=None, Fhi=0, himask=0xf8, hiend=16, spad=0, at2=1, td2=8, td1=0, at1=0, qdelay=0, sdelay=0, qtrig=8, strig=48, bshift=0, wolate=2, wqsplit=0, wotrig=60, D=0, DV=0, probe=0, steal=0, cth=23, cllate=0, bias=0, rtrig=48, p_a=-1, p_b=-1, pspan=0, pstart=0, bal=0, Flo=2, bthr=0, bper=8, bstop=58, bmin=0, pm=0, pval=0):
    NOWN = 5 if steal else 8
    sPLAN = 13
    DV = DV if DV else D
    tsleep2 = tsleep if tsleep2 is None else tsleep2
    polq = pol if polq is None else polq.replace('def', '')
    polo = pol if polo is None else polo.replace('def', '')
    A = Asm()
    NST = 14
    def stamp(k):
        if stamps: A("s_memrealtime s[%d:%d]" % (16 + 2 * k, 17 + 2 * k))
    QUADS = ("quad_perm:[1,0,3,2]", "quad_perm:[2,3,0,1]", "row_half_mirror", "row_mirror")
    def dpp(op, v, m, rm="0xf"): A("%s_dpp v%d, v%d, v%d %s row_mask:%s bank_mask:0xf" % (op, v, v, v, m, rm))
    def red16(v, op):
        for m in QUADS: dpp(op, v, m)
    def swap_red(v, t, op, which):
        A("v_mov_b32 v%d, v%d" % (t, v)); A("v_permlane%d_swap_b32 v%d, v%d" % (which, v, t)); A("%s v%d, v%d, v%d" % (op, v, v, t))
    def rbf(v):
        A("v_cvt_pk_bf16_f32 v%d, v%d, v%d" % (v, v, v)); A("v_lshlrev_b32 v%d, 16, v%d" % (v, v))
    def unpack(dlo, dhi, src):
        A("v_lshlrev_b32 v%d, 16, v%d" % (dlo, src)); A("v_and_b32 v%d, s%d, v%d" % (dhi, sMASK, src))
    def layernorm(pk, n, x, d, t, halves):
        def allred(v):
            red16(v, "v_add_f32"); swap_red(v, t + 2, "v_add_f32", 16)
            if halves == 1: swap_red(v, t + 2, "v_add_f32", 32)
        for i in range(n): unpack(x + 2 * i, x + 2 * i + 1, pk + i)
        A("v_add_f32 v%d, v%d, v%d" % (t, x, x + 1)); A("v_add_f32 v%d, v%d, v%d" % (t + 1, x + 2, x + 3))
        for i in range(4, 2 * n): A("v_add_f32 v%d, v%d, v%d" % (t + (i & 1), t + (i & 1), x + i))
        A("v_add_f32 v%d, v%d, v%d" % (t, t, t + 1))
        allred(t)
        A("v_mul_f32 v%d, 0x3b000000, v%d" % (t, t))
        A("v_cvt_pk_bf16_f32 v%d, v%d, v%d" % (t + 1, t, t))
        for i in range(2 * n): A("v_sub_f32 v%d, v%d, v%d" % (d + i, x + i, t))
        A("v_lshlrev_b32 v%d, 16, v%d" % (t + 1, t + 1))
        A("v_mul_f32 v%d, v%d, v%d" % (t, d, d)); A("v_mul_f32 v%d, v%d, v%d" % (d, d + 1, d + 1))
        for i in range(2, 2 * n): A("v_fmac_f32 v%d, v%d, v%d" % (t if i & 1 else d, d + i, d + i))
        A("v_add_f32 v%d, v%d, v%d" % (t, t, d))
        for i in range(2 * n): A("v_sub_f32 v%d, v%d, v%d" % (x + i, x + i, t + 1))
        allred(t)
        for i in range(n): A("v_cvt_pk_bf16_f32 v%d, v%d, v%d" % (pk + i, x + 2 * i, x + 2 * i + 1))
        A("v_mul_f32 v%d, 0x3b000000, v%d" % (t, t)); rbf(t)
        A("v_add_f32 v%d, 0x%x, v%d" % (t, f2u(1e-5), t)); rbf(t)
        A("v_sqrt_f32 v%d, v%d" % (t, t)); rbf(t)
        A("v_rcp_f32 v%d, v%d" % (t, t))
        for i in range(n): unpack(x + 2 * i, x + 2 * i + 1, pk + i)
        for i in range(2 * n): A("v_mul_f32 v%d, v%d, v%d" % (x + i, t, x + i))
        for i in range(n): A("v_cvt_pk_bf16_f32 v%d, v%d, v%d" % (pk + i, x + 2 * i, x + 2 * i + 1))
    def lds_wait(flag, val, keep=None, sl=None):
        ok = A.label("lok"); again = A.label("lagain")
        dst = keep if keep is not None else sT3
        if keep is not None:
            A("s_cmp_ge_u32 s%d, %s" % (keep, val)); A("s_cbranch_scc1 " + ok)
        A("s_mov_b32 s%d, 0" % sSPIN)
        A(again + ":")
        A("ds_read_b32 v%d, v%d offset:%d" % (vPOLL, vHI, flag)); A("s_waitcnt lgkmcnt(0)")
        A("v_readfirstlane_b32 s%d, v%d" % (dst, vPOLL))
        A("s_cmp_ge_u32 s%d, %s" % (dst, val)); A("s_cbranch_scc1 " + ok)
        if sl is None: sl = lsleep
        if sl: A("s_sleep %d" % sl)
        A("s_add_u32 s%d, s%d, 1" % (sSPIN, sSPIN)); A("s_cmp_lt_u32 s%d, %d" % (sSPIN, lspin)); A("s_cbranch_scc1 " + again)
        A(ok + ":")
    def lds_add(flag_addr_reg, off):
        A("s_waitcnt lgkmcnt(0)")
        A("s_mov_b64 exec, 1"); A("ds_add_u32 v%d, v%d offset:%d" % (flag_addr_reg, vONE, off)); A("s_mov_b64 exec, -1")
    def gpoll(loads, first=True, sleep=0, full="-1", tag=None, P=1):
        ok = A.label("ok"); again = A.label("again")
        masks = ["vcc", "s[12:13]"]
        A("s_mov_b32 s%d, 0" % sSPIN)
        if first:
            for issue, regs in loads: issue()
        for _ in range(P - 1):
            A("s_sleep %d" % pd)
            for issue, regs in loads: issue()
        A(again + ":")
        A("s_waitcnt vmcnt(%d)" % (len(loads) * (P - 1)))
        for (issue, regs), mk in zip(loads, masks):
            t = vT + 7
            if tag is not None:
                A("v_cmp_ne_u64 %s, %s, v[%d:%d]" % (mk, tag, regs[2], regs[3])); continue
            if len(regs) == 2: A("v_max_u32 v%d, v%d, v%d" % (t, regs[0], regs[1]))
            else:
                A("v_max3_u32 v%d, v%d, v%d, v%d" % (t, regs[0], regs[1], regs[2])); A("v_max_u32 v%d, v%d, v%d" % (t, t, regs[3]))
            A("v_cmp_eq_u32 %s, -1, v%d" % (mk, t))
        if len(loads) == 2:
            A("s_or_b32 s%d, vcc_lo, vcc_hi" % sT3); A("s_or_b32 s%d, s%d, s12" % (sT3, sT3)); A("s_or_b32 s%d, s%d, s13" % (sT3, sT3))
        else:
            A("s_or_b32 s%d, vcc_lo, vcc_hi" % sT3)
        A("s_cbranch_scc0 " + ok)
        if sleep: A("s_sleep %d" % sleep)
        for (issue, regs), mk in zip(loads, masks):
            A("s_mov_b64 exec, %s" % mk); issue()
        if full == "PARTIAL": A("s_mov_b32 exec_lo, -1"); A("s_mov_b32 exec_hi, 0x1ffff")
        else: A("s_mov_b64 exec, %s" % full)
        A("s_add_u32 s%d, s%d, 1" % (sSPIN, sSPIN)); A("s_cmp_lt_u32 s%d, %d" % (sSPIN, spin)); A("s_cbranch_scc1 " + again)
        A("s_waitcnt vmcnt(0)")
        A(ok + ":")
    def apoll(vd, vaddr, soff, vtmp, sleep, first=True):
        ms = ["vcc", "s[12:13]", "s[88:89]", "s[90:91]"]
        ok = A.label("aok"); again = A.label("aagain")
        def iss(k):
            A("v_mov_b32 v%d, 0" % (vd + 2 * k)); A("v_mov_b32 v%d, 0" % (vd + 1 + 2 * k))
            A("buffer_atomic_or_x2 v[%d:%d], v%d, %s, s%d offen offset:%d sc0" % (vd + 2 * k, vd + 1 + 2 * k, vaddr, srd("WS"), soff, 512 * k))
        if first == "only":
            for k in range(4): iss(k)
            return
        A("s_mov_b32 s%d, 0" % sSPIN)
        if first:
            for k in range(4): iss(k)
        A(again + ":")
        A("s_waitcnt vmcnt(0)")
        for k in range(4): A("v_max_u32 v%d, v%d, v%d" % (vtmp + k, vd + 2 * k, vd + 1 + 2 * k))
        for k in range(4): A("v_cmp_eq_u32 %s, -1, v%d" % (ms[k], vtmp + k))
        A("s_or_b64 s[92:93], vcc, s[12:13]"); A("s_or_b64 s[94:95], s[88:89], s[90:91]"); A("s_or_b64 s[92:93], s[92:93], s[94:95]")
        A("s_cbranch_scc0 " + ok)
        if sleep: A("s_sleep %d" % sleep)
        for k in range(4):
            A("s_mov_b64 exec, %s" % ms[k]); iss(k)
        A("s_mov_b64 exec, -1")
        A("s_add_u32 s%d, s%d, 1" % (sSPIN, sSPIN)); A("s_cmp_lt_u32 s%d, %d" % (sSPIN, spin)); A("s_cbranch_scc1 " + again)
        A("s_waitcnt vmcnt(0)")
        A(ok + ":")
    def word_poll(load, vd, lanes, cmp, sleep):
        ok = A.label("fok"); again = A.label("fagain")
        A("s_mov_b32 s%d, 0" % sSPIN); A("s_mov_b64 exec, %s" % lanes)
        A(again + ":")
        A(load)
        A("s_waitcnt vmcnt(0)")
        A(cmp % vd)
        A("s_cmp_eq_u64 vcc, 0"); A("s_cbranch_scc1 " + ok)
        if sleep: A("s_sleep %d" % sleep)
        A("s_add_u32 s%d, s%d, 1" % (sSPIN, sSPIN)); A("s_cmp_lt_u32 s%d, %d" % (sSPIN, spin)); A("s_cbranch_scc1 " + again)
        A(ok + ":")
        A("s_mov_b64 exec, -1")

    A("s_cmp_ge_u32 s2, 256"); A("s_cbranch_scc1 L_end")
    if stamps:
        for k in range(1, NST): A("s_mov_b64 s[%d:%d], 0" % (16 + 2 * k, 17 + 2 * k))
    stamp(0)
    if (pad or p_b >= 0 or pspan or pstart) and not stamps: A("s_memrealtime s[16:17]")
    for n in ("K", "X", "WQ", "WS", "V", "WO", "W1", "B1", "W2", "DBG", "OUT"):
        A("s_load_dwordx2 s[%d:%d], s[0:1], %d" % (SRD[n], SRD[n] + 1, KARG[n]))
    A("s_load_dwordx2 s[%d:%d], s[0:1], 72" % (sB2P, sB2P + 1))
    A("v_lshrrev_b32 v1, 6, v0"); A("v_and_b32 v0, 63, v0"); A("v_readfirstlane_b32 s%d, v1" % sWAVE)
    for n in SRD:
        A("s_mov_b32 s%d, 0x%x" % (SRD[n] + 2, SIZE[n])); A("s_mov_b32 s%d, 0x20000" % (SRD[n] + 3))
    if xmap == 0:
        A("s_and_b32 s%d, s2, 7" % sR); A("s_lshl_b32 s%d, s%d, 5" % (sR, sR)); A("s_lshr_b32 s%d, s2, 3" % sT0); A("s_add_u32 s%d, s%d, s%d" % (sR, sR, sT0))
    elif xmap >= 8:
        A("s_bfe_u32 s%d, s2, 0x10003" % sT0); A("s_bfe_u32 s%d, s2, 0x10004" % sT1); A("s_lshl_b32 s%d, s%d, 2" % (sT1, sT1)); A("s_add_u32 s%d, s%d, s%d" % (sT0, sT0, sT1))
        if xmap == 9: A("s_lshr_b32 s%d, s2, 5" % sT1); A("s_add_u32 s%d, s%d, s%d" % (sT0, sT0, sT1))
        A("s_sub_u32 s%d, s2, s%d" % (sR, sT0))
        A("s_and_b32 s%d, s%d, 7" % (sR, sR)); A("s_lshl_b32 s%d, s%d, 2" % (sR, sR)); A("s_and_b32 s%d, s2, 0xe0" % sT0); A("s_add_u32 s%d, s%d, s%d" % (sR, sR, sT0))
        A("s_bfe_u32 s%d, s2, 0x20003" % sT0); A("s_add_u32 s%d, s%d, s%d" % (sR, sR, sT0))
    elif xmap >= 4:
        A("s_lshr_b32 s%d, s2, 1" % sT0); A("s_xor_b32 s%d, s%d, s2" % (sT0, sT0)); A("s_and_b32 s%d, s%d, 1" % (sT0, sT0)); A("s_lshl_b32 s%d, s%d, 3" % (sT0, sT0))
        A("s_and_b32 s%d, s2, 4" % sT1); A("s_lshl_b32 s%d, s%d, 2" % (sT1, sT1)); A("s_add_u32 s%d, s%d, s%d" % (sT0, sT0, sT1))
        A("s_bfe_u32 s%d, s2, 0x10003" % sT1); A("s_lshl_b32 s%d, s%d, 2" % (sT1, sT1)); A("s_add_u32 s%d, s%d, s%d" % (sT0, sT0, sT1))
        A("s_and_b32 s%d, s2, 0xe0" % sR); A("s_add_u32 s%d, s%d, s%d" % (sR, sR, sT0))
        if xmap == 6:
            A("s_lshr_b32 s%d, s2, 5" % sT0); A("s_xor_b32 s%d, s%d, s2" % (sT0, sT0)); A("s_and_b32 s%d, s%d, 1" % (sT0, sT0))
        elif xmap == 7:
            A("s_lshr_b32 s%d, s2, 3" % sT0); A("s_xor_b32 s%d, s%d, s2" % (sT0, sT0)); A("s_and_b32 s%d, s%d, 1" % (sT0, sT0))
        else: A("s_and_b32 s%d, s2, 1" % sT0)
        A("s_bfe_u32 s%d, s2, 0x10004" % sT1)
        A("s_lshl_b32 s%d, s%d, 1" % ((sT0, sT0) if xmap != 5 else (sT1, sT1)))
        A("s_add_u32 s%d, s%d, s%d" % (sR, sR, sT0)); A("s_add_u32 s%d, s%d, s%d" % (sR, sR, sT1))
    else:
        if xmap == 2:
            A("s_lshr_b32 s%d, s2, 5" % sT0); A("s_add_u32 s%d, s2, s%d" % (sR, sT0))
        elif xmap == 3:
            A("s_bfe_u32 s%d, s2, 0x20003" % sT0); A("s_lshl_b32 s%d, s%d, 1" % (sT0, sT0)); A("s_add_u32 s%d, s2, s%d" % (sR, sT0))
        else: A("s_add_u32 s%d, s2, %d" % (sR, bshift))
        A("s_and_b32 s%d, s%d, 7" % (sR, sR)); A("s_lshl_b32 s%d, s%d, 2" % (sR, sR)); A("s_and_b32 s%d, s2, 0xe0" % sT0); A("s_add_u32 s%d, s%d, s%d" % (sR, sR, sT0))
        A("s_bfe_u32 s%d, s2, 0x20003" % sT0); A("s_add_u32 s%d, s%d, s%d" % (sR, sR, sT0))
    sRQ = sMB
    if xmap >= 4:
        A("s_and_b32 s%d, s2, 7" % sRQ); A("s_lshl_b32 s%d, s%d, 2" % (sRQ, sRQ)); A("s_and_b32 s%d, s2, 0xe0" % sT0); A("s_add_u32 s%d, s%d, s%d" % (sRQ, sRQ, sT0))
        A("s_bfe_u32 s%d, s2, 0x20003" % sT0); A("s_add_u32 s%d, s%d, s%d" % (sRQ, sRQ, sT0))
    elif qmap == 0: A("s_mov_b32 s%d, s%d" % (sRQ, sR))
    elif qmap == 1:
        A("s_and_b32 s%d, s2, 7" % sRQ); A("s_lshl_b32 s%d, s%d, 5" % (sRQ, sRQ)); A("s_lshr_b32 s%d, s2, 3" % sT0); A("s_add_u32 s%d, s%d, s%d" % (sRQ, sRQ, sT0))
    elif qmap == 2:
        A("s_lshr_b32 s%d, s%d, 3" % (sT0, sR)); A("s_and_b32 s%d, s%d, 0x1c" % (sT0, sT0)); A("s_add_u32 s%d, s%d, s%d" % (sT0, sT0, sR)); A("s_and_b32 s%d, s%d, 0x1c" % (sT0, sT0))
        A("s_and_b32 s%d, s%d, 0xe3" % (sRQ, sR)); A("s_or_b32 s%d, s%d, s%d" % (sRQ, sRQ, sT0))
    elif qmap == 4:
        A("s_lshr_b32 s%d, s%d, 5" % (sT0, sR)); A("s_lshl_b32 s%d, s%d, 1" % (sT0, sT0)); A("s_bfe_u32 s%d, s%d, 0x10001" % (sT1, sR)); A("s_add_u32 s%d, s%d, s%d" % (sT0, sT0, sT1))
        A("s_lshr_b32 s%d, s%d, 2" % (sT1, sT0)); A("s_lshl_b32 s%d, s%d, 1" % (sT1, sT1)); A("s_bfe_u32 s%d, s%d, 0x30002" % (sT2, sR)); A("s_add_u32 s%d, s%d, s%d" % (sT1, sT1, sT2))
        A("s_and_b32 s%d, s%d, 7" % (sT1, sT1)); A("s_lshl_b32 s%d, s%d, 3" % (sT0, sT0)); A("s_add_u32 s%d, s%d, s%d" % (sT0, sT0, sT1)); A("s_lshl_b32 s%d, s%d, 1" % (sT0, sT0))
        A("s_and_b32 s%d, s%d, 1" % (sT1, sR)); A("s_add_u32 s%d, s%d, s%d" % (sRQ, sT0, sT1))
    A("v_lshlrev_b32 v%d, 4, v0" % vL16); A("v_lshrrev_b32 v%d, 4, v0" % vG4); A("v_bfe_u32 v%d, v0, 2, 2" % vC4)
    A("v_and_b32 v%d, 3, v0" % vR4); A("v_and_b32 v%d, 15, v0" % vN16); A("v_mov_b32 v%d, 0x%x" % (vHI, HI)); A("v_mov_b32 v%d, 1" % vONE)
    A("s_mov_b32 s%d, 0x05040100" % sSELLO); A("s_mov_b32 s%d, 0x07060302" % sSELHI); A("s_mov_b32 s%d, 0xffff0000" % sMASK)
    A("s_mov_b32 s%d, 0x%x" % (sSCALE, f2u(128 ** -0.5))); A("s_mov_b32 s%d, 0x%x" % (sL2E, f2u(1.4426950408889634)))
    c0 = -2.0 * 0.7978845608028654 * 1.4426950408889634
    A("s_mov_b32 s%d, 0x%x" % (sC0, f2u(c0))); A("s_mov_b32 s%d, 0x%x" % (sC1, f2u(c0 * 0.044715)))
    A("s_lshr_b32 s%d, s%d, 5" % (sT0, sR)); A("s_lshl_b32 s%d, s%d, 15" % (sT0, sT0))
    A("s_and_b32 s%d, s%d, 31" % (sT1, sR)); A("s_lshl_b32 s%d, s%d, 8" % (sT1, sT1)); A("s_add_u32 s%d, s%d, s%d" % (sT0, sT0, sT1))
    A("s_add_u32 s%d, s%d, 0x%x" % (sOPOFF, sT0, WS_OP))
    A("s_and_b32 s%d, s%d, 7" % (sT0, sR)); A("s_lshl_b32 s%d, s%d, %d" % (sT0, sT0, 13 + spad))
    A("s_lshr_b32 s%d, s%d, 3" % (sT1, sR)); A("s_lshl_b32 s%d, s%d, %d" % (sT1, sT1, 6 + spad)); A("s_add_u32 s%d, s%d, s%d" % (sT0, sT0, sT1))
    A("s_add_u32 s%d, s%d, 0x%x" % (sSPOFF, sT0, WS_SP))
    A("s_lshr_b32 s%d, s%d, 2" % (sT0, sR)); A("s_lshl_b32 s%d, s%d, 7" % (sT0, sT0)); A("s_add_u32 s%d, s%d, 0x%x" % (sSTOFF, sT0, WS_ST))
    A("s_cmp_eq_u32 s%d, 4" % sWAVE); A("s_cbranch_scc1 L_loader")
    A("s_cmp_eq_u32 s%d, 5" % sWAVE); A("s_cbranch_scc1 L_comm")
    A("s_cmp_gt_u32 s%d, 5" % sWAVE); A("s_cbranch_scc1 L_mlp")

    vQ, vS, vTMP, vK = 32, 48, 112, 128
    vKA, vVA = 17, 17
    vM, vLs, vMO, vF, vOWA = 25, 26, 27, 28, 29
    vX = vS
    A("v_lshlrev_b32 v%d, 5, v0" % vT)
    A("v_lshrrev_b32 v%d, 1, v0" % (vT + 1)); A("v_lshlrev_b32 v%d, 13, v%d" % (vT + 1, vT + 1))
    A("v_and_b32 v%d, 1, v0" % (vT + 2)); A("v_lshl_add_u32 v%d, v%d, 4, v%d" % (vT + 1, vT + 2, vT + 1))
    A("s_lshl_b32 s%d, s%d, 11" % (sT2, sWAVE))
    A("s_lshl_b32 s%d, s%d, 20" % (sT0, sWAVE)); A("s_lshl_b32 s%d, s%d, 5" % (sT1, sRQ)); A("s_add_u32 s%d, s%d, s%d" % (sT0, sT0, sT1))
    A("s_lshl_b32 s%d, s%d, 13" % (sT1, sWAVE)); A("s_add_u32 s%d, s%d, %d" % (sT1, sT1, 12 * 8192))
    A("s_waitcnt lgkmcnt(0)")
    if ldst == 2: stamp(12)
    A("buffer_load_dwordx4 %s, v%d, %s, s%d offen" % (vr(vX, 4), vT, srd("X"), sT2))
    A("buffer_load_dwordx4 %s, v%d, %s, s%d offen offset:16" % (vr(vX + 4, 4), vT, srd("X"), sT2))
    nq0 = wqsplit if wqsplit else 4
    for a in range(nq0):
        A("s_add_u32 m0, s%d, %d" % (sT1, a * 1024))
        if 'q' in abl: A("buffer_load_dwordx4 v%d, %s, 0 offen lds" % (vL16, srd("X")))
        else: A("buffer_load_dwordx4 v%d, %s, s%d offen %s lds" % (vT + 1, srd("WQ"), sT0, polq))
        if a < 3: A("s_add_u32 s%d, s%d, 0x40000" % (sT0, sT0))
    if nq0 < 4: A("v_mov_b32 v31, v%d" % (vT + 1)); A("s_mov_b32 s12, s%d" % sT0)
    A("s_barrier")
    A("v_lshrrev_b32 v%d, 5, v0" % (vT + 3)); A("s_lshl_b32 s%d, s%d, 1" % (sT0, sWAVE)); A("v_add_u32 v%d, s%d, v%d" % (vT + 3, sT0, vT + 3))
    A("v_mul_u32_u24 v%d, %d, v%d" % (vT + 3, XN_STRIDE, vT + 3)); A("v_and_b32 v%d, 31, v0" % (vT + 4)); A("v_lshl_add_u32 v%d, v%d, 5, v%d" % (vT + 3, vT + 4, vT + 3))
    A("v_add_u32 v%d, v%d, v%d" % (vT + 3, vHI, vT + 3))
    A("v_and_b32 v%d, 7, v0" % (vT + 4)); A("v_mul_u32_u24 v%d, %d, v%d" % (vT + 4, XN_STRIDE, vT + 4)); A("v_lshl_add_u32 v%d, v%d, 4, v%d" % (vT + 4, vG4, vT + 4))
    A("s_lshl_b32 s%d, s%d, 8" % (sT0, sWAVE)); A("s_add_u32 s%d, s%d, %d" % (sT0, sT0, HI)); A("v_add_u32 v%d, s%d, v%d" % (vT + 4, sT0, vT + 4))
    A("v_lshlrev_b32 v%d, 8, v%d" % (vT + 5, vG4)); A("v_lshl_add_u32 v%d, v%d, 3, v%d" % (vT + 5, vN16, vT + 5)); A("v_add_u32 v%d, s%d, v%d" % (vT + 5, sT1, vT + 5))
    A("s_lshl_b32 s%d, s%d, 10" % (sT0, sWAVE)); A("s_add_u32 s%d, s%d, %d" % (sT0, sT0, HI)); A("v_add_u32 v%d, s%d, v%d" % (vT + 6, sT0, vL16))
    A("s_lshl_b32 s%d, s%d, 13" % (sT0, sWAVE)); A("v_lshlrev_b32 v%d, 8, v%d" % (vT, vN16)); A("v_add_u32 v%d, s%d, v%d" % (vT, sT0, vT))
    for m in range(4):
        A("v_add_u32 v%d, %d, v%d" % (vT + 1, 4 * m, vG4)); A("v_xor_b32 v%d, v%d, v%d" % (vT + 1, vT + 1, vN16))
        A("v_lshl_add_u32 v%d, v%d, 4, v%d" % (vKA + m, vT + 1, vT)); A("v_add_u32 v%d, 0x10000, v%d" % (vKA + 4 + m, vKA + m))
    A("s_lshl_b32 s%d, s%d, 2" % (sT0, sWAVE)); A("s_add_u32 s%d, s%d, %d" % (sT0, sT0, HI)); A("v_mov_b32 v%d, s%d" % (30, sT0))
    A("s_mov_b32 s%d, 0" % sFULL)
    A("s_waitcnt vmcnt(%d)" % nq0)
    for a in range(nq0, 4):
        A("s_add_u32 m0, s%d, %d" % (sT1, a * 1024))
        A("buffer_load_dwordx4 v31, %s, s12 offen %s lds" % (srd("WQ"), polq))
        if a < 3: A("s_add_u32 s12, s12, 0x40000")
    stamp(1)
    layernorm(vX, 8, vX + 8, vX + 24, vX + 40, 2)
    A("ds_write_b128 v%d, %s offset:%d" % (vT + 3, vr(vX, 4), L_XN)); A("ds_write_b128 v%d, %s offset:%d" % (vT + 3, vr(vX + 4, 4), L_XN + 16))
    lds_add(vHI, F_XN)
    A("s_waitcnt vmcnt(0)")
    for m in range(4):
        A("ds_read_b64_tr_b16 %s, v%d offset:%d" % (vr(vK + 4 * m, 2), vT + 5, m * 1024))
        A("ds_read_b64_tr_b16 %s, v%d offset:%d" % (vr(vK + 4 * m + 2, 2), vT + 5, m * 1024 + 128))
    lds_wait(F_XN, 4)
    for m in range(4): A("ds_read_b128 %s, v%d offset:%d" % (vr(vK + 16 + 4 * m, 4), vT + 4, L_XN + m * 64))
    for m in range(4):
        A("s_waitcnt lgkmcnt(%d)" % (3 - m))
        A("v_mfma_f32_16x16x32_bf16 %s, %s, %s, %s" % (vr(vTMP, 4), vr(vK + 4 * m, 4), vr(vK + 16 + 4 * m, 4), "0" if m == 0 else vr(vTMP, 4)))
    A("ds_write_b128 v%d, %s offset:%d" % (vT + 6, vr(vTMP, 4), L_QP))
    lds_add(vHI, F_QP)
    A("s_mov_b64 exec, 1"); A("ds_add_u32 v30, v%d offset:%d" % (vONE, F_FREED)); A("s_mov_b64 exec, -1")
    stamp(2)
    def wait_block(n4):
        A("s_add_u32 s%d, s%d, %d" % (sT0, sWAVE, 4 * n4 + 1))
        lds_wait(F_FULL, "s%d" % sT0, keep=sFULL)
    def read_k(j):
        base = vK + 32 * (j % 4)
        for t in range(2):
            for m in range(4):
                A("ds_read_b128 %s, v%d offset:%d" % (vr(base + 16 * t + 4 * m, 4), vKA + m + (4 if (j & 2) else 0), (j & 1) * 32768 + t * 4096))
    def qk_block(j):
        base = vK + 32 * (j % 4)
        for m in range(4):
            for t in range(2):
                acc = vr(vS + 8 * j + 4 * t, 4)
                A("v_mfma_f32_16x16x32_bf16 %s, %s, %s, %s" % (acc, vr(base + 16 * t + 4 * m, 4), vr(vQ + 4 * m, 4), "0" if m == 0 else acc))
    def round_block(j):
        for p in range(4):
            a, b, t = vS + 8 * j + 2 * p, vS + 8 * j + 2 * p + 1, vT + (p & 1)
            if mimic:
                A("v_cvt_pk_bf16_f32 v%d, v%d, v%d" % (t, a, b)); unpack(a, b, t)
            A("v_mul_f32 v%d, s%d, v%d" % (a, sSCALE, a)); A("v_mul_f32 v%d, s%d, v%d" % (b, sSCALE, b))
            if mimic:
                A("v_cvt_pk_bf16_f32 v%d, v%d, v%d" % (t, a, b)); unpack(a, b, t)
            if j == 0 and p == 0: A("v_max_f32 v%d, v%d, v%d" % (vM, a, b))
            else: A("v_max3_f32 v%d, v%d, v%d, v%d" % (vM, a, b, vM))
    for j in range(4):
        wait_block(j); read_k(j); lds_add(30, F_FREED)
    stamp(3)
    lds_wait(F_QR, 1)
    stamp(4)
    A("v_lshlrev_b32 v%d, 8, v%d" % (vT, vC4)); A("v_lshl_add_u32 v%d, v%d, 4, v%d" % (vT, vG4, vT)); A("v_add_u32 v%d, v%d, v%d" % (vT, vHI, vT))
    for m in range(4): A("ds_read_b128 %s, v%d offset:%d" % (vr(vQ + 4 * m, 4), vT, L_QB + m * 64))
    A("s_waitcnt lgkmcnt(0)")
    for j in range(4):
        qk_block(j)
        wait_block(4 + j); A("s_nop 3"); read_k(4 + j)
        if j >= 1: round_block(j - 1)
        lds_add(30, F_FREED)
    for j in range(4, 8):
        qk_block(j); round_block(j - 1)
    A("v_lshl_add_u32 v%d, v%d, 2, v%d" % (vT + 2, vG4, vC4))
    A("v_and_b32 v%d, 7, v%d" % (vT + 3, vT + 2)); A("v_lshlrev_b32 v%d, 1, v%d" % (vT + 3, vT + 3))
    A("v_lshrrev_b32 v%d, 1, v%d" % (vT + 4, vR4)); A("v_xor_b32 v%d, v%d, v%d" % (vT + 3, vT + 3, vT + 4))
    A("v_lshlrev_b32 v%d, 8, v%d" % (vT + 2, vT + 2)); A("v_lshl_add_u32 v%d, v%d, 4, v%d" % (vT + 2, vT + 3, vT + 2))
    A("v_and_b32 v%d, 1, v0" % (vT + 4)); A("v_lshl_add_u32 v%d, v%d, 3, v%d" % (vT + 2, vT + 4, vT + 2))
    A("s_lshl_b32 s%d, s%d, 13" % (sT0, sWAVE)); A("v_add_u32 v%d, s%d, v%d" % (vVA, sT0, vT + 2))
    for d in range(1, 8): A("v_xor_b32 v%d, %d, v%d" % (vVA + d, 32 * d, vVA))
    round_block(7)
    swap_red(vM, vT, "v_max_f32", 32); swap_red(vM, vT, "v_max_f32", 16)
    A("v_mul_f32 v%d, s%d, v%d" % (vM, sL2E, vM))
    A("v_lshlrev_b32 v%d, 4, v%d" % (vT + 1, vG4)); A("ds_bpermute_b32 v%d, v%d, v%d" % (vMO, vT + 1, vM))
    vP = vK
    for j in range(32):
        a, b = vS + 2 * j, vS + 2 * j + 1
        A("v_fma_f32 v%d, v%d, s%d, -v%d" % (a, a, sL2E, vM)); A("v_fma_f32 v%d, v%d, s%d, -v%d" % (b, b, sL2E, vM))
        A("v_exp_f32 v%d, v%d" % (a, a)); A("v_exp_f32 v%d, v%d" % (b, b))
        if j >= 1:
            pa, pb = a - 2, b - 2
            if j == 1: A("v_add_f32 v%d, v%d, v%d" % (vLs, pa, pb))
            else: A("v_add_f32 v%d, v%d, v%d" % (vLs, vLs, pa)); A("v_add_f32 v%d, v%d, v%d" % (vLs, vLs, pb))
            A("v_cvt_pk_bf16_f32 v%d, v%d, v%d" % (vP + j - 1, pa, pb))
    A("v_add_f32 v%d, v%d, v%d" % (vLs, vLs, vS + 62)); A("v_add_f32 v%d, v%d, v%d" % (vLs, vLs, vS + 63))
    A("v_cvt_pk_bf16_f32 v%d, v%d, v%d" % (vP + 31, vS + 62, vS + 63))
    swap_red(vLs, vT, "v_add_f32", 32); swap_red(vLs, vT, "v_add_f32", 16)
    A("s_lshl_b32 s%d, s%d, 5" % (sT0, sWAVE)); A("s_add_u32 s%d, s%d, %d" % (sT0, sT0, HI)); A("v_lshlrev_b32 v%d, 3, v%d" % (vT, vC4)); A("v_add_u32 v%d, s%d, v%d" % (vT, sT0, vT))
    A("v_mov_b32 v%d, v%d" % (vT + 2, vM)); A("v_mov_b32 v%d, v%d" % (vT + 3, vLs))
    A("s_mov_b64 exec, 0x1111"); A("ds_write_b64 v%d, %s offset:%d" % (vT, vr(vT + 2, 2), L_ST)); A("s_mov_b64 exec, -1")
    lds_add(vHI, F_ST)
    stamp(5)
    A("s_lshl_b32 s%d, s%d, 11" % (sT0, sWAVE)); A("s_add_u32 s%d, s%d, %d" % (sT0, sT0, HI + L_OW))
    A("v_lshlrev_b32 v%d, 9, v%d" % (vOWA, vG4)); A("v_lshl_add_u32 v%d, v%d, 2, v%d" % (vOWA, vN16, vOWA)); A("v_add_u32 v%d, s%d, v%d" % (vOWA, sT0, vOWA))
    vVB = vK + 32
    def read_v(j):
        base = vVB + 32 * (j & 1)
        for d in range(8):
            for t in range(2):
                A("ds_read_b64_tr_b16 %s, v%d offset:%d" % (vr(base + 4 * d + 2 * t, 2), vVA + d, (j & 1) * 32768 + t * 4096))
    def pv(j, d):
        base = vVB + 32 * (j & 1)
        acc = vr(vS + 4 * d, 4)
        A("v_mfma_f32_16x16x32_bf16 %s, %s, %s, %s" % (acc, vr(vP + 4 * j, 4), vr(base + 4 * d, 4), "0" if j == 0 else acc))
    vS2, vF2 = vS + 32, 31
    def factor(dst, m):
        lds_wait(F_GR, 1)
        A("v_lshl_add_u32 v%d, v%d, 3, v%d" % (vT, vG4, vHI)); A("ds_read_b64 %s, v%d offset:%d" % (vr(vT + 2, 2), vT, L_GS)); A("s_waitcnt lgkmcnt(0)")
        A("v_sub_f32 v%d, v%d, v%d" % (dst, m, vT + 2)); A("v_exp_f32 v%d, v%d" % (dst, dst)); A("v_mul_f32 v%d, v%d, v%d" % (dst, dst, vT + 3))
    def wait_pos(j, out):
        ok = A.label("pok"); again = A.label("pagain"); chk = A.label("pchk")
        A("s_add_u32 s%d, s%d, %d" % (sT0, sWAVE, 32 + 4 * j + 1))
        A("s_mov_b32 s%d, 0" % sSPIN)
        A("s_branch " + chk)
        A(again + ":")
        A("ds_read_b64 %s, v%d offset:%d" % (vr(vT + 2, 2), vHI, F_FULL)); A("s_waitcnt lgkmcnt(0)")
        A("v_readfirstlane_b32 s%d, v%d" % (sFULL, vT + 2)); A("v_readfirstlane_b32 s%d, v%d" % (sPLAN, vT + 3))
        A(chk + ":")
        A("s_cmp_ge_u32 s%d, s%d" % (sFULL, sT0)); A("s_cbranch_scc1 " + ok)
        A("s_sub_u32 s%d, s%d, 0x100" % (sT1, sPLAN)); A("s_cmp_le_u32 s%d, %d" % (sT1, j)); A("s_cbranch_scc1 " + out)
        A("s_add_u32 s%d, s%d, 1" % (sSPIN, sSPIN)); A("s_cmp_lt_u32 s%d, %d" % (sSPIN, lspin)); A("s_cbranch_scc1 " + again)
        A("s_branch " + out)
        A(ok + ":")
    if steal:
        lds_wait(F_AM, 1)
        A("v_lshrrev_b32 v%d, 2, v0" % vT); A("v_lshlrev_b32 v%d, 4, v%d" % (vT, vT))
        A("s_lshl_b32 s%d, s%d, 12" % (sT0, sR)); A("s_lshl_b32 s%d, s%d, 10" % (sT1, sWAVE)); A("s_add_u32 s%d, s%d, s%d" % (sT0, sT0, sT1)); A("s_add_u32 s%d, s%d, 0x%x" % (sT0, sT0, WS_PR))
        A("s_mov_b32 exec_lo, 0x11111111"); A("s_mov_b32 exec_hi, 0x11111111")
        for u in range(3): A("buffer_store_dwordx4 %s, v%d, %s, s%d offen offset:%d sc1" % (vr(vP + 4 * (5 + u), 4), vT, srd("WS"), sT0, 256 * u))
        A("s_mov_b64 exec, 0x1111")
        A("buffer_store_dword v%d, v0, %s, s%d offen offset:768 sc1" % (vM, srd("WS"), sT0))
        A("s_mov_b64 exec, -1")
        A("s_mov_b32 s%d, 0" % sPLAN)
    for j in range(11 if steal else 8):
        if j == 7:
            factor(vF, vMO)
            stamp(6)
        if j < NOWN: wait_block(8 + j)
        else: wait_pos(j, "L_vout%d" % j)
        if j == 7: stamp(7)
        if j >= 8:
            if j == 8:
                A("v_lshrrev_b32 v%d, 2, v0" % (vT + 4)); A("v_lshlrev_b32 v%d, 4, v%d" % (vT + 4, vT + 4))
                A("s_lshl_b32 s%d, s%d, 10" % (sT1, sWAVE)); A("s_add_u32 s%d, s%d, %d" % (sT1, sT1, HI + L_PP)); A("v_add_u32 v%d, s%d, v%d" % (vT + 4, sT1, vT + 4))
                A("v_lshl_add_u32 v%d, v%d, 2, s%d" % (vT + 5, vG4, sT1))
                for u in range(3): A("ds_read_b128 %s, v%d offset:%d" % (vr(vP + 4 * u, 4), vT + 4, 256 * (2 - u)))
                A("ds_read_b32 v%d, v%d offset:768" % (vF2, vT + 5)); A("s_waitcnt lgkmcnt(0)")
                factor(vF2, vF2)
        read_v(j)
        if j % 4 == 1:
            for d in range(8): A("v_add_u32 v%d, 0x10000, v%d" % (vVA + d, vVA + d))
        if j % 4 == 3 and (steal or j < 7):
            for d in range(8): A("v_subrev_u32 v%d, 0x10000, v%d" % (vVA + d, vVA + d))
        for d in range(8):
            A("s_waitcnt lgkmcnt(%d)" % (14 - 2 * d))
            if d == 7 and j < (7 if steal else 4):
                A("s_mov_b64 exec, 1"); A("ds_add_u32 v30, v%d offset:%d" % (vONE, F_FREED)); A("s_mov_b64 exec, -1")
            if j < 8: pv(j, d)
            else:
                acc = vr(vS2 + 4 * d, 4)
                A("v_mfma_f32_16x16x32_bf16 %s, %s, %s, %s" % (acc, vr(vP + 4 * (j - 8), 4), vr(vVB + 32 * (j & 1) + 4 * d, 4), "0" if j == 8 else acc))
    if steal:
        A("L_vout9:"); A("L_vout10:")
        A("s_nop 7")
        for d in range(8): A("v_mul_f32 v%d, v%d, v%d" % (vTMP + d, vF, vS + 4 * d))
        for d in range(8): A("v_fmac_f32 v%d, v%d, v%d" % (vTMP + d, vF2, vS2 + 4 * d))
        A("s_branch L_vsum")
        A("L_vout5:"); A("L_vout6:")
        factor(vF, vMO)
        A("L_vout7:"); A("L_vout8:")
        A("s_nop 7")
    for d in range(8): A("v_mul_f32 v%d, v%d, v%d" % (vTMP + d, vF, vS + 4 * d))
    if steal: A("L_vsum:")
    for d in range(0, 8, 2): A("ds_write2_b32 v%d, v%d, v%d offset0:%d offset1:%d" % (vOWA, vTMP + d, vTMP + d + 1, 16 * d, 16 * d + 16))
    vWOA, vOIR, vWO = 17, 18, vK
    A("v_lshlrev_b32 v%d, 7, v%d" % (vWOA, vC4)); A("v_lshl_add_u32 v%d, v%d, 10, v%d" % (vWOA, vG4, vWOA)); A("v_lshl_add_u32 v%d, v%d, 3, v%d" % (vWOA, vR4, vWOA))
    A("s_lshl_b32 s%d, s%d, 5" % (sT0, sWAVE)); A("s_add_u32 s%d, s%d, %d" % (sT0, sT0, HI + L_WO)); A("v_add_u32 v%d, s%d, v%d" % (vWOA, sT0, vWOA))
    A("s_waitcnt lgkmcnt(0)")
    A("s_barrier")
    stamp(8)
    def wo_reads():
        if wolate: lds_wait(F_WO, 1, sl=0)
        for m in range(4):
            A("ds_read_b64_tr_b16 %s, v%d offset:%d" % (vr(vWO + 4 * m, 2), vWOA, m * 4096))
            A("ds_read_b64_tr_b16 %s, v%d offset:%d" % (vr(vWO + 4 * m + 2, 2), vWOA, m * 4096 + 512))
    def oir_addr():
        A("v_lshrrev_b32 v%d, 1, v%d" % (vT, vN16)); A("v_lshlrev_b32 v%d, 10, v%d" % (vT, vT)); A("v_and_b32 v%d, 1, v0" % (vT + 1)); A("v_lshl_add_u32 v%d, v%d, 8, v%d" % (vT, vT + 1, vT))
        for m in range(4):
            A("v_add_u32 v%d, %d, v%d" % (vT + 1, 4 * m, vG4)); A("v_xor_b32 v%d, v%d, v%d" % (vT + 1, vT + 1, vN16))
            A("v_lshl_add_u32 v%d, v%d, 4, v%d" % (vOIR + m, vT + 1, vT))
        A("v_lshrrev_b32 v%d, 1, v%d" % (22, vN16)); A("v_lshlrev_b32 v22, %d, v22" % (16 + spad)); A("v_lshl_add_u32 v22, v%d, 4, v22" % vG4)
    A("s_cmp_gt_u32 s%d, 1" % sWAVE); A("s_cbranch_scc1 L_gather23")
    A("s_lshl_b32 s%d, s%d, 10" % (sT0, sWAVE)); A("s_add_u32 s%d, s%d, %d" % (sT0, sT0, HI + L_OW)); A("v_add_u32 v%d, s%d, v%d" % (vT, sT0, vL16))
    for w in range(4): A("ds_read_b128 %s, v%d offset:%d" % (vr(vS + 4 * w, 4), vT, w * 2048))
    A("v_lshrrev_b32 v%d, 5, v0" % (vT + 1)); A("v_lshlrev_b32 v%d, 13, v%d" % (vT + 1, vT + 1)); A("v_and_b32 v%d, 31, v0" % (vT + 2)); A("v_lshl_add_u32 v%d, v%d, 3, v%d" % (vT + 1, vT + 2, vT + 1))
    A("s_lshl_b32 s%d, s%d, 14" % (sT0, sWAVE)); A("s_add_u32 s%d, s%d, s%d" % (sT0, sT0, sOPOFF))
    A("s_waitcnt lgkmcnt(2)")
    for i in range(4): A("v_add_f32 v%d, v%d, v%d" % (vS + i, vS + i, vS + 4 + i))
    A("s_waitcnt lgkmcnt(0)")
    for i in range(4): A("v_add_f32 v%d, v%d, v%d" % (vS + 8 + i, vS + 8 + i, vS + 12 + i))
    for i in range(4): A("v_add_f32 v%d, v%d, v%d" % (vS + i, vS + i, vS + 8 + i))
    A("v_cvt_pk_bf16_f32 v%d, v%d, v%d" % (vTMP, vS, vS + 1)); A("v_cvt_pk_bf16_f32 v%d, v%d, v%d" % (vTMP + 1, vS + 2, vS + 3))
    A("buffer_store_dwordx2 %s, v%d, %s, s%d offen %s" % (vr(vTMP, 2), vT + 1, srd("WS"), sT0, ts))
    stamp(11)
    wo_reads(); oir_addr()
    A("s_branch L_barE_c")
    def gather(idx_sgpr, extra):
        vGa = 40
        A("s_lshr_b32 s%d, s%d, 3" % (sT1, sR)); A("s_lshl_b32 s%d, s%d, 13" % (sT1, sT1)); A("s_lshl_b32 s%d, s%d, 11" % (sT0, idx_sgpr))
        A("s_add_u32 s%d, s%d, s%d" % (sT1, sT1, sT0)); A("s_add_u32 s%d, s%d, 0x%x" % (sT1, sT1, WS_OP))
        lds_ = [(lambda: A("buffer_load_dwordx4 %s, v%d, %s, s%d offen %s" % (vr(vGa, 4), vL16, srd("WS"), sT1, tl)), list(range(vGa, vGa + 4))),
                (lambda: A("buffer_load_dwordx4 %s, v%d, %s, s%d offen offset:1024 %s" % (vr(vGa + 4, 4), vL16, srd("WS"), sT1, tl)), list(range(vGa + 4, vGa + 8)))]
        if td1: A("s_sleep %d" % td1)
        if at1:
            A("v_lshlrev_b32 v%d, 3, v0" % (vT + 7))
            apoll(vGa, vT + 7, sT1, 0, 0, first="only")
            extra()
            A("v_lshrrev_b32 v%d, 5, v0" % (vT + 2)); A("s_lshl_b32 s%d, s%d, 2" % (sT2, idx_sgpr)); A("v_add_u32 v%d, s%d, v%d" % (vT + 3, sT2, vT + 2))
            A("v_bfe_u32 v%d, v0, 1, 4" % (vT + 4)); A("v_xor_b32 v%d, v%d, v%d" % (vT + 3, vT + 3, vT + 4))
            A("v_lshlrev_b32 v%d, 8, v%d" % (vT + 2, vT + 2)); A("v_add_u32 v%d, s%d, v%d" % (vT + 2, sT0, vT + 2))
            A("v_and_b32 v%d, 1, v0" % (vT + 4)); A("v_lshl_add_u32 v%d, v%d, 3, v%d" % (vT + 2, vT + 4, vT + 2))
            A("v_lshl_add_u32 v%d, v%d, 4, v%d" % (vT + 5, vT + 3, vT + 2)); A("v_xor_b32 v%d, 32, v%d" % (vT + 6, vT + 5))
            apoll(vGa, vT + 7, sT1, 24, tsleep, first=False)
            stamp(11)
            for k in range(4): A("ds_write_b64 v%d, %s offset:%d" % (vT + 5 + (k >> 1), vr(vGa + 2 * k, 2), 512 * k))
            return
        for i_, _ in lds_: i_()
        A("v_and_b32 v%d, 1, v%d" % (vT + 2, vG4)); A("s_lshl_b32 s%d, s%d, 2" % (sT2, idx_sgpr)); A("v_add_u32 v%d, s%d, v%d" % (vT + 2, sT2, vT + 2))
        A("v_xor_b32 v%d, v%d, v%d" % (vT + 3, vT + 2, vN16)); A("v_xor_b32 v%d, 2, v%d" % (vT + 4, vT + 3))
        A("v_lshlrev_b32 v%d, 8, v%d" % (vT + 2, vG4)); A("v_add_u32 v%d, s%d, v%d" % (vT + 2, sT0, vT + 2))
        A("v_lshl_add_u32 v%d, v%d, 4, v%d" % (vT + 5, vT + 3, vT + 2)); A("v_lshl_add_u32 v%d, v%d, 4, v%d" % (vT + 6, vT + 4, vT + 2))
        extra()
        gpoll(lds_, first=False, sleep=tsleep, P=P1)
        stamp(11)
        A("ds_write_b128 v%d, %s" % (vT + 5, vr(vGa, 4))); A("ds_write_b128 v%d, %s offset:1024" % (vT + 6, vr(vGa + 4, 4)))
    A("L_gather23:")
    A("s_sub_u32 s%d, s%d, 2" % (sMU, sWAVE))
    gather(sMU, lambda: (wo_reads(), oir_addr()))
    A("L_barE_c:")
    A("s_waitcnt lgkmcnt(0)")
    A("s_barrier")
    stamp(9)
    for u in range(2):
        for m in range(4): A("ds_read_b128 %s, v%d offset:%d" % (vr(vS + 16 * u + 4 * m, 4), vOIR + m, u * 512))
    A("s_lshl_b32 s%d, s%d, %d" % (sT0, sWAVE, 11 + spad)); A("s_add_u32 s%d, s%d, s%d" % (sT0, sT0, sSPOFF))
    for u in range(2):
        for m in range(4):
            A("s_waitcnt lgkmcnt(%d)" % (7 - 4 * u - m))
            acc = vr(vTMP + 4 * u, 4)
            A("v_mfma_f32_16x16x32_bf16 %s, %s, %s, %s" % (acc, vr(vWO + 4 * m, 4), vr(vS + 16 * u + 4 * m, 4), "0" if m == 0 else acc))
    for i in range(4): A("v_add_f32 v%d, v%d, v%d" % (vTMP + i, vTMP + i, vTMP + 4 + i))
    for i in range(4): dpp("v_add_f32", vTMP + i, "quad_perm:[1,0,3,2]")
    A("s_mov_b32 exec_lo, 0x55555555"); A("s_mov_b32 exec_hi, 0x55555555")
    stamp(10)
    A("buffer_store_dwordx4 %s, v22, %s, s%d offen %s" % (vr(vTMP, 4), srd("WS"), sT0, ts))
    A("s_mov_b64 exec, -1")
    A("s_branch L_done")

    A("L_loader:")
    if ldprio: A("s_setprio %d" % ldprio)
    vO = 17
    A("v_lshlrev_b32 v%d, 8, v%d" % (vT, vG4))
    for i in range(4):
        A("v_add_u32 v%d, %d, v%d" % (vT + 1, 4 * i, vG4)); A("v_xor_b32 v%d, v%d, v%d" % (vT + 1, vT + 1, vN16)); A("v_lshl_add_u32 v%d, v%d, 4, v%d" % (vO + i, vT + 1, vT))
    for i in range(2):
        A("v_add_u32 v%d, %d, v%d" % (vT + 1, 4 * i, vG4)); A("v_lshlrev_b32 v%d, 1, v%d" % (vT + 1, vT + 1))
        A("v_xor_b32 v%d, v%d, v%d" % (vT + 1, vT + 1, vN16)); A("v_lshl_add_u32 v%d, v%d, 4, v%d" % (vO + 4 + i, vT + 1, vT))
    sG, sSLOT, sFR, sN = 12, 13, 88, 92
    A("s_bfe_u32 s%d, s%d, 0x30002" % (sBASE, sR)); A("s_lshl_b32 s%d, s%d, 23" % (sBASE, sBASE)); A("s_lshr_b32 s%d, s%d, 5" % (sT0, sR)); A("s_lshl_b32 s%d, s%d, 20" % (sT0, sT0))
    A("s_add_u32 s%d, s%d, s%d" % (sBASE, sBASE, sT0)); A("s_and_b32 s%d, s%d, 3" % (sT0, sR)); A("s_lshl_b32 s%d, s%d, 18" % (sT0, sT0)); A("s_add_u32 s%d, s%d, s%d" % (sBASE, sBASE, sT0))
    if rot:
        A("s_mov_b32 s94, s%d" % sBASE)
        A("s_mul_i32 s%d, s%d, %d" % (sT0, sR, rot)); A("s_lshr_b32 s%d, s%d, 5" % (sT1, sR)); A("s_add_u32 s%d, s%d, s%d" % (sT0, sT0, sT1))
        A("s_and_b32 s%d, s%d, 31" % (sT0, sT0)); A("s_lshl_b32 s%d, s%d, 13" % (sT0, sT0)); A("s_add_u32 s%d, s%d, s%d" % (sBASE, sBASE, sT0))
    if Fhi:
        A("s_and_b32 s%d, s2, 7" % sT0); A("s_lshr_b32 s%d, %d, s%d" % (sT0, himask, sT0)); A("s_and_b32 s%d, s%d, 1" % (sT0, sT0)); A("s_cselect_b32 s95, %d, %d" % (Fhi, F))
    A("s_mov_b32 s94, 0"); A("s_mov_b32 s93, 0"); A("s_mov_b32 s%d, s%d" % (sOFF, sBASE)); A("s_mov_b32 s%d, 0" % sG); A("s_mov_b32 s%d, 0" % sSLOT); A("s_mov_b32 s%d, 0" % sN)
    A("s_waitcnt lgkmcnt(0)")
    def publish_full(sgpr):
        A("v_mov_b32 v%d, s%d" % (vT, sgpr)); A("s_mov_b64 exec, 1"); A("ds_max_u32 v%d, v%d offset:%d" % (vHI, vT, F_FULL)); A("s_mov_b64 exec, -1")
    def dma_block(isk):
        Dm = D if isk else DV
        for half in range(2):
            A("s_mov_b32 m0, s%d" % sSLOT)
            if Dm: A("s_waitcnt vmcnt(%d)" % Dm)
            for i in range(4):
                A("buffer_load_dwordx4 v%d, %s, s%d offen offset:%d %s lds" % (vO + i if isk else vO + 4 + (i & 1), srd("K" if isk else "V"), sOFF, i * 1024, pol))
            A("s_add_u32 s%d, s%d, 4096" % (sOFF, sOFF)); A("s_add_u32 s%d, s%d, 4096" % (sSLOT, sSLOT))
            if Dm and (4 * half - Dm) % 8 < 4:
                A("s_add_i32 s%d, s%d, %d" % (sT0, sN, (4 * half - Dm) // 8)); A("s_max_i32 s%d, s%d, 0" % (sT0, sT0)); publish_full(sT0)
        if rot:
            A("s_and_b32 s%d, s%d, 0x3ffff" % (sOFF, sOFF)); A("s_or_b32 s%d, s%d, s94" % (sOFF, sOFF))
        A("s_and_b32 s%d, s%d, 0x1ffff" % (sSLOT, sSLOT)); A("s_add_u32 s%d, s%d, 1" % (sN, sN))
    if ldst == 2: stamp(1)
    for _ in range(pre): dma_block(True)
    A("s_barrier")
    if ldst == 2: stamp(2)
    for _ in range(4 - pre): dma_block(True)
    A("s_mov_b32 s%d, 1" % sG)
    if ldst == 2: stamp(3)
    def read_freed():
        A("ds_read_b128 %s, v%d offset:%d" % (vr(vT + 4, 4), vHI, F_FREED)); A("s_waitcnt lgkmcnt(0)")
        for c in range(4): A("v_readfirstlane_b32 s%d, v%d" % (sFR + c, vT + 4 + c))
    for isk, last in ((True, 8), (False, 19 if steal else 16)):
        loop = "L_ld_k" if isk else "L_ld_v"
        if not isk: A("s_mov_b32 s%d, s%d" % (sOFF, sBASE))
        A(loop + ":")
        for g_, reg in ((p_a, 16), (p_b, 18)):
            if g_ > 0 and g_ < 16 and (g_ < 8) == isk:
                sk = A.label("st"); A("s_cmp_lg_u32 s%d, %d" % (sG, g_)); A("s_cbranch_scc1 " + sk); A("s_memrealtime s[%d:%d]" % (reg, reg + 1)); A(sk + ":")
        if ldst == 1:
            for k, g in enumerate((2, 3, 4, 5, 6, 7) if isk else (8, 10, 12, 14)):
                sk = A.label("st"); A("s_cmp_lg_u32 s%d, %d" % (sG, g)); A("s_cbranch_scc1 " + sk); stamp(k + 1 if isk else k + 7); A(sk + ":")
        if steal and not isk:
            go = A.label("pgo"); again = A.label("pagain")
            A("s_cmp_lt_u32 s%d, %d" % (sG, 8 + NOWN)); A("s_cbranch_scc1 " + go)
            A("s_mov_b32 s%d, 0" % sSPIN); A("s_sub_u32 s%d, s%d, 8" % (sT1, sG))
            if ldst: A("s_memrealtime s[14:15]")
            A(again + ":")
            A("ds_read_b32 v%d, v%d offset:%d" % (vPOLL, vHI, F_PLAN)); A("s_waitcnt lgkmcnt(0)"); A("v_readfirstlane_b32 s%d, v%d" % (sT0, vPOLL))
            A("s_and_b32 s%d, s%d, 0xff" % (sT2, sT0)); A("s_cmp_gt_u32 s%d, s%d" % (sT2, sT1)); A("s_cbranch_scc1 L_granted")
            A("s_cmp_ge_u32 s%d, 0x100" % sT0); A("s_cbranch_scc1 L_ld_end")
            for k in range(F - 1, -1, -1):
                A("s_cmp_eq_u32 s%d, %d" % (sSPIN, F - 1 - k)); nx = A.label("nx"); A("s_cbranch_scc0 " + nx)
                A("s_sub_u32 s%d, s%d, %d" % (sT0, sN, k)); A("s_waitcnt vmcnt(%d)" % (8 * k)); publish_full(sT0); A(nx + ":")
            if ldst: A("s_add_u32 s93, s93, 1")
            A("s_add_u32 s%d, s%d, 1" % (sSPIN, sSPIN)); A("s_cmp_lt_u32 s%d, %d" % (sSPIN, lspin)); A("s_cbranch_scc1 " + again)
            A("s_branch L_ld_end")
            A("L_granted:")
            if ldst:
                A("s_memrealtime s[36:37]"); A("s_waitcnt lgkmcnt(0)"); A("s_sub_u32 s36, s36, s14"); A("s_add_u32 s94, s94, s36")
            A("s_cmp_lt_u32 s%d, 16" % sG); A("s_cbranch_scc1 " + go)
            A("s_sub_u32 s%d, 23, s%d" % (sT0, sG)); A("s_lshl_b32 s%d, s%d, 15" % (sT0, sT0)); A("s_xor_b32 s%d, s%d, 0x80000" % (sOFF, sBASE)); A("s_add_u32 s%d, s%d, s%d" % (sOFF, sOFF, sT0))
            A(go + ":")
        read_freed()
        A("s_sub_i32 s%d, s%d, 2" % (sT1, sG))
        if Fhi and hiend < 16:
            A("s_cmp_ge_u32 s%d, %d" % (sG, hiend)); A("s_cselect_b32 s95, %d, s95" % F)
        for c in range(4):
            go = A.label("go"); sl = A.label("slow")
            A("s_cmp_ge_i32 s%d, s%d" % (sFR + c, sT1)); A("s_cbranch_scc1 " + go)
            A("s_waitcnt vmcnt(0)"); publish_full(sN)
            if ldst: A("s_add_u32 s93, s93, 100")
            A("s_mov_b32 s%d, 0" % sSPIN)
            A(sl + ":")
            read_freed()
            A("s_cmp_ge_i32 s%d, s%d" % (sFR + c, sT1)); A("s_cbranch_scc1 " + go)
            A("s_add_u32 s%d, s%d, 1" % (sSPIN, sSPIN)); A("s_cmp_lt_u32 s%d, %d" % (sSPIN, lspin)); A("s_cbranch_scc1 " + sl)
            A(go + ":")
            dma_block(isk)
            if D: pass
            elif bal == 1:
                hi = A.label("hi")
                A("ds_read_b32 v%d, v%d offset:%d" % (vPOLL, vHI, F_MODE))
                A("s_sub_i32 s%d, s%d, %d" % (sT0, sN, F))
                A("s_waitcnt vmcnt(%d) lgkmcnt(0)" % (8 * F)); A("v_readfirstlane_b32 s%d, v%d" % (sT2, vPOLL))
                A("s_cmp_eq_u32 s%d, 0" % sT2); A("s_cbranch_scc1 " + hi)
                publish_full(sT0)
                if ldst: A("s_add_u32 s94, s94, 100")
                A("s_sub_i32 s%d, s%d, %d" % (sT0, sN, (Flo + 7) // 8 if Flo > 7 else Flo))
                A("s_waitcnt vmcnt(%d)" % (Flo if Flo > 7 else 8 * Flo)); A(hi + ":"); publish_full(sT0)
            elif Fhi:
                hi = A.label("hi")
                A("s_sub_i32 s%d, s%d, s95" % (sT0, sN)); A("s_max_i32 s%d, s%d, 0" % (sT0, sT0))
                A("s_waitcnt vmcnt(%d)" % (8 * Fhi)); A("s_cmp_eq_u32 s95, %d" % Fhi); A("s_cbranch_scc1 " + hi)
                A("s_waitcnt vmcnt(%d)" % (8 * F)); A(hi + ":"); publish_full(sT0)
            else:
                A("s_sub_i32 s%d, s%d, %d" % (sT0, sN, F))
                if F > 5: A("s_max_i32 s%d, s%d, 0" % (sT0, sT0))
                A("s_waitcnt vmcnt(%d)" % (8 * F)); publish_full(sT0)
        if stamps:
            pass
        A("s_add_u32 s%d, s%d, 1" % (sG, sG)); A("s_cmp_lt_u32 s%d, %d" % (sG, last)); A("s_cbranch_scc1 " + loop)
        if not ldst: stamp(1 if isk else 2)
    def wo_dma():
        A("v_lshrrev_b32 v%d, 3, v0" % (vT + 4)); A("v_lshlrev_b32 v%d, 10, v%d" % (vT + 4, vT + 4)); A("v_and_b32 v%d, 7, v0" % (vT + 5)); A("v_lshl_add_u32 v%d, v%d, 4, v%d" % (vT + 4, vT + 5, vT + 4))
        A("s_lshr_b32 s%d, s%d, 3" % (sT0, sR)); A("s_lshl_b32 s%d, s%d, 17" % (sT0, sT0)); A("s_and_b32 s%d, s%d, 7" % (sT1, sR)); A("s_lshl_b32 s%d, s%d, 7" % (sT1, sT1))
        A("s_add_u32 s%d, s%d, s%d" % (sT0, sT0, sT1))
        for a in range(16):
            A("s_mov_b32 m0, %d" % (HI + L_WO + a * 1024))
            A("buffer_load_dwordx4 v%d, %s, s%d offen %s lds" % (vT + 4, srd("WO"), sT0, polo))
            if a < 15: A("s_add_u32 s%d, s%d, 0x2000" % (sT0, sT0))
    if steal:
        A("L_ld_end:")
        A("s_mov_b64 exec, 1"); A("ds_write_b32 v%d, v%d offset:%d" % (vHI, vONE, F_LI)); A("s_mov_b64 exec, -1")
    if wolate == 1: wo_dma()
    for k in range((DV + 4 + 7) // 8 - 1 if D else max(F, Fhi) - 1, -1, -1):
        A("s_sub_u32 s%d, s%d, %d" % (sT0, sN, k)); A("s_waitcnt vmcnt(%d)" % (8 * k + (16 if wolate == 1 else 0))); publish_full(sT0)
    if wolate == 1:
        if ldst: stamp(11)
        A("s_waitcnt vmcnt(0)"); A("s_mov_b64 exec, 1"); A("ds_write_b32 v%d, v%d offset:%d" % (vHI, vONE, F_WO)); A("s_mov_b64 exec, -1")
    if ldst:
        if wolate == 1: stamp(12)
        else:
            stamp(11)
            A("s_waitcnt lgkmcnt(0)"); A("s_mul_i32 s%d, s%d, 25" % (sT0, sN)); A("s_add_u32 s40, s16, s%d" % sT0); A("s_addc_u32 s41, s17, 0")
            if steal: A("s_add_u32 s36, s16, s94"); A("s_addc_u32 s37, s17, 0")
            if bal: A("s_add_u32 s40, s16, s94"); A("s_addc_u32 s41, s17, 0")
    else: stamp(3)
    if p_b >= 0:
        if p_b == 16: A("s_memrealtime s[18:19]")
        A("s_waitcnt lgkmcnt(0)"); A("s_sub_u32 s18, s18, s16"); A("v_mov_b32 v8, s18"); A("s_mov_b64 exec, 1"); A("buffer_atomic_add v8, off, %s, 0 offset:4" % srd("DBG")); A("s_mov_b64 exec, -1")
    if pspan:
        A("s_memrealtime s[18:19]"); A("s_waitcnt lgkmcnt(0)")
        if pspan in (3, 4): A("s_mov_b32 s18, s16")
        if pm: A("s_and_b32 s6, s2, %d" % pm); A("s_cmp_eq_u32 s6, %d" % pval); A("s_cselect_b32 s18, s18, s16")
        A("s_not_b32 s16, s16"); A("v_mov_b32 v8, s18"); A("v_mov_b32 v9, s16"); A("s_mov_b64 exec, 1")
        A("buffer_atomic_%s v8, off, %s, 0 offset:4" % ("add" if pspan in (4, 5) else "umax", srd("DBG"))); A("buffer_atomic_umax v9, off, %s, 0 offset:8" % srd("DBG")); A("s_mov_b64 exec, -1")
    if probe:
        A("s_memrealtime s[20:21]"); A("s_waitcnt lgkmcnt(0)")
        if pstart: A("s_mov_b32 s20, s16")
        A("s_and_b32 s6, s2, 7"); A("s_lshr_b32 s6, %d, s6" % probe); A("s_and_b32 s6, s6, 1"); A("s_lshl_b32 s6, s6, 2"); A("s_add_u32 s6, s6, 4")
        A("s_waitcnt lgkmcnt(0)"); A("v_mov_b32 v8, s20"); A("s_mov_b64 exec, 1"); A("buffer_atomic_add v8, off, %s, s6" % srd("DBG")); A("s_mov_b64 exec, -1")
    A("s_waitcnt lgkmcnt(0)")
    A("s_branch L_done")

    def slot_addrs():
        A("v_lshlrev_b32 v28, 5, v0")
        A("s_and_b32 s%d, s%d, 3" % (sT0, sR)); A("s_lshl_b32 s%d, s%d, 3" % (sT0, sT0)); A("s_add_u32 s%d, s%d, s%d" % (sMU, sT0, sSTOFF))
    A("L_comm:")
    vZ = 20
    for i in range(4): A("v_mov_b32 v%d, 0" % (vZ + i))
    A("v_lshl_add_u32 v%d, v0, 2, v%d" % (vT, vHI))
    A("s_mov_b64 exec, 0xffff"); A("ds_write_b32 v%d, v%d offset:%d" % (vT, vZ, L_FLG)); A("s_mov_b64 exec, -1")
    slot_addrs()
    sEP = 4
    def epoch():
        A("s_waitcnt vmcnt(0)")
        A("v_readfirstlane_b32 s%d, v30" % sEP); A("v_readfirstlane_b32 s%d, v31" % (sEP + 1))
        A("s_add_u32 s%d, s%d, 0x%x" % (sEP, sEP, EP_STEP & 0xffffffff)); A("s_addc_u32 s%d, s%d, 0x%x" % (sEP + 1, sEP + 1, EP_STEP >> 32))
    A("s_waitcnt lgkmcnt(0)")
    A("buffer_load_dwordx2 v[30:31], off, %s, 0 offset:%d sc1" % (srd("WS"), WS_EP))
    A("s_barrier")
    A("v_add_u32 v%d, v%d, v%d" % (vT, vHI, vL16))
    A("v_and_b32 v29, 7, v0"); A("v_lshlrev_b32 v29, 14, v29"); A("v_lshl_add_u32 v29, v%d, 4, v29" % vG4)
    A("s_lshl_b32 s%d, s%d, 6" % (sT2, sRQ)); A("s_add_u32 s%d, s%d, 0x%x" % (sT2, sT2, WS_Q))
    A("s_bfe_u32 s%d, s%d, 0x30002" % (sT0, sR)); A("s_lshl_b32 s%d, s%d, 14" % (sT0, sT0)); A("s_lshr_b32 s%d, s%d, 5" % (sT1, sR)); A("s_lshl_b32 s%d, s%d, 11" % (sT1, sT1))
    A("s_add_u32 s%d, s%d, s%d" % (sT0, sT0, sT1)); A("s_add_u32 s%d, s%d, 0x%x" % (sT0, sT0, WS_Q))
    A("v_lshl_add_u32 v27, v0, 3, v%d" % vHI)
    epoch()
    A("v_mov_b32 v38, s%d" % sEP); A("v_mov_b32 v39, s%d" % (sEP + 1))
    stamp(1)
    lds_wait(F_QP, 4)
    for w in range(4): A("ds_read_b128 %s, v%d offset:%d" % (vr(40 + 4 * w, 4), vT, L_QP + w * 1024))
    A("s_waitcnt lgkmcnt(0)")
    for i in range(4): A("v_add_f32 v%d, v%d, v%d" % (40 + i, 40 + i, 44 + i)); A("v_add_f32 v%d, v%d, v%d" % (48 + i, 48 + i, 52 + i))
    for i in range(4): A("v_add_f32 v%d, v%d, v%d" % (40 + i, 40 + i, 48 + i))
    A("v_cvt_pk_bf16_f32 v36, v40, v41"); A("v_cvt_pk_bf16_f32 v37, v42, v43")
    A("s_mov_b32 exec_lo, 0x00ff00ff"); A("s_mov_b32 exec_hi, 0x00ff00ff")
    A("buffer_store_dwordx4 v[36:39], v29, %s, s%d offen sc1" % (srd("WS"), sT2))
    A("s_mov_b64 exec, -1")
    stamp(2)
    if qdelay: A("s_sleep %d" % qdelay)
    if qtrig: lds_wait(F_FULL, qtrig, sl=4)
    gpoll([(lambda: A("buffer_load_dwordx4 v[32:35], v%d, %s, s%d offen sc1" % (vL16, srd("WS"), sT0)), [32, 33, 34, 35]),
           (lambda: A("buffer_load_dwordx4 v[40:43], v%d, %s, s%d offen offset:1024 sc1" % (vL16, srd("WS"), sT0)), [40, 41, 42, 43])], sleep=qsleep, tag="s[%d:%d]" % (sEP, sEP + 1))
    A("ds_write_b64 v27, v[32:33] offset:%d" % L_QB); A("ds_write_b64 v27, v[40:41] offset:%d" % (L_QB + 512))
    lds_add(vHI, F_QR)
    stamp(4)
    def all_marked():
        A("v_lshlrev_b32 v%d, 5, v0" % (vT + 3))
        word_poll("buffer_load_dword v32, v%d, %s, 0 offen sc1" % (vT + 3, srd("DBG")), 32, "0xff", "v_cmp_gt_u32 vcc, 32, v%d", fsleep)
        stamp(3)
    all_marked()
    lds_add(vHI, F_AM)
    A("v_lshlrev_b32 v%d, 3, v%d" % (vT + 1, vN16)); A("v_add_u32 v%d, v%d, v%d" % (vT + 2, vHI, vT + 1))
    lds_wait(F_ST, 4)
    A("ds_read_b64 v[32:33], v%d offset:%d" % (vT + 2, L_ST)); A("s_waitcnt lgkmcnt(0)")
    def combine(modes):
        A("v_mov_b32 v34, v32")
        for m in modes: dpp("v_max_f32", 34, m)
        A("v_sub_f32 v32, v32, v34"); A("v_exp_f32 v32, v32"); A("v_mul_f32 v35, v32, v33")
        for m in modes: dpp("v_add_f32", 35, m)
    combine(("row_ror:4", "row_ror:8"))
    A("s_mov_b64 exec, 0xf"); A("buffer_store_dwordx2 v[34:35], v28, %s, s%d offen sc1" % (srd("WS"), sMU)); A("s_mov_b64 exec, -1")
    stamp(5)
    if sdelay: A("s_sleep %d" % sdelay)
    if strig:
        lds_wait(F_FULL, strig, sl=8)
    gpoll([(lambda: A("buffer_load_dwordx2 v[32:33], v%d, %s, s%d offen sc1" % (vT + 1, srd("WS"), sSTOFF)), [32, 33])], sleep=ssleep)
    combine(("quad_perm:[1,0,3,2]", "quad_perm:[2,3,0,1]"))
    A("v_rcp_f32 v35, v35"); A("v_lshl_add_u32 v%d, v%d, 3, v%d" % (vT + 2, vC4, vHI))
    A("s_mov_b64 exec, 0x1111"); A("ds_write_b64 v%d, v[34:35] offset:%d" % (vT + 2, L_GS)); A("s_mov_b64 exec, -1")
    lds_add(vHI, F_GR)
    stamp(6)
    A("s_mov_b32 s%d, 2" % sMU)
    A("L_gather56:")
    A("s_waitcnt lgkmcnt(0)")
    A("s_barrier")
    stamp(8)
    gather(sMU, lambda: None)
    A("s_waitcnt lgkmcnt(0)")
    A("s_barrier")
    stamp(9)
    A("s_branch L_done")

    A("L_mlp:")
    vW, vU = 32, 64
    def pg_addr(line, word):
        A("s_lshr_b32 s%d, s2, 3" % line); A("s_lshl_b32 s%d, s%d, 8" % (line, line)); A("s_add_u32 s%d, s%d, 0x%x" % (line, line, WS_PG))
        A("s_and_b32 s%d, s2, 7" % word); A("s_lshl_b32 s%d, s%d, 2" % (word, word)); A("s_add_u32 s%d, s%d, s%d" % (word, word, line))
    def clean():
        A("s_cmp_lg_u32 s%d, 7" % sWAVE); A("s_cbranch_scc1 L_noclean")
        for i in range(4): A("v_mov_b32 v%d, -1" % (60 + i))
        slot_addrs()
        A("v_lshlrev_b32 v%d, 13, v%d" % (59, vG4)); A("v_lshl_add_u32 v%d, v%d, 4, v%d" % (59, vN16, 59))
        A("s_lshl_b32 s%d, s%d, %d" % (sT1, sR, 11 + spad)); A("s_add_u32 s%d, s%d, 0x%x" % (sT1, sT1, WS_SP))
        A("v_lshrrev_b32 v29, 2, v0"); A("v_lshlrev_b32 v29, %d, v29" % (6 + spad)); A("v_lshl_add_u32 v29, v%d, 4, v29" % vR4)
        A("s_waitcnt lgkmcnt(0)")
        A("buffer_load_dwordx2 v[30:31], off, %s, 0 offset:%d sc1" % (srd("WS"), WS_EP))
        A("s_mov_b64 exec, 0xf"); A("buffer_store_dwordx2 v[60:61], v28, %s, s%d offen sc1" % (srd("WS"), sMU)); A("s_mov_b64 exec, -1")
        A("buffer_store_dwordx4 v[60:63], v%d, %s, s%d offen sc1" % (59, srd("WS"), sOPOFF))
        A("buffer_store_dwordx4 v[60:63], v29, %s, s%d offen sc1" % (srd("WS"), sT1))
        A("buffer_store_dwordx4 v[60:63], v29, %s, s%d offen offset:%d sc1" % (srd("WS"), sT1, 1024 << spad))
        if bal:
            pg_addr(sT1, sT3)
            A("s_mov_b64 exec, 1"); A("buffer_store_dword v60, off, %s, s%d sc1" % (srd("WS"), sT3)); A("s_mov_b64 exec, -1")
        if steal:
            A("s_lshl_b32 s%d, s%d, 12" % (sT1, sR)); A("s_add_u32 s%d, s%d, 0x%x" % (sT1, sT1, WS_PR))
            for k in range(4): A("buffer_store_dwordx4 v[60:63], v%d, %s, s%d offen offset:%d sc1" % (vL16, srd("WS"), sT1, 1024 * k))
            A("s_lshl_b32 s%d, s%d, 7" % (sT1, sR)); A("s_add_u32 s%d, s%d, 0x%x" % (sT1, sT1, WS_CW))
            A("s_mov_b64 exec, 1"); A("buffer_store_dword v60, off, %s, s%d sc1" % (srd("WS"), sT1)); A("s_mov_b64 exec, -1")
        A("L_noclean:")
    def arrive(cnt, lbl):
        A("s_cmp_lg_u32 s%d, 7" % sWAVE); A("s_cbranch_scc1 " + lbl)
        A("s_lshr_b32 s%d, s%d, 5" % (sT3, sR)); A("s_lshl_b32 s%d, s%d, 5" % (sT3, sT3))
        A("s_mov_b64 exec, 1")
        A("s_waitcnt vmcnt(%d)" % cnt)
        A("buffer_atomic_add v%d, off, %s, s%d" % (vONE, srd("DBG"), sT3))
        A("s_mov_b64 exec, -1")
        stamp(4)
        A(lbl + ":")
    if not cllate: clean()
    A("s_sub_u32 s%d, s%d, 6" % (sMB, sWAVE))
    A("v_mul_u32_u24 v%d, 12, v0" % vT); A("s_mul_i32 s%d, s%d, 1792" % (sT1, sMB))
    A("s_waitcnt lgkmcnt(0)")
    A("s_load_dword s%d, s[%d:%d], 0" % (sB2, sB2P, sB2P + 1))
    A("s_barrier")
    for k, n in enumerate(("W1", "B1", "W2")):
        A("buffer_load_dwordx4 %s, v%d, %s, s%d offen" % (vr(vW + 8 * k, 4), vL16, srd(n), sT1))
        A("buffer_load_dwordx3 %s, v%d, %s, s%d offen offset:1024" % (vr(vW + 8 * k + 4, 3), vT, srd(n), sT1))
    if not cllate: arrive(6, "L_noflag")
    A("s_lshr_b32 s%d, s%d, 5" % (sT0, sR)); A("s_mul_i32 s%d, s%d, %d" % (sT0, sT0, XN_STRIDE)); A("s_add_u32 s%d, s%d, %d" % (sT0, sT0, HI)); A("v_add_u32 v%d, s%d, v%d" % (vT + 1, sT0, vL16))
    A("s_lshl_b32 s%d, s%d, 13" % (sT2, sMB)); A("s_add_u32 s%d, s%d, %d" % (sT2, sT2, HI + L_WO)); A("v_add_u32 v%d, s%d, v%d" % (vT + 2, sT2, vL16))
    A("s_and_b32 s%d, s%d, 31" % (sT0, sR)); A("s_lshl_b32 s%d, s%d, 5" % (sT0, sT0)); A("s_add_u32 s%d, s%d, s%d" % (sT0, sT0, sT2))
    A("v_lshlrev_b32 v%d, 1, v%d" % (vT + 3, vN16)); A("v_add_u32 v%d, s%d, v%d" % (vT + 3, sT0, vT + 3))
    lds_wait(F_XN, 4)
    if cllate: clean()
    vXm = 112
    A("ds_read_b128 %s, v%d offset:%d" % (vr(vXm, 4), vT + 1, L_XN)); A("s_waitcnt lgkmcnt(0)")
    layernorm(vXm, 4, vXm + 4, vXm + 12, vXm + 20, 1)
    A("ds_write_b128 v%d, %s" % (vT + 2, vr(vXm, 4)))
    vH = 24
    A("ds_read_u16 v%d, v%d" % (vH, vT + 3))
    A("v_lshrrev_b32 v%d, 3, v0" % (vT + 4)); A("v_lshlrev_b32 v%d, 10, v%d" % (vT + 4, vT + 4)); A("v_and_b32 v%d, 7, v0" % (vT + 5)); A("v_lshl_add_u32 v%d, v%d, 4, v%d" % (vT + 4, vT + 5, vT + 4))
    A("s_lshr_b32 s%d, s%d, 3" % (sT0, sR)); A("s_lshl_b32 s%d, s%d, 17" % (sT0, sT0)); A("s_and_b32 s%d, s%d, 7" % (sT1, sR)); A("s_lshl_b32 s%d, s%d, 7" % (sT1, sT1))
    A("s_add_u32 s%d, s%d, s%d" % (sT0, sT0, sT1)); A("s_lshl_b32 s%d, s%d, 16" % (sT1, sMB)); A("s_add_u32 s%d, s%d, s%d" % (sT0, sT0, sT1))
    A("s_waitcnt vmcnt(0) lgkmcnt(0)")
    if cllate: arrive(0, "L_noflag")
    for a in range(8):
        A("s_add_u32 m0, s%d, %d" % (sT2, a * 1024))
        if 'o' not in abl and not wolate: A("buffer_load_dwordx4 v%d, %s, s%d offen %s lds" % (vT + 4, srd("WO"), sT0, polo))
        if a < 7: A("s_add_u32 s%d, s%d, 0x2000" % (sT0, sT0))
    stamp(1)
    A("v_lshlrev_b32 v%d, 16, v%d" % (vH, vH))
    for k in range(3):
        for i in range(7): unpack(vU + 14 * k + 2 * i, vU + 14 * k + 2 * i + 1, vW + 8 * k + i)
    vC0, vACC, U, T_ = 25, 26, 112, 128
    A("v_mov_b32 v%d, s%d" % (vC0, sC0))
    A("s_lshl_b32 s%d, s%d, 6" % (sT0, sMB)); A("s_add_u32 s%d, s%d, %d" % (sT0, sT0, HI + L_YP)); A("v_mov_b32 v27, s%d" % sT0)
    A("s_mov_b32 s%d, 0" % sT1)
    A("s_nop 3")
    A("L_mlp_loop:")
    A("v_readlane_b32 s%d, v%d, s%d" % (sMU, vH, sT1))
    for t in range(14): A("v_fma_f32 v%d, s%d, v%d, v%d" % (U + t, sMU, vU + t, vU + 14 + t))
    for t in range(14): A("v_mul_f32 v%d, v%d, v%d" % (T_ + t, U + t, U + t))
    for t in range(14): A("v_fma_f32 v%d, v%d, s%d, v%d" % (T_ + t, T_ + t, sC1, vC0))
    for t in range(14): A("v_mul_f32 v%d, v%d, v%d" % (T_ + t, T_ + t, U + t))
    for t in range(14):
        A("v_exp_f32 v%d, v%d" % (T_ + t, T_ + t)); A("v_mul_f32 v%d, v%d, v%d" % (U + t, U + t, vU + 28 + t))
    for t in range(14): A("v_add_f32 v%d, 1.0, v%d" % (T_ + t, T_ + t))
    for t in range(14): A("v_rcp_f32 v%d, v%d" % (T_ + t, T_ + t))
    A("v_mul_f32 v%d, v%d, v%d" % (vACC, U, T_)); A("v_mul_f32 v%d, v%d, v%d" % (U, U + 1, T_ + 1))
    for t in range(2, 14): A("v_fmac_f32 v%d, v%d, v%d" % (vACC if t & 1 else U, U + t, T_ + t))
    A("v_add_f32 v%d, v%d, v%d" % (vACC, vACC, U))
    red16(vACC, "v_add_f32"); dpp("v_add_f32", vACC, "row_bcast:15", "0xa"); dpp("v_add_f32", vACC, "row_bcast:31", "0xc")
    A("s_mov_b32 exec_lo, 0"); A("s_mov_b32 exec_hi, 0x80000000")
    A("ds_write_b32 v27, v%d" % vACC); A("v_add_u32 v27, 4, v27")
    A("s_mov_b64 exec, -1")
    A("s_add_u32 s%d, s%d, 1" % (sT1, sT1)); A("s_cmp_lt_u32 s%d, 16" % sT1); A("s_cbranch_scc1 L_mlp_loop")
    stamp(2)
    A("s_waitcnt vmcnt(0)")
    A("s_mov_b32 s%d, 3" % sMU)
    if steal:
        A("s_cmp_eq_u32 s%d, 7" % sWAVE); A("s_cbranch_scc1 L_final")
        lds_wait(F_AM, 1, sl=8)
        sCW = 4
        A("s_lshl_b32 s%d, s%d, 7" % (sCW, sR)); A("s_add_u32 s%d, s%d, 0x%x" % (sCW, sCW, WS_CW))
        def set_plan(val):
            A("v_mov_b32 v%d, %s" % (vT, val)); A("s_mov_b64 exec, 1"); A("ds_write_b32 v%d, v%d offset:%d" % (vHI, vT, F_PLAN)); A("s_mov_b64 exec, -1")
        for k in range(5, 11):
            if k == 8:
                A("s_xor_b32 s%d, s%d, 0x100" % (sCW, sCW))
            if k == 8:
                A("s_xor_b32 s%d, s%d, 2" % (sT1, sR)); A("s_lshl_b32 s%d, s%d, 12" % (sT1, sT1)); A("s_add_u32 s%d, s%d, 0x%x" % (sT1, sT1, WS_PR))
                A("v_add_u32 v%d, v%d, v%d" % (vT + 1, vHI, vL16))
                rec = [((lambda q=q: A("buffer_load_dwordx4 %s, v%d, %s, s%d offen offset:%d sc1" % (vr(36 + 4 * q, 4), vL16, srd("WS"), sT1, 1024 * q))), list(range(36 + 4 * q, 40 + 4 * q))) for q in range(4)]
                lds_wait(F_FULL, rtrig, sl=2)
                A("s_mov_b32 exec_hi, 0x1ffff")
                for i_, _ in rec: i_()
                A("s_mov_b64 exec, -1")
            lds_wait(F_FULL, 4 * k + cth + (bias if k >= 8 else 0), sl=2)
            A("v_mov_b32 v32, 1"); A("s_mov_b64 exec, 1")
            A("buffer_atomic_add v32, off, %s, s%d sc0" % (srd("WS"), sCW))
            A("s_mov_b64 exec, -1")
            A("s_mov_b32 s%d, 0x%x" % (sT2, 0x100 + k))
            A("s_waitcnt vmcnt(0)")
            A("v_readfirstlane_b32 s%d, v32" % sT0); A("s_add_u32 s%d, s%d, 1" % (sT0, sT0))
            if stamps and k < 9: stamp(k - 2)
            A("s_cmp_ge_u32 s%d, 3" % sT0); A("s_cbranch_scc1 L_close")
            if k == 8:
                A("s_mov_b32 exec_hi, 0x1ffff")
                gpoll(rec[:2], first=False, sleep=8, full="PARTIAL"); gpoll(rec[2:], first=False, sleep=8, full="PARTIAL")
                for q in range(4): A("ds_write_b128 v%d, %s offset:%d" % (vT + 1, vr(36 + 4 * q, 4), L_PP + 1024 * q))
                A("s_mov_b64 exec, -1")
                A("s_waitcnt lgkmcnt(0)")
            set_plan("%d" % (k + 1))
        A("s_mov_b32 s%d, 0x%x" % (sT2, 0x100 + 11))
        A("L_close:")
        set_plan("s%d" % sT2)
        A("s_branch L_gather56")
        A("L_final:")
    elif bal >= 2:
        A("s_cmp_eq_u32 s%d, 7" % sWAVE); A("s_cbranch_scc1 L_final")
        lds_wait(F_AM, 1, sl=8)
        pg_addr(4, 5)
        if bal == 3: A("s_lshl_b32 s4, s2, 8"); A("s_add_u32 s4, s4, 0x%x" % (WS_PG + 0x4000))
        for k in range(bmin):
            lds_wait(F_FULL, bthr + bper * k, sl=4)
            A("v_mov_b32 v%d, 1" % (32 + k)); A("s_mov_b64 exec, 1")
            if bal == 4: A("buffer_load_dword v%d, off, %s, s4 sc1" % (32 + k, srd("WS")))
            elif bal == 5: A("buffer_store_dword v%d, off, %s, s5 sc1" % (32 + k, srd("WS")))
            else: A("buffer_atomic_add v%d, off, %s, s4 sc0" % (32 + k, srd("WS")))
            A("s_mov_b64 exec, -1")
        A("s_waitcnt vmcnt(0)")
        A("s_branch L_gather56")
        A("L_final:")
    elif bal:
        A("s_cmp_eq_u32 s%d, 7" % sWAVE); A("s_cbranch_scc1 L_final")
        lds_wait(F_AM, 1, sl=8)
        pg_addr(4, 5)
        A("s_and_b32 s12, s2, 7"); A("v_lshlrev_b32 v33, 2, v0"); A("s_mov_b32 s13, 0")
        A("L_bal:")
        A("s_mov_b64 exec, 0xff"); A("buffer_load_dword v32, v33, %s, s4 offen sc1" % srd("WS"))
        A("s_mov_b64 exec, 1")
        A("ds_read_b32 v34, v%d offset:%d" % (vHI, F_FULL)); A("s_waitcnt lgkmcnt(0)")
        A("buffer_store_dword v34, off, %s, s5 sc1" % srd("WS"))
        A("s_mov_b64 exec, -1")
        A("v_readfirstlane_b32 s%d, v34" % sT0)
        A("s_cmp_ge_u32 s%d, %d" % (sT0, bstop)); A("s_cbranch_scc1 L_balend")
        A("s_waitcnt vmcnt(1)")
        A("v_readlane_b32 s%d, v32, s12" % sT1)
        A("s_mov_b64 exec, 0xff")
        A("v_cmp_eq_u32 vcc, -1, v32")
        if bmin:
            for m in QUADS[:3]: dpp("v_min_u32", 32, m)
        else:
            for m in QUADS[:3]: dpp("v_add_u32", 32, m)
        A("s_mov_b64 exec, -1")
        A("v_readfirstlane_b32 s%d, v32" % sT2)
        A("s_cmp_lg_u64 vcc, 0"); A("s_cbranch_scc1 L_balskip")
        if not bmin: A("s_lshl_b32 s%d, s%d, 3" % (sT1, sT1))
        A("s_sub_i32 s%d, s%d, s%d" % (sT1, sT1, sT2)); A("s_cmp_gt_i32 s%d, %d" % (sT1, bthr)); A("s_cselect_b32 s%d, 1, 0" % sT1)
        A("v_mov_b32 v35, s%d" % sT1); A("s_mov_b64 exec, 1"); A("ds_write_b32 v%d, v35 offset:%d" % (vHI, F_MODE)); A("s_mov_b64 exec, -1")
        A("L_balskip:")
        if bper: A("s_sleep %d" % bper)
        A("s_add_u32 s13, s13, 1"); A("s_cmp_lt_u32 s13, 4096"); A("s_cbranch_scc1 L_bal")
        A("L_balend:")
        A("v_mov_b32 v35, 0"); A("s_mov_b64 exec, 1"); A("ds_write_b32 v%d, v35 offset:%d" % (vHI, F_MODE)); A("s_mov_b64 exec, -1")
        A("s_waitcnt vmcnt(0)")
        A("s_branch L_gather56")
        A("L_final:")
    else:
        A("s_cmp_eq_u32 s%d, 6" % sWAVE); A("s_cbranch_scc1 L_gather56")
    if at2:
        A("v_and_b32 v%d, 7, v0" % (vT + 1)); A("v_lshrrev_b32 v%d, 5, v0" % (vT + 2)); A("v_lshl_add_u32 v%d, v%d, 1, v%d" % (vT + 1, vT + 1, vT + 2))
    else: A("v_lshl_add_u32 v%d, v%d, 2, v%d" % (vT + 1, vR4, vG4))
    A("v_lshlrev_b32 v%d, 1, v%d" % (vT + 2, vT + 1)); A("s_lshl_b32 s%d, s%d, 5" % (sT0, sR))
    A("buffer_load_ushort v%d, v%d, %s, s%d offen" % (vT + 3, vT + 2, srd("X"), sT0))
    A("v_lshl_add_u32 v%d, v%d, 2, v%d" % (vT + 1, vT + 1, vHI))
    A("s_lshl_b32 s%d, s%d, %d" % (sT1, sR, 11 + spad)); A("s_add_u32 s%d, s%d, 0x%x" % (sT1, sT1, WS_SP))
    A("v_lshrrev_b32 v29, 2, v0"); A("v_lshlrev_b32 v29, %d, v29" % (6 + spad)); A("v_lshl_add_u32 v29, v%d, 4, v29" % vR4)
    if wolate == 2:
        A("s_mov_b32 s12, s%d" % sT0); A("s_mov_b32 s13, s%d" % sT1)
        if steal: lds_wait(F_LI, 1, sl=2)
        else: lds_wait(F_FULL, wotrig, sl=2)
        wo_dma()
        A("s_mov_b32 s%d, s12" % sT0); A("s_mov_b32 s%d, s13" % sT1)
    A("s_waitcnt lgkmcnt(0)")
    A("s_barrier")
    stamp(8)
    A("ds_read_b32 v40, v%d offset:%d" % (vT + 1, L_YP)); A("ds_read_b32 v41, v%d offset:%d" % (vT + 1, L_YP + 64)); A("s_waitcnt lgkmcnt(0)")
    A("v_add_f32 v40, v40, v41"); rbf(40)
    A("s_lshl_b32 s%d, s%d, 16" % (sB2, sB2)); A("v_add_f32 v40, s%d, v40" % sB2); rbf(40)
    A("v_mul_f32 v41, s%d, v40" % sL2E); A("v_exp_f32 v41, -v41"); A("v_add_f32 v41, 1.0, v41"); A("v_rcp_f32 v41, v41"); A("v_mul_f32 v40, v40, v41"); rbf(40)
    A("s_waitcnt vmcnt(0)"); A("v_lshlrev_b32 v%d, 16, v%d" % (vT + 3, vT + 3))
    if wolate == 2:
        A("s_mov_b64 exec, 1"); A("ds_write_b32 v%d, v%d offset:%d" % (vHI, vONE, F_WO)); A("s_mov_b64 exec, -1")
        stamp(11)
    A("s_barrier")
    stamp(9)
    if td2: A("s_sleep %d" % td2)
    if at2:
        A("v_lshlrev_b32 v29, 3, v0")
        apoll(32, 29, sT1, 44, tsleep2)
        stamp(10)
        A("v_add_f32 v44, v32, v34"); A("v_add_f32 v45, v33, v35"); A("v_add_f32 v46, v36, v38"); A("v_add_f32 v47, v37, v39")
        A("v_add_f32 v44, v44, v46"); A("v_add_f32 v45, v45, v47")
        A("v_permlane32_swap_b32 v44, v45"); A("v_add_f32 v44, v44, v45")
        swap_red(44, 45, "v_add_f32", 16)
        dpp("v_add_f32", 44, "row_ror:8")
    else:
        gpoll([(lambda: A("buffer_load_dwordx4 v[32:35], v29, %s, s%d offen %s" % (srd("WS"), sT1, tl)), [32, 33, 34, 35]),
               (lambda: A("buffer_load_dwordx4 v[36:39], v29, %s, s%d offen offset:%d %s" % (srd("WS"), sT1, 1024 << spad, tl)), [36, 37, 38, 39])], sleep=tsleep2, P=P2)
        stamp(10)
        for i in range(4): A("v_add_f32 v%d, v%d, v%d" % (44 + i, 32 + i, 36 + i))
        A("v_permlane32_swap_b32 v44, v46"); A("v_permlane32_swap_b32 v45, v47")
        A("v_add_f32 v44, v44, v46"); A("v_add_f32 v45, v45, v47")
        A("v_permlane16_swap_b32 v44, v45"); A("v_add_f32 v44, v44, v45")
        dpp("v_add_f32", 44, "row_ror:8"); dpp("v_add_f32", 44, "row_ror:4")
    rbf(44); A("v_mul_f32 v44, v44, v40"); rbf(44)
    A("v_add_f32 v44, v44, v%d" % (vT + 3)); A("v_cvt_pk_bf16_f32 v44, v44, v44")
    em = "0xff" if at2 else "0x000f000f"
    A("s_mov_b32 exec_lo, %s" % em); A("s_mov_b32 exec_hi, %s" % em)
    A("buffer_store_short v44, v%d, %s, s%d offen" % (vT + 2, srd("OUT"), sT0))
    A("s_mov_b64 exec, -1")
    A("s_cmp_lg_u32 s%d, 0" % sR); A("s_cbranch_scc1 L_done")
    epoch()
    A("v_mov_b32 v30, s%d" % sEP); A("v_mov_b32 v31, s%d" % (sEP + 1)); A("s_mov_b64 exec, 1")
    A("buffer_store_dwordx2 v[30:31], off, %s, 0 offset:%d sc1" % (srd("WS"), WS_EP))
    A("s_mov_b64 exec, -1")
    if probe or p_b >= 0 or pspan:
        A("buffer_load_dwordx2 v[30:31], off, %s, 0 offset:4 sc1" % srd("DBG")); A("s_memrealtime s[16:17]"); A("s_waitcnt vmcnt(0) lgkmcnt(0)")
        A("v_readfirstlane_b32 s6, v30"); A("v_readfirstlane_b32 s7, v31")
        if probe: A("s_sub_i32 s6, s6, s7"); A("s_abs_i32 s6, s6"); A("s_lshr_b32 s6, s6, 4")
        elif pspan == 1: A("s_not_b32 s7, s7"); A("s_sub_u32 s6, s6, s7"); A("s_lshl_b32 s6, s6, 2")
        elif pspan == 2: A("s_sub_u32 s6, s16, s6"); A("s_lshl_b32 s6, s6, 3")
        elif pspan == 6: A("s_not_b32 s7, s7"); A("s_sub_u32 s6, s16, s7"); A("s_lshl_b32 s6, s6, 2")
        elif pspan == 3: A("s_not_b32 s7, s7"); A("s_sub_u32 s6, s6, s7"); A("s_lshl_b32 s6, s6, 3")
        elif pspan in (4, 5): A("s_not_b32 s7, s7"); A("s_lshl_b32 s7, s7, 8"); A("s_sub_u32 s6, s6, s7"); A("s_lshr_b32 s6, s6, %d" % (5 if pspan == 4 else 6))
        else: A("s_lshr_b32 s6, s6, 5")
        A("s_min_u32 s6, s6, 20000")
        A("s_add_u32 s16, s16, s6")
        A("L_pad2:"); A("s_memrealtime s[18:19]"); A("s_waitcnt lgkmcnt(0)"); A("s_sub_u32 s18, s18, s16"); A("s_cmp_lt_i32 s18, 0"); A("s_cbranch_scc1 L_pad2")
    A("L_done:")
    A("s_waitcnt vmcnt(0)")
    if pad:
        A("s_waitcnt lgkmcnt(0)"); A("s_add_u32 s16, s16, %d" % pad)
        A("L_pad:"); A("s_memrealtime s[18:19]"); A("s_waitcnt lgkmcnt(0)"); A("s_sub_u32 s18, s18, s16"); A("s_cmp_lt_i32 s18, 0"); A("s_cbranch_scc1 L_pad")
    if stamps:
        A("s_waitcnt vmcnt(0)")
        stamp(NST - 1)
        A("s_waitcnt lgkmcnt(0)")
        A("s_lshl_b32 s%d, s2, 3" % sT0); A("s_add_u32 s%d, s%d, s%d" % (sT0, sT0, sWAVE)); A("s_mul_i32 s%d, s%d, %d" % (sT0, sT0, NST * 8)); A("s_add_u32 s%d, s%d, 0x%x" % (sT0, sT0, WS_STAMP))
        A("s_mov_b64 exec, 1")
        for k in range(NST):
            A("v_mov_b32 v2, s%d" % (16 + 2 * k)); A("v_mov_b32 v3, s%d" % (17 + 2 * k))
            A("buffer_store_dwordx2 v[2:3], off, %s, s%d offset:%d" % (srd("WS"), sT0, k * 8)); A("s_nop 1")
    A("L_end:")
    A("s_endpgm")
    body = A.finalize()
    hdr = open("recurrent_scan__gqa_block_cached__mixer_token_mlp__decode.s.ref").read().split("; Override launch")[0]
    s = hdr + "; @launch grid=(256,1,1) block=(512,1,1) lds=%d\n" % LDS_BYTES
    s += '.amdgcn_target "amdgcn-amd-amdhsa--gfx950"\n.text\n.globl %s\n.p2align 8\n.type %s,@function\n%s:\n' % (NAME, NAME, NAME)
    s += body
    s += '.section .rodata,"a"\n.p2align 6\n.amdhsa_kernel %s\n  .amdhsa_next_free_vgpr 256\n  .amdhsa_next_free_sgpr 102\n  .amdhsa_accum_offset 256\n' % NAME
    s += "  .amdhsa_group_segment_fixed_size 0\n  .amdhsa_kernarg_size 104\n  .amdhsa_user_sgpr_count 2\n  .amdhsa_user_sgpr_kernarg_segment_ptr 1\n  .amdhsa_system_sgpr_workgroup_id_x 1\n.end_amdhsa_kernel\n"
    return s, A

if __name__ == "__main__":
    out = sys.argv[1]
    kw = {}
    for p in sys.argv[2:]:
        k, v = p.split("=")
        kw[k] = int(v) if v.lstrip("-").isdigit() else v.replace("+", " ")
    s, A = gen(**kw)
    open(out, "w").write(s)
    print("wrote", out, "instructions", len(A.ins), "nops", A.nops, "lds", LDS_BYTES)
```

```python
import sys, struct
from asmlib import Asm

NAME = "recurrent_scan__gqa_block_cached__mixer_token_mlp__decode_kernel"
def f2u(x): return struct.unpack("<I", struct.pack("<f", x))[0]

WS_ST, WS_OP, WS_SP, WS_Q, WS_EP = 0x10000, 0x20000, 0x100000, 0x60000, 0x0
WS_CW = 0x80000
EP_STEP = 0x9E3779B97F4A7C15
WS_STAMP = 128 << 20
HI = 131072
L_WO = 0
L_XN, XN_STRIDE = 16384, 1040
L_OW = L_XN
L_QP = 24704
L_QB = 28800
L_FLG = 29824
L_ST = L_FLG + 256
L_GS = L_ST + 128
L_YP = L_GS + 32
LDS_BYTES = HI + L_YP + 128
F_FULL, F_XN, F_QP, F_QR, F_ST, F_GR, F_WO, F_AM, F_SL, F_PLAN = [L_FLG + 4 * i for i in (0, 8, 9, 10, 11, 12, 13, 14, 16, 32)]

sWAVE, sBASE, sOFF = 3, 4, 5
sT0, sT1, sT2 = 6, 7, 8
sR, sSPIN, sT3 = 9, 10, 11
sMU, sMB = 14, 15
SRD = dict(K=44, V=48, X=52, WQ=56, WO=60, W1=64, B1=68, W2=72, OUT=76, DBG=80, WS=84)
KARG = dict(X=0, K=8, V=16, WQ=24, WO=32, W1=48, B1=56, W2=64, OUT=80, DBG=88, WS=96)
SIZE = dict(X=8192, K=1 << 26, V=1 << 26, WQ=1 << 22, WO=1 << 22, W1=3584, B1=3584, W2=3584, OUT=8192, DBG=256, WS=1 << 28)
sSELLO, sSELHI, sMASK, sSCALE, sL2E, sC0, sC1, sB2, sB2P = 88, 89, 90, 91, 92, 93, 94, 95, 96
sOPOFF, sSPOFF, sRW, sFULL = 98, 99, 100, 101
def srd(n): return "s[%d:%d]" % (SRD[n], SRD[n] + 3)
def vr(a, n=1): return "v%d" % a if n == 1 else "v[%d:%d]" % (a, a + n - 1)
vL16, vG4, vC4, vR4, vN16, vHI, vONE = 1, 2, 3, 4, 5, 6, 7
vT = 8
vPOLL = 16

def gen(F=4, stamps=0, pol="nt", spin=1 << 17, lspin=1 << 22, mimic=1, lsleep=1, ldprio=3, fsleep=8, qsleep=2, ssleep=8, tsleep=0, xmap=8, ldst=0,
        td2=8, qtrig=8, wotrig=4, nf=24, maxt=16, n1=20, t0=34, tstep=2, tamt=2, lag=1, force="", tlist="", sdelay=0, noat=0, pg=2, cws=128, womap=1):
    NF, POOL, MAXT = nf, 128 - 4 * nf, maxt
    NU = MAXT // 4
    NB = n1 // 4
    NW = NF // 4
    A = Asm()
    NST = 14
    def stamp(k):
        if stamps: A("s_memrealtime s[%d:%d]" % (16 + 2 * k, 17 + 2 * k))
    QUADS = ("quad_perm:[1,0,3,2]", "quad_perm:[2,3,0,1]", "row_half_mirror", "row_mirror")
    def dpp(op, v, m, rm="0xf"): A("%s_dpp v%d, v%d, v%d %s row_mask:%s bank_mask:0xf" % (op, v, v, v, m, rm))
    def red16(v, op):
        for m in QUADS: dpp(op, v, m)
    def swap_red(v, t, op, which):
        A("v_mov_b32 v%d, v%d" % (t, v)); A("v_permlane%d_swap_b32 v%d, v%d" % (which, v, t)); A("%s v%d, v%d, v%d" % (op, v, v, t))
    def rbf(v):
        A("v_cvt_pk_bf16_f32 v%d, v%d, v%d" % (v, v, v)); A("v_lshlrev_b32 v%d, 16, v%d" % (v, v))
    def unpack(dlo, dhi, src):
        A("v_lshlrev_b32 v%d, 16, v%d" % (dlo, src)); A("v_and_b32 v%d, s%d, v%d" % (dhi, sMASK, src))
    def one_lane(text):
        A("s_mov_b64 exec, 1"); A(text); A("s_mov_b64 exec, -1")
    def layernorm(pk, n, x, d, t, halves):
        def allred(v):
            red16(v, "v_add_f32"); swap_red(v, t + 2, "v_add_f32", 16)
            if halves == 1: swap_red(v, t + 2, "v_add_f32", 32)
        for i in range(n): unpack(x + 2 * i, x + 2 * i + 1, pk + i)
        A("v_add_f32 v%d, v%d, v%d" % (t, x, x + 1)); A("v_add_f32 v%d, v%d, v%d" % (t + 1, x + 2, x + 3))
        for i in range(4, 2 * n): A("v_add_f32 v%d, v%d, v%d" % (t + (i & 1), t + (i & 1), x + i))
        A("v_add_f32 v%d, v%d, v%d" % (t, t, t + 1))
        allred(t)
        A("v_mul_f32 v%d, 0x3b000000, v%d" % (t, t))
        A("v_cvt_pk_bf16_f32 v%d, v%d, v%d" % (t + 1, t, t))
        for i in range(2 * n): A("v_sub_f32 v%d, v%d, v%d" % (d + i, x + i, t))
        A("v_lshlrev_b32 v%d, 16, v%d" % (t + 1, t + 1))
        A("v_mul_f32 v%d, v%d, v%d" % (t, d, d)); A("v_mul_f32 v%d, v%d, v%d" % (d, d + 1, d + 1))
        for i in range(2, 2 * n): A("v_fmac_f32 v%d, v%d, v%d" % (t if i & 1 else d, d + i, d + i))
        A("v_add_f32 v%d, v%d, v%d" % (t, t, d))
        for i in range(2 * n): A("v_sub_f32 v%d, v%d, v%d" % (x + i, x + i, t + 1))
        allred(t)
        for i in range(n): A("v_cvt_pk_bf16_f32 v%d, v%d, v%d" % (pk + i, x + 2 * i, x + 2 * i + 1))
        A("v_mul_f32 v%d, 0x3b000000, v%d" % (t, t)); rbf(t)
        A("v_add_f32 v%d, 0x%x, v%d" % (t, f2u(1e-5), t)); rbf(t)
        A("v_sqrt_f32 v%d, v%d" % (t, t)); rbf(t)
        A("v_rcp_f32 v%d, v%d" % (t, t))
        for i in range(n): unpack(x + 2 * i, x + 2 * i + 1, pk + i)
        for i in range(2 * n): A("v_mul_f32 v%d, v%d, v%d" % (x + i, t, x + i))
        for i in range(n): A("v_cvt_pk_bf16_f32 v%d, v%d, v%d" % (pk + i, x + 2 * i, x + 2 * i + 1))
    def lds_wait(flag, val, keep=None, sl=None):
        ok = A.label("lok"); again = A.label("lagain")
        dst = keep if keep is not None else sT3
        if keep is not None:
            A("s_cmp_ge_u32 s%d, %s" % (keep, val)); A("s_cbranch_scc1 " + ok)
        A("s_mov_b32 s%d, 0" % sSPIN)
        A(again + ":")
        A("ds_read_b32 v%d, v%d offset:%d" % (vPOLL, vHI, flag)); A("s_waitcnt lgkmcnt(0)")
        A("v_readfirstlane_b32 s%d, v%d" % (dst, vPOLL))
        A("s_cmp_ge_u32 s%d, %s" % (dst, val)); A("s_cbranch_scc1 " + ok)
        if sl is None: sl = lsleep
        if sl: A("s_sleep %d" % sl)
        A("s_add_u32 s%d, s%d, 1" % (sSPIN, sSPIN)); A("s_cmp_lt_u32 s%d, %d" % (sSPIN, lspin)); A("s_cbranch_scc1 " + again)
        A(ok + ":")
    def lds_add(flag_addr_reg, off):
        A("s_waitcnt lgkmcnt(0)")
        one_lane("ds_add_u32 v%d, v%d offset:%d" % (flag_addr_reg, vONE, off))
    def wait_near_end(dist, sl):
        lds_wait(F_PLAN, "0x100", sl=sl)
        A("s_and_b32 s%d, s%d, 31" % (sT3, sT3)); A("s_lshl_b32 s%d, s%d, 1" % (sT3, sT3)); A("s_add_u32 s4, s%d, %d" % (sT3, 2 * NF - dist))
        lds_wait(F_FULL, "s4", sl=sl)
    def gpoll(loads, first=True, sleep=0, tag=None):
        ok = A.label("ok"); again = A.label("again")
        masks = ["vcc", "s[12:13]"]
        A("s_mov_b32 s%d, 0" % sSPIN)
        if first:
            for issue, regs in loads: issue()
        A(again + ":")
        A("s_waitcnt vmcnt(0)")
        for (issue, regs), mk in zip(loads, masks):
            t = vT + 7
            if tag is not None:
                A("v_cmp_ne_u64 %s, %s, v[%d:%d]" % (mk, tag, regs[2], regs[3])); continue
            if len(regs) == 2: A("v_max_u32 v%d, v%d, v%d" % (t, regs[0], regs[1]))
            else:
                A("v_max3_u32 v%d, v%d, v%d, v%d" % (t, regs[0], regs[1], regs[2])); A("v_max_u32 v%d, v%d, v%d" % (t, t, regs[3]))
            A("v_cmp_eq_u32 %s, -1, v%d" % (mk, t))
        if len(loads) == 2:
            A("s_or_b32 s%d, vcc_lo, vcc_hi" % sT3); A("s_or_b32 s%d, s%d, s12" % (sT3, sT3)); A("s_or_b32 s%d, s%d, s13" % (sT3, sT3))
        else:
            A("s_or_b32 s%d, vcc_lo, vcc_hi" % sT3)
        A("s_cbranch_scc0 " + ok)
        if sleep: A("s_sleep %d" % sleep)
        for (issue, regs), mk in zip(loads, masks):
            A("s_mov_b64 exec, %s" % mk); issue()
        A("s_mov_b64 exec, -1")
        A("s_add_u32 s%d, s%d, 1" % (sSPIN, sSPIN)); A("s_cmp_lt_u32 s%d, %d" % (sSPIN, spin)); A("s_cbranch_scc1 " + again)
        A("s_waitcnt vmcnt(0)")
        A(ok + ":")
    def apoll(vd, vaddr, soff, vtmp, sleep):
        ms = ["vcc", "s[12:13]", "s[88:89]", "s[90:91]"]
        ok = A.label("aok"); again = A.label("aagain")
        def iss(k):
            A("v_mov_b32 v%d, 0" % (vd + 2 * k)); A("v_mov_b32 v%d, 0" % (vd + 1 + 2 * k))
            A("buffer_atomic_or_x2 v[%d:%d], v%d, %s, s%d offen offset:%d sc0" % (vd + 2 * k, vd + 1 + 2 * k, vaddr, srd("WS"), soff, 512 * k))
        A("s_mov_b32 s%d, 0" % sSPIN)
        for k in range(4): iss(k)
        A(again + ":")
        A("s_waitcnt vmcnt(0)")
        for k in range(4): A("v_max_u32 v%d, v%d, v%d" % (vtmp + k, vd + 2 * k, vd + 1 + 2 * k))
        for k in range(4): A("v_cmp_eq_u32 %s, -1, v%d" % (ms[k], vtmp + k))
        A("s_or_b64 s[92:93], vcc, s[12:13]"); A("s_or_b64 s[94:95], s[88:89], s[90:91]"); A("s_or_b64 s[92:93], s[92:93], s[94:95]")
        A("s_cbranch_scc0 " + ok)
        if sleep: A("s_sleep %d" % sleep)
        for k in range(4):
            A("s_mov_b64 exec, %s" % ms[k]); iss(k)
        A("s_mov_b64 exec, -1")
        A("s_add_u32 s%d, s%d, 1" % (sSPIN, sSPIN)); A("s_cmp_lt_u32 s%d, %d" % (sSPIN, spin)); A("s_cbranch_scc1 " + again)
        A("s_waitcnt vmcnt(0)")
        A(ok + ":")
    def word_poll(load, vd, lanes, cmp, sleep):
        ok = A.label("fok"); again = A.label("fagain")
        A("s_mov_b32 s%d, 0" % sSPIN); A("s_mov_b64 exec, %s" % lanes)
        A(again + ":")
        A(load)
        A("s_waitcnt vmcnt(0)")
        A(cmp % vd)
        A("s_cmp_eq_u64 vcc, 0"); A("s_cbranch_scc1 " + ok)
        if sleep: A("s_sleep %d" % sleep)
        A("s_add_u32 s%d, s%d, 1" % (sSPIN, sSPIN)); A("s_cmp_lt_u32 s%d, %d" % (sSPIN, spin)); A("s_cbranch_scc1 " + again)
        A(ok + ":")
        A("s_mov_b64 exec, -1")

    A("s_cmp_ge_u32 s2, 256"); A("s_cbranch_scc1 L_end")
    if stamps:
        for k in range(1, NST): A("s_mov_b64 s[%d:%d], 0" % (16 + 2 * k, 17 + 2 * k))
    stamp(0)
    for n in ("K", "X", "WQ", "WS", "V", "WO", "W1", "B1", "W2", "DBG", "OUT"):
        A("s_load_dwordx2 s[%d:%d], s[0:1], %d" % (SRD[n], SRD[n] + 1, KARG[n]))
    A("s_load_dwordx2 s[%d:%d], s[0:1], 72" % (sB2P, sB2P + 1))
    A("v_lshrrev_b32 v1, 6, v0"); A("v_and_b32 v0, 63, v0"); A("v_readfirstlane_b32 s%d, v1" % sWAVE)
    for n in SRD:
        A("s_mov_b32 s%d, 0x%x" % (SRD[n] + 2, SIZE[n])); A("s_mov_b32 s%d, 0x20000" % (SRD[n] + 3))
    sRQ = sMB
    A("s_and_b32 s%d, s2, 7" % sRQ); A("s_lshl_b32 s%d, s%d, 2" % (sRQ, sRQ)); A("s_and_b32 s%d, s2, 0xe0" % sT2); A("s_add_u32 s%d, s%d, s%d" % (sRQ, sRQ, sT2))
    A("s_bfe_u32 s%d, s2, 0x20003" % sT0); A("s_add_u32 s%d, s%d, s%d" % (sRQ, sRQ, sT0)); A("s_add_u32 s%d, s%d, s%d" % (sT2, sT2, sT0))
    if xmap == 8:
        A("s_bfe_u32 s%d, s2, 0x10003" % sT0); A("s_bfe_u32 s%d, s2, 0x10004" % sT1); A("s_lshl_b32 s%d, s%d, 2" % (sT1, sT1)); A("s_add_u32 s%d, s%d, s%d" % (sT0, sT0, sT1))
        A("s_sub_u32 s%d, s2, s%d" % (sR, sT0))
        A("s_and_b32 s%d, s%d, 7" % (sR, sR)); A("s_lshl_b32 s%d, s%d, 2" % (sR, sR)); A("s_add_u32 s%d, s%d, s%d" % (sR, sR, sT2))
    else: A("s_mov_b32 s%d, s%d" % (sR, sRQ))
    if womap == 0: A("s_mov_b32 s%d, s%d" % (sRW, sR))
    elif womap == 1: A("s_mov_b32 s%d, s%d" % (sRW, sRQ))
    else: A("s_and_b32 s%d, s2, 7" % sRW); A("s_lshl_b32 s%d, s%d, 5" % (sRW, sRW)); A("s_lshr_b32 s%d, s2, 3" % sT0); A("s_add_u32 s%d, s%d, s%d" % (sRW, sRW, sT0))
    A("v_lshlrev_b32 v%d, 4, v0" % vL16); A("v_lshrrev_b32 v%d, 4, v0" % vG4); A("v_bfe_u32 v%d, v0, 2, 2" % vC4)
    A("v_and_b32 v%d, 3, v0" % vR4); A("v_and_b32 v%d, 15, v0" % vN16); A("v_mov_b32 v%d, 0x%x" % (vHI, HI)); A("v_mov_b32 v%d, 1" % vONE)
    A("s_mov_b32 s%d, 0xffff0000" % sMASK)
    A("s_mov_b32 s%d, 0x%x" % (sSCALE, f2u(128 ** -0.5))); A("s_mov_b32 s%d, 0x%x" % (sL2E, f2u(1.4426950408889634)))
    c0 = -2.0 * 0.7978845608028654 * 1.4426950408889634
    A("s_mov_b32 s%d, 0x%x" % (sC0, f2u(c0))); A("s_mov_b32 s%d, 0x%x" % (sC1, f2u(c0 * 0.044715)))
    A("s_lshr_b32 s%d, s%d, 5" % (sT0, sR)); A("s_lshl_b32 s%d, s%d, 15" % (sT0, sT0))
    A("s_and_b32 s%d, s%d, 31" % (sT1, sR)); A("s_lshl_b32 s%d, s%d, 8" % (sT1, sT1)); A("s_add_u32 s%d, s%d, s%d" % (sT0, sT0, sT1))
    A("s_add_u32 s%d, s%d, 0x%x" % (sOPOFF, sT0, WS_OP))
    A("s_and_b32 s%d, s%d, 7" % (sT0, sRW)); A("s_lshl_b32 s%d, s%d, %d" % (sT0, sT0, 13))
    A("s_lshr_b32 s%d, s%d, 3" % (sT1, sRW)); A("s_lshl_b32 s%d, s%d, %d" % (sT1, sT1, 6)); A("s_add_u32 s%d, s%d, s%d" % (sT0, sT0, sT1))
    A("s_add_u32 s%d, s%d, 0x%x" % (sSPOFF, sT0, WS_SP))
    A("s_cmp_eq_u32 s%d, 4" % sWAVE); A("s_cbranch_scc1 L_loader")
    A("s_cmp_eq_u32 s%d, 5" % sWAVE); A("s_cbranch_scc1 L_comm")
    A("s_cmp_gt_u32 s%d, 5" % sWAVE); A("s_cbranch_scc1 L_mlp")

    vQ, vS, vTMP, vK = 32, 48, 112, 128
    vKA, vVP = 17, 17
    vM, vLs, vMO, vF, vOWA = 25, 26, 27, 28, 29
    vS2, vP2, vVT = vS + 8 * NW, 224, 248
    assert vS2 + 8 * NU <= 128 and NB >= 4
    sPLAN, sI, sNX = 13, 12, 14
    vX = vS
    A("v_lshlrev_b32 v%d, 5, v0" % vT)
    A("v_lshrrev_b32 v%d, 1, v0" % (vT + 1)); A("v_lshlrev_b32 v%d, 13, v%d" % (vT + 1, vT + 1))
    A("v_and_b32 v%d, 1, v0" % (vT + 2)); A("v_lshl_add_u32 v%d, v%d, 4, v%d" % (vT + 1, vT + 2, vT + 1))
    A("s_lshl_b32 s%d, s%d, 11" % (sT2, sWAVE))
    A("s_lshl_b32 s%d, s%d, 20" % (sT0, sWAVE)); A("s_lshl_b32 s%d, s%d, 5" % (sT1, sRQ)); A("s_add_u32 s%d, s%d, s%d" % (sT0, sT0, sT1))
    A("s_lshl_b32 s%d, s%d, 13" % (sT1, sWAVE)); A("s_add_u32 s%d, s%d, %d" % (sT1, sT1, 12 * 8192))
    A("s_waitcnt lgkmcnt(0)")
    A("buffer_load_dwordx4 %s, v%d, %s, s%d offen" % (vr(vX, 4), vT, srd("X"), sT2))
    A("buffer_load_dwordx4 %s, v%d, %s, s%d offen offset:16" % (vr(vX + 4, 4), vT, srd("X"), sT2))
    for a in range(4):
        A("s_add_u32 m0, s%d, %d" % (sT1, a * 1024))
        A("buffer_load_dwordx4 v%d, %s, s%d offen %s lds" % (vT + 1, srd("WQ"), sT0, pol))
        if a < 3: A("s_add_u32 s%d, s%d, 0x40000" % (sT0, sT0))
    A("s_barrier")
    A("v_lshrrev_b32 v%d, 5, v0" % (vT + 3)); A("s_lshl_b32 s%d, s%d, 1" % (sT0, sWAVE)); A("v_add_u32 v%d, s%d, v%d" % (vT + 3, sT0, vT + 3))
    A("v_mul_u32_u24 v%d, %d, v%d" % (vT + 3, XN_STRIDE, vT + 3)); A("v_and_b32 v%d, 31, v0" % (vT + 4)); A("v_lshl_add_u32 v%d, v%d, 5, v%d" % (vT + 3, vT + 4, vT + 3))
    A("v_add_u32 v%d, v%d, v%d" % (vT + 3, vHI, vT + 3))
    A("v_and_b32 v%d, 7, v0" % (vT + 4)); A("v_mul_u32_u24 v%d, %d, v%d" % (vT + 4, XN_STRIDE, vT + 4)); A("v_lshl_add_u32 v%d, v%d, 4, v%d" % (vT + 4, vG4, vT + 4))
    A("s_lshl_b32 s%d, s%d, 8" % (sT0, sWAVE)); A("s_add_u32 s%d, s%d, %d" % (sT0, sT0, HI)); A("v_add_u32 v%d, s%d, v%d" % (vT + 4, sT0, vT + 4))
    A("v_lshlrev_b32 v%d, 8, v%d" % (vT + 5, vG4)); A("v_lshl_add_u32 v%d, v%d, 3, v%d" % (vT + 5, vN16, vT + 5)); A("v_add_u32 v%d, s%d, v%d" % (vT + 5, sT1, vT + 5))
    A("s_lshl_b32 s%d, s%d, 10" % (sT0, sWAVE)); A("s_add_u32 s%d, s%d, %d" % (sT0, sT0, HI)); A("v_add_u32 v%d, s%d, v%d" % (vT + 6, sT0, vL16))
    def k_addrs(dst, sbase, t, twin):
        A("v_lshlrev_b32 v%d, 8, v%d" % (t, vN16)); A("v_add_u32 v%d, s%d, v%d" % (t, sbase, t))
        for m in range(4):
            A("v_add_u32 v%d, %d, v%d" % (t + 1, 4 * m, vG4)); A("v_xor_b32 v%d, v%d, v%d" % (t + 1, t + 1, vN16))
            A("v_lshl_add_u32 v%d, v%d, 4, v%d" % (dst + m, t + 1, t))
            if twin: A("v_add_u32 v%d, 0x10000, v%d" % (dst + 4 + m, dst + m))
    A("s_lshl_b32 s%d, s%d, 13" % (sT0, sWAVE)); k_addrs(vKA, sT0, vT, True)
    A("s_lshl_b32 s%d, s%d, 2" % (sT0, sWAVE)); A("s_add_u32 s%d, s%d, %d" % (sT0, sT0, HI)); A("v_mov_b32 v%d, s%d" % (30, sT0))
    A("s_mov_b32 s%d, 0" % sFULL); A("s_mov_b32 s%d, 0" % sPLAN)
    A("s_waitcnt vmcnt(4)")
    stamp(1)
    layernorm(vX, 8, vX + 8, vX + 24, vX + 40, 2)
    A("ds_write_b128 v%d, %s offset:%d" % (vT + 3, vr(vX, 4), L_XN)); A("ds_write_b128 v%d, %s offset:%d" % (vT + 3, vr(vX + 4, 4), L_XN + 16))
    lds_add(vHI, F_XN)
    A("s_waitcnt vmcnt(0)")
    for m in range(4):
        A("ds_read_b64_tr_b16 %s, v%d offset:%d" % (vr(vK + 4 * m, 2), vT + 5, m * 1024))
        A("ds_read_b64_tr_b16 %s, v%d offset:%d" % (vr(vK + 4 * m + 2, 2), vT + 5, m * 1024 + 128))
    lds_wait(F_XN, 4)
    for m in range(4): A("ds_read_b128 %s, v%d offset:%d" % (vr(vK + 16 + 4 * m, 4), vT + 4, L_XN + m * 64))
    for m in range(4):
        A("s_waitcnt lgkmcnt(%d)" % (3 - m))
        A("v_mfma_f32_16x16x32_bf16 %s, %s, %s, %s" % (vr(vTMP, 4), vr(vK + 4 * m, 4), vr(vK + 16 + 4 * m, 4), "0" if m == 0 else vr(vTMP, 4)))
    A("ds_write_b128 v%d, %s offset:%d" % (vT + 6, vr(vTMP, 4), L_QP))
    lds_add(vHI, F_QP)
    one_lane("ds_add_u32 v30, v%d offset:%d" % (vONE, F_SL + 48))
    stamp(2)
    def wait_block(n4):
        A("s_add_u32 s%d, s%d, %d" % (sT0, sWAVE, 4 * n4 + 1))
        lds_wait(F_FULL, "s%d" % sT0, keep=sFULL)
    def read_k(j):
        base = vK + 32 * (j % 4)
        for t in range(2):
            for m in range(4):
                A("ds_read_b128 %s, v%d offset:%d" % (vr(base + 16 * t + 4 * m, 4), vKA + m + (4 if (j & 2) else 0), (j & 1) * 32768 + t * 4096))
    def qk_block(base, sc):
        for m in range(4):
            for t in range(2):
                acc = vr(sc + 4 * t, 4)
                A("v_mfma_f32_16x16x32_bf16 %s, %s, %s, %s" % (acc, vr(base + 16 * t + 4 * m, 4), vr(vQ + 4 * m, 4), "0" if m == 0 else acc))
    def round_block(sc, mx, first):
        for p in range(4):
            a, b, t = sc + 2 * p, sc + 2 * p + 1, vT + (p & 1)
            if mimic:
                A("v_cvt_pk_bf16_f32 v%d, v%d, v%d" % (t, a, b)); unpack(a, b, t)
            A("v_mul_f32 v%d, s%d, v%d" % (a, sSCALE, a)); A("v_mul_f32 v%d, s%d, v%d" % (b, sSCALE, b))
            if mimic:
                A("v_cvt_pk_bf16_f32 v%d, v%d, v%d" % (t, a, b)); unpack(a, b, t)
            if first and p == 0: A("v_max_f32 v%d, v%d, v%d" % (mx, a, b))
            else: A("v_max3_f32 v%d, v%d, v%d, v%d" % (mx, a, b, mx))
    for j in range(4):
        wait_block(j); read_k(j); lds_add(30, F_SL + 16 * j)
    stamp(3)
    lds_wait(F_QR, 1)
    stamp(4)
    A("v_lshlrev_b32 v%d, 8, v%d" % (vT, vC4)); A("v_lshl_add_u32 v%d, v%d, 4, v%d" % (vT, vG4, vT)); A("v_add_u32 v%d, v%d, v%d" % (vT, vHI, vT))
    for m in range(4): A("ds_read_b128 %s, v%d offset:%d" % (vr(vQ + 4 * m, 4), vT, L_QB + m * 64))
    A("s_waitcnt lgkmcnt(0)")
    for j in range(NW):
        qk_block(vK + 32 * (j % 4), vS + 8 * j)
        if 4 + j < NW:
            wait_block(4 + j); A("s_nop 3"); read_k(4 + j)
        if j >= 1: round_block(vS + 8 * (j - 1), vM, j == 1)
        if 4 + j < NW: lds_add(30, F_SL + 16 * j)
    A("v_lshl_add_u32 v%d, v%d, 2, v%d" % (vT + 2, vG4, vC4))
    A("v_and_b32 v%d, 7, v%d" % (vT + 3, vT + 2)); A("v_lshlrev_b32 v%d, 1, v%d" % (vT + 3, vT + 3))
    A("v_lshrrev_b32 v%d, 1, v%d" % (vT + 4, vR4)); A("v_xor_b32 v%d, v%d, v%d" % (vT + 3, vT + 3, vT + 4))
    A("v_lshlrev_b32 v%d, 8, v%d" % (vT + 2, vT + 2)); A("v_lshl_add_u32 v%d, v%d, 4, v%d" % (vT + 2, vT + 3, vT + 2))
    A("v_and_b32 v%d, 1, v0" % (vT + 4)); A("v_lshl_add_u32 v%d, v%d, 3, v%d" % (vVP, vT + 4, vT + 2))
    for d in range(1, 8): A("v_xor_b32 v%d, %d, v%d" % (vVP + d, 32 * d, vVP))
    round_block(vS + 8 * (NW - 1), vM, False)
    swap_red(vM, vT, "v_max_f32", 32); swap_red(vM, vT, "v_max_f32", 16)
    A("v_mul_f32 v%d, s%d, v%d" % (vM, sL2E, vM))
    A("v_lshlrev_b32 v31, 4, v%d" % vG4); A("ds_bpermute_b32 v%d, v31, v%d" % (vMO, vM))
    vP = vK
    def exps(sc, n, mx, ls, first, pdst, npk):
        for j in range(n + 1):
            a, b = sc + 2 * j, sc + 2 * j + 1
            if j < n:
                A("v_fma_f32 v%d, v%d, s%d, -v%d" % (a, a, sL2E, mx)); A("v_fma_f32 v%d, v%d, s%d, -v%d" % (b, b, sL2E, mx))
                A("v_exp_f32 v%d, v%d" % (a, a)); A("v_exp_f32 v%d, v%d" % (b, b))
            if j >= 1:
                pa, pb = a - 2, b - 2
                if j == 1 and first: A("v_add_f32 v%d, v%d, v%d" % (ls, pa, pb))
                else: A("v_add_f32 v%d, v%d, v%d" % (ls, ls, pa)); A("v_add_f32 v%d, v%d, v%d" % (ls, ls, pb))
                if j - 1 < npk: A("v_cvt_pk_bf16_f32 v%d, v%d, v%d" % (pdst + j - 1, pa, pb))
    exps(vS, 4 * NW, vM, vLs, True, vP, 4 * NB)
    stamp(5)
    A("s_lshl_b32 s%d, s%d, 11" % (sT0, sWAVE)); A("s_add_u32 s%d, s%d, %d" % (sT0, sT0, HI + L_OW))
    A("v_lshlrev_b32 v%d, 9, v%d" % (vOWA, vG4)); A("v_lshl_add_u32 v%d, v%d, 2, v%d" % (vOWA, vN16, vOWA)); A("v_add_u32 v%d, s%d, v%d" % (vOWA, sT0, vOWA))
    for i in range(8 * NU): A("v_mov_b32 v%d, 0xff800000" % (vS2 + i))
    vVB = vK + 32
    par = [0]
    def slot_of():
        A("s_and_b32 s%d, s%d, 15" % (sT1, sI)); A("s_lshl_b32 s%d, s%d, 13" % (sT1, sT1))
    def landed():
        A("s_add_u32 s%d, s%d, 1" % (sT0, sI)); lds_wait(F_FULL, "s%d" % sT0, keep=sFULL)
    def release_addr():
        A("s_lshr_b32 s%d, s%d, 11" % (sT1, sT1)); A("s_add_u32 s%d, s%d, %d" % (sT1, sT1, HI)); A("v_mov_b32 v30, s%d" % sT1)
    def v_block(preg, first, release, mid=None):
        base = vVB + 32 * par[0]; par[0] ^= 1
        slot_of()
        for d in range(8): A("v_add_u32 v%d, s%d, v%d" % (vVT + d, sT1, vVP + d))
        if release: release_addr()
        if mid: mid()
        landed()
        for d in range(8):
            for t in range(2):
                A("ds_read_b64_tr_b16 %s, v%d offset:%d" % (vr(base + 4 * d + 2 * t, 2), vVT + d, t * 4096))
        for d in range(8):
            A("s_waitcnt lgkmcnt(%d)" % (14 - 2 * d))
            if d == 7 and release: one_lane("ds_add_u32 v30, v%d offset:%d" % (vONE, F_SL))
            acc = vr(vS + 4 * d, 4)
            A("v_mfma_f32_16x16x32_bf16 %s, %s, %s, %s" % (acc, vr(preg, 4), vr(base + 4 * d, 4), "0" if first else acc))
    def factor():
        lds_wait(F_GR, 1)
        A("v_lshl_add_u32 v%d, v%d, 3, v%d" % (vT, vG4, vHI)); A("ds_read_b64 %s, v%d offset:%d" % (vr(vT + 2, 2), vT, L_GS)); A("s_waitcnt lgkmcnt(0)")
        A("v_sub_f32 v%d, v%d, v%d" % (vF, vMO, vT + 2)); A("v_exp_f32 v%d, v%d" % (vF, vF)); A("v_mul_f32 v%d, v%d, v%d" % (vF, vF, vT + 3))
        stamp(6)
    for j in range(NB):
        A("s_add_u32 s%d, s%d, %d" % (sI, sWAVE, NF + 4 * j))
        v_block(vP + 4 * j, j == 0, True)
    vM2, vAL = 240, 241
    A("v_mov_b32 v%d, 0xff800000" % vM2); A("s_mov_b32 s%d, 0" % sNX)
    for u in range(NU):
        A("s_add_u32 s%d, s%d, %d" % (sT0, sWAVE, 4 * u + 1))
        lds_wait(F_PLAN, "s%d" % sT0, keep=sPLAN)
        A("s_and_b32 s%d, s%d, 0xff" % (sT1, sPLAN)); A("s_cmp_lt_u32 s%d, s%d" % (sT1, sT0)); A("s_cbranch_scc1 L_noshare")
        A("s_add_u32 s%d, s%d, %d" % (sI, sWAVE, NF + n1 + 4 * u))
        base = vVB + 32 * par[0]; par[0] ^= 1
        slot_of(); k_addrs(vVT, sT1, vT, False); release_addr()
        landed()
        for t in range(2):
            for m in range(4): A("ds_read_b128 %s, v%d offset:%d" % (vr(base + 16 * t + 4 * m, 4), vVT + m, t * 4096))
        lds_add(30, F_SL)
        qk_block(base, vS2 + 8 * u)
        A("s_add_u32 s%d, s%d, 1" % (sNX, sNX))
        round_block(vS2 + 8 * u, vM2, False)
    A("L_noshare:")
    A("s_nop 7")
    swap_red(vM2, vT, "v_max_f32", 32); swap_red(vM2, vT, "v_max_f32", 16)
    A("v_mul_f32 v%d, s%d, v%d" % (vM2, sL2E, vM2)); A("v_max_f32 v%d, v%d, v%d" % (vM2, vM2, vM))
    A("ds_bpermute_b32 v%d, v31, v%d" % (vT + 4, vM2))
    A("v_sub_f32 v%d, v%d, v%d" % (vAL, vM, vM2)); A("v_exp_f32 v%d, v%d" % (vAL, vAL))
    A("v_mul_f32 v%d, v%d, v%d" % (vLs, vLs, vAL))
    exps(vS2, 4 * NU, vM2, vLs, False, vP2, 4 * NU)
    swap_red(vLs, vT, "v_add_f32", 32); swap_red(vLs, vT, "v_add_f32", 16)
    A("s_lshl_b32 s%d, s%d, 5" % (sT0, sWAVE)); A("s_add_u32 s%d, s%d, %d" % (sT0, sT0, HI)); A("v_lshlrev_b32 v%d, 3, v%d" % (vT, vC4)); A("v_add_u32 v%d, s%d, v%d" % (vT, sT0, vT))
    A("v_mov_b32 v%d, v%d" % (vT + 2, vM2)); A("v_mov_b32 v%d, v%d" % (vT + 3, vLs))
    A("s_mov_b64 exec, 0x1111"); A("ds_write_b64 v%d, %s offset:%d" % (vT, vr(vT + 2, 2), L_ST)); A("s_mov_b64 exec, -1")
    lds_add(vHI, F_ST)
    stamp(7)
    A("v_sub_f32 v%d, v%d, v%d" % (vMO, vMO, vT + 4)); A("v_exp_f32 v%d, v%d" % (vT + 5, vMO)); A("v_mov_b32 v%d, v%d" % (vMO, vT + 4))
    for i in range(8 * NB, 8 * NW): A("v_mul_f32 v%d, v%d, v%d" % (vS + i, vS + i, vAL))
    for i in range(4 * NB, 4 * NW): A("v_cvt_pk_bf16_f32 v%d, v%d, v%d" % (vP + i, vS + 2 * i, vS + 2 * i + 1))
    for d in range(8): A("v_mul_f32 v%d, v%d, v%d" % (vS + 4 * d, vS + 4 * d, vT + 5))
    lds_wait(F_PLAN, "0x100", keep=sPLAN)
    A("s_and_b32 s%d, s%d, 31" % (sPLAN, sPLAN)); A("s_add_u32 s%d, s%d, s%d" % (sPLAN, sPLAN, sWAVE))
    for j in range(NB, NW):
        A("s_add_u32 s%d, s%d, %d" % (sI, sPLAN, NF + 4 * j))
        v_block(vP + 4 * j, False, 4 * j + 16 < NF + MAXT, factor if j == NW - 1 else None)
    for u in range(NU):
        A("s_cmp_le_u32 s%d, %d" % (sNX, u)); A("s_cbranch_scc1 L_vdone")
        A("s_add_u32 s%d, s%d, %d" % (sI, sPLAN, 2 * NF + 4 * u))
        v_block(vP2 + 4 * u, False, False)
    A("L_vdone:")
    for d in range(8): A("v_mul_f32 v%d, v%d, v%d" % (vTMP + d, vF, vS + 4 * d))
    for d in range(0, 8, 2): A("ds_write2_b32 v%d, v%d, v%d offset0:%d offset1:%d" % (vOWA, vTMP + d, vTMP + d + 1, 16 * d, 16 * d + 16))
    vWOA, vOIR, vWO = 17, 18, vK
    A("v_lshlrev_b32 v%d, 7, v%d" % (vWOA, vC4)); A("v_lshl_add_u32 v%d, v%d, 10, v%d" % (vWOA, vG4, vWOA)); A("v_lshl_add_u32 v%d, v%d, 3, v%d" % (vWOA, vR4, vWOA))
    A("s_lshl_b32 s%d, s%d, 5" % (sT0, sWAVE)); A("s_add_u32 s%d, s%d, %d" % (sT0, sT0, HI + L_WO)); A("v_add_u32 v%d, s%d, v%d" % (vWOA, sT0, vWOA))
    A("s_waitcnt lgkmcnt(0)")
    A("s_barrier")
    stamp(8)
    def wo_reads():
        lds_wait(F_WO, 1, sl=0)
        for m in range(4):
            A("ds_read_b64_tr_b16 %s, v%d offset:%d" % (vr(vWO + 4 * m, 2), vWOA, m * 4096))
            A("ds_read_b64_tr_b16 %s, v%d offset:%d" % (vr(vWO + 4 * m + 2, 2), vWOA, m * 4096 + 512))
    def oir_addr():
        A("v_lshrrev_b32 v%d, 1, v%d" % (vT, vN16)); A("v_lshlrev_b32 v%d, 10, v%d" % (vT, vT)); A("v_and_b32 v%d, 1, v0" % (vT + 1)); A("v_lshl_add_u32 v%d, v%d, 8, v%d" % (vT, vT + 1, vT))
        for m in range(4):
            A("v_add_u32 v%d, %d, v%d" % (vT + 1, 4 * m, vG4)); A("v_xor_b32 v%d, v%d, v%d" % (vT + 1, vT + 1, vN16))
            A("v_lshl_add_u32 v%d, v%d, 4, v%d" % (vOIR + m, vT + 1, vT))
        A("v_lshrrev_b32 v%d, 1, v%d" % (22, vN16)); A("v_and_b32 v23, 1, v0"); A("v_lshl_add_u32 v23, v22, 2, v23"); A("v_lshl_add_u32 v23, v23, 2, v%d" % vHI)
        A("v_lshlrev_b32 v22, 16, v22"); A("v_lshl_add_u32 v22, v%d, 4, v22" % vG4)
    A("s_cmp_gt_u32 s%d, 1" % sWAVE); A("s_cbranch_scc1 L_gather23")
    A("s_lshl_b32 s%d, s%d, 10" % (sT0, sWAVE)); A("s_add_u32 s%d, s%d, %d" % (sT0, sT0, HI + L_OW)); A("v_add_u32 v%d, s%d, v%d" % (vT, sT0, vL16))
    for w in range(4): A("ds_read_b128 %s, v%d offset:%d" % (vr(vS + 4 * w, 4), vT, w * 2048))
    A("v_lshrrev_b32 v%d, 5, v0" % (vT + 1)); A("v_lshlrev_b32 v%d, 13, v%d" % (vT + 1, vT + 1)); A("v_and_b32 v%d, 31, v0" % (vT + 2)); A("v_lshl_add_u32 v%d, v%d, 3, v%d" % (vT + 1, vT + 2, vT + 1))
    A("s_lshl_b32 s%d, s%d, 14" % (sT0, sWAVE)); A("s_add_u32 s%d, s%d, s%d" % (sT0, sT0, sOPOFF))
    A("s_waitcnt lgkmcnt(2)")
    for i in range(4): A("v_add_f32 v%d, v%d, v%d" % (vS + i, vS + i, vS + 4 + i))
    A("s_waitcnt lgkmcnt(0)")
    for i in range(4): A("v_add_f32 v%d, v%d, v%d" % (vS + 8 + i, vS + 8 + i, vS + 12 + i))
    for i in range(4): A("v_add_f32 v%d, v%d, v%d" % (vS + i, vS + i, vS + 8 + i))
    A("v_cvt_pk_bf16_f32 v%d, v%d, v%d" % (vTMP, vS, vS + 1)); A("v_cvt_pk_bf16_f32 v%d, v%d, v%d" % (vTMP + 1, vS + 2, vS + 3))
    A("buffer_store_dwordx2 %s, v%d, %s, s%d offen sc1" % (vr(vTMP, 2), vT + 1, srd("WS"), sT0))
    stamp(11)
    wo_reads(); oir_addr()
    A("s_branch L_barE_c")
    def gather(idx_sgpr, extra):
        vGa = 40
        A("s_lshr_b32 s%d, s%d, 3" % (sT1, sRW)); A("s_lshl_b32 s%d, s%d, 13" % (sT1, sT1)); A("s_lshl_b32 s%d, s%d, 11" % (sT0, idx_sgpr))
        A("s_add_u32 s%d, s%d, s%d" % (sT1, sT1, sT0)); A("s_add_u32 s%d, s%d, 0x%x" % (sT1, sT1, WS_OP))
        lds_ = [(lambda: A("buffer_load_dwordx4 %s, v%d, %s, s%d offen sc1" % (vr(vGa, 4), vL16, srd("WS"), sT1)), list(range(vGa, vGa + 4))),
                (lambda: A("buffer_load_dwordx4 %s, v%d, %s, s%d offen offset:1024 sc1" % (vr(vGa + 4, 4), vL16, srd("WS"), sT1)), list(range(vGa + 4, vGa + 8)))]
        for i_, _ in lds_: i_()
        A("v_and_b32 v%d, 1, v%d" % (vT + 2, vG4)); A("s_lshl_b32 s%d, s%d, 2" % (sT2, idx_sgpr)); A("v_add_u32 v%d, s%d, v%d" % (vT + 2, sT2, vT + 2))
        A("v_xor_b32 v%d, v%d, v%d" % (vT + 3, vT + 2, vN16)); A("v_xor_b32 v%d, 2, v%d" % (vT + 4, vT + 3))
        A("v_lshlrev_b32 v%d, 8, v%d" % (vT + 2, vG4)); A("v_add_u32 v%d, s%d, v%d" % (vT + 2, sT0, vT + 2))
        A("v_lshl_add_u32 v%d, v%d, 4, v%d" % (vT + 5, vT + 3, vT + 2)); A("v_lshl_add_u32 v%d, v%d, 4, v%d" % (vT + 6, vT + 4, vT + 2))
        extra()
        gpoll(lds_, first=False, sleep=tsleep)
        stamp(11)
        A("ds_write_b128 v%d, %s" % (vT + 5, vr(vGa, 4))); A("ds_write_b128 v%d, %s offset:1024" % (vT + 6, vr(vGa + 4, 4)))
    A("L_gather23:")
    A("s_sub_u32 s%d, s%d, 2" % (sMU, sWAVE))
    gather(sMU, lambda: (wo_reads(), oir_addr()))
    A("L_barE_c:")
    A("s_waitcnt lgkmcnt(0)")
    A("s_barrier")
    stamp(9)
    for u in range(2):
        for m in range(4): A("ds_read_b128 %s, v%d offset:%d" % (vr(vS + 16 * u + 4 * m, 4), vOIR + m, u * 512))
    A("v_add_u32 v23, %d, v23" % L_ST); A("ds_read2_b32 v[24:25], v23 offset0:0 offset1:2")
    A("s_lshl_b32 s%d, s%d, %d" % (sT0, sWAVE, 11)); A("s_add_u32 s%d, s%d, s%d" % (sT0, sT0, sSPOFF))
    for u in range(2):
        for m in range(4):
            A("s_waitcnt lgkmcnt(%d)" % (8 - 4 * u - m))
            acc = vr(vTMP + 4 * u, 4)
            A("v_mfma_f32_16x16x32_bf16 %s, %s, %s, %s" % (acc, vr(vWO + 4 * m, 4), vr(vS + 16 * u + 4 * m, 4), "0" if m == 0 else acc))
    A("s_waitcnt lgkmcnt(0)")
    for i in range(4): A("v_mul_f32 v%d, v24, v%d" % (vTMP + i, vTMP + i))
    for i in range(4): A("v_fmac_f32 v%d, v25, v%d" % (vTMP + i, vTMP + 4 + i))
    for i in range(4): dpp("v_add_f32", vTMP + i, "quad_perm:[1,0,3,2]")
    A("s_mov_b32 exec_lo, 0x55555555"); A("s_mov_b32 exec_hi, 0x55555555")
    stamp(10)
    A("buffer_store_dwordx4 %s, v22, %s, s%d offen sc1" % (vr(vTMP, 4), srd("WS"), sT0))
    A("s_mov_b64 exec, -1")
    A("s_branch L_done")

    A("L_loader:")
    if ldprio: A("s_setprio %d" % ldprio)
    vO, vFR, vFA, vPL, vPA = 17, 24, 25, 26, 27
    A("v_lshlrev_b32 v%d, 8, v%d" % (vT, vG4))
    for i in range(4):
        A("v_add_u32 v%d, %d, v%d" % (vT + 1, 4 * i, vG4)); A("v_xor_b32 v%d, v%d, v%d" % (vT + 1, vT + 1, vN16)); A("v_lshl_add_u32 v%d, v%d, 4, v%d" % (vO + i, vT + 1, vT))
    for i in range(2):
        A("v_add_u32 v%d, %d, v%d" % (vT + 1, 4 * i, vG4)); A("v_lshlrev_b32 v%d, 1, v%d" % (vT + 1, vT + 1))
        A("v_xor_b32 v%d, v%d, v%d" % (vT + 1, vT + 1, vN16)); A("v_lshl_add_u32 v%d, v%d, 4, v%d" % (vO + 4 + i, vT + 1, vT))
    A("v_lshl_add_u32 v%d, v%d, 2, v%d" % (vFA, vN16, vHI)); A("v_and_b32 v%d, 31, v0" % vPA); A("v_lshlrev_b32 v28, 3, v%d" % vPA); A("v_lshl_add_u32 v%d, v%d, 2, v%d" % (vPA, vPA, vHI))
    sK, sSLOT, sPOOL, sVO, sEND, sN = 12, 13, 88, 89, 90, 91
    A("s_bfe_u32 s%d, s%d, 0x30002" % (sBASE, sR)); A("s_lshl_b32 s%d, s%d, 23" % (sBASE, sBASE)); A("s_lshr_b32 s%d, s%d, 5" % (sT0, sR)); A("s_lshl_b32 s%d, s%d, 20" % (sT0, sT0))
    A("s_add_u32 s%d, s%d, s%d" % (sBASE, sBASE, sT0)); A("s_add_u32 s%d, s%d, 0x%x" % (sPOOL, sBASE, NF * 8192))
    A("s_and_b32 s%d, s%d, 3" % (sT0, sR)); A("s_lshl_b32 s%d, s%d, 18" % (sT0, sT0)); A("s_add_u32 s%d, s%d, s%d" % (sBASE, sBASE, sT0))
    A("s_mov_b32 s%d, s%d" % (sOFF, sBASE)); A("s_mov_b32 s%d, 0" % sSLOT); A("s_mov_b32 s%d, 0" % sN)
    if ldst: A("s_mov_b32 s94, 0")
    A("s_waitcnt lgkmcnt(0)")
    def publish_full(sgpr):
        A("v_mov_b32 v%d, s%d" % (vT, sgpr)); one_lane("ds_max_u32 v%d, v%d offset:%d" % (vHI, vT, F_FULL))
    def dma_block(isk):
        for half in range(2):
            A("s_mov_b32 m0, s%d" % sSLOT)
            for i in range(4):
                A("buffer_load_dwordx4 v%d, %s, s%d offen offset:%d %s lds" % (vO + i if isk else vO + 4 + (i & 1), srd("K" if isk else "V"), sOFF, i * 1024, pol))
            A("s_add_u32 s%d, s%d, 4096" % (sOFF, sOFF)); A("s_add_u32 s%d, s%d, 4096" % (sSLOT, sSLOT))
        A("s_and_b32 s%d, s%d, 0x1ffff" % (sSLOT, sSLOT)); A("s_add_u32 s%d, s%d, 1" % (sN, sN))
    def read_rel(): A("ds_read_b32 v%d, v%d offset:%d" % (vFR, vFA, F_SL))
    def block(isk):
        go = A.label("go"); sl = A.label("slow")
        def chk():
            A("v_readlane_b32 s%d, v%d, s%d" % (sT1, vFR, sT0)); A("s_cmp_gt_u32 s%d, s%d" % (sT1, sT2)); A("s_cbranch_scc1 " + go)
        A("s_lshr_b32 s%d, s%d, 13" % (sT0, sSLOT)); A("s_lshr_b32 s%d, s%d, 4" % (sT2, sN))
        A("s_waitcnt lgkmcnt(1)")
        chk()
        read_rel(); A("s_waitcnt lgkmcnt(0)"); chk()
        A("s_waitcnt vmcnt(0)"); publish_full(sN)
        if ldst: A("s_add_u32 s94, s94, 100")
        A("s_mov_b32 s%d, 0" % sSPIN)
        A(sl + ":")
        read_rel(); A("s_waitcnt lgkmcnt(0)"); chk()
        A("s_add_u32 s%d, s%d, 1" % (sSPIN, sSPIN)); A("s_cmp_lt_u32 s%d, %d" % (sSPIN, lspin)); A("s_cbranch_scc1 " + sl)
        A(go + ":")
        dma_block(isk)
        read_rel()
        A("s_sub_i32 s%d, s%d, %d" % (sT0, sN, F))
        A("s_waitcnt vmcnt(%d)" % (8 * F)); publish_full(sT0)
    def lstamps(lst):
        if ldst:
            for k, g in lst:
                sk = A.label("st"); A("s_cmp_lg_u32 s%d, %d" % (sN, g)); A("s_cbranch_scc1 " + sk); stamp(k); A(sk + ":")
    A("s_barrier")
    for _ in range(4): dma_block(True)
    read_rel(); A("s_waitcnt lgkmcnt(0)")
    A("L_ld_a:")
    lstamps([(1, 8), (4, 20)])
    block(True)
    A("s_cmp_lt_u32 s%d, %d" % (sN, NF)); A("s_cbranch_scc1 L_ld_a")
    A("s_mov_b32 s%d, s%d" % (sOFF, sBASE))
    A("L_ld_b:")
    lstamps([(6, 28), (7, 32), (8, 40)])
    block(False)
    A("s_cmp_lt_u32 s%d, %d" % (sN, NF + n1)); A("s_cbranch_scc1 L_ld_b")
    A("s_mov_b32 s%d, s%d" % (sVO, sOFF)); A("s_mov_b32 s%d, 0" % sK)
    if ldst: stamp(9)
    def pool_addr():
        A("s_add_u32 s%d, s%d, 1" % (sK, sK)); A("v_readlane_b32 s%d, v%d, s%d" % (sT0, vPL, sK))
        A("s_min_u32 s%d, s%d, %d" % (sT0, sT0, POOL - 1))
        if pg == 1:
            A("s_and_b32 s%d, s%d, 3" % (sT1, sT0)); A("s_lshr_b32 s%d, s%d, 2" % (sT0, sT0))
        elif pg == 2:
            A("s_bfe_u32 s%d, s%d, 0x20001" % (sT1, sT0)); A("s_and_b32 s%d, s%d, 1" % (sT2, sT0)); A("s_lshr_b32 s%d, s%d, 3" % (sT0, sT0)); A("s_lshl_b32 s%d, s%d, 1" % (sT0, sT0)); A("s_add_u32 s%d, s%d, s%d" % (sT0, sT0, sT2))
        else:
            A("s_lshr_b32 s%d, s%d, 3" % (sT1, sT0)); A("s_and_b32 s%d, s%d, 7" % (sT0, sT0))
            if pg == 4: A("s_add_u32 s%d, s%d, 1" % (sT1, sT1)); A("s_and_b32 s%d, s%d, 3" % (sT1, sT1))
            if pg == 5: A("s_lshr_b32 s%d, s%d, 2" % (sT2, sR)); A("s_add_u32 s%d, s%d, s%d" % (sT1, sT1, sT2)); A("s_lshr_b32 s%d, s%d, 5" % (sT2, sR)); A("s_add_u32 s%d, s%d, s%d" % (sT1, sT1, sT2)); A("s_and_b32 s%d, s%d, 3" % (sT1, sT1))
        A("s_lshl_b32 s%d, s%d, 18" % (sT1, sT1)); A("s_lshl_b32 s%d, s%d, 13" % (sT0, sT0)); A("s_add_u32 s%d, s%d, s%d" % (sOFF, sPOOL, sT0)); A("s_add_u32 s%d, s%d, s%d" % (sOFF, sOFF, sT1))
    A("L_ld_c:")
    A("s_mov_b32 s%d, 0" % sSPIN)
    if ldst == 3: A("s_memrealtime s[14:15]")
    A("L_ld_plan:")
    A("ds_read_b32 v%d, v%d offset:%d" % (vPL, vPA, F_PLAN)); A("s_waitcnt lgkmcnt(0)"); A("v_readfirstlane_b32 s%d, v%d" % (sT0, vPL))
    A("s_cmp_gt_u32 s%d, s%d" % (sT0, sK)); A("s_cbranch_scc1 L_ld_known")
    for k in range(F - 1, -1, -1):
        nx = A.label("nx"); A("s_cmp_eq_u32 s%d, %d" % (sSPIN, F - 1 - k)); A("s_cbranch_scc0 " + nx)
        A("s_sub_u32 s%d, s%d, %d" % (sT1, sN, k)); A("s_waitcnt vmcnt(%d)" % (8 * k)); publish_full(sT1); A(nx + ":")
    A("s_add_u32 s%d, s%d, 1" % (sSPIN, sSPIN)); A("s_cmp_lt_u32 s%d, %d" % (sSPIN, lspin)); A("s_cbranch_scc1 L_ld_plan")
    A("L_ld_known:")
    if ldst == 1: A("s_add_u32 s94, s94, s%d" % sSPIN)
    if ldst == 3:
        A("s_memrealtime s[92:93]"); A("s_waitcnt lgkmcnt(0)"); A("s_sub_u32 s92, s92, s14"); A("s_add_u32 s94, s94, s92")
    A("s_and_b32 s%d, s%d, 0xff" % (sT0, sT0)); A("s_cmp_le_u32 s%d, s%d" % (sT0, sK)); A("s_cbranch_scc1 L_ld_cend")
    pool_addr()
    block(True)
    A("s_cmp_lt_u32 s%d, %d" % (sK, MAXT)); A("s_cbranch_scc1 L_ld_c")
    A("L_ld_cend:")
    if ldst: stamp(2)
    A("s_mov_b32 s%d, s%d" % (sOFF, sVO)); A("s_add_u32 s%d, s%d, %d" % (sEND, sK, 2 * NF))
    A("L_ld_d:")
    block(False)
    A("s_cmp_lt_u32 s%d, s%d" % (sN, sEND)); A("s_cbranch_scc1 L_ld_d")
    A("s_add_u32 s%d, s%d, s%d" % (sEND, sEND, sK))
    if ldst: stamp(3)
    if ldst:
        A("s_mul_i32 s%d, s%d, 100" % (sT0, sK)); A("s_add_u32 s40, s16, s%d" % sT0); A("s_addc_u32 s41, s17, 0")
    A("s_mov_b32 s%d, 0" % sK)
    A("L_ld_e:")
    A("s_cmp_ge_u32 s%d, s%d" % (sN, sEND)); A("s_cbranch_scc1 L_ld_end")
    pool_addr()
    block(False)
    A("s_branch L_ld_e")
    A("L_ld_end:")
    for k in range(F - 1, -1, -1):
        A("s_sub_u32 s%d, s%d, %d" % (sT0, sN, k)); A("s_waitcnt vmcnt(%d)" % (8 * k)); publish_full(sT0)
    stamp(11)
    if ldst: A("s_add_u32 s36, s16, s94"); A("s_addc_u32 s37, s17, 0")
    A("s_lshr_b32 s%d, s%d, 3" % (sT1, sRW)); A("s_lshl_b32 s%d, s%d, 8" % (sT1, sT1)); A("s_add_u32 s%d, s%d, 0x%x" % (sT1, sT1, WS_ST))
    stl = [(lambda: A("buffer_load_dwordx2 v[32:33], v28, %s, s%d offen sc1" % (srd("WS"), sT1)), [32, 33])]
    if not sdelay: stl[0][0]()
    A("s_waitcnt lgkmcnt(0)")
    A("s_barrier")
    gpoll(stl, first=bool(sdelay), sleep=ssleep)
    stamp(5)
    def combine(modes):
        A("v_mov_b32 v34, v32")
        for m in modes: dpp("v_max_f32", 34, m)
        A("v_sub_f32 v32, v32, v34"); A("v_exp_f32 v32, v32"); A("v_mul_f32 v32, v32, v33"); A("v_mov_b32 v35, v32")
        for m in modes: dpp("v_add_f32", 35, m)
    combine(("quad_perm:[1,0,3,2]", "quad_perm:[2,3,0,1]"))
    A("v_rcp_f32 v35, v35"); A("v_mul_f32 v32, v32, v35")
    A("ds_write_b32 v%d, v32 offset:%d" % (vPA, L_ST))
    A("s_waitcnt lgkmcnt(0)")
    A("s_barrier")
    A("s_branch L_done")

    def slot_addrs():
        A("v_lshlrev_b32 v28, 8, v0")
        A("s_lshr_b32 s%d, s%d, 5" % (sT0, sR)); A("s_lshl_b32 s%d, s%d, 10" % (sT0, sT0)); A("s_and_b32 s%d, s%d, 31" % (sMU, sR)); A("s_lshl_b32 s%d, s%d, 3" % (sMU, sMU))
        A("s_add_u32 s%d, s%d, s%d" % (sMU, sMU, sT0)); A("s_add_u32 s%d, s%d, 0x%x" % (sMU, sMU, WS_ST))
    A("L_comm:")
    vZ = 20
    A("v_subrev_u32 v%d, 16, v0" % vZ); A("v_cmp_gt_u32 vcc, 12, v%d" % vZ); A("v_cndmask_b32 v%d, 0, v%d, vcc" % (vZ, vONE))
    A("v_lshl_add_u32 v%d, v0, 2, v%d" % (vT, vHI))
    A("ds_write_b32 v%d, v%d offset:%d" % (vT, vZ, L_FLG))
    slot_addrs()
    sEP = 4
    def epoch():
        A("s_waitcnt vmcnt(0)")
        A("v_readfirstlane_b32 s%d, v30" % sEP); A("v_readfirstlane_b32 s%d, v31" % (sEP + 1))
        A("s_add_u32 s%d, s%d, 0x%x" % (sEP, sEP, EP_STEP & 0xffffffff)); A("s_addc_u32 s%d, s%d, 0x%x" % (sEP + 1, sEP + 1, EP_STEP >> 32))
    A("s_waitcnt lgkmcnt(0)")
    A("buffer_load_dwordx2 v[30:31], off, %s, 0 offset:%d sc1" % (srd("WS"), WS_EP))
    A("s_barrier")
    A("v_add_u32 v%d, v%d, v%d" % (vT, vHI, vL16))
    A("v_and_b32 v29, 7, v0"); A("v_lshlrev_b32 v29, 14, v29"); A("v_lshl_add_u32 v29, v%d, 4, v29" % vG4)
    A("s_lshl_b32 s%d, s%d, 6" % (sT2, sRQ)); A("s_add_u32 s%d, s%d, 0x%x" % (sT2, sT2, WS_Q))
    A("s_bfe_u32 s%d, s%d, 0x30002" % (sT0, sR)); A("s_lshl_b32 s%d, s%d, 14" % (sT0, sT0)); A("s_lshr_b32 s%d, s%d, 5" % (sT1, sR)); A("s_lshl_b32 s%d, s%d, 11" % (sT1, sT1))
    A("s_add_u32 s%d, s%d, s%d" % (sT0, sT0, sT1)); A("s_add_u32 s%d, s%d, 0x%x" % (sT0, sT0, WS_Q))
    A("v_lshl_add_u32 v27, v0, 3, v%d" % vHI)
    epoch()
    A("v_mov_b32 v38, s%d" % sEP); A("v_mov_b32 v39, s%d" % (sEP + 1))
    stamp(1)
    lds_wait(F_QP, 4)
    for w in range(4): A("ds_read_b128 %s, v%d offset:%d" % (vr(40 + 4 * w, 4), vT, L_QP + w * 1024))
    A("s_waitcnt lgkmcnt(0)")
    for i in range(4): A("v_add_f32 v%d, v%d, v%d" % (40 + i, 40 + i, 44 + i)); A("v_add_f32 v%d, v%d, v%d" % (48 + i, 48 + i, 52 + i))
    for i in range(4): A("v_add_f32 v%d, v%d, v%d" % (40 + i, 40 + i, 48 + i))
    A("v_cvt_pk_bf16_f32 v36, v40, v41"); A("v_cvt_pk_bf16_f32 v37, v42, v43")
    A("s_mov_b32 exec_lo, 0x00ff00ff"); A("s_mov_b32 exec_hi, 0x00ff00ff")
    A("buffer_store_dwordx4 v[36:39], v29, %s, s%d offen sc1" % (srd("WS"), sT2))
    A("s_mov_b64 exec, -1")
    stamp(2)
    lds_wait(F_FULL, qtrig, sl=4)
    gpoll([(lambda: A("buffer_load_dwordx4 v[32:35], v%d, %s, s%d offen sc1" % (vL16, srd("WS"), sT0)), [32, 33, 34, 35]),
           (lambda: A("buffer_load_dwordx4 v[40:43], v%d, %s, s%d offen offset:1024 sc1" % (vL16, srd("WS"), sT0)), [40, 41, 42, 43])], sleep=qsleep, tag="s[%d:%d]" % (sEP, sEP + 1))
    A("ds_write_b64 v27, v[32:33] offset:%d" % L_QB); A("ds_write_b64 v27, v[40:41] offset:%d" % (L_QB + 512))
    lds_add(vHI, F_QR)
    stamp(4)
    A("v_lshlrev_b32 v%d, 5, v0" % (vT + 3))
    word_poll("buffer_load_dword v32, v%d, %s, 0 offen sc1" % (vT + 3, srd("DBG")), 32, "0xff", "v_cmp_gt_u32 vcc, 32, v%d", fsleep)
    stamp(3)
    lds_add(vHI, F_AM)
    A("v_lshlrev_b32 v%d, 3, v%d" % (vT + 1, vN16)); A("v_add_u32 v%d, v%d, v%d" % (vT + 2, vHI, vT + 1))
    lds_wait(F_ST, 4, sl=4)
    A("ds_read_b64 v[32:33], v%d offset:%d" % (vT + 2, L_ST)); A("s_waitcnt lgkmcnt(0)")
    combine(("row_ror:4", "row_ror:8"))
    A("v_rcp_f32 v37, v35"); A("v_mov_b32 v36, v34"); A("v_lshl_add_u32 v%d, v0, 3, v%d" % (vT + 2, vHI))
    A("s_mov_b64 exec, 0xf"); A("buffer_store_dwordx2 v[34:35], v28, %s, s%d offen sc1" % (srd("WS"), sMU))
    A("ds_write_b64 v%d, v[36:37] offset:%d" % (vT + 2, L_GS)); A("s_mov_b64 exec, -1")
    lds_add(vHI, F_GR)
    stamp(5)
    A("s_mov_b32 s%d, 2" % sMU)
    A("L_gather56:")
    A("s_waitcnt lgkmcnt(0)")
    A("s_barrier")
    stamp(8)
    gather(sMU, lambda: None)
    A("s_waitcnt lgkmcnt(0)")
    A("s_barrier")
    stamp(9)
    A("s_branch L_done")

    A("L_mlp:")
    vW, vU = 32, 64
    def cw_addr(dst): A("s_lshr_b32 s%d, s%d, 2" % (dst, sR)); A("s_mul_i32 s%d, s%d, %d" % (dst, dst, cws)); A("s_add_u32 s%d, s%d, 0x%x" % (dst, dst, WS_CW))
    A("s_cmp_lg_u32 s%d, 7" % sWAVE); A("s_cbranch_scc1 L_noclean")
    for i in range(4): A("v_mov_b32 v%d, -1" % (60 + i))
    slot_addrs()
    A("v_lshlrev_b32 v%d, 13, v%d" % (59, vG4)); A("v_lshl_add_u32 v%d, v%d, 4, v%d" % (59, vN16, 59))
    A("s_lshl_b32 s%d, s%d, %d" % (sT1, sR, 11)); A("s_add_u32 s%d, s%d, 0x%x" % (sT1, sT1, WS_SP))
    A("v_lshrrev_b32 v29, 2, v0"); A("v_lshlrev_b32 v29, 6, v29"); A("v_lshl_add_u32 v29, v%d, 4, v29" % vR4)
    cw_addr(sT2); A("s_and_b32 s%d, s%d, 3" % (sT3, sR)); A("s_cmp_eq_u32 s%d, 0" % sT3); A("s_cselect_b32 s12, 1, 0"); A("s_mov_b32 s13, 0")
    A("s_waitcnt lgkmcnt(0)")
    A("buffer_load_dwordx2 v[30:31], off, %s, 0 offset:%d sc1" % (srd("WS"), WS_EP))
    A("s_mov_b64 exec, 0xf"); A("buffer_store_dwordx2 v[60:61], v28, %s, s%d offen sc1" % (srd("WS"), sMU)); A("s_mov_b64 exec, -1")
    A("buffer_store_dwordx4 v[60:63], v%d, %s, s%d offen sc1" % (59, srd("WS"), sOPOFF))
    A("buffer_store_dwordx4 v[60:63], v29, %s, s%d offen sc1" % (srd("WS"), sT1))
    A("buffer_store_dwordx4 v[60:63], v29, %s, s%d offen offset:1024 sc1" % (srd("WS"), sT1))
    A("s_mov_b64 exec, s[12:13]"); A("buffer_store_dword v60, off, %s, s%d sc1" % (srd("WS"), sT2)); A("s_mov_b64 exec, -1")
    A("L_noclean:")
    A("s_sub_u32 s%d, s%d, 6" % (sMB, sWAVE))
    A("v_mul_u32_u24 v%d, 12, v0" % vT); A("s_mul_i32 s%d, s%d, 1792" % (sT1, sMB))
    A("s_waitcnt lgkmcnt(0)")
    A("s_load_dword s%d, s[%d:%d], 0" % (sB2, sB2P, sB2P + 1))
    A("s_barrier")
    for k, n in enumerate(("W1", "B1", "W2")):
        A("buffer_load_dwordx4 %s, v%d, %s, s%d offen" % (vr(vW + 8 * k, 4), vL16, srd(n), sT1))
        A("buffer_load_dwordx3 %s, v%d, %s, s%d offen offset:1024" % (vr(vW + 8 * k + 4, 3), vT, srd(n), sT1))
    A("s_cmp_lg_u32 s%d, 7" % sWAVE); A("s_cbranch_scc1 L_noflag")
    A("s_lshr_b32 s%d, s%d, 5" % (sT3, sR)); A("s_lshl_b32 s%d, s%d, 5" % (sT3, sT3))
    A("s_mov_b64 exec, 1")
    A("s_waitcnt vmcnt(6)")
    A("buffer_atomic_add v%d, off, %s, s%d" % (vONE, srd("DBG"), sT3))
    A("s_mov_b64 exec, -1")
    stamp(4)
    A("L_noflag:")
    A("s_lshr_b32 s%d, s%d, 5" % (sT0, sR)); A("s_mul_i32 s%d, s%d, %d" % (sT0, sT0, XN_STRIDE)); A("s_add_u32 s%d, s%d, %d" % (sT0, sT0, HI)); A("v_add_u32 v%d, s%d, v%d" % (vT + 1, sT0, vL16))
    A("s_lshl_b32 s%d, s%d, 13" % (sT2, sMB)); A("s_add_u32 s%d, s%d, %d" % (sT2, sT2, HI + L_WO)); A("v_add_u32 v%d, s%d, v%d" % (vT + 2, sT2, vL16))
    A("s_and_b32 s%d, s%d, 31" % (sT0, sR)); A("s_lshl_b32 s%d, s%d, 5" % (sT0, sT0)); A("s_add_u32 s%d, s%d, s%d" % (sT0, sT0, sT2))
    A("v_lshlrev_b32 v%d, 1, v%d" % (vT + 3, vN16)); A("v_add_u32 v%d, s%d, v%d" % (vT + 3, sT0, vT + 3))
    lds_wait(F_XN, 4)
    vXm = 112
    A("ds_read_b128 %s, v%d offset:%d" % (vr(vXm, 4), vT + 1, L_XN)); A("s_waitcnt lgkmcnt(0)")
    layernorm(vXm, 4, vXm + 4, vXm + 12, vXm + 20, 1)
    A("ds_write_b128 v%d, %s" % (vT + 2, vr(vXm, 4)))
    vH = 24
    A("ds_read_u16 v%d, v%d" % (vH, vT + 3))
    A("s_waitcnt vmcnt(0) lgkmcnt(0)")
    stamp(1)
    A("v_lshlrev_b32 v%d, 16, v%d" % (vH, vH))
    for k in range(3):
        for i in range(7): unpack(vU + 14 * k + 2 * i, vU + 14 * k + 2 * i + 1, vW + 8 * k + i)
    vC0, vACC, U, T_ = 25, 26, 112, 128
    A("v_mov_b32 v%d, s%d" % (vC0, sC0))
    A("s_lshl_b32 s%d, s%d, 6" % (sT0, sMB)); A("s_add_u32 s%d, s%d, %d" % (sT0, sT0, HI + L_YP)); A("v_mov_b32 v27, s%d" % sT0)
    A("s_mov_b32 s%d, 0" % sT1)
    A("s_nop 3")
    A("L_mlp_loop:")
    A("v_readlane_b32 s%d, v%d, s%d" % (sMU, vH, sT1))
    for t in range(14): A("v_fma_f32 v%d, s%d, v%d, v%d" % (U + t, sMU, vU + t, vU + 14 + t))
    for t in range(14): A("v_mul_f32 v%d, v%d, v%d" % (T_ + t, U + t, U + t))
    for t in range(14): A("v_fma_f32 v%d, v%d, s%d, v%d" % (T_ + t, T_ + t, sC1, vC0))
    for t in range(14): A("v_mul_f32 v%d, v%d, v%d" % (T_ + t, T_ + t, U + t))
    for t in range(14):
        A("v_exp_f32 v%d, v%d" % (T_ + t, T_ + t)); A("v_mul_f32 v%d, v%d, v%d" % (U + t, U + t, vU + 28 + t))
    for t in range(14): A("v_add_f32 v%d, 1.0, v%d" % (T_ + t, T_ + t))
    for t in range(14): A("v_rcp_f32 v%d, v%d" % (T_ + t, T_ + t))
    A("v_mul_f32 v%d, v%d, v%d" % (vACC, U, T_)); A("v_mul_f32 v%d, v%d, v%d" % (U, U + 1, T_ + 1))
    for t in range(2, 14): A("v_fmac_f32 v%d, v%d, v%d" % (vACC if t & 1 else U, U + t, T_ + t))
    A("v_add_f32 v%d, v%d, v%d" % (vACC, vACC, U))
    red16(vACC, "v_add_f32"); dpp("v_add_f32", vACC, "row_bcast:15", "0xa"); dpp("v_add_f32", vACC, "row_bcast:31", "0xc")
    A("s_mov_b32 exec_lo, 0"); A("s_mov_b32 exec_hi, 0x80000000")
    A("ds_write_b32 v27, v%d" % vACC); A("v_add_u32 v27, 4, v27")
    A("s_mov_b64 exec, -1")
    A("s_add_u32 s%d, s%d, 1" % (sT1, sT1)); A("s_cmp_lt_u32 s%d, 16" % sT1); A("s_cbranch_scc1 L_mlp_loop")
    stamp(2)
    A("s_waitcnt vmcnt(0)")
    A("s_cmp_eq_u32 s%d, 7" % sWAVE); A("s_cbranch_scc1 L_final")
    sCW, sCNT, sFU = 4, 5, 12
    if tlist: reqs = [tuple(int(y) for y in x.split(":")) for x in tlist.split(",")]
    else: reqs = [(t0 + tstep * r, tamt) for r in range(MAXT // tamt)]
    assert sum(a for _, a in reqs) == MAXT and all(t <= NF + n1 + sum(a for _, a in reqs[:max(i - lag, 0)]) for i, (t, _) in enumerate(reqs))
    cw_addr(sCW); A("s_mov_b32 s%d, 0" % sCNT); A("s_mov_b32 s%d, 0" % sFU)
    A("v_lshl_add_u32 v30, v0, 2, v%d" % vHI)
    lds_wait(F_AM, 1, sl=8)
    def set_plan(sg):
        A("v_mov_b32 v%d, s%d" % (vT, sg)); one_lane("ds_write_b32 v%d, v%d offset:%d" % (vHI, vT, F_PLAN))
    def take(r):
        amt = reqs[r][1]
        A("v_readfirstlane_b32 s%d, v%d" % (sT0, 32 + r)); A("s_add_u32 s%d, s%d, 1" % (sT0, sT0))
        if force:
            f = [int(x) for x in force.split(",")]; pre = [sum(f[:i]) for i in range(4)]
            A("s_and_b32 s%d, s%d, 3" % (sT1, sR)); A("s_lshl_b32 s%d, s%d, 3" % (sT1, sT1)); A("s_lshr_b32 s%d, 0x%x, s%d" % (sT2, sum(p << (8 * i) for i, p in enumerate(f)), sT1)); A("s_and_b32 s%d, s%d, 255" % (sT2, sT2))
            A("s_lshr_b32 s%d, 0x%x, s%d" % (sT0, sum(p << (8 * i) for i, p in enumerate(pre)), sT1)); A("s_and_b32 s%d, s%d, 255" % (sT0, sT0)); A("s_add_u32 s%d, s%d, s%d" % (sT0, sT0, sCNT))
            A("s_cmp_ge_u32 s%d, s%d" % (sCNT, sT2)); A("s_cselect_b32 s%d, %d, s%d" % (sT0, POOL, sT0))
        A("s_min_u32 s%d, s%d, %d" % (sT0, sT0, POOL)); A("s_sub_u32 s%d, %d, s%d" % (sT1, POOL, sT0)); A("s_min_u32 s%d, s%d, %d" % (sT1, sT1, amt))
        A("v_add_u32 v%d, s%d, v0" % (vT, sT0)); A("s_lshl_b32 s%d, s%d, 2" % (sT2, sCNT)); A("v_add_u32 v%d, s%d, v30" % (vT + 1, sT2))
        A("s_mov_b64 exec, %d" % ((1 << amt) - 1)); A("ds_write_b32 v%d, v%d offset:%d" % (vT + 1, vT, F_PLAN + 4)); A("s_mov_b64 exec, -1")
        A("s_add_u32 s%d, s%d, s%d" % (sCNT, sCNT, sT1))
        A("s_cmp_lt_u32 s%d, %d" % (sT1, amt)); A("s_cbranch_scc1 L_close")
        if r < len(reqs) - 1: set_plan(sCNT)
    for r, (thr, amt) in enumerate(reqs):
        lds_wait(F_FULL, thr, keep=sFU, sl=2)
        A("v_mov_b32 v%d, %d" % (32 + r, amt))
        if not noat: one_lane("buffer_atomic_add v%d, off, %s, s%d sc0" % (32 + r, srd("WS"), sCW))
        if r == 0: stamp(3)
        if r >= lag:
            A("s_waitcnt vmcnt(%d)" % lag); take(r - lag)
    for r in range(max(len(reqs) - lag, 0), len(reqs)):
        A("s_waitcnt vmcnt(%d)" % (len(reqs) - 1 - r)); take(r)
    A("L_close:")
    A("s_add_u32 s%d, s%d, 0x100" % (sCNT, sCNT)); set_plan(sCNT)
    stamp(4)
    A("s_waitcnt vmcnt(0)")
    A("s_mov_b32 s%d, 3" % sMU)
    A("s_branch L_gather56")
    A("L_final:")
    A("v_and_b32 v%d, 7, v0" % (vT + 1)); A("v_lshrrev_b32 v%d, 5, v0" % (vT + 2)); A("v_lshl_add_u32 v%d, v%d, 1, v%d" % (vT + 1, vT + 1, vT + 2))
    A("v_lshlrev_b32 v%d, 1, v%d" % (vT + 2, vT + 1)); A("s_lshl_b32 s12, s%d, 5" % sR)
    A("buffer_load_ushort v%d, v%d, %s, s12 offen" % (vT + 3, vT + 2, srd("X")))
    A("v_lshl_add_u32 v%d, v%d, 2, v%d" % (vT + 1, vT + 1, vHI))
    A("v_lshrrev_b32 v%d, 3, v0" % (vT + 4)); A("v_lshlrev_b32 v%d, 10, v%d" % (vT + 4, vT + 4)); A("v_and_b32 v%d, 7, v0" % (vT + 5)); A("v_lshl_add_u32 v%d, v%d, 4, v%d" % (vT + 4, vT + 5, vT + 4))
    A("s_lshr_b32 s%d, s%d, 3" % (sT0, sRW)); A("s_lshl_b32 s%d, s%d, 17" % (sT0, sT0)); A("s_and_b32 s%d, s%d, 7" % (sT1, sRW)); A("s_lshl_b32 s%d, s%d, 7" % (sT1, sT1))
    A("s_add_u32 s%d, s%d, s%d" % (sT0, sT0, sT1))
    wait_near_end(wotrig, 2)
    for a in range(16):
        A("s_mov_b32 m0, %d" % (HI + L_WO + a * 1024))
        A("buffer_load_dwordx4 v%d, %s, s%d offen %s lds" % (vT + 4, srd("WO"), sT0, pol))
        if a < 15: A("s_add_u32 s%d, s%d, 0x2000" % (sT0, sT0))
    A("s_mov_b32 s%d, s12" % sT0); A("s_lshl_b32 s%d, s%d, %d" % (sT1, sR, 11)); A("s_add_u32 s%d, s%d, 0x%x" % (sT1, sT1, WS_SP))
    A("s_waitcnt lgkmcnt(0)")
    A("s_barrier")
    stamp(8)
    A("ds_read_b32 v40, v%d offset:%d" % (vT + 1, L_YP)); A("ds_read_b32 v41, v%d offset:%d" % (vT + 1, L_YP + 64)); A("s_waitcnt lgkmcnt(0)")
    A("v_add_f32 v40, v40, v41"); rbf(40)
    A("s_lshl_b32 s%d, s%d, 16" % (sB2, sB2)); A("v_add_f32 v40, s%d, v40" % sB2); rbf(40)
    A("v_mul_f32 v41, s%d, v40" % sL2E); A("v_exp_f32 v41, -v41"); A("v_add_f32 v41, 1.0, v41"); A("v_rcp_f32 v41, v41"); A("v_mul_f32 v40, v40, v41"); rbf(40)
    A("s_waitcnt vmcnt(0)"); A("v_lshlrev_b32 v%d, 16, v%d" % (vT + 3, vT + 3))
    one_lane("ds_write_b32 v%d, v%d offset:%d" % (vHI, vONE, F_WO))
    stamp(11)
    A("s_barrier")
    stamp(9)
    if td2: A("s_sleep %d" % td2)
    A("v_lshlrev_b32 v29, 3, v0")
    apoll(32, 29, sT1, 44, tsleep)
    stamp(10)
    A("v_add_f32 v44, v32, v34"); A("v_add_f32 v45, v33, v35"); A("v_add_f32 v46, v36, v38"); A("v_add_f32 v47, v37, v39")
    A("v_add_f32 v44, v44, v46"); A("v_add_f32 v45, v45, v47")
    A("v_permlane32_swap_b32 v44, v45"); A("v_add_f32 v44, v44, v45")
    swap_red(44, 45, "v_add_f32", 16)
    dpp("v_add_f32", 44, "row_ror:8")
    rbf(44); A("v_mul_f32 v44, v44, v40"); rbf(44)
    A("v_add_f32 v44, v44, v%d" % (vT + 3)); A("v_cvt_pk_bf16_f32 v44, v44, v44")
    A("s_mov_b32 exec_lo, 0xff"); A("s_mov_b32 exec_hi, 0xff")
    A("buffer_store_short v44, v%d, %s, s%d offen" % (vT + 2, srd("OUT"), sT0))
    A("s_mov_b64 exec, -1")
    A("s_cmp_lg_u32 s%d, 0" % sR); A("s_cbranch_scc1 L_done")
    epoch()
    A("v_mov_b32 v30, s%d" % sEP); A("v_mov_b32 v31, s%d" % (sEP + 1))
    one_lane("buffer_store_dwordx2 v[30:31], off, %s, 0 offset:%d sc1" % (srd("WS"), WS_EP))
    A("L_done:")
    A("s_waitcnt vmcnt(0)")
    if stamps:
        stamp(NST - 1)
        A("s_waitcnt lgkmcnt(0)")
        A("s_lshl_b32 s%d, s2, 3" % sT0); A("s_add_u32 s%d, s%d, s%d" % (sT0, sT0, sWAVE)); A("s_mul_i32 s%d, s%d, %d" % (sT0, sT0, NST * 8)); A("s_add_u32 s%d, s%d, 0x%x" % (sT0, sT0, WS_STAMP))
        A("s_mov_b64 exec, 1")
        for k in range(NST):
            A("v_mov_b32 v2, s%d" % (16 + 2 * k)); A("v_mov_b32 v3, s%d" % (17 + 2 * k))
            A("buffer_store_dwordx2 v[2:3], off, %s, s%d offset:%d" % (srd("WS"), sT0, k * 8)); A("s_nop 1")
    A("L_end:")
    A("s_endpgm")
    body = A.finalize()
    hdr = open("recurrent_scan__gqa_block_cached__mixer_token_mlp__decode.s.ref").read().split("; Override launch")[0]
    s = hdr + "; @launch grid=(256,1,1) block=(512,1,1) lds=%d\n" % LDS_BYTES
    s += '.amdgcn_target "amdgcn-amd-amdhsa--gfx950"\n.text\n.globl %s\n.p2align 8\n.type %s,@function\n%s:\n' % (NAME, NAME, NAME)
    s += body
    s += '.section .rodata,"a"\n.p2align 6\n.amdhsa_kernel %s\n  .amdhsa_next_free_vgpr 256\n  .amdhsa_next_free_sgpr 102\n  .amdhsa_accum_offset 256\n' % NAME
    s += "  .amdhsa_group_segment_fixed_size 0\n  .amdhsa_kernarg_size 104\n  .amdhsa_user_sgpr_count 2\n  .amdhsa_user_sgpr_kernarg_segment_ptr 1\n  .amdhsa_system_sgpr_workgroup_id_x 1\n.end_amdhsa_kernel\n"
    return s, A

if __name__ == "__main__":
    out = sys.argv[1]
    kw = {}
    for p in sys.argv[2:]:
        k, v = p.split("=")
        kw[k] = int(v) if v.lstrip("-").isdigit() else v.replace("+", " ")
    s, A = gen(**kw)
    open(out, "w").write(s)
    print("wrote", out, "instructions", len(A.ins), "nops", A.nops, "lds", LDS_BYTES)
```

```python
import sys, struct
from asmlib import Asm

NAME = "recurrent_scan__gqa_block_cached__mixer_token_mlp__decode_kernel"
def f2u(x): return struct.unpack("<I", struct.pack("<f", x))[0]

WS_ST, WS_OP, WS_SP, WS_Q, WS_EP = 0x10000, 0x20000, 0x100000, 0x60000, 0x0
WS_PG = 0x90000
WS_CW, WS_PR = 0x80000, 0x200000
EP_STEP = 0x9E3779B97F4A7C15
WS_STAMP = 128 << 20
HI = 131072
L_WO = 0
L_XN, XN_STRIDE = 16384, 1040
L_OW = L_XN
L_QP = 24704
L_QB = 28800
L_FLG = 29824
L_ST = L_FLG + 64
L_GS = L_ST + 128
L_YP = L_GS + 32
LDS_BYTES = HI + L_YP + 128
F_FULL, F_FREED, F_XN, F_QP, F_QR, F_ST, F_GR, F_WO, F_AM, F_PLAN, F_LI, F_MODE = [L_FLG + 4 * i for i in (0, 4, 8, 9, 10, 11, 12, 13, 14, 1, 15, 2)]
L_PP = L_QP

sWAVE, sBASE, sOFF = 3, 4, 5
sT0, sT1, sT2 = 6, 7, 8
sR, sSPIN, sT3 = 9, 10, 11
sMU, sMB = 14, 15
SRD = dict(K=44, V=48, X=52, WQ=56, WO=60, W1=64, B1=68, W2=72, OUT=76, DBG=80, WS=84)
KARG = dict(X=0, K=8, V=16, WQ=24, WO=32, W1=48, B1=56, W2=64, OUT=80, DBG=88, WS=96)
SIZE = dict(X=8192, K=1 << 26, V=1 << 26, WQ=1 << 22, WO=1 << 22, W1=3584, B1=3584, W2=3584, OUT=8192, DBG=256, WS=1 << 28)
sSELLO, sSELHI, sMASK, sSCALE, sL2E, sC0, sC1, sB2, sB2P = 88, 89, 90, 91, 92, 93, 94, 95, 96
sOPOFF, sSPOFF, sSTOFF, sFULL = 98, 99, 100, 101
def srd(n): return "s[%d:%d]" % (SRD[n], SRD[n] + 3)
def vr(a, n=1): return "v%d" % a if n == 1 else "v[%d:%d]" % (a, a + n - 1)
vL16, vG4, vC4, vR4, vN16, vHI, vONE = 1, 2, 3, 4, 5, 6, 7
vT = 8
vPOLL = 16

def gen(F=4, stamps=0, pol="nt", spin=1 << 17, lspin=1 << 22, mimic=1, pre=0, lsleep=1, ldprio=3, fsleep=8, qsleep=2, ssleep=8, tsleep=0, xmap=1, polq=None, polo=None, ldst=0, abl='', rot=0, pad=0, P1=1, P2=1, pd=5, qmap=0, tl='sc1', ts='sc1', tsleep2=None, Fhi=0, himask=0xf8, hiend=16, spad=0, at2=1, td2=8, td1=0, at1=0, qdelay=0, sdelay=0, qtrig=8, strig=48, bshift=0, wolate=2, wqsplit=0, wotrig=60, D=0, DV=0, probe=0, steal=0, cth=23, cllate=0, bias=0, rtrig=48, p_a=-1, p_b=-1, pspan=0, pstart=0, bal=0, Flo=2, bthr=0, bper=8, bstop=58, bmin=0, pm=0, pval=0, pgrp=0, pat=11):
    NOWN = 5 if steal else 8
    sPLAN = 13
    DV = DV if DV else D
    tsleep2 = tsleep if tsleep2 is None else tsleep2
    polq = pol if polq is None else polq.replace('def', '')
    polo = pol if polo is None else polo.replace('def', '')
    A = Asm()
    NST = 14
    def stamp(k):
        if stamps: A("s_memrealtime s[%d:%d]" % (16 + 2 * k, 17 + 2 * k))
    QUADS = ("quad_perm:[1,0,3,2]", "quad_perm:[2,3,0,1]", "row_half_mirror", "row_mirror")
    def dpp(op, v, m, rm="0xf"): A("%s_dpp v%d, v%d, v%d %s row_mask:%s bank_mask:0xf" % (op, v, v, v, m, rm))
    def red16(v, op):
        for m in QUADS: dpp(op, v, m)
    def swap_red(v, t, op, which):
        A("v_mov_b32 v%d, v%d" % (t, v)); A("v_permlane%d_swap_b32 v%d, v%d" % (which, v, t)); A("%s v%d, v%d, v%d" % (op, v, v, t))
    def rbf(v):
        A("v_cvt_pk_bf16_f32 v%d, v%d, v%d" % (v, v, v)); A("v_lshlrev_b32 v%d, 16, v%d" % (v, v))
    def unpack(dlo, dhi, src):
        A("v_lshlrev_b32 v%d, 16, v%d" % (dlo, src)); A("v_and_b32 v%d, s%d, v%d" % (dhi, sMASK, src))
    def layernorm(pk, n, x, d, t, halves):
        def allred(v):
            red16(v, "v_add_f32"); swap_red(v, t + 2, "v_add_f32", 16)
            if halves == 1: swap_red(v, t + 2, "v_add_f32", 32)
        for i in range(n): unpack(x + 2 * i, x + 2 * i + 1, pk + i)
        A("v_add_f32 v%d, v%d, v%d" % (t, x, x + 1)); A("v_add_f32 v%d, v%d, v%d" % (t + 1, x + 2, x + 3))
        for i in range(4, 2 * n): A("v_add_f32 v%d, v%d, v%d" % (t + (i & 1), t + (i & 1), x + i))
        A("v_add_f32 v%d, v%d, v%d" % (t, t, t + 1))
        allred(t)
        A("v_mul_f32 v%d, 0x3b000000, v%d" % (t, t))
        A("v_cvt_pk_bf16_f32 v%d, v%d, v%d" % (t + 1, t, t))
        for i in range(2 * n): A("v_sub_f32 v%d, v%d, v%d" % (d + i, x + i, t))
        A("v_lshlrev_b32 v%d, 16, v%d" % (t + 1, t + 1))
        A("v_mul_f32 v%d, v%d, v%d" % (t, d, d)); A("v_mul_f32 v%d, v%d, v%d" % (d, d + 1, d + 1))
        for i in range(2, 2 * n): A("v_fmac_f32 v%d, v%d, v%d" % (t if i & 1 else d, d + i, d + i))
        A("v_add_f32 v%d, v%d, v%d" % (t, t, d))
        for i in range(2 * n): A("v_sub_f32 v%d, v%d, v%d" % (x + i, x + i, t + 1))
        allred(t)
        for i in range(n): A("v_cvt_pk_bf16_f32 v%d, v%d, v%d" % (pk + i, x + 2 * i, x + 2 * i + 1))
        A("v_mul_f32 v%d, 0x3b000000, v%d" % (t, t)); rbf(t)
        A("v_add_f32 v%d, 0x%x, v%d" % (t, f2u(1e-5), t)); rbf(t)
        A("v_sqrt_f32 v%d, v%d" % (t, t)); rbf(t)
        A("v_rcp_f32 v%d, v%d" % (t, t))
        for i in range(n): unpack(x + 2 * i, x + 2 * i + 1, pk + i)
        for i in range(2 * n): A("v_mul_f32 v%d, v%d, v%d" % (x + i, t, x + i))
        for i in range(n): A("v_cvt_pk_bf16_f32 v%d, v%d, v%d" % (pk + i, x + 2 * i, x + 2 * i + 1))
    def lds_wait(flag, val, keep=None, sl=None):
        ok = A.label("lok"); again = A.label("lagain")
        dst = keep if keep is not None else sT3
        if keep is not None:
            A("s_cmp_ge_u32 s%d, %s" % (keep, val)); A("s_cbranch_scc1 " + ok)
        A("s_mov_b32 s%d, 0" % sSPIN)
        A(again + ":")
        A("ds_read_b32 v%d, v%d offset:%d" % (vPOLL, vHI, flag)); A("s_waitcnt lgkmcnt(0)")
        A("v_readfirstlane_b32 s%d, v%d" % (dst, vPOLL))
        A("s_cmp_ge_u32 s%d, %s" % (dst, val)); A("s_cbranch_scc1 " + ok)
        if sl is None: sl = lsleep
        if sl: A("s_sleep %d" % sl)
        A("s_add_u32 s%d, s%d, 1" % (sSPIN, sSPIN)); A("s_cmp_lt_u32 s%d, %d" % (sSPIN, lspin)); A("s_cbranch_scc1 " + again)
        A(ok + ":")
    def lds_add(flag_addr_reg, off):
        A("s_waitcnt lgkmcnt(0)")
        A("s_mov_b64 exec, 1"); A("ds_add_u32 v%d, v%d offset:%d" % (flag_addr_reg, vONE, off)); A("s_mov_b64 exec, -1")
    def gpoll(loads, first=True, sleep=0, full="-1", tag=None, P=1):
        ok = A.label("ok"); again = A.label("again")
        masks = ["vcc", "s[12:13]"]
        A("s_mov_b32 s%d, 0" % sSPIN)
        if first:
            for issue, regs in loads: issue()
        for _ in range(P - 1):
            A("s_sleep %d" % pd)
            for issue, regs in loads: issue()
        A(again + ":")
        A("s_waitcnt vmcnt(%d)" % (len(loads) * (P - 1)))
        for (issue, regs), mk in zip(loads, masks):
            t = vT + 7
            if tag is not None:
                A("v_cmp_ne_u64 %s, %s, v[%d:%d]" % (mk, tag, regs[2], regs[3])); continue
            if len(regs) == 2: A("v_max_u32 v%d, v%d, v%d" % (t, regs[0], regs[1]))
            else:
                A("v_max3_u32 v%d, v%d, v%d, v%d" % (t, regs[0], regs[1], regs[2])); A("v_max_u32 v%d, v%d, v%d" % (t, t, regs[3]))
            A("v_cmp_eq_u32 %s, -1, v%d" % (mk, t))
        if len(loads) == 2:
            A("s_or_b32 s%d, vcc_lo, vcc_hi" % sT3); A("s_or_b32 s%d, s%d, s12" % (sT3, sT3)); A("s_or_b32 s%d, s%d, s13" % (sT3, sT3))
        else:
            A("s_or_b32 s%d, vcc_lo, vcc_hi" % sT3)
        A("s_cbranch_scc0 " + ok)
        if sleep: A("s_sleep %d" % sleep)
        for (issue, regs), mk in zip(loads, masks):
            A("s_mov_b64 exec, %s" % mk); issue()
        if full == "PARTIAL": A("s_mov_b32 exec_lo, -1"); A("s_mov_b32 exec_hi, 0x1ffff")
        else: A("s_mov_b64 exec, %s" % full)
        A("s_add_u32 s%d, s%d, 1" % (sSPIN, sSPIN)); A("s_cmp_lt_u32 s%d, %d" % (sSPIN, spin)); A("s_cbranch_scc1 " + again)
        A("s_waitcnt vmcnt(0)")
        A(ok + ":")
    def apoll(vd, vaddr, soff, vtmp, sleep, first=True):
        ms = ["vcc", "s[12:13]", "s[88:89]", "s[90:91]"]
        ok = A.label("aok"); again = A.label("aagain")
        def iss(k):
            A("v_mov_b32 v%d, 0" % (vd + 2 * k)); A("v_mov_b32 v%d, 0" % (vd + 1 + 2 * k))
            A("buffer_atomic_or_x2 v[%d:%d], v%d, %s, s%d offen offset:%d sc0" % (vd + 2 * k, vd + 1 + 2 * k, vaddr, srd("WS"), soff, 512 * k))
        if first == "only":
            for k in range(4): iss(k)
            return
        A("s_mov_b32 s%d, 0" % sSPIN)
        if first:
            for k in range(4): iss(k)
        A(again + ":")
        A("s_waitcnt vmcnt(0)")
        for k in range(4): A("v_max_u32 v%d, v%d, v%d" % (vtmp + k, vd + 2 * k, vd + 1 + 2 * k))
        for k in range(4): A("v_cmp_eq_u32 %s, -1, v%d" % (ms[k], vtmp + k))
        A("s_or_b64 s[92:93], vcc, s[12:13]"); A("s_or_b64 s[94:95], s[88:89], s[90:91]"); A("s_or_b64 s[92:93], s[92:93], s[94:95]")
        A("s_cbranch_scc0 " + ok)
        if sleep: A("s_sleep %d" % sleep)
        for k in range(4):
            A("s_mov_b64 exec, %s" % ms[k]); iss(k)
        A("s_mov_b64 exec, -1")
        A("s_add_u32 s%d, s%d, 1" % (sSPIN, sSPIN)); A("s_cmp_lt_u32 s%d, %d" % (sSPIN, spin)); A("s_cbranch_scc1 " + again)
        A("s_waitcnt vmcnt(0)")
        A(ok + ":")
    def word_poll(load, vd, lanes, cmp, sleep):
        ok = A.label("fok"); again = A.label("fagain")
        A("s_mov_b32 s%d, 0" % sSPIN); A("s_mov_b64 exec, %s" % lanes)
        A(again + ":")
        A(load)
        A("s_waitcnt vmcnt(0)")
        A(cmp % vd)
        A("s_cmp_eq_u64 vcc, 0"); A("s_cbranch_scc1 " + ok)
        if sleep: A("s_sleep %d" % sleep)
        A("s_add_u32 s%d, s%d, 1" % (sSPIN, sSPIN)); A("s_cmp_lt_u32 s%d, %d" % (sSPIN, spin)); A("s_cbranch_scc1 " + again)
        A(ok + ":")
        A("s_mov_b64 exec, -1")

    A("s_cmp_ge_u32 s2, 256"); A("s_cbranch_scc1 L_end")
    if stamps:
        for k in range(1, NST): A("s_mov_b64 s[%d:%d], 0" % (16 + 2 * k, 17 + 2 * k))
    stamp(0)
    if (pad or p_b >= 0 or pspan or pstart) and not stamps: A("s_memrealtime s[16:17]")
    for n in ("K", "X", "WQ", "WS", "V", "WO", "W1", "B1", "W2", "DBG", "OUT"):
        A("s_load_dwordx2 s[%d:%d], s[0:1], %d" % (SRD[n], SRD[n] + 1, KARG[n]))
    A("s_load_dwordx2 s[%d:%d], s[0:1], 72" % (sB2P, sB2P + 1))
    A("v_lshrrev_b32 v1, 6, v0"); A("v_and_b32 v0, 63, v0"); A("v_readfirstlane_b32 s%d, v1" % sWAVE)
    for n in SRD:
        A("s_mov_b32 s%d, 0x%x" % (SRD[n] + 2, SIZE[n])); A("s_mov_b32 s%d, 0x20000" % (SRD[n] + 3))
    if xmap == 0:
        A("s_and_b32 s%d, s2, 7" % sR); A("s_lshl_b32 s%d, s%d, 5" % (sR, sR)); A("s_lshr_b32 s%d, s2, 3" % sT0); A("s_add_u32 s%d, s%d, s%d" % (sR, sR, sT0))
    elif xmap >= 8:
        A("s_bfe_u32 s%d, s2, 0x10003" % sT0); A("s_bfe_u32 s%d, s2, 0x10004" % sT1); A("s_lshl_b32 s%d, s%d, 2" % (sT1, sT1)); A("s_add_u32 s%d, s%d, s%d" % (sT0, sT0, sT1))
        if xmap == 9: A("s_lshr_b32 s%d, s2, 5" % sT1); A("s_add_u32 s%d, s%d, s%d" % (sT0, sT0, sT1))
        A("s_sub_u32 s%d, s2, s%d" % (sR, sT0))
        A("s_and_b32 s%d, s%d, 7" % (sR, sR)); A("s_lshl_b32 s%d, s%d, 2" % (sR, sR)); A("s_and_b32 s%d, s2, 0xe0" % sT0); A("s_add_u32 s%d, s%d, s%d" % (sR, sR, sT0))
        A("s_bfe_u32 s%d, s2, 0x20003" % sT0); A("s_add_u32 s%d, s%d, s%d" % (sR, sR, sT0))
    elif xmap >= 4:
        A("s_lshr_b32 s%d, s2, 1" % sT0); A("s_xor_b32 s%d, s%d, s2" % (sT0, sT0)); A("s_and_b32 s%d, s%d, 1" % (sT0, sT0)); A("s_lshl_b32 s%d, s%d, 3" % (sT0, sT0))
        A("s_and_b32 s%d, s2, 4" % sT1); A("s_lshl_b32 s%d, s%d, 2" % (sT1, sT1)); A("s_add_u32 s%d, s%d, s%d" % (sT0, sT0, sT1))
        A("s_bfe_u32 s%d, s2, 0x10003" % sT1); A("s_lshl_b32 s%d, s%d, 2" % (sT1, sT1)); A("s_add_u32 s%d, s%d, s%d" % (sT0, sT0, sT1))
        A("s_and_b32 s%d, s2, 0xe0" % sR); A("s_add_u32 s%d, s%d, s%d" % (sR, sR, sT0))
        if xmap == 6:
            A("s_lshr_b32 s%d, s2, 5" % sT0); A("s_xor_b32 s%d, s%d, s2" % (sT0, sT0)); A("s_and_b32 s%d, s%d, 1" % (sT0, sT0))
        elif xmap == 7:
            A("s_lshr_b32 s%d, s2, 3" % sT0); A("s_xor_b32 s%d, s%d, s2" % (sT0, sT0)); A("s_and_b32 s%d, s%d, 1" % (sT0, sT0))
        else: A("s_and_b32 s%d, s2, 1" % sT0)
        A("s_bfe_u32 s%d, s2, 0x10004" % sT1)
        A("s_lshl_b32 s%d, s%d, 1" % ((sT0, sT0) if xmap != 5 else (sT1, sT1)))
        A("s_add_u32 s%d, s%d, s%d" % (sR, sR, sT0)); A("s_add_u32 s%d, s%d, s%d" % (sR, sR, sT1))
    else:
        if xmap == 2:
            A("s_lshr_b32 s%d, s2, 5" % sT0); A("s_add_u32 s%d, s2, s%d" % (sR, sT0))
        elif xmap == 3:
            A("s_bfe_u32 s%d, s2, 0x20003" % sT0); A("s_lshl_b32 s%d, s%d, 1" % (sT0, sT0)); A("s_add_u32 s%d, s2, s%d" % (sR, sT0))
        else: A("s_add_u32 s%d, s2, %d" % (sR, bshift))
        A("s_and_b32 s%d, s%d, 7" % (sR, sR)); A("s_lshl_b32 s%d, s%d, 2" % (sR, sR)); A("s_and_b32 s%d, s2, 0xe0" % sT0); A("s_add_u32 s%d, s%d, s%d" % (sR, sR, sT0))
        A("s_bfe_u32 s%d, s2, 0x20003" % sT0); A("s_add_u32 s%d, s%d, s%d" % (sR, sR, sT0))
    sRQ = sMB
    if xmap >= 4:
        A("s_and_b32 s%d, s2, 7" % sRQ); A("s_lshl_b32 s%d, s%d, 2" % (sRQ, sRQ)); A("s_and_b32 s%d, s2, 0xe0" % sT0); A("s_add_u32 s%d, s%d, s%d" % (sRQ, sRQ, sT0))
        A("s_bfe_u32 s%d, s2, 0x20003" % sT0); A("s_add_u32 s%d, s%d, s%d" % (sRQ, sRQ, sT0))
    elif qmap == 0: A("s_mov_b32 s%d, s%d" % (sRQ, sR))
    elif qmap == 1:
        A("s_and_b32 s%d, s2, 7" % sRQ); A("s_lshl_b32 s%d, s%d, 5" % (sRQ, sRQ)); A("s_lshr_b32 s%d, s2, 3" % sT0); A("s_add_u32 s%d, s%d, s%d" % (sRQ, sRQ, sT0))
    elif qmap == 2:
        A("s_lshr_b32 s%d, s%d, 3" % (sT0, sR)); A("s_and_b32 s%d, s%d, 0x1c" % (sT0, sT0)); A("s_add_u32 s%d, s%d, s%d" % (sT0, sT0, sR)); A("s_and_b32 s%d, s%d, 0x1c" % (sT0, sT0))
        A("s_and_b32 s%d, s%d, 0xe3" % (sRQ, sR)); A("s_or_b32 s%d, s%d, s%d" % (sRQ, sRQ, sT0))
    elif qmap == 4:
        A("s_lshr_b32 s%d, s%d, 5" % (sT0, sR)); A("s_lshl_b32 s%d, s%d, 1" % (sT0, sT0)); A("s_bfe_u32 s%d, s%d, 0x10001" % (sT1, sR)); A("s_add_u32 s%d, s%d, s%d" % (sT0, sT0, sT1))
        A("s_lshr_b32 s%d, s%d, 2" % (sT1, sT0)); A("s_lshl_b32 s%d, s%d, 1" % (sT1, sT1)); A("s_bfe_u32 s%d, s%d, 0x30002" % (sT2, sR)); A("s_add_u32 s%d, s%d, s%d" % (sT1, sT1, sT2))
        A("s_and_b32 s%d, s%d, 7" % (sT1, sT1)); A("s_lshl_b32 s%d, s%d, 3" % (sT0, sT0)); A("s_add_u32 s%d, s%d, s%d" % (sT0, sT0, sT1)); A("s_lshl_b32 s%d, s%d, 1" % (sT0, sT0))
        A("s_and_b32 s%d, s%d, 1" % (sT1, sR)); A("s_add_u32 s%d, s%d, s%d" % (sRQ, sT0, sT1))
    A("v_lshlrev_b32 v%d, 4, v0" % vL16); A("v_lshrrev_b32 v%d, 4, v0" % vG4); A("v_bfe_u32 v%d, v0, 2, 2" % vC4)
    A("v_and_b32 v%d, 3, v0" % vR4); A("v_and_b32 v%d, 15, v0" % vN16); A("v_mov_b32 v%d, 0x%x" % (vHI, HI)); A("v_mov_b32 v%d, 1" % vONE)
    A("s_mov_b32 s%d, 0x05040100" % sSELLO); A("s_mov_b32 s%d, 0x07060302" % sSELHI); A("s_mov_b32 s%d, 0xffff0000" % sMASK)
    A("s_mov_b32 s%d, 0x%x" % (sSCALE, f2u(128 ** -0.5))); A("s_mov_b32 s%d, 0x%x" % (sL2E, f2u(1.4426950408889634)))
    c0 = -2.0 * 0.7978845608028654 * 1.4426950408889634
    A("s_mov_b32 s%d, 0x%x" % (sC0, f2u(c0))); A("s_mov_b32 s%d, 0x%x" % (sC1, f2u(c0 * 0.044715)))
    A("s_lshr_b32 s%d, s%d, 5" % (sT0, sR)); A("s_lshl_b32 s%d, s%d, 15" % (sT0, sT0))
    A("s_and_b32 s%d, s%d, 31" % (sT1, sR)); A("s_lshl_b32 s%d, s%d, 8" % (sT1, sT1)); A("s_add_u32 s%d, s%d, s%d" % (sT0, sT0, sT1))
    A("s_add_u32 s%d, s%d, 0x%x" % (sOPOFF, sT0, WS_OP))
    A("s_and_b32 s%d, s%d, 7" % (sT0, sR)); A("s_lshl_b32 s%d, s%d, %d" % (sT0, sT0, 13 + spad))
    A("s_lshr_b32 s%d, s%d, 3" % (sT1, sR)); A("s_lshl_b32 s%d, s%d, %d" % (sT1, sT1, 6 + spad)); A("s_add_u32 s%d, s%d, s%d" % (sT0, sT0, sT1))
    A("s_add_u32 s%d, s%d, 0x%x" % (sSPOFF, sT0, WS_SP))
    A("s_lshr_b32 s%d, s%d, 2" % (sT0, sR)); A("s_lshl_b32 s%d, s%d, 7" % (sT0, sT0)); A("s_add_u32 s%d, s%d, 0x%x" % (sSTOFF, sT0, WS_ST))
    A("s_cmp_eq_u32 s%d, 4" % sWAVE); A("s_cbranch_scc1 L_loader")
    A("s_cmp_eq_u32 s%d, 5" % sWAVE); A("s_cbranch_scc1 L_comm")
    A("s_cmp_gt_u32 s%d, 5" % sWAVE); A("s_cbranch_scc1 L_mlp")

    vQ, vS, vTMP, vK = 32, 48, 112, 128
    vKA, vVA = 17, 17
    vM, vLs, vMO, vF, vOWA = 25, 26, 27, 28, 29
    vX = vS
    A("v_lshlrev_b32 v%d, 5, v0" % vT)
    A("v_lshrrev_b32 v%d, 1, v0" % (vT + 1)); A("v_lshlrev_b32 v%d, 13, v%d" % (vT + 1, vT + 1))
    A("v_and_b32 v%d, 1, v0" % (vT + 2)); A("v_lshl_add_u32 v%d, v%d, 4, v%d" % (vT + 1, vT + 2, vT + 1))
    A("s_lshl_b32 s%d, s%d, 11" % (sT2, sWAVE))
    A("s_lshl_b32 s%d, s%d, 20" % (sT0, sWAVE)); A("s_lshl_b32 s%d, s%d, 5" % (sT1, sRQ)); A("s_add_u32 s%d, s%d, s%d" % (sT0, sT0, sT1))
    A("s_lshl_b32 s%d, s%d, 13" % (sT1, sWAVE)); A("s_add_u32 s%d, s%d, %d" % (sT1, sT1, 12 * 8192))
    A("s_waitcnt lgkmcnt(0)")
    if ldst == 2: stamp(12)
    A("buffer_load_dwordx4 %s, v%d, %s, s%d offen" % (vr(vX, 4), vT, srd("X"), sT2))
    A("buffer_load_dwordx4 %s, v%d, %s, s%d offen offset:16" % (vr(vX + 4, 4), vT, srd("X"), sT2))
    nq0 = wqsplit if wqsplit else 4
    for a in range(nq0):
        A("s_add_u32 m0, s%d, %d" % (sT1, a * 1024))
        if 'q' in abl: A("buffer_load_dwordx4 v%d, %s, 0 offen lds" % (vL16, srd("X")))
        else: A("buffer_load_dwordx4 v%d, %s, s%d offen %s lds" % (vT + 1, srd("WQ"), sT0, polq))
        if a < 3: A("s_add_u32 s%d, s%d, 0x40000" % (sT0, sT0))
    if nq0 < 4: A("v_mov_b32 v31, v%d" % (vT + 1)); A("s_mov_b32 s12, s%d" % sT0)
    A("s_barrier")
    A("v_lshrrev_b32 v%d, 5, v0" % (vT + 3)); A("s_lshl_b32 s%d, s%d, 1" % (sT0, sWAVE)); A("v_add_u32 v%d, s%d, v%d" % (vT + 3, sT0, vT + 3))
    A("v_mul_u32_u24 v%d, %d, v%d" % (vT + 3, XN_STRIDE, vT + 3)); A("v_and_b32 v%d, 31, v0" % (vT + 4)); A("v_lshl_add_u32 v%d, v%d, 5, v%d" % (vT + 3, vT + 4, vT + 3))
    A("v_add_u32 v%d, v%d, v%d" % (vT + 3, vHI, vT + 3))
    A("v_and_b32 v%d, 7, v0" % (vT + 4)); A("v_mul_u32_u24 v%d, %d, v%d" % (vT + 4, XN_STRIDE, vT + 4)); A("v_lshl_add_u32 v%d, v%d, 4, v%d" % (vT + 4, vG4, vT + 4))
    A("s_lshl_b32 s%d, s%d, 8" % (sT0, sWAVE)); A("s_add_u32 s%d, s%d, %d" % (sT0, sT0, HI)); A("v_add_u32 v%d, s%d, v%d" % (vT + 4, sT0, vT + 4))
    A("v_lshlrev_b32 v%d, 8, v%d" % (vT + 5, vG4)); A("v_lshl_add_u32 v%d, v%d, 3, v%d" % (vT + 5, vN16, vT + 5)); A("v_add_u32 v%d, s%d, v%d" % (vT + 5, sT1, vT + 5))
    A("s_lshl_b32 s%d, s%d, 10" % (sT0, sWAVE)); A("s_add_u32 s%d, s%d, %d" % (sT0, sT0, HI)); A("v_add_u32 v%d, s%d, v%d" % (vT + 6, sT0, vL16))
    A("s_lshl_b32 s%d, s%d, 13" % (sT0, sWAVE)); A("v_lshlrev_b32 v%d, 8, v%d" % (vT, vN16)); A("v_add_u32 v%d, s%d, v%d" % (vT, sT0, vT))
    for m in range(4):
        A("v_add_u32 v%d, %d, v%d" % (vT + 1, 4 * m, vG4)); A("v_xor_b32 v%d, v%d, v%d" % (vT + 1, vT + 1, vN16))
        A("v_lshl_add_u32 v%d, v%d, 4, v%d" % (vKA + m, vT + 1, vT)); A("v_add_u32 v%d, 0x10000, v%d" % (vKA + 4 + m, vKA + m))
    A("s_lshl_b32 s%d, s%d, 2" % (sT0, sWAVE)); A("s_add_u32 s%d, s%d, %d" % (sT0, sT0, HI)); A("v_mov_b32 v%d, s%d" % (30, sT0))
    A("s_mov_b32 s%d, 0" % sFULL)
    A("s_waitcnt vmcnt(%d)" % nq0)
    for a in range(nq0, 4):
        A("s_add_u32 m0, s%d, %d" % (sT1, a * 1024))
        A("buffer_load_dwordx4 v31, %s, s12 offen %s lds" % (srd("WQ"), polq))
        if a < 3: A("s_add_u32 s12, s12, 0x40000")
    stamp(1)
    layernorm(vX, 8, vX + 8, vX + 24, vX + 40, 2)
    A("ds_write_b128 v%d, %s offset:%d" % (vT + 3, vr(vX, 4), L_XN)); A("ds_write_b128 v%d, %s offset:%d" % (vT + 3, vr(vX + 4, 4), L_XN + 16))
    lds_add(vHI, F_XN)
    A("s_waitcnt vmcnt(0)")
    for m in range(4):
        A("ds_read_b64_tr_b16 %s, v%d offset:%d" % (vr(vK + 4 * m, 2), vT + 5, m * 1024))
        A("ds_read_b64_tr_b16 %s, v%d offset:%d" % (vr(vK + 4 * m + 2, 2), vT + 5, m * 1024 + 128))
    lds_wait(F_XN, 4)
    for m in range(4): A("ds_read_b128 %s, v%d offset:%d" % (vr(vK + 16 + 4 * m, 4), vT + 4, L_XN + m * 64))
    for m in range(4):
        A("s_waitcnt lgkmcnt(%d)" % (3 - m))
        A("v_mfma_f32_16x16x32_bf16 %s, %s, %s, %s" % (vr(vTMP, 4), vr(vK + 4 * m, 4), vr(vK + 16 + 4 * m, 4), "0" if m == 0 else vr(vTMP, 4)))
    A("ds_write_b128 v%d, %s offset:%d" % (vT + 6, vr(vTMP, 4), L_QP))
    lds_add(vHI, F_QP)
    A("s_mov_b64 exec, 1"); A("ds_add_u32 v30, v%d offset:%d" % (vONE, F_FREED)); A("s_mov_b64 exec, -1")
    stamp(2)
    def wait_block(n4):
        A("s_add_u32 s%d, s%d, %d" % (sT0, sWAVE, 4 * n4 + 1))
        lds_wait(F_FULL, "s%d" % sT0, keep=sFULL)
    def read_k(j):
        base = vK + 32 * (j % 4)
        for t in range(2):
            for m in range(4):
                A("ds_read_b128 %s, v%d offset:%d" % (vr(base + 16 * t + 4 * m, 4), vKA + m + (4 if (j & 2) else 0), (j & 1) * 32768 + t * 4096))
    def qk_block(j):
        base = vK + 32 * (j % 4)
        for m in range(4):
            for t in range(2):
                acc = vr(vS + 8 * j + 4 * t, 4)
                A("v_mfma_f32_16x16x32_bf16 %s, %s, %s, %s" % (acc, vr(base + 16 * t + 4 * m, 4), vr(vQ + 4 * m, 4), "0" if m == 0 else acc))
    def round_block(j):
        for p in range(4):
            a, b, t = vS + 8 * j + 2 * p, vS + 8 * j + 2 * p + 1, vT + (p & 1)
            if mimic:
                A("v_cvt_pk_bf16_f32 v%d, v%d, v%d" % (t, a, b)); unpack(a, b, t)
            A("v_mul_f32 v%d, s%d, v%d" % (a, sSCALE, a)); A("v_mul_f32 v%d, s%d, v%d" % (b, sSCALE, b))
            if mimic:
                A("v_cvt_pk_bf16_f32 v%d, v%d, v%d" % (t, a, b)); unpack(a, b, t)
            if j == 0 and p == 0: A("v_max_f32 v%d, v%d, v%d" % (vM, a, b))
            else: A("v_max3_f32 v%d, v%d, v%d, v%d" % (vM, a, b, vM))
    for j in range(4):
        wait_block(j); read_k(j); lds_add(30, F_FREED)
    stamp(3)
    lds_wait(F_QR, 1)
    stamp(4)
    A("v_lshlrev_b32 v%d, 8, v%d" % (vT, vC4)); A("v_lshl_add_u32 v%d, v%d, 4, v%d" % (vT, vG4, vT)); A("v_add_u32 v%d, v%d, v%d" % (vT, vHI, vT))
    for m in range(4): A("ds_read_b128 %s, v%d offset:%d" % (vr(vQ + 4 * m, 4), vT, L_QB + m * 64))
    A("s_waitcnt lgkmcnt(0)")
    for j in range(4):
        qk_block(j)
        wait_block(4 + j); A("s_nop 3"); read_k(4 + j)
        if j >= 1: round_block(j - 1)
        lds_add(30, F_FREED)
    for j in range(4, 8):
        qk_block(j); round_block(j - 1)
    A("v_lshl_add_u32 v%d, v%d, 2, v%d" % (vT + 2, vG4, vC4))
    A("v_and_b32 v%d, 7, v%d" % (vT + 3, vT + 2)); A("v_lshlrev_b32 v%d, 1, v%d" % (vT + 3, vT + 3))
    A("v_lshrrev_b32 v%d, 1, v%d" % (vT + 4, vR4)); A("v_xor_b32 v%d, v%d, v%d" % (vT + 3, vT + 3, vT + 4))
    A("v_lshlrev_b32 v%d, 8, v%d" % (vT + 2, vT + 2)); A("v_lshl_add_u32 v%d, v%d, 4, v%d" % (vT + 2, vT + 3, vT + 2))
    A("v_and_b32 v%d, 1, v0" % (vT + 4)); A("v_lshl_add_u32 v%d, v%d, 3, v%d" % (vT + 2, vT + 4, vT + 2))
    A("s_lshl_b32 s%d, s%d, 13" % (sT0, sWAVE)); A("v_add_u32 v%d, s%d, v%d" % (vVA, sT0, vT + 2))
    for d in range(1, 8): A("v_xor_b32 v%d, %d, v%d" % (vVA + d, 32 * d, vVA))
    round_block(7)
    swap_red(vM, vT, "v_max_f32", 32); swap_red(vM, vT, "v_max_f32", 16)
    A("v_mul_f32 v%d, s%d, v%d" % (vM, sL2E, vM))
    A("v_lshlrev_b32 v%d, 4, v%d" % (vT + 1, vG4)); A("ds_bpermute_b32 v%d, v%d, v%d" % (vMO, vT + 1, vM))
    vP = vK
    for j in range(32):
        a, b = vS + 2 * j, vS + 2 * j + 1
        A("v_fma_f32 v%d, v%d, s%d, -v%d" % (a, a, sL2E, vM)); A("v_fma_f32 v%d, v%d, s%d, -v%d" % (b, b, sL2E, vM))
        A("v_exp_f32 v%d, v%d" % (a, a)); A("v_exp_f32 v%d, v%d" % (b, b))
        if j >= 1:
            pa, pb = a - 2, b - 2
            if j == 1: A("v_add_f32 v%d, v%d, v%d" % (vLs, pa, pb))
            else: A("v_add_f32 v%d, v%d, v%d" % (vLs, vLs, pa)); A("v_add_f32 v%d, v%d, v%d" % (vLs, vLs, pb))
            A("v_cvt_pk_bf16_f32 v%d, v%d, v%d" % (vP + j - 1, pa, pb))
    A("v_add_f32 v%d, v%d, v%d" % (vLs, vLs, vS + 62)); A("v_add_f32 v%d, v%d, v%d" % (vLs, vLs, vS + 63))
    A("v_cvt_pk_bf16_f32 v%d, v%d, v%d" % (vP + 31, vS + 62, vS + 63))
    swap_red(vLs, vT, "v_add_f32", 32); swap_red(vLs, vT, "v_add_f32", 16)
    A("s_lshl_b32 s%d, s%d, 5" % (sT0, sWAVE)); A("s_add_u32 s%d, s%d, %d" % (sT0, sT0, HI)); A("v_lshlrev_b32 v%d, 3, v%d" % (vT, vC4)); A("v_add_u32 v%d, s%d, v%d" % (vT, sT0, vT))
    A("v_mov_b32 v%d, v%d" % (vT + 2, vM)); A("v_mov_b32 v%d, v%d" % (vT + 3, vLs))
    A("s_mov_b64 exec, 0x1111"); A("ds_write_b64 v%d, %s offset:%d" % (vT, vr(vT + 2, 2), L_ST)); A("s_mov_b64 exec, -1")
    lds_add(vHI, F_ST)
    stamp(5)
    A("s_lshl_b32 s%d, s%d, 11" % (sT0, sWAVE)); A("s_add_u32 s%d, s%d, %d" % (sT0, sT0, HI + L_OW))
    A("v_lshlrev_b32 v%d, 9, v%d" % (vOWA, vG4)); A("v_lshl_add_u32 v%d, v%d, 2, v%d" % (vOWA, vN16, vOWA)); A("v_add_u32 v%d, s%d, v%d" % (vOWA, sT0, vOWA))
    vVB = vK + 32
    def read_v(j):
        base = vVB + 32 * (j & 1)
        for d in range(8):
            for t in range(2):
                A("ds_read_b64_tr_b16 %s, v%d offset:%d" % (vr(base + 4 * d + 2 * t, 2), vVA + d, (j & 1) * 32768 + t * 4096))
    def pv(j, d):
        base = vVB + 32 * (j & 1)
        acc = vr(vS + 4 * d, 4)
        A("v_mfma_f32_16x16x32_bf16 %s, %s, %s, %s" % (acc, vr(vP + 4 * j, 4), vr(base + 4 * d, 4), "0" if j == 0 else acc))
    vS2, vF2 = vS + 32, 31
    def factor(dst, m):
        lds_wait(F_GR, 1)
        A("v_lshl_add_u32 v%d, v%d, 3, v%d" % (vT, vG4, vHI)); A("ds_read_b64 %s, v%d offset:%d" % (vr(vT + 2, 2), vT, L_GS)); A("s_waitcnt lgkmcnt(0)")
        A("v_sub_f32 v%d, v%d, v%d" % (dst, m, vT + 2)); A("v_exp_f32 v%d, v%d" % (dst, dst)); A("v_mul_f32 v%d, v%d, v%d" % (dst, dst, vT + 3))
    def wait_pos(j, out):
        ok = A.label("pok"); again = A.label("pagain"); chk = A.label("pchk")
        A("s_add_u32 s%d, s%d, %d" % (sT0, sWAVE, 32 + 4 * j + 1))
        A("s_mov_b32 s%d, 0" % sSPIN)
        A("s_branch " + chk)
        A(again + ":")
        A("ds_read_b64 %s, v%d offset:%d" % (vr(vT + 2, 2), vHI, F_FULL)); A("s_waitcnt lgkmcnt(0)")
        A("v_readfirstlane_b32 s%d, v%d" % (sFULL, vT + 2)); A("v_readfirstlane_b32 s%d, v%d" % (sPLAN, vT + 3))
        A(chk + ":")
        A("s_cmp_ge_u32 s%d, s%d" % (sFULL, sT0)); A("s_cbranch_scc1 " + ok)
        A("s_sub_u32 s%d, s%d, 0x100" % (sT1, sPLAN)); A("s_cmp_le_u32 s%d, %d" % (sT1, j)); A("s_cbranch_scc1 " + out)
        A("s_add_u32 s%d, s%d, 1" % (sSPIN, sSPIN)); A("s_cmp_lt_u32 s%d, %d" % (sSPIN, lspin)); A("s_cbranch_scc1 " + again)
        A("s_branch " + out)
        A(ok + ":")
    if steal:
        lds_wait(F_AM, 1)
        A("v_lshrrev_b32 v%d, 2, v0" % vT); A("v_lshlrev_b32 v%d, 4, v%d" % (vT, vT))
        A("s_lshl_b32 s%d, s%d, 12" % (sT0, sR)); A("s_lshl_b32 s%d, s%d, 10" % (sT1, sWAVE)); A("s_add_u32 s%d, s%d, s%d" % (sT0, sT0, sT1)); A("s_add_u32 s%d, s%d, 0x%x" % (sT0, sT0, WS_PR))
        A("s_mov_b32 exec_lo, 0x11111111"); A("s_mov_b32 exec_hi, 0x11111111")
        for u in range(3): A("buffer_store_dwordx4 %s, v%d, %s, s%d offen offset:%d sc1" % (vr(vP + 4 * (5 + u), 4), vT, srd("WS"), sT0, 256 * u))
        A("s_mov_b64 exec, 0x1111")
        A("buffer_store_dword v%d, v0, %s, s%d offen offset:768 sc1" % (vM, srd("WS"), sT0))
        A("s_mov_b64 exec, -1")
        A("s_mov_b32 s%d, 0" % sPLAN)
    for j in range(11 if steal else 8):
        if j == 7:
            factor(vF, vMO)
            stamp(6)
        if j < NOWN: wait_block(8 + j)
        else: wait_pos(j, "L_vout%d" % j)
        if j == 7: stamp(7)
        if j >= 8:
            if j == 8:
                A("v_lshrrev_b32 v%d, 2, v0" % (vT + 4)); A("v_lshlrev_b32 v%d, 4, v%d" % (vT + 4, vT + 4))
                A("s_lshl_b32 s%d, s%d, 10" % (sT1, sWAVE)); A("s_add_u32 s%d, s%d, %d" % (sT1, sT1, HI + L_PP)); A("v_add_u32 v%d, s%d, v%d" % (vT + 4, sT1, vT + 4))
                A("v_lshl_add_u32 v%d, v%d, 2, s%d" % (vT + 5, vG4, sT1))
                for u in range(3): A("ds_read_b128 %s, v%d offset:%d" % (vr(vP + 4 * u, 4), vT + 4, 256 * (2 - u)))
                A("ds_read_b32 v%d, v%d offset:768" % (vF2, vT + 5)); A("s_waitcnt lgkmcnt(0)")
                factor(vF2, vF2)
        read_v(j)
        if j % 4 == 1:
            for d in range(8): A("v_add_u32 v%d, 0x10000, v%d" % (vVA + d, vVA + d))
        if j % 4 == 3 and (steal or j < 7):
            for d in range(8): A("v_subrev_u32 v%d, 0x10000, v%d" % (vVA + d, vVA + d))
        for d in range(8):
            A("s_waitcnt lgkmcnt(%d)" % (14 - 2 * d))
            if d == 7 and j < (7 if steal else 4):
                A("s_mov_b64 exec, 1"); A("ds_add_u32 v30, v%d offset:%d" % (vONE, F_FREED)); A("s_mov_b64 exec, -1")
            if j < 8: pv(j, d)
            else:
                acc = vr(vS2 + 4 * d, 4)
                A("v_mfma_f32_16x16x32_bf16 %s, %s, %s, %s" % (acc, vr(vP + 4 * (j - 8), 4), vr(vVB + 32 * (j & 1) + 4 * d, 4), "0" if j == 8 else acc))
    if steal:
        A("L_vout9:"); A("L_vout10:")
        A("s_nop 7")
        for d in range(8): A("v_mul_f32 v%d, v%d, v%d" % (vTMP + d, vF, vS + 4 * d))
        for d in range(8): A("v_fmac_f32 v%d, v%d, v%d" % (vTMP + d, vF2, vS2 + 4 * d))
        A("s_branch L_vsum")
        A("L_vout5:"); A("L_vout6:")
        factor(vF, vMO)
        A("L_vout7:"); A("L_vout8:")
        A("s_nop 7")
    for d in range(8): A("v_mul_f32 v%d, v%d, v%d" % (vTMP + d, vF, vS + 4 * d))
    if steal: A("L_vsum:")
    for d in range(0, 8, 2): A("ds_write2_b32 v%d, v%d, v%d offset0:%d offset1:%d" % (vOWA, vTMP + d, vTMP + d + 1, 16 * d, 16 * d + 16))
    vWOA, vOIR, vWO = 17, 18, vK
    A("v_lshlrev_b32 v%d, 7, v%d" % (vWOA, vC4)); A("v_lshl_add_u32 v%d, v%d, 10, v%d" % (vWOA, vG4, vWOA)); A("v_lshl_add_u32 v%d, v%d, 3, v%d" % (vWOA, vR4, vWOA))
    A("s_lshl_b32 s%d, s%d, 5" % (sT0, sWAVE)); A("s_add_u32 s%d, s%d, %d" % (sT0, sT0, HI + L_WO)); A("v_add_u32 v%d, s%d, v%d" % (vWOA, sT0, vWOA))
    A("s_waitcnt lgkmcnt(0)")
    A("s_barrier")
    stamp(8)
    def wo_reads():
        if wolate: lds_wait(F_WO, 1, sl=0)
        for m in range(4):
            A("ds_read_b64_tr_b16 %s, v%d offset:%d" % (vr(vWO + 4 * m, 2), vWOA, m * 4096))
            A("ds_read_b64_tr_b16 %s, v%d offset:%d" % (vr(vWO + 4 * m + 2, 2), vWOA, m * 4096 + 512))
    def oir_addr():
        A("v_lshrrev_b32 v%d, 1, v%d" % (vT, vN16)); A("v_lshlrev_b32 v%d, 10, v%d" % (vT, vT)); A("v_and_b32 v%d, 1, v0" % (vT + 1)); A("v_lshl_add_u32 v%d, v%d, 8, v%d" % (vT, vT + 1, vT))
        for m in range(4):
            A("v_add_u32 v%d, %d, v%d" % (vT + 1, 4 * m, vG4)); A("v_xor_b32 v%d, v%d, v%d" % (vT + 1, vT + 1, vN16))
            A("v_lshl_add_u32 v%d, v%d, 4, v%d" % (vOIR + m, vT + 1, vT))
        A("v_lshrrev_b32 v%d, 1, v%d" % (22, vN16)); A("v_lshlrev_b32 v22, %d, v22" % (16 + spad)); A("v_lshl_add_u32 v22, v%d, 4, v22" % vG4)
    A("s_cmp_gt_u32 s%d, 1" % sWAVE); A("s_cbranch_scc1 L_gather23")
    A("s_lshl_b32 s%d, s%d, 10" % (sT0, sWAVE)); A("s_add_u32 s%d, s%d, %d" % (sT0, sT0, HI + L_OW)); A("v_add_u32 v%d, s%d, v%d" % (vT, sT0, vL16))
    for w in range(4): A("ds_read_b128 %s, v%d offset:%d" % (vr(vS + 4 * w, 4), vT, w * 2048))
    A("v_lshrrev_b32 v%d, 5, v0" % (vT + 1)); A("v_lshlrev_b32 v%d, 13, v%d" % (vT + 1, vT + 1)); A("v_and_b32 v%d, 31, v0" % (vT + 2)); A("v_lshl_add_u32 v%d, v%d, 3, v%d" % (vT + 1, vT + 2, vT + 1))
    A("s_lshl_b32 s%d, s%d, 14" % (sT0, sWAVE)); A("s_add_u32 s%d, s%d, s%d" % (sT0, sT0, sOPOFF))
    A("s_waitcnt lgkmcnt(2)")
    for i in range(4): A("v_add_f32 v%d, v%d, v%d" % (vS + i, vS + i, vS + 4 + i))
    A("s_waitcnt lgkmcnt(0)")
    for i in range(4): A("v_add_f32 v%d, v%d, v%d" % (vS + 8 + i, vS + 8 + i, vS + 12 + i))
    for i in range(4): A("v_add_f32 v%d, v%d, v%d" % (vS + i, vS + i, vS + 8 + i))
    A("v_cvt_pk_bf16_f32 v%d, v%d, v%d" % (vTMP, vS, vS + 1)); A("v_cvt_pk_bf16_f32 v%d, v%d, v%d" % (vTMP + 1, vS + 2, vS + 3))
    A("buffer_store_dwordx2 %s, v%d, %s, s%d offen %s" % (vr(vTMP, 2), vT + 1, srd("WS"), sT0, ts))
    stamp(11)
    wo_reads(); oir_addr()
    A("s_branch L_barE_c")
    def gather(idx_sgpr, extra):
        vGa = 40
        A("s_lshr_b32 s%d, s%d, 3" % (sT1, sR)); A("s_lshl_b32 s%d, s%d, 13" % (sT1, sT1)); A("s_lshl_b32 s%d, s%d, 11" % (sT0, idx_sgpr))
        A("s_add_u32 s%d, s%d, s%d" % (sT1, sT1, sT0)); A("s_add_u32 s%d, s%d, 0x%x" % (sT1, sT1, WS_OP))
        lds_ = [(lambda: A("buffer_load_dwordx4 %s, v%d, %s, s%d offen %s" % (vr(vGa, 4), vL16, srd("WS"), sT1, tl)), list(range(vGa, vGa + 4))),
                (lambda: A("buffer_load_dwordx4 %s, v%d, %s, s%d offen offset:1024 %s" % (vr(vGa + 4, 4), vL16, srd("WS"), sT1, tl)), list(range(vGa + 4, vGa + 8)))]
        if td1: A("s_sleep %d" % td1)
        if at1:
            A("v_lshlrev_b32 v%d, 3, v0" % (vT + 7))
            apoll(vGa, vT + 7, sT1, 0, 0, first="only")
            extra()
            A("v_lshrrev_b32 v%d, 5, v0" % (vT + 2)); A("s_lshl_b32 s%d, s%d, 2" % (sT2, idx_sgpr)); A("v_add_u32 v%d, s%d, v%d" % (vT + 3, sT2, vT + 2))
            A("v_bfe_u32 v%d, v0, 1, 4" % (vT + 4)); A("v_xor_b32 v%d, v%d, v%d" % (vT + 3, vT + 3, vT + 4))
            A("v_lshlrev_b32 v%d, 8, v%d" % (vT + 2, vT + 2)); A("v_add_u32 v%d, s%d, v%d" % (vT + 2, sT0, vT + 2))
            A("v_and_b32 v%d, 1, v0" % (vT + 4)); A("v_lshl_add_u32 v%d, v%d, 3, v%d" % (vT + 2, vT + 4, vT + 2))
            A("v_lshl_add_u32 v%d, v%d, 4, v%d" % (vT + 5, vT + 3, vT + 2)); A("v_xor_b32 v%d, 32, v%d" % (vT + 6, vT + 5))
            apoll(vGa, vT + 7, sT1, 24, tsleep, first=False)
            stamp(11)
            for k in range(4): A("ds_write_b64 v%d, %s offset:%d" % (vT + 5 + (k >> 1), vr(vGa + 2 * k, 2), 512 * k))
            return
        for i_, _ in lds_: i_()
        A("v_and_b32 v%d, 1, v%d" % (vT + 2, vG4)); A("s_lshl_b32 s%d, s%d, 2" % (sT2, idx_sgpr)); A("v_add_u32 v%d, s%d, v%d" % (vT + 2, sT2, vT + 2))
        A("v_xor_b32 v%d, v%d, v%d" % (vT + 3, vT + 2, vN16)); A("v_xor_b32 v%d, 2, v%d" % (vT + 4, vT + 3))
        A("v_lshlrev_b32 v%d, 8, v%d" % (vT + 2, vG4)); A("v_add_u32 v%d, s%d, v%d" % (vT + 2, sT0, vT + 2))
        A("v_lshl_add_u32 v%d, v%d, 4, v%d" % (vT + 5, vT + 3, vT + 2)); A("v_lshl_add_u32 v%d, v%d, 4, v%d" % (vT + 6, vT + 4, vT + 2))
        extra()
        gpoll(lds_, first=False, sleep=tsleep, P=P1)
        stamp(11)
        A("ds_write_b128 v%d, %s" % (vT + 5, vr(vGa, 4))); A("ds_write_b128 v%d, %s offset:1024" % (vT + 6, vr(vGa + 4, 4)))
    A("L_gather23:")
    A("s_sub_u32 s%d, s%d, 2" % (sMU, sWAVE))
    gather(sMU, lambda: (wo_reads(), oir_addr()))
    A("L_barE_c:")
    A("s_waitcnt lgkmcnt(0)")
    A("s_barrier")
    stamp(9)
    for u in range(2):
        for m in range(4): A("ds_read_b128 %s, v%d offset:%d" % (vr(vS + 16 * u + 4 * m, 4), vOIR + m, u * 512))
    A("s_lshl_b32 s%d, s%d, %d" % (sT0, sWAVE, 11 + spad)); A("s_add_u32 s%d, s%d, s%d" % (sT0, sT0, sSPOFF))
    for u in range(2):
        for m in range(4):
            A("s_waitcnt lgkmcnt(%d)" % (7 - 4 * u - m))
            acc = vr(vTMP + 4 * u, 4)
            A("v_mfma_f32_16x16x32_bf16 %s, %s, %s, %s" % (acc, vr(vWO + 4 * m, 4), vr(vS + 16 * u + 4 * m, 4), "0" if m == 0 else acc))
    for i in range(4): A("v_add_f32 v%d, v%d, v%d" % (vTMP + i, vTMP + i, vTMP + 4 + i))
    for i in range(4): dpp("v_add_f32", vTMP + i, "quad_perm:[1,0,3,2]")
    A("s_mov_b32 exec_lo, 0x55555555"); A("s_mov_b32 exec_hi, 0x55555555")
    stamp(10)
    A("buffer_store_dwordx4 %s, v22, %s, s%d offen %s" % (vr(vTMP, 4), srd("WS"), sT0, ts))
    A("s_mov_b64 exec, -1")
    A("s_branch L_done")

    A("L_loader:")
    if ldprio: A("s_setprio %d" % ldprio)
    vO = 17
    A("v_lshlrev_b32 v%d, 8, v%d" % (vT, vG4))
    for i in range(4):
        A("v_add_u32 v%d, %d, v%d" % (vT + 1, 4 * i, vG4)); A("v_xor_b32 v%d, v%d, v%d" % (vT + 1, vT + 1, vN16)); A("v_lshl_add_u32 v%d, v%d, 4, v%d" % (vO + i, vT + 1, vT))
    for i in range(2):
        A("v_add_u32 v%d, %d, v%d" % (vT + 1, 4 * i, vG4)); A("v_lshlrev_b32 v%d, 1, v%d" % (vT + 1, vT + 1))
        A("v_xor_b32 v%d, v%d, v%d" % (vT + 1, vT + 1, vN16)); A("v_lshl_add_u32 v%d, v%d, 4, v%d" % (vO + 4 + i, vT + 1, vT))
    sG, sSLOT, sFR, sN = 12, 13, 88, 92
    A("s_bfe_u32 s%d, s%d, 0x30002" % (sBASE, sR)); A("s_lshl_b32 s%d, s%d, 23" % (sBASE, sBASE)); A("s_lshr_b32 s%d, s%d, 5" % (sT0, sR)); A("s_lshl_b32 s%d, s%d, 20" % (sT0, sT0))
    A("s_add_u32 s%d, s%d, s%d" % (sBASE, sBASE, sT0)); A("s_and_b32 s%d, s%d, 3" % (sT0, sR)); A("s_lshl_b32 s%d, s%d, 18" % (sT0, sT0)); A("s_add_u32 s%d, s%d, s%d" % (sBASE, sBASE, sT0))
    if rot:
        A("s_mov_b32 s94, s%d" % sBASE)
        A("s_mul_i32 s%d, s%d, %d" % (sT0, sR, rot)); A("s_lshr_b32 s%d, s%d, 5" % (sT1, sR)); A("s_add_u32 s%d, s%d, s%d" % (sT0, sT0, sT1))
        A("s_and_b32 s%d, s%d, 31" % (sT0, sT0)); A("s_lshl_b32 s%d, s%d, 13" % (sT0, sT0)); A("s_add_u32 s%d, s%d, s%d" % (sBASE, sBASE, sT0))
    if Fhi:
        A("s_and_b32 s%d, s2, 7" % sT0); A("s_lshr_b32 s%d, %d, s%d" % (sT0, himask, sT0)); A("s_and_b32 s%d, s%d, 1" % (sT0, sT0)); A("s_cselect_b32 s95, %d, %d" % (Fhi, F))
    A("s_mov_b32 s94, 0"); A("s_mov_b32 s93, 0"); A("s_mov_b32 s%d, s%d" % (sOFF, sBASE)); A("s_mov_b32 s%d, 0" % sG); A("s_mov_b32 s%d, 0" % sSLOT); A("s_mov_b32 s%d, 0" % sN)
    A("s_waitcnt lgkmcnt(0)")
    def publish_full(sgpr):
        A("v_mov_b32 v%d, s%d" % (vT, sgpr)); A("s_mov_b64 exec, 1"); A("ds_max_u32 v%d, v%d offset:%d" % (vHI, vT, F_FULL)); A("s_mov_b64 exec, -1")
    def dma_block(isk):
        Dm = D if isk else DV
        for half in range(2):
            A("s_mov_b32 m0, s%d" % sSLOT)
            if Dm: A("s_waitcnt vmcnt(%d)" % Dm)
            for i in range(4):
                A("buffer_load_dwordx4 v%d, %s, s%d offen offset:%d %s lds" % (vO + i if isk else vO + 4 + (i & 1), srd("K" if isk else "V"), sOFF, i * 1024, pol))
            A("s_add_u32 s%d, s%d, 4096" % (sOFF, sOFF)); A("s_add_u32 s%d, s%d, 4096" % (sSLOT, sSLOT))
            if Dm and (4 * half - Dm) % 8 < 4:
                A("s_add_i32 s%d, s%d, %d" % (sT0, sN, (4 * half - Dm) // 8)); A("s_max_i32 s%d, s%d, 0" % (sT0, sT0)); publish_full(sT0)
        if rot:
            A("s_and_b32 s%d, s%d, 0x3ffff" % (sOFF, sOFF)); A("s_or_b32 s%d, s%d, s94" % (sOFF, sOFF))
        A("s_and_b32 s%d, s%d, 0x1ffff" % (sSLOT, sSLOT)); A("s_add_u32 s%d, s%d, 1" % (sN, sN))
    if ldst == 2: stamp(1)
    for _ in range(pre): dma_block(True)
    A("s_barrier")
    if ldst == 2: stamp(2)
    for _ in range(4 - pre): dma_block(True)
    A("s_mov_b32 s%d, 1" % sG)
    if ldst == 2: stamp(3)
    def read_freed():
        A("ds_read_b128 %s, v%d offset:%d" % (vr(vT + 4, 4), vHI, F_FREED)); A("s_waitcnt lgkmcnt(0)")
        for c in range(4): A("v_readfirstlane_b32 s%d, v%d" % (sFR + c, vT + 4 + c))
    for isk, last in ((True, 8), (False, 19 if steal else 16)):
        loop = "L_ld_k" if isk else "L_ld_v"
        if not isk: A("s_mov_b32 s%d, s%d" % (sOFF, sBASE))
        A(loop + ":")
        for g_, reg in ((p_a, 16), (p_b, 18)):
            if g_ > 0 and g_ < 16 and (g_ < 8) == isk:
                sk = A.label("st"); A("s_cmp_lg_u32 s%d, %d" % (sG, g_)); A("s_cbranch_scc1 " + sk); A("s_memrealtime s[%d:%d]" % (reg, reg + 1)); A(sk + ":")
        if ldst == 1:
            for k, g in enumerate((2, 3, 4, 5, 6, 7) if isk else (8, 10, 12, 14)):
                sk = A.label("st"); A("s_cmp_lg_u32 s%d, %d" % (sG, g)); A("s_cbranch_scc1 " + sk); stamp(k + 1 if isk else k + 7); A(sk + ":")
        if steal and not isk:
            go = A.label("pgo"); again = A.label("pagain")
            A("s_cmp_lt_u32 s%d, %d" % (sG, 8 + NOWN)); A("s_cbranch_scc1 " + go)
            A("s_mov_b32 s%d, 0" % sSPIN); A("s_sub_u32 s%d, s%d, 8" % (sT1, sG))
            if ldst: A("s_memrealtime s[14:15]")
            A(again + ":")
            A("ds_read_b32 v%d, v%d offset:%d" % (vPOLL, vHI, F_PLAN)); A("s_waitcnt lgkmcnt(0)"); A("v_readfirstlane_b32 s%d, v%d" % (sT0, vPOLL))
            A("s_and_b32 s%d, s%d, 0xff" % (sT2, sT0)); A("s_cmp_gt_u32 s%d, s%d" % (sT2, sT1)); A("s_cbranch_scc1 L_granted")
            A("s_cmp_ge_u32 s%d, 0x100" % sT0); A("s_cbranch_scc1 L_ld_end")
            for k in range(F - 1, -1, -1):
                A("s_cmp_eq_u32 s%d, %d" % (sSPIN, F - 1 - k)); nx = A.label("nx"); A("s_cbranch_scc0 " + nx)
                A("s_sub_u32 s%d, s%d, %d" % (sT0, sN, k)); A("s_waitcnt vmcnt(%d)" % (8 * k)); publish_full(sT0); A(nx + ":")
            if ldst: A("s_add_u32 s93, s93, 1")
            A("s_add_u32 s%d, s%d, 1" % (sSPIN, sSPIN)); A("s_cmp_lt_u32 s%d, %d" % (sSPIN, lspin)); A("s_cbranch_scc1 " + again)
            A("s_branch L_ld_end")
            A("L_granted:")
            if ldst:
                A("s_memrealtime s[36:37]"); A("s_waitcnt lgkmcnt(0)"); A("s_sub_u32 s36, s36, s14"); A("s_add_u32 s94, s94, s36")
            A("s_cmp_lt_u32 s%d, 16" % sG); A("s_cbranch_scc1 " + go)
            A("s_sub_u32 s%d, 23, s%d" % (sT0, sG)); A("s_lshl_b32 s%d, s%d, 15" % (sT0, sT0)); A("s_xor_b32 s%d, s%d, 0x80000" % (sOFF, sBASE)); A("s_add_u32 s%d, s%d, s%d" % (sOFF, sOFF, sT0))
            A(go + ":")
        read_freed()
        A("s_sub_i32 s%d, s%d, 2" % (sT1, sG))
        if Fhi and hiend < 16:
            A("s_cmp_ge_u32 s%d, %d" % (sG, hiend)); A("s_cselect_b32 s95, %d, s95" % F)
        for c in range(4):
            go = A.label("go"); sl = A.label("slow")
            A("s_cmp_ge_i32 s%d, s%d" % (sFR + c, sT1)); A("s_cbranch_scc1 " + go)
            A("s_waitcnt vmcnt(0)"); publish_full(sN)
            if ldst: A("s_add_u32 s93, s93, 100")
            A("s_mov_b32 s%d, 0" % sSPIN)
            A(sl + ":")
            read_freed()
            A("s_cmp_ge_i32 s%d, s%d" % (sFR + c, sT1)); A("s_cbranch_scc1 " + go)
            A("s_add_u32 s%d, s%d, 1" % (sSPIN, sSPIN)); A("s_cmp_lt_u32 s%d, %d" % (sSPIN, lspin)); A("s_cbranch_scc1 " + sl)
            A(go + ":")
            dma_block(isk)
            if D: pass
            elif bal == 1:
                hi = A.label("hi")
                A("ds_read_b32 v%d, v%d offset:%d" % (vPOLL, vHI, F_MODE))
                A("s_sub_i32 s%d, s%d, %d" % (sT0, sN, F))
                A("s_waitcnt vmcnt(%d) lgkmcnt(0)" % (8 * F)); A("v_readfirstlane_b32 s%d, v%d" % (sT2, vPOLL))
                A("s_cmp_eq_u32 s%d, 0" % sT2); A("s_cbranch_scc1 " + hi)
                publish_full(sT0)
                if ldst: A("s_add_u32 s94, s94, 100")
                A("s_sub_i32 s%d, s%d, %d" % (sT0, sN, (Flo + 7) // 8 if Flo > 7 else Flo))
                A("s_waitcnt vmcnt(%d)" % (Flo if Flo > 7 else 8 * Flo)); A(hi + ":"); publish_full(sT0)
            elif Fhi:
                hi = A.label("hi")
                A("s_sub_i32 s%d, s%d, s95" % (sT0, sN)); A("s_max_i32 s%d, s%d, 0" % (sT0, sT0))
                A("s_waitcnt vmcnt(%d)" % (8 * Fhi)); A("s_cmp_eq_u32 s95, %d" % Fhi); A("s_cbranch_scc1 " + hi)
                A("s_waitcnt vmcnt(%d)" % (8 * F)); A(hi + ":"); publish_full(sT0)
            else:
                A("s_sub_i32 s%d, s%d, %d" % (sT0, sN, F))
                if F > 5: A("s_max_i32 s%d, s%d, 0" % (sT0, sT0))
                A("s_waitcnt vmcnt(%d)" % (8 * F)); publish_full(sT0)
        if stamps:
            pass
        A("s_add_u32 s%d, s%d, 1" % (sG, sG)); A("s_cmp_lt_u32 s%d, %d" % (sG, last)); A("s_cbranch_scc1 " + loop)
        if not ldst: stamp(1 if isk else 2)
    def wo_dma():
        A("v_lshrrev_b32 v%d, 3, v0" % (vT + 4)); A("v_lshlrev_b32 v%d, 10, v%d" % (vT + 4, vT + 4)); A("v_and_b32 v%d, 7, v0" % (vT + 5)); A("v_lshl_add_u32 v%d, v%d, 4, v%d" % (vT + 4, vT + 5, vT + 4))
        A("s_lshr_b32 s%d, s%d, 3" % (sT0, sR)); A("s_lshl_b32 s%d, s%d, 17" % (sT0, sT0)); A("s_and_b32 s%d, s%d, 7" % (sT1, sR)); A("s_lshl_b32 s%d, s%d, 7" % (sT1, sT1))
        A("s_add_u32 s%d, s%d, s%d" % (sT0, sT0, sT1))
        for a in range(16):
            A("s_mov_b32 m0, %d" % (HI + L_WO + a * 1024))
            A("buffer_load_dwordx4 v%d, %s, s%d offen %s lds" % (vT + 4, srd("WO"), sT0, polo))
            if a < 15: A("s_add_u32 s%d, s%d, 0x2000" % (sT0, sT0))
    if steal:
        A("L_ld_end:")
        A("s_mov_b64 exec, 1"); A("ds_write_b32 v%d, v%d offset:%d" % (vHI, vONE, F_LI)); A("s_mov_b64 exec, -1")
    if wolate == 1: wo_dma()
    for k in range((DV + 4 + 7) // 8 - 1 if D else max(F, Fhi) - 1, -1, -1):
        A("s_sub_u32 s%d, s%d, %d" % (sT0, sN, k)); A("s_waitcnt vmcnt(%d)" % (8 * k + (16 if wolate == 1 else 0))); publish_full(sT0)
    if wolate == 1:
        if ldst: stamp(11)
        A("s_waitcnt vmcnt(0)"); A("s_mov_b64 exec, 1"); A("ds_write_b32 v%d, v%d offset:%d" % (vHI, vONE, F_WO)); A("s_mov_b64 exec, -1")
    if ldst:
        if wolate == 1: stamp(12)
        else:
            stamp(11)
            A("s_waitcnt lgkmcnt(0)"); A("s_mul_i32 s%d, s%d, 25" % (sT0, sN)); A("s_add_u32 s40, s16, s%d" % sT0); A("s_addc_u32 s41, s17, 0")
            if steal: A("s_add_u32 s36, s16, s94"); A("s_addc_u32 s37, s17, 0")
            if bal: A("s_add_u32 s40, s16, s94"); A("s_addc_u32 s41, s17, 0")
    else: stamp(3)
    if p_b >= 0:
        if p_b == 16: A("s_memrealtime s[18:19]")
        A("s_waitcnt lgkmcnt(0)"); A("s_sub_u32 s18, s18, s16"); A("v_mov_b32 v8, s18"); A("s_mov_b64 exec, 1"); A("buffer_atomic_add v8, off, %s, 0 offset:4" % srd("DBG")); A("s_mov_b64 exec, -1")
    if pspan:
        A("s_memrealtime s[18:19]"); A("s_waitcnt lgkmcnt(0)")
        if pspan in (3, 4): A("s_mov_b32 s18, s16")
        if pm: A("s_and_b32 s6, s2, %d" % pm); A("s_cmp_eq_u32 s6, %d" % pval); A("s_cselect_b32 s18, s18, s16")
        A("s_not_b32 s16, s16"); A("v_mov_b32 v8, s18"); A("v_mov_b32 v9, s16"); A("s_mov_b64 exec, 1")
        A("buffer_atomic_%s v8, off, %s, 0 offset:4" % ("add" if pspan in (4, 5) else "umax", srd("DBG"))); A("buffer_atomic_umax v9, off, %s, 0 offset:8" % srd("DBG")); A("s_mov_b64 exec, -1")
    if pgrp:
        A("s_memrealtime s[18:19]")
        if pgrp == 1: A("s_and_b32 s6, s2, 7")
        elif pgrp == 2: A("s_bfe_u32 s6, s%d, 0x30002" % sR)
        elif pgrp == 3: A("s_lshr_b32 s6, s%d, 5" % sR)
        else: A("s_and_b32 s6, s%d, 3" % sR); A("s_lshr_b32 s7, s2, 7"); A("s_lshl_b32 s7, s7, 2"); A("s_add_u32 s6, s6, s7")
        A("s_lshl_b32 s6, s6, 5")
        A("s_waitcnt lgkmcnt(0)"); A("v_mov_b32 v8, s18"); A("s_mov_b64 exec, 1"); A("buffer_atomic_umax v8, off, %s, s6 offset:4" % srd("DBG")); A("s_mov_b64 exec, -1")
    if probe:
        A("s_memrealtime s[20:21]"); A("s_waitcnt lgkmcnt(0)")
        if pstart: A("s_mov_b32 s20, s16")
        A("s_and_b32 s6, s2, 7"); A("s_lshr_b32 s6, %d, s6" % probe); A("s_and_b32 s6, s6, 1"); A("s_lshl_b32 s6, s6, 2"); A("s_add_u32 s6, s6, 4")
        A("s_waitcnt lgkmcnt(0)"); A("v_mov_b32 v8, s20"); A("s_mov_b64 exec, 1"); A("buffer_atomic_add v8, off, %s, s6" % srd("DBG")); A("s_mov_b64 exec, -1")
    A("s_waitcnt lgkmcnt(0)")
    A("s_branch L_done")

    def slot_addrs():
        A("v_lshlrev_b32 v28, 5, v0")
        A("s_and_b32 s%d, s%d, 3" % (sT0, sR)); A("s_lshl_b32 s%d, s%d, 3" % (sT0, sT0)); A("s_add_u32 s%d, s%d, s%d" % (sMU, sT0, sSTOFF))
    A("L_comm:")
    vZ = 20
    for i in range(4): A("v_mov_b32 v%d, 0" % (vZ + i))
    A("v_lshl_add_u32 v%d, v0, 2, v%d" % (vT, vHI))
    A("s_mov_b64 exec, 0xffff"); A("ds_write_b32 v%d, v%d offset:%d" % (vT, vZ, L_FLG)); A("s_mov_b64 exec, -1")
    slot_addrs()
    sEP = 4
    def epoch():
        A("s_waitcnt vmcnt(0)")
        A("v_readfirstlane_b32 s%d, v30" % sEP); A("v_readfirstlane_b32 s%d, v31" % (sEP + 1))
        A("s_add_u32 s%d, s%d, 0x%x" % (sEP, sEP, EP_STEP & 0xffffffff)); A("s_addc_u32 s%d, s%d, 0x%x" % (sEP + 1, sEP + 1, EP_STEP >> 32))
    A("s_waitcnt lgkmcnt(0)")
    A("buffer_load_dwordx2 v[30:31], off, %s, 0 offset:%d sc1" % (srd("WS"), WS_EP))
    A("s_barrier")
    A("v_add_u32 v%d, v%d, v%d" % (vT, vHI, vL16))
    A("v_and_b32 v29, 7, v0"); A("v_lshlrev_b32 v29, 14, v29"); A("v_lshl_add_u32 v29, v%d, 4, v29" % vG4)
    A("s_lshl_b32 s%d, s%d, 6" % (sT2, sRQ)); A("s_add_u32 s%d, s%d, 0x%x" % (sT2, sT2, WS_Q))
    A("s_bfe_u32 s%d, s%d, 0x30002" % (sT0, sR)); A("s_lshl_b32 s%d, s%d, 14" % (sT0, sT0)); A("s_lshr_b32 s%d, s%d, 5" % (sT1, sR)); A("s_lshl_b32 s%d, s%d, 11" % (sT1, sT1))
    A("s_add_u32 s%d, s%d, s%d" % (sT0, sT0, sT1)); A("s_add_u32 s%d, s%d, 0x%x" % (sT0, sT0, WS_Q))
    A("v_lshl_add_u32 v27, v0, 3, v%d" % vHI)
    epoch()
    A("v_mov_b32 v38, s%d" % sEP); A("v_mov_b32 v39, s%d" % (sEP + 1))
    stamp(1)
    lds_wait(F_QP, 4)
    for w in range(4): A("ds_read_b128 %s, v%d offset:%d" % (vr(40 + 4 * w, 4), vT, L_QP + w * 1024))
    A("s_waitcnt lgkmcnt(0)")
    for i in range(4): A("v_add_f32 v%d, v%d, v%d" % (40 + i, 40 + i, 44 + i)); A("v_add_f32 v%d, v%d, v%d" % (48 + i, 48 + i, 52 + i))
    for i in range(4): A("v_add_f32 v%d, v%d, v%d" % (40 + i, 40 + i, 48 + i))
    A("v_cvt_pk_bf16_f32 v36, v40, v41"); A("v_cvt_pk_bf16_f32 v37, v42, v43")
    A("s_mov_b32 exec_lo, 0x00ff00ff"); A("s_mov_b32 exec_hi, 0x00ff00ff")
    A("buffer_store_dwordx4 v[36:39], v29, %s, s%d offen sc1" % (srd("WS"), sT2))
    A("s_mov_b64 exec, -1")
    stamp(2)
    if qdelay: A("s_sleep %d" % qdelay)
    if qtrig: lds_wait(F_FULL, qtrig, sl=4)
    gpoll([(lambda: A("buffer_load_dwordx4 v[32:35], v%d, %s, s%d offen sc1" % (vL16, srd("WS"), sT0)), [32, 33, 34, 35]),
           (lambda: A("buffer_load_dwordx4 v[40:43], v%d, %s, s%d offen offset:1024 sc1" % (vL16, srd("WS"), sT0)), [40, 41, 42, 43])], sleep=qsleep, tag="s[%d:%d]" % (sEP, sEP + 1))
    A("ds_write_b64 v27, v[32:33] offset:%d" % L_QB); A("ds_write_b64 v27, v[40:41] offset:%d" % (L_QB + 512))
    lds_add(vHI, F_QR)
    stamp(4)
    def all_marked():
        A("v_lshlrev_b32 v%d, 5, v0" % (vT + 3))
        word_poll("buffer_load_dword v32, v%d, %s, 0 offen sc1" % (vT + 3, srd("DBG")), 32, "0xff", "v_cmp_gt_u32 vcc, 32, v%d", fsleep)
        stamp(3)
    all_marked()
    lds_add(vHI, F_AM)
    A("v_lshlrev_b32 v%d, 3, v%d" % (vT + 1, vN16)); A("v_add_u32 v%d, v%d, v%d" % (vT + 2, vHI, vT + 1))
    lds_wait(F_ST, 4)
    A("ds_read_b64 v[32:33], v%d offset:%d" % (vT + 2, L_ST)); A("s_waitcnt lgkmcnt(0)")
    def combine(modes):
        A("v_mov_b32 v34, v32")
        for m in modes: dpp("v_max_f32", 34, m)
        A("v_sub_f32 v32, v32, v34"); A("v_exp_f32 v32, v32"); A("v_mul_f32 v35, v32, v33")
        for m in modes: dpp("v_add_f32", 35, m)
    combine(("row_ror:4", "row_ror:8"))
    A("s_mov_b64 exec, 0xf"); A("buffer_store_dwordx2 v[34:35], v28, %s, s%d offen sc1" % (srd("WS"), sMU)); A("s_mov_b64 exec, -1")
    stamp(5)
    if sdelay: A("s_sleep %d" % sdelay)
    if strig:
        lds_wait(F_FULL, strig, sl=8)
    gpoll([(lambda: A("buffer_load_dwordx2 v[32:33], v%d, %s, s%d offen sc1" % (vT + 1, srd("WS"), sSTOFF)), [32, 33])], sleep=ssleep)
    combine(("quad_perm:[1,0,3,2]", "quad_perm:[2,3,0,1]"))
    A("v_rcp_f32 v35, v35"); A("v_lshl_add_u32 v%d, v%d, 3, v%d" % (vT + 2, vC4, vHI))
    A("s_mov_b64 exec, 0x1111"); A("ds_write_b64 v%d, v[34:35] offset:%d" % (vT + 2, L_GS)); A("s_mov_b64 exec, -1")
    lds_add(vHI, F_GR)
    stamp(6)
    A("s_mov_b32 s%d, 2" % sMU)
    A("L_gather56:")
    A("s_waitcnt lgkmcnt(0)")
    A("s_barrier")
    stamp(8)
    gather(sMU, lambda: None)
    A("s_waitcnt lgkmcnt(0)")
    A("s_barrier")
    stamp(9)
    A("s_branch L_done")

    A("L_mlp:")
    vW, vU = 32, 64
    def pg_addr(line, word):
        A("s_lshr_b32 s%d, s2, 3" % line); A("s_lshl_b32 s%d, s%d, 8" % (line, line)); A("s_add_u32 s%d, s%d, 0x%x" % (line, line, WS_PG))
        A("s_and_b32 s%d, s2, 7" % word); A("s_lshl_b32 s%d, s%d, 2" % (word, word)); A("s_add_u32 s%d, s%d, s%d" % (word, word, line))
    def clean():
        A("s_cmp_lg_u32 s%d, 7" % sWAVE); A("s_cbranch_scc1 L_noclean")
        for i in range(4): A("v_mov_b32 v%d, -1" % (60 + i))
        slot_addrs()
        A("v_lshlrev_b32 v%d, 13, v%d" % (59, vG4)); A("v_lshl_add_u32 v%d, v%d, 4, v%d" % (59, vN16, 59))
        A("s_lshl_b32 s%d, s%d, %d" % (sT1, sR, 11 + spad)); A("s_add_u32 s%d, s%d, 0x%x" % (sT1, sT1, WS_SP))
        A("v_lshrrev_b32 v29, 2, v0"); A("v_lshlrev_b32 v29, %d, v29" % (6 + spad)); A("v_lshl_add_u32 v29, v%d, 4, v29" % vR4)
        A("s_waitcnt lgkmcnt(0)")
        A("buffer_load_dwordx2 v[30:31], off, %s, 0 offset:%d sc1" % (srd("WS"), WS_EP))
        A("s_mov_b64 exec, 0xf"); A("buffer_store_dwordx2 v[60:61], v28, %s, s%d offen sc1" % (srd("WS"), sMU)); A("s_mov_b64 exec, -1")
        A("buffer_store_dwordx4 v[60:63], v%d, %s, s%d offen sc1" % (59, srd("WS"), sOPOFF))
        A("buffer_store_dwordx4 v[60:63], v29, %s, s%d offen sc1" % (srd("WS"), sT1))
        A("buffer_store_dwordx4 v[60:63], v29, %s, s%d offen offset:%d sc1" % (srd("WS"), sT1, 1024 << spad))
        if bal:
            pg_addr(sT1, sT3)
            A("s_mov_b64 exec, 1"); A("buffer_store_dword v60, off, %s, s%d sc1" % (srd("WS"), sT3)); A("s_mov_b64 exec, -1")
        if steal:
            A("s_lshl_b32 s%d, s%d, 12" % (sT1, sR)); A("s_add_u32 s%d, s%d, 0x%x" % (sT1, sT1, WS_PR))
            for k in range(4): A("buffer_store_dwordx4 v[60:63], v%d, %s, s%d offen offset:%d sc1" % (vL16, srd("WS"), sT1, 1024 * k))
            A("s_lshl_b32 s%d, s%d, 7" % (sT1, sR)); A("s_add_u32 s%d, s%d, 0x%x" % (sT1, sT1, WS_CW))
            A("s_mov_b64 exec, 1"); A("buffer_store_dword v60, off, %s, s%d sc1" % (srd("WS"), sT1)); A("s_mov_b64 exec, -1")
        A("L_noclean:")
    def arrive(cnt, lbl):
        A("s_cmp_lg_u32 s%d, 7" % sWAVE); A("s_cbranch_scc1 " + lbl)
        A("s_lshr_b32 s%d, s%d, 5" % (sT3, sR)); A("s_lshl_b32 s%d, s%d, 5" % (sT3, sT3))
        A("s_mov_b64 exec, 1")
        A("s_waitcnt vmcnt(%d)" % cnt)
        A("buffer_atomic_add v%d, off, %s, s%d" % (vONE, srd("DBG"), sT3))
        A("s_mov_b64 exec, -1")
        stamp(4)
        A(lbl + ":")
    if not cllate: clean()
    A("s_sub_u32 s%d, s%d, 6" % (sMB, sWAVE))
    A("v_mul_u32_u24 v%d, 12, v0" % vT); A("s_mul_i32 s%d, s%d, 1792" % (sT1, sMB))
    A("s_waitcnt lgkmcnt(0)")
    A("s_load_dword s%d, s[%d:%d], 0" % (sB2, sB2P, sB2P + 1))
    A("s_barrier")
    for k, n in enumerate(("W1", "B1", "W2")):
        A("buffer_load_dwordx4 %s, v%d, %s, s%d offen" % (vr(vW + 8 * k, 4), vL16, srd(n), sT1))
        A("buffer_load_dwordx3 %s, v%d, %s, s%d offen offset:1024" % (vr(vW + 8 * k + 4, 3), vT, srd(n), sT1))
    if not cllate: arrive(6, "L_noflag")
    A("s_lshr_b32 s%d, s%d, 5" % (sT0, sR)); A("s_mul_i32 s%d, s%d, %d" % (sT0, sT0, XN_STRIDE)); A("s_add_u32 s%d, s%d, %d" % (sT0, sT0, HI)); A("v_add_u32 v%d, s%d, v%d" % (vT + 1, sT0, vL16))
    A("s_lshl_b32 s%d, s%d, 13" % (sT2, sMB)); A("s_add_u32 s%d, s%d, %d" % (sT2, sT2, HI + L_WO)); A("v_add_u32 v%d, s%d, v%d" % (vT + 2, sT2, vL16))
    A("s_and_b32 s%d, s%d, 31" % (sT0, sR)); A("s_lshl_b32 s%d, s%d, 5" % (sT0, sT0)); A("s_add_u32 s%d, s%d, s%d" % (sT0, sT0, sT2))
    A("v_lshlrev_b32 v%d, 1, v%d" % (vT + 3, vN16)); A("v_add_u32 v%d, s%d, v%d" % (vT + 3, sT0, vT + 3))
    lds_wait(F_XN, 4)
    if cllate: clean()
    vXm = 112
    A("ds_read_b128 %s, v%d offset:%d" % (vr(vXm, 4), vT + 1, L_XN)); A("s_waitcnt lgkmcnt(0)")
    layernorm(vXm, 4, vXm + 4, vXm + 12, vXm + 20, 1)
    A("ds_write_b128 v%d, %s" % (vT + 2, vr(vXm, 4)))
    vH = 24
    A("ds_read_u16 v%d, v%d" % (vH, vT + 3))
    A("v_lshrrev_b32 v%d, 3, v0" % (vT + 4)); A("v_lshlrev_b32 v%d, 10, v%d" % (vT + 4, vT + 4)); A("v_and_b32 v%d, 7, v0" % (vT + 5)); A("v_lshl_add_u32 v%d, v%d, 4, v%d" % (vT + 4, vT + 5, vT + 4))
    A("s_lshr_b32 s%d, s%d, 3" % (sT0, sR)); A("s_lshl_b32 s%d, s%d, 17" % (sT0, sT0)); A("s_and_b32 s%d, s%d, 7" % (sT1, sR)); A("s_lshl_b32 s%d, s%d, 7" % (sT1, sT1))
    A("s_add_u32 s%d, s%d, s%d" % (sT0, sT0, sT1)); A("s_lshl_b32 s%d, s%d, 16" % (sT1, sMB)); A("s_add_u32 s%d, s%d, s%d" % (sT0, sT0, sT1))
    A("s_waitcnt vmcnt(0) lgkmcnt(0)")
    if cllate: arrive(0, "L_noflag")
    for a in range(8):
        A("s_add_u32 m0, s%d, %d" % (sT2, a * 1024))
        if 'o' not in abl and not wolate: A("buffer_load_dwordx4 v%d, %s, s%d offen %s lds" % (vT + 4, srd("WO"), sT0, polo))
        if a < 7: A("s_add_u32 s%d, s%d, 0x2000" % (sT0, sT0))
    stamp(1)
    A("v_lshlrev_b32 v%d, 16, v%d" % (vH, vH))
    for k in range(3):
        for i in range(7): unpack(vU + 14 * k + 2 * i, vU + 14 * k + 2 * i + 1, vW + 8 * k + i)
    vC0, vACC, U, T_ = 25, 26, 112, 128
    A("v_mov_b32 v%d, s%d" % (vC0, sC0))
    A("s_lshl_b32 s%d, s%d, 6" % (sT0, sMB)); A("s_add_u32 s%d, s%d, %d" % (sT0, sT0, HI + L_YP)); A("v_mov_b32 v27, s%d" % sT0)
    A("s_mov_b32 s%d, 0" % sT1)
    A("s_nop 3")
    A("L_mlp_loop:")
    A("v_readlane_b32 s%d, v%d, s%d" % (sMU, vH, sT1))
    for t in range(14): A("v_fma_f32 v%d, s%d, v%d, v%d" % (U + t, sMU, vU + t, vU + 14 + t))
    for t in range(14): A("v_mul_f32 v%d, v%d, v%d" % (T_ + t, U + t, U + t))
    for t in range(14): A("v_fma_f32 v%d, v%d, s%d, v%d" % (T_ + t, T_ + t, sC1, vC0))
    for t in range(14): A("v_mul_f32 v%d, v%d, v%d" % (T_ + t, T_ + t, U + t))
    for t in range(14):
        A("v_exp_f32 v%d, v%d" % (T_ + t, T_ + t)); A("v_mul_f32 v%d, v%d, v%d" % (U + t, U + t, vU + 28 + t))
    for t in range(14): A("v_add_f32 v%d, 1.0, v%d" % (T_ + t, T_ + t))
    for t in range(14): A("v_rcp_f32 v%d, v%d" % (T_ + t, T_ + t))
    A("v_mul_f32 v%d, v%d, v%d" % (vACC, U, T_)); A("v_mul_f32 v%d, v%d, v%d" % (U, U + 1, T_ + 1))
    for t in range(2, 14): A("v_fmac_f32 v%d, v%d, v%d" % (vACC if t & 1 else U, U + t, T_ + t))
    A("v_add_f32 v%d, v%d, v%d" % (vACC, vACC, U))
    red16(vACC, "v_add_f32"); dpp("v_add_f32", vACC, "row_bcast:15", "0xa"); dpp("v_add_f32", vACC, "row_bcast:31", "0xc")
    A("s_mov_b32 exec_lo, 0"); A("s_mov_b32 exec_hi, 0x80000000")
    A("ds_write_b32 v27, v%d" % vACC); A("v_add_u32 v27, 4, v27")
    A("s_mov_b64 exec, -1")
    A("s_add_u32 s%d, s%d, 1" % (sT1, sT1)); A("s_cmp_lt_u32 s%d, 16" % sT1); A("s_cbranch_scc1 L_mlp_loop")
    stamp(2)
    A("s_waitcnt vmcnt(0)")
    A("s_mov_b32 s%d, 3" % sMU)
    if steal:
        A("s_cmp_eq_u32 s%d, 7" % sWAVE); A("s_cbranch_scc1 L_final")
        lds_wait(F_AM, 1, sl=8)
        sCW = 4
        A("s_lshl_b32 s%d, s%d, 7" % (sCW, sR)); A("s_add_u32 s%d, s%d, 0x%x" % (sCW, sCW, WS_CW))
        def set_plan(val):
            A("v_mov_b32 v%d, %s" % (vT, val)); A("s_mov_b64 exec, 1"); A("ds_write_b32 v%d, v%d offset:%d" % (vHI, vT, F_PLAN)); A("s_mov_b64 exec, -1")
        for k in range(5, 11):
            if k == 8:
                A("s_xor_b32 s%d, s%d, 0x100" % (sCW, sCW))
            if k == 8:
                A("s_xor_b32 s%d, s%d, 2" % (sT1, sR)); A("s_lshl_b32 s%d, s%d, 12" % (sT1, sT1)); A("s_add_u32 s%d, s%d, 0x%x" % (sT1, sT1, WS_PR))
                A("v_add_u32 v%d, v%d, v%d" % (vT + 1, vHI, vL16))
                rec = [((lambda q=q: A("buffer_load_dwordx4 %s, v%d, %s, s%d offen offset:%d sc1" % (vr(36 + 4 * q, 4), vL16, srd("WS"), sT1, 1024 * q))), list(range(36 + 4 * q, 40 + 4 * q))) for q in range(4)]
                lds_wait(F_FULL, rtrig, sl=2)
                A("s_mov_b32 exec_hi, 0x1ffff")
                for i_, _ in rec: i_()
                A("s_mov_b64 exec, -1")
            lds_wait(F_FULL, 4 * k + cth + (bias if k >= 8 else 0), sl=2)
            A("v_mov_b32 v32, 1"); A("s_mov_b64 exec, 1")
            A("buffer_atomic_add v32, off, %s, s%d sc0" % (srd("WS"), sCW))
            A("s_mov_b64 exec, -1")
            A("s_mov_b32 s%d, 0x%x" % (sT2, 0x100 + k))
            A("s_waitcnt vmcnt(0)")
            A("v_readfirstlane_b32 s%d, v32" % sT0); A("s_add_u32 s%d, s%d, 1" % (sT0, sT0))
            if stamps and k < 9: stamp(k - 2)
            A("s_cmp_ge_u32 s%d, 3" % sT0); A("s_cbranch_scc1 L_close")
            if k == 8:
                A("s_mov_b32 exec_hi, 0x1ffff")
                gpoll(rec[:2], first=False, sleep=8, full="PARTIAL"); gpoll(rec[2:], first=False, sleep=8, full="PARTIAL")
                for q in range(4): A("ds_write_b128 v%d, %s offset:%d" % (vT + 1, vr(36 + 4 * q, 4), L_PP + 1024 * q))
                A("s_mov_b64 exec, -1")
                A("s_waitcnt lgkmcnt(0)")
            set_plan("%d" % (k + 1))
        A("s_mov_b32 s%d, 0x%x" % (sT2, 0x100 + 11))
        A("L_close:")
        set_plan("s%d" % sT2)
        A("s_branch L_gather56")
        A("L_final:")
    elif bal >= 2:
        A("s_cmp_eq_u32 s%d, 7" % sWAVE); A("s_cbranch_scc1 L_final")
        lds_wait(F_AM, 1, sl=8)
        pg_addr(4, 5)
        if bal == 3: A("s_lshl_b32 s4, s2, 8"); A("s_add_u32 s4, s4, 0x%x" % (WS_PG + 0x4000))
        for k in range(bmin):
            lds_wait(F_FULL, bthr + bper * k, sl=4)
            A("v_mov_b32 v%d, 1" % (32 + k)); A("s_mov_b64 exec, 1")
            if bal == 4: A("buffer_load_dword v%d, off, %s, s4 sc1" % (32 + k, srd("WS")))
            elif bal == 5: A("buffer_store_dword v%d, off, %s, s5 sc1" % (32 + k, srd("WS")))
            else: A("buffer_atomic_add v%d, off, %s, s4 sc0" % (32 + k, srd("WS")))
            A("s_mov_b64 exec, -1")
        A("s_waitcnt vmcnt(0)")
        A("s_branch L_gather56")
        A("L_final:")
    elif bal:
        A("s_cmp_eq_u32 s%d, 7" % sWAVE); A("s_cbranch_scc1 L_final")
        lds_wait(F_AM, 1, sl=8)
        pg_addr(4, 5)
        A("s_and_b32 s12, s2, 7"); A("v_lshlrev_b32 v33, 2, v0"); A("s_mov_b32 s13, 0")
        A("L_bal:")
        A("s_mov_b64 exec, 0xff"); A("buffer_load_dword v32, v33, %s, s4 offen sc1" % srd("WS"))
        A("s_mov_b64 exec, 1")
        A("ds_read_b32 v34, v%d offset:%d" % (vHI, F_FULL)); A("s_waitcnt lgkmcnt(0)")
        A("buffer_store_dword v34, off, %s, s5 sc1" % srd("WS"))
        A("s_mov_b64 exec, -1")
        A("v_readfirstlane_b32 s%d, v34" % sT0)
        A("s_cmp_ge_u32 s%d, %d" % (sT0, bstop)); A("s_cbranch_scc1 L_balend")
        A("s_waitcnt vmcnt(1)")
        A("v_readlane_b32 s%d, v32, s12" % sT1)
        A("s_mov_b64 exec, 0xff")
        A("v_cmp_eq_u32 vcc, -1, v32")
        if bmin:
            for m in QUADS[:3]: dpp("v_min_u32", 32, m)
        else:
            for m in QUADS[:3]: dpp("v_add_u32", 32, m)
        A("s_mov_b64 exec, -1")
        A("v_readfirstlane_b32 s%d, v32" % sT2)
        A("s_cmp_lg_u64 vcc, 0"); A("s_cbranch_scc1 L_balskip")
        if not bmin: A("s_lshl_b32 s%d, s%d, 3" % (sT1, sT1))
        A("s_sub_i32 s%d, s%d, s%d" % (sT1, sT1, sT2)); A("s_cmp_gt_i32 s%d, %d" % (sT1, bthr)); A("s_cselect_b32 s%d, 1, 0" % sT1)
        A("v_mov_b32 v35, s%d" % sT1); A("s_mov_b64 exec, 1"); A("ds_write_b32 v%d, v35 offset:%d" % (vHI, F_MODE)); A("s_mov_b64 exec, -1")
        A("L_balskip:")
        if bper: A("s_sleep %d" % bper)
        A("s_add_u32 s13, s13, 1"); A("s_cmp_lt_u32 s13, 4096"); A("s_cbranch_scc1 L_bal")
        A("L_balend:")
        A("v_mov_b32 v35, 0"); A("s_mov_b64 exec, 1"); A("ds_write_b32 v%d, v35 offset:%d" % (vHI, F_MODE)); A("s_mov_b64 exec, -1")
        A("s_waitcnt vmcnt(0)")
        A("s_branch L_gather56")
        A("L_final:")
    else:
        A("s_cmp_eq_u32 s%d, 6" % sWAVE); A("s_cbranch_scc1 L_gather56")
    if at2:
        A("v_and_b32 v%d, 7, v0" % (vT + 1)); A("v_lshrrev_b32 v%d, 5, v0" % (vT + 2)); A("v_lshl_add_u32 v%d, v%d, 1, v%d" % (vT + 1, vT + 1, vT + 2))
    else: A("v_lshl_add_u32 v%d, v%d, 2, v%d" % (vT + 1, vR4, vG4))
    A("v_lshlrev_b32 v%d, 1, v%d" % (vT + 2, vT + 1)); A("s_lshl_b32 s%d, s%d, 5" % (sT0, sR))
    A("buffer_load_ushort v%d, v%d, %s, s%d offen" % (vT + 3, vT + 2, srd("X"), sT0))
    A("v_lshl_add_u32 v%d, v%d, 2, v%d" % (vT + 1, vT + 1, vHI))
    A("s_lshl_b32 s%d, s%d, %d" % (sT1, sR, 11 + spad)); A("s_add_u32 s%d, s%d, 0x%x" % (sT1, sT1, WS_SP))
    A("v_lshrrev_b32 v29, 2, v0"); A("v_lshlrev_b32 v29, %d, v29" % (6 + spad)); A("v_lshl_add_u32 v29, v%d, 4, v29" % vR4)
    if wolate == 2:
        A("s_mov_b32 s12, s%d" % sT0); A("s_mov_b32 s13, s%d" % sT1)
        if steal: lds_wait(F_LI, 1, sl=2)
        else: lds_wait(F_FULL, wotrig, sl=2)
        wo_dma()
        A("s_mov_b32 s%d, s12" % sT0); A("s_mov_b32 s%d, s13" % sT1)
    A("s_waitcnt lgkmcnt(0)")
    A("s_barrier")
    stamp(8)
    A("ds_read_b32 v40, v%d offset:%d" % (vT + 1, L_YP)); A("ds_read_b32 v41, v%d offset:%d" % (vT + 1, L_YP + 64)); A("s_waitcnt lgkmcnt(0)")
    A("v_add_f32 v40, v40, v41"); rbf(40)
    A("s_lshl_b32 s%d, s%d, 16" % (sB2, sB2)); A("v_add_f32 v40, s%d, v40" % sB2); rbf(40)
    A("v_mul_f32 v41, s%d, v40" % sL2E); A("v_exp_f32 v41, -v41"); A("v_add_f32 v41, 1.0, v41"); A("v_rcp_f32 v41, v41"); A("v_mul_f32 v40, v40, v41"); rbf(40)
    A("s_waitcnt vmcnt(0)"); A("v_lshlrev_b32 v%d, 16, v%d" % (vT + 3, vT + 3))
    if wolate == 2:
        A("s_mov_b64 exec, 1"); A("ds_write_b32 v%d, v%d offset:%d" % (vHI, vONE, F_WO)); A("s_mov_b64 exec, -1")
        stamp(11)
    A("s_barrier")
    stamp(9)
    if td2: A("s_sleep %d" % td2)
    if at2:
        A("v_lshlrev_b32 v29, 3, v0")
        apoll(32, 29, sT1, 44, tsleep2)
        stamp(10)
        A("v_add_f32 v44, v32, v34"); A("v_add_f32 v45, v33, v35"); A("v_add_f32 v46, v36, v38"); A("v_add_f32 v47, v37, v39")
        A("v_add_f32 v44, v44, v46"); A("v_add_f32 v45, v45, v47")
        A("v_permlane32_swap_b32 v44, v45"); A("v_add_f32 v44, v44, v45")
        swap_red(44, 45, "v_add_f32", 16)
        dpp("v_add_f32", 44, "row_ror:8")
    else:
        gpoll([(lambda: A("buffer_load_dwordx4 v[32:35], v29, %s, s%d offen %s" % (srd("WS"), sT1, tl)), [32, 33, 34, 35]),
               (lambda: A("buffer_load_dwordx4 v[36:39], v29, %s, s%d offen offset:%d %s" % (srd("WS"), sT1, 1024 << spad, tl)), [36, 37, 38, 39])], sleep=tsleep2, P=P2)
        stamp(10)
        for i in range(4): A("v_add_f32 v%d, v%d, v%d" % (44 + i, 32 + i, 36 + i))
        A("v_permlane32_swap_b32 v44, v46"); A("v_permlane32_swap_b32 v45, v47")
        A("v_add_f32 v44, v44, v46"); A("v_add_f32 v45, v45, v47")
        A("v_permlane16_swap_b32 v44, v45"); A("v_add_f32 v44, v44, v45")
        dpp("v_add_f32", 44, "row_ror:8"); dpp("v_add_f32", 44, "row_ror:4")
    rbf(44); A("v_mul_f32 v44, v44, v40"); rbf(44)
    A("v_add_f32 v44, v44, v%d" % (vT + 3)); A("v_cvt_pk_bf16_f32 v44, v44, v44")
    em = "0xff" if at2 else "0x000f000f"
    A("s_mov_b32 exec_lo, %s" % em); A("s_mov_b32 exec_hi, %s" % em)
    A("buffer_store_short v44, v%d, %s, s%d offen" % (vT + 2, srd("OUT"), sT0))
    A("s_mov_b64 exec, -1")
    A("s_cmp_lg_u32 s%d, 0" % sR); A("s_cbranch_scc1 L_done")
    epoch()
    A("v_mov_b32 v30, s%d" % sEP); A("v_mov_b32 v31, s%d" % (sEP + 1)); A("s_mov_b64 exec, 1")
    A("buffer_store_dwordx2 v[30:31], off, %s, 0 offset:%d sc1" % (srd("WS"), WS_EP))
    A("s_mov_b64 exec, -1")
    if pgrp:
        A("v_lshlrev_b32 v29, 5, v0"); A("s_mov_b64 exec, 0xff")
        A("buffer_load_dword v30, v29, %s, 0 offen offset:4 sc1" % srd("DBG")); A("s_memrealtime s[16:17]"); A("s_waitcnt vmcnt(0) lgkmcnt(0)")
        A("v_mov_b32 v31, v30")
        for m in QUADS[:3]: dpp("v_max_u32", 30, m)
        if pat == 11:
            for m in QUADS[:3]: dpp("v_min_u32", 31, m)
        else:
            A("v_subrev_u32 v31, v31, v30")
            for m in QUADS[:3]: dpp("v_add_u32", 31, m)
        A("s_mov_b64 exec, -1")
        A("v_readfirstlane_b32 s6, v30"); A("v_readfirstlane_b32 s7, v31")
        if pat == 11: A("s_sub_u32 s6, s6, s7"); A("s_lshl_b32 s6, s6, 3")
        else: A("s_mov_b32 s6, s7")
        A("s_min_u32 s6, s6, 20000")
        A("s_add_u32 s16, s16, s6")
        A("L_pad3:"); A("s_memrealtime s[18:19]"); A("s_waitcnt lgkmcnt(0)"); A("s_sub_u32 s18, s18, s16"); A("s_cmp_lt_i32 s18, 0"); A("s_cbranch_scc1 L_pad3")
    if probe or p_b >= 0 or pspan:
        A("buffer_load_dwordx2 v[30:31], off, %s, 0 offset:4 sc1" % srd("DBG")); A("s_memrealtime s[16:17]"); A("s_waitcnt vmcnt(0) lgkmcnt(0)")
        A("v_readfirstlane_b32 s6, v30"); A("v_readfirstlane_b32 s7, v31")
        if probe: A("s_sub_i32 s6, s6, s7"); A("s_abs_i32 s6, s6"); A("s_lshr_b32 s6, s6, 4")
        elif pspan == 1: A("s_not_b32 s7, s7"); A("s_sub_u32 s6, s6, s7"); A("s_lshl_b32 s6, s6, 2")
        elif pspan == 2: A("s_sub_u32 s6, s16, s6"); A("s_lshl_b32 s6, s6, 3")
        elif pspan == 6: A("s_not_b32 s7, s7"); A("s_sub_u32 s6, s16, s7"); A("s_lshl_b32 s6, s6, 2")
        elif pspan == 3: A("s_not_b32 s7, s7"); A("s_sub_u32 s6, s6, s7"); A("s_lshl_b32 s6, s6, 3")
        elif pspan in (4, 5): A("s_not_b32 s7, s7"); A("s_lshl_b32 s7, s7, 8"); A("s_sub_u32 s6, s6, s7"); A("s_lshr_b32 s6, s6, %d" % (5 if pspan == 4 else 6))
        else: A("s_lshr_b32 s6, s6, 5")
        A("s_min_u32 s6, s6, 20000")
        A("s_add_u32 s16, s16, s6")
        A("L_pad2:"); A("s_memrealtime s[18:19]"); A("s_waitcnt lgkmcnt(0)"); A("s_sub_u32 s18, s18, s16"); A("s_cmp_lt_i32 s18, 0"); A("s_cbranch_scc1 L_pad2")
    A("L_done:")
    A("s_waitcnt vmcnt(0)")
    if pad:
        A("s_waitcnt lgkmcnt(0)"); A("s_add_u32 s16, s16, %d" % pad)
        A("L_pad:"); A("s_memrealtime s[18:19]"); A("s_waitcnt lgkmcnt(0)"); A("s_sub_u32 s18, s18, s16"); A("s_cmp_lt_i32 s18, 0"); A("s_cbranch_scc1 L_pad")
    if stamps:
        A("s_waitcnt vmcnt(0)")
        stamp(NST - 1)
        A("s_waitcnt lgkmcnt(0)")
        A("s_lshl_b32 s%d, s2, 3" % sT0); A("s_add_u32 s%d, s%d, s%d" % (sT0, sT0, sWAVE)); A("s_mul_i32 s%d, s%d, %d" % (sT0, sT0, NST * 8)); A("s_add_u32 s%d, s%d, 0x%x" % (sT0, sT0, WS_STAMP))
        A("s_mov_b64 exec, 1")
        for k in range(NST):
            A("v_mov_b32 v2, s%d" % (16 + 2 * k)); A("v_mov_b32 v3, s%d" % (17 + 2 * k))
            A("buffer_store_dwordx2 v[2:3], off, %s, s%d offset:%d" % (srd("WS"), sT0, k * 8)); A("s_nop 1")
    A("L_end:")
    A("s_endpgm")
    body = A.finalize()
    hdr = open("recurrent_scan__gqa_block_cached__mixer_token_mlp__decode.s.ref").read().split("; Override launch")[0]
    s = hdr + "; @launch grid=(256,1,1) block=(512,1,1) lds=%d\n" % LDS_BYTES
    s += '.amdgcn_target "amdgcn-amd-amdhsa--gfx950"\n.text\n.globl %s\n.p2align 8\n.type %s,@function\n%s:\n' % (NAME, NAME, NAME)
    s += body
    s += '.section .rodata,"a"\n.p2align 6\n.amdhsa_kernel %s\n  .amdhsa_next_free_vgpr 256\n  .amdhsa_next_free_sgpr 102\n  .amdhsa_accum_offset 256\n' % NAME
    s += "  .amdhsa_group_segment_fixed_size 0\n  .amdhsa_kernarg_size 104\n  .amdhsa_user_sgpr_count 2\n  .amdhsa_user_sgpr_kernarg_segment_ptr 1\n  .amdhsa_system_sgpr_workgroup_id_x 1\n.end_amdhsa_kernel\n"
    return s, A

if __name__ == "__main__":
    out = sys.argv[1]
    kw = {}
    for p in sys.argv[2:]:
        k, v = p.split("=")
        kw[k] = int(v) if v.lstrip("-").isdigit() else v.replace("+", " ")
    s, A = gen(**kw)
    open(out, "w").write(s)
    print("wrote", out, "instructions", len(A.ins), "nops", A.nops, "lds", LDS_BYTES)
```

```python
import sys, struct
from asmlib import Asm

NAME = "recurrent_scan__gqa_block_cached__mixer_token_mlp__decode_kernel"
def f2u(x): return struct.unpack("<I", struct.pack("<f", x))[0]

WS_ST, WS_OP, WS_SP, WS_Q, WS_EP = 0x10000, 0x20000, 0x100000, 0x60000, 0x0
WS_PG = 0x90000
WS_CW, WS_PR = 0x80000, 0x200000
EP_STEP = 0x9E3779B97F4A7C15
WS_STAMP = 128 << 20
HI = 131072
L_WO = 0
L_XN, XN_STRIDE = 16384, 1040
L_OW = L_XN
L_QP = 24704
L_QB = 28800
L_FLG = 29824
L_ST = L_FLG + 64
L_GS = L_ST + 128
L_YP = L_GS + 32
LDS_BYTES = HI + L_YP + 128
F_FULL, F_FREED, F_XN, F_QP, F_QR, F_ST, F_GR, F_WO, F_AM, F_PLAN, F_LI, F_MODE = [L_FLG + 4 * i for i in (0, 4, 8, 9, 10, 11, 12, 13, 14, 1, 15, 2)]
L_PP = L_QP

sWAVE, sBASE, sOFF = 3, 4, 5
sT0, sT1, sT2 = 6, 7, 8
sR, sSPIN, sT3 = 9, 10, 11
sMU, sMB = 14, 15
SRD = dict(K=44, V=48, X=52, WQ=56, WO=60, W1=64, B1=68, W2=72, OUT=76, DBG=80, WS=84)
KARG = dict(X=0, K=8, V=16, WQ=24, WO=32, W1=48, B1=56, W2=64, OUT=80, DBG=88, WS=96)
SIZE = dict(X=8192, K=1 << 26, V=1 << 26, WQ=1 << 22, WO=1 << 22, W1=3584, B1=3584, W2=3584, OUT=8192, DBG=256, WS=1 << 28)
sSELLO, sSELHI, sMASK, sSCALE, sL2E, sC0, sC1, sB2, sB2P = 88, 89, 90, 91, 92, 93, 94, 95, 96
sOPOFF, sSPOFF, sSTOFF, sFULL = 98, 99, 100, 101
def srd(n): return "s[%d:%d]" % (SRD[n], SRD[n] + 3)
def vr(a, n=1): return "v%d" % a if n == 1 else "v[%d:%d]" % (a, a + n - 1)
vL16, vG4, vC4, vR4, vN16, vHI, vONE = 1, 2, 3, 4, 5, 6, 7
vT = 8
vPOLL = 16

def gen(F=4, stamps=0, pol="nt", spin=1 << 17, lspin=1 << 22, mimic=1, pre=0, lsleep=1, ldprio=3, fsleep=8, qsleep=2, ssleep=8, tsleep=0, xmap=1, polq=None, polo=None, ldst=0, abl='', rot=0, pad=0, P1=1, P2=1, pd=5, qmap=0, tl='sc1', ts='sc1', tsleep2=None, Fhi=0, himask=0xf8, hiend=16, spad=0, at2=1, td2=8, td1=0, at1=0, qdelay=0, sdelay=0, qtrig=8, strig=48, bshift=0, wolate=2, wqsplit=0, wotrig=60, D=0, DV=0, probe=0, steal=0, cth=23, cllate=0, bias=0, rtrig=48, p_a=-1, p_b=-1, pspan=0, pstart=0, bal=0, Flo=2, bthr=0, bper=8, bstop=58, bmin=0, pm=0, pval=0, pgrp=0, pat=11):
    NOWN = 5 if steal else 8
    sPLAN = 13
    DV = DV if DV else D
    tsleep2 = tsleep if tsleep2 is None else tsleep2
    polq = pol if polq is None else polq.replace('def', '')
    polo = pol if polo is None else polo.replace('def', '')
    A = Asm()
    NST = 14
    def stamp(k):
        if stamps: A("s_memrealtime s[%d:%d]" % (16 + 2 * k, 17 + 2 * k))
    QUADS = ("quad_perm:[1,0,3,2]", "quad_perm:[2,3,0,1]", "row_half_mirror", "row_mirror")
    def dpp(op, v, m, rm="0xf"): A("%s_dpp v%d, v%d, v%d %s row_mask:%s bank_mask:0xf" % (op, v, v, v, m, rm))
    def red16(v, op):
        for m in QUADS: dpp(op, v, m)
    def swap_red(v, t, op, which):
        A("v_mov_b32 v%d, v%d" % (t, v)); A("v_permlane%d_swap_b32 v%d, v%d" % (which, v, t)); A("%s v%d, v%d, v%d" % (op, v, v, t))
    def rbf(v):
        A("v_cvt_pk_bf16_f32 v%d, v%d, v%d" % (v, v, v)); A("v_lshlrev_b32 v%d, 16, v%d" % (v, v))
    def unpack(dlo, dhi, src):
        A("v_lshlrev_b32 v%d, 16, v%d" % (dlo, src)); A("v_and_b32 v%d, s%d, v%d" % (dhi, sMASK, src))
    def layernorm(pk, n, x, d, t, halves):
        def allred(v):
            red16(v, "v_add_f32"); swap_red(v, t + 2, "v_add_f32", 16)
            if halves == 1: swap_red(v, t + 2, "v_add_f32", 32)
        for i in range(n): unpack(x + 2 * i, x + 2 * i + 1, pk + i)
        A("v_add_f32 v%d, v%d, v%d" % (t, x, x + 1)); A("v_add_f32 v%d, v%d, v%d" % (t + 1, x + 2, x + 3))
        for i in range(4, 2 * n): A("v_add_f32 v%d, v%d, v%d" % (t + (i & 1), t + (i & 1), x + i))
        A("v_add_f32 v%d, v%d, v%d" % (t, t, t + 1))
        allred(t)
        A("v_mul_f32 v%d, 0x3b000000, v%d" % (t, t))
        A("v_cvt_pk_bf16_f32 v%d, v%d, v%d" % (t + 1, t, t))
        for i in range(2 * n): A("v_sub_f32 v%d, v%d, v%d" % (d + i, x + i, t))
        A("v_lshlrev_b32 v%d, 16, v%d" % (t + 1, t + 1))
        A("v_mul_f32 v%d, v%d, v%d" % (t, d, d)); A("v_mul_f32 v%d, v%d, v%d" % (d, d + 1, d + 1))
        for i in range(2, 2 * n): A("v_fmac_f32 v%d, v%d, v%d" % (t if i & 1 else d, d + i, d + i))
        A("v_add_f32 v%d, v%d, v%d" % (t, t, d))
        for i in range(2 * n): A("v_sub_f32 v%d, v%d, v%d" % (x + i, x + i, t + 1))
        allred(t)
        for i in range(n): A("v_cvt_pk_bf16_f32 v%d, v%d, v%d" % (pk + i, x + 2 * i, x + 2 * i + 1))
        A("v_mul_f32 v%d, 0x3b000000, v%d" % (t, t)); rbf(t)
        A("v_add_f32 v%d, 0x%x, v%d" % (t, f2u(1e-5), t)); rbf(t)
        A("v_sqrt_f32 v%d, v%d" % (t, t)); rbf(t)
        A("v_rcp_f32 v%d, v%d" % (t, t))
        for i in range(n): unpack(x + 2 * i, x + 2 * i + 1, pk + i)
        for i in range(2 * n): A("v_mul_f32 v%d, v%d, v%d" % (x + i, t, x + i))
        for i in range(n): A("v_cvt_pk_bf16_f32 v%d, v%d, v%d" % (pk + i, x + 2 * i, x + 2 * i + 1))
    def lds_wait(flag, val, keep=None, sl=None):
        ok = A.label("lok"); again = A.label("lagain")
        dst = keep if keep is not None else sT3
        if keep is not None:
            A("s_cmp_ge_u32 s%d, %s" % (keep, val)); A("s_cbranch_scc1 " + ok)
        A("s_mov_b32 s%d, 0" % sSPIN)
        A(again + ":")
        A("ds_read_b32 v%d, v%d offset:%d" % (vPOLL, vHI, flag)); A("s_waitcnt lgkmcnt(0)")
        A("v_readfirstlane_b32 s%d, v%d" % (dst, vPOLL))
        A("s_cmp_ge_u32 s%d, %s" % (dst, val)); A("s_cbranch_scc1 " + ok)
        if sl is None: sl = lsleep
        if sl: A("s_sleep %d" % sl)
        A("s_add_u32 s%d, s%d, 1" % (sSPIN, sSPIN)); A("s_cmp_lt_u32 s%d, %d" % (sSPIN, lspin)); A("s_cbranch_scc1 " + again)
        A(ok + ":")
    def lds_add(flag_addr_reg, off):
        A("s_waitcnt lgkmcnt(0)")
        A("s_mov_b64 exec, 1"); A("ds_add_u32 v%d, v%d offset:%d" % (flag_addr_reg, vONE, off)); A("s_mov_b64 exec, -1")
    def gpoll(loads, first=True, sleep=0, full="-1", tag=None, P=1):
        ok = A.label("ok"); again = A.label("again")
        masks = ["vcc", "s[12:13]"]
        A("s_mov_b32 s%d, 0" % sSPIN)
        if first:
            for issue, regs in loads: issue()
        for _ in range(P - 1):
            A("s_sleep %d" % pd)
            for issue, regs in loads: issue()
        A(again + ":")
        A("s_waitcnt vmcnt(%d)" % (len(loads) * (P - 1)))
        for (issue, regs), mk in zip(loads, masks):
            t = vT + 7
            if tag is not None:
                A("v_cmp_ne_u64 %s, %s, v[%d:%d]" % (mk, tag, regs[2], regs[3])); continue
            if len(regs) == 2: A("v_max_u32 v%d, v%d, v%d" % (t, regs[0], regs[1]))
            else:
                A("v_max3_u32 v%d, v%d, v%d, v%d" % (t, regs[0], regs[1], regs[2])); A("v_max_u32 v%d, v%d, v%d" % (t, t, regs[3]))
            A("v_cmp_eq_u32 %s, -1, v%d" % (mk, t))
        if len(loads) == 2:
            A("s_or_b32 s%d, vcc_lo, vcc_hi" % sT3); A("s_or_b32 s%d, s%d, s12" % (sT3, sT3)); A("s_or_b32 s%d, s%d, s13" % (sT3, sT3))
        else:
            A("s_or_b32 s%d, vcc_lo, vcc_hi" % sT3)
        A("s_cbranch_scc0 " + ok)
        if sleep: A("s_sleep %d" % sleep)
        for (issue, regs), mk in zip(loads, masks):
            A("s_mov_b64 exec, %s" % mk); issue()
        if full == "PARTIAL": A("s_mov_b32 exec_lo, -1"); A("s_mov_b32 exec_hi, 0x1ffff")
        else: A("s_mov_b64 exec, %s" % full)
        A("s_add_u32 s%d, s%d, 1" % (sSPIN, sSPIN)); A("s_cmp_lt_u32 s%d, %d" % (sSPIN, spin)); A("s_cbranch_scc1 " + again)
        A("s_waitcnt vmcnt(0)")
        A(ok + ":")
    def apoll(vd, vaddr, soff, vtmp, sleep, first=True):
        ms = ["vcc", "s[12:13]", "s[88:89]", "s[90:91]"]
        ok = A.label("aok"); again = A.label("aagain")
        def iss(k):
            A("v_mov_b32 v%d, 0" % (vd + 2 * k)); A("v_mov_b32 v%d, 0" % (vd + 1 + 2 * k))
            A("buffer_atomic_or_x2 v[%d:%d], v%d, %s, s%d offen offset:%d sc0" % (vd + 2 * k, vd + 1 + 2 * k, vaddr, srd("WS"), soff, 512 * k))
        if first == "only":
            for k in range(4): iss(k)
            return
        A("s_mov_b32 s%d, 0" % sSPIN)
        if first:
            for k in range(4): iss(k)
        A(again + ":")
        A("s_waitcnt vmcnt(0)")
        for k in range(4): A("v_max_u32 v%d, v%d, v%d" % (vtmp + k, vd + 2 * k, vd + 1 + 2 * k))
        for k in range(4): A("v_cmp_eq_u32 %s, -1, v%d" % (ms[k], vtmp + k))
        A("s_or_b64 s[92:93], vcc, s[12:13]"); A("s_or_b64 s[94:95], s[88:89], s[90:91]"); A("s_or_b64 s[92:93], s[92:93], s[94:95]")
        A("s_cbranch_scc0 " + ok)
        if sleep: A("s_sleep %d" % sleep)
        for k in range(4):
            A("s_mov_b64 exec, %s" % ms[k]); iss(k)
        A("s_mov_b64 exec, -1")
        A("s_add_u32 s%d, s%d, 1" % (sSPIN, sSPIN)); A("s_cmp_lt_u32 s%d, %d" % (sSPIN, spin)); A("s_cbranch_scc1 " + again)
        A("s_waitcnt vmcnt(0)")
        A(ok + ":")
    def word_poll(load, vd, lanes, cmp, sleep):
        ok = A.label("fok"); again = A.label("fagain")
        A("s_mov_b32 s%d, 0" % sSPIN); A("s_mov_b64 exec, %s" % lanes)
        A(again + ":")
        A(load)
        A("s_waitcnt vmcnt(0)")
        A(cmp % vd)
        A("s_cmp_eq_u64 vcc, 0"); A("s_cbranch_scc1 " + ok)
        if sleep: A("s_sleep %d" % sleep)
        A("s_add_u32 s%d, s%d, 1" % (sSPIN, sSPIN)); A("s_cmp_lt_u32 s%d, %d" % (sSPIN, spin)); A("s_cbranch_scc1 " + again)
        A(ok + ":")
        A("s_mov_b64 exec, -1")

    A("s_cmp_ge_u32 s2, 256"); A("s_cbranch_scc1 L_end")
    if stamps:
        for k in range(1, NST): A("s_mov_b64 s[%d:%d], 0" % (16 + 2 * k, 17 + 2 * k))
    stamp(0)
    if (pad or p_b >= 0 or pspan or pstart) and not stamps: A("s_memrealtime s[16:17]")
    for n in ("K", "X", "WQ", "WS", "V", "WO", "W1", "B1", "W2", "DBG", "OUT"):
        A("s_load_dwordx2 s[%d:%d], s[0:1], %d" % (SRD[n], SRD[n] + 1, KARG[n]))
    A("s_load_dwordx2 s[%d:%d], s[0:1], 72" % (sB2P, sB2P + 1))
    A("v_lshrrev_b32 v1, 6, v0"); A("v_and_b32 v0, 63, v0"); A("v_readfirstlane_b32 s%d, v1" % sWAVE)
    for n in SRD:
        A("s_mov_b32 s%d, 0x%x" % (SRD[n] + 2, SIZE[n])); A("s_mov_b32 s%d, 0x20000" % (SRD[n] + 3))
    if xmap == 0:
        A("s_and_b32 s%d, s2, 7" % sR); A("s_lshl_b32 s%d, s%d, 5" % (sR, sR)); A("s_lshr_b32 s%d, s2, 3" % sT0); A("s_add_u32 s%d, s%d, s%d" % (sR, sR, sT0))
    elif xmap >= 8:
        A("s_bfe_u32 s%d, s2, 0x10003" % sT0); A("s_bfe_u32 s%d, s2, 0x10004" % sT1); A("s_lshl_b32 s%d, s%d, 2" % (sT1, sT1)); A("s_add_u32 s%d, s%d, s%d" % (sT0, sT0, sT1))
        if xmap == 9: A("s_lshr_b32 s%d, s2, 5" % sT1); A("s_add_u32 s%d, s%d, s%d" % (sT0, sT0, sT1))
        A("s_sub_u32 s%d, s2, s%d" % (sR, sT0))
        A("s_and_b32 s%d, s%d, 7" % (sR, sR)); A("s_lshl_b32 s%d, s%d, 2" % (sR, sR)); A("s_and_b32 s%d, s2, 0xe0" % sT0); A("s_add_u32 s%d, s%d, s%d" % (sR, sR, sT0))
        A("s_bfe_u32 s%d, s2, 0x20003" % sT0); A("s_add_u32 s%d, s%d, s%d" % (sR, sR, sT0))
    elif xmap >= 4:
        A("s_lshr_b32 s%d, s2, 1" % sT0); A("s_xor_b32 s%d, s%d, s2" % (sT0, sT0)); A("s_and_b32 s%d, s%d, 1" % (sT0, sT0)); A("s_lshl_b32 s%d, s%d, 3" % (sT0, sT0))
        A("s_and_b32 s%d, s2, 4" % sT1); A("s_lshl_b32 s%d, s%d, 2" % (sT1, sT1)); A("s_add_u32 s%d, s%d, s%d" % (sT0, sT0, sT1))
        A("s_bfe_u32 s%d, s2, 0x10003" % sT1); A("s_lshl_b32 s%d, s%d, 2" % (sT1, sT1)); A("s_add_u32 s%d, s%d, s%d" % (sT0, sT0, sT1))
        A("s_and_b32 s%d, s2, 0xe0" % sR); A("s_add_u32 s%d, s%d, s%d" % (sR, sR, sT0))
        if xmap == 6:
            A("s_lshr_b32 s%d, s2, 5" % sT0); A("s_xor_b32 s%d, s%d, s2" % (sT0, sT0)); A("s_and_b32 s%d, s%d, 1" % (sT0, sT0))
        elif xmap == 7:
            A("s_lshr_b32 s%d, s2, 3" % sT0); A("s_xor_b32 s%d, s%d, s2" % (sT0, sT0)); A("s_and_b32 s%d, s%d, 1" % (sT0, sT0))
        else: A("s_and_b32 s%d, s2, 1" % sT0)
        A("s_bfe_u32 s%d, s2, 0x10004" % sT1)
        A("s_lshl_b32 s%d, s%d, 1" % ((sT0, sT0) if xmap != 5 else (sT1, sT1)))
        A("s_add_u32 s%d, s%d, s%d" % (sR, sR, sT0)); A("s_add_u32 s%d, s%d, s%d" % (sR, sR, sT1))
    else:
        if xmap == 2:
            A("s_lshr_b32 s%d, s2, 5" % sT0); A("s_add_u32 s%d, s2, s%d" % (sR, sT0))
        elif xmap == 3:
            A("s_bfe_u32 s%d, s2, 0x20003" % sT0); A("s_lshl_b32 s%d, s%d, 1" % (sT0, sT0)); A("s_add_u32 s%d, s2, s%d" % (sR, sT0))
        else: A("s_add_u32 s%d, s2, %d" % (sR, bshift))
        A("s_and_b32 s%d, s%d, 7" % (sR, sR)); A("s_lshl_b32 s%d, s%d, 2" % (sR, sR)); A("s_and_b32 s%d, s2, 0xe0" % sT0); A("s_add_u32 s%d, s%d, s%d" % (sR, sR, sT0))
        A("s_bfe_u32 s%d, s2, 0x20003" % sT0); A("s_add_u32 s%d, s%d, s%d" % (sR, sR, sT0))
    sRQ = sMB
    if xmap >= 4:
        A("s_and_b32 s%d, s2, 7" % sRQ); A("s_lshl_b32 s%d, s%d, 2" % (sRQ, sRQ)); A("s_and_b32 s%d, s2, 0xe0" % sT0); A("s_add_u32 s%d, s%d, s%d" % (sRQ, sRQ, sT0))
        A("s_bfe_u32 s%d, s2, 0x20003" % sT0); A("s_add_u32 s%d, s%d, s%d" % (sRQ, sRQ, sT0))
    elif qmap == 0: A("s_mov_b32 s%d, s%d" % (sRQ, sR))
    elif qmap == 1:
        A("s_and_b32 s%d, s2, 7" % sRQ); A("s_lshl_b32 s%d, s%d, 5" % (sRQ, sRQ)); A("s_lshr_b32 s%d, s2, 3" % sT0); A("s_add_u32 s%d, s%d, s%d" % (sRQ, sRQ, sT0))
    elif qmap == 2:
        A("s_lshr_b32 s%d, s%d, 3" % (sT0, sR)); A("s_and_b32 s%d, s%d, 0x1c" % (sT0, sT0)); A("s_add_u32 s%d, s%d, s%d" % (sT0, sT0, sR)); A("s_and_b32 s%d, s%d, 0x1c" % (sT0, sT0))
        A("s_and_b32 s%d, s%d, 0xe3" % (sRQ, sR)); A("s_or_b32 s%d, s%d, s%d" % (sRQ, sRQ, sT0))
    elif qmap == 4:
        A("s_lshr_b32 s%d, s%d, 5" % (sT0, sR)); A("s_lshl_b32 s%d, s%d, 1" % (sT0, sT0)); A("s_bfe_u32 s%d, s%d, 0x10001" % (sT1, sR)); A("s_add_u32 s%d, s%d, s%d" % (sT0, sT0, sT1))
        A("s_lshr_b32 s%d, s%d, 2" % (sT1, sT0)); A("s_lshl_b32 s%d, s%d, 1" % (sT1, sT1)); A("s_bfe_u32 s%d, s%d, 0x30002" % (sT2, sR)); A("s_add_u32 s%d, s%d, s%d" % (sT1, sT1, sT2))
        A("s_and_b32 s%d, s%d, 7" % (sT1, sT1)); A("s_lshl_b32 s%d, s%d, 3" % (sT0, sT0)); A("s_add_u32 s%d, s%d, s%d" % (sT0, sT0, sT1)); A("s_lshl_b32 s%d, s%d, 1" % (sT0, sT0))
        A("s_and_b32 s%d, s%d, 1" % (sT1, sR)); A("s_add_u32 s%d, s%d, s%d" % (sRQ, sT0, sT1))
    A("v_lshlrev_b32 v%d, 4, v0" % vL16); A("v_lshrrev_b32 v%d, 4, v0" % vG4); A("v_bfe_u32 v%d, v0, 2, 2" % vC4)
    A("v_and_b32 v%d, 3, v0" % vR4); A("v_and_b32 v%d, 15, v0" % vN16); A("v_mov_b32 v%d, 0x%x" % (vHI, HI)); A("v_mov_b32 v%d, 1" % vONE)
    A("s_mov_b32 s%d, 0x05040100" % sSELLO); A("s_mov_b32 s%d, 0x07060302" % sSELHI); A("s_mov_b32 s%d, 0xffff0000" % sMASK)
    A("s_mov_b32 s%d, 0x%x" % (sSCALE, f2u(128 ** -0.5))); A("s_mov_b32 s%d, 0x%x" % (sL2E, f2u(1.4426950408889634)))
    c0 = -2.0 * 0.7978845608028654 * 1.4426950408889634
    A("s_mov_b32 s%d, 0x%x" % (sC0, f2u(c0))); A("s_mov_b32 s%d, 0x%x" % (sC1, f2u(c0 * 0.044715)))
    A("s_lshr_b32 s%d, s%d, 5" % (sT0, sR)); A("s_lshl_b32 s%d, s%d, 15" % (sT0, sT0))
    A("s_and_b32 s%d, s%d, 31" % (sT1, sR)); A("s_lshl_b32 s%d, s%d, 8" % (sT1, sT1)); A("s_add_u32 s%d, s%d, s%d" % (sT0, sT0, sT1))
    A("s_add_u32 s%d, s%d, 0x%x" % (sOPOFF, sT0, WS_OP))
    A("s_and_b32 s%d, s%d, 7" % (sT0, sR)); A("s_lshl_b32 s%d, s%d, %d" % (sT0, sT0, 13 + spad))
    A("s_lshr_b32 s%d, s%d, 3" % (sT1, sR)); A("s_lshl_b32 s%d, s%d, %d" % (sT1, sT1, 6 + spad)); A("s_add_u32 s%d, s%d, s%d" % (sT0, sT0, sT1))
    A("s_add_u32 s%d, s%d, 0x%x" % (sSPOFF, sT0, WS_SP))
    A("s_lshr_b32 s%d, s%d, 2" % (sT0, sR)); A("s_lshl_b32 s%d, s%d, 7" % (sT0, sT0)); A("s_add_u32 s%d, s%d, 0x%x" % (sSTOFF, sT0, WS_ST))
    A("s_cmp_eq_u32 s%d, 4" % sWAVE); A("s_cbranch_scc1 L_loader")
    A("s_cmp_eq_u32 s%d, 5" % sWAVE); A("s_cbranch_scc1 L_comm")
    A("s_cmp_gt_u32 s%d, 5" % sWAVE); A("s_cbranch_scc1 L_mlp")

    vQ, vS, vTMP, vK = 32, 48, 112, 128
    vKA, vVA = 17, 17
    vM, vLs, vMO, vF, vOWA = 25, 26, 27, 28, 29
    vX = vS
    A("v_lshlrev_b32 v%d, 5, v0" % vT)
    A("v_lshrrev_b32 v%d, 1, v0" % (vT + 1)); A("v_lshlrev_b32 v%d, 13, v%d" % (vT + 1, vT + 1))
    A("v_and_b32 v%d, 1, v0" % (vT + 2)); A("v_lshl_add_u32 v%d, v%d, 4, v%d" % (vT + 1, vT + 2, vT + 1))
    A("s_lshl_b32 s%d, s%d, 11" % (sT2, sWAVE))
    A("s_lshl_b32 s%d, s%d, 20" % (sT0, sWAVE)); A("s_lshl_b32 s%d, s%d, 5" % (sT1, sRQ)); A("s_add_u32 s%d, s%d, s%d" % (sT0, sT0, sT1))
    A("s_lshl_b32 s%d, s%d, 13" % (sT1, sWAVE)); A("s_add_u32 s%d, s%d, %d" % (sT1, sT1, 12 * 8192))
    A("s_waitcnt lgkmcnt(0)")
    if ldst == 2: stamp(12)
    A("buffer_load_dwordx4 %s, v%d, %s, s%d offen" % (vr(vX, 4), vT, srd("X"), sT2))
    A("buffer_load_dwordx4 %s, v%d, %s, s%d offen offset:16" % (vr(vX + 4, 4), vT, srd("X"), sT2))
    nq0 = wqsplit if wqsplit else 4
    for a in range(nq0):
        A("s_add_u32 m0, s%d, %d" % (sT1, a * 1024))
        if 'q' in abl: A("buffer_load_dwordx4 v%d, %s, 0 offen lds" % (vL16, srd("X")))
        else: A("buffer_load_dwordx4 v%d, %s, s%d offen %s lds" % (vT + 1, srd("WQ"), sT0, polq))
        if a < 3: A("s_add_u32 s%d, s%d, 0x40000" % (sT0, sT0))
    if nq0 < 4: A("v_mov_b32 v31, v%d" % (vT + 1)); A("s_mov_b32 s12, s%d" % sT0)
    A("s_barrier")
    A("v_lshrrev_b32 v%d, 5, v0" % (vT + 3)); A("s_lshl_b32 s%d, s%d, 1" % (sT0, sWAVE)); A("v_add_u32 v%d, s%d, v%d" % (vT + 3, sT0, vT + 3))
    A("v_mul_u32_u24 v%d, %d, v%d" % (vT + 3, XN_STRIDE, vT + 3)); A("v_and_b32 v%d, 31, v0" % (vT + 4)); A("v_lshl_add_u32 v%d, v%d, 5, v%d" % (vT + 3, vT + 4, vT + 3))
    A("v_add_u32 v%d, v%d, v%d" % (vT + 3, vHI, vT + 3))
    A("v_and_b32 v%d, 7, v0" % (vT + 4)); A("v_mul_u32_u24 v%d, %d, v%d" % (vT + 4, XN_STRIDE, vT + 4)); A("v_lshl_add_u32 v%d, v%d, 4, v%d" % (vT + 4, vG4, vT + 4))
    A("s_lshl_b32 s%d, s%d, 8" % (sT0, sWAVE)); A("s_add_u32 s%d, s%d, %d" % (sT0, sT0, HI)); A("v_add_u32 v%d, s%d, v%d" % (vT + 4, sT0, vT + 4))
    A("v_lshlrev_b32 v%d, 8, v%d" % (vT + 5, vG4)); A("v_lshl_add_u32 v%d, v%d, 3, v%d" % (vT + 5, vN16, vT + 5)); A("v_add_u32 v%d, s%d, v%d" % (vT + 5, sT1, vT + 5))
    A("s_lshl_b32 s%d, s%d, 10" % (sT0, sWAVE)); A("s_add_u32 s%d, s%d, %d" % (sT0, sT0, HI)); A("v_add_u32 v%d, s%d, v%d" % (vT + 6, sT0, vL16))
    A("s_lshl_b32 s%d, s%d, 13" % (sT0, sWAVE)); A("v_lshlrev_b32 v%d, 8, v%d" % (vT, vN16)); A("v_add_u32 v%d, s%d, v%d" % (vT, sT0, vT))
    for m in range(4):
        A("v_add_u32 v%d, %d, v%d" % (vT + 1, 4 * m, vG4)); A("v_xor_b32 v%d, v%d, v%d" % (vT + 1, vT + 1, vN16))
        A("v_lshl_add_u32 v%d, v%d, 4, v%d" % (vKA + m, vT + 1, vT)); A("v_add_u32 v%d, 0x10000, v%d" % (vKA + 4 + m, vKA + m))
    A("s_lshl_b32 s%d, s%d, 2" % (sT0, sWAVE)); A("s_add_u32 s%d, s%d, %d" % (sT0, sT0, HI)); A("v_mov_b32 v%d, s%d" % (30, sT0))
    A("s_mov_b32 s%d, 0" % sFULL)
    A("s_waitcnt vmcnt(%d)" % nq0)
    for a in range(nq0, 4):
        A("s_add_u32 m0, s%d, %d" % (sT1, a * 1024))
        A("buffer_load_dwordx4 v31, %s, s12 offen %s lds" % (srd("WQ"), polq))
        if a < 3: A("s_add_u32 s12, s12, 0x40000")
    stamp(1)
    layernorm(vX, 8, vX + 8, vX + 24, vX + 40, 2)
    A("ds_write_b128 v%d, %s offset:%d" % (vT + 3, vr(vX, 4), L_XN)); A("ds_write_b128 v%d, %s offset:%d" % (vT + 3, vr(vX + 4, 4), L_XN + 16))
    lds_add(vHI, F_XN)
    A("s_waitcnt vmcnt(0)")
    for m in range(4):
        A("ds_read_b64_tr_b16 %s, v%d offset:%d" % (vr(vK + 4 * m, 2), vT + 5, m * 1024))
        A("ds_read_b64_tr_b16 %s, v%d offset:%d" % (vr(vK + 4 * m + 2, 2), vT + 5, m * 1024 + 128))
    lds_wait(F_XN, 4)
    for m in range(4): A("ds_read_b128 %s, v%d offset:%d" % (vr(vK + 16 + 4 * m, 4), vT + 4, L_XN + m * 64))
    for m in range(4):
        A("s_waitcnt lgkmcnt(%d)" % (3 - m))
        A("v_mfma_f32_16x16x32_bf16 %s, %s, %s, %s" % (vr(vTMP, 4), vr(vK + 4 * m, 4), vr(vK + 16 + 4 * m, 4), "0" if m == 0 else vr(vTMP, 4)))
    A("ds_write_b128 v%d, %s offset:%d" % (vT + 6, vr(vTMP, 4), L_QP))
    lds_add(vHI, F_QP)
    A("s_mov_b64 exec, 1"); A("ds_add_u32 v30, v%d offset:%d" % (vONE, F_FREED)); A("s_mov_b64 exec, -1")
    stamp(2)
    def wait_block(n4):
        A("s_add_u32 s%d, s%d, %d" % (sT0, sWAVE, 4 * n4 + 1))
        lds_wait(F_FULL, "s%d" % sT0, keep=sFULL)
    def read_k(j):
        base = vK + 32 * (j % 4)
        for t in range(2):
            for m in range(4):
                A("ds_read_b128 %s, v%d offset:%d" % (vr(base + 16 * t + 4 * m, 4), vKA + m + (4 if (j & 2) else 0), (j & 1) * 32768 + t * 4096))
    def qk_block(j):
        base = vK + 32 * (j % 4)
        for m in range(4):
            for t in range(2):
                acc = vr(vS + 8 * j + 4 * t, 4)
                A("v_mfma_f32_16x16x32_bf16 %s, %s, %s, %s" % (acc, vr(base + 16 * t + 4 * m, 4), vr(vQ + 4 * m, 4), "0" if m == 0 else acc))
    def round_block(j):
        for p in range(4):
            a, b, t = vS + 8 * j + 2 * p, vS + 8 * j + 2 * p + 1, vT + (p & 1)
            if mimic:
                A("v_cvt_pk_bf16_f32 v%d, v%d, v%d" % (t, a, b)); unpack(a, b, t)
            A("v_mul_f32 v%d, s%d, v%d" % (a, sSCALE, a)); A("v_mul_f32 v%d, s%d, v%d" % (b, sSCALE, b))
            if mimic:
                A("v_cvt_pk_bf16_f32 v%d, v%d, v%d" % (t, a, b)); unpack(a, b, t)
            if j == 0 and p == 0: A("v_max_f32 v%d, v%d, v%d" % (vM, a, b))
            else: A("v_max3_f32 v%d, v%d, v%d, v%d" % (vM, a, b, vM))
    for j in range(4):
        wait_block(j); read_k(j); lds_add(30, F_FREED)
    stamp(3)
    lds_wait(F_QR, 1)
    stamp(4)
    A("v_lshlrev_b32 v%d, 8, v%d" % (vT, vC4)); A("v_lshl_add_u32 v%d, v%d, 4, v%d" % (vT, vG4, vT)); A("v_add_u32 v%d, v%d, v%d" % (vT, vHI, vT))
    for m in range(4): A("ds_read_b128 %s, v%d offset:%d" % (vr(vQ + 4 * m, 4), vT, L_QB + m * 64))
    A("s_waitcnt lgkmcnt(0)")
    for j in range(4):
        qk_block(j)
        wait_block(4 + j); A("s_nop 3"); read_k(4 + j)
        if j >= 1: round_block(j - 1)
        lds_add(30, F_FREED)
    for j in range(4, 8):
        qk_block(j); round_block(j - 1)
    A("v_lshl_add_u32 v%d, v%d, 2, v%d" % (vT + 2, vG4, vC4))
    A("v_and_b32 v%d, 7, v%d" % (vT + 3, vT + 2)); A("v_lshlrev_b32 v%d, 1, v%d" % (vT + 3, vT + 3))
    A("v_lshrrev_b32 v%d, 1, v%d" % (vT + 4, vR4)); A("v_xor_b32 v%d, v%d, v%d" % (vT + 3, vT + 3, vT + 4))
    A("v_lshlrev_b32 v%d, 8, v%d" % (vT + 2, vT + 2)); A("v_lshl_add_u32 v%d, v%d, 4, v%d" % (vT + 2, vT + 3, vT + 2))
    A("v_and_b32 v%d, 1, v0" % (vT + 4)); A("v_lshl_add_u32 v%d, v%d, 3, v%d" % (vT + 2, vT + 4, vT + 2))
    A("s_lshl_b32 s%d, s%d, 13" % (sT0, sWAVE)); A("v_add_u32 v%d, s%d, v%d" % (vVA, sT0, vT + 2))
    for d in range(1, 8): A("v_xor_b32 v%d, %d, v%d" % (vVA + d, 32 * d, vVA))
    round_block(7)
    swap_red(vM, vT, "v_max_f32", 32); swap_red(vM, vT, "v_max_f32", 16)
    A("v_mul_f32 v%d, s%d, v%d" % (vM, sL2E, vM))
    A("v_lshlrev_b32 v%d, 4, v%d" % (vT + 1, vG4)); A("ds_bpermute_b32 v%d, v%d, v%d" % (vMO, vT + 1, vM))
    vP = vK
    for j in range(32):
        a, b = vS + 2 * j, vS + 2 * j + 1
        A("v_fma_f32 v%d, v%d, s%d, -v%d" % (a, a, sL2E, vM)); A("v_fma_f32 v%d, v%d, s%d, -v%d" % (b, b, sL2E, vM))
        A("v_exp_f32 v%d, v%d" % (a, a)); A("v_exp_f32 v%d, v%d" % (b, b))
        if j >= 1:
            pa, pb = a - 2, b - 2
            if j == 1: A("v_add_f32 v%d, v%d, v%d" % (vLs, pa, pb))
            else: A("v_add_f32 v%d, v%d, v%d" % (vLs, vLs, pa)); A("v_add_f32 v%d, v%d, v%d" % (vLs, vLs, pb))
            A("v_cvt_pk_bf16_f32 v%d, v%d, v%d" % (vP + j - 1, pa, pb))
    A("v_add_f32 v%d, v%d, v%d" % (vLs, vLs, vS + 62)); A("v_add_f32 v%d, v%d, v%d" % (vLs, vLs, vS + 63))
    A("v_cvt_pk_bf16_f32 v%d, v%d, v%d" % (vP + 31, vS + 62, vS + 63))
    swap_red(vLs, vT, "v_add_f32", 32); swap_red(vLs, vT, "v_add_f32", 16)
    A("s_lshl_b32 s%d, s%d, 5" % (sT0, sWAVE)); A("s_add_u32 s%d, s%d, %d" % (sT0, sT0, HI)); A("v_lshlrev_b32 v%d, 3, v%d" % (vT, vC4)); A("v_add_u32 v%d, s%d, v%d" % (vT, sT0, vT))
    A("v_mov_b32 v%d, v%d" % (vT + 2, vM)); A("v_mov_b32 v%d, v%d" % (vT + 3, vLs))
    A("s_mov_b64 exec, 0x1111"); A("ds_write_b64 v%d, %s offset:%d" % (vT, vr(vT + 2, 2), L_ST)); A("s_mov_b64 exec, -1")
    lds_add(vHI, F_ST)
    stamp(5)
    A("s_lshl_b32 s%d, s%d, 11" % (sT0, sWAVE)); A("s_add_u32 s%d, s%d, %d" % (sT0, sT0, HI + L_OW))
    A("v_lshlrev_b32 v%d, 9, v%d" % (vOWA, vG4)); A("v_lshl_add_u32 v%d, v%d, 2, v%d" % (vOWA, vN16, vOWA)); A("v_add_u32 v%d, s%d, v%d" % (vOWA, sT0, vOWA))
    vVB = vK + 32
    def read_v(j):
        base = vVB + 32 * (j & 1)
        for d in range(8):
            for t in range(2):
                A("ds_read_b64_tr_b16 %s, v%d offset:%d" % (vr(base + 4 * d + 2 * t, 2), vVA + d, (j & 1) * 32768 + t * 4096))
    def pv(j, d):
        base = vVB + 32 * (j & 1)
        acc = vr(vS + 4 * d, 4)
        A("v_mfma_f32_16x16x32_bf16 %s, %s, %s, %s" % (acc, vr(vP + 4 * j, 4), vr(base + 4 * d, 4), "0" if j == 0 else acc))
    vS2, vF2 = vS + 32, 31
    def factor(dst, m):
        lds_wait(F_GR, 1)
        A("v_lshl_add_u32 v%d, v%d, 3, v%d" % (vT, vG4, vHI)); A("ds_read_b64 %s, v%d offset:%d" % (vr(vT + 2, 2), vT, L_GS)); A("s_waitcnt lgkmcnt(0)")
        A("v_sub_f32 v%d, v%d, v%d" % (dst, m, vT + 2)); A("v_exp_f32 v%d, v%d" % (dst, dst)); A("v_mul_f32 v%d, v%d, v%d" % (dst, dst, vT + 3))
    def wait_pos(j, out):
        ok = A.label("pok"); again = A.label("pagain"); chk = A.label("pchk")
        A("s_add_u32 s%d, s%d, %d" % (sT0, sWAVE, 32 + 4 * j + 1))
        A("s_mov_b32 s%d, 0" % sSPIN)
        A("s_branch " + chk)
        A(again + ":")
        A("ds_read_b64 %s, v%d offset:%d" % (vr(vT + 2, 2), vHI, F_FULL)); A("s_waitcnt lgkmcnt(0)")
        A("v_readfirstlane_b32 s%d, v%d" % (sFULL, vT + 2)); A("v_readfirstlane_b32 s%d, v%d" % (sPLAN, vT + 3))
        A(chk + ":")
        A("s_cmp_ge_u32 s%d, s%d" % (sFULL, sT0)); A("s_cbranch_scc1 " + ok)
        A("s_sub_u32 s%d, s%d, 0x100" % (sT1, sPLAN)); A("s_cmp_le_u32 s%d, %d" % (sT1, j)); A("s_cbranch_scc1 " + out)
        A("s_add_u32 s%d, s%d, 1" % (sSPIN, sSPIN)); A("s_cmp_lt_u32 s%d, %d" % (sSPIN, lspin)); A("s_cbranch_scc1 " + again)
        A("s_branch " + out)
        A(ok + ":")
    if steal:
        lds_wait(F_AM, 1)
        A("v_lshrrev_b32 v%d, 2, v0" % vT); A("v_lshlrev_b32 v%d, 4, v%d" % (vT, vT))
        A("s_lshl_b32 s%d, s%d, 12" % (sT0, sR)); A("s_lshl_b32 s%d, s%d, 10" % (sT1, sWAVE)); A("s_add_u32 s%d, s%d, s%d" % (sT0, sT0, sT1)); A("s_add_u32 s%d, s%d, 0x%x" % (sT0, sT0, WS_PR))
        A("s_mov_b32 exec_lo, 0x11111111"); A("s_mov_b32 exec_hi, 0x11111111")
        for u in range(3): A("buffer_store_dwordx4 %s, v%d, %s, s%d offen offset:%d sc1" % (vr(vP + 4 * (5 + u), 4), vT, srd("WS"), sT0, 256 * u))
        A("s_mov_b64 exec, 0x1111")
        A("buffer_store_dword v%d, v0, %s, s%d offen offset:768 sc1" % (vM, srd("WS"), sT0))
        A("s_mov_b64 exec, -1")
        A("s_mov_b32 s%d, 0" % sPLAN)
    for j in range(11 if steal else 8):
        if j == 7:
            factor(vF, vMO)
            stamp(6)
        if j < NOWN: wait_block(8 + j)
        else: wait_pos(j, "L_vout%d" % j)
        if j == 7: stamp(7)
        if j >= 8:
            if j == 8:
                A("v_lshrrev_b32 v%d, 2, v0" % (vT + 4)); A("v_lshlrev_b32 v%d, 4, v%d" % (vT + 4, vT + 4))
                A("s_lshl_b32 s%d, s%d, 10" % (sT1, sWAVE)); A("s_add_u32 s%d, s%d, %d" % (sT1, sT1, HI + L_PP)); A("v_add_u32 v%d, s%d, v%d" % (vT + 4, sT1, vT + 4))
                A("v_lshl_add_u32 v%d, v%d, 2, s%d" % (vT + 5, vG4, sT1))
                for u in range(3): A("ds_read_b128 %s, v%d offset:%d" % (vr(vP + 4 * u, 4), vT + 4, 256 * (2 - u)))
                A("ds_read_b32 v%d, v%d offset:768" % (vF2, vT + 5)); A("s_waitcnt lgkmcnt(0)")
                factor(vF2, vF2)
        read_v(j)
        if j % 4 == 1:
            for d in range(8): A("v_add_u32 v%d, 0x10000, v%d" % (vVA + d, vVA + d))
        if j % 4 == 3 and (steal or j < 7):
            for d in range(8): A("v_subrev_u32 v%d, 0x10000, v%d" % (vVA + d, vVA + d))
        for d in range(8):
            A("s_waitcnt lgkmcnt(%d)" % (14 - 2 * d))
            if d == 7 and j < (7 if steal else 4):
                A("s_mov_b64 exec, 1"); A("ds_add_u32 v30, v%d offset:%d" % (vONE, F_FREED)); A("s_mov_b64 exec, -1")
            if j < 8: pv(j, d)
            else:
                acc = vr(vS2 + 4 * d, 4)
                A("v_mfma_f32_16x16x32_bf16 %s, %s, %s, %s" % (acc, vr(vP + 4 * (j - 8), 4), vr(vVB + 32 * (j & 1) + 4 * d, 4), "0" if j == 8 else acc))
    if steal:
        A("L_vout9:"); A("L_vout10:")
        A("s_nop 7")
        for d in range(8): A("v_mul_f32 v%d, v%d, v%d" % (vTMP + d, vF, vS + 4 * d))
        for d in range(8): A("v_fmac_f32 v%d, v%d, v%d" % (vTMP + d, vF2, vS2 + 4 * d))
        A("s_branch L_vsum")
        A("L_vout5:"); A("L_vout6:")
        factor(vF, vMO)
        A("L_vout7:"); A("L_vout8:")
        A("s_nop 7")
    for d in range(8): A("v_mul_f32 v%d, v%d, v%d" % (vTMP + d, vF, vS + 4 * d))
    if steal: A("L_vsum:")
    for d in range(0, 8, 2): A("ds_write2_b32 v%d, v%d, v%d offset0:%d offset1:%d" % (vOWA, vTMP + d, vTMP + d + 1, 16 * d, 16 * d + 16))
    vWOA, vOIR, vWO = 17, 18, vK
    A("v_lshlrev_b32 v%d, 7, v%d" % (vWOA, vC4)); A("v_lshl_add_u32 v%d, v%d, 10, v%d" % (vWOA, vG4, vWOA)); A("v_lshl_add_u32 v%d, v%d, 3, v%d" % (vWOA, vR4, vWOA))
    A("s_lshl_b32 s%d, s%d, 5" % (sT0, sWAVE)); A("s_add_u32 s%d, s%d, %d" % (sT0, sT0, HI + L_WO)); A("v_add_u32 v%d, s%d, v%d" % (vWOA, sT0, vWOA))
    A("s_waitcnt lgkmcnt(0)")
    A("s_barrier")
    stamp(8)
    def wo_reads():
        if wolate: lds_wait(F_WO, 1, sl=0)
        for m in range(4):
            A("ds_read_b64_tr_b16 %s, v%d offset:%d" % (vr(vWO + 4 * m, 2), vWOA, m * 4096))
            A("ds_read_b64_tr_b16 %s, v%d offset:%d" % (vr(vWO + 4 * m + 2, 2), vWOA, m * 4096 + 512))
    def oir_addr():
        A("v_lshrrev_b32 v%d, 1, v%d" % (vT, vN16)); A("v_lshlrev_b32 v%d, 10, v%d" % (vT, vT)); A("v_and_b32 v%d, 1, v0" % (vT + 1)); A("v_lshl_add_u32 v%d, v%d, 8, v%d" % (vT, vT + 1, vT))
        for m in range(4):
            A("v_add_u32 v%d, %d, v%d" % (vT + 1, 4 * m, vG4)); A("v_xor_b32 v%d, v%d, v%d" % (vT + 1, vT + 1, vN16))
            A("v_lshl_add_u32 v%d, v%d, 4, v%d" % (vOIR + m, vT + 1, vT))
        A("v_lshrrev_b32 v%d, 1, v%d" % (22, vN16)); A("v_lshlrev_b32 v22, %d, v22" % (16 + spad)); A("v_lshl_add_u32 v22, v%d, 4, v22" % vG4)
    A("s_cmp_gt_u32 s%d, 1" % sWAVE); A("s_cbranch_scc1 L_gather23")
    A("s_lshl_b32 s%d, s%d, 10" % (sT0, sWAVE)); A("s_add_u32 s%d, s%d, %d" % (sT0, sT0, HI + L_OW)); A("v_add_u32 v%d, s%d, v%d" % (vT, sT0, vL16))
    for w in range(4): A("ds_read_b128 %s, v%d offset:%d" % (vr(vS + 4 * w, 4), vT, w * 2048))
    A("v_lshrrev_b32 v%d, 5, v0" % (vT + 1)); A("v_lshlrev_b32 v%d, 13, v%d" % (vT + 1, vT + 1)); A("v_and_b32 v%d, 31, v0" % (vT + 2)); A("v_lshl_add_u32 v%d, v%d, 3, v%d" % (vT + 1, vT + 2, vT + 1))
    A("s_lshl_b32 s%d, s%d, 14" % (sT0, sWAVE)); A("s_add_u32 s%d, s%d, s%d" % (sT0, sT0, sOPOFF))
    A("s_waitcnt lgkmcnt(2)")
    for i in range(4): A("v_add_f32 v%d, v%d, v%d" % (vS + i, vS + i, vS + 4 + i))
    A("s_waitcnt lgkmcnt(0)")
    for i in range(4): A("v_add_f32 v%d, v%d, v%d" % (vS + 8 + i, vS + 8 + i, vS + 12 + i))
    for i in range(4): A("v_add_f32 v%d, v%d, v%d" % (vS + i, vS + i, vS + 8 + i))
    A("v_cvt_pk_bf16_f32 v%d, v%d, v%d" % (vTMP, vS, vS + 1)); A("v_cvt_pk_bf16_f32 v%d, v%d, v%d" % (vTMP + 1, vS + 2, vS + 3))
    A("buffer_store_dwordx2 %s, v%d, %s, s%d offen %s" % (vr(vTMP, 2), vT + 1, srd("WS"), sT0, ts))
    stamp(11)
    wo_reads(); oir_addr()
    A("s_branch L_barE_c")
    def gather(idx_sgpr, extra):
        vGa = 40
        A("s_lshr_b32 s%d, s%d, 3" % (sT1, sR)); A("s_lshl_b32 s%d, s%d, 13" % (sT1, sT1)); A("s_lshl_b32 s%d, s%d, 11" % (sT0, idx_sgpr))
        A("s_add_u32 s%d, s%d, s%d" % (sT1, sT1, sT0)); A("s_add_u32 s%d, s%d, 0x%x" % (sT1, sT1, WS_OP))
        lds_ = [(lambda: A("buffer_load_dwordx4 %s, v%d, %s, s%d offen %s" % (vr(vGa, 4), vL16, srd("WS"), sT1, tl)), list(range(vGa, vGa + 4))),
                (lambda: A("buffer_load_dwordx4 %s, v%d, %s, s%d offen offset:1024 %s" % (vr(vGa + 4, 4), vL16, srd("WS"), sT1, tl)), list(range(vGa + 4, vGa + 8)))]
        if td1: A("s_sleep %d" % td1)
        if at1:
            A("v_lshlrev_b32 v%d, 3, v0" % (vT + 7))
            apoll(vGa, vT + 7, sT1, 0, 0, first="only")
            extra()
            A("v_lshrrev_b32 v%d, 5, v0" % (vT + 2)); A("s_lshl_b32 s%d, s%d, 2" % (sT2, idx_sgpr)); A("v_add_u32 v%d, s%d, v%d" % (vT + 3, sT2, vT + 2))
            A("v_bfe_u32 v%d, v0, 1, 4" % (vT + 4)); A("v_xor_b32 v%d, v%d, v%d" % (vT + 3, vT + 3, vT + 4))
            A("v_lshlrev_b32 v%d, 8, v%d" % (vT + 2, vT + 2)); A("v_add_u32 v%d, s%d, v%d" % (vT + 2, sT0, vT + 2))
            A("v_and_b32 v%d, 1, v0" % (vT + 4)); A("v_lshl_add_u32 v%d, v%d, 3, v%d" % (vT + 2, vT + 4, vT + 2))
            A("v_lshl_add_u32 v%d, v%d, 4, v%d" % (vT + 5, vT + 3, vT + 2)); A("v_xor_b32 v%d, 32, v%d" % (vT + 6, vT + 5))
            apoll(vGa, vT + 7, sT1, 24, tsleep, first=False)
            stamp(11)
            for k in range(4): A("ds_write_b64 v%d, %s offset:%d" % (vT + 5 + (k >> 1), vr(vGa + 2 * k, 2), 512 * k))
            return
        for i_, _ in lds_: i_()
        A("v_and_b32 v%d, 1, v%d" % (vT + 2, vG4)); A("s_lshl_b32 s%d, s%d, 2" % (sT2, idx_sgpr)); A("v_add_u32 v%d, s%d, v%d" % (vT + 2, sT2, vT + 2))
        A("v_xor_b32 v%d, v%d, v%d" % (vT + 3, vT + 2, vN16)); A("v_xor_b32 v%d, 2, v%d" % (vT + 4, vT + 3))
        A("v_lshlrev_b32 v%d, 8, v%d" % (vT + 2, vG4)); A("v_add_u32 v%d, s%d, v%d" % (vT + 2, sT0, vT + 2))
        A("v_lshl_add_u32 v%d, v%d, 4, v%d" % (vT + 5, vT + 3, vT + 2)); A("v_lshl_add_u32 v%d, v%d, 4, v%d" % (vT + 6, vT + 4, vT + 2))
        extra()
        gpoll(lds_, first=False, sleep=tsleep, P=P1)
        stamp(11)
        A("ds_write_b128 v%d, %s" % (vT + 5, vr(vGa, 4))); A("ds_write_b128 v%d, %s offset:1024" % (vT + 6, vr(vGa + 4, 4)))
    A("L_gather23:")
    A("s_sub_u32 s%d, s%d, 2" % (sMU, sWAVE))
    gather(sMU, lambda: (wo_reads(), oir_addr()))
    A("L_barE_c:")
    A("s_waitcnt lgkmcnt(0)")
    A("s_barrier")
    stamp(9)
    for u in range(2):
        for m in range(4): A("ds_read_b128 %s, v%d offset:%d" % (vr(vS + 16 * u + 4 * m, 4), vOIR + m, u * 512))
    A("s_lshl_b32 s%d, s%d, %d" % (sT0, sWAVE, 11 + spad)); A("s_add_u32 s%d, s%d, s%d" % (sT0, sT0, sSPOFF))
    for u in range(2):
        for m in range(4):
            A("s_waitcnt lgkmcnt(%d)" % (7 - 4 * u - m))
            acc = vr(vTMP + 4 * u, 4)
            A("v_mfma_f32_16x16x32_bf16 %s, %s, %s, %s" % (acc, vr(vWO + 4 * m, 4), vr(vS + 16 * u + 4 * m, 4), "0" if m == 0 else acc))
    for i in range(4): A("v_add_f32 v%d, v%d, v%d" % (vTMP + i, vTMP + i, vTMP + 4 + i))
    for i in range(4): dpp("v_add_f32", vTMP + i, "quad_perm:[1,0,3,2]")
    A("s_mov_b32 exec_lo, 0x55555555"); A("s_mov_b32 exec_hi, 0x55555555")
    stamp(10)
    A("buffer_store_dwordx4 %s, v22, %s, s%d offen %s" % (vr(vTMP, 4), srd("WS"), sT0, ts))
    A("s_mov_b64 exec, -1")
    A("s_branch L_done")

    A("L_loader:")
    if ldprio: A("s_setprio %d" % ldprio)
    vO = 17
    A("v_lshlrev_b32 v%d, 8, v%d" % (vT, vG4))
    for i in range(4):
        A("v_add_u32 v%d, %d, v%d" % (vT + 1, 4 * i, vG4)); A("v_xor_b32 v%d, v%d, v%d" % (vT + 1, vT + 1, vN16)); A("v_lshl_add_u32 v%d, v%d, 4, v%d" % (vO + i, vT + 1, vT))
    for i in range(2):
        A("v_add_u32 v%d, %d, v%d" % (vT + 1, 4 * i, vG4)); A("v_lshlrev_b32 v%d, 1, v%d" % (vT + 1, vT + 1))
        A("v_xor_b32 v%d, v%d, v%d" % (vT + 1, vT + 1, vN16)); A("v_lshl_add_u32 v%d, v%d, 4, v%d" % (vO + 4 + i, vT + 1, vT))
    sG, sSLOT, sFR, sN = 12, 13, 88, 92
    A("s_bfe_u32 s%d, s%d, 0x30002" % (sBASE, sR)); A("s_lshl_b32 s%d, s%d, 23" % (sBASE, sBASE)); A("s_lshr_b32 s%d, s%d, 5" % (sT0, sR)); A("s_lshl_b32 s%d, s%d, 20" % (sT0, sT0))
    A("s_add_u32 s%d, s%d, s%d" % (sBASE, sBASE, sT0)); A("s_and_b32 s%d, s%d, 3" % (sT0, sR)); A("s_lshl_b32 s%d, s%d, 18" % (sT0, sT0)); A("s_add_u32 s%d, s%d, s%d" % (sBASE, sBASE, sT0))
    if rot:
        A("s_mov_b32 s94, s%d" % sBASE)
        A("s_mul_i32 s%d, s%d, %d" % (sT0, sR, rot)); A("s_lshr_b32 s%d, s%d, 5" % (sT1, sR)); A("s_add_u32 s%d, s%d, s%d" % (sT0, sT0, sT1))
        A("s_and_b32 s%d, s%d, 31" % (sT0, sT0)); A("s_lshl_b32 s%d, s%d, 13" % (sT0, sT0)); A("s_add_u32 s%d, s%d, s%d" % (sBASE, sBASE, sT0))
    if Fhi:
        A("s_and_b32 s%d, s2, 7" % sT0); A("s_lshr_b32 s%d, %d, s%d" % (sT0, himask, sT0)); A("s_and_b32 s%d, s%d, 1" % (sT0, sT0)); A("s_cselect_b32 s95, %d, %d" % (Fhi, F))
    A("s_mov_b32 s94, 0"); A("s_mov_b32 s93, 0"); A("s_mov_b32 s%d, s%d" % (sOFF, sBASE)); A("s_mov_b32 s%d, 0" % sG); A("s_mov_b32 s%d, 0" % sSLOT); A("s_mov_b32 s%d, 0" % sN)
    A("s_waitcnt lgkmcnt(0)")
    def publish_full(sgpr):
        A("v_mov_b32 v%d, s%d" % (vT, sgpr)); A("s_mov_b64 exec, 1"); A("ds_max_u32 v%d, v%d offset:%d" % (vHI, vT, F_FULL)); A("s_mov_b64 exec, -1")
    def dma_block(isk):
        Dm = D if isk else DV
        for half in range(2):
            A("s_mov_b32 m0, s%d" % sSLOT)
            if Dm: A("s_waitcnt vmcnt(%d)" % Dm)
            for i in range(4):
                A("buffer_load_dwordx4 v%d, %s, s%d offen offset:%d %s lds" % (vO + i if isk else vO + 4 + (i & 1), srd("K" if isk else "V"), sOFF, i * 1024, pol))
            A("s_add_u32 s%d, s%d, 4096" % (sOFF, sOFF)); A("s_add_u32 s%d, s%d, 4096" % (sSLOT, sSLOT))
            if Dm and (4 * half - Dm) % 8 < 4:
                A("s_add_i32 s%d, s%d, %d" % (sT0, sN, (4 * half - Dm) // 8)); A("s_max_i32 s%d, s%d, 0" % (sT0, sT0)); publish_full(sT0)
        if rot:
            A("s_and_b32 s%d, s%d, 0x3ffff" % (sOFF, sOFF)); A("s_or_b32 s%d, s%d, s94" % (sOFF, sOFF))
        A("s_and_b32 s%d, s%d, 0x1ffff" % (sSLOT, sSLOT)); A("s_add_u32 s%d, s%d, 1" % (sN, sN))
    if ldst == 2: stamp(1)
    for _ in range(pre): dma_block(True)
    A("s_barrier")
    if ldst == 2: stamp(2)
    for _ in range(4 - pre): dma_block(True)
    A("s_mov_b32 s%d, 1" % sG)
    if ldst == 2: stamp(3)
    def read_freed():
        A("ds_read_b128 %s, v%d offset:%d" % (vr(vT + 4, 4), vHI, F_FREED)); A("s_waitcnt lgkmcnt(0)")
        for c in range(4): A("v_readfirstlane_b32 s%d, v%d" % (sFR + c, vT + 4 + c))
    for isk, last in ((True, 8), (False, 19 if steal else 16)):
        loop = "L_ld_k" if isk else "L_ld_v"
        if not isk: A("s_mov_b32 s%d, s%d" % (sOFF, sBASE))
        A(loop + ":")
        for g_, reg in ((p_a, 16), (p_b, 18)):
            if g_ > 0 and g_ < 16 and (g_ < 8) == isk:
                sk = A.label("st"); A("s_cmp_lg_u32 s%d, %d" % (sG, g_)); A("s_cbranch_scc1 " + sk); A("s_memrealtime s[%d:%d]" % (reg, reg + 1)); A(sk + ":")
        if ldst == 1:
            for k, g in enumerate((2, 3, 4, 5, 6, 7) if isk else (8, 10, 12, 14)):
                sk = A.label("st"); A("s_cmp_lg_u32 s%d, %d" % (sG, g)); A("s_cbranch_scc1 " + sk); stamp(k + 1 if isk else k + 7); A(sk + ":")
        if steal and not isk:
            go = A.label("pgo"); again = A.label("pagain")
            A("s_cmp_lt_u32 s%d, %d" % (sG, 8 + NOWN)); A("s_cbranch_scc1 " + go)
            A("s_mov_b32 s%d, 0" % sSPIN); A("s_sub_u32 s%d, s%d, 8" % (sT1, sG))
            if ldst: A("s_memrealtime s[14:15]")
            A(again + ":")
            A("ds_read_b32 v%d, v%d offset:%d" % (vPOLL, vHI, F_PLAN)); A("s_waitcnt lgkmcnt(0)"); A("v_readfirstlane_b32 s%d, v%d" % (sT0, vPOLL))
            A("s_and_b32 s%d, s%d, 0xff" % (sT2, sT0)); A("s_cmp_gt_u32 s%d, s%d" % (sT2, sT1)); A("s_cbranch_scc1 L_granted")
            A("s_cmp_ge_u32 s%d, 0x100" % sT0); A("s_cbranch_scc1 L_ld_end")
            for k in range(F - 1, -1, -1):
                A("s_cmp_eq_u32 s%d, %d" % (sSPIN, F - 1 - k)); nx = A.label("nx"); A("s_cbranch_scc0 " + nx)
                A("s_sub_u32 s%d, s%d, %d" % (sT0, sN, k)); A("s_waitcnt vmcnt(%d)" % (8 * k)); publish_full(sT0); A(nx + ":")
            if ldst: A("s_add_u32 s93, s93, 1")
            A("s_add_u32 s%d, s%d, 1" % (sSPIN, sSPIN)); A("s_cmp_lt_u32 s%d, %d" % (sSPIN, lspin)); A("s_cbranch_scc1 " + again)
            A("s_branch L_ld_end")
            A("L_granted:")
            if ldst:
                A("s_memrealtime s[36:37]"); A("s_waitcnt lgkmcnt(0)"); A("s_sub_u32 s36, s36, s14"); A("s_add_u32 s94, s94, s36")
            A("s_cmp_lt_u32 s%d, 16" % sG); A("s_cbranch_scc1 " + go)
            A("s_sub_u32 s%d, 23, s%d" % (sT0, sG)); A("s_lshl_b32 s%d, s%d, 15" % (sT0, sT0)); A("s_xor_b32 s%d, s%d, 0x80000" % (sOFF, sBASE)); A("s_add_u32 s%d, s%d, s%d" % (sOFF, sOFF, sT0))
            A(go + ":")
        read_freed()
        A("s_sub_i32 s%d, s%d, 2" % (sT1, sG))
        if Fhi and hiend < 16:
            A("s_cmp_ge_u32 s%d, %d" % (sG, hiend)); A("s_cselect_b32 s95, %d, s95" % F)
        for c in range(4):
            go = A.label("go"); sl = A.label("slow")
            A("s_cmp_ge_i32 s%d, s%d" % (sFR + c, sT1)); A("s_cbranch_scc1 " + go)
            A("s_waitcnt vmcnt(0)"); publish_full(sN)
            if ldst: A("s_add_u32 s93, s93, 100")
            A("s_mov_b32 s%d, 0" % sSPIN)
            A(sl + ":")
            read_freed()
            A("s_cmp_ge_i32 s%d, s%d" % (sFR + c, sT1)); A("s_cbranch_scc1 " + go)
            A("s_add_u32 s%d, s%d, 1" % (sSPIN, sSPIN)); A("s_cmp_lt_u32 s%d, %d" % (sSPIN, lspin)); A("s_cbranch_scc1 " + sl)
            A(go + ":")
            dma_block(isk)
            if D: pass
            elif bal == 1:
                hi = A.label("hi")
                A("ds_read_b32 v%d, v%d offset:%d" % (vPOLL, vHI, F_MODE))
                A("s_sub_i32 s%d, s%d, %d" % (sT0, sN, F))
                A("s_waitcnt vmcnt(%d) lgkmcnt(0)" % (8 * F)); A("v_readfirstlane_b32 s%d, v%d" % (sT2, vPOLL))
                A("s_cmp_eq_u32 s%d, 0" % sT2); A("s_cbranch_scc1 " + hi)
                publish_full(sT0)
                if ldst: A("s_add_u32 s94, s94, 100")
                A("s_sub_i32 s%d, s%d, %d" % (sT0, sN, (Flo + 7) // 8 if Flo > 7 else Flo))
                A("s_waitcnt vmcnt(%d)" % (Flo if Flo > 7 else 8 * Flo)); A(hi + ":"); publish_full(sT0)
            elif Fhi:
                hi = A.label("hi")
                A("s_sub_i32 s%d, s%d, s95" % (sT0, sN)); A("s_max_i32 s%d, s%d, 0" % (sT0, sT0))
                A("s_waitcnt vmcnt(%d)" % (8 * Fhi)); A("s_cmp_eq_u32 s95, %d" % Fhi); A("s_cbranch_scc1 " + hi)
                A("s_waitcnt vmcnt(%d)" % (8 * F)); A(hi + ":"); publish_full(sT0)
            else:
                A("s_sub_i32 s%d, s%d, %d" % (sT0, sN, F))
                if F > 5: A("s_max_i32 s%d, s%d, 0" % (sT0, sT0))
                A("s_waitcnt vmcnt(%d)" % (8 * F)); publish_full(sT0)
        if stamps:
            pass
        A("s_add_u32 s%d, s%d, 1" % (sG, sG)); A("s_cmp_lt_u32 s%d, %d" % (sG, last)); A("s_cbranch_scc1 " + loop)
        if not ldst: stamp(1 if isk else 2)
    def wo_dma():
        A("v_lshrrev_b32 v%d, 3, v0" % (vT + 4)); A("v_lshlrev_b32 v%d, 10, v%d" % (vT + 4, vT + 4)); A("v_and_b32 v%d, 7, v0" % (vT + 5)); A("v_lshl_add_u32 v%d, v%d, 4, v%d" % (vT + 4, vT + 5, vT + 4))
        A("s_lshr_b32 s%d, s%d, 3" % (sT0, sR)); A("s_lshl_b32 s%d, s%d, 17" % (sT0, sT0)); A("s_and_b32 s%d, s%d, 7" % (sT1, sR)); A("s_lshl_b32 s%d, s%d, 7" % (sT1, sT1))
        A("s_add_u32 s%d, s%d, s%d" % (sT0, sT0, sT1))
        for a in range(16):
            A("s_mov_b32 m0, %d" % (HI + L_WO + a * 1024))
            A("buffer_load_dwordx4 v%d, %s, s%d offen %s lds" % (vT + 4, srd("WO"), sT0, polo))
            if a < 15: A("s_add_u32 s%d, s%d, 0x2000" % (sT0, sT0))
    if steal:
        A("L_ld_end:")
        A("s_mov_b64 exec, 1"); A("ds_write_b32 v%d, v%d offset:%d" % (vHI, vONE, F_LI)); A("s_mov_b64 exec, -1")
    if wolate == 1: wo_dma()
    for k in range((DV + 4 + 7) // 8 - 1 if D else max(F, Fhi) - 1, -1, -1):
        A("s_sub_u32 s%d, s%d, %d" % (sT0, sN, k)); A("s_waitcnt vmcnt(%d)" % (8 * k + (16 if wolate == 1 else 0))); publish_full(sT0)
    if wolate == 1:
        if ldst: stamp(11)
        A("s_waitcnt vmcnt(0)"); A("s_mov_b64 exec, 1"); A("ds_write_b32 v%d, v%d offset:%d" % (vHI, vONE, F_WO)); A("s_mov_b64 exec, -1")
    if ldst:
        if wolate == 1: stamp(12)
        else:
            stamp(11)
            A("s_waitcnt lgkmcnt(0)"); A("s_mul_i32 s%d, s%d, 25" % (sT0, sN)); A("s_add_u32 s40, s16, s%d" % sT0); A("s_addc_u32 s41, s17, 0")
            if steal: A("s_add_u32 s36, s16, s94"); A("s_addc_u32 s37, s17, 0")
            if bal: A("s_add_u32 s40, s16, s94"); A("s_addc_u32 s41, s17, 0")
    else: stamp(3)
    if p_b >= 0:
        if p_b == 16: A("s_memrealtime s[18:19]")
        A("s_waitcnt lgkmcnt(0)"); A("s_sub_u32 s18, s18, s16"); A("v_mov_b32 v8, s18"); A("s_mov_b64 exec, 1"); A("buffer_atomic_add v8, off, %s, 0 offset:4" % srd("DBG")); A("s_mov_b64 exec, -1")
    if pspan:
        A("s_memrealtime s[18:19]"); A("s_waitcnt lgkmcnt(0)")
        if pspan in (3, 4): A("s_mov_b32 s18, s16")
        if pm: A("s_and_b32 s6, s2, %d" % pm); A("s_cmp_eq_u32 s6, %d" % pval); A("s_cselect_b32 s18, s18, s16")
        A("s_not_b32 s16, s16"); A("v_mov_b32 v8, s18"); A("v_mov_b32 v9, s16"); A("s_mov_b64 exec, 1")
        A("buffer_atomic_%s v8, off, %s, 0 offset:4" % ("add" if pspan in (4, 5) else "umax", srd("DBG"))); A("buffer_atomic_umax v9, off, %s, 0 offset:8" % srd("DBG")); A("s_mov_b64 exec, -1")
    if pgrp:
        A("s_memrealtime s[18:19]")
        if pgrp == 1: A("s_and_b32 s6, s2, 7")
        elif pgrp == 2: A("s_bfe_u32 s6, s%d, 0x30002" % sR)
        elif pgrp == 3: A("s_lshr_b32 s6, s%d, 5" % sR)
        else: A("s_and_b32 s6, s%d, 3" % sR); A("s_lshr_b32 s7, s2, 7"); A("s_lshl_b32 s7, s7, 2"); A("s_add_u32 s6, s6, s7")
        A("s_lshl_b32 s6, s6, 5")
        A("s_waitcnt lgkmcnt(0)"); A("v_mov_b32 v8, s18"); A("s_mov_b64 exec, 1"); A("buffer_atomic_%s v8, off, %s, s6 offset:4" % ("add" if pat >= 12 else "umax", srd("DBG"))); A("s_mov_b64 exec, -1")
    if probe:
        A("s_memrealtime s[20:21]"); A("s_waitcnt lgkmcnt(0)")
        if pstart: A("s_mov_b32 s20, s16")
        A("s_and_b32 s6, s2, 7"); A("s_lshr_b32 s6, %d, s6" % probe); A("s_and_b32 s6, s6, 1"); A("s_lshl_b32 s6, s6, 2"); A("s_add_u32 s6, s6, 4")
        A("s_waitcnt lgkmcnt(0)"); A("v_mov_b32 v8, s20"); A("s_mov_b64 exec, 1"); A("buffer_atomic_add v8, off, %s, s6" % srd("DBG")); A("s_mov_b64 exec, -1")
    A("s_waitcnt lgkmcnt(0)")
    A("s_branch L_done")

    def slot_addrs():
        A("v_lshlrev_b32 v28, 5, v0")
        A("s_and_b32 s%d, s%d, 3" % (sT0, sR)); A("s_lshl_b32 s%d, s%d, 3" % (sT0, sT0)); A("s_add_u32 s%d, s%d, s%d" % (sMU, sT0, sSTOFF))
    A("L_comm:")
    vZ = 20
    for i in range(4): A("v_mov_b32 v%d, 0" % (vZ + i))
    A("v_lshl_add_u32 v%d, v0, 2, v%d" % (vT, vHI))
    A("s_mov_b64 exec, 0xffff"); A("ds_write_b32 v%d, v%d offset:%d" % (vT, vZ, L_FLG)); A("s_mov_b64 exec, -1")
    slot_addrs()
    sEP = 4
    def epoch():
        A("s_waitcnt vmcnt(0)")
        A("v_readfirstlane_b32 s%d, v30" % sEP); A("v_readfirstlane_b32 s%d, v31" % (sEP + 1))
        A("s_add_u32 s%d, s%d, 0x%x" % (sEP, sEP, EP_STEP & 0xffffffff)); A("s_addc_u32 s%d, s%d, 0x%x" % (sEP + 1, sEP + 1, EP_STEP >> 32))
    A("s_waitcnt lgkmcnt(0)")
    A("buffer_load_dwordx2 v[30:31], off, %s, 0 offset:%d sc1" % (srd("WS"), WS_EP))
    A("s_barrier")
    A("v_add_u32 v%d, v%d, v%d" % (vT, vHI, vL16))
    A("v_and_b32 v29, 7, v0"); A("v_lshlrev_b32 v29, 14, v29"); A("v_lshl_add_u32 v29, v%d, 4, v29" % vG4)
    A("s_lshl_b32 s%d, s%d, 6" % (sT2, sRQ)); A("s_add_u32 s%d, s%d, 0x%x" % (sT2, sT2, WS_Q))
    A("s_bfe_u32 s%d, s%d, 0x30002" % (sT0, sR)); A("s_lshl_b32 s%d, s%d, 14" % (sT0, sT0)); A("s_lshr_b32 s%d, s%d, 5" % (sT1, sR)); A("s_lshl_b32 s%d, s%d, 11" % (sT1, sT1))
    A("s_add_u32 s%d, s%d, s%d" % (sT0, sT0, sT1)); A("s_add_u32 s%d, s%d, 0x%x" % (sT0, sT0, WS_Q))
    A("v_lshl_add_u32 v27, v0, 3, v%d" % vHI)
    epoch()
    A("v_mov_b32 v38, s%d" % sEP); A("v_mov_b32 v39, s%d" % (sEP + 1))
    stamp(1)
    lds_wait(F_QP, 4)
    for w in range(4): A("ds_read_b128 %s, v%d offset:%d" % (vr(40 + 4 * w, 4), vT, L_QP + w * 1024))
    A("s_waitcnt lgkmcnt(0)")
    for i in range(4): A("v_add_f32 v%d, v%d, v%d" % (40 + i, 40 + i, 44 + i)); A("v_add_f32 v%d, v%d, v%d" % (48 + i, 48 + i, 52 + i))
    for i in range(4): A("v_add_f32 v%d, v%d, v%d" % (40 + i, 40 + i, 48 + i))
    A("v_cvt_pk_bf16_f32 v36, v40, v41"); A("v_cvt_pk_bf16_f32 v37, v42, v43")
    A("s_mov_b32 exec_lo, 0x00ff00ff"); A("s_mov_b32 exec_hi, 0x00ff00ff")
    A("buffer_store_dwordx4 v[36:39], v29, %s, s%d offen sc1" % (srd("WS"), sT2))
    A("s_mov_b64 exec, -1")
    stamp(2)
    if qdelay: A("s_sleep %d" % qdelay)
    if qtrig: lds_wait(F_FULL, qtrig, sl=4)
    gpoll([(lambda: A("buffer_load_dwordx4 v[32:35], v%d, %s, s%d offen sc1" % (vL16, srd("WS"), sT0)), [32, 33, 34, 35]),
           (lambda: A("buffer_load_dwordx4 v[40:43], v%d, %s, s%d offen offset:1024 sc1" % (vL16, srd("WS"), sT0)), [40, 41, 42, 43])], sleep=qsleep, tag="s[%d:%d]" % (sEP, sEP + 1))
    A("ds_write_b64 v27, v[32:33] offset:%d" % L_QB); A("ds_write_b64 v27, v[40:41] offset:%d" % (L_QB + 512))
    lds_add(vHI, F_QR)
    stamp(4)
    def all_marked():
        A("v_lshlrev_b32 v%d, 5, v0" % (vT + 3))
        word_poll("buffer_load_dword v32, v%d, %s, 0 offen sc1" % (vT + 3, srd("DBG")), 32, "0xff", "v_cmp_gt_u32 vcc, 32, v%d", fsleep)
        stamp(3)
    all_marked()
    lds_add(vHI, F_AM)
    A("v_lshlrev_b32 v%d, 3, v%d" % (vT + 1, vN16)); A("v_add_u32 v%d, v%d, v%d" % (vT + 2, vHI, vT + 1))
    lds_wait(F_ST, 4)
    A("ds_read_b64 v[32:33], v%d offset:%d" % (vT + 2, L_ST)); A("s_waitcnt lgkmcnt(0)")
    def combine(modes):
        A("v_mov_b32 v34, v32")
        for m in modes: dpp("v_max_f32", 34, m)
        A("v_sub_f32 v32, v32, v34"); A("v_exp_f32 v32, v32"); A("v_mul_f32 v35, v32, v33")
        for m in modes: dpp("v_add_f32", 35, m)
    combine(("row_ror:4", "row_ror:8"))
    A("s_mov_b64 exec, 0xf"); A("buffer_store_dwordx2 v[34:35], v28, %s, s%d offen sc1" % (srd("WS"), sMU)); A("s_mov_b64 exec, -1")
    stamp(5)
    if sdelay: A("s_sleep %d" % sdelay)
    if strig:
        lds_wait(F_FULL, strig, sl=8)
    gpoll([(lambda: A("buffer_load_dwordx2 v[32:33], v%d, %s, s%d offen sc1" % (vT + 1, srd("WS"), sSTOFF)), [32, 33])], sleep=ssleep)
    combine(("quad_perm:[1,0,3,2]", "quad_perm:[2,3,0,1]"))
    A("v_rcp_f32 v35, v35"); A("v_lshl_add_u32 v%d, v%d, 3, v%d" % (vT + 2, vC4, vHI))
    A("s_mov_b64 exec, 0x1111"); A("ds_write_b64 v%d, v[34:35] offset:%d" % (vT + 2, L_GS)); A("s_mov_b64 exec, -1")
    lds_add(vHI, F_GR)
    stamp(6)
    A("s_mov_b32 s%d, 2" % sMU)
    A("L_gather56:")
    A("s_waitcnt lgkmcnt(0)")
    A("s_barrier")
    stamp(8)
    gather(sMU, lambda: None)
    A("s_waitcnt lgkmcnt(0)")
    A("s_barrier")
    stamp(9)
    A("s_branch L_done")

    A("L_mlp:")
    vW, vU = 32, 64
    def pg_addr(line, word):
        A("s_lshr_b32 s%d, s2, 3" % line); A("s_lshl_b32 s%d, s%d, 8" % (line, line)); A("s_add_u32 s%d, s%d, 0x%x" % (line, line, WS_PG))
        A("s_and_b32 s%d, s2, 7" % word); A("s_lshl_b32 s%d, s%d, 2" % (word, word)); A("s_add_u32 s%d, s%d, s%d" % (word, word, line))
    def clean():
        A("s_cmp_lg_u32 s%d, 7" % sWAVE); A("s_cbranch_scc1 L_noclean")
        for i in range(4): A("v_mov_b32 v%d, -1" % (60 + i))
        slot_addrs()
        A("v_lshlrev_b32 v%d, 13, v%d" % (59, vG4)); A("v_lshl_add_u32 v%d, v%d, 4, v%d" % (59, vN16, 59))
        A("s_lshl_b32 s%d, s%d, %d" % (sT1, sR, 11 + spad)); A("s_add_u32 s%d, s%d, 0x%x" % (sT1, sT1, WS_SP))
        A("v_lshrrev_b32 v29, 2, v0"); A("v_lshlrev_b32 v29, %d, v29" % (6 + spad)); A("v_lshl_add_u32 v29, v%d, 4, v29" % vR4)
        A("s_waitcnt lgkmcnt(0)")
        A("buffer_load_dwordx2 v[30:31], off, %s, 0 offset:%d sc1" % (srd("WS"), WS_EP))
        A("s_mov_b64 exec, 0xf"); A("buffer_store_dwordx2 v[60:61], v28, %s, s%d offen sc1" % (srd("WS"), sMU)); A("s_mov_b64 exec, -1")
        A("buffer_store_dwordx4 v[60:63], v%d, %s, s%d offen sc1" % (59, srd("WS"), sOPOFF))
        A("buffer_store_dwordx4 v[60:63], v29, %s, s%d offen sc1" % (srd("WS"), sT1))
        A("buffer_store_dwordx4 v[60:63], v29, %s, s%d offen offset:%d sc1" % (srd("WS"), sT1, 1024 << spad))
        if bal:
            pg_addr(sT1, sT3)
            A("s_mov_b64 exec, 1"); A("buffer_store_dword v60, off, %s, s%d sc1" % (srd("WS"), sT3)); A("s_mov_b64 exec, -1")
        if steal:
            A("s_lshl_b32 s%d, s%d, 12" % (sT1, sR)); A("s_add_u32 s%d, s%d, 0x%x" % (sT1, sT1, WS_PR))
            for k in range(4): A("buffer_store_dwordx4 v[60:63], v%d, %s, s%d offen offset:%d sc1" % (vL16, srd("WS"), sT1, 1024 * k))
            A("s_lshl_b32 s%d, s%d, 7" % (sT1, sR)); A("s_add_u32 s%d, s%d, 0x%x" % (sT1, sT1, WS_CW))
            A("s_mov_b64 exec, 1"); A("buffer_store_dword v60, off, %s, s%d sc1" % (srd("WS"), sT1)); A("s_mov_b64 exec, -1")
        A("L_noclean:")
    def arrive(cnt, lbl):
        A("s_cmp_lg_u32 s%d, 7" % sWAVE); A("s_cbranch_scc1 " + lbl)
        A("s_lshr_b32 s%d, s%d, 5" % (sT3, sR)); A("s_lshl_b32 s%d, s%d, 5" % (sT3, sT3))
        A("s_mov_b64 exec, 1")
        A("s_waitcnt vmcnt(%d)" % cnt)
        A("buffer_atomic_add v%d, off, %s, s%d" % (vONE, srd("DBG"), sT3))
        A("s_mov_b64 exec, -1")
        stamp(4)
        A(lbl + ":")
    if not cllate: clean()
    A("s_sub_u32 s%d, s%d, 6" % (sMB, sWAVE))
    A("v_mul_u32_u24 v%d, 12, v0" % vT); A("s_mul_i32 s%d, s%d, 1792" % (sT1, sMB))
    A("s_waitcnt lgkmcnt(0)")
    A("s_load_dword s%d, s[%d:%d], 0" % (sB2, sB2P, sB2P + 1))
    A("s_barrier")
    for k, n in enumerate(("W1", "B1", "W2")):
        A("buffer_load_dwordx4 %s, v%d, %s, s%d offen" % (vr(vW + 8 * k, 4), vL16, srd(n), sT1))
        A("buffer_load_dwordx3 %s, v%d, %s, s%d offen offset:1024" % (vr(vW + 8 * k + 4, 3), vT, srd(n), sT1))
    if not cllate: arrive(6, "L_noflag")
    A("s_lshr_b32 s%d, s%d, 5" % (sT0, sR)); A("s_mul_i32 s%d, s%d, %d" % (sT0, sT0, XN_STRIDE)); A("s_add_u32 s%d, s%d, %d" % (sT0, sT0, HI)); A("v_add_u32 v%d, s%d, v%d" % (vT + 1, sT0, vL16))
    A("s_lshl_b32 s%d, s%d, 13" % (sT2, sMB)); A("s_add_u32 s%d, s%d, %d" % (sT2, sT2, HI + L_WO)); A("v_add_u32 v%d, s%d, v%d" % (vT + 2, sT2, vL16))
    A("s_and_b32 s%d, s%d, 31" % (sT0, sR)); A("s_lshl_b32 s%d, s%d, 5" % (sT0, sT0)); A("s_add_u32 s%d, s%d, s%d" % (sT0, sT0, sT2))
    A("v_lshlrev_b32 v%d, 1, v%d" % (vT + 3, vN16)); A("v_add_u32 v%d, s%d, v%d" % (vT + 3, sT0, vT + 3))
    lds_wait(F_XN, 4)
    if cllate: clean()
    vXm = 112
    A("ds_read_b128 %s, v%d offset:%d" % (vr(vXm, 4), vT + 1, L_XN)); A("s_waitcnt lgkmcnt(0)")
    layernorm(vXm, 4, vXm + 4, vXm + 12, vXm + 20, 1)
    A("ds_write_b128 v%d, %s" % (vT + 2, vr(vXm, 4)))
    vH = 24
    A("ds_read_u16 v%d, v%d" % (vH, vT + 3))
    A("v_lshrrev_b32 v%d, 3, v0" % (vT + 4)); A("v_lshlrev_b32 v%d, 10, v%d" % (vT + 4, vT + 4)); A("v_and_b32 v%d, 7, v0" % (vT + 5)); A("v_lshl_add_u32 v%d, v%d, 4, v%d" % (vT + 4, vT + 5, vT + 4))
    A("s_lshr_b32 s%d, s%d, 3" % (sT0, sR)); A("s_lshl_b32 s%d, s%d, 17" % (sT0, sT0)); A("s_and_b32 s%d, s%d, 7" % (sT1, sR)); A("s_lshl_b32 s%d, s%d, 7" % (sT1, sT1))
    A("s_add_u32 s%d, s%d, s%d" % (sT0, sT0, sT1)); A("s_lshl_b32 s%d, s%d, 16" % (sT1, sMB)); A("s_add_u32 s%d, s%d, s%d" % (sT0, sT0, sT1))
    A("s_waitcnt vmcnt(0) lgkmcnt(0)")
    if cllate: arrive(0, "L_noflag")
    for a in range(8):
        A("s_add_u32 m0, s%d, %d" % (sT2, a * 1024))
        if 'o' not in abl and not wolate: A("buffer_load_dwordx4 v%d, %s, s%d offen %s lds" % (vT + 4, srd("WO"), sT0, polo))
        if a < 7: A("s_add_u32 s%d, s%d, 0x2000" % (sT0, sT0))
    stamp(1)
    A("v_lshlrev_b32 v%d, 16, v%d" % (vH, vH))
    for k in range(3):
        for i in range(7): unpack(vU + 14 * k + 2 * i, vU + 14 * k + 2 * i + 1, vW + 8 * k + i)
    vC0, vACC, U, T_ = 25, 26, 112, 128
    A("v_mov_b32 v%d, s%d" % (vC0, sC0))
    A("s_lshl_b32 s%d, s%d, 6" % (sT0, sMB)); A("s_add_u32 s%d, s%d, %d" % (sT0, sT0, HI + L_YP)); A("v_mov_b32 v27, s%d" % sT0)
    A("s_mov_b32 s%d, 0" % sT1)
    A("s_nop 3")
    A("L_mlp_loop:")
    A("v_readlane_b32 s%d, v%d, s%d" % (sMU, vH, sT1))
    for t in range(14): A("v_fma_f32 v%d, s%d, v%d, v%d" % (U + t, sMU, vU + t, vU + 14 + t))
    for t in range(14): A("v_mul_f32 v%d, v%d, v%d" % (T_ + t, U + t, U + t))
    for t in range(14): A("v_fma_f32 v%d, v%d, s%d, v%d" % (T_ + t, T_ + t, sC1, vC0))
    for t in range(14): A("v_mul_f32 v%d, v%d, v%d" % (T_ + t, T_ + t, U + t))
    for t in range(14):
        A("v_exp_f32 v%d, v%d" % (T_ + t, T_ + t)); A("v_mul_f32 v%d, v%d, v%d" % (U + t, U + t, vU + 28 + t))
    for t in range(14): A("v_add_f32 v%d, 1.0, v%d" % (T_ + t, T_ + t))
    for t in range(14): A("v_rcp_f32 v%d, v%d" % (T_ + t, T_ + t))
    A("v_mul_f32 v%d, v%d, v%d" % (vACC, U, T_)); A("v_mul_f32 v%d, v%d, v%d" % (U, U + 1, T_ + 1))
    for t in range(2, 14): A("v_fmac_f32 v%d, v%d, v%d" % (vACC if t & 1 else U, U + t, T_ + t))
    A("v_add_f32 v%d, v%d, v%d" % (vACC, vACC, U))
    red16(vACC, "v_add_f32"); dpp("v_add_f32", vACC, "row_bcast:15", "0xa"); dpp("v_add_f32", vACC, "row_bcast:31", "0xc")
    A("s_mov_b32 exec_lo, 0"); A("s_mov_b32 exec_hi, 0x80000000")
    A("ds_write_b32 v27, v%d" % vACC); A("v_add_u32 v27, 4, v27")
    A("s_mov_b64 exec, -1")
    A("s_add_u32 s%d, s%d, 1" % (sT1, sT1)); A("s_cmp_lt_u32 s%d, 16" % sT1); A("s_cbranch_scc1 L_mlp_loop")
    stamp(2)
    A("s_waitcnt vmcnt(0)")
    A("s_mov_b32 s%d, 3" % sMU)
    if steal:
        A("s_cmp_eq_u32 s%d, 7" % sWAVE); A("s_cbranch_scc1 L_final")
        lds_wait(F_AM, 1, sl=8)
        sCW = 4
        A("s_lshl_b32 s%d, s%d, 7" % (sCW, sR)); A("s_add_u32 s%d, s%d, 0x%x" % (sCW, sCW, WS_CW))
        def set_plan(val):
            A("v_mov_b32 v%d, %s" % (vT, val)); A("s_mov_b64 exec, 1"); A("ds_write_b32 v%d, v%d offset:%d" % (vHI, vT, F_PLAN)); A("s_mov_b64 exec, -1")
        for k in range(5, 11):
            if k == 8:
                A("s_xor_b32 s%d, s%d, 0x100" % (sCW, sCW))
            if k == 8:
                A("s_xor_b32 s%d, s%d, 2" % (sT1, sR)); A("s_lshl_b32 s%d, s%d, 12" % (sT1, sT1)); A("s_add_u32 s%d, s%d, 0x%x" % (sT1, sT1, WS_PR))
                A("v_add_u32 v%d, v%d, v%d" % (vT + 1, vHI, vL16))
                rec = [((lambda q=q: A("buffer_load_dwordx4 %s, v%d, %s, s%d offen offset:%d sc1" % (vr(36 + 4 * q, 4), vL16, srd("WS"), sT1, 1024 * q))), list(range(36 + 4 * q, 40 + 4 * q))) for q in range(4)]
                lds_wait(F_FULL, rtrig, sl=2)
                A("s_mov_b32 exec_hi, 0x1ffff")
                for i_, _ in rec: i_()
                A("s_mov_b64 exec, -1")
            lds_wait(F_FULL, 4 * k + cth + (bias if k >= 8 else 0), sl=2)
            A("v_mov_b32 v32, 1"); A("s_mov_b64 exec, 1")
            A("buffer_atomic_add v32, off, %s, s%d sc0" % (srd("WS"), sCW))
            A("s_mov_b64 exec, -1")
            A("s_mov_b32 s%d, 0x%x" % (sT2, 0x100 + k))
            A("s_waitcnt vmcnt(0)")
            A("v_readfirstlane_b32 s%d, v32" % sT0); A("s_add_u32 s%d, s%d, 1" % (sT0, sT0))
            if stamps and k < 9: stamp(k - 2)
            A("s_cmp_ge_u32 s%d, 3" % sT0); A("s_cbranch_scc1 L_close")
            if k == 8:
                A("s_mov_b32 exec_hi, 0x1ffff")
                gpoll(rec[:2], first=False, sleep=8, full="PARTIAL"); gpoll(rec[2:], first=False, sleep=8, full="PARTIAL")
                for q in range(4): A("ds_write_b128 v%d, %s offset:%d" % (vT + 1, vr(36 + 4 * q, 4), L_PP + 1024 * q))
                A("s_mov_b64 exec, -1")
                A("s_waitcnt lgkmcnt(0)")
            set_plan("%d" % (k + 1))
        A("s_mov_b32 s%d, 0x%x" % (sT2, 0x100 + 11))
        A("L_close:")
        set_plan("s%d" % sT2)
        A("s_branch L_gather56")
        A("L_final:")
    elif bal >= 2:
        A("s_cmp_eq_u32 s%d, 7" % sWAVE); A("s_cbranch_scc1 L_final")
        lds_wait(F_AM, 1, sl=8)
        pg_addr(4, 5)
        if bal == 3: A("s_lshl_b32 s4, s2, 8"); A("s_add_u32 s4, s4, 0x%x" % (WS_PG + 0x4000))
        for k in range(bmin):
            lds_wait(F_FULL, bthr + bper * k, sl=4)
            A("v_mov_b32 v%d, 1" % (32 + k)); A("s_mov_b64 exec, 1")
            if bal == 4: A("buffer_load_dword v%d, off, %s, s4 sc1" % (32 + k, srd("WS")))
            elif bal == 5: A("buffer_store_dword v%d, off, %s, s5 sc1" % (32 + k, srd("WS")))
            else: A("buffer_atomic_add v%d, off, %s, s4 sc0" % (32 + k, srd("WS")))
            A("s_mov_b64 exec, -1")
        A("s_waitcnt vmcnt(0)")
        A("s_branch L_gather56")
        A("L_final:")
    elif bal:
        A("s_cmp_eq_u32 s%d, 7" % sWAVE); A("s_cbranch_scc1 L_final")
        lds_wait(F_AM, 1, sl=8)
        pg_addr(4, 5)
        A("s_and_b32 s12, s2, 7"); A("v_lshlrev_b32 v33, 2, v0"); A("s_mov_b32 s13, 0")
        A("L_bal:")
        A("s_mov_b64 exec, 0xff"); A("buffer_load_dword v32, v33, %s, s4 offen sc1" % srd("WS"))
        A("s_mov_b64 exec, 1")
        A("ds_read_b32 v34, v%d offset:%d" % (vHI, F_FULL)); A("s_waitcnt lgkmcnt(0)")
        A("buffer_store_dword v34, off, %s, s5 sc1" % srd("WS"))
        A("s_mov_b64 exec, -1")
        A("v_readfirstlane_b32 s%d, v34" % sT0)
        A("s_cmp_ge_u32 s%d, %d" % (sT0, bstop)); A("s_cbranch_scc1 L_balend")
        A("s_waitcnt vmcnt(1)")
        A("v_readlane_b32 s%d, v32, s12" % sT1)
        A("s_mov_b64 exec, 0xff")
        A("v_cmp_eq_u32 vcc, -1, v32")
        if bmin:
            for m in QUADS[:3]: dpp("v_min_u32", 32, m)
        else:
            for m in QUADS[:3]: dpp("v_add_u32", 32, m)
        A("s_mov_b64 exec, -1")
        A("v_readfirstlane_b32 s%d, v32" % sT2)
        A("s_cmp_lg_u64 vcc, 0"); A("s_cbranch_scc1 L_balskip")
        if not bmin: A("s_lshl_b32 s%d, s%d, 3" % (sT1, sT1))
        A("s_sub_i32 s%d, s%d, s%d" % (sT1, sT1, sT2)); A("s_cmp_gt_i32 s%d, %d" % (sT1, bthr)); A("s_cselect_b32 s%d, 1, 0" % sT1)
        A("v_mov_b32 v35, s%d" % sT1); A("s_mov_b64 exec, 1"); A("ds_write_b32 v%d, v35 offset:%d" % (vHI, F_MODE)); A("s_mov_b64 exec, -1")
        A("L_balskip:")
        if bper: A("s_sleep %d" % bper)
        A("s_add_u32 s13, s13, 1"); A("s_cmp_lt_u32 s13, 4096"); A("s_cbranch_scc1 L_bal")
        A("L_balend:")
        A("v_mov_b32 v35, 0"); A("s_mov_b64 exec, 1"); A("ds_write_b32 v%d, v35 offset:%d" % (vHI, F_MODE)); A("s_mov_b64 exec, -1")
        A("s_waitcnt vmcnt(0)")
        A("s_branch L_gather56")
        A("L_final:")
    else:
        A("s_cmp_eq_u32 s%d, 6" % sWAVE); A("s_cbranch_scc1 L_gather56")
    if at2:
        A("v_and_b32 v%d, 7, v0" % (vT + 1)); A("v_lshrrev_b32 v%d, 5, v0" % (vT + 2)); A("v_lshl_add_u32 v%d, v%d, 1, v%d" % (vT + 1, vT + 1, vT + 2))
    else: A("v_lshl_add_u32 v%d, v%d, 2, v%d" % (vT + 1, vR4, vG4))
    A("v_lshlrev_b32 v%d, 1, v%d" % (vT + 2, vT + 1)); A("s_lshl_b32 s%d, s%d, 5" % (sT0, sR))
    A("buffer_load_ushort v%d, v%d, %s, s%d offen" % (vT + 3, vT + 2, srd("X"), sT0))
    A("v_lshl_add_u32 v%d, v%d, 2, v%d" % (vT + 1, vT + 1, vHI))
    A("s_lshl_b32 s%d, s%d, %d" % (sT1, sR, 11 + spad)); A("s_add_u32 s%d, s%d, 0x%x" % (sT1, sT1, WS_SP))
    A("v_lshrrev_b32 v29, 2, v0"); A("v_lshlrev_b32 v29, %d, v29" % (6 + spad)); A("v_lshl_add_u32 v29, v%d, 4, v29" % vR4)
    if wolate == 2:
        A("s_mov_b32 s12, s%d" % sT0); A("s_mov_b32 s13, s%d" % sT1)
        if steal: lds_wait(F_LI, 1, sl=2)
        else: lds_wait(F_FULL, wotrig, sl=2)
        wo_dma()
        A("s_mov_b32 s%d, s12" % sT0); A("s_mov_b32 s%d, s13" % sT1)
    A("s_waitcnt lgkmcnt(0)")
    A("s_barrier")
    stamp(8)
    A("ds_read_b32 v40, v%d offset:%d" % (vT + 1, L_YP)); A("ds_read_b32 v41, v%d offset:%d" % (vT + 1, L_YP + 64)); A("s_waitcnt lgkmcnt(0)")
    A("v_add_f32 v40, v40, v41"); rbf(40)
    A("s_lshl_b32 s%d, s%d, 16" % (sB2, sB2)); A("v_add_f32 v40, s%d, v40" % sB2); rbf(40)
    A("v_mul_f32 v41, s%d, v40" % sL2E); A("v_exp_f32 v41, -v41"); A("v_add_f32 v41, 1.0, v41"); A("v_rcp_f32 v41, v41"); A("v_mul_f32 v40, v40, v41"); rbf(40)
    A("s_waitcnt vmcnt(0)"); A("v_lshlrev_b32 v%d, 16, v%d" % (vT + 3, vT + 3))
    if wolate == 2:
        A("s_mov_b64 exec, 1"); A("ds_write_b32 v%d, v%d offset:%d" % (vHI, vONE, F_WO)); A("s_mov_b64 exec, -1")
        stamp(11)
    A("s_barrier")
    stamp(9)
    if td2: A("s_sleep %d" % td2)
    if at2:
        A("v_lshlrev_b32 v29, 3, v0")
        apoll(32, 29, sT1, 44, tsleep2)
        stamp(10)
        A("v_add_f32 v44, v32, v34"); A("v_add_f32 v45, v33, v35"); A("v_add_f32 v46, v36, v38"); A("v_add_f32 v47, v37, v39")
        A("v_add_f32 v44, v44, v46"); A("v_add_f32 v45, v45, v47")
        A("v_permlane32_swap_b32 v44, v45"); A("v_add_f32 v44, v44, v45")
        swap_red(44, 45, "v_add_f32", 16)
        dpp("v_add_f32", 44, "row_ror:8")
    else:
        gpoll([(lambda: A("buffer_load_dwordx4 v[32:35], v29, %s, s%d offen %s" % (srd("WS"), sT1, tl)), [32, 33, 34, 35]),
               (lambda: A("buffer_load_dwordx4 v[36:39], v29, %s, s%d offen offset:%d %s" % (srd("WS"), sT1, 1024 << spad, tl)), [36, 37, 38, 39])], sleep=tsleep2, P=P2)
        stamp(10)
        for i in range(4): A("v_add_f32 v%d, v%d, v%d" % (44 + i, 32 + i, 36 + i))
        A("v_permlane32_swap_b32 v44, v46"); A("v_permlane32_swap_b32 v45, v47")
        A("v_add_f32 v44, v44, v46"); A("v_add_f32 v45, v45, v47")
        A("v_permlane16_swap_b32 v44, v45"); A("v_add_f32 v44, v44, v45")
        dpp("v_add_f32", 44, "row_ror:8"); dpp("v_add_f32", 44, "row_ror:4")
    rbf(44); A("v_mul_f32 v44, v44, v40"); rbf(44)
    A("v_add_f32 v44, v44, v%d" % (vT + 3)); A("v_cvt_pk_bf16_f32 v44, v44, v44")
    em = "0xff" if at2 else "0x000f000f"
    A("s_mov_b32 exec_lo, %s" % em); A("s_mov_b32 exec_hi, %s" % em)
    A("buffer_store_short v44, v%d, %s, s%d offen" % (vT + 2, srd("OUT"), sT0))
    A("s_mov_b64 exec, -1")
    A("s_cmp_lg_u32 s%d, 0" % sR); A("s_cbranch_scc1 L_done")
    epoch()
    A("v_mov_b32 v30, s%d" % sEP); A("v_mov_b32 v31, s%d" % (sEP + 1)); A("s_mov_b64 exec, 1")
    A("buffer_store_dwordx2 v[30:31], off, %s, 0 offset:%d sc1" % (srd("WS"), WS_EP))
    A("s_mov_b64 exec, -1")
    if pgrp:
        A("v_lshlrev_b32 v29, 5, v0"); A("s_mov_b64 exec, 0xff")
        A("buffer_load_dword v30, v29, %s, 0 offen offset:4 sc1" % srd("DBG")); A("s_memrealtime s[16:17]"); A("s_waitcnt vmcnt(0) lgkmcnt(0)")
        if pat >= 12:
            A("v_readfirstlane_b32 s6, v30"); A("v_subrev_u32 v30, s6, v30"); A("v_add_u32 v30, 0x100000, v30")
            if pat == 13: A("v_lshlrev_b32 v30, 3, v30"); A("v_or_b32 v30, v30, v0")
        A("v_mov_b32 v31, v30")
        for m in QUADS[:3]: dpp("v_max_u32", 30, m)
        if pat in (11, 12, 13, 14):
            for m in QUADS[:3]: dpp("v_min_u32", 31, m)
        else:
            A("v_subrev_u32 v31, v31, v30")
            for m in QUADS[:3]: dpp("v_add_u32", 31, m)
        A("s_mov_b64 exec, -1")
        A("v_readfirstlane_b32 s6, v30"); A("v_readfirstlane_b32 s7, v31")
        if pat == 11: A("s_sub_u32 s6, s6, s7"); A("s_lshl_b32 s6, s6, 3")
        elif pat == 12: A("s_sub_u32 s6, s6, s7"); A("s_lshr_b32 s6, s6, 2")
        elif pat == 13: A("s_and_b32 s6, s6, 7"); A("s_mul_i32 s6, s6, 300")
        else: A("s_mov_b32 s6, s7")
        A("s_min_u32 s6, s6, 20000")
        A("s_add_u32 s16, s16, s6")
        A("L_pad3:"); A("s_memrealtime s[18:19]"); A("s_waitcnt lgkmcnt(0)"); A("s_sub_u32 s18, s18, s16"); A("s_cmp_lt_i32 s18, 0"); A("s_cbranch_scc1 L_pad3")
    if probe or p_b >= 0 or pspan:
        A("buffer_load_dwordx2 v[30:31], off, %s, 0 offset:4 sc1" % srd("DBG")); A("s_memrealtime s[16:17]"); A("s_waitcnt vmcnt(0) lgkmcnt(0)")
        A("v_readfirstlane_b32 s6, v30"); A("v_readfirstlane_b32 s7, v31")
        if probe: A("s_sub_i32 s6, s6, s7"); A("s_abs_i32 s6, s6"); A("s_lshr_b32 s6, s6, 4")
        elif pspan == 1: A("s_not_b32 s7, s7"); A("s_sub_u32 s6, s6, s7"); A("s_lshl_b32 s6, s6, 2")
        elif pspan == 2: A("s_sub_u32 s6, s16, s6"); A("s_lshl_b32 s6, s6, 3")
        elif pspan == 6: A("s_not_b32 s7, s7"); A("s_sub_u32 s6, s16, s7"); A("s_lshl_b32 s6, s6, 2")
        elif pspan == 3: A("s_not_b32 s7, s7"); A("s_sub_u32 s6, s6, s7"); A("s_lshl_b32 s6, s6, 3")
        elif pspan in (4, 5): A("s_not_b32 s7, s7"); A("s_lshl_b32 s7, s7, 8"); A("s_sub_u32 s6, s6, s7"); A("s_lshr_b32 s6, s6, %d" % (5 if pspan == 4 else 6))
        else: A("s_lshr_b32 s6, s6, 5")
        A("s_min_u32 s6, s6, 20000")
        A("s_add_u32 s16, s16, s6")
        A("L_pad2:"); A("s_memrealtime s[18:19]"); A("s_waitcnt lgkmcnt(0)"); A("s_sub_u32 s18, s18, s16"); A("s_cmp_lt_i32 s18, 0"); A("s_cbranch_scc1 L_pad2")
    A("L_done:")
    A("s_waitcnt vmcnt(0)")
    if pad:
        A("s_waitcnt lgkmcnt(0)"); A("s_add_u32 s16, s16, %d" % pad)
        A("L_pad:"); A("s_memrealtime s[18:19]"); A("s_waitcnt lgkmcnt(0)"); A("s_sub_u32 s18, s18, s16"); A("s_cmp_lt_i32 s18, 0"); A("s_cbranch_scc1 L_pad")
    if stamps:
        A("s_waitcnt vmcnt(0)")
        stamp(NST - 1)
        A("s_waitcnt lgkmcnt(0)")
        A("s_lshl_b32 s%d, s2, 3" % sT0); A("s_add_u32 s%d, s%d, s%d" % (sT0, sT0, sWAVE)); A("s_mul_i32 s%d, s%d, %d" % (sT0, sT0, NST * 8)); A("s_add_u32 s%d, s%d, 0x%x" % (sT0, sT0, WS_STAMP))
        A("s_mov_b64 exec, 1")
        for k in range(NST):
            A("v_mov_b32 v2, s%d" % (16 + 2 * k)); A("v_mov_b32 v3, s%d" % (17 + 2 * k))
            A("buffer_store_dwordx2 v[2:3], off, %s, s%d offset:%d" % (srd("WS"), sT0, k * 8)); A("s_nop 1")
    A("L_end:")
    A("s_endpgm")
    body = A.finalize()
    hdr = open("recurrent_scan__gqa_block_cached__mixer_token_mlp__decode.s.ref").read().split("; Override launch")[0]
    s = hdr + "; @launch grid=(256,1,1) block=(512,1,1) lds=%d\n" % LDS_BYTES
    s += '.amdgcn_target "amdgcn-amd-amdhsa--gfx950"\n.text\n.globl %s\n.p2align 8\n.type %s,@function\n%s:\n' % (NAME, NAME, NAME)
    s += body
    s += '.section .rodata,"a"\n.p2align 6\n.amdhsa_kernel %s\n  .amdhsa_next_free_vgpr 256\n  .amdhsa_next_free_sgpr 102\n  .amdhsa_accum_offset 256\n' % NAME
    s += "  .amdhsa_group_segment_fixed_size 0\n  .amdhsa_kernarg_size 104\n  .amdhsa_user_sgpr_count 2\n  .amdhsa_user_sgpr_kernarg_segment_ptr 1\n  .amdhsa_system_sgpr_workgroup_id_x 1\n.end_amdhsa_kernel\n"
    return s, A

if __name__ == "__main__":
    out = sys.argv[1]
    kw = {}
    for p in sys.argv[2:]:
        k, v = p.split("=")
        kw[k] = int(v) if v.lstrip("-").isdigit() else v.replace("+", " ")
    s, A = gen(**kw)
    open(out, "w").write(s)
    print("wrote", out, "instructions", len(A.ins), "nops", A.nops, "lds", LDS_BYTES)
```

```python
import sys, struct
from asmlib import Asm

NAME = "recurrent_scan__gqa_block_cached__mixer_token_mlp__decode_kernel"
def f2u(x): return struct.unpack("<I", struct.pack("<f", x))[0]

WS_ST, WS_OP, WS_SP, WS_Q, WS_EP = 0x10000, 0x20000, 0x100000, 0x60000, 0x0
WS_PG = 0x90000
WS_CW, WS_PR = 0x80000, 0x200000
EP_STEP = 0x9E3779B97F4A7C15
WS_STAMP = 128 << 20
HI = 131072
L_WO = 0
L_XN, XN_STRIDE = 16384, 1040
L_OW = L_XN
L_QP = 24704
L_QB = 28800
L_FLG = 29824
L_ST = L_FLG + 64
L_GS = L_ST + 128
L_YP = L_GS + 32
LDS_BYTES = HI + L_YP + 128
F_FULL, F_FREED, F_XN, F_QP, F_QR, F_ST, F_GR, F_WO, F_AM, F_PLAN, F_LI, F_MODE = [L_FLG + 4 * i for i in (0, 4, 8, 9, 10, 11, 12, 13, 14, 1, 15, 2)]
L_PP = L_QP

sWAVE, sBASE, sOFF = 3, 4, 5
sT0, sT1, sT2 = 6, 7, 8
sR, sSPIN, sT3 = 9, 10, 11
sMU, sMB = 14, 15
SRD = dict(K=44, V=48, X=52, WQ=56, WO=60, W1=64, B1=68, W2=72, OUT=76, DBG=80, WS=84)
KARG = dict(X=0, K=8, V=16, WQ=24, WO=32, W1=48, B1=56, W2=64, OUT=80, DBG=88, WS=96)
SIZE = dict(X=8192, K=1 << 26, V=1 << 26, WQ=1 << 22, WO=1 << 22, W1=3584, B1=3584, W2=3584, OUT=8192, DBG=256, WS=1 << 28)
sSELLO, sSELHI, sMASK, sSCALE, sL2E, sC0, sC1, sB2, sB2P = 88, 89, 90, 91, 92, 93, 94, 95, 96
sOPOFF, sSPOFF, sSTOFF, sFULL = 98, 99, 100, 101
def srd(n): return "s[%d:%d]" % (SRD[n], SRD[n] + 3)
def vr(a, n=1): return "v%d" % a if n == 1 else "v[%d:%d]" % (a, a + n - 1)
vL16, vG4, vC4, vR4, vN16, vHI, vONE = 1, 2, 3, 4, 5, 6, 7
vT = 8
vPOLL = 16

def gen(F=4, stamps=0, pol="nt", spin=1 << 17, lspin=1 << 22, mimic=1, pre=0, lsleep=1, ldprio=3, fsleep=8, qsleep=2, ssleep=8, tsleep=0, xmap=1, polq=None, polo=None, ldst=0, abl='', rot=0, pad=0, P1=1, P2=1, pd=5, qmap=0, tl='sc1', ts='sc1', tsleep2=None, Fhi=0, himask=0xf8, hiend=16, spad=0, at2=1, td2=8, td1=0, at1=0, qdelay=0, sdelay=0, qtrig=8, strig=48, bshift=0, wolate=2, wqsplit=0, wotrig=60, D=0, DV=0, probe=0, steal=0, cth=23, cllate=0, bias=0, rtrig=48, p_a=-1, p_b=-1, pspan=0, pstart=0, bal=0, Flo=2, bthr=0, bper=8, bstop=58, bmin=0, pm=0, pval=0, pgrp=0, pat=11, tlb=0):
    NOWN = 5 if steal else 8
    sPLAN = 13
    DV = DV if DV else D
    tsleep2 = tsleep if tsleep2 is None else tsleep2
    polq = pol if polq is None else polq.replace('def', '')
    polo = pol if polo is None else polo.replace('def', '')
    A = Asm()
    NST = 14
    def stamp(k):
        if stamps: A("s_memrealtime s[%d:%d]" % (16 + 2 * k, 17 + 2 * k))
    QUADS = ("quad_perm:[1,0,3,2]", "quad_perm:[2,3,0,1]", "row_half_mirror", "row_mirror")
    def dpp(op, v, m, rm="0xf"): A("%s_dpp v%d, v%d, v%d %s row_mask:%s bank_mask:0xf" % (op, v, v, v, m, rm))
    def red16(v, op):
        for m in QUADS: dpp(op, v, m)
    def swap_red(v, t, op, which):
        A("v_mov_b32 v%d, v%d" % (t, v)); A("v_permlane%d_swap_b32 v%d, v%d" % (which, v, t)); A("%s v%d, v%d, v%d" % (op, v, v, t))
    def rbf(v):
        A("v_cvt_pk_bf16_f32 v%d, v%d, v%d" % (v, v, v)); A("v_lshlrev_b32 v%d, 16, v%d" % (v, v))
    def unpack(dlo, dhi, src):
        A("v_lshlrev_b32 v%d, 16, v%d" % (dlo, src)); A("v_and_b32 v%d, s%d, v%d" % (dhi, sMASK, src))
    def layernorm(pk, n, x, d, t, halves):
        def allred(v):
            red16(v, "v_add_f32"); swap_red(v, t + 2, "v_add_f32", 16)
            if halves == 1: swap_red(v, t + 2, "v_add_f32", 32)
        for i in range(n): unpack(x + 2 * i, x + 2 * i + 1, pk + i)
        A("v_add_f32 v%d, v%d, v%d" % (t, x, x + 1)); A("v_add_f32 v%d, v%d, v%d" % (t + 1, x + 2, x + 3))
        for i in range(4, 2 * n): A("v_add_f32 v%d, v%d, v%d" % (t + (i & 1), t + (i & 1), x + i))
        A("v_add_f32 v%d, v%d, v%d" % (t, t, t + 1))
        allred(t)
        A("v_mul_f32 v%d, 0x3b000000, v%d" % (t, t))
        A("v_cvt_pk_bf16_f32 v%d, v%d, v%d" % (t + 1, t, t))
        for i in range(2 * n): A("v_sub_f32 v%d, v%d, v%d" % (d + i, x + i, t))
        A("v_lshlrev_b32 v%d, 16, v%d" % (t + 1, t + 1))
        A("v_mul_f32 v%d, v%d, v%d" % (t, d, d)); A("v_mul_f32 v%d, v%d, v%d" % (d, d + 1, d + 1))
        for i in range(2, 2 * n): A("v_fmac_f32 v%d, v%d, v%d" % (t if i & 1 else d, d + i, d + i))
        A("v_add_f32 v%d, v%d, v%d" % (t, t, d))
        for i in range(2 * n): A("v_sub_f32 v%d, v%d, v%d" % (x + i, x + i, t + 1))
        allred(t)
        for i in range(n): A("v_cvt_pk_bf16_f32 v%d, v%d, v%d" % (pk + i, x + 2 * i, x + 2 * i + 1))
        A("v_mul_f32 v%d, 0x3b000000, v%d" % (t, t)); rbf(t)
        A("v_add_f32 v%d, 0x%x, v%d" % (t, f2u(1e-5), t)); rbf(t)
        A("v_sqrt_f32 v%d, v%d" % (t, t)); rbf(t)
        A("v_rcp_f32 v%d, v%d" % (t, t))
        for i in range(n): unpack(x + 2 * i, x + 2 * i + 1, pk + i)
        for i in range(2 * n): A("v_mul_f32 v%d, v%d, v%d" % (x + i, t, x + i))
        for i in range(n): A("v_cvt_pk_bf16_f32 v%d, v%d, v%d" % (pk + i, x + 2 * i, x + 2 * i + 1))
    def lds_wait(flag, val, keep=None, sl=None):
        ok = A.label("lok"); again = A.label("lagain")
        dst = keep if keep is not None else sT3
        if keep is not None:
            A("s_cmp_ge_u32 s%d, %s" % (keep, val)); A("s_cbranch_scc1 " + ok)
        A("s_mov_b32 s%d, 0" % sSPIN)
        A(again + ":")
        A("ds_read_b32 v%d, v%d offset:%d" % (vPOLL, vHI, flag)); A("s_waitcnt lgkmcnt(0)")
        A("v_readfirstlane_b32 s%d, v%d" % (dst, vPOLL))
        A("s_cmp_ge_u32 s%d, %s" % (dst, val)); A("s_cbranch_scc1 " + ok)
        if sl is None: sl = lsleep
        if sl: A("s_sleep %d" % sl)
        A("s_add_u32 s%d, s%d, 1" % (sSPIN, sSPIN)); A("s_cmp_lt_u32 s%d, %d" % (sSPIN, lspin)); A("s_cbranch_scc1 " + again)
        A(ok + ":")
    def lds_add(flag_addr_reg, off):
        A("s_waitcnt lgkmcnt(0)")
        A("s_mov_b64 exec, 1"); A("ds_add_u32 v%d, v%d offset:%d" % (flag_addr_reg, vONE, off)); A("s_mov_b64 exec, -1")
    def gpoll(loads, first=True, sleep=0, full="-1", tag=None, P=1):
        ok = A.label("ok"); again = A.label("again")
        masks = ["vcc", "s[12:13]"]
        A("s_mov_b32 s%d, 0" % sSPIN)
        if first:
            for issue, regs in loads: issue()
        for _ in range(P - 1):
            A("s_sleep %d" % pd)
            for issue, regs in loads: issue()
        A(again + ":")
        A("s_waitcnt vmcnt(%d)" % (len(loads) * (P - 1)))
        for (issue, regs), mk in zip(loads, masks):
            t = vT + 7
            if tag is not None:
                A("v_cmp_ne_u64 %s, %s, v[%d:%d]" % (mk, tag, regs[2], regs[3])); continue
            if len(regs) == 2: A("v_max_u32 v%d, v%d, v%d" % (t, regs[0], regs[1]))
            else:
                A("v_max3_u32 v%d, v%d, v%d, v%d" % (t, regs[0], regs[1], regs[2])); A("v_max_u32 v%d, v%d, v%d" % (t, t, regs[3]))
            A("v_cmp_eq_u32 %s, -1, v%d" % (mk, t))
        if len(loads) == 2:
            A("s_or_b32 s%d, vcc_lo, vcc_hi" % sT3); A("s_or_b32 s%d, s%d, s12" % (sT3, sT3)); A("s_or_b32 s%d, s%d, s13" % (sT3, sT3))
        else:
            A("s_or_b32 s%d, vcc_lo, vcc_hi" % sT3)
        A("s_cbranch_scc0 " + ok)
        if sleep: A("s_sleep %d" % sleep)
        for (issue, regs), mk in zip(loads, masks):
            A("s_mov_b64 exec, %s" % mk); issue()
        if full == "PARTIAL": A("s_mov_b32 exec_lo, -1"); A("s_mov_b32 exec_hi, 0x1ffff")
        else: A("s_mov_b64 exec, %s" % full)
        A("s_add_u32 s%d, s%d, 1" % (sSPIN, sSPIN)); A("s_cmp_lt_u32 s%d, %d" % (sSPIN, spin)); A("s_cbranch_scc1 " + again)
        A("s_waitcnt vmcnt(0)")
        A(ok + ":")
    def apoll(vd, vaddr, soff, vtmp, sleep, first=True):
        ms = ["vcc", "s[12:13]", "s[88:89]", "s[90:91]"]
        ok = A.label("aok"); again = A.label("aagain")
        def iss(k):
            A("v_mov_b32 v%d, 0" % (vd + 2 * k)); A("v_mov_b32 v%d, 0" % (vd + 1 + 2 * k))
            A("buffer_atomic_or_x2 v[%d:%d], v%d, %s, s%d offen offset:%d sc0" % (vd + 2 * k, vd + 1 + 2 * k, vaddr, srd("WS"), soff, 512 * k))
        if first == "only":
            for k in range(4): iss(k)
            return
        A("s_mov_b32 s%d, 0" % sSPIN)
        if first:
            for k in range(4): iss(k)
        A(again + ":")
        A("s_waitcnt vmcnt(0)")
        for k in range(4): A("v_max_u32 v%d, v%d, v%d" % (vtmp + k, vd + 2 * k, vd + 1 + 2 * k))
        for k in range(4): A("v_cmp_eq_u32 %s, -1, v%d" % (ms[k], vtmp + k))
        A("s_or_b64 s[92:93], vcc, s[12:13]"); A("s_or_b64 s[94:95], s[88:89], s[90:91]"); A("s_or_b64 s[92:93], s[92:93], s[94:95]")
        A("s_cbranch_scc0 " + ok)
        if sleep: A("s_sleep %d" % sleep)
        for k in range(4):
            A("s_mov_b64 exec, %s" % ms[k]); iss(k)
        A("s_mov_b64 exec, -1")
        A("s_add_u32 s%d, s%d, 1" % (sSPIN, sSPIN)); A("s_cmp_lt_u32 s%d, %d" % (sSPIN, spin)); A("s_cbranch_scc1 " + again)
        A("s_waitcnt vmcnt(0)")
        A(ok + ":")
    def word_poll(load, vd, lanes, cmp, sleep):
        ok = A.label("fok"); again = A.label("fagain")
        A("s_mov_b32 s%d, 0" % sSPIN); A("s_mov_b64 exec, %s" % lanes)
        A(again + ":")
        A(load)
        A("s_waitcnt vmcnt(0)")
        A(cmp % vd)
        A("s_cmp_eq_u64 vcc, 0"); A("s_cbranch_scc1 " + ok)
        if sleep: A("s_sleep %d" % sleep)
        A("s_add_u32 s%d, s%d, 1" % (sSPIN, sSPIN)); A("s_cmp_lt_u32 s%d, %d" % (sSPIN, spin)); A("s_cbranch_scc1 " + again)
        A(ok + ":")
        A("s_mov_b64 exec, -1")

    A("s_cmp_ge_u32 s2, 256"); A("s_cbranch_scc1 L_end")
    if stamps:
        for k in range(1, NST): A("s_mov_b64 s[%d:%d], 0" % (16 + 2 * k, 17 + 2 * k))
    stamp(0)
    if (pad or p_b >= 0 or pspan or pstart) and not stamps: A("s_memrealtime s[16:17]")
    for n in ("K", "X", "WQ", "WS", "V", "WO", "W1", "B1", "W2", "DBG", "OUT"):
        A("s_load_dwordx2 s[%d:%d], s[0:1], %d" % (SRD[n], SRD[n] + 1, KARG[n]))
    A("s_load_dwordx2 s[%d:%d], s[0:1], 72" % (sB2P, sB2P + 1))
    A("v_lshrrev_b32 v1, 6, v0"); A("v_and_b32 v0, 63, v0"); A("v_readfirstlane_b32 s%d, v1" % sWAVE)
    for n in SRD:
        A("s_mov_b32 s%d, 0x%x" % (SRD[n] + 2, SIZE[n])); A("s_mov_b32 s%d, 0x20000" % (SRD[n] + 3))
    if xmap == 0:
        A("s_and_b32 s%d, s2, 7" % sR); A("s_lshl_b32 s%d, s%d, 5" % (sR, sR)); A("s_lshr_b32 s%d, s2, 3" % sT0); A("s_add_u32 s%d, s%d, s%d" % (sR, sR, sT0))
    elif xmap >= 8:
        A("s_bfe_u32 s%d, s2, 0x10003" % sT0); A("s_bfe_u32 s%d, s2, 0x10004" % sT1); A("s_lshl_b32 s%d, s%d, 2" % (sT1, sT1)); A("s_add_u32 s%d, s%d, s%d" % (sT0, sT0, sT1))
        if xmap == 9: A("s_lshr_b32 s%d, s2, 5" % sT1); A("s_add_u32 s%d, s%d, s%d" % (sT0, sT0, sT1))
        A("s_sub_u32 s%d, s2, s%d" % (sR, sT0))
        A("s_and_b32 s%d, s%d, 7" % (sR, sR)); A("s_lshl_b32 s%d, s%d, 2" % (sR, sR)); A("s_and_b32 s%d, s2, 0xe0" % sT0); A("s_add_u32 s%d, s%d, s%d" % (sR, sR, sT0))
        A("s_bfe_u32 s%d, s2, 0x20003" % sT0); A("s_add_u32 s%d, s%d, s%d" % (sR, sR, sT0))
    elif xmap >= 4:
        A("s_lshr_b32 s%d, s2, 1" % sT0); A("s_xor_b32 s%d, s%d, s2" % (sT0, sT0)); A("s_and_b32 s%d, s%d, 1" % (sT0, sT0)); A("s_lshl_b32 s%d, s%d, 3" % (sT0, sT0))
        A("s_and_b32 s%d, s2, 4" % sT1); A("s_lshl_b32 s%d, s%d, 2" % (sT1, sT1)); A("s_add_u32 s%d, s%d, s%d" % (sT0, sT0, sT1))
        A("s_bfe_u32 s%d, s2, 0x10003" % sT1); A("s_lshl_b32 s%d, s%d, 2" % (sT1, sT1)); A("s_add_u32 s%d, s%d, s%d" % (sT0, sT0, sT1))
        A("s_and_b32 s%d, s2, 0xe0" % sR); A("s_add_u32 s%d, s%d, s%d" % (sR, sR, sT0))
        if xmap == 6:
            A("s_lshr_b32 s%d, s2, 5" % sT0); A("s_xor_b32 s%d, s%d, s2" % (sT0, sT0)); A("s_and_b32 s%d, s%d, 1" % (sT0, sT0))
        elif xmap == 7:
            A("s_lshr_b32 s%d, s2, 3" % sT0); A("s_xor_b32 s%d, s%d, s2" % (sT0, sT0)); A("s_and_b32 s%d, s%d, 1" % (sT0, sT0))
        else: A("s_and_b32 s%d, s2, 1" % sT0)
        A("s_bfe_u32 s%d, s2, 0x10004" % sT1)
        A("s_lshl_b32 s%d, s%d, 1" % ((sT0, sT0) if xmap != 5 else (sT1, sT1)))
        A("s_add_u32 s%d, s%d, s%d" % (sR, sR, sT0)); A("s_add_u32 s%d, s%d, s%d" % (sR, sR, sT1))
    else:
        if xmap == 2:
            A("s_lshr_b32 s%d, s2, 5" % sT0); A("s_add_u32 s%d, s2, s%d" % (sR, sT0))
        elif xmap == 3:
            A("s_bfe_u32 s%d, s2, 0x20003" % sT0); A("s_lshl_b32 s%d, s%d, 1" % (sT0, sT0)); A("s_add_u32 s%d, s2, s%d" % (sR, sT0))
        else: A("s_add_u32 s%d, s2, %d" % (sR, bshift))
        A("s_and_b32 s%d, s%d, 7" % (sR, sR)); A("s_lshl_b32 s%d, s%d, 2" % (sR, sR)); A("s_and_b32 s%d, s2, 0xe0" % sT0); A("s_add_u32 s%d, s%d, s%d" % (sR, sR, sT0))
        A("s_bfe_u32 s%d, s2, 0x20003" % sT0); A("s_add_u32 s%d, s%d, s%d" % (sR, sR, sT0))
    sRQ = sMB
    if xmap >= 4:
        A("s_and_b32 s%d, s2, 7" % sRQ); A("s_lshl_b32 s%d, s%d, 2" % (sRQ, sRQ)); A("s_and_b32 s%d, s2, 0xe0" % sT0); A("s_add_u32 s%d, s%d, s%d" % (sRQ, sRQ, sT0))
        A("s_bfe_u32 s%d, s2, 0x20003" % sT0); A("s_add_u32 s%d, s%d, s%d" % (sRQ, sRQ, sT0))
    elif qmap == 0: A("s_mov_b32 s%d, s%d" % (sRQ, sR))
    elif qmap == 1:
        A("s_and_b32 s%d, s2, 7" % sRQ); A("s_lshl_b32 s%d, s%d, 5" % (sRQ, sRQ)); A("s_lshr_b32 s%d, s2, 3" % sT0); A("s_add_u32 s%d, s%d, s%d" % (sRQ, sRQ, sT0))
    elif qmap == 2:
        A("s_lshr_b32 s%d, s%d, 3" % (sT0, sR)); A("s_and_b32 s%d, s%d, 0x1c" % (sT0, sT0)); A("s_add_u32 s%d, s%d, s%d" % (sT0, sT0, sR)); A("s_and_b32 s%d, s%d, 0x1c" % (sT0, sT0))
        A("s_and_b32 s%d, s%d, 0xe3" % (sRQ, sR)); A("s_or_b32 s%d, s%d, s%d" % (sRQ, sRQ, sT0))
    elif qmap == 4:
        A("s_lshr_b32 s%d, s%d, 5" % (sT0, sR)); A("s_lshl_b32 s%d, s%d, 1" % (sT0, sT0)); A("s_bfe_u32 s%d, s%d, 0x10001" % (sT1, sR)); A("s_add_u32 s%d, s%d, s%d" % (sT0, sT0, sT1))
        A("s_lshr_b32 s%d, s%d, 2" % (sT1, sT0)); A("s_lshl_b32 s%d, s%d, 1" % (sT1, sT1)); A("s_bfe_u32 s%d, s%d, 0x30002" % (sT2, sR)); A("s_add_u32 s%d, s%d, s%d" % (sT1, sT1, sT2))
        A("s_and_b32 s%d, s%d, 7" % (sT1, sT1)); A("s_lshl_b32 s%d, s%d, 3" % (sT0, sT0)); A("s_add_u32 s%d, s%d, s%d" % (sT0, sT0, sT1)); A("s_lshl_b32 s%d, s%d, 1" % (sT0, sT0))
        A("s_and_b32 s%d, s%d, 1" % (sT1, sR)); A("s_add_u32 s%d, s%d, s%d" % (sRQ, sT0, sT1))
    A("v_lshlrev_b32 v%d, 4, v0" % vL16); A("v_lshrrev_b32 v%d, 4, v0" % vG4); A("v_bfe_u32 v%d, v0, 2, 2" % vC4)
    A("v_and_b32 v%d, 3, v0" % vR4); A("v_and_b32 v%d, 15, v0" % vN16); A("v_mov_b32 v%d, 0x%x" % (vHI, HI)); A("v_mov_b32 v%d, 1" % vONE)
    A("s_mov_b32 s%d, 0x05040100" % sSELLO); A("s_mov_b32 s%d, 0x07060302" % sSELHI); A("s_mov_b32 s%d, 0xffff0000" % sMASK)
    A("s_mov_b32 s%d, 0x%x" % (sSCALE, f2u(128 ** -0.5))); A("s_mov_b32 s%d, 0x%x" % (sL2E, f2u(1.4426950408889634)))
    c0 = -2.0 * 0.7978845608028654 * 1.4426950408889634
    A("s_mov_b32 s%d, 0x%x" % (sC0, f2u(c0))); A("s_mov_b32 s%d, 0x%x" % (sC1, f2u(c0 * 0.044715)))
    A("s_lshr_b32 s%d, s%d, 5" % (sT0, sR)); A("s_lshl_b32 s%d, s%d, 15" % (sT0, sT0))
    A("s_and_b32 s%d, s%d, 31" % (sT1, sR)); A("s_lshl_b32 s%d, s%d, 8" % (sT1, sT1)); A("s_add_u32 s%d, s%d, s%d" % (sT0, sT0, sT1))
    A("s_add_u32 s%d, s%d, 0x%x" % (sOPOFF, sT0, WS_OP))
    A("s_and_b32 s%d, s%d, 7" % (sT0, sR)); A("s_lshl_b32 s%d, s%d, %d" % (sT0, sT0, 13 + spad))
    A("s_lshr_b32 s%d, s%d, 3" % (sT1, sR)); A("s_lshl_b32 s%d, s%d, %d" % (sT1, sT1, 6 + spad)); A("s_add_u32 s%d, s%d, s%d" % (sT0, sT0, sT1))
    A("s_add_u32 s%d, s%d, 0x%x" % (sSPOFF, sT0, WS_SP))
    A("s_lshr_b32 s%d, s%d, 2" % (sT0, sR)); A("s_lshl_b32 s%d, s%d, 7" % (sT0, sT0)); A("s_add_u32 s%d, s%d, 0x%x" % (sSTOFF, sT0, WS_ST))
    A("s_cmp_eq_u32 s%d, 4" % sWAVE); A("s_cbranch_scc1 L_loader")
    A("s_cmp_eq_u32 s%d, 5" % sWAVE); A("s_cbranch_scc1 L_comm")
    A("s_cmp_gt_u32 s%d, 5" % sWAVE); A("s_cbranch_scc1 L_mlp")

    vQ, vS, vTMP, vK = 32, 48, 112, 128
    vKA, vVA = 17, 17
    vM, vLs, vMO, vF, vOWA = 25, 26, 27, 28, 29
    vX = vS
    A("v_lshlrev_b32 v%d, 5, v0" % vT)
    A("v_lshrrev_b32 v%d, 1, v0" % (vT + 1)); A("v_lshlrev_b32 v%d, 13, v%d" % (vT + 1, vT + 1))
    A("v_and_b32 v%d, 1, v0" % (vT + 2)); A("v_lshl_add_u32 v%d, v%d, 4, v%d" % (vT + 1, vT + 2, vT + 1))
    A("s_lshl_b32 s%d, s%d, 11" % (sT2, sWAVE))
    A("s_lshl_b32 s%d, s%d, 20" % (sT0, sWAVE)); A("s_lshl_b32 s%d, s%d, 5" % (sT1, sRQ)); A("s_add_u32 s%d, s%d, s%d" % (sT0, sT0, sT1))
    A("s_lshl_b32 s%d, s%d, 13" % (sT1, sWAVE)); A("s_add_u32 s%d, s%d, %d" % (sT1, sT1, 12 * 8192))
    A("s_waitcnt lgkmcnt(0)")
    if ldst == 2: stamp(12)
    A("buffer_load_dwordx4 %s, v%d, %s, s%d offen" % (vr(vX, 4), vT, srd("X"), sT2))
    A("buffer_load_dwordx4 %s, v%d, %s, s%d offen offset:16" % (vr(vX + 4, 4), vT, srd("X"), sT2))
    nq0 = wqsplit if wqsplit else 4
    for a in range(nq0):
        A("s_add_u32 m0, s%d, %d" % (sT1, a * 1024))
        if 'q' in abl: A("buffer_load_dwordx4 v%d, %s, 0 offen lds" % (vL16, srd("X")))
        else: A("buffer_load_dwordx4 v%d, %s, s%d offen %s lds" % (vT + 1, srd("WQ"), sT0, polq))
        if a < 3: A("s_add_u32 s%d, s%d, 0x40000" % (sT0, sT0))
    if nq0 < 4: A("v_mov_b32 v31, v%d" % (vT + 1)); A("s_mov_b32 s12, s%d" % sT0)
    A("s_barrier")
    A("v_lshrrev_b32 v%d, 5, v0" % (vT + 3)); A("s_lshl_b32 s%d, s%d, 1" % (sT0, sWAVE)); A("v_add_u32 v%d, s%d, v%d" % (vT + 3, sT0, vT + 3))
    A("v_mul_u32_u24 v%d, %d, v%d" % (vT + 3, XN_STRIDE, vT + 3)); A("v_and_b32 v%d, 31, v0" % (vT + 4)); A("v_lshl_add_u32 v%d, v%d, 5, v%d" % (vT + 3, vT + 4, vT + 3))
    A("v_add_u32 v%d, v%d, v%d" % (vT + 3, vHI, vT + 3))
    A("v_and_b32 v%d, 7, v0" % (vT + 4)); A("v_mul_u32_u24 v%d, %d, v%d" % (vT + 4, XN_STRIDE, vT + 4)); A("v_lshl_add_u32 v%d, v%d, 4, v%d" % (vT + 4, vG4, vT + 4))
    A("s_lshl_b32 s%d, s%d, 8" % (sT0, sWAVE)); A("s_add_u32 s%d, s%d, %d" % (sT0, sT0, HI)); A("v_add_u32 v%d, s%d, v%d" % (vT + 4, sT0, vT + 4))
    A("v_lshlrev_b32 v%d, 8, v%d" % (vT + 5, vG4)); A("v_lshl_add_u32 v%d, v%d, 3, v%d" % (vT + 5, vN16, vT + 5)); A("v_add_u32 v%d, s%d, v%d" % (vT + 5, sT1, vT + 5))
    A("s_lshl_b32 s%d, s%d, 10" % (sT0, sWAVE)); A("s_add_u32 s%d, s%d, %d" % (sT0, sT0, HI)); A("v_add_u32 v%d, s%d, v%d" % (vT + 6, sT0, vL16))
    A("s_lshl_b32 s%d, s%d, 13" % (sT0, sWAVE)); A("v_lshlrev_b32 v%d, 8, v%d" % (vT, vN16)); A("v_add_u32 v%d, s%d, v%d" % (vT, sT0, vT))
    for m in range(4):
        A("v_add_u32 v%d, %d, v%d" % (vT + 1, 4 * m, vG4)); A("v_xor_b32 v%d, v%d, v%d" % (vT + 1, vT + 1, vN16))
        A("v_lshl_add_u32 v%d, v%d, 4, v%d" % (vKA + m, vT + 1, vT)); A("v_add_u32 v%d, 0x10000, v%d" % (vKA + 4 + m, vKA + m))
    A("s_lshl_b32 s%d, s%d, 2" % (sT0, sWAVE)); A("s_add_u32 s%d, s%d, %d" % (sT0, sT0, HI)); A("v_mov_b32 v%d, s%d" % (30, sT0))
    A("s_mov_b32 s%d, 0" % sFULL)
    A("s_waitcnt vmcnt(%d)" % nq0)
    for a in range(nq0, 4):
        A("s_add_u32 m0, s%d, %d" % (sT1, a * 1024))
        A("buffer_load_dwordx4 v31, %s, s12 offen %s lds" % (srd("WQ"), polq))
        if a < 3: A("s_add_u32 s12, s12, 0x40000")
    stamp(1)
    layernorm(vX, 8, vX + 8, vX + 24, vX + 40, 2)
    A("ds_write_b128 v%d, %s offset:%d" % (vT + 3, vr(vX, 4), L_XN)); A("ds_write_b128 v%d, %s offset:%d" % (vT + 3, vr(vX + 4, 4), L_XN + 16))
    lds_add(vHI, F_XN)
    A("s_waitcnt vmcnt(0)")
    for m in range(4):
        A("ds_read_b64_tr_b16 %s, v%d offset:%d" % (vr(vK + 4 * m, 2), vT + 5, m * 1024))
        A("ds_read_b64_tr_b16 %s, v%d offset:%d" % (vr(vK + 4 * m + 2, 2), vT + 5, m * 1024 + 128))
    lds_wait(F_XN, 4)
    for m in range(4): A("ds_read_b128 %s, v%d offset:%d" % (vr(vK + 16 + 4 * m, 4), vT + 4, L_XN + m * 64))
    for m in range(4):
        A("s_waitcnt lgkmcnt(%d)" % (3 - m))
        A("v_mfma_f32_16x16x32_bf16 %s, %s, %s, %s" % (vr(vTMP, 4), vr(vK + 4 * m, 4), vr(vK + 16 + 4 * m, 4), "0" if m == 0 else vr(vTMP, 4)))
    A("ds_write_b128 v%d, %s offset:%d" % (vT + 6, vr(vTMP, 4), L_QP))
    lds_add(vHI, F_QP)
    A("s_mov_b64 exec, 1"); A("ds_add_u32 v30, v%d offset:%d" % (vONE, F_FREED)); A("s_mov_b64 exec, -1")
    stamp(2)
    def wait_block(n4):
        A("s_add_u32 s%d, s%d, %d" % (sT0, sWAVE, 4 * n4 + 1))
        lds_wait(F_FULL, "s%d" % sT0, keep=sFULL)
    def read_k(j):
        base = vK + 32 * (j % 4)
        for t in range(2):
            for m in range(4):
                A("ds_read_b128 %s, v%d offset:%d" % (vr(base + 16 * t + 4 * m, 4), vKA + m + (4 if (j & 2) else 0), (j & 1) * 32768 + t * 4096))
    def qk_block(j):
        base = vK + 32 * (j % 4)
        for m in range(4):
            for t in range(2):
                acc = vr(vS + 8 * j + 4 * t, 4)
                A("v_mfma_f32_16x16x32_bf16 %s, %s, %s, %s" % (acc, vr(base + 16 * t + 4 * m, 4), vr(vQ + 4 * m, 4), "0" if m == 0 else acc))
    def round_block(j):
        for p in range(4):
            a, b, t = vS + 8 * j + 2 * p, vS + 8 * j + 2 * p + 1, vT + (p & 1)
            if mimic:
                A("v_cvt_pk_bf16_f32 v%d, v%d, v%d" % (t, a, b)); unpack(a, b, t)
            A("v_mul_f32 v%d, s%d, v%d" % (a, sSCALE, a)); A("v_mul_f32 v%d, s%d, v%d" % (b, sSCALE, b))
            if mimic:
                A("v_cvt_pk_bf16_f32 v%d, v%d, v%d" % (t, a, b)); unpack(a, b, t)
            if j == 0 and p == 0: A("v_max_f32 v%d, v%d, v%d" % (vM, a, b))
            else: A("v_max3_f32 v%d, v%d, v%d, v%d" % (vM, a, b, vM))
    for j in range(4):
        wait_block(j); read_k(j); lds_add(30, F_FREED)
    stamp(3)
    lds_wait(F_QR, 1)
    stamp(4)
    A("v_lshlrev_b32 v%d, 8, v%d" % (vT, vC4)); A("v_lshl_add_u32 v%d, v%d, 4, v%d" % (vT, vG4, vT)); A("v_add_u32 v%d, v%d, v%d" % (vT, vHI, vT))
    for m in range(4): A("ds_read_b128 %s, v%d offset:%d" % (vr(vQ + 4 * m, 4), vT, L_QB + m * 64))
    A("s_waitcnt lgkmcnt(0)")
    for j in range(4):
        qk_block(j)
        wait_block(4 + j); A("s_nop 3"); read_k(4 + j)
        if j >= 1: round_block(j - 1)
        lds_add(30, F_FREED)
    for j in range(4, 8):
        qk_block(j); round_block(j - 1)
    A("v_lshl_add_u32 v%d, v%d, 2, v%d" % (vT + 2, vG4, vC4))
    A("v_and_b32 v%d, 7, v%d" % (vT + 3, vT + 2)); A("v_lshlrev_b32 v%d, 1, v%d" % (vT + 3, vT + 3))
    A("v_lshrrev_b32 v%d, 1, v%d" % (vT + 4, vR4)); A("v_xor_b32 v%d, v%d, v%d" % (vT + 3, vT + 3, vT + 4))
    A("v_lshlrev_b32 v%d, 8, v%d" % (vT + 2, vT + 2)); A("v_lshl_add_u32 v%d, v%d, 4, v%d" % (vT + 2, vT + 3, vT + 2))
    A("v_and_b32 v%d, 1, v0" % (vT + 4)); A("v_lshl_add_u32 v%d, v%d, 3, v%d" % (vT + 2, vT + 4, vT + 2))
    A("s_lshl_b32 s%d, s%d, 13" % (sT0, sWAVE)); A("v_add_u32 v%d, s%d, v%d" % (vVA, sT0, vT + 2))
    for d in range(1, 8): A("v_xor_b32 v%d, %d, v%d" % (vVA + d, 32 * d, vVA))
    round_block(7)
    swap_red(vM, vT, "v_max_f32", 32); swap_red(vM, vT, "v_max_f32", 16)
    A("v_mul_f32 v%d, s%d, v%d" % (vM, sL2E, vM))
    A("v_lshlrev_b32 v%d, 4, v%d" % (vT + 1, vG4)); A("ds_bpermute_b32 v%d, v%d, v%d" % (vMO, vT + 1, vM))
    vP = vK
    for j in range(32):
        a, b = vS + 2 * j, vS + 2 * j + 1
        A("v_fma_f32 v%d, v%d, s%d, -v%d" % (a, a, sL2E, vM)); A("v_fma_f32 v%d, v%d, s%d, -v%d" % (b, b, sL2E, vM))
        A("v_exp_f32 v%d, v%d" % (a, a)); A("v_exp_f32 v%d, v%d" % (b, b))
        if j >= 1:
            pa, pb = a - 2, b - 2
            if j == 1: A("v_add_f32 v%d, v%d, v%d" % (vLs, pa, pb))
            else: A("v_add_f32 v%d, v%d, v%d" % (vLs, vLs, pa)); A("v_add_f32 v%d, v%d, v%d" % (vLs, vLs, pb))
            A("v_cvt_pk_bf16_f32 v%d, v%d, v%d" % (vP + j - 1, pa, pb))
    A("v_add_f32 v%d, v%d, v%d" % (vLs, vLs, vS + 62)); A("v_add_f32 v%d, v%d, v%d" % (vLs, vLs, vS + 63))
    A("v_cvt_pk_bf16_f32 v%d, v%d, v%d" % (vP + 31, vS + 62, vS + 63))
    swap_red(vLs, vT, "v_add_f32", 32); swap_red(vLs, vT, "v_add_f32", 16)
    A("s_lshl_b32 s%d, s%d, 5" % (sT0, sWAVE)); A("s_add_u32 s%d, s%d, %d" % (sT0, sT0, HI)); A("v_lshlrev_b32 v%d, 3, v%d" % (vT, vC4)); A("v_add_u32 v%d, s%d, v%d" % (vT, sT0, vT))
    A("v_mov_b32 v%d, v%d" % (vT + 2, vM)); A("v_mov_b32 v%d, v%d" % (vT + 3, vLs))
    A("s_mov_b64 exec, 0x1111"); A("ds_write_b64 v%d, %s offset:%d" % (vT, vr(vT + 2, 2), L_ST)); A("s_mov_b64 exec, -1")
    lds_add(vHI, F_ST)
    stamp(5)
    A("s_lshl_b32 s%d, s%d, 11" % (sT0, sWAVE)); A("s_add_u32 s%d, s%d, %d" % (sT0, sT0, HI + L_OW))
    A("v_lshlrev_b32 v%d, 9, v%d" % (vOWA, vG4)); A("v_lshl_add_u32 v%d, v%d, 2, v%d" % (vOWA, vN16, vOWA)); A("v_add_u32 v%d, s%d, v%d" % (vOWA, sT0, vOWA))
    vVB = vK + 32
    def read_v(j):
        base = vVB + 32 * (j & 1)
        for d in range(8):
            for t in range(2):
                A("ds_read_b64_tr_b16 %s, v%d offset:%d" % (vr(base + 4 * d + 2 * t, 2), vVA + d, (j & 1) * 32768 + t * 4096))
    def pv(j, d):
        base = vVB + 32 * (j & 1)
        acc = vr(vS + 4 * d, 4)
        A("v_mfma_f32_16x16x32_bf16 %s, %s, %s, %s" % (acc, vr(vP + 4 * j, 4), vr(base + 4 * d, 4), "0" if j == 0 else acc))
    vS2, vF2 = vS + 32, 31
    def factor(dst, m):
        lds_wait(F_GR, 1)
        A("v_lshl_add_u32 v%d, v%d, 3, v%d" % (vT, vG4, vHI)); A("ds_read_b64 %s, v%d offset:%d" % (vr(vT + 2, 2), vT, L_GS)); A("s_waitcnt lgkmcnt(0)")
        A("v_sub_f32 v%d, v%d, v%d" % (dst, m, vT + 2)); A("v_exp_f32 v%d, v%d" % (dst, dst)); A("v_mul_f32 v%d, v%d, v%d" % (dst, dst, vT + 3))
    def wait_pos(j, out):
        ok = A.label("pok"); again = A.label("pagain"); chk = A.label("pchk")
        A("s_add_u32 s%d, s%d, %d" % (sT0, sWAVE, 32 + 4 * j + 1))
        A("s_mov_b32 s%d, 0" % sSPIN)
        A("s_branch " + chk)
        A(again + ":")
        A("ds_read_b64 %s, v%d offset:%d" % (vr(vT + 2, 2), vHI, F_FULL)); A("s_waitcnt lgkmcnt(0)")
        A("v_readfirstlane_b32 s%d, v%d" % (sFULL, vT + 2)); A("v_readfirstlane_b32 s%d, v%d" % (sPLAN, vT + 3))
        A(chk + ":")
        A("s_cmp_ge_u32 s%d, s%d" % (sFULL, sT0)); A("s_cbranch_scc1 " + ok)
        A("s_sub_u32 s%d, s%d, 0x100" % (sT1, sPLAN)); A("s_cmp_le_u32 s%d, %d" % (sT1, j)); A("s_cbranch_scc1 " + out)
        A("s_add_u32 s%d, s%d, 1" % (sSPIN, sSPIN)); A("s_cmp_lt_u32 s%d, %d" % (sSPIN, lspin)); A("s_cbranch_scc1 " + again)
        A("s_branch " + out)
        A(ok + ":")
    if steal:
        lds_wait(F_AM, 1)
        A("v_lshrrev_b32 v%d, 2, v0" % vT); A("v_lshlrev_b32 v%d, 4, v%d" % (vT, vT))
        A("s_lshl_b32 s%d, s%d, 12" % (sT0, sR)); A("s_lshl_b32 s%d, s%d, 10" % (sT1, sWAVE)); A("s_add_u32 s%d, s%d, s%d" % (sT0, sT0, sT1)); A("s_add_u32 s%d, s%d, 0x%x" % (sT0, sT0, WS_PR))
        A("s_mov_b32 exec_lo, 0x11111111"); A("s_mov_b32 exec_hi, 0x11111111")
        for u in range(3): A("buffer_store_dwordx4 %s, v%d, %s, s%d offen offset:%d sc1" % (vr(vP + 4 * (5 + u), 4), vT, srd("WS"), sT0, 256 * u))
        A("s_mov_b64 exec, 0x1111")
        A("buffer_store_dword v%d, v0, %s, s%d offen offset:768 sc1" % (vM, srd("WS"), sT0))
        A("s_mov_b64 exec, -1")
        A("s_mov_b32 s%d, 0" % sPLAN)
    for j in range(11 if steal else 8):
        if j == 7:
            factor(vF, vMO)
            stamp(6)
        if j < NOWN: wait_block(8 + j)
        else: wait_pos(j, "L_vout%d" % j)
        if j == 7: stamp(7)
        if j >= 8:
            if j == 8:
                A("v_lshrrev_b32 v%d, 2, v0" % (vT + 4)); A("v_lshlrev_b32 v%d, 4, v%d" % (vT + 4, vT + 4))
                A("s_lshl_b32 s%d, s%d, 10" % (sT1, sWAVE)); A("s_add_u32 s%d, s%d, %d" % (sT1, sT1, HI + L_PP)); A("v_add_u32 v%d, s%d, v%d" % (vT + 4, sT1, vT + 4))
                A("v_lshl_add_u32 v%d, v%d, 2, s%d" % (vT + 5, vG4, sT1))
                for u in range(3): A("ds_read_b128 %s, v%d offset:%d" % (vr(vP + 4 * u, 4), vT + 4, 256 * (2 - u)))
                A("ds_read_b32 v%d, v%d offset:768" % (vF2, vT + 5)); A("s_waitcnt lgkmcnt(0)")
                factor(vF2, vF2)
        read_v(j)
        if j % 4 == 1:
            for d in range(8): A("v_add_u32 v%d, 0x10000, v%d" % (vVA + d, vVA + d))
        if j % 4 == 3 and (steal or j < 7):
            for d in range(8): A("v_subrev_u32 v%d, 0x10000, v%d" % (vVA + d, vVA + d))
        for d in range(8):
            A("s_waitcnt lgkmcnt(%d)" % (14 - 2 * d))
            if d == 7 and j < (7 if steal else 4):
                A("s_mov_b64 exec, 1"); A("ds_add_u32 v30, v%d offset:%d" % (vONE, F_FREED)); A("s_mov_b64 exec, -1")
            if j < 8: pv(j, d)
            else:
                acc = vr(vS2 + 4 * d, 4)
                A("v_mfma_f32_16x16x32_bf16 %s, %s, %s, %s" % (acc, vr(vP + 4 * (j - 8), 4), vr(vVB + 32 * (j & 1) + 4 * d, 4), "0" if j == 8 else acc))
    if steal:
        A("L_vout9:"); A("L_vout10:")
        A("s_nop 7")
        for d in range(8): A("v_mul_f32 v%d, v%d, v%d" % (vTMP + d, vF, vS + 4 * d))
        for d in range(8): A("v_fmac_f32 v%d, v%d, v%d" % (vTMP + d, vF2, vS2 + 4 * d))
        A("s_branch L_vsum")
        A("L_vout5:"); A("L_vout6:")
        factor(vF, vMO)
        A("L_vout7:"); A("L_vout8:")
        A("s_nop 7")
    for d in range(8): A("v_mul_f32 v%d, v%d, v%d" % (vTMP + d, vF, vS + 4 * d))
    if steal: A("L_vsum:")
    for d in range(0, 8, 2): A("ds_write2_b32 v%d, v%d, v%d offset0:%d offset1:%d" % (vOWA, vTMP + d, vTMP + d + 1, 16 * d, 16 * d + 16))
    vWOA, vOIR, vWO = 17, 18, vK
    A("v_lshlrev_b32 v%d, 7, v%d" % (vWOA, vC4)); A("v_lshl_add_u32 v%d, v%d, 10, v%d" % (vWOA, vG4, vWOA)); A("v_lshl_add_u32 v%d, v%d, 3, v%d" % (vWOA, vR4, vWOA))
    A("s_lshl_b32 s%d, s%d, 5" % (sT0, sWAVE)); A("s_add_u32 s%d, s%d, %d" % (sT0, sT0, HI + L_WO)); A("v_add_u32 v%d, s%d, v%d" % (vWOA, sT0, vWOA))
    A("s_waitcnt lgkmcnt(0)")
    A("s_barrier")
    stamp(8)
    def wo_reads():
        if wolate: lds_wait(F_WO, 1, sl=0)
        for m in range(4):
            A("ds_read_b64_tr_b16 %s, v%d offset:%d" % (vr(vWO + 4 * m, 2), vWOA, m * 4096))
            A("ds_read_b64_tr_b16 %s, v%d offset:%d" % (vr(vWO + 4 * m + 2, 2), vWOA, m * 4096 + 512))
    def oir_addr():
        A("v_lshrrev_b32 v%d, 1, v%d" % (vT, vN16)); A("v_lshlrev_b32 v%d, 10, v%d" % (vT, vT)); A("v_and_b32 v%d, 1, v0" % (vT + 1)); A("v_lshl_add_u32 v%d, v%d, 8, v%d" % (vT, vT + 1, vT))
        for m in range(4):
            A("v_add_u32 v%d, %d, v%d" % (vT + 1, 4 * m, vG4)); A("v_xor_b32 v%d, v%d, v%d" % (vT + 1, vT + 1, vN16))
            A("v_lshl_add_u32 v%d, v%d, 4, v%d" % (vOIR + m, vT + 1, vT))
        A("v_lshrrev_b32 v%d, 1, v%d" % (22, vN16)); A("v_lshlrev_b32 v22, %d, v22" % (16 + spad)); A("v_lshl_add_u32 v22, v%d, 4, v22" % vG4)
    A("s_cmp_gt_u32 s%d, 1" % sWAVE); A("s_cbranch_scc1 L_gather23")
    A("s_lshl_b32 s%d, s%d, 10" % (sT0, sWAVE)); A("s_add_u32 s%d, s%d, %d" % (sT0, sT0, HI + L_OW)); A("v_add_u32 v%d, s%d, v%d" % (vT, sT0, vL16))
    for w in range(4): A("ds_read_b128 %s, v%d offset:%d" % (vr(vS + 4 * w, 4), vT, w * 2048))
    A("v_lshrrev_b32 v%d, 5, v0" % (vT + 1)); A("v_lshlrev_b32 v%d, 13, v%d" % (vT + 1, vT + 1)); A("v_and_b32 v%d, 31, v0" % (vT + 2)); A("v_lshl_add_u32 v%d, v%d, 3, v%d" % (vT + 1, vT + 2, vT + 1))
    A("s_lshl_b32 s%d, s%d, 14" % (sT0, sWAVE)); A("s_add_u32 s%d, s%d, s%d" % (sT0, sT0, sOPOFF))
    A("s_waitcnt lgkmcnt(2)")
    for i in range(4): A("v_add_f32 v%d, v%d, v%d" % (vS + i, vS + i, vS + 4 + i))
    A("s_waitcnt lgkmcnt(0)")
    for i in range(4): A("v_add_f32 v%d, v%d, v%d" % (vS + 8 + i, vS + 8 + i, vS + 12 + i))
    for i in range(4): A("v_add_f32 v%d, v%d, v%d" % (vS + i, vS + i, vS + 8 + i))
    A("v_cvt_pk_bf16_f32 v%d, v%d, v%d" % (vTMP, vS, vS + 1)); A("v_cvt_pk_bf16_f32 v%d, v%d, v%d" % (vTMP + 1, vS + 2, vS + 3))
    A("buffer_store_dwordx2 %s, v%d, %s, s%d offen %s" % (vr(vTMP, 2), vT + 1, srd("WS"), sT0, ts))
    stamp(11)
    wo_reads(); oir_addr()
    A("s_branch L_barE_c")
    def gather(idx_sgpr, extra):
        vGa = 40
        A("s_lshr_b32 s%d, s%d, 3" % (sT1, sR)); A("s_lshl_b32 s%d, s%d, 13" % (sT1, sT1)); A("s_lshl_b32 s%d, s%d, 11" % (sT0, idx_sgpr))
        A("s_add_u32 s%d, s%d, s%d" % (sT1, sT1, sT0)); A("s_add_u32 s%d, s%d, 0x%x" % (sT1, sT1, WS_OP))
        lds_ = [(lambda: A("buffer_load_dwordx4 %s, v%d, %s, s%d offen %s" % (vr(vGa, 4), vL16, srd("WS"), sT1, tl)), list(range(vGa, vGa + 4))),
                (lambda: A("buffer_load_dwordx4 %s, v%d, %s, s%d offen offset:1024 %s" % (vr(vGa + 4, 4), vL16, srd("WS"), sT1, tl)), list(range(vGa + 4, vGa + 8)))]
        if td1: A("s_sleep %d" % td1)
        if at1:
            A("v_lshlrev_b32 v%d, 3, v0" % (vT + 7))
            apoll(vGa, vT + 7, sT1, 0, 0, first="only")
            extra()
            A("v_lshrrev_b32 v%d, 5, v0" % (vT + 2)); A("s_lshl_b32 s%d, s%d, 2" % (sT2, idx_sgpr)); A("v_add_u32 v%d, s%d, v%d" % (vT + 3, sT2, vT + 2))
            A("v_bfe_u32 v%d, v0, 1, 4" % (vT + 4)); A("v_xor_b32 v%d, v%d, v%d" % (vT + 3, vT + 3, vT + 4))
            A("v_lshlrev_b32 v%d, 8, v%d" % (vT + 2, vT + 2)); A("v_add_u32 v%d, s%d, v%d" % (vT + 2, sT0, vT + 2))
            A("v_and_b32 v%d, 1, v0" % (vT + 4)); A("v_lshl_add_u32 v%d, v%d, 3, v%d" % (vT + 2, vT + 4, vT + 2))
            A("v_lshl_add_u32 v%d, v%d, 4, v%d" % (vT + 5, vT + 3, vT + 2)); A("v_xor_b32 v%d, 32, v%d" % (vT + 6, vT + 5))
            apoll(vGa, vT + 7, sT1, 24, tsleep, first=False)
            stamp(11)
            for k in range(4): A("ds_write_b64 v%d, %s offset:%d" % (vT + 5 + (k >> 1), vr(vGa + 2 * k, 2), 512 * k))
            return
        for i_, _ in lds_: i_()
        A("v_and_b32 v%d, 1, v%d" % (vT + 2, vG4)); A("s_lshl_b32 s%d, s%d, 2" % (sT2, idx_sgpr)); A("v_add_u32 v%d, s%d, v%d" % (vT + 2, sT2, vT + 2))
        A("v_xor_b32 v%d, v%d, v%d" % (vT + 3, vT + 2, vN16)); A("v_xor_b32 v%d, 2, v%d" % (vT + 4, vT + 3))
        A("v_lshlrev_b32 v%d, 8, v%d" % (vT + 2, vG4)); A("v_add_u32 v%d, s%d, v%d" % (vT + 2, sT0, vT + 2))
        A("v_lshl_add_u32 v%d, v%d, 4, v%d" % (vT + 5, vT + 3, vT + 2)); A("v_lshl_add_u32 v%d, v%d, 4, v%d" % (vT + 6, vT + 4, vT + 2))
        extra()
        gpoll(lds_, first=False, sleep=tsleep, P=P1)
        stamp(11)
        A("ds_write_b128 v%d, %s" % (vT + 5, vr(vGa, 4))); A("ds_write_b128 v%d, %s offset:1024" % (vT + 6, vr(vGa + 4, 4)))
    A("L_gather23:")
    A("s_sub_u32 s%d, s%d, 2" % (sMU, sWAVE))
    gather(sMU, lambda: (wo_reads(), oir_addr()))
    A("L_barE_c:")
    A("s_waitcnt lgkmcnt(0)")
    A("s_barrier")
    stamp(9)
    for u in range(2):
        for m in range(4): A("ds_read_b128 %s, v%d offset:%d" % (vr(vS + 16 * u + 4 * m, 4), vOIR + m, u * 512))
    A("s_lshl_b32 s%d, s%d, %d" % (sT0, sWAVE, 11 + spad)); A("s_add_u32 s%d, s%d, s%d" % (sT0, sT0, sSPOFF))
    for u in range(2):
        for m in range(4):
            A("s_waitcnt lgkmcnt(%d)" % (7 - 4 * u - m))
            acc = vr(vTMP + 4 * u, 4)
            A("v_mfma_f32_16x16x32_bf16 %s, %s, %s, %s" % (acc, vr(vWO + 4 * m, 4), vr(vS + 16 * u + 4 * m, 4), "0" if m == 0 else acc))
    for i in range(4): A("v_add_f32 v%d, v%d, v%d" % (vTMP + i, vTMP + i, vTMP + 4 + i))
    for i in range(4): dpp("v_add_f32", vTMP + i, "quad_perm:[1,0,3,2]")
    A("s_mov_b32 exec_lo, 0x55555555"); A("s_mov_b32 exec_hi, 0x55555555")
    stamp(10)
    A("buffer_store_dwordx4 %s, v22, %s, s%d offen %s" % (vr(vTMP, 4), srd("WS"), sT0, ts))
    A("s_mov_b64 exec, -1")
    A("s_branch L_done")

    A("L_loader:")
    if ldprio: A("s_setprio %d" % ldprio)
    vO = 17
    A("v_lshlrev_b32 v%d, 8, v%d" % (vT, vG4))
    for i in range(4):
        A("v_add_u32 v%d, %d, v%d" % (vT + 1, 4 * i, vG4)); A("v_xor_b32 v%d, v%d, v%d" % (vT + 1, vT + 1, vN16)); A("v_lshl_add_u32 v%d, v%d, 4, v%d" % (vO + i, vT + 1, vT))
    for i in range(2):
        A("v_add_u32 v%d, %d, v%d" % (vT + 1, 4 * i, vG4)); A("v_lshlrev_b32 v%d, 1, v%d" % (vT + 1, vT + 1))
        A("v_xor_b32 v%d, v%d, v%d" % (vT + 1, vT + 1, vN16)); A("v_lshl_add_u32 v%d, v%d, 4, v%d" % (vO + 4 + i, vT + 1, vT))
    sG, sSLOT, sFR, sN = 12, 13, 88, 92
    A("s_bfe_u32 s%d, s%d, 0x30002" % (sBASE, sR)); A("s_lshl_b32 s%d, s%d, 23" % (sBASE, sBASE)); A("s_lshr_b32 s%d, s%d, 5" % (sT0, sR)); A("s_lshl_b32 s%d, s%d, 20" % (sT0, sT0))
    A("s_add_u32 s%d, s%d, s%d" % (sBASE, sBASE, sT0)); A("s_and_b32 s%d, s%d, 3" % (sT0, sR)); A("s_lshl_b32 s%d, s%d, 18" % (sT0, sT0)); A("s_add_u32 s%d, s%d, s%d" % (sBASE, sBASE, sT0))
    if rot:
        A("s_mov_b32 s94, s%d" % sBASE)
        A("s_mul_i32 s%d, s%d, %d" % (sT0, sR, rot)); A("s_lshr_b32 s%d, s%d, 5" % (sT1, sR)); A("s_add_u32 s%d, s%d, s%d" % (sT0, sT0, sT1))
        A("s_and_b32 s%d, s%d, 31" % (sT0, sT0)); A("s_lshl_b32 s%d, s%d, 13" % (sT0, sT0)); A("s_add_u32 s%d, s%d, s%d" % (sBASE, sBASE, sT0))
    if Fhi:
        A("s_and_b32 s%d, s2, 7" % sT0); A("s_lshr_b32 s%d, %d, s%d" % (sT0, himask, sT0)); A("s_and_b32 s%d, s%d, 1" % (sT0, sT0)); A("s_cselect_b32 s95, %d, %d" % (Fhi, F))
    A("s_mov_b32 s94, 0"); A("s_mov_b32 s93, 0"); A("s_mov_b32 s%d, s%d" % (sOFF, sBASE)); A("s_mov_b32 s%d, 0" % sG); A("s_mov_b32 s%d, 0" % sSLOT); A("s_mov_b32 s%d, 0" % sN)
    A("s_waitcnt lgkmcnt(0)")
    def publish_full(sgpr):
        A("v_mov_b32 v%d, s%d" % (vT, sgpr)); A("s_mov_b64 exec, 1"); A("ds_max_u32 v%d, v%d offset:%d" % (vHI, vT, F_FULL)); A("s_mov_b64 exec, -1")
    def dma_block(isk):
        Dm = D if isk else DV
        for half in range(2):
            A("s_mov_b32 m0, s%d" % sSLOT)
            if Dm: A("s_waitcnt vmcnt(%d)" % Dm)
            for i in range(4):
                A("buffer_load_dwordx4 v%d, %s, s%d offen offset:%d %s lds" % (vO + i if isk else vO + 4 + (i & 1), srd("K" if isk else "V"), sOFF, i * 1024, pol))
            A("s_add_u32 s%d, s%d, 4096" % (sOFF, sOFF)); A("s_add_u32 s%d, s%d, 4096" % (sSLOT, sSLOT))
            if Dm and (4 * half - Dm) % 8 < 4:
                A("s_add_i32 s%d, s%d, %d" % (sT0, sN, (4 * half - Dm) // 8)); A("s_max_i32 s%d, s%d, 0" % (sT0, sT0)); publish_full(sT0)
        if rot:
            A("s_and_b32 s%d, s%d, 0x3ffff" % (sOFF, sOFF)); A("s_or_b32 s%d, s%d, s94" % (sOFF, sOFF))
        A("s_and_b32 s%d, s%d, 0x1ffff" % (sSLOT, sSLOT)); A("s_add_u32 s%d, s%d, 1" % (sN, sN))
    if ldst == 2: stamp(1)
    for _ in range(pre): dma_block(True)
    A("s_barrier")
    if ldst == 2: stamp(2)
    for _ in range(4 - pre): dma_block(True)
    A("s_mov_b32 s%d, 1" % sG)
    if ldst == 2: stamp(3)
    def read_freed():
        A("ds_read_b128 %s, v%d offset:%d" % (vr(vT + 4, 4), vHI, F_FREED)); A("s_waitcnt lgkmcnt(0)")
        for c in range(4): A("v_readfirstlane_b32 s%d, v%d" % (sFR + c, vT + 4 + c))
    for isk, last in ((True, 8), (False, 19 if steal else 16)):
        loop = "L_ld_k" if isk else "L_ld_v"
        if not isk: A("s_mov_b32 s%d, s%d" % (sOFF, sBASE))
        A(loop + ":")
        for g_, reg in ((p_a, 16), (p_b, 18)):
            if g_ > 0 and g_ < 16 and (g_ < 8) == isk:
                sk = A.label("st"); A("s_cmp_lg_u32 s%d, %d" % (sG, g_)); A("s_cbranch_scc1 " + sk); A("s_memrealtime s[%d:%d]" % (reg, reg + 1)); A(sk + ":")
        if ldst == 1:
            for k, g in enumerate((2, 3, 4, 5, 6, 7) if isk else (8, 10, 12, 14)):
                sk = A.label("st"); A("s_cmp_lg_u32 s%d, %d" % (sG, g)); A("s_cbranch_scc1 " + sk); stamp(k + 1 if isk else k + 7); A(sk + ":")
        if steal and not isk:
            go = A.label("pgo"); again = A.label("pagain")
            A("s_cmp_lt_u32 s%d, %d" % (sG, 8 + NOWN)); A("s_cbranch_scc1 " + go)
            A("s_mov_b32 s%d, 0" % sSPIN); A("s_sub_u32 s%d, s%d, 8" % (sT1, sG))
            if ldst: A("s_memrealtime s[14:15]")
            A(again + ":")
            A("ds_read_b32 v%d, v%d offset:%d" % (vPOLL, vHI, F_PLAN)); A("s_waitcnt lgkmcnt(0)"); A("v_readfirstlane_b32 s%d, v%d" % (sT0, vPOLL))
            A("s_and_b32 s%d, s%d, 0xff" % (sT2, sT0)); A("s_cmp_gt_u32 s%d, s%d" % (sT2, sT1)); A("s_cbranch_scc1 L_granted")
            A("s_cmp_ge_u32 s%d, 0x100" % sT0); A("s_cbranch_scc1 L_ld_end")
            for k in range(F - 1, -1, -1):
                A("s_cmp_eq_u32 s%d, %d" % (sSPIN, F - 1 - k)); nx = A.label("nx"); A("s_cbranch_scc0 " + nx)
                A("s_sub_u32 s%d, s%d, %d" % (sT0, sN, k)); A("s_waitcnt vmcnt(%d)" % (8 * k)); publish_full(sT0); A(nx + ":")
            if ldst: A("s_add_u32 s93, s93, 1")
            A("s_add_u32 s%d, s%d, 1" % (sSPIN, sSPIN)); A("s_cmp_lt_u32 s%d, %d" % (sSPIN, lspin)); A("s_cbranch_scc1 " + again)
            A("s_branch L_ld_end")
            A("L_granted:")
            if ldst:
                A("s_memrealtime s[36:37]"); A("s_waitcnt lgkmcnt(0)"); A("s_sub_u32 s36, s36, s14"); A("s_add_u32 s94, s94, s36")
            A("s_cmp_lt_u32 s%d, 16" % sG); A("s_cbranch_scc1 " + go)
            A("s_sub_u32 s%d, 23, s%d" % (sT0, sG)); A("s_lshl_b32 s%d, s%d, 15" % (sT0, sT0)); A("s_xor_b32 s%d, s%d, 0x80000" % (sOFF, sBASE)); A("s_add_u32 s%d, s%d, s%d" % (sOFF, sOFF, sT0))
            A(go + ":")
        read_freed()
        A("s_sub_i32 s%d, s%d, 2" % (sT1, sG))
        if Fhi and hiend < 16:
            A("s_cmp_ge_u32 s%d, %d" % (sG, hiend)); A("s_cselect_b32 s95, %d, s95" % F)
        for c in range(4):
            go = A.label("go"); sl = A.label("slow")
            A("s_cmp_ge_i32 s%d, s%d" % (sFR + c, sT1)); A("s_cbranch_scc1 " + go)
            A("s_waitcnt vmcnt(0)"); publish_full(sN)
            if ldst: A("s_add_u32 s93, s93, 100")
            A("s_mov_b32 s%d, 0" % sSPIN)
            A(sl + ":")
            read_freed()
            A("s_cmp_ge_i32 s%d, s%d" % (sFR + c, sT1)); A("s_cbranch_scc1 " + go)
            A("s_add_u32 s%d, s%d, 1" % (sSPIN, sSPIN)); A("s_cmp_lt_u32 s%d, %d" % (sSPIN, lspin)); A("s_cbranch_scc1 " + sl)
            A(go + ":")
            dma_block(isk)
            if D: pass
            elif bal == 1:
                hi = A.label("hi")
                A("ds_read_b32 v%d, v%d offset:%d" % (vPOLL, vHI, F_MODE))
                A("s_sub_i32 s%d, s%d, %d" % (sT0, sN, F))
                A("s_waitcnt vmcnt(%d) lgkmcnt(0)" % (8 * F)); A("v_readfirstlane_b32 s%d, v%d" % (sT2, vPOLL))
                A("s_cmp_eq_u32 s%d, 0" % sT2); A("s_cbranch_scc1 " + hi)
                publish_full(sT0)
                if ldst: A("s_add_u32 s94, s94, 100")
                A("s_sub_i32 s%d, s%d, %d" % (sT0, sN, (Flo + 7) // 8 if Flo > 7 else Flo))
                A("s_waitcnt vmcnt(%d)" % (Flo if Flo > 7 else 8 * Flo)); A(hi + ":"); publish_full(sT0)
            elif Fhi:
                hi = A.label("hi")
                A("s_sub_i32 s%d, s%d, s95" % (sT0, sN)); A("s_max_i32 s%d, s%d, 0" % (sT0, sT0))
                A("s_waitcnt vmcnt(%d)" % (8 * Fhi)); A("s_cmp_eq_u32 s95, %d" % Fhi); A("s_cbranch_scc1 " + hi)
                A("s_waitcnt vmcnt(%d)" % (8 * F)); A(hi + ":"); publish_full(sT0)
            else:
                A("s_sub_i32 s%d, s%d, %d" % (sT0, sN, F))
                if F > 5: A("s_max_i32 s%d, s%d, 0" % (sT0, sT0))
                A("s_waitcnt vmcnt(%d)" % (8 * F)); publish_full(sT0)
        if stamps:
            pass
        A("s_add_u32 s%d, s%d, 1" % (sG, sG)); A("s_cmp_lt_u32 s%d, %d" % (sG, last)); A("s_cbranch_scc1 " + loop)
        if not ldst: stamp(1 if isk else 2)
    def wo_dma():
        A("v_lshrrev_b32 v%d, 3, v0" % (vT + 4)); A("v_lshlrev_b32 v%d, 10, v%d" % (vT + 4, vT + 4)); A("v_and_b32 v%d, 7, v0" % (vT + 5)); A("v_lshl_add_u32 v%d, v%d, 4, v%d" % (vT + 4, vT + 5, vT + 4))
        A("s_lshr_b32 s%d, s%d, 3" % (sT0, sR)); A("s_lshl_b32 s%d, s%d, 17" % (sT0, sT0)); A("s_and_b32 s%d, s%d, 7" % (sT1, sR)); A("s_lshl_b32 s%d, s%d, 7" % (sT1, sT1))
        A("s_add_u32 s%d, s%d, s%d" % (sT0, sT0, sT1))
        for a in range(16):
            A("s_mov_b32 m0, %d" % (HI + L_WO + a * 1024))
            A("buffer_load_dwordx4 v%d, %s, s%d offen %s lds" % (vT + 4, srd("WO"), sT0, polo))
            if a < 15: A("s_add_u32 s%d, s%d, 0x2000" % (sT0, sT0))
    if steal:
        A("L_ld_end:")
        A("s_mov_b64 exec, 1"); A("ds_write_b32 v%d, v%d offset:%d" % (vHI, vONE, F_LI)); A("s_mov_b64 exec, -1")
    if wolate == 1: wo_dma()
    for k in range((DV + 4 + 7) // 8 - 1 if D else max(F, Fhi) - 1, -1, -1):
        A("s_sub_u32 s%d, s%d, %d" % (sT0, sN, k)); A("s_waitcnt vmcnt(%d)" % (8 * k + (16 if wolate == 1 else 0))); publish_full(sT0)
    if wolate == 1:
        if ldst: stamp(11)
        A("s_waitcnt vmcnt(0)"); A("s_mov_b64 exec, 1"); A("ds_write_b32 v%d, v%d offset:%d" % (vHI, vONE, F_WO)); A("s_mov_b64 exec, -1")
    if ldst:
        if wolate == 1: stamp(12)
        else:
            stamp(11)
            A("s_waitcnt lgkmcnt(0)"); A("s_mul_i32 s%d, s%d, 25" % (sT0, sN)); A("s_add_u32 s40, s16, s%d" % sT0); A("s_addc_u32 s41, s17, 0")
            if steal: A("s_add_u32 s36, s16, s94"); A("s_addc_u32 s37, s17, 0")
            if bal: A("s_add_u32 s40, s16, s94"); A("s_addc_u32 s41, s17, 0")
    else: stamp(3)
    if p_b >= 0:
        if p_b == 16: A("s_memrealtime s[18:19]")
        A("s_waitcnt lgkmcnt(0)"); A("s_sub_u32 s18, s18, s16"); A("v_mov_b32 v8, s18"); A("s_mov_b64 exec, 1"); A("buffer_atomic_add v8, off, %s, 0 offset:4" % srd("DBG")); A("s_mov_b64 exec, -1")
    if pspan:
        A("s_memrealtime s[18:19]"); A("s_waitcnt lgkmcnt(0)")
        if pspan in (3, 4): A("s_mov_b32 s18, s16")
        if pm: A("s_and_b32 s6, s2, %d" % pm); A("s_cmp_eq_u32 s6, %d" % pval); A("s_cselect_b32 s18, s18, s16")
        A("s_not_b32 s16, s16"); A("v_mov_b32 v8, s18"); A("v_mov_b32 v9, s16"); A("s_mov_b64 exec, 1")
        A("buffer_atomic_%s v8, off, %s, 0 offset:4" % ("add" if pspan in (4, 5) else "umax", srd("DBG"))); A("buffer_atomic_umax v9, off, %s, 0 offset:8" % srd("DBG")); A("s_mov_b64 exec, -1")
    if pgrp:
        A("s_memrealtime s[18:19]")
        if pgrp == 1: A("s_and_b32 s6, s2, 7")
        elif pgrp == 2: A("s_bfe_u32 s6, s%d, 0x30002" % sR)
        elif pgrp == 3: A("s_lshr_b32 s6, s%d, 5" % sR)
        else: A("s_and_b32 s6, s%d, 3" % sR); A("s_lshr_b32 s7, s2, 7"); A("s_lshl_b32 s7, s7, 2"); A("s_add_u32 s6, s6, s7")
        A("s_lshl_b32 s6, s6, 5")
        A("s_waitcnt lgkmcnt(0)"); A("v_mov_b32 v8, s18"); A("s_mov_b64 exec, 1"); A("buffer_atomic_%s v8, off, %s, s6 offset:4" % ("add" if pat >= 12 else "umax", srd("DBG"))); A("s_mov_b64 exec, -1")
    if probe:
        A("s_memrealtime s[20:21]"); A("s_waitcnt lgkmcnt(0)")
        if pstart: A("s_mov_b32 s20, s16")
        A("s_and_b32 s6, s2, 7"); A("s_lshr_b32 s6, %d, s6" % probe); A("s_and_b32 s6, s6, 1"); A("s_lshl_b32 s6, s6, 2"); A("s_add_u32 s6, s6, 4")
        A("s_waitcnt lgkmcnt(0)"); A("v_mov_b32 v8, s20"); A("s_mov_b64 exec, 1"); A("buffer_atomic_add v8, off, %s, s6" % srd("DBG")); A("s_mov_b64 exec, -1")
    A("s_waitcnt lgkmcnt(0)")
    A("s_branch L_done")

    def slot_addrs():
        A("v_lshlrev_b32 v28, 5, v0")
        A("s_and_b32 s%d, s%d, 3" % (sT0, sR)); A("s_lshl_b32 s%d, s%d, 3" % (sT0, sT0)); A("s_add_u32 s%d, s%d, s%d" % (sMU, sT0, sSTOFF))
    A("L_comm:")
    vZ = 20
    for i in range(4): A("v_mov_b32 v%d, 0" % (vZ + i))
    A("v_lshl_add_u32 v%d, v0, 2, v%d" % (vT, vHI))
    A("s_mov_b64 exec, 0xffff"); A("ds_write_b32 v%d, v%d offset:%d" % (vT, vZ, L_FLG)); A("s_mov_b64 exec, -1")
    slot_addrs()
    sEP = 4
    def epoch():
        A("s_waitcnt vmcnt(0)")
        A("v_readfirstlane_b32 s%d, v30" % sEP); A("v_readfirstlane_b32 s%d, v31" % (sEP + 1))
        A("s_add_u32 s%d, s%d, 0x%x" % (sEP, sEP, EP_STEP & 0xffffffff)); A("s_addc_u32 s%d, s%d, 0x%x" % (sEP + 1, sEP + 1, EP_STEP >> 32))
    A("s_waitcnt lgkmcnt(0)")
    A("buffer_load_dwordx2 v[30:31], off, %s, 0 offset:%d sc1" % (srd("WS"), WS_EP))
    A("s_barrier")
    A("v_add_u32 v%d, v%d, v%d" % (vT, vHI, vL16))
    A("v_and_b32 v29, 7, v0"); A("v_lshlrev_b32 v29, 14, v29"); A("v_lshl_add_u32 v29, v%d, 4, v29" % vG4)
    A("s_lshl_b32 s%d, s%d, 6" % (sT2, sRQ)); A("s_add_u32 s%d, s%d, 0x%x" % (sT2, sT2, WS_Q))
    A("s_bfe_u32 s%d, s%d, 0x30002" % (sT0, sR)); A("s_lshl_b32 s%d, s%d, 14" % (sT0, sT0)); A("s_lshr_b32 s%d, s%d, 5" % (sT1, sR)); A("s_lshl_b32 s%d, s%d, 11" % (sT1, sT1))
    A("s_add_u32 s%d, s%d, s%d" % (sT0, sT0, sT1)); A("s_add_u32 s%d, s%d, 0x%x" % (sT0, sT0, WS_Q))
    A("v_lshl_add_u32 v27, v0, 3, v%d" % vHI)
    epoch()
    A("v_mov_b32 v38, s%d" % sEP); A("v_mov_b32 v39, s%d" % (sEP + 1))
    stamp(1)
    lds_wait(F_QP, 4)
    for w in range(4): A("ds_read_b128 %s, v%d offset:%d" % (vr(40 + 4 * w, 4), vT, L_QP + w * 1024))
    A("s_waitcnt lgkmcnt(0)")
    for i in range(4): A("v_add_f32 v%d, v%d, v%d" % (40 + i, 40 + i, 44 + i)); A("v_add_f32 v%d, v%d, v%d" % (48 + i, 48 + i, 52 + i))
    for i in range(4): A("v_add_f32 v%d, v%d, v%d" % (40 + i, 40 + i, 48 + i))
    A("v_cvt_pk_bf16_f32 v36, v40, v41"); A("v_cvt_pk_bf16_f32 v37, v42, v43")
    A("s_mov_b32 exec_lo, 0x00ff00ff"); A("s_mov_b32 exec_hi, 0x00ff00ff")
    A("buffer_store_dwordx4 v[36:39], v29, %s, s%d offen sc1" % (srd("WS"), sT2))
    A("s_mov_b64 exec, -1")
    stamp(2)
    if qdelay: A("s_sleep %d" % qdelay)
    if qtrig: lds_wait(F_FULL, qtrig, sl=4)
    gpoll([(lambda: A("buffer_load_dwordx4 v[32:35], v%d, %s, s%d offen sc1" % (vL16, srd("WS"), sT0)), [32, 33, 34, 35]),
           (lambda: A("buffer_load_dwordx4 v[40:43], v%d, %s, s%d offen offset:1024 sc1" % (vL16, srd("WS"), sT0)), [40, 41, 42, 43])], sleep=qsleep, tag="s[%d:%d]" % (sEP, sEP + 1))
    A("ds_write_b64 v27, v[32:33] offset:%d" % L_QB); A("ds_write_b64 v27, v[40:41] offset:%d" % (L_QB + 512))
    lds_add(vHI, F_QR)
    stamp(4)
    def all_marked():
        A("v_lshlrev_b32 v%d, 5, v0" % (vT + 3))
        word_poll("buffer_load_dword v32, v%d, %s, 0 offen sc1" % (vT + 3, srd("DBG")), 32, "0xff", "v_cmp_gt_u32 vcc, 32, v%d", fsleep)
        stamp(3)
    all_marked()
    lds_add(vHI, F_AM)
    A("v_lshlrev_b32 v%d, 3, v%d" % (vT + 1, vN16)); A("v_add_u32 v%d, v%d, v%d" % (vT + 2, vHI, vT + 1))
    lds_wait(F_ST, 4)
    A("ds_read_b64 v[32:33], v%d offset:%d" % (vT + 2, L_ST)); A("s_waitcnt lgkmcnt(0)")
    def combine(modes):
        A("v_mov_b32 v34, v32")
        for m in modes: dpp("v_max_f32", 34, m)
        A("v_sub_f32 v32, v32, v34"); A("v_exp_f32 v32, v32"); A("v_mul_f32 v35, v32, v33")
        for m in modes: dpp("v_add_f32", 35, m)
    combine(("row_ror:4", "row_ror:8"))
    A("s_mov_b64 exec, 0xf"); A("buffer_store_dwordx2 v[34:35], v28, %s, s%d offen sc1" % (srd("WS"), sMU)); A("s_mov_b64 exec, -1")
    stamp(5)
    if sdelay: A("s_sleep %d" % sdelay)
    if strig:
        lds_wait(F_FULL, strig, sl=8)
    gpoll([(lambda: A("buffer_load_dwordx2 v[32:33], v%d, %s, s%d offen sc1" % (vT + 1, srd("WS"), sSTOFF)), [32, 33])], sleep=ssleep)
    combine(("quad_perm:[1,0,3,2]", "quad_perm:[2,3,0,1]"))
    A("v_rcp_f32 v35, v35"); A("v_lshl_add_u32 v%d, v%d, 3, v%d" % (vT + 2, vC4, vHI))
    A("s_mov_b64 exec, 0x1111"); A("ds_write_b64 v%d, v[34:35] offset:%d" % (vT + 2, L_GS)); A("s_mov_b64 exec, -1")
    lds_add(vHI, F_GR)
    stamp(6)
    A("s_mov_b32 s%d, 2" % sMU)
    A("L_gather56:")
    A("s_waitcnt lgkmcnt(0)")
    A("s_barrier")
    stamp(8)
    gather(sMU, lambda: None)
    A("s_waitcnt lgkmcnt(0)")
    A("s_barrier")
    stamp(9)
    A("s_branch L_done")

    A("L_mlp:")
    vW, vU = 32, 64
    def pg_addr(line, word):
        A("s_lshr_b32 s%d, s2, 3" % line); A("s_lshl_b32 s%d, s%d, 8" % (line, line)); A("s_add_u32 s%d, s%d, 0x%x" % (line, line, WS_PG))
        A("s_and_b32 s%d, s2, 7" % word); A("s_lshl_b32 s%d, s%d, 2" % (word, word)); A("s_add_u32 s%d, s%d, s%d" % (word, word, line))
    def clean():
        A("s_cmp_lg_u32 s%d, 7" % sWAVE); A("s_cbranch_scc1 L_noclean")
        for i in range(4): A("v_mov_b32 v%d, -1" % (60 + i))
        slot_addrs()
        A("v_lshlrev_b32 v%d, 13, v%d" % (59, vG4)); A("v_lshl_add_u32 v%d, v%d, 4, v%d" % (59, vN16, 59))
        A("s_lshl_b32 s%d, s%d, %d" % (sT1, sR, 11 + spad)); A("s_add_u32 s%d, s%d, 0x%x" % (sT1, sT1, WS_SP))
        A("v_lshrrev_b32 v29, 2, v0"); A("v_lshlrev_b32 v29, %d, v29" % (6 + spad)); A("v_lshl_add_u32 v29, v%d, 4, v29" % vR4)
        A("s_waitcnt lgkmcnt(0)")
        A("buffer_load_dwordx2 v[30:31], off, %s, 0 offset:%d sc1" % (srd("WS"), WS_EP))
        A("s_mov_b64 exec, 0xf"); A("buffer_store_dwordx2 v[60:61], v28, %s, s%d offen sc1" % (srd("WS"), sMU)); A("s_mov_b64 exec, -1")
        A("buffer_store_dwordx4 v[60:63], v%d, %s, s%d offen sc1" % (59, srd("WS"), sOPOFF))
        A("buffer_store_dwordx4 v[60:63], v29, %s, s%d offen sc1" % (srd("WS"), sT1))
        A("buffer_store_dwordx4 v[60:63], v29, %s, s%d offen offset:%d sc1" % (srd("WS"), sT1, 1024 << spad))
        if bal:
            pg_addr(sT1, sT3)
            A("s_mov_b64 exec, 1"); A("buffer_store_dword v60, off, %s, s%d sc1" % (srd("WS"), sT3)); A("s_mov_b64 exec, -1")
        if steal:
            A("s_lshl_b32 s%d, s%d, 12" % (sT1, sR)); A("s_add_u32 s%d, s%d, 0x%x" % (sT1, sT1, WS_PR))
            for k in range(4): A("buffer_store_dwordx4 v[60:63], v%d, %s, s%d offen offset:%d sc1" % (vL16, srd("WS"), sT1, 1024 * k))
            A("s_lshl_b32 s%d, s%d, 7" % (sT1, sR)); A("s_add_u32 s%d, s%d, 0x%x" % (sT1, sT1, WS_CW))
            A("s_mov_b64 exec, 1"); A("buffer_store_dword v60, off, %s, s%d sc1" % (srd("WS"), sT1)); A("s_mov_b64 exec, -1")
        A("L_noclean:")
    def arrive(cnt, lbl):
        A("s_cmp_lg_u32 s%d, 7" % sWAVE); A("s_cbranch_scc1 " + lbl)
        A("s_lshr_b32 s%d, s%d, 5" % (sT3, sR)); A("s_lshl_b32 s%d, s%d, 5" % (sT3, sT3))
        A("s_mov_b64 exec, 1")
        A("s_waitcnt vmcnt(%d)" % cnt)
        A("buffer_atomic_add v%d, off, %s, s%d" % (vONE, srd("DBG"), sT3))
        A("s_mov_b64 exec, -1")
        stamp(4)
        A(lbl + ":")
    if not cllate: clean()
    A("s_sub_u32 s%d, s%d, 6" % (sMB, sWAVE))
    A("v_mul_u32_u24 v%d, 12, v0" % vT); A("s_mul_i32 s%d, s%d, 1792" % (sT1, sMB))
    A("s_waitcnt lgkmcnt(0)")
    A("s_load_dword s%d, s[%d:%d], 0" % (sB2, sB2P, sB2P + 1))
    if tlb:
        A("s_bfe_u32 s%d, s%d, 0x30002" % (sBASE, sR)); A("s_lshl_b32 s%d, s%d, 23" % (sBASE, sBASE)); A("s_lshr_b32 s%d, s%d, 5" % (sT0, sR)); A("s_lshl_b32 s%d, s%d, 20" % (sT0, sT0))
        A("s_add_u32 s%d, s%d, s%d" % (sBASE, sBASE, sT0)); A("s_and_b32 s%d, s%d, 3" % (sT0, sR)); A("s_lshl_b32 s%d, s%d, 18" % (sT0, sT0)); A("s_add_u32 s%d, s%d, s%d" % (sBASE, sBASE, sT0))
        A("s_cmp_lg_u32 s%d, 6" % sWAVE); A("s_cbranch_scc1 L_notlb")
        A("s_mov_b64 exec, 1")
        if tlb & 1: A("buffer_load_dword v120, off, %s, s%d" % (srd("V"), sBASE))
        if tlb & 2:
            A("s_lshr_b32 s%d, s%d, 3" % (sT0, sR)); A("s_lshl_b32 s%d, s%d, 17" % (sT0, sT0))
            A("buffer_load_dword v121, off, %s, s%d" % (srd("WO"), sT0))
        if tlb & 4:
            A("v_lshlrev_b32 v122, 16, v0"); A("s_mov_b64 exec, 0xf")
            A("buffer_load_dword v123, v122, %s, s%d offen" % (srd("V"), sBASE))
            A("buffer_load_dword v124, v122, %s, s%d offen" % (srd("K"), sBASE))
        A("s_mov_b64 exec, -1")
        A("L_notlb:")
    A("s_barrier")
    for k, n in enumerate(("W1", "B1", "W2")):
        A("buffer_load_dwordx4 %s, v%d, %s, s%d offen" % (vr(vW + 8 * k, 4), vL16, srd(n), sT1))
        A("buffer_load_dwordx3 %s, v%d, %s, s%d offen offset:1024" % (vr(vW + 8 * k + 4, 3), vT, srd(n), sT1))
    if not cllate: arrive(6, "L_noflag")
    A("s_lshr_b32 s%d, s%d, 5" % (sT0, sR)); A("s_mul_i32 s%d, s%d, %d" % (sT0, sT0, XN_STRIDE)); A("s_add_u32 s%d, s%d, %d" % (sT0, sT0, HI)); A("v_add_u32 v%d, s%d, v%d" % (vT + 1, sT0, vL16))
    A("s_lshl_b32 s%d, s%d, 13" % (sT2, sMB)); A("s_add_u32 s%d, s%d, %d" % (sT2, sT2, HI + L_WO)); A("v_add_u32 v%d, s%d, v%d" % (vT + 2, sT2, vL16))
    A("s_and_b32 s%d, s%d, 31" % (sT0, sR)); A("s_lshl_b32 s%d, s%d, 5" % (sT0, sT0)); A("s_add_u32 s%d, s%d, s%d" % (sT0, sT0, sT2))
    A("v_lshlrev_b32 v%d, 1, v%d" % (vT + 3, vN16)); A("v_add_u32 v%d, s%d, v%d" % (vT + 3, sT0, vT + 3))
    lds_wait(F_XN, 4)
    if cllate: clean()
    vXm = 112
    A("ds_read_b128 %s, v%d offset:%d" % (vr(vXm, 4), vT + 1, L_XN)); A("s_waitcnt lgkmcnt(0)")
    layernorm(vXm, 4, vXm + 4, vXm + 12, vXm + 20, 1)
    A("ds_write_b128 v%d, %s" % (vT + 2, vr(vXm, 4)))
    vH = 24
    A("ds_read_u16 v%d, v%d" % (vH, vT + 3))
    A("v_lshrrev_b32 v%d, 3, v0" % (vT + 4)); A("v_lshlrev_b32 v%d, 10, v%d" % (vT + 4, vT + 4)); A("v_and_b32 v%d, 7, v0" % (vT + 5)); A("v_lshl_add_u32 v%d, v%d, 4, v%d" % (vT + 4, vT + 5, vT + 4))
    A("s_lshr_b32 s%d, s%d, 3" % (sT0, sR)); A("s_lshl_b32 s%d, s%d, 17" % (sT0, sT0)); A("s_and_b32 s%d, s%d, 7" % (sT1, sR)); A("s_lshl_b32 s%d, s%d, 7" % (sT1, sT1))
    A("s_add_u32 s%d, s%d, s%d" % (sT0, sT0, sT1)); A("s_lshl_b32 s%d, s%d, 16" % (sT1, sMB)); A("s_add_u32 s%d, s%d, s%d" % (sT0, sT0, sT1))
    A("s_waitcnt vmcnt(0) lgkmcnt(0)")
    if cllate: arrive(0, "L_noflag")
    for a in range(8):
        A("s_add_u32 m0, s%d, %d" % (sT2, a * 1024))
        if 'o' not in abl and not wolate: A("buffer_load_dwordx4 v%d, %s, s%d offen %s lds" % (vT + 4, srd("WO"), sT0, polo))
        if a < 7: A("s_add_u32 s%d, s%d, 0x2000" % (sT0, sT0))
    stamp(1)
    A("v_lshlrev_b32 v%d, 16, v%d" % (vH, vH))
    for k in range(3):
        for i in range(7): unpack(vU + 14 * k + 2 * i, vU + 14 * k + 2 * i + 1, vW + 8 * k + i)
    vC0, vACC, U, T_ = 25, 26, 112, 128
    A("v_mov_b32 v%d, s%d" % (vC0, sC0))
    A("s_lshl_b32 s%d, s%d, 6" % (sT0, sMB)); A("s_add_u32 s%d, s%d, %d" % (sT0, sT0, HI + L_YP)); A("v_mov_b32 v27, s%d" % sT0)
    A("s_mov_b32 s%d, 0" % sT1)
    A("s_nop 3")
    A("L_mlp_loop:")
    A("v_readlane_b32 s%d, v%d, s%d" % (sMU, vH, sT1))
    for t in range(14): A("v_fma_f32 v%d, s%d, v%d, v%d" % (U + t, sMU, vU + t, vU + 14 + t))
    for t in range(14): A("v_mul_f32 v%d, v%d, v%d" % (T_ + t, U + t, U + t))
    for t in range(14): A("v_fma_f32 v%d, v%d, s%d, v%d" % (T_ + t, T_ + t, sC1, vC0))
    for t in range(14): A("v_mul_f32 v%d, v%d, v%d" % (T_ + t, T_ + t, U + t))
    for t in range(14):
        A("v_exp_f32 v%d, v%d" % (T_ + t, T_ + t)); A("v_mul_f32 v%d, v%d, v%d" % (U + t, U + t, vU + 28 + t))
    for t in range(14): A("v_add_f32 v%d, 1.0, v%d" % (T_ + t, T_ + t))
    for t in range(14): A("v_rcp_f32 v%d, v%d" % (T_ + t, T_ + t))
    A("v_mul_f32 v%d, v%d, v%d" % (vACC, U, T_)); A("v_mul_f32 v%d, v%d, v%d" % (U, U + 1, T_ + 1))
    for t in range(2, 14): A("v_fmac_f32 v%d, v%d, v%d" % (vACC if t & 1 else U, U + t, T_ + t))
    A("v_add_f32 v%d, v%d, v%d" % (vACC, vACC, U))
    red16(vACC, "v_add_f32"); dpp("v_add_f32", vACC, "row_bcast:15", "0xa"); dpp("v_add_f32", vACC, "row_bcast:31", "0xc")
    A("s_mov_b32 exec_lo, 0"); A("s_mov_b32 exec_hi, 0x80000000")
    A("ds_write_b32 v27, v%d" % vACC); A("v_add_u32 v27, 4, v27")
    A("s_mov_b64 exec, -1")
    A("s_add_u32 s%d, s%d, 1" % (sT1, sT1)); A("s_cmp_lt_u32 s%d, 16" % sT1); A("s_cbranch_scc1 L_mlp_loop")
    stamp(2)
    A("s_waitcnt vmcnt(0)")
    A("s_mov_b32 s%d, 3" % sMU)
    if steal:
        A("s_cmp_eq_u32 s%d, 7" % sWAVE); A("s_cbranch_scc1 L_final")
        lds_wait(F_AM, 1, sl=8)
        sCW = 4
        A("s_lshl_b32 s%d, s%d, 7" % (sCW, sR)); A("s_add_u32 s%d, s%d, 0x%x" % (sCW, sCW, WS_CW))
        def set_plan(val):
            A("v_mov_b32 v%d, %s" % (vT, val)); A("s_mov_b64 exec, 1"); A("ds_write_b32 v%d, v%d offset:%d" % (vHI, vT, F_PLAN)); A("s_mov_b64 exec, -1")
        for k in range(5, 11):
            if k == 8:
                A("s_xor_b32 s%d, s%d, 0x100" % (sCW, sCW))
            if k == 8:
                A("s_xor_b32 s%d, s%d, 2" % (sT1, sR)); A("s_lshl_b32 s%d, s%d, 12" % (sT1, sT1)); A("s_add_u32 s%d, s%d, 0x%x" % (sT1, sT1, WS_PR))
                A("v_add_u32 v%d, v%d, v%d" % (vT + 1, vHI, vL16))
                rec = [((lambda q=q: A("buffer_load_dwordx4 %s, v%d, %s, s%d offen offset:%d sc1" % (vr(36 + 4 * q, 4), vL16, srd("WS"), sT1, 1024 * q))), list(range(36 + 4 * q, 40 + 4 * q))) for q in range(4)]
                lds_wait(F_FULL, rtrig, sl=2)
                A("s_mov_b32 exec_hi, 0x1ffff")
                for i_, _ in rec: i_()
                A("s_mov_b64 exec, -1")
            lds_wait(F_FULL, 4 * k + cth + (bias if k >= 8 else 0), sl=2)
            A("v_mov_b32 v32, 1"); A("s_mov_b64 exec, 1")
            A("buffer_atomic_add v32, off, %s, s%d sc0" % (srd("WS"), sCW))
            A("s_mov_b64 exec, -1")
            A("s_mov_b32 s%d, 0x%x" % (sT2, 0x100 + k))
            A("s_waitcnt vmcnt(0)")
            A("v_readfirstlane_b32 s%d, v32" % sT0); A("s_add_u32 s%d, s%d, 1" % (sT0, sT0))
            if stamps and k < 9: stamp(k - 2)
            A("s_cmp_ge_u32 s%d, 3" % sT0); A("s_cbranch_scc1 L_close")
            if k == 8:
                A("s_mov_b32 exec_hi, 0x1ffff")
                gpoll(rec[:2], first=False, sleep=8, full="PARTIAL"); gpoll(rec[2:], first=False, sleep=8, full="PARTIAL")
                for q in range(4): A("ds_write_b128 v%d, %s offset:%d" % (vT + 1, vr(36 + 4 * q, 4), L_PP + 1024 * q))
                A("s_mov_b64 exec, -1")
                A("s_waitcnt lgkmcnt(0)")
            set_plan("%d" % (k + 1))
        A("s_mov_b32 s%d, 0x%x" % (sT2, 0x100 + 11))
        A("L_close:")
        set_plan("s%d" % sT2)
        A("s_branch L_gather56")
        A("L_final:")
    elif bal >= 2:
        A("s_cmp_eq_u32 s%d, 7" % sWAVE); A("s_cbranch_scc1 L_final")
        lds_wait(F_AM, 1, sl=8)
        pg_addr(4, 5)
        if bal == 3: A("s_lshl_b32 s4, s2, 8"); A("s_add_u32 s4, s4, 0x%x" % (WS_PG + 0x4000))
        for k in range(bmin):
            lds_wait(F_FULL, bthr + bper * k, sl=4)
            A("v_mov_b32 v%d, 1" % (32 + k)); A("s_mov_b64 exec, 1")
            if bal == 4: A("buffer_load_dword v%d, off, %s, s4 sc1" % (32 + k, srd("WS")))
            elif bal == 5: A("buffer_store_dword v%d, off, %s, s5 sc1" % (32 + k, srd("WS")))
            else: A("buffer_atomic_add v%d, off, %s, s4 sc0" % (32 + k, srd("WS")))
            A("s_mov_b64 exec, -1")
        A("s_waitcnt vmcnt(0)")
        A("s_branch L_gather56")
        A("L_final:")
    elif bal:
        A("s_cmp_eq_u32 s%d, 7" % sWAVE); A("s_cbranch_scc1 L_final")
        lds_wait(F_AM, 1, sl=8)
        pg_addr(4, 5)
        A("s_and_b32 s12, s2, 7"); A("v_lshlrev_b32 v33, 2, v0"); A("s_mov_b32 s13, 0")
        A("L_bal:")
        A("s_mov_b64 exec, 0xff"); A("buffer_load_dword v32, v33, %s, s4 offen sc1" % srd("WS"))
        A("s_mov_b64 exec, 1")
        A("ds_read_b32 v34, v%d offset:%d" % (vHI, F_FULL)); A("s_waitcnt lgkmcnt(0)")
        A("buffer_store_dword v34, off, %s, s5 sc1" % srd("WS"))
        A("s_mov_b64 exec, -1")
        A("v_readfirstlane_b32 s%d, v34" % sT0)
        A("s_cmp_ge_u32 s%d, %d" % (sT0, bstop)); A("s_cbranch_scc1 L_balend")
        A("s_waitcnt vmcnt(1)")
        A("v_readlane_b32 s%d, v32, s12" % sT1)
        A("s_mov_b64 exec, 0xff")
        A("v_cmp_eq_u32 vcc, -1, v32")
        if bmin:
            for m in QUADS[:3]: dpp("v_min_u32", 32, m)
        else:
            for m in QUADS[:3]: dpp("v_add_u32", 32, m)
        A("s_mov_b64 exec, -1")
        A("v_readfirstlane_b32 s%d, v32" % sT2)
        A("s_cmp_lg_u64 vcc, 0"); A("s_cbranch_scc1 L_balskip")
        if not bmin: A("s_lshl_b32 s%d, s%d, 3" % (sT1, sT1))
        A("s_sub_i32 s%d, s%d, s%d" % (sT1, sT1, sT2)); A("s_cmp_gt_i32 s%d, %d" % (sT1, bthr)); A("s_cselect_b32 s%d, 1, 0" % sT1)
        A("v_mov_b32 v35, s%d" % sT1); A("s_mov_b64 exec, 1"); A("ds_write_b32 v%d, v35 offset:%d" % (vHI, F_MODE)); A("s_mov_b64 exec, -1")
        A("L_balskip:")
        if bper: A("s_sleep %d" % bper)
        A("s_add_u32 s13, s13, 1"); A("s_cmp_lt_u32 s13, 4096"); A("s_cbranch_scc1 L_bal")
        A("L_balend:")
        A("v_mov_b32 v35, 0"); A("s_mov_b64 exec, 1"); A("ds_write_b32 v%d, v35 offset:%d" % (vHI, F_MODE)); A("s_mov_b64 exec, -1")
        A("s_waitcnt vmcnt(0)")
        A("s_branch L_gather56")
        A("L_final:")
    else:
        A("s_cmp_eq_u32 s%d, 6" % sWAVE); A("s_cbranch_scc1 L_gather56")
    if at2:
        A("v_and_b32 v%d, 7, v0" % (vT + 1)); A("v_lshrrev_b32 v%d, 5, v0" % (vT + 2)); A("v_lshl_add_u32 v%d, v%d, 1, v%d" % (vT + 1, vT + 1, vT + 2))
    else: A("v_lshl_add_u32 v%d, v%d, 2, v%d" % (vT + 1, vR4, vG4))
    A("v_lshlrev_b32 v%d, 1, v%d" % (vT + 2, vT + 1)); A("s_lshl_b32 s%d, s%d, 5" % (sT0, sR))
    A("buffer_load_ushort v%d, v%d, %s, s%d offen" % (vT + 3, vT + 2, srd("X"), sT0))
    A("v_lshl_add_u32 v%d, v%d, 2, v%d" % (vT + 1, vT + 1, vHI))
    A("s_lshl_b32 s%d, s%d, %d" % (sT1, sR, 11 + spad)); A("s_add_u32 s%d, s%d, 0x%x" % (sT1, sT1, WS_SP))
    A("v_lshrrev_b32 v29, 2, v0"); A("v_lshlrev_b32 v29, %d, v29" % (6 + spad)); A("v_lshl_add_u32 v29, v%d, 4, v29" % vR4)
    if wolate == 2:
        A("s_mov_b32 s12, s%d" % sT0); A("s_mov_b32 s13, s%d" % sT1)
        if steal: lds_wait(F_LI, 1, sl=2)
        else: lds_wait(F_FULL, wotrig, sl=2)
        wo_dma()
        A("s_mov_b32 s%d, s12" % sT0); A("s_mov_b32 s%d, s13" % sT1)
    A("s_waitcnt lgkmcnt(0)")
    A("s_barrier")
    stamp(8)
    A("ds_read_b32 v40, v%d offset:%d" % (vT + 1, L_YP)); A("ds_read_b32 v41, v%d offset:%d" % (vT + 1, L_YP + 64)); A("s_waitcnt lgkmcnt(0)")
    A("v_add_f32 v40, v40, v41"); rbf(40)
    A("s_lshl_b32 s%d, s%d, 16" % (sB2, sB2)); A("v_add_f32 v40, s%d, v40" % sB2); rbf(40)
    A("v_mul_f32 v41, s%d, v40" % sL2E); A("v_exp_f32 v41, -v41"); A("v_add_f32 v41, 1.0, v41"); A("v_rcp_f32 v41, v41"); A("v_mul_f32 v40, v40, v41"); rbf(40)
    A("s_waitcnt vmcnt(0)"); A("v_lshlrev_b32 v%d, 16, v%d" % (vT + 3, vT + 3))
    if wolate == 2:
        A("s_mov_b64 exec, 1"); A("ds_write_b32 v%d, v%d offset:%d" % (vHI, vONE, F_WO)); A("s_mov_b64 exec, -1")
        stamp(11)
    A("s_barrier")
    stamp(9)
    if td2: A("s_sleep %d" % td2)
    if at2:
        A("v_lshlrev_b32 v29, 3, v0")
        apoll(32, 29, sT1, 44, tsleep2)
        stamp(10)
        A("v_add_f32 v44, v32, v34"); A("v_add_f32 v45, v33, v35"); A("v_add_f32 v46, v36, v38"); A("v_add_f32 v47, v37, v39")
        A("v_add_f32 v44, v44, v46"); A("v_add_f32 v45, v45, v47")
        A("v_permlane32_swap_b32 v44, v45"); A("v_add_f32 v44, v44, v45")
        swap_red(44, 45, "v_add_f32", 16)
        dpp("v_add_f32", 44, "row_ror:8")
    else:
        gpoll([(lambda: A("buffer_load_dwordx4 v[32:35], v29, %s, s%d offen %s" % (srd("WS"), sT1, tl)), [32, 33, 34, 35]),
               (lambda: A("buffer_load_dwordx4 v[36:39], v29, %s, s%d offen offset:%d %s" % (srd("WS"), sT1, 1024 << spad, tl)), [36, 37, 38, 39])], sleep=tsleep2, P=P2)
        stamp(10)
        for i in range(4): A("v_add_f32 v%d, v%d, v%d" % (44 + i, 32 + i, 36 + i))
        A("v_permlane32_swap_b32 v44, v46"); A("v_permlane32_swap_b32 v45, v47")
        A("v_add_f32 v44, v44, v46"); A("v_add_f32 v45, v45, v47")
        A("v_permlane16_swap_b32 v44, v45"); A("v_add_f32 v44, v44, v45")
        dpp("v_add_f32", 44, "row_ror:8"); dpp("v_add_f32", 44, "row_ror:4")
    rbf(44); A("v_mul_f32 v44, v44, v40"); rbf(44)
    A("v_add_f32 v44, v44, v%d" % (vT + 3)); A("v_cvt_pk_bf16_f32 v44, v44, v44")
    em = "0xff" if at2 else "0x000f000f"
    A("s_mov_b32 exec_lo, %s" % em); A("s_mov_b32 exec_hi, %s" % em)
    A("buffer_store_short v44, v%d, %s, s%d offen" % (vT + 2, srd("OUT"), sT0))
    A("s_mov_b64 exec, -1")
    A("s_cmp_lg_u32 s%d, 0" % sR); A("s_cbranch_scc1 L_done")
    epoch()
    A("v_mov_b32 v30, s%d" % sEP); A("v_mov_b32 v31, s%d" % (sEP + 1)); A("s_mov_b64 exec, 1")
    A("buffer_store_dwordx2 v[30:31], off, %s, 0 offset:%d sc1" % (srd("WS"), WS_EP))
    A("s_mov_b64 exec, -1")
    if pgrp:
        A("v_lshlrev_b32 v29, 5, v0"); A("s_mov_b64 exec, 0xff")
        A("buffer_load_dword v30, v29, %s, 0 offen offset:4 sc1" % srd("DBG")); A("s_memrealtime s[16:17]"); A("s_waitcnt vmcnt(0) lgkmcnt(0)")
        if pat >= 12:
            A("v_readfirstlane_b32 s6, v30"); A("v_subrev_u32 v30, s6, v30"); A("v_add_u32 v30, 0x100000, v30")
            if pat == 13: A("v_lshlrev_b32 v30, 3, v30"); A("v_or_b32 v30, v30, v0")
        A("v_mov_b32 v31, v30")
        for m in QUADS[:3]: dpp("v_max_u32", 30, m)
        if pat in (11, 12, 13, 14):
            for m in QUADS[:3]: dpp("v_min_u32", 31, m)
        else:
            A("v_subrev_u32 v31, v31, v30")
            for m in QUADS[:3]: dpp("v_add_u32", 31, m)
        A("s_mov_b64 exec, -1")
        A("v_readfirstlane_b32 s6, v30"); A("v_readfirstlane_b32 s7, v31")
        if pat == 11: A("s_sub_u32 s6, s6, s7"); A("s_lshl_b32 s6, s6, 3")
        elif pat == 12: A("s_sub_u32 s6, s6, s7"); A("s_lshr_b32 s6, s6, 2")
        elif pat == 13: A("s_and_b32 s6, s6, 7"); A("s_mul_i32 s6, s6, 300")
        else: A("s_mov_b32 s6, s7")
        A("s_min_u32 s6, s6, 20000")
        A("s_add_u32 s16, s16, s6")
        A("L_pad3:"); A("s_memrealtime s[18:19]"); A("s_waitcnt lgkmcnt(0)"); A("s_sub_u32 s18, s18, s16"); A("s_cmp_lt_i32 s18, 0"); A("s_cbranch_scc1 L_pad3")
    if probe or p_b >= 0 or pspan:
        A("buffer_load_dwordx2 v[30:31], off, %s, 0 offset:4 sc1" % srd("DBG")); A("s_memrealtime s[16:17]"); A("s_waitcnt vmcnt(0) lgkmcnt(0)")
        A("v_readfirstlane_b32 s6, v30"); A("v_readfirstlane_b32 s7, v31")
        if probe: A("s_sub_i32 s6, s6, s7"); A("s_abs_i32 s6, s6"); A("s_lshr_b32 s6, s6, 4")
        elif pspan == 1: A("s_not_b32 s7, s7"); A("s_sub_u32 s6, s6, s7"); A("s_lshl_b32 s6, s6, 2")
        elif pspan == 2: A("s_sub_u32 s6, s16, s6"); A("s_lshl_b32 s6, s6, 3")
        elif pspan == 6: A("s_not_b32 s7, s7"); A("s_sub_u32 s6, s16, s7"); A("s_lshl_b32 s6, s6, 2")
        elif pspan == 3: A("s_not_b32 s7, s7"); A("s_sub_u32 s6, s6, s7"); A("s_lshl_b32 s6, s6, 3")
        elif pspan in (4, 5): A("s_not_b32 s7, s7"); A("s_lshl_b32 s7, s7, 8"); A("s_sub_u32 s6, s6, s7"); A("s_lshr_b32 s6, s6, %d" % (5 if pspan == 4 else 6))
        else: A("s_lshr_b32 s6, s6, 5")
        A("s_min_u32 s6, s6, 20000")
        A("s_add_u32 s16, s16, s6")
        A("L_pad2:"); A("s_memrealtime s[18:19]"); A("s_waitcnt lgkmcnt(0)"); A("s_sub_u32 s18, s18, s16"); A("s_cmp_lt_i32 s18, 0"); A("s_cbranch_scc1 L_pad2")
    A("L_done:")
    A("s_waitcnt vmcnt(0)")
    if pad:
        A("s_waitcnt lgkmcnt(0)"); A("s_add_u32 s16, s16, %d" % pad)
        A("L_pad:"); A("s_memrealtime s[18:19]"); A("s_waitcnt lgkmcnt(0)"); A("s_sub_u32 s18, s18, s16"); A("s_cmp_lt_i32 s18, 0"); A("s_cbranch_scc1 L_pad")
    if stamps:
        A("s_waitcnt vmcnt(0)")
        stamp(NST - 1)
        A("s_waitcnt lgkmcnt(0)")
        A("s_lshl_b32 s%d, s2, 3" % sT0); A("s_add_u32 s%d, s%d, s%d" % (sT0, sT0, sWAVE)); A("s_mul_i32 s%d, s%d, %d" % (sT0, sT0, NST * 8)); A("s_add_u32 s%d, s%d, 0x%x" % (sT0, sT0, WS_STAMP))
        A("s_mov_b64 exec, 1")
        for k in range(NST):
            A("v_mov_b32 v2, s%d" % (16 + 2 * k)); A("v_mov_b32 v3, s%d" % (17 + 2 * k))
            A("buffer_store_dwordx2 v[2:3], off, %s, s%d offset:%d" % (srd("WS"), sT0, k * 8)); A("s_nop 1")
    A("L_end:")
    A("s_endpgm")
    body = A.finalize()
    hdr = open("recurrent_scan__gqa_block_cached__mixer_token_mlp__decode.s.ref").read().split("; Override launch")[0]
    s = hdr + "; @launch grid=(256,1,1) block=(512,1,1) lds=%d\n" % LDS_BYTES
    s += '.amdgcn_target "amdgcn-amd-amdhsa--gfx950"\n.text\n.globl %s\n.p2align 8\n.type %s,@function\n%s:\n' % (NAME, NAME, NAME)
    s += body
    s += '.section .rodata,"a"\n.p2align 6\n.amdhsa_kernel %s\n  .amdhsa_next_free_vgpr 256\n  .amdhsa_next_free_sgpr 102\n  .amdhsa_accum_offset 256\n' % NAME
    s += "  .amdhsa_group_segment_fixed_size 0\n  .amdhsa_kernarg_size 104\n  .amdhsa_user_sgpr_count 2\n  .amdhsa_user_sgpr_kernarg_segment_ptr 1\n  .amdhsa_system_sgpr_workgroup_id_x 1\n.end_amdhsa_kernel\n"
    return s, A

if __name__ == "__main__":
    out = sys.argv[1]
    kw = {}
    for p in sys.argv[2:]:
        k, v = p.split("=")
        kw[k] = int(v) if v.lstrip("-").isdigit() else v.replace("+", " ")
    s, A = gen(**kw)
    open(out, "w").write(s)
    print("wrote", out, "instructions", len(A.ins), "nops", A.nops, "lds", LDS_BYTES)
```

```python
import sys, struct
from asmlib import Asm

NAME = "recurrent_scan__gqa_block_cached__mixer_token_mlp__decode_kernel"
def f2u(x): return struct.unpack("<I", struct.pack("<f", x))[0]

WS_ST, WS_OP, WS_SP, WS_Q, WS_EP = 0x10000, 0x20000, 0x100000, 0x60000, 0x0
WS_PG = 0x90000
WS_CW, WS_PR = 0x80000, 0x200000
EP_STEP = 0x9E3779B97F4A7C15
WS_STAMP = 128 << 20
HI = 131072
L_WO = 0
L_XN, XN_STRIDE = 16384, 1040
L_OW = L_XN
L_QP = 24704
L_QB = 28800
L_FLG = 29824
L_ST = L_FLG + 64
L_GS = L_ST + 128
L_YP = L_GS + 32
LDS_BYTES = HI + L_YP + 128
F_FULL, F_FREED, F_XN, F_QP, F_QR, F_ST, F_GR, F_WO, F_AM, F_PLAN, F_LI, F_MODE = [L_FLG + 4 * i for i in (0, 4, 8, 9, 10, 11, 12, 13, 14, 1, 15, 2)]
L_PP = L_QP

sWAVE, sBASE, sOFF = 3, 4, 5
sT0, sT1, sT2 = 6, 7, 8
sR, sSPIN, sT3 = 9, 10, 11
sMU, sMB = 14, 15
SRD = dict(K=44, V=48, X=52, WQ=56, WO=60, W1=64, B1=68, W2=72, OUT=76, DBG=80, WS=84)
KARG = dict(X=0, K=8, V=16, WQ=24, WO=32, W1=48, B1=56, W2=64, OUT=80, DBG=88, WS=96)
SIZE = dict(X=8192, K=1 << 26, V=1 << 26, WQ=1 << 22, WO=1 << 22, W1=3584, B1=3584, W2=3584, OUT=8192, DBG=256, WS=1 << 28)
sSELLO, sSELHI, sMASK, sSCALE, sL2E, sC0, sC1, sB2, sB2P = 88, 89, 90, 91, 92, 93, 94, 95, 96
sOPOFF, sSPOFF, sSTOFF, sFULL = 98, 99, 100, 101
def srd(n): return "s[%d:%d]" % (SRD[n], SRD[n] + 3)
def vr(a, n=1): return "v%d" % a if n == 1 else "v[%d:%d]" % (a, a + n - 1)
vL16, vG4, vC4, vR4, vN16, vHI, vONE = 1, 2, 3, 4, 5, 6, 7
vT = 8
vPOLL = 16

def gen(F=4, stamps=0, pol="nt", spin=1 << 17, lspin=1 << 22, mimic=1, pre=0, lsleep=1, ldprio=3, fsleep=8, qsleep=2, ssleep=8, tsleep=0, xmap=1, polq=None, polo=None, ldst=0, abl='', rot=0, pad=0, P1=1, P2=1, pd=5, qmap=0, tl='sc1', ts='sc1', tsleep2=None, Fhi=0, himask=0xf8, hiend=16, spad=0, at2=1, td2=8, td1=0, at1=0, qdelay=0, sdelay=0, qtrig=8, strig=48, bshift=0, wolate=2, wqsplit=0, wotrig=60, D=0, DV=0, probe=0, steal=0, cth=23, cllate=0, bias=0, rtrig=48, p_a=-1, p_b=-1, pspan=0, pstart=0, bal=0, Flo=2, bthr=0, bper=8, bstop=58, bmin=0, pm=0, pval=0, pgrp=0, pat=11, tlb=0):
    NOWN = 5 if steal else 8
    sPLAN = 13
    DV = DV if DV else D
    tsleep2 = tsleep if tsleep2 is None else tsleep2
    polq = pol if polq is None else polq.replace('def', '')
    polo = pol if polo is None else polo.replace('def', '')
    A = Asm()
    NST = 14
    def stamp(k):
        if stamps: A("s_memrealtime s[%d:%d]" % (16 + 2 * k, 17 + 2 * k))
    QUADS = ("quad_perm:[1,0,3,2]", "quad_perm:[2,3,0,1]", "row_half_mirror", "row_mirror")
    def dpp(op, v, m, rm="0xf"): A("%s_dpp v%d, v%d, v%d %s row_mask:%s bank_mask:0xf" % (op, v, v, v, m, rm))
    def red16(v, op):
        for m in QUADS: dpp(op, v, m)
    def swap_red(v, t, op, which):
        A("v_mov_b32 v%d, v%d" % (t, v)); A("v_permlane%d_swap_b32 v%d, v%d" % (which, v, t)); A("%s v%d, v%d, v%d" % (op, v, v, t))
    def rbf(v):
        A("v_cvt_pk_bf16_f32 v%d, v%d, v%d" % (v, v, v)); A("v_lshlrev_b32 v%d, 16, v%d" % (v, v))
    def unpack(dlo, dhi, src):
        A("v_lshlrev_b32 v%d, 16, v%d" % (dlo, src)); A("v_and_b32 v%d, s%d, v%d" % (dhi, sMASK, src))
    def layernorm(pk, n, x, d, t, halves):
        def allred(v):
            red16(v, "v_add_f32"); swap_red(v, t + 2, "v_add_f32", 16)
            if halves == 1: swap_red(v, t + 2, "v_add_f32", 32)
        for i in range(n): unpack(x + 2 * i, x + 2 * i + 1, pk + i)
        A("v_add_f32 v%d, v%d, v%d" % (t, x, x + 1)); A("v_add_f32 v%d, v%d, v%d" % (t + 1, x + 2, x + 3))
        for i in range(4, 2 * n): A("v_add_f32 v%d, v%d, v%d" % (t + (i & 1), t + (i & 1), x + i))
        A("v_add_f32 v%d, v%d, v%d" % (t, t, t + 1))
        allred(t)
        A("v_mul_f32 v%d, 0x3b000000, v%d" % (t, t))
        A("v_cvt_pk_bf16_f32 v%d, v%d, v%d" % (t + 1, t, t))
        for i in range(2 * n): A("v_sub_f32 v%d, v%d, v%d" % (d + i, x + i, t))
        A("v_lshlrev_b32 v%d, 16, v%d" % (t + 1, t + 1))
        A("v_mul_f32 v%d, v%d, v%d" % (t, d, d)); A("v_mul_f32 v%d, v%d, v%d" % (d, d + 1, d + 1))
        for i in range(2, 2 * n): A("v_fmac_f32 v%d, v%d, v%d" % (t if i & 1 else d, d + i, d + i))
        A("v_add_f32 v%d, v%d, v%d" % (t, t, d))
        for i in range(2 * n): A("v_sub_f32 v%d, v%d, v%d" % (x + i, x + i, t + 1))
        allred(t)
        for i in range(n): A("v_cvt_pk_bf16_f32 v%d, v%d, v%d" % (pk + i, x + 2 * i, x + 2 * i + 1))
        A("v_mul_f32 v%d, 0x3b000000, v%d" % (t, t)); rbf(t)
        A("v_add_f32 v%d, 0x%x, v%d" % (t, f2u(1e-5), t)); rbf(t)
        A("v_sqrt_f32 v%d, v%d" % (t, t)); rbf(t)
        A("v_rcp_f32 v%d, v%d" % (t, t))
        for i in range(n): unpack(x + 2 * i, x + 2 * i + 1, pk + i)
        for i in range(2 * n): A("v_mul_f32 v%d, v%d, v%d" % (x + i, t, x + i))
        for i in range(n): A("v_cvt_pk_bf16_f32 v%d, v%d, v%d" % (pk + i, x + 2 * i, x + 2 * i + 1))
    def lds_wait(flag, val, keep=None, sl=None):
        ok = A.label("lok"); again = A.label("lagain")
        dst = keep if keep is not None else sT3
        if keep is not None:
            A("s_cmp_ge_u32 s%d, %s" % (keep, val)); A("s_cbranch_scc1 " + ok)
        A("s_mov_b32 s%d, 0" % sSPIN)
        A(again + ":")
        A("ds_read_b32 v%d, v%d offset:%d" % (vPOLL, vHI, flag)); A("s_waitcnt lgkmcnt(0)")
        A("v_readfirstlane_b32 s%d, v%d" % (dst, vPOLL))
        A("s_cmp_ge_u32 s%d, %s" % (dst, val)); A("s_cbranch_scc1 " + ok)
        if sl is None: sl = lsleep
        if sl: A("s_sleep %d" % sl)
        A("s_add_u32 s%d, s%d, 1" % (sSPIN, sSPIN)); A("s_cmp_lt_u32 s%d, %d" % (sSPIN, lspin)); A("s_cbranch_scc1 " + again)
        A(ok + ":")
    def lds_add(flag_addr_reg, off):
        A("s_waitcnt lgkmcnt(0)")
        A("s_mov_b64 exec, 1"); A("ds_add_u32 v%d, v%d offset:%d" % (flag_addr_reg, vONE, off)); A("s_mov_b64 exec, -1")
    def gpoll(loads, first=True, sleep=0, full="-1", tag=None, P=1):
        ok = A.label("ok"); again = A.label("again")
        masks = ["vcc", "s[12:13]"]
        A("s_mov_b32 s%d, 0" % sSPIN)
        if first:
            for issue, regs in loads: issue()
        for _ in range(P - 1):
            A("s_sleep %d" % pd)
            for issue, regs in loads: issue()
        A(again + ":")
        A("s_waitcnt vmcnt(%d)" % (len(loads) * (P - 1)))
        for (issue, regs), mk in zip(loads, masks):
            t = vT + 7
            if tag is not None:
                A("v_cmp_ne_u64 %s, %s, v[%d:%d]" % (mk, tag, regs[2], regs[3])); continue
            if len(regs) == 2: A("v_max_u32 v%d, v%d, v%d" % (t, regs[0], regs[1]))
            else:
                A("v_max3_u32 v%d, v%d, v%d, v%d" % (t, regs[0], regs[1], regs[2])); A("v_max_u32 v%d, v%d, v%d" % (t, t, regs[3]))
            A("v_cmp_eq_u32 %s, -1, v%d" % (mk, t))
        if len(loads) == 2:
            A("s_or_b32 s%d, vcc_lo, vcc_hi" % sT3); A("s_or_b32 s%d, s%d, s12" % (sT3, sT3)); A("s_or_b32 s%d, s%d, s13" % (sT3, sT3))
        else:
            A("s_or_b32 s%d, vcc_lo, vcc_hi" % sT3)
        A("s_cbranch_scc0 " + ok)
        if sleep: A("s_sleep %d" % sleep)
        for (issue, regs), mk in zip(loads, masks):
            A("s_mov_b64 exec, %s" % mk); issue()
        if full == "PARTIAL": A("s_mov_b32 exec_lo, -1"); A("s_mov_b32 exec_hi, 0x1ffff")
        else: A("s_mov_b64 exec, %s" % full)
        A("s_add_u32 s%d, s%d, 1" % (sSPIN, sSPIN)); A("s_cmp_lt_u32 s%d, %d" % (sSPIN, spin)); A("s_cbranch_scc1 " + again)
        A("s_waitcnt vmcnt(0)")
        A(ok + ":")
    def apoll(vd, vaddr, soff, vtmp, sleep, first=True):
        ms = ["vcc", "s[12:13]", "s[88:89]", "s[90:91]"]
        ok = A.label("aok"); again = A.label("aagain")
        def iss(k):
            A("v_mov_b32 v%d, 0" % (vd + 2 * k)); A("v_mov_b32 v%d, 0" % (vd + 1 + 2 * k))
            A("buffer_atomic_or_x2 v[%d:%d], v%d, %s, s%d offen offset:%d sc0" % (vd + 2 * k, vd + 1 + 2 * k, vaddr, srd("WS"), soff, 512 * k))
        if first == "only":
            for k in range(4): iss(k)
            return
        A("s_mov_b32 s%d, 0" % sSPIN)
        if first:
            for k in range(4): iss(k)
        A(again + ":")
        A("s_waitcnt vmcnt(0)")
        for k in range(4): A("v_max_u32 v%d, v%d, v%d" % (vtmp + k, vd + 2 * k, vd + 1 + 2 * k))
        for k in range(4): A("v_cmp_eq_u32 %s, -1, v%d" % (ms[k], vtmp + k))
        A("s_or_b64 s[92:93], vcc, s[12:13]"); A("s_or_b64 s[94:95], s[88:89], s[90:91]"); A("s_or_b64 s[92:93], s[92:93], s[94:95]")
        A("s_cbranch_scc0 " + ok)
        if sleep: A("s_sleep %d" % sleep)
        for k in range(4):
            A("s_mov_b64 exec, %s" % ms[k]); iss(k)
        A("s_mov_b64 exec, -1")
        A("s_add_u32 s%d, s%d, 1" % (sSPIN, sSPIN)); A("s_cmp_lt_u32 s%d, %d" % (sSPIN, spin)); A("s_cbranch_scc1 " + again)
        A("s_waitcnt vmcnt(0)")
        A(ok + ":")
    def word_poll(load, vd, lanes, cmp, sleep):
        ok = A.label("fok"); again = A.label("fagain")
        A("s_mov_b32 s%d, 0" % sSPIN); A("s_mov_b64 exec, %s" % lanes)
        A(again + ":")
        A(load)
        A("s_waitcnt vmcnt(0)")
        A(cmp % vd)
        A("s_cmp_eq_u64 vcc, 0"); A("s_cbranch_scc1 " + ok)
        if sleep: A("s_sleep %d" % sleep)
        A("s_add_u32 s%d, s%d, 1" % (sSPIN, sSPIN)); A("s_cmp_lt_u32 s%d, %d" % (sSPIN, spin)); A("s_cbranch_scc1 " + again)
        A(ok + ":")
        A("s_mov_b64 exec, -1")

    A("s_cmp_ge_u32 s2, 256"); A("s_cbranch_scc1 L_end")
    if stamps:
        for k in range(1, NST): A("s_mov_b64 s[%d:%d], 0" % (16 + 2 * k, 17 + 2 * k))
    stamp(0)
    if (pad or p_b >= 0 or pspan or pstart) and not stamps: A("s_memrealtime s[16:17]")
    for n in ("K", "X", "WQ", "WS", "V", "WO", "W1", "B1", "W2", "DBG", "OUT"):
        A("s_load_dwordx2 s[%d:%d], s[0:1], %d" % (SRD[n], SRD[n] + 1, KARG[n]))
    A("s_load_dwordx2 s[%d:%d], s[0:1], 72" % (sB2P, sB2P + 1))
    A("v_lshrrev_b32 v1, 6, v0"); A("v_and_b32 v0, 63, v0"); A("v_readfirstlane_b32 s%d, v1" % sWAVE)
    for n in SRD:
        A("s_mov_b32 s%d, 0x%x" % (SRD[n] + 2, SIZE[n])); A("s_mov_b32 s%d, 0x20000" % (SRD[n] + 3))
    if xmap == 0:
        A("s_and_b32 s%d, s2, 7" % sR); A("s_lshl_b32 s%d, s%d, 5" % (sR, sR)); A("s_lshr_b32 s%d, s2, 3" % sT0); A("s_add_u32 s%d, s%d, s%d" % (sR, sR, sT0))
    elif xmap >= 8:
        A("s_bfe_u32 s%d, s2, 0x10003" % sT0); A("s_bfe_u32 s%d, s2, 0x10004" % sT1); A("s_lshl_b32 s%d, s%d, 2" % (sT1, sT1)); A("s_add_u32 s%d, s%d, s%d" % (sT0, sT0, sT1))
        if xmap == 9: A("s_lshr_b32 s%d, s2, 5" % sT1); A("s_add_u32 s%d, s%d, s%d" % (sT0, sT0, sT1))
        A("s_sub_u32 s%d, s2, s%d" % (sR, sT0))
        A("s_and_b32 s%d, s%d, 7" % (sR, sR)); A("s_lshl_b32 s%d, s%d, 2" % (sR, sR)); A("s_and_b32 s%d, s2, 0xe0" % sT0); A("s_add_u32 s%d, s%d, s%d" % (sR, sR, sT0))
        A("s_bfe_u32 s%d, s2, 0x20003" % sT0); A("s_add_u32 s%d, s%d, s%d" % (sR, sR, sT0))
    elif xmap >= 4:
        A("s_lshr_b32 s%d, s2, 1" % sT0); A("s_xor_b32 s%d, s%d, s2" % (sT0, sT0)); A("s_and_b32 s%d, s%d, 1" % (sT0, sT0)); A("s_lshl_b32 s%d, s%d, 3" % (sT0, sT0))
        A("s_and_b32 s%d, s2, 4" % sT1); A("s_lshl_b32 s%d, s%d, 2" % (sT1, sT1)); A("s_add_u32 s%d, s%d, s%d" % (sT0, sT0, sT1))
        A("s_bfe_u32 s%d, s2, 0x10003" % sT1); A("s_lshl_b32 s%d, s%d, 2" % (sT1, sT1)); A("s_add_u32 s%d, s%d, s%d" % (sT0, sT0, sT1))
        A("s_and_b32 s%d, s2, 0xe0" % sR); A("s_add_u32 s%d, s%d, s%d" % (sR, sR, sT0))
        if xmap == 6:
            A("s_lshr_b32 s%d, s2, 5" % sT0); A("s_xor_b32 s%d, s%d, s2" % (sT0, sT0)); A("s_and_b32 s%d, s%d, 1" % (sT0, sT0))
        elif xmap == 7:
            A("s_lshr_b32 s%d, s2, 3" % sT0); A("s_xor_b32 s%d, s%d, s2" % (sT0, sT0)); A("s_and_b32 s%d, s%d, 1" % (sT0, sT0))
        else: A("s_and_b32 s%d, s2, 1" % sT0)
        A("s_bfe_u32 s%d, s2, 0x10004" % sT1)
        A("s_lshl_b32 s%d, s%d, 1" % ((sT0, sT0) if xmap != 5 else (sT1, sT1)))
        A("s_add_u32 s%d, s%d, s%d" % (sR, sR, sT0)); A("s_add_u32 s%d, s%d, s%d" % (sR, sR, sT1))
    else:
        if xmap == 2:
            A("s_lshr_b32 s%d, s2, 5" % sT0); A("s_add_u32 s%d, s2, s%d" % (sR, sT0))
        elif xmap == 3:
            A("s_bfe_u32 s%d, s2, 0x20003" % sT0); A("s_lshl_b32 s%d, s%d, 1" % (sT0, sT0)); A("s_add_u32 s%d, s2, s%d" % (sR, sT0))
        else: A("s_add_u32 s%d, s2, %d" % (sR, bshift))
        A("s_and_b32 s%d, s%d, 7" % (sR, sR)); A("s_lshl_b32 s%d, s%d, 2" % (sR, sR)); A("s_and_b32 s%d, s2, 0xe0" % sT0); A("s_add_u32 s%d, s%d, s%d" % (sR, sR, sT0))
        A("s_bfe_u32 s%d, s2, 0x20003" % sT0); A("s_add_u32 s%d, s%d, s%d" % (sR, sR, sT0))
    sRQ = sMB
    if xmap >= 4:
        A("s_and_b32 s%d, s2, 7" % sRQ); A("s_lshl_b32 s%d, s%d, 2" % (sRQ, sRQ)); A("s_and_b32 s%d, s2, 0xe0" % sT0); A("s_add_u32 s%d, s%d, s%d" % (sRQ, sRQ, sT0))
        A("s_bfe_u32 s%d, s2, 0x20003" % sT0); A("s_add_u32 s%d, s%d, s%d" % (sRQ, sRQ, sT0))
    elif qmap == 0: A("s_mov_b32 s%d, s%d" % (sRQ, sR))
    elif qmap == 1:
        A("s_and_b32 s%d, s2, 7" % sRQ); A("s_lshl_b32 s%d, s%d, 5" % (sRQ, sRQ)); A("s_lshr_b32 s%d, s2, 3" % sT0); A("s_add_u32 s%d, s%d, s%d" % (sRQ, sRQ, sT0))
    elif qmap == 2:
        A("s_lshr_b32 s%d, s%d, 3" % (sT0, sR)); A("s_and_b32 s%d, s%d, 0x1c" % (sT0, sT0)); A("s_add_u32 s%d, s%d, s%d" % (sT0, sT0, sR)); A("s_and_b32 s%d, s%d, 0x1c" % (sT0, sT0))
        A("s_and_b32 s%d, s%d, 0xe3" % (sRQ, sR)); A("s_or_b32 s%d, s%d, s%d" % (sRQ, sRQ, sT0))
    elif qmap == 4:
        A("s_lshr_b32 s%d, s%d, 5" % (sT0, sR)); A("s_lshl_b32 s%d, s%d, 1" % (sT0, sT0)); A("s_bfe_u32 s%d, s%d, 0x10001" % (sT1, sR)); A("s_add_u32 s%d, s%d, s%d" % (sT0, sT0, sT1))
        A("s_lshr_b32 s%d, s%d, 2" % (sT1, sT0)); A("s_lshl_b32 s%d, s%d, 1" % (sT1, sT1)); A("s_bfe_u32 s%d, s%d, 0x30002" % (sT2, sR)); A("s_add_u32 s%d, s%d, s%d" % (sT1, sT1, sT2))
        A("s_and_b32 s%d, s%d, 7" % (sT1, sT1)); A("s_lshl_b32 s%d, s%d, 3" % (sT0, sT0)); A("s_add_u32 s%d, s%d, s%d" % (sT0, sT0, sT1)); A("s_lshl_b32 s%d, s%d, 1" % (sT0, sT0))
        A("s_and_b32 s%d, s%d, 1" % (sT1, sR)); A("s_add_u32 s%d, s%d, s%d" % (sRQ, sT0, sT1))
    A("v_lshlrev_b32 v%d, 4, v0" % vL16); A("v_lshrrev_b32 v%d, 4, v0" % vG4); A("v_bfe_u32 v%d, v0, 2, 2" % vC4)
    A("v_and_b32 v%d, 3, v0" % vR4); A("v_and_b32 v%d, 15, v0" % vN16); A("v_mov_b32 v%d, 0x%x" % (vHI, HI)); A("v_mov_b32 v%d, 1" % vONE)
    A("s_mov_b32 s%d, 0x05040100" % sSELLO); A("s_mov_b32 s%d, 0x07060302" % sSELHI); A("s_mov_b32 s%d, 0xffff0000" % sMASK)
    A("s_mov_b32 s%d, 0x%x" % (sSCALE, f2u(128 ** -0.5))); A("s_mov_b32 s%d, 0x%x" % (sL2E, f2u(1.4426950408889634)))
    c0 = -2.0 * 0.7978845608028654 * 1.4426950408889634
    A("s_mov_b32 s%d, 0x%x" % (sC0, f2u(c0))); A("s_mov_b32 s%d, 0x%x" % (sC1, f2u(c0 * 0.044715)))
    A("s_lshr_b32 s%d, s%d, 5" % (sT0, sR)); A("s_lshl_b32 s%d, s%d, 15" % (sT0, sT0))
    A("s_and_b32 s%d, s%d, 31" % (sT1, sR)); A("s_lshl_b32 s%d, s%d, 8" % (sT1, sT1)); A("s_add_u32 s%d, s%d, s%d" % (sT0, sT0, sT1))
    A("s_add_u32 s%d, s%d, 0x%x" % (sOPOFF, sT0, WS_OP))
    A("s_and_b32 s%d, s%d, 7" % (sT0, sR)); A("s_lshl_b32 s%d, s%d, %d" % (sT0, sT0, 13 + spad))
    A("s_lshr_b32 s%d, s%d, 3" % (sT1, sR)); A("s_lshl_b32 s%d, s%d, %d" % (sT1, sT1, 6 + spad)); A("s_add_u32 s%d, s%d, s%d" % (sT0, sT0, sT1))
    A("s_add_u32 s%d, s%d, 0x%x" % (sSPOFF, sT0, WS_SP))
    A("s_lshr_b32 s%d, s%d, 2" % (sT0, sR)); A("s_lshl_b32 s%d, s%d, 7" % (sT0, sT0)); A("s_add_u32 s%d, s%d, 0x%x" % (sSTOFF, sT0, WS_ST))
    A("s_cmp_eq_u32 s%d, 4" % sWAVE); A("s_cbranch_scc1 L_loader")
    A("s_cmp_eq_u32 s%d, 5" % sWAVE); A("s_cbranch_scc1 L_comm")
    A("s_cmp_gt_u32 s%d, 5" % sWAVE); A("s_cbranch_scc1 L_mlp")

    vQ, vS, vTMP, vK = 32, 48, 112, 128
    vKA, vVA = 17, 17
    vM, vLs, vMO, vF, vOWA = 25, 26, 27, 28, 29
    vX = vS
    A("v_lshlrev_b32 v%d, 5, v0" % vT)
    A("v_lshrrev_b32 v%d, 1, v0" % (vT + 1)); A("v_lshlrev_b32 v%d, 13, v%d" % (vT + 1, vT + 1))
    A("v_and_b32 v%d, 1, v0" % (vT + 2)); A("v_lshl_add_u32 v%d, v%d, 4, v%d" % (vT + 1, vT + 2, vT + 1))
    A("s_lshl_b32 s%d, s%d, 11" % (sT2, sWAVE))
    A("s_lshl_b32 s%d, s%d, 20" % (sT0, sWAVE)); A("s_lshl_b32 s%d, s%d, 5" % (sT1, sRQ)); A("s_add_u32 s%d, s%d, s%d" % (sT0, sT0, sT1))
    A("s_lshl_b32 s%d, s%d, 13" % (sT1, sWAVE)); A("s_add_u32 s%d, s%d, %d" % (sT1, sT1, 12 * 8192))
    A("s_waitcnt lgkmcnt(0)")
    if ldst == 2: stamp(12)
    A("buffer_load_dwordx4 %s, v%d, %s, s%d offen" % (vr(vX, 4), vT, srd("X"), sT2))
    A("buffer_load_dwordx4 %s, v%d, %s, s%d offen offset:16" % (vr(vX + 4, 4), vT, srd("X"), sT2))
    nq0 = wqsplit if wqsplit else 4
    for a in range(nq0):
        A("s_add_u32 m0, s%d, %d" % (sT1, a * 1024))
        if 'q' in abl: A("buffer_load_dwordx4 v%d, %s, 0 offen lds" % (vL16, srd("X")))
        else: A("buffer_load_dwordx4 v%d, %s, s%d offen %s lds" % (vT + 1, srd("WQ"), sT0, polq))
        if a < 3: A("s_add_u32 s%d, s%d, 0x40000" % (sT0, sT0))
    if nq0 < 4: A("v_mov_b32 v31, v%d" % (vT + 1)); A("s_mov_b32 s12, s%d" % sT0)
    A("s_barrier")
    A("v_lshrrev_b32 v%d, 5, v0" % (vT + 3)); A("s_lshl_b32 s%d, s%d, 1" % (sT0, sWAVE)); A("v_add_u32 v%d, s%d, v%d" % (vT + 3, sT0, vT + 3))
    A("v_mul_u32_u24 v%d, %d, v%d" % (vT + 3, XN_STRIDE, vT + 3)); A("v_and_b32 v%d, 31, v0" % (vT + 4)); A("v_lshl_add_u32 v%d, v%d, 5, v%d" % (vT + 3, vT + 4, vT + 3))
    A("v_add_u32 v%d, v%d, v%d" % (vT + 3, vHI, vT + 3))
    A("v_and_b32 v%d, 7, v0" % (vT + 4)); A("v_mul_u32_u24 v%d, %d, v%d" % (vT + 4, XN_STRIDE, vT + 4)); A("v_lshl_add_u32 v%d, v%d, 4, v%d" % (vT + 4, vG4, vT + 4))
    A("s_lshl_b32 s%d, s%d, 8" % (sT0, sWAVE)); A("s_add_u32 s%d, s%d, %d" % (sT0, sT0, HI)); A("v_add_u32 v%d, s%d, v%d" % (vT + 4, sT0, vT + 4))
    A("v_lshlrev_b32 v%d, 8, v%d" % (vT + 5, vG4)); A("v_lshl_add_u32 v%d, v%d, 3, v%d" % (vT + 5, vN16, vT + 5)); A("v_add_u32 v%d, s%d, v%d" % (vT + 5, sT1, vT + 5))
    A("s_lshl_b32 s%d, s%d, 10" % (sT0, sWAVE)); A("s_add_u32 s%d, s%d, %d" % (sT0, sT0, HI)); A("v_add_u32 v%d, s%d, v%d" % (vT + 6, sT0, vL16))
    A("s_lshl_b32 s%d, s%d, 13" % (sT0, sWAVE)); A("v_lshlrev_b32 v%d, 8, v%d" % (vT, vN16)); A("v_add_u32 v%d, s%d, v%d" % (vT, sT0, vT))
    for m in range(4):
        A("v_add_u32 v%d, %d, v%d" % (vT + 1, 4 * m, vG4)); A("v_xor_b32 v%d, v%d, v%d" % (vT + 1, vT + 1, vN16))
        A("v_lshl_add_u32 v%d, v%d, 4, v%d" % (vKA + m, vT + 1, vT)); A("v_add_u32 v%d, 0x10000, v%d" % (vKA + 4 + m, vKA + m))
    A("s_lshl_b32 s%d, s%d, 2" % (sT0, sWAVE)); A("s_add_u32 s%d, s%d, %d" % (sT0, sT0, HI)); A("v_mov_b32 v%d, s%d" % (30, sT0))
    A("s_mov_b32 s%d, 0" % sFULL)
    A("s_waitcnt vmcnt(%d)" % nq0)
    for a in range(nq0, 4):
        A("s_add_u32 m0, s%d, %d" % (sT1, a * 1024))
        A("buffer_load_dwordx4 v31, %s, s12 offen %s lds" % (srd("WQ"), polq))
        if a < 3: A("s_add_u32 s12, s12, 0x40000")
    stamp(1)
    layernorm(vX, 8, vX + 8, vX + 24, vX + 40, 2)
    A("ds_write_b128 v%d, %s offset:%d" % (vT + 3, vr(vX, 4), L_XN)); A("ds_write_b128 v%d, %s offset:%d" % (vT + 3, vr(vX + 4, 4), L_XN + 16))
    lds_add(vHI, F_XN)
    A("s_waitcnt vmcnt(0)")
    for m in range(4):
        A("ds_read_b64_tr_b16 %s, v%d offset:%d" % (vr(vK + 4 * m, 2), vT + 5, m * 1024))
        A("ds_read_b64_tr_b16 %s, v%d offset:%d" % (vr(vK + 4 * m + 2, 2), vT + 5, m * 1024 + 128))
    lds_wait(F_XN, 4)
    for m in range(4): A("ds_read_b128 %s, v%d offset:%d" % (vr(vK + 16 + 4 * m, 4), vT + 4, L_XN + m * 64))
    for m in range(4):
        A("s_waitcnt lgkmcnt(%d)" % (3 - m))
        A("v_mfma_f32_16x16x32_bf16 %s, %s, %s, %s" % (vr(vTMP, 4), vr(vK + 4 * m, 4), vr(vK + 16 + 4 * m, 4), "0" if m == 0 else vr(vTMP, 4)))
    A("ds_write_b128 v%d, %s offset:%d" % (vT + 6, vr(vTMP, 4), L_QP))
    lds_add(vHI, F_QP)
    A("s_mov_b64 exec, 1"); A("ds_add_u32 v30, v%d offset:%d" % (vONE, F_FREED)); A("s_mov_b64 exec, -1")
    stamp(2)
    def wait_block(n4):
        A("s_add_u32 s%d, s%d, %d" % (sT0, sWAVE, 4 * n4 + 1))
        lds_wait(F_FULL, "s%d" % sT0, keep=sFULL)
    def read_k(j):
        base = vK + 32 * (j % 4)
        for t in range(2):
            for m in range(4):
                A("ds_read_b128 %s, v%d offset:%d" % (vr(base + 16 * t + 4 * m, 4), vKA + m + (4 if (j & 2) else 0), (j & 1) * 32768 + t * 4096))
    def qk_block(j):
        base = vK + 32 * (j % 4)
        for m in range(4):
            for t in range(2):
                acc = vr(vS + 8 * j + 4 * t, 4)
                A("v_mfma_f32_16x16x32_bf16 %s, %s, %s, %s" % (acc, vr(base + 16 * t + 4 * m, 4), vr(vQ + 4 * m, 4), "0" if m == 0 else acc))
    def round_block(j):
        for p in range(4):
            a, b, t = vS + 8 * j + 2 * p, vS + 8 * j + 2 * p + 1, vT + (p & 1)
            if mimic:
                A("v_cvt_pk_bf16_f32 v%d, v%d, v%d" % (t, a, b)); unpack(a, b, t)
            A("v_mul_f32 v%d, s%d, v%d" % (a, sSCALE, a)); A("v_mul_f32 v%d, s%d, v%d" % (b, sSCALE, b))
            if mimic:
                A("v_cvt_pk_bf16_f32 v%d, v%d, v%d" % (t, a, b)); unpack(a, b, t)
            if j == 0 and p == 0: A("v_max_f32 v%d, v%d, v%d" % (vM, a, b))
            else: A("v_max3_f32 v%d, v%d, v%d, v%d" % (vM, a, b, vM))
    for j in range(4):
        wait_block(j); read_k(j); lds_add(30, F_FREED)
    stamp(3)
    lds_wait(F_QR, 1)
    stamp(4)
    A("v_lshlrev_b32 v%d, 8, v%d" % (vT, vC4)); A("v_lshl_add_u32 v%d, v%d, 4, v%d" % (vT, vG4, vT)); A("v_add_u32 v%d, v%d, v%d" % (vT, vHI, vT))
    for m in range(4): A("ds_read_b128 %s, v%d offset:%d" % (vr(vQ + 4 * m, 4), vT, L_QB + m * 64))
    A("s_waitcnt lgkmcnt(0)")
    for j in range(4):
        qk_block(j)
        wait_block(4 + j); A("s_nop 3"); read_k(4 + j)
        if j >= 1: round_block(j - 1)
        lds_add(30, F_FREED)
    for j in range(4, 8):
        qk_block(j); round_block(j - 1)
    A("v_lshl_add_u32 v%d, v%d, 2, v%d" % (vT + 2, vG4, vC4))
    A("v_and_b32 v%d, 7, v%d" % (vT + 3, vT + 2)); A("v_lshlrev_b32 v%d, 1, v%d" % (vT + 3, vT + 3))
    A("v_lshrrev_b32 v%d, 1, v%d" % (vT + 4, vR4)); A("v_xor_b32 v%d, v%d, v%d" % (vT + 3, vT + 3, vT + 4))
    A("v_lshlrev_b32 v%d, 8, v%d" % (vT + 2, vT + 2)); A("v_lshl_add_u32 v%d, v%d, 4, v%d" % (vT + 2, vT + 3, vT + 2))
    A("v_and_b32 v%d, 1, v0" % (vT + 4)); A("v_lshl_add_u32 v%d, v%d, 3, v%d" % (vT + 2, vT + 4, vT + 2))
    A("s_lshl_b32 s%d, s%d, 13" % (sT0, sWAVE)); A("v_add_u32 v%d, s%d, v%d" % (vVA, sT0, vT + 2))
    for d in range(1, 8): A("v_xor_b32 v%d, %d, v%d" % (vVA + d, 32 * d, vVA))
    round_block(7)
    swap_red(vM, vT, "v_max_f32", 32); swap_red(vM, vT, "v_max_f32", 16)
    A("v_mul_f32 v%d, s%d, v%d" % (vM, sL2E, vM))
    A("v_lshlrev_b32 v%d, 4, v%d" % (vT + 1, vG4)); A("ds_bpermute_b32 v%d, v%d, v%d" % (vMO, vT + 1, vM))
    vP = vK
    for j in range(32):
        a, b = vS + 2 * j, vS + 2 * j + 1
        A("v_fma_f32 v%d, v%d, s%d, -v%d" % (a, a, sL2E, vM)); A("v_fma_f32 v%d, v%d, s%d, -v%d" % (b, b, sL2E, vM))
        A("v_exp_f32 v%d, v%d" % (a, a)); A("v_exp_f32 v%d, v%d" % (b, b))
        if j >= 1:
            pa, pb = a - 2, b - 2
            if j == 1: A("v_add_f32 v%d, v%d, v%d" % (vLs, pa, pb))
            else: A("v_add_f32 v%d, v%d, v%d" % (vLs, vLs, pa)); A("v_add_f32 v%d, v%d, v%d" % (vLs, vLs, pb))
            A("v_cvt_pk_bf16_f32 v%d, v%d, v%d" % (vP + j - 1, pa, pb))
    A("v_add_f32 v%d, v%d, v%d" % (vLs, vLs, vS + 62)); A("v_add_f32 v%d, v%d, v%d" % (vLs, vLs, vS + 63))
    A("v_cvt_pk_bf16_f32 v%d, v%d, v%d" % (vP + 31, vS + 62, vS + 63))
    swap_red(vLs, vT, "v_add_f32", 32); swap_red(vLs, vT, "v_add_f32", 16)
    A("s_lshl_b32 s%d, s%d, 5" % (sT0, sWAVE)); A("s_add_u32 s%d, s%d, %d" % (sT0, sT0, HI)); A("v_lshlrev_b32 v%d, 3, v%d" % (vT, vC4)); A("v_add_u32 v%d, s%d, v%d" % (vT, sT0, vT))
    A("v_mov_b32 v%d, v%d" % (vT + 2, vM)); A("v_mov_b32 v%d, v%d" % (vT + 3, vLs))
    A("s_mov_b64 exec, 0x1111"); A("ds_write_b64 v%d, %s offset:%d" % (vT, vr(vT + 2, 2), L_ST)); A("s_mov_b64 exec, -1")
    lds_add(vHI, F_ST)
    stamp(5)
    A("s_lshl_b32 s%d, s%d, 11" % (sT0, sWAVE)); A("s_add_u32 s%d, s%d, %d" % (sT0, sT0, HI + L_OW))
    A("v_lshlrev_b32 v%d, 9, v%d" % (vOWA, vG4)); A("v_lshl_add_u32 v%d, v%d, 2, v%d" % (vOWA, vN16, vOWA)); A("v_add_u32 v%d, s%d, v%d" % (vOWA, sT0, vOWA))
    vVB = vK + 32
    def read_v(j):
        base = vVB + 32 * (j & 1)
        for d in range(8):
            for t in range(2):
                A("ds_read_b64_tr_b16 %s, v%d offset:%d" % (vr(base + 4 * d + 2 * t, 2), vVA + d, (j & 1) * 32768 + t * 4096))
    def pv(j, d):
        base = vVB + 32 * (j & 1)
        acc = vr(vS + 4 * d, 4)
        A("v_mfma_f32_16x16x32_bf16 %s, %s, %s, %s" % (acc, vr(vP + 4 * j, 4), vr(base + 4 * d, 4), "0" if j == 0 else acc))
    vS2, vF2 = vS + 32, 31
    def factor(dst, m):
        lds_wait(F_GR, 1)
        A("v_lshl_add_u32 v%d, v%d, 3, v%d" % (vT, vG4, vHI)); A("ds_read_b64 %s, v%d offset:%d" % (vr(vT + 2, 2), vT, L_GS)); A("s_waitcnt lgkmcnt(0)")
        A("v_sub_f32 v%d, v%d, v%d" % (dst, m, vT + 2)); A("v_exp_f32 v%d, v%d" % (dst, dst)); A("v_mul_f32 v%d, v%d, v%d" % (dst, dst, vT + 3))
    def wait_pos(j, out):
        ok = A.label("pok"); again = A.label("pagain"); chk = A.label("pchk")
        A("s_add_u32 s%d, s%d, %d" % (sT0, sWAVE, 32 + 4 * j + 1))
        A("s_mov_b32 s%d, 0" % sSPIN)
        A("s_branch " + chk)
        A(again + ":")
        A("ds_read_b64 %s, v%d offset:%d" % (vr(vT + 2, 2), vHI, F_FULL)); A("s_waitcnt lgkmcnt(0)")
        A("v_readfirstlane_b32 s%d, v%d" % (sFULL, vT + 2)); A("v_readfirstlane_b32 s%d, v%d" % (sPLAN, vT + 3))
        A(chk + ":")
        A("s_cmp_ge_u32 s%d, s%d" % (sFULL, sT0)); A("s_cbranch_scc1 " + ok)
        A("s_sub_u32 s%d, s%d, 0x100" % (sT1, sPLAN)); A("s_cmp_le_u32 s%d, %d" % (sT1, j)); A("s_cbranch_scc1 " + out)
        A("s_add_u32 s%d, s%d, 1" % (sSPIN, sSPIN)); A("s_cmp_lt_u32 s%d, %d" % (sSPIN, lspin)); A("s_cbranch_scc1 " + again)
        A("s_branch " + out)
        A(ok + ":")
    if steal:
        lds_wait(F_AM, 1)
        A("v_lshrrev_b32 v%d, 2, v0" % vT); A("v_lshlrev_b32 v%d, 4, v%d" % (vT, vT))
        A("s_lshl_b32 s%d, s%d, 12" % (sT0, sR)); A("s_lshl_b32 s%d, s%d, 10" % (sT1, sWAVE)); A("s_add_u32 s%d, s%d, s%d" % (sT0, sT0, sT1)); A("s_add_u32 s%d, s%d, 0x%x" % (sT0, sT0, WS_PR))
        A("s_mov_b32 exec_lo, 0x11111111"); A("s_mov_b32 exec_hi, 0x11111111")
        for u in range(3): A("buffer_store_dwordx4 %s, v%d, %s, s%d offen offset:%d sc1" % (vr(vP + 4 * (5 + u), 4), vT, srd("WS"), sT0, 256 * u))
        A("s_mov_b64 exec, 0x1111")
        A("buffer_store_dword v%d, v0, %s, s%d offen offset:768 sc1" % (vM, srd("WS"), sT0))
        A("s_mov_b64 exec, -1")
        A("s_mov_b32 s%d, 0" % sPLAN)
    for j in range(11 if steal else 8):
        if j == 7:
            factor(vF, vMO)
            stamp(6)
        if j < NOWN: wait_block(8 + j)
        else: wait_pos(j, "L_vout%d" % j)
        if j == 7: stamp(7)
        if j >= 8:
            if j == 8:
                A("v_lshrrev_b32 v%d, 2, v0" % (vT + 4)); A("v_lshlrev_b32 v%d, 4, v%d" % (vT + 4, vT + 4))
                A("s_lshl_b32 s%d, s%d, 10" % (sT1, sWAVE)); A("s_add_u32 s%d, s%d, %d" % (sT1, sT1, HI + L_PP)); A("v_add_u32 v%d, s%d, v%d" % (vT + 4, sT1, vT + 4))
                A("v_lshl_add_u32 v%d, v%d, 2, s%d" % (vT + 5, vG4, sT1))
                for u in range(3): A("ds_read_b128 %s, v%d offset:%d" % (vr(vP + 4 * u, 4), vT + 4, 256 * (2 - u)))
                A("ds_read_b32 v%d, v%d offset:768" % (vF2, vT + 5)); A("s_waitcnt lgkmcnt(0)")
                factor(vF2, vF2)
        read_v(j)
        if j % 4 == 1:
            for d in range(8): A("v_add_u32 v%d, 0x10000, v%d" % (vVA + d, vVA + d))
        if j % 4 == 3 and (steal or j < 7):
            for d in range(8): A("v_subrev_u32 v%d, 0x10000, v%d" % (vVA + d, vVA + d))
        for d in range(8):
            A("s_waitcnt lgkmcnt(%d)" % (14 - 2 * d))
            if d == 7 and j < (7 if steal else 4):
                A("s_mov_b64 exec, 1"); A("ds_add_u32 v30, v%d offset:%d" % (vONE, F_FREED)); A("s_mov_b64 exec, -1")
            if j < 8: pv(j, d)
            else:
                acc = vr(vS2 + 4 * d, 4)
                A("v_mfma_f32_16x16x32_bf16 %s, %s, %s, %s" % (acc, vr(vP + 4 * (j - 8), 4), vr(vVB + 32 * (j & 1) + 4 * d, 4), "0" if j == 8 else acc))
    if steal:
        A("L_vout9:"); A("L_vout10:")
        A("s_nop 7")
        for d in range(8): A("v_mul_f32 v%d, v%d, v%d" % (vTMP + d, vF, vS + 4 * d))
        for d in range(8): A("v_fmac_f32 v%d, v%d, v%d" % (vTMP + d, vF2, vS2 + 4 * d))
        A("s_branch L_vsum")
        A("L_vout5:"); A("L_vout6:")
        factor(vF, vMO)
        A("L_vout7:"); A("L_vout8:")
        A("s_nop 7")
    for d in range(8): A("v_mul_f32 v%d, v%d, v%d" % (vTMP + d, vF, vS + 4 * d))
    if steal: A("L_vsum:")
    for d in range(0, 8, 2): A("ds_write2_b32 v%d, v%d, v%d offset0:%d offset1:%d" % (vOWA, vTMP + d, vTMP + d + 1, 16 * d, 16 * d + 16))
    vWOA, vOIR, vWO = 17, 18, vK
    A("v_lshlrev_b32 v%d, 7, v%d" % (vWOA, vC4)); A("v_lshl_add_u32 v%d, v%d, 10, v%d" % (vWOA, vG4, vWOA)); A("v_lshl_add_u32 v%d, v%d, 3, v%d" % (vWOA, vR4, vWOA))
    A("s_lshl_b32 s%d, s%d, 5" % (sT0, sWAVE)); A("s_add_u32 s%d, s%d, %d" % (sT0, sT0, HI + L_WO)); A("v_add_u32 v%d, s%d, v%d" % (vWOA, sT0, vWOA))
    A("s_waitcnt lgkmcnt(0)")
    A("s_barrier")
    stamp(8)
    def wo_reads():
        if wolate: lds_wait(F_WO, 1, sl=0)
        for m in range(4):
            A("ds_read_b64_tr_b16 %s, v%d offset:%d" % (vr(vWO + 4 * m, 2), vWOA, m * 4096))
            A("ds_read_b64_tr_b16 %s, v%d offset:%d" % (vr(vWO + 4 * m + 2, 2), vWOA, m * 4096 + 512))
    def oir_addr():
        A("v_lshrrev_b32 v%d, 1, v%d" % (vT, vN16)); A("v_lshlrev_b32 v%d, 10, v%d" % (vT, vT)); A("v_and_b32 v%d, 1, v0" % (vT + 1)); A("v_lshl_add_u32 v%d, v%d, 8, v%d" % (vT, vT + 1, vT))
        for m in range(4):
            A("v_add_u32 v%d, %d, v%d" % (vT + 1, 4 * m, vG4)); A("v_xor_b32 v%d, v%d, v%d" % (vT + 1, vT + 1, vN16))
            A("v_lshl_add_u32 v%d, v%d, 4, v%d" % (vOIR + m, vT + 1, vT))
        A("v_lshrrev_b32 v%d, 1, v%d" % (22, vN16)); A("v_lshlrev_b32 v22, %d, v22" % (16 + spad)); A("v_lshl_add_u32 v22, v%d, 4, v22" % vG4)
    A("s_cmp_gt_u32 s%d, 1" % sWAVE); A("s_cbranch_scc1 L_gather23")
    A("s_lshl_b32 s%d, s%d, 10" % (sT0, sWAVE)); A("s_add_u32 s%d, s%d, %d" % (sT0, sT0, HI + L_OW)); A("v_add_u32 v%d, s%d, v%d" % (vT, sT0, vL16))
    for w in range(4): A("ds_read_b128 %s, v%d offset:%d" % (vr(vS + 4 * w, 4), vT, w * 2048))
    A("v_lshrrev_b32 v%d, 5, v0" % (vT + 1)); A("v_lshlrev_b32 v%d, 13, v%d" % (vT + 1, vT + 1)); A("v_and_b32 v%d, 31, v0" % (vT + 2)); A("v_lshl_add_u32 v%d, v%d, 3, v%d" % (vT + 1, vT + 2, vT + 1))
    A("s_lshl_b32 s%d, s%d, 14" % (sT0, sWAVE)); A("s_add_u32 s%d, s%d, s%d" % (sT0, sT0, sOPOFF))
    A("s_waitcnt lgkmcnt(2)")
    for i in range(4): A("v_add_f32 v%d, v%d, v%d" % (vS + i, vS + i, vS + 4 + i))
    A("s_waitcnt lgkmcnt(0)")
    for i in range(4): A("v_add_f32 v%d, v%d, v%d" % (vS + 8 + i, vS + 8 + i, vS + 12 + i))
    for i in range(4): A("v_add_f32 v%d, v%d, v%d" % (vS + i, vS + i, vS + 8 + i))
    A("v_cvt_pk_bf16_f32 v%d, v%d, v%d" % (vTMP, vS, vS + 1)); A("v_cvt_pk_bf16_f32 v%d, v%d, v%d" % (vTMP + 1, vS + 2, vS + 3))
    A("buffer_store_dwordx2 %s, v%d, %s, s%d offen %s" % (vr(vTMP, 2), vT + 1, srd("WS"), sT0, ts))
    stamp(11)
    wo_reads(); oir_addr()
    A("s_branch L_barE_c")
    def gather(idx_sgpr, extra):
        vGa = 40
        A("s_lshr_b32 s%d, s%d, 3" % (sT1, sR)); A("s_lshl_b32 s%d, s%d, 13" % (sT1, sT1)); A("s_lshl_b32 s%d, s%d, 11" % (sT0, idx_sgpr))
        A("s_add_u32 s%d, s%d, s%d" % (sT1, sT1, sT0)); A("s_add_u32 s%d, s%d, 0x%x" % (sT1, sT1, WS_OP))
        lds_ = [(lambda: A("buffer_load_dwordx4 %s, v%d, %s, s%d offen %s" % (vr(vGa, 4), vL16, srd("WS"), sT1, tl)), list(range(vGa, vGa + 4))),
                (lambda: A("buffer_load_dwordx4 %s, v%d, %s, s%d offen offset:1024 %s" % (vr(vGa + 4, 4), vL16, srd("WS"), sT1, tl)), list(range(vGa + 4, vGa + 8)))]
        if td1: A("s_sleep %d" % td1)
        if at1:
            A("v_lshlrev_b32 v%d, 3, v0" % (vT + 7))
            apoll(vGa, vT + 7, sT1, 0, 0, first="only")
            extra()
            A("v_lshrrev_b32 v%d, 5, v0" % (vT + 2)); A("s_lshl_b32 s%d, s%d, 2" % (sT2, idx_sgpr)); A("v_add_u32 v%d, s%d, v%d" % (vT + 3, sT2, vT + 2))
            A("v_bfe_u32 v%d, v0, 1, 4" % (vT + 4)); A("v_xor_b32 v%d, v%d, v%d" % (vT + 3, vT + 3, vT + 4))
            A("v_lshlrev_b32 v%d, 8, v%d" % (vT + 2, vT + 2)); A("v_add_u32 v%d, s%d, v%d" % (vT + 2, sT0, vT + 2))
            A("v_and_b32 v%d, 1, v0" % (vT + 4)); A("v_lshl_add_u32 v%d, v%d, 3, v%d" % (vT + 2, vT + 4, vT + 2))
            A("v_lshl_add_u32 v%d, v%d, 4, v%d" % (vT + 5, vT + 3, vT + 2)); A("v_xor_b32 v%d, 32, v%d" % (vT + 6, vT + 5))
            apoll(vGa, vT + 7, sT1, 24, tsleep, first=False)
            stamp(11)
            for k in range(4): A("ds_write_b64 v%d, %s offset:%d" % (vT + 5 + (k >> 1), vr(vGa + 2 * k, 2), 512 * k))
            return
        for i_, _ in lds_: i_()
        A("v_and_b32 v%d, 1, v%d" % (vT + 2, vG4)); A("s_lshl_b32 s%d, s%d, 2" % (sT2, idx_sgpr)); A("v_add_u32 v%d, s%d, v%d" % (vT + 2, sT2, vT + 2))
        A("v_xor_b32 v%d, v%d, v%d" % (vT + 3, vT + 2, vN16)); A("v_xor_b32 v%d, 2, v%d" % (vT + 4, vT + 3))
        A("v_lshlrev_b32 v%d, 8, v%d" % (vT + 2, vG4)); A("v_add_u32 v%d, s%d, v%d" % (vT + 2, sT0, vT + 2))
        A("v_lshl_add_u32 v%d, v%d, 4, v%d" % (vT + 5, vT + 3, vT + 2)); A("v_lshl_add_u32 v%d, v%d, 4, v%d" % (vT + 6, vT + 4, vT + 2))
        extra()
        gpoll(lds_, first=False, sleep=tsleep, P=P1)
        stamp(11)
        A("ds_write_b128 v%d, %s" % (vT + 5, vr(vGa, 4))); A("ds_write_b128 v%d, %s offset:1024" % (vT + 6, vr(vGa + 4, 4)))
    A("L_gather23:")
    A("s_sub_u32 s%d, s%d, 2" % (sMU, sWAVE))
    gather(sMU, lambda: (wo_reads(), oir_addr()))
    A("L_barE_c:")
    A("s_waitcnt lgkmcnt(0)")
    A("s_barrier")
    stamp(9)
    for u in range(2):
        for m in range(4): A("ds_read_b128 %s, v%d offset:%d" % (vr(vS + 16 * u + 4 * m, 4), vOIR + m, u * 512))
    A("s_lshl_b32 s%d, s%d, %d" % (sT0, sWAVE, 11 + spad)); A("s_add_u32 s%d, s%d, s%d" % (sT0, sT0, sSPOFF))
    for u in range(2):
        for m in range(4):
            A("s_waitcnt lgkmcnt(%d)" % (7 - 4 * u - m))
            acc = vr(vTMP + 4 * u, 4)
            A("v_mfma_f32_16x16x32_bf16 %s, %s, %s, %s" % (acc, vr(vWO + 4 * m, 4), vr(vS + 16 * u + 4 * m, 4), "0" if m == 0 else acc))
    for i in range(4): A("v_add_f32 v%d, v%d, v%d" % (vTMP + i, vTMP + i, vTMP + 4 + i))
    for i in range(4): dpp("v_add_f32", vTMP + i, "quad_perm:[1,0,3,2]")
    A("s_mov_b32 exec_lo, 0x55555555"); A("s_mov_b32 exec_hi, 0x55555555")
    stamp(10)
    A("buffer_store_dwordx4 %s, v22, %s, s%d offen %s" % (vr(vTMP, 4), srd("WS"), sT0, ts))
    A("s_mov_b64 exec, -1")
    A("s_branch L_done")

    A("L_loader:")
    if ldprio: A("s_setprio %d" % ldprio)
    vO = 17
    A("v_lshlrev_b32 v%d, 8, v%d" % (vT, vG4))
    for i in range(4):
        A("v_add_u32 v%d, %d, v%d" % (vT + 1, 4 * i, vG4)); A("v_xor_b32 v%d, v%d, v%d" % (vT + 1, vT + 1, vN16)); A("v_lshl_add_u32 v%d, v%d, 4, v%d" % (vO + i, vT + 1, vT))
    for i in range(2):
        A("v_add_u32 v%d, %d, v%d" % (vT + 1, 4 * i, vG4)); A("v_lshlrev_b32 v%d, 1, v%d" % (vT + 1, vT + 1))
        A("v_xor_b32 v%d, v%d, v%d" % (vT + 1, vT + 1, vN16)); A("v_lshl_add_u32 v%d, v%d, 4, v%d" % (vO + 4 + i, vT + 1, vT))
    sG, sSLOT, sFR, sN = 12, 13, 88, 92
    A("s_bfe_u32 s%d, s%d, 0x30002" % (sBASE, sR)); A("s_lshl_b32 s%d, s%d, 23" % (sBASE, sBASE)); A("s_lshr_b32 s%d, s%d, 5" % (sT0, sR)); A("s_lshl_b32 s%d, s%d, 20" % (sT0, sT0))
    A("s_add_u32 s%d, s%d, s%d" % (sBASE, sBASE, sT0)); A("s_and_b32 s%d, s%d, 3" % (sT0, sR)); A("s_lshl_b32 s%d, s%d, 18" % (sT0, sT0)); A("s_add_u32 s%d, s%d, s%d" % (sBASE, sBASE, sT0))
    if rot:
        A("s_mov_b32 s94, s%d" % sBASE)
        A("s_mul_i32 s%d, s%d, %d" % (sT0, sR, rot)); A("s_lshr_b32 s%d, s%d, 5" % (sT1, sR)); A("s_add_u32 s%d, s%d, s%d" % (sT0, sT0, sT1))
        A("s_and_b32 s%d, s%d, 31" % (sT0, sT0)); A("s_lshl_b32 s%d, s%d, 13" % (sT0, sT0)); A("s_add_u32 s%d, s%d, s%d" % (sBASE, sBASE, sT0))
    if Fhi:
        A("s_and_b32 s%d, s2, 7" % sT0); A("s_lshr_b32 s%d, %d, s%d" % (sT0, himask, sT0)); A("s_and_b32 s%d, s%d, 1" % (sT0, sT0)); A("s_cselect_b32 s95, %d, %d" % (Fhi, F))
    A("s_mov_b32 s94, 0"); A("s_mov_b32 s93, 0"); A("s_mov_b32 s%d, s%d" % (sOFF, sBASE)); A("s_mov_b32 s%d, 0" % sG); A("s_mov_b32 s%d, 0" % sSLOT); A("s_mov_b32 s%d, 0" % sN)
    A("s_waitcnt lgkmcnt(0)")
    def publish_full(sgpr):
        A("v_mov_b32 v%d, s%d" % (vT, sgpr)); A("s_mov_b64 exec, 1"); A("ds_max_u32 v%d, v%d offset:%d" % (vHI, vT, F_FULL)); A("s_mov_b64 exec, -1")
    def dma_block(isk):
        Dm = D if isk else DV
        for half in range(2):
            A("s_mov_b32 m0, s%d" % sSLOT)
            if Dm: A("s_waitcnt vmcnt(%d)" % Dm)
            for i in range(4):
                A("buffer_load_dwordx4 v%d, %s, s%d offen offset:%d %s lds" % (vO + i if isk else vO + 4 + (i & 1), srd("K" if isk else "V"), sOFF, i * 1024, pol))
            A("s_add_u32 s%d, s%d, 4096" % (sOFF, sOFF)); A("s_add_u32 s%d, s%d, 4096" % (sSLOT, sSLOT))
            if Dm and (4 * half - Dm) % 8 < 4:
                A("s_add_i32 s%d, s%d, %d" % (sT0, sN, (4 * half - Dm) // 8)); A("s_max_i32 s%d, s%d, 0" % (sT0, sT0)); publish_full(sT0)
        if rot:
            A("s_and_b32 s%d, s%d, 0x3ffff" % (sOFF, sOFF)); A("s_or_b32 s%d, s%d, s94" % (sOFF, sOFF))
        A("s_and_b32 s%d, s%d, 0x1ffff" % (sSLOT, sSLOT)); A("s_add_u32 s%d, s%d, 1" % (sN, sN))
    if ldst == 2: stamp(1)
    for _ in range(pre): dma_block(True)
    A("s_barrier")
    if ldst == 2: stamp(2)
    for _ in range(4 - pre): dma_block(True)
    A("s_mov_b32 s%d, 1" % sG)
    if ldst == 2: stamp(3)
    def read_freed():
        A("ds_read_b128 %s, v%d offset:%d" % (vr(vT + 4, 4), vHI, F_FREED)); A("s_waitcnt lgkmcnt(0)")
        for c in range(4): A("v_readfirstlane_b32 s%d, v%d" % (sFR + c, vT + 4 + c))
    for isk, last in ((True, 8), (False, 19 if steal else 16)):
        loop = "L_ld_k" if isk else "L_ld_v"
        if not isk: A("s_mov_b32 s%d, s%d" % (sOFF, sBASE))
        A(loop + ":")
        for g_, reg in ((p_a, 16), (p_b, 18)):
            if g_ > 0 and g_ < 16 and (g_ < 8) == isk:
                sk = A.label("st"); A("s_cmp_lg_u32 s%d, %d" % (sG, g_)); A("s_cbranch_scc1 " + sk); A("s_memrealtime s[%d:%d]" % (reg, reg + 1)); A(sk + ":")
        if ldst == 1:
            for k, g in enumerate((2, 3, 4, 5, 6, 7) if isk else (8, 10, 12, 14)):
                sk = A.label("st"); A("s_cmp_lg_u32 s%d, %d" % (sG, g)); A("s_cbranch_scc1 " + sk); stamp(k + 1 if isk else k + 7); A(sk + ":")
        if steal and not isk:
            go = A.label("pgo"); again = A.label("pagain")
            A("s_cmp_lt_u32 s%d, %d" % (sG, 8 + NOWN)); A("s_cbranch_scc1 " + go)
            A("s_mov_b32 s%d, 0" % sSPIN); A("s_sub_u32 s%d, s%d, 8" % (sT1, sG))
            if ldst: A("s_memrealtime s[14:15]")
            A(again + ":")
            A("ds_read_b32 v%d, v%d offset:%d" % (vPOLL, vHI, F_PLAN)); A("s_waitcnt lgkmcnt(0)"); A("v_readfirstlane_b32 s%d, v%d" % (sT0, vPOLL))
            A("s_and_b32 s%d, s%d, 0xff" % (sT2, sT0)); A("s_cmp_gt_u32 s%d, s%d" % (sT2, sT1)); A("s_cbranch_scc1 L_granted")
            A("s_cmp_ge_u32 s%d, 0x100" % sT0); A("s_cbranch_scc1 L_ld_end")
            for k in range(F - 1, -1, -1):
                A("s_cmp_eq_u32 s%d, %d" % (sSPIN, F - 1 - k)); nx = A.label("nx"); A("s_cbranch_scc0 " + nx)
                A("s_sub_u32 s%d, s%d, %d" % (sT0, sN, k)); A("s_waitcnt vmcnt(%d)" % (8 * k)); publish_full(sT0); A(nx + ":")
            if ldst: A("s_add_u32 s93, s93, 1")
            A("s_add_u32 s%d, s%d, 1" % (sSPIN, sSPIN)); A("s_cmp_lt_u32 s%d, %d" % (sSPIN, lspin)); A("s_cbranch_scc1 " + again)
            A("s_branch L_ld_end")
            A("L_granted:")
            if ldst:
                A("s_memrealtime s[36:37]"); A("s_waitcnt lgkmcnt(0)"); A("s_sub_u32 s36, s36, s14"); A("s_add_u32 s94, s94, s36")
            A("s_cmp_lt_u32 s%d, 16" % sG); A("s_cbranch_scc1 " + go)
            A("s_sub_u32 s%d, 23, s%d" % (sT0, sG)); A("s_lshl_b32 s%d, s%d, 15" % (sT0, sT0)); A("s_xor_b32 s%d, s%d, 0x80000" % (sOFF, sBASE)); A("s_add_u32 s%d, s%d, s%d" % (sOFF, sOFF, sT0))
            A(go + ":")
        read_freed()
        A("s_sub_i32 s%d, s%d, 2" % (sT1, sG))
        if Fhi and hiend < 16:
            A("s_cmp_ge_u32 s%d, %d" % (sG, hiend)); A("s_cselect_b32 s95, %d, s95" % F)
        for c in range(4):
            go = A.label("go"); sl = A.label("slow")
            A("s_cmp_ge_i32 s%d, s%d" % (sFR + c, sT1)); A("s_cbranch_scc1 " + go)
            A("s_waitcnt vmcnt(0)"); publish_full(sN)
            if ldst: A("s_add_u32 s93, s93, 100")
            A("s_mov_b32 s%d, 0" % sSPIN)
            A(sl + ":")
            read_freed()
            A("s_cmp_ge_i32 s%d, s%d" % (sFR + c, sT1)); A("s_cbranch_scc1 " + go)
            A("s_add_u32 s%d, s%d, 1" % (sSPIN, sSPIN)); A("s_cmp_lt_u32 s%d, %d" % (sSPIN, lspin)); A("s_cbranch_scc1 " + sl)
            A(go + ":")
            dma_block(isk)
            if D: pass
            elif bal == 1:
                hi = A.label("hi")
                A("ds_read_b32 v%d, v%d offset:%d" % (vPOLL, vHI, F_MODE))
                A("s_sub_i32 s%d, s%d, %d" % (sT0, sN, F))
                A("s_waitcnt vmcnt(%d) lgkmcnt(0)" % (8 * F)); A("v_readfirstlane_b32 s%d, v%d" % (sT2, vPOLL))
                A("s_cmp_eq_u32 s%d, 0" % sT2); A("s_cbranch_scc1 " + hi)
                publish_full(sT0)
                if ldst: A("s_add_u32 s94, s94, 100")
                A("s_sub_i32 s%d, s%d, %d" % (sT0, sN, (Flo + 7) // 8 if Flo > 7 else Flo))
                A("s_waitcnt vmcnt(%d)" % (Flo if Flo > 7 else 8 * Flo)); A(hi + ":"); publish_full(sT0)
            elif Fhi:
                hi = A.label("hi")
                A("s_sub_i32 s%d, s%d, s95" % (sT0, sN)); A("s_max_i32 s%d, s%d, 0" % (sT0, sT0))
                A("s_waitcnt vmcnt(%d)" % (8 * Fhi)); A("s_cmp_eq_u32 s95, %d" % Fhi); A("s_cbranch_scc1 " + hi)
                A("s_waitcnt vmcnt(%d)" % (8 * F)); A(hi + ":"); publish_full(sT0)
            else:
                A("s_sub_i32 s%d, s%d, %d" % (sT0, sN, F))
                if F > 5: A("s_max_i32 s%d, s%d, 0" % (sT0, sT0))
                A("s_waitcnt vmcnt(%d)" % (8 * F)); publish_full(sT0)
        if stamps:
            pass
        A("s_add_u32 s%d, s%d, 1" % (sG, sG)); A("s_cmp_lt_u32 s%d, %d" % (sG, last)); A("s_cbranch_scc1 " + loop)
        if not ldst: stamp(1 if isk else 2)
    def wo_dma():
        A("v_lshrrev_b32 v%d, 3, v0" % (vT + 4)); A("v_lshlrev_b32 v%d, 10, v%d" % (vT + 4, vT + 4)); A("v_and_b32 v%d, 7, v0" % (vT + 5)); A("v_lshl_add_u32 v%d, v%d, 4, v%d" % (vT + 4, vT + 5, vT + 4))
        A("s_lshr_b32 s%d, s%d, 3" % (sT0, sR)); A("s_lshl_b32 s%d, s%d, 17" % (sT0, sT0)); A("s_and_b32 s%d, s%d, 7" % (sT1, sR)); A("s_lshl_b32 s%d, s%d, 7" % (sT1, sT1))
        A("s_add_u32 s%d, s%d, s%d" % (sT0, sT0, sT1))
        for a in range(16):
            A("s_mov_b32 m0, %d" % (HI + L_WO + a * 1024))
            A("buffer_load_dwordx4 v%d, %s, s%d offen %s lds" % (vT + 4, srd("WO"), sT0, polo))
            if a < 15: A("s_add_u32 s%d, s%d, 0x2000" % (sT0, sT0))
    if steal:
        A("L_ld_end:")
        A("s_mov_b64 exec, 1"); A("ds_write_b32 v%d, v%d offset:%d" % (vHI, vONE, F_LI)); A("s_mov_b64 exec, -1")
    if wolate == 1: wo_dma()
    for k in range((DV + 4 + 7) // 8 - 1 if D else max(F, Fhi) - 1, -1, -1):
        A("s_sub_u32 s%d, s%d, %d" % (sT0, sN, k)); A("s_waitcnt vmcnt(%d)" % (8 * k + (16 if wolate == 1 else 0))); publish_full(sT0)
    if wolate == 1:
        if ldst: stamp(11)
        A("s_waitcnt vmcnt(0)"); A("s_mov_b64 exec, 1"); A("ds_write_b32 v%d, v%d offset:%d" % (vHI, vONE, F_WO)); A("s_mov_b64 exec, -1")
    if ldst:
        if wolate == 1: stamp(12)
        else:
            stamp(11)
            A("s_waitcnt lgkmcnt(0)"); A("s_mul_i32 s%d, s%d, 25" % (sT0, sN)); A("s_add_u32 s40, s16, s%d" % sT0); A("s_addc_u32 s41, s17, 0")
            if steal: A("s_add_u32 s36, s16, s94"); A("s_addc_u32 s37, s17, 0")
            if bal: A("s_add_u32 s40, s16, s94"); A("s_addc_u32 s41, s17, 0")
    else: stamp(3)
    if p_b >= 0:
        if p_b == 16: A("s_memrealtime s[18:19]")
        A("s_waitcnt lgkmcnt(0)"); A("s_sub_u32 s18, s18, s16"); A("v_mov_b32 v8, s18"); A("s_mov_b64 exec, 1"); A("buffer_atomic_add v8, off, %s, 0 offset:4" % srd("DBG")); A("s_mov_b64 exec, -1")
    if pspan:
        A("s_memrealtime s[18:19]"); A("s_waitcnt lgkmcnt(0)")
        if pspan in (3, 4): A("s_mov_b32 s18, s16")
        if pm: A("s_and_b32 s6, s2, %d" % pm); A("s_cmp_eq_u32 s6, %d" % pval); A("s_cselect_b32 s18, s18, s16")
        A("s_not_b32 s16, s16"); A("v_mov_b32 v8, s18"); A("v_mov_b32 v9, s16"); A("s_mov_b64 exec, 1")
        A("buffer_atomic_%s v8, off, %s, 0 offset:4" % ("add" if pspan in (4, 5) else "umax", srd("DBG"))); A("buffer_atomic_umax v9, off, %s, 0 offset:8" % srd("DBG")); A("s_mov_b64 exec, -1")
    if pgrp:
        A("s_memrealtime s[18:19]")
        if pgrp == 1: A("s_and_b32 s6, s2, 7")
        elif pgrp == 2: A("s_bfe_u32 s6, s%d, 0x30002" % sR)
        elif pgrp == 3: A("s_lshr_b32 s6, s%d, 5" % sR)
        else: A("s_and_b32 s6, s%d, 3" % sR); A("s_lshr_b32 s7, s2, 7"); A("s_lshl_b32 s7, s7, 2"); A("s_add_u32 s6, s6, s7")
        A("s_lshl_b32 s6, s6, 5")
        A("s_waitcnt lgkmcnt(0)"); A("v_mov_b32 v8, s18"); A("s_mov_b64 exec, 1"); A("buffer_atomic_%s v8, off, %s, s6 offset:4" % ("add" if pat >= 12 else "umax", srd("DBG"))); A("s_mov_b64 exec, -1")
    if probe:
        A("s_memrealtime s[20:21]"); A("s_waitcnt lgkmcnt(0)")
        if pstart: A("s_mov_b32 s20, s16")
        A("s_and_b32 s6, s2, 7"); A("s_lshr_b32 s6, %d, s6" % probe); A("s_and_b32 s6, s6, 1"); A("s_lshl_b32 s6, s6, 2"); A("s_add_u32 s6, s6, 4")
        A("s_waitcnt lgkmcnt(0)"); A("v_mov_b32 v8, s20"); A("s_mov_b64 exec, 1"); A("buffer_atomic_add v8, off, %s, s6" % srd("DBG")); A("s_mov_b64 exec, -1")
    A("s_waitcnt lgkmcnt(0)")
    A("s_branch L_done")

    def slot_addrs():
        A("v_lshlrev_b32 v28, 5, v0")
        A("s_and_b32 s%d, s%d, 3" % (sT0, sR)); A("s_lshl_b32 s%d, s%d, 3" % (sT0, sT0)); A("s_add_u32 s%d, s%d, s%d" % (sMU, sT0, sSTOFF))
    A("L_comm:")
    vZ = 20
    for i in range(4): A("v_mov_b32 v%d, 0" % (vZ + i))
    A("v_lshl_add_u32 v%d, v0, 2, v%d" % (vT, vHI))
    A("s_mov_b64 exec, 0xffff"); A("ds_write_b32 v%d, v%d offset:%d" % (vT, vZ, L_FLG)); A("s_mov_b64 exec, -1")
    slot_addrs()
    sEP = 4
    def epoch():
        A("s_waitcnt vmcnt(0)")
        A("v_readfirstlane_b32 s%d, v30" % sEP); A("v_readfirstlane_b32 s%d, v31" % (sEP + 1))
        A("s_add_u32 s%d, s%d, 0x%x" % (sEP, sEP, EP_STEP & 0xffffffff)); A("s_addc_u32 s%d, s%d, 0x%x" % (sEP + 1, sEP + 1, EP_STEP >> 32))
    A("s_waitcnt lgkmcnt(0)")
    A("buffer_load_dwordx2 v[30:31], off, %s, 0 offset:%d sc1" % (srd("WS"), WS_EP))
    A("s_barrier")
    A("v_add_u32 v%d, v%d, v%d" % (vT, vHI, vL16))
    A("v_and_b32 v29, 7, v0"); A("v_lshlrev_b32 v29, 14, v29"); A("v_lshl_add_u32 v29, v%d, 4, v29" % vG4)
    A("s_lshl_b32 s%d, s%d, 6" % (sT2, sRQ)); A("s_add_u32 s%d, s%d, 0x%x" % (sT2, sT2, WS_Q))
    A("s_bfe_u32 s%d, s%d, 0x30002" % (sT0, sR)); A("s_lshl_b32 s%d, s%d, 14" % (sT0, sT0)); A("s_lshr_b32 s%d, s%d, 5" % (sT1, sR)); A("s_lshl_b32 s%d, s%d, 11" % (sT1, sT1))
    A("s_add_u32 s%d, s%d, s%d" % (sT0, sT0, sT1)); A("s_add_u32 s%d, s%d, 0x%x" % (sT0, sT0, WS_Q))
    A("v_lshl_add_u32 v27, v0, 3, v%d" % vHI)
    epoch()
    A("v_mov_b32 v38, s%d" % sEP); A("v_mov_b32 v39, s%d" % (sEP + 1))
    stamp(1)
    lds_wait(F_QP, 4)
    for w in range(4): A("ds_read_b128 %s, v%d offset:%d" % (vr(40 + 4 * w, 4), vT, L_QP + w * 1024))
    A("s_waitcnt lgkmcnt(0)")
    for i in range(4): A("v_add_f32 v%d, v%d, v%d" % (40 + i, 40 + i, 44 + i)); A("v_add_f32 v%d, v%d, v%d" % (48 + i, 48 + i, 52 + i))
    for i in range(4): A("v_add_f32 v%d, v%d, v%d" % (40 + i, 40 + i, 48 + i))
    A("v_cvt_pk_bf16_f32 v36, v40, v41"); A("v_cvt_pk_bf16_f32 v37, v42, v43")
    A("s_mov_b32 exec_lo, 0x00ff00ff"); A("s_mov_b32 exec_hi, 0x00ff00ff")
    A("buffer_store_dwordx4 v[36:39], v29, %s, s%d offen sc1" % (srd("WS"), sT2))
    A("s_mov_b64 exec, -1")
    stamp(2)
    if qdelay: A("s_sleep %d" % qdelay)
    if qtrig: lds_wait(F_FULL, qtrig, sl=4)
    gpoll([(lambda: A("buffer_load_dwordx4 v[32:35], v%d, %s, s%d offen sc1" % (vL16, srd("WS"), sT0)), [32, 33, 34, 35]),
           (lambda: A("buffer_load_dwordx4 v[40:43], v%d, %s, s%d offen offset:1024 sc1" % (vL16, srd("WS"), sT0)), [40, 41, 42, 43])], sleep=qsleep, tag="s[%d:%d]" % (sEP, sEP + 1))
    A("ds_write_b64 v27, v[32:33] offset:%d" % L_QB); A("ds_write_b64 v27, v[40:41] offset:%d" % (L_QB + 512))
    lds_add(vHI, F_QR)
    stamp(4)
    def all_marked():
        A("v_lshlrev_b32 v%d, 5, v0" % (vT + 3))
        word_poll("buffer_load_dword v32, v%d, %s, 0 offen sc1" % (vT + 3, srd("DBG")), 32, "0xff", "v_cmp_gt_u32 vcc, 32, v%d", fsleep)
        stamp(3)
    all_marked()
    lds_add(vHI, F_AM)
    A("v_lshlrev_b32 v%d, 3, v%d" % (vT + 1, vN16)); A("v_add_u32 v%d, v%d, v%d" % (vT + 2, vHI, vT + 1))
    lds_wait(F_ST, 4)
    A("ds_read_b64 v[32:33], v%d offset:%d" % (vT + 2, L_ST)); A("s_waitcnt lgkmcnt(0)")
    def combine(modes):
        A("v_mov_b32 v34, v32")
        for m in modes: dpp("v_max_f32", 34, m)
        A("v_sub_f32 v32, v32, v34"); A("v_exp_f32 v32, v32"); A("v_mul_f32 v35, v32, v33")
        for m in modes: dpp("v_add_f32", 35, m)
    combine(("row_ror:4", "row_ror:8"))
    A("s_mov_b64 exec, 0xf"); A("buffer_store_dwordx2 v[34:35], v28, %s, s%d offen sc1" % (srd("WS"), sMU)); A("s_mov_b64 exec, -1")
    stamp(5)
    if sdelay: A("s_sleep %d" % sdelay)
    if strig:
        lds_wait(F_FULL, strig, sl=8)
    gpoll([(lambda: A("buffer_load_dwordx2 v[32:33], v%d, %s, s%d offen sc1" % (vT + 1, srd("WS"), sSTOFF)), [32, 33])], sleep=ssleep)
    combine(("quad_perm:[1,0,3,2]", "quad_perm:[2,3,0,1]"))
    A("v_rcp_f32 v35, v35"); A("v_lshl_add_u32 v%d, v%d, 3, v%d" % (vT + 2, vC4, vHI))
    A("s_mov_b64 exec, 0x1111"); A("ds_write_b64 v%d, v[34:35] offset:%d" % (vT + 2, L_GS)); A("s_mov_b64 exec, -1")
    lds_add(vHI, F_GR)
    stamp(6)
    A("s_mov_b32 s%d, 2" % sMU)
    A("L_gather56:")
    A("s_waitcnt lgkmcnt(0)")
    A("s_barrier")
    stamp(8)
    gather(sMU, lambda: None)
    A("s_waitcnt lgkmcnt(0)")
    A("s_barrier")
    stamp(9)
    A("s_branch L_done")

    A("L_mlp:")
    vW, vU = 32, 64
    def pg_addr(line, word):
        A("s_lshr_b32 s%d, s2, 3" % line); A("s_lshl_b32 s%d, s%d, 8" % (line, line)); A("s_add_u32 s%d, s%d, 0x%x" % (line, line, WS_PG))
        A("s_and_b32 s%d, s2, 7" % word); A("s_lshl_b32 s%d, s%d, 2" % (word, word)); A("s_add_u32 s%d, s%d, s%d" % (word, word, line))
    def clean():
        A("s_cmp_lg_u32 s%d, 7" % sWAVE); A("s_cbranch_scc1 L_noclean")
        for i in range(4): A("v_mov_b32 v%d, -1" % (60 + i))
        slot_addrs()
        A("v_lshlrev_b32 v%d, 13, v%d" % (59, vG4)); A("v_lshl_add_u32 v%d, v%d, 4, v%d" % (59, vN16, 59))
        A("s_lshl_b32 s%d, s%d, %d" % (sT1, sR, 11 + spad)); A("s_add_u32 s%d, s%d, 0x%x" % (sT1, sT1, WS_SP))
        A("v_lshrrev_b32 v29, 2, v0"); A("v_lshlrev_b32 v29, %d, v29" % (6 + spad)); A("v_lshl_add_u32 v29, v%d, 4, v29" % vR4)
        A("s_waitcnt lgkmcnt(0)")
        A("buffer_load_dwordx2 v[30:31], off, %s, 0 offset:%d sc1" % (srd("WS"), WS_EP))
        A("s_mov_b64 exec, 0xf"); A("buffer_store_dwordx2 v[60:61], v28, %s, s%d offen sc1" % (srd("WS"), sMU)); A("s_mov_b64 exec, -1")
        A("buffer_store_dwordx4 v[60:63], v%d, %s, s%d offen sc1" % (59, srd("WS"), sOPOFF))
        A("buffer_store_dwordx4 v[60:63], v29, %s, s%d offen sc1" % (srd("WS"), sT1))
        A("buffer_store_dwordx4 v[60:63], v29, %s, s%d offen offset:%d sc1" % (srd("WS"), sT1, 1024 << spad))
        if bal:
            pg_addr(sT1, sT3)
            A("s_mov_b64 exec, 1"); A("buffer_store_dword v60, off, %s, s%d sc1" % (srd("WS"), sT3)); A("s_mov_b64 exec, -1")
        if steal:
            A("s_lshl_b32 s%d, s%d, 12" % (sT1, sR)); A("s_add_u32 s%d, s%d, 0x%x" % (sT1, sT1, WS_PR))
            for k in range(4): A("buffer_store_dwordx4 v[60:63], v%d, %s, s%d offen offset:%d sc1" % (vL16, srd("WS"), sT1, 1024 * k))
            A("s_lshl_b32 s%d, s%d, 7" % (sT1, sR)); A("s_add_u32 s%d, s%d, 0x%x" % (sT1, sT1, WS_CW))
            A("s_mov_b64 exec, 1"); A("buffer_store_dword v60, off, %s, s%d sc1" % (srd("WS"), sT1)); A("s_mov_b64 exec, -1")
        A("L_noclean:")
    def arrive(cnt, lbl):
        A("s_cmp_lg_u32 s%d, 7" % sWAVE); A("s_cbranch_scc1 " + lbl)
        A("s_lshr_b32 s%d, s%d, 5" % (sT3, sR)); A("s_lshl_b32 s%d, s%d, 5" % (sT3, sT3))
        A("s_mov_b64 exec, 1")
        A("s_waitcnt vmcnt(%d)" % cnt)
        A("buffer_atomic_add v%d, off, %s, s%d" % (vONE, srd("DBG"), sT3))
        A("s_mov_b64 exec, -1")
        stamp(4)
        A(lbl + ":")
    if not cllate: clean()
    A("s_sub_u32 s%d, s%d, 6" % (sMB, sWAVE))
    A("v_mul_u32_u24 v%d, 12, v0" % vT); A("s_mul_i32 s%d, s%d, 1792" % (sT1, sMB))
    A("s_waitcnt lgkmcnt(0)")
    A("s_load_dword s%d, s[%d:%d], 0" % (sB2, sB2P, sB2P + 1))
    if tlb:
        A("s_bfe_u32 s%d, s%d, 0x30002" % (sBASE, sR)); A("s_lshl_b32 s%d, s%d, 23" % (sBASE, sBASE)); A("s_lshr_b32 s%d, s%d, 5" % (sT0, sR)); A("s_lshl_b32 s%d, s%d, 20" % (sT0, sT0))
        A("s_add_u32 s%d, s%d, s%d" % (sBASE, sBASE, sT0)); A("s_and_b32 s%d, s%d, 3" % (sT0, sR)); A("s_lshl_b32 s%d, s%d, 18" % (sT0, sT0)); A("s_add_u32 s%d, s%d, s%d" % (sBASE, sBASE, sT0))
        A("s_cmp_lg_u32 s%d, 6" % sWAVE); A("s_cbranch_scc1 L_notlb")
        A("s_mov_b64 exec, 1")
        if tlb & 1: A("buffer_load_dword v200, off, %s, s%d" % (srd("V"), sBASE))
        if tlb & 2:
            A("s_lshr_b32 s%d, s%d, 3" % (sT0, sR)); A("s_lshl_b32 s%d, s%d, 17" % (sT0, sT0))
            A("buffer_load_dword v201, off, %s, s%d" % (srd("WO"), sT0))
        if tlb & 4:
            A("v_lshlrev_b32 v202, 16, v0"); A("s_mov_b64 exec, 0xf")
            A("buffer_load_dword v203, v202, %s, s%d offen" % (srd("V"), sBASE))
            A("buffer_load_dword v204, v202, %s, s%d offen" % (srd("K"), sBASE))
        A("s_mov_b64 exec, -1")
        A("L_notlb:")
    A("s_barrier")
    for k, n in enumerate(("W1", "B1", "W2")):
        A("buffer_load_dwordx4 %s, v%d, %s, s%d offen" % (vr(vW + 8 * k, 4), vL16, srd(n), sT1))
        A("buffer_load_dwordx3 %s, v%d, %s, s%d offen offset:1024" % (vr(vW + 8 * k + 4, 3), vT, srd(n), sT1))
    if not cllate: arrive(6, "L_noflag")
    A("s_lshr_b32 s%d, s%d, 5" % (sT0, sR)); A("s_mul_i32 s%d, s%d, %d" % (sT0, sT0, XN_STRIDE)); A("s_add_u32 s%d, s%d, %d" % (sT0, sT0, HI)); A("v_add_u32 v%d, s%d, v%d" % (vT + 1, sT0, vL16))
    A("s_lshl_b32 s%d, s%d, 13" % (sT2, sMB)); A("s_add_u32 s%d, s%d, %d" % (sT2, sT2, HI + L_WO)); A("v_add_u32 v%d, s%d, v%d" % (vT + 2, sT2, vL16))
    A("s_and_b32 s%d, s%d, 31" % (sT0, sR)); A("s_lshl_b32 s%d, s%d, 5" % (sT0, sT0)); A("s_add_u32 s%d, s%d, s%d" % (sT0, sT0, sT2))
    A("v_lshlrev_b32 v%d, 1, v%d" % (vT + 3, vN16)); A("v_add_u32 v%d, s%d, v%d" % (vT + 3, sT0, vT + 3))
    lds_wait(F_XN, 4)
    if cllate: clean()
    vXm = 112
    A("ds_read_b128 %s, v%d offset:%d" % (vr(vXm, 4), vT + 1, L_XN)); A("s_waitcnt lgkmcnt(0)")
    layernorm(vXm, 4, vXm + 4, vXm + 12, vXm + 20, 1)
    A("ds_write_b128 v%d, %s" % (vT + 2, vr(vXm, 4)))
    vH = 24
    A("ds_read_u16 v%d, v%d" % (vH, vT + 3))
    A("v_lshrrev_b32 v%d, 3, v0" % (vT + 4)); A("v_lshlrev_b32 v%d, 10, v%d" % (vT + 4, vT + 4)); A("v_and_b32 v%d, 7, v0" % (vT + 5)); A("v_lshl_add_u32 v%d, v%d, 4, v%d" % (vT + 4, vT + 5, vT + 4))
    A("s_lshr_b32 s%d, s%d, 3" % (sT0, sR)); A("s_lshl_b32 s%d, s%d, 17" % (sT0, sT0)); A("s_and_b32 s%d, s%d, 7" % (sT1, sR)); A("s_lshl_b32 s%d, s%d, 7" % (sT1, sT1))
    A("s_add_u32 s%d, s%d, s%d" % (sT0, sT0, sT1)); A("s_lshl_b32 s%d, s%d, 16" % (sT1, sMB)); A("s_add_u32 s%d, s%d, s%d" % (sT0, sT0, sT1))
    A("s_waitcnt vmcnt(0) lgkmcnt(0)")
    if cllate: arrive(0, "L_noflag")
    for a in range(8):
        A("s_add_u32 m0, s%d, %d" % (sT2, a * 1024))
        if 'o' not in abl and not wolate: A("buffer_load_dwordx4 v%d, %s, s%d offen %s lds" % (vT + 4, srd("WO"), sT0, polo))
        if a < 7: A("s_add_u32 s%d, s%d, 0x2000" % (sT0, sT0))
    stamp(1)
    A("v_lshlrev_b32 v%d, 16, v%d" % (vH, vH))
    for k in range(3):
        for i in range(7): unpack(vU + 14 * k + 2 * i, vU + 14 * k + 2 * i + 1, vW + 8 * k + i)
    vC0, vACC, U, T_ = 25, 26, 112, 128
    A("v_mov_b32 v%d, s%d" % (vC0, sC0))
    A("s_lshl_b32 s%d, s%d, 6" % (sT0, sMB)); A("s_add_u32 s%d, s%d, %d" % (sT0, sT0, HI + L_YP)); A("v_mov_b32 v27, s%d" % sT0)
    A("s_mov_b32 s%d, 0" % sT1)
    A("s_nop 3")
    A("L_mlp_loop:")
    A("v_readlane_b32 s%d, v%d, s%d" % (sMU, vH, sT1))
    for t in range(14): A("v_fma_f32 v%d, s%d, v%d, v%d" % (U + t, sMU, vU + t, vU + 14 + t))
    for t in range(14): A("v_mul_f32 v%d, v%d, v%d" % (T_ + t, U + t, U + t))
    for t in range(14): A("v_fma_f32 v%d, v%d, s%d, v%d" % (T_ + t, T_ + t, sC1, vC0))
    for t in range(14): A("v_mul_f32 v%d, v%d, v%d" % (T_ + t, T_ + t, U + t))
    for t in range(14):
        A("v_exp_f32 v%d, v%d" % (T_ + t, T_ + t)); A("v_mul_f32 v%d, v%d, v%d" % (U + t, U + t, vU + 28 + t))
    for t in range(14): A("v_add_f32 v%d, 1.0, v%d" % (T_ + t, T_ + t))
    for t in range(14): A("v_rcp_f32 v%d, v%d" % (T_ + t, T_ + t))
    A("v_mul_f32 v%d, v%d, v%d" % (vACC, U, T_)); A("v_mul_f32 v%d, v%d, v%d" % (U, U + 1, T_ + 1))
    for t in range(2, 14): A("v_fmac_f32 v%d, v%d, v%d" % (vACC if t & 1 else U, U + t, T_ + t))
    A("v_add_f32 v%d, v%d, v%d" % (vACC, vACC, U))
    red16(vACC, "v_add_f32"); dpp("v_add_f32", vACC, "row_bcast:15", "0xa"); dpp("v_add_f32", vACC, "row_bcast:31", "0xc")
    A("s_mov_b32 exec_lo, 0"); A("s_mov_b32 exec_hi, 0x80000000")
    A("ds_write_b32 v27, v%d" % vACC); A("v_add_u32 v27, 4, v27")
    A("s_mov_b64 exec, -1")
    A("s_add_u32 s%d, s%d, 1" % (sT1, sT1)); A("s_cmp_lt_u32 s%d, 16" % sT1); A("s_cbranch_scc1 L_mlp_loop")
    stamp(2)
    A("s_waitcnt vmcnt(0)")
    A("s_mov_b32 s%d, 3" % sMU)
    if steal:
        A("s_cmp_eq_u32 s%d, 7" % sWAVE); A("s_cbranch_scc1 L_final")
        lds_wait(F_AM, 1, sl=8)
        sCW = 4
        A("s_lshl_b32 s%d, s%d, 7" % (sCW, sR)); A("s_add_u32 s%d, s%d, 0x%x" % (sCW, sCW, WS_CW))
        def set_plan(val):
            A("v_mov_b32 v%d, %s" % (vT, val)); A("s_mov_b64 exec, 1"); A("ds_write_b32 v%d, v%d offset:%d" % (vHI, vT, F_PLAN)); A("s_mov_b64 exec, -1")
        for k in range(5, 11):
            if k == 8:
                A("s_xor_b32 s%d, s%d, 0x100" % (sCW, sCW))
            if k == 8:
                A("s_xor_b32 s%d, s%d, 2" % (sT1, sR)); A("s_lshl_b32 s%d, s%d, 12" % (sT1, sT1)); A("s_add_u32 s%d, s%d, 0x%x" % (sT1, sT1, WS_PR))
                A("v_add_u32 v%d, v%d, v%d" % (vT + 1, vHI, vL16))
                rec = [((lambda q=q: A("buffer_load_dwordx4 %s, v%d, %s, s%d offen offset:%d sc1" % (vr(36 + 4 * q, 4), vL16, srd("WS"), sT1, 1024 * q))), list(range(36 + 4 * q, 40 + 4 * q))) for q in range(4)]
                lds_wait(F_FULL, rtrig, sl=2)
                A("s_mov_b32 exec_hi, 0x1ffff")
                for i_, _ in rec: i_()
                A("s_mov_b64 exec, -1")
            lds_wait(F_FULL, 4 * k + cth + (bias if k >= 8 else 0), sl=2)
            A("v_mov_b32 v32, 1"); A("s_mov_b64 exec, 1")
            A("buffer_atomic_add v32, off, %s, s%d sc0" % (srd("WS"), sCW))
            A("s_mov_b64 exec, -1")
            A("s_mov_b32 s%d, 0x%x" % (sT2, 0x100 + k))
            A("s_waitcnt vmcnt(0)")
            A("v_readfirstlane_b32 s%d, v32" % sT0); A("s_add_u32 s%d, s%d, 1" % (sT0, sT0))
            if stamps and k < 9: stamp(k - 2)
            A("s_cmp_ge_u32 s%d, 3" % sT0); A("s_cbranch_scc1 L_close")
            if k == 8:
                A("s_mov_b32 exec_hi, 0x1ffff")
                gpoll(rec[:2], first=False, sleep=8, full="PARTIAL"); gpoll(rec[2:], first=False, sleep=8, full="PARTIAL")
                for q in range(4): A("ds_write_b128 v%d, %s offset:%d" % (vT + 1, vr(36 + 4 * q, 4), L_PP + 1024 * q))
                A("s_mov_b64 exec, -1")
                A("s_waitcnt lgkmcnt(0)")
            set_plan("%d" % (k + 1))
        A("s_mov_b32 s%d, 0x%x" % (sT2, 0x100 + 11))
        A("L_close:")
        set_plan("s%d" % sT2)
        A("s_branch L_gather56")
        A("L_final:")
    elif bal >= 2:
        A("s_cmp_eq_u32 s%d, 7" % sWAVE); A("s_cbranch_scc1 L_final")
        lds_wait(F_AM, 1, sl=8)
        pg_addr(4, 5)
        if bal == 3: A("s_lshl_b32 s4, s2, 8"); A("s_add_u32 s4, s4, 0x%x" % (WS_PG + 0x4000))
        for k in range(bmin):
            lds_wait(F_FULL, bthr + bper * k, sl=4)
            A("v_mov_b32 v%d, 1" % (32 + k)); A("s_mov_b64 exec, 1")
            if bal == 4: A("buffer_load_dword v%d, off, %s, s4 sc1" % (32 + k, srd("WS")))
            elif bal == 5: A("buffer_store_dword v%d, off, %s, s5 sc1" % (32 + k, srd("WS")))
            else: A("buffer_atomic_add v%d, off, %s, s4 sc0" % (32 + k, srd("WS")))
            A("s_mov_b64 exec, -1")
        A("s_waitcnt vmcnt(0)")
        A("s_branch L_gather56")
        A("L_final:")
    elif bal:
        A("s_cmp_eq_u32 s%d, 7" % sWAVE); A("s_cbranch_scc1 L_final")
        lds_wait(F_AM, 1, sl=8)
        pg_addr(4, 5)
        A("s_and_b32 s12, s2, 7"); A("v_lshlrev_b32 v33, 2, v0"); A("s_mov_b32 s13, 0")
        A("L_bal:")
        A("s_mov_b64 exec, 0xff"); A("buffer_load_dword v32, v33, %s, s4 offen sc1" % srd("WS"))
        A("s_mov_b64 exec, 1")
        A("ds_read_b32 v34, v%d offset:%d" % (vHI, F_FULL)); A("s_waitcnt lgkmcnt(0)")
        A("buffer_store_dword v34, off, %s, s5 sc1" % srd("WS"))
        A("s_mov_b64 exec, -1")
        A("v_readfirstlane_b32 s%d, v34" % sT0)
        A("s_cmp_ge_u32 s%d, %d" % (sT0, bstop)); A("s_cbranch_scc1 L_balend")
        A("s_waitcnt vmcnt(1)")
        A("v_readlane_b32 s%d, v32, s12" % sT1)
        A("s_mov_b64 exec, 0xff")
        A("v_cmp_eq_u32 vcc, -1, v32")
        if bmin:
            for m in QUADS[:3]: dpp("v_min_u32", 32, m)
        else:
            for m in QUADS[:3]: dpp("v_add_u32", 32, m)
        A("s_mov_b64 exec, -1")
        A("v_readfirstlane_b32 s%d, v32" % sT2)
        A("s_cmp_lg_u64 vcc, 0"); A("s_cbranch_scc1 L_balskip")
        if not bmin: A("s_lshl_b32 s%d, s%d, 3" % (sT1, sT1))
        A("s_sub_i32 s%d, s%d, s%d" % (sT1, sT1, sT2)); A("s_cmp_gt_i32 s%d, %d" % (sT1, bthr)); A("s_cselect_b32 s%d, 1, 0" % sT1)
        A("v_mov_b32 v35, s%d" % sT1); A("s_mov_b64 exec, 1"); A("ds_write_b32 v%d, v35 offset:%d" % (vHI, F_MODE)); A("s_mov_b64 exec, -1")
        A("L_balskip:")
        if bper: A("s_sleep %d" % bper)
        A("s_add_u32 s13, s13, 1"); A("s_cmp_lt_u32 s13, 4096"); A("s_cbranch_scc1 L_bal")
        A("L_balend:")
        A("v_mov_b32 v35, 0"); A("s_mov_b64 exec, 1"); A("ds_write_b32 v%d, v35 offset:%d" % (vHI, F_MODE)); A("s_mov_b64 exec, -1")
        A("s_waitcnt vmcnt(0)")
        A("s_branch L_gather56")
        A("L_final:")
    else:
        A("s_cmp_eq_u32 s%d, 6" % sWAVE); A("s_cbranch_scc1 L_gather56")
    if at2:
        A("v_and_b32 v%d, 7, v0" % (vT + 1)); A("v_lshrrev_b32 v%d, 5, v0" % (vT + 2)); A("v_lshl_add_u32 v%d, v%d, 1, v%d" % (vT + 1, vT + 1, vT + 2))
    else: A("v_lshl_add_u32 v%d, v%d, 2, v%d" % (vT + 1, vR4, vG4))
    A("v_lshlrev_b32 v%d, 1, v%d" % (vT + 2, vT + 1)); A("s_lshl_b32 s%d, s%d, 5" % (sT0, sR))
    A("buffer_load_ushort v%d, v%d, %s, s%d offen" % (vT + 3, vT + 2, srd("X"), sT0))
    A("v_lshl_add_u32 v%d, v%d, 2, v%d" % (vT + 1, vT + 1, vHI))
    A("s_lshl_b32 s%d, s%d, %d" % (sT1, sR, 11 + spad)); A("s_add_u32 s%d, s%d, 0x%x" % (sT1, sT1, WS_SP))
    A("v_lshrrev_b32 v29, 2, v0"); A("v_lshlrev_b32 v29, %d, v29" % (6 + spad)); A("v_lshl_add_u32 v29, v%d, 4, v29" % vR4)
    if wolate == 2:
        A("s_mov_b32 s12, s%d" % sT0); A("s_mov_b32 s13, s%d" % sT1)
        if steal: lds_wait(F_LI, 1, sl=2)
        else: lds_wait(F_FULL, wotrig, sl=2)
        wo_dma()
        A("s_mov_b32 s%d, s12" % sT0); A("s_mov_b32 s%d, s13" % sT1)
    A("s_waitcnt lgkmcnt(0)")
    A("s_barrier")
    stamp(8)
    A("ds_read_b32 v40, v%d offset:%d" % (vT + 1, L_YP)); A("ds_read_b32 v41, v%d offset:%d" % (vT + 1, L_YP + 64)); A("s_waitcnt lgkmcnt(0)")
    A("v_add_f32 v40, v40, v41"); rbf(40)
    A("s_lshl_b32 s%d, s%d, 16" % (sB2, sB2)); A("v_add_f32 v40, s%d, v40" % sB2); rbf(40)
    A("v_mul_f32 v41, s%d, v40" % sL2E); A("v_exp_f32 v41, -v41"); A("v_add_f32 v41, 1.0, v41"); A("v_rcp_f32 v41, v41"); A("v_mul_f32 v40, v40, v41"); rbf(40)
    A("s_waitcnt vmcnt(0)"); A("v_lshlrev_b32 v%d, 16, v%d" % (vT + 3, vT + 3))
    if wolate == 2:
        A("s_mov_b64 exec, 1"); A("ds_write_b32 v%d, v%d offset:%d" % (vHI, vONE, F_WO)); A("s_mov_b64 exec, -1")
        stamp(11)
    A("s_barrier")
    stamp(9)
    if td2: A("s_sleep %d" % td2)
    if at2:
        A("v_lshlrev_b32 v29, 3, v0")
        apoll(32, 29, sT1, 44, tsleep2)
        stamp(10)
        A("v_add_f32 v44, v32, v34"); A("v_add_f32 v45, v33, v35"); A("v_add_f32 v46, v36, v38"); A("v_add_f32 v47, v37, v39")
        A("v_add_f32 v44, v44, v46"); A("v_add_f32 v45, v45, v47")
        A("v_permlane32_swap_b32 v44, v45"); A("v_add_f32 v44, v44, v45")
        swap_red(44, 45, "v_add_f32", 16)
        dpp("v_add_f32", 44, "row_ror:8")
    else:
        gpoll([(lambda: A("buffer_load_dwordx4 v[32:35], v29, %s, s%d offen %s" % (srd("WS"), sT1, tl)), [32, 33, 34, 35]),
               (lambda: A("buffer_load_dwordx4 v[36:39], v29, %s, s%d offen offset:%d %s" % (srd("WS"), sT1, 1024 << spad, tl)), [36, 37, 38, 39])], sleep=tsleep2, P=P2)
        stamp(10)
        for i in range(4): A("v_add_f32 v%d, v%d, v%d" % (44 + i, 32 + i, 36 + i))
        A("v_permlane32_swap_b32 v44, v46"); A("v_permlane32_swap_b32 v45, v47")
        A("v_add_f32 v44, v44, v46"); A("v_add_f32 v45, v45, v47")
        A("v_permlane16_swap_b32 v44, v45"); A("v_add_f32 v44, v44, v45")
        dpp("v_add_f32", 44, "row_ror:8"); dpp("v_add_f32", 44, "row_ror:4")
    rbf(44); A("v_mul_f32 v44, v44, v40"); rbf(44)
    A("v_add_f32 v44, v44, v%d" % (vT + 3)); A("v_cvt_pk_bf16_f32 v44, v44, v44")
    em = "0xff" if at2 else "0x000f000f"
    A("s_mov_b32 exec_lo, %s" % em); A("s_mov_b32 exec_hi, %s" % em)
    A("buffer_store_short v44, v%d, %s, s%d offen" % (vT + 2, srd("OUT"), sT0))
    A("s_mov_b64 exec, -1")
    A("s_cmp_lg_u32 s%d, 0" % sR); A("s_cbranch_scc1 L_done")
    epoch()
    A("v_mov_b32 v30, s%d" % sEP); A("v_mov_b32 v31, s%d" % (sEP + 1)); A("s_mov_b64 exec, 1")
    A("buffer_store_dwordx2 v[30:31], off, %s, 0 offset:%d sc1" % (srd("WS"), WS_EP))
    A("s_mov_b64 exec, -1")
    if pgrp:
        A("v_lshlrev_b32 v29, 5, v0"); A("s_mov_b64 exec, 0xff")
        A("buffer_load_dword v30, v29, %s, 0 offen offset:4 sc1" % srd("DBG")); A("s_memrealtime s[16:17]"); A("s_waitcnt vmcnt(0) lgkmcnt(0)")
        if pat >= 12:
            A("v_readfirstlane_b32 s6, v30"); A("v_subrev_u32 v30, s6, v30"); A("v_add_u32 v30, 0x100000, v30")
            if pat == 13: A("v_lshlrev_b32 v30, 3, v30"); A("v_or_b32 v30, v30, v0")
        A("v_mov_b32 v31, v30")
        for m in QUADS[:3]: dpp("v_max_u32", 30, m)
        if pat in (11, 12, 13, 14):
            for m in QUADS[:3]: dpp("v_min_u32", 31, m)
        else:
            A("v_subrev_u32 v31, v31, v30")
            for m in QUADS[:3]: dpp("v_add_u32", 31, m)
        A("s_mov_b64 exec, -1")
        A("v_readfirstlane_b32 s6, v30"); A("v_readfirstlane_b32 s7, v31")
        if pat == 11: A("s_sub_u32 s6, s6, s7"); A("s_lshl_b32 s6, s6, 3")
        elif pat == 12: A("s_sub_u32 s6, s6, s7"); A("s_lshr_b32 s6, s6, 2")
        elif pat == 13: A("s_and_b32 s6, s6, 7"); A("s_mul_i32 s6, s6, 300")
        else: A("s_mov_b32 s6, s7")
        A("s_min_u32 s6, s6, 20000")
        A("s_add_u32 s16, s16, s6")
        A("L_pad3:"); A("s_memrealtime s[18:19]"); A("s_waitcnt lgkmcnt(0)"); A("s_sub_u32 s18, s18, s16"); A("s_cmp_lt_i32 s18, 0"); A("s_cbranch_scc1 L_pad3")
    if probe or p_b >= 0 or pspan:
        A("buffer_load_dwordx2 v[30:31], off, %s, 0 offset:4 sc1" % srd("DBG")); A("s_memrealtime s[16:17]"); A("s_waitcnt vmcnt(0) lgkmcnt(0)")
        A("v_readfirstlane_b32 s6, v30"); A("v_readfirstlane_b32 s7, v31")
        if probe: A("s_sub_i32 s6, s6, s7"); A("s_abs_i32 s6, s6"); A("s_lshr_b32 s6, s6, 4")
        elif pspan == 1: A("s_not_b32 s7, s7"); A("s_sub_u32 s6, s6, s7"); A("s_lshl_b32 s6, s6, 2")
        elif pspan == 2: A("s_sub_u32 s6, s16, s6"); A("s_lshl_b32 s6, s6, 3")
        elif pspan == 6: A("s_not_b32 s7, s7"); A("s_sub_u32 s6, s16, s7"); A("s_lshl_b32 s6, s6, 2")
        elif pspan == 3: A("s_not_b32 s7, s7"); A("s_sub_u32 s6, s6, s7"); A("s_lshl_b32 s6, s6, 3")
        elif pspan in (4, 5): A("s_not_b32 s7, s7"); A("s_lshl_b32 s7, s7, 8"); A("s_sub_u32 s6, s6, s7"); A("s_lshr_b32 s6, s6, %d" % (5 if pspan == 4 else 6))
        else: A("s_lshr_b32 s6, s6, 5")
        A("s_min_u32 s6, s6, 20000")
        A("s_add_u32 s16, s16, s6")
        A("L_pad2:"); A("s_memrealtime s[18:19]"); A("s_waitcnt lgkmcnt(0)"); A("s_sub_u32 s18, s18, s16"); A("s_cmp_lt_i32 s18, 0"); A("s_cbranch_scc1 L_pad2")
    A("L_done:")
    A("s_waitcnt vmcnt(0)")
    if pad:
        A("s_waitcnt lgkmcnt(0)"); A("s_add_u32 s16, s16, %d" % pad)
        A("L_pad:"); A("s_memrealtime s[18:19]"); A("s_waitcnt lgkmcnt(0)"); A("s_sub_u32 s18, s18, s16"); A("s_cmp_lt_i32 s18, 0"); A("s_cbranch_scc1 L_pad")
    if stamps:
        A("s_waitcnt vmcnt(0)")
        stamp(NST - 1)
        A("s_waitcnt lgkmcnt(0)")
        A("s_lshl_b32 s%d, s2, 3" % sT0); A("s_add_u32 s%d, s%d, s%d" % (sT0, sT0, sWAVE)); A("s_mul_i32 s%d, s%d, %d" % (sT0, sT0, NST * 8)); A("s_add_u32 s%d, s%d, 0x%x" % (sT0, sT0, WS_STAMP))
        A("s_mov_b64 exec, 1")
        for k in range(NST):
            A("v_mov_b32 v2, s%d" % (16 + 2 * k)); A("v_mov_b32 v3, s%d" % (17 + 2 * k))
            A("buffer_store_dwordx2 v[2:3], off, %s, s%d offset:%d" % (srd("WS"), sT0, k * 8)); A("s_nop 1")
    A("L_end:")
    A("s_endpgm")
    body = A.finalize()
    hdr = open("recurrent_scan__gqa_block_cached__mixer_token_mlp__decode.s.ref").read().split("; Override launch")[0]
    s = hdr + "; @launch grid=(256,1,1) block=(512,1,1) lds=%d\n" % LDS_BYTES
    s += '.amdgcn_target "amdgcn-amd-amdhsa--gfx950"\n.text\n.globl %s\n.p2align 8\n.type %s,@function\n%s:\n' % (NAME, NAME, NAME)
    s += body
    s += '.section .rodata,"a"\n.p2align 6\n.amdhsa_kernel %s\n  .amdhsa_next_free_vgpr 256\n  .amdhsa_next_free_sgpr 102\n  .amdhsa_accum_offset 256\n' % NAME
    s += "  .amdhsa_group_segment_fixed_size 0\n  .amdhsa_kernarg_size 104\n  .amdhsa_user_sgpr_count 2\n  .amdhsa_user_sgpr_kernarg_segment_ptr 1\n  .amdhsa_system_sgpr_workgroup_id_x 1\n.end_amdhsa_kernel\n"
    return s, A

if __name__ == "__main__":
    out = sys.argv[1]
    kw = {}
    for p in sys.argv[2:]:
        k, v = p.split("=")
        kw[k] = int(v) if v.lstrip("-").isdigit() else v.replace("+", " ")
    s, A = gen(**kw)
    open(out, "w").write(s)
    print("wrote", out, "instructions", len(A.ins), "nops", A.nops, "lds", LDS_BYTES)
```

```python
import sys, struct
from asmlib import Asm

NAME = "recurrent_scan__gqa_block_cached__mixer_token_mlp__decode_kernel"
def f2u(x): return struct.unpack("<I", struct.pack("<f", x))[0]

WS_ST, WS_OP, WS_SP, WS_Q, WS_EP = 0x10000, 0x20000, 0x100000, 0x60000, 0x0
WS_CW = 0x80000
EP_STEP = 0x9E3779B97F4A7C15
WS_STAMP = 128 << 20
HI = 131072
L_WO = 0
L_XN, XN_STRIDE = 16384, 1040
L_OW = L_XN
L_QP = 24704
L_QB = 28800
L_FLG = 29824
L_ST = L_FLG + 256
L_GS = L_ST + 128
L_YP = L_GS + 32
LDS_BYTES = HI + L_YP + 128
F_FULL, F_XN, F_QP, F_QR, F_ST, F_GR, F_WO, F_AM, F_SL, F_PLAN = [L_FLG + 4 * i for i in (0, 8, 9, 10, 11, 12, 13, 14, 16, 32)]

sWAVE, sBASE, sOFF = 3, 4, 5
sT0, sT1, sT2 = 6, 7, 8
sR, sSPIN, sT3 = 9, 10, 11
sMU, sMB = 14, 15
SRD = dict(K=44, V=48, X=52, WQ=56, WO=60, W1=64, B1=68, W2=72, OUT=76, DBG=80, WS=84)
KARG = dict(X=0, K=8, V=16, WQ=24, WO=32, W1=48, B1=56, W2=64, OUT=80, DBG=88, WS=96)
SIZE = dict(X=8192, K=1 << 26, V=1 << 26, WQ=1 << 22, WO=1 << 22, W1=3584, B1=3584, W2=3584, OUT=8192, DBG=256, WS=1 << 28)
sSELLO, sSELHI, sMASK, sSCALE, sL2E, sC0, sC1, sB2, sB2P = 88, 89, 90, 91, 92, 93, 94, 95, 96
sOPOFF, sSPOFF, sRW, sFULL = 98, 99, 100, 101
def srd(n): return "s[%d:%d]" % (SRD[n], SRD[n] + 3)
def vr(a, n=1): return "v%d" % a if n == 1 else "v[%d:%d]" % (a, a + n - 1)
vL16, vG4, vC4, vR4, vN16, vHI, vONE = 1, 2, 3, 4, 5, 6, 7
vT = 8
vPOLL = 16

def gen(F=4, stamps=0, pol="nt", spin=1 << 17, lspin=1 << 22, mimic=1, lsleep=1, ldprio=3, fsleep=8, qsleep=2, ssleep=8, tsleep=0, xmap=8, ldst=0,
        td2=8, qtrig=8, wotrig=4, nf=24, maxt=16, n1=20, t0=34, tstep=2, tamt=2, lag=1, force="", tlist="", sdelay=0, noat=0, pg=2, cws=128, womap=2, pspan=0, pgrp=0):
    NF, POOL, MAXT = nf, 128 - 4 * nf, maxt
    NU = MAXT // 4
    NB = n1 // 4
    NW = NF // 4
    A = Asm()
    NST = 14
    def stamp(k):
        if stamps: A("s_memrealtime s[%d:%d]" % (16 + 2 * k, 17 + 2 * k))
    QUADS = ("quad_perm:[1,0,3,2]", "quad_perm:[2,3,0,1]", "row_half_mirror", "row_mirror")
    def dpp(op, v, m, rm="0xf"): A("%s_dpp v%d, v%d, v%d %s row_mask:%s bank_mask:0xf" % (op, v, v, v, m, rm))
    def red16(v, op):
        for m in QUADS: dpp(op, v, m)
    def swap_red(v, t, op, which):
        A("v_mov_b32 v%d, v%d" % (t, v)); A("v_permlane%d_swap_b32 v%d, v%d" % (which, v, t)); A("%s v%d, v%d, v%d" % (op, v, v, t))
    def rbf(v):
        A("v_cvt_pk_bf16_f32 v%d, v%d, v%d" % (v, v, v)); A("v_lshlrev_b32 v%d, 16, v%d" % (v, v))
    def unpack(dlo, dhi, src):
        A("v_lshlrev_b32 v%d, 16, v%d" % (dlo, src)); A("v_and_b32 v%d, s%d, v%d" % (dhi, sMASK, src))
    def one_lane(text):
        A("s_mov_b64 exec, 1"); A(text); A("s_mov_b64 exec, -1")
    def layernorm(pk, n, x, d, t, halves):
        def allred(v):
            red16(v, "v_add_f32"); swap_red(v, t + 2, "v_add_f32", 16)
            if halves == 1: swap_red(v, t + 2, "v_add_f32", 32)
        for i in range(n): unpack(x + 2 * i, x + 2 * i + 1, pk + i)
        A("v_add_f32 v%d, v%d, v%d" % (t, x, x + 1)); A("v_add_f32 v%d, v%d, v%d" % (t + 1, x + 2, x + 3))
        for i in range(4, 2 * n): A("v_add_f32 v%d, v%d, v%d" % (t + (i & 1), t + (i & 1), x + i))
        A("v_add_f32 v%d, v%d, v%d" % (t, t, t + 1))
        allred(t)
        A("v_mul_f32 v%d, 0x3b000000, v%d" % (t, t))
        A("v_cvt_pk_bf16_f32 v%d, v%d, v%d" % (t + 1, t, t))
        for i in range(2 * n): A("v_sub_f32 v%d, v%d, v%d" % (d + i, x + i, t))
        A("v_lshlrev_b32 v%d, 16, v%d" % (t + 1, t + 1))
        A("v_mul_f32 v%d, v%d, v%d" % (t, d, d)); A("v_mul_f32 v%d, v%d, v%d" % (d, d + 1, d + 1))
        for i in range(2, 2 * n): A("v_fmac_f32 v%d, v%d, v%d" % (t if i & 1 else d, d + i, d + i))
        A("v_add_f32 v%d, v%d, v%d" % (t, t, d))
        for i in range(2 * n): A("v_sub_f32 v%d, v%d, v%d" % (x + i, x + i, t + 1))
        allred(t)
        for i in range(n): A("v_cvt_pk_bf16_f32 v%d, v%d, v%d" % (pk + i, x + 2 * i, x + 2 * i + 1))
        A("v_mul_f32 v%d, 0x3b000000, v%d" % (t, t)); rbf(t)
        A("v_add_f32 v%d, 0x%x, v%d" % (t, f2u(1e-5), t)); rbf(t)
        A("v_sqrt_f32 v%d, v%d" % (t, t)); rbf(t)
        A("v_rcp_f32 v%d, v%d" % (t, t))
        for i in range(n): unpack(x + 2 * i, x + 2 * i + 1, pk + i)
        for i in range(2 * n): A("v_mul_f32 v%d, v%d, v%d" % (x + i, t, x + i))
        for i in range(n): A("v_cvt_pk_bf16_f32 v%d, v%d, v%d" % (pk + i, x + 2 * i, x + 2 * i + 1))
    def lds_wait(flag, val, keep=None, sl=None):
        ok = A.label("lok"); again = A.label("lagain")
        dst = keep if keep is not None else sT3
        if keep is not None:
            A("s_cmp_ge_u32 s%d, %s" % (keep, val)); A("s_cbranch_scc1 " + ok)
        A("s_mov_b32 s%d, 0" % sSPIN)
        A(again + ":")
        A("ds_read_b32 v%d, v%d offset:%d" % (vPOLL, vHI, flag)); A("s_waitcnt lgkmcnt(0)")
        A("v_readfirstlane_b32 s%d, v%d" % (dst, vPOLL))
        A("s_cmp_ge_u32 s%d, %s" % (dst, val)); A("s_cbranch_scc1 " + ok)
        if sl is None: sl = lsleep
        if sl: A("s_sleep %d" % sl)
        A("s_add_u32 s%d, s%d, 1" % (sSPIN, sSPIN)); A("s_cmp_lt_u32 s%d, %d" % (sSPIN, lspin)); A("s_cbranch_scc1 " + again)
        A(ok + ":")
    def lds_add(flag_addr_reg, off):
        A("s_waitcnt lgkmcnt(0)")
        one_lane("ds_add_u32 v%d, v%d offset:%d" % (flag_addr_reg, vONE, off))
    def wait_near_end(dist, sl):
        lds_wait(F_PLAN, "0x100", sl=sl)
        A("s_and_b32 s%d, s%d, 31" % (sT3, sT3)); A("s_lshl_b32 s%d, s%d, 1" % (sT3, sT3)); A("s_add_u32 s4, s%d, %d" % (sT3, 2 * NF - dist))
        lds_wait(F_FULL, "s4", sl=sl)
    def gpoll(loads, first=True, sleep=0, tag=None):
        ok = A.label("ok"); again = A.label("again")
        masks = ["vcc", "s[12:13]"]
        A("s_mov_b32 s%d, 0" % sSPIN)
        if first:
            for issue, regs in loads: issue()
        A(again + ":")
        A("s_waitcnt vmcnt(0)")
        for (issue, regs), mk in zip(loads, masks):
            t = vT + 7
            if tag is not None:
                A("v_cmp_ne_u64 %s, %s, v[%d:%d]" % (mk, tag, regs[2], regs[3])); continue
            if len(regs) == 2: A("v_max_u32 v%d, v%d, v%d" % (t, regs[0], regs[1]))
            else:
                A("v_max3_u32 v%d, v%d, v%d, v%d" % (t, regs[0], regs[1], regs[2])); A("v_max_u32 v%d, v%d, v%d" % (t, t, regs[3]))
            A("v_cmp_eq_u32 %s, -1, v%d" % (mk, t))
        if len(loads) == 2:
            A("s_or_b32 s%d, vcc_lo, vcc_hi" % sT3); A("s_or_b32 s%d, s%d, s12" % (sT3, sT3)); A("s_or_b32 s%d, s%d, s13" % (sT3, sT3))
        else:
            A("s_or_b32 s%d, vcc_lo, vcc_hi" % sT3)
        A("s_cbranch_scc0 " + ok)
        if sleep: A("s_sleep %d" % sleep)
        for (issue, regs), mk in zip(loads, masks):
            A("s_mov_b64 exec, %s" % mk); issue()
        A("s_mov_b64 exec, -1")
        A("s_add_u32 s%d, s%d, 1" % (sSPIN, sSPIN)); A("s_cmp_lt_u32 s%d, %d" % (sSPIN, spin)); A("s_cbranch_scc1 " + again)
        A("s_waitcnt vmcnt(0)")
        A(ok + ":")
    def apoll(vd, vaddr, soff, vtmp, sleep):
        ms = ["vcc", "s[12:13]", "s[88:89]", "s[90:91]"]
        ok = A.label("aok"); again = A.label("aagain")
        def iss(k):
            A("v_mov_b32 v%d, 0" % (vd + 2 * k)); A("v_mov_b32 v%d, 0" % (vd + 1 + 2 * k))
            A("buffer_atomic_or_x2 v[%d:%d], v%d, %s, s%d offen offset:%d sc0" % (vd + 2 * k, vd + 1 + 2 * k, vaddr, srd("WS"), soff, 512 * k))
        A("s_mov_b32 s%d, 0" % sSPIN)
        for k in range(4): iss(k)
        A(again + ":")
        A("s_waitcnt vmcnt(0)")
        for k in range(4): A("v_max_u32 v%d, v%d, v%d" % (vtmp + k, vd + 2 * k, vd + 1 + 2 * k))
        for k in range(4): A("v_cmp_eq_u32 %s, -1, v%d" % (ms[k], vtmp + k))
        A("s_or_b64 s[92:93], vcc, s[12:13]"); A("s_or_b64 s[94:95], s[88:89], s[90:91]"); A("s_or_b64 s[92:93], s[92:93], s[94:95]")
        A("s_cbranch_scc0 " + ok)
        if sleep: A("s_sleep %d" % sleep)
        for k in range(4):
            A("s_mov_b64 exec, %s" % ms[k]); iss(k)
        A("s_mov_b64 exec, -1")
        A("s_add_u32 s%d, s%d, 1" % (sSPIN, sSPIN)); A("s_cmp_lt_u32 s%d, %d" % (sSPIN, spin)); A("s_cbranch_scc1 " + again)
        A("s_waitcnt vmcnt(0)")
        A(ok + ":")
    def word_poll(load, vd, lanes, cmp, sleep):
        ok = A.label("fok"); again = A.label("fagain")
        A("s_mov_b32 s%d, 0" % sSPIN); A("s_mov_b64 exec, %s" % lanes)
        A(again + ":")
        A(load)
        A("s_waitcnt vmcnt(0)")
        A(cmp % vd)
        A("s_cmp_eq_u64 vcc, 0"); A("s_cbranch_scc1 " + ok)
        if sleep: A("s_sleep %d" % sleep)
        A("s_add_u32 s%d, s%d, 1" % (sSPIN, sSPIN)); A("s_cmp_lt_u32 s%d, %d" % (sSPIN, spin)); A("s_cbranch_scc1 " + again)
        A(ok + ":")
        A("s_mov_b64 exec, -1")

    A("s_cmp_ge_u32 s2, 256"); A("s_cbranch_scc1 L_end")
    if stamps:
        for k in range(1, NST): A("s_mov_b64 s[%d:%d], 0" % (16 + 2 * k, 17 + 2 * k))
    stamp(0)
    if pspan: A("s_memrealtime s[16:17]")
    for n in ("K", "X", "WQ", "WS", "V", "WO", "W1", "B1", "W2", "DBG", "OUT"):
        A("s_load_dwordx2 s[%d:%d], s[0:1], %d" % (SRD[n], SRD[n] + 1, KARG[n]))
    A("s_load_dwordx2 s[%d:%d], s[0:1], 72" % (sB2P, sB2P + 1))
    A("v_lshrrev_b32 v1, 6, v0"); A("v_and_b32 v0, 63, v0"); A("v_readfirstlane_b32 s%d, v1" % sWAVE)
    for n in SRD:
        A("s_mov_b32 s%d, 0x%x" % (SRD[n] + 2, SIZE[n])); A("s_mov_b32 s%d, 0x20000" % (SRD[n] + 3))
    sRQ = sMB
    A("s_and_b32 s%d, s2, 7" % sRQ); A("s_lshl_b32 s%d, s%d, 2" % (sRQ, sRQ)); A("s_and_b32 s%d, s2, 0xe0" % sT2); A("s_add_u32 s%d, s%d, s%d" % (sRQ, sRQ, sT2))
    A("s_bfe_u32 s%d, s2, 0x20003" % sT0); A("s_add_u32 s%d, s%d, s%d" % (sRQ, sRQ, sT0)); A("s_add_u32 s%d, s%d, s%d" % (sT2, sT2, sT0))
    if xmap == 8:
        A("s_bfe_u32 s%d, s2, 0x10003" % sT0); A("s_bfe_u32 s%d, s2, 0x10004" % sT1); A("s_lshl_b32 s%d, s%d, 2" % (sT1, sT1)); A("s_add_u32 s%d, s%d, s%d" % (sT0, sT0, sT1))
        A("s_sub_u32 s%d, s2, s%d" % (sR, sT0))
        A("s_and_b32 s%d, s%d, 7" % (sR, sR)); A("s_lshl_b32 s%d, s%d, 2" % (sR, sR)); A("s_add_u32 s%d, s%d, s%d" % (sR, sR, sT2))
    else: A("s_mov_b32 s%d, s%d" % (sR, sRQ))
    if womap == 0: A("s_mov_b32 s%d, s%d" % (sRW, sR))
    elif womap == 1: A("s_mov_b32 s%d, s%d" % (sRW, sRQ))
    else: A("s_and_b32 s%d, s2, 7" % sRW); A("s_lshl_b32 s%d, s%d, 5" % (sRW, sRW)); A("s_lshr_b32 s%d, s2, 3" % sT0); A("s_add_u32 s%d, s%d, s%d" % (sRW, sRW, sT0))
    A("v_lshlrev_b32 v%d, 4, v0" % vL16); A("v_lshrrev_b32 v%d, 4, v0" % vG4); A("v_bfe_u32 v%d, v0, 2, 2" % vC4)
    A("v_and_b32 v%d, 3, v0" % vR4); A("v_and_b32 v%d, 15, v0" % vN16); A("v_mov_b32 v%d, 0x%x" % (vHI, HI)); A("v_mov_b32 v%d, 1" % vONE)
    A("s_mov_b32 s%d, 0xffff0000" % sMASK)
    A("s_mov_b32 s%d, 0x%x" % (sSCALE, f2u(128 ** -0.5))); A("s_mov_b32 s%d, 0x%x" % (sL2E, f2u(1.4426950408889634)))
    c0 = -2.0 * 0.7978845608028654 * 1.4426950408889634
    A("s_mov_b32 s%d, 0x%x" % (sC0, f2u(c0))); A("s_mov_b32 s%d, 0x%x" % (sC1, f2u(c0 * 0.044715)))
    A("s_lshr_b32 s%d, s%d, 5" % (sT0, sR)); A("s_lshl_b32 s%d, s%d, 15" % (sT0, sT0))
    A("s_and_b32 s%d, s%d, 31" % (sT1, sR)); A("s_lshl_b32 s%d, s%d, 8" % (sT1, sT1)); A("s_add_u32 s%d, s%d, s%d" % (sT0, sT0, sT1))
    A("s_add_u32 s%d, s%d, 0x%x" % (sOPOFF, sT0, WS_OP))
    A("s_and_b32 s%d, s%d, 7" % (sT0, sRW)); A("s_lshl_b32 s%d, s%d, %d" % (sT0, sT0, 13))
    A("s_lshr_b32 s%d, s%d, 3" % (sT1, sRW)); A("s_lshl_b32 s%d, s%d, %d" % (sT1, sT1, 6)); A("s_add_u32 s%d, s%d, s%d" % (sT0, sT0, sT1))
    A("s_add_u32 s%d, s%d, 0x%x" % (sSPOFF, sT0, WS_SP))
    A("s_cmp_eq_u32 s%d, 4" % sWAVE); A("s_cbranch_scc1 L_loader")
    A("s_cmp_eq_u32 s%d, 5" % sWAVE); A("s_cbranch_scc1 L_comm")
    A("s_cmp_gt_u32 s%d, 5" % sWAVE); A("s_cbranch_scc1 L_mlp")

    vQ, vS, vTMP, vK = 32, 48, 112, 128
    vKA, vVP = 17, 17
    vM, vLs, vMO, vF, vOWA = 25, 26, 27, 28, 29
    vS2, vP2, vVT = vS + 8 * NW, 224, 248
    assert vS2 + 8 * NU <= 128 and NB >= 4
    sPLAN, sI, sNX = 13, 12, 14
    vX = vS
    A("v_lshlrev_b32 v%d, 5, v0" % vT)
    A("v_lshrrev_b32 v%d, 1, v0" % (vT + 1)); A("v_lshlrev_b32 v%d, 13, v%d" % (vT + 1, vT + 1))
    A("v_and_b32 v%d, 1, v0" % (vT + 2)); A("v_lshl_add_u32 v%d, v%d, 4, v%d" % (vT + 1, vT + 2, vT + 1))
    A("s_lshl_b32 s%d, s%d, 11" % (sT2, sWAVE))
    A("s_lshl_b32 s%d, s%d, 20" % (sT0, sWAVE)); A("s_lshl_b32 s%d, s%d, 5" % (sT1, sRQ)); A("s_add_u32 s%d, s%d, s%d" % (sT0, sT0, sT1))
    A("s_lshl_b32 s%d, s%d, 13" % (sT1, sWAVE)); A("s_add_u32 s%d, s%d, %d" % (sT1, sT1, 12 * 8192))
    A("s_waitcnt lgkmcnt(0)")
    A("buffer_load_dwordx4 %s, v%d, %s, s%d offen" % (vr(vX, 4), vT, srd("X"), sT2))
    A("buffer_load_dwordx4 %s, v%d, %s, s%d offen offset:16" % (vr(vX + 4, 4), vT, srd("X"), sT2))
    for a in range(4):
        A("s_add_u32 m0, s%d, %d" % (sT1, a * 1024))
        A("buffer_load_dwordx4 v%d, %s, s%d offen %s lds" % (vT + 1, srd("WQ"), sT0, pol))
        if a < 3: A("s_add_u32 s%d, s%d, 0x40000" % (sT0, sT0))
    A("s_barrier")
    A("v_lshrrev_b32 v%d, 5, v0" % (vT + 3)); A("s_lshl_b32 s%d, s%d, 1" % (sT0, sWAVE)); A("v_add_u32 v%d, s%d, v%d" % (vT + 3, sT0, vT + 3))
    A("v_mul_u32_u24 v%d, %d, v%d" % (vT + 3, XN_STRIDE, vT + 3)); A("v_and_b32 v%d, 31, v0" % (vT + 4)); A("v_lshl_add_u32 v%d, v%d, 5, v%d" % (vT + 3, vT + 4, vT + 3))
    A("v_add_u32 v%d, v%d, v%d" % (vT + 3, vHI, vT + 3))
    A("v_and_b32 v%d, 7, v0" % (vT + 4)); A("v_mul_u32_u24 v%d, %d, v%d" % (vT + 4, XN_STRIDE, vT + 4)); A("v_lshl_add_u32 v%d, v%d, 4, v%d" % (vT + 4, vG4, vT + 4))
    A("s_lshl_b32 s%d, s%d, 8" % (sT0, sWAVE)); A("s_add_u32 s%d, s%d, %d" % (sT0, sT0, HI)); A("v_add_u32 v%d, s%d, v%d" % (vT + 4, sT0, vT + 4))
    A("v_lshlrev_b32 v%d, 8, v%d" % (vT + 5, vG4)); A("v_lshl_add_u32 v%d, v%d, 3, v%d" % (vT + 5, vN16, vT + 5)); A("v_add_u32 v%d, s%d, v%d" % (vT + 5, sT1, vT + 5))
    A("s_lshl_b32 s%d, s%d, 10" % (sT0, sWAVE)); A("s_add_u32 s%d, s%d, %d" % (sT0, sT0, HI)); A("v_add_u32 v%d, s%d, v%d" % (vT + 6, sT0, vL16))
    def k_addrs(dst, sbase, t, twin):
        A("v_lshlrev_b32 v%d, 8, v%d" % (t, vN16)); A("v_add_u32 v%d, s%d, v%d" % (t, sbase, t))
        for m in range(4):
            A("v_add_u32 v%d, %d, v%d" % (t + 1, 4 * m, vG4)); A("v_xor_b32 v%d, v%d, v%d" % (t + 1, t + 1, vN16))
            A("v_lshl_add_u32 v%d, v%d, 4, v%d" % (dst + m, t + 1, t))
            if twin: A("v_add_u32 v%d, 0x10000, v%d" % (dst + 4 + m, dst + m))
    A("s_lshl_b32 s%d, s%d, 13" % (sT0, sWAVE)); k_addrs(vKA, sT0, vT, True)
    A("s_lshl_b32 s%d, s%d, 2" % (sT0, sWAVE)); A("s_add_u32 s%d, s%d, %d" % (sT0, sT0, HI)); A("v_mov_b32 v%d, s%d" % (30, sT0))
    A("s_mov_b32 s%d, 0" % sFULL); A("s_mov_b32 s%d, 0" % sPLAN)
    A("s_waitcnt vmcnt(4)")
    stamp(1)
    layernorm(vX, 8, vX + 8, vX + 24, vX + 40, 2)
    A("ds_write_b128 v%d, %s offset:%d" % (vT + 3, vr(vX, 4), L_XN)); A("ds_write_b128 v%d, %s offset:%d" % (vT + 3, vr(vX + 4, 4), L_XN + 16))
    lds_add(vHI, F_XN)
    A("s_waitcnt vmcnt(0)")
    for m in range(4):
        A("ds_read_b64_tr_b16 %s, v%d offset:%d" % (vr(vK + 4 * m, 2), vT + 5, m * 1024))
        A("ds_read_b64_tr_b16 %s, v%d offset:%d" % (vr(vK + 4 * m + 2, 2), vT + 5, m * 1024 + 128))
    lds_wait(F_XN, 4)
    for m in range(4): A("ds_read_b128 %s, v%d offset:%d" % (vr(vK + 16 + 4 * m, 4), vT + 4, L_XN + m * 64))
    for m in range(4):
        A("s_waitcnt lgkmcnt(%d)" % (3 - m))
        A("v_mfma_f32_16x16x32_bf16 %s, %s, %s, %s" % (vr(vTMP, 4), vr(vK + 4 * m, 4), vr(vK + 16 + 4 * m, 4), "0" if m == 0 else vr(vTMP, 4)))
    A("ds_write_b128 v%d, %s offset:%d" % (vT + 6, vr(vTMP, 4), L_QP))
    lds_add(vHI, F_QP)
    one_lane("ds_add_u32 v30, v%d offset:%d" % (vONE, F_SL + 48))
    stamp(2)
    def wait_block(n4):
        A("s_add_u32 s%d, s%d, %d" % (sT0, sWAVE, 4 * n4 + 1))
        lds_wait(F_FULL, "s%d" % sT0, keep=sFULL)
    def read_k(j):
        base = vK + 32 * (j % 4)
        for t in range(2):
            for m in range(4):
                A("ds_read_b128 %s, v%d offset:%d" % (vr(base + 16 * t + 4 * m, 4), vKA + m + (4 if (j & 2) else 0), (j & 1) * 32768 + t * 4096))
    def qk_block(base, sc):
        for m in range(4):
            for t in range(2):
                acc = vr(sc + 4 * t, 4)
                A("v_mfma_f32_16x16x32_bf16 %s, %s, %s, %s" % (acc, vr(base + 16 * t + 4 * m, 4), vr(vQ + 4 * m, 4), "0" if m == 0 else acc))
    def round_block(sc, mx, first):
        for p in range(4):
            a, b, t = sc + 2 * p, sc + 2 * p + 1, vT + (p & 1)
            if mimic:
                A("v_cvt_pk_bf16_f32 v%d, v%d, v%d" % (t, a, b)); unpack(a, b, t)
            A("v_mul_f32 v%d, s%d, v%d" % (a, sSCALE, a)); A("v_mul_f32 v%d, s%d, v%d" % (b, sSCALE, b))
            if mimic:
                A("v_cvt_pk_bf16_f32 v%d, v%d, v%d" % (t, a, b)); unpack(a, b, t)
            if first and p == 0: A("v_max_f32 v%d, v%d, v%d" % (mx, a, b))
            else: A("v_max3_f32 v%d, v%d, v%d, v%d" % (mx, a, b, mx))
    for j in range(4):
        wait_block(j); read_k(j); lds_add(30, F_SL + 16 * j)
    stamp(3)
    lds_wait(F_QR, 1)
    stamp(4)
    A("v_lshlrev_b32 v%d, 8, v%d" % (vT, vC4)); A("v_lshl_add_u32 v%d, v%d, 4, v%d" % (vT, vG4, vT)); A("v_add_u32 v%d, v%d, v%d" % (vT, vHI, vT))
    for m in range(4): A("ds_read_b128 %s, v%d offset:%d" % (vr(vQ + 4 * m, 4), vT, L_QB + m * 64))
    A("s_waitcnt lgkmcnt(0)")
    for j in range(NW):
        qk_block(vK + 32 * (j % 4), vS + 8 * j)
        if 4 + j < NW:
            wait_block(4 + j); A("s_nop 3"); read_k(4 + j)
        if j >= 1: round_block(vS + 8 * (j - 1), vM, j == 1)
        if 4 + j < NW: lds_add(30, F_SL + 16 * j)
    A("v_lshl_add_u32 v%d, v%d, 2, v%d" % (vT + 2, vG4, vC4))
    A("v_and_b32 v%d, 7, v%d" % (vT + 3, vT + 2)); A("v_lshlrev_b32 v%d, 1, v%d" % (vT + 3, vT + 3))
    A("v_lshrrev_b32 v%d, 1, v%d" % (vT + 4, vR4)); A("v_xor_b32 v%d, v%d, v%d" % (vT + 3, vT + 3, vT + 4))
    A("v_lshlrev_b32 v%d, 8, v%d" % (vT + 2, vT + 2)); A("v_lshl_add_u32 v%d, v%d, 4, v%d" % (vT + 2, vT + 3, vT + 2))
    A("v_and_b32 v%d, 1, v0" % (vT + 4)); A("v_lshl_add_u32 v%d, v%d, 3, v%d" % (vVP, vT + 4, vT + 2))
    for d in range(1, 8): A("v_xor_b32 v%d, %d, v%d" % (vVP + d, 32 * d, vVP))
    round_block(vS + 8 * (NW - 1), vM, False)
    swap_red(vM, vT, "v_max_f32", 32); swap_red(vM, vT, "v_max_f32", 16)
    A("v_mul_f32 v%d, s%d, v%d" % (vM, sL2E, vM))
    A("v_lshlrev_b32 v31, 4, v%d" % vG4); A("ds_bpermute_b32 v%d, v31, v%d" % (vMO, vM))
    vP = vK
    def exps(sc, n, mx, ls, first, pdst, npk):
        for j in range(n + 1):
            a, b = sc + 2 * j, sc + 2 * j + 1
            if j < n:
                A("v_fma_f32 v%d, v%d, s%d, -v%d" % (a, a, sL2E, mx)); A("v_fma_f32 v%d, v%d, s%d, -v%d" % (b, b, sL2E, mx))
                A("v_exp_f32 v%d, v%d" % (a, a)); A("v_exp_f32 v%d, v%d" % (b, b))
            if j >= 1:
                pa, pb = a - 2, b - 2
                if j == 1 and first: A("v_add_f32 v%d, v%d, v%d" % (ls, pa, pb))
                else: A("v_add_f32 v%d, v%d, v%d" % (ls, ls, pa)); A("v_add_f32 v%d, v%d, v%d" % (ls, ls, pb))
                if j - 1 < npk: A("v_cvt_pk_bf16_f32 v%d, v%d, v%d" % (pdst + j - 1, pa, pb))
    exps(vS, 4 * NW, vM, vLs, True, vP, 4 * NB)
    stamp(5)
    A("s_lshl_b32 s%d, s%d, 11" % (sT0, sWAVE)); A("s_add_u32 s%d, s%d, %d" % (sT0, sT0, HI + L_OW))
    A("v_lshlrev_b32 v%d, 9, v%d" % (vOWA, vG4)); A("v_lshl_add_u32 v%d, v%d, 2, v%d" % (vOWA, vN16, vOWA)); A("v_add_u32 v%d, s%d, v%d" % (vOWA, sT0, vOWA))
    for i in range(8 * NU): A("v_mov_b32 v%d, 0xff800000" % (vS2 + i))
    vVB = vK + 32
    par = [0]
    def slot_of():
        A("s_and_b32 s%d, s%d, 15" % (sT1, sI)); A("s_lshl_b32 s%d, s%d, 13" % (sT1, sT1))
    def landed():
        A("s_add_u32 s%d, s%d, 1" % (sT0, sI)); lds_wait(F_FULL, "s%d" % sT0, keep=sFULL)
    def release_addr():
        A("s_lshr_b32 s%d, s%d, 11" % (sT1, sT1)); A("s_add_u32 s%d, s%d, %d" % (sT1, sT1, HI)); A("v_mov_b32 v30, s%d" % sT1)
    def v_block(preg, first, release, mid=None):
        base = vVB + 32 * par[0]; par[0] ^= 1
        slot_of()
        for d in range(8): A("v_add_u32 v%d, s%d, v%d" % (vVT + d, sT1, vVP + d))
        if release: release_addr()
        if mid: mid()
        landed()
        for d in range(8):
            for t in range(2):
                A("ds_read_b64_tr_b16 %s, v%d offset:%d" % (vr(base + 4 * d + 2 * t, 2), vVT + d, t * 4096))
        for d in range(8):
            A("s_waitcnt lgkmcnt(%d)" % (14 - 2 * d))
            if d == 7 and release: one_lane("ds_add_u32 v30, v%d offset:%d" % (vONE, F_SL))
            acc = vr(vS + 4 * d, 4)
            A("v_mfma_f32_16x16x32_bf16 %s, %s, %s, %s" % (acc, vr(preg, 4), vr(base + 4 * d, 4), "0" if first else acc))
    def factor():
        lds_wait(F_GR, 1)
        A("v_lshl_add_u32 v%d, v%d, 3, v%d" % (vT, vG4, vHI)); A("ds_read_b64 %s, v%d offset:%d" % (vr(vT + 2, 2), vT, L_GS)); A("s_waitcnt lgkmcnt(0)")
        A("v_sub_f32 v%d, v%d, v%d" % (vF, vMO, vT + 2)); A("v_exp_f32 v%d, v%d" % (vF, vF)); A("v_mul_f32 v%d, v%d, v%d" % (vF, vF, vT + 3))
        stamp(6)
    for j in range(NB):
        A("s_add_u32 s%d, s%d, %d" % (sI, sWAVE, NF + 4 * j))
        v_block(vP + 4 * j, j == 0, True)
    vM2, vAL = 240, 241
    A("v_mov_b32 v%d, 0xff800000" % vM2); A("s_mov_b32 s%d, 0" % sNX)
    for u in range(NU):
        A("s_add_u32 s%d, s%d, %d" % (sT0, sWAVE, 4 * u + 1))
        lds_wait(F_PLAN, "s%d" % sT0, keep=sPLAN)
        A("s_and_b32 s%d, s%d, 0xff" % (sT1, sPLAN)); A("s_cmp_lt_u32 s%d, s%d" % (sT1, sT0)); A("s_cbranch_scc1 L_noshare")
        A("s_add_u32 s%d, s%d, %d" % (sI, sWAVE, NF + n1 + 4 * u))
        base = vVB + 32 * par[0]; par[0] ^= 1
        slot_of(); k_addrs(vVT, sT1, vT, False); release_addr()
        landed()
        for t in range(2):
            for m in range(4): A("ds_read_b128 %s, v%d offset:%d" % (vr(base + 16 * t + 4 * m, 4), vVT + m, t * 4096))
        lds_add(30, F_SL)
        qk_block(base, vS2 + 8 * u)
        A("s_add_u32 s%d, s%d, 1" % (sNX, sNX))
        round_block(vS2 + 8 * u, vM2, False)
    A("L_noshare:")
    A("s_nop 7")
    swap_red(vM2, vT, "v_max_f32", 32); swap_red(vM2, vT, "v_max_f32", 16)
    A("v_mul_f32 v%d, s%d, v%d" % (vM2, sL2E, vM2)); A("v_max_f32 v%d, v%d, v%d" % (vM2, vM2, vM))
    A("ds_bpermute_b32 v%d, v31, v%d" % (vT + 4, vM2))
    A("v_sub_f32 v%d, v%d, v%d" % (vAL, vM, vM2)); A("v_exp_f32 v%d, v%d" % (vAL, vAL))
    A("v_mul_f32 v%d, v%d, v%d" % (vLs, vLs, vAL))
    exps(vS2, 4 * NU, vM2, vLs, False, vP2, 4 * NU)
    swap_red(vLs, vT, "v_add_f32", 32); swap_red(vLs, vT, "v_add_f32", 16)
    A("s_lshl_b32 s%d, s%d, 5" % (sT0, sWAVE)); A("s_add_u32 s%d, s%d, %d" % (sT0, sT0, HI)); A("v_lshlrev_b32 v%d, 3, v%d" % (vT, vC4)); A("v_add_u32 v%d, s%d, v%d" % (vT, sT0, vT))
    A("v_mov_b32 v%d, v%d" % (vT + 2, vM2)); A("v_mov_b32 v%d, v%d" % (vT + 3, vLs))
    A("s_mov_b64 exec, 0x1111"); A("ds_write_b64 v%d, %s offset:%d" % (vT, vr(vT + 2, 2), L_ST)); A("s_mov_b64 exec, -1")
    lds_add(vHI, F_ST)
    stamp(7)
    A("v_sub_f32 v%d, v%d, v%d" % (vMO, vMO, vT + 4)); A("v_exp_f32 v%d, v%d" % (vT + 5, vMO)); A("v_mov_b32 v%d, v%d" % (vMO, vT + 4))
    for i in range(8 * NB, 8 * NW): A("v_mul_f32 v%d, v%d, v%d" % (vS + i, vS + i, vAL))
    for i in range(4 * NB, 4 * NW): A("v_cvt_pk_bf16_f32 v%d, v%d, v%d" % (vP + i, vS + 2 * i, vS + 2 * i + 1))
    for d in range(8): A("v_mul_f32 v%d, v%d, v%d" % (vS + 4 * d, vS + 4 * d, vT + 5))
    lds_wait(F_PLAN, "0x100", keep=sPLAN)
    A("s_and_b32 s%d, s%d, 31" % (sPLAN, sPLAN)); A("s_add_u32 s%d, s%d, s%d" % (sPLAN, sPLAN, sWAVE))
    for j in range(NB, NW):
        A("s_add_u32 s%d, s%d, %d" % (sI, sPLAN, NF + 4 * j))
        v_block(vP + 4 * j, False, 4 * j + 16 < NF + MAXT, factor if j == NW - 1 else None)
    for u in range(NU):
        A("s_cmp_le_u32 s%d, %d" % (sNX, u)); A("s_cbranch_scc1 L_vdone")
        A("s_add_u32 s%d, s%d, %d" % (sI, sPLAN, 2 * NF + 4 * u))
        v_block(vP2 + 4 * u, False, False)
    A("L_vdone:")
    for d in range(8): A("v_mul_f32 v%d, v%d, v%d" % (vTMP + d, vF, vS + 4 * d))
    for d in range(0, 8, 2): A("ds_write2_b32 v%d, v%d, v%d offset0:%d offset1:%d" % (vOWA, vTMP + d, vTMP + d + 1, 16 * d, 16 * d + 16))
    vWOA, vOIR, vWO = 17, 18, vK
    A("v_lshlrev_b32 v%d, 7, v%d" % (vWOA, vC4)); A("v_lshl_add_u32 v%d, v%d, 10, v%d" % (vWOA, vG4, vWOA)); A("v_lshl_add_u32 v%d, v%d, 3, v%d" % (vWOA, vR4, vWOA))
    A("s_lshl_b32 s%d, s%d, 5" % (sT0, sWAVE)); A("s_add_u32 s%d, s%d, %d" % (sT0, sT0, HI + L_WO)); A("v_add_u32 v%d, s%d, v%d" % (vWOA, sT0, vWOA))
    A("s_waitcnt lgkmcnt(0)")
    A("s_barrier")
    stamp(8)
    def wo_reads():
        lds_wait(F_WO, 1, sl=0)
        for m in range(4):
            A("ds_read_b64_tr_b16 %s, v%d offset:%d" % (vr(vWO + 4 * m, 2), vWOA, m * 4096))
            A("ds_read_b64_tr_b16 %s, v%d offset:%d" % (vr(vWO + 4 * m + 2, 2), vWOA, m * 4096 + 512))
    def oir_addr():
        A("v_lshrrev_b32 v%d, 1, v%d" % (vT, vN16)); A("v_lshlrev_b32 v%d, 10, v%d" % (vT, vT)); A("v_and_b32 v%d, 1, v0" % (vT + 1)); A("v_lshl_add_u32 v%d, v%d, 8, v%d" % (vT, vT + 1, vT))
        for m in range(4):
            A("v_add_u32 v%d, %d, v%d" % (vT + 1, 4 * m, vG4)); A("v_xor_b32 v%d, v%d, v%d" % (vT + 1, vT + 1, vN16))
            A("v_lshl_add_u32 v%d, v%d, 4, v%d" % (vOIR + m, vT + 1, vT))
        A("v_lshrrev_b32 v%d, 1, v%d" % (22, vN16)); A("v_and_b32 v23, 1, v0"); A("v_lshl_add_u32 v23, v22, 2, v23"); A("v_lshl_add_u32 v23, v23, 2, v%d" % vHI)
        A("v_lshlrev_b32 v22, 16, v22"); A("v_lshl_add_u32 v22, v%d, 4, v22" % vG4)
    A("s_cmp_gt_u32 s%d, 1" % sWAVE); A("s_cbranch_scc1 L_gather23")
    A("s_lshl_b32 s%d, s%d, 10" % (sT0, sWAVE)); A("s_add_u32 s%d, s%d, %d" % (sT0, sT0, HI + L_OW)); A("v_add_u32 v%d, s%d, v%d" % (vT, sT0, vL16))
    for w in range(4): A("ds_read_b128 %s, v%d offset:%d" % (vr(vS + 4 * w, 4), vT, w * 2048))
    A("v_lshrrev_b32 v%d, 5, v0" % (vT + 1)); A("v_lshlrev_b32 v%d, 13, v%d" % (vT + 1, vT + 1)); A("v_and_b32 v%d, 31, v0" % (vT + 2)); A("v_lshl_add_u32 v%d, v%d, 3, v%d" % (vT + 1, vT + 2, vT + 1))
    A("s_lshl_b32 s%d, s%d, 14" % (sT0, sWAVE)); A("s_add_u32 s%d, s%d, s%d" % (sT0, sT0, sOPOFF))
    A("s_waitcnt lgkmcnt(2)")
    for i in range(4): A("v_add_f32 v%d, v%d, v%d" % (vS + i, vS + i, vS + 4 + i))
    A("s_waitcnt lgkmcnt(0)")
    for i in range(4): A("v_add_f32 v%d, v%d, v%d" % (vS + 8 + i, vS + 8 + i, vS + 12 + i))
    for i in range(4): A("v_add_f32 v%d, v%d, v%d" % (vS + i, vS + i, vS + 8 + i))
    A("v_cvt_pk_bf16_f32 v%d, v%d, v%d" % (vTMP, vS, vS + 1)); A("v_cvt_pk_bf16_f32 v%d, v%d, v%d" % (vTMP + 1, vS + 2, vS + 3))
    A("buffer_store_dwordx2 %s, v%d, %s, s%d offen sc1" % (vr(vTMP, 2), vT + 1, srd("WS"), sT0))
    stamp(11)
    wo_reads(); oir_addr()
    A("s_branch L_barE_c")
    def gather(idx_sgpr, extra):
        vGa = 40
        A("s_lshr_b32 s%d, s%d, 3" % (sT1, sRW)); A("s_lshl_b32 s%d, s%d, 13" % (sT1, sT1)); A("s_lshl_b32 s%d, s%d, 11" % (sT0, idx_sgpr))
        A("s_add_u32 s%d, s%d, s%d" % (sT1, sT1, sT0)); A("s_add_u32 s%d, s%d, 0x%x" % (sT1, sT1, WS_OP))
        lds_ = [(lambda: A("buffer_load_dwordx4 %s, v%d, %s, s%d offen sc1" % (vr(vGa, 4), vL16, srd("WS"), sT1)), list(range(vGa, vGa + 4))),
                (lambda: A("buffer_load_dwordx4 %s, v%d, %s, s%d offen offset:1024 sc1" % (vr(vGa + 4, 4), vL16, srd("WS"), sT1)), list(range(vGa + 4, vGa + 8)))]
        for i_, _ in lds_: i_()
        A("v_and_b32 v%d, 1, v%d" % (vT + 2, vG4)); A("s_lshl_b32 s%d, s%d, 2" % (sT2, idx_sgpr)); A("v_add_u32 v%d, s%d, v%d" % (vT + 2, sT2, vT + 2))
        A("v_xor_b32 v%d, v%d, v%d" % (vT + 3, vT + 2, vN16)); A("v_xor_b32 v%d, 2, v%d" % (vT + 4, vT + 3))
        A("v_lshlrev_b32 v%d, 8, v%d" % (vT + 2, vG4)); A("v_add_u32 v%d, s%d, v%d" % (vT + 2, sT0, vT + 2))
        A("v_lshl_add_u32 v%d, v%d, 4, v%d" % (vT + 5, vT + 3, vT + 2)); A("v_lshl_add_u32 v%d, v%d, 4, v%d" % (vT + 6, vT + 4, vT + 2))
        extra()
        gpoll(lds_, first=False, sleep=tsleep)
        stamp(11)
        A("ds_write_b128 v%d, %s" % (vT + 5, vr(vGa, 4))); A("ds_write_b128 v%d, %s offset:1024" % (vT + 6, vr(vGa + 4, 4)))
    A("L_gather23:")
    A("s_sub_u32 s%d, s%d, 2" % (sMU, sWAVE))
    gather(sMU, lambda: (wo_reads(), oir_addr()))
    A("L_barE_c:")
    A("s_waitcnt lgkmcnt(0)")
    A("s_barrier")
    stamp(9)
    for u in range(2):
        for m in range(4): A("ds_read_b128 %s, v%d offset:%d" % (vr(vS + 16 * u + 4 * m, 4), vOIR + m, u * 512))
    A("v_add_u32 v23, %d, v23" % L_ST); A("ds_read2_b32 v[24:25], v23 offset0:0 offset1:2")
    A("s_lshl_b32 s%d, s%d, %d" % (sT0, sWAVE, 11)); A("s_add_u32 s%d, s%d, s%d" % (sT0, sT0, sSPOFF))
    for u in range(2):
        for m in range(4):
            A("s_waitcnt lgkmcnt(%d)" % (8 - 4 * u - m))
            acc = vr(vTMP + 4 * u, 4)
            A("v_mfma_f32_16x16x32_bf16 %s, %s, %s, %s" % (acc, vr(vWO + 4 * m, 4), vr(vS + 16 * u + 4 * m, 4), "0" if m == 0 else acc))
    A("s_waitcnt lgkmcnt(0)")
    for i in range(4): A("v_mul_f32 v%d, v24, v%d" % (vTMP + i, vTMP + i))
    for i in range(4): A("v_fmac_f32 v%d, v25, v%d" % (vTMP + i, vTMP + 4 + i))
    for i in range(4): dpp("v_add_f32", vTMP + i, "quad_perm:[1,0,3,2]")
    A("s_mov_b32 exec_lo, 0x55555555"); A("s_mov_b32 exec_hi, 0x55555555")
    stamp(10)
    A("buffer_store_dwordx4 %s, v22, %s, s%d offen sc1" % (vr(vTMP, 4), srd("WS"), sT0))
    A("s_mov_b64 exec, -1")
    A("s_branch L_done")

    A("L_loader:")
    if ldprio: A("s_setprio %d" % ldprio)
    vO, vFR, vFA, vPL, vPA = 17, 24, 25, 26, 27
    A("v_lshlrev_b32 v%d, 8, v%d" % (vT, vG4))
    for i in range(4):
        A("v_add_u32 v%d, %d, v%d" % (vT + 1, 4 * i, vG4)); A("v_xor_b32 v%d, v%d, v%d" % (vT + 1, vT + 1, vN16)); A("v_lshl_add_u32 v%d, v%d, 4, v%d" % (vO + i, vT + 1, vT))
    for i in range(2):
        A("v_add_u32 v%d, %d, v%d" % (vT + 1, 4 * i, vG4)); A("v_lshlrev_b32 v%d, 1, v%d" % (vT + 1, vT + 1))
        A("v_xor_b32 v%d, v%d, v%d" % (vT + 1, vT + 1, vN16)); A("v_lshl_add_u32 v%d, v%d, 4, v%d" % (vO + 4 + i, vT + 1, vT))
    A("v_lshl_add_u32 v%d, v%d, 2, v%d" % (vFA, vN16, vHI)); A("v_and_b32 v%d, 31, v0" % vPA); A("v_lshlrev_b32 v28, 3, v%d" % vPA); A("v_lshl_add_u32 v%d, v%d, 2, v%d" % (vPA, vPA, vHI))
    sK, sSLOT, sPOOL, sVO, sEND, sN = 12, 13, 88, 89, 90, 91
    A("s_bfe_u32 s%d, s%d, 0x30002" % (sBASE, sR)); A("s_lshl_b32 s%d, s%d, 23" % (sBASE, sBASE)); A("s_lshr_b32 s%d, s%d, 5" % (sT0, sR)); A("s_lshl_b32 s%d, s%d, 20" % (sT0, sT0))
    A("s_add_u32 s%d, s%d, s%d" % (sBASE, sBASE, sT0)); A("s_add_u32 s%d, s%d, 0x%x" % (sPOOL, sBASE, NF * 8192))
    A("s_and_b32 s%d, s%d, 3" % (sT0, sR)); A("s_lshl_b32 s%d, s%d, 18" % (sT0, sT0)); A("s_add_u32 s%d, s%d, s%d" % (sBASE, sBASE, sT0))
    A("s_mov_b32 s%d, s%d" % (sOFF, sBASE)); A("s_mov_b32 s%d, 0" % sSLOT); A("s_mov_b32 s%d, 0" % sN)
    if ldst: A("s_mov_b32 s94, 0")
    A("s_waitcnt lgkmcnt(0)")
    def publish_full(sgpr):
        A("v_mov_b32 v%d, s%d" % (vT, sgpr)); one_lane("ds_max_u32 v%d, v%d offset:%d" % (vHI, vT, F_FULL))
    def dma_block(isk):
        for half in range(2):
            A("s_mov_b32 m0, s%d" % sSLOT)
            for i in range(4):
                A("buffer_load_dwordx4 v%d, %s, s%d offen offset:%d %s lds" % (vO + i if isk else vO + 4 + (i & 1), srd("K" if isk else "V"), sOFF, i * 1024, pol))
            A("s_add_u32 s%d, s%d, 4096" % (sOFF, sOFF)); A("s_add_u32 s%d, s%d, 4096" % (sSLOT, sSLOT))
        A("s_and_b32 s%d, s%d, 0x1ffff" % (sSLOT, sSLOT)); A("s_add_u32 s%d, s%d, 1" % (sN, sN))
    def read_rel(): A("ds_read_b32 v%d, v%d offset:%d" % (vFR, vFA, F_SL))
    def block(isk):
        go = A.label("go"); sl = A.label("slow")
        def chk():
            A("v_readlane_b32 s%d, v%d, s%d" % (sT1, vFR, sT0)); A("s_cmp_gt_u32 s%d, s%d" % (sT1, sT2)); A("s_cbranch_scc1 " + go)
        A("s_lshr_b32 s%d, s%d, 13" % (sT0, sSLOT)); A("s_lshr_b32 s%d, s%d, 4" % (sT2, sN))
        A("s_waitcnt lgkmcnt(1)")
        chk()
        read_rel(); A("s_waitcnt lgkmcnt(0)"); chk()
        A("s_waitcnt vmcnt(0)"); publish_full(sN)
        if ldst: A("s_add_u32 s94, s94, 100")
        A("s_mov_b32 s%d, 0" % sSPIN)
        A(sl + ":")
        read_rel(); A("s_waitcnt lgkmcnt(0)"); chk()
        A("s_add_u32 s%d, s%d, 1" % (sSPIN, sSPIN)); A("s_cmp_lt_u32 s%d, %d" % (sSPIN, lspin)); A("s_cbranch_scc1 " + sl)
        A(go + ":")
        dma_block(isk)
        read_rel()
        A("s_sub_i32 s%d, s%d, %d" % (sT0, sN, F))
        A("s_waitcnt vmcnt(%d)" % (8 * F)); publish_full(sT0)
    def lstamps(lst):
        if ldst:
            for k, g in lst:
                sk = A.label("st"); A("s_cmp_lg_u32 s%d, %d" % (sN, g)); A("s_cbranch_scc1 " + sk); stamp(k); A(sk + ":")
    A("s_barrier")
    for _ in range(4): dma_block(True)
    read_rel(); A("s_waitcnt lgkmcnt(0)")
    A("L_ld_a:")
    lstamps([(1, 8), (4, 20)])
    block(True)
    A("s_cmp_lt_u32 s%d, %d" % (sN, NF)); A("s_cbranch_scc1 L_ld_a")
    A("s_mov_b32 s%d, s%d" % (sOFF, sBASE))
    A("L_ld_b:")
    lstamps([(6, 28), (7, 32), (8, 40)])
    block(False)
    A("s_cmp_lt_u32 s%d, %d" % (sN, NF + n1)); A("s_cbranch_scc1 L_ld_b")
    A("s_mov_b32 s%d, s%d" % (sVO, sOFF)); A("s_mov_b32 s%d, 0" % sK)
    if ldst: stamp(9)
    def pool_addr():
        A("s_add_u32 s%d, s%d, 1" % (sK, sK)); A("v_readlane_b32 s%d, v%d, s%d" % (sT0, vPL, sK))
        A("s_min_u32 s%d, s%d, %d" % (sT0, sT0, POOL - 1))
        if pg == 1:
            A("s_and_b32 s%d, s%d, 3" % (sT1, sT0)); A("s_lshr_b32 s%d, s%d, 2" % (sT0, sT0))
        elif pg == 2:
            A("s_bfe_u32 s%d, s%d, 0x20001" % (sT1, sT0)); A("s_and_b32 s%d, s%d, 1" % (sT2, sT0)); A("s_lshr_b32 s%d, s%d, 3" % (sT0, sT0)); A("s_lshl_b32 s%d, s%d, 1" % (sT0, sT0)); A("s_add_u32 s%d, s%d, s%d" % (sT0, sT0, sT2))
        else:
            A("s_lshr_b32 s%d, s%d, 3" % (sT1, sT0)); A("s_and_b32 s%d, s%d, 7" % (sT0, sT0))
            if pg == 4: A("s_add_u32 s%d, s%d, 1" % (sT1, sT1)); A("s_and_b32 s%d, s%d, 3" % (sT1, sT1))
            if pg == 5: A("s_lshr_b32 s%d, s%d, 2" % (sT2, sR)); A("s_add_u32 s%d, s%d, s%d" % (sT1, sT1, sT2)); A("s_lshr_b32 s%d, s%d, 5" % (sT2, sR)); A("s_add_u32 s%d, s%d, s%d" % (sT1, sT1, sT2)); A("s_and_b32 s%d, s%d, 3" % (sT1, sT1))
        A("s_lshl_b32 s%d, s%d, 18" % (sT1, sT1)); A("s_lshl_b32 s%d, s%d, 13" % (sT0, sT0)); A("s_add_u32 s%d, s%d, s%d" % (sOFF, sPOOL, sT0)); A("s_add_u32 s%d, s%d, s%d" % (sOFF, sOFF, sT1))
    A("L_ld_c:")
    A("s_mov_b32 s%d, 0" % sSPIN)
    if ldst == 3: A("s_memrealtime s[14:15]")
    A("L_ld_plan:")
    A("ds_read_b32 v%d, v%d offset:%d" % (vPL, vPA, F_PLAN)); A("s_waitcnt lgkmcnt(0)"); A("v_readfirstlane_b32 s%d, v%d" % (sT0, vPL))
    A("s_cmp_gt_u32 s%d, s%d" % (sT0, sK)); A("s_cbranch_scc1 L_ld_known")
    for k in range(F - 1, -1, -1):
        nx = A.label("nx"); A("s_cmp_eq_u32 s%d, %d" % (sSPIN, F - 1 - k)); A("s_cbranch_scc0 " + nx)
        A("s_sub_u32 s%d, s%d, %d" % (sT1, sN, k)); A("s_waitcnt vmcnt(%d)" % (8 * k)); publish_full(sT1); A(nx + ":")
    A("s_add_u32 s%d, s%d, 1" % (sSPIN, sSPIN)); A("s_cmp_lt_u32 s%d, %d" % (sSPIN, lspin)); A("s_cbranch_scc1 L_ld_plan")
    A("L_ld_known:")
    if ldst == 1: A("s_add_u32 s94, s94, s%d" % sSPIN)
    if ldst == 3:
        A("s_memrealtime s[92:93]"); A("s_waitcnt lgkmcnt(0)"); A("s_sub_u32 s92, s92, s14"); A("s_add_u32 s94, s94, s92")
    A("s_and_b32 s%d, s%d, 0xff" % (sT0, sT0)); A("s_cmp_le_u32 s%d, s%d" % (sT0, sK)); A("s_cbranch_scc1 L_ld_cend")
    pool_addr()
    block(True)
    A("s_cmp_lt_u32 s%d, %d" % (sK, MAXT)); A("s_cbranch_scc1 L_ld_c")
    A("L_ld_cend:")
    if ldst: stamp(2)
    A("s_mov_b32 s%d, s%d" % (sOFF, sVO)); A("s_add_u32 s%d, s%d, %d" % (sEND, sK, 2 * NF))
    A("L_ld_d:")
    block(False)
    A("s_cmp_lt_u32 s%d, s%d" % (sN, sEND)); A("s_cbranch_scc1 L_ld_d")
    A("s_add_u32 s%d, s%d, s%d" % (sEND, sEND, sK))
    if ldst: stamp(3)
    if ldst:
        A("s_mul_i32 s%d, s%d, 100" % (sT0, sK)); A("s_add_u32 s40, s16, s%d" % sT0); A("s_addc_u32 s41, s17, 0")
    A("s_mov_b32 s%d, 0" % sK)
    A("L_ld_e:")
    A("s_cmp_ge_u32 s%d, s%d" % (sN, sEND)); A("s_cbranch_scc1 L_ld_end")
    pool_addr()
    block(False)
    A("s_branch L_ld_e")
    A("L_ld_end:")
    for k in range(F - 1, -1, -1):
        A("s_sub_u32 s%d, s%d, %d" % (sT0, sN, k)); A("s_waitcnt vmcnt(%d)" % (8 * k)); publish_full(sT0)
    stamp(11)
    if ldst: A("s_add_u32 s36, s16, s94"); A("s_addc_u32 s37, s17, 0")
    if pspan:
        A("s_memrealtime s[18:19]"); A("s_waitcnt lgkmcnt(0)")
        A("s_not_b32 s16, s16"); A("v_mov_b32 v8, s18"); A("v_mov_b32 v9, s16"); A("s_mov_b64 exec, 1")
        A("buffer_atomic_%s v8, off, %s, 0 offset:4" % ("add" if pspan in (4, 5) else "umax", srd("DBG"))); A("buffer_atomic_umax v9, off, %s, 0 offset:8" % srd("DBG")); A("s_mov_b64 exec, -1")
    if pgrp:
        A("s_memrealtime s[18:19]")
        if pgrp == 1: A("s_and_b32 s6, s2, 7")
        elif pgrp == 2: A("s_bfe_u32 s6, s%d, 0x30002" % sR)
        elif pgrp == 3: A("s_lshr_b32 s6, s%d, 5" % sR)
        A("s_lshl_b32 s6, s6, 5")
        A("s_waitcnt lgkmcnt(0)"); A("v_mov_b32 v8, s18"); A("s_mov_b64 exec, 1"); A("buffer_atomic_add v8, off, %s, s6 offset:4" % srd("DBG")); A("s_mov_b64 exec, -1")
    A("s_lshr_b32 s%d, s%d, 3" % (sT1, sRW)); A("s_lshl_b32 s%d, s%d, 8" % (sT1, sT1)); A("s_add_u32 s%d, s%d, 0x%x" % (sT1, sT1, WS_ST))
    stl = [(lambda: A("buffer_load_dwordx2 v[32:33], v28, %s, s%d offen sc1" % (srd("WS"), sT1)), [32, 33])]
    if not sdelay: stl[0][0]()
    A("s_waitcnt lgkmcnt(0)")
    A("s_barrier")
    gpoll(stl, first=bool(sdelay), sleep=ssleep)
    stamp(5)
    def combine(modes):
        A("v_mov_b32 v34, v32")
        for m in modes: dpp("v_max_f32", 34, m)
        A("v_sub_f32 v32, v32, v34"); A("v_exp_f32 v32, v32"); A("v_mul_f32 v32, v32, v33"); A("v_mov_b32 v35, v32")
        for m in modes: dpp("v_add_f32", 35, m)
    combine(("quad_perm:[1,0,3,2]", "quad_perm:[2,3,0,1]"))
    A("v_rcp_f32 v35, v35"); A("v_mul_f32 v32, v32, v35")
    A("ds_write_b32 v%d, v32 offset:%d" % (vPA, L_ST))
    A("s_waitcnt lgkmcnt(0)")
    A("s_barrier")
    A("s_branch L_done")

    def slot_addrs():
        A("v_lshlrev_b32 v28, 8, v0")
        A("s_lshr_b32 s%d, s%d, 5" % (sT0, sR)); A("s_lshl_b32 s%d, s%d, 10" % (sT0, sT0)); A("s_and_b32 s%d, s%d, 31" % (sMU, sR)); A("s_lshl_b32 s%d, s%d, 3" % (sMU, sMU))
        A("s_add_u32 s%d, s%d, s%d" % (sMU, sMU, sT0)); A("s_add_u32 s%d, s%d, 0x%x" % (sMU, sMU, WS_ST))
    A("L_comm:")
    vZ = 20
    A("v_subrev_u32 v%d, 16, v0" % vZ); A("v_cmp_gt_u32 vcc, 12, v%d" % vZ); A("v_cndmask_b32 v%d, 0, v%d, vcc" % (vZ, vONE))
    A("v_lshl_add_u32 v%d, v0, 2, v%d" % (vT, vHI))
    A("ds_write_b32 v%d, v%d offset:%d" % (vT, vZ, L_FLG))
    slot_addrs()
    sEP = 4
    def epoch():
        A("s_waitcnt vmcnt(0)")
        A("v_readfirstlane_b32 s%d, v30" % sEP); A("v_readfirstlane_b32 s%d, v31" % (sEP + 1))
        A("s_add_u32 s%d, s%d, 0x%x" % (sEP, sEP, EP_STEP & 0xffffffff)); A("s_addc_u32 s%d, s%d, 0x%x" % (sEP + 1, sEP + 1, EP_STEP >> 32))
    A("s_waitcnt lgkmcnt(0)")
    A("buffer_load_dwordx2 v[30:31], off, %s, 0 offset:%d sc1" % (srd("WS"), WS_EP))
    A("s_barrier")
    A("v_add_u32 v%d, v%d, v%d" % (vT, vHI, vL16))
    A("v_and_b32 v29, 7, v0"); A("v_lshlrev_b32 v29, 14, v29"); A("v_lshl_add_u32 v29, v%d, 4, v29" % vG4)
    A("s_lshl_b32 s%d, s%d, 6" % (sT2, sRQ)); A("s_add_u32 s%d, s%d, 0x%x" % (sT2, sT2, WS_Q))
    A("s_bfe_u32 s%d, s%d, 0x30002" % (sT0, sR)); A("s_lshl_b32 s%d, s%d, 14" % (sT0, sT0)); A("s_lshr_b32 s%d, s%d, 5" % (sT1, sR)); A("s_lshl_b32 s%d, s%d, 11" % (sT1, sT1))
    A("s_add_u32 s%d, s%d, s%d" % (sT0, sT0, sT1)); A("s_add_u32 s%d, s%d, 0x%x" % (sT0, sT0, WS_Q))
    A("v_lshl_add_u32 v27, v0, 3, v%d" % vHI)
    epoch()
    A("v_mov_b32 v38, s%d" % sEP); A("v_mov_b32 v39, s%d" % (sEP + 1))
    stamp(1)
    lds_wait(F_QP, 4)
    for w in range(4): A("ds_read_b128 %s, v%d offset:%d" % (vr(40 + 4 * w, 4), vT, L_QP + w * 1024))
    A("s_waitcnt lgkmcnt(0)")
    for i in range(4): A("v_add_f32 v%d, v%d, v%d" % (40 + i, 40 + i, 44 + i)); A("v_add_f32 v%d, v%d, v%d" % (48 + i, 48 + i, 52 + i))
    for i in range(4): A("v_add_f32 v%d, v%d, v%d" % (40 + i, 40 + i, 48 + i))
    A("v_cvt_pk_bf16_f32 v36, v40, v41"); A("v_cvt_pk_bf16_f32 v37, v42, v43")
    A("s_mov_b32 exec_lo, 0x00ff00ff"); A("s_mov_b32 exec_hi, 0x00ff00ff")
    A("buffer_store_dwordx4 v[36:39], v29, %s, s%d offen sc1" % (srd("WS"), sT2))
    A("s_mov_b64 exec, -1")
    stamp(2)
    lds_wait(F_FULL, qtrig, sl=4)
    gpoll([(lambda: A("buffer_load_dwordx4 v[32:35], v%d, %s, s%d offen sc1" % (vL16, srd("WS"), sT0)), [32, 33, 34, 35]),
           (lambda: A("buffer_load_dwordx4 v[40:43], v%d, %s, s%d offen offset:1024 sc1" % (vL16, srd("WS"), sT0)), [40, 41, 42, 43])], sleep=qsleep, tag="s[%d:%d]" % (sEP, sEP + 1))
    A("ds_write_b64 v27, v[32:33] offset:%d" % L_QB); A("ds_write_b64 v27, v[40:41] offset:%d" % (L_QB + 512))
    lds_add(vHI, F_QR)
    stamp(4)
    A("v_lshlrev_b32 v%d, 5, v0" % (vT + 3))
    word_poll("buffer_load_dword v32, v%d, %s, 0 offen sc1" % (vT + 3, srd("DBG")), 32, "0xff", "v_cmp_gt_u32 vcc, 32, v%d", fsleep)
    stamp(3)
    lds_add(vHI, F_AM)
    A("v_lshlrev_b32 v%d, 3, v%d" % (vT + 1, vN16)); A("v_add_u32 v%d, v%d, v%d" % (vT + 2, vHI, vT + 1))
    lds_wait(F_ST, 4, sl=4)
    A("ds_read_b64 v[32:33], v%d offset:%d" % (vT + 2, L_ST)); A("s_waitcnt lgkmcnt(0)")
    combine(("row_ror:4", "row_ror:8"))
    A("v_rcp_f32 v37, v35"); A("v_mov_b32 v36, v34"); A("v_lshl_add_u32 v%d, v0, 3, v%d" % (vT + 2, vHI))
    A("s_mov_b64 exec, 0xf"); A("buffer_store_dwordx2 v[34:35], v28, %s, s%d offen sc1" % (srd("WS"), sMU))
    A("ds_write_b64 v%d, v[36:37] offset:%d" % (vT + 2, L_GS)); A("s_mov_b64 exec, -1")
    lds_add(vHI, F_GR)
    stamp(5)
    A("s_mov_b32 s%d, 2" % sMU)
    A("L_gather56:")
    A("s_waitcnt lgkmcnt(0)")
    A("s_barrier")
    stamp(8)
    gather(sMU, lambda: None)
    A("s_waitcnt lgkmcnt(0)")
    A("s_barrier")
    stamp(9)
    A("s_branch L_done")

    A("L_mlp:")
    vW, vU = 32, 64
    def cw_addr(dst): A("s_lshr_b32 s%d, s%d, 2" % (dst, sR)); A("s_mul_i32 s%d, s%d, %d" % (dst, dst, cws)); A("s_add_u32 s%d, s%d, 0x%x" % (dst, dst, WS_CW))
    A("s_cmp_lg_u32 s%d, 7" % sWAVE); A("s_cbranch_scc1 L_noclean")
    for i in range(4): A("v_mov_b32 v%d, -1" % (60 + i))
    slot_addrs()
    A("v_lshlrev_b32 v%d, 13, v%d" % (59, vG4)); A("v_lshl_add_u32 v%d, v%d, 4, v%d" % (59, vN16, 59))
    A("s_lshl_b32 s%d, s%d, %d" % (sT1, sR, 11)); A("s_add_u32 s%d, s%d, 0x%x" % (sT1, sT1, WS_SP))
    A("v_lshrrev_b32 v29, 2, v0"); A("v_lshlrev_b32 v29, 6, v29"); A("v_lshl_add_u32 v29, v%d, 4, v29" % vR4)
    cw_addr(sT2); A("s_and_b32 s%d, s%d, 3" % (sT3, sR)); A("s_cmp_eq_u32 s%d, 0" % sT3); A("s_cselect_b32 s12, 1, 0"); A("s_mov_b32 s13, 0")
    A("s_waitcnt lgkmcnt(0)")
    A("buffer_load_dwordx2 v[30:31], off, %s, 0 offset:%d sc1" % (srd("WS"), WS_EP))
    A("s_mov_b64 exec, 0xf"); A("buffer_store_dwordx2 v[60:61], v28, %s, s%d offen sc1" % (srd("WS"), sMU)); A("s_mov_b64 exec, -1")
    A("buffer_store_dwordx4 v[60:63], v%d, %s, s%d offen sc1" % (59, srd("WS"), sOPOFF))
    A("buffer_store_dwordx4 v[60:63], v29, %s, s%d offen sc1" % (srd("WS"), sT1))
    A("buffer_store_dwordx4 v[60:63], v29, %s, s%d offen offset:1024 sc1" % (srd("WS"), sT1))
    A("s_mov_b64 exec, s[12:13]"); A("buffer_store_dword v60, off, %s, s%d sc1" % (srd("WS"), sT2)); A("s_mov_b64 exec, -1")
    A("L_noclean:")
    A("s_sub_u32 s%d, s%d, 6" % (sMB, sWAVE))
    A("v_mul_u32_u24 v%d, 12, v0" % vT); A("s_mul_i32 s%d, s%d, 1792" % (sT1, sMB))
    A("s_waitcnt lgkmcnt(0)")
    A("s_load_dword s%d, s[%d:%d], 0" % (sB2, sB2P, sB2P + 1))
    A("s_barrier")
    for k, n in enumerate(("W1", "B1", "W2")):
        A("buffer_load_dwordx4 %s, v%d, %s, s%d offen" % (vr(vW + 8 * k, 4), vL16, srd(n), sT1))
        A("buffer_load_dwordx3 %s, v%d, %s, s%d offen offset:1024" % (vr(vW + 8 * k + 4, 3), vT, srd(n), sT1))
    A("s_cmp_lg_u32 s%d, 7" % sWAVE); A("s_cbranch_scc1 L_noflag")
    A("s_lshr_b32 s%d, s%d, 5" % (sT3, sR)); A("s_lshl_b32 s%d, s%d, 5" % (sT3, sT3))
    A("s_mov_b64 exec, 1")
    A("s_waitcnt vmcnt(6)")
    A("buffer_atomic_add v%d, off, %s, s%d" % (vONE, srd("DBG"), sT3))
    A("s_mov_b64 exec, -1")
    stamp(4)
    A("L_noflag:")
    A("s_lshr_b32 s%d, s%d, 5" % (sT0, sR)); A("s_mul_i32 s%d, s%d, %d" % (sT0, sT0, XN_STRIDE)); A("s_add_u32 s%d, s%d, %d" % (sT0, sT0, HI)); A("v_add_u32 v%d, s%d, v%d" % (vT + 1, sT0, vL16))
    A("s_lshl_b32 s%d, s%d, 13" % (sT2, sMB)); A("s_add_u32 s%d, s%d, %d" % (sT2, sT2, HI + L_WO)); A("v_add_u32 v%d, s%d, v%d" % (vT + 2, sT2, vL16))
    A("s_and_b32 s%d, s%d, 31" % (sT0, sR)); A("s_lshl_b32 s%d, s%d, 5" % (sT0, sT0)); A("s_add_u32 s%d, s%d, s%d" % (sT0, sT0, sT2))
    A("v_lshlrev_b32 v%d, 1, v%d" % (vT + 3, vN16)); A("v_add_u32 v%d, s%d, v%d" % (vT + 3, sT0, vT + 3))
    lds_wait(F_XN, 4)
    vXm = 112
    A("ds_read_b128 %s, v%d offset:%d" % (vr(vXm, 4), vT + 1, L_XN)); A("s_waitcnt lgkmcnt(0)")
    layernorm(vXm, 4, vXm + 4, vXm + 12, vXm + 20, 1)
    A("ds_write_b128 v%d, %s" % (vT + 2, vr(vXm, 4)))
    vH = 24
    A("ds_read_u16 v%d, v%d" % (vH, vT + 3))
    A("s_waitcnt vmcnt(0) lgkmcnt(0)")
    stamp(1)
    A("v_lshlrev_b32 v%d, 16, v%d" % (vH, vH))
    for k in range(3):
        for i in range(7): unpack(vU + 14 * k + 2 * i, vU + 14 * k + 2 * i + 1, vW + 8 * k + i)
    vC0, vACC, U, T_ = 25, 26, 112, 128
    A("v_mov_b32 v%d, s%d" % (vC0, sC0))
    A("s_lshl_b32 s%d, s%d, 6" % (sT0, sMB)); A("s_add_u32 s%d, s%d, %d" % (sT0, sT0, HI + L_YP)); A("v_mov_b32 v27, s%d" % sT0)
    A("s_mov_b32 s%d, 0" % sT1)
    A("s_nop 3")
    A("L_mlp_loop:")
    A("v_readlane_b32 s%d, v%d, s%d" % (sMU, vH, sT1))
    for t in range(14): A("v_fma_f32 v%d, s%d, v%d, v%d" % (U + t, sMU, vU + t, vU + 14 + t))
    for t in range(14): A("v_mul_f32 v%d, v%d, v%d" % (T_ + t, U + t, U + t))
    for t in range(14): A("v_fma_f32 v%d, v%d, s%d, v%d" % (T_ + t, T_ + t, sC1, vC0))
    for t in range(14): A("v_mul_f32 v%d, v%d, v%d" % (T_ + t, T_ + t, U + t))
    for t in range(14):
        A("v_exp_f32 v%d, v%d" % (T_ + t, T_ + t)); A("v_mul_f32 v%d, v%d, v%d" % (U + t, U + t, vU + 28 + t))
    for t in range(14): A("v_add_f32 v%d, 1.0, v%d" % (T_ + t, T_ + t))
    for t in range(14): A("v_rcp_f32 v%d, v%d" % (T_ + t, T_ + t))
    A("v_mul_f32 v%d, v%d, v%d" % (vACC, U, T_)); A("v_mul_f32 v%d, v%d, v%d" % (U, U + 1, T_ + 1))
    for t in range(2, 14): A("v_fmac_f32 v%d, v%d, v%d" % (vACC if t & 1 else U, U + t, T_ + t))
    A("v_add_f32 v%d, v%d, v%d" % (vACC, vACC, U))
    red16(vACC, "v_add_f32"); dpp("v_add_f32", vACC, "row_bcast:15", "0xa"); dpp("v_add_f32", vACC, "row_bcast:31", "0xc")
    A("s_mov_b32 exec_lo, 0"); A("s_mov_b32 exec_hi, 0x80000000")
    A("ds_write_b32 v27, v%d" % vACC); A("v_add_u32 v27, 4, v27")
    A("s_mov_b64 exec, -1")
    A("s_add_u32 s%d, s%d, 1" % (sT1, sT1)); A("s_cmp_lt_u32 s%d, 16" % sT1); A("s_cbranch_scc1 L_mlp_loop")
    stamp(2)
    A("s_waitcnt vmcnt(0)")
    A("s_cmp_eq_u32 s%d, 7" % sWAVE); A("s_cbranch_scc1 L_final")
    sCW, sCNT, sFU = 4, 5, 12
    if tlist: reqs = [tuple(int(y) for y in x.split(":")) for x in tlist.split(",")]
    else: reqs = [(t0 + tstep * r, tamt) for r in range(MAXT // tamt)]
    assert sum(a for _, a in reqs) == MAXT and all(t <= NF + n1 + sum(a for _, a in reqs[:max(i - lag, 0)]) for i, (t, _) in enumerate(reqs))
    cw_addr(sCW); A("s_mov_b32 s%d, 0" % sCNT); A("s_mov_b32 s%d, 0" % sFU)
    A("v_lshl_add_u32 v30, v0, 2, v%d" % vHI)
    lds_wait(F_AM, 1, sl=8)
    def set_plan(sg):
        A("v_mov_b32 v%d, s%d" % (vT, sg)); one_lane("ds_write_b32 v%d, v%d offset:%d" % (vHI, vT, F_PLAN))
    def take(r):
        amt = reqs[r][1]
        A("v_readfirstlane_b32 s%d, v%d" % (sT0, 32 + r)); A("s_add_u32 s%d, s%d, 1" % (sT0, sT0))
        if force:
            f = [int(x) for x in force.split(",")]; pre = [sum(f[:i]) for i in range(4)]
            A("s_and_b32 s%d, s%d, 3" % (sT1, sR)); A("s_lshl_b32 s%d, s%d, 3" % (sT1, sT1)); A("s_lshr_b32 s%d, 0x%x, s%d" % (sT2, sum(p << (8 * i) for i, p in enumerate(f)), sT1)); A("s_and_b32 s%d, s%d, 255" % (sT2, sT2))
            A("s_lshr_b32 s%d, 0x%x, s%d" % (sT0, sum(p << (8 * i) for i, p in enumerate(pre)), sT1)); A("s_and_b32 s%d, s%d, 255" % (sT0, sT0)); A("s_add_u32 s%d, s%d, s%d" % (sT0, sT0, sCNT))
            A("s_cmp_ge_u32 s%d, s%d" % (sCNT, sT2)); A("s_cselect_b32 s%d, %d, s%d" % (sT0, POOL, sT0))
        A("s_min_u32 s%d, s%d, %d" % (sT0, sT0, POOL)); A("s_sub_u32 s%d, %d, s%d" % (sT1, POOL, sT0)); A("s_min_u32 s%d, s%d, %d" % (sT1, sT1, amt))
        A("v_add_u32 v%d, s%d, v0" % (vT, sT0)); A("s_lshl_b32 s%d, s%d, 2" % (sT2, sCNT)); A("v_add_u32 v%d, s%d, v30" % (vT + 1, sT2))
        A("s_mov_b64 exec, %d" % ((1 << amt) - 1)); A("ds_write_b32 v%d, v%d offset:%d" % (vT + 1, vT, F_PLAN + 4)); A("s_mov_b64 exec, -1")
        A("s_add_u32 s%d, s%d, s%d" % (sCNT, sCNT, sT1))
        A("s_cmp_lt_u32 s%d, %d" % (sT1, amt)); A("s_cbranch_scc1 L_close")
        if r < len(reqs) - 1: set_plan(sCNT)
    for r, (thr, amt) in enumerate(reqs):
        lds_wait(F_FULL, thr, keep=sFU, sl=2)
        A("v_mov_b32 v%d, %d" % (32 + r, amt))
        if not noat: one_lane("buffer_atomic_add v%d, off, %s, s%d sc0" % (32 + r, srd("WS"), sCW))
        if r == 0: stamp(3)
        if r >= lag:
            A("s_waitcnt vmcnt(%d)" % lag); take(r - lag)
    for r in range(max(len(reqs) - lag, 0), len(reqs)):
        A("s_waitcnt vmcnt(%d)" % (len(reqs) - 1 - r)); take(r)
    A("L_close:")
    A("s_add_u32 s%d, s%d, 0x100" % (sCNT, sCNT)); set_plan(sCNT)
    stamp(4)
    A("s_waitcnt vmcnt(0)")
    A("s_mov_b32 s%d, 3" % sMU)
    A("s_branch L_gather56")
    A("L_final:")
    A("v_and_b32 v%d, 7, v0" % (vT + 1)); A("v_lshrrev_b32 v%d, 5, v0" % (vT + 2)); A("v_lshl_add_u32 v%d, v%d, 1, v%d" % (vT + 1, vT + 1, vT + 2))
    A("v_lshlrev_b32 v%d, 1, v%d" % (vT + 2, vT + 1)); A("s_lshl_b32 s12, s%d, 5" % sR)
    A("buffer_load_ushort v%d, v%d, %s, s12 offen" % (vT + 3, vT + 2, srd("X")))
    A("v_lshl_add_u32 v%d, v%d, 2, v%d" % (vT + 1, vT + 1, vHI))
    A("v_lshrrev_b32 v%d, 3, v0" % (vT + 4)); A("v_lshlrev_b32 v%d, 10, v%d" % (vT + 4, vT + 4)); A("v_and_b32 v%d, 7, v0" % (vT + 5)); A("v_lshl_add_u32 v%d, v%d, 4, v%d" % (vT + 4, vT + 5, vT + 4))
    A("s_lshr_b32 s%d, s%d, 3" % (sT0, sRW)); A("s_lshl_b32 s%d, s%d, 17" % (sT0, sT0)); A("s_and_b32 s%d, s%d, 7" % (sT1, sRW)); A("s_lshl_b32 s%d, s%d, 7" % (sT1, sT1))
    A("s_add_u32 s%d, s%d, s%d" % (sT0, sT0, sT1))
    wait_near_end(wotrig, 2)
    for a in range(16):
        A("s_mov_b32 m0, %d" % (HI + L_WO + a * 1024))
        A("buffer_load_dwordx4 v%d, %s, s%d offen %s lds" % (vT + 4, srd("WO"), sT0, pol))
        if a < 15: A("s_add_u32 s%d, s%d, 0x2000" % (sT0, sT0))
    A("s_mov_b32 s%d, s12" % sT0); A("s_lshl_b32 s%d, s%d, %d" % (sT1, sR, 11)); A("s_add_u32 s%d, s%d, 0x%x" % (sT1, sT1, WS_SP))
    A("s_waitcnt lgkmcnt(0)")
    A("s_barrier")
    stamp(8)
    A("ds_read_b32 v40, v%d offset:%d" % (vT + 1, L_YP)); A("ds_read_b32 v41, v%d offset:%d" % (vT + 1, L_YP + 64)); A("s_waitcnt lgkmcnt(0)")
    A("v_add_f32 v40, v40, v41"); rbf(40)
    A("s_lshl_b32 s%d, s%d, 16" % (sB2, sB2)); A("v_add_f32 v40, s%d, v40" % sB2); rbf(40)
    A("v_mul_f32 v41, s%d, v40" % sL2E); A("v_exp_f32 v41, -v41"); A("v_add_f32 v41, 1.0, v41"); A("v_rcp_f32 v41, v41"); A("v_mul_f32 v40, v40, v41"); rbf(40)
    A("s_waitcnt vmcnt(0)"); A("v_lshlrev_b32 v%d, 16, v%d" % (vT + 3, vT + 3))
    one_lane("ds_write_b32 v%d, v%d offset:%d" % (vHI, vONE, F_WO))
    stamp(11)
    A("s_barrier")
    stamp(9)
    if td2: A("s_sleep %d" % td2)
    A("v_lshlrev_b32 v29, 3, v0")
    apoll(32, 29, sT1, 44, tsleep)
    stamp(10)
    A("v_add_f32 v44, v32, v34"); A("v_add_f32 v45, v33, v35"); A("v_add_f32 v46, v36, v38"); A("v_add_f32 v47, v37, v39")
    A("v_add_f32 v44, v44, v46"); A("v_add_f32 v45, v45, v47")
    A("v_permlane32_swap_b32 v44, v45"); A("v_add_f32 v44, v44, v45")
    swap_red(44, 45, "v_add_f32", 16)
    dpp("v_add_f32", 44, "row_ror:8")
    rbf(44); A("v_mul_f32 v44, v44, v40"); rbf(44)
    A("v_add_f32 v44, v44, v%d" % (vT + 3)); A("v_cvt_pk_bf16_f32 v44, v44, v44")
    A("s_mov_b32 exec_lo, 0xff"); A("s_mov_b32 exec_hi, 0xff")
    A("buffer_store_short v44, v%d, %s, s%d offen" % (vT + 2, srd("OUT"), sT0))
    A("s_mov_b64 exec, -1")
    A("s_cmp_lg_u32 s%d, 0" % sR); A("s_cbranch_scc1 L_done")
    epoch()
    A("v_mov_b32 v30, s%d" % sEP); A("v_mov_b32 v31, s%d" % (sEP + 1))
    one_lane("buffer_store_dwordx2 v[30:31], off, %s, 0 offset:%d sc1" % (srd("WS"), WS_EP))
    if pgrp:
        A("v_lshlrev_b32 v29, 5, v0"); A("s_mov_b64 exec, 0xff")
        A("buffer_load_dword v30, v29, %s, 0 offen offset:4 sc1" % srd("DBG")); A("s_memrealtime s[16:17]"); A("s_waitcnt vmcnt(0) lgkmcnt(0)")
        A("v_readfirstlane_b32 s6, v30"); A("v_subrev_u32 v30, s6, v30"); A("v_add_u32 v30, 0x100000, v30")
        A("v_mov_b32 v31, v30")
        for m in QUADS[:3]: dpp("v_max_u32", 30, m)
        for m in QUADS[:3]: dpp("v_min_u32", 31, m)
        A("s_mov_b64 exec, -1")
        A("v_readfirstlane_b32 s6, v30"); A("v_readfirstlane_b32 s7, v31")
        A("s_sub_u32 s6, s6, s7"); A("s_lshr_b32 s6, s6, 2")
        A("s_min_u32 s6, s6, 20000")
        A("s_add_u32 s16, s16, s6")
        A("L_pad3:"); A("s_memrealtime s[18:19]"); A("s_waitcnt lgkmcnt(0)"); A("s_sub_u32 s18, s18, s16"); A("s_cmp_lt_i32 s18, 0"); A("s_cbranch_scc1 L_pad3")
    if pspan:
        A("buffer_load_dwordx2 v[30:31], off, %s, 0 offset:4 sc1" % srd("DBG")); A("s_memrealtime s[16:17]"); A("s_waitcnt vmcnt(0) lgkmcnt(0)")
        A("v_readfirstlane_b32 s6, v30"); A("v_readfirstlane_b32 s7, v31")
        if pspan == 1: A("s_not_b32 s7, s7"); A("s_sub_u32 s6, s6, s7"); A("s_lshl_b32 s6, s6, 2")
        elif pspan == 2: A("s_sub_u32 s6, s16, s6"); A("s_lshl_b32 s6, s6, 3")
        elif pspan == 5: A("s_not_b32 s7, s7"); A("s_lshl_b32 s7, s7, 8"); A("s_sub_u32 s6, s6, s7"); A("s_lshr_b32 s6, s6, 6")
        elif pspan == 6: A("s_not_b32 s7, s7"); A("s_sub_u32 s6, s16, s7"); A("s_lshl_b32 s6, s6, 2")
        A("s_min_u32 s6, s6, 20000")
        A("s_add_u32 s16, s16, s6")
        A("L_pad2:"); A("s_memrealtime s[18:19]"); A("s_waitcnt lgkmcnt(0)"); A("s_sub_u32 s18, s18, s16"); A("s_cmp_lt_i32 s18, 0"); A("s_cbranch_scc1 L_pad2")
    A("L_done:")
    A("s_waitcnt vmcnt(0)")
    if stamps:
        stamp(NST - 1)
        A("s_waitcnt lgkmcnt(0)")
        A("s_lshl_b32 s%d, s2, 3" % sT0); A("s_add_u32 s%d, s%d, s%d" % (sT0, sT0, sWAVE)); A("s_mul_i32 s%d, s%d, %d" % (sT0, sT0, NST * 8)); A("s_add_u32 s%d, s%d, 0x%x" % (sT0, sT0, WS_STAMP))
        A("s_mov_b64 exec, 1")
        for k in range(NST):
            A("v_mov_b32 v2, s%d" % (16 + 2 * k)); A("v_mov_b32 v3, s%d" % (17 + 2 * k))
            A("buffer_store_dwordx2 v[2:3], off, %s, s%d offset:%d" % (srd("WS"), sT0, k * 8)); A("s_nop 1")
    A("L_end:")
    A("s_endpgm")
    body = A.finalize()
    hdr = open("recurrent_scan__gqa_block_cached__mixer_token_mlp__decode.s.ref").read().split("; Override launch")[0]
    s = hdr + "; @launch grid=(256,1,1) block=(512,1,1) lds=%d\n" % LDS_BYTES
    s += '.amdgcn_target "amdgcn-amd-amdhsa--gfx950"\n.text\n.globl %s\n.p2align 8\n.type %s,@function\n%s:\n' % (NAME, NAME, NAME)
    s += body
    s += '.section .rodata,"a"\n.p2align 6\n.amdhsa_kernel %s\n  .amdhsa_next_free_vgpr 256\n  .amdhsa_next_free_sgpr 102\n  .amdhsa_accum_offset 256\n' % NAME
    s += "  .amdhsa_group_segment_fixed_size 0\n  .amdhsa_kernarg_size 104\n  .amdhsa_user_sgpr_count 2\n  .amdhsa_user_sgpr_kernarg_segment_ptr 1\n  .amdhsa_system_sgpr_workgroup_id_x 1\n.end_amdhsa_kernel\n"
    return s, A

if __name__ == "__main__":
    out = sys.argv[1]
    kw = {}
    for p in sys.argv[2:]:
        k, v = p.split("=")
        kw[k] = int(v) if v.lstrip("-").isdigit() else v.replace("+", " ")
    s, A = gen(**kw)
    open(out, "w").write(s)
    print("wrote", out, "instructions", len(A.ins), "nops", A.nops, "lds", LDS_BYTES)
```

```python
import sys, struct
from asmlib import Asm

NAME = "recurrent_scan__gqa_block_cached__mixer_token_mlp__decode_kernel"
def f2u(x): return struct.unpack("<I", struct.pack("<f", x))[0]

WS_ST, WS_OP, WS_SP, WS_Q, WS_EP = 0x10000, 0x20000, 0x100000, 0x60000, 0x0
WS_PG = 0x90000
WS_CW, WS_PR = 0x80000, 0x200000
EP_STEP = 0x9E3779B97F4A7C15
WS_STAMP = 128 << 20
HI = 131072
L_WO = 0
L_XN, XN_STRIDE = 16384, 1040
L_OW = L_XN
L_QP = 24704
L_QB = 28800
L_FLG = 29824
L_ST = L_FLG + 64
L_GS = L_ST + 128
L_YP = L_GS + 32
LDS_BYTES = HI + L_YP + 128
F_FULL, F_FREED, F_XN, F_QP, F_QR, F_ST, F_GR, F_WO, F_AM, F_PLAN, F_LI, F_MODE = [L_FLG + 4 * i for i in (0, 4, 8, 9, 10, 11, 12, 13, 14, 1, 15, 2)]
L_PP = L_QP

sWAVE, sBASE, sOFF = 3, 4, 5
sT0, sT1, sT2 = 6, 7, 8
sR, sSPIN, sT3 = 9, 10, 11
sMU, sMB = 14, 15
SRD = dict(K=44, V=48, X=52, WQ=56, WO=60, W1=64, B1=68, W2=72, OUT=76, DBG=80, WS=84)
KARG = dict(X=0, K=8, V=16, WQ=24, WO=32, W1=48, B1=56, W2=64, OUT=80, DBG=88, WS=96)
SIZE = dict(X=8192, K=1 << 26, V=1 << 26, WQ=1 << 22, WO=1 << 22, W1=3584, B1=3584, W2=3584, OUT=8192, DBG=256, WS=1 << 28)
sSELLO, sSELHI, sMASK, sSCALE, sL2E, sC0, sC1, sB2, sB2P = 88, 89, 90, 91, 92, 93, 94, 95, 96
sOPOFF, sSPOFF, sSTOFF, sFULL = 98, 99, 100, 101
def srd(n): return "s[%d:%d]" % (SRD[n], SRD[n] + 3)
def vr(a, n=1): return "v%d" % a if n == 1 else "v[%d:%d]" % (a, a + n - 1)
vL16, vG4, vC4, vR4, vN16, vHI, vONE = 1, 2, 3, 4, 5, 6, 7
vT = 8
vPOLL = 16

def gen(F=4, stamps=0, pol="nt", spin=1 << 17, lspin=1 << 22, mimic=1, pre=0, lsleep=1, ldprio=3, fsleep=8, qsleep=2, ssleep=8, tsleep=0, xmap=1, polq=None, polo=None, ldst=0, abl='', rot=0, pad=0, P1=1, P2=1, pd=5, qmap=0, tl='sc1', ts='sc1', tsleep2=None, Fhi=0, himask=0xf8, hiend=16, spad=0, at2=1, td2=8, td1=0, at1=0, qdelay=0, sdelay=0, qtrig=8, strig=48, bshift=0, wolate=2, wqsplit=0, wotrig=60, D=0, DV=0, probe=0, steal=0, cth=23, cllate=0, bias=0, rtrig=48, p_a=-1, p_b=-1, pspan=0, pstart=0, bal=0, Flo=2, bthr=0, bper=8, bstop=58, bmin=0, pm=0, pval=0, pgrp=0, pat=11, tlb=0, piv=0):
    NOWN = 5 if steal else 8
    sPLAN = 13
    DV = DV if DV else D
    tsleep2 = tsleep if tsleep2 is None else tsleep2
    polq = pol if polq is None else polq.replace('def', '')
    polo = pol if polo is None else polo.replace('def', '')
    A = Asm()
    NST = 14
    def stamp(k):
        if stamps: A("s_memrealtime s[%d:%d]" % (16 + 2 * k, 17 + 2 * k))
    QUADS = ("quad_perm:[1,0,3,2]", "quad_perm:[2,3,0,1]", "row_half_mirror", "row_mirror")
    def dpp(op, v, m, rm="0xf"): A("%s_dpp v%d, v%d, v%d %s row_mask:%s bank_mask:0xf" % (op, v, v, v, m, rm))
    def red16(v, op):
        for m in QUADS: dpp(op, v, m)
    def swap_red(v, t, op, which):
        A("v_mov_b32 v%d, v%d" % (t, v)); A("v_permlane%d_swap_b32 v%d, v%d" % (which, v, t)); A("%s v%d, v%d, v%d" % (op, v, v, t))
    def rbf(v):
        A("v_cvt_pk_bf16_f32 v%d, v%d, v%d" % (v, v, v)); A("v_lshlrev_b32 v%d, 16, v%d" % (v, v))
    def unpack(dlo, dhi, src):
        A("v_lshlrev_b32 v%d, 16, v%d" % (dlo, src)); A("v_and_b32 v%d, s%d, v%d" % (dhi, sMASK, src))
    def layernorm(pk, n, x, d, t, halves):
        def allred(v):
            red16(v, "v_add_f32"); swap_red(v, t + 2, "v_add_f32", 16)
            if halves == 1: swap_red(v, t + 2, "v_add_f32", 32)
        for i in range(n): unpack(x + 2 * i, x + 2 * i + 1, pk + i)
        A("v_add_f32 v%d, v%d, v%d" % (t, x, x + 1)); A("v_add_f32 v%d, v%d, v%d" % (t + 1, x + 2, x + 3))
        for i in range(4, 2 * n): A("v_add_f32 v%d, v%d, v%d" % (t + (i & 1), t + (i & 1), x + i))
        A("v_add_f32 v%d, v%d, v%d" % (t, t, t + 1))
        allred(t)
        A("v_mul_f32 v%d, 0x3b000000, v%d" % (t, t))
        A("v_cvt_pk_bf16_f32 v%d, v%d, v%d" % (t + 1, t, t))
        for i in range(2 * n): A("v_sub_f32 v%d, v%d, v%d" % (d + i, x + i, t))
        A("v_lshlrev_b32 v%d, 16, v%d" % (t + 1, t + 1))
        A("v_mul_f32 v%d, v%d, v%d" % (t, d, d)); A("v_mul_f32 v%d, v%d, v%d" % (d, d + 1, d + 1))
        for i in range(2, 2 * n): A("v_fmac_f32 v%d, v%d, v%d" % (t if i & 1 else d, d + i, d + i))
        A("v_add_f32 v%d, v%d, v%d" % (t, t, d))
        for i in range(2 * n): A("v_sub_f32 v%d, v%d, v%d" % (x + i, x + i, t + 1))
        allred(t)
        for i in range(n): A("v_cvt_pk_bf16_f32 v%d, v%d, v%d" % (pk + i, x + 2 * i, x + 2 * i + 1))
        A("v_mul_f32 v%d, 0x3b000000, v%d" % (t, t)); rbf(t)
        A("v_add_f32 v%d, 0x%x, v%d" % (t, f2u(1e-5), t)); rbf(t)
        A("v_sqrt_f32 v%d, v%d" % (t, t)); rbf(t)
        A("v_rcp_f32 v%d, v%d" % (t, t))
        for i in range(n): unpack(x + 2 * i, x + 2 * i + 1, pk + i)
        for i in range(2 * n): A("v_mul_f32 v%d, v%d, v%d" % (x + i, t, x + i))
        for i in range(n): A("v_cvt_pk_bf16_f32 v%d, v%d, v%d" % (pk + i, x + 2 * i, x + 2 * i + 1))
    def lds_wait(flag, val, keep=None, sl=None):
        ok = A.label("lok"); again = A.label("lagain")
        dst = keep if keep is not None else sT3
        if keep is not None:
            A("s_cmp_ge_u32 s%d, %s" % (keep, val)); A("s_cbranch_scc1 " + ok)
        A("s_mov_b32 s%d, 0" % sSPIN)
        A(again + ":")
        A("ds_read_b32 v%d, v%d offset:%d" % (vPOLL, vHI, flag)); A("s_waitcnt lgkmcnt(0)")
        A("v_readfirstlane_b32 s%d, v%d" % (dst, vPOLL))
        A("s_cmp_ge_u32 s%d, %s" % (dst, val)); A("s_cbranch_scc1 " + ok)
        if sl is None: sl = lsleep
        if sl: A("s_sleep %d" % sl)
        A("s_add_u32 s%d, s%d, 1" % (sSPIN, sSPIN)); A("s_cmp_lt_u32 s%d, %d" % (sSPIN, lspin)); A("s_cbranch_scc1 " + again)
        A(ok + ":")
    def lds_add(flag_addr_reg, off):
        A("s_waitcnt lgkmcnt(0)")
        A("s_mov_b64 exec, 1"); A("ds_add_u32 v%d, v%d offset:%d" % (flag_addr_reg, vONE, off)); A("s_mov_b64 exec, -1")
    def gpoll(loads, first=True, sleep=0, full="-1", tag=None, P=1):
        ok = A.label("ok"); again = A.label("again")
        masks = ["vcc", "s[12:13]"]
        A("s_mov_b32 s%d, 0" % sSPIN)
        if first:
            for issue, regs in loads: issue()
        for _ in range(P - 1):
            A("s_sleep %d" % pd)
            for issue, regs in loads: issue()
        A(again + ":")
        A("s_waitcnt vmcnt(%d)" % (len(loads) * (P - 1)))
        for (issue, regs), mk in zip(loads, masks):
            t = vT + 7
            if tag is not None:
                A("v_cmp_ne_u64 %s, %s, v[%d:%d]" % (mk, tag, regs[2], regs[3])); continue
            if len(regs) == 2: A("v_max_u32 v%d, v%d, v%d" % (t, regs[0], regs[1]))
            else:
                A("v_max3_u32 v%d, v%d, v%d, v%d" % (t, regs[0], regs[1], regs[2])); A("v_max_u32 v%d, v%d, v%d" % (t, t, regs[3]))
            A("v_cmp_eq_u32 %s, -1, v%d" % (mk, t))
        if len(loads) == 2:
            A("s_or_b32 s%d, vcc_lo, vcc_hi" % sT3); A("s_or_b32 s%d, s%d, s12" % (sT3, sT3)); A("s_or_b32 s%d, s%d, s13" % (sT3, sT3))
        else:
            A("s_or_b32 s%d, vcc_lo, vcc_hi" % sT3)
        A("s_cbranch_scc0 " + ok)
        if sleep: A("s_sleep %d" % sleep)
        for (issue, regs), mk in zip(loads, masks):
            A("s_mov_b64 exec, %s" % mk); issue()
        if full == "PARTIAL": A("s_mov_b32 exec_lo, -1"); A("s_mov_b32 exec_hi, 0x1ffff")
        else: A("s_mov_b64 exec, %s" % full)
        A("s_add_u32 s%d, s%d, 1" % (sSPIN, sSPIN)); A("s_cmp_lt_u32 s%d, %d" % (sSPIN, spin)); A("s_cbranch_scc1 " + again)
        A("s_waitcnt vmcnt(0)")
        A(ok + ":")
    def apoll(vd, vaddr, soff, vtmp, sleep, first=True):
        ms = ["vcc", "s[12:13]", "s[88:89]", "s[90:91]"]
        ok = A.label("aok"); again = A.label("aagain")
        def iss(k):
            A("v_mov_b32 v%d, 0" % (vd + 2 * k)); A("v_mov_b32 v%d, 0" % (vd + 1 + 2 * k))
            A("buffer_atomic_or_x2 v[%d:%d], v%d, %s, s%d offen offset:%d sc0" % (vd + 2 * k, vd + 1 + 2 * k, vaddr, srd("WS"), soff, 512 * k))
        if first == "only":
            for k in range(4): iss(k)
            return
        A("s_mov_b32 s%d, 0" % sSPIN)
        if first:
            for k in range(4): iss(k)
        A(again + ":")
        A("s_waitcnt vmcnt(0)")
        for k in range(4): A("v_max_u32 v%d, v%d, v%d" % (vtmp + k, vd + 2 * k, vd + 1 + 2 * k))
        for k in range(4): A("v_cmp_eq_u32 %s, -1, v%d" % (ms[k], vtmp + k))
        A("s_or_b64 s[92:93], vcc, s[12:13]"); A("s_or_b64 s[94:95], s[88:89], s[90:91]"); A("s_or_b64 s[92:93], s[92:93], s[94:95]")
        A("s_cbranch_scc0 " + ok)
        if sleep: A("s_sleep %d" % sleep)
        for k in range(4):
            A("s_mov_b64 exec, %s" % ms[k]); iss(k)
        A("s_mov_b64 exec, -1")
        A("s_add_u32 s%d, s%d, 1" % (sSPIN, sSPIN)); A("s_cmp_lt_u32 s%d, %d" % (sSPIN, spin)); A("s_cbranch_scc1 " + again)
        A("s_waitcnt vmcnt(0)")
        A(ok + ":")
    def word_poll(load, vd, lanes, cmp, sleep):
        ok = A.label("fok"); again = A.label("fagain")
        A("s_mov_b32 s%d, 0" % sSPIN); A("s_mov_b64 exec, %s" % lanes)
        A(again + ":")
        A(load)
        A("s_waitcnt vmcnt(0)")
        A(cmp % vd)
        A("s_cmp_eq_u64 vcc, 0"); A("s_cbranch_scc1 " + ok)
        if sleep: A("s_sleep %d" % sleep)
        A("s_add_u32 s%d, s%d, 1" % (sSPIN, sSPIN)); A("s_cmp_lt_u32 s%d, %d" % (sSPIN, spin)); A("s_cbranch_scc1 " + again)
        A(ok + ":")
        A("s_mov_b64 exec, -1")

    A("s_cmp_ge_u32 s2, 256"); A("s_cbranch_scc1 L_end")
    if stamps:
        for k in range(1, NST): A("s_mov_b64 s[%d:%d], 0" % (16 + 2 * k, 17 + 2 * k))
    stamp(0)
    if (pad or p_b >= 0 or pspan or pstart) and not stamps: A("s_memrealtime s[16:17]")
    for n in ("K", "X", "WQ", "WS", "V", "WO", "W1", "B1", "W2", "DBG", "OUT"):
        A("s_load_dwordx2 s[%d:%d], s[0:1], %d" % (SRD[n], SRD[n] + 1, KARG[n]))
    A("s_load_dwordx2 s[%d:%d], s[0:1], 72" % (sB2P, sB2P + 1))
    A("v_lshrrev_b32 v1, 6, v0"); A("v_and_b32 v0, 63, v0"); A("v_readfirstlane_b32 s%d, v1" % sWAVE)
    for n in SRD:
        A("s_mov_b32 s%d, 0x%x" % (SRD[n] + 2, SIZE[n])); A("s_mov_b32 s%d, 0x20000" % (SRD[n] + 3))
    if xmap == 0:
        A("s_and_b32 s%d, s2, 7" % sR); A("s_lshl_b32 s%d, s%d, 5" % (sR, sR)); A("s_lshr_b32 s%d, s2, 3" % sT0); A("s_add_u32 s%d, s%d, s%d" % (sR, sR, sT0))
    elif xmap >= 8:
        A("s_bfe_u32 s%d, s2, 0x10003" % sT0); A("s_bfe_u32 s%d, s2, 0x10004" % sT1); A("s_lshl_b32 s%d, s%d, 2" % (sT1, sT1)); A("s_add_u32 s%d, s%d, s%d" % (sT0, sT0, sT1))
        if xmap == 9: A("s_lshr_b32 s%d, s2, 5" % sT1); A("s_add_u32 s%d, s%d, s%d" % (sT0, sT0, sT1))
        A("s_sub_u32 s%d, s2, s%d" % (sR, sT0))
        A("s_and_b32 s%d, s%d, 7" % (sR, sR)); A("s_lshl_b32 s%d, s%d, 2" % (sR, sR)); A("s_and_b32 s%d, s2, 0xe0" % sT0); A("s_add_u32 s%d, s%d, s%d" % (sR, sR, sT0))
        A("s_bfe_u32 s%d, s2, 0x20003" % sT0); A("s_add_u32 s%d, s%d, s%d" % (sR, sR, sT0))
    elif xmap >= 4:
        A("s_lshr_b32 s%d, s2, 1" % sT0); A("s_xor_b32 s%d, s%d, s2" % (sT0, sT0)); A("s_and_b32 s%d, s%d, 1" % (sT0, sT0)); A("s_lshl_b32 s%d, s%d, 3" % (sT0, sT0))
        A("s_and_b32 s%d, s2, 4" % sT1); A("s_lshl_b32 s%d, s%d, 2" % (sT1, sT1)); A("s_add_u32 s%d, s%d, s%d" % (sT0, sT0, sT1))
        A("s_bfe_u32 s%d, s2, 0x10003" % sT1); A("s_lshl_b32 s%d, s%d, 2" % (sT1, sT1)); A("s_add_u32 s%d, s%d, s%d" % (sT0, sT0, sT1))
        A("s_and_b32 s%d, s2, 0xe0" % sR); A("s_add_u32 s%d, s%d, s%d" % (sR, sR, sT0))
        if xmap == 6:
            A("s_lshr_b32 s%d, s2, 5" % sT0); A("s_xor_b32 s%d, s%d, s2" % (sT0, sT0)); A("s_and_b32 s%d, s%d, 1" % (sT0, sT0))
        elif xmap == 7:
            A("s_lshr_b32 s%d, s2, 3" % sT0); A("s_xor_b32 s%d, s%d, s2" % (sT0, sT0)); A("s_and_b32 s%d, s%d, 1" % (sT0, sT0))
        else: A("s_and_b32 s%d, s2, 1" % sT0)
        A("s_bfe_u32 s%d, s2, 0x10004" % sT1)
        A("s_lshl_b32 s%d, s%d, 1" % ((sT0, sT0) if xmap != 5 else (sT1, sT1)))
        A("s_add_u32 s%d, s%d, s%d" % (sR, sR, sT0)); A("s_add_u32 s%d, s%d, s%d" % (sR, sR, sT1))
    else:
        if xmap == 2:
            A("s_lshr_b32 s%d, s2, 5" % sT0); A("s_add_u32 s%d, s2, s%d" % (sR, sT0))
        elif xmap == 3:
            A("s_bfe_u32 s%d, s2, 0x20003" % sT0); A("s_lshl_b32 s%d, s%d, 1" % (sT0, sT0)); A("s_add_u32 s%d, s2, s%d" % (sR, sT0))
        else: A("s_add_u32 s%d, s2, %d" % (sR, bshift))
        A("s_and_b32 s%d, s%d, 7" % (sR, sR)); A("s_lshl_b32 s%d, s%d, 2" % (sR, sR)); A("s_and_b32 s%d, s2, 0xe0" % sT0); A("s_add_u32 s%d, s%d, s%d" % (sR, sR, sT0))
        A("s_bfe_u32 s%d, s2, 0x20003" % sT0); A("s_add_u32 s%d, s%d, s%d" % (sR, sR, sT0))
    sRQ = sMB
    if xmap >= 4:
        A("s_and_b32 s%d, s2, 7" % sRQ); A("s_lshl_b32 s%d, s%d, 2" % (sRQ, sRQ)); A("s_and_b32 s%d, s2, 0xe0" % sT0); A("s_add_u32 s%d, s%d, s%d" % (sRQ, sRQ, sT0))
        A("s_bfe_u32 s%d, s2, 0x20003" % sT0); A("s_add_u32 s%d, s%d, s%d" % (sRQ, sRQ, sT0))
    elif qmap == 0: A("s_mov_b32 s%d, s%d" % (sRQ, sR))
    elif qmap == 1:
        A("s_and_b32 s%d, s2, 7" % sRQ); A("s_lshl_b32 s%d, s%d, 5" % (sRQ, sRQ)); A("s_lshr_b32 s%d, s2, 3" % sT0); A("s_add_u32 s%d, s%d, s%d" % (sRQ, sRQ, sT0))
    elif qmap == 2:
        A("s_lshr_b32 s%d, s%d, 3" % (sT0, sR)); A("s_and_b32 s%d, s%d, 0x1c" % (sT0, sT0)); A("s_add_u32 s%d, s%d, s%d" % (sT0, sT0, sR)); A("s_and_b32 s%d, s%d, 0x1c" % (sT0, sT0))
        A("s_and_b32 s%d, s%d, 0xe3" % (sRQ, sR)); A("s_or_b32 s%d, s%d, s%d" % (sRQ, sRQ, sT0))
    elif qmap == 4:
        A("s_lshr_b32 s%d, s%d, 5" % (sT0, sR)); A("s_lshl_b32 s%d, s%d, 1" % (sT0, sT0)); A("s_bfe_u32 s%d, s%d, 0x10001" % (sT1, sR)); A("s_add_u32 s%d, s%d, s%d" % (sT0, sT0, sT1))
        A("s_lshr_b32 s%d, s%d, 2" % (sT1, sT0)); A("s_lshl_b32 s%d, s%d, 1" % (sT1, sT1)); A("s_bfe_u32 s%d, s%d, 0x30002" % (sT2, sR)); A("s_add_u32 s%d, s%d, s%d" % (sT1, sT1, sT2))
        A("s_and_b32 s%d, s%d, 7" % (sT1, sT1)); A("s_lshl_b32 s%d, s%d, 3" % (sT0, sT0)); A("s_add_u32 s%d, s%d, s%d" % (sT0, sT0, sT1)); A("s_lshl_b32 s%d, s%d, 1" % (sT0, sT0))
        A("s_and_b32 s%d, s%d, 1" % (sT1, sR)); A("s_add_u32 s%d, s%d, s%d" % (sRQ, sT0, sT1))
    A("v_lshlrev_b32 v%d, 4, v0" % vL16); A("v_lshrrev_b32 v%d, 4, v0" % vG4); A("v_bfe_u32 v%d, v0, 2, 2" % vC4)
    A("v_and_b32 v%d, 3, v0" % vR4); A("v_and_b32 v%d, 15, v0" % vN16); A("v_mov_b32 v%d, 0x%x" % (vHI, HI)); A("v_mov_b32 v%d, 1" % vONE)
    A("s_mov_b32 s%d, 0x05040100" % sSELLO); A("s_mov_b32 s%d, 0x07060302" % sSELHI); A("s_mov_b32 s%d, 0xffff0000" % sMASK)
    A("s_mov_b32 s%d, 0x%x" % (sSCALE, f2u(128 ** -0.5))); A("s_mov_b32 s%d, 0x%x" % (sL2E, f2u(1.4426950408889634)))
    c0 = -2.0 * 0.7978845608028654 * 1.4426950408889634
    A("s_mov_b32 s%d, 0x%x" % (sC0, f2u(c0))); A("s_mov_b32 s%d, 0x%x" % (sC1, f2u(c0 * 0.044715)))
    A("s_lshr_b32 s%d, s%d, 5" % (sT0, sR)); A("s_lshl_b32 s%d, s%d, 15" % (sT0, sT0))
    A("s_and_b32 s%d, s%d, 31" % (sT1, sR)); A("s_lshl_b32 s%d, s%d, 8" % (sT1, sT1)); A("s_add_u32 s%d, s%d, s%d" % (sT0, sT0, sT1))
    A("s_add_u32 s%d, s%d, 0x%x" % (sOPOFF, sT0, WS_OP))
    A("s_and_b32 s%d, s%d, 7" % (sT0, sR)); A("s_lshl_b32 s%d, s%d, %d" % (sT0, sT0, 13 + spad))
    A("s_lshr_b32 s%d, s%d, 3" % (sT1, sR)); A("s_lshl_b32 s%d, s%d, %d" % (sT1, sT1, 6 + spad)); A("s_add_u32 s%d, s%d, s%d" % (sT0, sT0, sT1))
    A("s_add_u32 s%d, s%d, 0x%x" % (sSPOFF, sT0, WS_SP))
    A("s_lshr_b32 s%d, s%d, 2" % (sT0, sR)); A("s_lshl_b32 s%d, s%d, 7" % (sT0, sT0)); A("s_add_u32 s%d, s%d, 0x%x" % (sSTOFF, sT0, WS_ST))
    A("s_cmp_eq_u32 s%d, 4" % sWAVE); A("s_cbranch_scc1 L_loader")
    A("s_cmp_eq_u32 s%d, 5" % sWAVE); A("s_cbranch_scc1 L_comm")
    A("s_cmp_gt_u32 s%d, 5" % sWAVE); A("s_cbranch_scc1 L_mlp")

    vQ, vS, vTMP, vK = 32, 48, 112, 128
    vKA, vVA = 17, 17
    vM, vLs, vMO, vF, vOWA = 25, 26, 27, 28, 29
    vX = vS
    A("v_lshlrev_b32 v%d, 5, v0" % vT)
    A("v_lshrrev_b32 v%d, 1, v0" % (vT + 1)); A("v_lshlrev_b32 v%d, 13, v%d" % (vT + 1, vT + 1))
    A("v_and_b32 v%d, 1, v0" % (vT + 2)); A("v_lshl_add_u32 v%d, v%d, 4, v%d" % (vT + 1, vT + 2, vT + 1))
    A("s_lshl_b32 s%d, s%d, 11" % (sT2, sWAVE))
    A("s_lshl_b32 s%d, s%d, 20" % (sT0, sWAVE)); A("s_lshl_b32 s%d, s%d, 5" % (sT1, sRQ)); A("s_add_u32 s%d, s%d, s%d" % (sT0, sT0, sT1))
    A("s_lshl_b32 s%d, s%d, 13" % (sT1, sWAVE)); A("s_add_u32 s%d, s%d, %d" % (sT1, sT1, 12 * 8192))
    A("s_waitcnt lgkmcnt(0)")
    if ldst == 2: stamp(12)
    A("buffer_load_dwordx4 %s, v%d, %s, s%d offen" % (vr(vX, 4), vT, srd("X"), sT2))
    A("buffer_load_dwordx4 %s, v%d, %s, s%d offen offset:16" % (vr(vX + 4, 4), vT, srd("X"), sT2))
    nq0 = wqsplit if wqsplit else 4
    for a in range(nq0):
        A("s_add_u32 m0, s%d, %d" % (sT1, a * 1024))
        if 'q' in abl: A("buffer_load_dwordx4 v%d, %s, 0 offen lds" % (vL16, srd("X")))
        else: A("buffer_load_dwordx4 v%d, %s, s%d offen %s lds" % (vT + 1, srd("WQ"), sT0, polq))
        if a < 3: A("s_add_u32 s%d, s%d, 0x40000" % (sT0, sT0))
    if nq0 < 4: A("v_mov_b32 v31, v%d" % (vT + 1)); A("s_mov_b32 s12, s%d" % sT0)
    A("s_barrier")
    A("v_lshrrev_b32 v%d, 5, v0" % (vT + 3)); A("s_lshl_b32 s%d, s%d, 1" % (sT0, sWAVE)); A("v_add_u32 v%d, s%d, v%d" % (vT + 3, sT0, vT + 3))
    A("v_mul_u32_u24 v%d, %d, v%d" % (vT + 3, XN_STRIDE, vT + 3)); A("v_and_b32 v%d, 31, v0" % (vT + 4)); A("v_lshl_add_u32 v%d, v%d, 5, v%d" % (vT + 3, vT + 4, vT + 3))
    A("v_add_u32 v%d, v%d, v%d" % (vT + 3, vHI, vT + 3))
    A("v_and_b32 v%d, 7, v0" % (vT + 4)); A("v_mul_u32_u24 v%d, %d, v%d" % (vT + 4, XN_STRIDE, vT + 4)); A("v_lshl_add_u32 v%d, v%d, 4, v%d" % (vT + 4, vG4, vT + 4))
    A("s_lshl_b32 s%d, s%d, 8" % (sT0, sWAVE)); A("s_add_u32 s%d, s%d, %d" % (sT0, sT0, HI)); A("v_add_u32 v%d, s%d, v%d" % (vT + 4, sT0, vT + 4))
    A("v_lshlrev_b32 v%d, 8, v%d" % (vT + 5, vG4)); A("v_lshl_add_u32 v%d, v%d, 3, v%d" % (vT + 5, vN16, vT + 5)); A("v_add_u32 v%d, s%d, v%d" % (vT + 5, sT1, vT + 5))
    A("s_lshl_b32 s%d, s%d, 10" % (sT0, sWAVE)); A("s_add_u32 s%d, s%d, %d" % (sT0, sT0, HI)); A("v_add_u32 v%d, s%d, v%d" % (vT + 6, sT0, vL16))
    A("s_lshl_b32 s%d, s%d, 13" % (sT0, sWAVE)); A("v_lshlrev_b32 v%d, 8, v%d" % (vT, vN16)); A("v_add_u32 v%d, s%d, v%d" % (vT, sT0, vT))
    for m in range(4):
        A("v_add_u32 v%d, %d, v%d" % (vT + 1, 4 * m, vG4)); A("v_xor_b32 v%d, v%d, v%d" % (vT + 1, vT + 1, vN16))
        A("v_lshl_add_u32 v%d, v%d, 4, v%d" % (vKA + m, vT + 1, vT)); A("v_add_u32 v%d, 0x10000, v%d" % (vKA + 4 + m, vKA + m))
    A("s_lshl_b32 s%d, s%d, 2" % (sT0, sWAVE)); A("s_add_u32 s%d, s%d, %d" % (sT0, sT0, HI)); A("v_mov_b32 v%d, s%d" % (30, sT0))
    A("s_mov_b32 s%d, 0" % sFULL)
    A("s_waitcnt vmcnt(%d)" % nq0)
    for a in range(nq0, 4):
        A("s_add_u32 m0, s%d, %d" % (sT1, a * 1024))
        A("buffer_load_dwordx4 v31, %s, s12 offen %s lds" % (srd("WQ"), polq))
        if a < 3: A("s_add_u32 s12, s12, 0x40000")
    stamp(1)
    layernorm(vX, 8, vX + 8, vX + 24, vX + 40, 2)
    A("ds_write_b128 v%d, %s offset:%d" % (vT + 3, vr(vX, 4), L_XN)); A("ds_write_b128 v%d, %s offset:%d" % (vT + 3, vr(vX + 4, 4), L_XN + 16))
    lds_add(vHI, F_XN)
    A("s_waitcnt vmcnt(0)")
    for m in range(4):
        A("ds_read_b64_tr_b16 %s, v%d offset:%d" % (vr(vK + 4 * m, 2), vT + 5, m * 1024))
        A("ds_read_b64_tr_b16 %s, v%d offset:%d" % (vr(vK + 4 * m + 2, 2), vT + 5, m * 1024 + 128))
    lds_wait(F_XN, 4)
    for m in range(4): A("ds_read_b128 %s, v%d offset:%d" % (vr(vK + 16 + 4 * m, 4), vT + 4, L_XN + m * 64))
    for m in range(4):
        A("s_waitcnt lgkmcnt(%d)" % (3 - m))
        A("v_mfma_f32_16x16x32_bf16 %s, %s, %s, %s" % (vr(vTMP, 4), vr(vK + 4 * m, 4), vr(vK + 16 + 4 * m, 4), "0" if m == 0 else vr(vTMP, 4)))
    A("ds_write_b128 v%d, %s offset:%d" % (vT + 6, vr(vTMP, 4), L_QP))
    lds_add(vHI, F_QP)
    A("s_mov_b64 exec, 1"); A("ds_add_u32 v30, v%d offset:%d" % (vONE, F_FREED)); A("s_mov_b64 exec, -1")
    stamp(2)
    def wait_block(n4):
        A("s_add_u32 s%d, s%d, %d" % (sT0, sWAVE, 4 * n4 + 1))
        lds_wait(F_FULL, "s%d" % sT0, keep=sFULL)
    def read_k(j):
        base = vK + 32 * (j % 4)
        for t in range(2):
            for m in range(4):
                A("ds_read_b128 %s, v%d offset:%d" % (vr(base + 16 * t + 4 * m, 4), vKA + m + (4 if (j & 2) else 0), (j & 1) * 32768 + t * 4096))
    def qk_block(j):
        base = vK + 32 * (j % 4)
        for m in range(4):
            for t in range(2):
                acc = vr(vS + 8 * j + 4 * t, 4)
                A("v_mfma_f32_16x16x32_bf16 %s, %s, %s, %s" % (acc, vr(base + 16 * t + 4 * m, 4), vr(vQ + 4 * m, 4), "0" if m == 0 else acc))
    def round_block(j):
        for p in range(4):
            a, b, t = vS + 8 * j + 2 * p, vS + 8 * j + 2 * p + 1, vT + (p & 1)
            if mimic:
                A("v_cvt_pk_bf16_f32 v%d, v%d, v%d" % (t, a, b)); unpack(a, b, t)
            A("v_mul_f32 v%d, s%d, v%d" % (a, sSCALE, a)); A("v_mul_f32 v%d, s%d, v%d" % (b, sSCALE, b))
            if mimic:
                A("v_cvt_pk_bf16_f32 v%d, v%d, v%d" % (t, a, b)); unpack(a, b, t)
            if j == 0 and p == 0: A("v_max_f32 v%d, v%d, v%d" % (vM, a, b))
            else: A("v_max3_f32 v%d, v%d, v%d, v%d" % (vM, a, b, vM))
    for j in range(4):
        wait_block(j); read_k(j); lds_add(30, F_FREED)
    stamp(3)
    lds_wait(F_QR, 1)
    stamp(4)
    A("v_lshlrev_b32 v%d, 8, v%d" % (vT, vC4)); A("v_lshl_add_u32 v%d, v%d, 4, v%d" % (vT, vG4, vT)); A("v_add_u32 v%d, v%d, v%d" % (vT, vHI, vT))
    for m in range(4): A("ds_read_b128 %s, v%d offset:%d" % (vr(vQ + 4 * m, 4), vT, L_QB + m * 64))
    A("s_waitcnt lgkmcnt(0)")
    for j in range(4):
        qk_block(j)
        wait_block(4 + j); A("s_nop 3"); read_k(4 + j)
        if j >= 1: round_block(j - 1)
        lds_add(30, F_FREED)
    for j in range(4, 8):
        qk_block(j); round_block(j - 1)
    A("v_lshl_add_u32 v%d, v%d, 2, v%d" % (vT + 2, vG4, vC4))
    A("v_and_b32 v%d, 7, v%d" % (vT + 3, vT + 2)); A("v_lshlrev_b32 v%d, 1, v%d" % (vT + 3, vT + 3))
    A("v_lshrrev_b32 v%d, 1, v%d" % (vT + 4, vR4)); A("v_xor_b32 v%d, v%d, v%d" % (vT + 3, vT + 3, vT + 4))
    A("v_lshlrev_b32 v%d, 8, v%d" % (vT + 2, vT + 2)); A("v_lshl_add_u32 v%d, v%d, 4, v%d" % (vT + 2, vT + 3, vT + 2))
    A("v_and_b32 v%d, 1, v0" % (vT + 4)); A("v_lshl_add_u32 v%d, v%d, 3, v%d" % (vT + 2, vT + 4, vT + 2))
    A("s_lshl_b32 s%d, s%d, 13" % (sT0, sWAVE)); A("v_add_u32 v%d, s%d, v%d" % (vVA, sT0, vT + 2))
    for d in range(1, 8): A("v_xor_b32 v%d, %d, v%d" % (vVA + d, 32 * d, vVA))
    round_block(7)
    swap_red(vM, vT, "v_max_f32", 32); swap_red(vM, vT, "v_max_f32", 16)
    A("v_mul_f32 v%d, s%d, v%d" % (vM, sL2E, vM))
    A("v_lshlrev_b32 v%d, 4, v%d" % (vT + 1, vG4)); A("ds_bpermute_b32 v%d, v%d, v%d" % (vMO, vT + 1, vM))
    vP = vK
    for j in range(32):
        a, b = vS + 2 * j, vS + 2 * j + 1
        A("v_fma_f32 v%d, v%d, s%d, -v%d" % (a, a, sL2E, vM)); A("v_fma_f32 v%d, v%d, s%d, -v%d" % (b, b, sL2E, vM))
        A("v_exp_f32 v%d, v%d" % (a, a)); A("v_exp_f32 v%d, v%d" % (b, b))
        if j >= 1:
            pa, pb = a - 2, b - 2
            if j == 1: A("v_add_f32 v%d, v%d, v%d" % (vLs, pa, pb))
            else: A("v_add_f32 v%d, v%d, v%d" % (vLs, vLs, pa)); A("v_add_f32 v%d, v%d, v%d" % (vLs, vLs, pb))
            A("v_cvt_pk_bf16_f32 v%d, v%d, v%d" % (vP + j - 1, pa, pb))
    A("v_add_f32 v%d, v%d, v%d" % (vLs, vLs, vS + 62)); A("v_add_f32 v%d, v%d, v%d" % (vLs, vLs, vS + 63))
    A("v_cvt_pk_bf16_f32 v%d, v%d, v%d" % (vP + 31, vS + 62, vS + 63))
    swap_red(vLs, vT, "v_add_f32", 32); swap_red(vLs, vT, "v_add_f32", 16)
    A("s_lshl_b32 s%d, s%d, 5" % (sT0, sWAVE)); A("s_add_u32 s%d, s%d, %d" % (sT0, sT0, HI)); A("v_lshlrev_b32 v%d, 3, v%d" % (vT, vC4)); A("v_add_u32 v%d, s%d, v%d" % (vT, sT0, vT))
    A("v_mov_b32 v%d, v%d" % (vT + 2, vM)); A("v_mov_b32 v%d, v%d" % (vT + 3, vLs))
    A("s_mov_b64 exec, 0x1111"); A("ds_write_b64 v%d, %s offset:%d" % (vT, vr(vT + 2, 2), L_ST)); A("s_mov_b64 exec, -1")
    lds_add(vHI, F_ST)
    stamp(5)
    A("s_lshl_b32 s%d, s%d, 11" % (sT0, sWAVE)); A("s_add_u32 s%d, s%d, %d" % (sT0, sT0, HI + L_OW))
    A("v_lshlrev_b32 v%d, 9, v%d" % (vOWA, vG4)); A("v_lshl_add_u32 v%d, v%d, 2, v%d" % (vOWA, vN16, vOWA)); A("v_add_u32 v%d, s%d, v%d" % (vOWA, sT0, vOWA))
    vVB = vK + 32
    def read_v(j):
        base = vVB + 32 * (j & 1)
        for d in range(8):
            for t in range(2):
                A("ds_read_b64_tr_b16 %s, v%d offset:%d" % (vr(base + 4 * d + 2 * t, 2), vVA + d, (j & 1) * 32768 + t * 4096))
    def pv(j, d):
        base = vVB + 32 * (j & 1)
        acc = vr(vS + 4 * d, 4)
        A("v_mfma_f32_16x16x32_bf16 %s, %s, %s, %s" % (acc, vr(vP + 4 * j, 4), vr(base + 4 * d, 4), "0" if j == 0 else acc))
    vS2, vF2 = vS + 32, 31
    def factor(dst, m):
        lds_wait(F_GR, 1)
        A("v_lshl_add_u32 v%d, v%d, 3, v%d" % (vT, vG4, vHI)); A("ds_read_b64 %s, v%d offset:%d" % (vr(vT + 2, 2), vT, L_GS)); A("s_waitcnt lgkmcnt(0)")
        A("v_sub_f32 v%d, v%d, v%d" % (dst, m, vT + 2)); A("v_exp_f32 v%d, v%d" % (dst, dst)); A("v_mul_f32 v%d, v%d, v%d" % (dst, dst, vT + 3))
    def wait_pos(j, out):
        ok = A.label("pok"); again = A.label("pagain"); chk = A.label("pchk")
        A("s_add_u32 s%d, s%d, %d" % (sT0, sWAVE, 32 + 4 * j + 1))
        A("s_mov_b32 s%d, 0" % sSPIN)
        A("s_branch " + chk)
        A(again + ":")
        A("ds_read_b64 %s, v%d offset:%d" % (vr(vT + 2, 2), vHI, F_FULL)); A("s_waitcnt lgkmcnt(0)")
        A("v_readfirstlane_b32 s%d, v%d" % (sFULL, vT + 2)); A("v_readfirstlane_b32 s%d, v%d" % (sPLAN, vT + 3))
        A(chk + ":")
        A("s_cmp_ge_u32 s%d, s%d" % (sFULL, sT0)); A("s_cbranch_scc1 " + ok)
        A("s_sub_u32 s%d, s%d, 0x100" % (sT1, sPLAN)); A("s_cmp_le_u32 s%d, %d" % (sT1, j)); A("s_cbranch_scc1 " + out)
        A("s_add_u32 s%d, s%d, 1" % (sSPIN, sSPIN)); A("s_cmp_lt_u32 s%d, %d" % (sSPIN, lspin)); A("s_cbranch_scc1 " + again)
        A("s_branch " + out)
        A(ok + ":")
    if steal:
        lds_wait(F_AM, 1)
        A("v_lshrrev_b32 v%d, 2, v0" % vT); A("v_lshlrev_b32 v%d, 4, v%d" % (vT, vT))
        A("s_lshl_b32 s%d, s%d, 12" % (sT0, sR)); A("s_lshl_b32 s%d, s%d, 10" % (sT1, sWAVE)); A("s_add_u32 s%d, s%d, s%d" % (sT0, sT0, sT1)); A("s_add_u32 s%d, s%d, 0x%x" % (sT0, sT0, WS_PR))
        A("s_mov_b32 exec_lo, 0x11111111"); A("s_mov_b32 exec_hi, 0x11111111")
        for u in range(3): A("buffer_store_dwordx4 %s, v%d, %s, s%d offen offset:%d sc1" % (vr(vP + 4 * (5 + u), 4), vT, srd("WS"), sT0, 256 * u))
        A("s_mov_b64 exec, 0x1111")
        A("buffer_store_dword v%d, v0, %s, s%d offen offset:768 sc1" % (vM, srd("WS"), sT0))
        A("s_mov_b64 exec, -1")
        A("s_mov_b32 s%d, 0" % sPLAN)
    for j in range(11 if steal else 8):
        if j == 7:
            factor(vF, vMO)
            stamp(6)
        if j < NOWN: wait_block(8 + j)
        else: wait_pos(j, "L_vout%d" % j)
        if j == 7: stamp(7)
        if j >= 8:
            if j == 8:
                A("v_lshrrev_b32 v%d, 2, v0" % (vT + 4)); A("v_lshlrev_b32 v%d, 4, v%d" % (vT + 4, vT + 4))
                A("s_lshl_b32 s%d, s%d, 10" % (sT1, sWAVE)); A("s_add_u32 s%d, s%d, %d" % (sT1, sT1, HI + L_PP)); A("v_add_u32 v%d, s%d, v%d" % (vT + 4, sT1, vT + 4))
                A("v_lshl_add_u32 v%d, v%d, 2, s%d" % (vT + 5, vG4, sT1))
                for u in range(3): A("ds_read_b128 %s, v%d offset:%d" % (vr(vP + 4 * u, 4), vT + 4, 256 * (2 - u)))
                A("ds_read_b32 v%d, v%d offset:768" % (vF2, vT + 5)); A("s_waitcnt lgkmcnt(0)")
                factor(vF2, vF2)
        read_v(j)
        if j % 4 == 1:
            for d in range(8): A("v_add_u32 v%d, 0x10000, v%d" % (vVA + d, vVA + d))
        if j % 4 == 3 and (steal or j < 7):
            for d in range(8): A("v_subrev_u32 v%d, 0x10000, v%d" % (vVA + d, vVA + d))
        for d in range(8):
            A("s_waitcnt lgkmcnt(%d)" % (14 - 2 * d))
            if d == 7 and j < (7 if steal else 4):
                A("s_mov_b64 exec, 1"); A("ds_add_u32 v30, v%d offset:%d" % (vONE, F_FREED)); A("s_mov_b64 exec, -1")
            if j < 8: pv(j, d)
            else:
                acc = vr(vS2 + 4 * d, 4)
                A("v_mfma_f32_16x16x32_bf16 %s, %s, %s, %s" % (acc, vr(vP + 4 * (j - 8), 4), vr(vVB + 32 * (j & 1) + 4 * d, 4), "0" if j == 8 else acc))
    if steal:
        A("L_vout9:"); A("L_vout10:")
        A("s_nop 7")
        for d in range(8): A("v_mul_f32 v%d, v%d, v%d" % (vTMP + d, vF, vS + 4 * d))
        for d in range(8): A("v_fmac_f32 v%d, v%d, v%d" % (vTMP + d, vF2, vS2 + 4 * d))
        A("s_branch L_vsum")
        A("L_vout5:"); A("L_vout6:")
        factor(vF, vMO)
        A("L_vout7:"); A("L_vout8:")
        A("s_nop 7")
    for d in range(8): A("v_mul_f32 v%d, v%d, v%d" % (vTMP + d, vF, vS + 4 * d))
    if steal: A("L_vsum:")
    for d in range(0, 8, 2): A("ds_write2_b32 v%d, v%d, v%d offset0:%d offset1:%d" % (vOWA, vTMP + d, vTMP + d + 1, 16 * d, 16 * d + 16))
    vWOA, vOIR, vWO = 17, 18, vK
    A("v_lshlrev_b32 v%d, 7, v%d" % (vWOA, vC4)); A("v_lshl_add_u32 v%d, v%d, 10, v%d" % (vWOA, vG4, vWOA)); A("v_lshl_add_u32 v%d, v%d, 3, v%d" % (vWOA, vR4, vWOA))
    A("s_lshl_b32 s%d, s%d, 5" % (sT0, sWAVE)); A("s_add_u32 s%d, s%d, %d" % (sT0, sT0, HI + L_WO)); A("v_add_u32 v%d, s%d, v%d" % (vWOA, sT0, vWOA))
    A("s_waitcnt lgkmcnt(0)")
    A("s_barrier")
    stamp(8)
    def wo_reads():
        if wolate: lds_wait(F_WO, 1, sl=0)
        for m in range(4):
            A("ds_read_b64_tr_b16 %s, v%d offset:%d" % (vr(vWO + 4 * m, 2), vWOA, m * 4096))
            A("ds_read_b64_tr_b16 %s, v%d offset:%d" % (vr(vWO + 4 * m + 2, 2), vWOA, m * 4096 + 512))
    def oir_addr():
        A("v_lshrrev_b32 v%d, 1, v%d" % (vT, vN16)); A("v_lshlrev_b32 v%d, 10, v%d" % (vT, vT)); A("v_and_b32 v%d, 1, v0" % (vT + 1)); A("v_lshl_add_u32 v%d, v%d, 8, v%d" % (vT, vT + 1, vT))
        for m in range(4):
            A("v_add_u32 v%d, %d, v%d" % (vT + 1, 4 * m, vG4)); A("v_xor_b32 v%d, v%d, v%d" % (vT + 1, vT + 1, vN16))
            A("v_lshl_add_u32 v%d, v%d, 4, v%d" % (vOIR + m, vT + 1, vT))
        A("v_lshrrev_b32 v%d, 1, v%d" % (22, vN16)); A("v_lshlrev_b32 v22, %d, v22" % (16 + spad)); A("v_lshl_add_u32 v22, v%d, 4, v22" % vG4)
    A("s_cmp_gt_u32 s%d, 1" % sWAVE); A("s_cbranch_scc1 L_gather23")
    A("s_lshl_b32 s%d, s%d, 10" % (sT0, sWAVE)); A("s_add_u32 s%d, s%d, %d" % (sT0, sT0, HI + L_OW)); A("v_add_u32 v%d, s%d, v%d" % (vT, sT0, vL16))
    for w in range(4): A("ds_read_b128 %s, v%d offset:%d" % (vr(vS + 4 * w, 4), vT, w * 2048))
    A("v_lshrrev_b32 v%d, 5, v0" % (vT + 1)); A("v_lshlrev_b32 v%d, 13, v%d" % (vT + 1, vT + 1)); A("v_and_b32 v%d, 31, v0" % (vT + 2)); A("v_lshl_add_u32 v%d, v%d, 3, v%d" % (vT + 1, vT + 2, vT + 1))
    A("s_lshl_b32 s%d, s%d, 14" % (sT0, sWAVE)); A("s_add_u32 s%d, s%d, s%d" % (sT0, sT0, sOPOFF))
    A("s_waitcnt lgkmcnt(2)")
    for i in range(4): A("v_add_f32 v%d, v%d, v%d" % (vS + i, vS + i, vS + 4 + i))
    A("s_waitcnt lgkmcnt(0)")
    for i in range(4): A("v_add_f32 v%d, v%d, v%d" % (vS + 8 + i, vS + 8 + i, vS + 12 + i))
    for i in range(4): A("v_add_f32 v%d, v%d, v%d" % (vS + i, vS + i, vS + 8 + i))
    A("v_cvt_pk_bf16_f32 v%d, v%d, v%d" % (vTMP, vS, vS + 1)); A("v_cvt_pk_bf16_f32 v%d, v%d, v%d" % (vTMP + 1, vS + 2, vS + 3))
    A("buffer_store_dwordx2 %s, v%d, %s, s%d offen %s" % (vr(vTMP, 2), vT + 1, srd("WS"), sT0, ts))
    stamp(11)
    wo_reads(); oir_addr()
    A("s_branch L_barE_c")
    def gather(idx_sgpr, extra):
        vGa = 40
        A("s_lshr_b32 s%d, s%d, 3" % (sT1, sR)); A("s_lshl_b32 s%d, s%d, 13" % (sT1, sT1)); A("s_lshl_b32 s%d, s%d, 11" % (sT0, idx_sgpr))
        A("s_add_u32 s%d, s%d, s%d" % (sT1, sT1, sT0)); A("s_add_u32 s%d, s%d, 0x%x" % (sT1, sT1, WS_OP))
        lds_ = [(lambda: A("buffer_load_dwordx4 %s, v%d, %s, s%d offen %s" % (vr(vGa, 4), vL16, srd("WS"), sT1, tl)), list(range(vGa, vGa + 4))),
                (lambda: A("buffer_load_dwordx4 %s, v%d, %s, s%d offen offset:1024 %s" % (vr(vGa + 4, 4), vL16, srd("WS"), sT1, tl)), list(range(vGa + 4, vGa + 8)))]
        if td1: A("s_sleep %d" % td1)
        if at1:
            A("v_lshlrev_b32 v%d, 3, v0" % (vT + 7))
            apoll(vGa, vT + 7, sT1, 0, 0, first="only")
            extra()
            A("v_lshrrev_b32 v%d, 5, v0" % (vT + 2)); A("s_lshl_b32 s%d, s%d, 2" % (sT2, idx_sgpr)); A("v_add_u32 v%d, s%d, v%d" % (vT + 3, sT2, vT + 2))
            A("v_bfe_u32 v%d, v0, 1, 4" % (vT + 4)); A("v_xor_b32 v%d, v%d, v%d" % (vT + 3, vT + 3, vT + 4))
            A("v_lshlrev_b32 v%d, 8, v%d" % (vT + 2, vT + 2)); A("v_add_u32 v%d, s%d, v%d" % (vT + 2, sT0, vT + 2))
            A("v_and_b32 v%d, 1, v0" % (vT + 4)); A("v_lshl_add_u32 v%d, v%d, 3, v%d" % (vT + 2, vT + 4, vT + 2))
            A("v_lshl_add_u32 v%d, v%d, 4, v%d" % (vT + 5, vT + 3, vT + 2)); A("v_xor_b32 v%d, 32, v%d" % (vT + 6, vT + 5))
            apoll(vGa, vT + 7, sT1, 24, tsleep, first=False)
            stamp(11)
            for k in range(4): A("ds_write_b64 v%d, %s offset:%d" % (vT + 5 + (k >> 1), vr(vGa + 2 * k, 2), 512 * k))
            return
        for i_, _ in lds_: i_()
        A("v_and_b32 v%d, 1, v%d" % (vT + 2, vG4)); A("s_lshl_b32 s%d, s%d, 2" % (sT2, idx_sgpr)); A("v_add_u32 v%d, s%d, v%d" % (vT + 2, sT2, vT + 2))
        A("v_xor_b32 v%d, v%d, v%d" % (vT + 3, vT + 2, vN16)); A("v_xor_b32 v%d, 2, v%d" % (vT + 4, vT + 3))
        A("v_lshlrev_b32 v%d, 8, v%d" % (vT + 2, vG4)); A("v_add_u32 v%d, s%d, v%d" % (vT + 2, sT0, vT + 2))
        A("v_lshl_add_u32 v%d, v%d, 4, v%d" % (vT + 5, vT + 3, vT + 2)); A("v_lshl_add_u32 v%d, v%d, 4, v%d" % (vT + 6, vT + 4, vT + 2))
        extra()
        gpoll(lds_, first=False, sleep=tsleep, P=P1)
        stamp(11)
        A("ds_write_b128 v%d, %s" % (vT + 5, vr(vGa, 4))); A("ds_write_b128 v%d, %s offset:1024" % (vT + 6, vr(vGa + 4, 4)))
    A("L_gather23:")
    A("s_sub_u32 s%d, s%d, 2" % (sMU, sWAVE))
    gather(sMU, lambda: (wo_reads(), oir_addr()))
    A("L_barE_c:")
    A("s_waitcnt lgkmcnt(0)")
    A("s_barrier")
    stamp(9)
    for u in range(2):
        for m in range(4): A("ds_read_b128 %s, v%d offset:%d" % (vr(vS + 16 * u + 4 * m, 4), vOIR + m, u * 512))
    A("s_lshl_b32 s%d, s%d, %d" % (sT0, sWAVE, 11 + spad)); A("s_add_u32 s%d, s%d, s%d" % (sT0, sT0, sSPOFF))
    for u in range(2):
        for m in range(4):
            A("s_waitcnt lgkmcnt(%d)" % (7 - 4 * u - m))
            acc = vr(vTMP + 4 * u, 4)
            A("v_mfma_f32_16x16x32_bf16 %s, %s, %s, %s" % (acc, vr(vWO + 4 * m, 4), vr(vS + 16 * u + 4 * m, 4), "0" if m == 0 else acc))
    for i in range(4): A("v_add_f32 v%d, v%d, v%d" % (vTMP + i, vTMP + i, vTMP + 4 + i))
    for i in range(4): dpp("v_add_f32", vTMP + i, "quad_perm:[1,0,3,2]")
    A("s_mov_b32 exec_lo, 0x55555555"); A("s_mov_b32 exec_hi, 0x55555555")
    stamp(10)
    A("buffer_store_dwordx4 %s, v22, %s, s%d offen %s" % (vr(vTMP, 4), srd("WS"), sT0, ts))
    A("s_mov_b64 exec, -1")
    A("s_branch L_done")

    A("L_loader:")
    if ldprio: A("s_setprio %d" % ldprio)
    vO = 17
    A("v_lshlrev_b32 v%d, 8, v%d" % (vT, vG4))
    for i in range(4):
        A("v_add_u32 v%d, %d, v%d" % (vT + 1, 4 * i, vG4)); A("v_xor_b32 v%d, v%d, v%d" % (vT + 1, vT + 1, vN16)); A("v_lshl_add_u32 v%d, v%d, 4, v%d" % (vO + i, vT + 1, vT))
    for i in range(2):
        A("v_add_u32 v%d, %d, v%d" % (vT + 1, 4 * i, vG4)); A("v_lshlrev_b32 v%d, 1, v%d" % (vT + 1, vT + 1))
        A("v_xor_b32 v%d, v%d, v%d" % (vT + 1, vT + 1, vN16)); A("v_lshl_add_u32 v%d, v%d, 4, v%d" % (vO + 4 + i, vT + 1, vT))
    sG, sSLOT, sFR, sN = 12, 13, 88, 92
    A("s_bfe_u32 s%d, s%d, 0x30002" % (sBASE, sR)); A("s_lshl_b32 s%d, s%d, 23" % (sBASE, sBASE)); A("s_lshr_b32 s%d, s%d, 5" % (sT0, sR)); A("s_lshl_b32 s%d, s%d, 20" % (sT0, sT0))
    A("s_add_u32 s%d, s%d, s%d" % (sBASE, sBASE, sT0)); A("s_and_b32 s%d, s%d, 3" % (sT0, sR)); A("s_lshl_b32 s%d, s%d, 18" % (sT0, sT0)); A("s_add_u32 s%d, s%d, s%d" % (sBASE, sBASE, sT0))
    if rot:
        A("s_mov_b32 s94, s%d" % sBASE)
        A("s_mul_i32 s%d, s%d, %d" % (sT0, sR, rot)); A("s_lshr_b32 s%d, s%d, 5" % (sT1, sR)); A("s_add_u32 s%d, s%d, s%d" % (sT0, sT0, sT1))
        A("s_and_b32 s%d, s%d, 31" % (sT0, sT0)); A("s_lshl_b32 s%d, s%d, 13" % (sT0, sT0)); A("s_add_u32 s%d, s%d, s%d" % (sBASE, sBASE, sT0))
    if Fhi:
        A("s_and_b32 s%d, s2, 7" % sT0); A("s_lshr_b32 s%d, %d, s%d" % (sT0, himask, sT0)); A("s_and_b32 s%d, s%d, 1" % (sT0, sT0)); A("s_cselect_b32 s95, %d, %d" % (Fhi, F))
    A("s_mov_b32 s94, 0"); A("s_mov_b32 s93, 0"); A("s_mov_b32 s%d, s%d" % (sOFF, sBASE)); A("s_mov_b32 s%d, 0" % sG); A("s_mov_b32 s%d, 0" % sSLOT); A("s_mov_b32 s%d, 0" % sN)
    A("s_waitcnt lgkmcnt(0)")
    def publish_full(sgpr):
        A("v_mov_b32 v%d, s%d" % (vT, sgpr)); A("s_mov_b64 exec, 1"); A("ds_max_u32 v%d, v%d offset:%d" % (vHI, vT, F_FULL)); A("s_mov_b64 exec, -1")
    def dma_block(isk):
        Dm = D if isk else DV
        for half in range(2):
            A("s_mov_b32 m0, s%d" % sSLOT)
            if Dm: A("s_waitcnt vmcnt(%d)" % Dm)
            for i in range(4):
                A("buffer_load_dwordx4 v%d, %s, s%d offen offset:%d %s lds" % (vO + i if isk else vO + 4 + (i & 1), srd("K" if isk else "V"), sOFF, i * 1024, pol))
            A("s_add_u32 s%d, s%d, 4096" % (sOFF, sOFF)); A("s_add_u32 s%d, s%d, 4096" % (sSLOT, sSLOT))
            if Dm and (4 * half - Dm) % 8 < 4:
                A("s_add_i32 s%d, s%d, %d" % (sT0, sN, (4 * half - Dm) // 8)); A("s_max_i32 s%d, s%d, 0" % (sT0, sT0)); publish_full(sT0)
        if rot:
            A("s_and_b32 s%d, s%d, 0x3ffff" % (sOFF, sOFF)); A("s_or_b32 s%d, s%d, s94" % (sOFF, sOFF))
        A("s_and_b32 s%d, s%d, 0x1ffff" % (sSLOT, sSLOT)); A("s_add_u32 s%d, s%d, 1" % (sN, sN))
    if ldst == 2: stamp(1)
    for _ in range(pre): dma_block(True)
    A("s_barrier")
    if ldst == 2: stamp(2)
    for _ in range(4 - pre): dma_block(True)
    A("s_mov_b32 s%d, 1" % sG)
    if ldst == 2: stamp(3)
    def read_freed():
        A("ds_read_b128 %s, v%d offset:%d" % (vr(vT + 4, 4), vHI, F_FREED)); A("s_waitcnt lgkmcnt(0)")
        for c in range(4): A("v_readfirstlane_b32 s%d, v%d" % (sFR + c, vT + 4 + c))
    for isk, last in ((True, 8), (False, 19 if steal else 16)):
        loop = "L_ld_k" if isk else "L_ld_v"
        if not isk: A("s_mov_b32 s%d, s%d" % (sOFF, sBASE))
        A(loop + ":")
        for g_, reg in ((p_a, 16), (p_b, 18)):
            if g_ > 0 and g_ < 16 and (g_ < 8) == isk:
                sk = A.label("st"); A("s_cmp_lg_u32 s%d, %d" % (sG, g_)); A("s_cbranch_scc1 " + sk); A("s_memrealtime s[%d:%d]" % (reg, reg + 1)); A(sk + ":")
        if ldst == 1:
            for k, g in enumerate((2, 3, 4, 5, 6, 7) if isk else (8, 10, 12, 14)):
                sk = A.label("st"); A("s_cmp_lg_u32 s%d, %d" % (sG, g)); A("s_cbranch_scc1 " + sk); stamp(k + 1 if isk else k + 7); A(sk + ":")
        if steal and not isk:
            go = A.label("pgo"); again = A.label("pagain")
            A("s_cmp_lt_u32 s%d, %d" % (sG, 8 + NOWN)); A("s_cbranch_scc1 " + go)
            A("s_mov_b32 s%d, 0" % sSPIN); A("s_sub_u32 s%d, s%d, 8" % (sT1, sG))
            if ldst: A("s_memrealtime s[14:15]")
            A(again + ":")
            A("ds_read_b32 v%d, v%d offset:%d" % (vPOLL, vHI, F_PLAN)); A("s_waitcnt lgkmcnt(0)"); A("v_readfirstlane_b32 s%d, v%d" % (sT0, vPOLL))
            A("s_and_b32 s%d, s%d, 0xff" % (sT2, sT0)); A("s_cmp_gt_u32 s%d, s%d" % (sT2, sT1)); A("s_cbranch_scc1 L_granted")
            A("s_cmp_ge_u32 s%d, 0x100" % sT0); A("s_cbranch_scc1 L_ld_end")
            for k in range(F - 1, -1, -1):
                A("s_cmp_eq_u32 s%d, %d" % (sSPIN, F - 1 - k)); nx = A.label("nx"); A("s_cbranch_scc0 " + nx)
                A("s_sub_u32 s%d, s%d, %d" % (sT0, sN, k)); A("s_waitcnt vmcnt(%d)" % (8 * k)); publish_full(sT0); A(nx + ":")
            if ldst: A("s_add_u32 s93, s93, 1")
            A("s_add_u32 s%d, s%d, 1" % (sSPIN, sSPIN)); A("s_cmp_lt_u32 s%d, %d" % (sSPIN, lspin)); A("s_cbranch_scc1 " + again)
            A("s_branch L_ld_end")
            A("L_granted:")
            if ldst:
                A("s_memrealtime s[36:37]"); A("s_waitcnt lgkmcnt(0)"); A("s_sub_u32 s36, s36, s14"); A("s_add_u32 s94, s94, s36")
            A("s_cmp_lt_u32 s%d, 16" % sG); A("s_cbranch_scc1 " + go)
            A("s_sub_u32 s%d, 23, s%d" % (sT0, sG)); A("s_lshl_b32 s%d, s%d, 15" % (sT0, sT0)); A("s_xor_b32 s%d, s%d, 0x80000" % (sOFF, sBASE)); A("s_add_u32 s%d, s%d, s%d" % (sOFF, sOFF, sT0))
            A(go + ":")
        read_freed()
        A("s_sub_i32 s%d, s%d, 2" % (sT1, sG))
        if Fhi and hiend < 16:
            A("s_cmp_ge_u32 s%d, %d" % (sG, hiend)); A("s_cselect_b32 s95, %d, s95" % F)
        for c in range(4):
            go = A.label("go"); sl = A.label("slow")
            A("s_cmp_ge_i32 s%d, s%d" % (sFR + c, sT1)); A("s_cbranch_scc1 " + go)
            A("s_waitcnt vmcnt(0)"); publish_full(sN)
            if ldst: A("s_add_u32 s93, s93, 100")
            A("s_mov_b32 s%d, 0" % sSPIN)
            A(sl + ":")
            read_freed()
            A("s_cmp_ge_i32 s%d, s%d" % (sFR + c, sT1)); A("s_cbranch_scc1 " + go)
            A("s_add_u32 s%d, s%d, 1" % (sSPIN, sSPIN)); A("s_cmp_lt_u32 s%d, %d" % (sSPIN, lspin)); A("s_cbranch_scc1 " + sl)
            A(go + ":")
            dma_block(isk)
            if D: pass
            elif bal == 1:
                hi = A.label("hi")
                A("ds_read_b32 v%d, v%d offset:%d" % (vPOLL, vHI, F_MODE))
                A("s_sub_i32 s%d, s%d, %d" % (sT0, sN, F))
                A("s_waitcnt vmcnt(%d) lgkmcnt(0)" % (8 * F)); A("v_readfirstlane_b32 s%d, v%d" % (sT2, vPOLL))
                A("s_cmp_eq_u32 s%d, 0" % sT2); A("s_cbranch_scc1 " + hi)
                publish_full(sT0)
                if ldst: A("s_add_u32 s94, s94, 100")
                A("s_sub_i32 s%d, s%d, %d" % (sT0, sN, (Flo + 7) // 8 if Flo > 7 else Flo))
                A("s_waitcnt vmcnt(%d)" % (Flo if Flo > 7 else 8 * Flo)); A(hi + ":"); publish_full(sT0)
            elif Fhi:
                hi = A.label("hi")
                A("s_sub_i32 s%d, s%d, s95" % (sT0, sN)); A("s_max_i32 s%d, s%d, 0" % (sT0, sT0))
                A("s_waitcnt vmcnt(%d)" % (8 * Fhi)); A("s_cmp_eq_u32 s95, %d" % Fhi); A("s_cbranch_scc1 " + hi)
                A("s_waitcnt vmcnt(%d)" % (8 * F)); A(hi + ":"); publish_full(sT0)
            else:
                A("s_sub_i32 s%d, s%d, %d" % (sT0, sN, F))
                if F > 5: A("s_max_i32 s%d, s%d, 0" % (sT0, sT0))
                A("s_waitcnt vmcnt(%d)" % (8 * F)); publish_full(sT0)
        if stamps:
            pass
        A("s_add_u32 s%d, s%d, 1" % (sG, sG)); A("s_cmp_lt_u32 s%d, %d" % (sG, last)); A("s_cbranch_scc1 " + loop)
        if not ldst: stamp(1 if isk else 2)
    def wo_dma():
        A("v_lshrrev_b32 v%d, 3, v0" % (vT + 4)); A("v_lshlrev_b32 v%d, 10, v%d" % (vT + 4, vT + 4)); A("v_and_b32 v%d, 7, v0" % (vT + 5)); A("v_lshl_add_u32 v%d, v%d, 4, v%d" % (vT + 4, vT + 5, vT + 4))
        A("s_lshr_b32 s%d, s%d, 3" % (sT0, sR)); A("s_lshl_b32 s%d, s%d, 17" % (sT0, sT0)); A("s_and_b32 s%d, s%d, 7" % (sT1, sR)); A("s_lshl_b32 s%d, s%d, 7" % (sT1, sT1))
        A("s_add_u32 s%d, s%d, s%d" % (sT0, sT0, sT1))
        for a in range(16):
            A("s_mov_b32 m0, %d" % (HI + L_WO + a * 1024))
            A("buffer_load_dwordx4 v%d, %s, s%d offen %s lds" % (vT + 4, srd("WO"), sT0, polo))
            if a < 15: A("s_add_u32 s%d, s%d, 0x2000" % (sT0, sT0))
    if steal:
        A("L_ld_end:")
        A("s_mov_b64 exec, 1"); A("ds_write_b32 v%d, v%d offset:%d" % (vHI, vONE, F_LI)); A("s_mov_b64 exec, -1")
    if wolate == 1: wo_dma()
    for k in range((DV + 4 + 7) // 8 - 1 if D else max(F, Fhi) - 1, -1, -1):
        A("s_sub_u32 s%d, s%d, %d" % (sT0, sN, k)); A("s_waitcnt vmcnt(%d)" % (8 * k + (16 if wolate == 1 else 0))); publish_full(sT0)
    if wolate == 1:
        if ldst: stamp(11)
        A("s_waitcnt vmcnt(0)"); A("s_mov_b64 exec, 1"); A("ds_write_b32 v%d, v%d offset:%d" % (vHI, vONE, F_WO)); A("s_mov_b64 exec, -1")
    if ldst:
        if wolate == 1: stamp(12)
        else:
            stamp(11)
            A("s_waitcnt lgkmcnt(0)"); A("s_mul_i32 s%d, s%d, 25" % (sT0, sN)); A("s_add_u32 s40, s16, s%d" % sT0); A("s_addc_u32 s41, s17, 0")
            if steal: A("s_add_u32 s36, s16, s94"); A("s_addc_u32 s37, s17, 0")
            if bal: A("s_add_u32 s40, s16, s94"); A("s_addc_u32 s41, s17, 0")
    else: stamp(3)
    if p_b >= 0 and piv:
        if p_b == 16: A("s_memrealtime s[18:19]")
        A("s_waitcnt lgkmcnt(0)"); A("s_sub_u32 s18, s18, s16")
    elif p_b >= 0:
        if p_b == 16: A("s_memrealtime s[18:19]")
        A("s_waitcnt lgkmcnt(0)"); A("s_sub_u32 s18, s18, s16"); A("v_mov_b32 v8, s18"); A("s_mov_b64 exec, 1"); A("buffer_atomic_add v8, off, %s, 0 offset:4" % srd("DBG")); A("s_mov_b64 exec, -1")
    if pspan:
        A("s_memrealtime s[18:19]"); A("s_waitcnt lgkmcnt(0)")
        if pspan in (3, 4): A("s_mov_b32 s18, s16")
        if pm: A("s_and_b32 s6, s2, %d" % pm); A("s_cmp_eq_u32 s6, %d" % pval); A("s_cselect_b32 s18, s18, s16")
        A("s_not_b32 s16, s16"); A("v_mov_b32 v8, s18"); A("v_mov_b32 v9, s16"); A("s_mov_b64 exec, 1")
        A("buffer_atomic_%s v8, off, %s, 0 offset:4" % ("add" if pspan in (4, 5) else "umax", srd("DBG"))); A("buffer_atomic_umax v9, off, %s, 0 offset:8" % srd("DBG")); A("s_mov_b64 exec, -1")
    if pgrp:
        if not piv: A("s_memrealtime s[18:19]")
        if pgrp == 1: A("s_and_b32 s6, s2, 7")
        elif pgrp == 2: A("s_bfe_u32 s6, s%d, 0x30002" % sR)
        elif pgrp == 3: A("s_lshr_b32 s6, s%d, 5" % sR)
        else: A("s_and_b32 s6, s%d, 3" % sR); A("s_lshr_b32 s7, s2, 7"); A("s_lshl_b32 s7, s7, 2"); A("s_add_u32 s6, s6, s7")
        A("s_lshl_b32 s6, s6, 5")
        A("s_waitcnt lgkmcnt(0)"); A("v_mov_b32 v8, s18"); A("s_mov_b64 exec, 1"); A("buffer_atomic_%s v8, off, %s, s6 offset:4" % ("add" if pat >= 12 else "umax", srd("DBG"))); A("s_mov_b64 exec, -1")
    if probe:
        A("s_memrealtime s[20:21]"); A("s_waitcnt lgkmcnt(0)")
        if pstart: A("s_mov_b32 s20, s16")
        A("s_and_b32 s6, s2, 7"); A("s_lshr_b32 s6, %d, s6" % probe); A("s_and_b32 s6, s6, 1"); A("s_lshl_b32 s6, s6, 2"); A("s_add_u32 s6, s6, 4")
        A("s_waitcnt lgkmcnt(0)"); A("v_mov_b32 v8, s20"); A("s_mov_b64 exec, 1"); A("buffer_atomic_add v8, off, %s, s6" % srd("DBG")); A("s_mov_b64 exec, -1")
    A("s_waitcnt lgkmcnt(0)")
    A("s_branch L_done")

    def slot_addrs():
        A("v_lshlrev_b32 v28, 5, v0")
        A("s_and_b32 s%d, s%d, 3" % (sT0, sR)); A("s_lshl_b32 s%d, s%d, 3" % (sT0, sT0)); A("s_add_u32 s%d, s%d, s%d" % (sMU, sT0, sSTOFF))
    A("L_comm:")
    vZ = 20
    for i in range(4): A("v_mov_b32 v%d, 0" % (vZ + i))
    A("v_lshl_add_u32 v%d, v0, 2, v%d" % (vT, vHI))
    A("s_mov_b64 exec, 0xffff"); A("ds_write_b32 v%d, v%d offset:%d" % (vT, vZ, L_FLG)); A("s_mov_b64 exec, -1")
    slot_addrs()
    sEP = 4
    def epoch():
        A("s_waitcnt vmcnt(0)")
        A("v_readfirstlane_b32 s%d, v30" % sEP); A("v_readfirstlane_b32 s%d, v31" % (sEP + 1))
        A("s_add_u32 s%d, s%d, 0x%x" % (sEP, sEP, EP_STEP & 0xffffffff)); A("s_addc_u32 s%d, s%d, 0x%x" % (sEP + 1, sEP + 1, EP_STEP >> 32))
    A("s_waitcnt lgkmcnt(0)")
    A("buffer_load_dwordx2 v[30:31], off, %s, 0 offset:%d sc1" % (srd("WS"), WS_EP))
    A("s_barrier")
    A("v_add_u32 v%d, v%d, v%d" % (vT, vHI, vL16))
    A("v_and_b32 v29, 7, v0"); A("v_lshlrev_b32 v29, 14, v29"); A("v_lshl_add_u32 v29, v%d, 4, v29" % vG4)
    A("s_lshl_b32 s%d, s%d, 6" % (sT2, sRQ)); A("s_add_u32 s%d, s%d, 0x%x" % (sT2, sT2, WS_Q))
    A("s_bfe_u32 s%d, s%d, 0x30002" % (sT0, sR)); A("s_lshl_b32 s%d, s%d, 14" % (sT0, sT0)); A("s_lshr_b32 s%d, s%d, 5" % (sT1, sR)); A("s_lshl_b32 s%d, s%d, 11" % (sT1, sT1))
    A("s_add_u32 s%d, s%d, s%d" % (sT0, sT0, sT1)); A("s_add_u32 s%d, s%d, 0x%x" % (sT0, sT0, WS_Q))
    A("v_lshl_add_u32 v27, v0, 3, v%d" % vHI)
    epoch()
    A("v_mov_b32 v38, s%d" % sEP); A("v_mov_b32 v39, s%d" % (sEP + 1))
    stamp(1)
    lds_wait(F_QP, 4)
    for w in range(4): A("ds_read_b128 %s, v%d offset:%d" % (vr(40 + 4 * w, 4), vT, L_QP + w * 1024))
    A("s_waitcnt lgkmcnt(0)")
    for i in range(4): A("v_add_f32 v%d, v%d, v%d" % (40 + i, 40 + i, 44 + i)); A("v_add_f32 v%d, v%d, v%d" % (48 + i, 48 + i, 52 + i))
    for i in range(4): A("v_add_f32 v%d, v%d, v%d" % (40 + i, 40 + i, 48 + i))
    A("v_cvt_pk_bf16_f32 v36, v40, v41"); A("v_cvt_pk_bf16_f32 v37, v42, v43")
    A("s_mov_b32 exec_lo, 0x00ff00ff"); A("s_mov_b32 exec_hi, 0x00ff00ff")
    A("buffer_store_dwordx4 v[36:39], v29, %s, s%d offen sc1" % (srd("WS"), sT2))
    A("s_mov_b64 exec, -1")
    stamp(2)
    if qdelay: A("s_sleep %d" % qdelay)
    if qtrig: lds_wait(F_FULL, qtrig, sl=4)
    gpoll([(lambda: A("buffer_load_dwordx4 v[32:35], v%d, %s, s%d offen sc1" % (vL16, srd("WS"), sT0)), [32, 33, 34, 35]),
           (lambda: A("buffer_load_dwordx4 v[40:43], v%d, %s, s%d offen offset:1024 sc1" % (vL16, srd("WS"), sT0)), [40, 41, 42, 43])], sleep=qsleep, tag="s[%d:%d]" % (sEP, sEP + 1))
    A("ds_write_b64 v27, v[32:33] offset:%d" % L_QB); A("ds_write_b64 v27, v[40:41] offset:%d" % (L_QB + 512))
    lds_add(vHI, F_QR)
    stamp(4)
    def all_marked():
        A("v_lshlrev_b32 v%d, 5, v0" % (vT + 3))
        word_poll("buffer_load_dword v32, v%d, %s, 0 offen sc1" % (vT + 3, srd("DBG")), 32, "0xff", "v_cmp_gt_u32 vcc, 32, v%d", fsleep)
        stamp(3)
    all_marked()
    lds_add(vHI, F_AM)
    A("v_lshlrev_b32 v%d, 3, v%d" % (vT + 1, vN16)); A("v_add_u32 v%d, v%d, v%d" % (vT + 2, vHI, vT + 1))
    lds_wait(F_ST, 4)
    A("ds_read_b64 v[32:33], v%d offset:%d" % (vT + 2, L_ST)); A("s_waitcnt lgkmcnt(0)")
    def combine(modes):
        A("v_mov_b32 v34, v32")
        for m in modes: dpp("v_max_f32", 34, m)
        A("v_sub_f32 v32, v32, v34"); A("v_exp_f32 v32, v32"); A("v_mul_f32 v35, v32, v33")
        for m in modes: dpp("v_add_f32", 35, m)
    combine(("row_ror:4", "row_ror:8"))
    A("s_mov_b64 exec, 0xf"); A("buffer_store_dwordx2 v[34:35], v28, %s, s%d offen sc1" % (srd("WS"), sMU)); A("s_mov_b64 exec, -1")
    stamp(5)
    if sdelay: A("s_sleep %d" % sdelay)
    if strig:
        lds_wait(F_FULL, strig, sl=8)
    gpoll([(lambda: A("buffer_load_dwordx2 v[32:33], v%d, %s, s%d offen sc1" % (vT + 1, srd("WS"), sSTOFF)), [32, 33])], sleep=ssleep)
    combine(("quad_perm:[1,0,3,2]", "quad_perm:[2,3,0,1]"))
    A("v_rcp_f32 v35, v35"); A("v_lshl_add_u32 v%d, v%d, 3, v%d" % (vT + 2, vC4, vHI))
    A("s_mov_b64 exec, 0x1111"); A("ds_write_b64 v%d, v[34:35] offset:%d" % (vT + 2, L_GS)); A("s_mov_b64 exec, -1")
    lds_add(vHI, F_GR)
    stamp(6)
    A("s_mov_b32 s%d, 2" % sMU)
    A("L_gather56:")
    A("s_waitcnt lgkmcnt(0)")
    A("s_barrier")
    stamp(8)
    gather(sMU, lambda: None)
    A("s_waitcnt lgkmcnt(0)")
    A("s_barrier")
    stamp(9)
    A("s_branch L_done")

    A("L_mlp:")
    vW, vU = 32, 64
    def pg_addr(line, word):
        A("s_lshr_b32 s%d, s2, 3" % line); A("s_lshl_b32 s%d, s%d, 8" % (line, line)); A("s_add_u32 s%d, s%d, 0x%x" % (line, line, WS_PG))
        A("s_and_b32 s%d, s2, 7" % word); A("s_lshl_b32 s%d, s%d, 2" % (word, word)); A("s_add_u32 s%d, s%d, s%d" % (word, word, line))
    def clean():
        A("s_cmp_lg_u32 s%d, 7" % sWAVE); A("s_cbranch_scc1 L_noclean")
        for i in range(4): A("v_mov_b32 v%d, -1" % (60 + i))
        slot_addrs()
        A("v_lshlrev_b32 v%d, 13, v%d" % (59, vG4)); A("v_lshl_add_u32 v%d, v%d, 4, v%d" % (59, vN16, 59))
        A("s_lshl_b32 s%d, s%d, %d" % (sT1, sR, 11 + spad)); A("s_add_u32 s%d, s%d, 0x%x" % (sT1, sT1, WS_SP))
        A("v_lshrrev_b32 v29, 2, v0"); A("v_lshlrev_b32 v29, %d, v29" % (6 + spad)); A("v_lshl_add_u32 v29, v%d, 4, v29" % vR4)
        A("s_waitcnt lgkmcnt(0)")
        A("buffer_load_dwordx2 v[30:31], off, %s, 0 offset:%d sc1" % (srd("WS"), WS_EP))
        A("s_mov_b64 exec, 0xf"); A("buffer_store_dwordx2 v[60:61], v28, %s, s%d offen sc1" % (srd("WS"), sMU)); A("s_mov_b64 exec, -1")
        A("buffer_store_dwordx4 v[60:63], v%d, %s, s%d offen sc1" % (59, srd("WS"), sOPOFF))
        A("buffer_store_dwordx4 v[60:63], v29, %s, s%d offen sc1" % (srd("WS"), sT1))
        A("buffer_store_dwordx4 v[60:63], v29, %s, s%d offen offset:%d sc1" % (srd("WS"), sT1, 1024 << spad))
        if bal:
            pg_addr(sT1, sT3)
            A("s_mov_b64 exec, 1"); A("buffer_store_dword v60, off, %s, s%d sc1" % (srd("WS"), sT3)); A("s_mov_b64 exec, -1")
        if steal:
            A("s_lshl_b32 s%d, s%d, 12" % (sT1, sR)); A("s_add_u32 s%d, s%d, 0x%x" % (sT1, sT1, WS_PR))
            for k in range(4): A("buffer_store_dwordx4 v[60:63], v%d, %s, s%d offen offset:%d sc1" % (vL16, srd("WS"), sT1, 1024 * k))
            A("s_lshl_b32 s%d, s%d, 7" % (sT1, sR)); A("s_add_u32 s%d, s%d, 0x%x" % (sT1, sT1, WS_CW))
            A("s_mov_b64 exec, 1"); A("buffer_store_dword v60, off, %s, s%d sc1" % (srd("WS"), sT1)); A("s_mov_b64 exec, -1")
        A("L_noclean:")
    def arrive(cnt, lbl):
        A("s_cmp_lg_u32 s%d, 7" % sWAVE); A("s_cbranch_scc1 " + lbl)
        A("s_lshr_b32 s%d, s%d, 5" % (sT3, sR)); A("s_lshl_b32 s%d, s%d, 5" % (sT3, sT3))
        A("s_mov_b64 exec, 1")
        A("s_waitcnt vmcnt(%d)" % cnt)
        A("buffer_atomic_add v%d, off, %s, s%d" % (vONE, srd("DBG"), sT3))
        A("s_mov_b64 exec, -1")
        stamp(4)
        A(lbl + ":")
    if not cllate: clean()
    A("s_sub_u32 s%d, s%d, 6" % (sMB, sWAVE))
    A("v_mul_u32_u24 v%d, 12, v0" % vT); A("s_mul_i32 s%d, s%d, 1792" % (sT1, sMB))
    A("s_waitcnt lgkmcnt(0)")
    A("s_load_dword s%d, s[%d:%d], 0" % (sB2, sB2P, sB2P + 1))
    if tlb:
        A("s_bfe_u32 s%d, s%d, 0x30002" % (sBASE, sR)); A("s_lshl_b32 s%d, s%d, 23" % (sBASE, sBASE)); A("s_lshr_b32 s%d, s%d, 5" % (sT0, sR)); A("s_lshl_b32 s%d, s%d, 20" % (sT0, sT0))
        A("s_add_u32 s%d, s%d, s%d" % (sBASE, sBASE, sT0)); A("s_and_b32 s%d, s%d, 3" % (sT0, sR)); A("s_lshl_b32 s%d, s%d, 18" % (sT0, sT0)); A("s_add_u32 s%d, s%d, s%d" % (sBASE, sBASE, sT0))
        A("s_cmp_lg_u32 s%d, 6" % sWAVE); A("s_cbranch_scc1 L_notlb")
        A("s_mov_b64 exec, 1")
        if tlb & 1: A("buffer_load_dword v200, off, %s, s%d" % (srd("V"), sBASE))
        if tlb & 2:
            A("s_lshr_b32 s%d, s%d, 3" % (sT0, sR)); A("s_lshl_b32 s%d, s%d, 17" % (sT0, sT0))
            A("buffer_load_dword v201, off, %s, s%d" % (srd("WO"), sT0))
        if tlb & 4:
            A("v_lshlrev_b32 v202, 16, v0"); A("s_mov_b64 exec, 0xf")
            A("buffer_load_dword v203, v202, %s, s%d offen" % (srd("V"), sBASE))
            A("buffer_load_dword v204, v202, %s, s%d offen" % (srd("K"), sBASE))
        A("s_mov_b64 exec, -1")
        A("L_notlb:")
    A("s_barrier")
    for k, n in enumerate(("W1", "B1", "W2")):
        A("buffer_load_dwordx4 %s, v%d, %s, s%d offen" % (vr(vW + 8 * k, 4), vL16, srd(n), sT1))
        A("buffer_load_dwordx3 %s, v%d, %s, s%d offen offset:1024" % (vr(vW + 8 * k + 4, 3), vT, srd(n), sT1))
    if not cllate: arrive(6, "L_noflag")
    A("s_lshr_b32 s%d, s%d, 5" % (sT0, sR)); A("s_mul_i32 s%d, s%d, %d" % (sT0, sT0, XN_STRIDE)); A("s_add_u32 s%d, s%d, %d" % (sT0, sT0, HI)); A("v_add_u32 v%d, s%d, v%d" % (vT + 1, sT0, vL16))
    A("s_lshl_b32 s%d, s%d, 13" % (sT2, sMB)); A("s_add_u32 s%d, s%d, %d" % (sT2, sT2, HI + L_WO)); A("v_add_u32 v%d, s%d, v%d" % (vT + 2, sT2, vL16))
    A("s_and_b32 s%d, s%d, 31" % (sT0, sR)); A("s_lshl_b32 s%d, s%d, 5" % (sT0, sT0)); A("s_add_u32 s%d, s%d, s%d" % (sT0, sT0, sT2))
    A("v_lshlrev_b32 v%d, 1, v%d" % (vT + 3, vN16)); A("v_add_u32 v%d, s%d, v%d" % (vT + 3, sT0, vT + 3))
    lds_wait(F_XN, 4)
    if cllate: clean()
    vXm = 112
    A("ds_read_b128 %s, v%d offset:%d" % (vr(vXm, 4), vT + 1, L_XN)); A("s_waitcnt lgkmcnt(0)")
    layernorm(vXm, 4, vXm + 4, vXm + 12, vXm + 20, 1)
    A("ds_write_b128 v%d, %s" % (vT + 2, vr(vXm, 4)))
    vH = 24
    A("ds_read_u16 v%d, v%d" % (vH, vT + 3))
    A("v_lshrrev_b32 v%d, 3, v0" % (vT + 4)); A("v_lshlrev_b32 v%d, 10, v%d" % (vT + 4, vT + 4)); A("v_and_b32 v%d, 7, v0" % (vT + 5)); A("v_lshl_add_u32 v%d, v%d, 4, v%d" % (vT + 4, vT + 5, vT + 4))
    A("s_lshr_b32 s%d, s%d, 3" % (sT0, sR)); A("s_lshl_b32 s%d, s%d, 17" % (sT0, sT0)); A("s_and_b32 s%d, s%d, 7" % (sT1, sR)); A("s_lshl_b32 s%d, s%d, 7" % (sT1, sT1))
    A("s_add_u32 s%d, s%d, s%d" % (sT0, sT0, sT1)); A("s_lshl_b32 s%d, s%d, 16" % (sT1, sMB)); A("s_add_u32 s%d, s%d, s%d" % (sT0, sT0, sT1))
    A("s_waitcnt vmcnt(0) lgkmcnt(0)")
    if cllate: arrive(0, "L_noflag")
    for a in range(8):
        A("s_add_u32 m0, s%d, %d" % (sT2, a * 1024))
        if 'o' not in abl and not wolate: A("buffer_load_dwordx4 v%d, %s, s%d offen %s lds" % (vT + 4, srd("WO"), sT0, polo))
        if a < 7: A("s_add_u32 s%d, s%d, 0x2000" % (sT0, sT0))
    stamp(1)
    A("v_lshlrev_b32 v%d, 16, v%d" % (vH, vH))
    for k in range(3):
        for i in range(7): unpack(vU + 14 * k + 2 * i, vU + 14 * k + 2 * i + 1, vW + 8 * k + i)
    vC0, vACC, U, T_ = 25, 26, 112, 128
    A("v_mov_b32 v%d, s%d" % (vC0, sC0))
    A("s_lshl_b32 s%d, s%d, 6" % (sT0, sMB)); A("s_add_u32 s%d, s%d, %d" % (sT0, sT0, HI + L_YP)); A("v_mov_b32 v27, s%d" % sT0)
    A("s_mov_b32 s%d, 0" % sT1)
    A("s_nop 3")
    A("L_mlp_loop:")
    A("v_readlane_b32 s%d, v%d, s%d" % (sMU, vH, sT1))
    for t in range(14): A("v_fma_f32 v%d, s%d, v%d, v%d" % (U + t, sMU, vU + t, vU + 14 + t))
    for t in range(14): A("v_mul_f32 v%d, v%d, v%d" % (T_ + t, U + t, U + t))
    for t in range(14): A("v_fma_f32 v%d, v%d, s%d, v%d" % (T_ + t, T_ + t, sC1, vC0))
    for t in range(14): A("v_mul_f32 v%d, v%d, v%d" % (T_ + t, T_ + t, U + t))
    for t in range(14):
        A("v_exp_f32 v%d, v%d" % (T_ + t, T_ + t)); A("v_mul_f32 v%d, v%d, v%d" % (U + t, U + t, vU + 28 + t))
    for t in range(14): A("v_add_f32 v%d, 1.0, v%d" % (T_ + t, T_ + t))
    for t in range(14): A("v_rcp_f32 v%d, v%d" % (T_ + t, T_ + t))
    A("v_mul_f32 v%d, v%d, v%d" % (vACC, U, T_)); A("v_mul_f32 v%d, v%d, v%d" % (U, U + 1, T_ + 1))
    for t in range(2, 14): A("v_fmac_f32 v%d, v%d, v%d" % (vACC if t & 1 else U, U + t, T_ + t))
    A("v_add_f32 v%d, v%d, v%d" % (vACC, vACC, U))
    red16(vACC, "v_add_f32"); dpp("v_add_f32", vACC, "row_bcast:15", "0xa"); dpp("v_add_f32", vACC, "row_bcast:31", "0xc")
    A("s_mov_b32 exec_lo, 0"); A("s_mov_b32 exec_hi, 0x80000000")
    A("ds_write_b32 v27, v%d" % vACC); A("v_add_u32 v27, 4, v27")
    A("s_mov_b64 exec, -1")
    A("s_add_u32 s%d, s%d, 1" % (sT1, sT1)); A("s_cmp_lt_u32 s%d, 16" % sT1); A("s_cbranch_scc1 L_mlp_loop")
    stamp(2)
    A("s_waitcnt vmcnt(0)")
    A("s_mov_b32 s%d, 3" % sMU)
    if steal:
        A("s_cmp_eq_u32 s%d, 7" % sWAVE); A("s_cbranch_scc1 L_final")
        lds_wait(F_AM, 1, sl=8)
        sCW = 4
        A("s_lshl_b32 s%d, s%d, 7" % (sCW, sR)); A("s_add_u32 s%d, s%d, 0x%x" % (sCW, sCW, WS_CW))
        def set_plan(val):
            A("v_mov_b32 v%d, %s" % (vT, val)); A("s_mov_b64 exec, 1"); A("ds_write_b32 v%d, v%d offset:%d" % (vHI, vT, F_PLAN)); A("s_mov_b64 exec, -1")
        for k in range(5, 11):
            if k == 8:
                A("s_xor_b32 s%d, s%d, 0x100" % (sCW, sCW))
            if k == 8:
                A("s_xor_b32 s%d, s%d, 2" % (sT1, sR)); A("s_lshl_b32 s%d, s%d, 12" % (sT1, sT1)); A("s_add_u32 s%d, s%d, 0x%x" % (sT1, sT1, WS_PR))
                A("v_add_u32 v%d, v%d, v%d" % (vT + 1, vHI, vL16))
                rec = [((lambda q=q: A("buffer_load_dwordx4 %s, v%d, %s, s%d offen offset:%d sc1" % (vr(36 + 4 * q, 4), vL16, srd("WS"), sT1, 1024 * q))), list(range(36 + 4 * q, 40 + 4 * q))) for q in range(4)]
                lds_wait(F_FULL, rtrig, sl=2)
                A("s_mov_b32 exec_hi, 0x1ffff")
                for i_, _ in rec: i_()
                A("s_mov_b64 exec, -1")
            lds_wait(F_FULL, 4 * k + cth + (bias if k >= 8 else 0), sl=2)
            A("v_mov_b32 v32, 1"); A("s_mov_b64 exec, 1")
            A("buffer_atomic_add v32, off, %s, s%d sc0" % (srd("WS"), sCW))
            A("s_mov_b64 exec, -1")
            A("s_mov_b32 s%d, 0x%x" % (sT2, 0x100 + k))
            A("s_waitcnt vmcnt(0)")
            A("v_readfirstlane_b32 s%d, v32" % sT0); A("s_add_u32 s%d, s%d, 1" % (sT0, sT0))
            if stamps and k < 9: stamp(k - 2)
            A("s_cmp_ge_u32 s%d, 3" % sT0); A("s_cbranch_scc1 L_close")
            if k == 8:
                A("s_mov_b32 exec_hi, 0x1ffff")
                gpoll(rec[:2], first=False, sleep=8, full="PARTIAL"); gpoll(rec[2:], first=False, sleep=8, full="PARTIAL")
                for q in range(4): A("ds_write_b128 v%d, %s offset:%d" % (vT + 1, vr(36 + 4 * q, 4), L_PP + 1024 * q))
                A("s_mov_b64 exec, -1")
                A("s_waitcnt lgkmcnt(0)")
            set_plan("%d" % (k + 1))
        A("s_mov_b32 s%d, 0x%x" % (sT2, 0x100 + 11))
        A("L_close:")
        set_plan("s%d" % sT2)
        A("s_branch L_gather56")
        A("L_final:")
    elif bal >= 2:
        A("s_cmp_eq_u32 s%d, 7" % sWAVE); A("s_cbranch_scc1 L_final")
        lds_wait(F_AM, 1, sl=8)
        pg_addr(4, 5)
        if bal == 3: A("s_lshl_b32 s4, s2, 8"); A("s_add_u32 s4, s4, 0x%x" % (WS_PG + 0x4000))
        for k in range(bmin):
            lds_wait(F_FULL, bthr + bper * k, sl=4)
            A("v_mov_b32 v%d, 1" % (32 + k)); A("s_mov_b64 exec, 1")
            if bal == 4: A("buffer_load_dword v%d, off, %s, s4 sc1" % (32 + k, srd("WS")))
            elif bal == 5: A("buffer_store_dword v%d, off, %s, s5 sc1" % (32 + k, srd("WS")))
            else: A("buffer_atomic_add v%d, off, %s, s4 sc0" % (32 + k, srd("WS")))
            A("s_mov_b64 exec, -1")
        A("s_waitcnt vmcnt(0)")
        A("s_branch L_gather56")
        A("L_final:")
    elif bal:
        A("s_cmp_eq_u32 s%d, 7" % sWAVE); A("s_cbranch_scc1 L_final")
        lds_wait(F_AM, 1, sl=8)
        pg_addr(4, 5)
        A("s_and_b32 s12, s2, 7"); A("v_lshlrev_b32 v33, 2, v0"); A("s_mov_b32 s13, 0")
        A("L_bal:")
        A("s_mov_b64 exec, 0xff"); A("buffer_load_dword v32, v33, %s, s4 offen sc1" % srd("WS"))
        A("s_mov_b64 exec, 1")
        A("ds_read_b32 v34, v%d offset:%d" % (vHI, F_FULL)); A("s_waitcnt lgkmcnt(0)")
        A("buffer_store_dword v34, off, %s, s5 sc1" % srd("WS"))
        A("s_mov_b64 exec, -1")
        A("v_readfirstlane_b32 s%d, v34" % sT0)
        A("s_cmp_ge_u32 s%d, %d" % (sT0, bstop)); A("s_cbranch_scc1 L_balend")
        A("s_waitcnt vmcnt(1)")
        A("v_readlane_b32 s%d, v32, s12" % sT1)
        A("s_mov_b64 exec, 0xff")
        A("v_cmp_eq_u32 vcc, -1, v32")
        if bmin:
            for m in QUADS[:3]: dpp("v_min_u32", 32, m)
        else:
            for m in QUADS[:3]: dpp("v_add_u32", 32, m)
        A("s_mov_b64 exec, -1")
        A("v_readfirstlane_b32 s%d, v32" % sT2)
        A("s_cmp_lg_u64 vcc, 0"); A("s_cbranch_scc1 L_balskip")
        if not bmin: A("s_lshl_b32 s%d, s%d, 3" % (sT1, sT1))
        A("s_sub_i32 s%d, s%d, s%d" % (sT1, sT1, sT2)); A("s_cmp_gt_i32 s%d, %d" % (sT1, bthr)); A("s_cselect_b32 s%d, 1, 0" % sT1)
        A("v_mov_b32 v35, s%d" % sT1); A("s_mov_b64 exec, 1"); A("ds_write_b32 v%d, v35 offset:%d" % (vHI, F_MODE)); A("s_mov_b64 exec, -1")
        A("L_balskip:")
        if bper: A("s_sleep %d" % bper)
        A("s_add_u32 s13, s13, 1"); A("s_cmp_lt_u32 s13, 4096"); A("s_cbranch_scc1 L_bal")
        A("L_balend:")
        A("v_mov_b32 v35, 0"); A("s_mov_b64 exec, 1"); A("ds_write_b32 v%d, v35 offset:%d" % (vHI, F_MODE)); A("s_mov_b64 exec, -1")
        A("s_waitcnt vmcnt(0)")
        A("s_branch L_gather56")
        A("L_final:")
    else:
        A("s_cmp_eq_u32 s%d, 6" % sWAVE); A("s_cbranch_scc1 L_gather56")
    if at2:
        A("v_and_b32 v%d, 7, v0" % (vT + 1)); A("v_lshrrev_b32 v%d, 5, v0" % (vT + 2)); A("v_lshl_add_u32 v%d, v%d, 1, v%d" % (vT + 1, vT + 1, vT + 2))
    else: A("v_lshl_add_u32 v%d, v%d, 2, v%d" % (vT + 1, vR4, vG4))
    A("v_lshlrev_b32 v%d, 1, v%d" % (vT + 2, vT + 1)); A("s_lshl_b32 s%d, s%d, 5" % (sT0, sR))
    A("buffer_load_ushort v%d, v%d, %s, s%d offen" % (vT + 3, vT + 2, srd("X"), sT0))
    A("v_lshl_add_u32 v%d, v%d, 2, v%d" % (vT + 1, vT + 1, vHI))
    A("s_lshl_b32 s%d, s%d, %d" % (sT1, sR, 11 + spad)); A("s_add_u32 s%d, s%d, 0x%x" % (sT1, sT1, WS_SP))
    A("v_lshrrev_b32 v29, 2, v0"); A("v_lshlrev_b32 v29, %d, v29" % (6 + spad)); A("v_lshl_add_u32 v29, v%d, 4, v29" % vR4)
    if wolate == 2:
        A("s_mov_b32 s12, s%d" % sT0); A("s_mov_b32 s13, s%d" % sT1)
        if steal: lds_wait(F_LI, 1, sl=2)
        else: lds_wait(F_FULL, wotrig, sl=2)
        wo_dma()
        A("s_mov_b32 s%d, s12" % sT0); A("s_mov_b32 s%d, s13" % sT1)
    A("s_waitcnt lgkmcnt(0)")
    A("s_barrier")
    stamp(8)
    A("ds_read_b32 v40, v%d offset:%d" % (vT + 1, L_YP)); A("ds_read_b32 v41, v%d offset:%d" % (vT + 1, L_YP + 64)); A("s_waitcnt lgkmcnt(0)")
    A("v_add_f32 v40, v40, v41"); rbf(40)
    A("s_lshl_b32 s%d, s%d, 16" % (sB2, sB2)); A("v_add_f32 v40, s%d, v40" % sB2); rbf(40)
    A("v_mul_f32 v41, s%d, v40" % sL2E); A("v_exp_f32 v41, -v41"); A("v_add_f32 v41, 1.0, v41"); A("v_rcp_f32 v41, v41"); A("v_mul_f32 v40, v40, v41"); rbf(40)
    A("s_waitcnt vmcnt(0)"); A("v_lshlrev_b32 v%d, 16, v%d" % (vT + 3, vT + 3))
    if wolate == 2:
        A("s_mov_b64 exec, 1"); A("ds_write_b32 v%d, v%d offset:%d" % (vHI, vONE, F_WO)); A("s_mov_b64 exec, -1")
        stamp(11)
    A("s_barrier")
    stamp(9)
    if td2: A("s_sleep %d" % td2)
    if at2:
        A("v_lshlrev_b32 v29, 3, v0")
        apoll(32, 29, sT1, 44, tsleep2)
        stamp(10)
        A("v_add_f32 v44, v32, v34"); A("v_add_f32 v45, v33, v35"); A("v_add_f32 v46, v36, v38"); A("v_add_f32 v47, v37, v39")
        A("v_add_f32 v44, v44, v46"); A("v_add_f32 v45, v45, v47")
        A("v_permlane32_swap_b32 v44, v45"); A("v_add_f32 v44, v44, v45")
        swap_red(44, 45, "v_add_f32", 16)
        dpp("v_add_f32", 44, "row_ror:8")
    else:
        gpoll([(lambda: A("buffer_load_dwordx4 v[32:35], v29, %s, s%d offen %s" % (srd("WS"), sT1, tl)), [32, 33, 34, 35]),
               (lambda: A("buffer_load_dwordx4 v[36:39], v29, %s, s%d offen offset:%d %s" % (srd("WS"), sT1, 1024 << spad, tl)), [36, 37, 38, 39])], sleep=tsleep2, P=P2)
        stamp(10)
        for i in range(4): A("v_add_f32 v%d, v%d, v%d" % (44 + i, 32 + i, 36 + i))
        A("v_permlane32_swap_b32 v44, v46"); A("v_permlane32_swap_b32 v45, v47")
        A("v_add_f32 v44, v44, v46"); A("v_add_f32 v45, v45, v47")
        A("v_permlane16_swap_b32 v44, v45"); A("v_add_f32 v44, v44, v45")
        dpp("v_add_f32", 44, "row_ror:8"); dpp("v_add_f32", 44, "row_ror:4")
    rbf(44); A("v_mul_f32 v44, v44, v40"); rbf(44)
    A("v_add_f32 v44, v44, v%d" % (vT + 3)); A("v_cvt_pk_bf16_f32 v44, v44, v44")
    em = "0xff" if at2 else "0x000f000f"
    A("s_mov_b32 exec_lo, %s" % em); A("s_mov_b32 exec_hi, %s" % em)
    A("buffer_store_short v44, v%d, %s, s%d offen" % (vT + 2, srd("OUT"), sT0))
    A("s_mov_b64 exec, -1")
    A("s_cmp_lg_u32 s%d, 0" % sR); A("s_cbranch_scc1 L_done")
    epoch()
    A("v_mov_b32 v30, s%d" % sEP); A("v_mov_b32 v31, s%d" % (sEP + 1)); A("s_mov_b64 exec, 1")
    A("buffer_store_dwordx2 v[30:31], off, %s, 0 offset:%d sc1" % (srd("WS"), WS_EP))
    A("s_mov_b64 exec, -1")
    if pgrp:
        A("v_lshlrev_b32 v29, 5, v0"); A("s_mov_b64 exec, 0xff")
        A("buffer_load_dword v30, v29, %s, 0 offen offset:4 sc1" % srd("DBG")); A("s_memrealtime s[16:17]"); A("s_waitcnt vmcnt(0) lgkmcnt(0)")
        if pat >= 12:
            A("v_readfirstlane_b32 s6, v30"); A("v_subrev_u32 v30, s6, v30"); A("v_add_u32 v30, 0x100000, v30")
            if pat == 13: A("v_lshlrev_b32 v30, 3, v30"); A("v_or_b32 v30, v30, v0")
        A("v_mov_b32 v31, v30")
        for m in QUADS[:3]: dpp("v_max_u32", 30, m)
        if pat in (11, 12, 13, 14):
            for m in QUADS[:3]: dpp("v_min_u32", 31, m)
        else:
            A("v_subrev_u32 v31, v31, v30")
            for m in QUADS[:3]: dpp("v_add_u32", 31, m)
        A("s_mov_b64 exec, -1")
        A("v_readfirstlane_b32 s6, v30"); A("v_readfirstlane_b32 s7, v31")
        if pat == 11: A("s_sub_u32 s6, s6, s7"); A("s_lshl_b32 s6, s6, 3")
        elif pat == 12: A("s_sub_u32 s6, s6, s7"); A("s_lshr_b32 s6, s6, 2")
        elif pat == 13: A("s_and_b32 s6, s6, 7"); A("s_mul_i32 s6, s6, 300")
        else: A("s_mov_b32 s6, s7")
        A("s_min_u32 s6, s6, 20000")
        A("s_add_u32 s16, s16, s6")
        A("L_pad3:"); A("s_memrealtime s[18:19]"); A("s_waitcnt lgkmcnt(0)"); A("s_sub_u32 s18, s18, s16"); A("s_cmp_lt_i32 s18, 0"); A("s_cbranch_scc1 L_pad3")
    if probe or (p_b >= 0 and not piv) or pspan:
        A("buffer_load_dwordx2 v[30:31], off, %s, 0 offset:4 sc1" % srd("DBG")); A("s_memrealtime s[16:17]"); A("s_waitcnt vmcnt(0) lgkmcnt(0)")
        A("v_readfirstlane_b32 s6, v30"); A("v_readfirstlane_b32 s7, v31")
        if probe: A("s_sub_i32 s6, s6, s7"); A("s_abs_i32 s6, s6"); A("s_lshr_b32 s6, s6, 4")
        elif pspan == 1: A("s_not_b32 s7, s7"); A("s_sub_u32 s6, s6, s7"); A("s_lshl_b32 s6, s6, 2")
        elif pspan == 2: A("s_sub_u32 s6, s16, s6"); A("s_lshl_b32 s6, s6, 3")
        elif pspan == 6: A("s_not_b32 s7, s7"); A("s_sub_u32 s6, s16, s7"); A("s_lshl_b32 s6, s6, 2")
        elif pspan == 3: A("s_not_b32 s7, s7"); A("s_sub_u32 s6, s6, s7"); A("s_lshl_b32 s6, s6, 3")
        elif pspan in (4, 5): A("s_not_b32 s7, s7"); A("s_lshl_b32 s7, s7, 8"); A("s_sub_u32 s6, s6, s7"); A("s_lshr_b32 s6, s6, %d" % (5 if pspan == 4 else 6))
        else: A("s_lshr_b32 s6, s6, 5")
        A("s_min_u32 s6, s6, 20000")
        A("s_add_u32 s16, s16, s6")
        A("L_pad2:"); A("s_memrealtime s[18:19]"); A("s_waitcnt lgkmcnt(0)"); A("s_sub_u32 s18, s18, s16"); A("s_cmp_lt_i32 s18, 0"); A("s_cbranch_scc1 L_pad2")
    A("L_done:")
    A("s_waitcnt vmcnt(0)")
    if pad:
        A("s_waitcnt lgkmcnt(0)"); A("s_add_u32 s16, s16, %d" % pad)
        A("L_pad:"); A("s_memrealtime s[18:19]"); A("s_waitcnt lgkmcnt(0)"); A("s_sub_u32 s18, s18, s16"); A("s_cmp_lt_i32 s18, 0"); A("s_cbranch_scc1 L_pad")
    if stamps:
        A("s_waitcnt vmcnt(0)")
        stamp(NST - 1)
        A("s_waitcnt lgkmcnt(0)")
        A("s_lshl_b32 s%d, s2, 3" % sT0); A("s_add_u32 s%d, s%d, s%d" % (sT0, sT0, sWAVE)); A("s_mul_i32 s%d, s%d, %d" % (sT0, sT0, NST * 8)); A("s_add_u32 s%d, s%d, 0x%x" % (sT0, sT0, WS_STAMP))
        A("s_mov_b64 exec, 1")
        for k in range(NST):
            A("v_mov_b32 v2, s%d" % (16 + 2 * k)); A("v_mov_b32 v3, s%d" % (17 + 2 * k))
            A("buffer_store_dwordx2 v[2:3], off, %s, s%d offset:%d" % (srd("WS"), sT0, k * 8)); A("s_nop 1")
    A("L_end:")
    A("s_endpgm")
    body = A.finalize()
    hdr = open("recurrent_scan__gqa_block_cached__mixer_token_mlp__decode.s.ref").read().split("; Override launch")[0]
    s = hdr + "; @launch grid=(256,1,1) block=(512,1,1) lds=%d\n" % LDS_BYTES
    s += '.amdgcn_target "amdgcn-amd-amdhsa--gfx950"\n.text\n.globl %s\n.p2align 8\n.type %s,@function\n%s:\n' % (NAME, NAME, NAME)
    s += body
    s += '.section .rodata,"a"\n.p2align 6\n.amdhsa_kernel %s\n  .amdhsa_next_free_vgpr 256\n  .amdhsa_next_free_sgpr 102\n  .amdhsa_accum_offset 256\n' % NAME
    s += "  .amdhsa_group_segment_fixed_size 0\n  .amdhsa_kernarg_size 104\n  .amdhsa_user_sgpr_count 2\n  .amdhsa_user_sgpr_kernarg_segment_ptr 1\n  .amdhsa_system_sgpr_workgroup_id_x 1\n.end_amdhsa_kernel\n"
    return s, A

if __name__ == "__main__":
    out = sys.argv[1]
    kw = {}
    for p in sys.argv[2:]:
        k, v = p.split("=")
        kw[k] = int(v) if v.lstrip("-").isdigit() else v.replace("+", " ")
    s, A = gen(**kw)
    open(out, "w").write(s)
    print("wrote", out, "instructions", len(A.ins), "nops", A.nops, "lds", LDS_BYTES)
```

```python
import sys, struct
from asmlib import Asm

NAME = "recurrent_scan__gqa_block_cached__mixer_token_mlp__decode_kernel"
def f2u(x): return struct.unpack("<I", struct.pack("<f", x))[0]

WS_ST, WS_OP, WS_SP, WS_Q, WS_EP = 0x10000, 0x20000, 0x100000, 0x60000, 0x0
WS_PG = 0x90000
WS_CW, WS_PR = 0x80000, 0x200000
EP_STEP = 0x9E3779B97F4A7C15
WS_STAMP = 128 << 20
HI = 131072
L_WO = 0
L_XN, XN_STRIDE = 16384, 1040
L_OW = L_XN
L_QP = 24704
L_QB = 28800
L_FLG = 29824
L_ST = L_FLG + 64
L_GS = L_ST + 128
L_YP = L_GS + 32
LDS_BYTES = HI + L_YP + 128
F_FULL, F_FREED, F_XN, F_QP, F_QR, F_ST, F_GR, F_WO, F_AM, F_PLAN, F_LI, F_MODE = [L_FLG + 4 * i for i in (0, 4, 8, 9, 10, 11, 12, 13, 14, 1, 15, 2)]
L_PP = L_QP

sWAVE, sBASE, sOFF = 3, 4, 5
sT0, sT1, sT2 = 6, 7, 8
sR, sSPIN, sT3 = 9, 10, 11
sMU, sMB = 14, 15
SRD = dict(K=44, V=48, X=52, WQ=56, WO=60, W1=64, B1=68, W2=72, OUT=76, DBG=80, WS=84)
KARG = dict(X=0, K=8, V=16, WQ=24, WO=32, W1=48, B1=56, W2=64, OUT=80, DBG=88, WS=96)
SIZE = dict(X=8192, K=1 << 26, V=1 << 26, WQ=1 << 22, WO=1 << 22, W1=3584, B1=3584, W2=3584, OUT=8192, DBG=256, WS=1 << 28)
sSELLO, sSELHI, sMASK, sSCALE, sL2E, sC0, sC1, sB2, sB2P = 88, 89, 90, 91, 92, 93, 94, 95, 96
sOPOFF, sSPOFF, sSTOFF, sFULL = 98, 99, 100, 101
def srd(n): return "s[%d:%d]" % (SRD[n], SRD[n] + 3)
def vr(a, n=1): return "v%d" % a if n == 1 else "v[%d:%d]" % (a, a + n - 1)
vL16, vG4, vC4, vR4, vN16, vHI, vONE = 1, 2, 3, 4, 5, 6, 7
vT = 8
vPOLL = 16

def gen(F=4, stamps=0, pol="nt", spin=1 << 17, lspin=1 << 22, mimic=1, pre=0, lsleep=1, ldprio=3, fsleep=8, qsleep=2, ssleep=8, tsleep=0, xmap=1, polq=None, polo=None, ldst=0, abl='', rot=0, pad=0, P1=1, P2=1, pd=5, qmap=0, tl='sc1', ts='sc1', tsleep2=None, Fhi=0, himask=0xf8, hiend=16, spad=0, at2=1, td2=8, td1=0, at1=0, qdelay=0, sdelay=0, qtrig=8, strig=48, bshift=0, wolate=2, wqsplit=0, wotrig=60, D=0, DV=0, probe=0, steal=0, cth=23, cllate=0, bias=0, rtrig=48, p_a=-1, p_b=-1, pspan=0, pstart=0, bal=0, Flo=2, bthr=0, bper=8, bstop=58, bmin=0, pm=0, pval=0, pgrp=0, pat=11, tlb=0, piv=0, pmap=0):
    NOWN = 5 if steal else 8
    sPLAN = 13
    DV = DV if DV else D
    tsleep2 = tsleep if tsleep2 is None else tsleep2
    polq = pol if polq is None else polq.replace('def', '')
    polo = pol if polo is None else polo.replace('def', '')
    A = Asm()
    NST = 14
    def stamp(k):
        if stamps: A("s_memrealtime s[%d:%d]" % (16 + 2 * k, 17 + 2 * k))
    QUADS = ("quad_perm:[1,0,3,2]", "quad_perm:[2,3,0,1]", "row_half_mirror", "row_mirror")
    def dpp(op, v, m, rm="0xf"): A("%s_dpp v%d, v%d, v%d %s row_mask:%s bank_mask:0xf" % (op, v, v, v, m, rm))
    def red16(v, op):
        for m in QUADS: dpp(op, v, m)
    def swap_red(v, t, op, which):
        A("v_mov_b32 v%d, v%d" % (t, v)); A("v_permlane%d_swap_b32 v%d, v%d" % (which, v, t)); A("%s v%d, v%d, v%d" % (op, v, v, t))
    def rbf(v):
        A("v_cvt_pk_bf16_f32 v%d, v%d, v%d" % (v, v, v)); A("v_lshlrev_b32 v%d, 16, v%d" % (v, v))
    def unpack(dlo, dhi, src):
        A("v_lshlrev_b32 v%d, 16, v%d" % (dlo, src)); A("v_and_b32 v%d, s%d, v%d" % (dhi, sMASK, src))
    def layernorm(pk, n, x, d, t, halves):
        def allred(v):
            red16(v, "v_add_f32"); swap_red(v, t + 2, "v_add_f32", 16)
            if halves == 1: swap_red(v, t + 2, "v_add_f32", 32)
        for i in range(n): unpack(x + 2 * i, x + 2 * i + 1, pk + i)
        A("v_add_f32 v%d, v%d, v%d" % (t, x, x + 1)); A("v_add_f32 v%d, v%d, v%d" % (t + 1, x + 2, x + 3))
        for i in range(4, 2 * n): A("v_add_f32 v%d, v%d, v%d" % (t + (i & 1), t + (i & 1), x + i))
        A("v_add_f32 v%d, v%d, v%d" % (t, t, t + 1))
        allred(t)
        A("v_mul_f32 v%d, 0x3b000000, v%d" % (t, t))
        A("v_cvt_pk_bf16_f32 v%d, v%d, v%d" % (t + 1, t, t))
        for i in range(2 * n): A("v_sub_f32 v%d, v%d, v%d" % (d + i, x + i, t))
        A("v_lshlrev_b32 v%d, 16, v%d" % (t + 1, t + 1))
        A("v_mul_f32 v%d, v%d, v%d" % (t, d, d)); A("v_mul_f32 v%d, v%d, v%d" % (d, d + 1, d + 1))
        for i in range(2, 2 * n): A("v_fmac_f32 v%d, v%d, v%d" % (t if i & 1 else d, d + i, d + i))
        A("v_add_f32 v%d, v%d, v%d" % (t, t, d))
        for i in range(2 * n): A("v_sub_f32 v%d, v%d, v%d" % (x + i, x + i, t + 1))
        allred(t)
        for i in range(n): A("v_cvt_pk_bf16_f32 v%d, v%d, v%d" % (pk + i, x + 2 * i, x + 2 * i + 1))
        A("v_mul_f32 v%d, 0x3b000000, v%d" % (t, t)); rbf(t)
        A("v_add_f32 v%d, 0x%x, v%d" % (t, f2u(1e-5), t)); rbf(t)
        A("v_sqrt_f32 v%d, v%d" % (t, t)); rbf(t)
        A("v_rcp_f32 v%d, v%d" % (t, t))
        for i in range(n): unpack(x + 2 * i, x + 2 * i + 1, pk + i)
        for i in range(2 * n): A("v_mul_f32 v%d, v%d, v%d" % (x + i, t, x + i))
        for i in range(n): A("v_cvt_pk_bf16_f32 v%d, v%d, v%d" % (pk + i, x + 2 * i, x + 2 * i + 1))
    def lds_wait(flag, val, keep=None, sl=None):
        ok = A.label("lok"); again = A.label("lagain")
        dst = keep if keep is not None else sT3
        if keep is not None:
            A("s_cmp_ge_u32 s%d, %s" % (keep, val)); A("s_cbranch_scc1 " + ok)
        A("s_mov_b32 s%d, 0" % sSPIN)
        A(again + ":")
        A("ds_read_b32 v%d, v%d offset:%d" % (vPOLL, vHI, flag)); A("s_waitcnt lgkmcnt(0)")
        A("v_readfirstlane_b32 s%d, v%d" % (dst, vPOLL))
        A("s_cmp_ge_u32 s%d, %s" % (dst, val)); A("s_cbranch_scc1 " + ok)
        if sl is None: sl = lsleep
        if sl: A("s_sleep %d" % sl)
        A("s_add_u32 s%d, s%d, 1" % (sSPIN, sSPIN)); A("s_cmp_lt_u32 s%d, %d" % (sSPIN, lspin)); A("s_cbranch_scc1 " + again)
        A(ok + ":")
    def lds_add(flag_addr_reg, off):
        A("s_waitcnt lgkmcnt(0)")
        A("s_mov_b64 exec, 1"); A("ds_add_u32 v%d, v%d offset:%d" % (flag_addr_reg, vONE, off)); A("s_mov_b64 exec, -1")
    def gpoll(loads, first=True, sleep=0, full="-1", tag=None, P=1):
        ok = A.label("ok"); again = A.label("again")
        masks = ["vcc", "s[12:13]"]
        A("s_mov_b32 s%d, 0" % sSPIN)
        if first:
            for issue, regs in loads: issue()
        for _ in range(P - 1):
            A("s_sleep %d" % pd)
            for issue, regs in loads: issue()
        A(again + ":")
        A("s_waitcnt vmcnt(%d)" % (len(loads) * (P - 1)))
        for (issue, regs), mk in zip(loads, masks):
            t = vT + 7
            if tag is not None:
                A("v_cmp_ne_u64 %s, %s, v[%d:%d]" % (mk, tag, regs[2], regs[3])); continue
            if len(regs) == 2: A("v_max_u32 v%d, v%d, v%d" % (t, regs[0], regs[1]))
            else:
                A("v_max3_u32 v%d, v%d, v%d, v%d" % (t, regs[0], regs[1], regs[2])); A("v_max_u32 v%d, v%d, v%d" % (t, t, regs[3]))
            A("v_cmp_eq_u32 %s, -1, v%d" % (mk, t))
        if len(loads) == 2:
            A("s_or_b32 s%d, vcc_lo, vcc_hi" % sT3); A("s_or_b32 s%d, s%d, s12" % (sT3, sT3)); A("s_or_b32 s%d, s%d, s13" % (sT3, sT3))
        else:
            A("s_or_b32 s%d, vcc_lo, vcc_hi" % sT3)
        A("s_cbranch_scc0 " + ok)
        if sleep: A("s_sleep %d" % sleep)
        for (issue, regs), mk in zip(loads, masks):
            A("s_mov_b64 exec, %s" % mk); issue()
        if full == "PARTIAL": A("s_mov_b32 exec_lo, -1"); A("s_mov_b32 exec_hi, 0x1ffff")
        else: A("s_mov_b64 exec, %s" % full)
        A("s_add_u32 s%d, s%d, 1" % (sSPIN, sSPIN)); A("s_cmp_lt_u32 s%d, %d" % (sSPIN, spin)); A("s_cbranch_scc1 " + again)
        A("s_waitcnt vmcnt(0)")
        A(ok + ":")
    def apoll(vd, vaddr, soff, vtmp, sleep, first=True):
        ms = ["vcc", "s[12:13]", "s[88:89]", "s[90:91]"]
        ok = A.label("aok"); again = A.label("aagain")
        def iss(k):
            A("v_mov_b32 v%d, 0" % (vd + 2 * k)); A("v_mov_b32 v%d, 0" % (vd + 1 + 2 * k))
            A("buffer_atomic_or_x2 v[%d:%d], v%d, %s, s%d offen offset:%d sc0" % (vd + 2 * k, vd + 1 + 2 * k, vaddr, srd("WS"), soff, 512 * k))
        if first == "only":
            for k in range(4): iss(k)
            return
        A("s_mov_b32 s%d, 0" % sSPIN)
        if first:
            for k in range(4): iss(k)
        A(again + ":")
        A("s_waitcnt vmcnt(0)")
        for k in range(4): A("v_max_u32 v%d, v%d, v%d" % (vtmp + k, vd + 2 * k, vd + 1 + 2 * k))
        for k in range(4): A("v_cmp_eq_u32 %s, -1, v%d" % (ms[k], vtmp + k))
        A("s_or_b64 s[92:93], vcc, s[12:13]"); A("s_or_b64 s[94:95], s[88:89], s[90:91]"); A("s_or_b64 s[92:93], s[92:93], s[94:95]")
        A("s_cbranch_scc0 " + ok)
        if sleep: A("s_sleep %d" % sleep)
        for k in range(4):
            A("s_mov_b64 exec, %s" % ms[k]); iss(k)
        A("s_mov_b64 exec, -1")
        A("s_add_u32 s%d, s%d, 1" % (sSPIN, sSPIN)); A("s_cmp_lt_u32 s%d, %d" % (sSPIN, spin)); A("s_cbranch_scc1 " + again)
        A("s_waitcnt vmcnt(0)")
        A(ok + ":")
    def word_poll(load, vd, lanes, cmp, sleep):
        ok = A.label("fok"); again = A.label("fagain")
        A("s_mov_b32 s%d, 0" % sSPIN); A("s_mov_b64 exec, %s" % lanes)
        A(again + ":")
        A(load)
        A("s_waitcnt vmcnt(0)")
        A(cmp % vd)
        A("s_cmp_eq_u64 vcc, 0"); A("s_cbranch_scc1 " + ok)
        if sleep: A("s_sleep %d" % sleep)
        A("s_add_u32 s%d, s%d, 1" % (sSPIN, sSPIN)); A("s_cmp_lt_u32 s%d, %d" % (sSPIN, spin)); A("s_cbranch_scc1 " + again)
        A(ok + ":")
        A("s_mov_b64 exec, -1")

    A("s_cmp_ge_u32 s2, 256"); A("s_cbranch_scc1 L_end")
    if stamps:
        for k in range(1, NST): A("s_mov_b64 s[%d:%d], 0" % (16 + 2 * k, 17 + 2 * k))
    stamp(0)
    if (pad or p_b >= 0 or pspan or pstart or pmap) and not stamps: A("s_memrealtime s[16:17]")
    for n in ("K", "X", "WQ", "WS", "V", "WO", "W1", "B1", "W2", "DBG", "OUT"):
        A("s_load_dwordx2 s[%d:%d], s[0:1], %d" % (SRD[n], SRD[n] + 1, KARG[n]))
    A("s_load_dwordx2 s[%d:%d], s[0:1], 72" % (sB2P, sB2P + 1))
    A("v_lshrrev_b32 v1, 6, v0"); A("v_and_b32 v0, 63, v0"); A("v_readfirstlane_b32 s%d, v1" % sWAVE)
    for n in SRD:
        A("s_mov_b32 s%d, 0x%x" % (SRD[n] + 2, SIZE[n])); A("s_mov_b32 s%d, 0x20000" % (SRD[n] + 3))
    if xmap == 0:
        A("s_and_b32 s%d, s2, 7" % sR); A("s_lshl_b32 s%d, s%d, 5" % (sR, sR)); A("s_lshr_b32 s%d, s2, 3" % sT0); A("s_add_u32 s%d, s%d, s%d" % (sR, sR, sT0))
    elif xmap >= 8:
        A("s_bfe_u32 s%d, s2, 0x10003" % sT0); A("s_bfe_u32 s%d, s2, 0x10004" % sT1); A("s_lshl_b32 s%d, s%d, 2" % (sT1, sT1)); A("s_add_u32 s%d, s%d, s%d" % (sT0, sT0, sT1))
        if xmap == 9: A("s_lshr_b32 s%d, s2, 5" % sT1); A("s_add_u32 s%d, s%d, s%d" % (sT0, sT0, sT1))
        A("s_sub_u32 s%d, s2, s%d" % (sR, sT0))
        A("s_and_b32 s%d, s%d, 7" % (sR, sR)); A("s_lshl_b32 s%d, s%d, 2" % (sR, sR)); A("s_and_b32 s%d, s2, 0xe0" % sT0); A("s_add_u32 s%d, s%d, s%d" % (sR, sR, sT0))
        A("s_bfe_u32 s%d, s2, 0x20003" % sT0); A("s_add_u32 s%d, s%d, s%d" % (sR, sR, sT0))
    elif xmap >= 4:
        A("s_lshr_b32 s%d, s2, 1" % sT0); A("s_xor_b32 s%d, s%d, s2" % (sT0, sT0)); A("s_and_b32 s%d, s%d, 1" % (sT0, sT0)); A("s_lshl_b32 s%d, s%d, 3" % (sT0, sT0))
        A("s_and_b32 s%d, s2, 4" % sT1); A("s_lshl_b32 s%d, s%d, 2" % (sT1, sT1)); A("s_add_u32 s%d, s%d, s%d" % (sT0, sT0, sT1))
        A("s_bfe_u32 s%d, s2, 0x10003" % sT1); A("s_lshl_b32 s%d, s%d, 2" % (sT1, sT1)); A("s_add_u32 s%d, s%d, s%d" % (sT0, sT0, sT1))
        A("s_and_b32 s%d, s2, 0xe0" % sR); A("s_add_u32 s%d, s%d, s%d" % (sR, sR, sT0))
        if xmap == 6:
            A("s_lshr_b32 s%d, s2, 5" % sT0); A("s_xor_b32 s%d, s%d, s2" % (sT0, sT0)); A("s_and_b32 s%d, s%d, 1" % (sT0, sT0))
        elif xmap == 7:
            A("s_lshr_b32 s%d, s2, 3" % sT0); A("s_xor_b32 s%d, s%d, s2" % (sT0, sT0)); A("s_and_b32 s%d, s%d, 1" % (sT0, sT0))
        else: A("s_and_b32 s%d, s2, 1" % sT0)
        A("s_bfe_u32 s%d, s2, 0x10004" % sT1)
        A("s_lshl_b32 s%d, s%d, 1" % ((sT0, sT0) if xmap != 5 else (sT1, sT1)))
        A("s_add_u32 s%d, s%d, s%d" % (sR, sR, sT0)); A("s_add_u32 s%d, s%d, s%d" % (sR, sR, sT1))
    else:
        if xmap == 2:
            A("s_lshr_b32 s%d, s2, 5" % sT0); A("s_add_u32 s%d, s2, s%d" % (sR, sT0))
        elif xmap == 3:
            A("s_bfe_u32 s%d, s2, 0x20003" % sT0); A("s_lshl_b32 s%d, s%d, 1" % (sT0, sT0)); A("s_add_u32 s%d, s2, s%d" % (sR, sT0))
        else: A("s_add_u32 s%d, s2, %d" % (sR, bshift))
        A("s_and_b32 s%d, s%d, 7" % (sR, sR)); A("s_lshl_b32 s%d, s%d, 2" % (sR, sR)); A("s_and_b32 s%d, s2, 0xe0" % sT0); A("s_add_u32 s%d, s%d, s%d" % (sR, sR, sT0))
        A("s_bfe_u32 s%d, s2, 0x20003" % sT0); A("s_add_u32 s%d, s%d, s%d" % (sR, sR, sT0))
    sRQ = sMB
    if xmap >= 4:
        A("s_and_b32 s%d, s2, 7" % sRQ); A("s_lshl_b32 s%d, s%d, 2" % (sRQ, sRQ)); A("s_and_b32 s%d, s2, 0xe0" % sT0); A("s_add_u32 s%d, s%d, s%d" % (sRQ, sRQ, sT0))
        A("s_bfe_u32 s%d, s2, 0x20003" % sT0); A("s_add_u32 s%d, s%d, s%d" % (sRQ, sRQ, sT0))
    elif qmap == 0: A("s_mov_b32 s%d, s%d" % (sRQ, sR))
    elif qmap == 1:
        A("s_and_b32 s%d, s2, 7" % sRQ); A("s_lshl_b32 s%d, s%d, 5" % (sRQ, sRQ)); A("s_lshr_b32 s%d, s2, 3" % sT0); A("s_add_u32 s%d, s%d, s%d" % (sRQ, sRQ, sT0))
    elif qmap == 2:
        A("s_lshr_b32 s%d, s%d, 3" % (sT0, sR)); A("s_and_b32 s%d, s%d, 0x1c" % (sT0, sT0)); A("s_add_u32 s%d, s%d, s%d" % (sT0, sT0, sR)); A("s_and_b32 s%d, s%d, 0x1c" % (sT0, sT0))
        A("s_and_b32 s%d, s%d, 0xe3" % (sRQ, sR)); A("s_or_b32 s%d, s%d, s%d" % (sRQ, sRQ, sT0))
    elif qmap == 4:
        A("s_lshr_b32 s%d, s%d, 5" % (sT0, sR)); A("s_lshl_b32 s%d, s%d, 1" % (sT0, sT0)); A("s_bfe_u32 s%d, s%d, 0x10001" % (sT1, sR)); A("s_add_u32 s%d, s%d, s%d" % (sT0, sT0, sT1))
        A("s_lshr_b32 s%d, s%d, 2" % (sT1, sT0)); A("s_lshl_b32 s%d, s%d, 1" % (sT1, sT1)); A("s_bfe_u32 s%d, s%d, 0x30002" % (sT2, sR)); A("s_add_u32 s%d, s%d, s%d" % (sT1, sT1, sT2))
        A("s_and_b32 s%d, s%d, 7" % (sT1, sT1)); A("s_lshl_b32 s%d, s%d, 3" % (sT0, sT0)); A("s_add_u32 s%d, s%d, s%d" % (sT0, sT0, sT1)); A("s_lshl_b32 s%d, s%d, 1" % (sT0, sT0))
        A("s_and_b32 s%d, s%d, 1" % (sT1, sR)); A("s_add_u32 s%d, s%d, s%d" % (sRQ, sT0, sT1))
    A("v_lshlrev_b32 v%d, 4, v0" % vL16); A("v_lshrrev_b32 v%d, 4, v0" % vG4); A("v_bfe_u32 v%d, v0, 2, 2" % vC4)
    A("v_and_b32 v%d, 3, v0" % vR4); A("v_and_b32 v%d, 15, v0" % vN16); A("v_mov_b32 v%d, 0x%x" % (vHI, HI)); A("v_mov_b32 v%d, 1" % vONE)
    A("s_mov_b32 s%d, 0x05040100" % sSELLO); A("s_mov_b32 s%d, 0x07060302" % sSELHI); A("s_mov_b32 s%d, 0xffff0000" % sMASK)
    A("s_mov_b32 s%d, 0x%x" % (sSCALE, f2u(128 ** -0.5))); A("s_mov_b32 s%d, 0x%x" % (sL2E, f2u(1.4426950408889634)))
    c0 = -2.0 * 0.7978845608028654 * 1.4426950408889634
    A("s_mov_b32 s%d, 0x%x" % (sC0, f2u(c0))); A("s_mov_b32 s%d, 0x%x" % (sC1, f2u(c0 * 0.044715)))
    A("s_lshr_b32 s%d, s%d, 5" % (sT0, sR)); A("s_lshl_b32 s%d, s%d, 15" % (sT0, sT0))
    A("s_and_b32 s%d, s%d, 31" % (sT1, sR)); A("s_lshl_b32 s%d, s%d, 8" % (sT1, sT1)); A("s_add_u32 s%d, s%d, s%d" % (sT0, sT0, sT1))
    A("s_add_u32 s%d, s%d, 0x%x" % (sOPOFF, sT0, WS_OP))
    A("s_and_b32 s%d, s%d, 7" % (sT0, sR)); A("s_lshl_b32 s%d, s%d, %d" % (sT0, sT0, 13 + spad))
    A("s_lshr_b32 s%d, s%d, 3" % (sT1, sR)); A("s_lshl_b32 s%d, s%d, %d" % (sT1, sT1, 6 + spad)); A("s_add_u32 s%d, s%d, s%d" % (sT0, sT0, sT1))
    A("s_add_u32 s%d, s%d, 0x%x" % (sSPOFF, sT0, WS_SP))
    A("s_lshr_b32 s%d, s%d, 2" % (sT0, sR)); A("s_lshl_b32 s%d, s%d, 7" % (sT0, sT0)); A("s_add_u32 s%d, s%d, 0x%x" % (sSTOFF, sT0, WS_ST))
    A("s_cmp_eq_u32 s%d, 4" % sWAVE); A("s_cbranch_scc1 L_loader")
    A("s_cmp_eq_u32 s%d, 5" % sWAVE); A("s_cbranch_scc1 L_comm")
    A("s_cmp_gt_u32 s%d, 5" % sWAVE); A("s_cbranch_scc1 L_mlp")

    vQ, vS, vTMP, vK = 32, 48, 112, 128
    vKA, vVA = 17, 17
    vM, vLs, vMO, vF, vOWA = 25, 26, 27, 28, 29
    vX = vS
    A("v_lshlrev_b32 v%d, 5, v0" % vT)
    A("v_lshrrev_b32 v%d, 1, v0" % (vT + 1)); A("v_lshlrev_b32 v%d, 13, v%d" % (vT + 1, vT + 1))
    A("v_and_b32 v%d, 1, v0" % (vT + 2)); A("v_lshl_add_u32 v%d, v%d, 4, v%d" % (vT + 1, vT + 2, vT + 1))
    A("s_lshl_b32 s%d, s%d, 11" % (sT2, sWAVE))
    A("s_lshl_b32 s%d, s%d, 20" % (sT0, sWAVE)); A("s_lshl_b32 s%d, s%d, 5" % (sT1, sRQ)); A("s_add_u32 s%d, s%d, s%d" % (sT0, sT0, sT1))
    A("s_lshl_b32 s%d, s%d, 13" % (sT1, sWAVE)); A("s_add_u32 s%d, s%d, %d" % (sT1, sT1, 12 * 8192))
    A("s_waitcnt lgkmcnt(0)")
    if ldst == 2: stamp(12)
    A("buffer_load_dwordx4 %s, v%d, %s, s%d offen" % (vr(vX, 4), vT, srd("X"), sT2))
    A("buffer_load_dwordx4 %s, v%d, %s, s%d offen offset:16" % (vr(vX + 4, 4), vT, srd("X"), sT2))
    nq0 = wqsplit if wqsplit else 4
    for a in range(nq0):
        A("s_add_u32 m0, s%d, %d" % (sT1, a * 1024))
        if 'q' in abl: A("buffer_load_dwordx4 v%d, %s, 0 offen lds" % (vL16, srd("X")))
        else: A("buffer_load_dwordx4 v%d, %s, s%d offen %s lds" % (vT + 1, srd("WQ"), sT0, polq))
        if a < 3: A("s_add_u32 s%d, s%d, 0x40000" % (sT0, sT0))
    if nq0 < 4: A("v_mov_b32 v31, v%d" % (vT + 1)); A("s_mov_b32 s12, s%d" % sT0)
    A("s_barrier")
    A("v_lshrrev_b32 v%d, 5, v0" % (vT + 3)); A("s_lshl_b32 s%d, s%d, 1" % (sT0, sWAVE)); A("v_add_u32 v%d, s%d, v%d" % (vT + 3, sT0, vT + 3))
    A("v_mul_u32_u24 v%d, %d, v%d" % (vT + 3, XN_STRIDE, vT + 3)); A("v_and_b32 v%d, 31, v0" % (vT + 4)); A("v_lshl_add_u32 v%d, v%d, 5, v%d" % (vT + 3, vT + 4, vT + 3))
    A("v_add_u32 v%d, v%d, v%d" % (vT + 3, vHI, vT + 3))
    A("v_and_b32 v%d, 7, v0" % (vT + 4)); A("v_mul_u32_u24 v%d, %d, v%d" % (vT + 4, XN_STRIDE, vT + 4)); A("v_lshl_add_u32 v%d, v%d, 4, v%d" % (vT + 4, vG4, vT + 4))
    A("s_lshl_b32 s%d, s%d, 8" % (sT0, sWAVE)); A("s_add_u32 s%d, s%d, %d" % (sT0, sT0, HI)); A("v_add_u32 v%d, s%d, v%d" % (vT + 4, sT0, vT + 4))
    A("v_lshlrev_b32 v%d, 8, v%d" % (vT + 5, vG4)); A("v_lshl_add_u32 v%d, v%d, 3, v%d" % (vT + 5, vN16, vT + 5)); A("v_add_u32 v%d, s%d, v%d" % (vT + 5, sT1, vT + 5))
    A("s_lshl_b32 s%d, s%d, 10" % (sT0, sWAVE)); A("s_add_u32 s%d, s%d, %d" % (sT0, sT0, HI)); A("v_add_u32 v%d, s%d, v%d" % (vT + 6, sT0, vL16))
    A("s_lshl_b32 s%d, s%d, 13" % (sT0, sWAVE)); A("v_lshlrev_b32 v%d, 8, v%d" % (vT, vN16)); A("v_add_u32 v%d, s%d, v%d" % (vT, sT0, vT))
    for m in range(4):
        A("v_add_u32 v%d, %d, v%d" % (vT + 1, 4 * m, vG4)); A("v_xor_b32 v%d, v%d, v%d" % (vT + 1, vT + 1, vN16))
        A("v_lshl_add_u32 v%d, v%d, 4, v%d" % (vKA + m, vT + 1, vT)); A("v_add_u32 v%d, 0x10000, v%d" % (vKA + 4 + m, vKA + m))
    A("s_lshl_b32 s%d, s%d, 2" % (sT0, sWAVE)); A("s_add_u32 s%d, s%d, %d" % (sT0, sT0, HI)); A("v_mov_b32 v%d, s%d" % (30, sT0))
    A("s_mov_b32 s%d, 0" % sFULL)
    A("s_waitcnt vmcnt(%d)" % nq0)
    for a in range(nq0, 4):
        A("s_add_u32 m0, s%d, %d" % (sT1, a * 1024))
        A("buffer_load_dwordx4 v31, %s, s12 offen %s lds" % (srd("WQ"), polq))
        if a < 3: A("s_add_u32 s12, s12, 0x40000")
    stamp(1)
    layernorm(vX, 8, vX + 8, vX + 24, vX + 40, 2)
    A("ds_write_b128 v%d, %s offset:%d" % (vT + 3, vr(vX, 4), L_XN)); A("ds_write_b128 v%d, %s offset:%d" % (vT + 3, vr(vX + 4, 4), L_XN + 16))
    lds_add(vHI, F_XN)
    A("s_waitcnt vmcnt(0)")
    for m in range(4):
        A("ds_read_b64_tr_b16 %s, v%d offset:%d" % (vr(vK + 4 * m, 2), vT + 5, m * 1024))
        A("ds_read_b64_tr_b16 %s, v%d offset:%d" % (vr(vK + 4 * m + 2, 2), vT + 5, m * 1024 + 128))
    lds_wait(F_XN, 4)
    for m in range(4): A("ds_read_b128 %s, v%d offset:%d" % (vr(vK + 16 + 4 * m, 4), vT + 4, L_XN + m * 64))
    for m in range(4):
        A("s_waitcnt lgkmcnt(%d)" % (3 - m))
        A("v_mfma_f32_16x16x32_bf16 %s, %s, %s, %s" % (vr(vTMP, 4), vr(vK + 4 * m, 4), vr(vK + 16 + 4 * m, 4), "0" if m == 0 else vr(vTMP, 4)))
    A("ds_write_b128 v%d, %s offset:%d" % (vT + 6, vr(vTMP, 4), L_QP))
    lds_add(vHI, F_QP)
    A("s_mov_b64 exec, 1"); A("ds_add_u32 v30, v%d offset:%d" % (vONE, F_FREED)); A("s_mov_b64 exec, -1")
    stamp(2)
    def wait_block(n4):
        A("s_add_u32 s%d, s%d, %d" % (sT0, sWAVE, 4 * n4 + 1))
        lds_wait(F_FULL, "s%d" % sT0, keep=sFULL)
    def read_k(j):
        base = vK + 32 * (j % 4)
        for t in range(2):
            for m in range(4):
                A("ds_read_b128 %s, v%d offset:%d" % (vr(base + 16 * t + 4 * m, 4), vKA + m + (4 if (j & 2) else 0), (j & 1) * 32768 + t * 4096))
    def qk_block(j):
        base = vK + 32 * (j % 4)
        for m in range(4):
            for t in range(2):
                acc = vr(vS + 8 * j + 4 * t, 4)
                A("v_mfma_f32_16x16x32_bf16 %s, %s, %s, %s" % (acc, vr(base + 16 * t + 4 * m, 4), vr(vQ + 4 * m, 4), "0" if m == 0 else acc))
    def round_block(j):
        for p in range(4):
            a, b, t = vS + 8 * j + 2 * p, vS + 8 * j + 2 * p + 1, vT + (p & 1)
            if mimic:
                A("v_cvt_pk_bf16_f32 v%d, v%d, v%d" % (t, a, b)); unpack(a, b, t)
            A("v_mul_f32 v%d, s%d, v%d" % (a, sSCALE, a)); A("v_mul_f32 v%d, s%d, v%d" % (b, sSCALE, b))
            if mimic:
                A("v_cvt_pk_bf16_f32 v%d, v%d, v%d" % (t, a, b)); unpack(a, b, t)
            if j == 0 and p == 0: A("v_max_f32 v%d, v%d, v%d" % (vM, a, b))
            else: A("v_max3_f32 v%d, v%d, v%d, v%d" % (vM, a, b, vM))
    for j in range(4):
        wait_block(j); read_k(j); lds_add(30, F_FREED)
    stamp(3)
    lds_wait(F_QR, 1)
    stamp(4)
    A("v_lshlrev_b32 v%d, 8, v%d" % (vT, vC4)); A("v_lshl_add_u32 v%d, v%d, 4, v%d" % (vT, vG4, vT)); A("v_add_u32 v%d, v%d, v%d" % (vT, vHI, vT))
    for m in range(4): A("ds_read_b128 %s, v%d offset:%d" % (vr(vQ + 4 * m, 4), vT, L_QB + m * 64))
    A("s_waitcnt lgkmcnt(0)")
    for j in range(4):
        qk_block(j)
        wait_block(4 + j); A("s_nop 3"); read_k(4 + j)
        if j >= 1: round_block(j - 1)
        lds_add(30, F_FREED)
    for j in range(4, 8):
        qk_block(j); round_block(j - 1)
    A("v_lshl_add_u32 v%d, v%d, 2, v%d" % (vT + 2, vG4, vC4))
    A("v_and_b32 v%d, 7, v%d" % (vT + 3, vT + 2)); A("v_lshlrev_b32 v%d, 1, v%d" % (vT + 3, vT + 3))
    A("v_lshrrev_b32 v%d, 1, v%d" % (vT + 4, vR4)); A("v_xor_b32 v%d, v%d, v%d" % (vT + 3, vT + 3, vT + 4))
    A("v_lshlrev_b32 v%d, 8, v%d" % (vT + 2, vT + 2)); A("v_lshl_add_u32 v%d, v%d, 4, v%d" % (vT + 2, vT + 3, vT + 2))
    A("v_and_b32 v%d, 1, v0" % (vT + 4)); A("v_lshl_add_u32 v%d, v%d, 3, v%d" % (vT + 2, vT + 4, vT + 2))
    A("s_lshl_b32 s%d, s%d, 13" % (sT0, sWAVE)); A("v_add_u32 v%d, s%d, v%d" % (vVA, sT0, vT + 2))
    for d in range(1, 8): A("v_xor_b32 v%d, %d, v%d" % (vVA + d, 32 * d, vVA))
    round_block(7)
    swap_red(vM, vT, "v_max_f32", 32); swap_red(vM, vT, "v_max_f32", 16)
    A("v_mul_f32 v%d, s%d, v%d" % (vM, sL2E, vM))
    A("v_lshlrev_b32 v%d, 4, v%d" % (vT + 1, vG4)); A("ds_bpermute_b32 v%d, v%d, v%d" % (vMO, vT + 1, vM))
    vP = vK
    for j in range(32):
        a, b = vS + 2 * j, vS + 2 * j + 1
        A("v_fma_f32 v%d, v%d, s%d, -v%d" % (a, a, sL2E, vM)); A("v_fma_f32 v%d, v%d, s%d, -v%d" % (b, b, sL2E, vM))
        A("v_exp_f32 v%d, v%d" % (a, a)); A("v_exp_f32 v%d, v%d" % (b, b))
        if j >= 1:
            pa, pb = a - 2, b - 2
            if j == 1: A("v_add_f32 v%d, v%d, v%d" % (vLs, pa, pb))
            else: A("v_add_f32 v%d, v%d, v%d" % (vLs, vLs, pa)); A("v_add_f32 v%d, v%d, v%d" % (vLs, vLs, pb))
            A("v_cvt_pk_bf16_f32 v%d, v%d, v%d" % (vP + j - 1, pa, pb))
    A("v_add_f32 v%d, v%d, v%d" % (vLs, vLs, vS + 62)); A("v_add_f32 v%d, v%d, v%d" % (vLs, vLs, vS + 63))
    A("v_cvt_pk_bf16_f32 v%d, v%d, v%d" % (vP + 31, vS + 62, vS + 63))
    swap_red(vLs, vT, "v_add_f32", 32); swap_red(vLs, vT, "v_add_f32", 16)
    A("s_lshl_b32 s%d, s%d, 5" % (sT0, sWAVE)); A("s_add_u32 s%d, s%d, %d" % (sT0, sT0, HI)); A("v_lshlrev_b32 v%d, 3, v%d" % (vT, vC4)); A("v_add_u32 v%d, s%d, v%d" % (vT, sT0, vT))
    A("v_mov_b32 v%d, v%d" % (vT + 2, vM)); A("v_mov_b32 v%d, v%d" % (vT + 3, vLs))
    A("s_mov_b64 exec, 0x1111"); A("ds_write_b64 v%d, %s offset:%d" % (vT, vr(vT + 2, 2), L_ST)); A("s_mov_b64 exec, -1")
    lds_add(vHI, F_ST)
    stamp(5)
    A("s_lshl_b32 s%d, s%d, 11" % (sT0, sWAVE)); A("s_add_u32 s%d, s%d, %d" % (sT0, sT0, HI + L_OW))
    A("v_lshlrev_b32 v%d, 9, v%d" % (vOWA, vG4)); A("v_lshl_add_u32 v%d, v%d, 2, v%d" % (vOWA, vN16, vOWA)); A("v_add_u32 v%d, s%d, v%d" % (vOWA, sT0, vOWA))
    vVB = vK + 32
    def read_v(j):
        base = vVB + 32 * (j & 1)
        for d in range(8):
            for t in range(2):
                A("ds_read_b64_tr_b16 %s, v%d offset:%d" % (vr(base + 4 * d + 2 * t, 2), vVA + d, (j & 1) * 32768 + t * 4096))
    def pv(j, d):
        base = vVB + 32 * (j & 1)
        acc = vr(vS + 4 * d, 4)
        A("v_mfma_f32_16x16x32_bf16 %s, %s, %s, %s" % (acc, vr(vP + 4 * j, 4), vr(base + 4 * d, 4), "0" if j == 0 else acc))
    vS2, vF2 = vS + 32, 31
    def factor(dst, m):
        lds_wait(F_GR, 1)
        A("v_lshl_add_u32 v%d, v%d, 3, v%d" % (vT, vG4, vHI)); A("ds_read_b64 %s, v%d offset:%d" % (vr(vT + 2, 2), vT, L_GS)); A("s_waitcnt lgkmcnt(0)")
        A("v_sub_f32 v%d, v%d, v%d" % (dst, m, vT + 2)); A("v_exp_f32 v%d, v%d" % (dst, dst)); A("v_mul_f32 v%d, v%d, v%d" % (dst, dst, vT + 3))
    def wait_pos(j, out):
        ok = A.label("pok"); again = A.label("pagain"); chk = A.label("pchk")
        A("s_add_u32 s%d, s%d, %d" % (sT0, sWAVE, 32 + 4 * j + 1))
        A("s_mov_b32 s%d, 0" % sSPIN)
        A("s_branch " + chk)
        A(again + ":")
        A("ds_read_b64 %s, v%d offset:%d" % (vr(vT + 2, 2), vHI, F_FULL)); A("s_waitcnt lgkmcnt(0)")
        A("v_readfirstlane_b32 s%d, v%d" % (sFULL, vT + 2)); A("v_readfirstlane_b32 s%d, v%d" % (sPLAN, vT + 3))
        A(chk + ":")
        A("s_cmp_ge_u32 s%d, s%d" % (sFULL, sT0)); A("s_cbranch_scc1 " + ok)
        A("s_sub_u32 s%d, s%d, 0x100" % (sT1, sPLAN)); A("s_cmp_le_u32 s%d, %d" % (sT1, j)); A("s_cbranch_scc1 " + out)
        A("s_add_u32 s%d, s%d, 1" % (sSPIN, sSPIN)); A("s_cmp_lt_u32 s%d, %d" % (sSPIN, lspin)); A("s_cbranch_scc1 " + again)
        A("s_branch " + out)
        A(ok + ":")
    if steal:
        lds_wait(F_AM, 1)
        A("v_lshrrev_b32 v%d, 2, v0" % vT); A("v_lshlrev_b32 v%d, 4, v%d" % (vT, vT))
        A("s_lshl_b32 s%d, s%d, 12" % (sT0, sR)); A("s_lshl_b32 s%d, s%d, 10" % (sT1, sWAVE)); A("s_add_u32 s%d, s%d, s%d" % (sT0, sT0, sT1)); A("s_add_u32 s%d, s%d, 0x%x" % (sT0, sT0, WS_PR))
        A("s_mov_b32 exec_lo, 0x11111111"); A("s_mov_b32 exec_hi, 0x11111111")
        for u in range(3): A("buffer_store_dwordx4 %s, v%d, %s, s%d offen offset:%d sc1" % (vr(vP + 4 * (5 + u), 4), vT, srd("WS"), sT0, 256 * u))
        A("s_mov_b64 exec, 0x1111")
        A("buffer_store_dword v%d, v0, %s, s%d offen offset:768 sc1" % (vM, srd("WS"), sT0))
        A("s_mov_b64 exec, -1")
        A("s_mov_b32 s%d, 0" % sPLAN)
    for j in range(11 if steal else 8):
        if j == 7:
            factor(vF, vMO)
            stamp(6)
        if j < NOWN: wait_block(8 + j)
        else: wait_pos(j, "L_vout%d" % j)
        if j == 7: stamp(7)
        if j >= 8:
            if j == 8:
                A("v_lshrrev_b32 v%d, 2, v0" % (vT + 4)); A("v_lshlrev_b32 v%d, 4, v%d" % (vT + 4, vT + 4))
                A("s_lshl_b32 s%d, s%d, 10" % (sT1, sWAVE)); A("s_add_u32 s%d, s%d, %d" % (sT1, sT1, HI + L_PP)); A("v_add_u32 v%d, s%d, v%d" % (vT + 4, sT1, vT + 4))
                A("v_lshl_add_u32 v%d, v%d, 2, s%d" % (vT + 5, vG4, sT1))
                for u in range(3): A("ds_read_b128 %s, v%d offset:%d" % (vr(vP + 4 * u, 4), vT + 4, 256 * (2 - u)))
                A("ds_read_b32 v%d, v%d offset:768" % (vF2, vT + 5)); A("s_waitcnt lgkmcnt(0)")
                factor(vF2, vF2)
        read_v(j)
        if j % 4 == 1:
            for d in range(8): A("v_add_u32 v%d, 0x10000, v%d" % (vVA + d, vVA + d))
        if j % 4 == 3 and (steal or j < 7):
            for d in range(8): A("v_subrev_u32 v%d, 0x10000, v%d" % (vVA + d, vVA + d))
        for d in range(8):
            A("s_waitcnt lgkmcnt(%d)" % (14 - 2 * d))
            if d == 7 and j < (7 if steal else 4):
                A("s_mov_b64 exec, 1"); A("ds_add_u32 v30, v%d offset:%d" % (vONE, F_FREED)); A("s_mov_b64 exec, -1")
            if j < 8: pv(j, d)
            else:
                acc = vr(vS2 + 4 * d, 4)
                A("v_mfma_f32_16x16x32_bf16 %s, %s, %s, %s" % (acc, vr(vP + 4 * (j - 8), 4), vr(vVB + 32 * (j & 1) + 4 * d, 4), "0" if j == 8 else acc))
    if steal:
        A("L_vout9:"); A("L_vout10:")
        A("s_nop 7")
        for d in range(8): A("v_mul_f32 v%d, v%d, v%d" % (vTMP + d, vF, vS + 4 * d))
        for d in range(8): A("v_fmac_f32 v%d, v%d, v%d" % (vTMP + d, vF2, vS2 + 4 * d))
        A("s_branch L_vsum")
        A("L_vout5:"); A("L_vout6:")
        factor(vF, vMO)
        A("L_vout7:"); A("L_vout8:")
        A("s_nop 7")
    for d in range(8): A("v_mul_f32 v%d, v%d, v%d" % (vTMP + d, vF, vS + 4 * d))
    if steal: A("L_vsum:")
    for d in range(0, 8, 2): A("ds_write2_b32 v%d, v%d, v%d offset0:%d offset1:%d" % (vOWA, vTMP + d, vTMP + d + 1, 16 * d, 16 * d + 16))
    vWOA, vOIR, vWO = 17, 18, vK
    A("v_lshlrev_b32 v%d, 7, v%d" % (vWOA, vC4)); A("v_lshl_add_u32 v%d, v%d, 10, v%d" % (vWOA, vG4, vWOA)); A("v_lshl_add_u32 v%d, v%d, 3, v%d" % (vWOA, vR4, vWOA))
    A("s_lshl_b32 s%d, s%d, 5" % (sT0, sWAVE)); A("s_add_u32 s%d, s%d, %d" % (sT0, sT0, HI + L_WO)); A("v_add_u32 v%d, s%d, v%d" % (vWOA, sT0, vWOA))
    A("s_waitcnt lgkmcnt(0)")
    A("s_barrier")
    stamp(8)
    def wo_reads():
        if wolate: lds_wait(F_WO, 1, sl=0)
        for m in range(4):
            A("ds_read_b64_tr_b16 %s, v%d offset:%d" % (vr(vWO + 4 * m, 2), vWOA, m * 4096))
            A("ds_read_b64_tr_b16 %s, v%d offset:%d" % (vr(vWO + 4 * m + 2, 2), vWOA, m * 4096 + 512))
    def oir_addr():
        A("v_lshrrev_b32 v%d, 1, v%d" % (vT, vN16)); A("v_lshlrev_b32 v%d, 10, v%d" % (vT, vT)); A("v_and_b32 v%d, 1, v0" % (vT + 1)); A("v_lshl_add_u32 v%d, v%d, 8, v%d" % (vT, vT + 1, vT))
        for m in range(4):
            A("v_add_u32 v%d, %d, v%d" % (vT + 1, 4 * m, vG4)); A("v_xor_b32 v%d, v%d, v%d" % (vT + 1, vT + 1, vN16))
            A("v_lshl_add_u32 v%d, v%d, 4, v%d" % (vOIR + m, vT + 1, vT))
        A("v_lshrrev_b32 v%d, 1, v%d" % (22, vN16)); A("v_lshlrev_b32 v22, %d, v22" % (16 + spad)); A("v_lshl_add_u32 v22, v%d, 4, v22" % vG4)
    A("s_cmp_gt_u32 s%d, 1" % sWAVE); A("s_cbranch_scc1 L_gather23")
    A("s_lshl_b32 s%d, s%d, 10" % (sT0, sWAVE)); A("s_add_u32 s%d, s%d, %d" % (sT0, sT0, HI + L_OW)); A("v_add_u32 v%d, s%d, v%d" % (vT, sT0, vL16))
    for w in range(4): A("ds_read_b128 %s, v%d offset:%d" % (vr(vS + 4 * w, 4), vT, w * 2048))
    A("v_lshrrev_b32 v%d, 5, v0" % (vT + 1)); A("v_lshlrev_b32 v%d, 13, v%d" % (vT + 1, vT + 1)); A("v_and_b32 v%d, 31, v0" % (vT + 2)); A("v_lshl_add_u32 v%d, v%d, 3, v%d" % (vT + 1, vT + 2, vT + 1))
    A("s_lshl_b32 s%d, s%d, 14" % (sT0, sWAVE)); A("s_add_u32 s%d, s%d, s%d" % (sT0, sT0, sOPOFF))
    A("s_waitcnt lgkmcnt(2)")
    for i in range(4): A("v_add_f32 v%d, v%d, v%d" % (vS + i, vS + i, vS + 4 + i))
    A("s_waitcnt lgkmcnt(0)")
    for i in range(4): A("v_add_f32 v%d, v%d, v%d" % (vS + 8 + i, vS + 8 + i, vS + 12 + i))
    for i in range(4): A("v_add_f32 v%d, v%d, v%d" % (vS + i, vS + i, vS + 8 + i))
    A("v_cvt_pk_bf16_f32 v%d, v%d, v%d" % (vTMP, vS, vS + 1)); A("v_cvt_pk_bf16_f32 v%d, v%d, v%d" % (vTMP + 1, vS + 2, vS + 3))
    A("buffer_store_dwordx2 %s, v%d, %s, s%d offen %s" % (vr(vTMP, 2), vT + 1, srd("WS"), sT0, ts))
    stamp(11)
    wo_reads(); oir_addr()
    A("s_branch L_barE_c")
    def gather(idx_sgpr, extra):
        vGa = 40
        A("s_lshr_b32 s%d, s%d, 3" % (sT1, sR)); A("s_lshl_b32 s%d, s%d, 13" % (sT1, sT1)); A("s_lshl_b32 s%d, s%d, 11" % (sT0, idx_sgpr))
        A("s_add_u32 s%d, s%d, s%d" % (sT1, sT1, sT0)); A("s_add_u32 s%d, s%d, 0x%x" % (sT1, sT1, WS_OP))
        lds_ = [(lambda: A("buffer_load_dwordx4 %s, v%d, %s, s%d offen %s" % (vr(vGa, 4), vL16, srd("WS"), sT1, tl)), list(range(vGa, vGa + 4))),
                (lambda: A("buffer_load_dwordx4 %s, v%d, %s, s%d offen offset:1024 %s" % (vr(vGa + 4, 4), vL16, srd("WS"), sT1, tl)), list(range(vGa + 4, vGa + 8)))]
        if td1: A("s_sleep %d" % td1)
        if at1:
            A("v_lshlrev_b32 v%d, 3, v0" % (vT + 7))
            apoll(vGa, vT + 7, sT1, 0, 0, first="only")
            extra()
            A("v_lshrrev_b32 v%d, 5, v0" % (vT + 2)); A("s_lshl_b32 s%d, s%d, 2" % (sT2, idx_sgpr)); A("v_add_u32 v%d, s%d, v%d" % (vT + 3, sT2, vT + 2))
            A("v_bfe_u32 v%d, v0, 1, 4" % (vT + 4)); A("v_xor_b32 v%d, v%d, v%d" % (vT + 3, vT + 3, vT + 4))
            A("v_lshlrev_b32 v%d, 8, v%d" % (vT + 2, vT + 2)); A("v_add_u32 v%d, s%d, v%d" % (vT + 2, sT0, vT + 2))
            A("v_and_b32 v%d, 1, v0" % (vT + 4)); A("v_lshl_add_u32 v%d, v%d, 3, v%d" % (vT + 2, vT + 4, vT + 2))
            A("v_lshl_add_u32 v%d, v%d, 4, v%d" % (vT + 5, vT + 3, vT + 2)); A("v_xor_b32 v%d, 32, v%d" % (vT + 6, vT + 5))
            apoll(vGa, vT + 7, sT1, 24, tsleep, first=False)
            stamp(11)
            for k in range(4): A("ds_write_b64 v%d, %s offset:%d" % (vT + 5 + (k >> 1), vr(vGa + 2 * k, 2), 512 * k))
            return
        for i_, _ in lds_: i_()
        A("v_and_b32 v%d, 1, v%d" % (vT + 2, vG4)); A("s_lshl_b32 s%d, s%d, 2" % (sT2, idx_sgpr)); A("v_add_u32 v%d, s%d, v%d" % (vT + 2, sT2, vT + 2))
        A("v_xor_b32 v%d, v%d, v%d" % (vT + 3, vT + 2, vN16)); A("v_xor_b32 v%d, 2, v%d" % (vT + 4, vT + 3))
        A("v_lshlrev_b32 v%d, 8, v%d" % (vT + 2, vG4)); A("v_add_u32 v%d, s%d, v%d" % (vT + 2, sT0, vT + 2))
        A("v_lshl_add_u32 v%d, v%d, 4, v%d" % (vT + 5, vT + 3, vT + 2)); A("v_lshl_add_u32 v%d, v%d, 4, v%d" % (vT + 6, vT + 4, vT + 2))
        extra()
        gpoll(lds_, first=False, sleep=tsleep, P=P1)
        stamp(11)
        A("ds_write_b128 v%d, %s" % (vT + 5, vr(vGa, 4))); A("ds_write_b128 v%d, %s offset:1024" % (vT + 6, vr(vGa + 4, 4)))
    A("L_gather23:")
    A("s_sub_u32 s%d, s%d, 2" % (sMU, sWAVE))
    gather(sMU, lambda: (wo_reads(), oir_addr()))
    A("L_barE_c:")
    A("s_waitcnt lgkmcnt(0)")
    A("s_barrier")
    stamp(9)
    for u in range(2):
        for m in range(4): A("ds_read_b128 %s, v%d offset:%d" % (vr(vS + 16 * u + 4 * m, 4), vOIR + m, u * 512))
    A("s_lshl_b32 s%d, s%d, %d" % (sT0, sWAVE, 11 + spad)); A("s_add_u32 s%d, s%d, s%d" % (sT0, sT0, sSPOFF))
    for u in range(2):
        for m in range(4):
            A("s_waitcnt lgkmcnt(%d)" % (7 - 4 * u - m))
            acc = vr(vTMP + 4 * u, 4)
            A("v_mfma_f32_16x16x32_bf16 %s, %s, %s, %s" % (acc, vr(vWO + 4 * m, 4), vr(vS + 16 * u + 4 * m, 4), "0" if m == 0 else acc))
    for i in range(4): A("v_add_f32 v%d, v%d, v%d" % (vTMP + i, vTMP + i, vTMP + 4 + i))
    for i in range(4): dpp("v_add_f32", vTMP + i, "quad_perm:[1,0,3,2]")
    A("s_mov_b32 exec_lo, 0x55555555"); A("s_mov_b32 exec_hi, 0x55555555")
    stamp(10)
    A("buffer_store_dwordx4 %s, v22, %s, s%d offen %s" % (vr(vTMP, 4), srd("WS"), sT0, ts))
    A("s_mov_b64 exec, -1")
    A("s_branch L_done")

    A("L_loader:")
    if ldprio: A("s_setprio %d" % ldprio)
    vO = 17
    A("v_lshlrev_b32 v%d, 8, v%d" % (vT, vG4))
    for i in range(4):
        A("v_add_u32 v%d, %d, v%d" % (vT + 1, 4 * i, vG4)); A("v_xor_b32 v%d, v%d, v%d" % (vT + 1, vT + 1, vN16)); A("v_lshl_add_u32 v%d, v%d, 4, v%d" % (vO + i, vT + 1, vT))
    for i in range(2):
        A("v_add_u32 v%d, %d, v%d" % (vT + 1, 4 * i, vG4)); A("v_lshlrev_b32 v%d, 1, v%d" % (vT + 1, vT + 1))
        A("v_xor_b32 v%d, v%d, v%d" % (vT + 1, vT + 1, vN16)); A("v_lshl_add_u32 v%d, v%d, 4, v%d" % (vO + 4 + i, vT + 1, vT))
    sG, sSLOT, sFR, sN = 12, 13, 88, 92
    A("s_bfe_u32 s%d, s%d, 0x30002" % (sBASE, sR)); A("s_lshl_b32 s%d, s%d, 23" % (sBASE, sBASE)); A("s_lshr_b32 s%d, s%d, 5" % (sT0, sR)); A("s_lshl_b32 s%d, s%d, 20" % (sT0, sT0))
    A("s_add_u32 s%d, s%d, s%d" % (sBASE, sBASE, sT0)); A("s_and_b32 s%d, s%d, 3" % (sT0, sR)); A("s_lshl_b32 s%d, s%d, 18" % (sT0, sT0)); A("s_add_u32 s%d, s%d, s%d" % (sBASE, sBASE, sT0))
    if rot:
        A("s_mov_b32 s94, s%d" % sBASE)
        A("s_mul_i32 s%d, s%d, %d" % (sT0, sR, rot)); A("s_lshr_b32 s%d, s%d, 5" % (sT1, sR)); A("s_add_u32 s%d, s%d, s%d" % (sT0, sT0, sT1))
        A("s_and_b32 s%d, s%d, 31" % (sT0, sT0)); A("s_lshl_b32 s%d, s%d, 13" % (sT0, sT0)); A("s_add_u32 s%d, s%d, s%d" % (sBASE, sBASE, sT0))
    if Fhi:
        A("s_and_b32 s%d, s2, 7" % sT0); A("s_lshr_b32 s%d, %d, s%d" % (sT0, himask, sT0)); A("s_and_b32 s%d, s%d, 1" % (sT0, sT0)); A("s_cselect_b32 s95, %d, %d" % (Fhi, F))
    A("s_mov_b32 s94, 0"); A("s_mov_b32 s93, 0"); A("s_mov_b32 s%d, s%d" % (sOFF, sBASE)); A("s_mov_b32 s%d, 0" % sG); A("s_mov_b32 s%d, 0" % sSLOT); A("s_mov_b32 s%d, 0" % sN)
    A("s_waitcnt lgkmcnt(0)")
    def publish_full(sgpr):
        A("v_mov_b32 v%d, s%d" % (vT, sgpr)); A("s_mov_b64 exec, 1"); A("ds_max_u32 v%d, v%d offset:%d" % (vHI, vT, F_FULL)); A("s_mov_b64 exec, -1")
    def dma_block(isk):
        Dm = D if isk else DV
        for half in range(2):
            A("s_mov_b32 m0, s%d" % sSLOT)
            if Dm: A("s_waitcnt vmcnt(%d)" % Dm)
            for i in range(4):
                A("buffer_load_dwordx4 v%d, %s, s%d offen offset:%d %s lds" % (vO + i if isk else vO + 4 + (i & 1), srd("K" if isk else "V"), sOFF, i * 1024, pol))
            A("s_add_u32 s%d, s%d, 4096" % (sOFF, sOFF)); A("s_add_u32 s%d, s%d, 4096" % (sSLOT, sSLOT))
            if Dm and (4 * half - Dm) % 8 < 4:
                A("s_add_i32 s%d, s%d, %d" % (sT0, sN, (4 * half - Dm) // 8)); A("s_max_i32 s%d, s%d, 0" % (sT0, sT0)); publish_full(sT0)
        if rot:
            A("s_and_b32 s%d, s%d, 0x3ffff" % (sOFF, sOFF)); A("s_or_b32 s%d, s%d, s94" % (sOFF, sOFF))
        A("s_and_b32 s%d, s%d, 0x1ffff" % (sSLOT, sSLOT)); A("s_add_u32 s%d, s%d, 1" % (sN, sN))
    if ldst == 2: stamp(1)
    for _ in range(pre): dma_block(True)
    A("s_barrier")
    if ldst == 2: stamp(2)
    for _ in range(4 - pre): dma_block(True)
    A("s_mov_b32 s%d, 1" % sG)
    if ldst == 2: stamp(3)
    def read_freed():
        A("ds_read_b128 %s, v%d offset:%d" % (vr(vT + 4, 4), vHI, F_FREED)); A("s_waitcnt lgkmcnt(0)")
        for c in range(4): A("v_readfirstlane_b32 s%d, v%d" % (sFR + c, vT + 4 + c))
    for isk, last in ((True, 8), (False, 19 if steal else 16)):
        loop = "L_ld_k" if isk else "L_ld_v"
        if not isk: A("s_mov_b32 s%d, s%d" % (sOFF, sBASE))
        A(loop + ":")
        for g_, reg in ((p_a, 16), (p_b, 18)):
            if g_ > 0 and g_ < 16 and (g_ < 8) == isk:
                sk = A.label("st"); A("s_cmp_lg_u32 s%d, %d" % (sG, g_)); A("s_cbranch_scc1 " + sk); A("s_memrealtime s[%d:%d]" % (reg, reg + 1)); A(sk + ":")
        if ldst == 1:
            for k, g in enumerate((2, 3, 4, 5, 6, 7) if isk else (8, 10, 12, 14)):
                sk = A.label("st"); A("s_cmp_lg_u32 s%d, %d" % (sG, g)); A("s_cbranch_scc1 " + sk); stamp(k + 1 if isk else k + 7); A(sk + ":")
        if steal and not isk:
            go = A.label("pgo"); again = A.label("pagain")
            A("s_cmp_lt_u32 s%d, %d" % (sG, 8 + NOWN)); A("s_cbranch_scc1 " + go)
            A("s_mov_b32 s%d, 0" % sSPIN); A("s_sub_u32 s%d, s%d, 8" % (sT1, sG))
            if ldst: A("s_memrealtime s[14:15]")
            A(again + ":")
            A("ds_read_b32 v%d, v%d offset:%d" % (vPOLL, vHI, F_PLAN)); A("s_waitcnt lgkmcnt(0)"); A("v_readfirstlane_b32 s%d, v%d" % (sT0, vPOLL))
            A("s_and_b32 s%d, s%d, 0xff" % (sT2, sT0)); A("s_cmp_gt_u32 s%d, s%d" % (sT2, sT1)); A("s_cbranch_scc1 L_granted")
            A("s_cmp_ge_u32 s%d, 0x100" % sT0); A("s_cbranch_scc1 L_ld_end")
            for k in range(F - 1, -1, -1):
                A("s_cmp_eq_u32 s%d, %d" % (sSPIN, F - 1 - k)); nx = A.label("nx"); A("s_cbranch_scc0 " + nx)
                A("s_sub_u32 s%d, s%d, %d" % (sT0, sN, k)); A("s_waitcnt vmcnt(%d)" % (8 * k)); publish_full(sT0); A(nx + ":")
            if ldst: A("s_add_u32 s93, s93, 1")
            A("s_add_u32 s%d, s%d, 1" % (sSPIN, sSPIN)); A("s_cmp_lt_u32 s%d, %d" % (sSPIN, lspin)); A("s_cbranch_scc1 " + again)
            A("s_branch L_ld_end")
            A("L_granted:")
            if ldst:
                A("s_memrealtime s[36:37]"); A("s_waitcnt lgkmcnt(0)"); A("s_sub_u32 s36, s36, s14"); A("s_add_u32 s94, s94, s36")
            A("s_cmp_lt_u32 s%d, 16" % sG); A("s_cbranch_scc1 " + go)
            A("s_sub_u32 s%d, 23, s%d" % (sT0, sG)); A("s_lshl_b32 s%d, s%d, 15" % (sT0, sT0)); A("s_xor_b32 s%d, s%d, 0x80000" % (sOFF, sBASE)); A("s_add_u32 s%d, s%d, s%d" % (sOFF, sOFF, sT0))
            A(go + ":")
        read_freed()
        A("s_sub_i32 s%d, s%d, 2" % (sT1, sG))
        if Fhi and hiend < 16:
            A("s_cmp_ge_u32 s%d, %d" % (sG, hiend)); A("s_cselect_b32 s95, %d, s95" % F)
        for c in range(4):
            go = A.label("go"); sl = A.label("slow")
            A("s_cmp_ge_i32 s%d, s%d" % (sFR + c, sT1)); A("s_cbranch_scc1 " + go)
            A("s_waitcnt vmcnt(0)"); publish_full(sN)
            if ldst: A("s_add_u32 s93, s93, 100")
            A("s_mov_b32 s%d, 0" % sSPIN)
            A(sl + ":")
            read_freed()
            A("s_cmp_ge_i32 s%d, s%d" % (sFR + c, sT1)); A("s_cbranch_scc1 " + go)
            A("s_add_u32 s%d, s%d, 1" % (sSPIN, sSPIN)); A("s_cmp_lt_u32 s%d, %d" % (sSPIN, lspin)); A("s_cbranch_scc1 " + sl)
            A(go + ":")
            dma_block(isk)
            if D: pass
            elif bal == 1:
                hi = A.label("hi")
                A("ds_read_b32 v%d, v%d offset:%d" % (vPOLL, vHI, F_MODE))
                A("s_sub_i32 s%d, s%d, %d" % (sT0, sN, F))
                A("s_waitcnt vmcnt(%d) lgkmcnt(0)" % (8 * F)); A("v_readfirstlane_b32 s%d, v%d" % (sT2, vPOLL))
                A("s_cmp_eq_u32 s%d, 0" % sT2); A("s_cbranch_scc1 " + hi)
                publish_full(sT0)
                if ldst: A("s_add_u32 s94, s94, 100")
                A("s_sub_i32 s%d, s%d, %d" % (sT0, sN, (Flo + 7) // 8 if Flo > 7 else Flo))
                A("s_waitcnt vmcnt(%d)" % (Flo if Flo > 7 else 8 * Flo)); A(hi + ":"); publish_full(sT0)
            elif Fhi:
                hi = A.label("hi")
                A("s_sub_i32 s%d, s%d, s95" % (sT0, sN)); A("s_max_i32 s%d, s%d, 0" % (sT0, sT0))
                A("s_waitcnt vmcnt(%d)" % (8 * Fhi)); A("s_cmp_eq_u32 s95, %d" % Fhi); A("s_cbranch_scc1 " + hi)
                A("s_waitcnt vmcnt(%d)" % (8 * F)); A(hi + ":"); publish_full(sT0)
            else:
                A("s_sub_i32 s%d, s%d, %d" % (sT0, sN, F))
                if F > 5: A("s_max_i32 s%d, s%d, 0" % (sT0, sT0))
                A("s_waitcnt vmcnt(%d)" % (8 * F)); publish_full(sT0)
        if stamps:
            pass
        A("s_add_u32 s%d, s%d, 1" % (sG, sG)); A("s_cmp_lt_u32 s%d, %d" % (sG, last)); A("s_cbranch_scc1 " + loop)
        if not ldst: stamp(1 if isk else 2)
    def wo_dma():
        A("v_lshrrev_b32 v%d, 3, v0" % (vT + 4)); A("v_lshlrev_b32 v%d, 10, v%d" % (vT + 4, vT + 4)); A("v_and_b32 v%d, 7, v0" % (vT + 5)); A("v_lshl_add_u32 v%d, v%d, 4, v%d" % (vT + 4, vT + 5, vT + 4))
        A("s_lshr_b32 s%d, s%d, 3" % (sT0, sR)); A("s_lshl_b32 s%d, s%d, 17" % (sT0, sT0)); A("s_and_b32 s%d, s%d, 7" % (sT1, sR)); A("s_lshl_b32 s%d, s%d, 7" % (sT1, sT1))
        A("s_add_u32 s%d, s%d, s%d" % (sT0, sT0, sT1))
        for a in range(16):
            A("s_mov_b32 m0, %d" % (HI + L_WO + a * 1024))
            A("buffer_load_dwordx4 v%d, %s, s%d offen %s lds" % (vT + 4, srd("WO"), sT0, polo))
            if a < 15: A("s_add_u32 s%d, s%d, 0x2000" % (sT0, sT0))
    if steal:
        A("L_ld_end:")
        A("s_mov_b64 exec, 1"); A("ds_write_b32 v%d, v%d offset:%d" % (vHI, vONE, F_LI)); A("s_mov_b64 exec, -1")
    if wolate == 1: wo_dma()
    for k in range((DV + 4 + 7) // 8 - 1 if D else max(F, Fhi) - 1, -1, -1):
        A("s_sub_u32 s%d, s%d, %d" % (sT0, sN, k)); A("s_waitcnt vmcnt(%d)" % (8 * k + (16 if wolate == 1 else 0))); publish_full(sT0)
    if wolate == 1:
        if ldst: stamp(11)
        A("s_waitcnt vmcnt(0)"); A("s_mov_b64 exec, 1"); A("ds_write_b32 v%d, v%d offset:%d" % (vHI, vONE, F_WO)); A("s_mov_b64 exec, -1")
    if ldst:
        if wolate == 1: stamp(12)
        else:
            stamp(11)
            A("s_waitcnt lgkmcnt(0)"); A("s_mul_i32 s%d, s%d, 25" % (sT0, sN)); A("s_add_u32 s40, s16, s%d" % sT0); A("s_addc_u32 s41, s17, 0")
            if steal: A("s_add_u32 s36, s16, s94"); A("s_addc_u32 s37, s17, 0")
            if bal: A("s_add_u32 s40, s16, s94"); A("s_addc_u32 s41, s17, 0")
    else: stamp(3)
    if p_b >= 0 and piv:
        if p_b == 16: A("s_memrealtime s[18:19]")
        A("s_waitcnt lgkmcnt(0)"); A("s_sub_u32 s18, s18, s16")
    elif p_b >= 0:
        if p_b == 16: A("s_memrealtime s[18:19]")
        A("s_waitcnt lgkmcnt(0)"); A("s_sub_u32 s18, s18, s16"); A("v_mov_b32 v8, s18"); A("s_mov_b64 exec, 1"); A("buffer_atomic_add v8, off, %s, 0 offset:4" % srd("DBG")); A("s_mov_b64 exec, -1")
    if pmap:
        if not piv: A("s_memrealtime s[18:19]")
        A("s_lshl_b32 s6, s%d, 2" % sR); A("s_add_u32 s6, s6, 0x300000")
        A("s_waitcnt lgkmcnt(0)"); A("v_mov_b32 v8, s18"); A("s_mov_b64 exec, 1"); A("buffer_store_dword v8, off, %s, s6 sc1" % srd("WS")); A("s_mov_b64 exec, -1")
    if pspan:
        A("s_memrealtime s[18:19]"); A("s_waitcnt lgkmcnt(0)")
        if pspan in (3, 4): A("s_mov_b32 s18, s16")
        if pm: A("s_and_b32 s6, s2, %d" % pm); A("s_cmp_eq_u32 s6, %d" % pval); A("s_cselect_b32 s18, s18, s16")
        A("s_not_b32 s16, s16"); A("v_mov_b32 v8, s18"); A("v_mov_b32 v9, s16"); A("s_mov_b64 exec, 1")
        A("buffer_atomic_%s v8, off, %s, 0 offset:4" % ("add" if pspan in (4, 5) else "umax", srd("DBG"))); A("buffer_atomic_umax v9, off, %s, 0 offset:8" % srd("DBG")); A("s_mov_b64 exec, -1")
    if pgrp:
        if not piv: A("s_memrealtime s[18:19]")
        if pgrp == 1: A("s_and_b32 s6, s2, 7")
        elif pgrp == 2: A("s_bfe_u32 s6, s%d, 0x30002" % sR)
        elif pgrp == 3: A("s_lshr_b32 s6, s%d, 5" % sR)
        else: A("s_and_b32 s6, s%d, 3" % sR); A("s_lshr_b32 s7, s2, 7"); A("s_lshl_b32 s7, s7, 2"); A("s_add_u32 s6, s6, s7")
        A("s_lshl_b32 s6, s6, 5")
        A("s_waitcnt lgkmcnt(0)"); A("v_mov_b32 v8, s18"); A("s_mov_b64 exec, 1"); A("buffer_atomic_%s v8, off, %s, s6 offset:4" % ("add" if pat >= 12 else "umax", srd("DBG"))); A("s_mov_b64 exec, -1")
    if probe:
        A("s_memrealtime s[20:21]"); A("s_waitcnt lgkmcnt(0)")
        if pstart: A("s_mov_b32 s20, s16")
        A("s_and_b32 s6, s2, 7"); A("s_lshr_b32 s6, %d, s6" % probe); A("s_and_b32 s6, s6, 1"); A("s_lshl_b32 s6, s6, 2"); A("s_add_u32 s6, s6, 4")
        A("s_waitcnt lgkmcnt(0)"); A("v_mov_b32 v8, s20"); A("s_mov_b64 exec, 1"); A("buffer_atomic_add v8, off, %s, s6" % srd("DBG")); A("s_mov_b64 exec, -1")
    A("s_waitcnt lgkmcnt(0)")
    A("s_branch L_done")

    def slot_addrs():
        A("v_lshlrev_b32 v28, 5, v0")
        A("s_and_b32 s%d, s%d, 3" % (sT0, sR)); A("s_lshl_b32 s%d, s%d, 3" % (sT0, sT0)); A("s_add_u32 s%d, s%d, s%d" % (sMU, sT0, sSTOFF))
    A("L_comm:")
    vZ = 20
    for i in range(4): A("v_mov_b32 v%d, 0" % (vZ + i))
    A("v_lshl_add_u32 v%d, v0, 2, v%d" % (vT, vHI))
    A("s_mov_b64 exec, 0xffff"); A("ds_write_b32 v%d, v%d offset:%d" % (vT, vZ, L_FLG)); A("s_mov_b64 exec, -1")
    slot_addrs()
    sEP = 4
    def epoch():
        A("s_waitcnt vmcnt(0)")
        A("v_readfirstlane_b32 s%d, v30" % sEP); A("v_readfirstlane_b32 s%d, v31" % (sEP + 1))
        A("s_add_u32 s%d, s%d, 0x%x" % (sEP, sEP, EP_STEP & 0xffffffff)); A("s_addc_u32 s%d, s%d, 0x%x" % (sEP + 1, sEP + 1, EP_STEP >> 32))
    A("s_waitcnt lgkmcnt(0)")
    A("buffer_load_dwordx2 v[30:31], off, %s, 0 offset:%d sc1" % (srd("WS"), WS_EP))
    A("s_barrier")
    A("v_add_u32 v%d, v%d, v%d" % (vT, vHI, vL16))
    A("v_and_b32 v29, 7, v0"); A("v_lshlrev_b32 v29, 14, v29"); A("v_lshl_add_u32 v29, v%d, 4, v29" % vG4)
    A("s_lshl_b32 s%d, s%d, 6" % (sT2, sRQ)); A("s_add_u32 s%d, s%d, 0x%x" % (sT2, sT2, WS_Q))
    A("s_bfe_u32 s%d, s%d, 0x30002" % (sT0, sR)); A("s_lshl_b32 s%d, s%d, 14" % (sT0, sT0)); A("s_lshr_b32 s%d, s%d, 5" % (sT1, sR)); A("s_lshl_b32 s%d, s%d, 11" % (sT1, sT1))
    A("s_add_u32 s%d, s%d, s%d" % (sT0, sT0, sT1)); A("s_add_u32 s%d, s%d, 0x%x" % (sT0, sT0, WS_Q))
    A("v_lshl_add_u32 v27, v0, 3, v%d" % vHI)
    epoch()
    A("v_mov_b32 v38, s%d" % sEP); A("v_mov_b32 v39, s%d" % (sEP + 1))
    stamp(1)
    lds_wait(F_QP, 4)
    for w in range(4): A("ds_read_b128 %s, v%d offset:%d" % (vr(40 + 4 * w, 4), vT, L_QP + w * 1024))
    A("s_waitcnt lgkmcnt(0)")
    for i in range(4): A("v_add_f32 v%d, v%d, v%d" % (40 + i, 40 + i, 44 + i)); A("v_add_f32 v%d, v%d, v%d" % (48 + i, 48 + i, 52 + i))
    for i in range(4): A("v_add_f32 v%d, v%d, v%d" % (40 + i, 40 + i, 48 + i))
    A("v_cvt_pk_bf16_f32 v36, v40, v41"); A("v_cvt_pk_bf16_f32 v37, v42, v43")
    A("s_mov_b32 exec_lo, 0x00ff00ff"); A("s_mov_b32 exec_hi, 0x00ff00ff")
    A("buffer_store_dwordx4 v[36:39], v29, %s, s%d offen sc1" % (srd("WS"), sT2))
    A("s_mov_b64 exec, -1")
    stamp(2)
    if qdelay: A("s_sleep %d" % qdelay)
    if qtrig: lds_wait(F_FULL, qtrig, sl=4)
    gpoll([(lambda: A("buffer_load_dwordx4 v[32:35], v%d, %s, s%d offen sc1" % (vL16, srd("WS"), sT0)), [32, 33, 34, 35]),
           (lambda: A("buffer_load_dwordx4 v[40:43], v%d, %s, s%d offen offset:1024 sc1" % (vL16, srd("WS"), sT0)), [40, 41, 42, 43])], sleep=qsleep, tag="s[%d:%d]" % (sEP, sEP + 1))
    A("ds_write_b64 v27, v[32:33] offset:%d" % L_QB); A("ds_write_b64 v27, v[40:41] offset:%d" % (L_QB + 512))
    lds_add(vHI, F_QR)
    stamp(4)
    def all_marked():
        A("v_lshlrev_b32 v%d, 5, v0" % (vT + 3))
        word_poll("buffer_load_dword v32, v%d, %s, 0 offen sc1" % (vT + 3, srd("DBG")), 32, "0xff", "v_cmp_gt_u32 vcc, 32, v%d", fsleep)
        stamp(3)
    all_marked()
    lds_add(vHI, F_AM)
    A("v_lshlrev_b32 v%d, 3, v%d" % (vT + 1, vN16)); A("v_add_u32 v%d, v%d, v%d" % (vT + 2, vHI, vT + 1))
    lds_wait(F_ST, 4)
    A("ds_read_b64 v[32:33], v%d offset:%d" % (vT + 2, L_ST)); A("s_waitcnt lgkmcnt(0)")
    def combine(modes):
        A("v_mov_b32 v34, v32")
        for m in modes: dpp("v_max_f32", 34, m)
        A("v_sub_f32 v32, v32, v34"); A("v_exp_f32 v32, v32"); A("v_mul_f32 v35, v32, v33")
        for m in modes: dpp("v_add_f32", 35, m)
    combine(("row_ror:4", "row_ror:8"))
    A("s_mov_b64 exec, 0xf"); A("buffer_store_dwordx2 v[34:35], v28, %s, s%d offen sc1" % (srd("WS"), sMU)); A("s_mov_b64 exec, -1")
    stamp(5)
    if sdelay: A("s_sleep %d" % sdelay)
    if strig:
        lds_wait(F_FULL, strig, sl=8)
    gpoll([(lambda: A("buffer_load_dwordx2 v[32:33], v%d, %s, s%d offen sc1" % (vT + 1, srd("WS"), sSTOFF)), [32, 33])], sleep=ssleep)
    combine(("quad_perm:[1,0,3,2]", "quad_perm:[2,3,0,1]"))
    A("v_rcp_f32 v35, v35"); A("v_lshl_add_u32 v%d, v%d, 3, v%d" % (vT + 2, vC4, vHI))
    A("s_mov_b64 exec, 0x1111"); A("ds_write_b64 v%d, v[34:35] offset:%d" % (vT + 2, L_GS)); A("s_mov_b64 exec, -1")
    lds_add(vHI, F_GR)
    stamp(6)
    A("s_mov_b32 s%d, 2" % sMU)
    A("L_gather56:")
    A("s_waitcnt lgkmcnt(0)")
    A("s_barrier")
    stamp(8)
    gather(sMU, lambda: None)
    A("s_waitcnt lgkmcnt(0)")
    A("s_barrier")
    stamp(9)
    A("s_branch L_done")

    A("L_mlp:")
    vW, vU = 32, 64
    def pg_addr(line, word):
        A("s_lshr_b32 s%d, s2, 3" % line); A("s_lshl_b32 s%d, s%d, 8" % (line, line)); A("s_add_u32 s%d, s%d, 0x%x" % (line, line, WS_PG))
        A("s_and_b32 s%d, s2, 7" % word); A("s_lshl_b32 s%d, s%d, 2" % (word, word)); A("s_add_u32 s%d, s%d, s%d" % (word, word, line))
    def clean():
        A("s_cmp_lg_u32 s%d, 7" % sWAVE); A("s_cbranch_scc1 L_noclean")
        for i in range(4): A("v_mov_b32 v%d, -1" % (60 + i))
        slot_addrs()
        A("v_lshlrev_b32 v%d, 13, v%d" % (59, vG4)); A("v_lshl_add_u32 v%d, v%d, 4, v%d" % (59, vN16, 59))
        A("s_lshl_b32 s%d, s%d, %d" % (sT1, sR, 11 + spad)); A("s_add_u32 s%d, s%d, 0x%x" % (sT1, sT1, WS_SP))
        A("v_lshrrev_b32 v29, 2, v0"); A("v_lshlrev_b32 v29, %d, v29" % (6 + spad)); A("v_lshl_add_u32 v29, v%d, 4, v29" % vR4)
        A("s_waitcnt lgkmcnt(0)")
        A("buffer_load_dwordx2 v[30:31], off, %s, 0 offset:%d sc1" % (srd("WS"), WS_EP))
        A("s_mov_b64 exec, 0xf"); A("buffer_store_dwordx2 v[60:61], v28, %s, s%d offen sc1" % (srd("WS"), sMU)); A("s_mov_b64 exec, -1")
        A("buffer_store_dwordx4 v[60:63], v%d, %s, s%d offen sc1" % (59, srd("WS"), sOPOFF))
        A("buffer_store_dwordx4 v[60:63], v29, %s, s%d offen sc1" % (srd("WS"), sT1))
        A("buffer_store_dwordx4 v[60:63], v29, %s, s%d offen offset:%d sc1" % (srd("WS"), sT1, 1024 << spad))
        if bal:
            pg_addr(sT1, sT3)
            A("s_mov_b64 exec, 1"); A("buffer_store_dword v60, off, %s, s%d sc1" % (srd("WS"), sT3)); A("s_mov_b64 exec, -1")
        if steal:
            A("s_lshl_b32 s%d, s%d, 12" % (sT1, sR)); A("s_add_u32 s%d, s%d, 0x%x" % (sT1, sT1, WS_PR))
            for k in range(4): A("buffer_store_dwordx4 v[60:63], v%d, %s, s%d offen offset:%d sc1" % (vL16, srd("WS"), sT1, 1024 * k))
            A("s_lshl_b32 s%d, s%d, 7" % (sT1, sR)); A("s_add_u32 s%d, s%d, 0x%x" % (sT1, sT1, WS_CW))
            A("s_mov_b64 exec, 1"); A("buffer_store_dword v60, off, %s, s%d sc1" % (srd("WS"), sT1)); A("s_mov_b64 exec, -1")
        A("L_noclean:")
    def arrive(cnt, lbl):
        A("s_cmp_lg_u32 s%d, 7" % sWAVE); A("s_cbranch_scc1 " + lbl)
        A("s_lshr_b32 s%d, s%d, 5" % (sT3, sR)); A("s_lshl_b32 s%d, s%d, 5" % (sT3, sT3))
        A("s_mov_b64 exec, 1")
        A("s_waitcnt vmcnt(%d)" % cnt)
        A("buffer_atomic_add v%d, off, %s, s%d" % (vONE, srd("DBG"), sT3))
        A("s_mov_b64 exec, -1")
        stamp(4)
        A(lbl + ":")
    if not cllate: clean()
    A("s_sub_u32 s%d, s%d, 6" % (sMB, sWAVE))
    A("v_mul_u32_u24 v%d, 12, v0" % vT); A("s_mul_i32 s%d, s%d, 1792" % (sT1, sMB))
    A("s_waitcnt lgkmcnt(0)")
    A("s_load_dword s%d, s[%d:%d], 0" % (sB2, sB2P, sB2P + 1))
    if tlb:
        A("s_bfe_u32 s%d, s%d, 0x30002" % (sBASE, sR)); A("s_lshl_b32 s%d, s%d, 23" % (sBASE, sBASE)); A("s_lshr_b32 s%d, s%d, 5" % (sT0, sR)); A("s_lshl_b32 s%d, s%d, 20" % (sT0, sT0))
        A("s_add_u32 s%d, s%d, s%d" % (sBASE, sBASE, sT0)); A("s_and_b32 s%d, s%d, 3" % (sT0, sR)); A("s_lshl_b32 s%d, s%d, 18" % (sT0, sT0)); A("s_add_u32 s%d, s%d, s%d" % (sBASE, sBASE, sT0))
        A("s_cmp_lg_u32 s%d, 6" % sWAVE); A("s_cbranch_scc1 L_notlb")
        A("s_mov_b64 exec, 1")
        if tlb & 1: A("buffer_load_dword v200, off, %s, s%d" % (srd("V"), sBASE))
        if tlb & 2:
            A("s_lshr_b32 s%d, s%d, 3" % (sT0, sR)); A("s_lshl_b32 s%d, s%d, 17" % (sT0, sT0))
            A("buffer_load_dword v201, off, %s, s%d" % (srd("WO"), sT0))
        if tlb & 4:
            A("v_lshlrev_b32 v202, 16, v0"); A("s_mov_b64 exec, 0xf")
            A("buffer_load_dword v203, v202, %s, s%d offen" % (srd("V"), sBASE))
            A("buffer_load_dword v204, v202, %s, s%d offen" % (srd("K"), sBASE))
        A("s_mov_b64 exec, -1")
        A("L_notlb:")
    A("s_barrier")
    for k, n in enumerate(("W1", "B1", "W2")):
        A("buffer_load_dwordx4 %s, v%d, %s, s%d offen" % (vr(vW + 8 * k, 4), vL16, srd(n), sT1))
        A("buffer_load_dwordx3 %s, v%d, %s, s%d offen offset:1024" % (vr(vW + 8 * k + 4, 3), vT, srd(n), sT1))
    if not cllate: arrive(6, "L_noflag")
    A("s_lshr_b32 s%d, s%d, 5" % (sT0, sR)); A("s_mul_i32 s%d, s%d, %d" % (sT0, sT0, XN_STRIDE)); A("s_add_u32 s%d, s%d, %d" % (sT0, sT0, HI)); A("v_add_u32 v%d, s%d, v%d" % (vT + 1, sT0, vL16))
    A("s_lshl_b32 s%d, s%d, 13" % (sT2, sMB)); A("s_add_u32 s%d, s%d, %d" % (sT2, sT2, HI + L_WO)); A("v_add_u32 v%d, s%d, v%d" % (vT + 2, sT2, vL16))
    A("s_and_b32 s%d, s%d, 31" % (sT0, sR)); A("s_lshl_b32 s%d, s%d, 5" % (sT0, sT0)); A("s_add_u32 s%d, s%d, s%d" % (sT0, sT0, sT2))
    A("v_lshlrev_b32 v%d, 1, v%d" % (vT + 3, vN16)); A("v_add_u32 v%d, s%d, v%d" % (vT + 3, sT0, vT + 3))
    lds_wait(F_XN, 4)
    if cllate: clean()
    vXm = 112
    A("ds_read_b128 %s, v%d offset:%d" % (vr(vXm, 4), vT + 1, L_XN)); A("s_waitcnt lgkmcnt(0)")
    layernorm(vXm, 4, vXm + 4, vXm + 12, vXm + 20, 1)
    A("ds_write_b128 v%d, %s" % (vT + 2, vr(vXm, 4)))
    vH = 24
    A("ds_read_u16 v%d, v%d" % (vH, vT + 3))
    A("v_lshrrev_b32 v%d, 3, v0" % (vT + 4)); A("v_lshlrev_b32 v%d, 10, v%d" % (vT + 4, vT + 4)); A("v_and_b32 v%d, 7, v0" % (vT + 5)); A("v_lshl_add_u32 v%d, v%d, 4, v%d" % (vT + 4, vT + 5, vT + 4))
    A("s_lshr_b32 s%d, s%d, 3" % (sT0, sR)); A("s_lshl_b32 s%d, s%d, 17" % (sT0, sT0)); A("s_and_b32 s%d, s%d, 7" % (sT1, sR)); A("s_lshl_b32 s%d, s%d, 7" % (sT1, sT1))
    A("s_add_u32 s%d, s%d, s%d" % (sT0, sT0, sT1)); A("s_lshl_b32 s%d, s%d, 16" % (sT1, sMB)); A("s_add_u32 s%d, s%d, s%d" % (sT0, sT0, sT1))
    A("s_waitcnt vmcnt(0) lgkmcnt(0)")
    if cllate: arrive(0, "L_noflag")
    for a in range(8):
        A("s_add_u32 m0, s%d, %d" % (sT2, a * 1024))
        if 'o' not in abl and not wolate: A("buffer_load_dwordx4 v%d, %s, s%d offen %s lds" % (vT + 4, srd("WO"), sT0, polo))
        if a < 7: A("s_add_u32 s%d, s%d, 0x2000" % (sT0, sT0))
    stamp(1)
    A("v_lshlrev_b32 v%d, 16, v%d" % (vH, vH))
    for k in range(3):
        for i in range(7): unpack(vU + 14 * k + 2 * i, vU + 14 * k + 2 * i + 1, vW + 8 * k + i)
    vC0, vACC, U, T_ = 25, 26, 112, 128
    A("v_mov_b32 v%d, s%d" % (vC0, sC0))
    A("s_lshl_b32 s%d, s%d, 6" % (sT0, sMB)); A("s_add_u32 s%d, s%d, %d" % (sT0, sT0, HI + L_YP)); A("v_mov_b32 v27, s%d" % sT0)
    A("s_mov_b32 s%d, 0" % sT1)
    A("s_nop 3")
    A("L_mlp_loop:")
    A("v_readlane_b32 s%d, v%d, s%d" % (sMU, vH, sT1))
    for t in range(14): A("v_fma_f32 v%d, s%d, v%d, v%d" % (U + t, sMU, vU + t, vU + 14 + t))
    for t in range(14): A("v_mul_f32 v%d, v%d, v%d" % (T_ + t, U + t, U + t))
    for t in range(14): A("v_fma_f32 v%d, v%d, s%d, v%d" % (T_ + t, T_ + t, sC1, vC0))
    for t in range(14): A("v_mul_f32 v%d, v%d, v%d" % (T_ + t, T_ + t, U + t))
    for t in range(14):
        A("v_exp_f32 v%d, v%d" % (T_ + t, T_ + t)); A("v_mul_f32 v%d, v%d, v%d" % (U + t, U + t, vU + 28 + t))
    for t in range(14): A("v_add_f32 v%d, 1.0, v%d" % (T_ + t, T_ + t))
    for t in range(14): A("v_rcp_f32 v%d, v%d" % (T_ + t, T_ + t))
    A("v_mul_f32 v%d, v%d, v%d" % (vACC, U, T_)); A("v_mul_f32 v%d, v%d, v%d" % (U, U + 1, T_ + 1))
    for t in range(2, 14): A("v_fmac_f32 v%d, v%d, v%d" % (vACC if t & 1 else U, U + t, T_ + t))
    A("v_add_f32 v%d, v%d, v%d" % (vACC, vACC, U))
    red16(vACC, "v_add_f32"); dpp("v_add_f32", vACC, "row_bcast:15", "0xa"); dpp("v_add_f32", vACC, "row_bcast:31", "0xc")
    A("s_mov_b32 exec_lo, 0"); A("s_mov_b32 exec_hi, 0x80000000")
    A("ds_write_b32 v27, v%d" % vACC); A("v_add_u32 v27, 4, v27")
    A("s_mov_b64 exec, -1")
    A("s_add_u32 s%d, s%d, 1" % (sT1, sT1)); A("s_cmp_lt_u32 s%d, 16" % sT1); A("s_cbranch_scc1 L_mlp_loop")
    stamp(2)
    A("s_waitcnt vmcnt(0)")
    A("s_mov_b32 s%d, 3" % sMU)
    if steal:
        A("s_cmp_eq_u32 s%d, 7" % sWAVE); A("s_cbranch_scc1 L_final")
        lds_wait(F_AM, 1, sl=8)
        sCW = 4
        A("s_lshl_b32 s%d, s%d, 7" % (sCW, sR)); A("s_add_u32 s%d, s%d, 0x%x" % (sCW, sCW, WS_CW))
        def set_plan(val):
            A("v_mov_b32 v%d, %s" % (vT, val)); A("s_mov_b64 exec, 1"); A("ds_write_b32 v%d, v%d offset:%d" % (vHI, vT, F_PLAN)); A("s_mov_b64 exec, -1")
        for k in range(5, 11):
            if k == 8:
                A("s_xor_b32 s%d, s%d, 0x100" % (sCW, sCW))
            if k == 8:
                A("s_xor_b32 s%d, s%d, 2" % (sT1, sR)); A("s_lshl_b32 s%d, s%d, 12" % (sT1, sT1)); A("s_add_u32 s%d, s%d, 0x%x" % (sT1, sT1, WS_PR))
                A("v_add_u32 v%d, v%d, v%d" % (vT + 1, vHI, vL16))
                rec = [((lambda q=q: A("buffer_load_dwordx4 %s, v%d, %s, s%d offen offset:%d sc1" % (vr(36 + 4 * q, 4), vL16, srd("WS"), sT1, 1024 * q))), list(range(36 + 4 * q, 40 + 4 * q))) for q in range(4)]
                lds_wait(F_FULL, rtrig, sl=2)
                A("s_mov_b32 exec_hi, 0x1ffff")
                for i_, _ in rec: i_()
                A("s_mov_b64 exec, -1")
            lds_wait(F_FULL, 4 * k + cth + (bias if k >= 8 else 0), sl=2)
            A("v_mov_b32 v32, 1"); A("s_mov_b64 exec, 1")
            A("buffer_atomic_add v32, off, %s, s%d sc0" % (srd("WS"), sCW))
            A("s_mov_b64 exec, -1")
            A("s_mov_b32 s%d, 0x%x" % (sT2, 0x100 + k))
            A("s_waitcnt vmcnt(0)")
            A("v_readfirstlane_b32 s%d, v32" % sT0); A("s_add_u32 s%d, s%d, 1" % (sT0, sT0))
            if stamps and k < 9: stamp(k - 2)
            A("s_cmp_ge_u32 s%d, 3" % sT0); A("s_cbranch_scc1 L_close")
            if k == 8:
                A("s_mov_b32 exec_hi, 0x1ffff")
                gpoll(rec[:2], first=False, sleep=8, full="PARTIAL"); gpoll(rec[2:], first=False, sleep=8, full="PARTIAL")
                for q in range(4): A("ds_write_b128 v%d, %s offset:%d" % (vT + 1, vr(36 + 4 * q, 4), L_PP + 1024 * q))
                A("s_mov_b64 exec, -1")
                A("s_waitcnt lgkmcnt(0)")
            set_plan("%d" % (k + 1))
        A("s_mov_b32 s%d, 0x%x" % (sT2, 0x100 + 11))
        A("L_close:")
        set_plan("s%d" % sT2)
        A("s_branch L_gather56")
        A("L_final:")
    elif bal >= 2:
        A("s_cmp_eq_u32 s%d, 7" % sWAVE); A("s_cbranch_scc1 L_final")
        lds_wait(F_AM, 1, sl=8)
        pg_addr(4, 5)
        if bal == 3: A("s_lshl_b32 s4, s2, 8"); A("s_add_u32 s4, s4, 0x%x" % (WS_PG + 0x4000))
        for k in range(bmin):
            lds_wait(F_FULL, bthr + bper * k, sl=4)
            A("v_mov_b32 v%d, 1" % (32 + k)); A("s_mov_b64 exec, 1")
            if bal == 4: A("buffer_load_dword v%d, off, %s, s4 sc1" % (32 + k, srd("WS")))
            elif bal == 5: A("buffer_store_dword v%d, off, %s, s5 sc1" % (32 + k, srd("WS")))
            else: A("buffer_atomic_add v%d, off, %s, s4 sc0" % (32 + k, srd("WS")))
            A("s_mov_b64 exec, -1")
        A("s_waitcnt vmcnt(0)")
        A("s_branch L_gather56")
        A("L_final:")
    elif bal:
        A("s_cmp_eq_u32 s%d, 7" % sWAVE); A("s_cbranch_scc1 L_final")
        lds_wait(F_AM, 1, sl=8)
        pg_addr(4, 5)
        A("s_and_b32 s12, s2, 7"); A("v_lshlrev_b32 v33, 2, v0"); A("s_mov_b32 s13, 0")
        A("L_bal:")
        A("s_mov_b64 exec, 0xff"); A("buffer_load_dword v32, v33, %s, s4 offen sc1" % srd("WS"))
        A("s_mov_b64 exec, 1")
        A("ds_read_b32 v34, v%d offset:%d" % (vHI, F_FULL)); A("s_waitcnt lgkmcnt(0)")
        A("buffer_store_dword v34, off, %s, s5 sc1" % srd("WS"))
        A("s_mov_b64 exec, -1")
        A("v_readfirstlane_b32 s%d, v34" % sT0)
        A("s_cmp_ge_u32 s%d, %d" % (sT0, bstop)); A("s_cbranch_scc1 L_balend")
        A("s_waitcnt vmcnt(1)")
        A("v_readlane_b32 s%d, v32, s12" % sT1)
        A("s_mov_b64 exec, 0xff")
        A("v_cmp_eq_u32 vcc, -1, v32")
        if bmin:
            for m in QUADS[:3]: dpp("v_min_u32", 32, m)
        else:
            for m in QUADS[:3]: dpp("v_add_u32", 32, m)
        A("s_mov_b64 exec, -1")
        A("v_readfirstlane_b32 s%d, v32" % sT2)
        A("s_cmp_lg_u64 vcc, 0"); A("s_cbranch_scc1 L_balskip")
        if not bmin: A("s_lshl_b32 s%d, s%d, 3" % (sT1, sT1))
        A("s_sub_i32 s%d, s%d, s%d" % (sT1, sT1, sT2)); A("s_cmp_gt_i32 s%d, %d" % (sT1, bthr)); A("s_cselect_b32 s%d, 1, 0" % sT1)
        A("v_mov_b32 v35, s%d" % sT1); A("s_mov_b64 exec, 1"); A("ds_write_b32 v%d, v35 offset:%d" % (vHI, F_MODE)); A("s_mov_b64 exec, -1")
        A("L_balskip:")
        if bper: A("s_sleep %d" % bper)
        A("s_add_u32 s13, s13, 1"); A("s_cmp_lt_u32 s13, 4096"); A("s_cbranch_scc1 L_bal")
        A("L_balend:")
        A("v_mov_b32 v35, 0"); A("s_mov_b64 exec, 1"); A("ds_write_b32 v%d, v35 offset:%d" % (vHI, F_MODE)); A("s_mov_b64 exec, -1")
        A("s_waitcnt vmcnt(0)")
        A("s_branch L_gather56")
        A("L_final:")
    else:
        A("s_cmp_eq_u32 s%d, 6" % sWAVE); A("s_cbranch_scc1 L_gather56")
    if at2:
        A("v_and_b32 v%d, 7, v0" % (vT + 1)); A("v_lshrrev_b32 v%d, 5, v0" % (vT + 2)); A("v_lshl_add_u32 v%d, v%d, 1, v%d" % (vT + 1, vT + 1, vT + 2))
    else: A("v_lshl_add_u32 v%d, v%d, 2, v%d" % (vT + 1, vR4, vG4))
    A("v_lshlrev_b32 v%d, 1, v%d" % (vT + 2, vT + 1)); A("s_lshl_b32 s%d, s%d, 5" % (sT0, sR))
    A("buffer_load_ushort v%d, v%d, %s, s%d offen" % (vT + 3, vT + 2, srd("X"), sT0))
    A("v_lshl_add_u32 v%d, v%d, 2, v%d" % (vT + 1, vT + 1, vHI))
    A("s_lshl_b32 s%d, s%d, %d" % (sT1, sR, 11 + spad)); A("s_add_u32 s%d, s%d, 0x%x" % (sT1, sT1, WS_SP))
    A("v_lshrrev_b32 v29, 2, v0"); A("v_lshlrev_b32 v29, %d, v29" % (6 + spad)); A("v_lshl_add_u32 v29, v%d, 4, v29" % vR4)
    if wolate == 2:
        A("s_mov_b32 s12, s%d" % sT0); A("s_mov_b32 s13, s%d" % sT1)
        if steal: lds_wait(F_LI, 1, sl=2)
        else: lds_wait(F_FULL, wotrig, sl=2)
        wo_dma()
        A("s_mov_b32 s%d, s12" % sT0); A("s_mov_b32 s%d, s13" % sT1)
    A("s_waitcnt lgkmcnt(0)")
    A("s_barrier")
    stamp(8)
    A("ds_read_b32 v40, v%d offset:%d" % (vT + 1, L_YP)); A("ds_read_b32 v41, v%d offset:%d" % (vT + 1, L_YP + 64)); A("s_waitcnt lgkmcnt(0)")
    A("v_add_f32 v40, v40, v41"); rbf(40)
    A("s_lshl_b32 s%d, s%d, 16" % (sB2, sB2)); A("v_add_f32 v40, s%d, v40" % sB2); rbf(40)
    A("v_mul_f32 v41, s%d, v40" % sL2E); A("v_exp_f32 v41, -v41"); A("v_add_f32 v41, 1.0, v41"); A("v_rcp_f32 v41, v41"); A("v_mul_f32 v40, v40, v41"); rbf(40)
    A("s_waitcnt vmcnt(0)"); A("v_lshlrev_b32 v%d, 16, v%d" % (vT + 3, vT + 3))
    if wolate == 2:
        A("s_mov_b64 exec, 1"); A("ds_write_b32 v%d, v%d offset:%d" % (vHI, vONE, F_WO)); A("s_mov_b64 exec, -1")
        stamp(11)
    A("s_barrier")
    stamp(9)
    if td2: A("s_sleep %d" % td2)
    if at2:
        A("v_lshlrev_b32 v29, 3, v0")
        apoll(32, 29, sT1, 44, tsleep2)
        stamp(10)
        A("v_add_f32 v44, v32, v34"); A("v_add_f32 v45, v33, v35"); A("v_add_f32 v46, v36, v38"); A("v_add_f32 v47, v37, v39")
        A("v_add_f32 v44, v44, v46"); A("v_add_f32 v45, v45, v47")
        A("v_permlane32_swap_b32 v44, v45"); A("v_add_f32 v44, v44, v45")
        swap_red(44, 45, "v_add_f32", 16)
        dpp("v_add_f32", 44, "row_ror:8")
    else:
        gpoll([(lambda: A("buffer_load_dwordx4 v[32:35], v29, %s, s%d offen %s" % (srd("WS"), sT1, tl)), [32, 33, 34, 35]),
               (lambda: A("buffer_load_dwordx4 v[36:39], v29, %s, s%d offen offset:%d %s" % (srd("WS"), sT1, 1024 << spad, tl)), [36, 37, 38, 39])], sleep=tsleep2, P=P2)
        stamp(10)
        for i in range(4): A("v_add_f32 v%d, v%d, v%d" % (44 + i, 32 + i, 36 + i))
        A("v_permlane32_swap_b32 v44, v46"); A("v_permlane32_swap_b32 v45, v47")
        A("v_add_f32 v44, v44, v46"); A("v_add_f32 v45, v45, v47")
        A("v_permlane16_swap_b32 v44, v45"); A("v_add_f32 v44, v44, v45")
        dpp("v_add_f32", 44, "row_ror:8"); dpp("v_add_f32", 44, "row_ror:4")
    rbf(44); A("v_mul_f32 v44, v44, v40"); rbf(44)
    A("v_add_f32 v44, v44, v%d" % (vT + 3)); A("v_cvt_pk_bf16_f32 v44, v44, v44")
    em = "0xff" if at2 else "0x000f000f"
    A("s_mov_b32 exec_lo, %s" % em); A("s_mov_b32 exec_hi, %s" % em)
    A("buffer_store_short v44, v%d, %s, s%d offen" % (vT + 2, srd("OUT"), sT0))
    A("s_mov_b64 exec, -1")
    A("s_cmp_lg_u32 s%d, 0" % sR); A("s_cbranch_scc1 L_done")
    epoch()
    A("v_mov_b32 v30, s%d" % sEP); A("v_mov_b32 v31, s%d" % (sEP + 1)); A("s_mov_b64 exec, 1")
    A("buffer_store_dwordx2 v[30:31], off, %s, 0 offset:%d sc1" % (srd("WS"), WS_EP))
    A("s_mov_b64 exec, -1")
    if pmap:
        A("s_sleep 32"); A("s_mov_b32 s6, 0x300000")
        A("buffer_load_dwordx4 v[32:35], v%d, %s, s6 offen sc1" % (vL16, srd("WS"))); A("s_waitcnt vmcnt(0)")
        if pmap == 1: A("v_max_u32 v32, v32, v33"); A("v_max3_u32 v32, v32, v34, v35")
        elif pmap == 2: A("v_min_u32 v32, v32, v33"); A("v_min3_u32 v32, v32, v34, v35")
        if not piv: A("s_add_u32 s16, s16, 1500"); A("v_subrev_u32 v32, s16, v32")
        A("v_lshrrev_b32 v32, 3, v32"); A("v_min_u32 v32, 255, v32")
        A("buffer_store_byte v32, v0, %s, 0 offen sc1" % srd("DBG"))
    if pgrp:
        A("v_lshlrev_b32 v29, 5, v0"); A("s_mov_b64 exec, 0xff")
        A("buffer_load_dword v30, v29, %s, 0 offen offset:4 sc1" % srd("DBG")); A("s_memrealtime s[16:17]"); A("s_waitcnt vmcnt(0) lgkmcnt(0)")
        if pat >= 12:
            A("v_readfirstlane_b32 s6, v30"); A("v_subrev_u32 v30, s6, v30"); A("v_add_u32 v30, 0x100000, v30")
            if pat == 13: A("v_lshlrev_b32 v30, 3, v30"); A("v_or_b32 v30, v30, v0")
        A("v_mov_b32 v31, v30")
        for m in QUADS[:3]: dpp("v_max_u32", 30, m)
        if pat in (11, 12, 13, 14):
            for m in QUADS[:3]: dpp("v_min_u32", 31, m)
        else:
            A("v_subrev_u32 v31, v31, v30")
            for m in QUADS[:3]: dpp("v_add_u32", 31, m)
        A("s_mov_b64 exec, -1")
        A("v_readfirstlane_b32 s6, v30"); A("v_readfirstlane_b32 s7, v31")
        if pat == 11: A("s_sub_u32 s6, s6, s7"); A("s_lshl_b32 s6, s6, 3")
        elif pat == 12: A("s_sub_u32 s6, s6, s7"); A("s_lshr_b32 s6, s6, 2")
        elif pat == 13: A("s_and_b32 s6, s6, 7"); A("s_mul_i32 s6, s6, 300")
        else: A("s_mov_b32 s6, s7")
        A("s_min_u32 s6, s6, 20000")
        A("s_add_u32 s16, s16, s6")
        A("L_pad3:"); A("s_memrealtime s[18:19]"); A("s_waitcnt lgkmcnt(0)"); A("s_sub_u32 s18, s18, s16"); A("s_cmp_lt_i32 s18, 0"); A("s_cbranch_scc1 L_pad3")
    if probe or (p_b >= 0 and not piv) or pspan:
        A("buffer_load_dwordx2 v[30:31], off, %s, 0 offset:4 sc1" % srd("DBG")); A("s_memrealtime s[16:17]"); A("s_waitcnt vmcnt(0) lgkmcnt(0)")
        A("v_readfirstlane_b32 s6, v30"); A("v_readfirstlane_b32 s7, v31")
        if probe: A("s_sub_i32 s6, s6, s7"); A("s_abs_i32 s6, s6"); A("s_lshr_b32 s6, s6, 4")
        elif pspan == 1: A("s_not_b32 s7, s7"); A("s_sub_u32 s6, s6, s7"); A("s_lshl_b32 s6, s6, 2")
        elif pspan == 2: A("s_sub_u32 s6, s16, s6"); A("s_lshl_b32 s6, s6, 3")
        elif pspan == 6: A("s_not_b32 s7, s7"); A("s_sub_u32 s6, s16, s7"); A("s_lshl_b32 s6, s6, 2")
        elif pspan == 3: A("s_not_b32 s7, s7"); A("s_sub_u32 s6, s6, s7"); A("s_lshl_b32 s6, s6, 3")
        elif pspan in (4, 5): A("s_not_b32 s7, s7"); A("s_lshl_b32 s7, s7, 8"); A("s_sub_u32 s6, s6, s7"); A("s_lshr_b32 s6, s6, %d" % (5 if pspan == 4 else 6))
        else: A("s_lshr_b32 s6, s6, 5")
        A("s_min_u32 s6, s6, 20000")
        A("s_add_u32 s16, s16, s6")
        A("L_pad2:"); A("s_memrealtime s[18:19]"); A("s_waitcnt lgkmcnt(0)"); A("s_sub_u32 s18, s18, s16"); A("s_cmp_lt_i32 s18, 0"); A("s_cbranch_scc1 L_pad2")
    A("L_done:")
    A("s_waitcnt vmcnt(0)")
    if pad:
        A("s_waitcnt lgkmcnt(0)"); A("s_add_u32 s16, s16, %d" % pad)
        A("L_pad:"); A("s_memrealtime s[18:19]"); A("s_waitcnt lgkmcnt(0)"); A("s_sub_u32 s18, s18, s16"); A("s_cmp_lt_i32 s18, 0"); A("s_cbranch_scc1 L_pad")
    if stamps:
        A("s_waitcnt vmcnt(0)")
        stamp(NST - 1)
        A("s_waitcnt lgkmcnt(0)")
        A("s_lshl_b32 s%d, s2, 3" % sT0); A("s_add_u32 s%d, s%d, s%d" % (sT0, sT0, sWAVE)); A("s_mul_i32 s%d, s%d, %d" % (sT0, sT0, NST * 8)); A("s_add_u32 s%d, s%d, 0x%x" % (sT0, sT0, WS_STAMP))
        A("s_mov_b64 exec, 1")
        for k in range(NST):
            A("v_mov_b32 v2, s%d" % (16 + 2 * k)); A("v_mov_b32 v3, s%d" % (17 + 2 * k))
            A("buffer_store_dwordx2 v[2:3], off, %s, s%d offset:%d" % (srd("WS"), sT0, k * 8)); A("s_nop 1")
    A("L_end:")
    A("s_endpgm")
    body = A.finalize()
    hdr = open("recurrent_scan__gqa_block_cached__mixer_token_mlp__decode.s.ref").read().split("; Override launch")[0]
    s = hdr + "; @launch grid=(256,1,1) block=(512,1,1) lds=%d\n" % LDS_BYTES
    s += '.amdgcn_target "amdgcn-amd-amdhsa--gfx950"\n.text\n.globl %s\n.p2align 8\n.type %s,@function\n%s:\n' % (NAME, NAME, NAME)
    s += body
    s += '.section .rodata,"a"\n.p2align 6\n.amdhsa_kernel %s\n  .amdhsa_next_free_vgpr 256\n  .amdhsa_next_free_sgpr 102\n  .amdhsa_accum_offset 256\n' % NAME
    s += "  .amdhsa_group_segment_fixed_size 0\n  .amdhsa_kernarg_size 104\n  .amdhsa_user_sgpr_count 2\n  .amdhsa_user_sgpr_kernarg_segment_ptr 1\n  .amdhsa_system_sgpr_workgroup_id_x 1\n.end_amdhsa_kernel\n"
    return s, A

if __name__ == "__main__":
    out = sys.argv[1]
    kw = {}
    for p in sys.argv[2:]:
        k, v = p.split("=")
        kw[k] = int(v) if v.lstrip("-").isdigit() else v.replace("+", " ")
    s, A = gen(**kw)
    open(out, "w").write(s)
    print("wrote", out, "instructions", len(A.ins), "nops", A.nops, "lds", LDS_BYTES)
```

```python
import sys, struct
from asmlib import Asm

NAME = "recurrent_scan__gqa_block_cached__mixer_token_mlp__decode_kernel"
def f2u(x): return struct.unpack("<I", struct.pack("<f", x))[0]

WS_ST, WS_OP, WS_SP, WS_Q, WS_EP = 0x10000, 0x20000, 0x100000, 0x60000, 0x0
WS_PG = 0x90000
WS_CW, WS_PR = 0x80000, 0x200000
EP_STEP = 0x9E3779B97F4A7C15
WS_STAMP = 128 << 20
HI = 131072
L_WO = 0
L_XN, XN_STRIDE = 16384, 1040
L_OW = L_XN
L_QP = 24704
L_QB = 28800
L_FLG = 29824
L_ST = L_FLG + 64
L_GS = L_ST + 128
L_YP = L_GS + 32
LDS_BYTES = HI + L_YP + 128
F_FULL, F_FREED, F_XN, F_QP, F_QR, F_ST, F_GR, F_WO, F_AM, F_PLAN, F_LI, F_MODE = [L_FLG + 4 * i for i in (0, 4, 8, 9, 10, 11, 12, 13, 14, 1, 15, 2)]
L_PP = L_QP

sWAVE, sBASE, sOFF = 3, 4, 5
sT0, sT1, sT2 = 6, 7, 8
sR, sSPIN, sT3 = 9, 10, 11
sMU, sMB = 14, 15
SRD = dict(K=44, V=48, X=52, WQ=56, WO=60, W1=64, B1=68, W2=72, OUT=76, DBG=80, WS=84)
KARG = dict(X=0, K=8, V=16, WQ=24, WO=32, W1=48, B1=56, W2=64, OUT=80, DBG=88, WS=96)
SIZE = dict(X=8192, K=1 << 26, V=1 << 26, WQ=1 << 22, WO=1 << 22, W1=3584, B1=3584, W2=3584, OUT=8192, DBG=256, WS=1 << 28)
sSELLO, sSELHI, sMASK, sSCALE, sL2E, sC0, sC1, sB2, sB2P = 88, 89, 90, 91, 92, 93, 94, 95, 96
sOPOFF, sSPOFF, sSTOFF, sFULL = 98, 99, 100, 101
def srd(n): return "s[%d:%d]" % (SRD[n], SRD[n] + 3)
def vr(a, n=1): return "v%d" % a if n == 1 else "v[%d:%d]" % (a, a + n - 1)
vL16, vG4, vC4, vR4, vN16, vHI, vONE = 1, 2, 3, 4, 5, 6, 7
vT = 8
vPOLL = 16

def gen(F=4, stamps=0, pol="nt", spin=1 << 17, lspin=1 << 22, mimic=1, pre=0, lsleep=1, ldprio=3, fsleep=8, qsleep=2, ssleep=8, tsleep=0, xmap=1, polq=None, polo=None, ldst=0, abl='', rot=0, pad=0, P1=1, P2=1, pd=5, qmap=0, tl='sc1', ts='sc1', tsleep2=None, Fhi=0, himask=0xf8, hiend=16, spad=0, at2=1, td2=8, td1=0, at1=0, qdelay=0, sdelay=0, qtrig=8, strig=48, bshift=0, wolate=2, wqsplit=0, wotrig=60, D=0, DV=0, probe=0, steal=0, cth=23, cllate=0, bias=0, rtrig=48, p_a=-1, p_b=-1, pspan=0, pstart=0, bal=0, Flo=2, bthr=0, bper=8, bstop=58, bmin=0, pm=0, pval=0, pgrp=0, pat=11, tlb=0, piv=0, pmap=0):
    NOWN = 5 if steal else 8
    sPLAN = 13
    DV = DV if DV else D
    tsleep2 = tsleep if tsleep2 is None else tsleep2
    polq = pol if polq is None else polq.replace('def', '')
    polo = pol if polo is None else polo.replace('def', '')
    A = Asm()
    NST = 14
    def stamp(k):
        if stamps: A("s_memrealtime s[%d:%d]" % (16 + 2 * k, 17 + 2 * k))
    QUADS = ("quad_perm:[1,0,3,2]", "quad_perm:[2,3,0,1]", "row_half_mirror", "row_mirror")
    def dpp(op, v, m, rm="0xf"): A("%s_dpp v%d, v%d, v%d %s row_mask:%s bank_mask:0xf" % (op, v, v, v, m, rm))
    def red16(v, op):
        for m in QUADS: dpp(op, v, m)
    def swap_red(v, t, op, which):
        A("v_mov_b32 v%d, v%d" % (t, v)); A("v_permlane%d_swap_b32 v%d, v%d" % (which, v, t)); A("%s v%d, v%d, v%d" % (op, v, v, t))
    def rbf(v):
        A("v_cvt_pk_bf16_f32 v%d, v%d, v%d" % (v, v, v)); A("v_lshlrev_b32 v%d, 16, v%d" % (v, v))
    def unpack(dlo, dhi, src):
        A("v_lshlrev_b32 v%d, 16, v%d" % (dlo, src)); A("v_and_b32 v%d, s%d, v%d" % (dhi, sMASK, src))
    def layernorm(pk, n, x, d, t, halves):
        def allred(v):
            red16(v, "v_add_f32"); swap_red(v, t + 2, "v_add_f32", 16)
            if halves == 1: swap_red(v, t + 2, "v_add_f32", 32)
        for i in range(n): unpack(x + 2 * i, x + 2 * i + 1, pk + i)
        A("v_add_f32 v%d, v%d, v%d" % (t, x, x + 1)); A("v_add_f32 v%d, v%d, v%d" % (t + 1, x + 2, x + 3))
        for i in range(4, 2 * n): A("v_add_f32 v%d, v%d, v%d" % (t + (i & 1), t + (i & 1), x + i))
        A("v_add_f32 v%d, v%d, v%d" % (t, t, t + 1))
        allred(t)
        A("v_mul_f32 v%d, 0x3b000000, v%d" % (t, t))
        A("v_cvt_pk_bf16_f32 v%d, v%d, v%d" % (t + 1, t, t))
        for i in range(2 * n): A("v_sub_f32 v%d, v%d, v%d" % (d + i, x + i, t))
        A("v_lshlrev_b32 v%d, 16, v%d" % (t + 1, t + 1))
        A("v_mul_f32 v%d, v%d, v%d" % (t, d, d)); A("v_mul_f32 v%d, v%d, v%d" % (d, d + 1, d + 1))
        for i in range(2, 2 * n): A("v_fmac_f32 v%d, v%d, v%d" % (t if i & 1 else d, d + i, d + i))
        A("v_add_f32 v%d, v%d, v%d" % (t, t, d))
        for i in range(2 * n): A("v_sub_f32 v%d, v%d, v%d" % (x + i, x + i, t + 1))
        allred(t)
        for i in range(n): A("v_cvt_pk_bf16_f32 v%d, v%d, v%d" % (pk + i, x + 2 * i, x + 2 * i + 1))
        A("v_mul_f32 v%d, 0x3b000000, v%d" % (t, t)); rbf(t)
        A("v_add_f32 v%d, 0x%x, v%d" % (t, f2u(1e-5), t)); rbf(t)
        A("v_sqrt_f32 v%d, v%d" % (t, t)); rbf(t)
        A("v_rcp_f32 v%d, v%d" % (t, t))
        for i in range(n): unpack(x + 2 * i, x + 2 * i + 1, pk + i)
        for i in range(2 * n): A("v_mul_f32 v%d, v%d, v%d" % (x + i, t, x + i))
        for i in range(n): A("v_cvt_pk_bf16_f32 v%d, v%d, v%d" % (pk + i, x + 2 * i, x + 2 * i + 1))
    def lds_wait(flag, val, keep=None, sl=None):
        ok = A.label("lok"); again = A.label("lagain")
        dst = keep if keep is not None else sT3
        if keep is not None:
            A("s_cmp_ge_u32 s%d, %s" % (keep, val)); A("s_cbranch_scc1 " + ok)
        A("s_mov_b32 s%d, 0" % sSPIN)
        A(again + ":")
        A("ds_read_b32 v%d, v%d offset:%d" % (vPOLL, vHI, flag)); A("s_waitcnt lgkmcnt(0)")
        A("v_readfirstlane_b32 s%d, v%d" % (dst, vPOLL))
        A("s_cmp_ge_u32 s%d, %s" % (dst, val)); A("s_cbranch_scc1 " + ok)
        if sl is None: sl = lsleep
        if sl: A("s_sleep %d" % sl)
        A("s_add_u32 s%d, s%d, 1" % (sSPIN, sSPIN)); A("s_cmp_lt_u32 s%d, %d" % (sSPIN, lspin)); A("s_cbranch_scc1 " + again)
        A(ok + ":")
    def lds_add(flag_addr_reg, off):
        A("s_waitcnt lgkmcnt(0)")
        A("s_mov_b64 exec, 1"); A("ds_add_u32 v%d, v%d offset:%d" % (flag_addr_reg, vONE, off)); A("s_mov_b64 exec, -1")
    def gpoll(loads, first=True, sleep=0, full="-1", tag=None, P=1):
        ok = A.label("ok"); again = A.label("again")
        masks = ["vcc", "s[12:13]"]
        A("s_mov_b32 s%d, 0" % sSPIN)
        if first:
            for issue, regs in loads: issue()
        for _ in range(P - 1):
            A("s_sleep %d" % pd)
            for issue, regs in loads: issue()
        A(again + ":")
        A("s_waitcnt vmcnt(%d)" % (len(loads) * (P - 1)))
        for (issue, regs), mk in zip(loads, masks):
            t = vT + 7
            if tag is not None:
                A("v_cmp_ne_u64 %s, %s, v[%d:%d]" % (mk, tag, regs[2], regs[3])); continue
            if len(regs) == 2: A("v_max_u32 v%d, v%d, v%d" % (t, regs[0], regs[1]))
            else:
                A("v_max3_u32 v%d, v%d, v%d, v%d" % (t, regs[0], regs[1], regs[2])); A("v_max_u32 v%d, v%d, v%d" % (t, t, regs[3]))
            A("v_cmp_eq_u32 %s, -1, v%d" % (mk, t))
        if len(loads) == 2:
            A("s_or_b32 s%d, vcc_lo, vcc_hi" % sT3); A("s_or_b32 s%d, s%d, s12" % (sT3, sT3)); A("s_or_b32 s%d, s%d, s13" % (sT3, sT3))
        else:
            A("s_or_b32 s%d, vcc_lo, vcc_hi" % sT3)
        A("s_cbranch_scc0 " + ok)
        if sleep: A("s_sleep %d" % sleep)
        for (issue, regs), mk in zip(loads, masks):
            A("s_mov_b64 exec, %s" % mk); issue()
        if full == "PARTIAL": A("s_mov_b32 exec_lo, -1"); A("s_mov_b32 exec_hi, 0x1ffff")
        else: A("s_mov_b64 exec, %s" % full)
        A("s_add_u32 s%d, s%d, 1" % (sSPIN, sSPIN)); A("s_cmp_lt_u32 s%d, %d" % (sSPIN, spin)); A("s_cbranch_scc1 " + again)
        A("s_waitcnt vmcnt(0)")
        A(ok + ":")
    def apoll(vd, vaddr, soff, vtmp, sleep, first=True):
        ms = ["vcc", "s[12:13]", "s[88:89]", "s[90:91]"]
        ok = A.label("aok"); again = A.label("aagain")
        def iss(k):
            A("v_mov_b32 v%d, 0" % (vd + 2 * k)); A("v_mov_b32 v%d, 0" % (vd + 1 + 2 * k))
            A("buffer_atomic_or_x2 v[%d:%d], v%d, %s, s%d offen offset:%d sc0" % (vd + 2 * k, vd + 1 + 2 * k, vaddr, srd("WS"), soff, 512 * k))
        if first == "only":
            for k in range(4): iss(k)
            return
        A("s_mov_b32 s%d, 0" % sSPIN)
        if first:
            for k in range(4): iss(k)
        A(again + ":")
        A("s_waitcnt vmcnt(0)")
        for k in range(4): A("v_max_u32 v%d, v%d, v%d" % (vtmp + k, vd + 2 * k, vd + 1 + 2 * k))
        for k in range(4): A("v_cmp_eq_u32 %s, -1, v%d" % (ms[k], vtmp + k))
        A("s_or_b64 s[92:93], vcc, s[12:13]"); A("s_or_b64 s[94:95], s[88:89], s[90:91]"); A("s_or_b64 s[92:93], s[92:93], s[94:95]")
        A("s_cbranch_scc0 " + ok)
        if sleep: A("s_sleep %d" % sleep)
        for k in range(4):
            A("s_mov_b64 exec, %s" % ms[k]); iss(k)
        A("s_mov_b64 exec, -1")
        A("s_add_u32 s%d, s%d, 1" % (sSPIN, sSPIN)); A("s_cmp_lt_u32 s%d, %d" % (sSPIN, spin)); A("s_cbranch_scc1 " + again)
        A("s_waitcnt vmcnt(0)")
        A(ok + ":")
    def word_poll(load, vd, lanes, cmp, sleep):
        ok = A.label("fok"); again = A.label("fagain")
        A("s_mov_b32 s%d, 0" % sSPIN); A("s_mov_b64 exec, %s" % lanes)
        A(again + ":")
        A(load)
        A("s_waitcnt vmcnt(0)")
        A(cmp % vd)
        A("s_cmp_eq_u64 vcc, 0"); A("s_cbranch_scc1 " + ok)
        if sleep: A("s_sleep %d" % sleep)
        A("s_add_u32 s%d, s%d, 1" % (sSPIN, sSPIN)); A("s_cmp_lt_u32 s%d, %d" % (sSPIN, spin)); A("s_cbranch_scc1 " + again)
        A(ok + ":")
        A("s_mov_b64 exec, -1")

    A("s_cmp_ge_u32 s2, 256"); A("s_cbranch_scc1 L_end")
    if stamps:
        for k in range(1, NST): A("s_mov_b64 s[%d:%d], 0" % (16 + 2 * k, 17 + 2 * k))
    stamp(0)
    if (pad or p_b >= 0 or pspan or pstart or pmap) and not stamps: A("s_memrealtime s[16:17]")
    for n in ("K", "X", "WQ", "WS", "V", "WO", "W1", "B1", "W2", "DBG", "OUT"):
        A("s_load_dwordx2 s[%d:%d], s[0:1], %d" % (SRD[n], SRD[n] + 1, KARG[n]))
    A("s_load_dwordx2 s[%d:%d], s[0:1], 72" % (sB2P, sB2P + 1))
    A("v_lshrrev_b32 v1, 6, v0"); A("v_and_b32 v0, 63, v0"); A("v_readfirstlane_b32 s%d, v1" % sWAVE)
    for n in SRD:
        A("s_mov_b32 s%d, 0x%x" % (SRD[n] + 2, SIZE[n])); A("s_mov_b32 s%d, 0x20000" % (SRD[n] + 3))
    if xmap == 0:
        A("s_and_b32 s%d, s2, 7" % sR); A("s_lshl_b32 s%d, s%d, 5" % (sR, sR)); A("s_lshr_b32 s%d, s2, 3" % sT0); A("s_add_u32 s%d, s%d, s%d" % (sR, sR, sT0))
    elif xmap >= 8:
        A("s_bfe_u32 s%d, s2, 0x10003" % sT0); A("s_bfe_u32 s%d, s2, 0x10004" % sT1); A("s_lshl_b32 s%d, s%d, 2" % (sT1, sT1)); A("s_add_u32 s%d, s%d, s%d" % (sT0, sT0, sT1))
        if xmap == 9: A("s_lshr_b32 s%d, s2, 5" % sT1); A("s_add_u32 s%d, s%d, s%d" % (sT0, sT0, sT1))
        A("s_sub_u32 s%d, s2, s%d" % (sR, sT0))
        A("s_and_b32 s%d, s%d, 7" % (sR, sR)); A("s_lshl_b32 s%d, s%d, 2" % (sR, sR)); A("s_and_b32 s%d, s2, 0xe0" % sT0); A("s_add_u32 s%d, s%d, s%d" % (sR, sR, sT0))
        A("s_bfe_u32 s%d, s2, 0x20003" % sT0); A("s_add_u32 s%d, s%d, s%d" % (sR, sR, sT0))
    elif xmap >= 4:
        A("s_lshr_b32 s%d, s2, 1" % sT0); A("s_xor_b32 s%d, s%d, s2" % (sT0, sT0)); A("s_and_b32 s%d, s%d, 1" % (sT0, sT0)); A("s_lshl_b32 s%d, s%d, 3" % (sT0, sT0))
        A("s_and_b32 s%d, s2, 4" % sT1); A("s_lshl_b32 s%d, s%d, 2" % (sT1, sT1)); A("s_add_u32 s%d, s%d, s%d" % (sT0, sT0, sT1))
        A("s_bfe_u32 s%d, s2, 0x10003" % sT1); A("s_lshl_b32 s%d, s%d, 2" % (sT1, sT1)); A("s_add_u32 s%d, s%d, s%d" % (sT0, sT0, sT1))
        A("s_and_b32 s%d, s2, 0xe0" % sR); A("s_add_u32 s%d, s%d, s%d" % (sR, sR, sT0))
        if xmap == 6:
            A("s_lshr_b32 s%d, s2, 5" % sT0); A("s_xor_b32 s%d, s%d, s2" % (sT0, sT0)); A("s_and_b32 s%d, s%d, 1" % (sT0, sT0))
        elif xmap == 7:
            A("s_lshr_b32 s%d, s2, 3" % sT0); A("s_xor_b32 s%d, s%d, s2" % (sT0, sT0)); A("s_and_b32 s%d, s%d, 1" % (sT0, sT0))
        else: A("s_and_b32 s%d, s2, 1" % sT0)
        A("s_bfe_u32 s%d, s2, 0x10004" % sT1)
        A("s_lshl_b32 s%d, s%d, 1" % ((sT0, sT0) if xmap != 5 else (sT1, sT1)))
        A("s_add_u32 s%d, s%d, s%d" % (sR, sR, sT0)); A("s_add_u32 s%d, s%d, s%d" % (sR, sR, sT1))
    else:
        if xmap == 2:
            A("s_lshr_b32 s%d, s2, 5" % sT0); A("s_add_u32 s%d, s2, s%d" % (sR, sT0))
        elif xmap == 3:
            A("s_bfe_u32 s%d, s2, 0x20003" % sT0); A("s_lshl_b32 s%d, s%d, 1" % (sT0, sT0)); A("s_add_u32 s%d, s2, s%d" % (sR, sT0))
        else: A("s_add_u32 s%d, s2, %d" % (sR, bshift))
        A("s_and_b32 s%d, s%d, 7" % (sR, sR)); A("s_lshl_b32 s%d, s%d, 2" % (sR, sR)); A("s_and_b32 s%d, s2, 0xe0" % sT0); A("s_add_u32 s%d, s%d, s%d" % (sR, sR, sT0))
        A("s_bfe_u32 s%d, s2, 0x20003" % sT0); A("s_add_u32 s%d, s%d, s%d" % (sR, sR, sT0))
    sRQ = sMB
    if xmap >= 4:
        A("s_and_b32 s%d, s2, 7" % sRQ); A("s_lshl_b32 s%d, s%d, 2" % (sRQ, sRQ)); A("s_and_b32 s%d, s2, 0xe0" % sT0); A("s_add_u32 s%d, s%d, s%d" % (sRQ, sRQ, sT0))
        A("s_bfe_u32 s%d, s2, 0x20003" % sT0); A("s_add_u32 s%d, s%d, s%d" % (sRQ, sRQ, sT0))
    elif qmap == 0: A("s_mov_b32 s%d, s%d" % (sRQ, sR))
    elif qmap == 1:
        A("s_and_b32 s%d, s2, 7" % sRQ); A("s_lshl_b32 s%d, s%d, 5" % (sRQ, sRQ)); A("s_lshr_b32 s%d, s2, 3" % sT0); A("s_add_u32 s%d, s%d, s%d" % (sRQ, sRQ, sT0))
    elif qmap == 2:
        A("s_lshr_b32 s%d, s%d, 3" % (sT0, sR)); A("s_and_b32 s%d, s%d, 0x1c" % (sT0, sT0)); A("s_add_u32 s%d, s%d, s%d" % (sT0, sT0, sR)); A("s_and_b32 s%d, s%d, 0x1c" % (sT0, sT0))
        A("s_and_b32 s%d, s%d, 0xe3" % (sRQ, sR)); A("s_or_b32 s%d, s%d, s%d" % (sRQ, sRQ, sT0))
    elif qmap == 4:
        A("s_lshr_b32 s%d, s%d, 5" % (sT0, sR)); A("s_lshl_b32 s%d, s%d, 1" % (sT0, sT0)); A("s_bfe_u32 s%d, s%d, 0x10001" % (sT1, sR)); A("s_add_u32 s%d, s%d, s%d" % (sT0, sT0, sT1))
        A("s_lshr_b32 s%d, s%d, 2" % (sT1, sT0)); A("s_lshl_b32 s%d, s%d, 1" % (sT1, sT1)); A("s_bfe_u32 s%d, s%d, 0x30002" % (sT2, sR)); A("s_add_u32 s%d, s%d, s%d" % (sT1, sT1, sT2))
        A("s_and_b32 s%d, s%d, 7" % (sT1, sT1)); A("s_lshl_b32 s%d, s%d, 3" % (sT0, sT0)); A("s_add_u32 s%d, s%d, s%d" % (sT0, sT0, sT1)); A("s_lshl_b32 s%d, s%d, 1" % (sT0, sT0))
        A("s_and_b32 s%d, s%d, 1" % (sT1, sR)); A("s_add_u32 s%d, s%d, s%d" % (sRQ, sT0, sT1))
    A("v_lshlrev_b32 v%d, 4, v0" % vL16); A("v_lshrrev_b32 v%d, 4, v0" % vG4); A("v_bfe_u32 v%d, v0, 2, 2" % vC4)
    A("v_and_b32 v%d, 3, v0" % vR4); A("v_and_b32 v%d, 15, v0" % vN16); A("v_mov_b32 v%d, 0x%x" % (vHI, HI)); A("v_mov_b32 v%d, 1" % vONE)
    A("s_mov_b32 s%d, 0x05040100" % sSELLO); A("s_mov_b32 s%d, 0x07060302" % sSELHI); A("s_mov_b32 s%d, 0xffff0000" % sMASK)
    A("s_mov_b32 s%d, 0x%x" % (sSCALE, f2u(128 ** -0.5))); A("s_mov_b32 s%d, 0x%x" % (sL2E, f2u(1.4426950408889634)))
    c0 = -2.0 * 0.7978845608028654 * 1.4426950408889634
    A("s_mov_b32 s%d, 0x%x" % (sC0, f2u(c0))); A("s_mov_b32 s%d, 0x%x" % (sC1, f2u(c0 * 0.044715)))
    A("s_lshr_b32 s%d, s%d, 5" % (sT0, sR)); A("s_lshl_b32 s%d, s%d, 15" % (sT0, sT0))
    A("s_and_b32 s%d, s%d, 31" % (sT1, sR)); A("s_lshl_b32 s%d, s%d, 8" % (sT1, sT1)); A("s_add_u32 s%d, s%d, s%d" % (sT0, sT0, sT1))
    A("s_add_u32 s%d, s%d, 0x%x" % (sOPOFF, sT0, WS_OP))
    A("s_and_b32 s%d, s%d, 7" % (sT0, sR)); A("s_lshl_b32 s%d, s%d, %d" % (sT0, sT0, 13 + spad))
    A("s_lshr_b32 s%d, s%d, 3" % (sT1, sR)); A("s_lshl_b32 s%d, s%d, %d" % (sT1, sT1, 6 + spad)); A("s_add_u32 s%d, s%d, s%d" % (sT0, sT0, sT1))
    A("s_add_u32 s%d, s%d, 0x%x" % (sSPOFF, sT0, WS_SP))
    A("s_lshr_b32 s%d, s%d, 2" % (sT0, sR)); A("s_lshl_b32 s%d, s%d, 7" % (sT0, sT0)); A("s_add_u32 s%d, s%d, 0x%x" % (sSTOFF, sT0, WS_ST))
    A("s_cmp_eq_u32 s%d, 4" % sWAVE); A("s_cbranch_scc1 L_loader")
    A("s_cmp_eq_u32 s%d, 5" % sWAVE); A("s_cbranch_scc1 L_comm")
    A("s_cmp_gt_u32 s%d, 5" % sWAVE); A("s_cbranch_scc1 L_mlp")

    vQ, vS, vTMP, vK = 32, 48, 112, 128
    vKA, vVA = 17, 17
    vM, vLs, vMO, vF, vOWA = 25, 26, 27, 28, 29
    vX = vS
    A("v_lshlrev_b32 v%d, 5, v0" % vT)
    A("v_lshrrev_b32 v%d, 1, v0" % (vT + 1)); A("v_lshlrev_b32 v%d, 13, v%d" % (vT + 1, vT + 1))
    A("v_and_b32 v%d, 1, v0" % (vT + 2)); A("v_lshl_add_u32 v%d, v%d, 4, v%d" % (vT + 1, vT + 2, vT + 1))
    A("s_lshl_b32 s%d, s%d, 11" % (sT2, sWAVE))
    A("s_lshl_b32 s%d, s%d, 20" % (sT0, sWAVE)); A("s_lshl_b32 s%d, s%d, 5" % (sT1, sRQ)); A("s_add_u32 s%d, s%d, s%d" % (sT0, sT0, sT1))
    A("s_lshl_b32 s%d, s%d, 13" % (sT1, sWAVE)); A("s_add_u32 s%d, s%d, %d" % (sT1, sT1, 12 * 8192))
    A("s_waitcnt lgkmcnt(0)")
    if ldst == 2: stamp(12)
    A("buffer_load_dwordx4 %s, v%d, %s, s%d offen" % (vr(vX, 4), vT, srd("X"), sT2))
    A("buffer_load_dwordx4 %s, v%d, %s, s%d offen offset:16" % (vr(vX + 4, 4), vT, srd("X"), sT2))
    nq0 = wqsplit if wqsplit else 4
    for a in range(nq0):
        A("s_add_u32 m0, s%d, %d" % (sT1, a * 1024))
        if 'q' in abl: A("buffer_load_dwordx4 v%d, %s, 0 offen lds" % (vL16, srd("X")))
        else: A("buffer_load_dwordx4 v%d, %s, s%d offen %s lds" % (vT + 1, srd("WQ"), sT0, polq))
        if a < 3: A("s_add_u32 s%d, s%d, 0x40000" % (sT0, sT0))
    if nq0 < 4: A("v_mov_b32 v31, v%d" % (vT + 1)); A("s_mov_b32 s12, s%d" % sT0)
    A("s_barrier")
    A("v_lshrrev_b32 v%d, 5, v0" % (vT + 3)); A("s_lshl_b32 s%d, s%d, 1" % (sT0, sWAVE)); A("v_add_u32 v%d, s%d, v%d" % (vT + 3, sT0, vT + 3))
    A("v_mul_u32_u24 v%d, %d, v%d" % (vT + 3, XN_STRIDE, vT + 3)); A("v_and_b32 v%d, 31, v0" % (vT + 4)); A("v_lshl_add_u32 v%d, v%d, 5, v%d" % (vT + 3, vT + 4, vT + 3))
    A("v_add_u32 v%d, v%d, v%d" % (vT + 3, vHI, vT + 3))
    A("v_and_b32 v%d, 7, v0" % (vT + 4)); A("v_mul_u32_u24 v%d, %d, v%d" % (vT + 4, XN_STRIDE, vT + 4)); A("v_lshl_add_u32 v%d, v%d, 4, v%d" % (vT + 4, vG4, vT + 4))
    A("s_lshl_b32 s%d, s%d, 8" % (sT0, sWAVE)); A("s_add_u32 s%d, s%d, %d" % (sT0, sT0, HI)); A("v_add_u32 v%d, s%d, v%d" % (vT + 4, sT0, vT + 4))
    A("v_lshlrev_b32 v%d, 8, v%d" % (vT + 5, vG4)); A("v_lshl_add_u32 v%d, v%d, 3, v%d" % (vT + 5, vN16, vT + 5)); A("v_add_u32 v%d, s%d, v%d" % (vT + 5, sT1, vT + 5))
    A("s_lshl_b32 s%d, s%d, 10" % (sT0, sWAVE)); A("s_add_u32 s%d, s%d, %d" % (sT0, sT0, HI)); A("v_add_u32 v%d, s%d, v%d" % (vT + 6, sT0, vL16))
    A("s_lshl_b32 s%d, s%d, 13" % (sT0, sWAVE)); A("v_lshlrev_b32 v%d, 8, v%d" % (vT, vN16)); A("v_add_u32 v%d, s%d, v%d" % (vT, sT0, vT))
    for m in range(4):
        A("v_add_u32 v%d, %d, v%d" % (vT + 1, 4 * m, vG4)); A("v_xor_b32 v%d, v%d, v%d" % (vT + 1, vT + 1, vN16))
        A("v_lshl_add_u32 v%d, v%d, 4, v%d" % (vKA + m, vT + 1, vT)); A("v_add_u32 v%d, 0x10000, v%d" % (vKA + 4 + m, vKA + m))
    A("s_lshl_b32 s%d, s%d, 2" % (sT0, sWAVE)); A("s_add_u32 s%d, s%d, %d" % (sT0, sT0, HI)); A("v_mov_b32 v%d, s%d" % (30, sT0))
    A("s_mov_b32 s%d, 0" % sFULL)
    A("s_waitcnt vmcnt(%d)" % nq0)
    for a in range(nq0, 4):
        A("s_add_u32 m0, s%d, %d" % (sT1, a * 1024))
        A("buffer_load_dwordx4 v31, %s, s12 offen %s lds" % (srd("WQ"), polq))
        if a < 3: A("s_add_u32 s12, s12, 0x40000")
    stamp(1)
    layernorm(vX, 8, vX + 8, vX + 24, vX + 40, 2)
    A("ds_write_b128 v%d, %s offset:%d" % (vT + 3, vr(vX, 4), L_XN)); A("ds_write_b128 v%d, %s offset:%d" % (vT + 3, vr(vX + 4, 4), L_XN + 16))
    lds_add(vHI, F_XN)
    A("s_waitcnt vmcnt(0)")
    for m in range(4):
        A("ds_read_b64_tr_b16 %s, v%d offset:%d" % (vr(vK + 4 * m, 2), vT + 5, m * 1024))
        A("ds_read_b64_tr_b16 %s, v%d offset:%d" % (vr(vK + 4 * m + 2, 2), vT + 5, m * 1024 + 128))
    lds_wait(F_XN, 4)
    for m in range(4): A("ds_read_b128 %s, v%d offset:%d" % (vr(vK + 16 + 4 * m, 4), vT + 4, L_XN + m * 64))
    for m in range(4):
        A("s_waitcnt lgkmcnt(%d)" % (3 - m))
        A("v_mfma_f32_16x16x32_bf16 %s, %s, %s, %s" % (vr(vTMP, 4), vr(vK + 4 * m, 4), vr(vK + 16 + 4 * m, 4), "0" if m == 0 else vr(vTMP, 4)))
    A("ds_write_b128 v%d, %s offset:%d" % (vT + 6, vr(vTMP, 4), L_QP))
    lds_add(vHI, F_QP)
    A("s_mov_b64 exec, 1"); A("ds_add_u32 v30, v%d offset:%d" % (vONE, F_FREED)); A("s_mov_b64 exec, -1")
    stamp(2)
    def wait_block(n4):
        A("s_add_u32 s%d, s%d, %d" % (sT0, sWAVE, 4 * n4 + 1))
        lds_wait(F_FULL, "s%d" % sT0, keep=sFULL)
    def read_k(j):
        base = vK + 32 * (j % 4)
        for t in range(2):
            for m in range(4):
                A("ds_read_b128 %s, v%d offset:%d" % (vr(base + 16 * t + 4 * m, 4), vKA + m + (4 if (j & 2) else 0), (j & 1) * 32768 + t * 4096))
    def qk_block(j):
        base = vK + 32 * (j % 4)
        for m in range(4):
            for t in range(2):
                acc = vr(vS + 8 * j + 4 * t, 4)
                A("v_mfma_f32_16x16x32_bf16 %s, %s, %s, %s" % (acc, vr(base + 16 * t + 4 * m, 4), vr(vQ + 4 * m, 4), "0" if m == 0 else acc))
    def round_block(j):
        for p in range(4):
            a, b, t = vS + 8 * j + 2 * p, vS + 8 * j + 2 * p + 1, vT + (p & 1)
            if mimic:
                A("v_cvt_pk_bf16_f32 v%d, v%d, v%d" % (t, a, b)); unpack(a, b, t)
            A("v_mul_f32 v%d, s%d, v%d" % (a, sSCALE, a)); A("v_mul_f32 v%d, s%d, v%d" % (b, sSCALE, b))
            if mimic:
                A("v_cvt_pk_bf16_f32 v%d, v%d, v%d" % (t, a, b)); unpack(a, b, t)
            if j == 0 and p == 0: A("v_max_f32 v%d, v%d, v%d" % (vM, a, b))
            else: A("v_max3_f32 v%d, v%d, v%d, v%d" % (vM, a, b, vM))
    for j in range(4):
        wait_block(j); read_k(j); lds_add(30, F_FREED)
    stamp(3)
    lds_wait(F_QR, 1)
    stamp(4)
    A("v_lshlrev_b32 v%d, 8, v%d" % (vT, vC4)); A("v_lshl_add_u32 v%d, v%d, 4, v%d" % (vT, vG4, vT)); A("v_add_u32 v%d, v%d, v%d" % (vT, vHI, vT))
    for m in range(4): A("ds_read_b128 %s, v%d offset:%d" % (vr(vQ + 4 * m, 4), vT, L_QB + m * 64))
    A("s_waitcnt lgkmcnt(0)")
    for j in range(4):
        qk_block(j)
        wait_block(4 + j); A("s_nop 3"); read_k(4 + j)
        if j >= 1: round_block(j - 1)
        lds_add(30, F_FREED)
    for j in range(4, 8):
        qk_block(j); round_block(j - 1)
    A("v_lshl_add_u32 v%d, v%d, 2, v%d" % (vT + 2, vG4, vC4))
    A("v_and_b32 v%d, 7, v%d" % (vT + 3, vT + 2)); A("v_lshlrev_b32 v%d, 1, v%d" % (vT + 3, vT + 3))
    A("v_lshrrev_b32 v%d, 1, v%d" % (vT + 4, vR4)); A("v_xor_b32 v%d, v%d, v%d" % (vT + 3, vT + 3, vT + 4))
    A("v_lshlrev_b32 v%d, 8, v%d" % (vT + 2, vT + 2)); A("v_lshl_add_u32 v%d, v%d, 4, v%d" % (vT + 2, vT + 3, vT + 2))
    A("v_and_b32 v%d, 1, v0" % (vT + 4)); A("v_lshl_add_u32 v%d, v%d, 3, v%d" % (vT + 2, vT + 4, vT + 2))
    A("s_lshl_b32 s%d, s%d, 13" % (sT0, sWAVE)); A("v_add_u32 v%d, s%d, v%d" % (vVA, sT0, vT + 2))
    for d in range(1, 8): A("v_xor_b32 v%d, %d, v%d" % (vVA + d, 32 * d, vVA))
    round_block(7)
    swap_red(vM, vT, "v_max_f32", 32); swap_red(vM, vT, "v_max_f32", 16)
    A("v_mul_f32 v%d, s%d, v%d" % (vM, sL2E, vM))
    A("v_lshlrev_b32 v%d, 4, v%d" % (vT + 1, vG4)); A("ds_bpermute_b32 v%d, v%d, v%d" % (vMO, vT + 1, vM))
    vP = vK
    for j in range(32):
        a, b = vS + 2 * j, vS + 2 * j + 1
        A("v_fma_f32 v%d, v%d, s%d, -v%d" % (a, a, sL2E, vM)); A("v_fma_f32 v%d, v%d, s%d, -v%d" % (b, b, sL2E, vM))
        A("v_exp_f32 v%d, v%d" % (a, a)); A("v_exp_f32 v%d, v%d" % (b, b))
        if j >= 1:
            pa, pb = a - 2, b - 2
            if j == 1: A("v_add_f32 v%d, v%d, v%d" % (vLs, pa, pb))
            else: A("v_add_f32 v%d, v%d, v%d" % (vLs, vLs, pa)); A("v_add_f32 v%d, v%d, v%d" % (vLs, vLs, pb))
            A("v_cvt_pk_bf16_f32 v%d, v%d, v%d" % (vP + j - 1, pa, pb))
    A("v_add_f32 v%d, v%d, v%d" % (vLs, vLs, vS + 62)); A("v_add_f32 v%d, v%d, v%d" % (vLs, vLs, vS + 63))
    A("v_cvt_pk_bf16_f32 v%d, v%d, v%d" % (vP + 31, vS + 62, vS + 63))
    swap_red(vLs, vT, "v_add_f32", 32); swap_red(vLs, vT, "v_add_f32", 16)
    A("s_lshl_b32 s%d, s%d, 5" % (sT0, sWAVE)); A("s_add_u32 s%d, s%d, %d" % (sT0, sT0, HI)); A("v_lshlrev_b32 v%d, 3, v%d" % (vT, vC4)); A("v_add_u32 v%d, s%d, v%d" % (vT, sT0, vT))
    A("v_mov_b32 v%d, v%d" % (vT + 2, vM)); A("v_mov_b32 v%d, v%d" % (vT + 3, vLs))
    A("s_mov_b64 exec, 0x1111"); A("ds_write_b64 v%d, %s offset:%d" % (vT, vr(vT + 2, 2), L_ST)); A("s_mov_b64 exec, -1")
    lds_add(vHI, F_ST)
    stamp(5)
    A("s_lshl_b32 s%d, s%d, 11" % (sT0, sWAVE)); A("s_add_u32 s%d, s%d, %d" % (sT0, sT0, HI + L_OW))
    A("v_lshlrev_b32 v%d, 9, v%d" % (vOWA, vG4)); A("v_lshl_add_u32 v%d, v%d, 2, v%d" % (vOWA, vN16, vOWA)); A("v_add_u32 v%d, s%d, v%d" % (vOWA, sT0, vOWA))
    vVB = vK + 32
    def read_v(j):
        base = vVB + 32 * (j & 1)
        for d in range(8):
            for t in range(2):
                A("ds_read_b64_tr_b16 %s, v%d offset:%d" % (vr(base + 4 * d + 2 * t, 2), vVA + d, (j & 1) * 32768 + t * 4096))
    def pv(j, d):
        base = vVB + 32 * (j & 1)
        acc = vr(vS + 4 * d, 4)
        A("v_mfma_f32_16x16x32_bf16 %s, %s, %s, %s" % (acc, vr(vP + 4 * j, 4), vr(base + 4 * d, 4), "0" if j == 0 else acc))
    vS2, vF2 = vS + 32, 31
    def factor(dst, m):
        lds_wait(F_GR, 1)
        A("v_lshl_add_u32 v%d, v%d, 3, v%d" % (vT, vG4, vHI)); A("ds_read_b64 %s, v%d offset:%d" % (vr(vT + 2, 2), vT, L_GS)); A("s_waitcnt lgkmcnt(0)")
        A("v_sub_f32 v%d, v%d, v%d" % (dst, m, vT + 2)); A("v_exp_f32 v%d, v%d" % (dst, dst)); A("v_mul_f32 v%d, v%d, v%d" % (dst, dst, vT + 3))
    def wait_pos(j, out):
        ok = A.label("pok"); again = A.label("pagain"); chk = A.label("pchk")
        A("s_add_u32 s%d, s%d, %d" % (sT0, sWAVE, 32 + 4 * j + 1))
        A("s_mov_b32 s%d, 0" % sSPIN)
        A("s_branch " + chk)
        A(again + ":")
        A("ds_read_b64 %s, v%d offset:%d" % (vr(vT + 2, 2), vHI, F_FULL)); A("s_waitcnt lgkmcnt(0)")
        A("v_readfirstlane_b32 s%d, v%d" % (sFULL, vT + 2)); A("v_readfirstlane_b32 s%d, v%d" % (sPLAN, vT + 3))
        A(chk + ":")
        A("s_cmp_ge_u32 s%d, s%d" % (sFULL, sT0)); A("s_cbranch_scc1 " + ok)
        A("s_sub_u32 s%d, s%d, 0x100" % (sT1, sPLAN)); A("s_cmp_le_u32 s%d, %d" % (sT1, j)); A("s_cbranch_scc1 " + out)
        A("s_add_u32 s%d, s%d, 1" % (sSPIN, sSPIN)); A("s_cmp_lt_u32 s%d, %d" % (sSPIN, lspin)); A("s_cbranch_scc1 " + again)
        A("s_branch " + out)
        A(ok + ":")
    if steal:
        lds_wait(F_AM, 1)
        A("v_lshrrev_b32 v%d, 2, v0" % vT); A("v_lshlrev_b32 v%d, 4, v%d" % (vT, vT))
        A("s_lshl_b32 s%d, s%d, 12" % (sT0, sR)); A("s_lshl_b32 s%d, s%d, 10" % (sT1, sWAVE)); A("s_add_u32 s%d, s%d, s%d" % (sT0, sT0, sT1)); A("s_add_u32 s%d, s%d, 0x%x" % (sT0, sT0, WS_PR))
        A("s_mov_b32 exec_lo, 0x11111111"); A("s_mov_b32 exec_hi, 0x11111111")
        for u in range(3): A("buffer_store_dwordx4 %s, v%d, %s, s%d offen offset:%d sc1" % (vr(vP + 4 * (5 + u), 4), vT, srd("WS"), sT0, 256 * u))
        A("s_mov_b64 exec, 0x1111")
        A("buffer_store_dword v%d, v0, %s, s%d offen offset:768 sc1" % (vM, srd("WS"), sT0))
        A("s_mov_b64 exec, -1")
        A("s_mov_b32 s%d, 0" % sPLAN)
    for j in range(11 if steal else 8):
        if j == 7:
            factor(vF, vMO)
            stamp(6)
        if j < NOWN: wait_block(8 + j)
        else: wait_pos(j, "L_vout%d" % j)
        if j == 7: stamp(7)
        if j >= 8:
            if j == 8:
                A("v_lshrrev_b32 v%d, 2, v0" % (vT + 4)); A("v_lshlrev_b32 v%d, 4, v%d" % (vT + 4, vT + 4))
                A("s_lshl_b32 s%d, s%d, 10" % (sT1, sWAVE)); A("s_add_u32 s%d, s%d, %d" % (sT1, sT1, HI + L_PP)); A("v_add_u32 v%d, s%d, v%d" % (vT + 4, sT1, vT + 4))
                A("v_lshl_add_u32 v%d, v%d, 2, s%d" % (vT + 5, vG4, sT1))
                for u in range(3): A("ds_read_b128 %s, v%d offset:%d" % (vr(vP + 4 * u, 4), vT + 4, 256 * (2 - u)))
                A("ds_read_b32 v%d, v%d offset:768" % (vF2, vT + 5)); A("s_waitcnt lgkmcnt(0)")
                factor(vF2, vF2)
        read_v(j)
        if j % 4 == 1:
            for d in range(8): A("v_add_u32 v%d, 0x10000, v%d" % (vVA + d, vVA + d))
        if j % 4 == 3 and (steal or j < 7):
            for d in range(8): A("v_subrev_u32 v%d, 0x10000, v%d" % (vVA + d, vVA + d))
        for d in range(8):
            A("s_waitcnt lgkmcnt(%d)" % (14 - 2 * d))
            if d == 7 and j < (7 if steal else 4):
                A("s_mov_b64 exec, 1"); A("ds_add_u32 v30, v%d offset:%d" % (vONE, F_FREED)); A("s_mov_b64 exec, -1")
            if j < 8: pv(j, d)
            else:
                acc = vr(vS2 + 4 * d, 4)
                A("v_mfma_f32_16x16x32_bf16 %s, %s, %s, %s" % (acc, vr(vP + 4 * (j - 8), 4), vr(vVB + 32 * (j & 1) + 4 * d, 4), "0" if j == 8 else acc))
    if steal:
        A("L_vout9:"); A("L_vout10:")
        A("s_nop 7")
        for d in range(8): A("v_mul_f32 v%d, v%d, v%d" % (vTMP + d, vF, vS + 4 * d))
        for d in range(8): A("v_fmac_f32 v%d, v%d, v%d" % (vTMP + d, vF2, vS2 + 4 * d))
        A("s_branch L_vsum")
        A("L_vout5:"); A("L_vout6:")
        factor(vF, vMO)
        A("L_vout7:"); A("L_vout8:")
        A("s_nop 7")
    for d in range(8): A("v_mul_f32 v%d, v%d, v%d" % (vTMP + d, vF, vS + 4 * d))
    if steal: A("L_vsum:")
    for d in range(0, 8, 2): A("ds_write2_b32 v%d, v%d, v%d offset0:%d offset1:%d" % (vOWA, vTMP + d, vTMP + d + 1, 16 * d, 16 * d + 16))
    vWOA, vOIR, vWO = 17, 18, vK
    A("v_lshlrev_b32 v%d, 7, v%d" % (vWOA, vC4)); A("v_lshl_add_u32 v%d, v%d, 10, v%d" % (vWOA, vG4, vWOA)); A("v_lshl_add_u32 v%d, v%d, 3, v%d" % (vWOA, vR4, vWOA))
    A("s_lshl_b32 s%d, s%d, 5" % (sT0, sWAVE)); A("s_add_u32 s%d, s%d, %d" % (sT0, sT0, HI + L_WO)); A("v_add_u32 v%d, s%d, v%d" % (vWOA, sT0, vWOA))
    A("s_waitcnt lgkmcnt(0)")
    A("s_barrier")
    stamp(8)
    def wo_reads():
        if wolate: lds_wait(F_WO, 1, sl=0)
        for m in range(4):
            A("ds_read_b64_tr_b16 %s, v%d offset:%d" % (vr(vWO + 4 * m, 2), vWOA, m * 4096))
            A("ds_read_b64_tr_b16 %s, v%d offset:%d" % (vr(vWO + 4 * m + 2, 2), vWOA, m * 4096 + 512))
    def oir_addr():
        A("v_lshrrev_b32 v%d, 1, v%d" % (vT, vN16)); A("v_lshlrev_b32 v%d, 10, v%d" % (vT, vT)); A("v_and_b32 v%d, 1, v0" % (vT + 1)); A("v_lshl_add_u32 v%d, v%d, 8, v%d" % (vT, vT + 1, vT))
        for m in range(4):
            A("v_add_u32 v%d, %d, v%d" % (vT + 1, 4 * m, vG4)); A("v_xor_b32 v%d, v%d, v%d" % (vT + 1, vT + 1, vN16))
            A("v_lshl_add_u32 v%d, v%d, 4, v%d" % (vOIR + m, vT + 1, vT))
        A("v_lshrrev_b32 v%d, 1, v%d" % (22, vN16)); A("v_lshlrev_b32 v22, %d, v22" % (16 + spad)); A("v_lshl_add_u32 v22, v%d, 4, v22" % vG4)
    A("s_cmp_gt_u32 s%d, 1" % sWAVE); A("s_cbranch_scc1 L_gather23")
    A("s_lshl_b32 s%d, s%d, 10" % (sT0, sWAVE)); A("s_add_u32 s%d, s%d, %d" % (sT0, sT0, HI + L_OW)); A("v_add_u32 v%d, s%d, v%d" % (vT, sT0, vL16))
    for w in range(4): A("ds_read_b128 %s, v%d offset:%d" % (vr(vS + 4 * w, 4), vT, w * 2048))
    A("v_lshrrev_b32 v%d, 5, v0" % (vT + 1)); A("v_lshlrev_b32 v%d, 13, v%d" % (vT + 1, vT + 1)); A("v_and_b32 v%d, 31, v0" % (vT + 2)); A("v_lshl_add_u32 v%d, v%d, 3, v%d" % (vT + 1, vT + 2, vT + 1))
    A("s_lshl_b32 s%d, s%d, 14" % (sT0, sWAVE)); A("s_add_u32 s%d, s%d, s%d" % (sT0, sT0, sOPOFF))
    A("s_waitcnt lgkmcnt(2)")
    for i in range(4): A("v_add_f32 v%d, v%d, v%d" % (vS + i, vS + i, vS + 4 + i))
    A("s_waitcnt lgkmcnt(0)")
    for i in range(4): A("v_add_f32 v%d, v%d, v%d" % (vS + 8 + i, vS + 8 + i, vS + 12 + i))
    for i in range(4): A("v_add_f32 v%d, v%d, v%d" % (vS + i, vS + i, vS + 8 + i))
    A("v_cvt_pk_bf16_f32 v%d, v%d, v%d" % (vTMP, vS, vS + 1)); A("v_cvt_pk_bf16_f32 v%d, v%d, v%d" % (vTMP + 1, vS + 2, vS + 3))
    A("buffer_store_dwordx2 %s, v%d, %s, s%d offen %s" % (vr(vTMP, 2), vT + 1, srd("WS"), sT0, ts))
    stamp(11)
    wo_reads(); oir_addr()
    A("s_branch L_barE_c")
    def gather(idx_sgpr, extra):
        vGa = 40
        A("s_lshr_b32 s%d, s%d, 3" % (sT1, sR)); A("s_lshl_b32 s%d, s%d, 13" % (sT1, sT1)); A("s_lshl_b32 s%d, s%d, 11" % (sT0, idx_sgpr))
        A("s_add_u32 s%d, s%d, s%d" % (sT1, sT1, sT0)); A("s_add_u32 s%d, s%d, 0x%x" % (sT1, sT1, WS_OP))
        lds_ = [(lambda: A("buffer_load_dwordx4 %s, v%d, %s, s%d offen %s" % (vr(vGa, 4), vL16, srd("WS"), sT1, tl)), list(range(vGa, vGa + 4))),
                (lambda: A("buffer_load_dwordx4 %s, v%d, %s, s%d offen offset:1024 %s" % (vr(vGa + 4, 4), vL16, srd("WS"), sT1, tl)), list(range(vGa + 4, vGa + 8)))]
        if td1: A("s_sleep %d" % td1)
        if at1:
            A("v_lshlrev_b32 v%d, 3, v0" % (vT + 7))
            apoll(vGa, vT + 7, sT1, 0, 0, first="only")
            extra()
            A("v_lshrrev_b32 v%d, 5, v0" % (vT + 2)); A("s_lshl_b32 s%d, s%d, 2" % (sT2, idx_sgpr)); A("v_add_u32 v%d, s%d, v%d" % (vT + 3, sT2, vT + 2))
            A("v_bfe_u32 v%d, v0, 1, 4" % (vT + 4)); A("v_xor_b32 v%d, v%d, v%d" % (vT + 3, vT + 3, vT + 4))
            A("v_lshlrev_b32 v%d, 8, v%d" % (vT + 2, vT + 2)); A("v_add_u32 v%d, s%d, v%d" % (vT + 2, sT0, vT + 2))
            A("v_and_b32 v%d, 1, v0" % (vT + 4)); A("v_lshl_add_u32 v%d, v%d, 3, v%d" % (vT + 2, vT + 4, vT + 2))
            A("v_lshl_add_u32 v%d, v%d, 4, v%d" % (vT + 5, vT + 3, vT + 2)); A("v_xor_b32 v%d, 32, v%d" % (vT + 6, vT + 5))
            apoll(vGa, vT + 7, sT1, 24, tsleep, first=False)
            stamp(11)
            for k in range(4): A("ds_write_b64 v%d, %s offset:%d" % (vT + 5 + (k >> 1), vr(vGa + 2 * k, 2), 512 * k))
            return
        for i_, _ in lds_: i_()
        A("v_and_b32 v%d, 1, v%d" % (vT + 2, vG4)); A("s_lshl_b32 s%d, s%d, 2" % (sT2, idx_sgpr)); A("v_add_u32 v%d, s%d, v%d" % (vT + 2, sT2, vT + 2))
        A("v_xor_b32 v%d, v%d, v%d" % (vT + 3, vT + 2, vN16)); A("v_xor_b32 v%d, 2, v%d" % (vT + 4, vT + 3))
        A("v_lshlrev_b32 v%d, 8, v%d" % (vT + 2, vG4)); A("v_add_u32 v%d, s%d, v%d" % (vT + 2, sT0, vT + 2))
        A("v_lshl_add_u32 v%d, v%d, 4, v%d" % (vT + 5, vT + 3, vT + 2)); A("v_lshl_add_u32 v%d, v%d, 4, v%d" % (vT + 6, vT + 4, vT + 2))
        extra()
        gpoll(lds_, first=False, sleep=tsleep, P=P1)
        stamp(11)
        A("ds_write_b128 v%d, %s" % (vT + 5, vr(vGa, 4))); A("ds_write_b128 v%d, %s offset:1024" % (vT + 6, vr(vGa + 4, 4)))
    A("L_gather23:")
    A("s_sub_u32 s%d, s%d, 2" % (sMU, sWAVE))
    gather(sMU, lambda: (wo_reads(), oir_addr()))
    A("L_barE_c:")
    A("s_waitcnt lgkmcnt(0)")
    A("s_barrier")
    stamp(9)
    for u in range(2):
        for m in range(4): A("ds_read_b128 %s, v%d offset:%d" % (vr(vS + 16 * u + 4 * m, 4), vOIR + m, u * 512))
    A("s_lshl_b32 s%d, s%d, %d" % (sT0, sWAVE, 11 + spad)); A("s_add_u32 s%d, s%d, s%d" % (sT0, sT0, sSPOFF))
    for u in range(2):
        for m in range(4):
            A("s_waitcnt lgkmcnt(%d)" % (7 - 4 * u - m))
            acc = vr(vTMP + 4 * u, 4)
            A("v_mfma_f32_16x16x32_bf16 %s, %s, %s, %s" % (acc, vr(vWO + 4 * m, 4), vr(vS + 16 * u + 4 * m, 4), "0" if m == 0 else acc))
    for i in range(4): A("v_add_f32 v%d, v%d, v%d" % (vTMP + i, vTMP + i, vTMP + 4 + i))
    for i in range(4): dpp("v_add_f32", vTMP + i, "quad_perm:[1,0,3,2]")
    A("s_mov_b32 exec_lo, 0x55555555"); A("s_mov_b32 exec_hi, 0x55555555")
    stamp(10)
    A("buffer_store_dwordx4 %s, v22, %s, s%d offen %s" % (vr(vTMP, 4), srd("WS"), sT0, ts))
    A("s_mov_b64 exec, -1")
    A("s_branch L_done")

    A("L_loader:")
    if ldprio: A("s_setprio %d" % ldprio)
    vO = 17
    A("v_lshlrev_b32 v%d, 8, v%d" % (vT, vG4))
    for i in range(4):
        A("v_add_u32 v%d, %d, v%d" % (vT + 1, 4 * i, vG4)); A("v_xor_b32 v%d, v%d, v%d" % (vT + 1, vT + 1, vN16)); A("v_lshl_add_u32 v%d, v%d, 4, v%d" % (vO + i, vT + 1, vT))
    for i in range(2):
        A("v_add_u32 v%d, %d, v%d" % (vT + 1, 4 * i, vG4)); A("v_lshlrev_b32 v%d, 1, v%d" % (vT + 1, vT + 1))
        A("v_xor_b32 v%d, v%d, v%d" % (vT + 1, vT + 1, vN16)); A("v_lshl_add_u32 v%d, v%d, 4, v%d" % (vO + 4 + i, vT + 1, vT))
    sG, sSLOT, sFR, sN = 12, 13, 88, 92
    A("s_bfe_u32 s%d, s%d, 0x30002" % (sBASE, sR)); A("s_lshl_b32 s%d, s%d, 23" % (sBASE, sBASE)); A("s_lshr_b32 s%d, s%d, 5" % (sT0, sR)); A("s_lshl_b32 s%d, s%d, 20" % (sT0, sT0))
    A("s_add_u32 s%d, s%d, s%d" % (sBASE, sBASE, sT0)); A("s_and_b32 s%d, s%d, 3" % (sT0, sR)); A("s_lshl_b32 s%d, s%d, 18" % (sT0, sT0)); A("s_add_u32 s%d, s%d, s%d" % (sBASE, sBASE, sT0))
    if rot:
        A("s_mov_b32 s94, s%d" % sBASE)
        A("s_mul_i32 s%d, s%d, %d" % (sT0, sR, rot)); A("s_lshr_b32 s%d, s%d, 5" % (sT1, sR)); A("s_add_u32 s%d, s%d, s%d" % (sT0, sT0, sT1))
        A("s_and_b32 s%d, s%d, 31" % (sT0, sT0)); A("s_lshl_b32 s%d, s%d, 13" % (sT0, sT0)); A("s_add_u32 s%d, s%d, s%d" % (sBASE, sBASE, sT0))
    if Fhi:
        A("s_and_b32 s%d, s2, 7" % sT0); A("s_lshr_b32 s%d, %d, s%d" % (sT0, himask, sT0)); A("s_and_b32 s%d, s%d, 1" % (sT0, sT0)); A("s_cselect_b32 s95, %d, %d" % (Fhi, F))
    A("s_mov_b32 s94, 0"); A("s_mov_b32 s93, 0"); A("s_mov_b32 s%d, s%d" % (sOFF, sBASE)); A("s_mov_b32 s%d, 0" % sG); A("s_mov_b32 s%d, 0" % sSLOT); A("s_mov_b32 s%d, 0" % sN)
    A("s_waitcnt lgkmcnt(0)")
    def publish_full(sgpr):
        A("v_mov_b32 v%d, s%d" % (vT, sgpr)); A("s_mov_b64 exec, 1"); A("ds_max_u32 v%d, v%d offset:%d" % (vHI, vT, F_FULL)); A("s_mov_b64 exec, -1")
    def dma_block(isk):
        Dm = D if isk else DV
        for half in range(2):
            A("s_mov_b32 m0, s%d" % sSLOT)
            if Dm: A("s_waitcnt vmcnt(%d)" % Dm)
            for i in range(4):
                A("buffer_load_dwordx4 v%d, %s, s%d offen offset:%d %s lds" % (vO + i if isk else vO + 4 + (i & 1), srd("K" if isk else "V"), sOFF, i * 1024, pol))
            A("s_add_u32 s%d, s%d, 4096" % (sOFF, sOFF)); A("s_add_u32 s%d, s%d, 4096" % (sSLOT, sSLOT))
            if Dm and (4 * half - Dm) % 8 < 4:
                A("s_add_i32 s%d, s%d, %d" % (sT0, sN, (4 * half - Dm) // 8)); A("s_max_i32 s%d, s%d, 0" % (sT0, sT0)); publish_full(sT0)
        if rot:
            A("s_and_b32 s%d, s%d, 0x3ffff" % (sOFF, sOFF)); A("s_or_b32 s%d, s%d, s94" % (sOFF, sOFF))
        A("s_and_b32 s%d, s%d, 0x1ffff" % (sSLOT, sSLOT)); A("s_add_u32 s%d, s%d, 1" % (sN, sN))
    if ldst == 2: stamp(1)
    for _ in range(pre): dma_block(True)
    A("s_barrier")
    if ldst == 2: stamp(2)
    for _ in range(4 - pre): dma_block(True)
    A("s_mov_b32 s%d, 1" % sG)
    if ldst == 2: stamp(3)
    def read_freed():
        A("ds_read_b128 %s, v%d offset:%d" % (vr(vT + 4, 4), vHI, F_FREED)); A("s_waitcnt lgkmcnt(0)")
        for c in range(4): A("v_readfirstlane_b32 s%d, v%d" % (sFR + c, vT + 4 + c))
    for isk, last in ((True, 8), (False, 19 if steal else 16)):
        loop = "L_ld_k" if isk else "L_ld_v"
        if not isk: A("s_mov_b32 s%d, s%d" % (sOFF, sBASE))
        A(loop + ":")
        for g_, reg in ((p_a, 16), (p_b, 18)):
            if g_ > 0 and g_ < 16 and (g_ < 8) == isk:
                sk = A.label("st"); A("s_cmp_lg_u32 s%d, %d" % (sG, g_)); A("s_cbranch_scc1 " + sk); A("s_memrealtime s[%d:%d]" % (reg, reg + 1)); A(sk + ":")
        if ldst == 1:
            for k, g in enumerate((2, 3, 4, 5, 6, 7) if isk else (8, 10, 12, 14)):
                sk = A.label("st"); A("s_cmp_lg_u32 s%d, %d" % (sG, g)); A("s_cbranch_scc1 " + sk); stamp(k + 1 if isk else k + 7); A(sk + ":")
        if steal and not isk:
            go = A.label("pgo"); again = A.label("pagain")
            A("s_cmp_lt_u32 s%d, %d" % (sG, 8 + NOWN)); A("s_cbranch_scc1 " + go)
            A("s_mov_b32 s%d, 0" % sSPIN); A("s_sub_u32 s%d, s%d, 8" % (sT1, sG))
            if ldst: A("s_memrealtime s[14:15]")
            A(again + ":")
            A("ds_read_b32 v%d, v%d offset:%d" % (vPOLL, vHI, F_PLAN)); A("s_waitcnt lgkmcnt(0)"); A("v_readfirstlane_b32 s%d, v%d" % (sT0, vPOLL))
            A("s_and_b32 s%d, s%d, 0xff" % (sT2, sT0)); A("s_cmp_gt_u32 s%d, s%d" % (sT2, sT1)); A("s_cbranch_scc1 L_granted")
            A("s_cmp_ge_u32 s%d, 0x100" % sT0); A("s_cbranch_scc1 L_ld_end")
            for k in range(F - 1, -1, -1):
                A("s_cmp_eq_u32 s%d, %d" % (sSPIN, F - 1 - k)); nx = A.label("nx"); A("s_cbranch_scc0 " + nx)
                A("s_sub_u32 s%d, s%d, %d" % (sT0, sN, k)); A("s_waitcnt vmcnt(%d)" % (8 * k)); publish_full(sT0); A(nx + ":")
            if ldst: A("s_add_u32 s93, s93, 1")
            A("s_add_u32 s%d, s%d, 1" % (sSPIN, sSPIN)); A("s_cmp_lt_u32 s%d, %d" % (sSPIN, lspin)); A("s_cbranch_scc1 " + again)
            A("s_branch L_ld_end")
            A("L_granted:")
            if ldst:
                A("s_memrealtime s[36:37]"); A("s_waitcnt lgkmcnt(0)"); A("s_sub_u32 s36, s36, s14"); A("s_add_u32 s94, s94, s36")
            A("s_cmp_lt_u32 s%d, 16" % sG); A("s_cbranch_scc1 " + go)
            A("s_sub_u32 s%d, 23, s%d" % (sT0, sG)); A("s_lshl_b32 s%d, s%d, 15" % (sT0, sT0)); A("s_xor_b32 s%d, s%d, 0x80000" % (sOFF, sBASE)); A("s_add_u32 s%d, s%d, s%d" % (sOFF, sOFF, sT0))
            A(go + ":")
        read_freed()
        A("s_sub_i32 s%d, s%d, 2" % (sT1, sG))
        if Fhi and hiend < 16:
            A("s_cmp_ge_u32 s%d, %d" % (sG, hiend)); A("s_cselect_b32 s95, %d, s95" % F)
        for c in range(4):
            go = A.label("go"); sl = A.label("slow")
            A("s_cmp_ge_i32 s%d, s%d" % (sFR + c, sT1)); A("s_cbranch_scc1 " + go)
            A("s_waitcnt vmcnt(0)"); publish_full(sN)
            if ldst: A("s_add_u32 s93, s93, 100")
            A("s_mov_b32 s%d, 0" % sSPIN)
            A(sl + ":")
            read_freed()
            A("s_cmp_ge_i32 s%d, s%d" % (sFR + c, sT1)); A("s_cbranch_scc1 " + go)
            A("s_add_u32 s%d, s%d, 1" % (sSPIN, sSPIN)); A("s_cmp_lt_u32 s%d, %d" % (sSPIN, lspin)); A("s_cbranch_scc1 " + sl)
            A(go + ":")
            dma_block(isk)
            if D: pass
            elif bal == 1:
                hi = A.label("hi")
                A("ds_read_b32 v%d, v%d offset:%d" % (vPOLL, vHI, F_MODE))
                A("s_sub_i32 s%d, s%d, %d" % (sT0, sN, F))
                A("s_waitcnt vmcnt(%d) lgkmcnt(0)" % (8 * F)); A("v_readfirstlane_b32 s%d, v%d" % (sT2, vPOLL))
                A("s_cmp_eq_u32 s%d, 0" % sT2); A("s_cbranch_scc1 " + hi)
                publish_full(sT0)
                if ldst: A("s_add_u32 s94, s94, 100")
                A("s_sub_i32 s%d, s%d, %d" % (sT0, sN, (Flo + 7) // 8 if Flo > 7 else Flo))
                A("s_waitcnt vmcnt(%d)" % (Flo if Flo > 7 else 8 * Flo)); A(hi + ":"); publish_full(sT0)
            elif Fhi:
                hi = A.label("hi")
                A("s_sub_i32 s%d, s%d, s95" % (sT0, sN)); A("s_max_i32 s%d, s%d, 0" % (sT0, sT0))
                A("s_waitcnt vmcnt(%d)" % (8 * Fhi)); A("s_cmp_eq_u32 s95, %d" % Fhi); A("s_cbranch_scc1 " + hi)
                A("s_waitcnt vmcnt(%d)" % (8 * F)); A(hi + ":"); publish_full(sT0)
            else:
                A("s_sub_i32 s%d, s%d, %d" % (sT0, sN, F))
                if F > 5: A("s_max_i32 s%d, s%d, 0" % (sT0, sT0))
                A("s_waitcnt vmcnt(%d)" % (8 * F)); publish_full(sT0)
        if stamps:
            pass
        A("s_add_u32 s%d, s%d, 1" % (sG, sG)); A("s_cmp_lt_u32 s%d, %d" % (sG, last)); A("s_cbranch_scc1 " + loop)
        if not ldst: stamp(1 if isk else 2)
    def wo_dma():
        A("v_lshrrev_b32 v%d, 3, v0" % (vT + 4)); A("v_lshlrev_b32 v%d, 10, v%d" % (vT + 4, vT + 4)); A("v_and_b32 v%d, 7, v0" % (vT + 5)); A("v_lshl_add_u32 v%d, v%d, 4, v%d" % (vT + 4, vT + 5, vT + 4))
        A("s_lshr_b32 s%d, s%d, 3" % (sT0, sR)); A("s_lshl_b32 s%d, s%d, 17" % (sT0, sT0)); A("s_and_b32 s%d, s%d, 7" % (sT1, sR)); A("s_lshl_b32 s%d, s%d, 7" % (sT1, sT1))
        A("s_add_u32 s%d, s%d, s%d" % (sT0, sT0, sT1))
        for a in range(16):
            A("s_mov_b32 m0, %d" % (HI + L_WO + a * 1024))
            A("buffer_load_dwordx4 v%d, %s, s%d offen %s lds" % (vT + 4, srd("WO"), sT0, polo))
            if a < 15: A("s_add_u32 s%d, s%d, 0x2000" % (sT0, sT0))
    if steal:
        A("L_ld_end:")
        A("s_mov_b64 exec, 1"); A("ds_write_b32 v%d, v%d offset:%d" % (vHI, vONE, F_LI)); A("s_mov_b64 exec, -1")
    if wolate == 1: wo_dma()
    for k in range((DV + 4 + 7) // 8 - 1 if D else max(F, Fhi) - 1, -1, -1):
        A("s_sub_u32 s%d, s%d, %d" % (sT0, sN, k)); A("s_waitcnt vmcnt(%d)" % (8 * k + (16 if wolate == 1 else 0))); publish_full(sT0)
    if wolate == 1:
        if ldst: stamp(11)
        A("s_waitcnt vmcnt(0)"); A("s_mov_b64 exec, 1"); A("ds_write_b32 v%d, v%d offset:%d" % (vHI, vONE, F_WO)); A("s_mov_b64 exec, -1")
    if ldst:
        if wolate == 1: stamp(12)
        else:
            stamp(11)
            A("s_waitcnt lgkmcnt(0)"); A("s_mul_i32 s%d, s%d, 25" % (sT0, sN)); A("s_add_u32 s40, s16, s%d" % sT0); A("s_addc_u32 s41, s17, 0")
            if steal: A("s_add_u32 s36, s16, s94"); A("s_addc_u32 s37, s17, 0")
            if bal: A("s_add_u32 s40, s16, s94"); A("s_addc_u32 s41, s17, 0")
    else: stamp(3)
    if p_b >= 0 and piv:
        if p_b == 16: A("s_memrealtime s[18:19]")
        A("s_waitcnt lgkmcnt(0)"); A("s_sub_u32 s18, s18, s16")
    elif p_b >= 0:
        if p_b == 16: A("s_memrealtime s[18:19]")
        A("s_waitcnt lgkmcnt(0)"); A("s_sub_u32 s18, s18, s16"); A("v_mov_b32 v8, s18"); A("s_mov_b64 exec, 1"); A("buffer_atomic_add v8, off, %s, 0 offset:4" % srd("DBG")); A("s_mov_b64 exec, -1")
    if pmap:
        if not piv: A("s_memrealtime s[18:19]")
        A("s_lshl_b32 s6, s%d, 2" % sR); A("s_add_u32 s6, s6, 0x300000")
        A("s_waitcnt lgkmcnt(0)"); A("v_mov_b32 v8, s18"); A("s_mov_b64 exec, 1"); A("buffer_store_dword v8, off, %s, s6 sc1" % srd("WS")); A("s_mov_b64 exec, -1")
    if pspan:
        A("s_memrealtime s[18:19]"); A("s_waitcnt lgkmcnt(0)")
        if pspan in (3, 4): A("s_mov_b32 s18, s16")
        if pm: A("s_and_b32 s6, s2, %d" % pm); A("s_cmp_eq_u32 s6, %d" % pval); A("s_cselect_b32 s18, s18, s16")
        A("s_not_b32 s16, s16"); A("v_mov_b32 v8, s18"); A("v_mov_b32 v9, s16"); A("s_mov_b64 exec, 1")
        A("buffer_atomic_%s v8, off, %s, 0 offset:4" % ("add" if pspan in (4, 5) else "umax", srd("DBG"))); A("buffer_atomic_umax v9, off, %s, 0 offset:8" % srd("DBG")); A("s_mov_b64 exec, -1")
    if pgrp:
        if not piv: A("s_memrealtime s[18:19]")
        if pgrp == 1: A("s_and_b32 s6, s2, 7")
        elif pgrp == 2: A("s_bfe_u32 s6, s%d, 0x30002" % sR)
        elif pgrp == 3: A("s_lshr_b32 s6, s%d, 5" % sR)
        else: A("s_and_b32 s6, s%d, 3" % sR); A("s_lshr_b32 s7, s2, 7"); A("s_lshl_b32 s7, s7, 2"); A("s_add_u32 s6, s6, s7")
        A("s_lshl_b32 s6, s6, 5")
        A("s_waitcnt lgkmcnt(0)"); A("v_mov_b32 v8, s18"); A("s_mov_b64 exec, 1"); A("buffer_atomic_%s v8, off, %s, s6 offset:4" % ("add" if pat >= 12 else "umax", srd("DBG"))); A("s_mov_b64 exec, -1")
    if probe:
        A("s_memrealtime s[20:21]"); A("s_waitcnt lgkmcnt(0)")
        if pstart: A("s_mov_b32 s20, s16")
        A("s_and_b32 s6, s2, 7"); A("s_lshr_b32 s6, %d, s6" % probe); A("s_and_b32 s6, s6, 1"); A("s_lshl_b32 s6, s6, 2"); A("s_add_u32 s6, s6, 4")
        A("s_waitcnt lgkmcnt(0)"); A("v_mov_b32 v8, s20"); A("s_mov_b64 exec, 1"); A("buffer_atomic_add v8, off, %s, s6" % srd("DBG")); A("s_mov_b64 exec, -1")
    A("s_waitcnt lgkmcnt(0)")
    A("s_branch L_done")

    def slot_addrs():
        A("v_lshlrev_b32 v28, 5, v0")
        A("s_and_b32 s%d, s%d, 3" % (sT0, sR)); A("s_lshl_b32 s%d, s%d, 3" % (sT0, sT0)); A("s_add_u32 s%d, s%d, s%d" % (sMU, sT0, sSTOFF))
    A("L_comm:")
    vZ = 20
    for i in range(4): A("v_mov_b32 v%d, 0" % (vZ + i))
    A("v_lshl_add_u32 v%d, v0, 2, v%d" % (vT, vHI))
    A("s_mov_b64 exec, 0xffff"); A("ds_write_b32 v%d, v%d offset:%d" % (vT, vZ, L_FLG)); A("s_mov_b64 exec, -1")
    slot_addrs()
    sEP = 4
    def epoch():
        A("s_waitcnt vmcnt(0)")
        A("v_readfirstlane_b32 s%d, v30" % sEP); A("v_readfirstlane_b32 s%d, v31" % (sEP + 1))
        A("s_add_u32 s%d, s%d, 0x%x" % (sEP, sEP, EP_STEP & 0xffffffff)); A("s_addc_u32 s%d, s%d, 0x%x" % (sEP + 1, sEP + 1, EP_STEP >> 32))
    A("s_waitcnt lgkmcnt(0)")
    A("buffer_load_dwordx2 v[30:31], off, %s, 0 offset:%d sc1" % (srd("WS"), WS_EP))
    A("s_barrier")
    A("v_add_u32 v%d, v%d, v%d" % (vT, vHI, vL16))
    A("v_and_b32 v29, 7, v0"); A("v_lshlrev_b32 v29, 14, v29"); A("v_lshl_add_u32 v29, v%d, 4, v29" % vG4)
    A("s_lshl_b32 s%d, s%d, 6" % (sT2, sRQ)); A("s_add_u32 s%d, s%d, 0x%x" % (sT2, sT2, WS_Q))
    A("s_bfe_u32 s%d, s%d, 0x30002" % (sT0, sR)); A("s_lshl_b32 s%d, s%d, 14" % (sT0, sT0)); A("s_lshr_b32 s%d, s%d, 5" % (sT1, sR)); A("s_lshl_b32 s%d, s%d, 11" % (sT1, sT1))
    A("s_add_u32 s%d, s%d, s%d" % (sT0, sT0, sT1)); A("s_add_u32 s%d, s%d, 0x%x" % (sT0, sT0, WS_Q))
    A("v_lshl_add_u32 v27, v0, 3, v%d" % vHI)
    epoch()
    A("v_mov_b32 v38, s%d" % sEP); A("v_mov_b32 v39, s%d" % (sEP + 1))
    stamp(1)
    lds_wait(F_QP, 4)
    for w in range(4): A("ds_read_b128 %s, v%d offset:%d" % (vr(40 + 4 * w, 4), vT, L_QP + w * 1024))
    A("s_waitcnt lgkmcnt(0)")
    for i in range(4): A("v_add_f32 v%d, v%d, v%d" % (40 + i, 40 + i, 44 + i)); A("v_add_f32 v%d, v%d, v%d" % (48 + i, 48 + i, 52 + i))
    for i in range(4): A("v_add_f32 v%d, v%d, v%d" % (40 + i, 40 + i, 48 + i))
    A("v_cvt_pk_bf16_f32 v36, v40, v41"); A("v_cvt_pk_bf16_f32 v37, v42, v43")
    A("s_mov_b32 exec_lo, 0x00ff00ff"); A("s_mov_b32 exec_hi, 0x00ff00ff")
    A("buffer_store_dwordx4 v[36:39], v29, %s, s%d offen sc1" % (srd("WS"), sT2))
    A("s_mov_b64 exec, -1")
    stamp(2)
    if qdelay: A("s_sleep %d" % qdelay)
    if qtrig: lds_wait(F_FULL, qtrig, sl=4)
    gpoll([(lambda: A("buffer_load_dwordx4 v[32:35], v%d, %s, s%d offen sc1" % (vL16, srd("WS"), sT0)), [32, 33, 34, 35]),
           (lambda: A("buffer_load_dwordx4 v[40:43], v%d, %s, s%d offen offset:1024 sc1" % (vL16, srd("WS"), sT0)), [40, 41, 42, 43])], sleep=qsleep, tag="s[%d:%d]" % (sEP, sEP + 1))
    A("ds_write_b64 v27, v[32:33] offset:%d" % L_QB); A("ds_write_b64 v27, v[40:41] offset:%d" % (L_QB + 512))
    lds_add(vHI, F_QR)
    stamp(4)
    def all_marked():
        A("v_lshlrev_b32 v%d, 5, v0" % (vT + 3))
        word_poll("buffer_load_dword v32, v%d, %s, 0 offen sc1" % (vT + 3, srd("DBG")), 32, "0xff", "v_cmp_gt_u32 vcc, 32, v%d", fsleep)
        stamp(3)
    all_marked()
    lds_add(vHI, F_AM)
    A("v_lshlrev_b32 v%d, 3, v%d" % (vT + 1, vN16)); A("v_add_u32 v%d, v%d, v%d" % (vT + 2, vHI, vT + 1))
    lds_wait(F_ST, 4)
    A("ds_read_b64 v[32:33], v%d offset:%d" % (vT + 2, L_ST)); A("s_waitcnt lgkmcnt(0)")
    def combine(modes):
        A("v_mov_b32 v34, v32")
        for m in modes: dpp("v_max_f32", 34, m)
        A("v_sub_f32 v32, v32, v34"); A("v_exp_f32 v32, v32"); A("v_mul_f32 v35, v32, v33")
        for m in modes: dpp("v_add_f32", 35, m)
    combine(("row_ror:4", "row_ror:8"))
    A("s_mov_b64 exec, 0xf"); A("buffer_store_dwordx2 v[34:35], v28, %s, s%d offen sc1" % (srd("WS"), sMU)); A("s_mov_b64 exec, -1")
    stamp(5)
    if sdelay: A("s_sleep %d" % sdelay)
    if strig:
        lds_wait(F_FULL, strig, sl=8)
    gpoll([(lambda: A("buffer_load_dwordx2 v[32:33], v%d, %s, s%d offen sc1" % (vT + 1, srd("WS"), sSTOFF)), [32, 33])], sleep=ssleep)
    combine(("quad_perm:[1,0,3,2]", "quad_perm:[2,3,0,1]"))
    A("v_rcp_f32 v35, v35"); A("v_lshl_add_u32 v%d, v%d, 3, v%d" % (vT + 2, vC4, vHI))
    A("s_mov_b64 exec, 0x1111"); A("ds_write_b64 v%d, v[34:35] offset:%d" % (vT + 2, L_GS)); A("s_mov_b64 exec, -1")
    lds_add(vHI, F_GR)
    stamp(6)
    A("s_mov_b32 s%d, 2" % sMU)
    A("L_gather56:")
    A("s_waitcnt lgkmcnt(0)")
    A("s_barrier")
    stamp(8)
    gather(sMU, lambda: None)
    A("s_waitcnt lgkmcnt(0)")
    A("s_barrier")
    stamp(9)
    A("s_branch L_done")

    A("L_mlp:")
    vW, vU = 32, 64
    def pg_addr(line, word):
        A("s_lshr_b32 s%d, s2, 3" % line); A("s_lshl_b32 s%d, s%d, 8" % (line, line)); A("s_add_u32 s%d, s%d, 0x%x" % (line, line, WS_PG))
        A("s_and_b32 s%d, s2, 7" % word); A("s_lshl_b32 s%d, s%d, 2" % (word, word)); A("s_add_u32 s%d, s%d, s%d" % (word, word, line))
    def clean():
        A("s_cmp_lg_u32 s%d, 7" % sWAVE); A("s_cbranch_scc1 L_noclean")
        for i in range(4): A("v_mov_b32 v%d, -1" % (60 + i))
        slot_addrs()
        A("v_lshlrev_b32 v%d, 13, v%d" % (59, vG4)); A("v_lshl_add_u32 v%d, v%d, 4, v%d" % (59, vN16, 59))
        A("s_lshl_b32 s%d, s%d, %d" % (sT1, sR, 11 + spad)); A("s_add_u32 s%d, s%d, 0x%x" % (sT1, sT1, WS_SP))
        A("v_lshrrev_b32 v29, 2, v0"); A("v_lshlrev_b32 v29, %d, v29" % (6 + spad)); A("v_lshl_add_u32 v29, v%d, 4, v29" % vR4)
        A("s_waitcnt lgkmcnt(0)")
        A("buffer_load_dwordx2 v[30:31], off, %s, 0 offset:%d sc1" % (srd("WS"), WS_EP))
        A("s_mov_b64 exec, 0xf"); A("buffer_store_dwordx2 v[60:61], v28, %s, s%d offen sc1" % (srd("WS"), sMU)); A("s_mov_b64 exec, -1")
        A("buffer_store_dwordx4 v[60:63], v%d, %s, s%d offen sc1" % (59, srd("WS"), sOPOFF))
        A("buffer_store_dwordx4 v[60:63], v29, %s, s%d offen sc1" % (srd("WS"), sT1))
        A("buffer_store_dwordx4 v[60:63], v29, %s, s%d offen offset:%d sc1" % (srd("WS"), sT1, 1024 << spad))
        if bal:
            pg_addr(sT1, sT3)
            A("s_mov_b64 exec, 1"); A("buffer_store_dword v60, off, %s, s%d sc1" % (srd("WS"), sT3)); A("s_mov_b64 exec, -1")
        if steal:
            A("s_lshl_b32 s%d, s%d, 12" % (sT1, sR)); A("s_add_u32 s%d, s%d, 0x%x" % (sT1, sT1, WS_PR))
            for k in range(4): A("buffer_store_dwordx4 v[60:63], v%d, %s, s%d offen offset:%d sc1" % (vL16, srd("WS"), sT1, 1024 * k))
            A("s_lshl_b32 s%d, s%d, 7" % (sT1, sR)); A("s_add_u32 s%d, s%d, 0x%x" % (sT1, sT1, WS_CW))
            A("s_mov_b64 exec, 1"); A("buffer_store_dword v60, off, %s, s%d sc1" % (srd("WS"), sT1)); A("s_mov_b64 exec, -1")
        A("L_noclean:")
    def arrive(cnt, lbl):
        A("s_cmp_lg_u32 s%d, 7" % sWAVE); A("s_cbranch_scc1 " + lbl)
        A("s_lshr_b32 s%d, s%d, 5" % (sT3, sR)); A("s_lshl_b32 s%d, s%d, 5" % (sT3, sT3))
        A("s_mov_b64 exec, 1")
        A("s_waitcnt vmcnt(%d)" % cnt)
        A("buffer_atomic_add v%d, off, %s, s%d" % (vONE, srd("DBG"), sT3))
        A("s_mov_b64 exec, -1")
        stamp(4)
        A(lbl + ":")
    if not cllate: clean()
    A("s_sub_u32 s%d, s%d, 6" % (sMB, sWAVE))
    A("v_mul_u32_u24 v%d, 12, v0" % vT); A("s_mul_i32 s%d, s%d, 1792" % (sT1, sMB))
    A("s_waitcnt lgkmcnt(0)")
    A("s_load_dword s%d, s[%d:%d], 0" % (sB2, sB2P, sB2P + 1))
    if tlb:
        A("s_bfe_u32 s%d, s%d, 0x30002" % (sBASE, sR)); A("s_lshl_b32 s%d, s%d, 23" % (sBASE, sBASE)); A("s_lshr_b32 s%d, s%d, 5" % (sT0, sR)); A("s_lshl_b32 s%d, s%d, 20" % (sT0, sT0))
        A("s_add_u32 s%d, s%d, s%d" % (sBASE, sBASE, sT0)); A("s_and_b32 s%d, s%d, 3" % (sT0, sR)); A("s_lshl_b32 s%d, s%d, 18" % (sT0, sT0)); A("s_add_u32 s%d, s%d, s%d" % (sBASE, sBASE, sT0))
        A("s_cmp_lg_u32 s%d, 6" % sWAVE); A("s_cbranch_scc1 L_notlb")
        A("s_mov_b64 exec, 1")
        if tlb & 1: A("buffer_load_dword v200, off, %s, s%d" % (srd("V"), sBASE))
        if tlb & 2:
            A("s_lshr_b32 s%d, s%d, 3" % (sT0, sR)); A("s_lshl_b32 s%d, s%d, 17" % (sT0, sT0))
            A("buffer_load_dword v201, off, %s, s%d" % (srd("WO"), sT0))
        if tlb & 4:
            A("v_lshlrev_b32 v202, 16, v0"); A("s_mov_b64 exec, 0xf")
            A("buffer_load_dword v203, v202, %s, s%d offen" % (srd("V"), sBASE))
            A("buffer_load_dword v204, v202, %s, s%d offen" % (srd("K"), sBASE))
        A("s_mov_b64 exec, -1")
        A("L_notlb:")
    A("s_barrier")
    for k, n in enumerate(("W1", "B1", "W2")):
        A("buffer_load_dwordx4 %s, v%d, %s, s%d offen" % (vr(vW + 8 * k, 4), vL16, srd(n), sT1))
        A("buffer_load_dwordx3 %s, v%d, %s, s%d offen offset:1024" % (vr(vW + 8 * k + 4, 3), vT, srd(n), sT1))
    if not cllate: arrive(6, "L_noflag")
    A("s_lshr_b32 s%d, s%d, 5" % (sT0, sR)); A("s_mul_i32 s%d, s%d, %d" % (sT0, sT0, XN_STRIDE)); A("s_add_u32 s%d, s%d, %d" % (sT0, sT0, HI)); A("v_add_u32 v%d, s%d, v%d" % (vT + 1, sT0, vL16))
    A("s_lshl_b32 s%d, s%d, 13" % (sT2, sMB)); A("s_add_u32 s%d, s%d, %d" % (sT2, sT2, HI + L_WO)); A("v_add_u32 v%d, s%d, v%d" % (vT + 2, sT2, vL16))
    A("s_and_b32 s%d, s%d, 31" % (sT0, sR)); A("s_lshl_b32 s%d, s%d, 5" % (sT0, sT0)); A("s_add_u32 s%d, s%d, s%d" % (sT0, sT0, sT2))
    A("v_lshlrev_b32 v%d, 1, v%d" % (vT + 3, vN16)); A("v_add_u32 v%d, s%d, v%d" % (vT + 3, sT0, vT + 3))
    lds_wait(F_XN, 4)
    if cllate: clean()
    vXm = 112
    A("ds_read_b128 %s, v%d offset:%d" % (vr(vXm, 4), vT + 1, L_XN)); A("s_waitcnt lgkmcnt(0)")
    layernorm(vXm, 4, vXm + 4, vXm + 12, vXm + 20, 1)
    A("ds_write_b128 v%d, %s" % (vT + 2, vr(vXm, 4)))
    vH = 24
    A("ds_read_u16 v%d, v%d" % (vH, vT + 3))
    A("v_lshrrev_b32 v%d, 3, v0" % (vT + 4)); A("v_lshlrev_b32 v%d, 10, v%d" % (vT + 4, vT + 4)); A("v_and_b32 v%d, 7, v0" % (vT + 5)); A("v_lshl_add_u32 v%d, v%d, 4, v%d" % (vT + 4, vT + 5, vT + 4))
    A("s_lshr_b32 s%d, s%d, 3" % (sT0, sR)); A("s_lshl_b32 s%d, s%d, 17" % (sT0, sT0)); A("s_and_b32 s%d, s%d, 7" % (sT1, sR)); A("s_lshl_b32 s%d, s%d, 7" % (sT1, sT1))
    A("s_add_u32 s%d, s%d, s%d" % (sT0, sT0, sT1)); A("s_lshl_b32 s%d, s%d, 16" % (sT1, sMB)); A("s_add_u32 s%d, s%d, s%d" % (sT0, sT0, sT1))
    A("s_waitcnt vmcnt(0) lgkmcnt(0)")
    if cllate: arrive(0, "L_noflag")
    for a in range(8):
        A("s_add_u32 m0, s%d, %d" % (sT2, a * 1024))
        if 'o' not in abl and not wolate: A("buffer_load_dwordx4 v%d, %s, s%d offen %s lds" % (vT + 4, srd("WO"), sT0, polo))
        if a < 7: A("s_add_u32 s%d, s%d, 0x2000" % (sT0, sT0))
    stamp(1)
    A("v_lshlrev_b32 v%d, 16, v%d" % (vH, vH))
    for k in range(3):
        for i in range(7): unpack(vU + 14 * k + 2 * i, vU + 14 * k + 2 * i + 1, vW + 8 * k + i)
    vC0, vACC, U, T_ = 25, 26, 112, 128
    A("v_mov_b32 v%d, s%d" % (vC0, sC0))
    A("s_lshl_b32 s%d, s%d, 6" % (sT0, sMB)); A("s_add_u32 s%d, s%d, %d" % (sT0, sT0, HI + L_YP)); A("v_mov_b32 v27, s%d" % sT0)
    A("s_mov_b32 s%d, 0" % sT1)
    A("s_nop 3")
    A("L_mlp_loop:")
    A("v_readlane_b32 s%d, v%d, s%d" % (sMU, vH, sT1))
    for t in range(14): A("v_fma_f32 v%d, s%d, v%d, v%d" % (U + t, sMU, vU + t, vU + 14 + t))
    for t in range(14): A("v_mul_f32 v%d, v%d, v%d" % (T_ + t, U + t, U + t))
    for t in range(14): A("v_fma_f32 v%d, v%d, s%d, v%d" % (T_ + t, T_ + t, sC1, vC0))
    for t in range(14): A("v_mul_f32 v%d, v%d, v%d" % (T_ + t, T_ + t, U + t))
    for t in range(14):
        A("v_exp_f32 v%d, v%d" % (T_ + t, T_ + t)); A("v_mul_f32 v%d, v%d, v%d" % (U + t, U + t, vU + 28 + t))
    for t in range(14): A("v_add_f32 v%d, 1.0, v%d" % (T_ + t, T_ + t))
    for t in range(14): A("v_rcp_f32 v%d, v%d" % (T_ + t, T_ + t))
    A("v_mul_f32 v%d, v%d, v%d" % (vACC, U, T_)); A("v_mul_f32 v%d, v%d, v%d" % (U, U + 1, T_ + 1))
    for t in range(2, 14): A("v_fmac_f32 v%d, v%d, v%d" % (vACC if t & 1 else U, U + t, T_ + t))
    A("v_add_f32 v%d, v%d, v%d" % (vACC, vACC, U))
    red16(vACC, "v_add_f32"); dpp("v_add_f32", vACC, "row_bcast:15", "0xa"); dpp("v_add_f32", vACC, "row_bcast:31", "0xc")
    A("s_mov_b32 exec_lo, 0"); A("s_mov_b32 exec_hi, 0x80000000")
    A("ds_write_b32 v27, v%d" % vACC); A("v_add_u32 v27, 4, v27")
    A("s_mov_b64 exec, -1")
    A("s_add_u32 s%d, s%d, 1" % (sT1, sT1)); A("s_cmp_lt_u32 s%d, 16" % sT1); A("s_cbranch_scc1 L_mlp_loop")
    stamp(2)
    A("s_waitcnt vmcnt(0)")
    A("s_mov_b32 s%d, 3" % sMU)
    if steal:
        A("s_cmp_eq_u32 s%d, 7" % sWAVE); A("s_cbranch_scc1 L_final")
        lds_wait(F_AM, 1, sl=8)
        sCW = 4
        A("s_lshl_b32 s%d, s%d, 7" % (sCW, sR)); A("s_add_u32 s%d, s%d, 0x%x" % (sCW, sCW, WS_CW))
        def set_plan(val):
            A("v_mov_b32 v%d, %s" % (vT, val)); A("s_mov_b64 exec, 1"); A("ds_write_b32 v%d, v%d offset:%d" % (vHI, vT, F_PLAN)); A("s_mov_b64 exec, -1")
        for k in range(5, 11):
            if k == 8:
                A("s_xor_b32 s%d, s%d, 0x100" % (sCW, sCW))
            if k == 8:
                A("s_xor_b32 s%d, s%d, 2" % (sT1, sR)); A("s_lshl_b32 s%d, s%d, 12" % (sT1, sT1)); A("s_add_u32 s%d, s%d, 0x%x" % (sT1, sT1, WS_PR))
                A("v_add_u32 v%d, v%d, v%d" % (vT + 1, vHI, vL16))
                rec = [((lambda q=q: A("buffer_load_dwordx4 %s, v%d, %s, s%d offen offset:%d sc1" % (vr(36 + 4 * q, 4), vL16, srd("WS"), sT1, 1024 * q))), list(range(36 + 4 * q, 40 + 4 * q))) for q in range(4)]
                lds_wait(F_FULL, rtrig, sl=2)
                A("s_mov_b32 exec_hi, 0x1ffff")
                for i_, _ in rec: i_()
                A("s_mov_b64 exec, -1")
            lds_wait(F_FULL, 4 * k + cth + (bias if k >= 8 else 0), sl=2)
            A("v_mov_b32 v32, 1"); A("s_mov_b64 exec, 1")
            A("buffer_atomic_add v32, off, %s, s%d sc0" % (srd("WS"), sCW))
            A("s_mov_b64 exec, -1")
            A("s_mov_b32 s%d, 0x%x" % (sT2, 0x100 + k))
            A("s_waitcnt vmcnt(0)")
            A("v_readfirstlane_b32 s%d, v32" % sT0); A("s_add_u32 s%d, s%d, 1" % (sT0, sT0))
            if stamps and k < 9: stamp(k - 2)
            A("s_cmp_ge_u32 s%d, 3" % sT0); A("s_cbranch_scc1 L_close")
            if k == 8:
                A("s_mov_b32 exec_hi, 0x1ffff")
                gpoll(rec[:2], first=False, sleep=8, full="PARTIAL"); gpoll(rec[2:], first=False, sleep=8, full="PARTIAL")
                for q in range(4): A("ds_write_b128 v%d, %s offset:%d" % (vT + 1, vr(36 + 4 * q, 4), L_PP + 1024 * q))
                A("s_mov_b64 exec, -1")
                A("s_waitcnt lgkmcnt(0)")
            set_plan("%d" % (k + 1))
        A("s_mov_b32 s%d, 0x%x" % (sT2, 0x100 + 11))
        A("L_close:")
        set_plan("s%d" % sT2)
        A("s_branch L_gather56")
        A("L_final:")
    elif bal >= 2:
        A("s_cmp_eq_u32 s%d, 7" % sWAVE); A("s_cbranch_scc1 L_final")
        lds_wait(F_AM, 1, sl=8)
        pg_addr(4, 5)
        if bal == 3: A("s_lshl_b32 s4, s2, 8"); A("s_add_u32 s4, s4, 0x%x" % (WS_PG + 0x4000))
        for k in range(bmin):
            lds_wait(F_FULL, bthr + bper * k, sl=4)
            A("v_mov_b32 v%d, 1" % (32 + k)); A("s_mov_b64 exec, 1")
            if bal == 4: A("buffer_load_dword v%d, off, %s, s4 sc1" % (32 + k, srd("WS")))
            elif bal == 5: A("buffer_store_dword v%d, off, %s, s5 sc1" % (32 + k, srd("WS")))
            else: A("buffer_atomic_add v%d, off, %s, s4 sc0" % (32 + k, srd("WS")))
            A("s_mov_b64 exec, -1")
        A("s_waitcnt vmcnt(0)")
        A("s_branch L_gather56")
        A("L_final:")
    elif bal:
        A("s_cmp_eq_u32 s%d, 7" % sWAVE); A("s_cbranch_scc1 L_final")
        lds_wait(F_AM, 1, sl=8)
        pg_addr(4, 5)
        A("s_and_b32 s12, s2, 7"); A("v_lshlrev_b32 v33, 2, v0"); A("s_mov_b32 s13, 0")
        A("L_bal:")
        A("s_mov_b64 exec, 0xff"); A("buffer_load_dword v32, v33, %s, s4 offen sc1" % srd("WS"))
        A("s_mov_b64 exec, 1")
        A("ds_read_b32 v34, v%d offset:%d" % (vHI, F_FULL)); A("s_waitcnt lgkmcnt(0)")
        A("buffer_store_dword v34, off, %s, s5 sc1" % srd("WS"))
        A("s_mov_b64 exec, -1")
        A("v_readfirstlane_b32 s%d, v34" % sT0)
        A("s_cmp_ge_u32 s%d, %d" % (sT0, bstop)); A("s_cbranch_scc1 L_balend")
        A("s_waitcnt vmcnt(1)")
        A("v_readlane_b32 s%d, v32, s12" % sT1)
        A("s_mov_b64 exec, 0xff")
        A("v_cmp_eq_u32 vcc, -1, v32")
        if bmin:
            for m in QUADS[:3]: dpp("v_min_u32", 32, m)
        else:
            for m in QUADS[:3]: dpp("v_add_u32", 32, m)
        A("s_mov_b64 exec, -1")
        A("v_readfirstlane_b32 s%d, v32" % sT2)
        A("s_cmp_lg_u64 vcc, 0"); A("s_cbranch_scc1 L_balskip")
        if not bmin: A("s_lshl_b32 s%d, s%d, 3" % (sT1, sT1))
        A("s_sub_i32 s%d, s%d, s%d" % (sT1, sT1, sT2)); A("s_cmp_gt_i32 s%d, %d" % (sT1, bthr)); A("s_cselect_b32 s%d, 1, 0" % sT1)
        A("v_mov_b32 v35, s%d" % sT1); A("s_mov_b64 exec, 1"); A("ds_write_b32 v%d, v35 offset:%d" % (vHI, F_MODE)); A("s_mov_b64 exec, -1")
        A("L_balskip:")
        if bper: A("s_sleep %d" % bper)
        A("s_add_u32 s13, s13, 1"); A("s_cmp_lt_u32 s13, 4096"); A("s_cbranch_scc1 L_bal")
        A("L_balend:")
        A("v_mov_b32 v35, 0"); A("s_mov_b64 exec, 1"); A("ds_write_b32 v%d, v35 offset:%d" % (vHI, F_MODE)); A("s_mov_b64 exec, -1")
        A("s_waitcnt vmcnt(0)")
        A("s_branch L_gather56")
        A("L_final:")
    else:
        A("s_cmp_eq_u32 s%d, 6" % sWAVE); A("s_cbranch_scc1 L_gather56")
    if at2:
        A("v_and_b32 v%d, 7, v0" % (vT + 1)); A("v_lshrrev_b32 v%d, 5, v0" % (vT + 2)); A("v_lshl_add_u32 v%d, v%d, 1, v%d" % (vT + 1, vT + 1, vT + 2))
    else: A("v_lshl_add_u32 v%d, v%d, 2, v%d" % (vT + 1, vR4, vG4))
    A("v_lshlrev_b32 v%d, 1, v%d" % (vT + 2, vT + 1)); A("s_lshl_b32 s%d, s%d, 5" % (sT0, sR))
    A("buffer_load_ushort v%d, v%d, %s, s%d offen" % (vT + 3, vT + 2, srd("X"), sT0))
    A("v_lshl_add_u32 v%d, v%d, 2, v%d" % (vT + 1, vT + 1, vHI))
    A("s_lshl_b32 s%d, s%d, %d" % (sT1, sR, 11 + spad)); A("s_add_u32 s%d, s%d, 0x%x" % (sT1, sT1, WS_SP))
    A("v_lshrrev_b32 v29, 2, v0"); A("v_lshlrev_b32 v29, %d, v29" % (6 + spad)); A("v_lshl_add_u32 v29, v%d, 4, v29" % vR4)
    if wolate == 2:
        A("s_mov_b32 s12, s%d" % sT0); A("s_mov_b32 s13, s%d" % sT1)
        if steal: lds_wait(F_LI, 1, sl=2)
        else: lds_wait(F_FULL, wotrig, sl=2)
        wo_dma()
        A("s_mov_b32 s%d, s12" % sT0); A("s_mov_b32 s%d, s13" % sT1)
    A("s_waitcnt lgkmcnt(0)")
    A("s_barrier")
    stamp(8)
    A("ds_read_b32 v40, v%d offset:%d" % (vT + 1, L_YP)); A("ds_read_b32 v41, v%d offset:%d" % (vT + 1, L_YP + 64)); A("s_waitcnt lgkmcnt(0)")
    A("v_add_f32 v40, v40, v41"); rbf(40)
    A("s_lshl_b32 s%d, s%d, 16" % (sB2, sB2)); A("v_add_f32 v40, s%d, v40" % sB2); rbf(40)
    A("v_mul_f32 v41, s%d, v40" % sL2E); A("v_exp_f32 v41, -v41"); A("v_add_f32 v41, 1.0, v41"); A("v_rcp_f32 v41, v41"); A("v_mul_f32 v40, v40, v41"); rbf(40)
    A("s_waitcnt vmcnt(0)"); A("v_lshlrev_b32 v%d, 16, v%d" % (vT + 3, vT + 3))
    if wolate == 2:
        A("s_mov_b64 exec, 1"); A("ds_write_b32 v%d, v%d offset:%d" % (vHI, vONE, F_WO)); A("s_mov_b64 exec, -1")
        stamp(11)
    A("s_barrier")
    stamp(9)
    if td2: A("s_sleep %d" % td2)
    if at2:
        A("v_lshlrev_b32 v29, 3, v0")
        apoll(32, 29, sT1, 44, tsleep2)
        stamp(10)
        A("v_add_f32 v44, v32, v34"); A("v_add_f32 v45, v33, v35"); A("v_add_f32 v46, v36, v38"); A("v_add_f32 v47, v37, v39")
        A("v_add_f32 v44, v44, v46"); A("v_add_f32 v45, v45, v47")
        A("v_permlane32_swap_b32 v44, v45"); A("v_add_f32 v44, v44, v45")
        swap_red(44, 45, "v_add_f32", 16)
        dpp("v_add_f32", 44, "row_ror:8")
    else:
        gpoll([(lambda: A("buffer_load_dwordx4 v[32:35], v29, %s, s%d offen %s" % (srd("WS"), sT1, tl)), [32, 33, 34, 35]),
               (lambda: A("buffer_load_dwordx4 v[36:39], v29, %s, s%d offen offset:%d %s" % (srd("WS"), sT1, 1024 << spad, tl)), [36, 37, 38, 39])], sleep=tsleep2, P=P2)
        stamp(10)
        for i in range(4): A("v_add_f32 v%d, v%d, v%d" % (44 + i, 32 + i, 36 + i))
        A("v_permlane32_swap_b32 v44, v46"); A("v_permlane32_swap_b32 v45, v47")
        A("v_add_f32 v44, v44, v46"); A("v_add_f32 v45, v45, v47")
        A("v_permlane16_swap_b32 v44, v45"); A("v_add_f32 v44, v44, v45")
        dpp("v_add_f32", 44, "row_ror:8"); dpp("v_add_f32", 44, "row_ror:4")
    rbf(44); A("v_mul_f32 v44, v44, v40"); rbf(44)
    A("v_add_f32 v44, v44, v%d" % (vT + 3)); A("v_cvt_pk_bf16_f32 v44, v44, v44")
    em = "0xff" if at2 else "0x000f000f"
    A("s_mov_b32 exec_lo, %s" % em); A("s_mov_b32 exec_hi, %s" % em)
    A("buffer_store_short v44, v%d, %s, s%d offen" % (vT + 2, srd("OUT"), sT0))
    A("s_mov_b64 exec, -1")
    A("s_cmp_lg_u32 s%d, 0" % sR); A("s_cbranch_scc1 L_done")
    epoch()
    A("v_mov_b32 v30, s%d" % sEP); A("v_mov_b32 v31, s%d" % (sEP + 1)); A("s_mov_b64 exec, 1")
    A("buffer_store_dwordx2 v[30:31], off, %s, 0 offset:%d sc1" % (srd("WS"), WS_EP))
    A("s_mov_b64 exec, -1")
    if pmap >= 10:
        A("s_sleep 32"); A("s_mov_b32 s6, 0x300000")
        A("buffer_load_dwordx4 v[32:35], v%d, %s, s6 offen sc1" % (vL16, srd("WS"))); A("s_waitcnt vmcnt(0)")
        if not piv:
            for i in range(4): A("v_subrev_u32 v%d, s16, v%d" % (32 + i, 32 + i))
        def over_kvh(v, op):
            dpp(op, v, "row_ror:8"); swap_red(v, 40, op, 16); swap_red(v, 40, op, 32)
        def over_b(v, op):
            for m in QUADS[:3]: dpp(op, v, m)
        A("v_max_u32 v36, v32, v33"); A("v_max3_u32 v36, v36, v34, v35"); over_kvh(36, "v_max_u32")
        A("v_add_u32 v37, v32, v33"); A("v_add3_u32 v37, v37, v34, v35"); over_kvh(37, "v_add_u32"); A("v_lshrrev_b32 v37, 5, v37")
        if pmap == 10: over_b(36, "v_max_u32"); A("v_lshlrev_b32 v36, 2, v36")
        elif pmap == 11: over_b(37, "v_max_u32"); A("v_lshlrev_b32 v36, 2, v37")
        elif pmap == 12: over_b(37, "v_add_u32"); A("v_lshrrev_b32 v36, 1, v37")
        elif pmap == 13: over_b(37, "v_min_u32"); A("v_lshlrev_b32 v36, 2, v37")
        elif pmap == 14: A("v_sub_u32 v36, v36, v37"); over_b(36, "v_max_u32"); A("v_lshlrev_b32 v36, 3, v36")
        elif pmap == 15:
            A("v_mov_b32 v38, v37"); over_b(38, "v_max_u32"); A("v_cmp_eq_u32 vcc, v38, v37"); A("v_cndmask_b32 v37, v37, 0, vcc"); over_b(37, "v_max_u32"); A("v_lshlrev_b32 v36, 2, v37")
        elif pmap == 16:
            A("v_lshlrev_b32 v36, 3, v36"); A("v_and_b32 v38, 7, v0"); A("v_or_b32 v36, v36, v38"); over_b(36, "v_max_u32"); A("v_and_b32 v36, 7, v36"); A("v_mul_u32_u24 v36, 300, v36")
        A("s_memrealtime s[16:17]"); A("v_readfirstlane_b32 s6, v36"); A("s_waitcnt lgkmcnt(0)")
        A("s_min_u32 s6, s6, 20000")
        A("s_add_u32 s16, s16, s6")
        A("L_pad4:"); A("s_memrealtime s[18:19]"); A("s_waitcnt lgkmcnt(0)"); A("s_sub_u32 s18, s18, s16"); A("s_cmp_lt_i32 s18, 0"); A("s_cbranch_scc1 L_pad4")
    elif pmap:
        A("s_sleep 32"); A("s_mov_b32 s6, 0x300000")
        A("buffer_load_dwordx4 v[32:35], v%d, %s, s6 offen sc1" % (vL16, srd("WS"))); A("s_waitcnt vmcnt(0)")
        if pmap == 1: A("v_max_u32 v32, v32, v33"); A("v_max3_u32 v32, v32, v34, v35")
        elif pmap == 2: A("v_min_u32 v32, v32, v33"); A("v_min3_u32 v32, v32, v34, v35")
        if not piv: A("s_add_u32 s16, s16, 1500"); A("v_subrev_u32 v32, s16, v32")
        A("v_lshrrev_b32 v32, 3, v32"); A("v_min_u32 v32, 255, v32")
        A("buffer_store_byte v32, v0, %s, 0 offen sc1" % srd("DBG"))
    if pgrp:
        A("v_lshlrev_b32 v29, 5, v0"); A("s_mov_b64 exec, 0xff")
        A("buffer_load_dword v30, v29, %s, 0 offen offset:4 sc1" % srd("DBG")); A("s_memrealtime s[16:17]"); A("s_waitcnt vmcnt(0) lgkmcnt(0)")
        if pat >= 12:
            A("v_readfirstlane_b32 s6, v30"); A("v_subrev_u32 v30, s6, v30"); A("v_add_u32 v30, 0x100000, v30")
            if pat == 13: A("v_lshlrev_b32 v30, 3, v30"); A("v_or_b32 v30, v30, v0")
        A("v_mov_b32 v31, v30")
        for m in QUADS[:3]: dpp("v_max_u32", 30, m)
        if pat in (11, 12, 13, 14):
            for m in QUADS[:3]: dpp("v_min_u32", 31, m)
        else:
            A("v_subrev_u32 v31, v31, v30")
            for m in QUADS[:3]: dpp("v_add_u32", 31, m)
        A("s_mov_b64 exec, -1")
        A("v_readfirstlane_b32 s6, v30"); A("v_readfirstlane_b32 s7, v31")
        if pat == 11: A("s_sub_u32 s6, s6, s7"); A("s_lshl_b32 s6, s6, 3")
        elif pat == 12: A("s_sub_u32 s6, s6, s7"); A("s_lshr_b32 s6, s6, 2")
        elif pat == 13: A("s_and_b32 s6, s6, 7"); A("s_mul_i32 s6, s6, 300")
        else: A("s_mov_b32 s6, s7")
        A("s_min_u32 s6, s6, 20000")
        A("s_add_u32 s16, s16, s6")
        A("L_pad3:"); A("s_memrealtime s[18:19]"); A("s_waitcnt lgkmcnt(0)"); A("s_sub_u32 s18, s18, s16"); A("s_cmp_lt_i32 s18, 0"); A("s_cbranch_scc1 L_pad3")
    if probe or (p_b >= 0 and not piv) or pspan:
        A("buffer_load_dwordx2 v[30:31], off, %s, 0 offset:4 sc1" % srd("DBG")); A("s_memrealtime s[16:17]"); A("s_waitcnt vmcnt(0) lgkmcnt(0)")
        A("v_readfirstlane_b32 s6, v30"); A("v_readfirstlane_b32 s7, v31")
        if probe: A("s_sub_i32 s6, s6, s7"); A("s_abs_i32 s6, s6"); A("s_lshr_b32 s6, s6, 4")
        elif pspan == 1: A("s_not_b32 s7, s7"); A("s_sub_u32 s6, s6, s7"); A("s_lshl_b32 s6, s6, 2")
        elif pspan == 2: A("s_sub_u32 s6, s16, s6"); A("s_lshl_b32 s6, s6, 3")
        elif pspan == 6: A("s_not_b32 s7, s7"); A("s_sub_u32 s6, s16, s7"); A("s_lshl_b32 s6, s6, 2")
        elif pspan == 3: A("s_not_b32 s7, s7"); A("s_sub_u32 s6, s6, s7"); A("s_lshl_b32 s6, s6, 3")
        elif pspan in (4, 5): A("s_not_b32 s7, s7"); A("s_lshl_b32 s7, s7, 8"); A("s_sub_u32 s6, s6, s7"); A("s_lshr_b32 s6, s6, %d" % (5 if pspan == 4 else 6))
        else: A("s_lshr_b32 s6, s6, 5")
        A("s_min_u32 s6, s6, 20000")
        A("s_add_u32 s16, s16, s6")
        A("L_pad2:"); A("s_memrealtime s[18:19]"); A("s_waitcnt lgkmcnt(0)"); A("s_sub_u32 s18, s18, s16"); A("s_cmp_lt_i32 s18, 0"); A("s_cbranch_scc1 L_pad2")
    A("L_done:")
    A("s_waitcnt vmcnt(0)")
    if pad:
        A("s_waitcnt lgkmcnt(0)"); A("s_add_u32 s16, s16, %d" % pad)
        A("L_pad:"); A("s_memrealtime s[18:19]"); A("s_waitcnt lgkmcnt(0)"); A("s_sub_u32 s18, s18, s16"); A("s_cmp_lt_i32 s18, 0"); A("s_cbranch_scc1 L_pad")
    if stamps:
        A("s_waitcnt vmcnt(0)")
        stamp(NST - 1)
        A("s_waitcnt lgkmcnt(0)")
        A("s_lshl_b32 s%d, s2, 3" % sT0); A("s_add_u32 s%d, s%d, s%d" % (sT0, sT0, sWAVE)); A("s_mul_i32 s%d, s%d, %d" % (sT0, sT0, NST * 8)); A("s_add_u32 s%d, s%d, 0x%x" % (sT0, sT0, WS_STAMP))
        A("s_mov_b64 exec, 1")
        for k in range(NST):
            A("v_mov_b32 v2, s%d" % (16 + 2 * k)); A("v_mov_b32 v3, s%d" % (17 + 2 * k))
            A("buffer_store_dwordx2 v[2:3], off, %s, s%d offset:%d" % (srd("WS"), sT0, k * 8)); A("s_nop 1")
    A("L_end:")
    A("s_endpgm")
    body = A.finalize()
    hdr = open("recurrent_scan__gqa_block_cached__mixer_token_mlp__decode.s.ref").read().split("; Override launch")[0]
    s = hdr + "; @launch grid=(256,1,1) block=(512,1,1) lds=%d\n" % LDS_BYTES
    s += '.amdgcn_target "amdgcn-amd-amdhsa--gfx950"\n.text\n.globl %s\n.p2align 8\n.type %s,@function\n%s:\n' % (NAME, NAME, NAME)
    s += body
    s += '.section .rodata,"a"\n.p2align 6\n.amdhsa_kernel %s\n  .amdhsa_next_free_vgpr 256\n  .amdhsa_next_free_sgpr 102\n  .amdhsa_accum_offset 256\n' % NAME
    s += "  .amdhsa_group_segment_fixed_size 0\n  .amdhsa_kernarg_size 104\n  .amdhsa_user_sgpr_count 2\n  .amdhsa_user_sgpr_kernarg_segment_ptr 1\n  .amdhsa_system_sgpr_workgroup_id_x 1\n.end_amdhsa_kernel\n"
    return s, A

if __name__ == "__main__":
    out = sys.argv[1]
    kw = {}
    for p in sys.argv[2:]:
        k, v = p.split("=")
        kw[k] = int(v) if v.lstrip("-").isdigit() else v.replace("+", " ")
    s, A = gen(**kw)
    open(out, "w").write(s)
    print("wrote", out, "instructions", len(A.ins), "nops", A.nops, "lds", LDS_BYTES)
```

```python
import sys, struct
from asmlib import Asm

NAME = "recurrent_scan__gqa_block_cached__mixer_token_mlp__decode_kernel"
def f2u(x): return struct.unpack("<I", struct.pack("<f", x))[0]

WS_ST, WS_OP, WS_SP, WS_Q, WS_EP = 0x10000, 0x20000, 0x100000, 0x60000, 0x0
WS_PG = 0x90000
WS_CW, WS_PR = 0x80000, 0x200000
EP_STEP = 0x9E3779B97F4A7C15
WS_STAMP = 128 << 20
HI = 131072
L_WO = 0
L_XN, XN_STRIDE = 16384, 1040
L_OW = L_XN
L_QP = 24704
L_QB = 28800
L_FLG = 29824
L_ST = L_FLG + 64
L_GS = L_ST + 128
L_YP = L_GS + 32
LDS_BYTES = HI + L_YP + 128
F_FULL, F_FREED, F_XN, F_QP, F_QR, F_ST, F_GR, F_WO, F_AM, F_PLAN, F_LI, F_MODE = [L_FLG + 4 * i for i in (0, 4, 8, 9, 10, 11, 12, 13, 14, 1, 15, 2)]
L_PP = L_QP

sWAVE, sBASE, sOFF = 3, 4, 5
sT0, sT1, sT2 = 6, 7, 8
sR, sSPIN, sT3 = 9, 10, 11
sMU, sMB = 14, 15
SRD = dict(K=44, V=48, X=52, WQ=56, WO=60, W1=64, B1=68, W2=72, OUT=76, DBG=80, WS=84)
KARG = dict(X=0, K=8, V=16, WQ=24, WO=32, W1=48, B1=56, W2=64, OUT=80, DBG=88, WS=96)
SIZE = dict(X=8192, K=1 << 26, V=1 << 26, WQ=1 << 22, WO=1 << 22, W1=3584, B1=3584, W2=3584, OUT=8192, DBG=256, WS=1 << 28)
sSELLO, sSELHI, sMASK, sSCALE, sL2E, sC0, sC1, sB2, sB2P = 88, 89, 90, 91, 92, 93, 94, 95, 96
sOPOFF, sSPOFF, sSTOFF, sFULL = 98, 99, 100, 101
def srd(n): return "s[%d:%d]" % (SRD[n], SRD[n] + 3)
def vr(a, n=1): return "v%d" % a if n == 1 else "v[%d:%d]" % (a, a + n - 1)
vL16, vG4, vC4, vR4, vN16, vHI, vONE = 1, 2, 3, 4, 5, 6, 7
vT = 8
vPOLL = 16

def gen(F=4, stamps=0, pol="nt", spin=1 << 17, lspin=1 << 22, mimic=1, pre=0, lsleep=1, ldprio=3, fsleep=8, qsleep=2, ssleep=8, tsleep=0, xmap=1, polq=None, polo=None, ldst=0, abl='', rot=0, pad=0, P1=1, P2=1, pd=5, qmap=0, tl='sc1', ts='sc1', tsleep2=None, Fhi=0, himask=0xf8, hiend=16, spad=0, at2=1, td2=8, td1=0, at1=0, qdelay=0, sdelay=0, qtrig=8, strig=48, bshift=0, wolate=2, wqsplit=0, wotrig=60, D=0, DV=0, probe=0, steal=0, cth=23, cllate=0, bias=0, rtrig=48, p_a=-1, p_b=-1, pspan=0, pstart=0, bal=0, Flo=2, bthr=0, bper=8, bstop=58, bmin=0, pm=0, pval=0, pgrp=0, pat=11, tlb=0, piv=0, pmap=0, pst=0):
    NOWN = 5 if steal else 8
    sPLAN = 13
    DV = DV if DV else D
    tsleep2 = tsleep if tsleep2 is None else tsleep2
    polq = pol if polq is None else polq.replace('def', '')
    polo = pol if polo is None else polo.replace('def', '')
    A = Asm()
    NST = 14
    def stamp(k):
        if stamps: A("s_memrealtime s[%d:%d]" % (16 + 2 * k, 17 + 2 * k))
    QUADS = ("quad_perm:[1,0,3,2]", "quad_perm:[2,3,0,1]", "row_half_mirror", "row_mirror")
    def dpp(op, v, m, rm="0xf"): A("%s_dpp v%d, v%d, v%d %s row_mask:%s bank_mask:0xf" % (op, v, v, v, m, rm))
    def red16(v, op):
        for m in QUADS: dpp(op, v, m)
    def swap_red(v, t, op, which):
        A("v_mov_b32 v%d, v%d" % (t, v)); A("v_permlane%d_swap_b32 v%d, v%d" % (which, v, t)); A("%s v%d, v%d, v%d" % (op, v, v, t))
    def rbf(v):
        A("v_cvt_pk_bf16_f32 v%d, v%d, v%d" % (v, v, v)); A("v_lshlrev_b32 v%d, 16, v%d" % (v, v))
    def unpack(dlo, dhi, src):
        A("v_lshlrev_b32 v%d, 16, v%d" % (dlo, src)); A("v_and_b32 v%d, s%d, v%d" % (dhi, sMASK, src))
    def layernorm(pk, n, x, d, t, halves):
        def allred(v):
            red16(v, "v_add_f32"); swap_red(v, t + 2, "v_add_f32", 16)
            if halves == 1: swap_red(v, t + 2, "v_add_f32", 32)
        for i in range(n): unpack(x + 2 * i, x + 2 * i + 1, pk + i)
        A("v_add_f32 v%d, v%d, v%d" % (t, x, x + 1)); A("v_add_f32 v%d, v%d, v%d" % (t + 1, x + 2, x + 3))
        for i in range(4, 2 * n): A("v_add_f32 v%d, v%d, v%d" % (t + (i & 1), t + (i & 1), x + i))
        A("v_add_f32 v%d, v%d, v%d" % (t, t, t + 1))
        allred(t)
        A("v_mul_f32 v%d, 0x3b000000, v%d" % (t, t))
        A("v_cvt_pk_bf16_f32 v%d, v%d, v%d" % (t + 1, t, t))
        for i in range(2 * n): A("v_sub_f32 v%d, v%d, v%d" % (d + i, x + i, t))
        A("v_lshlrev_b32 v%d, 16, v%d" % (t + 1, t + 1))
        A("v_mul_f32 v%d, v%d, v%d" % (t, d, d)); A("v_mul_f32 v%d, v%d, v%d" % (d, d + 1, d + 1))
        for i in range(2, 2 * n): A("v_fmac_f32 v%d, v%d, v%d" % (t if i & 1 else d, d + i, d + i))
        A("v_add_f32 v%d, v%d, v%d" % (t, t, d))
        for i in range(2 * n): A("v_sub_f32 v%d, v%d, v%d" % (x + i, x + i, t + 1))
        allred(t)
        for i in range(n): A("v_cvt_pk_bf16_f32 v%d, v%d, v%d" % (pk + i, x + 2 * i, x + 2 * i + 1))
        A("v_mul_f32 v%d, 0x3b000000, v%d" % (t, t)); rbf(t)
        A("v_add_f32 v%d, 0x%x, v%d" % (t, f2u(1e-5), t)); rbf(t)
        A("v_sqrt_f32 v%d, v%d" % (t, t)); rbf(t)
        A("v_rcp_f32 v%d, v%d" % (t, t))
        for i in range(n): unpack(x + 2 * i, x + 2 * i + 1, pk + i)
        for i in range(2 * n): A("v_mul_f32 v%d, v%d, v%d" % (x + i, t, x + i))
        for i in range(n): A("v_cvt_pk_bf16_f32 v%d, v%d, v%d" % (pk + i, x + 2 * i, x + 2 * i + 1))
    def lds_wait(flag, val, keep=None, sl=None):
        ok = A.label("lok"); again = A.label("lagain")
        dst = keep if keep is not None else sT3
        if keep is not None:
            A("s_cmp_ge_u32 s%d, %s" % (keep, val)); A("s_cbranch_scc1 " + ok)
        A("s_mov_b32 s%d, 0" % sSPIN)
        A(again + ":")
        A("ds_read_b32 v%d, v%d offset:%d" % (vPOLL, vHI, flag)); A("s_waitcnt lgkmcnt(0)")
        A("v_readfirstlane_b32 s%d, v%d" % (dst, vPOLL))
        A("s_cmp_ge_u32 s%d, %s" % (dst, val)); A("s_cbranch_scc1 " + ok)
        if sl is None: sl = lsleep
        if sl: A("s_sleep %d" % sl)
        A("s_add_u32 s%d, s%d, 1" % (sSPIN, sSPIN)); A("s_cmp_lt_u32 s%d, %d" % (sSPIN, lspin)); A("s_cbranch_scc1 " + again)
        A(ok + ":")
    def lds_add(flag_addr_reg, off):
        A("s_waitcnt lgkmcnt(0)")
        A("s_mov_b64 exec, 1"); A("ds_add_u32 v%d, v%d offset:%d" % (flag_addr_reg, vONE, off)); A("s_mov_b64 exec, -1")
    def gpoll(loads, first=True, sleep=0, full="-1", tag=None, P=1):
        ok = A.label("ok"); again = A.label("again")
        masks = ["vcc", "s[12:13]"]
        A("s_mov_b32 s%d, 0" % sSPIN)
        if first:
            for issue, regs in loads: issue()
        for _ in range(P - 1):
            A("s_sleep %d" % pd)
            for issue, regs in loads: issue()
        A(again + ":")
        A("s_waitcnt vmcnt(%d)" % (len(loads) * (P - 1)))
        for (issue, regs), mk in zip(loads, masks):
            t = vT + 7
            if tag is not None:
                A("v_cmp_ne_u64 %s, %s, v[%d:%d]" % (mk, tag, regs[2], regs[3])); continue
            if len(regs) == 2: A("v_max_u32 v%d, v%d, v%d" % (t, regs[0], regs[1]))
            else:
                A("v_max3_u32 v%d, v%d, v%d, v%d" % (t, regs[0], regs[1], regs[2])); A("v_max_u32 v%d, v%d, v%d" % (t, t, regs[3]))
            A("v_cmp_eq_u32 %s, -1, v%d" % (mk, t))
        if len(loads) == 2:
            A("s_or_b32 s%d, vcc_lo, vcc_hi" % sT3); A("s_or_b32 s%d, s%d, s12" % (sT3, sT3)); A("s_or_b32 s%d, s%d, s13" % (sT3, sT3))
        else:
            A("s_or_b32 s%d, vcc_lo, vcc_hi" % sT3)
        A("s_cbranch_scc0 " + ok)
        if sleep: A("s_sleep %d" % sleep)
        for (issue, regs), mk in zip(loads, masks):
            A("s_mov_b64 exec, %s" % mk); issue()
        if full == "PARTIAL": A("s_mov_b32 exec_lo, -1"); A("s_mov_b32 exec_hi, 0x1ffff")
        else: A("s_mov_b64 exec, %s" % full)
        A("s_add_u32 s%d, s%d, 1" % (sSPIN, sSPIN)); A("s_cmp_lt_u32 s%d, %d" % (sSPIN, spin)); A("s_cbranch_scc1 " + again)
        A("s_waitcnt vmcnt(0)")
        A(ok + ":")
    def apoll(vd, vaddr, soff, vtmp, sleep, first=True):
        ms = ["vcc", "s[12:13]", "s[88:89]", "s[90:91]"]
        ok = A.label("aok"); again = A.label("aagain")
        def iss(k):
            A("v_mov_b32 v%d, 0" % (vd + 2 * k)); A("v_mov_b32 v%d, 0" % (vd + 1 + 2 * k))
            A("buffer_atomic_or_x2 v[%d:%d], v%d, %s, s%d offen offset:%d sc0" % (vd + 2 * k, vd + 1 + 2 * k, vaddr, srd("WS"), soff, 512 * k))
        if first == "only":
            for k in range(4): iss(k)
            return
        A("s_mov_b32 s%d, 0" % sSPIN)
        if first:
            for k in range(4): iss(k)
        A(again + ":")
        A("s_waitcnt vmcnt(0)")
        for k in range(4): A("v_max_u32 v%d, v%d, v%d" % (vtmp + k, vd + 2 * k, vd + 1 + 2 * k))
        for k in range(4): A("v_cmp_eq_u32 %s, -1, v%d" % (ms[k], vtmp + k))
        A("s_or_b64 s[92:93], vcc, s[12:13]"); A("s_or_b64 s[94:95], s[88:89], s[90:91]"); A("s_or_b64 s[92:93], s[92:93], s[94:95]")
        A("s_cbranch_scc0 " + ok)
        if sleep: A("s_sleep %d" % sleep)
        for k in range(4):
            A("s_mov_b64 exec, %s" % ms[k]); iss(k)
        A("s_mov_b64 exec, -1")
        A("s_add_u32 s%d, s%d, 1" % (sSPIN, sSPIN)); A("s_cmp_lt_u32 s%d, %d" % (sSPIN, spin)); A("s_cbranch_scc1 " + again)
        A("s_waitcnt vmcnt(0)")
        A(ok + ":")
    def word_poll(load, vd, lanes, cmp, sleep):
        ok = A.label("fok"); again = A.label("fagain")
        A("s_mov_b32 s%d, 0" % sSPIN); A("s_mov_b64 exec, %s" % lanes)
        A(again + ":")
        A(load)
        A("s_waitcnt vmcnt(0)")
        A(cmp % vd)
        A("s_cmp_eq_u64 vcc, 0"); A("s_cbranch_scc1 " + ok)
        if sleep: A("s_sleep %d" % sleep)
        A("s_add_u32 s%d, s%d, 1" % (sSPIN, sSPIN)); A("s_cmp_lt_u32 s%d, %d" % (sSPIN, spin)); A("s_cbranch_scc1 " + again)
        A(ok + ":")
        A("s_mov_b64 exec, -1")

    A("s_cmp_ge_u32 s2, 256"); A("s_cbranch_scc1 L_end")
    if stamps:
        for k in range(1, NST): A("s_mov_b64 s[%d:%d], 0" % (16 + 2 * k, 17 + 2 * k))
    stamp(0)
    if (pad or p_b >= 0 or pspan or pstart or pmap) and not stamps: A("s_memrealtime s[16:17]")
    for n in ("K", "X", "WQ", "WS", "V", "WO", "W1", "B1", "W2", "DBG", "OUT"):
        A("s_load_dwordx2 s[%d:%d], s[0:1], %d" % (SRD[n], SRD[n] + 1, KARG[n]))
    A("s_load_dwordx2 s[%d:%d], s[0:1], 72" % (sB2P, sB2P + 1))
    A("v_lshrrev_b32 v1, 6, v0"); A("v_and_b32 v0, 63, v0"); A("v_readfirstlane_b32 s%d, v1" % sWAVE)
    for n in SRD:
        A("s_mov_b32 s%d, 0x%x" % (SRD[n] + 2, SIZE[n])); A("s_mov_b32 s%d, 0x20000" % (SRD[n] + 3))
    if xmap == 0:
        A("s_and_b32 s%d, s2, 7" % sR); A("s_lshl_b32 s%d, s%d, 5" % (sR, sR)); A("s_lshr_b32 s%d, s2, 3" % sT0); A("s_add_u32 s%d, s%d, s%d" % (sR, sR, sT0))
    elif xmap >= 8:
        A("s_bfe_u32 s%d, s2, 0x10003" % sT0); A("s_bfe_u32 s%d, s2, 0x10004" % sT1); A("s_lshl_b32 s%d, s%d, 2" % (sT1, sT1)); A("s_add_u32 s%d, s%d, s%d" % (sT0, sT0, sT1))
        if xmap == 9: A("s_lshr_b32 s%d, s2, 5" % sT1); A("s_add_u32 s%d, s%d, s%d" % (sT0, sT0, sT1))
        A("s_sub_u32 s%d, s2, s%d" % (sR, sT0))
        A("s_and_b32 s%d, s%d, 7" % (sR, sR)); A("s_lshl_b32 s%d, s%d, 2" % (sR, sR)); A("s_and_b32 s%d, s2, 0xe0" % sT0); A("s_add_u32 s%d, s%d, s%d" % (sR, sR, sT0))
        A("s_bfe_u32 s%d, s2, 0x20003" % sT0); A("s_add_u32 s%d, s%d, s%d" % (sR, sR, sT0))
    elif xmap >= 4:
        A("s_lshr_b32 s%d, s2, 1" % sT0); A("s_xor_b32 s%d, s%d, s2" % (sT0, sT0)); A("s_and_b32 s%d, s%d, 1" % (sT0, sT0)); A("s_lshl_b32 s%d, s%d, 3" % (sT0, sT0))
        A("s_and_b32 s%d, s2, 4" % sT1); A("s_lshl_b32 s%d, s%d, 2" % (sT1, sT1)); A("s_add_u32 s%d, s%d, s%d" % (sT0, sT0, sT1))
        A("s_bfe_u32 s%d, s2, 0x10003" % sT1); A("s_lshl_b32 s%d, s%d, 2" % (sT1, sT1)); A("s_add_u32 s%d, s%d, s%d" % (sT0, sT0, sT1))
        A("s_and_b32 s%d, s2, 0xe0" % sR); A("s_add_u32 s%d, s%d, s%d" % (sR, sR, sT0))
        if xmap == 6:
            A("s_lshr_b32 s%d, s2, 5" % sT0); A("s_xor_b32 s%d, s%d, s2" % (sT0, sT0)); A("s_and_b32 s%d, s%d, 1" % (sT0, sT0))
        elif xmap == 7:
            A("s_lshr_b32 s%d, s2, 3" % sT0); A("s_xor_b32 s%d, s%d, s2" % (sT0, sT0)); A("s_and_b32 s%d, s%d, 1" % (sT0, sT0))
        else: A("s_and_b32 s%d, s2, 1" % sT0)
        A("s_bfe_u32 s%d, s2, 0x10004" % sT1)
        A("s_lshl_b32 s%d, s%d, 1" % ((sT0, sT0) if xmap != 5 else (sT1, sT1)))
        A("s_add_u32 s%d, s%d, s%d" % (sR, sR, sT0)); A("s_add_u32 s%d, s%d, s%d" % (sR, sR, sT1))
    else:
        if xmap == 2:
            A("s_lshr_b32 s%d, s2, 5" % sT0); A("s_add_u32 s%d, s2, s%d" % (sR, sT0))
        elif xmap == 3:
            A("s_bfe_u32 s%d, s2, 0x20003" % sT0); A("s_lshl_b32 s%d, s%d, 1" % (sT0, sT0)); A("s_add_u32 s%d, s2, s%d" % (sR, sT0))
        else: A("s_add_u32 s%d, s2, %d" % (sR, bshift))
        A("s_and_b32 s%d, s%d, 7" % (sR, sR)); A("s_lshl_b32 s%d, s%d, 2" % (sR, sR)); A("s_and_b32 s%d, s2, 0xe0" % sT0); A("s_add_u32 s%d, s%d, s%d" % (sR, sR, sT0))
        A("s_bfe_u32 s%d, s2, 0x20003" % sT0); A("s_add_u32 s%d, s%d, s%d" % (sR, sR, sT0))
    sRQ = sMB
    if xmap >= 4:
        A("s_and_b32 s%d, s2, 7" % sRQ); A("s_lshl_b32 s%d, s%d, 2" % (sRQ, sRQ)); A("s_and_b32 s%d, s2, 0xe0" % sT0); A("s_add_u32 s%d, s%d, s%d" % (sRQ, sRQ, sT0))
        A("s_bfe_u32 s%d, s2, 0x20003" % sT0); A("s_add_u32 s%d, s%d, s%d" % (sRQ, sRQ, sT0))
    elif qmap == 0: A("s_mov_b32 s%d, s%d" % (sRQ, sR))
    elif qmap == 1:
        A("s_and_b32 s%d, s2, 7" % sRQ); A("s_lshl_b32 s%d, s%d, 5" % (sRQ, sRQ)); A("s_lshr_b32 s%d, s2, 3" % sT0); A("s_add_u32 s%d, s%d, s%d" % (sRQ, sRQ, sT0))
    elif qmap == 2:
        A("s_lshr_b32 s%d, s%d, 3" % (sT0, sR)); A("s_and_b32 s%d, s%d, 0x1c" % (sT0, sT0)); A("s_add_u32 s%d, s%d, s%d" % (sT0, sT0, sR)); A("s_and_b32 s%d, s%d, 0x1c" % (sT0, sT0))
        A("s_and_b32 s%d, s%d, 0xe3" % (sRQ, sR)); A("s_or_b32 s%d, s%d, s%d" % (sRQ, sRQ, sT0))
    elif qmap == 4:
        A("s_lshr_b32 s%d, s%d, 5" % (sT0, sR)); A("s_lshl_b32 s%d, s%d, 1" % (sT0, sT0)); A("s_bfe_u32 s%d, s%d, 0x10001" % (sT1, sR)); A("s_add_u32 s%d, s%d, s%d" % (sT0, sT0, sT1))
        A("s_lshr_b32 s%d, s%d, 2" % (sT1, sT0)); A("s_lshl_b32 s%d, s%d, 1" % (sT1, sT1)); A("s_bfe_u32 s%d, s%d, 0x30002" % (sT2, sR)); A("s_add_u32 s%d, s%d, s%d" % (sT1, sT1, sT2))
        A("s_and_b32 s%d, s%d, 7" % (sT1, sT1)); A("s_lshl_b32 s%d, s%d, 3" % (sT0, sT0)); A("s_add_u32 s%d, s%d, s%d" % (sT0, sT0, sT1)); A("s_lshl_b32 s%d, s%d, 1" % (sT0, sT0))
        A("s_and_b32 s%d, s%d, 1" % (sT1, sR)); A("s_add_u32 s%d, s%d, s%d" % (sRQ, sT0, sT1))
    A("v_lshlrev_b32 v%d, 4, v0" % vL16); A("v_lshrrev_b32 v%d, 4, v0" % vG4); A("v_bfe_u32 v%d, v0, 2, 2" % vC4)
    A("v_and_b32 v%d, 3, v0" % vR4); A("v_and_b32 v%d, 15, v0" % vN16); A("v_mov_b32 v%d, 0x%x" % (vHI, HI)); A("v_mov_b32 v%d, 1" % vONE)
    A("s_mov_b32 s%d, 0x05040100" % sSELLO); A("s_mov_b32 s%d, 0x07060302" % sSELHI); A("s_mov_b32 s%d, 0xffff0000" % sMASK)
    A("s_mov_b32 s%d, 0x%x" % (sSCALE, f2u(128 ** -0.5))); A("s_mov_b32 s%d, 0x%x" % (sL2E, f2u(1.4426950408889634)))
    c0 = -2.0 * 0.7978845608028654 * 1.4426950408889634
    A("s_mov_b32 s%d, 0x%x" % (sC0, f2u(c0))); A("s_mov_b32 s%d, 0x%x" % (sC1, f2u(c0 * 0.044715)))
    A("s_lshr_b32 s%d, s%d, 5" % (sT0, sR)); A("s_lshl_b32 s%d, s%d, 15" % (sT0, sT0))
    A("s_and_b32 s%d, s%d, 31" % (sT1, sR)); A("s_lshl_b32 s%d, s%d, 8" % (sT1, sT1)); A("s_add_u32 s%d, s%d, s%d" % (sT0, sT0, sT1))
    A("s_add_u32 s%d, s%d, 0x%x" % (sOPOFF, sT0, WS_OP))
    A("s_and_b32 s%d, s%d, 7" % (sT0, sR)); A("s_lshl_b32 s%d, s%d, %d" % (sT0, sT0, 13 + spad))
    A("s_lshr_b32 s%d, s%d, 3" % (sT1, sR)); A("s_lshl_b32 s%d, s%d, %d" % (sT1, sT1, 6 + spad)); A("s_add_u32 s%d, s%d, s%d" % (sT0, sT0, sT1))
    A("s_add_u32 s%d, s%d, 0x%x" % (sSPOFF, sT0, WS_SP))
    A("s_lshr_b32 s%d, s%d, 2" % (sT0, sR)); A("s_lshl_b32 s%d, s%d, 7" % (sT0, sT0)); A("s_add_u32 s%d, s%d, 0x%x" % (sSTOFF, sT0, WS_ST))
    A("s_cmp_eq_u32 s%d, 4" % sWAVE); A("s_cbranch_scc1 L_loader")
    A("s_cmp_eq_u32 s%d, 5" % sWAVE); A("s_cbranch_scc1 L_comm")
    A("s_cmp_gt_u32 s%d, 5" % sWAVE); A("s_cbranch_scc1 L_mlp")

    vQ, vS, vTMP, vK = 32, 48, 112, 128
    vKA, vVA = 17, 17
    vM, vLs, vMO, vF, vOWA = 25, 26, 27, 28, 29
    vX = vS
    A("v_lshlrev_b32 v%d, 5, v0" % vT)
    A("v_lshrrev_b32 v%d, 1, v0" % (vT + 1)); A("v_lshlrev_b32 v%d, 13, v%d" % (vT + 1, vT + 1))
    A("v_and_b32 v%d, 1, v0" % (vT + 2)); A("v_lshl_add_u32 v%d, v%d, 4, v%d" % (vT + 1, vT + 2, vT + 1))
    A("s_lshl_b32 s%d, s%d, 11" % (sT2, sWAVE))
    A("s_lshl_b32 s%d, s%d, 20" % (sT0, sWAVE)); A("s_lshl_b32 s%d, s%d, 5" % (sT1, sRQ)); A("s_add_u32 s%d, s%d, s%d" % (sT0, sT0, sT1))
    A("s_lshl_b32 s%d, s%d, 13" % (sT1, sWAVE)); A("s_add_u32 s%d, s%d, %d" % (sT1, sT1, 12 * 8192))
    A("s_waitcnt lgkmcnt(0)")
    if ldst == 2: stamp(12)
    A("buffer_load_dwordx4 %s, v%d, %s, s%d offen" % (vr(vX, 4), vT, srd("X"), sT2))
    A("buffer_load_dwordx4 %s, v%d, %s, s%d offen offset:16" % (vr(vX + 4, 4), vT, srd("X"), sT2))
    nq0 = wqsplit if wqsplit else 4
    for a in range(nq0):
        A("s_add_u32 m0, s%d, %d" % (sT1, a * 1024))
        if 'q' in abl: A("buffer_load_dwordx4 v%d, %s, 0 offen lds" % (vL16, srd("X")))
        else: A("buffer_load_dwordx4 v%d, %s, s%d offen %s lds" % (vT + 1, srd("WQ"), sT0, polq))
        if a < 3: A("s_add_u32 s%d, s%d, 0x40000" % (sT0, sT0))
    if nq0 < 4: A("v_mov_b32 v31, v%d" % (vT + 1)); A("s_mov_b32 s12, s%d" % sT0)
    A("s_barrier")
    A("v_lshrrev_b32 v%d, 5, v0" % (vT + 3)); A("s_lshl_b32 s%d, s%d, 1" % (sT0, sWAVE)); A("v_add_u32 v%d, s%d, v%d" % (vT + 3, sT0, vT + 3))
    A("v_mul_u32_u24 v%d, %d, v%d" % (vT + 3, XN_STRIDE, vT + 3)); A("v_and_b32 v%d, 31, v0" % (vT + 4)); A("v_lshl_add_u32 v%d, v%d, 5, v%d" % (vT + 3, vT + 4, vT + 3))
    A("v_add_u32 v%d, v%d, v%d" % (vT + 3, vHI, vT + 3))
    A("v_and_b32 v%d, 7, v0" % (vT + 4)); A("v_mul_u32_u24 v%d, %d, v%d" % (vT + 4, XN_STRIDE, vT + 4)); A("v_lshl_add_u32 v%d, v%d, 4, v%d" % (vT + 4, vG4, vT + 4))
    A("s_lshl_b32 s%d, s%d, 8" % (sT0, sWAVE)); A("s_add_u32 s%d, s%d, %d" % (sT0, sT0, HI)); A("v_add_u32 v%d, s%d, v%d" % (vT + 4, sT0, vT + 4))
    A("v_lshlrev_b32 v%d, 8, v%d" % (vT + 5, vG4)); A("v_lshl_add_u32 v%d, v%d, 3, v%d" % (vT + 5, vN16, vT + 5)); A("v_add_u32 v%d, s%d, v%d" % (vT + 5, sT1, vT + 5))
    A("s_lshl_b32 s%d, s%d, 10" % (sT0, sWAVE)); A("s_add_u32 s%d, s%d, %d" % (sT0, sT0, HI)); A("v_add_u32 v%d, s%d, v%d" % (vT + 6, sT0, vL16))
    A("s_lshl_b32 s%d, s%d, 13" % (sT0, sWAVE)); A("v_lshlrev_b32 v%d, 8, v%d" % (vT, vN16)); A("v_add_u32 v%d, s%d, v%d" % (vT, sT0, vT))
    for m in range(4):
        A("v_add_u32 v%d, %d, v%d" % (vT + 1, 4 * m, vG4)); A("v_xor_b32 v%d, v%d, v%d" % (vT + 1, vT + 1, vN16))
        A("v_lshl_add_u32 v%d, v%d, 4, v%d" % (vKA + m, vT + 1, vT)); A("v_add_u32 v%d, 0x10000, v%d" % (vKA + 4 + m, vKA + m))
    A("s_lshl_b32 s%d, s%d, 2" % (sT0, sWAVE)); A("s_add_u32 s%d, s%d, %d" % (sT0, sT0, HI)); A("v_mov_b32 v%d, s%d" % (30, sT0))
    A("s_mov_b32 s%d, 0" % sFULL)
    A("s_waitcnt vmcnt(%d)" % nq0)
    for a in range(nq0, 4):
        A("s_add_u32 m0, s%d, %d" % (sT1, a * 1024))
        A("buffer_load_dwordx4 v31, %s, s12 offen %s lds" % (srd("WQ"), polq))
        if a < 3: A("s_add_u32 s12, s12, 0x40000")
    stamp(1)
    layernorm(vX, 8, vX + 8, vX + 24, vX + 40, 2)
    A("ds_write_b128 v%d, %s offset:%d" % (vT + 3, vr(vX, 4), L_XN)); A("ds_write_b128 v%d, %s offset:%d" % (vT + 3, vr(vX + 4, 4), L_XN + 16))
    lds_add(vHI, F_XN)
    A("s_waitcnt vmcnt(0)")
    for m in range(4):
        A("ds_read_b64_tr_b16 %s, v%d offset:%d" % (vr(vK + 4 * m, 2), vT + 5, m * 1024))
        A("ds_read_b64_tr_b16 %s, v%d offset:%d" % (vr(vK + 4 * m + 2, 2), vT + 5, m * 1024 + 128))
    lds_wait(F_XN, 4)
    for m in range(4): A("ds_read_b128 %s, v%d offset:%d" % (vr(vK + 16 + 4 * m, 4), vT + 4, L_XN + m * 64))
    for m in range(4):
        A("s_waitcnt lgkmcnt(%d)" % (3 - m))
        A("v_mfma_f32_16x16x32_bf16 %s, %s, %s, %s" % (vr(vTMP, 4), vr(vK + 4 * m, 4), vr(vK + 16 + 4 * m, 4), "0" if m == 0 else vr(vTMP, 4)))
    A("ds_write_b128 v%d, %s offset:%d" % (vT + 6, vr(vTMP, 4), L_QP))
    lds_add(vHI, F_QP)
    A("s_mov_b64 exec, 1"); A("ds_add_u32 v30, v%d offset:%d" % (vONE, F_FREED)); A("s_mov_b64 exec, -1")
    stamp(2)
    def wait_block(n4):
        A("s_add_u32 s%d, s%d, %d" % (sT0, sWAVE, 4 * n4 + 1))
        lds_wait(F_FULL, "s%d" % sT0, keep=sFULL)
    def read_k(j):
        base = vK + 32 * (j % 4)
        for t in range(2):
            for m in range(4):
                A("ds_read_b128 %s, v%d offset:%d" % (vr(base + 16 * t + 4 * m, 4), vKA + m + (4 if (j & 2) else 0), (j & 1) * 32768 + t * 4096))
    def qk_block(j):
        base = vK + 32 * (j % 4)
        for m in range(4):
            for t in range(2):
                acc = vr(vS + 8 * j + 4 * t, 4)
                A("v_mfma_f32_16x16x32_bf16 %s, %s, %s, %s" % (acc, vr(base + 16 * t + 4 * m, 4), vr(vQ + 4 * m, 4), "0" if m == 0 else acc))
    def round_block(j):
        for p in range(4):
            a, b, t = vS + 8 * j + 2 * p, vS + 8 * j + 2 * p + 1, vT + (p & 1)
            if mimic:
                A("v_cvt_pk_bf16_f32 v%d, v%d, v%d" % (t, a, b)); unpack(a, b, t)
            A("v_mul_f32 v%d, s%d, v%d" % (a, sSCALE, a)); A("v_mul_f32 v%d, s%d, v%d" % (b, sSCALE, b))
            if mimic:
                A("v_cvt_pk_bf16_f32 v%d, v%d, v%d" % (t, a, b)); unpack(a, b, t)
            if j == 0 and p == 0: A("v_max_f32 v%d, v%d, v%d" % (vM, a, b))
            else: A("v_max3_f32 v%d, v%d, v%d, v%d" % (vM, a, b, vM))
    for j in range(4):
        wait_block(j); read_k(j); lds_add(30, F_FREED)
    stamp(3)
    lds_wait(F_QR, 1)
    stamp(4)
    A("v_lshlrev_b32 v%d, 8, v%d" % (vT, vC4)); A("v_lshl_add_u32 v%d, v%d, 4, v%d" % (vT, vG4, vT)); A("v_add_u32 v%d, v%d, v%d" % (vT, vHI, vT))
    for m in range(4): A("ds_read_b128 %s, v%d offset:%d" % (vr(vQ + 4 * m, 4), vT, L_QB + m * 64))
    A("s_waitcnt lgkmcnt(0)")
    for j in range(4):
        qk_block(j)
        wait_block(4 + j); A("s_nop 3"); read_k(4 + j)
        if j >= 1: round_block(j - 1)
        lds_add(30, F_FREED)
    for j in range(4, 8):
        qk_block(j); round_block(j - 1)
    A("v_lshl_add_u32 v%d, v%d, 2, v%d" % (vT + 2, vG4, vC4))
    A("v_and_b32 v%d, 7, v%d" % (vT + 3, vT + 2)); A("v_lshlrev_b32 v%d, 1, v%d" % (vT + 3, vT + 3))
    A("v_lshrrev_b32 v%d, 1, v%d" % (vT + 4, vR4)); A("v_xor_b32 v%d, v%d, v%d" % (vT + 3, vT + 3, vT + 4))
    A("v_lshlrev_b32 v%d, 8, v%d" % (vT + 2, vT + 2)); A("v_lshl_add_u32 v%d, v%d, 4, v%d" % (vT + 2, vT + 3, vT + 2))
    A("v_and_b32 v%d, 1, v0" % (vT + 4)); A("v_lshl_add_u32 v%d, v%d, 3, v%d" % (vT + 2, vT + 4, vT + 2))
    A("s_lshl_b32 s%d, s%d, 13" % (sT0, sWAVE)); A("v_add_u32 v%d, s%d, v%d" % (vVA, sT0, vT + 2))
    for d in range(1, 8): A("v_xor_b32 v%d, %d, v%d" % (vVA + d, 32 * d, vVA))
    round_block(7)
    swap_red(vM, vT, "v_max_f32", 32); swap_red(vM, vT, "v_max_f32", 16)
    A("v_mul_f32 v%d, s%d, v%d" % (vM, sL2E, vM))
    A("v_lshlrev_b32 v%d, 4, v%d" % (vT + 1, vG4)); A("ds_bpermute_b32 v%d, v%d, v%d" % (vMO, vT + 1, vM))
    vP = vK
    for j in range(32):
        a, b = vS + 2 * j, vS + 2 * j + 1
        A("v_fma_f32 v%d, v%d, s%d, -v%d" % (a, a, sL2E, vM)); A("v_fma_f32 v%d, v%d, s%d, -v%d" % (b, b, sL2E, vM))
        A("v_exp_f32 v%d, v%d" % (a, a)); A("v_exp_f32 v%d, v%d" % (b, b))
        if j >= 1:
            pa, pb = a - 2, b - 2
            if j == 1: A("v_add_f32 v%d, v%d, v%d" % (vLs, pa, pb))
            else: A("v_add_f32 v%d, v%d, v%d" % (vLs, vLs, pa)); A("v_add_f32 v%d, v%d, v%d" % (vLs, vLs, pb))
            A("v_cvt_pk_bf16_f32 v%d, v%d, v%d" % (vP + j - 1, pa, pb))
    A("v_add_f32 v%d, v%d, v%d" % (vLs, vLs, vS + 62)); A("v_add_f32 v%d, v%d, v%d" % (vLs, vLs, vS + 63))
    A("v_cvt_pk_bf16_f32 v%d, v%d, v%d" % (vP + 31, vS + 62, vS + 63))
    swap_red(vLs, vT, "v_add_f32", 32); swap_red(vLs, vT, "v_add_f32", 16)
    A("s_lshl_b32 s%d, s%d, 5" % (sT0, sWAVE)); A("s_add_u32 s%d, s%d, %d" % (sT0, sT0, HI)); A("v_lshlrev_b32 v%d, 3, v%d" % (vT, vC4)); A("v_add_u32 v%d, s%d, v%d" % (vT, sT0, vT))
    A("v_mov_b32 v%d, v%d" % (vT + 2, vM)); A("v_mov_b32 v%d, v%d" % (vT + 3, vLs))
    A("s_mov_b64 exec, 0x1111"); A("ds_write_b64 v%d, %s offset:%d" % (vT, vr(vT + 2, 2), L_ST)); A("s_mov_b64 exec, -1")
    lds_add(vHI, F_ST)
    stamp(5)
    A("s_lshl_b32 s%d, s%d, 11" % (sT0, sWAVE)); A("s_add_u32 s%d, s%d, %d" % (sT0, sT0, HI + L_OW))
    A("v_lshlrev_b32 v%d, 9, v%d" % (vOWA, vG4)); A("v_lshl_add_u32 v%d, v%d, 2, v%d" % (vOWA, vN16, vOWA)); A("v_add_u32 v%d, s%d, v%d" % (vOWA, sT0, vOWA))
    vVB = vK + 32
    def read_v(j):
        base = vVB + 32 * (j & 1)
        for d in range(8):
            for t in range(2):
                A("ds_read_b64_tr_b16 %s, v%d offset:%d" % (vr(base + 4 * d + 2 * t, 2), vVA + d, (j & 1) * 32768 + t * 4096))
    def pv(j, d):
        base = vVB + 32 * (j & 1)
        acc = vr(vS + 4 * d, 4)
        A("v_mfma_f32_16x16x32_bf16 %s, %s, %s, %s" % (acc, vr(vP + 4 * j, 4), vr(base + 4 * d, 4), "0" if j == 0 else acc))
    vS2, vF2 = vS + 32, 31
    def factor(dst, m):
        lds_wait(F_GR, 1)
        A("v_lshl_add_u32 v%d, v%d, 3, v%d" % (vT, vG4, vHI)); A("ds_read_b64 %s, v%d offset:%d" % (vr(vT + 2, 2), vT, L_GS)); A("s_waitcnt lgkmcnt(0)")
        A("v_sub_f32 v%d, v%d, v%d" % (dst, m, vT + 2)); A("v_exp_f32 v%d, v%d" % (dst, dst)); A("v_mul_f32 v%d, v%d, v%d" % (dst, dst, vT + 3))
    def wait_pos(j, out):
        ok = A.label("pok"); again = A.label("pagain"); chk = A.label("pchk")
        A("s_add_u32 s%d, s%d, %d" % (sT0, sWAVE, 32 + 4 * j + 1))
        A("s_mov_b32 s%d, 0" % sSPIN)
        A("s_branch " + chk)
        A(again + ":")
        A("ds_read_b64 %s, v%d offset:%d" % (vr(vT + 2, 2), vHI, F_FULL)); A("s_waitcnt lgkmcnt(0)")
        A("v_readfirstlane_b32 s%d, v%d" % (sFULL, vT + 2)); A("v_readfirstlane_b32 s%d, v%d" % (sPLAN, vT + 3))
        A(chk + ":")
        A("s_cmp_ge_u32 s%d, s%d" % (sFULL, sT0)); A("s_cbranch_scc1 " + ok)
        A("s_sub_u32 s%d, s%d, 0x100" % (sT1, sPLAN)); A("s_cmp_le_u32 s%d, %d" % (sT1, j)); A("s_cbranch_scc1 " + out)
        A("s_add_u32 s%d, s%d, 1" % (sSPIN, sSPIN)); A("s_cmp_lt_u32 s%d, %d" % (sSPIN, lspin)); A("s_cbranch_scc1 " + again)
        A("s_branch " + out)
        A(ok + ":")
    if steal:
        lds_wait(F_AM, 1)
        A("v_lshrrev_b32 v%d, 2, v0" % vT); A("v_lshlrev_b32 v%d, 4, v%d" % (vT, vT))
        A("s_lshl_b32 s%d, s%d, 12" % (sT0, sR)); A("s_lshl_b32 s%d, s%d, 10" % (sT1, sWAVE)); A("s_add_u32 s%d, s%d, s%d" % (sT0, sT0, sT1)); A("s_add_u32 s%d, s%d, 0x%x" % (sT0, sT0, WS_PR))
        A("s_mov_b32 exec_lo, 0x11111111"); A("s_mov_b32 exec_hi, 0x11111111")
        for u in range(3): A("buffer_store_dwordx4 %s, v%d, %s, s%d offen offset:%d sc1" % (vr(vP + 4 * (5 + u), 4), vT, srd("WS"), sT0, 256 * u))
        A("s_mov_b64 exec, 0x1111")
        A("buffer_store_dword v%d, v0, %s, s%d offen offset:768 sc1" % (vM, srd("WS"), sT0))
        A("s_mov_b64 exec, -1")
        A("s_mov_b32 s%d, 0" % sPLAN)
    for j in range(11 if steal else 8):
        if j == 7:
            factor(vF, vMO)
            stamp(6)
        if j < NOWN: wait_block(8 + j)
        else: wait_pos(j, "L_vout%d" % j)
        if j == 7: stamp(7)
        if j >= 8:
            if j == 8:
                A("v_lshrrev_b32 v%d, 2, v0" % (vT + 4)); A("v_lshlrev_b32 v%d, 4, v%d" % (vT + 4, vT + 4))
                A("s_lshl_b32 s%d, s%d, 10" % (sT1, sWAVE)); A("s_add_u32 s%d, s%d, %d" % (sT1, sT1, HI + L_PP)); A("v_add_u32 v%d, s%d, v%d" % (vT + 4, sT1, vT + 4))
                A("v_lshl_add_u32 v%d, v%d, 2, s%d" % (vT + 5, vG4, sT1))
                for u in range(3): A("ds_read_b128 %s, v%d offset:%d" % (vr(vP + 4 * u, 4), vT + 4, 256 * (2 - u)))
                A("ds_read_b32 v%d, v%d offset:768" % (vF2, vT + 5)); A("s_waitcnt lgkmcnt(0)")
                factor(vF2, vF2)
        read_v(j)
        if j % 4 == 1:
            for d in range(8): A("v_add_u32 v%d, 0x10000, v%d" % (vVA + d, vVA + d))
        if j % 4 == 3 and (steal or j < 7):
            for d in range(8): A("v_subrev_u32 v%d, 0x10000, v%d" % (vVA + d, vVA + d))
        for d in range(8):
            A("s_waitcnt lgkmcnt(%d)" % (14 - 2 * d))
            if d == 7 and j < (7 if steal else 4):
                A("s_mov_b64 exec, 1"); A("ds_add_u32 v30, v%d offset:%d" % (vONE, F_FREED)); A("s_mov_b64 exec, -1")
            if j < 8: pv(j, d)
            else:
                acc = vr(vS2 + 4 * d, 4)
                A("v_mfma_f32_16x16x32_bf16 %s, %s, %s, %s" % (acc, vr(vP + 4 * (j - 8), 4), vr(vVB + 32 * (j & 1) + 4 * d, 4), "0" if j == 8 else acc))
    if steal:
        A("L_vout9:"); A("L_vout10:")
        A("s_nop 7")
        for d in range(8): A("v_mul_f32 v%d, v%d, v%d" % (vTMP + d, vF, vS + 4 * d))
        for d in range(8): A("v_fmac_f32 v%d, v%d, v%d" % (vTMP + d, vF2, vS2 + 4 * d))
        A("s_branch L_vsum")
        A("L_vout5:"); A("L_vout6:")
        factor(vF, vMO)
        A("L_vout7:"); A("L_vout8:")
        A("s_nop 7")
    for d in range(8): A("v_mul_f32 v%d, v%d, v%d" % (vTMP + d, vF, vS + 4 * d))
    if steal: A("L_vsum:")
    for d in range(0, 8, 2): A("ds_write2_b32 v%d, v%d, v%d offset0:%d offset1:%d" % (vOWA, vTMP + d, vTMP + d + 1, 16 * d, 16 * d + 16))
    vWOA, vOIR, vWO = 17, 18, vK
    A("v_lshlrev_b32 v%d, 7, v%d" % (vWOA, vC4)); A("v_lshl_add_u32 v%d, v%d, 10, v%d" % (vWOA, vG4, vWOA)); A("v_lshl_add_u32 v%d, v%d, 3, v%d" % (vWOA, vR4, vWOA))
    A("s_lshl_b32 s%d, s%d, 5" % (sT0, sWAVE)); A("s_add_u32 s%d, s%d, %d" % (sT0, sT0, HI + L_WO)); A("v_add_u32 v%d, s%d, v%d" % (vWOA, sT0, vWOA))
    A("s_waitcnt lgkmcnt(0)")
    A("s_barrier")
    stamp(8)
    def wo_reads():
        if wolate: lds_wait(F_WO, 1, sl=0)
        for m in range(4):
            A("ds_read_b64_tr_b16 %s, v%d offset:%d" % (vr(vWO + 4 * m, 2), vWOA, m * 4096))
            A("ds_read_b64_tr_b16 %s, v%d offset:%d" % (vr(vWO + 4 * m + 2, 2), vWOA, m * 4096 + 512))
    def oir_addr():
        A("v_lshrrev_b32 v%d, 1, v%d" % (vT, vN16)); A("v_lshlrev_b32 v%d, 10, v%d" % (vT, vT)); A("v_and_b32 v%d, 1, v0" % (vT + 1)); A("v_lshl_add_u32 v%d, v%d, 8, v%d" % (vT, vT + 1, vT))
        for m in range(4):
            A("v_add_u32 v%d, %d, v%d" % (vT + 1, 4 * m, vG4)); A("v_xor_b32 v%d, v%d, v%d" % (vT + 1, vT + 1, vN16))
            A("v_lshl_add_u32 v%d, v%d, 4, v%d" % (vOIR + m, vT + 1, vT))
        A("v_lshrrev_b32 v%d, 1, v%d" % (22, vN16)); A("v_lshlrev_b32 v22, %d, v22" % (16 + spad)); A("v_lshl_add_u32 v22, v%d, 4, v22" % vG4)
    A("s_cmp_gt_u32 s%d, 1" % sWAVE); A("s_cbranch_scc1 L_gather23")
    A("s_lshl_b32 s%d, s%d, 10" % (sT0, sWAVE)); A("s_add_u32 s%d, s%d, %d" % (sT0, sT0, HI + L_OW)); A("v_add_u32 v%d, s%d, v%d" % (vT, sT0, vL16))
    for w in range(4): A("ds_read_b128 %s, v%d offset:%d" % (vr(vS + 4 * w, 4), vT, w * 2048))
    A("v_lshrrev_b32 v%d, 5, v0" % (vT + 1)); A("v_lshlrev_b32 v%d, 13, v%d" % (vT + 1, vT + 1)); A("v_and_b32 v%d, 31, v0" % (vT + 2)); A("v_lshl_add_u32 v%d, v%d, 3, v%d" % (vT + 1, vT + 2, vT + 1))
    A("s_lshl_b32 s%d, s%d, 14" % (sT0, sWAVE)); A("s_add_u32 s%d, s%d, s%d" % (sT0, sT0, sOPOFF))
    A("s_waitcnt lgkmcnt(2)")
    for i in range(4): A("v_add_f32 v%d, v%d, v%d" % (vS + i, vS + i, vS + 4 + i))
    A("s_waitcnt lgkmcnt(0)")
    for i in range(4): A("v_add_f32 v%d, v%d, v%d" % (vS + 8 + i, vS + 8 + i, vS + 12 + i))
    for i in range(4): A("v_add_f32 v%d, v%d, v%d" % (vS + i, vS + i, vS + 8 + i))
    A("v_cvt_pk_bf16_f32 v%d, v%d, v%d" % (vTMP, vS, vS + 1)); A("v_cvt_pk_bf16_f32 v%d, v%d, v%d" % (vTMP + 1, vS + 2, vS + 3))
    A("buffer_store_dwordx2 %s, v%d, %s, s%d offen %s" % (vr(vTMP, 2), vT + 1, srd("WS"), sT0, ts))
    stamp(11)
    wo_reads(); oir_addr()
    A("s_branch L_barE_c")
    def gather(idx_sgpr, extra):
        vGa = 40
        A("s_lshr_b32 s%d, s%d, 3" % (sT1, sR)); A("s_lshl_b32 s%d, s%d, 13" % (sT1, sT1)); A("s_lshl_b32 s%d, s%d, 11" % (sT0, idx_sgpr))
        A("s_add_u32 s%d, s%d, s%d" % (sT1, sT1, sT0)); A("s_add_u32 s%d, s%d, 0x%x" % (sT1, sT1, WS_OP))
        lds_ = [(lambda: A("buffer_load_dwordx4 %s, v%d, %s, s%d offen %s" % (vr(vGa, 4), vL16, srd("WS"), sT1, tl)), list(range(vGa, vGa + 4))),
                (lambda: A("buffer_load_dwordx4 %s, v%d, %s, s%d offen offset:1024 %s" % (vr(vGa + 4, 4), vL16, srd("WS"), sT1, tl)), list(range(vGa + 4, vGa + 8)))]
        if td1: A("s_sleep %d" % td1)
        if at1:
            A("v_lshlrev_b32 v%d, 3, v0" % (vT + 7))
            apoll(vGa, vT + 7, sT1, 0, 0, first="only")
            extra()
            A("v_lshrrev_b32 v%d, 5, v0" % (vT + 2)); A("s_lshl_b32 s%d, s%d, 2" % (sT2, idx_sgpr)); A("v_add_u32 v%d, s%d, v%d" % (vT + 3, sT2, vT + 2))
            A("v_bfe_u32 v%d, v0, 1, 4" % (vT + 4)); A("v_xor_b32 v%d, v%d, v%d" % (vT + 3, vT + 3, vT + 4))
            A("v_lshlrev_b32 v%d, 8, v%d" % (vT + 2, vT + 2)); A("v_add_u32 v%d, s%d, v%d" % (vT + 2, sT0, vT + 2))
            A("v_and_b32 v%d, 1, v0" % (vT + 4)); A("v_lshl_add_u32 v%d, v%d, 3, v%d" % (vT + 2, vT + 4, vT + 2))
            A("v_lshl_add_u32 v%d, v%d, 4, v%d" % (vT + 5, vT + 3, vT + 2)); A("v_xor_b32 v%d, 32, v%d" % (vT + 6, vT + 5))
            apoll(vGa, vT + 7, sT1, 24, tsleep, first=False)
            stamp(11)
            for k in range(4): A("ds_write_b64 v%d, %s offset:%d" % (vT + 5 + (k >> 1), vr(vGa + 2 * k, 2), 512 * k))
            return
        for i_, _ in lds_: i_()
        A("v_and_b32 v%d, 1, v%d" % (vT + 2, vG4)); A("s_lshl_b32 s%d, s%d, 2" % (sT2, idx_sgpr)); A("v_add_u32 v%d, s%d, v%d" % (vT + 2, sT2, vT + 2))
        A("v_xor_b32 v%d, v%d, v%d" % (vT + 3, vT + 2, vN16)); A("v_xor_b32 v%d, 2, v%d" % (vT + 4, vT + 3))
        A("v_lshlrev_b32 v%d, 8, v%d" % (vT + 2, vG4)); A("v_add_u32 v%d, s%d, v%d" % (vT + 2, sT0, vT + 2))
        A("v_lshl_add_u32 v%d, v%d, 4, v%d" % (vT + 5, vT + 3, vT + 2)); A("v_lshl_add_u32 v%d, v%d, 4, v%d" % (vT + 6, vT + 4, vT + 2))
        extra()
        gpoll(lds_, first=False, sleep=tsleep, P=P1)
        stamp(11)
        A("ds_write_b128 v%d, %s" % (vT + 5, vr(vGa, 4))); A("ds_write_b128 v%d, %s offset:1024" % (vT + 6, vr(vGa + 4, 4)))
    A("L_gather23:")
    A("s_sub_u32 s%d, s%d, 2" % (sMU, sWAVE))
    gather(sMU, lambda: (wo_reads(), oir_addr()))
    A("L_barE_c:")
    A("s_waitcnt lgkmcnt(0)")
    A("s_barrier")
    stamp(9)
    for u in range(2):
        for m in range(4): A("ds_read_b128 %s, v%d offset:%d" % (vr(vS + 16 * u + 4 * m, 4), vOIR + m, u * 512))
    A("s_lshl_b32 s%d, s%d, %d" % (sT0, sWAVE, 11 + spad)); A("s_add_u32 s%d, s%d, s%d" % (sT0, sT0, sSPOFF))
    for u in range(2):
        for m in range(4):
            A("s_waitcnt lgkmcnt(%d)" % (7 - 4 * u - m))
            acc = vr(vTMP + 4 * u, 4)
            A("v_mfma_f32_16x16x32_bf16 %s, %s, %s, %s" % (acc, vr(vWO + 4 * m, 4), vr(vS + 16 * u + 4 * m, 4), "0" if m == 0 else acc))
    for i in range(4): A("v_add_f32 v%d, v%d, v%d" % (vTMP + i, vTMP + i, vTMP + 4 + i))
    for i in range(4): dpp("v_add_f32", vTMP + i, "quad_perm:[1,0,3,2]")
    A("s_mov_b32 exec_lo, 0x55555555"); A("s_mov_b32 exec_hi, 0x55555555")
    stamp(10)
    A("buffer_store_dwordx4 %s, v22, %s, s%d offen %s" % (vr(vTMP, 4), srd("WS"), sT0, ts))
    A("s_mov_b64 exec, -1")
    A("s_branch L_done")

    A("L_loader:")
    if ldprio: A("s_setprio %d" % ldprio)
    vO = 17
    A("v_lshlrev_b32 v%d, 8, v%d" % (vT, vG4))
    for i in range(4):
        A("v_add_u32 v%d, %d, v%d" % (vT + 1, 4 * i, vG4)); A("v_xor_b32 v%d, v%d, v%d" % (vT + 1, vT + 1, vN16)); A("v_lshl_add_u32 v%d, v%d, 4, v%d" % (vO + i, vT + 1, vT))
    for i in range(2):
        A("v_add_u32 v%d, %d, v%d" % (vT + 1, 4 * i, vG4)); A("v_lshlrev_b32 v%d, 1, v%d" % (vT + 1, vT + 1))
        A("v_xor_b32 v%d, v%d, v%d" % (vT + 1, vT + 1, vN16)); A("v_lshl_add_u32 v%d, v%d, 4, v%d" % (vO + 4 + i, vT + 1, vT))
    sG, sSLOT, sFR, sN = 12, 13, 88, 92
    A("s_bfe_u32 s%d, s%d, 0x30002" % (sBASE, sR)); A("s_lshl_b32 s%d, s%d, 23" % (sBASE, sBASE)); A("s_lshr_b32 s%d, s%d, 5" % (sT0, sR)); A("s_lshl_b32 s%d, s%d, 20" % (sT0, sT0))
    A("s_add_u32 s%d, s%d, s%d" % (sBASE, sBASE, sT0)); A("s_and_b32 s%d, s%d, 3" % (sT0, sR)); A("s_lshl_b32 s%d, s%d, 18" % (sT0, sT0)); A("s_add_u32 s%d, s%d, s%d" % (sBASE, sBASE, sT0))
    if rot:
        A("s_mov_b32 s94, s%d" % sBASE)
        A("s_mul_i32 s%d, s%d, %d" % (sT0, sR, rot)); A("s_lshr_b32 s%d, s%d, 5" % (sT1, sR)); A("s_add_u32 s%d, s%d, s%d" % (sT0, sT0, sT1))
        A("s_and_b32 s%d, s%d, 31" % (sT0, sT0)); A("s_lshl_b32 s%d, s%d, 13" % (sT0, sT0)); A("s_add_u32 s%d, s%d, s%d" % (sBASE, sBASE, sT0))
    if Fhi:
        A("s_and_b32 s%d, s2, 7" % sT0); A("s_lshr_b32 s%d, %d, s%d" % (sT0, himask, sT0)); A("s_and_b32 s%d, s%d, 1" % (sT0, sT0)); A("s_cselect_b32 s95, %d, %d" % (Fhi, F))
    A("s_mov_b32 s94, 0"); A("s_mov_b32 s93, 0"); A("s_mov_b32 s%d, s%d" % (sOFF, sBASE)); A("s_mov_b32 s%d, 0" % sG); A("s_mov_b32 s%d, 0" % sSLOT); A("s_mov_b32 s%d, 0" % sN)
    A("s_waitcnt lgkmcnt(0)")
    def publish_full(sgpr):
        A("v_mov_b32 v%d, s%d" % (vT, sgpr)); A("s_mov_b64 exec, 1"); A("ds_max_u32 v%d, v%d offset:%d" % (vHI, vT, F_FULL)); A("s_mov_b64 exec, -1")
    def dma_block(isk):
        Dm = D if isk else DV
        for half in range(2):
            A("s_mov_b32 m0, s%d" % sSLOT)
            if Dm: A("s_waitcnt vmcnt(%d)" % Dm)
            for i in range(4):
                A("buffer_load_dwordx4 v%d, %s, s%d offen offset:%d %s lds" % (vO + i if isk else vO + 4 + (i & 1), srd("K" if isk else "V"), sOFF, i * 1024, pol))
            A("s_add_u32 s%d, s%d, 4096" % (sOFF, sOFF)); A("s_add_u32 s%d, s%d, 4096" % (sSLOT, sSLOT))
            if Dm and (4 * half - Dm) % 8 < 4:
                A("s_add_i32 s%d, s%d, %d" % (sT0, sN, (4 * half - Dm) // 8)); A("s_max_i32 s%d, s%d, 0" % (sT0, sT0)); publish_full(sT0)
        if rot:
            A("s_and_b32 s%d, s%d, 0x3ffff" % (sOFF, sOFF)); A("s_or_b32 s%d, s%d, s94" % (sOFF, sOFF))
        A("s_and_b32 s%d, s%d, 0x1ffff" % (sSLOT, sSLOT)); A("s_add_u32 s%d, s%d, 1" % (sN, sN))
    if ldst == 2: stamp(1)
    for _ in range(pre): dma_block(True)
    A("s_barrier")
    if ldst == 2: stamp(2)
    for _ in range(4 - pre): dma_block(True)
    A("s_mov_b32 s%d, 1" % sG)
    if ldst == 2: stamp(3)
    def read_freed():
        A("ds_read_b128 %s, v%d offset:%d" % (vr(vT + 4, 4), vHI, F_FREED)); A("s_waitcnt lgkmcnt(0)")
        for c in range(4): A("v_readfirstlane_b32 s%d, v%d" % (sFR + c, vT + 4 + c))
    for isk, last in ((True, 8), (False, 19 if steal else 16)):
        loop = "L_ld_k" if isk else "L_ld_v"
        if not isk: A("s_mov_b32 s%d, s%d" % (sOFF, sBASE))
        A(loop + ":")
        for g_, reg in ((p_a, 16), (p_b, 18)):
            if g_ > 0 and g_ < 16 and (g_ < 8) == isk:
                sk = A.label("st"); A("s_cmp_lg_u32 s%d, %d" % (sG, g_)); A("s_cbranch_scc1 " + sk); A("s_memrealtime s[%d:%d]" % (reg, reg + 1)); A(sk + ":")
        if ldst == 1:
            for k, g in enumerate((2, 3, 4, 5, 6, 7) if isk else (8, 10, 12, 14)):
                sk = A.label("st"); A("s_cmp_lg_u32 s%d, %d" % (sG, g)); A("s_cbranch_scc1 " + sk); stamp(k + 1 if isk else k + 7); A(sk + ":")
        if steal and not isk:
            go = A.label("pgo"); again = A.label("pagain")
            A("s_cmp_lt_u32 s%d, %d" % (sG, 8 + NOWN)); A("s_cbranch_scc1 " + go)
            A("s_mov_b32 s%d, 0" % sSPIN); A("s_sub_u32 s%d, s%d, 8" % (sT1, sG))
            if ldst: A("s_memrealtime s[14:15]")
            A(again + ":")
            A("ds_read_b32 v%d, v%d offset:%d" % (vPOLL, vHI, F_PLAN)); A("s_waitcnt lgkmcnt(0)"); A("v_readfirstlane_b32 s%d, v%d" % (sT0, vPOLL))
            A("s_and_b32 s%d, s%d, 0xff" % (sT2, sT0)); A("s_cmp_gt_u32 s%d, s%d" % (sT2, sT1)); A("s_cbranch_scc1 L_granted")
            A("s_cmp_ge_u32 s%d, 0x100" % sT0); A("s_cbranch_scc1 L_ld_end")
            for k in range(F - 1, -1, -1):
                A("s_cmp_eq_u32 s%d, %d" % (sSPIN, F - 1 - k)); nx = A.label("nx"); A("s_cbranch_scc0 " + nx)
                A("s_sub_u32 s%d, s%d, %d" % (sT0, sN, k)); A("s_waitcnt vmcnt(%d)" % (8 * k)); publish_full(sT0); A(nx + ":")
            if ldst: A("s_add_u32 s93, s93, 1")
            A("s_add_u32 s%d, s%d, 1" % (sSPIN, sSPIN)); A("s_cmp_lt_u32 s%d, %d" % (sSPIN, lspin)); A("s_cbranch_scc1 " + again)
            A("s_branch L_ld_end")
            A("L_granted:")
            if ldst:
                A("s_memrealtime s[36:37]"); A("s_waitcnt lgkmcnt(0)"); A("s_sub_u32 s36, s36, s14"); A("s_add_u32 s94, s94, s36")
            A("s_cmp_lt_u32 s%d, 16" % sG); A("s_cbranch_scc1 " + go)
            A("s_sub_u32 s%d, 23, s%d" % (sT0, sG)); A("s_lshl_b32 s%d, s%d, 15" % (sT0, sT0)); A("s_xor_b32 s%d, s%d, 0x80000" % (sOFF, sBASE)); A("s_add_u32 s%d, s%d, s%d" % (sOFF, sOFF, sT0))
            A(go + ":")
        read_freed()
        A("s_sub_i32 s%d, s%d, 2" % (sT1, sG))
        if Fhi and hiend < 16:
            A("s_cmp_ge_u32 s%d, %d" % (sG, hiend)); A("s_cselect_b32 s95, %d, s95" % F)
        for c in range(4):
            go = A.label("go"); sl = A.label("slow")
            A("s_cmp_ge_i32 s%d, s%d" % (sFR + c, sT1)); A("s_cbranch_scc1 " + go)
            A("s_waitcnt vmcnt(0)"); publish_full(sN)
            if ldst: A("s_add_u32 s93, s93, 100")
            A("s_mov_b32 s%d, 0" % sSPIN)
            A(sl + ":")
            read_freed()
            A("s_cmp_ge_i32 s%d, s%d" % (sFR + c, sT1)); A("s_cbranch_scc1 " + go)
            A("s_add_u32 s%d, s%d, 1" % (sSPIN, sSPIN)); A("s_cmp_lt_u32 s%d, %d" % (sSPIN, lspin)); A("s_cbranch_scc1 " + sl)
            A(go + ":")
            dma_block(isk)
            if D: pass
            elif bal == 1:
                hi = A.label("hi")
                A("ds_read_b32 v%d, v%d offset:%d" % (vPOLL, vHI, F_MODE))
                A("s_sub_i32 s%d, s%d, %d" % (sT0, sN, F))
                A("s_waitcnt vmcnt(%d) lgkmcnt(0)" % (8 * F)); A("v_readfirstlane_b32 s%d, v%d" % (sT2, vPOLL))
                A("s_cmp_eq_u32 s%d, 0" % sT2); A("s_cbranch_scc1 " + hi)
                publish_full(sT0)
                if ldst: A("s_add_u32 s94, s94, 100")
                A("s_sub_i32 s%d, s%d, %d" % (sT0, sN, (Flo + 7) // 8 if Flo > 7 else Flo))
                A("s_waitcnt vmcnt(%d)" % (Flo if Flo > 7 else 8 * Flo)); A(hi + ":"); publish_full(sT0)
            elif Fhi:
                hi = A.label("hi")
                A("s_sub_i32 s%d, s%d, s95" % (sT0, sN)); A("s_max_i32 s%d, s%d, 0" % (sT0, sT0))
                A("s_waitcnt vmcnt(%d)" % (8 * Fhi)); A("s_cmp_eq_u32 s95, %d" % Fhi); A("s_cbranch_scc1 " + hi)
                A("s_waitcnt vmcnt(%d)" % (8 * F)); A(hi + ":"); publish_full(sT0)
            else:
                A("s_sub_i32 s%d, s%d, %d" % (sT0, sN, F))
                if F > 5: A("s_max_i32 s%d, s%d, 0" % (sT0, sT0))
                A("s_waitcnt vmcnt(%d)" % (8 * F)); publish_full(sT0)
        if stamps:
            pass
        A("s_add_u32 s%d, s%d, 1" % (sG, sG)); A("s_cmp_lt_u32 s%d, %d" % (sG, last)); A("s_cbranch_scc1 " + loop)
        if not ldst: stamp(1 if isk else 2)
    def wo_dma():
        A("v_lshrrev_b32 v%d, 3, v0" % (vT + 4)); A("v_lshlrev_b32 v%d, 10, v%d" % (vT + 4, vT + 4)); A("v_and_b32 v%d, 7, v0" % (vT + 5)); A("v_lshl_add_u32 v%d, v%d, 4, v%d" % (vT + 4, vT + 5, vT + 4))
        A("s_lshr_b32 s%d, s%d, 3" % (sT0, sR)); A("s_lshl_b32 s%d, s%d, 17" % (sT0, sT0)); A("s_and_b32 s%d, s%d, 7" % (sT1, sR)); A("s_lshl_b32 s%d, s%d, 7" % (sT1, sT1))
        A("s_add_u32 s%d, s%d, s%d" % (sT0, sT0, sT1))
        for a in range(16):
            A("s_mov_b32 m0, %d" % (HI + L_WO + a * 1024))
            A("buffer_load_dwordx4 v%d, %s, s%d offen %s lds" % (vT + 4, srd("WO"), sT0, polo))
            if a < 15: A("s_add_u32 s%d, s%d, 0x2000" % (sT0, sT0))
    if steal:
        A("L_ld_end:")
        A("s_mov_b64 exec, 1"); A("ds_write_b32 v%d, v%d offset:%d" % (vHI, vONE, F_LI)); A("s_mov_b64 exec, -1")
    if wolate == 1: wo_dma()
    for k in range((DV + 4 + 7) // 8 - 1 if D else max(F, Fhi) - 1, -1, -1):
        A("s_sub_u32 s%d, s%d, %d" % (sT0, sN, k)); A("s_waitcnt vmcnt(%d)" % (8 * k + (16 if wolate == 1 else 0))); publish_full(sT0)
    if wolate == 1:
        if ldst: stamp(11)
        A("s_waitcnt vmcnt(0)"); A("s_mov_b64 exec, 1"); A("ds_write_b32 v%d, v%d offset:%d" % (vHI, vONE, F_WO)); A("s_mov_b64 exec, -1")
    if ldst:
        if wolate == 1: stamp(12)
        else:
            stamp(11)
            A("s_waitcnt lgkmcnt(0)"); A("s_mul_i32 s%d, s%d, 25" % (sT0, sN)); A("s_add_u32 s40, s16, s%d" % sT0); A("s_addc_u32 s41, s17, 0")
            if steal: A("s_add_u32 s36, s16, s94"); A("s_addc_u32 s37, s17, 0")
            if bal: A("s_add_u32 s40, s16, s94"); A("s_addc_u32 s41, s17, 0")
    else: stamp(3)
    if p_b >= 0 and piv:
        if p_b == 16: A("s_memrealtime s[18:19]")
        A("s_waitcnt lgkmcnt(0)"); A("s_sub_u32 s18, s18, s16")
    elif p_b >= 0:
        if p_b == 16: A("s_memrealtime s[18:19]")
        A("s_waitcnt lgkmcnt(0)"); A("s_sub_u32 s18, s18, s16"); A("v_mov_b32 v8, s18"); A("s_mov_b64 exec, 1"); A("buffer_atomic_add v8, off, %s, 0 offset:4" % srd("DBG")); A("s_mov_b64 exec, -1")
    if pmap:
        if not piv: A("s_memrealtime s[18:19]")
        A("s_lshl_b32 s6, s%d, 2" % sR); A("s_add_u32 s6, s6, 0x300000")
        A("s_waitcnt lgkmcnt(0)")
        if pst: A("s_add_u32 s18, s16, 500")
        A("v_mov_b32 v8, s18"); A("s_mov_b64 exec, 1"); A("buffer_store_dword v8, off, %s, s6 sc1" % srd("WS")); A("s_mov_b64 exec, -1")
    if pspan:
        A("s_memrealtime s[18:19]"); A("s_waitcnt lgkmcnt(0)")
        if pspan in (3, 4): A("s_mov_b32 s18, s16")
        if pm: A("s_and_b32 s6, s2, %d" % pm); A("s_cmp_eq_u32 s6, %d" % pval); A("s_cselect_b32 s18, s18, s16")
        A("s_not_b32 s16, s16"); A("v_mov_b32 v8, s18"); A("v_mov_b32 v9, s16"); A("s_mov_b64 exec, 1")
        A("buffer_atomic_%s v8, off, %s, 0 offset:4" % ("add" if pspan in (4, 5) else "umax", srd("DBG"))); A("buffer_atomic_umax v9, off, %s, 0 offset:8" % srd("DBG")); A("s_mov_b64 exec, -1")
    if pgrp:
        if not piv: A("s_memrealtime s[18:19]")
        if pgrp == 1: A("s_and_b32 s6, s2, 7")
        elif pgrp == 2: A("s_bfe_u32 s6, s%d, 0x30002" % sR)
        elif pgrp == 3: A("s_lshr_b32 s6, s%d, 5" % sR)
        else: A("s_and_b32 s6, s%d, 3" % sR); A("s_lshr_b32 s7, s2, 7"); A("s_lshl_b32 s7, s7, 2"); A("s_add_u32 s6, s6, s7")
        A("s_lshl_b32 s6, s6, 5")
        A("s_waitcnt lgkmcnt(0)"); A("v_mov_b32 v8, s18"); A("s_mov_b64 exec, 1"); A("buffer_atomic_%s v8, off, %s, s6 offset:4" % ("add" if pat >= 12 else "umax", srd("DBG"))); A("s_mov_b64 exec, -1")
    if probe:
        A("s_memrealtime s[20:21]"); A("s_waitcnt lgkmcnt(0)")
        if pstart: A("s_mov_b32 s20, s16")
        A("s_and_b32 s6, s2, 7"); A("s_lshr_b32 s6, %d, s6" % probe); A("s_and_b32 s6, s6, 1"); A("s_lshl_b32 s6, s6, 2"); A("s_add_u32 s6, s6, 4")
        A("s_waitcnt lgkmcnt(0)"); A("v_mov_b32 v8, s20"); A("s_mov_b64 exec, 1"); A("buffer_atomic_add v8, off, %s, s6" % srd("DBG")); A("s_mov_b64 exec, -1")
    A("s_waitcnt lgkmcnt(0)")
    A("s_branch L_done")

    def slot_addrs():
        A("v_lshlrev_b32 v28, 5, v0")
        A("s_and_b32 s%d, s%d, 3" % (sT0, sR)); A("s_lshl_b32 s%d, s%d, 3" % (sT0, sT0)); A("s_add_u32 s%d, s%d, s%d" % (sMU, sT0, sSTOFF))
    A("L_comm:")
    vZ = 20
    for i in range(4): A("v_mov_b32 v%d, 0" % (vZ + i))
    A("v_lshl_add_u32 v%d, v0, 2, v%d" % (vT, vHI))
    A("s_mov_b64 exec, 0xffff"); A("ds_write_b32 v%d, v%d offset:%d" % (vT, vZ, L_FLG)); A("s_mov_b64 exec, -1")
    slot_addrs()
    sEP = 4
    def epoch():
        A("s_waitcnt vmcnt(0)")
        A("v_readfirstlane_b32 s%d, v30" % sEP); A("v_readfirstlane_b32 s%d, v31" % (sEP + 1))
        A("s_add_u32 s%d, s%d, 0x%x" % (sEP, sEP, EP_STEP & 0xffffffff)); A("s_addc_u32 s%d, s%d, 0x%x" % (sEP + 1, sEP + 1, EP_STEP >> 32))
    A("s_waitcnt lgkmcnt(0)")
    A("buffer_load_dwordx2 v[30:31], off, %s, 0 offset:%d sc1" % (srd("WS"), WS_EP))
    A("s_barrier")
    A("v_add_u32 v%d, v%d, v%d" % (vT, vHI, vL16))
    A("v_and_b32 v29, 7, v0"); A("v_lshlrev_b32 v29, 14, v29"); A("v_lshl_add_u32 v29, v%d, 4, v29" % vG4)
    A("s_lshl_b32 s%d, s%d, 6" % (sT2, sRQ)); A("s_add_u32 s%d, s%d, 0x%x" % (sT2, sT2, WS_Q))
    A("s_bfe_u32 s%d, s%d, 0x30002" % (sT0, sR)); A("s_lshl_b32 s%d, s%d, 14" % (sT0, sT0)); A("s_lshr_b32 s%d, s%d, 5" % (sT1, sR)); A("s_lshl_b32 s%d, s%d, 11" % (sT1, sT1))
    A("s_add_u32 s%d, s%d, s%d" % (sT0, sT0, sT1)); A("s_add_u32 s%d, s%d, 0x%x" % (sT0, sT0, WS_Q))
    A("v_lshl_add_u32 v27, v0, 3, v%d" % vHI)
    epoch()
    A("v_mov_b32 v38, s%d" % sEP); A("v_mov_b32 v39, s%d" % (sEP + 1))
    stamp(1)
    lds_wait(F_QP, 4)
    for w in range(4): A("ds_read_b128 %s, v%d offset:%d" % (vr(40 + 4 * w, 4), vT, L_QP + w * 1024))
    A("s_waitcnt lgkmcnt(0)")
    for i in range(4): A("v_add_f32 v%d, v%d, v%d" % (40 + i, 40 + i, 44 + i)); A("v_add_f32 v%d, v%d, v%d" % (48 + i, 48 + i, 52 + i))
    for i in range(4): A("v_add_f32 v%d, v%d, v%d" % (40 + i, 40 + i, 48 + i))
    A("v_cvt_pk_bf16_f32 v36, v40, v41"); A("v_cvt_pk_bf16_f32 v37, v42, v43")
    A("s_mov_b32 exec_lo, 0x00ff00ff"); A("s_mov_b32 exec_hi, 0x00ff00ff")
    A("buffer_store_dwordx4 v[36:39], v29, %s, s%d offen sc1" % (srd("WS"), sT2))
    A("s_mov_b64 exec, -1")
    stamp(2)
    if qdelay: A("s_sleep %d" % qdelay)
    if qtrig: lds_wait(F_FULL, qtrig, sl=4)
    gpoll([(lambda: A("buffer_load_dwordx4 v[32:35], v%d, %s, s%d offen sc1" % (vL16, srd("WS"), sT0)), [32, 33, 34, 35]),
           (lambda: A("buffer_load_dwordx4 v[40:43], v%d, %s, s%d offen offset:1024 sc1" % (vL16, srd("WS"), sT0)), [40, 41, 42, 43])], sleep=qsleep, tag="s[%d:%d]" % (sEP, sEP + 1))
    A("ds_write_b64 v27, v[32:33] offset:%d" % L_QB); A("ds_write_b64 v27, v[40:41] offset:%d" % (L_QB + 512))
    lds_add(vHI, F_QR)
    stamp(4)
    def all_marked():
        A("v_lshlrev_b32 v%d, 5, v0" % (vT + 3))
        word_poll("buffer_load_dword v32, v%d, %s, 0 offen sc1" % (vT + 3, srd("DBG")), 32, "0xff", "v_cmp_gt_u32 vcc, 32, v%d", fsleep)
        stamp(3)
    all_marked()
    lds_add(vHI, F_AM)
    A("v_lshlrev_b32 v%d, 3, v%d" % (vT + 1, vN16)); A("v_add_u32 v%d, v%d, v%d" % (vT + 2, vHI, vT + 1))
    lds_wait(F_ST, 4)
    A("ds_read_b64 v[32:33], v%d offset:%d" % (vT + 2, L_ST)); A("s_waitcnt lgkmcnt(0)")
    def combine(modes):
        A("v_mov_b32 v34, v32")
        for m in modes: dpp("v_max_f32", 34, m)
        A("v_sub_f32 v32, v32, v34"); A("v_exp_f32 v32, v32"); A("v_mul_f32 v35, v32, v33")
        for m in modes: dpp("v_add_f32", 35, m)
    combine(("row_ror:4", "row_ror:8"))
    A("s_mov_b64 exec, 0xf"); A("buffer_store_dwordx2 v[34:35], v28, %s, s%d offen sc1" % (srd("WS"), sMU)); A("s_mov_b64 exec, -1")
    stamp(5)
    if sdelay: A("s_sleep %d" % sdelay)
    if strig:
        lds_wait(F_FULL, strig, sl=8)
    gpoll([(lambda: A("buffer_load_dwordx2 v[32:33], v%d, %s, s%d offen sc1" % (vT + 1, srd("WS"), sSTOFF)), [32, 33])], sleep=ssleep)
    combine(("quad_perm:[1,0,3,2]", "quad_perm:[2,3,0,1]"))
    A("v_rcp_f32 v35, v35"); A("v_lshl_add_u32 v%d, v%d, 3, v%d" % (vT + 2, vC4, vHI))
    A("s_mov_b64 exec, 0x1111"); A("ds_write_b64 v%d, v[34:35] offset:%d" % (vT + 2, L_GS)); A("s_mov_b64 exec, -1")
    lds_add(vHI, F_GR)
    stamp(6)
    A("s_mov_b32 s%d, 2" % sMU)
    A("L_gather56:")
    A("s_waitcnt lgkmcnt(0)")
    A("s_barrier")
    stamp(8)
    gather(sMU, lambda: None)
    A("s_waitcnt lgkmcnt(0)")
    A("s_barrier")
    stamp(9)
    A("s_branch L_done")

    A("L_mlp:")
    vW, vU = 32, 64
    def pg_addr(line, word):
        A("s_lshr_b32 s%d, s2, 3" % line); A("s_lshl_b32 s%d, s%d, 8" % (line, line)); A("s_add_u32 s%d, s%d, 0x%x" % (line, line, WS_PG))
        A("s_and_b32 s%d, s2, 7" % word); A("s_lshl_b32 s%d, s%d, 2" % (word, word)); A("s_add_u32 s%d, s%d, s%d" % (word, word, line))
    def clean():
        A("s_cmp_lg_u32 s%d, 7" % sWAVE); A("s_cbranch_scc1 L_noclean")
        for i in range(4): A("v_mov_b32 v%d, -1" % (60 + i))
        slot_addrs()
        A("v_lshlrev_b32 v%d, 13, v%d" % (59, vG4)); A("v_lshl_add_u32 v%d, v%d, 4, v%d" % (59, vN16, 59))
        A("s_lshl_b32 s%d, s%d, %d" % (sT1, sR, 11 + spad)); A("s_add_u32 s%d, s%d, 0x%x" % (sT1, sT1, WS_SP))
        A("v_lshrrev_b32 v29, 2, v0"); A("v_lshlrev_b32 v29, %d, v29" % (6 + spad)); A("v_lshl_add_u32 v29, v%d, 4, v29" % vR4)
        A("s_waitcnt lgkmcnt(0)")
        A("buffer_load_dwordx2 v[30:31], off, %s, 0 offset:%d sc1" % (srd("WS"), WS_EP))
        A("s_mov_b64 exec, 0xf"); A("buffer_store_dwordx2 v[60:61], v28, %s, s%d offen sc1" % (srd("WS"), sMU)); A("s_mov_b64 exec, -1")
        A("buffer_store_dwordx4 v[60:63], v%d, %s, s%d offen sc1" % (59, srd("WS"), sOPOFF))
        A("buffer_store_dwordx4 v[60:63], v29, %s, s%d offen sc1" % (srd("WS"), sT1))
        A("buffer_store_dwordx4 v[60:63], v29, %s, s%d offen offset:%d sc1" % (srd("WS"), sT1, 1024 << spad))
        if bal:
            pg_addr(sT1, sT3)
            A("s_mov_b64 exec, 1"); A("buffer_store_dword v60, off, %s, s%d sc1" % (srd("WS"), sT3)); A("s_mov_b64 exec, -1")
        if steal:
            A("s_lshl_b32 s%d, s%d, 12" % (sT1, sR)); A("s_add_u32 s%d, s%d, 0x%x" % (sT1, sT1, WS_PR))
            for k in range(4): A("buffer_store_dwordx4 v[60:63], v%d, %s, s%d offen offset:%d sc1" % (vL16, srd("WS"), sT1, 1024 * k))
            A("s_lshl_b32 s%d, s%d, 7" % (sT1, sR)); A("s_add_u32 s%d, s%d, 0x%x" % (sT1, sT1, WS_CW))
            A("s_mov_b64 exec, 1"); A("buffer_store_dword v60, off, %s, s%d sc1" % (srd("WS"), sT1)); A("s_mov_b64 exec, -1")
        A("L_noclean:")
    def arrive(cnt, lbl):
        A("s_cmp_lg_u32 s%d, 7" % sWAVE); A("s_cbranch_scc1 " + lbl)
        A("s_lshr_b32 s%d, s%d, 5" % (sT3, sR)); A("s_lshl_b32 s%d, s%d, 5" % (sT3, sT3))
        A("s_mov_b64 exec, 1")
        A("s_waitcnt vmcnt(%d)" % cnt)
        A("buffer_atomic_add v%d, off, %s, s%d" % (vONE, srd("DBG"), sT3))
        A("s_mov_b64 exec, -1")
        stamp(4)
        A(lbl + ":")
    if not cllate: clean()
    A("s_sub_u32 s%d, s%d, 6" % (sMB, sWAVE))
    A("v_mul_u32_u24 v%d, 12, v0" % vT); A("s_mul_i32 s%d, s%d, 1792" % (sT1, sMB))
    A("s_waitcnt lgkmcnt(0)")
    A("s_load_dword s%d, s[%d:%d], 0" % (sB2, sB2P, sB2P + 1))
    if tlb:
        A("s_bfe_u32 s%d, s%d, 0x30002" % (sBASE, sR)); A("s_lshl_b32 s%d, s%d, 23" % (sBASE, sBASE)); A("s_lshr_b32 s%d, s%d, 5" % (sT0, sR)); A("s_lshl_b32 s%d, s%d, 20" % (sT0, sT0))
        A("s_add_u32 s%d, s%d, s%d" % (sBASE, sBASE, sT0)); A("s_and_b32 s%d, s%d, 3" % (sT0, sR)); A("s_lshl_b32 s%d, s%d, 18" % (sT0, sT0)); A("s_add_u32 s%d, s%d, s%d" % (sBASE, sBASE, sT0))
        A("s_cmp_lg_u32 s%d, 6" % sWAVE); A("s_cbranch_scc1 L_notlb")
        A("s_mov_b64 exec, 1")
        if tlb & 1: A("buffer_load_dword v200, off, %s, s%d" % (srd("V"), sBASE))
        if tlb & 2:
            A("s_lshr_b32 s%d, s%d, 3" % (sT0, sR)); A("s_lshl_b32 s%d, s%d, 17" % (sT0, sT0))
            A("buffer_load_dword v201, off, %s, s%d" % (srd("WO"), sT0))
        if tlb & 4:
            A("v_lshlrev_b32 v202, 16, v0"); A("s_mov_b64 exec, 0xf")
            A("buffer_load_dword v203, v202, %s, s%d offen" % (srd("V"), sBASE))
            A("buffer_load_dword v204, v202, %s, s%d offen" % (srd("K"), sBASE))
        A("s_mov_b64 exec, -1")
        A("L_notlb:")
    A("s_barrier")
    for k, n in enumerate(("W1", "B1", "W2")):
        A("buffer_load_dwordx4 %s, v%d, %s, s%d offen" % (vr(vW + 8 * k, 4), vL16, srd(n), sT1))
        A("buffer_load_dwordx3 %s, v%d, %s, s%d offen offset:1024" % (vr(vW + 8 * k + 4, 3), vT, srd(n), sT1))
    if not cllate: arrive(6, "L_noflag")
    A("s_lshr_b32 s%d, s%d, 5" % (sT0, sR)); A("s_mul_i32 s%d, s%d, %d" % (sT0, sT0, XN_STRIDE)); A("s_add_u32 s%d, s%d, %d" % (sT0, sT0, HI)); A("v_add_u32 v%d, s%d, v%d" % (vT + 1, sT0, vL16))
    A("s_lshl_b32 s%d, s%d, 13" % (sT2, sMB)); A("s_add_u32 s%d, s%d, %d" % (sT2, sT2, HI + L_WO)); A("v_add_u32 v%d, s%d, v%d" % (vT + 2, sT2, vL16))
    A("s_and_b32 s%d, s%d, 31" % (sT0, sR)); A("s_lshl_b32 s%d, s%d, 5" % (sT0, sT0)); A("s_add_u32 s%d, s%d, s%d" % (sT0, sT0, sT2))
    A("v_lshlrev_b32 v%d, 1, v%d" % (vT + 3, vN16)); A("v_add_u32 v%d, s%d, v%d" % (vT + 3, sT0, vT + 3))
    lds_wait(F_XN, 4)
    if cllate: clean()
    vXm = 112
    A("ds_read_b128 %s, v%d offset:%d" % (vr(vXm, 4), vT + 1, L_XN)); A("s_waitcnt lgkmcnt(0)")
    layernorm(vXm, 4, vXm + 4, vXm + 12, vXm + 20, 1)
    A("ds_write_b128 v%d, %s" % (vT + 2, vr(vXm, 4)))
    vH = 24
    A("ds_read_u16 v%d, v%d" % (vH, vT + 3))
    A("v_lshrrev_b32 v%d, 3, v0" % (vT + 4)); A("v_lshlrev_b32 v%d, 10, v%d" % (vT + 4, vT + 4)); A("v_and_b32 v%d, 7, v0" % (vT + 5)); A("v_lshl_add_u32 v%d, v%d, 4, v%d" % (vT + 4, vT + 5, vT + 4))
    A("s_lshr_b32 s%d, s%d, 3" % (sT0, sR)); A("s_lshl_b32 s%d, s%d, 17" % (sT0, sT0)); A("s_and_b32 s%d, s%d, 7" % (sT1, sR)); A("s_lshl_b32 s%d, s%d, 7" % (sT1, sT1))
    A("s_add_u32 s%d, s%d, s%d" % (sT0, sT0, sT1)); A("s_lshl_b32 s%d, s%d, 16" % (sT1, sMB)); A("s_add_u32 s%d, s%d, s%d" % (sT0, sT0, sT1))
    A("s_waitcnt vmcnt(0) lgkmcnt(0)")
    if cllate: arrive(0, "L_noflag")
    for a in range(8):
        A("s_add_u32 m0, s%d, %d" % (sT2, a * 1024))
        if 'o' not in abl and not wolate: A("buffer_load_dwordx4 v%d, %s, s%d offen %s lds" % (vT + 4, srd("WO"), sT0, polo))
        if a < 7: A("s_add_u32 s%d, s%d, 0x2000" % (sT0, sT0))
    stamp(1)
    A("v_lshlrev_b32 v%d, 16, v%d" % (vH, vH))
    for k in range(3):
        for i in range(7): unpack(vU + 14 * k + 2 * i, vU + 14 * k + 2 * i + 1, vW + 8 * k + i)
    vC0, vACC, U, T_ = 25, 26, 112, 128
    A("v_mov_b32 v%d, s%d" % (vC0, sC0))
    A("s_lshl_b32 s%d, s%d, 6" % (sT0, sMB)); A("s_add_u32 s%d, s%d, %d" % (sT0, sT0, HI + L_YP)); A("v_mov_b32 v27, s%d" % sT0)
    A("s_mov_b32 s%d, 0" % sT1)
    A("s_nop 3")
    A("L_mlp_loop:")
    A("v_readlane_b32 s%d, v%d, s%d" % (sMU, vH, sT1))
    for t in range(14): A("v_fma_f32 v%d, s%d, v%d, v%d" % (U + t, sMU, vU + t, vU + 14 + t))
    for t in range(14): A("v_mul_f32 v%d, v%d, v%d" % (T_ + t, U + t, U + t))
    for t in range(14): A("v_fma_f32 v%d, v%d, s%d, v%d" % (T_ + t, T_ + t, sC1, vC0))
    for t in range(14): A("v_mul_f32 v%d, v%d, v%d" % (T_ + t, T_ + t, U + t))
    for t in range(14):
        A("v_exp_f32 v%d, v%d" % (T_ + t, T_ + t)); A("v_mul_f32 v%d, v%d, v%d" % (U + t, U + t, vU + 28 + t))
    for t in range(14): A("v_add_f32 v%d, 1.0, v%d" % (T_ + t, T_ + t))
    for t in range(14): A("v_rcp_f32 v%d, v%d" % (T_ + t, T_ + t))
    A("v_mul_f32 v%d, v%d, v%d" % (vACC, U, T_)); A("v_mul_f32 v%d, v%d, v%d" % (U, U + 1, T_ + 1))
    for t in range(2, 14): A("v_fmac_f32 v%d, v%d, v%d" % (vACC if t & 1 else U, U + t, T_ + t))
    A("v_add_f32 v%d, v%d, v%d" % (vACC, vACC, U))
    red16(vACC, "v_add_f32"); dpp("v_add_f32", vACC, "row_bcast:15", "0xa"); dpp("v_add_f32", vACC, "row_bcast:31", "0xc")
    A("s_mov_b32 exec_lo, 0"); A("s_mov_b32 exec_hi, 0x80000000")
    A("ds_write_b32 v27, v%d" % vACC); A("v_add_u32 v27, 4, v27")
    A("s_mov_b64 exec, -1")
    A("s_add_u32 s%d, s%d, 1" % (sT1, sT1)); A("s_cmp_lt_u32 s%d, 16" % sT1); A("s_cbranch_scc1 L_mlp_loop")
    stamp(2)
    A("s_waitcnt vmcnt(0)")
    A("s_mov_b32 s%d, 3" % sMU)
    if steal:
        A("s_cmp_eq_u32 s%d, 7" % sWAVE); A("s_cbranch_scc1 L_final")
        lds_wait(F_AM, 1, sl=8)
        sCW = 4
        A("s_lshl_b32 s%d, s%d, 7" % (sCW, sR)); A("s_add_u32 s%d, s%d, 0x%x" % (sCW, sCW, WS_CW))
        def set_plan(val):
            A("v_mov_b32 v%d, %s" % (vT, val)); A("s_mov_b64 exec, 1"); A("ds_write_b32 v%d, v%d offset:%d" % (vHI, vT, F_PLAN)); A("s_mov_b64 exec, -1")
        for k in range(5, 11):
            if k == 8:
                A("s_xor_b32 s%d, s%d, 0x100" % (sCW, sCW))
            if k == 8:
                A("s_xor_b32 s%d, s%d, 2" % (sT1, sR)); A("s_lshl_b32 s%d, s%d, 12" % (sT1, sT1)); A("s_add_u32 s%d, s%d, 0x%x" % (sT1, sT1, WS_PR))
                A("v_add_u32 v%d, v%d, v%d" % (vT + 1, vHI, vL16))
                rec = [((lambda q=q: A("buffer_load_dwordx4 %s, v%d, %s, s%d offen offset:%d sc1" % (vr(36 + 4 * q, 4), vL16, srd("WS"), sT1, 1024 * q))), list(range(36 + 4 * q, 40 + 4 * q))) for q in range(4)]
                lds_wait(F_FULL, rtrig, sl=2)
                A("s_mov_b32 exec_hi, 0x1ffff")
                for i_, _ in rec: i_()
                A("s_mov_b64 exec, -1")
            lds_wait(F_FULL, 4 * k + cth + (bias if k >= 8 else 0), sl=2)
            A("v_mov_b32 v32, 1"); A("s_mov_b64 exec, 1")
            A("buffer_atomic_add v32, off, %s, s%d sc0" % (srd("WS"), sCW))
            A("s_mov_b64 exec, -1")
            A("s_mov_b32 s%d, 0x%x" % (sT2, 0x100 + k))
            A("s_waitcnt vmcnt(0)")
            A("v_readfirstlane_b32 s%d, v32" % sT0); A("s_add_u32 s%d, s%d, 1" % (sT0, sT0))
            if stamps and k < 9: stamp(k - 2)
            A("s_cmp_ge_u32 s%d, 3" % sT0); A("s_cbranch_scc1 L_close")
            if k == 8:
                A("s_mov_b32 exec_hi, 0x1ffff")
                gpoll(rec[:2], first=False, sleep=8, full="PARTIAL"); gpoll(rec[2:], first=False, sleep=8, full="PARTIAL")
                for q in range(4): A("ds_write_b128 v%d, %s offset:%d" % (vT + 1, vr(36 + 4 * q, 4), L_PP + 1024 * q))
                A("s_mov_b64 exec, -1")
                A("s_waitcnt lgkmcnt(0)")
            set_plan("%d" % (k + 1))
        A("s_mov_b32 s%d, 0x%x" % (sT2, 0x100 + 11))
        A("L_close:")
        set_plan("s%d" % sT2)
        A("s_branch L_gather56")
        A("L_final:")
    elif bal >= 2:
        A("s_cmp_eq_u32 s%d, 7" % sWAVE); A("s_cbranch_scc1 L_final")
        lds_wait(F_AM, 1, sl=8)
        pg_addr(4, 5)
        if bal == 3: A("s_lshl_b32 s4, s2, 8"); A("s_add_u32 s4, s4, 0x%x" % (WS_PG + 0x4000))
        for k in range(bmin):
            lds_wait(F_FULL, bthr + bper * k, sl=4)
            A("v_mov_b32 v%d, 1" % (32 + k)); A("s_mov_b64 exec, 1")
            if bal == 4: A("buffer_load_dword v%d, off, %s, s4 sc1" % (32 + k, srd("WS")))
            elif bal == 5: A("buffer_store_dword v%d, off, %s, s5 sc1" % (32 + k, srd("WS")))
            else: A("buffer_atomic_add v%d, off, %s, s4 sc0" % (32 + k, srd("WS")))
            A("s_mov_b64 exec, -1")
        A("s_waitcnt vmcnt(0)")
        A("s_branch L_gather56")
        A("L_final:")
    elif bal:
        A("s_cmp_eq_u32 s%d, 7" % sWAVE); A("s_cbranch_scc1 L_final")
        lds_wait(F_AM, 1, sl=8)
        pg_addr(4, 5)
        A("s_and_b32 s12, s2, 7"); A("v_lshlrev_b32 v33, 2, v0"); A("s_mov_b32 s13, 0")
        A("L_bal:")
        A("s_mov_b64 exec, 0xff"); A("buffer_load_dword v32, v33, %s, s4 offen sc1" % srd("WS"))
        A("s_mov_b64 exec, 1")
        A("ds_read_b32 v34, v%d offset:%d" % (vHI, F_FULL)); A("s_waitcnt lgkmcnt(0)")
        A("buffer_store_dword v34, off, %s, s5 sc1" % srd("WS"))
        A("s_mov_b64 exec, -1")
        A("v_readfirstlane_b32 s%d, v34" % sT0)
        A("s_cmp_ge_u32 s%d, %d" % (sT0, bstop)); A("s_cbranch_scc1 L_balend")
        A("s_waitcnt vmcnt(1)")
        A("v_readlane_b32 s%d, v32, s12" % sT1)
        A("s_mov_b64 exec, 0xff")
        A("v_cmp_eq_u32 vcc, -1, v32")
        if bmin:
            for m in QUADS[:3]: dpp("v_min_u32", 32, m)
        else:
            for m in QUADS[:3]: dpp("v_add_u32", 32, m)
        A("s_mov_b64 exec, -1")
        A("v_readfirstlane_b32 s%d, v32" % sT2)
        A("s_cmp_lg_u64 vcc, 0"); A("s_cbranch_scc1 L_balskip")
        if not bmin: A("s_lshl_b32 s%d, s%d, 3" % (sT1, sT1))
        A("s_sub_i32 s%d, s%d, s%d" % (sT1, sT1, sT2)); A("s_cmp_gt_i32 s%d, %d" % (sT1, bthr)); A("s_cselect_b32 s%d, 1, 0" % sT1)
        A("v_mov_b32 v35, s%d" % sT1); A("s_mov_b64 exec, 1"); A("ds_write_b32 v%d, v35 offset:%d" % (vHI, F_MODE)); A("s_mov_b64 exec, -1")
        A("L_balskip:")
        if bper: A("s_sleep %d" % bper)
        A("s_add_u32 s13, s13, 1"); A("s_cmp_lt_u32 s13, 4096"); A("s_cbranch_scc1 L_bal")
        A("L_balend:")
        A("v_mov_b32 v35, 0"); A("s_mov_b64 exec, 1"); A("ds_write_b32 v%d, v35 offset:%d" % (vHI, F_MODE)); A("s_mov_b64 exec, -1")
        A("s_waitcnt vmcnt(0)")
        A("s_branch L_gather56")
        A("L_final:")
    else:
        A("s_cmp_eq_u32 s%d, 6" % sWAVE); A("s_cbranch_scc1 L_gather56")
    if at2:
        A("v_and_b32 v%d, 7, v0" % (vT + 1)); A("v_lshrrev_b32 v%d, 5, v0" % (vT + 2)); A("v_lshl_add_u32 v%d, v%d, 1, v%d" % (vT + 1, vT + 1, vT + 2))
    else: A("v_lshl_add_u32 v%d, v%d, 2, v%d" % (vT + 1, vR4, vG4))
    A("v_lshlrev_b32 v%d, 1, v%d" % (vT + 2, vT + 1)); A("s_lshl_b32 s%d, s%d, 5" % (sT0, sR))
    A("buffer_load_ushort v%d, v%d, %s, s%d offen" % (vT + 3, vT + 2, srd("X"), sT0))
    A("v_lshl_add_u32 v%d, v%d, 2, v%d" % (vT + 1, vT + 1, vHI))
    A("s_lshl_b32 s%d, s%d, %d" % (sT1, sR, 11 + spad)); A("s_add_u32 s%d, s%d, 0x%x" % (sT1, sT1, WS_SP))
    A("v_lshrrev_b32 v29, 2, v0"); A("v_lshlrev_b32 v29, %d, v29" % (6 + spad)); A("v_lshl_add_u32 v29, v%d, 4, v29" % vR4)
    if wolate == 2:
        A("s_mov_b32 s12, s%d" % sT0); A("s_mov_b32 s13, s%d" % sT1)
        if steal: lds_wait(F_LI, 1, sl=2)
        else: lds_wait(F_FULL, wotrig, sl=2)
        wo_dma()
        A("s_mov_b32 s%d, s12" % sT0); A("s_mov_b32 s%d, s13" % sT1)
    A("s_waitcnt lgkmcnt(0)")
    A("s_barrier")
    stamp(8)
    A("ds_read_b32 v40, v%d offset:%d" % (vT + 1, L_YP)); A("ds_read_b32 v41, v%d offset:%d" % (vT + 1, L_YP + 64)); A("s_waitcnt lgkmcnt(0)")
    A("v_add_f32 v40, v40, v41"); rbf(40)
    A("s_lshl_b32 s%d, s%d, 16" % (sB2, sB2)); A("v_add_f32 v40, s%d, v40" % sB2); rbf(40)
    A("v_mul_f32 v41, s%d, v40" % sL2E); A("v_exp_f32 v41, -v41"); A("v_add_f32 v41, 1.0, v41"); A("v_rcp_f32 v41, v41"); A("v_mul_f32 v40, v40, v41"); rbf(40)
    A("s_waitcnt vmcnt(0)"); A("v_lshlrev_b32 v%d, 16, v%d" % (vT + 3, vT + 3))
    if wolate == 2:
        A("s_mov_b64 exec, 1"); A("ds_write_b32 v%d, v%d offset:%d" % (vHI, vONE, F_WO)); A("s_mov_b64 exec, -1")
        stamp(11)
    A("s_barrier")
    stamp(9)
    if td2: A("s_sleep %d" % td2)
    if at2:
        A("v_lshlrev_b32 v29, 3, v0")
        apoll(32, 29, sT1, 44, tsleep2)
        stamp(10)
        A("v_add_f32 v44, v32, v34"); A("v_add_f32 v45, v33, v35"); A("v_add_f32 v46, v36, v38"); A("v_add_f32 v47, v37, v39")
        A("v_add_f32 v44, v44, v46"); A("v_add_f32 v45, v45, v47")
        A("v_permlane32_swap_b32 v44, v45"); A("v_add_f32 v44, v44, v45")
        swap_red(44, 45, "v_add_f32", 16)
        dpp("v_add_f32", 44, "row_ror:8")
    else:
        gpoll([(lambda: A("buffer_load_dwordx4 v[32:35], v29, %s, s%d offen %s" % (srd("WS"), sT1, tl)), [32, 33, 34, 35]),
               (lambda: A("buffer_load_dwordx4 v[36:39], v29, %s, s%d offen offset:%d %s" % (srd("WS"), sT1, 1024 << spad, tl)), [36, 37, 38, 39])], sleep=tsleep2, P=P2)
        stamp(10)
        for i in range(4): A("v_add_f32 v%d, v%d, v%d" % (44 + i, 32 + i, 36 + i))
        A("v_permlane32_swap_b32 v44, v46"); A("v_permlane32_swap_b32 v45, v47")
        A("v_add_f32 v44, v44, v46"); A("v_add_f32 v45, v45, v47")
        A("v_permlane16_swap_b32 v44, v45"); A("v_add_f32 v44, v44, v45")
        dpp("v_add_f32", 44, "row_ror:8"); dpp("v_add_f32", 44, "row_ror:4")
    rbf(44); A("v_mul_f32 v44, v44, v40"); rbf(44)
    A("v_add_f32 v44, v44, v%d" % (vT + 3)); A("v_cvt_pk_bf16_f32 v44, v44, v44")
    em = "0xff" if at2 else "0x000f000f"
    A("s_mov_b32 exec_lo, %s" % em); A("s_mov_b32 exec_hi, %s" % em)
    A("buffer_store_short v44, v%d, %s, s%d offen" % (vT + 2, srd("OUT"), sT0))
    A("s_mov_b64 exec, -1")
    A("s_cmp_lg_u32 s%d, 0" % sR); A("s_cbranch_scc1 L_done")
    epoch()
    A("v_mov_b32 v30, s%d" % sEP); A("v_mov_b32 v31, s%d" % (sEP + 1)); A("s_mov_b64 exec, 1")
    A("buffer_store_dwordx2 v[30:31], off, %s, 0 offset:%d sc1" % (srd("WS"), WS_EP))
    A("s_mov_b64 exec, -1")
    if pmap >= 10:
        A("s_sleep 32"); A("s_mov_b32 s6, 0x300000")
        A("buffer_load_dwordx4 v[32:35], v%d, %s, s6 offen sc1" % (vL16, srd("WS"))); A("s_waitcnt vmcnt(0)")
        if not piv:
            for i in range(4): A("v_subrev_u32 v%d, s16, v%d" % (32 + i, 32 + i))
        def over_kvh(v, op):
            dpp(op, v, "row_ror:8"); swap_red(v, 40, op, 16); swap_red(v, 40, op, 32)
        def over_b(v, op):
            for m in QUADS[:3]: dpp(op, v, m)
        A("v_max_u32 v36, v32, v33"); A("v_max3_u32 v36, v36, v34, v35"); over_kvh(36, "v_max_u32")
        A("v_add_u32 v37, v32, v33"); A("v_add3_u32 v37, v37, v34, v35"); over_kvh(37, "v_add_u32"); A("v_lshrrev_b32 v37, 5, v37")
        if pmap == 10: over_b(36, "v_max_u32"); A("v_lshlrev_b32 v36, 2, v36")
        elif pmap == 11: over_b(37, "v_max_u32"); A("v_lshlrev_b32 v36, 2, v37")
        elif pmap == 12: over_b(37, "v_add_u32"); A("v_lshrrev_b32 v36, 1, v37")
        elif pmap == 13: over_b(37, "v_min_u32"); A("v_lshlrev_b32 v36, 2, v37")
        elif pmap == 14: A("v_sub_u32 v36, v36, v37"); over_b(36, "v_max_u32"); A("v_lshlrev_b32 v36, 3, v36")
        elif pmap == 15:
            A("v_mov_b32 v38, v37"); over_b(38, "v_max_u32"); A("v_cmp_eq_u32 vcc, v38, v37"); A("v_cndmask_b32 v37, v37, 0, vcc"); over_b(37, "v_max_u32"); A("v_lshlrev_b32 v36, 2, v37")
        elif pmap == 16:
            A("v_lshlrev_b32 v36, 3, v36"); A("v_and_b32 v38, 7, v0"); A("v_or_b32 v36, v36, v38"); over_b(36, "v_max_u32"); A("v_and_b32 v36, 7, v36"); A("v_mul_u32_u24 v36, 300, v36")
        elif pmap == 17:
            A("v_min_u32 v36, v32, v33"); A("v_min3_u32 v36, v36, v34, v35"); over_kvh(36, "v_min_u32"); over_b(36, "v_min_u32"); A("v_lshlrev_b32 v36, 2, v36")
        A("s_mov_b32 s7, s16")
        A("s_memrealtime s[16:17]"); A("v_readfirstlane_b32 s6, v36"); A("s_waitcnt lgkmcnt(0)")
        if pmap == 18: A("s_sub_u32 s6, s16, s7"); A("s_lshl_b32 s6, s6, 2")
        if pmap == 19: A("s_mov_b32 s6, 0")
        A("s_min_u32 s6, s6, 20000")
        A("s_add_u32 s16, s16, s6")
        A("L_pad4:"); A("s_memrealtime s[18:19]"); A("s_waitcnt lgkmcnt(0)"); A("s_sub_u32 s18, s18, s16"); A("s_cmp_lt_i32 s18, 0"); A("s_cbranch_scc1 L_pad4")
    elif pmap:
        A("s_sleep 32"); A("s_mov_b32 s6, 0x300000")
        A("buffer_load_dwordx4 v[32:35], v%d, %s, s6 offen sc1" % (vL16, srd("WS"))); A("s_waitcnt vmcnt(0)")
        if pmap == 1: A("v_max_u32 v32, v32, v33"); A("v_max3_u32 v32, v32, v34, v35")
        elif pmap == 2: A("v_min_u32 v32, v32, v33"); A("v_min3_u32 v32, v32, v34, v35")
        if not piv: A("s_add_u32 s16, s16, 1500"); A("v_subrev_u32 v32, s16, v32")
        A("v_lshrrev_b32 v32, 3, v32"); A("v_min_u32 v32, 255, v32")
        A("buffer_store_byte v32, v0, %s, 0 offen sc1" % srd("DBG"))
    if pgrp:
        A("v_lshlrev_b32 v29, 5, v0"); A("s_mov_b64 exec, 0xff")
        A("buffer_load_dword v30, v29, %s, 0 offen offset:4 sc1" % srd("DBG")); A("s_memrealtime s[16:17]"); A("s_waitcnt vmcnt(0) lgkmcnt(0)")
        if pat >= 12:
            A("v_readfirstlane_b32 s6, v30"); A("v_subrev_u32 v30, s6, v30"); A("v_add_u32 v30, 0x100000, v30")
            if pat == 13: A("v_lshlrev_b32 v30, 3, v30"); A("v_or_b32 v30, v30, v0")
        A("v_mov_b32 v31, v30")
        for m in QUADS[:3]: dpp("v_max_u32", 30, m)
        if pat in (11, 12, 13, 14):
            for m in QUADS[:3]: dpp("v_min_u32", 31, m)
        else:
            A("v_subrev_u32 v31, v31, v30")
            for m in QUADS[:3]: dpp("v_add_u32", 31, m)
        A("s_mov_b64 exec, -1")
        A("v_readfirstlane_b32 s6, v30"); A("v_readfirstlane_b32 s7, v31")
        if pat == 11: A("s_sub_u32 s6, s6, s7"); A("s_lshl_b32 s6, s6, 3")
        elif pat == 12: A("s_sub_u32 s6, s6, s7"); A("s_lshr_b32 s6, s6, 2")
        elif pat == 13: A("s_and_b32 s6, s6, 7"); A("s_mul_i32 s6, s6, 300")
        else: A("s_mov_b32 s6, s7")
        A("s_min_u32 s6, s6, 20000")
        A("s_add_u32 s16, s16, s6")
        A("L_pad3:"); A("s_memrealtime s[18:19]"); A("s_waitcnt lgkmcnt(0)"); A("s_sub_u32 s18, s18, s16"); A("s_cmp_lt_i32 s18, 0"); A("s_cbranch_scc1 L_pad3")
    if probe or (p_b >= 0 and not piv) or pspan:
        A("buffer_load_dwordx2 v[30:31], off, %s, 0 offset:4 sc1" % srd("DBG")); A("s_memrealtime s[16:17]"); A("s_waitcnt vmcnt(0) lgkmcnt(0)")
        A("v_readfirstlane_b32 s6, v30"); A("v_readfirstlane_b32 s7, v31")
        if probe: A("s_sub_i32 s6, s6, s7"); A("s_abs_i32 s6, s6"); A("s_lshr_b32 s6, s6, 4")
        elif pspan == 1: A("s_not_b32 s7, s7"); A("s_sub_u32 s6, s6, s7"); A("s_lshl_b32 s6, s6, 2")
        elif pspan == 2: A("s_sub_u32 s6, s16, s6"); A("s_lshl_b32 s6, s6, 3")
        elif pspan == 6: A("s_not_b32 s7, s7"); A("s_sub_u32 s6, s16, s7"); A("s_lshl_b32 s6, s6, 2")
        elif pspan == 3: A("s_not_b32 s7, s7"); A("s_sub_u32 s6, s6, s7"); A("s_lshl_b32 s6, s6, 3")
        elif pspan in (4, 5): A("s_not_b32 s7, s7"); A("s_lshl_b32 s7, s7, 8"); A("s_sub_u32 s6, s6, s7"); A("s_lshr_b32 s6, s6, %d" % (5 if pspan == 4 else 6))
        else: A("s_lshr_b32 s6, s6, 5")
        A("s_min_u32 s6, s6, 20000")
        A("s_add_u32 s16, s16, s6")
        A("L_pad2:"); A("s_memrealtime s[18:19]"); A("s_waitcnt lgkmcnt(0)"); A("s_sub_u32 s18, s18, s16"); A("s_cmp_lt_i32 s18, 0"); A("s_cbranch_scc1 L_pad2")
    A("L_done:")
    A("s_waitcnt vmcnt(0)")
    if pad:
        A("s_waitcnt lgkmcnt(0)"); A("s_add_u32 s16, s16, %d" % pad)
        A("L_pad:"); A("s_memrealtime s[18:19]"); A("s_waitcnt lgkmcnt(0)"); A("s_sub_u32 s18, s18, s16"); A("s_cmp_lt_i32 s18, 0"); A("s_cbranch_scc1 L_pad")
    if stamps:
        A("s_waitcnt vmcnt(0)")
        stamp(NST - 1)
        A("s_waitcnt lgkmcnt(0)")
        A("s_lshl_b32 s%d, s2, 3" % sT0); A("s_add_u32 s%d, s%d, s%d" % (sT0, sT0, sWAVE)); A("s_mul_i32 s%d, s%d, %d" % (sT0, sT0, NST * 8)); A("s_add_u32 s%d, s%d, 0x%x" % (sT0, sT0, WS_STAMP))
        A("s_mov_b64 exec, 1")
        for k in range(NST):
            A("v_mov_b32 v2, s%d" % (16 + 2 * k)); A("v_mov_b32 v3, s%d" % (17 + 2 * k))
            A("buffer_store_dwordx2 v[2:3], off, %s, s%d offset:%d" % (srd("WS"), sT0, k * 8)); A("s_nop 1")
    A("L_end:")
    A("s_endpgm")
    body = A.finalize()
    hdr = open("recurrent_scan__gqa_block_cached__mixer_token_mlp__decode.s.ref").read().split("; Override launch")[0]
    s = hdr + "; @launch grid=(256,1,1) block=(512,1,1) lds=%d\n" % LDS_BYTES
    s += '.amdgcn_target "amdgcn-amd-amdhsa--gfx950"\n.text\n.globl %s\n.p2align 8\n.type %s,@function\n%s:\n' % (NAME, NAME, NAME)
    s += body
    s += '.section .rodata,"a"\n.p2align 6\n.amdhsa_kernel %s\n  .amdhsa_next_free_vgpr 256\n  .amdhsa_next_free_sgpr 102\n  .amdhsa_accum_offset 256\n' % NAME
    s += "  .amdhsa_group_segment_fixed_size 0\n  .amdhsa_kernarg_size 104\n  .amdhsa_user_sgpr_count 2\n  .amdhsa_user_sgpr_kernarg_segment_ptr 1\n  .amdhsa_system_sgpr_workgroup_id_x 1\n.end_amdhsa_kernel\n"
    return s, A

if __name__ == "__main__":
    out = sys.argv[1]
    kw = {}
    for p in sys.argv[2:]:
        k, v = p.split("=")
        kw[k] = int(v) if v.lstrip("-").isdigit() else v.replace("+", " ")
    s, A = gen(**kw)
    open(out, "w").write(s)
    print("wrote", out, "instructions", len(A.ins), "nops", A.nops, "lds", LDS_BYTES)
```

```python
import sys, struct
from asmlib import Asm

NAME = "recurrent_scan__gqa_block_cached__mixer_token_mlp__decode_kernel"
def f2u(x): return struct.unpack("<I", struct.pack("<f", x))[0]

WS_ST, WS_OP, WS_SP, WS_Q, WS_EP = 0x10000, 0x20000, 0x100000, 0x60000, 0x0
WS_PG = 0x90000
WS_CW, WS_PR = 0x80000, 0x200000
EP_STEP = 0x9E3779B97F4A7C15
WS_STAMP = 128 << 20
HI = 131072
L_WO = 0
L_XN, XN_STRIDE = 16384, 1040
L_OW = L_XN
L_QP = 24704
L_QB = 28800
L_FLG = 29824
L_ST = L_FLG + 64
L_GS = L_ST + 128
L_YP = L_GS + 32
LDS_BYTES = HI + L_YP + 128
F_FULL, F_FREED, F_XN, F_QP, F_QR, F_ST, F_GR, F_WO, F_AM, F_PLAN, F_LI, F_MODE = [L_FLG + 4 * i for i in (0, 4, 8, 9, 10, 11, 12, 13, 14, 1, 15, 2)]
L_PP = L_QP

sWAVE, sBASE, sOFF = 3, 4, 5
sT0, sT1, sT2 = 6, 7, 8
sR, sSPIN, sT3 = 9, 10, 11
sMU, sMB = 14, 15
SRD = dict(K=44, V=48, X=52, WQ=56, WO=60, W1=64, B1=68, W2=72, OUT=76, DBG=80, WS=84)
KARG = dict(X=0, K=8, V=16, WQ=24, WO=32, W1=48, B1=56, W2=64, OUT=80, DBG=88, WS=96)
SIZE = dict(X=8192, K=1 << 26, V=1 << 26, WQ=1 << 22, WO=1 << 22, W1=3584, B1=3584, W2=3584, OUT=8192, DBG=256, WS=1 << 28)
sSELLO, sSELHI, sMASK, sSCALE, sL2E, sC0, sC1, sB2, sB2P = 88, 89, 90, 91, 92, 93, 94, 95, 96
sOPOFF, sSPOFF, sSTOFF, sFULL = 98, 99, 100, 101
def srd(n): return "s[%d:%d]" % (SRD[n], SRD[n] + 3)
def vr(a, n=1): return "v%d" % a if n == 1 else "v[%d:%d]" % (a, a + n - 1)
vL16, vG4, vC4, vR4, vN16, vHI, vONE = 1, 2, 3, 4, 5, 6, 7
vT = 8
vPOLL = 16

def gen(F=4, stamps=0, pol="nt", spin=1 << 17, lspin=1 << 22, mimic=1, pre=0, lsleep=1, ldprio=3, fsleep=8, qsleep=2, ssleep=8, tsleep=0, xmap=1, polq=None, polo=None, ldst=0, abl='', rot=0, pad=0, P1=1, P2=1, pd=5, qmap=0, tl='sc1', ts='sc1', tsleep2=None, Fhi=0, himask=0xf8, hiend=16, spad=0, at2=1, td2=8, td1=0, at1=0, qdelay=0, sdelay=0, qtrig=8, strig=48, bshift=0, wolate=2, wqsplit=0, wotrig=60, D=0, DV=0, probe=0, steal=0, cth=23, cllate=0, bias=0, rtrig=48, p_a=-1, p_b=-1, pspan=0, pstart=0, bal=0, Flo=2, bthr=0, bper=8, bstop=58, bmin=0, pm=0, pval=0, pgrp=0, pat=11, tlb=0, piv=0, pmap=0, pst=0, pad2=0, pw=255, pwg=255, pwv=0):
    NOWN = 5 if steal else 8
    sPLAN = 13
    DV = DV if DV else D
    tsleep2 = tsleep if tsleep2 is None else tsleep2
    polq = pol if polq is None else polq.replace('def', '')
    polo = pol if polo is None else polo.replace('def', '')
    A = Asm()
    NST = 14
    def stamp(k):
        if stamps: A("s_memrealtime s[%d:%d]" % (16 + 2 * k, 17 + 2 * k))
    QUADS = ("quad_perm:[1,0,3,2]", "quad_perm:[2,3,0,1]", "row_half_mirror", "row_mirror")
    def dpp(op, v, m, rm="0xf"): A("%s_dpp v%d, v%d, v%d %s row_mask:%s bank_mask:0xf" % (op, v, v, v, m, rm))
    def red16(v, op):
        for m in QUADS: dpp(op, v, m)
    def swap_red(v, t, op, which):
        A("v_mov_b32 v%d, v%d" % (t, v)); A("v_permlane%d_swap_b32 v%d, v%d" % (which, v, t)); A("%s v%d, v%d, v%d" % (op, v, v, t))
    def rbf(v):
        A("v_cvt_pk_bf16_f32 v%d, v%d, v%d" % (v, v, v)); A("v_lshlrev_b32 v%d, 16, v%d" % (v, v))
    def unpack(dlo, dhi, src):
        A("v_lshlrev_b32 v%d, 16, v%d" % (dlo, src)); A("v_and_b32 v%d, s%d, v%d" % (dhi, sMASK, src))
    def layernorm(pk, n, x, d, t, halves):
        def allred(v):
            red16(v, "v_add_f32"); swap_red(v, t + 2, "v_add_f32", 16)
            if halves == 1: swap_red(v, t + 2, "v_add_f32", 32)
        for i in range(n): unpack(x + 2 * i, x + 2 * i + 1, pk + i)
        A("v_add_f32 v%d, v%d, v%d" % (t, x, x + 1)); A("v_add_f32 v%d, v%d, v%d" % (t + 1, x + 2, x + 3))
        for i in range(4, 2 * n): A("v_add_f32 v%d, v%d, v%d" % (t + (i & 1), t + (i & 1), x + i))
        A("v_add_f32 v%d, v%d, v%d" % (t, t, t + 1))
        allred(t)
        A("v_mul_f32 v%d, 0x3b000000, v%d" % (t, t))
        A("v_cvt_pk_bf16_f32 v%d, v%d, v%d" % (t + 1, t, t))
        for i in range(2 * n): A("v_sub_f32 v%d, v%d, v%d" % (d + i, x + i, t))
        A("v_lshlrev_b32 v%d, 16, v%d" % (t + 1, t + 1))
        A("v_mul_f32 v%d, v%d, v%d" % (t, d, d)); A("v_mul_f32 v%d, v%d, v%d" % (d, d + 1, d + 1))
        for i in range(2, 2 * n): A("v_fmac_f32 v%d, v%d, v%d" % (t if i & 1 else d, d + i, d + i))
        A("v_add_f32 v%d, v%d, v%d" % (t, t, d))
        for i in range(2 * n): A("v_sub_f32 v%d, v%d, v%d" % (x + i, x + i, t + 1))
        allred(t)
        for i in range(n): A("v_cvt_pk_bf16_f32 v%d, v%d, v%d" % (pk + i, x + 2 * i, x + 2 * i + 1))
        A("v_mul_f32 v%d, 0x3b000000, v%d" % (t, t)); rbf(t)
        A("v_add_f32 v%d, 0x%x, v%d" % (t, f2u(1e-5), t)); rbf(t)
        A("v_sqrt_f32 v%d, v%d" % (t, t)); rbf(t)
        A("v_rcp_f32 v%d, v%d" % (t, t))
        for i in range(n): unpack(x + 2 * i, x + 2 * i + 1, pk + i)
        for i in range(2 * n): A("v_mul_f32 v%d, v%d, v%d" % (x + i, t, x + i))
        for i in range(n): A("v_cvt_pk_bf16_f32 v%d, v%d, v%d" % (pk + i, x + 2 * i, x + 2 * i + 1))
    def lds_wait(flag, val, keep=None, sl=None):
        ok = A.label("lok"); again = A.label("lagain")
        dst = keep if keep is not None else sT3
        if keep is not None:
            A("s_cmp_ge_u32 s%d, %s" % (keep, val)); A("s_cbranch_scc1 " + ok)
        A("s_mov_b32 s%d, 0" % sSPIN)
        A(again + ":")
        A("ds_read_b32 v%d, v%d offset:%d" % (vPOLL, vHI, flag)); A("s_waitcnt lgkmcnt(0)")
        A("v_readfirstlane_b32 s%d, v%d" % (dst, vPOLL))
        A("s_cmp_ge_u32 s%d, %s" % (dst, val)); A("s_cbranch_scc1 " + ok)
        if sl is None: sl = lsleep
        if sl: A("s_sleep %d" % sl)
        A("s_add_u32 s%d, s%d, 1" % (sSPIN, sSPIN)); A("s_cmp_lt_u32 s%d, %d" % (sSPIN, lspin)); A("s_cbranch_scc1 " + again)
        A(ok + ":")
    def lds_add(flag_addr_reg, off):
        A("s_waitcnt lgkmcnt(0)")
        A("s_mov_b64 exec, 1"); A("ds_add_u32 v%d, v%d offset:%d" % (flag_addr_reg, vONE, off)); A("s_mov_b64 exec, -1")
    def gpoll(loads, first=True, sleep=0, full="-1", tag=None, P=1):
        ok = A.label("ok"); again = A.label("again")
        masks = ["vcc", "s[12:13]"]
        A("s_mov_b32 s%d, 0" % sSPIN)
        if first:
            for issue, regs in loads: issue()
        for _ in range(P - 1):
            A("s_sleep %d" % pd)
            for issue, regs in loads: issue()
        A(again + ":")
        A("s_waitcnt vmcnt(%d)" % (len(loads) * (P - 1)))
        for (issue, regs), mk in zip(loads, masks):
            t = vT + 7
            if tag is not None:
                A("v_cmp_ne_u64 %s, %s, v[%d:%d]" % (mk, tag, regs[2], regs[3])); continue
            if len(regs) == 2: A("v_max_u32 v%d, v%d, v%d" % (t, regs[0], regs[1]))
            else:
                A("v_max3_u32 v%d, v%d, v%d, v%d" % (t, regs[0], regs[1], regs[2])); A("v_max_u32 v%d, v%d, v%d" % (t, t, regs[3]))
            A("v_cmp_eq_u32 %s, -1, v%d" % (mk, t))
        if len(loads) == 2:
            A("s_or_b32 s%d, vcc_lo, vcc_hi" % sT3); A("s_or_b32 s%d, s%d, s12" % (sT3, sT3)); A("s_or_b32 s%d, s%d, s13" % (sT3, sT3))
        else:
            A("s_or_b32 s%d, vcc_lo, vcc_hi" % sT3)
        A("s_cbranch_scc0 " + ok)
        if sleep: A("s_sleep %d" % sleep)
        for (issue, regs), mk in zip(loads, masks):
            A("s_mov_b64 exec, %s" % mk); issue()
        if full == "PARTIAL": A("s_mov_b32 exec_lo, -1"); A("s_mov_b32 exec_hi, 0x1ffff")
        else: A("s_mov_b64 exec, %s" % full)
        A("s_add_u32 s%d, s%d, 1" % (sSPIN, sSPIN)); A("s_cmp_lt_u32 s%d, %d" % (sSPIN, spin)); A("s_cbranch_scc1 " + again)
        A("s_waitcnt vmcnt(0)")
        A(ok + ":")
    def apoll(vd, vaddr, soff, vtmp, sleep, first=True):
        ms = ["vcc", "s[12:13]", "s[88:89]", "s[90:91]"]
        ok = A.label("aok"); again = A.label("aagain")
        def iss(k):
            A("v_mov_b32 v%d, 0" % (vd + 2 * k)); A("v_mov_b32 v%d, 0" % (vd + 1 + 2 * k))
            A("buffer_atomic_or_x2 v[%d:%d], v%d, %s, s%d offen offset:%d sc0" % (vd + 2 * k, vd + 1 + 2 * k, vaddr, srd("WS"), soff, 512 * k))
        if first == "only":
            for k in range(4): iss(k)
            return
        A("s_mov_b32 s%d, 0" % sSPIN)
        if first:
            for k in range(4): iss(k)
        A(again + ":")
        A("s_waitcnt vmcnt(0)")
        for k in range(4): A("v_max_u32 v%d, v%d, v%d" % (vtmp + k, vd + 2 * k, vd + 1 + 2 * k))
        for k in range(4): A("v_cmp_eq_u32 %s, -1, v%d" % (ms[k], vtmp + k))
        A("s_or_b64 s[92:93], vcc, s[12:13]"); A("s_or_b64 s[94:95], s[88:89], s[90:91]"); A("s_or_b64 s[92:93], s[92:93], s[94:95]")
        A("s_cbranch_scc0 " + ok)
        if sleep: A("s_sleep %d" % sleep)
        for k in range(4):
            A("s_mov_b64 exec, %s" % ms[k]); iss(k)
        A("s_mov_b64 exec, -1")
        A("s_add_u32 s%d, s%d, 1" % (sSPIN, sSPIN)); A("s_cmp_lt_u32 s%d, %d" % (sSPIN, spin)); A("s_cbranch_scc1 " + again)
        A("s_waitcnt vmcnt(0)")
        A(ok + ":")
    def word_poll(load, vd, lanes, cmp, sleep):
        ok = A.label("fok"); again = A.label("fagain")
        A("s_mov_b32 s%d, 0" % sSPIN); A("s_mov_b64 exec, %s" % lanes)
        A(again + ":")
        A(load)
        A("s_waitcnt vmcnt(0)")
        A(cmp % vd)
        A("s_cmp_eq_u64 vcc, 0"); A("s_cbranch_scc1 " + ok)
        if sleep: A("s_sleep %d" % sleep)
        A("s_add_u32 s%d, s%d, 1" % (sSPIN, sSPIN)); A("s_cmp_lt_u32 s%d, %d" % (sSPIN, spin)); A("s_cbranch_scc1 " + again)
        A(ok + ":")
        A("s_mov_b64 exec, -1")

    A("s_cmp_ge_u32 s2, 256"); A("s_cbranch_scc1 L_end")
    if stamps:
        for k in range(1, NST): A("s_mov_b64 s[%d:%d], 0" % (16 + 2 * k, 17 + 2 * k))
    stamp(0)
    if (pad or p_b >= 0 or pspan or pstart or pmap or pad2) and not stamps: A("s_memrealtime s[16:17]")
    for n in ("K", "X", "WQ", "WS", "V", "WO", "W1", "B1", "W2", "DBG", "OUT"):
        A("s_load_dwordx2 s[%d:%d], s[0:1], %d" % (SRD[n], SRD[n] + 1, KARG[n]))
    A("s_load_dwordx2 s[%d:%d], s[0:1], 72" % (sB2P, sB2P + 1))
    A("v_lshrrev_b32 v1, 6, v0"); A("v_and_b32 v0, 63, v0"); A("v_readfirstlane_b32 s%d, v1" % sWAVE)
    for n in SRD:
        A("s_mov_b32 s%d, 0x%x" % (SRD[n] + 2, SIZE[n])); A("s_mov_b32 s%d, 0x20000" % (SRD[n] + 3))
    if xmap == 0:
        A("s_and_b32 s%d, s2, 7" % sR); A("s_lshl_b32 s%d, s%d, 5" % (sR, sR)); A("s_lshr_b32 s%d, s2, 3" % sT0); A("s_add_u32 s%d, s%d, s%d" % (sR, sR, sT0))
    elif xmap >= 8:
        A("s_bfe_u32 s%d, s2, 0x10003" % sT0); A("s_bfe_u32 s%d, s2, 0x10004" % sT1); A("s_lshl_b32 s%d, s%d, 2" % (sT1, sT1)); A("s_add_u32 s%d, s%d, s%d" % (sT0, sT0, sT1))
        if xmap == 9: A("s_lshr_b32 s%d, s2, 5" % sT1); A("s_add_u32 s%d, s%d, s%d" % (sT0, sT0, sT1))
        A("s_sub_u32 s%d, s2, s%d" % (sR, sT0))
        A("s_and_b32 s%d, s%d, 7" % (sR, sR)); A("s_lshl_b32 s%d, s%d, 2" % (sR, sR)); A("s_and_b32 s%d, s2, 0xe0" % sT0); A("s_add_u32 s%d, s%d, s%d" % (sR, sR, sT0))
        A("s_bfe_u32 s%d, s2, 0x20003" % sT0); A("s_add_u32 s%d, s%d, s%d" % (sR, sR, sT0))
    elif xmap >= 4:
        A("s_lshr_b32 s%d, s2, 1" % sT0); A("s_xor_b32 s%d, s%d, s2" % (sT0, sT0)); A("s_and_b32 s%d, s%d, 1" % (sT0, sT0)); A("s_lshl_b32 s%d, s%d, 3" % (sT0, sT0))
        A("s_and_b32 s%d, s2, 4" % sT1); A("s_lshl_b32 s%d, s%d, 2" % (sT1, sT1)); A("s_add_u32 s%d, s%d, s%d" % (sT0, sT0, sT1))
        A("s_bfe_u32 s%d, s2, 0x10003" % sT1); A("s_lshl_b32 s%d, s%d, 2" % (sT1, sT1)); A("s_add_u32 s%d, s%d, s%d" % (sT0, sT0, sT1))
        A("s_and_b32 s%d, s2, 0xe0" % sR); A("s_add_u32 s%d, s%d, s%d" % (sR, sR, sT0))
        if xmap == 6:
            A("s_lshr_b32 s%d, s2, 5" % sT0); A("s_xor_b32 s%d, s%d, s2" % (sT0, sT0)); A("s_and_b32 s%d, s%d, 1" % (sT0, sT0))
        elif xmap == 7:
            A("s_lshr_b32 s%d, s2, 3" % sT0); A("s_xor_b32 s%d, s%d, s2" % (sT0, sT0)); A("s_and_b32 s%d, s%d, 1" % (sT0, sT0))
        else: A("s_and_b32 s%d, s2, 1" % sT0)
        A("s_bfe_u32 s%d, s2, 0x10004" % sT1)
        A("s_lshl_b32 s%d, s%d, 1" % ((sT0, sT0) if xmap != 5 else (sT1, sT1)))
        A("s_add_u32 s%d, s%d, s%d" % (sR, sR, sT0)); A("s_add_u32 s%d, s%d, s%d" % (sR, sR, sT1))
    else:
        if xmap == 2:
            A("s_lshr_b32 s%d, s2, 5" % sT0); A("s_add_u32 s%d, s2, s%d" % (sR, sT0))
        elif xmap == 3:
            A("s_bfe_u32 s%d, s2, 0x20003" % sT0); A("s_lshl_b32 s%d, s%d, 1" % (sT0, sT0)); A("s_add_u32 s%d, s2, s%d" % (sR, sT0))
        else: A("s_add_u32 s%d, s2, %d" % (sR, bshift))
        A("s_and_b32 s%d, s%d, 7" % (sR, sR)); A("s_lshl_b32 s%d, s%d, 2" % (sR, sR)); A("s_and_b32 s%d, s2, 0xe0" % sT0); A("s_add_u32 s%d, s%d, s%d" % (sR, sR, sT0))
        A("s_bfe_u32 s%d, s2, 0x20003" % sT0); A("s_add_u32 s%d, s%d, s%d" % (sR, sR, sT0))
    sRQ = sMB
    if xmap >= 4:
        A("s_and_b32 s%d, s2, 7" % sRQ); A("s_lshl_b32 s%d, s%d, 2" % (sRQ, sRQ)); A("s_and_b32 s%d, s2, 0xe0" % sT0); A("s_add_u32 s%d, s%d, s%d" % (sRQ, sRQ, sT0))
        A("s_bfe_u32 s%d, s2, 0x20003" % sT0); A("s_add_u32 s%d, s%d, s%d" % (sRQ, sRQ, sT0))
    elif qmap == 0: A("s_mov_b32 s%d, s%d" % (sRQ, sR))
    elif qmap == 1:
        A("s_and_b32 s%d, s2, 7" % sRQ); A("s_lshl_b32 s%d, s%d, 5" % (sRQ, sRQ)); A("s_lshr_b32 s%d, s2, 3" % sT0); A("s_add_u32 s%d, s%d, s%d" % (sRQ, sRQ, sT0))
    elif qmap == 2:
        A("s_lshr_b32 s%d, s%d, 3" % (sT0, sR)); A("s_and_b32 s%d, s%d, 0x1c" % (sT0, sT0)); A("s_add_u32 s%d, s%d, s%d" % (sT0, sT0, sR)); A("s_and_b32 s%d, s%d, 0x1c" % (sT0, sT0))
        A("s_and_b32 s%d, s%d, 0xe3" % (sRQ, sR)); A("s_or_b32 s%d, s%d, s%d" % (sRQ, sRQ, sT0))
    elif qmap == 4:
        A("s_lshr_b32 s%d, s%d, 5" % (sT0, sR)); A("s_lshl_b32 s%d, s%d, 1" % (sT0, sT0)); A("s_bfe_u32 s%d, s%d, 0x10001" % (sT1, sR)); A("s_add_u32 s%d, s%d, s%d" % (sT0, sT0, sT1))
        A("s_lshr_b32 s%d, s%d, 2" % (sT1, sT0)); A("s_lshl_b32 s%d, s%d, 1" % (sT1, sT1)); A("s_bfe_u32 s%d, s%d, 0x30002" % (sT2, sR)); A("s_add_u32 s%d, s%d, s%d" % (sT1, sT1, sT2))
        A("s_and_b32 s%d, s%d, 7" % (sT1, sT1)); A("s_lshl_b32 s%d, s%d, 3" % (sT0, sT0)); A("s_add_u32 s%d, s%d, s%d" % (sT0, sT0, sT1)); A("s_lshl_b32 s%d, s%d, 1" % (sT0, sT0))
        A("s_and_b32 s%d, s%d, 1" % (sT1, sR)); A("s_add_u32 s%d, s%d, s%d" % (sRQ, sT0, sT1))
    A("v_lshlrev_b32 v%d, 4, v0" % vL16); A("v_lshrrev_b32 v%d, 4, v0" % vG4); A("v_bfe_u32 v%d, v0, 2, 2" % vC4)
    A("v_and_b32 v%d, 3, v0" % vR4); A("v_and_b32 v%d, 15, v0" % vN16); A("v_mov_b32 v%d, 0x%x" % (vHI, HI)); A("v_mov_b32 v%d, 1" % vONE)
    A("s_mov_b32 s%d, 0x05040100" % sSELLO); A("s_mov_b32 s%d, 0x07060302" % sSELHI); A("s_mov_b32 s%d, 0xffff0000" % sMASK)
    A("s_mov_b32 s%d, 0x%x" % (sSCALE, f2u(128 ** -0.5))); A("s_mov_b32 s%d, 0x%x" % (sL2E, f2u(1.4426950408889634)))
    c0 = -2.0 * 0.7978845608028654 * 1.4426950408889634
    A("s_mov_b32 s%d, 0x%x" % (sC0, f2u(c0))); A("s_mov_b32 s%d, 0x%x" % (sC1, f2u(c0 * 0.044715)))
    A("s_lshr_b32 s%d, s%d, 5" % (sT0, sR)); A("s_lshl_b32 s%d, s%d, 15" % (sT0, sT0))
    A("s_and_b32 s%d, s%d, 31" % (sT1, sR)); A("s_lshl_b32 s%d, s%d, 8" % (sT1, sT1)); A("s_add_u32 s%d, s%d, s%d" % (sT0, sT0, sT1))
    A("s_add_u32 s%d, s%d, 0x%x" % (sOPOFF, sT0, WS_OP))
    A("s_and_b32 s%d, s%d, 7" % (sT0, sR)); A("s_lshl_b32 s%d, s%d, %d" % (sT0, sT0, 13 + spad))
    A("s_lshr_b32 s%d, s%d, 3" % (sT1, sR)); A("s_lshl_b32 s%d, s%d, %d" % (sT1, sT1, 6 + spad)); A("s_add_u32 s%d, s%d, s%d" % (sT0, sT0, sT1))
    A("s_add_u32 s%d, s%d, 0x%x" % (sSPOFF, sT0, WS_SP))
    A("s_lshr_b32 s%d, s%d, 2" % (sT0, sR)); A("s_lshl_b32 s%d, s%d, 7" % (sT0, sT0)); A("s_add_u32 s%d, s%d, 0x%x" % (sSTOFF, sT0, WS_ST))
    A("s_cmp_eq_u32 s%d, 4" % sWAVE); A("s_cbranch_scc1 L_loader")
    A("s_cmp_eq_u32 s%d, 5" % sWAVE); A("s_cbranch_scc1 L_comm")
    A("s_cmp_gt_u32 s%d, 5" % sWAVE); A("s_cbranch_scc1 L_mlp")

    vQ, vS, vTMP, vK = 32, 48, 112, 128
    vKA, vVA = 17, 17
    vM, vLs, vMO, vF, vOWA = 25, 26, 27, 28, 29
    vX = vS
    A("v_lshlrev_b32 v%d, 5, v0" % vT)
    A("v_lshrrev_b32 v%d, 1, v0" % (vT + 1)); A("v_lshlrev_b32 v%d, 13, v%d" % (vT + 1, vT + 1))
    A("v_and_b32 v%d, 1, v0" % (vT + 2)); A("v_lshl_add_u32 v%d, v%d, 4, v%d" % (vT + 1, vT + 2, vT + 1))
    A("s_lshl_b32 s%d, s%d, 11" % (sT2, sWAVE))
    A("s_lshl_b32 s%d, s%d, 20" % (sT0, sWAVE)); A("s_lshl_b32 s%d, s%d, 5" % (sT1, sRQ)); A("s_add_u32 s%d, s%d, s%d" % (sT0, sT0, sT1))
    A("s_lshl_b32 s%d, s%d, 13" % (sT1, sWAVE)); A("s_add_u32 s%d, s%d, %d" % (sT1, sT1, 12 * 8192))
    A("s_waitcnt lgkmcnt(0)")
    if ldst == 2: stamp(12)
    A("buffer_load_dwordx4 %s, v%d, %s, s%d offen" % (vr(vX, 4), vT, srd("X"), sT2))
    A("buffer_load_dwordx4 %s, v%d, %s, s%d offen offset:16" % (vr(vX + 4, 4), vT, srd("X"), sT2))
    nq0 = wqsplit if wqsplit else 4
    for a in range(nq0):
        A("s_add_u32 m0, s%d, %d" % (sT1, a * 1024))
        if 'q' in abl: A("buffer_load_dwordx4 v%d, %s, 0 offen lds" % (vL16, srd("X")))
        else: A("buffer_load_dwordx4 v%d, %s, s%d offen %s lds" % (vT + 1, srd("WQ"), sT0, polq))
        if a < 3: A("s_add_u32 s%d, s%d, 0x40000" % (sT0, sT0))
    if nq0 < 4: A("v_mov_b32 v31, v%d" % (vT + 1)); A("s_mov_b32 s12, s%d" % sT0)
    A("s_barrier")
    A("v_lshrrev_b32 v%d, 5, v0" % (vT + 3)); A("s_lshl_b32 s%d, s%d, 1" % (sT0, sWAVE)); A("v_add_u32 v%d, s%d, v%d" % (vT + 3, sT0, vT + 3))
    A("v_mul_u32_u24 v%d, %d, v%d" % (vT + 3, XN_STRIDE, vT + 3)); A("v_and_b32 v%d, 31, v0" % (vT + 4)); A("v_lshl_add_u32 v%d, v%d, 5, v%d" % (vT + 3, vT + 4, vT + 3))
    A("v_add_u32 v%d, v%d, v%d" % (vT + 3, vHI, vT + 3))
    A("v_and_b32 v%d, 7, v0" % (vT + 4)); A("v_mul_u32_u24 v%d, %d, v%d" % (vT + 4, XN_STRIDE, vT + 4)); A("v_lshl_add_u32 v%d, v%d, 4, v%d" % (vT + 4, vG4, vT + 4))
    A("s_lshl_b32 s%d, s%d, 8" % (sT0, sWAVE)); A("s_add_u32 s%d, s%d, %d" % (sT0, sT0, HI)); A("v_add_u32 v%d, s%d, v%d" % (vT + 4, sT0, vT + 4))
    A("v_lshlrev_b32 v%d, 8, v%d" % (vT + 5, vG4)); A("v_lshl_add_u32 v%d, v%d, 3, v%d" % (vT + 5, vN16, vT + 5)); A("v_add_u32 v%d, s%d, v%d" % (vT + 5, sT1, vT + 5))
    A("s_lshl_b32 s%d, s%d, 10" % (sT0, sWAVE)); A("s_add_u32 s%d, s%d, %d" % (sT0, sT0, HI)); A("v_add_u32 v%d, s%d, v%d" % (vT + 6, sT0, vL16))
    A("s_lshl_b32 s%d, s%d, 13" % (sT0, sWAVE)); A("v_lshlrev_b32 v%d, 8, v%d" % (vT, vN16)); A("v_add_u32 v%d, s%d, v%d" % (vT, sT0, vT))
    for m in range(4):
        A("v_add_u32 v%d, %d, v%d" % (vT + 1, 4 * m, vG4)); A("v_xor_b32 v%d, v%d, v%d" % (vT + 1, vT + 1, vN16))
        A("v_lshl_add_u32 v%d, v%d, 4, v%d" % (vKA + m, vT + 1, vT)); A("v_add_u32 v%d, 0x10000, v%d" % (vKA + 4 + m, vKA + m))
    A("s_lshl_b32 s%d, s%d, 2" % (sT0, sWAVE)); A("s_add_u32 s%d, s%d, %d" % (sT0, sT0, HI)); A("v_mov_b32 v%d, s%d" % (30, sT0))
    A("s_mov_b32 s%d, 0" % sFULL)
    A("s_waitcnt vmcnt(%d)" % nq0)
    for a in range(nq0, 4):
        A("s_add_u32 m0, s%d, %d" % (sT1, a * 1024))
        A("buffer_load_dwordx4 v31, %s, s12 offen %s lds" % (srd("WQ"), polq))
        if a < 3: A("s_add_u32 s12, s12, 0x40000")
    stamp(1)
    layernorm(vX, 8, vX + 8, vX + 24, vX + 40, 2)
    A("ds_write_b128 v%d, %s offset:%d" % (vT + 3, vr(vX, 4), L_XN)); A("ds_write_b128 v%d, %s offset:%d" % (vT + 3, vr(vX + 4, 4), L_XN + 16))
    lds_add(vHI, F_XN)
    A("s_waitcnt vmcnt(0)")
    for m in range(4):
        A("ds_read_b64_tr_b16 %s, v%d offset:%d" % (vr(vK + 4 * m, 2), vT + 5, m * 1024))
        A("ds_read_b64_tr_b16 %s, v%d offset:%d" % (vr(vK + 4 * m + 2, 2), vT + 5, m * 1024 + 128))
    lds_wait(F_XN, 4)
    for m in range(4): A("ds_read_b128 %s, v%d offset:%d" % (vr(vK + 16 + 4 * m, 4), vT + 4, L_XN + m * 64))
    for m in range(4):
        A("s_waitcnt lgkmcnt(%d)" % (3 - m))
        A("v_mfma_f32_16x16x32_bf16 %s, %s, %s, %s" % (vr(vTMP, 4), vr(vK + 4 * m, 4), vr(vK + 16 + 4 * m, 4), "0" if m == 0 else vr(vTMP, 4)))
    A("ds_write_b128 v%d, %s offset:%d" % (vT + 6, vr(vTMP, 4), L_QP))
    lds_add(vHI, F_QP)
    A("s_mov_b64 exec, 1"); A("ds_add_u32 v30, v%d offset:%d" % (vONE, F_FREED)); A("s_mov_b64 exec, -1")
    stamp(2)
    def wait_block(n4):
        A("s_add_u32 s%d, s%d, %d" % (sT0, sWAVE, 4 * n4 + 1))
        lds_wait(F_FULL, "s%d" % sT0, keep=sFULL)
    def read_k(j):
        base = vK + 32 * (j % 4)
        for t in range(2):
            for m in range(4):
                A("ds_read_b128 %s, v%d offset:%d" % (vr(base + 16 * t + 4 * m, 4), vKA + m + (4 if (j & 2) else 0), (j & 1) * 32768 + t * 4096))
    def qk_block(j):
        base = vK + 32 * (j % 4)
        for m in range(4):
            for t in range(2):
                acc = vr(vS + 8 * j + 4 * t, 4)
                A("v_mfma_f32_16x16x32_bf16 %s, %s, %s, %s" % (acc, vr(base + 16 * t + 4 * m, 4), vr(vQ + 4 * m, 4), "0" if m == 0 else acc))
    def round_block(j):
        for p in range(4):
            a, b, t = vS + 8 * j + 2 * p, vS + 8 * j + 2 * p + 1, vT + (p & 1)
            if mimic:
                A("v_cvt_pk_bf16_f32 v%d, v%d, v%d" % (t, a, b)); unpack(a, b, t)
            A("v_mul_f32 v%d, s%d, v%d" % (a, sSCALE, a)); A("v_mul_f32 v%d, s%d, v%d" % (b, sSCALE, b))
            if mimic:
                A("v_cvt_pk_bf16_f32 v%d, v%d, v%d" % (t, a, b)); unpack(a, b, t)
            if j == 0 and p == 0: A("v_max_f32 v%d, v%d, v%d" % (vM, a, b))
            else: A("v_max3_f32 v%d, v%d, v%d, v%d" % (vM, a, b, vM))
    for j in range(4):
        wait_block(j); read_k(j); lds_add(30, F_FREED)
    stamp(3)
    lds_wait(F_QR, 1)
    stamp(4)
    A("v_lshlrev_b32 v%d, 8, v%d" % (vT, vC4)); A("v_lshl_add_u32 v%d, v%d, 4, v%d" % (vT, vG4, vT)); A("v_add_u32 v%d, v%d, v%d" % (vT, vHI, vT))
    for m in range(4): A("ds_read_b128 %s, v%d offset:%d" % (vr(vQ + 4 * m, 4), vT, L_QB + m * 64))
    A("s_waitcnt lgkmcnt(0)")
    for j in range(4):
        qk_block(j)
        wait_block(4 + j); A("s_nop 3"); read_k(4 + j)
        if j >= 1: round_block(j - 1)
        lds_add(30, F_FREED)
    for j in range(4, 8):
        qk_block(j); round_block(j - 1)
    A("v_lshl_add_u32 v%d, v%d, 2, v%d" % (vT + 2, vG4, vC4))
    A("v_and_b32 v%d, 7, v%d" % (vT + 3, vT + 2)); A("v_lshlrev_b32 v%d, 1, v%d" % (vT + 3, vT + 3))
    A("v_lshrrev_b32 v%d, 1, v%d" % (vT + 4, vR4)); A("v_xor_b32 v%d, v%d, v%d" % (vT + 3, vT + 3, vT + 4))
    A("v_lshlrev_b32 v%d, 8, v%d" % (vT + 2, vT + 2)); A("v_lshl_add_u32 v%d, v%d, 4, v%d" % (vT + 2, vT + 3, vT + 2))
    A("v_and_b32 v%d, 1, v0" % (vT + 4)); A("v_lshl_add_u32 v%d, v%d, 3, v%d" % (vT + 2, vT + 4, vT + 2))
    A("s_lshl_b32 s%d, s%d, 13" % (sT0, sWAVE)); A("v_add_u32 v%d, s%d, v%d" % (vVA, sT0, vT + 2))
    for d in range(1, 8): A("v_xor_b32 v%d, %d, v%d" % (vVA + d, 32 * d, vVA))
    round_block(7)
    swap_red(vM, vT, "v_max_f32", 32); swap_red(vM, vT, "v_max_f32", 16)
    A("v_mul_f32 v%d, s%d, v%d" % (vM, sL2E, vM))
    A("v_lshlrev_b32 v%d, 4, v%d" % (vT + 1, vG4)); A("ds_bpermute_b32 v%d, v%d, v%d" % (vMO, vT + 1, vM))
    vP = vK
    for j in range(32):
        a, b = vS + 2 * j, vS + 2 * j + 1
        A("v_fma_f32 v%d, v%d, s%d, -v%d" % (a, a, sL2E, vM)); A("v_fma_f32 v%d, v%d, s%d, -v%d" % (b, b, sL2E, vM))
        A("v_exp_f32 v%d, v%d" % (a, a)); A("v_exp_f32 v%d, v%d" % (b, b))
        if j >= 1:
            pa, pb = a - 2, b - 2
            if j == 1: A("v_add_f32 v%d, v%d, v%d" % (vLs, pa, pb))
            else: A("v_add_f32 v%d, v%d, v%d" % (vLs, vLs, pa)); A("v_add_f32 v%d, v%d, v%d" % (vLs, vLs, pb))
            A("v_cvt_pk_bf16_f32 v%d, v%d, v%d" % (vP + j - 1, pa, pb))
    A("v_add_f32 v%d, v%d, v%d" % (vLs, vLs, vS + 62)); A("v_add_f32 v%d, v%d, v%d" % (vLs, vLs, vS + 63))
    A("v_cvt_pk_bf16_f32 v%d, v%d, v%d" % (vP + 31, vS + 62, vS + 63))
    swap_red(vLs, vT, "v_add_f32", 32); swap_red(vLs, vT, "v_add_f32", 16)
    A("s_lshl_b32 s%d, s%d, 5" % (sT0, sWAVE)); A("s_add_u32 s%d, s%d, %d" % (sT0, sT0, HI)); A("v_lshlrev_b32 v%d, 3, v%d" % (vT, vC4)); A("v_add_u32 v%d, s%d, v%d" % (vT, sT0, vT))
    A("v_mov_b32 v%d, v%d" % (vT + 2, vM)); A("v_mov_b32 v%d, v%d" % (vT + 3, vLs))
    A("s_mov_b64 exec, 0x1111"); A("ds_write_b64 v%d, %s offset:%d" % (vT, vr(vT + 2, 2), L_ST)); A("s_mov_b64 exec, -1")
    lds_add(vHI, F_ST)
    stamp(5)
    A("s_lshl_b32 s%d, s%d, 11" % (sT0, sWAVE)); A("s_add_u32 s%d, s%d, %d" % (sT0, sT0, HI + L_OW))
    A("v_lshlrev_b32 v%d, 9, v%d" % (vOWA, vG4)); A("v_lshl_add_u32 v%d, v%d, 2, v%d" % (vOWA, vN16, vOWA)); A("v_add_u32 v%d, s%d, v%d" % (vOWA, sT0, vOWA))
    vVB = vK + 32
    def read_v(j):
        base = vVB + 32 * (j & 1)
        for d in range(8):
            for t in range(2):
                A("ds_read_b64_tr_b16 %s, v%d offset:%d" % (vr(base + 4 * d + 2 * t, 2), vVA + d, (j & 1) * 32768 + t * 4096))
    def pv(j, d):
        base = vVB + 32 * (j & 1)
        acc = vr(vS + 4 * d, 4)
        A("v_mfma_f32_16x16x32_bf16 %s, %s, %s, %s" % (acc, vr(vP + 4 * j, 4), vr(base + 4 * d, 4), "0" if j == 0 else acc))
    vS2, vF2 = vS + 32, 31
    def factor(dst, m):
        lds_wait(F_GR, 1)
        A("v_lshl_add_u32 v%d, v%d, 3, v%d" % (vT, vG4, vHI)); A("ds_read_b64 %s, v%d offset:%d" % (vr(vT + 2, 2), vT, L_GS)); A("s_waitcnt lgkmcnt(0)")
        A("v_sub_f32 v%d, v%d, v%d" % (dst, m, vT + 2)); A("v_exp_f32 v%d, v%d" % (dst, dst)); A("v_mul_f32 v%d, v%d, v%d" % (dst, dst, vT + 3))
    def wait_pos(j, out):
        ok = A.label("pok"); again = A.label("pagain"); chk = A.label("pchk")
        A("s_add_u32 s%d, s%d, %d" % (sT0, sWAVE, 32 + 4 * j + 1))
        A("s_mov_b32 s%d, 0" % sSPIN)
        A("s_branch " + chk)
        A(again + ":")
        A("ds_read_b64 %s, v%d offset:%d" % (vr(vT + 2, 2), vHI, F_FULL)); A("s_waitcnt lgkmcnt(0)")
        A("v_readfirstlane_b32 s%d, v%d" % (sFULL, vT + 2)); A("v_readfirstlane_b32 s%d, v%d" % (sPLAN, vT + 3))
        A(chk + ":")
        A("s_cmp_ge_u32 s%d, s%d" % (sFULL, sT0)); A("s_cbranch_scc1 " + ok)
        A("s_sub_u32 s%d, s%d, 0x100" % (sT1, sPLAN)); A("s_cmp_le_u32 s%d, %d" % (sT1, j)); A("s_cbranch_scc1 " + out)
        A("s_add_u32 s%d, s%d, 1" % (sSPIN, sSPIN)); A("s_cmp_lt_u32 s%d, %d" % (sSPIN, lspin)); A("s_cbranch_scc1 " + again)
        A("s_branch " + out)
        A(ok + ":")
    if steal:
        lds_wait(F_AM, 1)
        A("v_lshrrev_b32 v%d, 2, v0" % vT); A("v_lshlrev_b32 v%d, 4, v%d" % (vT, vT))
        A("s_lshl_b32 s%d, s%d, 12" % (sT0, sR)); A("s_lshl_b32 s%d, s%d, 10" % (sT1, sWAVE)); A("s_add_u32 s%d, s%d, s%d" % (sT0, sT0, sT1)); A("s_add_u32 s%d, s%d, 0x%x" % (sT0, sT0, WS_PR))
        A("s_mov_b32 exec_lo, 0x11111111"); A("s_mov_b32 exec_hi, 0x11111111")
        for u in range(3): A("buffer_store_dwordx4 %s, v%d, %s, s%d offen offset:%d sc1" % (vr(vP + 4 * (5 + u), 4), vT, srd("WS"), sT0, 256 * u))
        A("s_mov_b64 exec, 0x1111")
        A("buffer_store_dword v%d, v0, %s, s%d offen offset:768 sc1" % (vM, srd("WS"), sT0))
        A("s_mov_b64 exec, -1")
        A("s_mov_b32 s%d, 0" % sPLAN)
    for j in range(11 if steal else 8):
        if j == 7:
            factor(vF, vMO)
            stamp(6)
        if j < NOWN: wait_block(8 + j)
        else: wait_pos(j, "L_vout%d" % j)
        if j == 7: stamp(7)
        if j >= 8:
            if j == 8:
                A("v_lshrrev_b32 v%d, 2, v0" % (vT + 4)); A("v_lshlrev_b32 v%d, 4, v%d" % (vT + 4, vT + 4))
                A("s_lshl_b32 s%d, s%d, 10" % (sT1, sWAVE)); A("s_add_u32 s%d, s%d, %d" % (sT1, sT1, HI + L_PP)); A("v_add_u32 v%d, s%d, v%d" % (vT + 4, sT1, vT + 4))
                A("v_lshl_add_u32 v%d, v%d, 2, s%d" % (vT + 5, vG4, sT1))
                for u in range(3): A("ds_read_b128 %s, v%d offset:%d" % (vr(vP + 4 * u, 4), vT + 4, 256 * (2 - u)))
                A("ds_read_b32 v%d, v%d offset:768" % (vF2, vT + 5)); A("s_waitcnt lgkmcnt(0)")
                factor(vF2, vF2)
        read_v(j)
        if j % 4 == 1:
            for d in range(8): A("v_add_u32 v%d, 0x10000, v%d" % (vVA + d, vVA + d))
        if j % 4 == 3 and (steal or j < 7):
            for d in range(8): A("v_subrev_u32 v%d, 0x10000, v%d" % (vVA + d, vVA + d))
        for d in range(8):
            A("s_waitcnt lgkmcnt(%d)" % (14 - 2 * d))
            if d == 7 and j < (7 if steal else 4):
                A("s_mov_b64 exec, 1"); A("ds_add_u32 v30, v%d offset:%d" % (vONE, F_FREED)); A("s_mov_b64 exec, -1")
            if j < 8: pv(j, d)
            else:
                acc = vr(vS2 + 4 * d, 4)
                A("v_mfma_f32_16x16x32_bf16 %s, %s, %s, %s" % (acc, vr(vP + 4 * (j - 8), 4), vr(vVB + 32 * (j & 1) + 4 * d, 4), "0" if j == 8 else acc))
    if steal:
        A("L_vout9:"); A("L_vout10:")
        A("s_nop 7")
        for d in range(8): A("v_mul_f32 v%d, v%d, v%d" % (vTMP + d, vF, vS + 4 * d))
        for d in range(8): A("v_fmac_f32 v%d, v%d, v%d" % (vTMP + d, vF2, vS2 + 4 * d))
        A("s_branch L_vsum")
        A("L_vout5:"); A("L_vout6:")
        factor(vF, vMO)
        A("L_vout7:"); A("L_vout8:")
        A("s_nop 7")
    for d in range(8): A("v_mul_f32 v%d, v%d, v%d" % (vTMP + d, vF, vS + 4 * d))
    if steal: A("L_vsum:")
    for d in range(0, 8, 2): A("ds_write2_b32 v%d, v%d, v%d offset0:%d offset1:%d" % (vOWA, vTMP + d, vTMP + d + 1, 16 * d, 16 * d + 16))
    vWOA, vOIR, vWO = 17, 18, vK
    A("v_lshlrev_b32 v%d, 7, v%d" % (vWOA, vC4)); A("v_lshl_add_u32 v%d, v%d, 10, v%d" % (vWOA, vG4, vWOA)); A("v_lshl_add_u32 v%d, v%d, 3, v%d" % (vWOA, vR4, vWOA))
    A("s_lshl_b32 s%d, s%d, 5" % (sT0, sWAVE)); A("s_add_u32 s%d, s%d, %d" % (sT0, sT0, HI + L_WO)); A("v_add_u32 v%d, s%d, v%d" % (vWOA, sT0, vWOA))
    A("s_waitcnt lgkmcnt(0)")
    A("s_barrier")
    stamp(8)
    def wo_reads():
        if wolate: lds_wait(F_WO, 1, sl=0)
        for m in range(4):
            A("ds_read_b64_tr_b16 %s, v%d offset:%d" % (vr(vWO + 4 * m, 2), vWOA, m * 4096))
            A("ds_read_b64_tr_b16 %s, v%d offset:%d" % (vr(vWO + 4 * m + 2, 2), vWOA, m * 4096 + 512))
    def oir_addr():
        A("v_lshrrev_b32 v%d, 1, v%d" % (vT, vN16)); A("v_lshlrev_b32 v%d, 10, v%d" % (vT, vT)); A("v_and_b32 v%d, 1, v0" % (vT + 1)); A("v_lshl_add_u32 v%d, v%d, 8, v%d" % (vT, vT + 1, vT))
        for m in range(4):
            A("v_add_u32 v%d, %d, v%d" % (vT + 1, 4 * m, vG4)); A("v_xor_b32 v%d, v%d, v%d" % (vT + 1, vT + 1, vN16))
            A("v_lshl_add_u32 v%d, v%d, 4, v%d" % (vOIR + m, vT + 1, vT))
        A("v_lshrrev_b32 v%d, 1, v%d" % (22, vN16)); A("v_lshlrev_b32 v22, %d, v22" % (16 + spad)); A("v_lshl_add_u32 v22, v%d, 4, v22" % vG4)
    A("s_cmp_gt_u32 s%d, 1" % sWAVE); A("s_cbranch_scc1 L_gather23")
    A("s_lshl_b32 s%d, s%d, 10" % (sT0, sWAVE)); A("s_add_u32 s%d, s%d, %d" % (sT0, sT0, HI + L_OW)); A("v_add_u32 v%d, s%d, v%d" % (vT, sT0, vL16))
    for w in range(4): A("ds_read_b128 %s, v%d offset:%d" % (vr(vS + 4 * w, 4), vT, w * 2048))
    A("v_lshrrev_b32 v%d, 5, v0" % (vT + 1)); A("v_lshlrev_b32 v%d, 13, v%d" % (vT + 1, vT + 1)); A("v_and_b32 v%d, 31, v0" % (vT + 2)); A("v_lshl_add_u32 v%d, v%d, 3, v%d" % (vT + 1, vT + 2, vT + 1))
    A("s_lshl_b32 s%d, s%d, 14" % (sT0, sWAVE)); A("s_add_u32 s%d, s%d, s%d" % (sT0, sT0, sOPOFF))
    A("s_waitcnt lgkmcnt(2)")
    for i in range(4): A("v_add_f32 v%d, v%d, v%d" % (vS + i, vS + i, vS + 4 + i))
    A("s_waitcnt lgkmcnt(0)")
    for i in range(4): A("v_add_f32 v%d, v%d, v%d" % (vS + 8 + i, vS + 8 + i, vS + 12 + i))
    for i in range(4): A("v_add_f32 v%d, v%d, v%d" % (vS + i, vS + i, vS + 8 + i))
    A("v_cvt_pk_bf16_f32 v%d, v%d, v%d" % (vTMP, vS, vS + 1)); A("v_cvt_pk_bf16_f32 v%d, v%d, v%d" % (vTMP + 1, vS + 2, vS + 3))
    A("buffer_store_dwordx2 %s, v%d, %s, s%d offen %s" % (vr(vTMP, 2), vT + 1, srd("WS"), sT0, ts))
    stamp(11)
    wo_reads(); oir_addr()
    A("s_branch L_barE_c")
    def gather(idx_sgpr, extra):
        vGa = 40
        A("s_lshr_b32 s%d, s%d, 3" % (sT1, sR)); A("s_lshl_b32 s%d, s%d, 13" % (sT1, sT1)); A("s_lshl_b32 s%d, s%d, 11" % (sT0, idx_sgpr))
        A("s_add_u32 s%d, s%d, s%d" % (sT1, sT1, sT0)); A("s_add_u32 s%d, s%d, 0x%x" % (sT1, sT1, WS_OP))
        lds_ = [(lambda: A("buffer_load_dwordx4 %s, v%d, %s, s%d offen %s" % (vr(vGa, 4), vL16, srd("WS"), sT1, tl)), list(range(vGa, vGa + 4))),
                (lambda: A("buffer_load_dwordx4 %s, v%d, %s, s%d offen offset:1024 %s" % (vr(vGa + 4, 4), vL16, srd("WS"), sT1, tl)), list(range(vGa + 4, vGa + 8)))]
        if td1: A("s_sleep %d" % td1)
        if at1:
            A("v_lshlrev_b32 v%d, 3, v0" % (vT + 7))
            apoll(vGa, vT + 7, sT1, 0, 0, first="only")
            extra()
            A("v_lshrrev_b32 v%d, 5, v0" % (vT + 2)); A("s_lshl_b32 s%d, s%d, 2" % (sT2, idx_sgpr)); A("v_add_u32 v%d, s%d, v%d" % (vT + 3, sT2, vT + 2))
            A("v_bfe_u32 v%d, v0, 1, 4" % (vT + 4)); A("v_xor_b32 v%d, v%d, v%d" % (vT + 3, vT + 3, vT + 4))
            A("v_lshlrev_b32 v%d, 8, v%d" % (vT + 2, vT + 2)); A("v_add_u32 v%d, s%d, v%d" % (vT + 2, sT0, vT + 2))
            A("v_and_b32 v%d, 1, v0" % (vT + 4)); A("v_lshl_add_u32 v%d, v%d, 3, v%d" % (vT + 2, vT + 4, vT + 2))
            A("v_lshl_add_u32 v%d, v%d, 4, v%d" % (vT + 5, vT + 3, vT + 2)); A("v_xor_b32 v%d, 32, v%d" % (vT + 6, vT + 5))
            apoll(vGa, vT + 7, sT1, 24, tsleep, first=False)
            stamp(11)
            for k in range(4): A("ds_write_b64 v%d, %s offset:%d" % (vT + 5 + (k >> 1), vr(vGa + 2 * k, 2), 512 * k))
            return
        for i_, _ in lds_: i_()
        A("v_and_b32 v%d, 1, v%d" % (vT + 2, vG4)); A("s_lshl_b32 s%d, s%d, 2" % (sT2, idx_sgpr)); A("v_add_u32 v%d, s%d, v%d" % (vT + 2, sT2, vT + 2))
        A("v_xor_b32 v%d, v%d, v%d" % (vT + 3, vT + 2, vN16)); A("v_xor_b32 v%d, 2, v%d" % (vT + 4, vT + 3))
        A("v_lshlrev_b32 v%d, 8, v%d" % (vT + 2, vG4)); A("v_add_u32 v%d, s%d, v%d" % (vT + 2, sT0, vT + 2))
        A("v_lshl_add_u32 v%d, v%d, 4, v%d" % (vT + 5, vT + 3, vT + 2)); A("v_lshl_add_u32 v%d, v%d, 4, v%d" % (vT + 6, vT + 4, vT + 2))
        extra()
        gpoll(lds_, first=False, sleep=tsleep, P=P1)
        stamp(11)
        A("ds_write_b128 v%d, %s" % (vT + 5, vr(vGa, 4))); A("ds_write_b128 v%d, %s offset:1024" % (vT + 6, vr(vGa + 4, 4)))
    A("L_gather23:")
    A("s_sub_u32 s%d, s%d, 2" % (sMU, sWAVE))
    gather(sMU, lambda: (wo_reads(), oir_addr()))
    A("L_barE_c:")
    A("s_waitcnt lgkmcnt(0)")
    A("s_barrier")
    stamp(9)
    for u in range(2):
        for m in range(4): A("ds_read_b128 %s, v%d offset:%d" % (vr(vS + 16 * u + 4 * m, 4), vOIR + m, u * 512))
    A("s_lshl_b32 s%d, s%d, %d" % (sT0, sWAVE, 11 + spad)); A("s_add_u32 s%d, s%d, s%d" % (sT0, sT0, sSPOFF))
    for u in range(2):
        for m in range(4):
            A("s_waitcnt lgkmcnt(%d)" % (7 - 4 * u - m))
            acc = vr(vTMP + 4 * u, 4)
            A("v_mfma_f32_16x16x32_bf16 %s, %s, %s, %s" % (acc, vr(vWO + 4 * m, 4), vr(vS + 16 * u + 4 * m, 4), "0" if m == 0 else acc))
    for i in range(4): A("v_add_f32 v%d, v%d, v%d" % (vTMP + i, vTMP + i, vTMP + 4 + i))
    for i in range(4): dpp("v_add_f32", vTMP + i, "quad_perm:[1,0,3,2]")
    A("s_mov_b32 exec_lo, 0x55555555"); A("s_mov_b32 exec_hi, 0x55555555")
    stamp(10)
    A("buffer_store_dwordx4 %s, v22, %s, s%d offen %s" % (vr(vTMP, 4), srd("WS"), sT0, ts))
    A("s_mov_b64 exec, -1")
    A("s_branch L_done")

    A("L_loader:")
    if ldprio: A("s_setprio %d" % ldprio)
    vO = 17
    A("v_lshlrev_b32 v%d, 8, v%d" % (vT, vG4))
    for i in range(4):
        A("v_add_u32 v%d, %d, v%d" % (vT + 1, 4 * i, vG4)); A("v_xor_b32 v%d, v%d, v%d" % (vT + 1, vT + 1, vN16)); A("v_lshl_add_u32 v%d, v%d, 4, v%d" % (vO + i, vT + 1, vT))
    for i in range(2):
        A("v_add_u32 v%d, %d, v%d" % (vT + 1, 4 * i, vG4)); A("v_lshlrev_b32 v%d, 1, v%d" % (vT + 1, vT + 1))
        A("v_xor_b32 v%d, v%d, v%d" % (vT + 1, vT + 1, vN16)); A("v_lshl_add_u32 v%d, v%d, 4, v%d" % (vO + 4 + i, vT + 1, vT))
    sG, sSLOT, sFR, sN = 12, 13, 88, 92
    A("s_bfe_u32 s%d, s%d, 0x30002" % (sBASE, sR)); A("s_lshl_b32 s%d, s%d, 23" % (sBASE, sBASE)); A("s_lshr_b32 s%d, s%d, 5" % (sT0, sR)); A("s_lshl_b32 s%d, s%d, 20" % (sT0, sT0))
    A("s_add_u32 s%d, s%d, s%d" % (sBASE, sBASE, sT0)); A("s_and_b32 s%d, s%d, 3" % (sT0, sR)); A("s_lshl_b32 s%d, s%d, 18" % (sT0, sT0)); A("s_add_u32 s%d, s%d, s%d" % (sBASE, sBASE, sT0))
    if rot:
        A("s_mov_b32 s94, s%d" % sBASE)
        A("s_mul_i32 s%d, s%d, %d" % (sT0, sR, rot)); A("s_lshr_b32 s%d, s%d, 5" % (sT1, sR)); A("s_add_u32 s%d, s%d, s%d" % (sT0, sT0, sT1))
        A("s_and_b32 s%d, s%d, 31" % (sT0, sT0)); A("s_lshl_b32 s%d, s%d, 13" % (sT0, sT0)); A("s_add_u32 s%d, s%d, s%d" % (sBASE, sBASE, sT0))
    if Fhi:
        A("s_and_b32 s%d, s2, 7" % sT0); A("s_lshr_b32 s%d, %d, s%d" % (sT0, himask, sT0)); A("s_and_b32 s%d, s%d, 1" % (sT0, sT0)); A("s_cselect_b32 s95, %d, %d" % (Fhi, F))
    A("s_mov_b32 s94, 0"); A("s_mov_b32 s93, 0"); A("s_mov_b32 s%d, s%d" % (sOFF, sBASE)); A("s_mov_b32 s%d, 0" % sG); A("s_mov_b32 s%d, 0" % sSLOT); A("s_mov_b32 s%d, 0" % sN)
    A("s_waitcnt lgkmcnt(0)")
    def publish_full(sgpr):
        A("v_mov_b32 v%d, s%d" % (vT, sgpr)); A("s_mov_b64 exec, 1"); A("ds_max_u32 v%d, v%d offset:%d" % (vHI, vT, F_FULL)); A("s_mov_b64 exec, -1")
    def dma_block(isk):
        Dm = D if isk else DV
        for half in range(2):
            A("s_mov_b32 m0, s%d" % sSLOT)
            if Dm: A("s_waitcnt vmcnt(%d)" % Dm)
            for i in range(4):
                A("buffer_load_dwordx4 v%d, %s, s%d offen offset:%d %s lds" % (vO + i if isk else vO + 4 + (i & 1), srd("K" if isk else "V"), sOFF, i * 1024, pol))
            A("s_add_u32 s%d, s%d, 4096" % (sOFF, sOFF)); A("s_add_u32 s%d, s%d, 4096" % (sSLOT, sSLOT))
            if Dm and (4 * half - Dm) % 8 < 4:
                A("s_add_i32 s%d, s%d, %d" % (sT0, sN, (4 * half - Dm) // 8)); A("s_max_i32 s%d, s%d, 0" % (sT0, sT0)); publish_full(sT0)
        if rot:
            A("s_and_b32 s%d, s%d, 0x3ffff" % (sOFF, sOFF)); A("s_or_b32 s%d, s%d, s94" % (sOFF, sOFF))
        A("s_and_b32 s%d, s%d, 0x1ffff" % (sSLOT, sSLOT)); A("s_add_u32 s%d, s%d, 1" % (sN, sN))
    if ldst == 2: stamp(1)
    for _ in range(pre): dma_block(True)
    A("s_barrier")
    if ldst == 2: stamp(2)
    for _ in range(4 - pre): dma_block(True)
    A("s_mov_b32 s%d, 1" % sG)
    if ldst == 2: stamp(3)
    def read_freed():
        A("ds_read_b128 %s, v%d offset:%d" % (vr(vT + 4, 4), vHI, F_FREED)); A("s_waitcnt lgkmcnt(0)")
        for c in range(4): A("v_readfirstlane_b32 s%d, v%d" % (sFR + c, vT + 4 + c))
    for isk, last in ((True, 8), (False, 19 if steal else 16)):
        loop = "L_ld_k" if isk else "L_ld_v"
        if not isk: A("s_mov_b32 s%d, s%d" % (sOFF, sBASE))
        A(loop + ":")
        for g_, reg in ((p_a, 16), (p_b, 18)):
            if g_ > 0 and g_ < 16 and (g_ < 8) == isk:
                sk = A.label("st"); A("s_cmp_lg_u32 s%d, %d" % (sG, g_)); A("s_cbranch_scc1 " + sk); A("s_memrealtime s[%d:%d]" % (reg, reg + 1)); A(sk + ":")
        if ldst == 1:
            for k, g in enumerate((2, 3, 4, 5, 6, 7) if isk else (8, 10, 12, 14)):
                sk = A.label("st"); A("s_cmp_lg_u32 s%d, %d" % (sG, g)); A("s_cbranch_scc1 " + sk); stamp(k + 1 if isk else k + 7); A(sk + ":")
        if steal and not isk:
            go = A.label("pgo"); again = A.label("pagain")
            A("s_cmp_lt_u32 s%d, %d" % (sG, 8 + NOWN)); A("s_cbranch_scc1 " + go)
            A("s_mov_b32 s%d, 0" % sSPIN); A("s_sub_u32 s%d, s%d, 8" % (sT1, sG))
            if ldst: A("s_memrealtime s[14:15]")
            A(again + ":")
            A("ds_read_b32 v%d, v%d offset:%d" % (vPOLL, vHI, F_PLAN)); A("s_waitcnt lgkmcnt(0)"); A("v_readfirstlane_b32 s%d, v%d" % (sT0, vPOLL))
            A("s_and_b32 s%d, s%d, 0xff" % (sT2, sT0)); A("s_cmp_gt_u32 s%d, s%d" % (sT2, sT1)); A("s_cbranch_scc1 L_granted")
            A("s_cmp_ge_u32 s%d, 0x100" % sT0); A("s_cbranch_scc1 L_ld_end")
            for k in range(F - 1, -1, -1):
                A("s_cmp_eq_u32 s%d, %d" % (sSPIN, F - 1 - k)); nx = A.label("nx"); A("s_cbranch_scc0 " + nx)
                A("s_sub_u32 s%d, s%d, %d" % (sT0, sN, k)); A("s_waitcnt vmcnt(%d)" % (8 * k)); publish_full(sT0); A(nx + ":")
            if ldst: A("s_add_u32 s93, s93, 1")
            A("s_add_u32 s%d, s%d, 1" % (sSPIN, sSPIN)); A("s_cmp_lt_u32 s%d, %d" % (sSPIN, lspin)); A("s_cbranch_scc1 " + again)
            A("s_branch L_ld_end")
            A("L_granted:")
            if ldst:
                A("s_memrealtime s[36:37]"); A("s_waitcnt lgkmcnt(0)"); A("s_sub_u32 s36, s36, s14"); A("s_add_u32 s94, s94, s36")
            A("s_cmp_lt_u32 s%d, 16" % sG); A("s_cbranch_scc1 " + go)
            A("s_sub_u32 s%d, 23, s%d" % (sT0, sG)); A("s_lshl_b32 s%d, s%d, 15" % (sT0, sT0)); A("s_xor_b32 s%d, s%d, 0x80000" % (sOFF, sBASE)); A("s_add_u32 s%d, s%d, s%d" % (sOFF, sOFF, sT0))
            A(go + ":")
        read_freed()
        A("s_sub_i32 s%d, s%d, 2" % (sT1, sG))
        if Fhi and hiend < 16:
            A("s_cmp_ge_u32 s%d, %d" % (sG, hiend)); A("s_cselect_b32 s95, %d, s95" % F)
        for c in range(4):
            go = A.label("go"); sl = A.label("slow")
            A("s_cmp_ge_i32 s%d, s%d" % (sFR + c, sT1)); A("s_cbranch_scc1 " + go)
            A("s_waitcnt vmcnt(0)"); publish_full(sN)
            if ldst: A("s_add_u32 s93, s93, 100")
            A("s_mov_b32 s%d, 0" % sSPIN)
            A(sl + ":")
            read_freed()
            A("s_cmp_ge_i32 s%d, s%d" % (sFR + c, sT1)); A("s_cbranch_scc1 " + go)
            A("s_add_u32 s%d, s%d, 1" % (sSPIN, sSPIN)); A("s_cmp_lt_u32 s%d, %d" % (sSPIN, lspin)); A("s_cbranch_scc1 " + sl)
            A(go + ":")
            dma_block(isk)
            if D: pass
            elif bal == 1:
                hi = A.label("hi")
                A("ds_read_b32 v%d, v%d offset:%d" % (vPOLL, vHI, F_MODE))
                A("s_sub_i32 s%d, s%d, %d" % (sT0, sN, F))
                A("s_waitcnt vmcnt(%d) lgkmcnt(0)" % (8 * F)); A("v_readfirstlane_b32 s%d, v%d" % (sT2, vPOLL))
                A("s_cmp_eq_u32 s%d, 0" % sT2); A("s_cbranch_scc1 " + hi)
                publish_full(sT0)
                if ldst: A("s_add_u32 s94, s94, 100")
                A("s_sub_i32 s%d, s%d, %d" % (sT0, sN, (Flo + 7) // 8 if Flo > 7 else Flo))
                A("s_waitcnt vmcnt(%d)" % (Flo if Flo > 7 else 8 * Flo)); A(hi + ":"); publish_full(sT0)
            elif Fhi:
                hi = A.label("hi")
                A("s_sub_i32 s%d, s%d, s95" % (sT0, sN)); A("s_max_i32 s%d, s%d, 0" % (sT0, sT0))
                A("s_waitcnt vmcnt(%d)" % (8 * Fhi)); A("s_cmp_eq_u32 s95, %d" % Fhi); A("s_cbranch_scc1 " + hi)
                A("s_waitcnt vmcnt(%d)" % (8 * F)); A(hi + ":"); publish_full(sT0)
            else:
                A("s_sub_i32 s%d, s%d, %d" % (sT0, sN, F))
                if F > 5: A("s_max_i32 s%d, s%d, 0" % (sT0, sT0))
                A("s_waitcnt vmcnt(%d)" % (8 * F)); publish_full(sT0)
        if stamps:
            pass
        A("s_add_u32 s%d, s%d, 1" % (sG, sG)); A("s_cmp_lt_u32 s%d, %d" % (sG, last)); A("s_cbranch_scc1 " + loop)
        if not ldst: stamp(1 if isk else 2)
    def wo_dma():
        A("v_lshrrev_b32 v%d, 3, v0" % (vT + 4)); A("v_lshlrev_b32 v%d, 10, v%d" % (vT + 4, vT + 4)); A("v_and_b32 v%d, 7, v0" % (vT + 5)); A("v_lshl_add_u32 v%d, v%d, 4, v%d" % (vT + 4, vT + 5, vT + 4))
        A("s_lshr_b32 s%d, s%d, 3" % (sT0, sR)); A("s_lshl_b32 s%d, s%d, 17" % (sT0, sT0)); A("s_and_b32 s%d, s%d, 7" % (sT1, sR)); A("s_lshl_b32 s%d, s%d, 7" % (sT1, sT1))
        A("s_add_u32 s%d, s%d, s%d" % (sT0, sT0, sT1))
        for a in range(16):
            A("s_mov_b32 m0, %d" % (HI + L_WO + a * 1024))
            A("buffer_load_dwordx4 v%d, %s, s%d offen %s lds" % (vT + 4, srd("WO"), sT0, polo))
            if a < 15: A("s_add_u32 s%d, s%d, 0x2000" % (sT0, sT0))
    if steal:
        A("L_ld_end:")
        A("s_mov_b64 exec, 1"); A("ds_write_b32 v%d, v%d offset:%d" % (vHI, vONE, F_LI)); A("s_mov_b64 exec, -1")
    if wolate == 1: wo_dma()
    for k in range((DV + 4 + 7) // 8 - 1 if D else max(F, Fhi) - 1, -1, -1):
        A("s_sub_u32 s%d, s%d, %d" % (sT0, sN, k)); A("s_waitcnt vmcnt(%d)" % (8 * k + (16 if wolate == 1 else 0))); publish_full(sT0)
    if wolate == 1:
        if ldst: stamp(11)
        A("s_waitcnt vmcnt(0)"); A("s_mov_b64 exec, 1"); A("ds_write_b32 v%d, v%d offset:%d" % (vHI, vONE, F_WO)); A("s_mov_b64 exec, -1")
    if ldst:
        if wolate == 1: stamp(12)
        else:
            stamp(11)
            A("s_waitcnt lgkmcnt(0)"); A("s_mul_i32 s%d, s%d, 25" % (sT0, sN)); A("s_add_u32 s40, s16, s%d" % sT0); A("s_addc_u32 s41, s17, 0")
            if steal: A("s_add_u32 s36, s16, s94"); A("s_addc_u32 s37, s17, 0")
            if bal: A("s_add_u32 s40, s16, s94"); A("s_addc_u32 s41, s17, 0")
    else: stamp(3)
    if p_b >= 0 and piv:
        if p_b == 16: A("s_memrealtime s[18:19]")
        A("s_waitcnt lgkmcnt(0)"); A("s_sub_u32 s18, s18, s16")
    elif p_b >= 0:
        if p_b == 16: A("s_memrealtime s[18:19]")
        A("s_waitcnt lgkmcnt(0)"); A("s_sub_u32 s18, s18, s16"); A("v_mov_b32 v8, s18"); A("s_mov_b64 exec, 1"); A("buffer_atomic_add v8, off, %s, 0 offset:4" % srd("DBG")); A("s_mov_b64 exec, -1")
    if pmap:
        if not piv: A("s_memrealtime s[18:19]")
        A("s_lshl_b32 s6, s%d, 2" % sR); A("s_add_u32 s6, s6, 0x300000")
        A("s_waitcnt lgkmcnt(0)")
        if pst: A("s_add_u32 s18, s16, 500")
        A("v_mov_b32 v8, s18"); A("s_mov_b64 exec, 1"); A("buffer_store_dword v8, off, %s, s6 sc1" % srd("WS")); A("s_mov_b64 exec, -1")
    if pspan:
        A("s_memrealtime s[18:19]"); A("s_waitcnt lgkmcnt(0)")
        if pspan in (3, 4): A("s_mov_b32 s18, s16")
        if pm: A("s_and_b32 s6, s2, %d" % pm); A("s_cmp_eq_u32 s6, %d" % pval); A("s_cselect_b32 s18, s18, s16")
        A("s_not_b32 s16, s16"); A("v_mov_b32 v8, s18"); A("v_mov_b32 v9, s16"); A("s_mov_b64 exec, 1")
        A("buffer_atomic_%s v8, off, %s, 0 offset:4" % ("add" if pspan in (4, 5) else "umax", srd("DBG"))); A("buffer_atomic_umax v9, off, %s, 0 offset:8" % srd("DBG")); A("s_mov_b64 exec, -1")
    if pgrp:
        if not piv: A("s_memrealtime s[18:19]")
        if pgrp == 1: A("s_and_b32 s6, s2, 7")
        elif pgrp == 2: A("s_bfe_u32 s6, s%d, 0x30002" % sR)
        elif pgrp == 3: A("s_lshr_b32 s6, s%d, 5" % sR)
        else: A("s_and_b32 s6, s%d, 3" % sR); A("s_lshr_b32 s7, s2, 7"); A("s_lshl_b32 s7, s7, 2"); A("s_add_u32 s6, s6, s7")
        A("s_lshl_b32 s6, s6, 5")
        A("s_waitcnt lgkmcnt(0)"); A("v_mov_b32 v8, s18"); A("s_mov_b64 exec, 1"); A("buffer_atomic_%s v8, off, %s, s6 offset:4" % ("add" if pat >= 12 else "umax", srd("DBG"))); A("s_mov_b64 exec, -1")
    if probe:
        A("s_memrealtime s[20:21]"); A("s_waitcnt lgkmcnt(0)")
        if pstart: A("s_mov_b32 s20, s16")
        A("s_and_b32 s6, s2, 7"); A("s_lshr_b32 s6, %d, s6" % probe); A("s_and_b32 s6, s6, 1"); A("s_lshl_b32 s6, s6, 2"); A("s_add_u32 s6, s6, 4")
        A("s_waitcnt lgkmcnt(0)"); A("v_mov_b32 v8, s20"); A("s_mov_b64 exec, 1"); A("buffer_atomic_add v8, off, %s, s6" % srd("DBG")); A("s_mov_b64 exec, -1")
    A("s_waitcnt lgkmcnt(0)")
    A("s_branch L_done")

    def slot_addrs():
        A("v_lshlrev_b32 v28, 5, v0")
        A("s_and_b32 s%d, s%d, 3" % (sT0, sR)); A("s_lshl_b32 s%d, s%d, 3" % (sT0, sT0)); A("s_add_u32 s%d, s%d, s%d" % (sMU, sT0, sSTOFF))
    A("L_comm:")
    vZ = 20
    for i in range(4): A("v_mov_b32 v%d, 0" % (vZ + i))
    A("v_lshl_add_u32 v%d, v0, 2, v%d" % (vT, vHI))
    A("s_mov_b64 exec, 0xffff"); A("ds_write_b32 v%d, v%d offset:%d" % (vT, vZ, L_FLG)); A("s_mov_b64 exec, -1")
    slot_addrs()
    sEP = 4
    def epoch():
        A("s_waitcnt vmcnt(0)")
        A("v_readfirstlane_b32 s%d, v30" % sEP); A("v_readfirstlane_b32 s%d, v31" % (sEP + 1))
        A("s_add_u32 s%d, s%d, 0x%x" % (sEP, sEP, EP_STEP & 0xffffffff)); A("s_addc_u32 s%d, s%d, 0x%x" % (sEP + 1, sEP + 1, EP_STEP >> 32))
    A("s_waitcnt lgkmcnt(0)")
    A("buffer_load_dwordx2 v[30:31], off, %s, 0 offset:%d sc1" % (srd("WS"), WS_EP))
    A("s_barrier")
    A("v_add_u32 v%d, v%d, v%d" % (vT, vHI, vL16))
    A("v_and_b32 v29, 7, v0"); A("v_lshlrev_b32 v29, 14, v29"); A("v_lshl_add_u32 v29, v%d, 4, v29" % vG4)
    A("s_lshl_b32 s%d, s%d, 6" % (sT2, sRQ)); A("s_add_u32 s%d, s%d, 0x%x" % (sT2, sT2, WS_Q))
    A("s_bfe_u32 s%d, s%d, 0x30002" % (sT0, sR)); A("s_lshl_b32 s%d, s%d, 14" % (sT0, sT0)); A("s_lshr_b32 s%d, s%d, 5" % (sT1, sR)); A("s_lshl_b32 s%d, s%d, 11" % (sT1, sT1))
    A("s_add_u32 s%d, s%d, s%d" % (sT0, sT0, sT1)); A("s_add_u32 s%d, s%d, 0x%x" % (sT0, sT0, WS_Q))
    A("v_lshl_add_u32 v27, v0, 3, v%d" % vHI)
    epoch()
    A("v_mov_b32 v38, s%d" % sEP); A("v_mov_b32 v39, s%d" % (sEP + 1))
    stamp(1)
    lds_wait(F_QP, 4)
    for w in range(4): A("ds_read_b128 %s, v%d offset:%d" % (vr(40 + 4 * w, 4), vT, L_QP + w * 1024))
    A("s_waitcnt lgkmcnt(0)")
    for i in range(4): A("v_add_f32 v%d, v%d, v%d" % (40 + i, 40 + i, 44 + i)); A("v_add_f32 v%d, v%d, v%d" % (48 + i, 48 + i, 52 + i))
    for i in range(4): A("v_add_f32 v%d, v%d, v%d" % (40 + i, 40 + i, 48 + i))
    A("v_cvt_pk_bf16_f32 v36, v40, v41"); A("v_cvt_pk_bf16_f32 v37, v42, v43")
    A("s_mov_b32 exec_lo, 0x00ff00ff"); A("s_mov_b32 exec_hi, 0x00ff00ff")
    A("buffer_store_dwordx4 v[36:39], v29, %s, s%d offen sc1" % (srd("WS"), sT2))
    A("s_mov_b64 exec, -1")
    stamp(2)
    if qdelay: A("s_sleep %d" % qdelay)
    if qtrig: lds_wait(F_FULL, qtrig, sl=4)
    gpoll([(lambda: A("buffer_load_dwordx4 v[32:35], v%d, %s, s%d offen sc1" % (vL16, srd("WS"), sT0)), [32, 33, 34, 35]),
           (lambda: A("buffer_load_dwordx4 v[40:43], v%d, %s, s%d offen offset:1024 sc1" % (vL16, srd("WS"), sT0)), [40, 41, 42, 43])], sleep=qsleep, tag="s[%d:%d]" % (sEP, sEP + 1))
    A("ds_write_b64 v27, v[32:33] offset:%d" % L_QB); A("ds_write_b64 v27, v[40:41] offset:%d" % (L_QB + 512))
    lds_add(vHI, F_QR)
    stamp(4)
    def all_marked():
        A("v_lshlrev_b32 v%d, 5, v0" % (vT + 3))
        word_poll("buffer_load_dword v32, v%d, %s, 0 offen sc1" % (vT + 3, srd("DBG")), 32, "0xff", "v_cmp_gt_u32 vcc, 32, v%d", fsleep)
        stamp(3)
    all_marked()
    lds_add(vHI, F_AM)
    A("v_lshlrev_b32 v%d, 3, v%d" % (vT + 1, vN16)); A("v_add_u32 v%d, v%d, v%d" % (vT + 2, vHI, vT + 1))
    lds_wait(F_ST, 4)
    A("ds_read_b64 v[32:33], v%d offset:%d" % (vT + 2, L_ST)); A("s_waitcnt lgkmcnt(0)")
    def combine(modes):
        A("v_mov_b32 v34, v32")
        for m in modes: dpp("v_max_f32", 34, m)
        A("v_sub_f32 v32, v32, v34"); A("v_exp_f32 v32, v32"); A("v_mul_f32 v35, v32, v33")
        for m in modes: dpp("v_add_f32", 35, m)
    combine(("row_ror:4", "row_ror:8"))
    A("s_mov_b64 exec, 0xf"); A("buffer_store_dwordx2 v[34:35], v28, %s, s%d offen sc1" % (srd("WS"), sMU)); A("s_mov_b64 exec, -1")
    stamp(5)
    if sdelay: A("s_sleep %d" % sdelay)
    if strig:
        lds_wait(F_FULL, strig, sl=8)
    gpoll([(lambda: A("buffer_load_dwordx2 v[32:33], v%d, %s, s%d offen sc1" % (vT + 1, srd("WS"), sSTOFF)), [32, 33])], sleep=ssleep)
    combine(("quad_perm:[1,0,3,2]", "quad_perm:[2,3,0,1]"))
    A("v_rcp_f32 v35, v35"); A("v_lshl_add_u32 v%d, v%d, 3, v%d" % (vT + 2, vC4, vHI))
    A("s_mov_b64 exec, 0x1111"); A("ds_write_b64 v%d, v[34:35] offset:%d" % (vT + 2, L_GS)); A("s_mov_b64 exec, -1")
    lds_add(vHI, F_GR)
    stamp(6)
    A("s_mov_b32 s%d, 2" % sMU)
    A("L_gather56:")
    A("s_waitcnt lgkmcnt(0)")
    A("s_barrier")
    stamp(8)
    gather(sMU, lambda: None)
    A("s_waitcnt lgkmcnt(0)")
    A("s_barrier")
    stamp(9)
    A("s_branch L_done")

    A("L_mlp:")
    vW, vU = 32, 64
    def pg_addr(line, word):
        A("s_lshr_b32 s%d, s2, 3" % line); A("s_lshl_b32 s%d, s%d, 8" % (line, line)); A("s_add_u32 s%d, s%d, 0x%x" % (line, line, WS_PG))
        A("s_and_b32 s%d, s2, 7" % word); A("s_lshl_b32 s%d, s%d, 2" % (word, word)); A("s_add_u32 s%d, s%d, s%d" % (word, word, line))
    def clean():
        A("s_cmp_lg_u32 s%d, 7" % sWAVE); A("s_cbranch_scc1 L_noclean")
        for i in range(4): A("v_mov_b32 v%d, -1" % (60 + i))
        slot_addrs()
        A("v_lshlrev_b32 v%d, 13, v%d" % (59, vG4)); A("v_lshl_add_u32 v%d, v%d, 4, v%d" % (59, vN16, 59))
        A("s_lshl_b32 s%d, s%d, %d" % (sT1, sR, 11 + spad)); A("s_add_u32 s%d, s%d, 0x%x" % (sT1, sT1, WS_SP))
        A("v_lshrrev_b32 v29, 2, v0"); A("v_lshlrev_b32 v29, %d, v29" % (6 + spad)); A("v_lshl_add_u32 v29, v%d, 4, v29" % vR4)
        A("s_waitcnt lgkmcnt(0)")
        if pad2:
            A("s_cmp_lg_u32 s2, 0"); A("s_cbranch_scc1 L_np2"); A("v_mov_b32 v58, s16"); A("s_mov_b32 s18, 0x310000"); A("s_mov_b64 exec, 1")
            A("buffer_store_dword v58, off, %s, s18 sc1" % srd("WS")); A("s_mov_b64 exec, -1"); A("s_waitcnt vmcnt(0)"); A("L_np2:")
        A("buffer_load_dwordx2 v[30:31], off, %s, 0 offset:%d sc1" % (srd("WS"), WS_EP))
        A("s_mov_b64 exec, 0xf"); A("buffer_store_dwordx2 v[60:61], v28, %s, s%d offen sc1" % (srd("WS"), sMU)); A("s_mov_b64 exec, -1")
        A("buffer_store_dwordx4 v[60:63], v%d, %s, s%d offen sc1" % (59, srd("WS"), sOPOFF))
        A("buffer_store_dwordx4 v[60:63], v29, %s, s%d offen sc1" % (srd("WS"), sT1))
        A("buffer_store_dwordx4 v[60:63], v29, %s, s%d offen offset:%d sc1" % (srd("WS"), sT1, 1024 << spad))
        if bal:
            pg_addr(sT1, sT3)
            A("s_mov_b64 exec, 1"); A("buffer_store_dword v60, off, %s, s%d sc1" % (srd("WS"), sT3)); A("s_mov_b64 exec, -1")
        if steal:
            A("s_lshl_b32 s%d, s%d, 12" % (sT1, sR)); A("s_add_u32 s%d, s%d, 0x%x" % (sT1, sT1, WS_PR))
            for k in range(4): A("buffer_store_dwordx4 v[60:63], v%d, %s, s%d offen offset:%d sc1" % (vL16, srd("WS"), sT1, 1024 * k))
            A("s_lshl_b32 s%d, s%d, 7" % (sT1, sR)); A("s_add_u32 s%d, s%d, 0x%x" % (sT1, sT1, WS_CW))
            A("s_mov_b64 exec, 1"); A("buffer_store_dword v60, off, %s, s%d sc1" % (srd("WS"), sT1)); A("s_mov_b64 exec, -1")
        A("L_noclean:")
    def arrive(cnt, lbl):
        A("s_cmp_lg_u32 s%d, 7" % sWAVE); A("s_cbranch_scc1 " + lbl)
        A("s_lshr_b32 s%d, s%d, 5" % (sT3, sR)); A("s_lshl_b32 s%d, s%d, 5" % (sT3, sT3))
        A("s_mov_b64 exec, 1")
        A("s_waitcnt vmcnt(%d)" % cnt)
        A("buffer_atomic_add v%d, off, %s, s%d" % (vONE, srd("DBG"), sT3))
        A("s_mov_b64 exec, -1")
        stamp(4)
        A(lbl + ":")
    if not cllate: clean()
    A("s_sub_u32 s%d, s%d, 6" % (sMB, sWAVE))
    A("v_mul_u32_u24 v%d, 12, v0" % vT); A("s_mul_i32 s%d, s%d, 1792" % (sT1, sMB))
    A("s_waitcnt lgkmcnt(0)")
    A("s_load_dword s%d, s[%d:%d], 0" % (sB2, sB2P, sB2P + 1))
    if tlb:
        A("s_bfe_u32 s%d, s%d, 0x30002" % (sBASE, sR)); A("s_lshl_b32 s%d, s%d, 23" % (sBASE, sBASE)); A("s_lshr_b32 s%d, s%d, 5" % (sT0, sR)); A("s_lshl_b32 s%d, s%d, 20" % (sT0, sT0))
        A("s_add_u32 s%d, s%d, s%d" % (sBASE, sBASE, sT0)); A("s_and_b32 s%d, s%d, 3" % (sT0, sR)); A("s_lshl_b32 s%d, s%d, 18" % (sT0, sT0)); A("s_add_u32 s%d, s%d, s%d" % (sBASE, sBASE, sT0))
        A("s_cmp_lg_u32 s%d, 6" % sWAVE); A("s_cbranch_scc1 L_notlb")
        A("s_mov_b64 exec, 1")
        if tlb & 1: A("buffer_load_dword v200, off, %s, s%d" % (srd("V"), sBASE))
        if tlb & 2:
            A("s_lshr_b32 s%d, s%d, 3" % (sT0, sR)); A("s_lshl_b32 s%d, s%d, 17" % (sT0, sT0))
            A("buffer_load_dword v201, off, %s, s%d" % (srd("WO"), sT0))
        if tlb & 4:
            A("v_lshlrev_b32 v202, 16, v0"); A("s_mov_b64 exec, 0xf")
            A("buffer_load_dword v203, v202, %s, s%d offen" % (srd("V"), sBASE))
            A("buffer_load_dword v204, v202, %s, s%d offen" % (srd("K"), sBASE))
        A("s_mov_b64 exec, -1")
        A("L_notlb:")
    A("s_barrier")
    for k, n in enumerate(("W1", "B1", "W2")):
        A("buffer_load_dwordx4 %s, v%d, %s, s%d offen" % (vr(vW + 8 * k, 4), vL16, srd(n), sT1))
        A("buffer_load_dwordx3 %s, v%d, %s, s%d offen offset:1024" % (vr(vW + 8 * k + 4, 3), vT, srd(n), sT1))
    if not cllate: arrive(6, "L_noflag")
    A("s_lshr_b32 s%d, s%d, 5" % (sT0, sR)); A("s_mul_i32 s%d, s%d, %d" % (sT0, sT0, XN_STRIDE)); A("s_add_u32 s%d, s%d, %d" % (sT0, sT0, HI)); A("v_add_u32 v%d, s%d, v%d" % (vT + 1, sT0, vL16))
    A("s_lshl_b32 s%d, s%d, 13" % (sT2, sMB)); A("s_add_u32 s%d, s%d, %d" % (sT2, sT2, HI + L_WO)); A("v_add_u32 v%d, s%d, v%d" % (vT + 2, sT2, vL16))
    A("s_and_b32 s%d, s%d, 31" % (sT0, sR)); A("s_lshl_b32 s%d, s%d, 5" % (sT0, sT0)); A("s_add_u32 s%d, s%d, s%d" % (sT0, sT0, sT2))
    A("v_lshlrev_b32 v%d, 1, v%d" % (vT + 3, vN16)); A("v_add_u32 v%d, s%d, v%d" % (vT + 3, sT0, vT + 3))
    lds_wait(F_XN, 4)
    if cllate: clean()
    vXm = 112
    A("ds_read_b128 %s, v%d offset:%d" % (vr(vXm, 4), vT + 1, L_XN)); A("s_waitcnt lgkmcnt(0)")
    layernorm(vXm, 4, vXm + 4, vXm + 12, vXm + 20, 1)
    A("ds_write_b128 v%d, %s" % (vT + 2, vr(vXm, 4)))
    vH = 24
    A("ds_read_u16 v%d, v%d" % (vH, vT + 3))
    A("v_lshrrev_b32 v%d, 3, v0" % (vT + 4)); A("v_lshlrev_b32 v%d, 10, v%d" % (vT + 4, vT + 4)); A("v_and_b32 v%d, 7, v0" % (vT + 5)); A("v_lshl_add_u32 v%d, v%d, 4, v%d" % (vT + 4, vT + 5, vT + 4))
    A("s_lshr_b32 s%d, s%d, 3" % (sT0, sR)); A("s_lshl_b32 s%d, s%d, 17" % (sT0, sT0)); A("s_and_b32 s%d, s%d, 7" % (sT1, sR)); A("s_lshl_b32 s%d, s%d, 7" % (sT1, sT1))
    A("s_add_u32 s%d, s%d, s%d" % (sT0, sT0, sT1)); A("s_lshl_b32 s%d, s%d, 16" % (sT1, sMB)); A("s_add_u32 s%d, s%d, s%d" % (sT0, sT0, sT1))
    A("s_waitcnt vmcnt(0) lgkmcnt(0)")
    if cllate: arrive(0, "L_noflag")
    for a in range(8):
        A("s_add_u32 m0, s%d, %d" % (sT2, a * 1024))
        if 'o' not in abl and not wolate: A("buffer_load_dwordx4 v%d, %s, s%d offen %s lds" % (vT + 4, srd("WO"), sT0, polo))
        if a < 7: A("s_add_u32 s%d, s%d, 0x2000" % (sT0, sT0))
    stamp(1)
    A("v_lshlrev_b32 v%d, 16, v%d" % (vH, vH))
    for k in range(3):
        for i in range(7): unpack(vU + 14 * k + 2 * i, vU + 14 * k + 2 * i + 1, vW + 8 * k + i)
    vC0, vACC, U, T_ = 25, 26, 112, 128
    A("v_mov_b32 v%d, s%d" % (vC0, sC0))
    A("s_lshl_b32 s%d, s%d, 6" % (sT0, sMB)); A("s_add_u32 s%d, s%d, %d" % (sT0, sT0, HI + L_YP)); A("v_mov_b32 v27, s%d" % sT0)
    A("s_mov_b32 s%d, 0" % sT1)
    A("s_nop 3")
    A("L_mlp_loop:")
    A("v_readlane_b32 s%d, v%d, s%d" % (sMU, vH, sT1))
    for t in range(14): A("v_fma_f32 v%d, s%d, v%d, v%d" % (U + t, sMU, vU + t, vU + 14 + t))
    for t in range(14): A("v_mul_f32 v%d, v%d, v%d" % (T_ + t, U + t, U + t))
    for t in range(14): A("v_fma_f32 v%d, v%d, s%d, v%d" % (T_ + t, T_ + t, sC1, vC0))
    for t in range(14): A("v_mul_f32 v%d, v%d, v%d" % (T_ + t, T_ + t, U + t))
    for t in range(14):
        A("v_exp_f32 v%d, v%d" % (T_ + t, T_ + t)); A("v_mul_f32 v%d, v%d, v%d" % (U + t, U + t, vU + 28 + t))
    for t in range(14): A("v_add_f32 v%d, 1.0, v%d" % (T_ + t, T_ + t))
    for t in range(14): A("v_rcp_f32 v%d, v%d" % (T_ + t, T_ + t))
    A("v_mul_f32 v%d, v%d, v%d" % (vACC, U, T_)); A("v_mul_f32 v%d, v%d, v%d" % (U, U + 1, T_ + 1))
    for t in range(2, 14): A("v_fmac_f32 v%d, v%d, v%d" % (vACC if t & 1 else U, U + t, T_ + t))
    A("v_add_f32 v%d, v%d, v%d" % (vACC, vACC, U))
    red16(vACC, "v_add_f32"); dpp("v_add_f32", vACC, "row_bcast:15", "0xa"); dpp("v_add_f32", vACC, "row_bcast:31", "0xc")
    A("s_mov_b32 exec_lo, 0"); A("s_mov_b32 exec_hi, 0x80000000")
    A("ds_write_b32 v27, v%d" % vACC); A("v_add_u32 v27, 4, v27")
    A("s_mov_b64 exec, -1")
    A("s_add_u32 s%d, s%d, 1" % (sT1, sT1)); A("s_cmp_lt_u32 s%d, 16" % sT1); A("s_cbranch_scc1 L_mlp_loop")
    stamp(2)
    A("s_waitcnt vmcnt(0)")
    A("s_mov_b32 s%d, 3" % sMU)
    if steal:
        A("s_cmp_eq_u32 s%d, 7" % sWAVE); A("s_cbranch_scc1 L_final")
        lds_wait(F_AM, 1, sl=8)
        sCW = 4
        A("s_lshl_b32 s%d, s%d, 7" % (sCW, sR)); A("s_add_u32 s%d, s%d, 0x%x" % (sCW, sCW, WS_CW))
        def set_plan(val):
            A("v_mov_b32 v%d, %s" % (vT, val)); A("s_mov_b64 exec, 1"); A("ds_write_b32 v%d, v%d offset:%d" % (vHI, vT, F_PLAN)); A("s_mov_b64 exec, -1")
        for k in range(5, 11):
            if k == 8:
                A("s_xor_b32 s%d, s%d, 0x100" % (sCW, sCW))
            if k == 8:
                A("s_xor_b32 s%d, s%d, 2" % (sT1, sR)); A("s_lshl_b32 s%d, s%d, 12" % (sT1, sT1)); A("s_add_u32 s%d, s%d, 0x%x" % (sT1, sT1, WS_PR))
                A("v_add_u32 v%d, v%d, v%d" % (vT + 1, vHI, vL16))
                rec = [((lambda q=q: A("buffer_load_dwordx4 %s, v%d, %s, s%d offen offset:%d sc1" % (vr(36 + 4 * q, 4), vL16, srd("WS"), sT1, 1024 * q))), list(range(36 + 4 * q, 40 + 4 * q))) for q in range(4)]
                lds_wait(F_FULL, rtrig, sl=2)
                A("s_mov_b32 exec_hi, 0x1ffff")
                for i_, _ in rec: i_()
                A("s_mov_b64 exec, -1")
            lds_wait(F_FULL, 4 * k + cth + (bias if k >= 8 else 0), sl=2)
            A("v_mov_b32 v32, 1"); A("s_mov_b64 exec, 1")
            A("buffer_atomic_add v32, off, %s, s%d sc0" % (srd("WS"), sCW))
            A("s_mov_b64 exec, -1")
            A("s_mov_b32 s%d, 0x%x" % (sT2, 0x100 + k))
            A("s_waitcnt vmcnt(0)")
            A("v_readfirstlane_b32 s%d, v32" % sT0); A("s_add_u32 s%d, s%d, 1" % (sT0, sT0))
            if stamps and k < 9: stamp(k - 2)
            A("s_cmp_ge_u32 s%d, 3" % sT0); A("s_cbranch_scc1 L_close")
            if k == 8:
                A("s_mov_b32 exec_hi, 0x1ffff")
                gpoll(rec[:2], first=False, sleep=8, full="PARTIAL"); gpoll(rec[2:], first=False, sleep=8, full="PARTIAL")
                for q in range(4): A("ds_write_b128 v%d, %s offset:%d" % (vT + 1, vr(36 + 4 * q, 4), L_PP + 1024 * q))
                A("s_mov_b64 exec, -1")
                A("s_waitcnt lgkmcnt(0)")
            set_plan("%d" % (k + 1))
        A("s_mov_b32 s%d, 0x%x" % (sT2, 0x100 + 11))
        A("L_close:")
        set_plan("s%d" % sT2)
        A("s_branch L_gather56")
        A("L_final:")
    elif bal >= 2:
        A("s_cmp_eq_u32 s%d, 7" % sWAVE); A("s_cbranch_scc1 L_final")
        lds_wait(F_AM, 1, sl=8)
        pg_addr(4, 5)
        if bal == 3: A("s_lshl_b32 s4, s2, 8"); A("s_add_u32 s4, s4, 0x%x" % (WS_PG + 0x4000))
        for k in range(bmin):
            lds_wait(F_FULL, bthr + bper * k, sl=4)
            A("v_mov_b32 v%d, 1" % (32 + k)); A("s_mov_b64 exec, 1")
            if bal == 4: A("buffer_load_dword v%d, off, %s, s4 sc1" % (32 + k, srd("WS")))
            elif bal == 5: A("buffer_store_dword v%d, off, %s, s5 sc1" % (32 + k, srd("WS")))
            else: A("buffer_atomic_add v%d, off, %s, s4 sc0" % (32 + k, srd("WS")))
            A("s_mov_b64 exec, -1")
        A("s_waitcnt vmcnt(0)")
        A("s_branch L_gather56")
        A("L_final:")
    elif bal:
        A("s_cmp_eq_u32 s%d, 7" % sWAVE); A("s_cbranch_scc1 L_final")
        lds_wait(F_AM, 1, sl=8)
        pg_addr(4, 5)
        A("s_and_b32 s12, s2, 7"); A("v_lshlrev_b32 v33, 2, v0"); A("s_mov_b32 s13, 0")
        A("L_bal:")
        A("s_mov_b64 exec, 0xff"); A("buffer_load_dword v32, v33, %s, s4 offen sc1" % srd("WS"))
        A("s_mov_b64 exec, 1")
        A("ds_read_b32 v34, v%d offset:%d" % (vHI, F_FULL)); A("s_waitcnt lgkmcnt(0)")
        A("buffer_store_dword v34, off, %s, s5 sc1" % srd("WS"))
        A("s_mov_b64 exec, -1")
        A("v_readfirstlane_b32 s%d, v34" % sT0)
        A("s_cmp_ge_u32 s%d, %d" % (sT0, bstop)); A("s_cbranch_scc1 L_balend")
        A("s_waitcnt vmcnt(1)")
        A("v_readlane_b32 s%d, v32, s12" % sT1)
        A("s_mov_b64 exec, 0xff")
        A("v_cmp_eq_u32 vcc, -1, v32")
        if bmin:
            for m in QUADS[:3]: dpp("v_min_u32", 32, m)
        else:
            for m in QUADS[:3]: dpp("v_add_u32", 32, m)
        A("s_mov_b64 exec, -1")
        A("v_readfirstlane_b32 s%d, v32" % sT2)
        A("s_cmp_lg_u64 vcc, 0"); A("s_cbranch_scc1 L_balskip")
        if not bmin: A("s_lshl_b32 s%d, s%d, 3" % (sT1, sT1))
        A("s_sub_i32 s%d, s%d, s%d" % (sT1, sT1, sT2)); A("s_cmp_gt_i32 s%d, %d" % (sT1, bthr)); A("s_cselect_b32 s%d, 1, 0" % sT1)
        A("v_mov_b32 v35, s%d" % sT1); A("s_mov_b64 exec, 1"); A("ds_write_b32 v%d, v35 offset:%d" % (vHI, F_MODE)); A("s_mov_b64 exec, -1")
        A("L_balskip:")
        if bper: A("s_sleep %d" % bper)
        A("s_add_u32 s13, s13, 1"); A("s_cmp_lt_u32 s13, 4096"); A("s_cbranch_scc1 L_bal")
        A("L_balend:")
        A("v_mov_b32 v35, 0"); A("s_mov_b64 exec, 1"); A("ds_write_b32 v%d, v35 offset:%d" % (vHI, F_MODE)); A("s_mov_b64 exec, -1")
        A("s_waitcnt vmcnt(0)")
        A("s_branch L_gather56")
        A("L_final:")
    else:
        A("s_cmp_eq_u32 s%d, 6" % sWAVE); A("s_cbranch_scc1 L_gather56")
    if at2:
        A("v_and_b32 v%d, 7, v0" % (vT + 1)); A("v_lshrrev_b32 v%d, 5, v0" % (vT + 2)); A("v_lshl_add_u32 v%d, v%d, 1, v%d" % (vT + 1, vT + 1, vT + 2))
    else: A("v_lshl_add_u32 v%d, v%d, 2, v%d" % (vT + 1, vR4, vG4))
    A("v_lshlrev_b32 v%d, 1, v%d" % (vT + 2, vT + 1)); A("s_lshl_b32 s%d, s%d, 5" % (sT0, sR))
    A("buffer_load_ushort v%d, v%d, %s, s%d offen" % (vT + 3, vT + 2, srd("X"), sT0))
    A("v_lshl_add_u32 v%d, v%d, 2, v%d" % (vT + 1, vT + 1, vHI))
    A("s_lshl_b32 s%d, s%d, %d" % (sT1, sR, 11 + spad)); A("s_add_u32 s%d, s%d, 0x%x" % (sT1, sT1, WS_SP))
    A("v_lshrrev_b32 v29, 2, v0"); A("v_lshlrev_b32 v29, %d, v29" % (6 + spad)); A("v_lshl_add_u32 v29, v%d, 4, v29" % vR4)
    if wolate == 2:
        A("s_mov_b32 s12, s%d" % sT0); A("s_mov_b32 s13, s%d" % sT1)
        if steal: lds_wait(F_LI, 1, sl=2)
        else: lds_wait(F_FULL, wotrig, sl=2)
        wo_dma()
        A("s_mov_b32 s%d, s12" % sT0); A("s_mov_b32 s%d, s13" % sT1)
    A("s_waitcnt lgkmcnt(0)")
    A("s_barrier")
    stamp(8)
    A("ds_read_b32 v40, v%d offset:%d" % (vT + 1, L_YP)); A("ds_read_b32 v41, v%d offset:%d" % (vT + 1, L_YP + 64)); A("s_waitcnt lgkmcnt(0)")
    A("v_add_f32 v40, v40, v41"); rbf(40)
    A("s_lshl_b32 s%d, s%d, 16" % (sB2, sB2)); A("v_add_f32 v40, s%d, v40" % sB2); rbf(40)
    A("v_mul_f32 v41, s%d, v40" % sL2E); A("v_exp_f32 v41, -v41"); A("v_add_f32 v41, 1.0, v41"); A("v_rcp_f32 v41, v41"); A("v_mul_f32 v40, v40, v41"); rbf(40)
    A("s_waitcnt vmcnt(0)"); A("v_lshlrev_b32 v%d, 16, v%d" % (vT + 3, vT + 3))
    if wolate == 2:
        A("s_mov_b64 exec, 1"); A("ds_write_b32 v%d, v%d offset:%d" % (vHI, vONE, F_WO)); A("s_mov_b64 exec, -1")
        stamp(11)
    A("s_barrier")
    stamp(9)
    if td2: A("s_sleep %d" % td2)
    if at2:
        A("v_lshlrev_b32 v29, 3, v0")
        apoll(32, 29, sT1, 44, tsleep2)
        stamp(10)
        A("v_add_f32 v44, v32, v34"); A("v_add_f32 v45, v33, v35"); A("v_add_f32 v46, v36, v38"); A("v_add_f32 v47, v37, v39")
        A("v_add_f32 v44, v44, v46"); A("v_add_f32 v45, v45, v47")
        A("v_permlane32_swap_b32 v44, v45"); A("v_add_f32 v44, v44, v45")
        swap_red(44, 45, "v_add_f32", 16)
        dpp("v_add_f32", 44, "row_ror:8")
    else:
        gpoll([(lambda: A("buffer_load_dwordx4 v[32:35], v29, %s, s%d offen %s" % (srd("WS"), sT1, tl)), [32, 33, 34, 35]),
               (lambda: A("buffer_load_dwordx4 v[36:39], v29, %s, s%d offen offset:%d %s" % (srd("WS"), sT1, 1024 << spad, tl)), [36, 37, 38, 39])], sleep=tsleep2, P=P2)
        stamp(10)
        for i in range(4): A("v_add_f32 v%d, v%d, v%d" % (44 + i, 32 + i, 36 + i))
        A("v_permlane32_swap_b32 v44, v46"); A("v_permlane32_swap_b32 v45, v47")
        A("v_add_f32 v44, v44, v46"); A("v_add_f32 v45, v45, v47")
        A("v_permlane16_swap_b32 v44, v45"); A("v_add_f32 v44, v44, v45")
        dpp("v_add_f32", 44, "row_ror:8"); dpp("v_add_f32", 44, "row_ror:4")
    rbf(44); A("v_mul_f32 v44, v44, v40"); rbf(44)
    A("v_add_f32 v44, v44, v%d" % (vT + 3)); A("v_cvt_pk_bf16_f32 v44, v44, v44")
    em = "0xff" if at2 else "0x000f000f"
    A("s_mov_b32 exec_lo, %s" % em); A("s_mov_b32 exec_hi, %s" % em)
    A("buffer_store_short v44, v%d, %s, s%d offen" % (vT + 2, srd("OUT"), sT0))
    A("s_mov_b64 exec, -1")
    A("s_cmp_lg_u32 s%d, 0" % sR); A("s_cbranch_scc1 L_done")
    epoch()
    A("v_mov_b32 v30, s%d" % sEP); A("v_mov_b32 v31, s%d" % (sEP + 1)); A("s_mov_b64 exec, 1")
    A("buffer_store_dwordx2 v[30:31], off, %s, 0 offset:%d sc1" % (srd("WS"), WS_EP))
    A("s_mov_b64 exec, -1")
    if pmap >= 10:
        A("s_sleep 32"); A("s_mov_b32 s6, 0x300000")
        A("buffer_load_dwordx4 v[32:35], v%d, %s, s6 offen sc1" % (vL16, srd("WS"))); A("s_waitcnt vmcnt(0)")
        if not piv:
            for i in range(4): A("v_subrev_u32 v%d, s16, v%d" % (32 + i, 32 + i))
        def over_kvh(v, op):
            dpp(op, v, "row_ror:8"); swap_red(v, 40, op, 16); swap_red(v, 40, op, 32)
        def over_b(v, op):
            for m in QUADS[:3]: dpp(op, v, m)
        A("v_max_u32 v36, v32, v33"); A("v_max3_u32 v36, v36, v34, v35"); over_kvh(36, "v_max_u32")
        A("v_add_u32 v37, v32, v33"); A("v_add3_u32 v37, v37, v34, v35"); over_kvh(37, "v_add_u32"); A("v_lshrrev_b32 v37, 5, v37")
        if pmap == 10: over_b(36, "v_max_u32"); A("v_lshlrev_b32 v36, 2, v36")
        elif pmap == 11: over_b(37, "v_max_u32"); A("v_lshlrev_b32 v36, 2, v37")
        elif pmap == 12: over_b(37, "v_add_u32"); A("v_lshrrev_b32 v36, 1, v37")
        elif pmap == 13: over_b(37, "v_min_u32"); A("v_lshlrev_b32 v36, 2, v37")
        elif pmap == 14: A("v_sub_u32 v36, v36, v37"); over_b(36, "v_max_u32"); A("v_lshlrev_b32 v36, 3, v36")
        elif pmap == 15:
            A("v_mov_b32 v38, v37"); over_b(38, "v_max_u32"); A("v_cmp_eq_u32 vcc, v38, v37"); A("v_cndmask_b32 v37, v37, 0, vcc"); over_b(37, "v_max_u32"); A("v_lshlrev_b32 v36, 2, v37")
        elif pmap == 16:
            A("v_lshlrev_b32 v36, 3, v36"); A("v_and_b32 v38, 7, v0"); A("v_or_b32 v36, v36, v38"); over_b(36, "v_max_u32"); A("v_and_b32 v36, 7, v36"); A("v_mul_u32_u24 v36, 300, v36")
        elif pmap == 17:
            A("v_min_u32 v36, v32, v33"); A("v_min3_u32 v36, v36, v34, v35"); over_kvh(36, "v_min_u32"); over_b(36, "v_min_u32"); A("v_lshlrev_b32 v36, 2, v36")
        A("s_mov_b32 s7, s16")
        A("s_memrealtime s[16:17]"); A("v_readfirstlane_b32 s6, v36"); A("s_waitcnt lgkmcnt(0)")
        if pmap == 18: A("s_sub_u32 s6, s16, s7"); A("s_lshl_b32 s6, s6, 2")
        if pmap == 19: A("s_mov_b32 s6, 0")
        A("s_min_u32 s6, s6, 20000")
        A("s_add_u32 s16, s16, s6")
        A("L_pad4:"); A("s_memrealtime s[18:19]"); A("s_waitcnt lgkmcnt(0)"); A("s_sub_u32 s18, s18, s16"); A("s_cmp_lt_i32 s18, 0"); A("s_cbranch_scc1 L_pad4")
    elif pmap:
        A("s_sleep 32"); A("s_mov_b32 s6, 0x300000")
        A("buffer_load_dwordx4 v[32:35], v%d, %s, s6 offen sc1" % (vL16, srd("WS"))); A("s_waitcnt vmcnt(0)")
        if pmap == 1: A("v_max_u32 v32, v32, v33"); A("v_max3_u32 v32, v32, v34, v35")
        elif pmap == 2: A("v_min_u32 v32, v32, v33"); A("v_min3_u32 v32, v32, v34, v35")
        if not piv: A("s_add_u32 s16, s16, 1500"); A("v_subrev_u32 v32, s16, v32")
        A("v_lshrrev_b32 v32, 3, v32"); A("v_min_u32 v32, 255, v32")
        A("buffer_store_byte v32, v0, %s, 0 offen sc1" % srd("DBG"))
    if pgrp:
        A("v_lshlrev_b32 v29, 5, v0"); A("s_mov_b64 exec, 0xff")
        A("buffer_load_dword v30, v29, %s, 0 offen offset:4 sc1" % srd("DBG")); A("s_memrealtime s[16:17]"); A("s_waitcnt vmcnt(0) lgkmcnt(0)")
        if pat >= 12:
            A("v_readfirstlane_b32 s6, v30"); A("v_subrev_u32 v30, s6, v30"); A("v_add_u32 v30, 0x100000, v30")
            if pat == 13: A("v_lshlrev_b32 v30, 3, v30"); A("v_or_b32 v30, v30, v0")
        A("v_mov_b32 v31, v30")
        for m in QUADS[:3]: dpp("v_max_u32", 30, m)
        if pat in (11, 12, 13, 14):
            for m in QUADS[:3]: dpp("v_min_u32", 31, m)
        else:
            A("v_subrev_u32 v31, v31, v30")
            for m in QUADS[:3]: dpp("v_add_u32", 31, m)
        A("s_mov_b64 exec, -1")
        A("v_readfirstlane_b32 s6, v30"); A("v_readfirstlane_b32 s7, v31")
        if pat == 11: A("s_sub_u32 s6, s6, s7"); A("s_lshl_b32 s6, s6, 3")
        elif pat == 12: A("s_sub_u32 s6, s6, s7"); A("s_lshr_b32 s6, s6, 2")
        elif pat == 13: A("s_and_b32 s6, s6, 7"); A("s_mul_i32 s6, s6, 300")
        else: A("s_mov_b32 s6, s7")
        A("s_min_u32 s6, s6, 20000")
        A("s_add_u32 s16, s16, s6")
        A("L_pad3:"); A("s_memrealtime s[18:19]"); A("s_waitcnt lgkmcnt(0)"); A("s_sub_u32 s18, s18, s16"); A("s_cmp_lt_i32 s18, 0"); A("s_cbranch_scc1 L_pad3")
    if probe or (p_b >= 0 and not piv) or pspan:
        A("buffer_load_dwordx2 v[30:31], off, %s, 0 offset:4 sc1" % srd("DBG")); A("s_memrealtime s[16:17]"); A("s_waitcnt vmcnt(0) lgkmcnt(0)")
        A("v_readfirstlane_b32 s6, v30"); A("v_readfirstlane_b32 s7, v31")
        if probe: A("s_sub_i32 s6, s6, s7"); A("s_abs_i32 s6, s6"); A("s_lshr_b32 s6, s6, 4")
        elif pspan == 1: A("s_not_b32 s7, s7"); A("s_sub_u32 s6, s6, s7"); A("s_lshl_b32 s6, s6, 2")
        elif pspan == 2: A("s_sub_u32 s6, s16, s6"); A("s_lshl_b32 s6, s6, 3")
        elif pspan == 6: A("s_not_b32 s7, s7"); A("s_sub_u32 s6, s16, s7"); A("s_lshl_b32 s6, s6, 2")
        elif pspan == 3: A("s_not_b32 s7, s7"); A("s_sub_u32 s6, s6, s7"); A("s_lshl_b32 s6, s6, 3")
        elif pspan in (4, 5): A("s_not_b32 s7, s7"); A("s_lshl_b32 s7, s7, 8"); A("s_sub_u32 s6, s6, s7"); A("s_lshr_b32 s6, s6, %d" % (5 if pspan == 4 else 6))
        else: A("s_lshr_b32 s6, s6, 5")
        A("s_min_u32 s6, s6, 20000")
        A("s_add_u32 s16, s16, s6")
        A("L_pad2:"); A("s_memrealtime s[18:19]"); A("s_waitcnt lgkmcnt(0)"); A("s_sub_u32 s18, s18, s16"); A("s_cmp_lt_i32 s18, 0"); A("s_cbranch_scc1 L_pad2")
    A("L_done:")
    A("s_waitcnt vmcnt(0)")
    if pad2:
        A("s_lshr_b32 s6, %d, s%d" % (pw, sWAVE)); A("s_and_b32 s6, s6, 1"); A("s_cbranch_scc0 L_end")
        A("s_and_b32 s6, s2, %d" % (255 & ~pwg)); A("s_cmp_lg_u32 s6, %d" % pwv); A("s_cbranch_scc1 L_end")
        A("s_mov_b32 s18, 0x310000"); A("buffer_load_dword v58, off, %s, s18 sc1" % srd("WS")); A("s_waitcnt vmcnt(0)"); A("v_readfirstlane_b32 s16, v58")
        A("s_add_u32 s16, s16, %d" % pad2); A("s_mov_b32 s7, 0")
        A("L_pad5:"); A("s_memrealtime s[18:19]"); A("s_add_u32 s7, s7, 1"); A("s_cmp_gt_u32 s7, 0x4000"); A("s_cbranch_scc1 L_end"); A("s_waitcnt lgkmcnt(0)"); A("s_sub_u32 s18, s18, s16"); A("s_cmp_lt_i32 s18, 0"); A("s_cbranch_scc1 L_pad5")
    if pad:
        A("s_waitcnt lgkmcnt(0)"); A("s_add_u32 s16, s16, %d" % pad)
        A("L_pad:"); A("s_memrealtime s[18:19]"); A("s_waitcnt lgkmcnt(0)"); A("s_sub_u32 s18, s18, s16"); A("s_cmp_lt_i32 s18, 0"); A("s_cbranch_scc1 L_pad")
    if stamps:
        A("s_waitcnt vmcnt(0)")
        stamp(NST - 1)
        A("s_waitcnt lgkmcnt(0)")
        A("s_lshl_b32 s%d, s2, 3" % sT0); A("s_add_u32 s%d, s%d, s%d" % (sT0, sT0, sWAVE)); A("s_mul_i32 s%d, s%d, %d" % (sT0, sT0, NST * 8)); A("s_add_u32 s%d, s%d, 0x%x" % (sT0, sT0, WS_STAMP))
        A("s_mov_b64 exec, 1")
        for k in range(NST):
            A("v_mov_b32 v2, s%d" % (16 + 2 * k)); A("v_mov_b32 v3, s%d" % (17 + 2 * k))
            A("buffer_store_dwordx2 v[2:3], off, %s, s%d offset:%d" % (srd("WS"), sT0, k * 8)); A("s_nop 1")
    A("L_end:")
    A("s_endpgm")
    body = A.finalize()
    hdr = open("recurrent_scan__gqa_block_cached__mixer_token_mlp__decode.s.ref").read().split("; Override launch")[0]
    s = hdr + "; @launch grid=(256,1,1) block=(512,1,1) lds=%d\n" % LDS_BYTES
    s += '.amdgcn_target "amdgcn-amd-amdhsa--gfx950"\n.text\n.globl %s\n.p2align 8\n.type %s,@function\n%s:\n' % (NAME, NAME, NAME)
    s += body
    s += '.section .rodata,"a"\n.p2align 6\n.amdhsa_kernel %s\n  .amdhsa_next_free_vgpr 256\n  .amdhsa_next_free_sgpr 102\n  .amdhsa_accum_offset 256\n' % NAME
    s += "  .amdhsa_group_segment_fixed_size 0\n  .amdhsa_kernarg_size 104\n  .amdhsa_user_sgpr_count 2\n  .amdhsa_user_sgpr_kernarg_segment_ptr 1\n  .amdhsa_system_sgpr_workgroup_id_x 1\n.end_amdhsa_kernel\n"
    return s, A

if __name__ == "__main__":
    out = sys.argv[1]
    kw = {}
    for p in sys.argv[2:]:
        k, v = p.split("=")
        kw[k] = int(v) if v.lstrip("-").isdigit() else v.replace("+", " ")
    s, A = gen(**kw)
    open(out, "w").write(s)
    print("wrote", out, "instructions", len(A.ins), "nops", A.nops, "lds", LDS_BYTES)
```

```python
import sys, struct
from asmlib import Asm

NAME = "recurrent_scan__gqa_block_cached__mixer_token_mlp__decode_kernel"
def f2u(x): return struct.unpack("<I", struct.pack("<f", x))[0]

WS_ST, WS_OP, WS_SP, WS_Q, WS_EP = 0x10000, 0x20000, 0x100000, 0x60000, 0x0
WS_PG = 0x90000
WS_CW, WS_PR = 0x80000, 0x200000
EP_STEP = 0x9E3779B97F4A7C15
WS_STAMP = 128 << 20
HI = 131072
L_WO = 0
L_XN, XN_STRIDE = 16384, 1040
L_OW = L_XN
L_QP = 24704
L_QB = 28800
L_FLG = 29824
L_ST = L_FLG + 64
L_GS = L_ST + 128
L_YP = L_GS + 32
LDS_BYTES = HI + L_YP + 128
F_FULL, F_FREED, F_XN, F_QP, F_QR, F_ST, F_GR, F_WO, F_AM, F_PLAN, F_LI, F_MODE = [L_FLG + 4 * i for i in (0, 4, 8, 9, 10, 11, 12, 13, 14, 1, 15, 2)]
L_PP = L_QP

sWAVE, sBASE, sOFF = 3, 4, 5
sT0, sT1, sT2 = 6, 7, 8
sR, sSPIN, sT3 = 9, 10, 11
sMU, sMB = 14, 15
SRD = dict(K=44, V=48, X=52, WQ=56, WO=60, W1=64, B1=68, W2=72, OUT=76, DBG=80, WS=84)
KARG = dict(X=0, K=8, V=16, WQ=24, WO=32, W1=48, B1=56, W2=64, OUT=80, DBG=88, WS=96)
SIZE = dict(X=8192, K=1 << 26, V=1 << 26, WQ=1 << 22, WO=1 << 22, W1=3584, B1=3584, W2=3584, OUT=8192, DBG=256, WS=1 << 28)
sSELLO, sSELHI, sMASK, sSCALE, sL2E, sC0, sC1, sB2, sB2P = 88, 89, 90, 91, 92, 93, 94, 95, 96
sOPOFF, sSPOFF, sSTOFF, sFULL = 98, 99, 100, 101
def srd(n): return "s[%d:%d]" % (SRD[n], SRD[n] + 3)
def vr(a, n=1): return "v%d" % a if n == 1 else "v[%d:%d]" % (a, a + n - 1)
vL16, vG4, vC4, vR4, vN16, vHI, vONE = 1, 2, 3, 4, 5, 6, 7
vT = 8
vPOLL = 16

def gen(F=4, stamps=0, pol="nt", spin=1 << 17, lspin=1 << 22, mimic=1, pre=0, lsleep=1, ldprio=3, fsleep=8, qsleep=2, ssleep=8, tsleep=0, xmap=1, polq=None, polo=None, ldst=0, abl='', rot=0, pad=0, P1=1, P2=1, pd=5, qmap=0, tl='sc1', ts='sc1', tsleep2=None, Fhi=0, himask=0xf8, hiend=16, spad=0, at2=1, td2=8, td1=0, at1=0, qdelay=0, sdelay=0, qtrig=8, strig=48, bshift=0, wolate=2, wqsplit=0, wotrig=60, D=0, DV=0, probe=0, steal=0, cth=23, cllate=0, bias=0, rtrig=48, p_a=-1, p_b=-1, pspan=0, pstart=0, bal=0, Flo=2, bthr=0, bper=8, bstop=58, bmin=0, pm=0, pval=0, pgrp=0, pat=11, tlb=0, piv=0, pmap=0, pst=0, pad2=0, pw=255, pwg=255, pwv=0, fast=0, nfirst=4, epe=0, nowait=0):
    NOWN = 5 if steal else 8
    sPLAN = 13
    DV = DV if DV else D
    tsleep2 = tsleep if tsleep2 is None else tsleep2
    polq = pol if polq is None else polq.replace('def', '')
    polo = pol if polo is None else polo.replace('def', '')
    A = Asm()
    NST = 14
    def stamp(k):
        if stamps: A("s_memrealtime s[%d:%d]" % (16 + 2 * k, 17 + 2 * k))
    QUADS = ("quad_perm:[1,0,3,2]", "quad_perm:[2,3,0,1]", "row_half_mirror", "row_mirror")
    def dpp(op, v, m, rm="0xf"): A("%s_dpp v%d, v%d, v%d %s row_mask:%s bank_mask:0xf" % (op, v, v, v, m, rm))
    def red16(v, op):
        for m in QUADS: dpp(op, v, m)
    def swap_red(v, t, op, which):
        A("v_mov_b32 v%d, v%d" % (t, v)); A("v_permlane%d_swap_b32 v%d, v%d" % (which, v, t)); A("%s v%d, v%d, v%d" % (op, v, v, t))
    def rbf(v):
        A("v_cvt_pk_bf16_f32 v%d, v%d, v%d" % (v, v, v)); A("v_lshlrev_b32 v%d, 16, v%d" % (v, v))
    def unpack(dlo, dhi, src):
        A("v_lshlrev_b32 v%d, 16, v%d" % (dlo, src)); A("v_and_b32 v%d, s%d, v%d" % (dhi, sMASK, src))
    def layernorm(pk, n, x, d, t, halves):
        def allred(v):
            red16(v, "v_add_f32"); swap_red(v, t + 2, "v_add_f32", 16)
            if halves == 1: swap_red(v, t + 2, "v_add_f32", 32)
        for i in range(n): unpack(x + 2 * i, x + 2 * i + 1, pk + i)
        A("v_add_f32 v%d, v%d, v%d" % (t, x, x + 1)); A("v_add_f32 v%d, v%d, v%d" % (t + 1, x + 2, x + 3))
        for i in range(4, 2 * n): A("v_add_f32 v%d, v%d, v%d" % (t + (i & 1), t + (i & 1), x + i))
        A("v_add_f32 v%d, v%d, v%d" % (t, t, t + 1))
        allred(t)
        A("v_mul_f32 v%d, 0x3b000000, v%d" % (t, t))
        A("v_cvt_pk_bf16_f32 v%d, v%d, v%d" % (t + 1, t, t))
        for i in range(2 * n): A("v_sub_f32 v%d, v%d, v%d" % (d + i, x + i, t))
        A("v_lshlrev_b32 v%d, 16, v%d" % (t + 1, t + 1))
        A("v_mul_f32 v%d, v%d, v%d" % (t, d, d)); A("v_mul_f32 v%d, v%d, v%d" % (d, d + 1, d + 1))
        for i in range(2, 2 * n): A("v_fmac_f32 v%d, v%d, v%d" % (t if i & 1 else d, d + i, d + i))
        A("v_add_f32 v%d, v%d, v%d" % (t, t, d))
        for i in range(2 * n): A("v_sub_f32 v%d, v%d, v%d" % (x + i, x + i, t + 1))
        allred(t)
        for i in range(n): A("v_cvt_pk_bf16_f32 v%d, v%d, v%d" % (pk + i, x + 2 * i, x + 2 * i + 1))
        A("v_mul_f32 v%d, 0x3b000000, v%d" % (t, t)); rbf(t)
        A("v_add_f32 v%d, 0x%x, v%d" % (t, f2u(1e-5), t)); rbf(t)
        A("v_sqrt_f32 v%d, v%d" % (t, t)); rbf(t)
        A("v_rcp_f32 v%d, v%d" % (t, t))
        for i in range(n): unpack(x + 2 * i, x + 2 * i + 1, pk + i)
        for i in range(2 * n): A("v_mul_f32 v%d, v%d, v%d" % (x + i, t, x + i))
        for i in range(n): A("v_cvt_pk_bf16_f32 v%d, v%d, v%d" % (pk + i, x + 2 * i, x + 2 * i + 1))
    def lds_wait(flag, val, keep=None, sl=None):
        ok = A.label("lok"); again = A.label("lagain")
        dst = keep if keep is not None else sT3
        if keep is not None:
            A("s_cmp_ge_u32 s%d, %s" % (keep, val)); A("s_cbranch_scc1 " + ok)
        A("s_mov_b32 s%d, 0" % sSPIN)
        A(again + ":")
        A("ds_read_b32 v%d, v%d offset:%d" % (vPOLL, vHI, flag)); A("s_waitcnt lgkmcnt(0)")
        A("v_readfirstlane_b32 s%d, v%d" % (dst, vPOLL))
        A("s_cmp_ge_u32 s%d, %s" % (dst, val)); A("s_cbranch_scc1 " + ok)
        if sl is None: sl = lsleep
        if sl: A("s_sleep %d" % sl)
        A("s_add_u32 s%d, s%d, 1" % (sSPIN, sSPIN)); A("s_cmp_lt_u32 s%d, %d" % (sSPIN, lspin)); A("s_cbranch_scc1 " + again)
        A(ok + ":")
    def lds_add(flag_addr_reg, off):
        A("s_waitcnt lgkmcnt(0)")
        A("s_mov_b64 exec, 1"); A("ds_add_u32 v%d, v%d offset:%d" % (flag_addr_reg, vONE, off)); A("s_mov_b64 exec, -1")
    def gpoll(loads, first=True, sleep=0, full="-1", tag=None, P=1):
        ok = A.label("ok"); again = A.label("again")
        masks = ["vcc", "s[12:13]"]
        A("s_mov_b32 s%d, 0" % sSPIN)
        if first:
            for issue, regs in loads: issue()
        for _ in range(P - 1):
            A("s_sleep %d" % pd)
            for issue, regs in loads: issue()
        A(again + ":")
        A("s_waitcnt vmcnt(%d)" % (len(loads) * (P - 1)))
        for (issue, regs), mk in zip(loads, masks):
            t = vT + 7
            if tag is not None:
                A("v_cmp_ne_u64 %s, %s, v[%d:%d]" % (mk, tag, regs[2], regs[3])); continue
            if len(regs) == 2: A("v_max_u32 v%d, v%d, v%d" % (t, regs[0], regs[1]))
            else:
                A("v_max3_u32 v%d, v%d, v%d, v%d" % (t, regs[0], regs[1], regs[2])); A("v_max_u32 v%d, v%d, v%d" % (t, t, regs[3]))
            A("v_cmp_eq_u32 %s, -1, v%d" % (mk, t))
        if len(loads) == 2:
            A("s_or_b32 s%d, vcc_lo, vcc_hi" % sT3); A("s_or_b32 s%d, s%d, s12" % (sT3, sT3)); A("s_or_b32 s%d, s%d, s13" % (sT3, sT3))
        else:
            A("s_or_b32 s%d, vcc_lo, vcc_hi" % sT3)
        A("s_cbranch_scc0 " + ok)
        if sleep: A("s_sleep %d" % sleep)
        for (issue, regs), mk in zip(loads, masks):
            A("s_mov_b64 exec, %s" % mk); issue()
        if full == "PARTIAL": A("s_mov_b32 exec_lo, -1"); A("s_mov_b32 exec_hi, 0x1ffff")
        else: A("s_mov_b64 exec, %s" % full)
        A("s_add_u32 s%d, s%d, 1" % (sSPIN, sSPIN)); A("s_cmp_lt_u32 s%d, %d" % (sSPIN, spin)); A("s_cbranch_scc1 " + again)
        A("s_waitcnt vmcnt(0)")
        A(ok + ":")
    def apoll(vd, vaddr, soff, vtmp, sleep, first=True):
        ms = ["vcc", "s[12:13]", "s[88:89]", "s[90:91]"]
        ok = A.label("aok"); again = A.label("aagain")
        def iss(k):
            A("v_mov_b32 v%d, 0" % (vd + 2 * k)); A("v_mov_b32 v%d, 0" % (vd + 1 + 2 * k))
            A("buffer_atomic_or_x2 v[%d:%d], v%d, %s, s%d offen offset:%d sc0" % (vd + 2 * k, vd + 1 + 2 * k, vaddr, srd("WS"), soff, 512 * k))
        if first == "only":
            for k in range(4): iss(k)
            return
        A("s_mov_b32 s%d, 0" % sSPIN)
        if first:
            for k in range(4): iss(k)
        A(again + ":")
        A("s_waitcnt vmcnt(0)")
        for k in range(4): A("v_max_u32 v%d, v%d, v%d" % (vtmp + k, vd + 2 * k, vd + 1 + 2 * k))
        for k in range(4): A("v_cmp_eq_u32 %s, -1, v%d" % (ms[k], vtmp + k))
        A("s_or_b64 s[92:93], vcc, s[12:13]"); A("s_or_b64 s[94:95], s[88:89], s[90:91]"); A("s_or_b64 s[92:93], s[92:93], s[94:95]")
        A("s_cbranch_scc0 " + ok)
        if sleep: A("s_sleep %d" % sleep)
        for k in range(4):
            A("s_mov_b64 exec, %s" % ms[k]); iss(k)
        A("s_mov_b64 exec, -1")
        A("s_add_u32 s%d, s%d, 1" % (sSPIN, sSPIN)); A("s_cmp_lt_u32 s%d, %d" % (sSPIN, spin)); A("s_cbranch_scc1 " + again)
        A("s_waitcnt vmcnt(0)")
        A(ok + ":")
    def word_poll(load, vd, lanes, cmp, sleep):
        ok = A.label("fok"); again = A.label("fagain")
        A("s_mov_b32 s%d, 0" % sSPIN); A("s_mov_b64 exec, %s" % lanes)
        A(again + ":")
        A(load)
        A("s_waitcnt vmcnt(0)")
        A(cmp % vd)
        A("s_cmp_eq_u64 vcc, 0"); A("s_cbranch_scc1 " + ok)
        if sleep: A("s_sleep %d" % sleep)
        A("s_add_u32 s%d, s%d, 1" % (sSPIN, sSPIN)); A("s_cmp_lt_u32 s%d, %d" % (sSPIN, spin)); A("s_cbranch_scc1 " + again)
        A(ok + ":")
        A("s_mov_b64 exec, -1")

    def wo_dma():
        A("v_lshrrev_b32 v%d, 3, v0" % (vT + 4)); A("v_lshlrev_b32 v%d, 10, v%d" % (vT + 4, vT + 4)); A("v_and_b32 v%d, 7, v0" % (vT + 5)); A("v_lshl_add_u32 v%d, v%d, 4, v%d" % (vT + 4, vT + 5, vT + 4))
        A("s_lshr_b32 s%d, s%d, 3" % (sT0, sR)); A("s_lshl_b32 s%d, s%d, 17" % (sT0, sT0)); A("s_and_b32 s%d, s%d, 7" % (sT1, sR)); A("s_lshl_b32 s%d, s%d, 7" % (sT1, sT1))
        A("s_add_u32 s%d, s%d, s%d" % (sT0, sT0, sT1))
        for a in range(16):
            A("s_mov_b32 m0, %d" % (HI + L_WO + a * 1024))
            A("buffer_load_dwordx4 v%d, %s, s%d offen %s lds" % (vT + 4, srd("WO"), sT0, polo))
            if a < 15: A("s_add_u32 s%d, s%d, 0x2000" % (sT0, sT0))
    early = ["K", "V"] + (["WS", "DBG"] if (stamps or pmap or pgrp or pspan or probe or pad2 or p_b >= 0) else [])
    def emit_loader():
        vO = 17
        sG, sSLOT, sFR, sN = 12, 13, 88, 92
        if fast:
            if ldprio: A("s_setprio %d" % ldprio)
            A("s_and_b32 s%d, s2, 7" % sBASE); A("s_lshr_b32 s%d, s2, 3" % sT0); A("v_lshrrev_b32 v%d, 4, v0" % vG4); A("v_and_b32 v%d, 15, v0" % vN16)
            A("s_lshl_b32 s%d, s%d, 23" % (sBASE, sBASE)); A("s_lshl_b32 s%d, s%d, 18" % (sT0, sT0)); A("v_xor_b32 v%d, v%d, v%d" % (vT + 1, vG4, vN16)); A("v_lshlrev_b32 v%d, 8, v%d" % (vT, vG4))
            A("s_add_u32 s%d, s%d, s%d" % (sOFF, sBASE, sT0)); A("v_lshl_add_u32 v%d, v%d, 4, v%d" % (vO, vT + 1, vT))
            A("s_mov_b32 s%d, 0x%x" % (SRD["K"] + 2, SIZE["K"])); A("s_mov_b32 s%d, 0x20000" % (SRD["K"] + 3)); A("s_mov_b32 m0, 0")
            for i in range(1, 4): A("v_xor_b32 v%d, %d, v%d" % (vO + i, 64 * i, vO))
            A("s_mov_b32 s%d, s%d" % (sBASE, sOFF))
            A("s_waitcnt lgkmcnt(0)")
            if ldst == 2: stamp(1)
            A("L_first:")
            for i in range(4): A("buffer_load_dwordx4 v%d, %s, s%d offen offset:%d %s lds" % (vO + i, srd("K"), sOFF, i * 1024, pol))
            A("s_addk_i32 m0, 4096"); A("s_addk_i32 s%d, 4096" % sOFF); A("s_cmpk_lt_u32 m0, 0x%x" % (nfirst * 8192)); A("s_cbranch_scc1 L_first")
            if stamps:
                for k in range(2 if ldst == 2 else 1, NST): A("s_mov_b64 s[%d:%d], 0" % (16 + 2 * k, 17 + 2 * k))
            if ldst == 2: stamp(3)
            A("v_lshlrev_b32 v%d, 1, v%d" % (vT + 1, vG4)); A("v_xor_b32 v%d, v%d, v%d" % (vT + 1, vT + 1, vN16)); A("v_lshl_add_u32 v%d, v%d, 4, v%d" % (vO + 4, vT + 1, vT))
            A("v_xor_b32 v%d, 128, v%d" % (vO + 5, vO + 4))
            A("v_mov_b32 v%d, 0x%x" % (vHI, HI)); A("v_mov_b32 v%d, 1" % vONE)
            for n in early[1:]: A("s_mov_b32 s%d, 0x%x" % (SRD[n] + 2, SIZE[n])); A("s_mov_b32 s%d, 0x20000" % (SRD[n] + 3))
            if len(early) > 2:
                A("s_and_b32 s%d, s2, 7" % sR); A("s_lshl_b32 s%d, s%d, 2" % (sR, sR)); A("s_and_b32 s%d, s2, 0xe0" % sT0); A("s_add_u32 s%d, s%d, s%d" % (sR, sR, sT0))
                A("s_bfe_u32 s%d, s2, 0x20003" % sT0); A("s_add_u32 s%d, s%d, s%d" % (sR, sR, sT0))
                A("s_mov_b32 s94, 0"); A("s_mov_b32 s93, 0")
            A("s_mov_b32 s%d, %d" % (sG, 1)); A("s_mov_b32 s%d, %d" % (sSLOT, 8192 * nfirst)); A("s_mov_b32 s%d, %d" % (sN, nfirst))
            A("s_barrier")
            if ldst == 2: stamp(2)
        else:
            A("L_loader:")
            if ldprio: A("s_setprio %d" % ldprio)
            A("v_lshlrev_b32 v%d, 8, v%d" % (vT, vG4))
            for i in range(4):
                A("v_add_u32 v%d, %d, v%d" % (vT + 1, 4 * i, vG4)); A("v_xor_b32 v%d, v%d, v%d" % (vT + 1, vT + 1, vN16)); A("v_lshl_add_u32 v%d, v%d, 4, v%d" % (vO + i, vT + 1, vT))
            for i in range(2):
                A("v_add_u32 v%d, %d, v%d" % (vT + 1, 4 * i, vG4)); A("v_lshlrev_b32 v%d, 1, v%d" % (vT + 1, vT + 1))
                A("v_xor_b32 v%d, v%d, v%d" % (vT + 1, vT + 1, vN16)); A("v_lshl_add_u32 v%d, v%d, 4, v%d" % (vO + 4 + i, vT + 1, vT))
            A("s_bfe_u32 s%d, s%d, 0x30002" % (sBASE, sR)); A("s_lshl_b32 s%d, s%d, 23" % (sBASE, sBASE)); A("s_lshr_b32 s%d, s%d, 5" % (sT0, sR)); A("s_lshl_b32 s%d, s%d, 20" % (sT0, sT0))
            A("s_add_u32 s%d, s%d, s%d" % (sBASE, sBASE, sT0)); A("s_and_b32 s%d, s%d, 3" % (sT0, sR)); A("s_lshl_b32 s%d, s%d, 18" % (sT0, sT0)); A("s_add_u32 s%d, s%d, s%d" % (sBASE, sBASE, sT0))
            if rot:
                A("s_mov_b32 s94, s%d" % sBASE)
                A("s_mul_i32 s%d, s%d, %d" % (sT0, sR, rot)); A("s_lshr_b32 s%d, s%d, 5" % (sT1, sR)); A("s_add_u32 s%d, s%d, s%d" % (sT0, sT0, sT1))
                A("s_and_b32 s%d, s%d, 31" % (sT0, sT0)); A("s_lshl_b32 s%d, s%d, 13" % (sT0, sT0)); A("s_add_u32 s%d, s%d, s%d" % (sBASE, sBASE, sT0))
            if Fhi:
                A("s_and_b32 s%d, s2, 7" % sT0); A("s_lshr_b32 s%d, %d, s%d" % (sT0, himask, sT0)); A("s_and_b32 s%d, s%d, 1" % (sT0, sT0)); A("s_cselect_b32 s95, %d, %d" % (Fhi, F))
            A("s_mov_b32 s94, 0"); A("s_mov_b32 s93, 0"); A("s_mov_b32 s%d, s%d" % (sOFF, sBASE)); A("s_mov_b32 s%d, 0" % sG); A("s_mov_b32 s%d, 0" % sSLOT); A("s_mov_b32 s%d, 0" % sN)
            A("s_waitcnt lgkmcnt(0)")
        def publish_full(sgpr):
            A("v_mov_b32 v%d, s%d" % (vT, sgpr)); A("s_mov_b64 exec, 1"); A("ds_max_u32 v%d, v%d offset:%d" % (vHI, vT, F_FULL)); A("s_mov_b64 exec, -1")
        def dma_block(isk):
            Dm = D if isk else DV
            for half in range(2):
                A("s_mov_b32 m0, s%d" % sSLOT)
                if Dm: A("s_waitcnt vmcnt(%d)" % Dm)
                for i in range(4):
                    A("buffer_load_dwordx4 v%d, %s, s%d offen offset:%d %s lds" % (vO + i if isk else vO + 4 + (i & 1), srd("K" if isk else "V"), sOFF, i * 1024, pol))
                A("s_add_u32 s%d, s%d, 4096" % (sOFF, sOFF)); A("s_add_u32 s%d, s%d, 4096" % (sSLOT, sSLOT))
                if Dm and (4 * half - Dm) % 8 < 4:
                    A("s_add_i32 s%d, s%d, %d" % (sT0, sN, (4 * half - Dm) // 8)); A("s_max_i32 s%d, s%d, 0" % (sT0, sT0)); publish_full(sT0)
            if rot:
                A("s_and_b32 s%d, s%d, 0x3ffff" % (sOFF, sOFF)); A("s_or_b32 s%d, s%d, s94" % (sOFF, sOFF))
            A("s_and_b32 s%d, s%d, 0x1ffff" % (sSLOT, sSLOT)); A("s_add_u32 s%d, s%d, 1" % (sN, sN))
        if fast:
            for _ in range(4 - nfirst): dma_block(True)
        else:
            if ldst == 2: stamp(1)
            for _ in range(pre): dma_block(True)
            A("s_barrier")
            if ldst == 2: stamp(2)
            for _ in range(4 - pre): dma_block(True)
            A("s_mov_b32 s%d, 1" % sG)
            if ldst == 2: stamp(3)
        def read_freed():
            A("ds_read_b128 %s, v%d offset:%d" % (vr(vT + 4, 4), vHI, F_FREED)); A("s_waitcnt lgkmcnt(0)")
            for c in range(4): A("v_readfirstlane_b32 s%d, v%d" % (sFR + c, vT + 4 + c))
        for isk, last in ((True, 8), (False, 19 if steal else 16)):
            loop = "L_ld_k" if isk else "L_ld_v"
            if not isk: A("s_mov_b32 s%d, s%d" % (sOFF, sBASE))
            A(loop + ":")
            for g_, reg in ((p_a, 16), (p_b, 18)):
                if g_ > 0 and g_ < 16 and (g_ < 8) == isk:
                    sk = A.label("st"); A("s_cmp_lg_u32 s%d, %d" % (sG, g_)); A("s_cbranch_scc1 " + sk); A("s_memrealtime s[%d:%d]" % (reg, reg + 1)); A(sk + ":")
            if ldst == 1:
                for k, g in enumerate((2, 3, 4, 5, 6, 7) if isk else (8, 10, 12, 14)):
                    sk = A.label("st"); A("s_cmp_lg_u32 s%d, %d" % (sG, g)); A("s_cbranch_scc1 " + sk); stamp(k + 1 if isk else k + 7); A(sk + ":")
            if steal and not isk:
                go = A.label("pgo"); again = A.label("pagain")
                A("s_cmp_lt_u32 s%d, %d" % (sG, 8 + NOWN)); A("s_cbranch_scc1 " + go)
                A("s_mov_b32 s%d, 0" % sSPIN); A("s_sub_u32 s%d, s%d, 8" % (sT1, sG))
                if ldst: A("s_memrealtime s[14:15]")
                A(again + ":")
                A("ds_read_b32 v%d, v%d offset:%d" % (vPOLL, vHI, F_PLAN)); A("s_waitcnt lgkmcnt(0)"); A("v_readfirstlane_b32 s%d, v%d" % (sT0, vPOLL))
                A("s_and_b32 s%d, s%d, 0xff" % (sT2, sT0)); A("s_cmp_gt_u32 s%d, s%d" % (sT2, sT1)); A("s_cbranch_scc1 L_granted")
                A("s_cmp_ge_u32 s%d, 0x100" % sT0); A("s_cbranch_scc1 L_ld_end")
                for k in range(F - 1, -1, -1):
                    A("s_cmp_eq_u32 s%d, %d" % (sSPIN, F - 1 - k)); nx = A.label("nx"); A("s_cbranch_scc0 " + nx)
                    A("s_sub_u32 s%d, s%d, %d" % (sT0, sN, k)); A("s_waitcnt vmcnt(%d)" % (8 * k)); publish_full(sT0); A(nx + ":")
                if ldst: A("s_add_u32 s93, s93, 1")
                A("s_add_u32 s%d, s%d, 1" % (sSPIN, sSPIN)); A("s_cmp_lt_u32 s%d, %d" % (sSPIN, lspin)); A("s_cbranch_scc1 " + again)
                A("s_branch L_ld_end")
                A("L_granted:")
                if ldst:
                    A("s_memrealtime s[36:37]"); A("s_waitcnt lgkmcnt(0)"); A("s_sub_u32 s36, s36, s14"); A("s_add_u32 s94, s94, s36")
                A("s_cmp_lt_u32 s%d, 16" % sG); A("s_cbranch_scc1 " + go)
                A("s_sub_u32 s%d, 23, s%d" % (sT0, sG)); A("s_lshl_b32 s%d, s%d, 15" % (sT0, sT0)); A("s_xor_b32 s%d, s%d, 0x80000" % (sOFF, sBASE)); A("s_add_u32 s%d, s%d, s%d" % (sOFF, sOFF, sT0))
                A(go + ":")
            read_freed()
            A("s_sub_i32 s%d, s%d, 2" % (sT1, sG))
            if Fhi and hiend < 16:
                A("s_cmp_ge_u32 s%d, %d" % (sG, hiend)); A("s_cselect_b32 s95, %d, s95" % F)
            for c in range(4):
                go = A.label("go"); sl = A.label("slow")
                A("s_cmp_ge_i32 s%d, s%d" % (sFR + c, sT1)); A("s_cbranch_scc1 " + go)
                A("s_waitcnt vmcnt(0)"); publish_full(sN)
                if ldst: A("s_add_u32 s93, s93, 100")
                A("s_mov_b32 s%d, 0" % sSPIN)
                A(sl + ":")
                read_freed()
                A("s_cmp_ge_i32 s%d, s%d" % (sFR + c, sT1)); A("s_cbranch_scc1 " + go)
                A("s_add_u32 s%d, s%d, 1" % (sSPIN, sSPIN)); A("s_cmp_lt_u32 s%d, %d" % (sSPIN, lspin)); A("s_cbranch_scc1 " + sl)
                A(go + ":")
                dma_block(isk)
                if D: pass
                elif bal == 1:
                    hi = A.label("hi")
                    A("ds_read_b32 v%d, v%d offset:%d" % (vPOLL, vHI, F_MODE))
                    A("s_sub_i32 s%d, s%d, %d" % (sT0, sN, F))
                    A("s_waitcnt vmcnt(%d) lgkmcnt(0)" % (8 * F)); A("v_readfirstlane_b32 s%d, v%d" % (sT2, vPOLL))
                    A("s_cmp_eq_u32 s%d, 0" % sT2); A("s_cbranch_scc1 " + hi)
                    publish_full(sT0)
                    if ldst: A("s_add_u32 s94, s94, 100")
                    A("s_sub_i32 s%d, s%d, %d" % (sT0, sN, (Flo + 7) // 8 if Flo > 7 else Flo))
                    A("s_waitcnt vmcnt(%d)" % (Flo if Flo > 7 else 8 * Flo)); A(hi + ":"); publish_full(sT0)
                elif Fhi:
                    hi = A.label("hi")
                    A("s_sub_i32 s%d, s%d, s95" % (sT0, sN)); A("s_max_i32 s%d, s%d, 0" % (sT0, sT0))
                    A("s_waitcnt vmcnt(%d)" % (8 * Fhi)); A("s_cmp_eq_u32 s95, %d" % Fhi); A("s_cbranch_scc1 " + hi)
                    A("s_waitcnt vmcnt(%d)" % (8 * F)); A(hi + ":"); publish_full(sT0)
                else:
                    A("s_sub_i32 s%d, s%d, %d" % (sT0, sN, F))
                    if F > 5: A("s_max_i32 s%d, s%d, 0" % (sT0, sT0))
                    A("s_waitcnt vmcnt(%d)" % (8 * F)); publish_full(sT0)
            if stamps:
                pass
            A("s_add_u32 s%d, s%d, 1" % (sG, sG)); A("s_cmp_lt_u32 s%d, %d" % (sG, last)); A("s_cbranch_scc1 " + loop)
            if not ldst: stamp(1 if isk else 2)
        if steal:
            A("L_ld_end:")
            A("s_mov_b64 exec, 1"); A("ds_write_b32 v%d, v%d offset:%d" % (vHI, vONE, F_LI)); A("s_mov_b64 exec, -1")
        if wolate == 1: wo_dma()
        for k in range((DV + 4 + 7) // 8 - 1 if D else max(F, Fhi) - 1, -1, -1):
            A("s_sub_u32 s%d, s%d, %d" % (sT0, sN, k)); A("s_waitcnt vmcnt(%d)" % (8 * k + (16 if wolate == 1 else 0))); publish_full(sT0)
        if wolate == 1:
            if ldst: stamp(11)
            A("s_waitcnt vmcnt(0)"); A("s_mov_b64 exec, 1"); A("ds_write_b32 v%d, v%d offset:%d" % (vHI, vONE, F_WO)); A("s_mov_b64 exec, -1")
        if ldst:
            if wolate == 1: stamp(12)
            else:
                stamp(11)
                A("s_waitcnt lgkmcnt(0)"); A("s_mul_i32 s%d, s%d, 25" % (sT0, sN)); A("s_add_u32 s40, s16, s%d" % sT0); A("s_addc_u32 s41, s17, 0")
                if steal: A("s_add_u32 s36, s16, s94"); A("s_addc_u32 s37, s17, 0")
                if bal: A("s_add_u32 s40, s16, s94"); A("s_addc_u32 s41, s17, 0")
        else: stamp(3)
        if p_b >= 0 and piv:
            if p_b == 16: A("s_memrealtime s[18:19]")
            A("s_waitcnt lgkmcnt(0)"); A("s_sub_u32 s18, s18, s16")
        elif p_b >= 0:
            if p_b == 16: A("s_memrealtime s[18:19]")
            A("s_waitcnt lgkmcnt(0)"); A("s_sub_u32 s18, s18, s16"); A("v_mov_b32 v8, s18"); A("s_mov_b64 exec, 1"); A("buffer_atomic_add v8, off, %s, 0 offset:4" % srd("DBG")); A("s_mov_b64 exec, -1")
        if pmap:
            if not piv: A("s_memrealtime s[18:19]")
            A("s_lshl_b32 s6, s%d, 2" % sR); A("s_add_u32 s6, s6, 0x300000")
            A("s_waitcnt lgkmcnt(0)")
            if pst: A("s_add_u32 s18, s16, 500")
            A("v_mov_b32 v8, s18"); A("s_mov_b64 exec, 1"); A("buffer_store_dword v8, off, %s, s6 sc1" % srd("WS")); A("s_mov_b64 exec, -1")
        if pspan:
            A("s_memrealtime s[18:19]"); A("s_waitcnt lgkmcnt(0)")
            if pspan in (3, 4): A("s_mov_b32 s18, s16")
            if pm: A("s_and_b32 s6, s2, %d" % pm); A("s_cmp_eq_u32 s6, %d" % pval); A("s_cselect_b32 s18, s18, s16")
            A("s_not_b32 s16, s16"); A("v_mov_b32 v8, s18"); A("v_mov_b32 v9, s16"); A("s_mov_b64 exec, 1")
            A("buffer_atomic_%s v8, off, %s, 0 offset:4" % ("add" if pspan in (4, 5) else "umax", srd("DBG"))); A("buffer_atomic_umax v9, off, %s, 0 offset:8" % srd("DBG")); A("s_mov_b64 exec, -1")
        if pgrp:
            if not piv: A("s_memrealtime s[18:19]")
            if pgrp == 1: A("s_and_b32 s6, s2, 7")
            elif pgrp == 2: A("s_bfe_u32 s6, s%d, 0x30002" % sR)
            elif pgrp == 3: A("s_lshr_b32 s6, s%d, 5" % sR)
            else: A("s_and_b32 s6, s%d, 3" % sR); A("s_lshr_b32 s7, s2, 7"); A("s_lshl_b32 s7, s7, 2"); A("s_add_u32 s6, s6, s7")
            A("s_lshl_b32 s6, s6, 5")
            A("s_waitcnt lgkmcnt(0)"); A("v_mov_b32 v8, s18"); A("s_mov_b64 exec, 1"); A("buffer_atomic_%s v8, off, %s, s6 offset:4" % ("add" if pat >= 12 else "umax", srd("DBG"))); A("s_mov_b64 exec, -1")
        if probe:
            A("s_memrealtime s[20:21]"); A("s_waitcnt lgkmcnt(0)")
            if pstart: A("s_mov_b32 s20, s16")
            A("s_and_b32 s6, s2, 7"); A("s_lshr_b32 s6, %d, s6" % probe); A("s_and_b32 s6, s6, 1"); A("s_lshl_b32 s6, s6, 2"); A("s_add_u32 s6, s6, 4")
            A("s_waitcnt lgkmcnt(0)"); A("v_mov_b32 v8, s20"); A("s_mov_b64 exec, 1"); A("buffer_atomic_add v8, off, %s, s6" % srd("DBG")); A("s_mov_b64 exec, -1")
        A("s_waitcnt lgkmcnt(0)")
        A("s_branch L_done")

    stamp(0)
    A("s_cmp_ge_u32 s2, 256"); A("s_cbranch_scc1 L_end")
    if stamps and not fast:
        for k in range(1, NST): A("s_mov_b64 s[%d:%d], 0" % (16 + 2 * k, 17 + 2 * k))
    if (pad or p_b >= 0 or pspan or pstart or pmap or pad2) and not stamps: A("s_memrealtime s[16:17]")
    if fast:
        assert xmap == 1 and not (rot or Fhi or bshift or steal or wolate == 1)
        for n in early: A("s_load_dwordx2 s[%d:%d], s[0:1], %d" % (SRD[n], SRD[n] + 1, KARG[n]))
        A("v_lshrrev_b32 v1, 6, v0"); A("v_and_b32 v0, 63, v0"); A("v_readfirstlane_b32 s%d, v1" % sWAVE)
        A("s_cmp_lg_u32 s%d, 4" % sWAVE); A("s_cbranch_scc1 L_rest")
        emit_loader()
        A("L_rest:")
        if stamps:
            for k in range(1, NST): A("s_mov_b64 s[%d:%d], 0" % (16 + 2 * k, 17 + 2 * k))
    for n in ("K", "X", "WQ", "WS", "V", "WO", "W1", "B1", "W2", "DBG", "OUT"):
        if not (fast and n in early): A("s_load_dwordx2 s[%d:%d], s[0:1], %d" % (SRD[n], SRD[n] + 1, KARG[n]))
    A("s_load_dwordx2 s[%d:%d], s[0:1], 72" % (sB2P, sB2P + 1))
    if not fast: A("v_lshrrev_b32 v1, 6, v0"); A("v_and_b32 v0, 63, v0"); A("v_readfirstlane_b32 s%d, v1" % sWAVE)
    for n in SRD:
        A("s_mov_b32 s%d, 0x%x" % (SRD[n] + 2, SIZE[n])); A("s_mov_b32 s%d, 0x20000" % (SRD[n] + 3))
    if xmap == 0:
        A("s_and_b32 s%d, s2, 7" % sR); A("s_lshl_b32 s%d, s%d, 5" % (sR, sR)); A("s_lshr_b32 s%d, s2, 3" % sT0); A("s_add_u32 s%d, s%d, s%d" % (sR, sR, sT0))
    elif xmap >= 8:
        A("s_bfe_u32 s%d, s2, 0x10003" % sT0); A("s_bfe_u32 s%d, s2, 0x10004" % sT1); A("s_lshl_b32 s%d, s%d, 2" % (sT1, sT1)); A("s_add_u32 s%d, s%d, s%d" % (sT0, sT0, sT1))
        if xmap == 9: A("s_lshr_b32 s%d, s2, 5" % sT1); A("s_add_u32 s%d, s%d, s%d" % (sT0, sT0, sT1))
        A("s_sub_u32 s%d, s2, s%d" % (sR, sT0))
        A("s_and_b32 s%d, s%d, 7" % (sR, sR)); A("s_lshl_b32 s%d, s%d, 2" % (sR, sR)); A("s_and_b32 s%d, s2, 0xe0" % sT0); A("s_add_u32 s%d, s%d, s%d" % (sR, sR, sT0))
        A("s_bfe_u32 s%d, s2, 0x20003" % sT0); A("s_add_u32 s%d, s%d, s%d" % (sR, sR, sT0))
    elif xmap >= 4:
        A("s_lshr_b32 s%d, s2, 1" % sT0); A("s_xor_b32 s%d, s%d, s2" % (sT0, sT0)); A("s_and_b32 s%d, s%d, 1" % (sT0, sT0)); A("s_lshl_b32 s%d, s%d, 3" % (sT0, sT0))
        A("s_and_b32 s%d, s2, 4" % sT1); A("s_lshl_b32 s%d, s%d, 2" % (sT1, sT1)); A("s_add_u32 s%d, s%d, s%d" % (sT0, sT0, sT1))
        A("s_bfe_u32 s%d, s2, 0x10003" % sT1); A("s_lshl_b32 s%d, s%d, 2" % (sT1, sT1)); A("s_add_u32 s%d, s%d, s%d" % (sT0, sT0, sT1))
        A("s_and_b32 s%d, s2, 0xe0" % sR); A("s_add_u32 s%d, s%d, s%d" % (sR, sR, sT0))
        if xmap == 6:
            A("s_lshr_b32 s%d, s2, 5" % sT0); A("s_xor_b32 s%d, s%d, s2" % (sT0, sT0)); A("s_and_b32 s%d, s%d, 1" % (sT0, sT0))
        elif xmap == 7:
            A("s_lshr_b32 s%d, s2, 3" % sT0); A("s_xor_b32 s%d, s%d, s2" % (sT0, sT0)); A("s_and_b32 s%d, s%d, 1" % (sT0, sT0))
        else: A("s_and_b32 s%d, s2, 1" % sT0)
        A("s_bfe_u32 s%d, s2, 0x10004" % sT1)
        A("s_lshl_b32 s%d, s%d, 1" % ((sT0, sT0) if xmap != 5 else (sT1, sT1)))
        A("s_add_u32 s%d, s%d, s%d" % (sR, sR, sT0)); A("s_add_u32 s%d, s%d, s%d" % (sR, sR, sT1))
    else:
        if xmap == 2:
            A("s_lshr_b32 s%d, s2, 5" % sT0); A("s_add_u32 s%d, s2, s%d" % (sR, sT0))
        elif xmap == 3:
            A("s_bfe_u32 s%d, s2, 0x20003" % sT0); A("s_lshl_b32 s%d, s%d, 1" % (sT0, sT0)); A("s_add_u32 s%d, s2, s%d" % (sR, sT0))
        else: A("s_add_u32 s%d, s2, %d" % (sR, bshift))
        A("s_and_b32 s%d, s%d, 7" % (sR, sR)); A("s_lshl_b32 s%d, s%d, 2" % (sR, sR)); A("s_and_b32 s%d, s2, 0xe0" % sT0); A("s_add_u32 s%d, s%d, s%d" % (sR, sR, sT0))
        A("s_bfe_u32 s%d, s2, 0x20003" % sT0); A("s_add_u32 s%d, s%d, s%d" % (sR, sR, sT0))
    sRQ = sMB
    if xmap >= 4:
        A("s_and_b32 s%d, s2, 7" % sRQ); A("s_lshl_b32 s%d, s%d, 2" % (sRQ, sRQ)); A("s_and_b32 s%d, s2, 0xe0" % sT0); A("s_add_u32 s%d, s%d, s%d" % (sRQ, sRQ, sT0))
        A("s_bfe_u32 s%d, s2, 0x20003" % sT0); A("s_add_u32 s%d, s%d, s%d" % (sRQ, sRQ, sT0))
    elif qmap == 0: A("s_mov_b32 s%d, s%d" % (sRQ, sR))
    elif qmap == 1:
        A("s_and_b32 s%d, s2, 7" % sRQ); A("s_lshl_b32 s%d, s%d, 5" % (sRQ, sRQ)); A("s_lshr_b32 s%d, s2, 3" % sT0); A("s_add_u32 s%d, s%d, s%d" % (sRQ, sRQ, sT0))
    elif qmap == 2:
        A("s_lshr_b32 s%d, s%d, 3" % (sT0, sR)); A("s_and_b32 s%d, s%d, 0x1c" % (sT0, sT0)); A("s_add_u32 s%d, s%d, s%d" % (sT0, sT0, sR)); A("s_and_b32 s%d, s%d, 0x1c" % (sT0, sT0))
        A("s_and_b32 s%d, s%d, 0xe3" % (sRQ, sR)); A("s_or_b32 s%d, s%d, s%d" % (sRQ, sRQ, sT0))
    elif qmap == 4:
        A("s_lshr_b32 s%d, s%d, 5" % (sT0, sR)); A("s_lshl_b32 s%d, s%d, 1" % (sT0, sT0)); A("s_bfe_u32 s%d, s%d, 0x10001" % (sT1, sR)); A("s_add_u32 s%d, s%d, s%d" % (sT0, sT0, sT1))
        A("s_lshr_b32 s%d, s%d, 2" % (sT1, sT0)); A("s_lshl_b32 s%d, s%d, 1" % (sT1, sT1)); A("s_bfe_u32 s%d, s%d, 0x30002" % (sT2, sR)); A("s_add_u32 s%d, s%d, s%d" % (sT1, sT1, sT2))
        A("s_and_b32 s%d, s%d, 7" % (sT1, sT1)); A("s_lshl_b32 s%d, s%d, 3" % (sT0, sT0)); A("s_add_u32 s%d, s%d, s%d" % (sT0, sT0, sT1)); A("s_lshl_b32 s%d, s%d, 1" % (sT0, sT0))
        A("s_and_b32 s%d, s%d, 1" % (sT1, sR)); A("s_add_u32 s%d, s%d, s%d" % (sRQ, sT0, sT1))
    A("v_lshlrev_b32 v%d, 4, v0" % vL16); A("v_lshrrev_b32 v%d, 4, v0" % vG4); A("v_bfe_u32 v%d, v0, 2, 2" % vC4)
    A("v_and_b32 v%d, 3, v0" % vR4); A("v_and_b32 v%d, 15, v0" % vN16); A("v_mov_b32 v%d, 0x%x" % (vHI, HI)); A("v_mov_b32 v%d, 1" % vONE)
    A("s_mov_b32 s%d, 0x05040100" % sSELLO); A("s_mov_b32 s%d, 0x07060302" % sSELHI); A("s_mov_b32 s%d, 0xffff0000" % sMASK)
    A("s_mov_b32 s%d, 0x%x" % (sSCALE, f2u(128 ** -0.5))); A("s_mov_b32 s%d, 0x%x" % (sL2E, f2u(1.4426950408889634)))
    c0 = -2.0 * 0.7978845608028654 * 1.4426950408889634
    A("s_mov_b32 s%d, 0x%x" % (sC0, f2u(c0))); A("s_mov_b32 s%d, 0x%x" % (sC1, f2u(c0 * 0.044715)))
    A("s_lshr_b32 s%d, s%d, 5" % (sT0, sR)); A("s_lshl_b32 s%d, s%d, 15" % (sT0, sT0))
    A("s_and_b32 s%d, s%d, 31" % (sT1, sR)); A("s_lshl_b32 s%d, s%d, 8" % (sT1, sT1)); A("s_add_u32 s%d, s%d, s%d" % (sT0, sT0, sT1))
    A("s_add_u32 s%d, s%d, 0x%x" % (sOPOFF, sT0, WS_OP))
    A("s_and_b32 s%d, s%d, 7" % (sT0, sR)); A("s_lshl_b32 s%d, s%d, %d" % (sT0, sT0, 13 + spad))
    A("s_lshr_b32 s%d, s%d, 3" % (sT1, sR)); A("s_lshl_b32 s%d, s%d, %d" % (sT1, sT1, 6 + spad)); A("s_add_u32 s%d, s%d, s%d" % (sT0, sT0, sT1))
    A("s_add_u32 s%d, s%d, 0x%x" % (sSPOFF, sT0, WS_SP))
    A("s_lshr_b32 s%d, s%d, 2" % (sT0, sR)); A("s_lshl_b32 s%d, s%d, 7" % (sT0, sT0)); A("s_add_u32 s%d, s%d, 0x%x" % (sSTOFF, sT0, WS_ST))
    if not fast: A("s_cmp_eq_u32 s%d, 4" % sWAVE); A("s_cbranch_scc1 L_loader")
    A("s_cmp_eq_u32 s%d, 5" % sWAVE); A("s_cbranch_scc1 L_comm")
    A("s_cmp_gt_u32 s%d, 5" % sWAVE); A("s_cbranch_scc1 L_mlp")

    vQ, vS, vTMP, vK = 32, 48, 112, 128
    vKA, vVA = 17, 17
    vM, vLs, vMO, vF, vOWA = 25, 26, 27, 28, 29
    vX = vS
    A("v_lshlrev_b32 v%d, 5, v0" % vT)
    A("v_lshrrev_b32 v%d, 1, v0" % (vT + 1)); A("v_lshlrev_b32 v%d, 13, v%d" % (vT + 1, vT + 1))
    A("v_and_b32 v%d, 1, v0" % (vT + 2)); A("v_lshl_add_u32 v%d, v%d, 4, v%d" % (vT + 1, vT + 2, vT + 1))
    A("s_lshl_b32 s%d, s%d, 11" % (sT2, sWAVE))
    A("s_lshl_b32 s%d, s%d, 20" % (sT0, sWAVE)); A("s_lshl_b32 s%d, s%d, 5" % (sT1, sRQ)); A("s_add_u32 s%d, s%d, s%d" % (sT0, sT0, sT1))
    A("s_lshl_b32 s%d, s%d, 13" % (sT1, sWAVE)); A("s_add_u32 s%d, s%d, %d" % (sT1, sT1, 12 * 8192))
    A("s_waitcnt lgkmcnt(0)")
    if ldst == 2: stamp(12)
    A("buffer_load_dwordx4 %s, v%d, %s, s%d offen" % (vr(vX, 4), vT, srd("X"), sT2))
    A("buffer_load_dwordx4 %s, v%d, %s, s%d offen offset:16" % (vr(vX + 4, 4), vT, srd("X"), sT2))
    nq0 = wqsplit if wqsplit else 4
    for a in range(nq0):
        A("s_add_u32 m0, s%d, %d" % (sT1, a * 1024))
        if 'q' in abl: A("buffer_load_dwordx4 v%d, %s, 0 offen lds" % (vL16, srd("X")))
        else: A("buffer_load_dwordx4 v%d, %s, s%d offen %s lds" % (vT + 1, srd("WQ"), sT0, polq))
        if a < 3: A("s_add_u32 s%d, s%d, 0x40000" % (sT0, sT0))
    if nq0 < 4: A("v_mov_b32 v31, v%d" % (vT + 1)); A("s_mov_b32 s12, s%d" % sT0)
    A("s_barrier")
    A("v_lshrrev_b32 v%d, 5, v0" % (vT + 3)); A("s_lshl_b32 s%d, s%d, 1" % (sT0, sWAVE)); A("v_add_u32 v%d, s%d, v%d" % (vT + 3, sT0, vT + 3))
    A("v_mul_u32_u24 v%d, %d, v%d" % (vT + 3, XN_STRIDE, vT + 3)); A("v_and_b32 v%d, 31, v0" % (vT + 4)); A("v_lshl_add_u32 v%d, v%d, 5, v%d" % (vT + 3, vT + 4, vT + 3))
    A("v_add_u32 v%d, v%d, v%d" % (vT + 3, vHI, vT + 3))
    A("v_and_b32 v%d, 7, v0" % (vT + 4)); A("v_mul_u32_u24 v%d, %d, v%d" % (vT + 4, XN_STRIDE, vT + 4)); A("v_lshl_add_u32 v%d, v%d, 4, v%d" % (vT + 4, vG4, vT + 4))
    A("s_lshl_b32 s%d, s%d, 8" % (sT0, sWAVE)); A("s_add_u32 s%d, s%d, %d" % (sT0, sT0, HI)); A("v_add_u32 v%d, s%d, v%d" % (vT + 4, sT0, vT + 4))
    A("v_lshlrev_b32 v%d, 8, v%d" % (vT + 5, vG4)); A("v_lshl_add_u32 v%d, v%d, 3, v%d" % (vT + 5, vN16, vT + 5)); A("v_add_u32 v%d, s%d, v%d" % (vT + 5, sT1, vT + 5))
    A("s_lshl_b32 s%d, s%d, 10" % (sT0, sWAVE)); A("s_add_u32 s%d, s%d, %d" % (sT0, sT0, HI)); A("v_add_u32 v%d, s%d, v%d" % (vT + 6, sT0, vL16))
    A("s_lshl_b32 s%d, s%d, 13" % (sT0, sWAVE)); A("v_lshlrev_b32 v%d, 8, v%d" % (vT, vN16)); A("v_add_u32 v%d, s%d, v%d" % (vT, sT0, vT))
    for m in range(4):
        A("v_add_u32 v%d, %d, v%d" % (vT + 1, 4 * m, vG4)); A("v_xor_b32 v%d, v%d, v%d" % (vT + 1, vT + 1, vN16))
        A("v_lshl_add_u32 v%d, v%d, 4, v%d" % (vKA + m, vT + 1, vT)); A("v_add_u32 v%d, 0x10000, v%d" % (vKA + 4 + m, vKA + m))
    A("s_lshl_b32 s%d, s%d, 2" % (sT0, sWAVE)); A("s_add_u32 s%d, s%d, %d" % (sT0, sT0, HI)); A("v_mov_b32 v%d, s%d" % (30, sT0))
    A("s_mov_b32 s%d, 0" % sFULL)
    A("s_waitcnt vmcnt(%d)" % nq0)
    for a in range(nq0, 4):
        A("s_add_u32 m0, s%d, %d" % (sT1, a * 1024))
        A("buffer_load_dwordx4 v31, %s, s12 offen %s lds" % (srd("WQ"), polq))
        if a < 3: A("s_add_u32 s12, s12, 0x40000")
    stamp(1)
    layernorm(vX, 8, vX + 8, vX + 24, vX + 40, 2)
    A("ds_write_b128 v%d, %s offset:%d" % (vT + 3, vr(vX, 4), L_XN)); A("ds_write_b128 v%d, %s offset:%d" % (vT + 3, vr(vX + 4, 4), L_XN + 16))
    lds_add(vHI, F_XN)
    A("s_waitcnt vmcnt(0)")
    for m in range(4):
        A("ds_read_b64_tr_b16 %s, v%d offset:%d" % (vr(vK + 4 * m, 2), vT + 5, m * 1024))
        A("ds_read_b64_tr_b16 %s, v%d offset:%d" % (vr(vK + 4 * m + 2, 2), vT + 5, m * 1024 + 128))
    lds_wait(F_XN, 4)
    for m in range(4): A("ds_read_b128 %s, v%d offset:%d" % (vr(vK + 16 + 4 * m, 4), vT + 4, L_XN + m * 64))
    for m in range(4):
        A("s_waitcnt lgkmcnt(%d)" % (3 - m))
        A("v_mfma_f32_16x16x32_bf16 %s, %s, %s, %s" % (vr(vTMP, 4), vr(vK + 4 * m, 4), vr(vK + 16 + 4 * m, 4), "0" if m == 0 else vr(vTMP, 4)))
    A("ds_write_b128 v%d, %s offset:%d" % (vT + 6, vr(vTMP, 4), L_QP))
    lds_add(vHI, F_QP)
    A("s_mov_b64 exec, 1"); A("ds_add_u32 v30, v%d offset:%d" % (vONE, F_FREED)); A("s_mov_b64 exec, -1")
    stamp(2)
    def wait_block(n4):
        A("s_add_u32 s%d, s%d, %d" % (sT0, sWAVE, 4 * n4 + 1))
        lds_wait(F_FULL, "s%d" % sT0, keep=sFULL)
    def read_k(j):
        base = vK + 32 * (j % 4)
        for t in range(2):
            for m in range(4):
                A("ds_read_b128 %s, v%d offset:%d" % (vr(base + 16 * t + 4 * m, 4), vKA + m + (4 if (j & 2) else 0), (j & 1) * 32768 + t * 4096))
    def qk_block(j):
        base = vK + 32 * (j % 4)
        for m in range(4):
            for t in range(2):
                acc = vr(vS + 8 * j + 4 * t, 4)
                A("v_mfma_f32_16x16x32_bf16 %s, %s, %s, %s" % (acc, vr(base + 16 * t + 4 * m, 4), vr(vQ + 4 * m, 4), "0" if m == 0 else acc))
    def round_block(j):
        for p in range(4):
            a, b, t = vS + 8 * j + 2 * p, vS + 8 * j + 2 * p + 1, vT + (p & 1)
            if mimic:
                A("v_cvt_pk_bf16_f32 v%d, v%d, v%d" % (t, a, b)); unpack(a, b, t)
            A("v_mul_f32 v%d, s%d, v%d" % (a, sSCALE, a)); A("v_mul_f32 v%d, s%d, v%d" % (b, sSCALE, b))
            if mimic:
                A("v_cvt_pk_bf16_f32 v%d, v%d, v%d" % (t, a, b)); unpack(a, b, t)
            if j == 0 and p == 0: A("v_max_f32 v%d, v%d, v%d" % (vM, a, b))
            else: A("v_max3_f32 v%d, v%d, v%d, v%d" % (vM, a, b, vM))
    for j in range(4):
        wait_block(j); read_k(j); lds_add(30, F_FREED)
    stamp(3)
    lds_wait(F_QR, 1)
    stamp(4)
    A("v_lshlrev_b32 v%d, 8, v%d" % (vT, vC4)); A("v_lshl_add_u32 v%d, v%d, 4, v%d" % (vT, vG4, vT)); A("v_add_u32 v%d, v%d, v%d" % (vT, vHI, vT))
    for m in range(4): A("ds_read_b128 %s, v%d offset:%d" % (vr(vQ + 4 * m, 4), vT, L_QB + m * 64))
    A("s_waitcnt lgkmcnt(0)")
    for j in range(4):
        qk_block(j)
        wait_block(4 + j); A("s_nop 3"); read_k(4 + j)
        if j >= 1: round_block(j - 1)
        lds_add(30, F_FREED)
    for j in range(4, 8):
        qk_block(j); round_block(j - 1)
    A("v_lshl_add_u32 v%d, v%d, 2, v%d" % (vT + 2, vG4, vC4))
    A("v_and_b32 v%d, 7, v%d" % (vT + 3, vT + 2)); A("v_lshlrev_b32 v%d, 1, v%d" % (vT + 3, vT + 3))
    A("v_lshrrev_b32 v%d, 1, v%d" % (vT + 4, vR4)); A("v_xor_b32 v%d, v%d, v%d" % (vT + 3, vT + 3, vT + 4))
    A("v_lshlrev_b32 v%d, 8, v%d" % (vT + 2, vT + 2)); A("v_lshl_add_u32 v%d, v%d, 4, v%d" % (vT + 2, vT + 3, vT + 2))
    A("v_and_b32 v%d, 1, v0" % (vT + 4)); A("v_lshl_add_u32 v%d, v%d, 3, v%d" % (vT + 2, vT + 4, vT + 2))
    A("s_lshl_b32 s%d, s%d, 13" % (sT0, sWAVE)); A("v_add_u32 v%d, s%d, v%d" % (vVA, sT0, vT + 2))
    for d in range(1, 8): A("v_xor_b32 v%d, %d, v%d" % (vVA + d, 32 * d, vVA))
    round_block(7)
    swap_red(vM, vT, "v_max_f32", 32); swap_red(vM, vT, "v_max_f32", 16)
    A("v_mul_f32 v%d, s%d, v%d" % (vM, sL2E, vM))
    A("v_lshlrev_b32 v%d, 4, v%d" % (vT + 1, vG4)); A("ds_bpermute_b32 v%d, v%d, v%d" % (vMO, vT + 1, vM))
    vP = vK
    for j in range(32):
        a, b = vS + 2 * j, vS + 2 * j + 1
        A("v_fma_f32 v%d, v%d, s%d, -v%d" % (a, a, sL2E, vM)); A("v_fma_f32 v%d, v%d, s%d, -v%d" % (b, b, sL2E, vM))
        A("v_exp_f32 v%d, v%d" % (a, a)); A("v_exp_f32 v%d, v%d" % (b, b))
        if j >= 1:
            pa, pb = a - 2, b - 2
            if j == 1: A("v_add_f32 v%d, v%d, v%d" % (vLs, pa, pb))
            else: A("v_add_f32 v%d, v%d, v%d" % (vLs, vLs, pa)); A("v_add_f32 v%d, v%d, v%d" % (vLs, vLs, pb))
            A("v_cvt_pk_bf16_f32 v%d, v%d, v%d" % (vP + j - 1, pa, pb))
    A("v_add_f32 v%d, v%d, v%d" % (vLs, vLs, vS + 62)); A("v_add_f32 v%d, v%d, v%d" % (vLs, vLs, vS + 63))
    A("v_cvt_pk_bf16_f32 v%d, v%d, v%d" % (vP + 31, vS + 62, vS + 63))
    swap_red(vLs, vT, "v_add_f32", 32); swap_red(vLs, vT, "v_add_f32", 16)
    A("s_lshl_b32 s%d, s%d, 5" % (sT0, sWAVE)); A("s_add_u32 s%d, s%d, %d" % (sT0, sT0, HI)); A("v_lshlrev_b32 v%d, 3, v%d" % (vT, vC4)); A("v_add_u32 v%d, s%d, v%d" % (vT, sT0, vT))
    A("v_mov_b32 v%d, v%d" % (vT + 2, vM)); A("v_mov_b32 v%d, v%d" % (vT + 3, vLs))
    A("s_mov_b64 exec, 0x1111"); A("ds_write_b64 v%d, %s offset:%d" % (vT, vr(vT + 2, 2), L_ST)); A("s_mov_b64 exec, -1")
    lds_add(vHI, F_ST)
    stamp(5)
    A("s_lshl_b32 s%d, s%d, 11" % (sT0, sWAVE)); A("s_add_u32 s%d, s%d, %d" % (sT0, sT0, HI + L_OW))
    A("v_lshlrev_b32 v%d, 9, v%d" % (vOWA, vG4)); A("v_lshl_add_u32 v%d, v%d, 2, v%d" % (vOWA, vN16, vOWA)); A("v_add_u32 v%d, s%d, v%d" % (vOWA, sT0, vOWA))
    vVB = vK + 32
    def read_v(j):
        base = vVB + 32 * (j & 1)
        for d in range(8):
            for t in range(2):
                A("ds_read_b64_tr_b16 %s, v%d offset:%d" % (vr(base + 4 * d + 2 * t, 2), vVA + d, (j & 1) * 32768 + t * 4096))
    def pv(j, d):
        base = vVB + 32 * (j & 1)
        acc = vr(vS + 4 * d, 4)
        A("v_mfma_f32_16x16x32_bf16 %s, %s, %s, %s" % (acc, vr(vP + 4 * j, 4), vr(base + 4 * d, 4), "0" if j == 0 else acc))
    vS2, vF2 = vS + 32, 31
    def factor(dst, m):
        lds_wait(F_GR, 1)
        A("v_lshl_add_u32 v%d, v%d, 3, v%d" % (vT, vG4, vHI)); A("ds_read_b64 %s, v%d offset:%d" % (vr(vT + 2, 2), vT, L_GS)); A("s_waitcnt lgkmcnt(0)")
        A("v_sub_f32 v%d, v%d, v%d" % (dst, m, vT + 2)); A("v_exp_f32 v%d, v%d" % (dst, dst)); A("v_mul_f32 v%d, v%d, v%d" % (dst, dst, vT + 3))
    def wait_pos(j, out):
        ok = A.label("pok"); again = A.label("pagain"); chk = A.label("pchk")
        A("s_add_u32 s%d, s%d, %d" % (sT0, sWAVE, 32 + 4 * j + 1))
        A("s_mov_b32 s%d, 0" % sSPIN)
        A("s_branch " + chk)
        A(again + ":")
        A("ds_read_b64 %s, v%d offset:%d" % (vr(vT + 2, 2), vHI, F_FULL)); A("s_waitcnt lgkmcnt(0)")
        A("v_readfirstlane_b32 s%d, v%d" % (sFULL, vT + 2)); A("v_readfirstlane_b32 s%d, v%d" % (sPLAN, vT + 3))
        A(chk + ":")
        A("s_cmp_ge_u32 s%d, s%d" % (sFULL, sT0)); A("s_cbranch_scc1 " + ok)
        A("s_sub_u32 s%d, s%d, 0x100" % (sT1, sPLAN)); A("s_cmp_le_u32 s%d, %d" % (sT1, j)); A("s_cbranch_scc1 " + out)
        A("s_add_u32 s%d, s%d, 1" % (sSPIN, sSPIN)); A("s_cmp_lt_u32 s%d, %d" % (sSPIN, lspin)); A("s_cbranch_scc1 " + again)
        A("s_branch " + out)
        A(ok + ":")
    if steal:
        lds_wait(F_AM, 1)
        A("v_lshrrev_b32 v%d, 2, v0" % vT); A("v_lshlrev_b32 v%d, 4, v%d" % (vT, vT))
        A("s_lshl_b32 s%d, s%d, 12" % (sT0, sR)); A("s_lshl_b32 s%d, s%d, 10" % (sT1, sWAVE)); A("s_add_u32 s%d, s%d, s%d" % (sT0, sT0, sT1)); A("s_add_u32 s%d, s%d, 0x%x" % (sT0, sT0, WS_PR))
        A("s_mov_b32 exec_lo, 0x11111111"); A("s_mov_b32 exec_hi, 0x11111111")
        for u in range(3): A("buffer_store_dwordx4 %s, v%d, %s, s%d offen offset:%d sc1" % (vr(vP + 4 * (5 + u), 4), vT, srd("WS"), sT0, 256 * u))
        A("s_mov_b64 exec, 0x1111")
        A("buffer_store_dword v%d, v0, %s, s%d offen offset:768 sc1" % (vM, srd("WS"), sT0))
        A("s_mov_b64 exec, -1")
        A("s_mov_b32 s%d, 0" % sPLAN)
    for j in range(11 if steal else 8):
        if j == 7:
            factor(vF, vMO)
            stamp(6)
        if j < NOWN: wait_block(8 + j)
        else: wait_pos(j, "L_vout%d" % j)
        if j == 7: stamp(7)
        if j >= 8:
            if j == 8:
                A("v_lshrrev_b32 v%d, 2, v0" % (vT + 4)); A("v_lshlrev_b32 v%d, 4, v%d" % (vT + 4, vT + 4))
                A("s_lshl_b32 s%d, s%d, 10" % (sT1, sWAVE)); A("s_add_u32 s%d, s%d, %d" % (sT1, sT1, HI + L_PP)); A("v_add_u32 v%d, s%d, v%d" % (vT + 4, sT1, vT + 4))
                A("v_lshl_add_u32 v%d, v%d, 2, s%d" % (vT + 5, vG4, sT1))
                for u in range(3): A("ds_read_b128 %s, v%d offset:%d" % (vr(vP + 4 * u, 4), vT + 4, 256 * (2 - u)))
                A("ds_read_b32 v%d, v%d offset:768" % (vF2, vT + 5)); A("s_waitcnt lgkmcnt(0)")
                factor(vF2, vF2)
        read_v(j)
        if j % 4 == 1:
            for d in range(8): A("v_add_u32 v%d, 0x10000, v%d" % (vVA + d, vVA + d))
        if j % 4 == 3 and (steal or j < 7):
            for d in range(8): A("v_subrev_u32 v%d, 0x10000, v%d" % (vVA + d, vVA + d))
        for d in range(8):
            A("s_waitcnt lgkmcnt(%d)" % (14 - 2 * d))
            if d == 7 and j < (7 if steal else 4):
                A("s_mov_b64 exec, 1"); A("ds_add_u32 v30, v%d offset:%d" % (vONE, F_FREED)); A("s_mov_b64 exec, -1")
            if j < 8: pv(j, d)
            else:
                acc = vr(vS2 + 4 * d, 4)
                A("v_mfma_f32_16x16x32_bf16 %s, %s, %s, %s" % (acc, vr(vP + 4 * (j - 8), 4), vr(vVB + 32 * (j & 1) + 4 * d, 4), "0" if j == 8 else acc))
    if steal:
        A("L_vout9:"); A("L_vout10:")
        A("s_nop 7")
        for d in range(8): A("v_mul_f32 v%d, v%d, v%d" % (vTMP + d, vF, vS + 4 * d))
        for d in range(8): A("v_fmac_f32 v%d, v%d, v%d" % (vTMP + d, vF2, vS2 + 4 * d))
        A("s_branch L_vsum")
        A("L_vout5:"); A("L_vout6:")
        factor(vF, vMO)
        A("L_vout7:"); A("L_vout8:")
        A("s_nop 7")
    for d in range(8): A("v_mul_f32 v%d, v%d, v%d" % (vTMP + d, vF, vS + 4 * d))
    if steal: A("L_vsum:")
    for d in range(0, 8, 2): A("ds_write2_b32 v%d, v%d, v%d offset0:%d offset1:%d" % (vOWA, vTMP + d, vTMP + d + 1, 16 * d, 16 * d + 16))
    vWOA, vOIR, vWO = 17, 18, vK
    A("v_lshlrev_b32 v%d, 7, v%d" % (vWOA, vC4)); A("v_lshl_add_u32 v%d, v%d, 10, v%d" % (vWOA, vG4, vWOA)); A("v_lshl_add_u32 v%d, v%d, 3, v%d" % (vWOA, vR4, vWOA))
    A("s_lshl_b32 s%d, s%d, 5" % (sT0, sWAVE)); A("s_add_u32 s%d, s%d, %d" % (sT0, sT0, HI + L_WO)); A("v_add_u32 v%d, s%d, v%d" % (vWOA, sT0, vWOA))
    A("s_waitcnt lgkmcnt(0)")
    A("s_barrier")
    stamp(8)
    def wo_reads():
        if wolate: lds_wait(F_WO, 1, sl=0)
        for m in range(4):
            A("ds_read_b64_tr_b16 %s, v%d offset:%d" % (vr(vWO + 4 * m, 2), vWOA, m * 4096))
            A("ds_read_b64_tr_b16 %s, v%d offset:%d" % (vr(vWO + 4 * m + 2, 2), vWOA, m * 4096 + 512))
    def oir_addr():
        A("v_lshrrev_b32 v%d, 1, v%d" % (vT, vN16)); A("v_lshlrev_b32 v%d, 10, v%d" % (vT, vT)); A("v_and_b32 v%d, 1, v0" % (vT + 1)); A("v_lshl_add_u32 v%d, v%d, 8, v%d" % (vT, vT + 1, vT))
        for m in range(4):
            A("v_add_u32 v%d, %d, v%d" % (vT + 1, 4 * m, vG4)); A("v_xor_b32 v%d, v%d, v%d" % (vT + 1, vT + 1, vN16))
            A("v_lshl_add_u32 v%d, v%d, 4, v%d" % (vOIR + m, vT + 1, vT))
        A("v_lshrrev_b32 v%d, 1, v%d" % (22, vN16)); A("v_lshlrev_b32 v22, %d, v22" % (16 + spad)); A("v_lshl_add_u32 v22, v%d, 4, v22" % vG4)
    A("s_cmp_gt_u32 s%d, 1" % sWAVE); A("s_cbranch_scc1 L_gather23")
    A("s_lshl_b32 s%d, s%d, 10" % (sT0, sWAVE)); A("s_add_u32 s%d, s%d, %d" % (sT0, sT0, HI + L_OW)); A("v_add_u32 v%d, s%d, v%d" % (vT, sT0, vL16))
    for w in range(4): A("ds_read_b128 %s, v%d offset:%d" % (vr(vS + 4 * w, 4), vT, w * 2048))
    A("v_lshrrev_b32 v%d, 5, v0" % (vT + 1)); A("v_lshlrev_b32 v%d, 13, v%d" % (vT + 1, vT + 1)); A("v_and_b32 v%d, 31, v0" % (vT + 2)); A("v_lshl_add_u32 v%d, v%d, 3, v%d" % (vT + 1, vT + 2, vT + 1))
    A("s_lshl_b32 s%d, s%d, 14" % (sT0, sWAVE)); A("s_add_u32 s%d, s%d, s%d" % (sT0, sT0, sOPOFF))
    A("s_waitcnt lgkmcnt(2)")
    for i in range(4): A("v_add_f32 v%d, v%d, v%d" % (vS + i, vS + i, vS + 4 + i))
    A("s_waitcnt lgkmcnt(0)")
    for i in range(4): A("v_add_f32 v%d, v%d, v%d" % (vS + 8 + i, vS + 8 + i, vS + 12 + i))
    for i in range(4): A("v_add_f32 v%d, v%d, v%d" % (vS + i, vS + i, vS + 8 + i))
    A("v_cvt_pk_bf16_f32 v%d, v%d, v%d" % (vTMP, vS, vS + 1)); A("v_cvt_pk_bf16_f32 v%d, v%d, v%d" % (vTMP + 1, vS + 2, vS + 3))
    A("buffer_store_dwordx2 %s, v%d, %s, s%d offen %s" % (vr(vTMP, 2), vT + 1, srd("WS"), sT0, ts))
    stamp(11)
    wo_reads(); oir_addr()
    A("s_branch L_barE_c")
    def gather(idx_sgpr, extra):
        vGa = 40
        A("s_lshr_b32 s%d, s%d, 3" % (sT1, sR)); A("s_lshl_b32 s%d, s%d, 13" % (sT1, sT1)); A("s_lshl_b32 s%d, s%d, 11" % (sT0, idx_sgpr))
        A("s_add_u32 s%d, s%d, s%d" % (sT1, sT1, sT0)); A("s_add_u32 s%d, s%d, 0x%x" % (sT1, sT1, WS_OP))
        lds_ = [(lambda: A("buffer_load_dwordx4 %s, v%d, %s, s%d offen %s" % (vr(vGa, 4), vL16, srd("WS"), sT1, tl)), list(range(vGa, vGa + 4))),
                (lambda: A("buffer_load_dwordx4 %s, v%d, %s, s%d offen offset:1024 %s" % (vr(vGa + 4, 4), vL16, srd("WS"), sT1, tl)), list(range(vGa + 4, vGa + 8)))]
        if td1: A("s_sleep %d" % td1)
        if at1:
            A("v_lshlrev_b32 v%d, 3, v0" % (vT + 7))
            apoll(vGa, vT + 7, sT1, 0, 0, first="only")
            extra()
            A("v_lshrrev_b32 v%d, 5, v0" % (vT + 2)); A("s_lshl_b32 s%d, s%d, 2" % (sT2, idx_sgpr)); A("v_add_u32 v%d, s%d, v%d" % (vT + 3, sT2, vT + 2))
            A("v_bfe_u32 v%d, v0, 1, 4" % (vT + 4)); A("v_xor_b32 v%d, v%d, v%d" % (vT + 3, vT + 3, vT + 4))
            A("v_lshlrev_b32 v%d, 8, v%d" % (vT + 2, vT + 2)); A("v_add_u32 v%d, s%d, v%d" % (vT + 2, sT0, vT + 2))
            A("v_and_b32 v%d, 1, v0" % (vT + 4)); A("v_lshl_add_u32 v%d, v%d, 3, v%d" % (vT + 2, vT + 4, vT + 2))
            A("v_lshl_add_u32 v%d, v%d, 4, v%d" % (vT + 5, vT + 3, vT + 2)); A("v_xor_b32 v%d, 32, v%d" % (vT + 6, vT + 5))
            apoll(vGa, vT + 7, sT1, 24, tsleep, first=False)
            stamp(11)
            for k in range(4): A("ds_write_b64 v%d, %s offset:%d" % (vT + 5 + (k >> 1), vr(vGa + 2 * k, 2), 512 * k))
            return
        for i_, _ in lds_: i_()
        A("v_and_b32 v%d, 1, v%d" % (vT + 2, vG4)); A("s_lshl_b32 s%d, s%d, 2" % (sT2, idx_sgpr)); A("v_add_u32 v%d, s%d, v%d" % (vT + 2, sT2, vT + 2))
        A("v_xor_b32 v%d, v%d, v%d" % (vT + 3, vT + 2, vN16)); A("v_xor_b32 v%d, 2, v%d" % (vT + 4, vT + 3))
        A("v_lshlrev_b32 v%d, 8, v%d" % (vT + 2, vG4)); A("v_add_u32 v%d, s%d, v%d" % (vT + 2, sT0, vT + 2))
        A("v_lshl_add_u32 v%d, v%d, 4, v%d" % (vT + 5, vT + 3, vT + 2)); A("v_lshl_add_u32 v%d, v%d, 4, v%d" % (vT + 6, vT + 4, vT + 2))
        extra()
        gpoll(lds_, first=False, sleep=tsleep, P=P1)
        stamp(11)
        A("ds_write_b128 v%d, %s" % (vT + 5, vr(vGa, 4))); A("ds_write_b128 v%d, %s offset:1024" % (vT + 6, vr(vGa + 4, 4)))
    A("L_gather23:")
    A("s_sub_u32 s%d, s%d, 2" % (sMU, sWAVE))
    gather(sMU, lambda: (wo_reads(), oir_addr()))
    A("L_barE_c:")
    A("s_waitcnt lgkmcnt(0)")
    A("s_barrier")
    stamp(9)
    for u in range(2):
        for m in range(4): A("ds_read_b128 %s, v%d offset:%d" % (vr(vS + 16 * u + 4 * m, 4), vOIR + m, u * 512))
    A("s_lshl_b32 s%d, s%d, %d" % (sT0, sWAVE, 11 + spad)); A("s_add_u32 s%d, s%d, s%d" % (sT0, sT0, sSPOFF))
    for u in range(2):
        for m in range(4):
            A("s_waitcnt lgkmcnt(%d)" % (7 - 4 * u - m))
            acc = vr(vTMP + 4 * u, 4)
            A("v_mfma_f32_16x16x32_bf16 %s, %s, %s, %s" % (acc, vr(vWO + 4 * m, 4), vr(vS + 16 * u + 4 * m, 4), "0" if m == 0 else acc))
    for i in range(4): A("v_add_f32 v%d, v%d, v%d" % (vTMP + i, vTMP + i, vTMP + 4 + i))
    for i in range(4): dpp("v_add_f32", vTMP + i, "quad_perm:[1,0,3,2]")
    A("s_mov_b32 exec_lo, 0x55555555"); A("s_mov_b32 exec_hi, 0x55555555")
    stamp(10)
    A("buffer_store_dwordx4 %s, v22, %s, s%d offen %s" % (vr(vTMP, 4), srd("WS"), sT0, ts))
    A("s_mov_b64 exec, -1")
    A("s_branch L_done")

    if not fast: emit_loader()

    def slot_addrs():
        A("v_lshlrev_b32 v28, 5, v0")
        A("s_and_b32 s%d, s%d, 3" % (sT0, sR)); A("s_lshl_b32 s%d, s%d, 3" % (sT0, sT0)); A("s_add_u32 s%d, s%d, s%d" % (sMU, sT0, sSTOFF))
    A("L_comm:")
    vZ = 20
    for i in range(4): A("v_mov_b32 v%d, 0" % (vZ + i))
    A("v_lshl_add_u32 v%d, v0, 2, v%d" % (vT, vHI))
    A("s_mov_b64 exec, 0xffff"); A("ds_write_b32 v%d, v%d offset:%d" % (vT, vZ, L_FLG)); A("s_mov_b64 exec, -1")
    slot_addrs()
    sEP = 4
    def epoch():
        A("s_waitcnt vmcnt(0)")
        A("v_readfirstlane_b32 s%d, v30" % sEP); A("v_readfirstlane_b32 s%d, v31" % (sEP + 1))
        A("s_add_u32 s%d, s%d, 0x%x" % (sEP, sEP, EP_STEP & 0xffffffff)); A("s_addc_u32 s%d, s%d, 0x%x" % (sEP + 1, sEP + 1, EP_STEP >> 32))
    A("s_waitcnt lgkmcnt(0)")
    A("buffer_load_dwordx2 v[30:31], off, %s, 0 offset:%d sc1" % (srd("WS"), WS_EP))
    A("s_barrier")
    A("v_add_u32 v%d, v%d, v%d" % (vT, vHI, vL16))
    A("v_and_b32 v29, 7, v0"); A("v_lshlrev_b32 v29, 14, v29"); A("v_lshl_add_u32 v29, v%d, 4, v29" % vG4)
    A("s_lshl_b32 s%d, s%d, 6" % (sT2, sRQ)); A("s_add_u32 s%d, s%d, 0x%x" % (sT2, sT2, WS_Q))
    A("s_bfe_u32 s%d, s%d, 0x30002" % (sT0, sR)); A("s_lshl_b32 s%d, s%d, 14" % (sT0, sT0)); A("s_lshr_b32 s%d, s%d, 5" % (sT1, sR)); A("s_lshl_b32 s%d, s%d, 11" % (sT1, sT1))
    A("s_add_u32 s%d, s%d, s%d" % (sT0, sT0, sT1)); A("s_add_u32 s%d, s%d, 0x%x" % (sT0, sT0, WS_Q))
    A("v_lshl_add_u32 v27, v0, 3, v%d" % vHI)
    epoch()
    A("v_mov_b32 v38, s%d" % sEP); A("v_mov_b32 v39, s%d" % (sEP + 1))
    stamp(1)
    lds_wait(F_QP, 4)
    for w in range(4): A("ds_read_b128 %s, v%d offset:%d" % (vr(40 + 4 * w, 4), vT, L_QP + w * 1024))
    A("s_waitcnt lgkmcnt(0)")
    for i in range(4): A("v_add_f32 v%d, v%d, v%d" % (40 + i, 40 + i, 44 + i)); A("v_add_f32 v%d, v%d, v%d" % (48 + i, 48 + i, 52 + i))
    for i in range(4): A("v_add_f32 v%d, v%d, v%d" % (40 + i, 40 + i, 48 + i))
    A("v_cvt_pk_bf16_f32 v36, v40, v41"); A("v_cvt_pk_bf16_f32 v37, v42, v43")
    A("s_mov_b32 exec_lo, 0x00ff00ff"); A("s_mov_b32 exec_hi, 0x00ff00ff")
    A("buffer_store_dwordx4 v[36:39], v29, %s, s%d offen sc1" % (srd("WS"), sT2))
    A("s_mov_b64 exec, -1")
    stamp(2)
    if qdelay: A("s_sleep %d" % qdelay)
    if qtrig: lds_wait(F_FULL, qtrig, sl=4)
    gpoll([(lambda: A("buffer_load_dwordx4 v[32:35], v%d, %s, s%d offen sc1" % (vL16, srd("WS"), sT0)), [32, 33, 34, 35]),
           (lambda: A("buffer_load_dwordx4 v[40:43], v%d, %s, s%d offen offset:1024 sc1" % (vL16, srd("WS"), sT0)), [40, 41, 42, 43])], sleep=qsleep, tag="s[%d:%d]" % (sEP, sEP + 1))
    A("ds_write_b64 v27, v[32:33] offset:%d" % L_QB); A("ds_write_b64 v27, v[40:41] offset:%d" % (L_QB + 512))
    lds_add(vHI, F_QR)
    stamp(4)
    def all_marked():
        A("v_lshlrev_b32 v%d, 5, v0" % (vT + 3))
        word_poll("buffer_load_dword v32, v%d, %s, 0 offen sc1" % (vT + 3, srd("DBG")), 32, "0xff", "v_cmp_gt_u32 vcc, 32, v%d", fsleep)
        stamp(3)
    all_marked()
    lds_add(vHI, F_AM)
    A("v_lshlrev_b32 v%d, 3, v%d" % (vT + 1, vN16)); A("v_add_u32 v%d, v%d, v%d" % (vT + 2, vHI, vT + 1))
    lds_wait(F_ST, 4)
    A("ds_read_b64 v[32:33], v%d offset:%d" % (vT + 2, L_ST)); A("s_waitcnt lgkmcnt(0)")
    def combine(modes):
        A("v_mov_b32 v34, v32")
        for m in modes: dpp("v_max_f32", 34, m)
        A("v_sub_f32 v32, v32, v34"); A("v_exp_f32 v32, v32"); A("v_mul_f32 v35, v32, v33")
        for m in modes: dpp("v_add_f32", 35, m)
    combine(("row_ror:4", "row_ror:8"))
    A("s_mov_b64 exec, 0xf"); A("buffer_store_dwordx2 v[34:35], v28, %s, s%d offen sc1" % (srd("WS"), sMU)); A("s_mov_b64 exec, -1")
    stamp(5)
    if sdelay: A("s_sleep %d" % sdelay)
    if strig:
        lds_wait(F_FULL, strig, sl=8)
    gpoll([(lambda: A("buffer_load_dwordx2 v[32:33], v%d, %s, s%d offen sc1" % (vT + 1, srd("WS"), sSTOFF)), [32, 33])], sleep=ssleep)
    combine(("quad_perm:[1,0,3,2]", "quad_perm:[2,3,0,1]"))
    A("v_rcp_f32 v35, v35"); A("v_lshl_add_u32 v%d, v%d, 3, v%d" % (vT + 2, vC4, vHI))
    A("s_mov_b64 exec, 0x1111"); A("ds_write_b64 v%d, v[34:35] offset:%d" % (vT + 2, L_GS)); A("s_mov_b64 exec, -1")
    lds_add(vHI, F_GR)
    stamp(6)
    A("s_mov_b32 s%d, 2" % sMU)
    A("L_gather56:")
    A("s_waitcnt lgkmcnt(0)")
    A("s_barrier")
    stamp(8)
    gather(sMU, lambda: None)
    A("s_waitcnt lgkmcnt(0)")
    A("s_barrier")
    stamp(9)
    A("s_branch L_done")

    A("L_mlp:")
    vW, vU = 32, 64
    def pg_addr(line, word):
        A("s_lshr_b32 s%d, s2, 3" % line); A("s_lshl_b32 s%d, s%d, 8" % (line, line)); A("s_add_u32 s%d, s%d, 0x%x" % (line, line, WS_PG))
        A("s_and_b32 s%d, s2, 7" % word); A("s_lshl_b32 s%d, s%d, 2" % (word, word)); A("s_add_u32 s%d, s%d, s%d" % (word, word, line))
    def clean():
        A("s_cmp_lg_u32 s%d, 7" % sWAVE); A("s_cbranch_scc1 L_noclean")
        for i in range(4): A("v_mov_b32 v%d, -1" % (60 + i))
        slot_addrs()
        A("v_lshlrev_b32 v%d, 13, v%d" % (59, vG4)); A("v_lshl_add_u32 v%d, v%d, 4, v%d" % (59, vN16, 59))
        A("s_lshl_b32 s%d, s%d, %d" % (sT1, sR, 11 + spad)); A("s_add_u32 s%d, s%d, 0x%x" % (sT1, sT1, WS_SP))
        A("v_lshrrev_b32 v29, 2, v0"); A("v_lshlrev_b32 v29, %d, v29" % (6 + spad)); A("v_lshl_add_u32 v29, v%d, 4, v29" % vR4)
        A("s_waitcnt lgkmcnt(0)")
        if pad2:
            A("s_cmp_lg_u32 s2, 0"); A("s_cbranch_scc1 L_np2"); A("v_mov_b32 v58, s16"); A("s_mov_b32 s18, 0x310000"); A("s_mov_b64 exec, 1")
            A("buffer_store_dword v58, off, %s, s18 sc1" % srd("WS")); A("s_mov_b64 exec, -1"); A("s_waitcnt vmcnt(0)"); A("L_np2:")
        A("buffer_load_dwordx2 v[30:31], off, %s, 0 offset:%d sc1" % (srd("WS"), WS_EP))
        A("s_mov_b64 exec, 0xf"); A("buffer_store_dwordx2 v[60:61], v28, %s, s%d offen sc1" % (srd("WS"), sMU)); A("s_mov_b64 exec, -1")
        A("buffer_store_dwordx4 v[60:63], v%d, %s, s%d offen sc1" % (59, srd("WS"), sOPOFF))
        A("buffer_store_dwordx4 v[60:63], v29, %s, s%d offen sc1" % (srd("WS"), sT1))
        A("buffer_store_dwordx4 v[60:63], v29, %s, s%d offen offset:%d sc1" % (srd("WS"), sT1, 1024 << spad))
        if bal:
            pg_addr(sT1, sT3)
            A("s_mov_b64 exec, 1"); A("buffer_store_dword v60, off, %s, s%d sc1" % (srd("WS"), sT3)); A("s_mov_b64 exec, -1")
        if steal:
            A("s_lshl_b32 s%d, s%d, 12" % (sT1, sR)); A("s_add_u32 s%d, s%d, 0x%x" % (sT1, sT1, WS_PR))
            for k in range(4): A("buffer_store_dwordx4 v[60:63], v%d, %s, s%d offen offset:%d sc1" % (vL16, srd("WS"), sT1, 1024 * k))
            A("s_lshl_b32 s%d, s%d, 7" % (sT1, sR)); A("s_add_u32 s%d, s%d, 0x%x" % (sT1, sT1, WS_CW))
            A("s_mov_b64 exec, 1"); A("buffer_store_dword v60, off, %s, s%d sc1" % (srd("WS"), sT1)); A("s_mov_b64 exec, -1")
        A("L_noclean:")
    def arrive(cnt, lbl):
        A("s_cmp_lg_u32 s%d, 7" % sWAVE); A("s_cbranch_scc1 " + lbl)
        A("s_lshr_b32 s%d, s%d, 5" % (sT3, sR)); A("s_lshl_b32 s%d, s%d, 5" % (sT3, sT3))
        A("s_mov_b64 exec, 1")
        A("s_waitcnt vmcnt(%d)" % cnt)
        A("buffer_atomic_add v%d, off, %s, s%d" % (vONE, srd("DBG"), sT3))
        A("s_mov_b64 exec, -1")
        stamp(4)
        A(lbl + ":")
    if not cllate: clean()
    A("s_sub_u32 s%d, s%d, 6" % (sMB, sWAVE))
    A("v_mul_u32_u24 v%d, 12, v0" % vT); A("s_mul_i32 s%d, s%d, 1792" % (sT1, sMB))
    A("s_waitcnt lgkmcnt(0)")
    A("s_load_dword s%d, s[%d:%d], 0" % (sB2, sB2P, sB2P + 1))
    if tlb:
        A("s_bfe_u32 s%d, s%d, 0x30002" % (sBASE, sR)); A("s_lshl_b32 s%d, s%d, 23" % (sBASE, sBASE)); A("s_lshr_b32 s%d, s%d, 5" % (sT0, sR)); A("s_lshl_b32 s%d, s%d, 20" % (sT0, sT0))
        A("s_add_u32 s%d, s%d, s%d" % (sBASE, sBASE, sT0)); A("s_and_b32 s%d, s%d, 3" % (sT0, sR)); A("s_lshl_b32 s%d, s%d, 18" % (sT0, sT0)); A("s_add_u32 s%d, s%d, s%d" % (sBASE, sBASE, sT0))
        A("s_cmp_lg_u32 s%d, 6" % sWAVE); A("s_cbranch_scc1 L_notlb")
        A("s_mov_b64 exec, 1")
        if tlb & 1: A("buffer_load_dword v200, off, %s, s%d" % (srd("V"), sBASE))
        if tlb & 2:
            A("s_lshr_b32 s%d, s%d, 3" % (sT0, sR)); A("s_lshl_b32 s%d, s%d, 17" % (sT0, sT0))
            A("buffer_load_dword v201, off, %s, s%d" % (srd("WO"), sT0))
        if tlb & 4:
            A("v_lshlrev_b32 v202, 16, v0"); A("s_mov_b64 exec, 0xf")
            A("buffer_load_dword v203, v202, %s, s%d offen" % (srd("V"), sBASE))
            A("buffer_load_dword v204, v202, %s, s%d offen" % (srd("K"), sBASE))
        A("s_mov_b64 exec, -1")
        A("L_notlb:")
    A("s_barrier")
    for k, n in enumerate(("W1", "B1", "W2")):
        A("buffer_load_dwordx4 %s, v%d, %s, s%d offen" % (vr(vW + 8 * k, 4), vL16, srd(n), sT1))
        A("buffer_load_dwordx3 %s, v%d, %s, s%d offen offset:1024" % (vr(vW + 8 * k + 4, 3), vT, srd(n), sT1))
    if not cllate: arrive(6, "L_noflag")
    A("s_lshr_b32 s%d, s%d, 5" % (sT0, sR)); A("s_mul_i32 s%d, s%d, %d" % (sT0, sT0, XN_STRIDE)); A("s_add_u32 s%d, s%d, %d" % (sT0, sT0, HI)); A("v_add_u32 v%d, s%d, v%d" % (vT + 1, sT0, vL16))
    A("s_lshl_b32 s%d, s%d, 13" % (sT2, sMB)); A("s_add_u32 s%d, s%d, %d" % (sT2, sT2, HI + L_WO)); A("v_add_u32 v%d, s%d, v%d" % (vT + 2, sT2, vL16))
    A("s_and_b32 s%d, s%d, 31" % (sT0, sR)); A("s_lshl_b32 s%d, s%d, 5" % (sT0, sT0)); A("s_add_u32 s%d, s%d, s%d" % (sT0, sT0, sT2))
    A("v_lshlrev_b32 v%d, 1, v%d" % (vT + 3, vN16)); A("v_add_u32 v%d, s%d, v%d" % (vT + 3, sT0, vT + 3))
    lds_wait(F_XN, 4)
    if cllate: clean()
    vXm = 112
    A("ds_read_b128 %s, v%d offset:%d" % (vr(vXm, 4), vT + 1, L_XN)); A("s_waitcnt lgkmcnt(0)")
    layernorm(vXm, 4, vXm + 4, vXm + 12, vXm + 20, 1)
    A("ds_write_b128 v%d, %s" % (vT + 2, vr(vXm, 4)))
    vH = 24
    A("ds_read_u16 v%d, v%d" % (vH, vT + 3))
    A("v_lshrrev_b32 v%d, 3, v0" % (vT + 4)); A("v_lshlrev_b32 v%d, 10, v%d" % (vT + 4, vT + 4)); A("v_and_b32 v%d, 7, v0" % (vT + 5)); A("v_lshl_add_u32 v%d, v%d, 4, v%d" % (vT + 4, vT + 5, vT + 4))
    A("s_lshr_b32 s%d, s%d, 3" % (sT0, sR)); A("s_lshl_b32 s%d, s%d, 17" % (sT0, sT0)); A("s_and_b32 s%d, s%d, 7" % (sT1, sR)); A("s_lshl_b32 s%d, s%d, 7" % (sT1, sT1))
    A("s_add_u32 s%d, s%d, s%d" % (sT0, sT0, sT1)); A("s_lshl_b32 s%d, s%d, 16" % (sT1, sMB)); A("s_add_u32 s%d, s%d, s%d" % (sT0, sT0, sT1))
    A("s_waitcnt vmcnt(0) lgkmcnt(0)")
    if cllate: arrive(0, "L_noflag")
    for a in range(8):
        A("s_add_u32 m0, s%d, %d" % (sT2, a * 1024))
        if 'o' not in abl and not wolate: A("buffer_load_dwordx4 v%d, %s, s%d offen %s lds" % (vT + 4, srd("WO"), sT0, polo))
        if a < 7: A("s_add_u32 s%d, s%d, 0x2000" % (sT0, sT0))
    stamp(1)
    A("v_lshlrev_b32 v%d, 16, v%d" % (vH, vH))
    for k in range(3):
        for i in range(7): unpack(vU + 14 * k + 2 * i, vU + 14 * k + 2 * i + 1, vW + 8 * k + i)
    vC0, vACC, U, T_ = 25, 26, 112, 128
    A("v_mov_b32 v%d, s%d" % (vC0, sC0))
    A("s_lshl_b32 s%d, s%d, 6" % (sT0, sMB)); A("s_add_u32 s%d, s%d, %d" % (sT0, sT0, HI + L_YP)); A("v_mov_b32 v27, s%d" % sT0)
    A("s_mov_b32 s%d, 0" % sT1)
    A("s_nop 3")
    A("L_mlp_loop:")
    A("v_readlane_b32 s%d, v%d, s%d" % (sMU, vH, sT1))
    for t in range(14): A("v_fma_f32 v%d, s%d, v%d, v%d" % (U + t, sMU, vU + t, vU + 14 + t))
    for t in range(14): A("v_mul_f32 v%d, v%d, v%d" % (T_ + t, U + t, U + t))
    for t in range(14): A("v_fma_f32 v%d, v%d, s%d, v%d" % (T_ + t, T_ + t, sC1, vC0))
    for t in range(14): A("v_mul_f32 v%d, v%d, v%d" % (T_ + t, T_ + t, U + t))
    for t in range(14):
        A("v_exp_f32 v%d, v%d" % (T_ + t, T_ + t)); A("v_mul_f32 v%d, v%d, v%d" % (U + t, U + t, vU + 28 + t))
    for t in range(14): A("v_add_f32 v%d, 1.0, v%d" % (T_ + t, T_ + t))
    for t in range(14): A("v_rcp_f32 v%d, v%d" % (T_ + t, T_ + t))
    A("v_mul_f32 v%d, v%d, v%d" % (vACC, U, T_)); A("v_mul_f32 v%d, v%d, v%d" % (U, U + 1, T_ + 1))
    for t in range(2, 14): A("v_fmac_f32 v%d, v%d, v%d" % (vACC if t & 1 else U, U + t, T_ + t))
    A("v_add_f32 v%d, v%d, v%d" % (vACC, vACC, U))
    red16(vACC, "v_add_f32"); dpp("v_add_f32", vACC, "row_bcast:15", "0xa"); dpp("v_add_f32", vACC, "row_bcast:31", "0xc")
    A("s_mov_b32 exec_lo, 0"); A("s_mov_b32 exec_hi, 0x80000000")
    A("ds_write_b32 v27, v%d" % vACC); A("v_add_u32 v27, 4, v27")
    A("s_mov_b64 exec, -1")
    A("s_add_u32 s%d, s%d, 1" % (sT1, sT1)); A("s_cmp_lt_u32 s%d, 16" % sT1); A("s_cbranch_scc1 L_mlp_loop")
    stamp(2)
    A("s_waitcnt vmcnt(0)")
    A("s_mov_b32 s%d, 3" % sMU)
    if steal:
        A("s_cmp_eq_u32 s%d, 7" % sWAVE); A("s_cbranch_scc1 L_final")
        lds_wait(F_AM, 1, sl=8)
        sCW = 4
        A("s_lshl_b32 s%d, s%d, 7" % (sCW, sR)); A("s_add_u32 s%d, s%d, 0x%x" % (sCW, sCW, WS_CW))
        def set_plan(val):
            A("v_mov_b32 v%d, %s" % (vT, val)); A("s_mov_b64 exec, 1"); A("ds_write_b32 v%d, v%d offset:%d" % (vHI, vT, F_PLAN)); A("s_mov_b64 exec, -1")
        for k in range(5, 11):
            if k == 8:
                A("s_xor_b32 s%d, s%d, 0x100" % (sCW, sCW))
            if k == 8:
                A("s_xor_b32 s%d, s%d, 2" % (sT1, sR)); A("s_lshl_b32 s%d, s%d, 12" % (sT1, sT1)); A("s_add_u32 s%d, s%d, 0x%x" % (sT1, sT1, WS_PR))
                A("v_add_u32 v%d, v%d, v%d" % (vT + 1, vHI, vL16))
                rec = [((lambda q=q: A("buffer_load_dwordx4 %s, v%d, %s, s%d offen offset:%d sc1" % (vr(36 + 4 * q, 4), vL16, srd("WS"), sT1, 1024 * q))), list(range(36 + 4 * q, 40 + 4 * q))) for q in range(4)]
                lds_wait(F_FULL, rtrig, sl=2)
                A("s_mov_b32 exec_hi, 0x1ffff")
                for i_, _ in rec: i_()
                A("s_mov_b64 exec, -1")
            lds_wait(F_FULL, 4 * k + cth + (bias if k >= 8 else 0), sl=2)
            A("v_mov_b32 v32, 1"); A("s_mov_b64 exec, 1")
            A("buffer_atomic_add v32, off, %s, s%d sc0" % (srd("WS"), sCW))
            A("s_mov_b64 exec, -1")
            A("s_mov_b32 s%d, 0x%x" % (sT2, 0x100 + k))
            A("s_waitcnt vmcnt(0)")
            A("v_readfirstlane_b32 s%d, v32" % sT0); A("s_add_u32 s%d, s%d, 1" % (sT0, sT0))
            if stamps and k < 9: stamp(k - 2)
            A("s_cmp_ge_u32 s%d, 3" % sT0); A("s_cbranch_scc1 L_close")
            if k == 8:
                A("s_mov_b32 exec_hi, 0x1ffff")
                gpoll(rec[:2], first=False, sleep=8, full="PARTIAL"); gpoll(rec[2:], first=False, sleep=8, full="PARTIAL")
                for q in range(4): A("ds_write_b128 v%d, %s offset:%d" % (vT + 1, vr(36 + 4 * q, 4), L_PP + 1024 * q))
                A("s_mov_b64 exec, -1")
                A("s_waitcnt lgkmcnt(0)")
            set_plan("%d" % (k + 1))
        A("s_mov_b32 s%d, 0x%x" % (sT2, 0x100 + 11))
        A("L_close:")
        set_plan("s%d" % sT2)
        A("s_branch L_gather56")
        A("L_final:")
    elif bal >= 2:
        A("s_cmp_eq_u32 s%d, 7" % sWAVE); A("s_cbranch_scc1 L_final")
        lds_wait(F_AM, 1, sl=8)
        pg_addr(4, 5)
        if bal == 3: A("s_lshl_b32 s4, s2, 8"); A("s_add_u32 s4, s4, 0x%x" % (WS_PG + 0x4000))
        for k in range(bmin):
            lds_wait(F_FULL, bthr + bper * k, sl=4)
            A("v_mov_b32 v%d, 1" % (32 + k)); A("s_mov_b64 exec, 1")
            if bal == 4: A("buffer_load_dword v%d, off, %s, s4 sc1" % (32 + k, srd("WS")))
            elif bal == 5: A("buffer_store_dword v%d, off, %s, s5 sc1" % (32 + k, srd("WS")))
            else: A("buffer_atomic_add v%d, off, %s, s4 sc0" % (32 + k, srd("WS")))
            A("s_mov_b64 exec, -1")
        A("s_waitcnt vmcnt(0)")
        A("s_branch L_gather56")
        A("L_final:")
    elif bal:
        A("s_cmp_eq_u32 s%d, 7" % sWAVE); A("s_cbranch_scc1 L_final")
        lds_wait(F_AM, 1, sl=8)
        pg_addr(4, 5)
        A("s_and_b32 s12, s2, 7"); A("v_lshlrev_b32 v33, 2, v0"); A("s_mov_b32 s13, 0")
        A("L_bal:")
        A("s_mov_b64 exec, 0xff"); A("buffer_load_dword v32, v33, %s, s4 offen sc1" % srd("WS"))
        A("s_mov_b64 exec, 1")
        A("ds_read_b32 v34, v%d offset:%d" % (vHI, F_FULL)); A("s_waitcnt lgkmcnt(0)")
        A("buffer_store_dword v34, off, %s, s5 sc1" % srd("WS"))
        A("s_mov_b64 exec, -1")
        A("v_readfirstlane_b32 s%d, v34" % sT0)
        A("s_cmp_ge_u32 s%d, %d" % (sT0, bstop)); A("s_cbranch_scc1 L_balend")
        A("s_waitcnt vmcnt(1)")
        A("v_readlane_b32 s%d, v32, s12" % sT1)
        A("s_mov_b64 exec, 0xff")
        A("v_cmp_eq_u32 vcc, -1, v32")
        if bmin:
            for m in QUADS[:3]: dpp("v_min_u32", 32, m)
        else:
            for m in QUADS[:3]: dpp("v_add_u32", 32, m)
        A("s_mov_b64 exec, -1")
        A("v_readfirstlane_b32 s%d, v32" % sT2)
        A("s_cmp_lg_u64 vcc, 0"); A("s_cbranch_scc1 L_balskip")
        if not bmin: A("s_lshl_b32 s%d, s%d, 3" % (sT1, sT1))
        A("s_sub_i32 s%d, s%d, s%d" % (sT1, sT1, sT2)); A("s_cmp_gt_i32 s%d, %d" % (sT1, bthr)); A("s_cselect_b32 s%d, 1, 0" % sT1)
        A("v_mov_b32 v35, s%d" % sT1); A("s_mov_b64 exec, 1"); A("ds_write_b32 v%d, v35 offset:%d" % (vHI, F_MODE)); A("s_mov_b64 exec, -1")
        A("L_balskip:")
        if bper: A("s_sleep %d" % bper)
        A("s_add_u32 s13, s13, 1"); A("s_cmp_lt_u32 s13, 4096"); A("s_cbranch_scc1 L_bal")
        A("L_balend:")
        A("v_mov_b32 v35, 0"); A("s_mov_b64 exec, 1"); A("ds_write_b32 v%d, v35 offset:%d" % (vHI, F_MODE)); A("s_mov_b64 exec, -1")
        A("s_waitcnt vmcnt(0)")
        A("s_branch L_gather56")
        A("L_final:")
    else:
        A("s_cmp_eq_u32 s%d, 6" % sWAVE); A("s_cbranch_scc1 L_gather56")
    if at2:
        A("v_and_b32 v%d, 7, v0" % (vT + 1)); A("v_lshrrev_b32 v%d, 5, v0" % (vT + 2)); A("v_lshl_add_u32 v%d, v%d, 1, v%d" % (vT + 1, vT + 1, vT + 2))
    else: A("v_lshl_add_u32 v%d, v%d, 2, v%d" % (vT + 1, vR4, vG4))
    A("v_lshlrev_b32 v%d, 1, v%d" % (vT + 2, vT + 1)); A("s_lshl_b32 s%d, s%d, 5" % (sT0, sR))
    A("buffer_load_ushort v%d, v%d, %s, s%d offen" % (vT + 3, vT + 2, srd("X"), sT0))
    A("v_lshl_add_u32 v%d, v%d, 2, v%d" % (vT + 1, vT + 1, vHI))
    A("s_lshl_b32 s%d, s%d, %d" % (sT1, sR, 11 + spad)); A("s_add_u32 s%d, s%d, 0x%x" % (sT1, sT1, WS_SP))
    A("v_lshrrev_b32 v29, 2, v0"); A("v_lshlrev_b32 v29, %d, v29" % (6 + spad)); A("v_lshl_add_u32 v29, v%d, 4, v29" % vR4)
    if wolate == 2:
        A("s_mov_b32 s12, s%d" % sT0); A("s_mov_b32 s13, s%d" % sT1)
        if steal: lds_wait(F_LI, 1, sl=2)
        else: lds_wait(F_FULL, wotrig, sl=2)
        wo_dma()
        A("s_mov_b32 s%d, s12" % sT0); A("s_mov_b32 s%d, s13" % sT1)
    A("s_waitcnt lgkmcnt(0)")
    A("s_barrier")
    stamp(8)
    A("ds_read_b32 v40, v%d offset:%d" % (vT + 1, L_YP)); A("ds_read_b32 v41, v%d offset:%d" % (vT + 1, L_YP + 64)); A("s_waitcnt lgkmcnt(0)")
    A("v_add_f32 v40, v40, v41"); rbf(40)
    A("s_lshl_b32 s%d, s%d, 16" % (sB2, sB2)); A("v_add_f32 v40, s%d, v40" % sB2); rbf(40)
    A("v_mul_f32 v41, s%d, v40" % sL2E); A("v_exp_f32 v41, -v41"); A("v_add_f32 v41, 1.0, v41"); A("v_rcp_f32 v41, v41"); A("v_mul_f32 v40, v40, v41"); rbf(40)
    A("s_waitcnt vmcnt(0)"); A("v_lshlrev_b32 v%d, 16, v%d" % (vT + 3, vT + 3))
    if wolate == 2:
        A("s_mov_b64 exec, 1"); A("ds_write_b32 v%d, v%d offset:%d" % (vHI, vONE, F_WO)); A("s_mov_b64 exec, -1")
        stamp(11)
    A("s_barrier")
    stamp(9)
    if epe:
        A("v_readfirstlane_b32 s4, v30"); A("v_readfirstlane_b32 s5, v31")
        A("s_add_u32 s4, s4, 0x%x" % (EP_STEP & 0xffffffff)); A("s_addc_u32 s5, s5, 0x%x" % (EP_STEP >> 32))
        A("s_cmp_eq_u32 s%d, 0" % sR); A("s_cselect_b32 s96, 1, 0"); A("s_mov_b32 s97, 0")
        A("v_mov_b32 v30, s4"); A("v_mov_b32 v31, s5")
    def ep_store():
        if epe:
            A("s_mov_b64 exec, s[96:97]"); A("buffer_store_dwordx2 v[30:31], off, %s, 0 offset:%d sc1" % (srd("WS"), WS_EP)); A("s_mov_b64 exec, -1")
    if td2: A("s_sleep %d" % td2)
    if at2:
        A("v_lshlrev_b32 v29, 3, v0")
        apoll(32, 29, sT1, 44, tsleep2)
        stamp(10)
        ep_store()
        A("v_add_f32 v44, v32, v34"); A("v_add_f32 v45, v33, v35"); A("v_add_f32 v46, v36, v38"); A("v_add_f32 v47, v37, v39")
        A("v_add_f32 v44, v44, v46"); A("v_add_f32 v45, v45, v47")
        A("v_permlane32_swap_b32 v44, v45"); A("v_add_f32 v44, v44, v45")
        swap_red(44, 45, "v_add_f32", 16)
        dpp("v_add_f32", 44, "row_ror:8")
    else:
        gpoll([(lambda: A("buffer_load_dwordx4 v[32:35], v29, %s, s%d offen %s" % (srd("WS"), sT1, tl)), [32, 33, 34, 35]),
               (lambda: A("buffer_load_dwordx4 v[36:39], v29, %s, s%d offen offset:%d %s" % (srd("WS"), sT1, 1024 << spad, tl)), [36, 37, 38, 39])], sleep=tsleep2, P=P2)
        stamp(10)
        for i in range(4): A("v_add_f32 v%d, v%d, v%d" % (44 + i, 32 + i, 36 + i))
        A("v_permlane32_swap_b32 v44, v46"); A("v_permlane32_swap_b32 v45, v47")
        A("v_add_f32 v44, v44, v46"); A("v_add_f32 v45, v45, v47")
        A("v_permlane16_swap_b32 v44, v45"); A("v_add_f32 v44, v44, v45")
        dpp("v_add_f32", 44, "row_ror:8"); dpp("v_add_f32", 44, "row_ror:4")
    rbf(44); A("v_mul_f32 v44, v44, v40"); rbf(44)
    A("v_add_f32 v44, v44, v%d" % (vT + 3)); A("v_cvt_pk_bf16_f32 v44, v44, v44")
    em = "0xff" if at2 else "0x000f000f"
    A("s_mov_b32 exec_lo, %s" % em); A("s_mov_b32 exec_hi, %s" % em)
    A("buffer_store_short v44, v%d, %s, s%d offen" % (vT + 2, srd("OUT"), sT0))
    A("s_mov_b64 exec, -1")
    if not epe or pmap or pgrp or probe or pspan or p_b >= 0:
        A("s_cmp_lg_u32 s%d, 0" % sR); A("s_cbranch_scc1 L_done")
    if not epe:
        epoch()
        A("v_mov_b32 v30, s%d" % sEP); A("v_mov_b32 v31, s%d" % (sEP + 1)); A("s_mov_b64 exec, 1")
        A("buffer_store_dwordx2 v[30:31], off, %s, 0 offset:%d sc1" % (srd("WS"), WS_EP))
        A("s_mov_b64 exec, -1")
    if pmap >= 10:
        A("s_sleep 32"); A("s_mov_b32 s6, 0x300000")
        A("buffer_load_dwordx4 v[32:35], v%d, %s, s6 offen sc1" % (vL16, srd("WS"))); A("s_waitcnt vmcnt(0)")
        if not piv:
            for i in range(4): A("v_subrev_u32 v%d, s16, v%d" % (32 + i, 32 + i))
        def over_kvh(v, op):
            dpp(op, v, "row_ror:8"); swap_red(v, 40, op, 16); swap_red(v, 40, op, 32)
        def over_b(v, op):
            for m in QUADS[:3]: dpp(op, v, m)
        A("v_max_u32 v36, v32, v33"); A("v_max3_u32 v36, v36, v34, v35"); over_kvh(36, "v_max_u32")
        A("v_add_u32 v37, v32, v33"); A("v_add3_u32 v37, v37, v34, v35"); over_kvh(37, "v_add_u32"); A("v_lshrrev_b32 v37, 5, v37")
        if pmap == 10: over_b(36, "v_max_u32"); A("v_lshlrev_b32 v36, 2, v36")
        elif pmap == 11: over_b(37, "v_max_u32"); A("v_lshlrev_b32 v36, 2, v37")
        elif pmap == 12: over_b(37, "v_add_u32"); A("v_lshrrev_b32 v36, 1, v37")
        elif pmap == 13: over_b(37, "v_min_u32"); A("v_lshlrev_b32 v36, 2, v37")
        elif pmap == 14: A("v_sub_u32 v36, v36, v37"); over_b(36, "v_max_u32"); A("v_lshlrev_b32 v36, 3, v36")
        elif pmap == 15:
            A("v_mov_b32 v38, v37"); over_b(38, "v_max_u32"); A("v_cmp_eq_u32 vcc, v38, v37"); A("v_cndmask_b32 v37, v37, 0, vcc"); over_b(37, "v_max_u32"); A("v_lshlrev_b32 v36, 2, v37")
        elif pmap == 16:
            A("v_lshlrev_b32 v36, 3, v36"); A("v_and_b32 v38, 7, v0"); A("v_or_b32 v36, v36, v38"); over_b(36, "v_max_u32"); A("v_and_b32 v36, 7, v36"); A("v_mul_u32_u24 v36, 300, v36")
        elif pmap == 17:
            A("v_min_u32 v36, v32, v33"); A("v_min3_u32 v36, v36, v34, v35"); over_kvh(36, "v_min_u32"); over_b(36, "v_min_u32"); A("v_lshlrev_b32 v36, 2, v36")
        A("s_mov_b32 s7, s16")
        A("s_memrealtime s[16:17]"); A("v_readfirstlane_b32 s6, v36"); A("s_waitcnt lgkmcnt(0)")
        if pmap == 18: A("s_sub_u32 s6, s16, s7"); A("s_lshl_b32 s6, s6, 2")
        if pmap == 19: A("s_mov_b32 s6, 0")
        A("s_min_u32 s6, s6, 20000")
        A("s_add_u32 s16, s16, s6")
        A("L_pad4:"); A("s_memrealtime s[18:19]"); A("s_waitcnt lgkmcnt(0)"); A("s_sub_u32 s18, s18, s16"); A("s_cmp_lt_i32 s18, 0"); A("s_cbranch_scc1 L_pad4")
    elif pmap:
        A("s_sleep 32"); A("s_mov_b32 s6, 0x300000")
        A("buffer_load_dwordx4 v[32:35], v%d, %s, s6 offen sc1" % (vL16, srd("WS"))); A("s_waitcnt vmcnt(0)")
        if pmap == 1: A("v_max_u32 v32, v32, v33"); A("v_max3_u32 v32, v32, v34, v35")
        elif pmap == 2: A("v_min_u32 v32, v32, v33"); A("v_min3_u32 v32, v32, v34, v35")
        if not piv: A("s_add_u32 s16, s16, 1500"); A("v_subrev_u32 v32, s16, v32")
        A("v_lshrrev_b32 v32, 3, v32"); A("v_min_u32 v32, 255, v32")
        A("buffer_store_byte v32, v0, %s, 0 offen sc1" % srd("DBG"))
    if pgrp:
        A("v_lshlrev_b32 v29, 5, v0"); A("s_mov_b64 exec, 0xff")
        A("buffer_load_dword v30, v29, %s, 0 offen offset:4 sc1" % srd("DBG")); A("s_memrealtime s[16:17]"); A("s_waitcnt vmcnt(0) lgkmcnt(0)")
        if pat >= 12:
            A("v_readfirstlane_b32 s6, v30"); A("v_subrev_u32 v30, s6, v30"); A("v_add_u32 v30, 0x100000, v30")
            if pat == 13: A("v_lshlrev_b32 v30, 3, v30"); A("v_or_b32 v30, v30, v0")
        A("v_mov_b32 v31, v30")
        for m in QUADS[:3]: dpp("v_max_u32", 30, m)
        if pat in (11, 12, 13, 14):
            for m in QUADS[:3]: dpp("v_min_u32", 31, m)
        else:
            A("v_subrev_u32 v31, v31, v30")
            for m in QUADS[:3]: dpp("v_add_u32", 31, m)
        A("s_mov_b64 exec, -1")
        A("v_readfirstlane_b32 s6, v30"); A("v_readfirstlane_b32 s7, v31")
        if pat == 11: A("s_sub_u32 s6, s6, s7"); A("s_lshl_b32 s6, s6, 3")
        elif pat == 12: A("s_sub_u32 s6, s6, s7"); A("s_lshr_b32 s6, s6, 2")
        elif pat == 13: A("s_and_b32 s6, s6, 7"); A("s_mul_i32 s6, s6, 300")
        else: A("s_mov_b32 s6, s7")
        A("s_min_u32 s6, s6, 20000")
        A("s_add_u32 s16, s16, s6")
        A("L_pad3:"); A("s_memrealtime s[18:19]"); A("s_waitcnt lgkmcnt(0)"); A("s_sub_u32 s18, s18, s16"); A("s_cmp_lt_i32 s18, 0"); A("s_cbranch_scc1 L_pad3")
    if probe or (p_b >= 0 and not piv) or pspan:
        A("buffer_load_dwordx2 v[30:31], off, %s, 0 offset:4 sc1" % srd("DBG")); A("s_memrealtime s[16:17]"); A("s_waitcnt vmcnt(0) lgkmcnt(0)")
        A("v_readfirstlane_b32 s6, v30"); A("v_readfirstlane_b32 s7, v31")
        if probe: A("s_sub_i32 s6, s6, s7"); A("s_abs_i32 s6, s6"); A("s_lshr_b32 s6, s6, 4")
        elif pspan == 1: A("s_not_b32 s7, s7"); A("s_sub_u32 s6, s6, s7"); A("s_lshl_b32 s6, s6, 2")
        elif pspan == 2: A("s_sub_u32 s6, s16, s6"); A("s_lshl_b32 s6, s6, 3")
        elif pspan == 6: A("s_not_b32 s7, s7"); A("s_sub_u32 s6, s16, s7"); A("s_lshl_b32 s6, s6, 2")
        elif pspan == 3: A("s_not_b32 s7, s7"); A("s_sub_u32 s6, s6, s7"); A("s_lshl_b32 s6, s6, 3")
        elif pspan in (4, 5): A("s_not_b32 s7, s7"); A("s_lshl_b32 s7, s7, 8"); A("s_sub_u32 s6, s6, s7"); A("s_lshr_b32 s6, s6, %d" % (5 if pspan == 4 else 6))
        else: A("s_lshr_b32 s6, s6, 5")
        A("s_min_u32 s6, s6, 20000")
        A("s_add_u32 s16, s16, s6")
        A("L_pad2:"); A("s_memrealtime s[18:19]"); A("s_waitcnt lgkmcnt(0)"); A("s_sub_u32 s18, s18, s16"); A("s_cmp_lt_i32 s18, 0"); A("s_cbranch_scc1 L_pad2")
    A("L_done:")
    if not nowait: A("s_waitcnt vmcnt(0)")
    if pad2:
        A("s_lshr_b32 s6, %d, s%d" % (pw, sWAVE)); A("s_and_b32 s6, s6, 1"); A("s_cbranch_scc0 L_end")
        A("s_and_b32 s6, s2, %d" % (255 & ~pwg)); A("s_cmp_lg_u32 s6, %d" % pwv); A("s_cbranch_scc1 L_end")
        A("s_mov_b32 s18, 0x310000"); A("buffer_load_dword v58, off, %s, s18 sc1" % srd("WS")); A("s_waitcnt vmcnt(0)"); A("v_readfirstlane_b32 s16, v58")
        A("s_add_u32 s16, s16, %d" % pad2); A("s_mov_b32 s7, 0")
        A("L_pad5:"); A("s_memrealtime s[18:19]"); A("s_add_u32 s7, s7, 1"); A("s_cmp_gt_u32 s7, 0x4000"); A("s_cbranch_scc1 L_end"); A("s_waitcnt lgkmcnt(0)"); A("s_sub_u32 s18, s18, s16"); A("s_cmp_lt_i32 s18, 0"); A("s_cbranch_scc1 L_pad5")
    if pad:
        A("s_waitcnt lgkmcnt(0)"); A("s_add_u32 s16, s16, %d" % pad)
        A("L_pad:"); A("s_memrealtime s[18:19]"); A("s_waitcnt lgkmcnt(0)"); A("s_sub_u32 s18, s18, s16"); A("s_cmp_lt_i32 s18, 0"); A("s_cbranch_scc1 L_pad")
    if stamps:
        A("s_waitcnt vmcnt(0)")
        stamp(NST - 1)
        A("s_waitcnt lgkmcnt(0)")
        A("s_lshl_b32 s%d, s2, 3" % sT0); A("s_add_u32 s%d, s%d, s%d" % (sT0, sT0, sWAVE)); A("s_mul_i32 s%d, s%d, %d" % (sT0, sT0, NST * 8)); A("s_add_u32 s%d, s%d, 0x%x" % (sT0, sT0, WS_STAMP))
        A("s_mov_b64 exec, 1")
        for k in range(NST):
            A("v_mov_b32 v2, s%d" % (16 + 2 * k)); A("v_mov_b32 v3, s%d" % (17 + 2 * k))
            A("buffer_store_dwordx2 v[2:3], off, %s, s%d offset:%d" % (srd("WS"), sT0, k * 8)); A("s_nop 1")
    A("L_end:")
    A("s_endpgm")
    body = A.finalize()
    hdr = open("recurrent_scan__gqa_block_cached__mixer_token_mlp__decode.s.ref").read().split("; Override launch")[0]
    s = hdr + "; @launch grid=(256,1,1) block=(512,1,1) lds=%d\n" % LDS_BYTES
    s += '.amdgcn_target "amdgcn-amd-amdhsa--gfx950"\n.text\n.globl %s\n.p2align 8\n.type %s,@function\n%s:\n' % (NAME, NAME, NAME)
    s += body
    s += '.section .rodata,"a"\n.p2align 6\n.amdhsa_kernel %s\n  .amdhsa_next_free_vgpr 256\n  .amdhsa_next_free_sgpr 102\n  .amdhsa_accum_offset 256\n' % NAME
    s += "  .amdhsa_group_segment_fixed_size 0\n  .amdhsa_kernarg_size 104\n  .amdhsa_user_sgpr_count 2\n  .amdhsa_user_sgpr_kernarg_segment_ptr 1\n  .amdhsa_system_sgpr_workgroup_id_x 1\n.end_amdhsa_kernel\n"
    return s, A

if __name__ == "__main__":
    out = sys.argv[1]
    kw = {}
    for p in sys.argv[2:]:
        k, v = p.split("=")
        kw[k] = int(v) if v.lstrip("-").isdigit() else v.replace("+", " ")
    s, A = gen(**kw)
    open(out, "w").write(s)
    print("wrote", out, "instructions", len(A.ins), "nops", A.nops, "lds", LDS_BYTES)
```

```python
import sys, struct
from asmlib import Asm

NAME = "recurrent_scan__gqa_block_cached__mixer_token_mlp__decode_kernel"
def f2u(x): return struct.unpack("<I", struct.pack("<f", x))[0]

WS_ST, WS_OP, WS_SP, WS_Q, WS_EP = 0x10000, 0x20000, 0x100000, 0x60000, 0x0
WS_PG = 0x90000
WS_CW, WS_PR = 0x80000, 0x200000
EP_STEP = 0x9E3779B97F4A7C15
WS_STAMP = 128 << 20
HI = 131072
L_WO = 0
L_XN, XN_STRIDE = 16384, 1040
L_OW = L_XN
L_QP = 24704
L_QB = 28800
L_FLG = 29824
L_ST = L_FLG + 64
L_GS = L_ST + 128
L_YP = L_GS + 32
LDS_BYTES = HI + L_YP + 128
F_FULL, F_FREED, F_XN, F_QP, F_QR, F_ST, F_GR, F_WO, F_AM, F_PLAN, F_LI, F_MODE = [L_FLG + 4 * i for i in (0, 4, 8, 9, 10, 11, 12, 13, 14, 1, 15, 2)]
L_PP = L_QP

sWAVE, sBASE, sOFF = 3, 4, 5
sT0, sT1, sT2 = 6, 7, 8
sR, sSPIN, sT3 = 9, 10, 11
sMU, sMB = 14, 15
SRD = dict(K=44, V=48, X=52, WQ=56, WO=60, W1=64, B1=68, W2=72, OUT=76, DBG=80, WS=84)
KARG = dict(X=0, K=8, V=16, WQ=24, WO=32, W1=48, B1=56, W2=64, OUT=80, DBG=88, WS=96)
SIZE = dict(X=8192, K=1 << 26, V=1 << 26, WQ=1 << 22, WO=1 << 22, W1=3584, B1=3584, W2=3584, OUT=8192, DBG=256, WS=1 << 28)
sSELLO, sSELHI, sMASK, sSCALE, sL2E, sC0, sC1, sB2, sB2P = 88, 89, 90, 91, 92, 93, 94, 95, 96
sOPOFF, sSPOFF, sSTOFF, sFULL = 98, 99, 100, 101
def srd(n): return "s[%d:%d]" % (SRD[n], SRD[n] + 3)
def vr(a, n=1): return "v%d" % a if n == 1 else "v[%d:%d]" % (a, a + n - 1)
vL16, vG4, vC4, vR4, vN16, vHI, vONE = 1, 2, 3, 4, 5, 6, 7
vT = 8
vPOLL = 16

def gen(F=4, stamps=0, pol="nt", spin=1 << 17, lspin=1 << 22, mimic=1, pre=0, lsleep=1, ldprio=3, fsleep=8, qsleep=2, ssleep=8, tsleep=0, xmap=1, polq=None, polo=None, ldst=0, abl='', rot=0, pad=0, P1=1, P2=1, pd=5, qmap=0, tl='sc1', ts='sc1', tsleep2=None, Fhi=0, himask=0xf8, hiend=16, spad=0, at2=1, td2=8, td1=0, at1=0, qdelay=0, sdelay=0, qtrig=8, strig=48, bshift=0, wolate=2, wqsplit=0, wotrig=60, D=0, DV=0, probe=0, steal=0, cth=23, cllate=0, bias=0, rtrig=48, p_a=-1, p_b=-1, pspan=0, pstart=0, bal=0, Flo=2, bthr=0, bper=8, bstop=58, bmin=0, pm=0, pval=0, pgrp=0, pat=11, tlb=0, piv=0, pmap=0, pst=0, pad2=0, pw=255, pwg=255, pwv=0, fast=0, nfirst=4, epe=0, nowait=0, cbar=0, outp='', mlate=0, mstag=4, cpol='sc1', Wlo=0, Whi=28, gran=4, nlo=8, nhi=56, qshift=0, qrot=0, nlo2=0, xs=2, sep=0, sam=0):
    NOWN = 5 if steal else 8
    sPLAN = 13
    DV = DV if DV else D
    tsleep2 = tsleep if tsleep2 is None else tsleep2
    polq = pol if polq is None else polq.replace('def', '')
    polo = pol if polo is None else polo.replace('def', '')
    A = Asm()
    NST = 14
    def stamp(k):
        if stamps: A("s_memrealtime s[%d:%d]" % (16 + 2 * k, 17 + 2 * k))
    QUADS = ("quad_perm:[1,0,3,2]", "quad_perm:[2,3,0,1]", "row_half_mirror", "row_mirror")
    def dpp(op, v, m, rm="0xf"): A("%s_dpp v%d, v%d, v%d %s row_mask:%s bank_mask:0xf" % (op, v, v, v, m, rm))
    def red16(v, op):
        for m in QUADS: dpp(op, v, m)
    def swap_red(v, t, op, which):
        A("v_mov_b32 v%d, v%d" % (t, v)); A("v_permlane%d_swap_b32 v%d, v%d" % (which, v, t)); A("%s v%d, v%d, v%d" % (op, v, v, t))
    def rbf(v):
        A("v_cvt_pk_bf16_f32 v%d, v%d, v%d" % (v, v, v)); A("v_lshlrev_b32 v%d, 16, v%d" % (v, v))
    def unpack(dlo, dhi, src):
        A("v_lshlrev_b32 v%d, 16, v%d" % (dlo, src)); A("v_and_b32 v%d, s%d, v%d" % (dhi, sMASK, src))
    def layernorm(pk, n, x, d, t, halves):
        def allred(v):
            red16(v, "v_add_f32"); swap_red(v, t + 2, "v_add_f32", 16)
            if halves == 1: swap_red(v, t + 2, "v_add_f32", 32)
        for i in range(n): unpack(x + 2 * i, x + 2 * i + 1, pk + i)
        A("v_add_f32 v%d, v%d, v%d" % (t, x, x + 1)); A("v_add_f32 v%d, v%d, v%d" % (t + 1, x + 2, x + 3))
        for i in range(4, 2 * n): A("v_add_f32 v%d, v%d, v%d" % (t + (i & 1), t + (i & 1), x + i))
        A("v_add_f32 v%d, v%d, v%d" % (t, t, t + 1))
        allred(t)
        A("v_mul_f32 v%d, 0x3b000000, v%d" % (t, t))
        A("v_cvt_pk_bf16_f32 v%d, v%d, v%d" % (t + 1, t, t))
        for i in range(2 * n): A("v_sub_f32 v%d, v%d, v%d" % (d + i, x + i, t))
        A("v_lshlrev_b32 v%d, 16, v%d" % (t + 1, t + 1))
        A("v_mul_f32 v%d, v%d, v%d" % (t, d, d)); A("v_mul_f32 v%d, v%d, v%d" % (d, d + 1, d + 1))
        for i in range(2, 2 * n): A("v_fmac_f32 v%d, v%d, v%d" % (t if i & 1 else d, d + i, d + i))
        A("v_add_f32 v%d, v%d, v%d" % (t, t, d))
        for i in range(2 * n): A("v_sub_f32 v%d, v%d, v%d" % (x + i, x + i, t + 1))
        allred(t)
        for i in range(n): A("v_cvt_pk_bf16_f32 v%d, v%d, v%d" % (pk + i, x + 2 * i, x + 2 * i + 1))
        A("v_mul_f32 v%d, 0x3b000000, v%d" % (t, t)); rbf(t)
        A("v_add_f32 v%d, 0x%x, v%d" % (t, f2u(1e-5), t)); rbf(t)
        A("v_sqrt_f32 v%d, v%d" % (t, t)); rbf(t)
        A("v_rcp_f32 v%d, v%d" % (t, t))
        for i in range(n): unpack(x + 2 * i, x + 2 * i + 1, pk + i)
        for i in range(2 * n): A("v_mul_f32 v%d, v%d, v%d" % (x + i, t, x + i))
        for i in range(n): A("v_cvt_pk_bf16_f32 v%d, v%d, v%d" % (pk + i, x + 2 * i, x + 2 * i + 1))
    def lds_wait(flag, val, keep=None, sl=None):
        ok = A.label("lok"); again = A.label("lagain")
        dst = keep if keep is not None else sT3
        if keep is not None:
            A("s_cmp_ge_u32 s%d, %s" % (keep, val)); A("s_cbranch_scc1 " + ok)
        A("s_mov_b32 s%d, 0" % sSPIN)
        A(again + ":")
        A("ds_read_b32 v%d, v%d offset:%d" % (vPOLL, vHI, flag)); A("s_waitcnt lgkmcnt(0)")
        A("v_readfirstlane_b32 s%d, v%d" % (dst, vPOLL))
        A("s_cmp_ge_u32 s%d, %s" % (dst, val)); A("s_cbranch_scc1 " + ok)
        if sl is None: sl = lsleep
        if sl: A("s_sleep %d" % sl)
        A("s_add_u32 s%d, s%d, 1" % (sSPIN, sSPIN)); A("s_cmp_lt_u32 s%d, %d" % (sSPIN, lspin)); A("s_cbranch_scc1 " + again)
        A(ok + ":")
    def lds_add(flag_addr_reg, off):
        A("s_waitcnt lgkmcnt(0)")
        A("s_mov_b64 exec, 1"); A("ds_add_u32 v%d, v%d offset:%d" % (flag_addr_reg, vONE, off)); A("s_mov_b64 exec, -1")
    def gpoll(loads, first=True, sleep=0, full="-1", tag=None, P=1):
        ok = A.label("ok"); again = A.label("again")
        masks = ["vcc", "s[12:13]"]
        A("s_mov_b32 s%d, 0" % sSPIN)
        if first:
            for issue, regs in loads: issue()
        for _ in range(P - 1):
            A("s_sleep %d" % pd)
            for issue, regs in loads: issue()
        A(again + ":")
        A("s_waitcnt vmcnt(%d)" % (len(loads) * (P - 1)))
        for (issue, regs), mk in zip(loads, masks):
            t = vT + 7
            if tag is not None:
                A("v_cmp_ne_u64 %s, %s, v[%d:%d]" % (mk, tag, regs[2], regs[3])); continue
            if len(regs) == 2: A("v_max_u32 v%d, v%d, v%d" % (t, regs[0], regs[1]))
            else:
                A("v_max3_u32 v%d, v%d, v%d, v%d" % (t, regs[0], regs[1], regs[2])); A("v_max_u32 v%d, v%d, v%d" % (t, t, regs[3]))
            A("v_cmp_eq_u32 %s, -1, v%d" % (mk, t))
        if len(loads) == 2:
            A("s_or_b32 s%d, vcc_lo, vcc_hi" % sT3); A("s_or_b32 s%d, s%d, s12" % (sT3, sT3)); A("s_or_b32 s%d, s%d, s13" % (sT3, sT3))
        else:
            A("s_or_b32 s%d, vcc_lo, vcc_hi" % sT3)
        A("s_cbranch_scc0 " + ok)
        if sleep: A("s_sleep %d" % sleep)
        for (issue, regs), mk in zip(loads, masks):
            A("s_mov_b64 exec, %s" % mk); issue()
        if full == "PARTIAL": A("s_mov_b32 exec_lo, -1"); A("s_mov_b32 exec_hi, 0x1ffff")
        else: A("s_mov_b64 exec, %s" % full)
        A("s_add_u32 s%d, s%d, 1" % (sSPIN, sSPIN)); A("s_cmp_lt_u32 s%d, %d" % (sSPIN, spin)); A("s_cbranch_scc1 " + again)
        A("s_waitcnt vmcnt(0)")
        A(ok + ":")
    def apoll(vd, vaddr, soff, vtmp, sleep, first=True):
        ms = ["vcc", "s[12:13]", "s[88:89]", "s[90:91]"]
        ok = A.label("aok"); again = A.label("aagain")
        def iss(k):
            A("v_mov_b32 v%d, 0" % (vd + 2 * k)); A("v_mov_b32 v%d, 0" % (vd + 1 + 2 * k))
            A("buffer_atomic_or_x2 v[%d:%d], v%d, %s, s%d offen offset:%d sc0" % (vd + 2 * k, vd + 1 + 2 * k, vaddr, srd("WS"), soff, 512 * k))
        if first == "only":
            for k in range(4): iss(k)
            return
        A("s_mov_b32 s%d, 0" % sSPIN)
        if first:
            for k in range(4): iss(k)
        A(again + ":")
        A("s_waitcnt vmcnt(0)")
        for k in range(4): A("v_max_u32 v%d, v%d, v%d" % (vtmp + k, vd + 2 * k, vd + 1 + 2 * k))
        for k in range(4): A("v_cmp_eq_u32 %s, -1, v%d" % (ms[k], vtmp + k))
        A("s_or_b64 s[92:93], vcc, s[12:13]"); A("s_or_b64 s[94:95], s[88:89], s[90:91]"); A("s_or_b64 s[92:93], s[92:93], s[94:95]")
        A("s_cbranch_scc0 " + ok)
        if sleep: A("s_sleep %d" % sleep)
        for k in range(4):
            A("s_mov_b64 exec, %s" % ms[k]); iss(k)
        A("s_mov_b64 exec, -1")
        A("s_add_u32 s%d, s%d, 1" % (sSPIN, sSPIN)); A("s_cmp_lt_u32 s%d, %d" % (sSPIN, spin)); A("s_cbranch_scc1 " + again)
        A("s_waitcnt vmcnt(0)")
        A(ok + ":")
    def word_poll(load, vd, lanes, cmp, sleep):
        ok = A.label("fok"); again = A.label("fagain")
        A("s_mov_b32 s%d, 0" % sSPIN); A("s_mov_b64 exec, %s" % lanes)
        A(again + ":")
        A(load)
        A("s_waitcnt vmcnt(0)")
        A(cmp % vd)
        A("s_cmp_eq_u64 vcc, 0"); A("s_cbranch_scc1 " + ok)
        if sleep: A("s_sleep %d" % sleep)
        A("s_add_u32 s%d, s%d, 1" % (sSPIN, sSPIN)); A("s_cmp_lt_u32 s%d, %d" % (sSPIN, spin)); A("s_cbranch_scc1 " + again)
        A(ok + ":")
        A("s_mov_b64 exec, -1")

    def wo_dma():
        A("v_lshrrev_b32 v%d, 3, v0" % (vT + 4)); A("v_lshlrev_b32 v%d, 10, v%d" % (vT + 4, vT + 4)); A("v_and_b32 v%d, 7, v0" % (vT + 5)); A("v_lshl_add_u32 v%d, v%d, 4, v%d" % (vT + 4, vT + 5, vT + 4))
        A("s_lshr_b32 s%d, s%d, 3" % (sT0, sR)); A("s_lshl_b32 s%d, s%d, 17" % (sT0, sT0)); A("s_and_b32 s%d, s%d, 7" % (sT1, sR)); A("s_lshl_b32 s%d, s%d, 7" % (sT1, sT1))
        A("s_add_u32 s%d, s%d, s%d" % (sT0, sT0, sT1))
        for a in range(16):
            A("s_mov_b32 m0, %d" % (HI + L_WO + a * 1024))
            A("buffer_load_dwordx4 v%d, %s, s%d offen %s lds" % (vT + 4, srd("WO"), sT0, polo))
            if a < 15: A("s_add_u32 s%d, s%d, 0x2000" % (sT0, sT0))
    early = ["K", "V"] + (["WS", "DBG"] if (stamps or pmap or pgrp or pspan or probe or pad2 or p_b >= 0) else [])
    def emit_loader():
        vO = 17
        sG, sSLOT, sFR, sN = 12, 13, 88, 92
        if fast:
            if ldprio: A("s_setprio %d" % ldprio)
            if xmap == 0:
                A("s_and_b32 s%d, s2, 7" % sBASE); A("s_bfe_u32 s%d, s2, 0x20003" % sT0); A("s_lshr_b32 s%d, s2, 5" % sT1); A("s_lshl_b32 s%d, s%d, 20" % (sBASE, sBASE)); A("s_lshl_b32 s%d, s%d, 23" % (sT1, sT1))
                A("s_add_u32 s%d, s%d, s%d" % (sBASE, sBASE, sT1))
            else: A("s_and_b32 s%d, s2, 7" % sBASE); A("s_lshr_b32 s%d, s2, 3" % sT0); A("s_lshl_b32 s%d, s%d, 23" % (sBASE, sBASE))
            A("v_lshrrev_b32 v%d, 4, v0" % vG4); A("v_and_b32 v%d, 15, v0" % vN16)
            A("s_lshl_b32 s%d, s%d, 18" % (sT0, sT0)); A("v_xor_b32 v%d, v%d, v%d" % (vT + 1, vG4, vN16)); A("v_lshlrev_b32 v%d, 8, v%d" % (vT, vG4))
            A("s_add_u32 s%d, s%d, s%d" % (sOFF, sBASE, sT0)); A("v_lshl_add_u32 v%d, v%d, 4, v%d" % (vO, vT + 1, vT))
            A("s_mov_b32 s%d, 0x%x" % (SRD["K"] + 2, SIZE["K"])); A("s_mov_b32 s%d, 0x20000" % (SRD["K"] + 3)); A("s_mov_b32 m0, 0")
            for i in range(1, 4): A("v_xor_b32 v%d, %d, v%d" % (vO + i, 64 * i, vO))
            A("s_mov_b32 s%d, s%d" % (sBASE, sOFF))
            A("s_waitcnt lgkmcnt(0)")
            if ldst == 2: stamp(1)
            A("L_first:")
            for i in range(4): A("buffer_load_dwordx4 v%d, %s, s%d offen offset:%d %s lds" % (vO + i, srd("K"), sOFF, i * 1024, pol))
            A("s_addk_i32 m0, 4096"); A("s_addk_i32 s%d, 4096" % sOFF); A(("s_cmpk_lt_u32 m0, 0x%x" if nfirst < 8 else "s_cmp_lt_u32 m0, 0x%x") % (nfirst * 8192)); A("s_cbranch_scc1 L_first")
            if stamps:
                for k in range(2 if ldst == 2 else 1, NST): A("s_mov_b64 s[%d:%d], 0" % (16 + 2 * k, 17 + 2 * k))
            if ldst == 2: stamp(3)
            A("v_lshlrev_b32 v%d, 1, v%d" % (vT + 1, vG4)); A("v_xor_b32 v%d, v%d, v%d" % (vT + 1, vT + 1, vN16)); A("v_lshl_add_u32 v%d, v%d, 4, v%d" % (vO + 4, vT + 1, vT))
            A("v_xor_b32 v%d, 128, v%d" % (vO + 5, vO + 4))
            A("v_mov_b32 v%d, 0x%x" % (vHI, HI)); A("v_mov_b32 v%d, 1" % vONE)
            for n in early[1:]: A("s_mov_b32 s%d, 0x%x" % (SRD[n] + 2, SIZE[n])); A("s_mov_b32 s%d, 0x20000" % (SRD[n] + 3))
            if len(early) > 2:
                A("s_and_b32 s%d, s2, 7" % sR); A("s_lshl_b32 s%d, s%d, 2" % (sR, sR)); A("s_and_b32 s%d, s2, 0xe0" % sT0); A("s_add_u32 s%d, s%d, s%d" % (sR, sR, sT0))
                A("s_bfe_u32 s%d, s2, 0x20003" % sT0); A("s_add_u32 s%d, s%d, s%d" % (sR, sR, sT0))
                A("s_mov_b32 s94, 0"); A("s_mov_b32 s93, 0")
            A("s_mov_b32 s%d, %d" % (sG, max(1, nfirst // 4))); A("s_mov_b32 s%d, %d" % (sSLOT, 8192 * nfirst)); A("s_mov_b32 s%d, %d" % (sN, nfirst))
            if nlo2: A("s_and_b32 s14, s2, 7"); A("s_cmp_eq_u32 s14, %d" % xs); A("s_cselect_b32 s14, %d, %d" % (nlo2, nlo))
            A("s_barrier")
            if ldst == 2: stamp(2)
        else:
            A("L_loader:")
            if ldprio: A("s_setprio %d" % ldprio)
            A("v_lshlrev_b32 v%d, 8, v%d" % (vT, vG4))
            for i in range(4):
                A("v_add_u32 v%d, %d, v%d" % (vT + 1, 4 * i, vG4)); A("v_xor_b32 v%d, v%d, v%d" % (vT + 1, vT + 1, vN16)); A("v_lshl_add_u32 v%d, v%d, 4, v%d" % (vO + i, vT + 1, vT))
            for i in range(2):
                A("v_add_u32 v%d, %d, v%d" % (vT + 1, 4 * i, vG4)); A("v_lshlrev_b32 v%d, 1, v%d" % (vT + 1, vT + 1))
                A("v_xor_b32 v%d, v%d, v%d" % (vT + 1, vT + 1, vN16)); A("v_lshl_add_u32 v%d, v%d, 4, v%d" % (vO + 4 + i, vT + 1, vT))
            A("s_bfe_u32 s%d, s%d, 0x30002" % (sBASE, sR)); A("s_lshl_b32 s%d, s%d, 23" % (sBASE, sBASE)); A("s_lshr_b32 s%d, s%d, 5" % (sT0, sR)); A("s_lshl_b32 s%d, s%d, 20" % (sT0, sT0))
            A("s_add_u32 s%d, s%d, s%d" % (sBASE, sBASE, sT0)); A("s_and_b32 s%d, s%d, 3" % (sT0, sR)); A("s_lshl_b32 s%d, s%d, 18" % (sT0, sT0)); A("s_add_u32 s%d, s%d, s%d" % (sBASE, sBASE, sT0))
            if rot:
                A("s_mov_b32 s94, s%d" % sBASE)
                A("s_mul_i32 s%d, s%d, %d" % (sT0, sR, rot)); A("s_lshr_b32 s%d, s%d, 5" % (sT1, sR)); A("s_add_u32 s%d, s%d, s%d" % (sT0, sT0, sT1))
                A("s_and_b32 s%d, s%d, 31" % (sT0, sT0)); A("s_lshl_b32 s%d, s%d, 13" % (sT0, sT0)); A("s_add_u32 s%d, s%d, s%d" % (sBASE, sBASE, sT0))
            if Fhi:
                A("s_and_b32 s%d, s2, 7" % sT0); A("s_lshr_b32 s%d, %d, s%d" % (sT0, himask, sT0)); A("s_and_b32 s%d, s%d, 1" % (sT0, sT0)); A("s_cselect_b32 s95, %d, %d" % (Fhi, F))
            A("s_mov_b32 s94, 0"); A("s_mov_b32 s93, 0"); A("s_mov_b32 s%d, s%d" % (sOFF, sBASE)); A("s_mov_b32 s%d, 0" % sG); A("s_mov_b32 s%d, 0" % sSLOT); A("s_mov_b32 s%d, 0" % sN)
            A("s_waitcnt lgkmcnt(0)")
        def publish_full(sgpr):
            A("v_mov_b32 v%d, s%d" % (vT, sgpr)); A("s_mov_b64 exec, 1"); A("ds_max_u32 v%d, v%d offset:%d" % (vHI, vT, F_FULL)); A("s_mov_b64 exec, -1")
        def dma_block_w(isk):
            if nlo2:
                A("s_cmp_ge_u32 s%d, s14" % sN); A("s_cselect_b32 s95, %d, %d" % (Wlo, Whi)); A("s_cmp_ge_u32 s%d, %d" % (sN, nhi)); A("s_cselect_b32 s95, %d, s95" % Whi)
            else:
                A("s_sub_u32 s%d, s%d, %d" % (sT0, sN, nlo)); A("s_cmp_lt_u32 s%d, %d" % (sT0, nhi - nlo)); A("s_cselect_b32 s95, %d, %d" % (Wlo, Whi))
            for half in range(2):
                A("s_mov_b32 m0, s%d" % sSLOT)
                for i in range(4):
                    if i % gran == 0:
                        sk = A.label("w")
                        A("s_waitcnt vmcnt(%d)" % Whi); A("s_cmp_eq_u32 s95, %d" % Whi); A("s_cbranch_scc1 " + sk); A("s_waitcnt vmcnt(%d)" % Wlo); A(sk + ":")
                    A("buffer_load_dwordx4 v%d, %s, s%d offen offset:%d %s lds" % (vO + i if isk else vO + 4 + (i & 1), srd("K" if isk else "V"), sOFF, i * 1024, pol))
                A("s_add_u32 s%d, s%d, 4096" % (sOFF, sOFF)); A("s_add_u32 s%d, s%d, 4096" % (sSLOT, sSLOT))
                A("s_lshl3_add_u32 s%d, s%d, %d" % (sT0, sN, 4 * half + 4 - gran)); A("s_sub_i32 s%d, s%d, s95" % (sT0, sT0)); A("s_ashr_i32 s%d, s%d, 3" % (sT0, sT0)); A("s_max_i32 s%d, s%d, 0" % (sT0, sT0)); publish_full(sT0)
            A("s_and_b32 s%d, s%d, 0x1ffff" % (sSLOT, sSLOT)); A("s_add_u32 s%d, s%d, 1" % (sN, sN))
        def dma_block(isk):
            if Wlo: return dma_block_w(isk)
            Dm = D if isk else DV
            for half in range(2):
                A("s_mov_b32 m0, s%d" % sSLOT)
                if Dm: A("s_waitcnt vmcnt(%d)" % Dm)
                for i in range(4):
                    A("buffer_load_dwordx4 v%d, %s, s%d offen offset:%d %s lds" % (vO + i if isk else vO + 4 + (i & 1), srd("K" if isk else "V"), sOFF, i * 1024, pol))
                A("s_add_u32 s%d, s%d, 4096" % (sOFF, sOFF)); A("s_add_u32 s%d, s%d, 4096" % (sSLOT, sSLOT))
                if Dm and (4 * half - Dm) % 8 < 4:
                    A("s_add_i32 s%d, s%d, %d" % (sT0, sN, (4 * half - Dm) // 8)); A("s_max_i32 s%d, s%d, 0" % (sT0, sT0)); publish_full(sT0)
            if rot:
                A("s_and_b32 s%d, s%d, 0x3ffff" % (sOFF, sOFF)); A("s_or_b32 s%d, s%d, s94" % (sOFF, sOFF))
            A("s_and_b32 s%d, s%d, 0x1ffff" % (sSLOT, sSLOT)); A("s_add_u32 s%d, s%d, 1" % (sN, sN))
        if fast:
            for _ in range(4 - nfirst): dma_block(True)
        else:
            if ldst == 2: stamp(1)
            for _ in range(pre): dma_block(True)
            A("s_barrier")
            if ldst == 2: stamp(2)
            for _ in range(4 - pre): dma_block(True)
            A("s_mov_b32 s%d, 1" % sG)
            if ldst == 2: stamp(3)
        def read_freed():
            A("ds_read_b128 %s, v%d offset:%d" % (vr(vT + 4, 4), vHI, F_FREED)); A("s_waitcnt lgkmcnt(0)")
            for c in range(4): A("v_readfirstlane_b32 s%d, v%d" % (sFR + c, vT + 4 + c))
        for isk, last in ((True, 8), (False, 19 if steal else 16)):
            loop = "L_ld_k" if isk else "L_ld_v"
            if not isk: A("s_mov_b32 s%d, s%d" % (sOFF, sBASE))
            A(loop + ":")
            for g_, reg in ((p_a, 16), (p_b, 18)):
                if g_ > 0 and g_ < 16 and (g_ < 8) == isk:
                    sk = A.label("st"); A("s_cmp_lg_u32 s%d, %d" % (sG, g_)); A("s_cbranch_scc1 " + sk); A("s_memrealtime s[%d:%d]" % (reg, reg + 1)); A(sk + ":")
            if ldst == 1:
                for k, g in enumerate((2, 3, 4, 5, 6, 7) if isk else (8, 10, 12, 14)):
                    sk = A.label("st"); A("s_cmp_lg_u32 s%d, %d" % (sG, g)); A("s_cbranch_scc1 " + sk); stamp(k + 1 if isk else k + 7); A(sk + ":")
            if steal and not isk:
                go = A.label("pgo"); again = A.label("pagain")
                A("s_cmp_lt_u32 s%d, %d" % (sG, 8 + NOWN)); A("s_cbranch_scc1 " + go)
                A("s_mov_b32 s%d, 0" % sSPIN); A("s_sub_u32 s%d, s%d, 8" % (sT1, sG))
                if ldst: A("s_memrealtime s[14:15]")
                A(again + ":")
                A("ds_read_b32 v%d, v%d offset:%d" % (vPOLL, vHI, F_PLAN)); A("s_waitcnt lgkmcnt(0)"); A("v_readfirstlane_b32 s%d, v%d" % (sT0, vPOLL))
                A("s_and_b32 s%d, s%d, 0xff" % (sT2, sT0)); A("s_cmp_gt_u32 s%d, s%d" % (sT2, sT1)); A("s_cbranch_scc1 L_granted")
                A("s_cmp_ge_u32 s%d, 0x100" % sT0); A("s_cbranch_scc1 L_ld_end")
                for k in range(F - 1, -1, -1):
                    A("s_cmp_eq_u32 s%d, %d" % (sSPIN, F - 1 - k)); nx = A.label("nx"); A("s_cbranch_scc0 " + nx)
                    A("s_sub_u32 s%d, s%d, %d" % (sT0, sN, k)); A("s_waitcnt vmcnt(%d)" % (8 * k)); publish_full(sT0); A(nx + ":")
                if ldst: A("s_add_u32 s93, s93, 1")
                A("s_add_u32 s%d, s%d, 1" % (sSPIN, sSPIN)); A("s_cmp_lt_u32 s%d, %d" % (sSPIN, lspin)); A("s_cbranch_scc1 " + again)
                A("s_branch L_ld_end")
                A("L_granted:")
                if ldst:
                    A("s_memrealtime s[36:37]"); A("s_waitcnt lgkmcnt(0)"); A("s_sub_u32 s36, s36, s14"); A("s_add_u32 s94, s94, s36")
                A("s_cmp_lt_u32 s%d, 16" % sG); A("s_cbranch_scc1 " + go)
                A("s_sub_u32 s%d, 23, s%d" % (sT0, sG)); A("s_lshl_b32 s%d, s%d, 15" % (sT0, sT0)); A("s_xor_b32 s%d, s%d, 0x80000" % (sOFF, sBASE)); A("s_add_u32 s%d, s%d, s%d" % (sOFF, sOFF, sT0))
                A(go + ":")
            read_freed()
            A("s_sub_i32 s%d, s%d, 2" % (sT1, sG))
            if Fhi and hiend < 16:
                A("s_cmp_ge_u32 s%d, %d" % (sG, hiend)); A("s_cselect_b32 s95, %d, s95" % F)
            for c in range(4):
                go = A.label("go"); sl = A.label("slow")
                A("s_cmp_ge_i32 s%d, s%d" % (sFR + c, sT1)); A("s_cbranch_scc1 " + go)
                A("s_waitcnt vmcnt(0)"); publish_full(sN)
                if ldst: A("s_mul_i32 s94, s%d, 100" % sG); A("s_add_u32 s93, s93, s94")
                A("s_mov_b32 s%d, 0" % sSPIN)
                A(sl + ":")
                read_freed()
                A("s_cmp_ge_i32 s%d, s%d" % (sFR + c, sT1)); A("s_cbranch_scc1 " + go)
                A("s_add_u32 s%d, s%d, 1" % (sSPIN, sSPIN)); A("s_cmp_lt_u32 s%d, %d" % (sSPIN, lspin)); A("s_cbranch_scc1 " + sl)
                A(go + ":")
                dma_block(isk)
                if D or Wlo: pass
                elif bal == 1:
                    hi = A.label("hi")
                    A("ds_read_b32 v%d, v%d offset:%d" % (vPOLL, vHI, F_MODE))
                    A("s_sub_i32 s%d, s%d, %d" % (sT0, sN, F))
                    A("s_waitcnt vmcnt(%d) lgkmcnt(0)" % (8 * F)); A("v_readfirstlane_b32 s%d, v%d" % (sT2, vPOLL))
                    A("s_cmp_eq_u32 s%d, 0" % sT2); A("s_cbranch_scc1 " + hi)
                    publish_full(sT0)
                    if ldst: A("s_add_u32 s94, s94, 100")
                    A("s_sub_i32 s%d, s%d, %d" % (sT0, sN, (Flo + 7) // 8 if Flo > 7 else Flo))
                    A("s_waitcnt vmcnt(%d)" % (Flo if Flo > 7 else 8 * Flo)); A(hi + ":"); publish_full(sT0)
                elif Fhi:
                    hi = A.label("hi")
                    A("s_sub_i32 s%d, s%d, s95" % (sT0, sN)); A("s_max_i32 s%d, s%d, 0" % (sT0, sT0))
                    A("s_waitcnt vmcnt(%d)" % (8 * Fhi)); A("s_cmp_eq_u32 s95, %d" % Fhi); A("s_cbranch_scc1 " + hi)
                    A("s_waitcnt vmcnt(%d)" % (8 * F)); A(hi + ":"); publish_full(sT0)
                else:
                    A("s_sub_i32 s%d, s%d, %d" % (sT0, sN, F))
                    if F > 5: A("s_max_i32 s%d, s%d, 0" % (sT0, sT0))
                    A("s_waitcnt vmcnt(%d)" % (8 * F)); publish_full(sT0)
            if stamps:
                pass
            A("s_add_u32 s%d, s%d, 1" % (sG, sG)); A("s_cmp_lt_u32 s%d, %d" % (sG, last)); A("s_cbranch_scc1 " + loop)
            if not ldst: stamp(1 if isk else 2)
        if steal:
            A("L_ld_end:")
            A("s_mov_b64 exec, 1"); A("ds_write_b32 v%d, v%d offset:%d" % (vHI, vONE, F_LI)); A("s_mov_b64 exec, -1")
        if wolate == 1: wo_dma()
        for k in range((Whi + 4 + 7) // 8 - 1 if Wlo else (DV + 4 + 7) // 8 - 1 if D else max(F, Fhi) - 1, -1, -1):
            A("s_sub_u32 s%d, s%d, %d" % (sT0, sN, k)); A("s_waitcnt vmcnt(%d)" % (8 * k + (16 if wolate == 1 else 0))); publish_full(sT0)
        if wolate == 1:
            if ldst: stamp(11)
            A("s_waitcnt vmcnt(0)"); A("s_mov_b64 exec, 1"); A("ds_write_b32 v%d, v%d offset:%d" % (vHI, vONE, F_WO)); A("s_mov_b64 exec, -1")
        if ldst:
            if wolate == 1: stamp(12)
            else:
                stamp(11)
                A("s_waitcnt lgkmcnt(0)"); A("s_mul_i32 s%d, s%d, 25" % (sT0, sN)); A("s_add_u32 s%d, s%d, s93" % (sT0, sT0)); A("s_add_u32 s40, s16, s%d" % sT0); A("s_addc_u32 s41, s17, 0")
                if steal: A("s_add_u32 s36, s16, s94"); A("s_addc_u32 s37, s17, 0")
                if bal: A("s_add_u32 s40, s16, s94"); A("s_addc_u32 s41, s17, 0")
        else: stamp(3)
        if p_b >= 0 and piv:
            if p_b == 16: A("s_memrealtime s[18:19]")
            A("s_waitcnt lgkmcnt(0)"); A("s_sub_u32 s18, s18, s16")
        elif p_b >= 0:
            if p_b == 16: A("s_memrealtime s[18:19]")
            A("s_waitcnt lgkmcnt(0)"); A("s_sub_u32 s18, s18, s16"); A("v_mov_b32 v8, s18"); A("s_mov_b64 exec, 1"); A("buffer_atomic_add v8, off, %s, 0 offset:4" % srd("DBG")); A("s_mov_b64 exec, -1")
        if pmap:
            if not piv: A("s_memrealtime s[18:19]")
            A("s_lshl_b32 s6, s%d, 2" % sR); A("s_add_u32 s6, s6, 0x300000")
            A("s_waitcnt lgkmcnt(0)")
            if pst: A("s_add_u32 s18, s16, 500")
            A("v_mov_b32 v8, s18"); A("s_mov_b64 exec, 1"); A("buffer_store_dword v8, off, %s, s6 sc1" % srd("WS")); A("s_mov_b64 exec, -1")
        if pspan:
            A("s_memrealtime s[18:19]"); A("s_waitcnt lgkmcnt(0)")
            if pspan in (3, 4): A("s_mov_b32 s18, s16")
            if pm: A("s_and_b32 s6, s2, %d" % pm); A("s_cmp_eq_u32 s6, %d" % pval); A("s_cselect_b32 s18, s18, s16")
            A("s_not_b32 s16, s16"); A("v_mov_b32 v8, s18"); A("v_mov_b32 v9, s16"); A("s_mov_b64 exec, 1")
            A("buffer_atomic_%s v8, off, %s, 0 offset:4" % ("add" if pspan in (4, 5) else "umax", srd("DBG"))); A("buffer_atomic_umax v9, off, %s, 0 offset:8" % srd("DBG")); A("s_mov_b64 exec, -1")
        if pgrp:
            if not piv: A("s_memrealtime s[18:19]")
            if pgrp == 1: A("s_and_b32 s6, s2, 7")
            elif pgrp == 2: A("s_bfe_u32 s6, s%d, 0x30002" % sR)
            elif pgrp == 3: A("s_lshr_b32 s6, s%d, 5" % sR)
            else: A("s_and_b32 s6, s%d, 3" % sR); A("s_lshr_b32 s7, s2, 7"); A("s_lshl_b32 s7, s7, 2"); A("s_add_u32 s6, s6, s7")
            A("s_lshl_b32 s6, s6, 5")
            A("s_waitcnt lgkmcnt(0)"); A("v_mov_b32 v8, s18"); A("s_mov_b64 exec, 1"); A("buffer_atomic_%s v8, off, %s, s6 offset:4" % ("add" if pat >= 12 else "umax", srd("DBG"))); A("s_mov_b64 exec, -1")
        if probe:
            A("s_memrealtime s[20:21]"); A("s_waitcnt lgkmcnt(0)")
            if pstart: A("s_mov_b32 s20, s16")
            A("s_and_b32 s6, s2, 7"); A("s_lshr_b32 s6, %d, s6" % probe); A("s_and_b32 s6, s6, 1"); A("s_lshl_b32 s6, s6, 2"); A("s_add_u32 s6, s6, 4")
            A("s_waitcnt lgkmcnt(0)"); A("v_mov_b32 v8, s20"); A("s_mov_b64 exec, 1"); A("buffer_atomic_add v8, off, %s, s6" % srd("DBG")); A("s_mov_b64 exec, -1")
        A("s_waitcnt lgkmcnt(0)")
        A("s_branch L_done")

    stamp(0)
    A("s_cmp_ge_u32 s2, 256"); A("s_cbranch_scc1 L_end")
    if stamps and not fast:
        for k in range(1, NST): A("s_mov_b64 s[%d:%d], 0" % (16 + 2 * k, 17 + 2 * k))
    if (pad or p_b >= 0 or pspan or pstart or pmap or pad2) and not stamps: A("s_memrealtime s[16:17]")
    if fast:
        assert xmap in (0, 1) and not (rot or Fhi or bshift or steal or wolate == 1)
        for n in early: A("s_load_dwordx2 s[%d:%d], s[0:1], %d" % (SRD[n], SRD[n] + 1, KARG[n]))
        A("v_lshrrev_b32 v1, 6, v0"); A("v_and_b32 v0, 63, v0"); A("v_readfirstlane_b32 s%d, v1" % sWAVE)
        A("s_cmp_lg_u32 s%d, 4" % sWAVE); A("s_cbranch_scc1 L_rest")
        emit_loader()
        A("L_rest:")
        if stamps:
            for k in range(1, NST): A("s_mov_b64 s[%d:%d], 0" % (16 + 2 * k, 17 + 2 * k))
    for n in ("K", "X", "WQ", "WS", "V", "WO", "W1", "B1", "W2", "DBG", "OUT"):
        if not (fast and n in early): A("s_load_dwordx2 s[%d:%d], s[0:1], %d" % (SRD[n], SRD[n] + 1, KARG[n]))
    A("s_load_dwordx2 s[%d:%d], s[0:1], 72" % (sB2P, sB2P + 1))
    if not fast: A("v_lshrrev_b32 v1, 6, v0"); A("v_and_b32 v0, 63, v0"); A("v_readfirstlane_b32 s%d, v1" % sWAVE)
    for n in SRD:
        A("s_mov_b32 s%d, 0x%x" % (SRD[n] + 2, SIZE[n])); A("s_mov_b32 s%d, 0x20000" % (SRD[n] + 3))
    if xmap == 0:
        A("s_and_b32 s%d, s2, 7" % sR); A("s_lshl_b32 s%d, s%d, 5" % (sR, sR)); A("s_lshr_b32 s%d, s2, 3" % sT0); A("s_add_u32 s%d, s%d, s%d" % (sR, sR, sT0))
    elif xmap >= 8:
        A("s_bfe_u32 s%d, s2, 0x10003" % sT0); A("s_bfe_u32 s%d, s2, 0x10004" % sT1); A("s_lshl_b32 s%d, s%d, 2" % (sT1, sT1)); A("s_add_u32 s%d, s%d, s%d" % (sT0, sT0, sT1))
        if xmap == 9: A("s_lshr_b32 s%d, s2, 5" % sT1); A("s_add_u32 s%d, s%d, s%d" % (sT0, sT0, sT1))
        A("s_sub_u32 s%d, s2, s%d" % (sR, sT0))
        A("s_and_b32 s%d, s%d, 7" % (sR, sR)); A("s_lshl_b32 s%d, s%d, 2" % (sR, sR)); A("s_and_b32 s%d, s2, 0xe0" % sT0); A("s_add_u32 s%d, s%d, s%d" % (sR, sR, sT0))
        A("s_bfe_u32 s%d, s2, 0x20003" % sT0); A("s_add_u32 s%d, s%d, s%d" % (sR, sR, sT0))
    elif xmap >= 4:
        A("s_lshr_b32 s%d, s2, 1" % sT0); A("s_xor_b32 s%d, s%d, s2" % (sT0, sT0)); A("s_and_b32 s%d, s%d, 1" % (sT0, sT0)); A("s_lshl_b32 s%d, s%d, 3" % (sT0, sT0))
        A("s_and_b32 s%d, s2, 4" % sT1); A("s_lshl_b32 s%d, s%d, 2" % (sT1, sT1)); A("s_add_u32 s%d, s%d, s%d" % (sT0, sT0, sT1))
        A("s_bfe_u32 s%d, s2, 0x10003" % sT1); A("s_lshl_b32 s%d, s%d, 2" % (sT1, sT1)); A("s_add_u32 s%d, s%d, s%d" % (sT0, sT0, sT1))
        A("s_and_b32 s%d, s2, 0xe0" % sR); A("s_add_u32 s%d, s%d, s%d" % (sR, sR, sT0))
        if xmap == 6:
            A("s_lshr_b32 s%d, s2, 5" % sT0); A("s_xor_b32 s%d, s%d, s2" % (sT0, sT0)); A("s_and_b32 s%d, s%d, 1" % (sT0, sT0))
        elif xmap == 7:
            A("s_lshr_b32 s%d, s2, 3" % sT0); A("s_xor_b32 s%d, s%d, s2" % (sT0, sT0)); A("s_and_b32 s%d, s%d, 1" % (sT0, sT0))
        else: A("s_and_b32 s%d, s2, 1" % sT0)
        A("s_bfe_u32 s%d, s2, 0x10004" % sT1)
        A("s_lshl_b32 s%d, s%d, 1" % ((sT0, sT0) if xmap != 5 else (sT1, sT1)))
        A("s_add_u32 s%d, s%d, s%d" % (sR, sR, sT0)); A("s_add_u32 s%d, s%d, s%d" % (sR, sR, sT1))
    else:
        if xmap == 2:
            A("s_lshr_b32 s%d, s2, 5" % sT0); A("s_add_u32 s%d, s2, s%d" % (sR, sT0))
        elif xmap == 3:
            A("s_bfe_u32 s%d, s2, 0x20003" % sT0); A("s_lshl_b32 s%d, s%d, 1" % (sT0, sT0)); A("s_add_u32 s%d, s2, s%d" % (sR, sT0))
        else: A("s_add_u32 s%d, s2, %d" % (sR, bshift))
        A("s_and_b32 s%d, s%d, 7" % (sR, sR)); A("s_lshl_b32 s%d, s%d, 2" % (sR, sR)); A("s_and_b32 s%d, s2, 0xe0" % sT0); A("s_add_u32 s%d, s%d, s%d" % (sR, sR, sT0))
        A("s_bfe_u32 s%d, s2, 0x20003" % sT0); A("s_add_u32 s%d, s%d, s%d" % (sR, sR, sT0))
    sRQ = sMB
    if xmap >= 4:
        A("s_and_b32 s%d, s2, 7" % sRQ); A("s_lshl_b32 s%d, s%d, 2" % (sRQ, sRQ)); A("s_and_b32 s%d, s2, 0xe0" % sT0); A("s_add_u32 s%d, s%d, s%d" % (sRQ, sRQ, sT0))
        A("s_bfe_u32 s%d, s2, 0x20003" % sT0); A("s_add_u32 s%d, s%d, s%d" % (sRQ, sRQ, sT0))
    elif qmap == 0 and qshift:
        A("s_add_u32 s%d, s%d, %d" % (sT0, sR, 4 * qshift)); A("s_and_b32 s%d, s%d, 0x1c" % (sT0, sT0)); A("s_and_b32 s%d, s%d, 0xe3" % (sRQ, sR)); A("s_or_b32 s%d, s%d, s%d" % (sRQ, sRQ, sT0))
    elif qmap == 0: A("s_mov_b32 s%d, s%d" % (sRQ, sR))
    elif qmap == 1:
        A("s_and_b32 s%d, s2, 7" % sRQ); A("s_lshl_b32 s%d, s%d, 5" % (sRQ, sRQ)); A("s_lshr_b32 s%d, s2, 3" % sT0); A("s_add_u32 s%d, s%d, s%d" % (sRQ, sRQ, sT0))
    elif qmap == 2:
        A("s_lshr_b32 s%d, s%d, 3" % (sT0, sR)); A("s_and_b32 s%d, s%d, 0x1c" % (sT0, sT0)); A("s_add_u32 s%d, s%d, s%d" % (sT0, sT0, sR)); A("s_and_b32 s%d, s%d, 0x1c" % (sT0, sT0))
        A("s_and_b32 s%d, s%d, 0xe3" % (sRQ, sR)); A("s_or_b32 s%d, s%d, s%d" % (sRQ, sRQ, sT0))
    elif qmap == 6:
        A("s_lshr_b32 s%d, s%d, 2" % (sT0, sR)); A("s_and_b32 s%d, s%d, 0x18" % (sT0, sT0)); A("s_add_u32 s%d, s%d, s%d" % (sT0, sT0, sR)); A("s_add_u32 s%d, s%d, 4" % (sT0, sT0)); A("s_and_b32 s%d, s%d, 0x1c" % (sT0, sT0))
        A("s_and_b32 s%d, s%d, 0xe3" % (sRQ, sR)); A("s_or_b32 s%d, s%d, s%d" % (sRQ, sRQ, sT0))
    elif qmap == 4:
        A("s_lshr_b32 s%d, s%d, 5" % (sT0, sR)); A("s_lshl_b32 s%d, s%d, 1" % (sT0, sT0)); A("s_bfe_u32 s%d, s%d, 0x10001" % (sT1, sR)); A("s_add_u32 s%d, s%d, s%d" % (sT0, sT0, sT1))
        A("s_lshr_b32 s%d, s%d, 2" % (sT1, sT0)); A("s_lshl_b32 s%d, s%d, 1" % (sT1, sT1)); A("s_bfe_u32 s%d, s%d, 0x30002" % (sT2, sR)); A("s_add_u32 s%d, s%d, s%d" % (sT1, sT1, sT2))
        A("s_and_b32 s%d, s%d, 7" % (sT1, sT1)); A("s_lshl_b32 s%d, s%d, 3" % (sT0, sT0)); A("s_add_u32 s%d, s%d, s%d" % (sT0, sT0, sT1)); A("s_lshl_b32 s%d, s%d, 1" % (sT0, sT0))
        A("s_and_b32 s%d, s%d, 1" % (sT1, sR)); A("s_add_u32 s%d, s%d, s%d" % (sRQ, sT0, sT1))
    A("v_lshlrev_b32 v%d, 4, v0" % vL16); A("v_lshrrev_b32 v%d, 4, v0" % vG4); A("v_bfe_u32 v%d, v0, 2, 2" % vC4)
    A("v_and_b32 v%d, 3, v0" % vR4); A("v_and_b32 v%d, 15, v0" % vN16); A("v_mov_b32 v%d, 0x%x" % (vHI, HI)); A("v_mov_b32 v%d, 1" % vONE)
    A("s_mov_b32 s%d, 0x05040100" % sSELLO); A("s_mov_b32 s%d, 0x07060302" % sSELHI); A("s_mov_b32 s%d, 0xffff0000" % sMASK)
    A("s_mov_b32 s%d, 0x%x" % (sSCALE, f2u(128 ** -0.5))); A("s_mov_b32 s%d, 0x%x" % (sL2E, f2u(1.4426950408889634)))
    c0 = -2.0 * 0.7978845608028654 * 1.4426950408889634
    A("s_mov_b32 s%d, 0x%x" % (sC0, f2u(c0))); A("s_mov_b32 s%d, 0x%x" % (sC1, f2u(c0 * 0.044715)))
    A("s_lshr_b32 s%d, s%d, 5" % (sT0, sR)); A("s_lshl_b32 s%d, s%d, 15" % (sT0, sT0))
    A("s_and_b32 s%d, s%d, 31" % (sT1, sR)); A("s_lshl_b32 s%d, s%d, 8" % (sT1, sT1)); A("s_add_u32 s%d, s%d, s%d" % (sT0, sT0, sT1))
    A("s_add_u32 s%d, s%d, 0x%x" % (sOPOFF, sT0, WS_OP))
    A("s_and_b32 s%d, s%d, 7" % (sT0, sR)); A("s_lshl_b32 s%d, s%d, %d" % (sT0, sT0, 13 + spad))
    A("s_lshr_b32 s%d, s%d, 3" % (sT1, sR)); A("s_lshl_b32 s%d, s%d, %d" % (sT1, sT1, 6 + spad)); A("s_add_u32 s%d, s%d, s%d" % (sT0, sT0, sT1))
    A("s_add_u32 s%d, s%d, 0x%x" % (sSPOFF, sT0, WS_SP))
    A("s_lshr_b32 s%d, s%d, 2" % (sT0, sR)); A("s_lshl_b32 s%d, s%d, 7" % (sT0, sT0)); A("s_add_u32 s%d, s%d, 0x%x" % (sSTOFF, sT0, WS_ST))
    if not fast: A("s_cmp_eq_u32 s%d, 4" % sWAVE); A("s_cbranch_scc1 L_loader")
    A("s_cmp_eq_u32 s%d, 5" % sWAVE); A("s_cbranch_scc1 L_comm")
    A("s_cmp_gt_u32 s%d, 5" % sWAVE); A("s_cbranch_scc1 L_mlp")

    vQ, vS, vTMP, vK = 32, 48, 112, 128
    vKA, vVA = 17, 17
    vM, vLs, vMO, vF, vOWA = 25, 26, 27, 28, 29
    vX = vS
    A("v_lshlrev_b32 v%d, 5, v0" % vT)
    A("v_lshrrev_b32 v%d, 1, v0" % (vT + 1)); A("v_lshlrev_b32 v%d, 13, v%d" % (vT + 1, vT + 1))
    A("v_and_b32 v%d, 1, v0" % (vT + 2)); A("v_lshl_add_u32 v%d, v%d, 4, v%d" % (vT + 1, vT + 2, vT + 1))
    A("s_lshl_b32 s%d, s%d, 11" % (sT2, sWAVE))
    A("s_lshl_b32 s%d, s%d, 20" % (sT0, sWAVE)); A("s_lshl_b32 s%d, s%d, 5" % (sT1, sRQ)); A("s_add_u32 s%d, s%d, s%d" % (sT0, sT0, sT1))
    A("s_lshl_b32 s%d, s%d, 13" % (sT1, sWAVE)); A("s_add_u32 s%d, s%d, %d" % (sT1, sT1, 12 * 8192))
    A("s_waitcnt lgkmcnt(0)")
    if ldst == 2: stamp(12)
    if cbar == 1: A("s_barrier")
    A("buffer_load_dwordx4 %s, v%d, %s, s%d offen" % (vr(vX, 4), vT, srd("X"), sT2))
    A("buffer_load_dwordx4 %s, v%d, %s, s%d offen offset:16" % (vr(vX + 4, 4), vT, srd("X"), sT2))
    nq0 = wqsplit if wqsplit else 4
    if cbar == 2: A("s_barrier")
    for a in range(4 if qrot else 0):
        A("s_add_u32 s12, s%d, %d" % (sRQ, a)); A("s_and_b32 s12, s12, 3"); A("s_lshl_b32 s13, s12, 10"); A("s_add_u32 m0, s%d, s13" % sT1); A("s_lshl_b32 s12, s12, 18"); A("s_add_u32 s12, s12, s%d" % sT0)
        A("buffer_load_dwordx4 v%d, %s, s12 offen %s lds" % (vT + 1, srd("WQ"), polq))
    for a in range(0 if qrot else nq0):
        A("s_add_u32 m0, s%d, %d" % (sT1, a * 1024))
        if 'q' in abl: A("buffer_load_dwordx4 v%d, %s, 0 offen lds" % (vL16, srd("X")))
        else: A("buffer_load_dwordx4 v%d, %s, s%d offen %s lds" % (vT + 1, srd("WO" if 'Q' in abl else "V" if 'V' in abl else "WQ"), sT0, polq))
        if a < 3: A("s_add_u32 s%d, s%d, 0x40000" % (sT0, sT0))
    if nq0 < 4: A("v_mov_b32 v31, v%d" % (vT + 1)); A("s_mov_b32 s12, s%d" % sT0)
    if not cbar: A("s_barrier")
    A("v_lshrrev_b32 v%d, 5, v0" % (vT + 3)); A("s_lshl_b32 s%d, s%d, 1" % (sT0, sWAVE)); A("v_add_u32 v%d, s%d, v%d" % (vT + 3, sT0, vT + 3))
    A("v_mul_u32_u24 v%d, %d, v%d" % (vT + 3, XN_STRIDE, vT + 3)); A("v_and_b32 v%d, 31, v0" % (vT + 4)); A("v_lshl_add_u32 v%d, v%d, 5, v%d" % (vT + 3, vT + 4, vT + 3))
    A("v_add_u32 v%d, v%d, v%d" % (vT + 3, vHI, vT + 3))
    A("v_and_b32 v%d, 7, v0" % (vT + 4)); A("v_mul_u32_u24 v%d, %d, v%d" % (vT + 4, XN_STRIDE, vT + 4)); A("v_lshl_add_u32 v%d, v%d, 4, v%d" % (vT + 4, vG4, vT + 4))
    A("s_lshl_b32 s%d, s%d, 8" % (sT0, sWAVE)); A("s_add_u32 s%d, s%d, %d" % (sT0, sT0, HI)); A("v_add_u32 v%d, s%d, v%d" % (vT + 4, sT0, vT + 4))
    A("v_lshlrev_b32 v%d, 8, v%d" % (vT + 5, vG4)); A("v_lshl_add_u32 v%d, v%d, 3, v%d" % (vT + 5, vN16, vT + 5)); A("v_add_u32 v%d, s%d, v%d" % (vT + 5, sT1, vT + 5))
    A("s_lshl_b32 s%d, s%d, 10" % (sT0, sWAVE)); A("s_add_u32 s%d, s%d, %d" % (sT0, sT0, HI)); A("v_add_u32 v%d, s%d, v%d" % (vT + 6, sT0, vL16))
    A("s_lshl_b32 s%d, s%d, 13" % (sT0, sWAVE)); A("v_lshlrev_b32 v%d, 8, v%d" % (vT, vN16)); A("v_add_u32 v%d, s%d, v%d" % (vT, sT0, vT))
    for m in range(4):
        A("v_add_u32 v%d, %d, v%d" % (vT + 1, 4 * m, vG4)); A("v_xor_b32 v%d, v%d, v%d" % (vT + 1, vT + 1, vN16))
        A("v_lshl_add_u32 v%d, v%d, 4, v%d" % (vKA + m, vT + 1, vT)); A("v_add_u32 v%d, 0x10000, v%d" % (vKA + 4 + m, vKA + m))
    A("s_lshl_b32 s%d, s%d, 2" % (sT0, sWAVE)); A("s_add_u32 s%d, s%d, %d" % (sT0, sT0, HI)); A("v_mov_b32 v%d, s%d" % (30, sT0))
    A("s_mov_b32 s%d, 0" % sFULL)
    A("s_waitcnt vmcnt(%d)" % nq0)
    for a in range(nq0, 4):
        A("s_add_u32 m0, s%d, %d" % (sT1, a * 1024))
        A("buffer_load_dwordx4 v31, %s, s12 offen %s lds" % (srd("WQ"), polq))
        if a < 3: A("s_add_u32 s12, s12, 0x40000")
    stamp(1)
    layernorm(vX, 8, vX + 8, vX + 24, vX + 40, 2)
    A("ds_write_b128 v%d, %s offset:%d" % (vT + 3, vr(vX, 4), L_XN)); A("ds_write_b128 v%d, %s offset:%d" % (vT + 3, vr(vX + 4, 4), L_XN + 16))
    lds_add(vHI, F_XN)
    A("s_waitcnt vmcnt(0)")
    for m in range(4):
        A("ds_read_b64_tr_b16 %s, v%d offset:%d" % (vr(vK + 4 * m, 2), vT + 5, m * 1024))
        A("ds_read_b64_tr_b16 %s, v%d offset:%d" % (vr(vK + 4 * m + 2, 2), vT + 5, m * 1024 + 128))
    lds_wait(F_XN, 4)
    for m in range(4): A("ds_read_b128 %s, v%d offset:%d" % (vr(vK + 16 + 4 * m, 4), vT + 4, L_XN + m * 64))
    for m in range(4):
        A("s_waitcnt lgkmcnt(%d)" % (3 - m))
        A("v_mfma_f32_16x16x32_bf16 %s, %s, %s, %s" % (vr(vTMP, 4), vr(vK + 4 * m, 4), vr(vK + 16 + 4 * m, 4), "0" if m == 0 else vr(vTMP, 4)))
    A("ds_write_b128 v%d, %s offset:%d" % (vT + 6, vr(vTMP, 4), L_QP))
    lds_add(vHI, F_QP)
    A("s_mov_b64 exec, 1"); A("ds_add_u32 v30, v%d offset:%d" % (vONE, F_FREED)); A("s_mov_b64 exec, -1")
    stamp(2)
    def wait_block(n4):
        A("s_add_u32 s%d, s%d, %d" % (sT0, sWAVE, 4 * n4 + 1))
        lds_wait(F_FULL, "s%d" % sT0, keep=sFULL)
    def read_k(j):
        base = vK + 32 * (j % 4)
        for t in range(2):
            for m in range(4):
                A("ds_read_b128 %s, v%d offset:%d" % (vr(base + 16 * t + 4 * m, 4), vKA + m + (4 if (j & 2) else 0), (j & 1) * 32768 + t * 4096))
    def qk_block(j):
        base = vK + 32 * (j % 4)
        for m in range(4):
            for t in range(2):
                acc = vr(vS + 8 * j + 4 * t, 4)
                A("v_mfma_f32_16x16x32_bf16 %s, %s, %s, %s" % (acc, vr(base + 16 * t + 4 * m, 4), vr(vQ + 4 * m, 4), "0" if m == 0 else acc))
    def round_block(j):
        for p in range(4):
            a, b, t = vS + 8 * j + 2 * p, vS + 8 * j + 2 * p + 1, vT + (p & 1)
            if mimic:
                A("v_cvt_pk_bf16_f32 v%d, v%d, v%d" % (t, a, b)); unpack(a, b, t)
            A("v_mul_f32 v%d, s%d, v%d" % (a, sSCALE, a)); A("v_mul_f32 v%d, s%d, v%d" % (b, sSCALE, b))
            if mimic:
                A("v_cvt_pk_bf16_f32 v%d, v%d, v%d" % (t, a, b)); unpack(a, b, t)
            if j == 0 and p == 0: A("v_max_f32 v%d, v%d, v%d" % (vM, a, b))
            else: A("v_max3_f32 v%d, v%d, v%d, v%d" % (vM, a, b, vM))
    for j in range(4):
        wait_block(j); read_k(j); lds_add(30, F_FREED)
    stamp(3)
    lds_wait(F_QR, 1)
    stamp(4)
    A("v_lshlrev_b32 v%d, 8, v%d" % (vT, vC4)); A("v_lshl_add_u32 v%d, v%d, 4, v%d" % (vT, vG4, vT)); A("v_add_u32 v%d, v%d, v%d" % (vT, vHI, vT))
    for m in range(4): A("ds_read_b128 %s, v%d offset:%d" % (vr(vQ + 4 * m, 4), vT, L_QB + m * 64))
    A("s_waitcnt lgkmcnt(0)")
    for j in range(4):
        qk_block(j)
        wait_block(4 + j); A("s_nop 3"); read_k(4 + j)
        if j >= 1: round_block(j - 1)
        lds_add(30, F_FREED)
    for j in range(4, 8):
        qk_block(j); round_block(j - 1)
    A("v_lshl_add_u32 v%d, v%d, 2, v%d" % (vT + 2, vG4, vC4))
    A("v_and_b32 v%d, 7, v%d" % (vT + 3, vT + 2)); A("v_lshlrev_b32 v%d, 1, v%d" % (vT + 3, vT + 3))
    A("v_lshrrev_b32 v%d, 1, v%d" % (vT + 4, vR4)); A("v_xor_b32 v%d, v%d, v%d" % (vT + 3, vT + 3, vT + 4))
    A("v_lshlrev_b32 v%d, 8, v%d" % (vT + 2, vT + 2)); A("v_lshl_add_u32 v%d, v%d, 4, v%d" % (vT + 2, vT + 3, vT + 2))
    A("v_and_b32 v%d, 1, v0" % (vT + 4)); A("v_lshl_add_u32 v%d, v%d, 3, v%d" % (vT + 2, vT + 4, vT + 2))
    A("s_lshl_b32 s%d, s%d, 13" % (sT0, sWAVE)); A("v_add_u32 v%d, s%d, v%d" % (vVA, sT0, vT + 2))
    for d in range(1, 8): A("v_xor_b32 v%d, %d, v%d" % (vVA + d, 32 * d, vVA))
    round_block(7)
    swap_red(vM, vT, "v_max_f32", 32); swap_red(vM, vT, "v_max_f32", 16)
    A("v_mul_f32 v%d, s%d, v%d" % (vM, sL2E, vM))
    A("v_lshlrev_b32 v%d, 4, v%d" % (vT + 1, vG4)); A("ds_bpermute_b32 v%d, v%d, v%d" % (vMO, vT + 1, vM))
    vP = vK
    for j in range(32):
        a, b = vS + 2 * j, vS + 2 * j + 1
        A("v_fma_f32 v%d, v%d, s%d, -v%d" % (a, a, sL2E, vM)); A("v_fma_f32 v%d, v%d, s%d, -v%d" % (b, b, sL2E, vM))
        A("v_exp_f32 v%d, v%d" % (a, a)); A("v_exp_f32 v%d, v%d" % (b, b))
        if j >= 1:
            pa, pb = a - 2, b - 2
            if j == 1: A("v_add_f32 v%d, v%d, v%d" % (vLs, pa, pb))
            else: A("v_add_f32 v%d, v%d, v%d" % (vLs, vLs, pa)); A("v_add_f32 v%d, v%d, v%d" % (vLs, vLs, pb))
            A("v_cvt_pk_bf16_f32 v%d, v%d, v%d" % (vP + j - 1, pa, pb))
    A("v_add_f32 v%d, v%d, v%d" % (vLs, vLs, vS + 62)); A("v_add_f32 v%d, v%d, v%d" % (vLs, vLs, vS + 63))
    A("v_cvt_pk_bf16_f32 v%d, v%d, v%d" % (vP + 31, vS + 62, vS + 63))
    swap_red(vLs, vT, "v_add_f32", 32); swap_red(vLs, vT, "v_add_f32", 16)
    A("s_lshl_b32 s%d, s%d, 5" % (sT0, sWAVE)); A("s_add_u32 s%d, s%d, %d" % (sT0, sT0, HI)); A("v_lshlrev_b32 v%d, 3, v%d" % (vT, vC4)); A("v_add_u32 v%d, s%d, v%d" % (vT, sT0, vT))
    A("v_mov_b32 v%d, v%d" % (vT + 2, vM)); A("v_mov_b32 v%d, v%d" % (vT + 3, vLs))
    A("s_mov_b64 exec, 0x1111"); A("ds_write_b64 v%d, %s offset:%d" % (vT, vr(vT + 2, 2), L_ST)); A("s_mov_b64 exec, -1")
    lds_add(vHI, F_ST)
    stamp(5)
    A("s_lshl_b32 s%d, s%d, 11" % (sT0, sWAVE)); A("s_add_u32 s%d, s%d, %d" % (sT0, sT0, HI + L_OW))
    A("v_lshlrev_b32 v%d, 9, v%d" % (vOWA, vG4)); A("v_lshl_add_u32 v%d, v%d, 2, v%d" % (vOWA, vN16, vOWA)); A("v_add_u32 v%d, s%d, v%d" % (vOWA, sT0, vOWA))
    vVB = vK + 32
    def read_v(j):
        base = vVB + 32 * (j & 1)
        for d in range(8):
            for t in range(2):
                A("ds_read_b64_tr_b16 %s, v%d offset:%d" % (vr(base + 4 * d + 2 * t, 2), vVA + d, (j & 1) * 32768 + t * 4096))
    def pv(j, d):
        base = vVB + 32 * (j & 1)
        acc = vr(vS + 4 * d, 4)
        A("v_mfma_f32_16x16x32_bf16 %s, %s, %s, %s" % (acc, vr(vP + 4 * j, 4), vr(base + 4 * d, 4), "0" if j == 0 else acc))
    vS2, vF2 = vS + 32, 31
    def factor(dst, m):
        lds_wait(F_GR, 1)
        A("v_lshl_add_u32 v%d, v%d, 3, v%d" % (vT, vG4, vHI)); A("ds_read_b64 %s, v%d offset:%d" % (vr(vT + 2, 2), vT, L_GS)); A("s_waitcnt lgkmcnt(0)")
        A("v_sub_f32 v%d, v%d, v%d" % (dst, m, vT + 2)); A("v_exp_f32 v%d, v%d" % (dst, dst)); A("v_mul_f32 v%d, v%d, v%d" % (dst, dst, vT + 3))
    def wait_pos(j, out):
        ok = A.label("pok"); again = A.label("pagain"); chk = A.label("pchk")
        A("s_add_u32 s%d, s%d, %d" % (sT0, sWAVE, 32 + 4 * j + 1))
        A("s_mov_b32 s%d, 0" % sSPIN)
        A("s_branch " + chk)
        A(again + ":")
        A("ds_read_b64 %s, v%d offset:%d" % (vr(vT + 2, 2), vHI, F_FULL)); A("s_waitcnt lgkmcnt(0)")
        A("v_readfirstlane_b32 s%d, v%d" % (sFULL, vT + 2)); A("v_readfirstlane_b32 s%d, v%d" % (sPLAN, vT + 3))
        A(chk + ":")
        A("s_cmp_ge_u32 s%d, s%d" % (sFULL, sT0)); A("s_cbranch_scc1 " + ok)
        A("s_sub_u32 s%d, s%d, 0x100" % (sT1, sPLAN)); A("s_cmp_le_u32 s%d, %d" % (sT1, j)); A("s_cbranch_scc1 " + out)
        A("s_add_u32 s%d, s%d, 1" % (sSPIN, sSPIN)); A("s_cmp_lt_u32 s%d, %d" % (sSPIN, lspin)); A("s_cbranch_scc1 " + again)
        A("s_branch " + out)
        A(ok + ":")
    if steal:
        lds_wait(F_AM, 1)
        A("v_lshrrev_b32 v%d, 2, v0" % vT); A("v_lshlrev_b32 v%d, 4, v%d" % (vT, vT))
        A("s_lshl_b32 s%d, s%d, 12" % (sT0, sR)); A("s_lshl_b32 s%d, s%d, 10" % (sT1, sWAVE)); A("s_add_u32 s%d, s%d, s%d" % (sT0, sT0, sT1)); A("s_add_u32 s%d, s%d, 0x%x" % (sT0, sT0, WS_PR))
        A("s_mov_b32 exec_lo, 0x11111111"); A("s_mov_b32 exec_hi, 0x11111111")
        for u in range(3): A("buffer_store_dwordx4 %s, v%d, %s, s%d offen offset:%d sc1" % (vr(vP + 4 * (5 + u), 4), vT, srd("WS"), sT0, 256 * u))
        A("s_mov_b64 exec, 0x1111")
        A("buffer_store_dword v%d, v0, %s, s%d offen offset:768 sc1" % (vM, srd("WS"), sT0))
        A("s_mov_b64 exec, -1")
        A("s_mov_b32 s%d, 0" % sPLAN)
    for j in range(11 if steal else 8):
        if j == 7:
            factor(vF, vMO)
            stamp(6)
        if j < NOWN: wait_block(8 + j)
        else: wait_pos(j, "L_vout%d" % j)
        if j == 7: stamp(7)
        if j >= 8:
            if j == 8:
                A("v_lshrrev_b32 v%d, 2, v0" % (vT + 4)); A("v_lshlrev_b32 v%d, 4, v%d" % (vT + 4, vT + 4))
                A("s_lshl_b32 s%d, s%d, 10" % (sT1, sWAVE)); A("s_add_u32 s%d, s%d, %d" % (sT1, sT1, HI + L_PP)); A("v_add_u32 v%d, s%d, v%d" % (vT + 4, sT1, vT + 4))
                A("v_lshl_add_u32 v%d, v%d, 2, s%d" % (vT + 5, vG4, sT1))
                for u in range(3): A("ds_read_b128 %s, v%d offset:%d" % (vr(vP + 4 * u, 4), vT + 4, 256 * (2 - u)))
                A("ds_read_b32 v%d, v%d offset:768" % (vF2, vT + 5)); A("s_waitcnt lgkmcnt(0)")
                factor(vF2, vF2)
        read_v(j)
        if j % 4 == 1:
            for d in range(8): A("v_add_u32 v%d, 0x10000, v%d" % (vVA + d, vVA + d))
        if j % 4 == 3 and (steal or j < 7):
            for d in range(8): A("v_subrev_u32 v%d, 0x10000, v%d" % (vVA + d, vVA + d))
        for d in range(8):
            A("s_waitcnt lgkmcnt(%d)" % (14 - 2 * d))
            if d == 7 and j < (7 if steal else 4):
                A("s_mov_b64 exec, 1"); A("ds_add_u32 v30, v%d offset:%d" % (vONE, F_FREED)); A("s_mov_b64 exec, -1")
            if j < 8: pv(j, d)
            else:
                acc = vr(vS2 + 4 * d, 4)
                A("v_mfma_f32_16x16x32_bf16 %s, %s, %s, %s" % (acc, vr(vP + 4 * (j - 8), 4), vr(vVB + 32 * (j & 1) + 4 * d, 4), "0" if j == 8 else acc))
    if steal:
        A("L_vout9:"); A("L_vout10:")
        A("s_nop 7")
        for d in range(8): A("v_mul_f32 v%d, v%d, v%d" % (vTMP + d, vF, vS + 4 * d))
        for d in range(8): A("v_fmac_f32 v%d, v%d, v%d" % (vTMP + d, vF2, vS2 + 4 * d))
        A("s_branch L_vsum")
        A("L_vout5:"); A("L_vout6:")
        factor(vF, vMO)
        A("L_vout7:"); A("L_vout8:")
        A("s_nop 7")
    for d in range(8): A("v_mul_f32 v%d, v%d, v%d" % (vTMP + d, vF, vS + 4 * d))
    if steal: A("L_vsum:")
    for d in range(0, 8, 2): A("ds_write2_b32 v%d, v%d, v%d offset0:%d offset1:%d" % (vOWA, vTMP + d, vTMP + d + 1, 16 * d, 16 * d + 16))
    vWOA, vOIR, vWO = 17, 18, vK
    A("v_lshlrev_b32 v%d, 7, v%d" % (vWOA, vC4)); A("v_lshl_add_u32 v%d, v%d, 10, v%d" % (vWOA, vG4, vWOA)); A("v_lshl_add_u32 v%d, v%d, 3, v%d" % (vWOA, vR4, vWOA))
    A("s_lshl_b32 s%d, s%d, 5" % (sT0, sWAVE)); A("s_add_u32 s%d, s%d, %d" % (sT0, sT0, HI + L_WO)); A("v_add_u32 v%d, s%d, v%d" % (vWOA, sT0, vWOA))
    A("s_waitcnt lgkmcnt(0)")
    A("s_barrier")
    stamp(8)
    def wo_reads():
        if wolate: lds_wait(F_WO, 1, sl=0)
        for m in range(4):
            A("ds_read_b64_tr_b16 %s, v%d offset:%d" % (vr(vWO + 4 * m, 2), vWOA, m * 4096))
            A("ds_read_b64_tr_b16 %s, v%d offset:%d" % (vr(vWO + 4 * m + 2, 2), vWOA, m * 4096 + 512))
    def oir_addr():
        A("v_lshrrev_b32 v%d, 1, v%d" % (vT, vN16)); A("v_lshlrev_b32 v%d, 10, v%d" % (vT, vT)); A("v_and_b32 v%d, 1, v0" % (vT + 1)); A("v_lshl_add_u32 v%d, v%d, 8, v%d" % (vT, vT + 1, vT))
        for m in range(4):
            A("v_add_u32 v%d, %d, v%d" % (vT + 1, 4 * m, vG4)); A("v_xor_b32 v%d, v%d, v%d" % (vT + 1, vT + 1, vN16))
            A("v_lshl_add_u32 v%d, v%d, 4, v%d" % (vOIR + m, vT + 1, vT))
        A("v_lshrrev_b32 v%d, 1, v%d" % (22, vN16)); A("v_lshlrev_b32 v22, %d, v22" % (16 + spad)); A("v_lshl_add_u32 v22, v%d, 4, v22" % vG4)
    A("s_cmp_gt_u32 s%d, 1" % sWAVE); A("s_cbranch_scc1 L_gather23")
    A("s_lshl_b32 s%d, s%d, 10" % (sT0, sWAVE)); A("s_add_u32 s%d, s%d, %d" % (sT0, sT0, HI + L_OW)); A("v_add_u32 v%d, s%d, v%d" % (vT, sT0, vL16))
    for w in range(4): A("ds_read_b128 %s, v%d offset:%d" % (vr(vS + 4 * w, 4), vT, w * 2048))
    A("v_lshrrev_b32 v%d, 5, v0" % (vT + 1)); A("v_lshlrev_b32 v%d, 13, v%d" % (vT + 1, vT + 1)); A("v_and_b32 v%d, 31, v0" % (vT + 2)); A("v_lshl_add_u32 v%d, v%d, 3, v%d" % (vT + 1, vT + 2, vT + 1))
    A("s_lshl_b32 s%d, s%d, 14" % (sT0, sWAVE)); A("s_add_u32 s%d, s%d, s%d" % (sT0, sT0, sOPOFF))
    A("s_waitcnt lgkmcnt(2)")
    for i in range(4): A("v_add_f32 v%d, v%d, v%d" % (vS + i, vS + i, vS + 4 + i))
    A("s_waitcnt lgkmcnt(0)")
    for i in range(4): A("v_add_f32 v%d, v%d, v%d" % (vS + 8 + i, vS + 8 + i, vS + 12 + i))
    for i in range(4): A("v_add_f32 v%d, v%d, v%d" % (vS + i, vS + i, vS + 8 + i))
    A("v_cvt_pk_bf16_f32 v%d, v%d, v%d" % (vTMP, vS, vS + 1)); A("v_cvt_pk_bf16_f32 v%d, v%d, v%d" % (vTMP + 1, vS + 2, vS + 3))
    A("buffer_store_dwordx2 %s, v%d, %s, s%d offen %s" % (vr(vTMP, 2), vT + 1, srd("WS"), sT0, ts))
    stamp(11)
    wo_reads(); oir_addr()
    A("s_branch L_barE_c")
    def gather(idx_sgpr, extra):
        vGa = 40
        A("s_lshr_b32 s%d, s%d, 3" % (sT1, sR)); A("s_lshl_b32 s%d, s%d, 13" % (sT1, sT1)); A("s_lshl_b32 s%d, s%d, 11" % (sT0, idx_sgpr))
        A("s_add_u32 s%d, s%d, s%d" % (sT1, sT1, sT0)); A("s_add_u32 s%d, s%d, 0x%x" % (sT1, sT1, WS_OP))
        lds_ = [(lambda: A("buffer_load_dwordx4 %s, v%d, %s, s%d offen %s" % (vr(vGa, 4), vL16, srd("WS"), sT1, tl)), list(range(vGa, vGa + 4))),
                (lambda: A("buffer_load_dwordx4 %s, v%d, %s, s%d offen offset:1024 %s" % (vr(vGa + 4, 4), vL16, srd("WS"), sT1, tl)), list(range(vGa + 4, vGa + 8)))]
        if td1: A("s_sleep %d" % td1)
        if at1:
            A("v_lshlrev_b32 v%d, 3, v0" % (vT + 7))
            apoll(vGa, vT + 7, sT1, 0, 0, first="only")
            extra()
            A("v_lshrrev_b32 v%d, 5, v0" % (vT + 2)); A("s_lshl_b32 s%d, s%d, 2" % (sT2, idx_sgpr)); A("v_add_u32 v%d, s%d, v%d" % (vT + 3, sT2, vT + 2))
            A("v_bfe_u32 v%d, v0, 1, 4" % (vT + 4)); A("v_xor_b32 v%d, v%d, v%d" % (vT + 3, vT + 3, vT + 4))
            A("v_lshlrev_b32 v%d, 8, v%d" % (vT + 2, vT + 2)); A("v_add_u32 v%d, s%d, v%d" % (vT + 2, sT0, vT + 2))
            A("v_and_b32 v%d, 1, v0" % (vT + 4)); A("v_lshl_add_u32 v%d, v%d, 3, v%d" % (vT + 2, vT + 4, vT + 2))
            A("v_lshl_add_u32 v%d, v%d, 4, v%d" % (vT + 5, vT + 3, vT + 2)); A("v_xor_b32 v%d, 32, v%d" % (vT + 6, vT + 5))
            apoll(vGa, vT + 7, sT1, 24, tsleep, first=False)
            stamp(11)
            for k in range(4): A("ds_write_b64 v%d, %s offset:%d" % (vT + 5 + (k >> 1), vr(vGa + 2 * k, 2), 512 * k))
            return
        for i_, _ in lds_: i_()
        A("v_and_b32 v%d, 1, v%d" % (vT + 2, vG4)); A("s_lshl_b32 s%d, s%d, 2" % (sT2, idx_sgpr)); A("v_add_u32 v%d, s%d, v%d" % (vT + 2, sT2, vT + 2))
        A("v_xor_b32 v%d, v%d, v%d" % (vT + 3, vT + 2, vN16)); A("v_xor_b32 v%d, 2, v%d" % (vT + 4, vT + 3))
        A("v_lshlrev_b32 v%d, 8, v%d" % (vT + 2, vG4)); A("v_add_u32 v%d, s%d, v%d" % (vT + 2, sT0, vT + 2))
        A("v_lshl_add_u32 v%d, v%d, 4, v%d" % (vT + 5, vT + 3, vT + 2)); A("v_lshl_add_u32 v%d, v%d, 4, v%d" % (vT + 6, vT + 4, vT + 2))
        extra()
        gpoll(lds_, first=False, sleep=tsleep, P=P1)
        stamp(11)
        A("ds_write_b128 v%d, %s" % (vT + 5, vr(vGa, 4))); A("ds_write_b128 v%d, %s offset:1024" % (vT + 6, vr(vGa + 4, 4)))
    A("L_gather23:")
    A("s_sub_u32 s%d, s%d, 2" % (sMU, sWAVE))
    gather(sMU, lambda: (wo_reads(), oir_addr()))
    A("L_barE_c:")
    A("s_waitcnt lgkmcnt(0)")
    A("s_barrier")
    stamp(9)
    for u in range(2):
        for m in range(4): A("ds_read_b128 %s, v%d offset:%d" % (vr(vS + 16 * u + 4 * m, 4), vOIR + m, u * 512))
    A("s_lshl_b32 s%d, s%d, %d" % (sT0, sWAVE, 11 + spad)); A("s_add_u32 s%d, s%d, s%d" % (sT0, sT0, sSPOFF))
    for u in range(2):
        for m in range(4):
            A("s_waitcnt lgkmcnt(%d)" % (7 - 4 * u - m))
            acc = vr(vTMP + 4 * u, 4)
            A("v_mfma_f32_16x16x32_bf16 %s, %s, %s, %s" % (acc, vr(vWO + 4 * m, 4), vr(vS + 16 * u + 4 * m, 4), "0" if m == 0 else acc))
    for i in range(4): A("v_add_f32 v%d, v%d, v%d" % (vTMP + i, vTMP + i, vTMP + 4 + i))
    for i in range(4): dpp("v_add_f32", vTMP + i, "quad_perm:[1,0,3,2]")
    A("s_mov_b32 exec_lo, 0x55555555"); A("s_mov_b32 exec_hi, 0x55555555")
    stamp(10)
    A("buffer_store_dwordx4 %s, v22, %s, s%d offen %s" % (vr(vTMP, 4), srd("WS"), sT0, ts))
    A("s_mov_b64 exec, -1")
    A("s_branch L_done")

    if not fast: emit_loader()

    def slot_addrs():
        A("v_lshlrev_b32 v28, 5, v0")
        A("s_and_b32 s%d, s%d, 3" % (sT0, sR)); A("s_lshl_b32 s%d, s%d, 3" % (sT0, sT0)); A("s_add_u32 s%d, s%d, s%d" % (sMU, sT0, sSTOFF))
    A("L_comm:")
    vZ = 20
    for i in range(4): A("v_mov_b32 v%d, 0" % (vZ + i))
    A("v_lshl_add_u32 v%d, v0, 2, v%d" % (vT, vHI))
    A("s_mov_b64 exec, 0xffff"); A("ds_write_b32 v%d, v%d offset:%d" % (vT, vZ, L_FLG)); A("s_mov_b64 exec, -1")
    slot_addrs()
    sEP = 4
    def epoch():
        if sep: A("s_waitcnt lgkmcnt(0)")
        else:
            A("s_waitcnt vmcnt(0)")
            A("v_readfirstlane_b32 s%d, v30" % sEP); A("v_readfirstlane_b32 s%d, v31" % (sEP + 1))
        A("s_add_u32 s%d, s%d, 0x%x" % (sEP, sEP, EP_STEP & 0xffffffff)); A("s_addc_u32 s%d, s%d, 0x%x" % (sEP + 1, sEP + 1, EP_STEP >> 32))
    A("s_waitcnt lgkmcnt(0)")
    if sep: A("s_load_dwordx2 s[%d:%d], s[%d:%d], %d" % (sEP, sEP + 1, SRD["WS"], SRD["WS"] + 1, WS_EP))
    else: A("buffer_load_dwordx2 v[30:31], off, %s, 0 offset:%d sc1" % (srd("WS"), WS_EP))
    A("s_barrier")
    A("v_add_u32 v%d, v%d, v%d" % (vT, vHI, vL16))
    A("v_and_b32 v29, 7, v0"); A("v_lshlrev_b32 v29, 14, v29"); A("v_lshl_add_u32 v29, v%d, 4, v29" % vG4)
    A("s_lshl_b32 s%d, s%d, 6" % (sT2, sRQ)); A("s_add_u32 s%d, s%d, 0x%x" % (sT2, sT2, WS_Q))
    A("s_bfe_u32 s%d, s%d, 0x30002" % (sT0, sR)); A("s_lshl_b32 s%d, s%d, 14" % (sT0, sT0)); A("s_lshr_b32 s%d, s%d, 5" % (sT1, sR)); A("s_lshl_b32 s%d, s%d, 11" % (sT1, sT1))
    A("s_add_u32 s%d, s%d, s%d" % (sT0, sT0, sT1)); A("s_add_u32 s%d, s%d, 0x%x" % (sT0, sT0, WS_Q))
    A("v_lshl_add_u32 v27, v0, 3, v%d" % vHI)
    epoch()
    A("v_mov_b32 v38, s%d" % sEP); A("v_mov_b32 v39, s%d" % (sEP + 1))
    stamp(1)
    lds_wait(F_QP, 4)
    for w in range(4): A("ds_read_b128 %s, v%d offset:%d" % (vr(40 + 4 * w, 4), vT, L_QP + w * 1024))
    A("s_waitcnt lgkmcnt(0)")
    for i in range(4): A("v_add_f32 v%d, v%d, v%d" % (40 + i, 40 + i, 44 + i)); A("v_add_f32 v%d, v%d, v%d" % (48 + i, 48 + i, 52 + i))
    for i in range(4): A("v_add_f32 v%d, v%d, v%d" % (40 + i, 40 + i, 48 + i))
    A("v_cvt_pk_bf16_f32 v36, v40, v41"); A("v_cvt_pk_bf16_f32 v37, v42, v43")
    A("s_mov_b32 exec_lo, 0x00ff00ff"); A("s_mov_b32 exec_hi, 0x00ff00ff")
    if 'p' not in abl: A("buffer_store_dwordx4 v[36:39], v29, %s, s%d offen sc1" % (srd("WS"), sT2))
    A("s_mov_b64 exec, -1")
    stamp(2)
    if qdelay: A("s_sleep %d" % qdelay)
    if qtrig: lds_wait(F_FULL, qtrig, sl=4)
    if 'p' not in abl: gpoll([(lambda: A("buffer_load_dwordx4 v[32:35], v%d, %s, s%d offen sc1" % (vL16, srd("WS"), sT0)), [32, 33, 34, 35]),
           (lambda: A("buffer_load_dwordx4 v[40:43], v%d, %s, s%d offen offset:1024 sc1" % (vL16, srd("WS"), sT0)), [40, 41, 42, 43])], sleep=qsleep, tag="s[%d:%d]" % (sEP, sEP + 1))
    A("ds_write_b64 v27, v[32:33] offset:%d" % L_QB); A("ds_write_b64 v27, v[40:41] offset:%d" % (L_QB + 512))
    lds_add(vHI, F_QR)
    stamp(4)
    def all_marked():
        if sam:
            for k in range(8): A("s_load_dword s%d, s[%d:%d], %d" % (44 + k, SRD["DBG"], SRD["DBG"] + 1, 32 * k))
            A("s_waitcnt lgkmcnt(0)")
            for k in range(1, 8): A("s_min_u32 s44, s44, s%d" % (44 + k))
            A("s_cmp_ge_u32 s44, 32"); A("s_cbranch_scc1 L_marked")
        A("v_lshlrev_b32 v%d, 5, v0" % (vT + 3))
        word_poll("buffer_load_dword v32, v%d, %s, 0 offen sc1" % (vT + 3, srd("DBG")), 32, "0xff", "v_cmp_gt_u32 vcc, 32, v%d", fsleep)
        A("L_marked:")
        stamp(3)
    if 'a' not in abl: all_marked()
    lds_add(vHI, F_AM)
    A("v_lshlrev_b32 v%d, 3, v%d" % (vT + 1, vN16)); A("v_add_u32 v%d, v%d, v%d" % (vT + 2, vHI, vT + 1))
    lds_wait(F_ST, 4)
    A("ds_read_b64 v[32:33], v%d offset:%d" % (vT + 2, L_ST)); A("s_waitcnt lgkmcnt(0)")
    def combine(modes):
        A("v_mov_b32 v34, v32")
        for m in modes: dpp("v_max_f32", 34, m)
        A("v_sub_f32 v32, v32, v34"); A("v_exp_f32 v32, v32"); A("v_mul_f32 v35, v32, v33")
        for m in modes: dpp("v_add_f32", 35, m)
    combine(("row_ror:4", "row_ror:8"))
    A("s_mov_b64 exec, 0xf"); A("buffer_store_dwordx2 v[34:35], v28, %s, s%d offen sc1" % (srd("WS"), sMU)); A("s_mov_b64 exec, -1")
    stamp(5)
    if sdelay: A("s_sleep %d" % sdelay)
    if strig:
        lds_wait(F_FULL, strig, sl=8)
    gpoll([(lambda: A("buffer_load_dwordx2 v[32:33], v%d, %s, s%d offen sc1" % (vT + 1, srd("WS"), sSTOFF)), [32, 33])], sleep=ssleep)
    combine(("quad_perm:[1,0,3,2]", "quad_perm:[2,3,0,1]"))
    A("v_rcp_f32 v35, v35"); A("v_lshl_add_u32 v%d, v%d, 3, v%d" % (vT + 2, vC4, vHI))
    A("s_mov_b64 exec, 0x1111"); A("ds_write_b64 v%d, v[34:35] offset:%d" % (vT + 2, L_GS)); A("s_mov_b64 exec, -1")
    lds_add(vHI, F_GR)
    stamp(6)
    A("s_mov_b32 s%d, 2" % sMU)
    A("L_gather56:")
    A("s_waitcnt lgkmcnt(0)")
    A("s_barrier")
    stamp(8)
    gather(sMU, lambda: None)
    A("s_waitcnt lgkmcnt(0)")
    A("s_barrier")
    stamp(9)
    A("s_branch L_done")

    A("L_mlp:")
    vW, vU = 32, 64
    def pg_addr(line, word):
        A("s_lshr_b32 s%d, s2, 3" % line); A("s_lshl_b32 s%d, s%d, 8" % (line, line)); A("s_add_u32 s%d, s%d, 0x%x" % (line, line, WS_PG))
        A("s_and_b32 s%d, s2, 7" % word); A("s_lshl_b32 s%d, s%d, 2" % (word, word)); A("s_add_u32 s%d, s%d, s%d" % (word, word, line))
    def clean():
        A("s_cmp_lg_u32 s%d, 7" % sWAVE); A("s_cbranch_scc1 L_noclean")
        for i in range(4): A("v_mov_b32 v%d, -1" % (60 + i))
        slot_addrs()
        A("v_lshlrev_b32 v%d, 13, v%d" % (59, vG4)); A("v_lshl_add_u32 v%d, v%d, 4, v%d" % (59, vN16, 59))
        A("s_lshl_b32 s%d, s%d, %d" % (sT1, sR, 11 + spad)); A("s_add_u32 s%d, s%d, 0x%x" % (sT1, sT1, WS_SP))
        A("v_lshrrev_b32 v29, 2, v0"); A("v_lshlrev_b32 v29, %d, v29" % (6 + spad)); A("v_lshl_add_u32 v29, v%d, 4, v29" % vR4)
        A("s_waitcnt lgkmcnt(0)")
        if pad2:
            A("s_cmp_lg_u32 s2, 0"); A("s_cbranch_scc1 L_np2"); A("v_mov_b32 v58, s16"); A("s_mov_b32 s18, 0x310000"); A("s_mov_b64 exec, 1")
            A("buffer_store_dword v58, off, %s, s18 sc1" % srd("WS")); A("s_mov_b64 exec, -1"); A("s_waitcnt vmcnt(0)"); A("L_np2:")
        if not sep: A("buffer_load_dwordx2 v[30:31], off, %s, 0 offset:%d sc1" % (srd("WS"), WS_EP))
        A("s_mov_b64 exec, 0xf"); A("buffer_store_dwordx2 v[60:61], v28, %s, s%d offen sc1" % (srd("WS"), sMU)); A("s_mov_b64 exec, -1")
        if 'c' not in abl and 'r' not in abl: A("buffer_store_dwordx4 v[60:63], v%d, %s, s%d offen %s" % (59, srd("WS"), sOPOFF, cpol))
        if 'c' not in abl and 's' not in abl:
            A("buffer_store_dwordx4 v[60:63], v29, %s, s%d offen %s" % (srd("WS"), sT1, cpol))
            A("buffer_store_dwordx4 v[60:63], v29, %s, s%d offen offset:%d %s" % (srd("WS"), sT1, 1024 << spad, cpol))
        if bal:
            pg_addr(sT1, sT3)
            A("s_mov_b64 exec, 1"); A("buffer_store_dword v60, off, %s, s%d sc1" % (srd("WS"), sT3)); A("s_mov_b64 exec, -1")
        if steal:
            A("s_lshl_b32 s%d, s%d, 12" % (sT1, sR)); A("s_add_u32 s%d, s%d, 0x%x" % (sT1, sT1, WS_PR))
            for k in range(4): A("buffer_store_dwordx4 v[60:63], v%d, %s, s%d offen offset:%d sc1" % (vL16, srd("WS"), sT1, 1024 * k))
            A("s_lshl_b32 s%d, s%d, 7" % (sT1, sR)); A("s_add_u32 s%d, s%d, 0x%x" % (sT1, sT1, WS_CW))
            A("s_mov_b64 exec, 1"); A("buffer_store_dword v60, off, %s, s%d sc1" % (srd("WS"), sT1)); A("s_mov_b64 exec, -1")
        A("L_noclean:")
    def arrive(cnt, lbl):
        A("s_cmp_lg_u32 s%d, 7" % sWAVE); A("s_cbranch_scc1 " + lbl)
        A("s_lshr_b32 s%d, s%d, 5" % (sT3, sR)); A("s_lshl_b32 s%d, s%d, 5" % (sT3, sT3))
        A("s_mov_b64 exec, 1")
        A("s_waitcnt vmcnt(%d)" % cnt)
        if 'a' not in abl: A("buffer_atomic_add v%d, off, %s, s%d" % (vONE, srd("DBG"), sT3))
        A("s_mov_b64 exec, -1")
        stamp(4)
        A(lbl + ":")
    if not cllate: clean()
    A("s_sub_u32 s%d, s%d, 6" % (sMB, sWAVE))
    A("v_mul_u32_u24 v%d, 12, v0" % vT); A("s_mul_i32 s%d, s%d, 1792" % (sT1, sMB))
    A("s_waitcnt lgkmcnt(0)")
    A("s_load_dword s%d, s[%d:%d], 0" % (sB2, sB2P, sB2P + 1))
    if tlb:
        A("s_bfe_u32 s%d, s%d, 0x30002" % (sBASE, sR)); A("s_lshl_b32 s%d, s%d, 23" % (sBASE, sBASE)); A("s_lshr_b32 s%d, s%d, 5" % (sT0, sR)); A("s_lshl_b32 s%d, s%d, 20" % (sT0, sT0))
        A("s_add_u32 s%d, s%d, s%d" % (sBASE, sBASE, sT0)); A("s_and_b32 s%d, s%d, 3" % (sT0, sR)); A("s_lshl_b32 s%d, s%d, 18" % (sT0, sT0)); A("s_add_u32 s%d, s%d, s%d" % (sBASE, sBASE, sT0))
        A("s_cmp_lg_u32 s%d, 6" % sWAVE); A("s_cbranch_scc1 L_notlb")
        A("s_mov_b64 exec, 1")
        if tlb & 1: A("buffer_load_dword v200, off, %s, s%d" % (srd("V"), sBASE))
        if tlb & 2:
            A("s_lshr_b32 s%d, s%d, 3" % (sT0, sR)); A("s_lshl_b32 s%d, s%d, 17" % (sT0, sT0))
            A("buffer_load_dword v201, off, %s, s%d" % (srd("WO"), sT0))
        if tlb & 4:
            A("v_lshlrev_b32 v202, 16, v0"); A("s_mov_b64 exec, 0xf")
            A("buffer_load_dword v203, v202, %s, s%d offen" % (srd("V"), sBASE))
            A("buffer_load_dword v204, v202, %s, s%d offen" % (srd("K"), sBASE))
        A("s_mov_b64 exec, -1")
        A("L_notlb:")
    A("s_barrier")
    def mlp_weights(off):
        for k, n in enumerate(("W1", "B1", "W2")):
            if 'w' in abl: continue
            A("buffer_load_dwordx4 %s, v%d, %s, s%d offen" % (vr(vW + 8 * k, 4), vL16, srd(n), sT1))
            A("buffer_load_dwordx3 %s, v%d, %s, s%d offen offset:1024" % (vr(vW + 8 * k + 4, 3), off, srd(n), sT1))
    if not mlate: mlp_weights(vT)
    if not cllate: arrive(0 if (mlate or 'w' in abl) else 6, "L_noflag")
    A("s_lshr_b32 s%d, s%d, 5" % (sT0, sR)); A("s_mul_i32 s%d, s%d, %d" % (sT0, sT0, XN_STRIDE)); A("s_add_u32 s%d, s%d, %d" % (sT0, sT0, HI)); A("v_add_u32 v%d, s%d, v%d" % (vT + 1, sT0, vL16))
    A("s_lshl_b32 s%d, s%d, 13" % (sT2, sMB)); A("s_add_u32 s%d, s%d, %d" % (sT2, sT2, HI + L_WO)); A("v_add_u32 v%d, s%d, v%d" % (vT + 2, sT2, vL16))
    A("s_and_b32 s%d, s%d, 31" % (sT0, sR)); A("s_lshl_b32 s%d, s%d, 5" % (sT0, sT0)); A("s_add_u32 s%d, s%d, s%d" % (sT0, sT0, sT2))
    A("v_lshlrev_b32 v%d, 1, v%d" % (vT + 3, vN16)); A("v_add_u32 v%d, s%d, v%d" % (vT + 3, sT0, vT + 3))
    lds_wait(F_XN, 4)
    if cllate: clean()
    vXm = 112
    A("ds_read_b128 %s, v%d offset:%d" % (vr(vXm, 4), vT + 1, L_XN)); A("s_waitcnt lgkmcnt(0)")
    layernorm(vXm, 4, vXm + 4, vXm + 12, vXm + 20, 1)
    A("ds_write_b128 v%d, %s" % (vT + 2, vr(vXm, 4)))
    vH = 24
    A("ds_read_u16 v%d, v%d" % (vH, vT + 3))
    A("v_lshrrev_b32 v%d, 3, v0" % (vT + 4)); A("v_lshlrev_b32 v%d, 10, v%d" % (vT + 4, vT + 4)); A("v_and_b32 v%d, 7, v0" % (vT + 5)); A("v_lshl_add_u32 v%d, v%d, 4, v%d" % (vT + 4, vT + 5, vT + 4))
    A("s_lshr_b32 s%d, s%d, 3" % (sT0, sR)); A("s_lshl_b32 s%d, s%d, 17" % (sT0, sT0)); A("s_and_b32 s%d, s%d, 7" % (sT1, sR)); A("s_lshl_b32 s%d, s%d, 7" % (sT1, sT1))
    A("s_add_u32 s%d, s%d, s%d" % (sT0, sT0, sT1)); A("s_lshl_b32 s%d, s%d, 16" % (sT1, sMB)); A("s_add_u32 s%d, s%d, s%d" % (sT0, sT0, sT1))
    A("s_waitcnt vmcnt(0) lgkmcnt(0)")
    if cllate: arrive(0, "L_noflag")
    for a in range(8):
        A("s_add_u32 m0, s%d, %d" % (sT2, a * 1024))
        if 'o' not in abl and not wolate: A("buffer_load_dwordx4 v%d, %s, s%d offen %s lds" % (vT + 4, srd("WO"), sT0, polo))
        if a < 7: A("s_add_u32 s%d, s%d, 0x2000" % (sT0, sT0))
    if mlate:
        A("s_and_b32 s%d, s%d, 3" % (sT0, sR)); A("s_mul_i32 s%d, s%d, %d" % (sT0, sT0, mstag)); A("s_add_u32 s%d, s%d, %d" % (sT0, sT0, mlate))
        A("s_mul_i32 s%d, s%d, 1792" % (sT1, sMB))
        lds_wait(F_FULL, "s%d" % sT0, sl=8)
        mlp_weights(vT)
        A("s_waitcnt vmcnt(0)")
    stamp(1)
    A("v_lshlrev_b32 v%d, 16, v%d" % (vH, vH))
    for k in range(3):
        for i in range(7): unpack(vU + 14 * k + 2 * i, vU + 14 * k + 2 * i + 1, vW + 8 * k + i)
    vC0, vACC, U, T_ = 25, 26, 112, 128
    A("v_mov_b32 v%d, s%d" % (vC0, sC0))
    A("s_lshl_b32 s%d, s%d, 6" % (sT0, sMB)); A("s_add_u32 s%d, s%d, %d" % (sT0, sT0, HI + L_YP)); A("v_mov_b32 v27, s%d" % sT0)
    A("s_mov_b32 s%d, 0" % sT1)
    A("s_nop 3")
    A("L_mlp_loop:")
    A("v_readlane_b32 s%d, v%d, s%d" % (sMU, vH, sT1))
    for t in range(14): A("v_fma_f32 v%d, s%d, v%d, v%d" % (U + t, sMU, vU + t, vU + 14 + t))
    for t in range(14): A("v_mul_f32 v%d, v%d, v%d" % (T_ + t, U + t, U + t))
    for t in range(14): A("v_fma_f32 v%d, v%d, s%d, v%d" % (T_ + t, T_ + t, sC1, vC0))
    for t in range(14): A("v_mul_f32 v%d, v%d, v%d" % (T_ + t, T_ + t, U + t))
    for t in range(14):
        A("v_exp_f32 v%d, v%d" % (T_ + t, T_ + t)); A("v_mul_f32 v%d, v%d, v%d" % (U + t, U + t, vU + 28 + t))
    for t in range(14): A("v_add_f32 v%d, 1.0, v%d" % (T_ + t, T_ + t))
    for t in range(14): A("v_rcp_f32 v%d, v%d" % (T_ + t, T_ + t))
    A("v_mul_f32 v%d, v%d, v%d" % (vACC, U, T_)); A("v_mul_f32 v%d, v%d, v%d" % (U, U + 1, T_ + 1))
    for t in range(2, 14): A("v_fmac_f32 v%d, v%d, v%d" % (vACC if t & 1 else U, U + t, T_ + t))
    A("v_add_f32 v%d, v%d, v%d" % (vACC, vACC, U))
    red16(vACC, "v_add_f32"); dpp("v_add_f32", vACC, "row_bcast:15", "0xa"); dpp("v_add_f32", vACC, "row_bcast:31", "0xc")
    A("s_mov_b32 exec_lo, 0"); A("s_mov_b32 exec_hi, 0x80000000")
    A("ds_write_b32 v27, v%d" % vACC); A("v_add_u32 v27, 4, v27")
    A("s_mov_b64 exec, -1")
    A("s_add_u32 s%d, s%d, 1" % (sT1, sT1)); A("s_cmp_lt_u32 s%d, 16" % sT1); A("s_cbranch_scc1 L_mlp_loop")
    stamp(2)
    A("s_waitcnt vmcnt(0)")
    A("s_mov_b32 s%d, 3" % sMU)
    if steal:
        A("s_cmp_eq_u32 s%d, 7" % sWAVE); A("s_cbranch_scc1 L_final")
        lds_wait(F_AM, 1, sl=8)
        sCW = 4
        A("s_lshl_b32 s%d, s%d, 7" % (sCW, sR)); A("s_add_u32 s%d, s%d, 0x%x" % (sCW, sCW, WS_CW))
        def set_plan(val):
            A("v_mov_b32 v%d, %s" % (vT, val)); A("s_mov_b64 exec, 1"); A("ds_write_b32 v%d, v%d offset:%d" % (vHI, vT, F_PLAN)); A("s_mov_b64 exec, -1")
        for k in range(5, 11):
            if k == 8:
                A("s_xor_b32 s%d, s%d, 0x100" % (sCW, sCW))
            if k == 8:
                A("s_xor_b32 s%d, s%d, 2" % (sT1, sR)); A("s_lshl_b32 s%d, s%d, 12" % (sT1, sT1)); A("s_add_u32 s%d, s%d, 0x%x" % (sT1, sT1, WS_PR))
                A("v_add_u32 v%d, v%d, v%d" % (vT + 1, vHI, vL16))
                rec = [((lambda q=q: A("buffer_load_dwordx4 %s, v%d, %s, s%d offen offset:%d sc1" % (vr(36 + 4 * q, 4), vL16, srd("WS"), sT1, 1024 * q))), list(range(36 + 4 * q, 40 + 4 * q))) for q in range(4)]
                lds_wait(F_FULL, rtrig, sl=2)
                A("s_mov_b32 exec_hi, 0x1ffff")
                for i_, _ in rec: i_()
                A("s_mov_b64 exec, -1")
            lds_wait(F_FULL, 4 * k + cth + (bias if k >= 8 else 0), sl=2)
            A("v_mov_b32 v32, 1"); A("s_mov_b64 exec, 1")
            A("buffer_atomic_add v32, off, %s, s%d sc0" % (srd("WS"), sCW))
            A("s_mov_b64 exec, -1")
            A("s_mov_b32 s%d, 0x%x" % (sT2, 0x100 + k))
            A("s_waitcnt vmcnt(0)")
            A("v_readfirstlane_b32 s%d, v32" % sT0); A("s_add_u32 s%d, s%d, 1" % (sT0, sT0))
            if stamps and k < 9: stamp(k - 2)
            A("s_cmp_ge_u32 s%d, 3" % sT0); A("s_cbranch_scc1 L_close")
            if k == 8:
                A("s_mov_b32 exec_hi, 0x1ffff")
                gpoll(rec[:2], first=False, sleep=8, full="PARTIAL"); gpoll(rec[2:], first=False, sleep=8, full="PARTIAL")
                for q in range(4): A("ds_write_b128 v%d, %s offset:%d" % (vT + 1, vr(36 + 4 * q, 4), L_PP + 1024 * q))
                A("s_mov_b64 exec, -1")
                A("s_waitcnt lgkmcnt(0)")
            set_plan("%d" % (k + 1))
        A("s_mov_b32 s%d, 0x%x" % (sT2, 0x100 + 11))
        A("L_close:")
        set_plan("s%d" % sT2)
        A("s_branch L_gather56")
        A("L_final:")
    elif bal >= 2:
        A("s_cmp_eq_u32 s%d, 7" % sWAVE); A("s_cbranch_scc1 L_final")
        lds_wait(F_AM, 1, sl=8)
        pg_addr(4, 5)
        if bal == 3: A("s_lshl_b32 s4, s2, 8"); A("s_add_u32 s4, s4, 0x%x" % (WS_PG + 0x4000))
        for k in range(bmin):
            lds_wait(F_FULL, bthr + bper * k, sl=4)
            A("v_mov_b32 v%d, 1" % (32 + k)); A("s_mov_b64 exec, 1")
            if bal == 4: A("buffer_load_dword v%d, off, %s, s4 sc1" % (32 + k, srd("WS")))
            elif bal == 5: A("buffer_store_dword v%d, off, %s, s5 sc1" % (32 + k, srd("WS")))
            else: A("buffer_atomic_add v%d, off, %s, s4 sc0" % (32 + k, srd("WS")))
            A("s_mov_b64 exec, -1")
        A("s_waitcnt vmcnt(0)")
        A("s_branch L_gather56")
        A("L_final:")
    elif bal:
        A("s_cmp_eq_u32 s%d, 7" % sWAVE); A("s_cbranch_scc1 L_final")
        lds_wait(F_AM, 1, sl=8)
        pg_addr(4, 5)
        A("s_and_b32 s12, s2, 7"); A("v_lshlrev_b32 v33, 2, v0"); A("s_mov_b32 s13, 0")
        A("L_bal:")
        A("s_mov_b64 exec, 0xff"); A("buffer_load_dword v32, v33, %s, s4 offen sc1" % srd("WS"))
        A("s_mov_b64 exec, 1")
        A("ds_read_b32 v34, v%d offset:%d" % (vHI, F_FULL)); A("s_waitcnt lgkmcnt(0)")
        A("buffer_store_dword v34, off, %s, s5 sc1" % srd("WS"))
        A("s_mov_b64 exec, -1")
        A("v_readfirstlane_b32 s%d, v34" % sT0)
        A("s_cmp_ge_u32 s%d, %d" % (sT0, bstop)); A("s_cbranch_scc1 L_balend")
        A("s_waitcnt vmcnt(1)")
        A("v_readlane_b32 s%d, v32, s12" % sT1)
        A("s_mov_b64 exec, 0xff")
        A("v_cmp_eq_u32 vcc, -1, v32")
        if bmin:
            for m in QUADS[:3]: dpp("v_min_u32", 32, m)
        else:
            for m in QUADS[:3]: dpp("v_add_u32", 32, m)
        A("s_mov_b64 exec, -1")
        A("v_readfirstlane_b32 s%d, v32" % sT2)
        A("s_cmp_lg_u64 vcc, 0"); A("s_cbranch_scc1 L_balskip")
        if not bmin: A("s_lshl_b32 s%d, s%d, 3" % (sT1, sT1))
        A("s_sub_i32 s%d, s%d, s%d" % (sT1, sT1, sT2)); A("s_cmp_gt_i32 s%d, %d" % (sT1, bthr)); A("s_cselect_b32 s%d, 1, 0" % sT1)
        A("v_mov_b32 v35, s%d" % sT1); A("s_mov_b64 exec, 1"); A("ds_write_b32 v%d, v35 offset:%d" % (vHI, F_MODE)); A("s_mov_b64 exec, -1")
        A("L_balskip:")
        if bper: A("s_sleep %d" % bper)
        A("s_add_u32 s13, s13, 1"); A("s_cmp_lt_u32 s13, 4096"); A("s_cbranch_scc1 L_bal")
        A("L_balend:")
        A("v_mov_b32 v35, 0"); A("s_mov_b64 exec, 1"); A("ds_write_b32 v%d, v35 offset:%d" % (vHI, F_MODE)); A("s_mov_b64 exec, -1")
        A("s_waitcnt vmcnt(0)")
        A("s_branch L_gather56")
        A("L_final:")
    else:
        A("s_cmp_eq_u32 s%d, 6" % sWAVE); A("s_cbranch_scc1 L_gather56")
    if at2:
        A("v_and_b32 v%d, 7, v0" % (vT + 1)); A("v_lshrrev_b32 v%d, 5, v0" % (vT + 2)); A("v_lshl_add_u32 v%d, v%d, 1, v%d" % (vT + 1, vT + 1, vT + 2))
    else: A("v_lshl_add_u32 v%d, v%d, 2, v%d" % (vT + 1, vR4, vG4))
    A("v_lshlrev_b32 v%d, 1, v%d" % (vT + 2, vT + 1)); A("s_lshl_b32 s%d, s%d, 5" % (sT0, sR))
    A("buffer_load_ushort v%d, v%d, %s, s%d offen" % (vT + 3, vT + 2, srd("X"), sT0))
    A("v_lshl_add_u32 v%d, v%d, 2, v%d" % (vT + 1, vT + 1, vHI))
    A("s_lshl_b32 s%d, s%d, %d" % (sT1, sR, 11 + spad)); A("s_add_u32 s%d, s%d, 0x%x" % (sT1, sT1, WS_SP))
    A("v_lshrrev_b32 v29, 2, v0"); A("v_lshlrev_b32 v29, %d, v29" % (6 + spad)); A("v_lshl_add_u32 v29, v%d, 4, v29" % vR4)
    if wolate == 2:
        A("s_mov_b32 s12, s%d" % sT0); A("s_mov_b32 s13, s%d" % sT1)
        if steal: lds_wait(F_LI, 1, sl=2)
        else: lds_wait(F_FULL, wotrig, sl=2)
        wo_dma()
        A("s_mov_b32 s%d, s12" % sT0); A("s_mov_b32 s%d, s13" % sT1)
    if sep:
        assert epe
        A("s_load_dwordx2 s[4:5], s[%d:%d], %d" % (SRD["WS"], SRD["WS"] + 1, WS_EP))
    A("s_waitcnt lgkmcnt(0)")
    A("s_barrier")
    stamp(8)
    A("ds_read_b32 v40, v%d offset:%d" % (vT + 1, L_YP)); A("ds_read_b32 v41, v%d offset:%d" % (vT + 1, L_YP + 64)); A("s_waitcnt lgkmcnt(0)")
    A("v_add_f32 v40, v40, v41"); rbf(40)
    A("s_lshl_b32 s%d, s%d, 16" % (sB2, sB2)); A("v_add_f32 v40, s%d, v40" % sB2); rbf(40)
    A("v_mul_f32 v41, s%d, v40" % sL2E); A("v_exp_f32 v41, -v41"); A("v_add_f32 v41, 1.0, v41"); A("v_rcp_f32 v41, v41"); A("v_mul_f32 v40, v40, v41"); rbf(40)
    A("s_waitcnt vmcnt(0)"); A("v_lshlrev_b32 v%d, 16, v%d" % (vT + 3, vT + 3))
    if wolate == 2:
        A("s_mov_b64 exec, 1"); A("ds_write_b32 v%d, v%d offset:%d" % (vHI, vONE, F_WO)); A("s_mov_b64 exec, -1")
        stamp(11)
    A("s_barrier")
    stamp(9)
    if epe:
        if not sep: A("v_readfirstlane_b32 s4, v30"); A("v_readfirstlane_b32 s5, v31")
        A("s_add_u32 s4, s4, 0x%x" % (EP_STEP & 0xffffffff)); A("s_addc_u32 s5, s5, 0x%x" % (EP_STEP >> 32))
        A("s_cmp_eq_u32 s%d, 0" % sR); A("s_cselect_b32 s96, 1, 0"); A("s_mov_b32 s97, 0")
        A("v_mov_b32 v30, s4"); A("v_mov_b32 v31, s5")
    def ep_store():
        if epe:
            A("s_mov_b64 exec, s[96:97]"); A("buffer_store_dwordx2 v[30:31], off, %s, 0 offset:%d sc1" % (srd("WS"), WS_EP)); A("s_mov_b64 exec, -1")
    if td2: A("s_sleep %d" % td2)
    if at2:
        A("v_lshlrev_b32 v29, 3, v0")
        apoll(32, 29, sT1, 44, tsleep2)
        stamp(10)
        ep_store()
        A("v_add_f32 v44, v32, v34"); A("v_add_f32 v45, v33, v35"); A("v_add_f32 v46, v36, v38"); A("v_add_f32 v47, v37, v39")
        A("v_add_f32 v44, v44, v46"); A("v_add_f32 v45, v45, v47")
        A("v_permlane32_swap_b32 v44, v45"); A("v_add_f32 v44, v44, v45")
        swap_red(44, 45, "v_add_f32", 16)
        dpp("v_add_f32", 44, "row_ror:8")
    else:
        gpoll([(lambda: A("buffer_load_dwordx4 v[32:35], v29, %s, s%d offen %s" % (srd("WS"), sT1, tl)), [32, 33, 34, 35]),
               (lambda: A("buffer_load_dwordx4 v[36:39], v29, %s, s%d offen offset:%d %s" % (srd("WS"), sT1, 1024 << spad, tl)), [36, 37, 38, 39])], sleep=tsleep2, P=P2)
        stamp(10)
        for i in range(4): A("v_add_f32 v%d, v%d, v%d" % (44 + i, 32 + i, 36 + i))
        A("v_permlane32_swap_b32 v44, v46"); A("v_permlane32_swap_b32 v45, v47")
        A("v_add_f32 v44, v44, v46"); A("v_add_f32 v45, v45, v47")
        A("v_permlane16_swap_b32 v44, v45"); A("v_add_f32 v44, v44, v45")
        dpp("v_add_f32", 44, "row_ror:8"); dpp("v_add_f32", 44, "row_ror:4")
    rbf(44); A("v_mul_f32 v44, v44, v40"); rbf(44)
    A("v_add_f32 v44, v44, v%d" % (vT + 3)); A("v_cvt_pk_bf16_f32 v44, v44, v44")
    em = "0xff" if at2 else "0x000f000f"
    A("s_mov_b32 exec_lo, %s" % em); A("s_mov_b32 exec_hi, %s" % em)
    A("buffer_store_short v44, v%d, %s, s%d offen %s" % (vT + 2, srd("OUT"), sT0, outp))
    A("s_mov_b64 exec, -1")
    if not epe or pmap or pgrp or probe or pspan or p_b >= 0:
        A("s_cmp_lg_u32 s%d, 0" % sR); A("s_cbranch_scc1 L_done")
    if not epe:
        epoch()
        A("v_mov_b32 v30, s%d" % sEP); A("v_mov_b32 v31, s%d" % (sEP + 1)); A("s_mov_b64 exec, 1")
        A("buffer_store_dwordx2 v[30:31], off, %s, 0 offset:%d sc1" % (srd("WS"), WS_EP))
        A("s_mov_b64 exec, -1")
    if pmap >= 10:
        A("s_sleep 32"); A("s_mov_b32 s6, 0x300000")
        A("buffer_load_dwordx4 v[32:35], v%d, %s, s6 offen sc1" % (vL16, srd("WS"))); A("s_waitcnt vmcnt(0)")
        if not piv:
            for i in range(4): A("v_subrev_u32 v%d, s16, v%d" % (32 + i, 32 + i))
        def over_kvh(v, op):
            dpp(op, v, "row_ror:8"); swap_red(v, 40, op, 16); swap_red(v, 40, op, 32)
        def over_b(v, op):
            for m in QUADS[:3]: dpp(op, v, m)
        A("v_max_u32 v36, v32, v33"); A("v_max3_u32 v36, v36, v34, v35"); over_kvh(36, "v_max_u32")
        A("v_add_u32 v37, v32, v33"); A("v_add3_u32 v37, v37, v34, v35"); over_kvh(37, "v_add_u32"); A("v_lshrrev_b32 v37, 5, v37")
        if pmap == 10: over_b(36, "v_max_u32"); A("v_lshlrev_b32 v36, 2, v36")
        elif pmap == 11: over_b(37, "v_max_u32"); A("v_lshlrev_b32 v36, 2, v37")
        elif pmap == 12: over_b(37, "v_add_u32"); A("v_lshrrev_b32 v36, 1, v37")
        elif pmap == 13: over_b(37, "v_min_u32"); A("v_lshlrev_b32 v36, 2, v37")
        elif pmap == 14: A("v_sub_u32 v36, v36, v37"); over_b(36, "v_max_u32"); A("v_lshlrev_b32 v36, 3, v36")
        elif pmap == 15:
            A("v_mov_b32 v38, v37"); over_b(38, "v_max_u32"); A("v_cmp_eq_u32 vcc, v38, v37"); A("v_cndmask_b32 v37, v37, 0, vcc"); over_b(37, "v_max_u32"); A("v_lshlrev_b32 v36, 2, v37")
        elif pmap == 16:
            A("v_lshlrev_b32 v36, 3, v36"); A("v_and_b32 v38, 7, v0"); A("v_or_b32 v36, v36, v38"); over_b(36, "v_max_u32"); A("v_and_b32 v36, 7, v36"); A("v_mul_u32_u24 v36, 300, v36")
        elif pmap == 17:
            A("v_min_u32 v36, v32, v33"); A("v_min3_u32 v36, v36, v34, v35"); over_kvh(36, "v_min_u32"); over_b(36, "v_min_u32"); A("v_lshlrev_b32 v36, 2, v36")
        A("s_mov_b32 s7, s16")
        A("s_memrealtime s[16:17]"); A("v_readfirstlane_b32 s6, v36"); A("s_waitcnt lgkmcnt(0)")
        if pmap == 18: A("s_sub_u32 s6, s16, s7"); A("s_lshl_b32 s6, s6, 2")
        if pmap == 19: A("s_mov_b32 s6, 0")
        A("s_min_u32 s6, s6, 20000")
        A("s_add_u32 s16, s16, s6")
        A("L_pad4:"); A("s_memrealtime s[18:19]"); A("s_waitcnt lgkmcnt(0)"); A("s_sub_u32 s18, s18, s16"); A("s_cmp_lt_i32 s18, 0"); A("s_cbranch_scc1 L_pad4")
    elif pmap:
        A("s_sleep 32"); A("s_mov_b32 s6, 0x300000")
        A("buffer_load_dwordx4 v[32:35], v%d, %s, s6 offen sc1" % (vL16, srd("WS"))); A("s_waitcnt vmcnt(0)")
        if pmap == 1: A("v_max_u32 v32, v32, v33"); A("v_max3_u32 v32, v32, v34, v35")
        elif pmap == 2: A("v_min_u32 v32, v32, v33"); A("v_min3_u32 v32, v32, v34, v35")
        if not piv: A("s_add_u32 s16, s16, 1500"); A("v_subrev_u32 v32, s16, v32")
        A("v_lshrrev_b32 v32, 3, v32"); A("v_min_u32 v32, 255, v32")
        A("buffer_store_byte v32, v0, %s, 0 offen sc1" % srd("DBG"))
    if pgrp:
        A("v_lshlrev_b32 v29, 5, v0"); A("s_mov_b64 exec, 0xff")
        A("buffer_load_dword v30, v29, %s, 0 offen offset:4 sc1" % srd("DBG")); A("s_memrealtime s[16:17]"); A("s_waitcnt vmcnt(0) lgkmcnt(0)")
        if pat >= 12:
            A("v_readfirstlane_b32 s6, v30"); A("v_subrev_u32 v30, s6, v30"); A("v_add_u32 v30, 0x100000, v30")
            if pat == 13: A("v_lshlrev_b32 v30, 3, v30"); A("v_or_b32 v30, v30, v0")
        A("v_mov_b32 v31, v30")
        for m in QUADS[:3]: dpp("v_max_u32", 30, m)
        if pat in (11, 12, 13, 14):
            for m in QUADS[:3]: dpp("v_min_u32", 31, m)
        else:
            A("v_subrev_u32 v31, v31, v30")
            for m in QUADS[:3]: dpp("v_add_u32", 31, m)
        A("s_mov_b64 exec, -1")
        A("v_readfirstlane_b32 s6, v30"); A("v_readfirstlane_b32 s7, v31")
        if pat == 11: A("s_sub_u32 s6, s6, s7"); A("s_lshl_b32 s6, s6, 3")
        elif pat == 12: A("s_sub_u32 s6, s6, s7"); A("s_lshr_b32 s6, s6, 2")
        elif pat == 13: A("s_and_b32 s6, s6, 7"); A("s_mul_i32 s6, s6, 300")
        else: A("s_mov_b32 s6, s7")
        A("s_min_u32 s6, s6, 20000")
        A("s_add_u32 s16, s16, s6")
        A("L_pad3:"); A("s_memrealtime s[18:19]"); A("s_waitcnt lgkmcnt(0)"); A("s_sub_u32 s18, s18, s16"); A("s_cmp_lt_i32 s18, 0"); A("s_cbranch_scc1 L_pad3")
    if probe or (p_b >= 0 and not piv) or pspan:
        A("buffer_load_dwordx2 v[30:31], off, %s, 0 offset:4 sc1" % srd("DBG")); A("s_memrealtime s[16:17]"); A("s_waitcnt vmcnt(0) lgkmcnt(0)")
        A("v_readfirstlane_b32 s6, v30"); A("v_readfirstlane_b32 s7, v31")
        if probe: A("s_sub_i32 s6, s6, s7"); A("s_abs_i32 s6, s6"); A("s_lshr_b32 s6, s6, 4")
        elif pspan == 1: A("s_not_b32 s7, s7"); A("s_sub_u32 s6, s6, s7"); A("s_lshl_b32 s6, s6, 2")
        elif pspan == 2: A("s_sub_u32 s6, s16, s6"); A("s_lshl_b32 s6, s6, 3")
        elif pspan == 6: A("s_not_b32 s7, s7"); A("s_sub_u32 s6, s16, s7"); A("s_lshl_b32 s6, s6, 2")
        elif pspan == 3: A("s_not_b32 s7, s7"); A("s_sub_u32 s6, s6, s7"); A("s_lshl_b32 s6, s6, 3")
        elif pspan in (4, 5): A("s_not_b32 s7, s7"); A("s_lshl_b32 s7, s7, 8"); A("s_sub_u32 s6, s6, s7"); A("s_lshr_b32 s6, s6, %d" % (5 if pspan == 4 else 6))
        else: A("s_lshr_b32 s6, s6, 5")
        A("s_min_u32 s6, s6, 20000")
        A("s_add_u32 s16, s16, s6")
        A("L_pad2:"); A("s_memrealtime s[18:19]"); A("s_waitcnt lgkmcnt(0)"); A("s_sub_u32 s18, s18, s16"); A("s_cmp_lt_i32 s18, 0"); A("s_cbranch_scc1 L_pad2")
    A("L_done:")
    if not nowait: A("s_waitcnt vmcnt(0)")
    if pad2:
        A("s_lshr_b32 s6, %d, s%d" % (pw, sWAVE)); A("s_and_b32 s6, s6, 1"); A("s_cbranch_scc0 L_end")
        A("s_and_b32 s6, s2, %d" % (255 & ~pwg)); A("s_cmp_lg_u32 s6, %d" % pwv); A("s_cbranch_scc1 L_end")
        A("s_mov_b32 s18, 0x310000"); A("buffer_load_dword v58, off, %s, s18 sc1" % srd("WS")); A("s_waitcnt vmcnt(0)"); A("v_readfirstlane_b32 s16, v58")
        A("s_add_u32 s16, s16, %d" % pad2); A("s_mov_b32 s7, 0")
        A("L_pad5:"); A("s_memrealtime s[18:19]"); A("s_add_u32 s7, s7, 1"); A("s_cmp_gt_u32 s7, 0x4000"); A("s_cbranch_scc1 L_end"); A("s_waitcnt lgkmcnt(0)"); A("s_sub_u32 s18, s18, s16"); A("s_cmp_lt_i32 s18, 0"); A("s_cbranch_scc1 L_pad5")
    if pad:
        A("s_waitcnt lgkmcnt(0)"); A("s_add_u32 s16, s16, %d" % pad)
        A("L_pad:"); A("s_memrealtime s[18:19]"); A("s_waitcnt lgkmcnt(0)"); A("s_sub_u32 s18, s18, s16"); A("s_cmp_lt_i32 s18, 0"); A("s_cbranch_scc1 L_pad")
    if stamps:
        A("s_waitcnt vmcnt(0)")
        stamp(NST - 1)
        A("s_waitcnt lgkmcnt(0)")
        A("s_lshl_b32 s%d, s2, 3" % sT0); A("s_add_u32 s%d, s%d, s%d" % (sT0, sT0, sWAVE)); A("s_mul_i32 s%d, s%d, %d" % (sT0, sT0, NST * 8)); A("s_add_u32 s%d, s%d, 0x%x" % (sT0, sT0, WS_STAMP))
        A("s_mov_b64 exec, 1")
        for k in range(NST):
            A("v_mov_b32 v2, s%d" % (16 + 2 * k)); A("v_mov_b32 v3, s%d" % (17 + 2 * k))
            A("buffer_store_dwordx2 v[2:3], off, %s, s%d offset:%d" % (srd("WS"), sT0, k * 8)); A("s_nop 1")
    A("L_end:")
    A("s_endpgm")
    body = A.finalize()
    hdr = open("recurrent_scan__gqa_block_cached__mixer_token_mlp__decode.s.ref").read().split("; Override launch")[0]
    s = hdr + "; @launch grid=(256,1,1) block=(512,1,1) lds=%d\n" % LDS_BYTES
    s += '.amdgcn_target "amdgcn-amd-amdhsa--gfx950"\n.text\n.globl %s\n.p2align 8\n.type %s,@function\n%s:\n' % (NAME, NAME, NAME)
    s += body
    s += '.section .rodata,"a"\n.p2align 6\n.amdhsa_kernel %s\n  .amdhsa_next_free_vgpr 256\n  .amdhsa_next_free_sgpr 102\n  .amdhsa_accum_offset 256\n' % NAME
    s += "  .amdhsa_group_segment_fixed_size 0\n  .amdhsa_kernarg_size 104\n  .amdhsa_user_sgpr_count 2\n  .amdhsa_user_sgpr_kernarg_segment_ptr 1\n  .amdhsa_system_sgpr_workgroup_id_x 1\n.end_amdhsa_kernel\n"
    return s, A

if __name__ == "__main__":
    out = sys.argv[1]
    kw = {}
    for p in sys.argv[2:]:
        k, v = p.split("=")
        kw[k] = int(v) if v.lstrip("-").isdigit() else v.replace("+", " ")
    s, A = gen(**kw)
    open(out, "w").write(s)
    print("wrote", out, "instructions", len(A.ins), "nops", A.nops, "lds", LDS_BYTES)
```

```python
import sys, struct
from asmlib import Asm

NAME = "recurrent_scan__gqa_block_cached__mixer_token_mlp__decode_kernel"
def f2u(x): return struct.unpack("<I", struct.pack("<f", x))[0]

WS_ST, WS_OP, WS_SP, WS_Q, WS_EP = 0x10000, 0x20000, 0x100000, 0x60000, 0x0
WS_PG = 0x90000
WS_CW, WS_PR = 0x80000, 0x200000
EP_STEP = 0x9E3779B97F4A7C15
WS_STAMP = 128 << 20
HI = 131072
L_WO = 0
L_XN, XN_STRIDE = 16384, 1040
L_OW = L_XN
L_QP = 24704
L_QB = 28800
L_FLG = 29824
L_ST = L_FLG + 64
L_GS = L_ST + 128
L_YP = L_GS + 32
LDS_BYTES = HI + L_YP + 128
F_FULL, F_FREED, F_XN, F_QP, F_QR, F_ST, F_GR, F_WO, F_AM, F_PLAN, F_LI, F_MODE = [L_FLG + 4 * i for i in (0, 4, 8, 9, 10, 11, 12, 13, 14, 1, 15, 2)]
L_PP = L_QP

sWAVE, sBASE, sOFF = 3, 4, 5
sT0, sT1, sT2 = 6, 7, 8
sR, sSPIN, sT3 = 9, 10, 11
sMU, sMB = 14, 15
SRD = dict(K=44, V=48, X=52, WQ=56, WO=60, W1=64, B1=68, W2=72, OUT=76, DBG=80, WS=84)
KARG = dict(X=0, K=8, V=16, WQ=24, WO=32, W1=48, B1=56, W2=64, OUT=80, DBG=88, WS=96)
SIZE = dict(X=8192, K=1 << 26, V=1 << 26, WQ=1 << 22, WO=1 << 22, W1=3584, B1=3584, W2=3584, OUT=8192, DBG=256, WS=1 << 28)
sSELLO, sSELHI, sMASK, sSCALE, sL2E, sC0, sC1, sB2, sB2P = 88, 89, 90, 91, 92, 93, 94, 95, 96
sOPOFF, sSPOFF, sSTOFF, sFULL = 98, 99, 100, 101
def srd(n): return "s[%d:%d]" % (SRD[n], SRD[n] + 3)
def vr(a, n=1): return "v%d" % a if n == 1 else "v[%d:%d]" % (a, a + n - 1)
vL16, vG4, vC4, vR4, vN16, vHI, vONE = 1, 2, 3, 4, 5, 6, 7
vT = 8
vPOLL = 16

def gen(F=4, stamps=0, pol="nt", spin=1 << 17, lspin=1 << 22, mimic=1, pre=0, lsleep=1, ldprio=3, fsleep=8, qsleep=2, ssleep=8, tsleep=0, xmap=1, polq=None, polo=None, ldst=0, abl='', rot=0, pad=0, P1=1, P2=1, pd=5, qmap=0, tl='sc1', ts='sc1', tsleep2=None, Fhi=0, himask=0xf8, hiend=16, spad=0, at2=1, td2=8, td1=0, at1=0, qdelay=0, sdelay=0, qtrig=8, strig=48, bshift=0, wolate=2, wqsplit=0, wotrig=60, D=0, DV=0, probe=0, steal=0, cth=23, cllate=0, bias=0, rtrig=48, p_a=-1, p_b=-1, pspan=0, pstart=0, bal=0, Flo=2, bthr=0, bper=8, bstop=58, bmin=0, pm=0, pval=0, pgrp=0, pat=11, tlb=0, piv=0, pmap=0, pst=0, pad2=0, pw=255, pwg=255, pwv=0, fast=0, nfirst=4, epe=0, nowait=0, cbar=0, outp='', mlate=0, mstag=4, cpol='sc1', Wlo=0, Whi=28, gran=4, nlo=8, nhi=56, qshift=0, qrot=0, nlo2=0, xs=2, sep=0, sam=0):
    NOWN = 5 if steal else 8
    sPLAN = 13
    DV = DV if DV else D
    tsleep2 = tsleep if tsleep2 is None else tsleep2
    polq = pol if polq is None else polq.replace('def', '')
    polo = pol if polo is None else polo.replace('def', '')
    A = Asm()
    NST = 14
    def stamp(k):
        if stamps: A("s_memrealtime s[%d:%d]" % (16 + 2 * k, 17 + 2 * k))
    QUADS = ("quad_perm:[1,0,3,2]", "quad_perm:[2,3,0,1]", "row_half_mirror", "row_mirror")
    def dpp(op, v, m, rm="0xf"): A("%s_dpp v%d, v%d, v%d %s row_mask:%s bank_mask:0xf" % (op, v, v, v, m, rm))
    def red16(v, op):
        for m in QUADS: dpp(op, v, m)
    def swap_red(v, t, op, which):
        A("v_mov_b32 v%d, v%d" % (t, v)); A("v_permlane%d_swap_b32 v%d, v%d" % (which, v, t)); A("%s v%d, v%d, v%d" % (op, v, v, t))
    def rbf(v):
        A("v_cvt_pk_bf16_f32 v%d, v%d, v%d" % (v, v, v)); A("v_lshlrev_b32 v%d, 16, v%d" % (v, v))
    def unpack(dlo, dhi, src):
        A("v_lshlrev_b32 v%d, 16, v%d" % (dlo, src)); A("v_and_b32 v%d, s%d, v%d" % (dhi, sMASK, src))
    def layernorm(pk, n, x, d, t, halves):
        def allred(v):
            red16(v, "v_add_f32"); swap_red(v, t + 2, "v_add_f32", 16)
            if halves == 1: swap_red(v, t + 2, "v_add_f32", 32)
        for i in range(n): unpack(x + 2 * i, x + 2 * i + 1, pk + i)
        A("v_add_f32 v%d, v%d, v%d" % (t, x, x + 1)); A("v_add_f32 v%d, v%d, v%d" % (t + 1, x + 2, x + 3))
        for i in range(4, 2 * n): A("v_add_f32 v%d, v%d, v%d" % (t + (i & 1), t + (i & 1), x + i))
        A("v_add_f32 v%d, v%d, v%d" % (t, t, t + 1))
        allred(t)
        A("v_mul_f32 v%d, 0x3b000000, v%d" % (t, t))
        A("v_cvt_pk_bf16_f32 v%d, v%d, v%d" % (t + 1, t, t))
        for i in range(2 * n): A("v_sub_f32 v%d, v%d, v%d" % (d + i, x + i, t))
        A("v_lshlrev_b32 v%d, 16, v%d" % (t + 1, t + 1))
        A("v_mul_f32 v%d, v%d, v%d" % (t, d, d)); A("v_mul_f32 v%d, v%d, v%d" % (d, d + 1, d + 1))
        for i in range(2, 2 * n): A("v_fmac_f32 v%d, v%d, v%d" % (t if i & 1 else d, d + i, d + i))
        A("v_add_f32 v%d, v%d, v%d" % (t, t, d))
        for i in range(2 * n): A("v_sub_f32 v%d, v%d, v%d" % (x + i, x + i, t + 1))
        allred(t)
        for i in range(n): A("v_cvt_pk_bf16_f32 v%d, v%d, v%d" % (pk + i, x + 2 * i, x + 2 * i + 1))
        A("v_mul_f32 v%d, 0x3b000000, v%d" % (t, t)); rbf(t)
        A("v_add_f32 v%d, 0x%x, v%d" % (t, f2u(1e-5), t)); rbf(t)
        A("v_sqrt_f32 v%d, v%d" % (t, t)); rbf(t)
        A("v_rcp_f32 v%d, v%d" % (t, t))
        for i in range(n): unpack(x + 2 * i, x + 2 * i + 1, pk + i)
        for i in range(2 * n): A("v_mul_f32 v%d, v%d, v%d" % (x + i, t, x + i))
        for i in range(n): A("v_cvt_pk_bf16_f32 v%d, v%d, v%d" % (pk + i, x + 2 * i, x + 2 * i + 1))
    def lds_wait(flag, val, keep=None, sl=None):
        ok = A.label("lok"); again = A.label("lagain")
        dst = keep if keep is not None else sT3
        if keep is not None:
            A("s_cmp_ge_u32 s%d, %s" % (keep, val)); A("s_cbranch_scc1 " + ok)
        A("s_mov_b32 s%d, 0" % sSPIN)
        A(again + ":")
        A("ds_read_b32 v%d, v%d offset:%d" % (vPOLL, vHI, flag)); A("s_waitcnt lgkmcnt(0)")
        A("v_readfirstlane_b32 s%d, v%d" % (dst, vPOLL))
        A("s_cmp_ge_u32 s%d, %s" % (dst, val)); A("s_cbranch_scc1 " + ok)
        if sl is None: sl = lsleep
        if sl: A("s_sleep %d" % sl)
        A("s_add_u32 s%d, s%d, 1" % (sSPIN, sSPIN)); A("s_cmp_lt_u32 s%d, %d" % (sSPIN, lspin)); A("s_cbranch_scc1 " + again)
        A(ok + ":")
    def lds_add(flag_addr_reg, off):
        A("s_waitcnt lgkmcnt(0)")
        A("s_mov_b64 exec, 1"); A("ds_add_u32 v%d, v%d offset:%d" % (flag_addr_reg, vONE, off)); A("s_mov_b64 exec, -1")
    def gpoll(loads, first=True, sleep=0, full="-1", tag=None, P=1):
        ok = A.label("ok"); again = A.label("again")
        masks = ["vcc", "s[12:13]"]
        A("s_mov_b32 s%d, 0" % sSPIN)
        if first:
            for issue, regs in loads: issue()
        for _ in range(P - 1):
            A("s_sleep %d" % pd)
            for issue, regs in loads: issue()
        A(again + ":")
        A("s_waitcnt vmcnt(%d)" % (len(loads) * (P - 1)))
        for (issue, regs), mk in zip(loads, masks):
            t = vT + 7
            if tag is not None:
                A("v_cmp_ne_u64 %s, %s, v[%d:%d]" % (mk, tag, regs[2], regs[3])); continue
            if len(regs) == 2: A("v_max_u32 v%d, v%d, v%d" % (t, regs[0], regs[1]))
            else:
                A("v_max3_u32 v%d, v%d, v%d, v%d" % (t, regs[0], regs[1], regs[2])); A("v_max_u32 v%d, v%d, v%d" % (t, t, regs[3]))
            A("v_cmp_eq_u32 %s, -1, v%d" % (mk, t))
        if len(loads) == 2:
            A("s_or_b32 s%d, vcc_lo, vcc_hi" % sT3); A("s_or_b32 s%d, s%d, s12" % (sT3, sT3)); A("s_or_b32 s%d, s%d, s13" % (sT3, sT3))
        else:
            A("s_or_b32 s%d, vcc_lo, vcc_hi" % sT3)
        A("s_cbranch_scc0 " + ok)
        if sleep: A("s_sleep %d" % sleep)
        for (issue, regs), mk in zip(loads, masks):
            A("s_mov_b64 exec, %s" % mk); issue()
        if full == "PARTIAL": A("s_mov_b32 exec_lo, -1"); A("s_mov_b32 exec_hi, 0x1ffff")
        else: A("s_mov_b64 exec, %s" % full)
        A("s_add_u32 s%d, s%d, 1" % (sSPIN, sSPIN)); A("s_cmp_lt_u32 s%d, %d" % (sSPIN, spin)); A("s_cbranch_scc1 " + again)
        A("s_waitcnt vmcnt(0)")
        A(ok + ":")
    def apoll(vd, vaddr, soff, vtmp, sleep, first=True):
        ms = ["vcc", "s[12:13]", "s[88:89]", "s[90:91]"]
        ok = A.label("aok"); again = A.label("aagain")
        def iss(k):
            A("v_mov_b32 v%d, 0" % (vd + 2 * k)); A("v_mov_b32 v%d, 0" % (vd + 1 + 2 * k))
            A("buffer_atomic_or_x2 v[%d:%d], v%d, %s, s%d offen offset:%d sc0" % (vd + 2 * k, vd + 1 + 2 * k, vaddr, srd("WS"), soff, 512 * k))
        if first == "only":
            for k in range(4): iss(k)
            return
        A("s_mov_b32 s%d, 0" % sSPIN)
        if first:
            for k in range(4): iss(k)
        A(again + ":")
        A("s_waitcnt vmcnt(0)")
        for k in range(4): A("v_max_u32 v%d, v%d, v%d" % (vtmp + k, vd + 2 * k, vd + 1 + 2 * k))
        for k in range(4): A("v_cmp_eq_u32 %s, -1, v%d" % (ms[k], vtmp + k))
        A("s_or_b64 s[92:93], vcc, s[12:13]"); A("s_or_b64 s[94:95], s[88:89], s[90:91]"); A("s_or_b64 s[92:93], s[92:93], s[94:95]")
        A("s_cbranch_scc0 " + ok)
        if sleep: A("s_sleep %d" % sleep)
        for k in range(4):
            A("s_mov_b64 exec, %s" % ms[k]); iss(k)
        A("s_mov_b64 exec, -1")
        A("s_add_u32 s%d, s%d, 1" % (sSPIN, sSPIN)); A("s_cmp_lt_u32 s%d, %d" % (sSPIN, spin)); A("s_cbranch_scc1 " + again)
        A("s_waitcnt vmcnt(0)")
        A(ok + ":")
    def word_poll(load, vd, lanes, cmp, sleep):
        ok = A.label("fok"); again = A.label("fagain")
        A("s_mov_b32 s%d, 0" % sSPIN); A("s_mov_b64 exec, %s" % lanes)
        A(again + ":")
        A(load)
        A("s_waitcnt vmcnt(0)")
        A(cmp % vd)
        A("s_cmp_eq_u64 vcc, 0"); A("s_cbranch_scc1 " + ok)
        if sleep: A("s_sleep %d" % sleep)
        A("s_add_u32 s%d, s%d, 1" % (sSPIN, sSPIN)); A("s_cmp_lt_u32 s%d, %d" % (sSPIN, spin)); A("s_cbranch_scc1 " + again)
        A(ok + ":")
        A("s_mov_b64 exec, -1")

    def wo_dma():
        A("v_lshrrev_b32 v%d, 3, v0" % (vT + 4)); A("v_lshlrev_b32 v%d, 10, v%d" % (vT + 4, vT + 4)); A("v_and_b32 v%d, 7, v0" % (vT + 5)); A("v_lshl_add_u32 v%d, v%d, 4, v%d" % (vT + 4, vT + 5, vT + 4))
        A("s_lshr_b32 s%d, s%d, 3" % (sT0, sR)); A("s_lshl_b32 s%d, s%d, 17" % (sT0, sT0)); A("s_and_b32 s%d, s%d, 7" % (sT1, sR)); A("s_lshl_b32 s%d, s%d, 7" % (sT1, sT1))
        A("s_add_u32 s%d, s%d, s%d" % (sT0, sT0, sT1))
        for a in range(16):
            A("s_mov_b32 m0, %d" % (HI + L_WO + a * 1024))
            A("buffer_load_dwordx4 v%d, %s, s%d offen %s lds" % (vT + 4, srd("WO"), sT0, polo))
            if a < 15: A("s_add_u32 s%d, s%d, 0x2000" % (sT0, sT0))
    early = ["K", "V"] + (["WS", "DBG"] if (stamps or pmap or pgrp or pspan or probe or pad2 or p_b >= 0) else [])
    def emit_loader():
        vO = 17
        sG, sSLOT, sFR, sN = 12, 13, 88, 92
        if fast:
            if ldprio: A("s_setprio %d" % ldprio)
            if xmap == 0:
                A("s_and_b32 s%d, s2, 7" % sBASE); A("s_bfe_u32 s%d, s2, 0x20003" % sT0); A("s_lshr_b32 s%d, s2, 5" % sT1); A("s_lshl_b32 s%d, s%d, 20" % (sBASE, sBASE)); A("s_lshl_b32 s%d, s%d, 23" % (sT1, sT1))
                A("s_add_u32 s%d, s%d, s%d" % (sBASE, sBASE, sT1))
            else: A("s_and_b32 s%d, s2, 7" % sBASE); A("s_lshr_b32 s%d, s2, 3" % sT0); A("s_lshl_b32 s%d, s%d, 23" % (sBASE, sBASE))
            A("v_lshrrev_b32 v%d, 4, v0" % vG4); A("v_and_b32 v%d, 15, v0" % vN16)
            A("s_lshl_b32 s%d, s%d, 18" % (sT0, sT0)); A("v_xor_b32 v%d, v%d, v%d" % (vT + 1, vG4, vN16)); A("v_lshlrev_b32 v%d, 8, v%d" % (vT, vG4))
            A("s_add_u32 s%d, s%d, s%d" % (sOFF, sBASE, sT0)); A("v_lshl_add_u32 v%d, v%d, 4, v%d" % (vO, vT + 1, vT))
            A("s_mov_b32 s%d, 0x%x" % (SRD["K"] + 2, SIZE["K"])); A("s_mov_b32 s%d, 0x20000" % (SRD["K"] + 3)); A("s_mov_b32 m0, 0")
            for i in range(1, 4): A("v_xor_b32 v%d, %d, v%d" % (vO + i, 64 * i, vO))
            A("s_mov_b32 s%d, s%d" % (sBASE, sOFF))
            A("s_waitcnt lgkmcnt(0)")
            if ldst == 2: stamp(1)
            A("L_first:")
            for i in range(4): A("buffer_load_dwordx4 v%d, %s, s%d offen offset:%d %s lds" % (vO + i, srd("K"), sOFF, i * 1024, pol))
            A("s_addk_i32 m0, 4096"); A("s_addk_i32 s%d, 4096" % sOFF); A(("s_cmpk_lt_u32 m0, 0x%x" if nfirst < 8 else "s_cmp_lt_u32 m0, 0x%x") % (nfirst * 8192)); A("s_cbranch_scc1 L_first")
            if stamps:
                for k in range(2 if ldst == 2 else 1, NST): A("s_mov_b64 s[%d:%d], 0" % (16 + 2 * k, 17 + 2 * k))
            if ldst == 2: stamp(3)
            A("v_lshlrev_b32 v%d, 1, v%d" % (vT + 1, vG4)); A("v_xor_b32 v%d, v%d, v%d" % (vT + 1, vT + 1, vN16)); A("v_lshl_add_u32 v%d, v%d, 4, v%d" % (vO + 4, vT + 1, vT))
            A("v_xor_b32 v%d, 128, v%d" % (vO + 5, vO + 4))
            A("v_mov_b32 v%d, 0x%x" % (vHI, HI)); A("v_mov_b32 v%d, 1" % vONE)
            for n in early[1:]: A("s_mov_b32 s%d, 0x%x" % (SRD[n] + 2, SIZE[n])); A("s_mov_b32 s%d, 0x20000" % (SRD[n] + 3))
            if len(early) > 2:
                A("s_and_b32 s%d, s2, 7" % sR); A("s_lshl_b32 s%d, s%d, 2" % (sR, sR)); A("s_and_b32 s%d, s2, 0xe0" % sT0); A("s_add_u32 s%d, s%d, s%d" % (sR, sR, sT0))
                A("s_bfe_u32 s%d, s2, 0x20003" % sT0); A("s_add_u32 s%d, s%d, s%d" % (sR, sR, sT0))
                A("s_mov_b32 s94, 0"); A("s_mov_b32 s93, 0")
            A("s_mov_b32 s%d, %d" % (sG, max(1, nfirst // 4))); A("s_mov_b32 s%d, %d" % (sSLOT, 8192 * nfirst)); A("s_mov_b32 s%d, %d" % (sN, nfirst))
            if nlo2: A("s_and_b32 s14, s2, 7"); A("s_cmp_eq_u32 s14, %d" % xs); A("s_cselect_b32 s14, %d, %d" % (nlo2, nlo))
            A("s_barrier")
            if ldst == 2: stamp(2)
        else:
            A("L_loader:")
            if ldprio: A("s_setprio %d" % ldprio)
            A("v_lshlrev_b32 v%d, 8, v%d" % (vT, vG4))
            for i in range(4):
                A("v_add_u32 v%d, %d, v%d" % (vT + 1, 4 * i, vG4)); A("v_xor_b32 v%d, v%d, v%d" % (vT + 1, vT + 1, vN16)); A("v_lshl_add_u32 v%d, v%d, 4, v%d" % (vO + i, vT + 1, vT))
            for i in range(2):
                A("v_add_u32 v%d, %d, v%d" % (vT + 1, 4 * i, vG4)); A("v_lshlrev_b32 v%d, 1, v%d" % (vT + 1, vT + 1))
                A("v_xor_b32 v%d, v%d, v%d" % (vT + 1, vT + 1, vN16)); A("v_lshl_add_u32 v%d, v%d, 4, v%d" % (vO + 4 + i, vT + 1, vT))
            A("s_bfe_u32 s%d, s%d, 0x30002" % (sBASE, sR)); A("s_lshl_b32 s%d, s%d, 23" % (sBASE, sBASE)); A("s_lshr_b32 s%d, s%d, 5" % (sT0, sR)); A("s_lshl_b32 s%d, s%d, 20" % (sT0, sT0))
            A("s_add_u32 s%d, s%d, s%d" % (sBASE, sBASE, sT0)); A("s_and_b32 s%d, s%d, 3" % (sT0, sR)); A("s_lshl_b32 s%d, s%d, 18" % (sT0, sT0)); A("s_add_u32 s%d, s%d, s%d" % (sBASE, sBASE, sT0))
            if rot:
                A("s_mov_b32 s94, s%d" % sBASE)
                A("s_mul_i32 s%d, s%d, %d" % (sT0, sR, rot)); A("s_lshr_b32 s%d, s%d, 5" % (sT1, sR)); A("s_add_u32 s%d, s%d, s%d" % (sT0, sT0, sT1))
                A("s_and_b32 s%d, s%d, 31" % (sT0, sT0)); A("s_lshl_b32 s%d, s%d, 13" % (sT0, sT0)); A("s_add_u32 s%d, s%d, s%d" % (sBASE, sBASE, sT0))
            if Fhi:
                A("s_and_b32 s%d, s2, 7" % sT0); A("s_lshr_b32 s%d, %d, s%d" % (sT0, himask, sT0)); A("s_and_b32 s%d, s%d, 1" % (sT0, sT0)); A("s_cselect_b32 s95, %d, %d" % (Fhi, F))
            A("s_mov_b32 s94, 0"); A("s_mov_b32 s93, 0"); A("s_mov_b32 s%d, s%d" % (sOFF, sBASE)); A("s_mov_b32 s%d, 0" % sG); A("s_mov_b32 s%d, 0" % sSLOT); A("s_mov_b32 s%d, 0" % sN)
            A("s_waitcnt lgkmcnt(0)")
        def publish_full(sgpr):
            A("v_mov_b32 v%d, s%d" % (vT, sgpr)); A("s_mov_b64 exec, 1"); A("ds_max_u32 v%d, v%d offset:%d" % (vHI, vT, F_FULL)); A("s_mov_b64 exec, -1")
        def dma_block_w(isk):
            if nlo2:
                A("s_cmp_ge_u32 s%d, s14" % sN); A("s_cselect_b32 s95, %d, %d" % (Wlo, Whi)); A("s_cmp_ge_u32 s%d, %d" % (sN, nhi)); A("s_cselect_b32 s95, %d, s95" % Whi)
            else:
                A("s_sub_u32 s%d, s%d, %d" % (sT0, sN, nlo)); A("s_cmp_lt_u32 s%d, %d" % (sT0, nhi - nlo)); A("s_cselect_b32 s95, %d, %d" % (Wlo, Whi))
            for half in range(2):
                A("s_mov_b32 m0, s%d" % sSLOT)
                for i in range(4):
                    if i % gran == 0:
                        sk = A.label("w")
                        A("s_waitcnt vmcnt(%d)" % Whi); A("s_cmp_eq_u32 s95, %d" % Whi); A("s_cbranch_scc1 " + sk); A("s_waitcnt vmcnt(%d)" % Wlo); A(sk + ":")
                    A("buffer_load_dwordx4 v%d, %s, s%d offen offset:%d %s lds" % (vO + i if isk else vO + 4 + (i & 1), srd("K" if isk else "V"), sOFF, i * 1024, pol))
                A("s_add_u32 s%d, s%d, 4096" % (sOFF, sOFF)); A("s_add_u32 s%d, s%d, 4096" % (sSLOT, sSLOT))
                A("s_lshl3_add_u32 s%d, s%d, %d" % (sT0, sN, 4 * half + 4 - gran)); A("s_sub_i32 s%d, s%d, s95" % (sT0, sT0)); A("s_ashr_i32 s%d, s%d, 3" % (sT0, sT0)); A("s_max_i32 s%d, s%d, 0" % (sT0, sT0)); publish_full(sT0)
            A("s_and_b32 s%d, s%d, 0x1ffff" % (sSLOT, sSLOT)); A("s_add_u32 s%d, s%d, 1" % (sN, sN))
        def dma_block(isk):
            if Wlo: return dma_block_w(isk)
            Dm = D if isk else DV
            for half in range(2):
                A("s_mov_b32 m0, s%d" % sSLOT)
                if Dm: A("s_waitcnt vmcnt(%d)" % Dm)
                for i in range(4):
                    A("buffer_load_dwordx4 v%d, %s, s%d offen offset:%d %s lds" % (vO + i if isk else vO + 4 + (i & 1), srd("K" if isk else "V"), sOFF, i * 1024, pol))
                A("s_add_u32 s%d, s%d, 4096" % (sOFF, sOFF)); A("s_add_u32 s%d, s%d, 4096" % (sSLOT, sSLOT))
                if Dm and (4 * half - Dm) % 8 < 4:
                    A("s_add_i32 s%d, s%d, %d" % (sT0, sN, (4 * half - Dm) // 8)); A("s_max_i32 s%d, s%d, 0" % (sT0, sT0)); publish_full(sT0)
            if rot:
                A("s_and_b32 s%d, s%d, 0x3ffff" % (sOFF, sOFF)); A("s_or_b32 s%d, s%d, s94" % (sOFF, sOFF))
            A("s_and_b32 s%d, s%d, 0x1ffff" % (sSLOT, sSLOT)); A("s_add_u32 s%d, s%d, 1" % (sN, sN))
        if fast:
            for _ in range(4 - nfirst): dma_block(True)
        else:
            if ldst == 2: stamp(1)
            for _ in range(pre): dma_block(True)
            A("s_barrier")
            if ldst == 2: stamp(2)
            for _ in range(4 - pre): dma_block(True)
            A("s_mov_b32 s%d, 1" % sG)
            if ldst == 2: stamp(3)
        def read_freed():
            A("ds_read_b128 %s, v%d offset:%d" % (vr(vT + 4, 4), vHI, F_FREED)); A("s_waitcnt lgkmcnt(0)")
            for c in range(4): A("v_readfirstlane_b32 s%d, v%d" % (sFR + c, vT + 4 + c))
        for isk, last in ((True, 8), (False, 19 if steal else 16)):
            loop = "L_ld_k" if isk else "L_ld_v"
            if not isk: A("s_mov_b32 s%d, s%d" % (sOFF, sBASE))
            A(loop + ":")
            for g_, reg in ((p_a, 16), (p_b, 18)):
                if g_ > 0 and g_ < 16 and (g_ < 8) == isk:
                    sk = A.label("st"); A("s_cmp_lg_u32 s%d, %d" % (sG, g_)); A("s_cbranch_scc1 " + sk); A("s_memrealtime s[%d:%d]" % (reg, reg + 1)); A(sk + ":")
            if ldst == 1:
                for k, g in enumerate((2, 3, 4, 5, 6, 7) if isk else (8, 10, 12, 14)):
                    sk = A.label("st"); A("s_cmp_lg_u32 s%d, %d" % (sG, g)); A("s_cbranch_scc1 " + sk); stamp(k + 1 if isk else k + 7); A(sk + ":")
            if steal and not isk:
                go = A.label("pgo"); again = A.label("pagain")
                A("s_cmp_lt_u32 s%d, %d" % (sG, 8 + NOWN)); A("s_cbranch_scc1 " + go)
                A("s_mov_b32 s%d, 0" % sSPIN); A("s_sub_u32 s%d, s%d, 8" % (sT1, sG))
                if ldst: A("s_memrealtime s[14:15]")
                A(again + ":")
                A("ds_read_b32 v%d, v%d offset:%d" % (vPOLL, vHI, F_PLAN)); A("s_waitcnt lgkmcnt(0)"); A("v_readfirstlane_b32 s%d, v%d" % (sT0, vPOLL))
                A("s_and_b32 s%d, s%d, 0xff" % (sT2, sT0)); A("s_cmp_gt_u32 s%d, s%d" % (sT2, sT1)); A("s_cbranch_scc1 L_granted")
                A("s_cmp_ge_u32 s%d, 0x100" % sT0); A("s_cbranch_scc1 L_ld_end")
                for k in range(F - 1, -1, -1):
                    A("s_cmp_eq_u32 s%d, %d" % (sSPIN, F - 1 - k)); nx = A.label("nx"); A("s_cbranch_scc0 " + nx)
                    A("s_sub_u32 s%d, s%d, %d" % (sT0, sN, k)); A("s_waitcnt vmcnt(%d)" % (8 * k)); publish_full(sT0); A(nx + ":")
                if ldst: A("s_add_u32 s93, s93, 1")
                A("s_add_u32 s%d, s%d, 1" % (sSPIN, sSPIN)); A("s_cmp_lt_u32 s%d, %d" % (sSPIN, lspin)); A("s_cbranch_scc1 " + again)
                A("s_branch L_ld_end")
                A("L_granted:")
                if ldst:
                    A("s_memrealtime s[36:37]"); A("s_waitcnt lgkmcnt(0)"); A("s_sub_u32 s36, s36, s14"); A("s_add_u32 s94, s94, s36")
                A("s_cmp_lt_u32 s%d, 16" % sG); A("s_cbranch_scc1 " + go)
                A("s_sub_u32 s%d, 23, s%d" % (sT0, sG)); A("s_lshl_b32 s%d, s%d, 15" % (sT0, sT0)); A("s_xor_b32 s%d, s%d, 0x80000" % (sOFF, sBASE)); A("s_add_u32 s%d, s%d, s%d" % (sOFF, sOFF, sT0))
                A(go + ":")
            read_freed()
            A("s_sub_i32 s%d, s%d, 2" % (sT1, sG))
            if Fhi and hiend < 16:
                A("s_cmp_ge_u32 s%d, %d" % (sG, hiend)); A("s_cselect_b32 s95, %d, s95" % F)
            for c in range(4):
                go = A.label("go"); sl = A.label("slow")
                A("s_cmp_ge_i32 s%d, s%d" % (sFR + c, sT1)); A("s_cbranch_scc1 " + go)
                A("s_waitcnt vmcnt(0)"); publish_full(sN)
                if ldst: A("s_mul_i32 s94, s%d, 100" % sG); A("s_add_u32 s93, s93, s94")
                A("s_mov_b32 s%d, 0" % sSPIN)
                A(sl + ":")
                read_freed()
                A("s_cmp_ge_i32 s%d, s%d" % (sFR + c, sT1)); A("s_cbranch_scc1 " + go)
                A("s_add_u32 s%d, s%d, 1" % (sSPIN, sSPIN)); A("s_cmp_lt_u32 s%d, %d" % (sSPIN, lspin)); A("s_cbranch_scc1 " + sl)
                A(go + ":")
                dma_block(isk)
                if D or Wlo: pass
                elif bal == 1:
                    hi = A.label("hi")
                    A("ds_read_b32 v%d, v%d offset:%d" % (vPOLL, vHI, F_MODE))
                    A("s_sub_i32 s%d, s%d, %d" % (sT0, sN, F))
                    A("s_waitcnt vmcnt(%d) lgkmcnt(0)" % (8 * F)); A("v_readfirstlane_b32 s%d, v%d" % (sT2, vPOLL))
                    A("s_cmp_eq_u32 s%d, 0" % sT2); A("s_cbranch_scc1 " + hi)
                    publish_full(sT0)
                    if ldst: A("s_add_u32 s94, s94, 100")
                    A("s_sub_i32 s%d, s%d, %d" % (sT0, sN, (Flo + 7) // 8 if Flo > 7 else Flo))
                    A("s_waitcnt vmcnt(%d)" % (Flo if Flo > 7 else 8 * Flo)); A(hi + ":"); publish_full(sT0)
                elif Fhi:
                    hi = A.label("hi")
                    A("s_sub_i32 s%d, s%d, s95" % (sT0, sN)); A("s_max_i32 s%d, s%d, 0" % (sT0, sT0))
                    A("s_waitcnt vmcnt(%d)" % (8 * Fhi)); A("s_cmp_eq_u32 s95, %d" % Fhi); A("s_cbranch_scc1 " + hi)
                    A("s_waitcnt vmcnt(%d)" % (8 * F)); A(hi + ":"); publish_full(sT0)
                else:
                    A("s_sub_i32 s%d, s%d, %d" % (sT0, sN, F))
                    if F > 5: A("s_max_i32 s%d, s%d, 0" % (sT0, sT0))
                    A("s_waitcnt vmcnt(%d)" % (8 * F)); publish_full(sT0)
            if stamps:
                pass
            A("s_add_u32 s%d, s%d, 1" % (sG, sG)); A("s_cmp_lt_u32 s%d, %d" % (sG, last)); A("s_cbranch_scc1 " + loop)
            if not ldst: stamp(1 if isk else 2)
        if steal:
            A("L_ld_end:")
            A("s_mov_b64 exec, 1"); A("ds_write_b32 v%d, v%d offset:%d" % (vHI, vONE, F_LI)); A("s_mov_b64 exec, -1")
        if wolate == 1: wo_dma()
        for k in range((Whi + 4 + 7) // 8 - 1 if Wlo else (DV + 4 + 7) // 8 - 1 if D else max(F, Fhi) - 1, -1, -1):
            A("s_sub_u32 s%d, s%d, %d" % (sT0, sN, k)); A("s_waitcnt vmcnt(%d)" % (8 * k + (16 if wolate == 1 else 0))); publish_full(sT0)
        if wolate == 1:
            if ldst: stamp(11)
            A("s_waitcnt vmcnt(0)"); A("s_mov_b64 exec, 1"); A("ds_write_b32 v%d, v%d offset:%d" % (vHI, vONE, F_WO)); A("s_mov_b64 exec, -1")
        if ldst:
            if wolate == 1: stamp(12)
            else:
                stamp(11)
                A("s_waitcnt lgkmcnt(0)"); A("s_mul_i32 s%d, s%d, 25" % (sT0, sN)); A("s_add_u32 s%d, s%d, s93" % (sT0, sT0)); A("s_add_u32 s40, s16, s%d" % sT0); A("s_addc_u32 s41, s17, 0")
                if steal: A("s_add_u32 s36, s16, s94"); A("s_addc_u32 s37, s17, 0")
                if bal: A("s_add_u32 s40, s16, s94"); A("s_addc_u32 s41, s17, 0")
        else: stamp(3)
        if p_b >= 0 and piv:
            if p_b == 16: A("s_memrealtime s[18:19]")
            A("s_waitcnt lgkmcnt(0)"); A("s_sub_u32 s18, s18, s16")
        elif p_b >= 0:
            if p_b == 16: A("s_memrealtime s[18:19]")
            A("s_waitcnt lgkmcnt(0)"); A("s_sub_u32 s18, s18, s16"); A("v_mov_b32 v8, s18"); A("s_mov_b64 exec, 1"); A("buffer_atomic_add v8, off, %s, 0 offset:4" % srd("DBG")); A("s_mov_b64 exec, -1")
        if pmap:
            if not piv: A("s_memrealtime s[18:19]")
            A("s_lshl_b32 s6, s%d, 2" % sR); A("s_add_u32 s6, s6, 0x300000")
            A("s_waitcnt lgkmcnt(0)")
            if pst: A("s_add_u32 s18, s16, 500")
            A("v_mov_b32 v8, s18"); A("s_mov_b64 exec, 1"); A("buffer_store_dword v8, off, %s, s6 sc1" % srd("WS")); A("s_mov_b64 exec, -1")
        if pspan:
            A("s_memrealtime s[18:19]"); A("s_waitcnt lgkmcnt(0)")
            if pspan in (3, 4): A("s_mov_b32 s18, s16")
            if pm: A("s_and_b32 s6, s2, %d" % pm); A("s_cmp_eq_u32 s6, %d" % pval); A("s_cselect_b32 s18, s18, s16")
            A("s_not_b32 s16, s16"); A("v_mov_b32 v8, s18"); A("v_mov_b32 v9, s16"); A("s_mov_b64 exec, 1")
            A("buffer_atomic_%s v8, off, %s, 0 offset:4" % ("add" if pspan in (4, 5) else "umax", srd("DBG"))); A("buffer_atomic_umax v9, off, %s, 0 offset:8" % srd("DBG")); A("s_mov_b64 exec, -1")
        if pgrp:
            if not piv: A("s_memrealtime s[18:19]")
            if pgrp == 1: A("s_and_b32 s6, s2, 7")
            elif pgrp == 2: A("s_bfe_u32 s6, s%d, 0x30002" % sR)
            elif pgrp == 3: A("s_lshr_b32 s6, s%d, 5" % sR)
            else: A("s_and_b32 s6, s%d, 3" % sR); A("s_lshr_b32 s7, s2, 7"); A("s_lshl_b32 s7, s7, 2"); A("s_add_u32 s6, s6, s7")
            A("s_lshl_b32 s6, s6, 5")
            A("s_waitcnt lgkmcnt(0)"); A("v_mov_b32 v8, s18"); A("s_mov_b64 exec, 1"); A("buffer_atomic_%s v8, off, %s, s6 offset:4" % ("add" if pat >= 12 else "umax", srd("DBG"))); A("s_mov_b64 exec, -1")
        if probe:
            A("s_memrealtime s[20:21]"); A("s_waitcnt lgkmcnt(0)")
            if pstart: A("s_mov_b32 s20, s16")
            A("s_and_b32 s6, s2, 7"); A("s_lshr_b32 s6, %d, s6" % probe); A("s_and_b32 s6, s6, 1"); A("s_lshl_b32 s6, s6, 2"); A("s_add_u32 s6, s6, 4")
            A("s_waitcnt lgkmcnt(0)"); A("v_mov_b32 v8, s20"); A("s_mov_b64 exec, 1"); A("buffer_atomic_add v8, off, %s, s6" % srd("DBG")); A("s_mov_b64 exec, -1")
        A("s_waitcnt lgkmcnt(0)")
        A("s_branch L_done")

    stamp(0)
    A("s_cmp_ge_u32 s2, 256"); A("s_cbranch_scc1 L_end")
    if stamps and not fast:
        for k in range(1, NST): A("s_mov_b64 s[%d:%d], 0" % (16 + 2 * k, 17 + 2 * k))
    if (pad or p_b >= 0 or pspan or pstart or pmap or pad2) and not stamps: A("s_memrealtime s[16:17]")
    if fast:
        assert xmap in (0, 1) and not (rot or Fhi or bshift or steal or wolate == 1)
        for n in early: A("s_load_dwordx2 s[%d:%d], s[0:1], %d" % (SRD[n], SRD[n] + 1, KARG[n]))
        A("v_lshrrev_b32 v1, 6, v0"); A("v_and_b32 v0, 63, v0"); A("v_readfirstlane_b32 s%d, v1" % sWAVE)
        A("s_cmp_lg_u32 s%d, 4" % sWAVE); A("s_cbranch_scc1 L_rest")
        emit_loader()
        A("L_rest:")
        if stamps:
            for k in range(1, NST): A("s_mov_b64 s[%d:%d], 0" % (16 + 2 * k, 17 + 2 * k))
    for n in ("K", "X", "WQ", "WS", "V", "WO", "W1", "B1", "W2", "DBG", "OUT"):
        if not (fast and n in early): A("s_load_dwordx2 s[%d:%d], s[0:1], %d" % (SRD[n], SRD[n] + 1, KARG[n]))
    A("s_load_dwordx2 s[%d:%d], s[0:1], 72" % (sB2P, sB2P + 1))
    if not fast: A("v_lshrrev_b32 v1, 6, v0"); A("v_and_b32 v0, 63, v0"); A("v_readfirstlane_b32 s%d, v1" % sWAVE)
    for n in SRD:
        A("s_mov_b32 s%d, 0x%x" % (SRD[n] + 2, SIZE[n])); A("s_mov_b32 s%d, 0x20000" % (SRD[n] + 3))
    if xmap == 0:
        A("s_and_b32 s%d, s2, 7" % sR); A("s_lshl_b32 s%d, s%d, 5" % (sR, sR)); A("s_lshr_b32 s%d, s2, 3" % sT0); A("s_add_u32 s%d, s%d, s%d" % (sR, sR, sT0))
    elif xmap >= 8:
        A("s_bfe_u32 s%d, s2, 0x10003" % sT0); A("s_bfe_u32 s%d, s2, 0x10004" % sT1); A("s_lshl_b32 s%d, s%d, 2" % (sT1, sT1)); A("s_add_u32 s%d, s%d, s%d" % (sT0, sT0, sT1))
        if xmap == 9: A("s_lshr_b32 s%d, s2, 5" % sT1); A("s_add_u32 s%d, s%d, s%d" % (sT0, sT0, sT1))
        A("s_sub_u32 s%d, s2, s%d" % (sR, sT0))
        A("s_and_b32 s%d, s%d, 7" % (sR, sR)); A("s_lshl_b32 s%d, s%d, 2" % (sR, sR)); A("s_and_b32 s%d, s2, 0xe0" % sT0); A("s_add_u32 s%d, s%d, s%d" % (sR, sR, sT0))
        A("s_bfe_u32 s%d, s2, 0x20003" % sT0); A("s_add_u32 s%d, s%d, s%d" % (sR, sR, sT0))
    elif xmap >= 4:
        A("s_lshr_b32 s%d, s2, 1" % sT0); A("s_xor_b32 s%d, s%d, s2" % (sT0, sT0)); A("s_and_b32 s%d, s%d, 1" % (sT0, sT0)); A("s_lshl_b32 s%d, s%d, 3" % (sT0, sT0))
        A("s_and_b32 s%d, s2, 4" % sT1); A("s_lshl_b32 s%d, s%d, 2" % (sT1, sT1)); A("s_add_u32 s%d, s%d, s%d" % (sT0, sT0, sT1))
        A("s_bfe_u32 s%d, s2, 0x10003" % sT1); A("s_lshl_b32 s%d, s%d, 2" % (sT1, sT1)); A("s_add_u32 s%d, s%d, s%d" % (sT0, sT0, sT1))
        A("s_and_b32 s%d, s2, 0xe0" % sR); A("s_add_u32 s%d, s%d, s%d" % (sR, sR, sT0))
        if xmap == 6:
            A("s_lshr_b32 s%d, s2, 5" % sT0); A("s_xor_b32 s%d, s%d, s2" % (sT0, sT0)); A("s_and_b32 s%d, s%d, 1" % (sT0, sT0))
        elif xmap == 7:
            A("s_lshr_b32 s%d, s2, 3" % sT0); A("s_xor_b32 s%d, s%d, s2" % (sT0, sT0)); A("s_and_b32 s%d, s%d, 1" % (sT0, sT0))
        else: A("s_and_b32 s%d, s2, 1" % sT0)
        A("s_bfe_u32 s%d, s2, 0x10004" % sT1)
        A("s_lshl_b32 s%d, s%d, 1" % ((sT0, sT0) if xmap != 5 else (sT1, sT1)))
        A("s_add_u32 s%d, s%d, s%d" % (sR, sR, sT0)); A("s_add_u32 s%d, s%d, s%d" % (sR, sR, sT1))
    else:
        if xmap == 2:
            A("s_lshr_b32 s%d, s2, 5" % sT0); A("s_add_u32 s%d, s2, s%d" % (sR, sT0))
        elif xmap == 3:
            A("s_bfe_u32 s%d, s2, 0x20003" % sT0); A("s_lshl_b32 s%d, s%d, 1" % (sT0, sT0)); A("s_add_u32 s%d, s2, s%d" % (sR, sT0))
        else: A("s_add_u32 s%d, s2, %d" % (sR, bshift))
        A("s_and_b32 s%d, s%d, 7" % (sR, sR)); A("s_lshl_b32 s%d, s%d, 2" % (sR, sR)); A("s_and_b32 s%d, s2, 0xe0" % sT0); A("s_add_u32 s%d, s%d, s%d" % (sR, sR, sT0))
        A("s_bfe_u32 s%d, s2, 0x20003" % sT0); A("s_add_u32 s%d, s%d, s%d" % (sR, sR, sT0))
    sRQ = sMB
    if xmap >= 4:
        A("s_and_b32 s%d, s2, 7" % sRQ); A("s_lshl_b32 s%d, s%d, 2" % (sRQ, sRQ)); A("s_and_b32 s%d, s2, 0xe0" % sT0); A("s_add_u32 s%d, s%d, s%d" % (sRQ, sRQ, sT0))
        A("s_bfe_u32 s%d, s2, 0x20003" % sT0); A("s_add_u32 s%d, s%d, s%d" % (sRQ, sRQ, sT0))
    elif qmap == 0 and qshift:
        A("s_add_u32 s%d, s%d, %d" % (sT0, sR, 4 * qshift)); A("s_and_b32 s%d, s%d, 0x1c" % (sT0, sT0)); A("s_and_b32 s%d, s%d, 0xe3" % (sRQ, sR)); A("s_or_b32 s%d, s%d, s%d" % (sRQ, sRQ, sT0))
    elif qmap == 0: A("s_mov_b32 s%d, s%d" % (sRQ, sR))
    elif qmap == 1:
        A("s_and_b32 s%d, s2, 7" % sRQ); A("s_lshl_b32 s%d, s%d, 5" % (sRQ, sRQ)); A("s_lshr_b32 s%d, s2, 3" % sT0); A("s_add_u32 s%d, s%d, s%d" % (sRQ, sRQ, sT0))
    elif qmap == 2:
        A("s_lshr_b32 s%d, s%d, 3" % (sT0, sR)); A("s_and_b32 s%d, s%d, 0x1c" % (sT0, sT0)); A("s_add_u32 s%d, s%d, s%d" % (sT0, sT0, sR)); A("s_and_b32 s%d, s%d, 0x1c" % (sT0, sT0))
        A("s_and_b32 s%d, s%d, 0xe3" % (sRQ, sR)); A("s_or_b32 s%d, s%d, s%d" % (sRQ, sRQ, sT0))
    elif qmap == 6:
        A("s_lshr_b32 s%d, s%d, 2" % (sT0, sR)); A("s_and_b32 s%d, s%d, 0x18" % (sT0, sT0)); A("s_add_u32 s%d, s%d, s%d" % (sT0, sT0, sR)); A("s_add_u32 s%d, s%d, 4" % (sT0, sT0)); A("s_and_b32 s%d, s%d, 0x1c" % (sT0, sT0))
        A("s_and_b32 s%d, s%d, 0xe3" % (sRQ, sR)); A("s_or_b32 s%d, s%d, s%d" % (sRQ, sRQ, sT0))
    elif qmap == 4:
        A("s_lshr_b32 s%d, s%d, 5" % (sT0, sR)); A("s_lshl_b32 s%d, s%d, 1" % (sT0, sT0)); A("s_bfe_u32 s%d, s%d, 0x10001" % (sT1, sR)); A("s_add_u32 s%d, s%d, s%d" % (sT0, sT0, sT1))
        A("s_lshr_b32 s%d, s%d, 2" % (sT1, sT0)); A("s_lshl_b32 s%d, s%d, 1" % (sT1, sT1)); A("s_bfe_u32 s%d, s%d, 0x30002" % (sT2, sR)); A("s_add_u32 s%d, s%d, s%d" % (sT1, sT1, sT2))
        A("s_and_b32 s%d, s%d, 7" % (sT1, sT1)); A("s_lshl_b32 s%d, s%d, 3" % (sT0, sT0)); A("s_add_u32 s%d, s%d, s%d" % (sT0, sT0, sT1)); A("s_lshl_b32 s%d, s%d, 1" % (sT0, sT0))
        A("s_and_b32 s%d, s%d, 1" % (sT1, sR)); A("s_add_u32 s%d, s%d, s%d" % (sRQ, sT0, sT1))
    A("v_lshlrev_b32 v%d, 4, v0" % vL16); A("v_lshrrev_b32 v%d, 4, v0" % vG4); A("v_bfe_u32 v%d, v0, 2, 2" % vC4)
    A("v_and_b32 v%d, 3, v0" % vR4); A("v_and_b32 v%d, 15, v0" % vN16); A("v_mov_b32 v%d, 0x%x" % (vHI, HI)); A("v_mov_b32 v%d, 1" % vONE)
    A("s_mov_b32 s%d, 0x05040100" % sSELLO); A("s_mov_b32 s%d, 0x07060302" % sSELHI); A("s_mov_b32 s%d, 0xffff0000" % sMASK)
    A("s_mov_b32 s%d, 0x%x" % (sSCALE, f2u(128 ** -0.5))); A("s_mov_b32 s%d, 0x%x" % (sL2E, f2u(1.4426950408889634)))
    c0 = -2.0 * 0.7978845608028654 * 1.4426950408889634
    A("s_mov_b32 s%d, 0x%x" % (sC0, f2u(c0))); A("s_mov_b32 s%d, 0x%x" % (sC1, f2u(c0 * 0.044715)))
    A("s_lshr_b32 s%d, s%d, 5" % (sT0, sR)); A("s_lshl_b32 s%d, s%d, 15" % (sT0, sT0))
    A("s_and_b32 s%d, s%d, 31" % (sT1, sR)); A("s_lshl_b32 s%d, s%d, 8" % (sT1, sT1)); A("s_add_u32 s%d, s%d, s%d" % (sT0, sT0, sT1))
    A("s_add_u32 s%d, s%d, 0x%x" % (sOPOFF, sT0, WS_OP))
    A("s_and_b32 s%d, s%d, 7" % (sT0, sR)); A("s_lshl_b32 s%d, s%d, %d" % (sT0, sT0, 13 + spad))
    A("s_lshr_b32 s%d, s%d, 3" % (sT1, sR)); A("s_lshl_b32 s%d, s%d, %d" % (sT1, sT1, 6 + spad)); A("s_add_u32 s%d, s%d, s%d" % (sT0, sT0, sT1))
    A("s_add_u32 s%d, s%d, 0x%x" % (sSPOFF, sT0, WS_SP))
    A("s_lshr_b32 s%d, s%d, 2" % (sT0, sR)); A("s_lshl_b32 s%d, s%d, 7" % (sT0, sT0)); A("s_add_u32 s%d, s%d, 0x%x" % (sSTOFF, sT0, WS_ST))
    if not fast: A("s_cmp_eq_u32 s%d, 4" % sWAVE); A("s_cbranch_scc1 L_loader")
    A("s_cmp_eq_u32 s%d, 5" % sWAVE); A("s_cbranch_scc1 L_comm")
    A("s_cmp_gt_u32 s%d, 5" % sWAVE); A("s_cbranch_scc1 L_mlp")

    vQ, vS, vTMP, vK = 32, 48, 112, 128
    vKA, vVA = 17, 17
    vM, vLs, vMO, vF, vOWA = 25, 26, 27, 28, 29
    vX = vS
    A("v_lshlrev_b32 v%d, 5, v0" % vT)
    A("v_lshrrev_b32 v%d, 1, v0" % (vT + 1)); A("v_lshlrev_b32 v%d, 13, v%d" % (vT + 1, vT + 1))
    A("v_and_b32 v%d, 1, v0" % (vT + 2)); A("v_lshl_add_u32 v%d, v%d, 4, v%d" % (vT + 1, vT + 2, vT + 1))
    A("s_lshl_b32 s%d, s%d, 11" % (sT2, sWAVE))
    A("s_lshl_b32 s%d, s%d, 20" % (sT0, sWAVE)); A("s_lshl_b32 s%d, s%d, 5" % (sT1, sRQ)); A("s_add_u32 s%d, s%d, s%d" % (sT0, sT0, sT1))
    A("s_lshl_b32 s%d, s%d, 13" % (sT1, sWAVE)); A("s_add_u32 s%d, s%d, %d" % (sT1, sT1, 12 * 8192))
    A("s_waitcnt lgkmcnt(0)")
    if ldst == 2: stamp(12)
    if cbar == 1: A("s_barrier")
    A("buffer_load_dwordx4 %s, v%d, %s, s%d offen" % (vr(vX, 4), vT, srd("X"), sT2))
    A("buffer_load_dwordx4 %s, v%d, %s, s%d offen offset:16" % (vr(vX + 4, 4), vT, srd("X"), sT2))
    nq0 = wqsplit if wqsplit else 4
    if cbar == 2: A("s_barrier")
    for a in range(4 if qrot else 0):
        A("s_add_u32 s12, s%d, %d" % (sRQ, a)); A("s_and_b32 s12, s12, 3"); A("s_lshl_b32 s13, s12, 10"); A("s_add_u32 m0, s%d, s13" % sT1); A("s_lshl_b32 s12, s12, 18"); A("s_add_u32 s12, s12, s%d" % sT0)
        A("buffer_load_dwordx4 v%d, %s, s12 offen %s lds" % (vT + 1, srd("WQ"), polq))
    for a in range(0 if qrot else nq0):
        A("s_add_u32 m0, s%d, %d" % (sT1, a * 1024))
        if 'q' in abl: A("buffer_load_dwordx4 v%d, %s, 0 offen lds" % (vL16, srd("X")))
        else: A("buffer_load_dwordx4 v%d, %s, s%d offen %s lds" % (vT + 1, srd("WO" if 'Q' in abl else "V" if 'V' in abl else "WQ"), sT0, polq))
        if a < 3: A("s_add_u32 s%d, s%d, 0x40000" % (sT0, sT0))
    if nq0 < 4: A("v_mov_b32 v31, v%d" % (vT + 1)); A("s_mov_b32 s12, s%d" % sT0)
    if not cbar: A("s_barrier")
    A("v_lshrrev_b32 v%d, 5, v0" % (vT + 3)); A("s_lshl_b32 s%d, s%d, 1" % (sT0, sWAVE)); A("v_add_u32 v%d, s%d, v%d" % (vT + 3, sT0, vT + 3))
    A("v_mul_u32_u24 v%d, %d, v%d" % (vT + 3, XN_STRIDE, vT + 3)); A("v_and_b32 v%d, 31, v0" % (vT + 4)); A("v_lshl_add_u32 v%d, v%d, 5, v%d" % (vT + 3, vT + 4, vT + 3))
    A("v_add_u32 v%d, v%d, v%d" % (vT + 3, vHI, vT + 3))
    A("v_and_b32 v%d, 7, v0" % (vT + 4)); A("v_mul_u32_u24 v%d, %d, v%d" % (vT + 4, XN_STRIDE, vT + 4)); A("v_lshl_add_u32 v%d, v%d, 4, v%d" % (vT + 4, vG4, vT + 4))
    A("s_lshl_b32 s%d, s%d, 8" % (sT0, sWAVE)); A("s_add_u32 s%d, s%d, %d" % (sT0, sT0, HI)); A("v_add_u32 v%d, s%d, v%d" % (vT + 4, sT0, vT + 4))
    A("v_lshlrev_b32 v%d, 8, v%d" % (vT + 5, vG4)); A("v_lshl_add_u32 v%d, v%d, 3, v%d" % (vT + 5, vN16, vT + 5)); A("v_add_u32 v%d, s%d, v%d" % (vT + 5, sT1, vT + 5))
    A("s_lshl_b32 s%d, s%d, 10" % (sT0, sWAVE)); A("s_add_u32 s%d, s%d, %d" % (sT0, sT0, HI)); A("v_add_u32 v%d, s%d, v%d" % (vT + 6, sT0, vL16))
    A("s_lshl_b32 s%d, s%d, 13" % (sT0, sWAVE)); A("v_lshlrev_b32 v%d, 8, v%d" % (vT, vN16)); A("v_add_u32 v%d, s%d, v%d" % (vT, sT0, vT))
    for m in range(4):
        A("v_add_u32 v%d, %d, v%d" % (vT + 1, 4 * m, vG4)); A("v_xor_b32 v%d, v%d, v%d" % (vT + 1, vT + 1, vN16))
        A("v_lshl_add_u32 v%d, v%d, 4, v%d" % (vKA + m, vT + 1, vT)); A("v_add_u32 v%d, 0x10000, v%d" % (vKA + 4 + m, vKA + m))
    A("s_lshl_b32 s%d, s%d, 2" % (sT0, sWAVE)); A("s_add_u32 s%d, s%d, %d" % (sT0, sT0, HI)); A("v_mov_b32 v%d, s%d" % (30, sT0))
    A("s_mov_b32 s%d, 0" % sFULL)
    A("s_waitcnt vmcnt(%d)" % nq0)
    for a in range(nq0, 4):
        A("s_add_u32 m0, s%d, %d" % (sT1, a * 1024))
        A("buffer_load_dwordx4 v31, %s, s12 offen %s lds" % (srd("WQ"), polq))
        if a < 3: A("s_add_u32 s12, s12, 0x40000")
    stamp(1)
    layernorm(vX, 8, vX + 8, vX + 24, vX + 40, 2)
    A("ds_write_b128 v%d, %s offset:%d" % (vT + 3, vr(vX, 4), L_XN)); A("ds_write_b128 v%d, %s offset:%d" % (vT + 3, vr(vX + 4, 4), L_XN + 16))
    lds_add(vHI, F_XN)
    A("s_waitcnt vmcnt(0)")
    for m in range(4):
        A("ds_read_b64_tr_b16 %s, v%d offset:%d" % (vr(vK + 4 * m, 2), vT + 5, m * 1024))
        A("ds_read_b64_tr_b16 %s, v%d offset:%d" % (vr(vK + 4 * m + 2, 2), vT + 5, m * 1024 + 128))
    lds_wait(F_XN, 4)
    for m in range(4): A("ds_read_b128 %s, v%d offset:%d" % (vr(vK + 16 + 4 * m, 4), vT + 4, L_XN + m * 64))
    for m in range(4):
        A("s_waitcnt lgkmcnt(%d)" % (3 - m))
        A("v_mfma_f32_16x16x32_bf16 %s, %s, %s, %s" % (vr(vTMP, 4), vr(vK + 4 * m, 4), vr(vK + 16 + 4 * m, 4), "0" if m == 0 else vr(vTMP, 4)))
    A("ds_write_b128 v%d, %s offset:%d" % (vT + 6, vr(vTMP, 4), L_QP))
    lds_add(vHI, F_QP)
    A("s_mov_b64 exec, 1"); A("ds_add_u32 v30, v%d offset:%d" % (vONE, F_FREED)); A("s_mov_b64 exec, -1")
    stamp(2)
    def wait_block(n4):
        A("s_add_u32 s%d, s%d, %d" % (sT0, sWAVE, 4 * n4 + 1))
        lds_wait(F_FULL, "s%d" % sT0, keep=sFULL)
    def read_k(j):
        base = vK + 32 * (j % 4)
        for t in range(2):
            for m in range(4):
                A("ds_read_b128 %s, v%d offset:%d" % (vr(base + 16 * t + 4 * m, 4), vKA + m + (4 if (j & 2) else 0), (j & 1) * 32768 + t * 4096))
    def qk_block(j):
        base = vK + 32 * (j % 4)
        for m in range(4):
            for t in range(2):
                acc = vr(vS + 8 * j + 4 * t, 4)
                A("v_mfma_f32_16x16x32_bf16 %s, %s, %s, %s" % (acc, vr(base + 16 * t + 4 * m, 4), vr(vQ + 4 * m, 4), "0" if m == 0 else acc))
    def round_block(j):
        for p in range(4):
            a, b, t = vS + 8 * j + 2 * p, vS + 8 * j + 2 * p + 1, vT + (p & 1)
            if mimic:
                A("v_cvt_pk_bf16_f32 v%d, v%d, v%d" % (t, a, b)); unpack(a, b, t)
            A("v_mul_f32 v%d, s%d, v%d" % (a, sSCALE, a)); A("v_mul_f32 v%d, s%d, v%d" % (b, sSCALE, b))
            if mimic:
                A("v_cvt_pk_bf16_f32 v%d, v%d, v%d" % (t, a, b)); unpack(a, b, t)
            if j == 0 and p == 0: A("v_max_f32 v%d, v%d, v%d" % (vM, a, b))
            else: A("v_max3_f32 v%d, v%d, v%d, v%d" % (vM, a, b, vM))
    for j in range(4):
        wait_block(j); read_k(j); lds_add(30, F_FREED)
    stamp(3)
    lds_wait(F_QR, 1)
    stamp(4)
    A("v_lshlrev_b32 v%d, 8, v%d" % (vT, vC4)); A("v_lshl_add_u32 v%d, v%d, 4, v%d" % (vT, vG4, vT)); A("v_add_u32 v%d, v%d, v%d" % (vT, vHI, vT))
    for m in range(4): A("ds_read_b128 %s, v%d offset:%d" % (vr(vQ + 4 * m, 4), vT, L_QB + m * 64))
    A("s_waitcnt lgkmcnt(0)")
    for j in range(4):
        qk_block(j)
        wait_block(4 + j); A("s_nop 3"); read_k(4 + j)
        if j >= 1: round_block(j - 1)
        lds_add(30, F_FREED)
    for j in range(4, 8):
        qk_block(j); round_block(j - 1)
    A("v_lshl_add_u32 v%d, v%d, 2, v%d" % (vT + 2, vG4, vC4))
    A("v_and_b32 v%d, 7, v%d" % (vT + 3, vT + 2)); A("v_lshlrev_b32 v%d, 1, v%d" % (vT + 3, vT + 3))
    A("v_lshrrev_b32 v%d, 1, v%d" % (vT + 4, vR4)); A("v_xor_b32 v%d, v%d, v%d" % (vT + 3, vT + 3, vT + 4))
    A("v_lshlrev_b32 v%d, 8, v%d" % (vT + 2, vT + 2)); A("v_lshl_add_u32 v%d, v%d, 4, v%d" % (vT + 2, vT + 3, vT + 2))
    A("v_and_b32 v%d, 1, v0" % (vT + 4)); A("v_lshl_add_u32 v%d, v%d, 3, v%d" % (vT + 2, vT + 4, vT + 2))
    A("s_lshl_b32 s%d, s%d, 13" % (sT0, sWAVE)); A("v_add_u32 v%d, s%d, v%d" % (vVA, sT0, vT + 2))
    for d in range(1, 8): A("v_xor_b32 v%d, %d, v%d" % (vVA + d, 32 * d, vVA))
    round_block(7)
    swap_red(vM, vT, "v_max_f32", 32); swap_red(vM, vT, "v_max_f32", 16)
    A("v_mul_f32 v%d, s%d, v%d" % (vM, sL2E, vM))
    A("v_lshlrev_b32 v%d, 4, v%d" % (vT + 1, vG4)); A("ds_bpermute_b32 v%d, v%d, v%d" % (vMO, vT + 1, vM))
    vP = vK
    for j in range(32):
        a, b = vS + 2 * j, vS + 2 * j + 1
        A("v_fma_f32 v%d, v%d, s%d, -v%d" % (a, a, sL2E, vM)); A("v_fma_f32 v%d, v%d, s%d, -v%d" % (b, b, sL2E, vM))
        A("v_exp_f32 v%d, v%d" % (a, a)); A("v_exp_f32 v%d, v%d" % (b, b))
        if j >= 1:
            pa, pb = a - 2, b - 2
            if j == 1: A("v_add_f32 v%d, v%d, v%d" % (vLs, pa, pb))
            else: A("v_add_f32 v%d, v%d, v%d" % (vLs, vLs, pa)); A("v_add_f32 v%d, v%d, v%d" % (vLs, vLs, pb))
            A("v_cvt_pk_bf16_f32 v%d, v%d, v%d" % (vP + j - 1, pa, pb))
    A("v_add_f32 v%d, v%d, v%d" % (vLs, vLs, vS + 62)); A("v_add_f32 v%d, v%d, v%d" % (vLs, vLs, vS + 63))
    A("v_cvt_pk_bf16_f32 v%d, v%d, v%d" % (vP + 31, vS + 62, vS + 63))
    swap_red(vLs, vT, "v_add_f32", 32); swap_red(vLs, vT, "v_add_f32", 16)
    A("s_lshl_b32 s%d, s%d, 5" % (sT0, sWAVE)); A("s_add_u32 s%d, s%d, %d" % (sT0, sT0, HI)); A("v_lshlrev_b32 v%d, 3, v%d" % (vT, vC4)); A("v_add_u32 v%d, s%d, v%d" % (vT, sT0, vT))
    A("v_mov_b32 v%d, v%d" % (vT + 2, vM)); A("v_mov_b32 v%d, v%d" % (vT + 3, vLs))
    A("s_mov_b64 exec, 0x1111"); A("ds_write_b64 v%d, %s offset:%d" % (vT, vr(vT + 2, 2), L_ST)); A("s_mov_b64 exec, -1")
    lds_add(vHI, F_ST)
    stamp(5)
    A("s_lshl_b32 s%d, s%d, 11" % (sT0, sWAVE)); A("s_add_u32 s%d, s%d, %d" % (sT0, sT0, HI + L_OW))
    A("v_lshlrev_b32 v%d, 9, v%d" % (vOWA, vG4)); A("v_lshl_add_u32 v%d, v%d, 2, v%d" % (vOWA, vN16, vOWA)); A("v_add_u32 v%d, s%d, v%d" % (vOWA, sT0, vOWA))
    vVB = vK + 32
    def read_v(j):
        base = vVB + 32 * (j & 1)
        for d in range(8):
            for t in range(2):
                A("ds_read_b64_tr_b16 %s, v%d offset:%d" % (vr(base + 4 * d + 2 * t, 2), vVA + d, (j & 1) * 32768 + t * 4096))
    def pv(j, d):
        base = vVB + 32 * (j & 1)
        acc = vr(vS + 4 * d, 4)
        A("v_mfma_f32_16x16x32_bf16 %s, %s, %s, %s" % (acc, vr(vP + 4 * j, 4), vr(base + 4 * d, 4), "0" if j == 0 else acc))
    vS2, vF2 = vS + 32, 31
    def factor(dst, m):
        lds_wait(F_GR, 1)
        A("v_lshl_add_u32 v%d, v%d, 3, v%d" % (vT, vG4, vHI)); A("ds_read_b64 %s, v%d offset:%d" % (vr(vT + 2, 2), vT, L_GS)); A("s_waitcnt lgkmcnt(0)")
        A("v_sub_f32 v%d, v%d, v%d" % (dst, m, vT + 2)); A("v_exp_f32 v%d, v%d" % (dst, dst)); A("v_mul_f32 v%d, v%d, v%d" % (dst, dst, vT + 3))
    def wait_pos(j, out):
        ok = A.label("pok"); again = A.label("pagain"); chk = A.label("pchk")
        A("s_add_u32 s%d, s%d, %d" % (sT0, sWAVE, 32 + 4 * j + 1))
        A("s_mov_b32 s%d, 0" % sSPIN)
        A("s_branch " + chk)
        A(again + ":")
        A("ds_read_b64 %s, v%d offset:%d" % (vr(vT + 2, 2), vHI, F_FULL)); A("s_waitcnt lgkmcnt(0)")
        A("v_readfirstlane_b32 s%d, v%d" % (sFULL, vT + 2)); A("v_readfirstlane_b32 s%d, v%d" % (sPLAN, vT + 3))
        A(chk + ":")
        A("s_cmp_ge_u32 s%d, s%d" % (sFULL, sT0)); A("s_cbranch_scc1 " + ok)
        A("s_sub_u32 s%d, s%d, 0x100" % (sT1, sPLAN)); A("s_cmp_le_u32 s%d, %d" % (sT1, j)); A("s_cbranch_scc1 " + out)
        A("s_add_u32 s%d, s%d, 1" % (sSPIN, sSPIN)); A("s_cmp_lt_u32 s%d, %d" % (sSPIN, lspin)); A("s_cbranch_scc1 " + again)
        A("s_branch " + out)
        A(ok + ":")
    if steal:
        lds_wait(F_AM, 1)
        A("v_lshrrev_b32 v%d, 2, v0" % vT); A("v_lshlrev_b32 v%d, 4, v%d" % (vT, vT))
        A("s_lshl_b32 s%d, s%d, 12" % (sT0, sR)); A("s_lshl_b32 s%d, s%d, 10" % (sT1, sWAVE)); A("s_add_u32 s%d, s%d, s%d" % (sT0, sT0, sT1)); A("s_add_u32 s%d, s%d, 0x%x" % (sT0, sT0, WS_PR))
        A("s_mov_b32 exec_lo, 0x11111111"); A("s_mov_b32 exec_hi, 0x11111111")
        for u in range(3): A("buffer_store_dwordx4 %s, v%d, %s, s%d offen offset:%d sc1" % (vr(vP + 4 * (5 + u), 4), vT, srd("WS"), sT0, 256 * u))
        A("s_mov_b64 exec, 0x1111")
        A("buffer_store_dword v%d, v0, %s, s%d offen offset:768 sc1" % (vM, srd("WS"), sT0))
        A("s_mov_b64 exec, -1")
        A("s_mov_b32 s%d, 0" % sPLAN)
    for j in range(11 if steal else 8):
        if j == 7:
            factor(vF, vMO)
            stamp(6)
        if j < NOWN: wait_block(8 + j)
        else: wait_pos(j, "L_vout%d" % j)
        if j == 7: stamp(7)
        if j >= 8:
            if j == 8:
                A("v_lshrrev_b32 v%d, 2, v0" % (vT + 4)); A("v_lshlrev_b32 v%d, 4, v%d" % (vT + 4, vT + 4))
                A("s_lshl_b32 s%d, s%d, 10" % (sT1, sWAVE)); A("s_add_u32 s%d, s%d, %d" % (sT1, sT1, HI + L_PP)); A("v_add_u32 v%d, s%d, v%d" % (vT + 4, sT1, vT + 4))
                A("v_lshl_add_u32 v%d, v%d, 2, s%d" % (vT + 5, vG4, sT1))
                for u in range(3): A("ds_read_b128 %s, v%d offset:%d" % (vr(vP + 4 * u, 4), vT + 4, 256 * (2 - u)))
                A("ds_read_b32 v%d, v%d offset:768" % (vF2, vT + 5)); A("s_waitcnt lgkmcnt(0)")
                factor(vF2, vF2)
        read_v(j)
        if j % 4 == 1:
            for d in range(8): A("v_add_u32 v%d, 0x10000, v%d" % (vVA + d, vVA + d))
        if j % 4 == 3 and (steal or j < 7):
            for d in range(8): A("v_subrev_u32 v%d, 0x10000, v%d" % (vVA + d, vVA + d))
        for d in range(8):
            A("s_waitcnt lgkmcnt(%d)" % (14 - 2 * d))
            if d == 7 and j < (7 if steal else 4):
                A("s_mov_b64 exec, 1"); A("ds_add_u32 v30, v%d offset:%d" % (vONE, F_FREED)); A("s_mov_b64 exec, -1")
            if j < 8: pv(j, d)
            else:
                acc = vr(vS2 + 4 * d, 4)
                A("v_mfma_f32_16x16x32_bf16 %s, %s, %s, %s" % (acc, vr(vP + 4 * (j - 8), 4), vr(vVB + 32 * (j & 1) + 4 * d, 4), "0" if j == 8 else acc))
    if steal:
        A("L_vout9:"); A("L_vout10:")
        A("s_nop 7")
        for d in range(8): A("v_mul_f32 v%d, v%d, v%d" % (vTMP + d, vF, vS + 4 * d))
        for d in range(8): A("v_fmac_f32 v%d, v%d, v%d" % (vTMP + d, vF2, vS2 + 4 * d))
        A("s_branch L_vsum")
        A("L_vout5:"); A("L_vout6:")
        factor(vF, vMO)
        A("L_vout7:"); A("L_vout8:")
        A("s_nop 7")
    for d in range(8): A("v_mul_f32 v%d, v%d, v%d" % (vTMP + d, vF, vS + 4 * d))
    if steal: A("L_vsum:")
    for d in range(0, 8, 2): A("ds_write2_b32 v%d, v%d, v%d offset0:%d offset1:%d" % (vOWA, vTMP + d, vTMP + d + 1, 16 * d, 16 * d + 16))
    vWOA, vOIR, vWO = 17, 18, vK
    A("v_lshlrev_b32 v%d, 7, v%d" % (vWOA, vC4)); A("v_lshl_add_u32 v%d, v%d, 10, v%d" % (vWOA, vG4, vWOA)); A("v_lshl_add_u32 v%d, v%d, 3, v%d" % (vWOA, vR4, vWOA))
    A("s_lshl_b32 s%d, s%d, 5" % (sT0, sWAVE)); A("s_add_u32 s%d, s%d, %d" % (sT0, sT0, HI + L_WO)); A("v_add_u32 v%d, s%d, v%d" % (vWOA, sT0, vWOA))
    A("s_waitcnt lgkmcnt(0)")
    A("s_barrier")
    stamp(8)
    def wo_reads():
        if wolate: lds_wait(F_WO, 1, sl=0)
        for m in range(4):
            A("ds_read_b64_tr_b16 %s, v%d offset:%d" % (vr(vWO + 4 * m, 2), vWOA, m * 4096))
            A("ds_read_b64_tr_b16 %s, v%d offset:%d" % (vr(vWO + 4 * m + 2, 2), vWOA, m * 4096 + 512))
    def oir_addr():
        A("v_lshrrev_b32 v%d, 1, v%d" % (vT, vN16)); A("v_lshlrev_b32 v%d, 10, v%d" % (vT, vT)); A("v_and_b32 v%d, 1, v0" % (vT + 1)); A("v_lshl_add_u32 v%d, v%d, 8, v%d" % (vT, vT + 1, vT))
        for m in range(4):
            A("v_add_u32 v%d, %d, v%d" % (vT + 1, 4 * m, vG4)); A("v_xor_b32 v%d, v%d, v%d" % (vT + 1, vT + 1, vN16))
            A("v_lshl_add_u32 v%d, v%d, 4, v%d" % (vOIR + m, vT + 1, vT))
        A("v_lshrrev_b32 v%d, 1, v%d" % (22, vN16)); A("v_lshlrev_b32 v22, %d, v22" % (16 + spad)); A("v_lshl_add_u32 v22, v%d, 4, v22" % vG4)
    A("s_cmp_gt_u32 s%d, 1" % sWAVE); A("s_cbranch_scc1 L_gather23")
    A("s_lshl_b32 s%d, s%d, 10" % (sT0, sWAVE)); A("s_add_u32 s%d, s%d, %d" % (sT0, sT0, HI + L_OW)); A("v_add_u32 v%d, s%d, v%d" % (vT, sT0, vL16))
    for w in range(4): A("ds_read_b128 %s, v%d offset:%d" % (vr(vS + 4 * w, 4), vT, w * 2048))
    A("v_lshrrev_b32 v%d, 5, v0" % (vT + 1)); A("v_lshlrev_b32 v%d, 13, v%d" % (vT + 1, vT + 1)); A("v_and_b32 v%d, 31, v0" % (vT + 2)); A("v_lshl_add_u32 v%d, v%d, 3, v%d" % (vT + 1, vT + 2, vT + 1))
    A("s_lshl_b32 s%d, s%d, 14" % (sT0, sWAVE)); A("s_add_u32 s%d, s%d, s%d" % (sT0, sT0, sOPOFF))
    A("s_waitcnt lgkmcnt(2)")
    for i in range(4): A("v_add_f32 v%d, v%d, v%d" % (vS + i, vS + i, vS + 4 + i))
    A("s_waitcnt lgkmcnt(0)")
    for i in range(4): A("v_add_f32 v%d, v%d, v%d" % (vS + 8 + i, vS + 8 + i, vS + 12 + i))
    for i in range(4): A("v_add_f32 v%d, v%d, v%d" % (vS + i, vS + i, vS + 8 + i))
    A("v_cvt_pk_bf16_f32 v%d, v%d, v%d" % (vTMP, vS, vS + 1)); A("v_cvt_pk_bf16_f32 v%d, v%d, v%d" % (vTMP + 1, vS + 2, vS + 3))
    A("buffer_store_dwordx2 %s, v%d, %s, s%d offen %s" % (vr(vTMP, 2), vT + 1, srd("WS"), sT0, ts))
    stamp(11)
    wo_reads(); oir_addr()
    A("s_branch L_barE_c")
    def gather(idx_sgpr, extra):
        vGa = 40
        A("s_lshr_b32 s%d, s%d, 3" % (sT1, sR)); A("s_lshl_b32 s%d, s%d, 13" % (sT1, sT1)); A("s_lshl_b32 s%d, s%d, 11" % (sT0, idx_sgpr))
        A("s_add_u32 s%d, s%d, s%d" % (sT1, sT1, sT0)); A("s_add_u32 s%d, s%d, 0x%x" % (sT1, sT1, WS_OP))
        lds_ = [(lambda: A("buffer_load_dwordx4 %s, v%d, %s, s%d offen %s" % (vr(vGa, 4), vL16, srd("WS"), sT1, tl)), list(range(vGa, vGa + 4))),
                (lambda: A("buffer_load_dwordx4 %s, v%d, %s, s%d offen offset:1024 %s" % (vr(vGa + 4, 4), vL16, srd("WS"), sT1, tl)), list(range(vGa + 4, vGa + 8)))]
        if td1: A("s_sleep %d" % td1)
        if at1:
            A("v_lshlrev_b32 v%d, 3, v0" % (vT + 7))
            apoll(vGa, vT + 7, sT1, 0, 0, first="only")
            extra()
            A("v_lshrrev_b32 v%d, 5, v0" % (vT + 2)); A("s_lshl_b32 s%d, s%d, 2" % (sT2, idx_sgpr)); A("v_add_u32 v%d, s%d, v%d" % (vT + 3, sT2, vT + 2))
            A("v_bfe_u32 v%d, v0, 1, 4" % (vT + 4)); A("v_xor_b32 v%d, v%d, v%d" % (vT + 3, vT + 3, vT + 4))
            A("v_lshlrev_b32 v%d, 8, v%d" % (vT + 2, vT + 2)); A("v_add_u32 v%d, s%d, v%d" % (vT + 2, sT0, vT + 2))
            A("v_and_b32 v%d, 1, v0" % (vT + 4)); A("v_lshl_add_u32 v%d, v%d, 3, v%d" % (vT + 2, vT + 4, vT + 2))
            A("v_lshl_add_u32 v%d, v%d, 4, v%d" % (vT + 5, vT + 3, vT + 2)); A("v_xor_b32 v%d, 32, v%d" % (vT + 6, vT + 5))
            apoll(vGa, vT + 7, sT1, 24, tsleep, first=False)
            stamp(11)
            for k in range(4): A("ds_write_b64 v%d, %s offset:%d" % (vT + 5 + (k >> 1), vr(vGa + 2 * k, 2), 512 * k))
            return
        for i_, _ in lds_: i_()
        A("v_and_b32 v%d, 1, v%d" % (vT + 2, vG4)); A("s_lshl_b32 s%d, s%d, 2" % (sT2, idx_sgpr)); A("v_add_u32 v%d, s%d, v%d" % (vT + 2, sT2, vT + 2))
        A("v_xor_b32 v%d, v%d, v%d" % (vT + 3, vT + 2, vN16)); A("v_xor_b32 v%d, 2, v%d" % (vT + 4, vT + 3))
        A("v_lshlrev_b32 v%d, 8, v%d" % (vT + 2, vG4)); A("v_add_u32 v%d, s%d, v%d" % (vT + 2, sT0, vT + 2))
        A("v_lshl_add_u32 v%d, v%d, 4, v%d" % (vT + 5, vT + 3, vT + 2)); A("v_lshl_add_u32 v%d, v%d, 4, v%d" % (vT + 6, vT + 4, vT + 2))
        extra()
        gpoll(lds_, first=False, sleep=tsleep, P=P1)
        stamp(11)
        A("ds_write_b128 v%d, %s" % (vT + 5, vr(vGa, 4))); A("ds_write_b128 v%d, %s offset:1024" % (vT + 6, vr(vGa + 4, 4)))
    A("L_gather23:")
    A("s_sub_u32 s%d, s%d, 2" % (sMU, sWAVE))
    gather(sMU, lambda: (wo_reads(), oir_addr()))
    A("L_barE_c:")
    A("s_waitcnt lgkmcnt(0)")
    A("s_barrier")
    stamp(9)
    for u in range(2):
        for m in range(4): A("ds_read_b128 %s, v%d offset:%d" % (vr(vS + 16 * u + 4 * m, 4), vOIR + m, u * 512))
    A("s_lshl_b32 s%d, s%d, %d" % (sT0, sWAVE, 11 + spad)); A("s_add_u32 s%d, s%d, s%d" % (sT0, sT0, sSPOFF))
    for u in range(2):
        for m in range(4):
            A("s_waitcnt lgkmcnt(%d)" % (7 - 4 * u - m))
            acc = vr(vTMP + 4 * u, 4)
            A("v_mfma_f32_16x16x32_bf16 %s, %s, %s, %s" % (acc, vr(vWO + 4 * m, 4), vr(vS + 16 * u + 4 * m, 4), "0" if m == 0 else acc))
    for i in range(4): A("v_add_f32 v%d, v%d, v%d" % (vTMP + i, vTMP + i, vTMP + 4 + i))
    for i in range(4): dpp("v_add_f32", vTMP + i, "quad_perm:[1,0,3,2]")
    A("s_mov_b32 exec_lo, 0x55555555"); A("s_mov_b32 exec_hi, 0x55555555")
    stamp(10)
    A("buffer_store_dwordx4 %s, v22, %s, s%d offen %s" % (vr(vTMP, 4), srd("WS"), sT0, ts))
    A("s_mov_b64 exec, -1")
    A("s_branch L_done")

    if not fast: emit_loader()

    def slot_addrs():
        A("v_lshlrev_b32 v28, 5, v0")
        A("s_and_b32 s%d, s%d, 3" % (sT0, sR)); A("s_lshl_b32 s%d, s%d, 3" % (sT0, sT0)); A("s_add_u32 s%d, s%d, s%d" % (sMU, sT0, sSTOFF))
    A("L_comm:")
    vZ = 20
    for i in range(4): A("v_mov_b32 v%d, 0" % (vZ + i))
    A("v_lshl_add_u32 v%d, v0, 2, v%d" % (vT, vHI))
    A("s_mov_b64 exec, 0xffff"); A("ds_write_b32 v%d, v%d offset:%d" % (vT, vZ, L_FLG)); A("s_mov_b64 exec, -1")
    slot_addrs()
    sEP = 4
    def epoch():
        if sep: A("s_waitcnt lgkmcnt(0)")
        else:
            A("s_waitcnt vmcnt(0)")
            A("v_readfirstlane_b32 s%d, v30" % sEP); A("v_readfirstlane_b32 s%d, v31" % (sEP + 1))
        A("s_add_u32 s%d, s%d, 0x%x" % (sEP, sEP, EP_STEP & 0xffffffff)); A("s_addc_u32 s%d, s%d, 0x%x" % (sEP + 1, sEP + 1, EP_STEP >> 32))
    A("s_waitcnt lgkmcnt(0)")
    if sep: A("s_load_dwordx2 s[%d:%d], s[%d:%d], %d" % (sEP, sEP + 1, SRD["WS"], SRD["WS"] + 1, WS_EP))
    else: A("buffer_load_dwordx2 v[30:31], off, %s, 0 offset:%d sc1" % (srd("WS"), WS_EP))
    A("s_barrier")
    A("v_add_u32 v%d, v%d, v%d" % (vT, vHI, vL16))
    A("v_and_b32 v29, 7, v0"); A("v_lshlrev_b32 v29, 14, v29"); A("v_lshl_add_u32 v29, v%d, 4, v29" % vG4)
    A("s_lshl_b32 s%d, s%d, 6" % (sT2, sRQ)); A("s_add_u32 s%d, s%d, 0x%x" % (sT2, sT2, WS_Q))
    A("s_bfe_u32 s%d, s%d, 0x30002" % (sT0, sR)); A("s_lshl_b32 s%d, s%d, 14" % (sT0, sT0)); A("s_lshr_b32 s%d, s%d, 5" % (sT1, sR)); A("s_lshl_b32 s%d, s%d, 11" % (sT1, sT1))
    A("s_add_u32 s%d, s%d, s%d" % (sT0, sT0, sT1)); A("s_add_u32 s%d, s%d, 0x%x" % (sT0, sT0, WS_Q))
    A("v_lshl_add_u32 v27, v0, 3, v%d" % vHI)
    epoch()
    A("v_mov_b32 v38, s%d" % sEP); A("v_mov_b32 v39, s%d" % (sEP + 1))
    stamp(1)
    lds_wait(F_QP, 4)
    for w in range(4): A("ds_read_b128 %s, v%d offset:%d" % (vr(40 + 4 * w, 4), vT, L_QP + w * 1024))
    A("s_waitcnt lgkmcnt(0)")
    for i in range(4): A("v_add_f32 v%d, v%d, v%d" % (40 + i, 40 + i, 44 + i)); A("v_add_f32 v%d, v%d, v%d" % (48 + i, 48 + i, 52 + i))
    for i in range(4): A("v_add_f32 v%d, v%d, v%d" % (40 + i, 40 + i, 48 + i))
    A("v_cvt_pk_bf16_f32 v36, v40, v41"); A("v_cvt_pk_bf16_f32 v37, v42, v43")
    A("s_mov_b32 exec_lo, 0x00ff00ff"); A("s_mov_b32 exec_hi, 0x00ff00ff")
    if 'p' not in abl: A("buffer_store_dwordx4 v[36:39], v29, %s, s%d offen sc1" % (srd("WS"), sT2))
    A("s_mov_b64 exec, -1")
    stamp(2)
    if qdelay: A("s_sleep %d" % qdelay)
    if qtrig: lds_wait(F_FULL, qtrig, sl=4)
    if 'p' not in abl: gpoll([(lambda: A("buffer_load_dwordx4 v[32:35], v%d, %s, s%d offen sc1" % (vL16, srd("WS"), sT0)), [32, 33, 34, 35]),
           (lambda: A("buffer_load_dwordx4 v[40:43], v%d, %s, s%d offen offset:1024 sc1" % (vL16, srd("WS"), sT0)), [40, 41, 42, 43])], sleep=qsleep, tag="s[%d:%d]" % (sEP, sEP + 1))
    A("ds_write_b64 v27, v[32:33] offset:%d" % L_QB); A("ds_write_b64 v27, v[40:41] offset:%d" % (L_QB + 512))
    lds_add(vHI, F_QR)
    stamp(4)
    def all_marked():
        if sam:
            for k in range(8): A("s_load_dword s%d, s[%d:%d], %d" % (44 + k, SRD["DBG"], SRD["DBG"] + 1, 32 * k))
            A("s_waitcnt lgkmcnt(0)")
            for k in range(1, 8): A("s_min_u32 s44, s44, s%d" % (44 + k))
            A("s_cmp_ge_u32 s44, 32"); A("s_cbranch_scc1 L_marked")
        A("v_lshlrev_b32 v%d, 5, v0" % (vT + 3))
        word_poll("buffer_load_dword v32, v%d, %s, 0 offen sc1" % (vT + 3, srd("DBG")), 32, "0xff", "v_cmp_gt_u32 vcc, 32, v%d", fsleep)
        A("L_marked:")
        stamp(3)
    if 'a' not in abl: all_marked()
    lds_add(vHI, F_AM)
    A("v_lshlrev_b32 v%d, 3, v%d" % (vT + 1, vN16)); A("v_add_u32 v%d, v%d, v%d" % (vT + 2, vHI, vT + 1))
    lds_wait(F_ST, 4)
    A("ds_read_b64 v[32:33], v%d offset:%d" % (vT + 2, L_ST)); A("s_waitcnt lgkmcnt(0)")
    def combine(modes):
        A("v_mov_b32 v34, v32")
        for m in modes: dpp("v_max_f32", 34, m)
        A("v_sub_f32 v32, v32, v34"); A("v_exp_f32 v32, v32"); A("v_mul_f32 v35, v32, v33")
        for m in modes: dpp("v_add_f32", 35, m)
    combine(("row_ror:4", "row_ror:8"))
    A("s_mov_b64 exec, 0xf"); A("buffer_store_dwordx2 v[34:35], v28, %s, s%d offen sc1" % (srd("WS"), sMU)); A("s_mov_b64 exec, -1")
    stamp(5)
    if sdelay: A("s_sleep %d" % sdelay)
    if strig:
        lds_wait(F_FULL, strig, sl=8)
    gpoll([(lambda: A("buffer_load_dwordx2 v[32:33], v%d, %s, s%d offen sc1" % (vT + 1, srd("WS"), sSTOFF)), [32, 33])], sleep=ssleep)
    combine(("quad_perm:[1,0,3,2]", "quad_perm:[2,3,0,1]"))
    A("v_rcp_f32 v35, v35"); A("v_lshl_add_u32 v%d, v%d, 3, v%d" % (vT + 2, vC4, vHI))
    A("s_mov_b64 exec, 0x1111"); A("ds_write_b64 v%d, v[34:35] offset:%d" % (vT + 2, L_GS)); A("s_mov_b64 exec, -1")
    lds_add(vHI, F_GR)
    stamp(6)
    A("s_mov_b32 s%d, 2" % sMU)
    A("L_gather56:")
    A("s_waitcnt lgkmcnt(0)")
    A("s_barrier")
    stamp(8)
    gather(sMU, lambda: None)
    A("s_waitcnt lgkmcnt(0)")
    A("s_barrier")
    stamp(9)
    A("s_branch L_done")

    A("L_mlp:")
    vW, vU = 32, 64
    def pg_addr(line, word):
        A("s_lshr_b32 s%d, s2, 3" % line); A("s_lshl_b32 s%d, s%d, 8" % (line, line)); A("s_add_u32 s%d, s%d, 0x%x" % (line, line, WS_PG))
        A("s_and_b32 s%d, s2, 7" % word); A("s_lshl_b32 s%d, s%d, 2" % (word, word)); A("s_add_u32 s%d, s%d, s%d" % (word, word, line))
    def clean():
        A("s_cmp_lg_u32 s%d, 7" % sWAVE); A("s_cbranch_scc1 L_noclean")
        for i in range(4): A("v_mov_b32 v%d, -1" % (60 + i))
        slot_addrs()
        A("v_lshlrev_b32 v%d, 13, v%d" % (59, vG4)); A("v_lshl_add_u32 v%d, v%d, 4, v%d" % (59, vN16, 59))
        A("s_lshl_b32 s%d, s%d, %d" % (sT1, sR, 11 + spad)); A("s_add_u32 s%d, s%d, 0x%x" % (sT1, sT1, WS_SP))
        A("v_lshrrev_b32 v29, 2, v0"); A("v_lshlrev_b32 v29, %d, v29" % (6 + spad)); A("v_lshl_add_u32 v29, v%d, 4, v29" % vR4)
        A("s_waitcnt lgkmcnt(0)")
        if pad2:
            A("s_cmp_lg_u32 s2, 0"); A("s_cbranch_scc1 L_np2"); A("v_mov_b32 v58, s16"); A("s_mov_b32 s18, 0x310000"); A("s_mov_b64 exec, 1")
            A("buffer_store_dword v58, off, %s, s18 sc1" % srd("WS")); A("s_mov_b64 exec, -1"); A("s_waitcnt vmcnt(0)"); A("L_np2:")
        if not sep: A("buffer_load_dwordx2 v[30:31], off, %s, 0 offset:%d sc1" % (srd("WS"), WS_EP))
        A("s_mov_b64 exec, 0xf"); A("buffer_store_dwordx2 v[60:61], v28, %s, s%d offen sc1" % (srd("WS"), sMU)); A("s_mov_b64 exec, -1")
        if 'c' not in abl and 'r' not in abl: A("buffer_store_dwordx4 v[60:63], v%d, %s, s%d offen %s" % (59, srd("WS"), sOPOFF, cpol))
        if 'c' not in abl and 's' not in abl:
            A("buffer_store_dwordx4 v[60:63], v29, %s, s%d offen %s" % (srd("WS"), sT1, cpol))
            A("buffer_store_dwordx4 v[60:63], v29, %s, s%d offen offset:%d %s" % (srd("WS"), sT1, 1024 << spad, cpol))
        if bal:
            pg_addr(sT1, sT3)
            A("s_mov_b64 exec, 1"); A("buffer_store_dword v60, off, %s, s%d sc1" % (srd("WS"), sT3)); A("s_mov_b64 exec, -1")
        if steal:
            A("s_lshl_b32 s%d, s%d, 12" % (sT1, sR)); A("s_add_u32 s%d, s%d, 0x%x" % (sT1, sT1, WS_PR))
            for k in range(4): A("buffer_store_dwordx4 v[60:63], v%d, %s, s%d offen offset:%d sc1" % (vL16, srd("WS"), sT1, 1024 * k))
            A("s_lshl_b32 s%d, s%d, 7" % (sT1, sR)); A("s_add_u32 s%d, s%d, 0x%x" % (sT1, sT1, WS_CW))
            A("s_mov_b64 exec, 1"); A("buffer_store_dword v60, off, %s, s%d sc1" % (srd("WS"), sT1)); A("s_mov_b64 exec, -1")
        A("L_noclean:")
    def arrive(cnt, lbl):
        A("s_cmp_lg_u32 s%d, 7" % sWAVE); A("s_cbranch_scc1 " + lbl)
        A("s_lshr_b32 s%d, s%d, 5" % (sT3, sR)); A("s_lshl_b32 s%d, s%d, 5" % (sT3, sT3))
        A("s_mov_b64 exec, 1")
        A("s_waitcnt vmcnt(%d)" % cnt)
        if 'a' not in abl: A("buffer_atomic_add v%d, off, %s, s%d" % (vONE, srd("DBG"), sT3))
        A("s_mov_b64 exec, -1")
        stamp(4)
        A(lbl + ":")
    if not cllate: clean()
    A("s_sub_u32 s%d, s%d, 6" % (sMB, sWAVE))
    A("v_mul_u32_u24 v%d, 12, v0" % vT); A("s_mul_i32 s%d, s%d, 1792" % (sT1, sMB))
    A("s_waitcnt lgkmcnt(0)")
    A("s_load_dword s%d, s[%d:%d], 0" % (sB2, sB2P, sB2P + 1))
    if tlb:
        A("s_bfe_u32 s%d, s%d, 0x30002" % (sBASE, sR)); A("s_lshl_b32 s%d, s%d, 23" % (sBASE, sBASE)); A("s_lshr_b32 s%d, s%d, 5" % (sT0, sR)); A("s_lshl_b32 s%d, s%d, 20" % (sT0, sT0))
        A("s_add_u32 s%d, s%d, s%d" % (sBASE, sBASE, sT0)); A("s_and_b32 s%d, s%d, 3" % (sT0, sR)); A("s_lshl_b32 s%d, s%d, 18" % (sT0, sT0)); A("s_add_u32 s%d, s%d, s%d" % (sBASE, sBASE, sT0))
        A("s_cmp_lg_u32 s%d, 6" % sWAVE); A("s_cbranch_scc1 L_notlb")
        A("s_mov_b64 exec, 1")
        if tlb & 1: A("buffer_load_dword v200, off, %s, s%d" % (srd("V"), sBASE))
        if tlb & 2:
            A("s_lshr_b32 s%d, s%d, 3" % (sT0, sR)); A("s_lshl_b32 s%d, s%d, 17" % (sT0, sT0))
            A("buffer_load_dword v201, off, %s, s%d" % (srd("WO"), sT0))
        if tlb & 4:
            A("v_lshlrev_b32 v202, 16, v0"); A("s_mov_b64 exec, 0xf")
            A("buffer_load_dword v203, v202, %s, s%d offen" % (srd("V"), sBASE))
            A("buffer_load_dword v204, v202, %s, s%d offen" % (srd("K"), sBASE))
        A("s_mov_b64 exec, -1")
        A("L_notlb:")
    A("s_barrier")
    def mlp_weights(off):
        for k, n in enumerate(("W1", "B1", "W2")):
            if 'w' in abl: continue
            A("buffer_load_dwordx4 %s, v%d, %s, s%d offen" % (vr(vW + 8 * k, 4), vL16, srd(n), sT1))
            A("buffer_load_dwordx3 %s, v%d, %s, s%d offen offset:1024" % (vr(vW + 8 * k + 4, 3), off, srd(n), sT1))
    if not mlate: mlp_weights(vT)
    if not cllate: arrive(0 if (mlate or 'w' in abl) else 6, "L_noflag")
    A("s_lshr_b32 s%d, s%d, 5" % (sT0, sR)); A("s_mul_i32 s%d, s%d, %d" % (sT0, sT0, XN_STRIDE)); A("s_add_u32 s%d, s%d, %d" % (sT0, sT0, HI)); A("v_add_u32 v%d, s%d, v%d" % (vT + 1, sT0, vL16))
    A("s_lshl_b32 s%d, s%d, 13" % (sT2, sMB)); A("s_add_u32 s%d, s%d, %d" % (sT2, sT2, HI + L_WO)); A("v_add_u32 v%d, s%d, v%d" % (vT + 2, sT2, vL16))
    A("s_and_b32 s%d, s%d, 31" % (sT0, sR)); A("s_lshl_b32 s%d, s%d, 5" % (sT0, sT0)); A("s_add_u32 s%d, s%d, s%d" % (sT0, sT0, sT2))
    A("v_lshlrev_b32 v%d, 1, v%d" % (vT + 3, vN16)); A("v_add_u32 v%d, s%d, v%d" % (vT + 3, sT0, vT + 3))
    lds_wait(F_XN, 4)
    if cllate: clean()
    vXm = 112
    A("ds_read_b128 %s, v%d offset:%d" % (vr(vXm, 4), vT + 1, L_XN)); A("s_waitcnt lgkmcnt(0)")
    layernorm(vXm, 4, vXm + 4, vXm + 12, vXm + 20, 1)
    A("ds_write_b128 v%d, %s" % (vT + 2, vr(vXm, 4)))
    vH = 24
    A("ds_read_u16 v%d, v%d" % (vH, vT + 3))
    A("v_lshrrev_b32 v%d, 3, v0" % (vT + 4)); A("v_lshlrev_b32 v%d, 10, v%d" % (vT + 4, vT + 4)); A("v_and_b32 v%d, 7, v0" % (vT + 5)); A("v_lshl_add_u32 v%d, v%d, 4, v%d" % (vT + 4, vT + 5, vT + 4))
    A("s_lshr_b32 s%d, s%d, 3" % (sT0, sR)); A("s_lshl_b32 s%d, s%d, 17" % (sT0, sT0)); A("s_and_b32 s%d, s%d, 7" % (sT1, sR)); A("s_lshl_b32 s%d, s%d, 7" % (sT1, sT1))
    A("s_add_u32 s%d, s%d, s%d" % (sT0, sT0, sT1)); A("s_lshl_b32 s%d, s%d, 16" % (sT1, sMB)); A("s_add_u32 s%d, s%d, s%d" % (sT0, sT0, sT1))
    A("s_waitcnt vmcnt(0) lgkmcnt(0)")
    if cllate: arrive(0, "L_noflag")
    for a in range(8):
        A("s_add_u32 m0, s%d, %d" % (sT2, a * 1024))
        if 'o' not in abl and not wolate: A("buffer_load_dwordx4 v%d, %s, s%d offen %s lds" % (vT + 4, srd("WO"), sT0, polo))
        if a < 7: A("s_add_u32 s%d, s%d, 0x2000" % (sT0, sT0))
    if mlate:
        A("s_and_b32 s%d, s%d, 3" % (sT0, sR)); A("s_mul_i32 s%d, s%d, %d" % (sT0, sT0, mstag)); A("s_add_u32 s%d, s%d, %d" % (sT0, sT0, mlate))
        A("s_mul_i32 s%d, s%d, 1792" % (sT1, sMB))
        lds_wait(F_FULL, "s%d" % sT0, sl=8)
        mlp_weights(vT)
        A("s_waitcnt vmcnt(0)")
    stamp(1)
    A("v_lshlrev_b32 v%d, 16, v%d" % (vH, vH))
    for k in range(3):
        for i in range(7): unpack(vU + 14 * k + 2 * i, vU + 14 * k + 2 * i + 1, vW + 8 * k + i)
    vC0, vACC, U, T_ = 25, 26, 112, 128
    A("v_mov_b32 v%d, s%d" % (vC0, sC0))
    A("s_lshl_b32 s%d, s%d, 6" % (sT0, sMB)); A("s_add_u32 s%d, s%d, %d" % (sT0, sT0, HI + L_YP)); A("v_mov_b32 v27, s%d" % sT0)
    A("s_mov_b32 s%d, 0" % sT1)
    A("s_nop 3")
    A("L_mlp_loop:")
    A("v_readlane_b32 s%d, v%d, s%d" % (sMU, vH, sT1))
    for t in range(14): A("v_fma_f32 v%d, s%d, v%d, v%d" % (U + t, sMU, vU + t, vU + 14 + t))
    for t in range(14): A("v_mul_f32 v%d, v%d, v%d" % (T_ + t, U + t, U + t))
    for t in range(14): A("v_fma_f32 v%d, v%d, s%d, v%d" % (T_ + t, T_ + t, sC1, vC0))
    for t in range(14): A("v_mul_f32 v%d, v%d, v%d" % (T_ + t, T_ + t, U + t))
    for t in range(14):
        A("v_exp_f32 v%d, v%d" % (T_ + t, T_ + t)); A("v_mul_f32 v%d, v%d, v%d" % (U + t, U + t, vU + 28 + t))
    for t in range(14): A("v_add_f32 v%d, 1.0, v%d" % (T_ + t, T_ + t))
    for t in range(14): A("v_rcp_f32 v%d, v%d" % (T_ + t, T_ + t))
    A("v_mul_f32 v%d, v%d, v%d" % (vACC, U, T_)); A("v_mul_f32 v%d, v%d, v%d" % (U, U + 1, T_ + 1))
    for t in range(2, 14): A("v_fmac_f32 v%d, v%d, v%d" % (vACC if t & 1 else U, U + t, T_ + t))
    A("v_add_f32 v%d, v%d, v%d" % (vACC, vACC, U))
    red16(vACC, "v_add_f32"); dpp("v_add_f32", vACC, "row_bcast:15", "0xa"); dpp("v_add_f32", vACC, "row_bcast:31", "0xc")
    A("s_mov_b32 exec_lo, 0"); A("s_mov_b32 exec_hi, 0x80000000")
    A("ds_write_b32 v27, v%d" % vACC); A("v_add_u32 v27, 4, v27")
    A("s_mov_b64 exec, -1")
    A("s_add_u32 s%d, s%d, 1" % (sT1, sT1)); A("s_cmp_lt_u32 s%d, 16" % sT1); A("s_cbranch_scc1 L_mlp_loop")
    stamp(2)
    A("s_waitcnt vmcnt(0)")
    A("s_mov_b32 s%d, 3" % sMU)
    if steal:
        A("s_cmp_eq_u32 s%d, 7" % sWAVE); A("s_cbranch_scc1 L_final")
        lds_wait(F_AM, 1, sl=8)
        sCW = 4
        A("s_lshl_b32 s%d, s%d, 7" % (sCW, sR)); A("s_add_u32 s%d, s%d, 0x%x" % (sCW, sCW, WS_CW))
        def set_plan(val):
            A("v_mov_b32 v%d, %s" % (vT, val)); A("s_mov_b64 exec, 1"); A("ds_write_b32 v%d, v%d offset:%d" % (vHI, vT, F_PLAN)); A("s_mov_b64 exec, -1")
        for k in range(5, 11):
            if k == 8:
                A("s_xor_b32 s%d, s%d, 0x100" % (sCW, sCW))
            if k == 8:
                A("s_xor_b32 s%d, s%d, 2" % (sT1, sR)); A("s_lshl_b32 s%d, s%d, 12" % (sT1, sT1)); A("s_add_u32 s%d, s%d, 0x%x" % (sT1, sT1, WS_PR))
                A("v_add_u32 v%d, v%d, v%d" % (vT + 1, vHI, vL16))
                rec = [((lambda q=q: A("buffer_load_dwordx4 %s, v%d, %s, s%d offen offset:%d sc1" % (vr(36 + 4 * q, 4), vL16, srd("WS"), sT1, 1024 * q))), list(range(36 + 4 * q, 40 + 4 * q))) for q in range(4)]
                lds_wait(F_FULL, rtrig, sl=2)
                A("s_mov_b32 exec_hi, 0x1ffff")
                for i_, _ in rec: i_()
                A("s_mov_b64 exec, -1")
            lds_wait(F_FULL, 4 * k + cth + (bias if k >= 8 else 0), sl=2)
            A("v_mov_b32 v32, 1"); A("s_mov_b64 exec, 1")
            A("buffer_atomic_add v32, off, %s, s%d sc0" % (srd("WS"), sCW))
            A("s_mov_b64 exec, -1")
            A("s_mov_b32 s%d, 0x%x" % (sT2, 0x100 + k))
            A("s_waitcnt vmcnt(0)")
            A("v_readfirstlane_b32 s%d, v32" % sT0); A("s_add_u32 s%d, s%d, 1" % (sT0, sT0))
            if stamps and k < 9: stamp(k - 2)
            A("s_cmp_ge_u32 s%d, 3" % sT0); A("s_cbranch_scc1 L_close")
            if k == 8:
                A("s_mov_b32 exec_hi, 0x1ffff")
                gpoll(rec[:2], first=False, sleep=8, full="PARTIAL"); gpoll(rec[2:], first=False, sleep=8, full="PARTIAL")
                for q in range(4): A("ds_write_b128 v%d, %s offset:%d" % (vT + 1, vr(36 + 4 * q, 4), L_PP + 1024 * q))
                A("s_mov_b64 exec, -1")
                A("s_waitcnt lgkmcnt(0)")
            set_plan("%d" % (k + 1))
        A("s_mov_b32 s%d, 0x%x" % (sT2, 0x100 + 11))
        A("L_close:")
        set_plan("s%d" % sT2)
        A("s_branch L_gather56")
        A("L_final:")
    elif bal >= 2:
        A("s_cmp_eq_u32 s%d, 7" % sWAVE); A("s_cbranch_scc1 L_final")
        lds_wait(F_AM, 1, sl=8)
        pg_addr(4, 5)
        if bal == 3: A("s_lshl_b32 s4, s2, 8"); A("s_add_u32 s4, s4, 0x%x" % (WS_PG + 0x4000))
        for k in range(bmin):
            lds_wait(F_FULL, bthr + bper * k, sl=4)
            A("v_mov_b32 v%d, 1" % (32 + k)); A("s_mov_b64 exec, 1")
            if bal == 4: A("buffer_load_dword v%d, off, %s, s4 sc1" % (32 + k, srd("WS")))
            elif bal == 5: A("buffer_store_dword v%d, off, %s, s5 sc1" % (32 + k, srd("WS")))
            else: A("buffer_atomic_add v%d, off, %s, s4 sc0" % (32 + k, srd("WS")))
            A("s_mov_b64 exec, -1")
        A("s_waitcnt vmcnt(0)")
        A("s_branch L_gather56")
        A("L_final:")
    elif bal:
        A("s_cmp_eq_u32 s%d, 7" % sWAVE); A("s_cbranch_scc1 L_final")
        lds_wait(F_AM, 1, sl=8)
        pg_addr(4, 5)
        A("s_and_b32 s12, s2, 7"); A("v_lshlrev_b32 v33, 2, v0"); A("s_mov_b32 s13, 0")
        A("L_bal:")
        A("s_mov_b64 exec, 0xff"); A("buffer_load_dword v32, v33, %s, s4 offen sc1" % srd("WS"))
        A("s_mov_b64 exec, 1")
        A("ds_read_b32 v34, v%d offset:%d" % (vHI, F_FULL)); A("s_waitcnt lgkmcnt(0)")
        A("buffer_store_dword v34, off, %s, s5 sc1" % srd("WS"))
        A("s_mov_b64 exec, -1")
        A("v_readfirstlane_b32 s%d, v34" % sT0)
        A("s_cmp_ge_u32 s%d, %d" % (sT0, bstop)); A("s_cbranch_scc1 L_balend")
        A("s_waitcnt vmcnt(1)")
        A("v_readlane_b32 s%d, v32, s12" % sT1)
        A("s_mov_b64 exec, 0xff")
        A("v_cmp_eq_u32 vcc, -1, v32")
        if bmin:
            for m in QUADS[:3]: dpp("v_min_u32", 32, m)
        else:
            for m in QUADS[:3]: dpp("v_add_u32", 32, m)
        A("s_mov_b64 exec, -1")
        A("v_readfirstlane_b32 s%d, v32" % sT2)
        A("s_cmp_lg_u64 vcc, 0"); A("s_cbranch_scc1 L_balskip")
        if not bmin: A("s_lshl_b32 s%d, s%d, 3" % (sT1, sT1))
        A("s_sub_i32 s%d, s%d, s%d" % (sT1, sT1, sT2)); A("s_cmp_gt_i32 s%d, %d" % (sT1, bthr)); A("s_cselect_b32 s%d, 1, 0" % sT1)
        A("v_mov_b32 v35, s%d" % sT1); A("s_mov_b64 exec, 1"); A("ds_write_b32 v%d, v35 offset:%d" % (vHI, F_MODE)); A("s_mov_b64 exec, -1")
        A("L_balskip:")
        if bper: A("s_sleep %d" % bper)
        A("s_add_u32 s13, s13, 1"); A("s_cmp_lt_u32 s13, 4096"); A("s_cbranch_scc1 L_bal")
        A("L_balend:")
        A("v_mov_b32 v35, 0"); A("s_mov_b64 exec, 1"); A("ds_write_b32 v%d, v35 offset:%d" % (vHI, F_MODE)); A("s_mov_b64 exec, -1")
        A("s_waitcnt vmcnt(0)")
        A("s_branch L_gather56")
        A("L_final:")
    else:
        A("s_cmp_eq_u32 s%d, 6" % sWAVE); A("s_cbranch_scc1 L_gather56")
    if at2:
        A("v_and_b32 v%d, 7, v0" % (vT + 1)); A("v_lshrrev_b32 v%d, 5, v0" % (vT + 2)); A("v_lshl_add_u32 v%d, v%d, 1, v%d" % (vT + 1, vT + 1, vT + 2))
    else: A("v_lshl_add_u32 v%d, v%d, 2, v%d" % (vT + 1, vR4, vG4))
    A("v_lshlrev_b32 v%d, 1, v%d" % (vT + 2, vT + 1)); A("s_lshl_b32 s%d, s%d, 5" % (sT0, sR))
    A("buffer_load_ushort v%d, v%d, %s, s%d offen" % (vT + 3, vT + 2, srd("X"), sT0))
    A("v_lshl_add_u32 v%d, v%d, 2, v%d" % (vT + 1, vT + 1, vHI))
    A("s_lshl_b32 s%d, s%d, %d" % (sT1, sR, 11 + spad)); A("s_add_u32 s%d, s%d, 0x%x" % (sT1, sT1, WS_SP))
    A("v_lshrrev_b32 v29, 2, v0"); A("v_lshlrev_b32 v29, %d, v29" % (6 + spad)); A("v_lshl_add_u32 v29, v%d, 4, v29" % vR4)
    if wolate == 2:
        A("s_mov_b32 s12, s%d" % sT0); A("s_mov_b32 s13, s%d" % sT1)
        if steal: lds_wait(F_LI, 1, sl=2)
        else: lds_wait(F_FULL, wotrig, sl=2)
        wo_dma()
        A("s_mov_b32 s%d, s12" % sT0); A("s_mov_b32 s%d, s13" % sT1)
    if sep:
        assert epe
        A("s_load_dwordx2 s[4:5], s[%d:%d], %d" % (SRD["WS"], SRD["WS"] + 1, WS_EP))
    A("s_waitcnt lgkmcnt(0)")
    A("s_barrier")
    stamp(8)
    A("ds_read_b32 v40, v%d offset:%d" % (vT + 1, L_YP)); A("ds_read_b32 v41, v%d offset:%d" % (vT + 1, L_YP + 64)); A("s_waitcnt lgkmcnt(0)")
    A("v_add_f32 v40, v40, v41"); rbf(40)
    A("s_lshl_b32 s%d, s%d, 16" % (sB2, sB2)); A("v_add_f32 v40, s%d, v40" % sB2); rbf(40)
    A("v_mul_f32 v41, s%d, v40" % sL2E); A("v_exp_f32 v41, -v41"); A("v_add_f32 v41, 1.0, v41"); A("v_rcp_f32 v41, v41"); A("v_mul_f32 v40, v40, v41"); rbf(40)
    A("s_waitcnt vmcnt(0)"); A("v_lshlrev_b32 v%d, 16, v%d" % (vT + 3, vT + 3))
    if wolate == 2:
        A("s_mov_b64 exec, 1"); A("ds_write_b32 v%d, v%d offset:%d" % (vHI, vONE, F_WO)); A("s_mov_b64 exec, -1")
        stamp(11)
    A("s_barrier")
    stamp(9)
    if epe:
        if not sep: A("v_readfirstlane_b32 s4, v30"); A("v_readfirstlane_b32 s5, v31")
        A("s_add_u32 s4, s4, 0x%x" % (EP_STEP & 0xffffffff)); A("s_addc_u32 s5, s5, 0x%x" % (EP_STEP >> 32))
        A("s_cmp_eq_u32 s%d, 0" % sR); A("s_cselect_b32 s96, 1, 0"); A("s_mov_b32 s97, 0")
        A("v_mov_b32 v30, s4"); A("v_mov_b32 v31, s5")
    def ep_store():
        if epe:
            A("s_mov_b64 exec, s[96:97]"); A("buffer_store_dwordx2 v[30:31], off, %s, 0 offset:%d sc1" % (srd("WS"), WS_EP)); A("s_mov_b64 exec, -1")
    if td2: A("s_sleep %d" % td2)
    if at2:
        A("v_lshlrev_b32 v29, 3, v0")
        apoll(32, 29, sT1, 44, tsleep2)
        stamp(10)
        ep_store()
        A("v_add_f32 v44, v32, v34"); A("v_add_f32 v45, v33, v35"); A("v_add_f32 v46, v36, v38"); A("v_add_f32 v47, v37, v39")
        A("v_add_f32 v44, v44, v46"); A("v_add_f32 v45, v45, v47")
        A("v_permlane32_swap_b32 v44, v45"); A("v_add_f32 v44, v44, v45")
        swap_red(44, 45, "v_add_f32", 16)
        dpp("v_add_f32", 44, "row_ror:8")
    else:
        gpoll([(lambda: A("buffer_load_dwordx4 v[32:35], v29, %s, s%d offen %s" % (srd("WS"), sT1, tl)), [32, 33, 34, 35]),
               (lambda: A("buffer_load_dwordx4 v[36:39], v29, %s, s%d offen offset:%d %s" % (srd("WS"), sT1, 1024 << spad, tl)), [36, 37, 38, 39])], sleep=tsleep2, P=P2)
        stamp(10)
        for i in range(4): A("v_add_f32 v%d, v%d, v%d" % (44 + i, 32 + i, 36 + i))
        A("v_permlane32_swap_b32 v44, v46"); A("v_permlane32_swap_b32 v45, v47")
        A("v_add_f32 v44, v44, v46"); A("v_add_f32 v45, v45, v47")
        A("v_permlane16_swap_b32 v44, v45"); A("v_add_f32 v44, v44, v45")
        dpp("v_add_f32", 44, "row_ror:8"); dpp("v_add_f32", 44, "row_ror:4")
    rbf(44); A("v_mul_f32 v44, v44, v40"); rbf(44)
    A("v_add_f32 v44, v44, v%d" % (vT + 3)); A("v_cvt_pk_bf16_f32 v44, v44, v44")
    em = "0xff" if at2 else "0x000f000f"
    A("s_mov_b32 exec_lo, %s" % em); A("s_mov_b32 exec_hi, %s" % em)
    A("buffer_store_short v44, v%d, %s, s%d offen %s" % (vT + 2, srd("OUT"), sT0, outp))
    A("s_mov_b64 exec, -1")
    if not epe or pmap or pgrp or probe or pspan or p_b >= 0:
        A("s_cmp_lg_u32 s%d, 0" % sR); A("s_cbranch_scc1 L_done")
    if not epe:
        epoch()
        A("v_mov_b32 v30, s%d" % sEP); A("v_mov_b32 v31, s%d" % (sEP + 1)); A("s_mov_b64 exec, 1")
        A("buffer_store_dwordx2 v[30:31], off, %s, 0 offset:%d sc1" % (srd("WS"), WS_EP))
        A("s_mov_b64 exec, -1")
    if pmap >= 10:
        A("s_sleep 32"); A("s_mov_b32 s6, 0x300000")
        A("buffer_load_dwordx4 v[32:35], v%d, %s, s6 offen sc1" % (vL16, srd("WS"))); A("s_waitcnt vmcnt(0)")
        if not piv:
            for i in range(4): A("v_subrev_u32 v%d, s16, v%d" % (32 + i, 32 + i))
        def over_kvh(v, op):
            dpp(op, v, "row_ror:8"); swap_red(v, 40, op, 16); swap_red(v, 40, op, 32)
        def over_b(v, op):
            for m in QUADS[:3]: dpp(op, v, m)
        A("v_max_u32 v36, v32, v33"); A("v_max3_u32 v36, v36, v34, v35"); over_kvh(36, "v_max_u32")
        A("v_add_u32 v37, v32, v33"); A("v_add3_u32 v37, v37, v34, v35"); over_kvh(37, "v_add_u32"); A("v_lshrrev_b32 v37, 5, v37")
        if pmap == 10: over_b(36, "v_max_u32"); A("v_lshlrev_b32 v36, 2, v36")
        elif pmap == 11: over_b(37, "v_max_u32"); A("v_lshlrev_b32 v36, 2, v37")
        elif pmap == 12: over_b(37, "v_add_u32"); A("v_lshrrev_b32 v36, 1, v37")
        elif pmap == 13: over_b(37, "v_min_u32"); A("v_lshlrev_b32 v36, 2, v37")
        elif pmap == 14: A("v_sub_u32 v36, v36, v37"); over_b(36, "v_max_u32"); A("v_lshlrev_b32 v36, 3, v36")
        elif pmap == 15:
            A("v_mov_b32 v38, v37"); over_b(38, "v_max_u32"); A("v_cmp_eq_u32 vcc, v38, v37"); A("v_cndmask_b32 v37, v37, 0, vcc"); over_b(37, "v_max_u32"); A("v_lshlrev_b32 v36, 2, v37")
        elif pmap == 16:
            A("v_lshlrev_b32 v36, 3, v36"); A("v_and_b32 v38, 7, v0"); A("v_or_b32 v36, v36, v38"); over_b(36, "v_max_u32"); A("v_and_b32 v36, 7, v36"); A("v_mul_u32_u24 v36, 300, v36")
        elif pmap == 17:
            A("v_min_u32 v36, v32, v33"); A("v_min3_u32 v36, v36, v34, v35"); over_kvh(36, "v_min_u32"); over_b(36, "v_min_u32"); A("v_lshlrev_b32 v36, 2, v36")
        A("s_mov_b32 s7, s16")
        A("s_memrealtime s[16:17]"); A("v_readfirstlane_b32 s6, v36"); A("s_waitcnt lgkmcnt(0)")
        if pmap == 18: A("s_sub_u32 s6, s16, s7"); A("s_lshl_b32 s6, s6, 2")
        if pmap == 19: A("s_mov_b32 s6, 0")
        A("s_min_u32 s6, s6, 20000")
        A("s_add_u32 s16, s16, s6")
        A("L_pad4:"); A("s_memrealtime s[18:19]"); A("s_waitcnt lgkmcnt(0)"); A("s_sub_u32 s18, s18, s16"); A("s_cmp_lt_i32 s18, 0"); A("s_cbranch_scc1 L_pad4")
    elif pmap:
        A("s_sleep 32"); A("s_mov_b32 s6, 0x300000")
        A("buffer_load_dwordx4 v[32:35], v%d, %s, s6 offen sc1" % (vL16, srd("WS"))); A("s_waitcnt vmcnt(0)")
        if pmap == 1: A("v_max_u32 v32, v32, v33"); A("v_max3_u32 v32, v32, v34, v35")
        elif pmap == 2: A("v_min_u32 v32, v32, v33"); A("v_min3_u32 v32, v32, v34, v35")
        if not piv: A("s_add_u32 s16, s16, 1500"); A("v_subrev_u32 v32, s16, v32")
        A("v_lshrrev_b32 v32, 3, v32"); A("v_min_u32 v32, 255, v32")
        A("buffer_store_byte v32, v0, %s, 0 offen sc1" % srd("DBG"))
    if pgrp:
        A("v_lshlrev_b32 v29, 5, v0"); A("s_mov_b64 exec, 0xff")
        A("buffer_load_dword v30, v29, %s, 0 offen offset:4 sc1" % srd("DBG")); A("s_memrealtime s[16:17]"); A("s_waitcnt vmcnt(0) lgkmcnt(0)")
        if pat >= 12:
            A("v_readfirstlane_b32 s6, v30"); A("v_subrev_u32 v30, s6, v30"); A("v_add_u32 v30, 0x100000, v30")
            if pat == 13: A("v_lshlrev_b32 v30, 3, v30"); A("v_or_b32 v30, v30, v0")
        A("v_mov_b32 v31, v30")
        for m in QUADS[:3]: dpp("v_max_u32", 30, m)
        if pat in (11, 12, 13, 14):
            for m in QUADS[:3]: dpp("v_min_u32", 31, m)
        else:
            A("v_subrev_u32 v31, v31, v30")
            for m in QUADS[:3]: dpp("v_add_u32", 31, m)
        A("s_mov_b64 exec, -1")
        A("v_readfirstlane_b32 s6, v30"); A("v_readfirstlane_b32 s7, v31")
        if pat == 11: A("s_sub_u32 s6, s6, s7"); A("s_lshl_b32 s6, s6, 3")
        elif pat == 12: A("s_sub_u32 s6, s6, s7"); A("s_lshr_b32 s6, s6, 2")
        elif pat == 13: A("s_and_b32 s6, s6, 7"); A("s_mul_i32 s6, s6, 300")
        else: A("s_mov_b32 s6, s7")
        A("s_min_u32 s6, s6, 20000")
        A("s_add_u32 s16, s16, s6")
        A("L_pad3:"); A("s_memrealtime s[18:19]"); A("s_waitcnt lgkmcnt(0)"); A("s_sub_u32 s18, s18, s16"); A("s_cmp_lt_i32 s18, 0"); A("s_cbranch_scc1 L_pad3")
    if probe or (p_b >= 0 and not piv) or pspan:
        A("buffer_load_dwordx2 v[30:31], off, %s, 0 offset:4 sc1" % srd("DBG")); A("s_memrealtime s[16:17]"); A("s_waitcnt vmcnt(0) lgkmcnt(0)")
        A("v_readfirstlane_b32 s6, v30"); A("v_readfirstlane_b32 s7, v31")
        if probe: A("s_sub_i32 s6, s6, s7"); A("s_abs_i32 s6, s6"); A("s_lshr_b32 s6, s6, 4")
        elif pspan == 1: A("s_not_b32 s7, s7"); A("s_sub_u32 s6, s6, s7"); A("s_lshl_b32 s6, s6, 2")
        elif pspan == 2: A("s_sub_u32 s6, s16, s6"); A("s_lshl_b32 s6, s6, 3")
        elif pspan == 6: A("s_not_b32 s7, s7"); A("s_sub_u32 s6, s16, s7"); A("s_lshl_b32 s6, s6, 2")
        elif pspan == 3: A("s_not_b32 s7, s7"); A("s_sub_u32 s6, s6, s7"); A("s_lshl_b32 s6, s6, 3")
        elif pspan in (4, 5): A("s_not_b32 s7, s7"); A("s_lshl_b32 s7, s7, 8"); A("s_sub_u32 s6, s6, s7"); A("s_lshr_b32 s6, s6, %d" % (5 if pspan == 4 else 6))
        else: A("s_lshr_b32 s6, s6, 5")
        A("s_min_u32 s6, s6, 20000")
        A("s_add_u32 s16, s16, s6")
        A("L_pad2:"); A("s_memrealtime s[18:19]"); A("s_waitcnt lgkmcnt(0)"); A("s_sub_u32 s18, s18, s16"); A("s_cmp_lt_i32 s18, 0"); A("s_cbranch_scc1 L_pad2")
    A("L_done:")
    if not nowait: A("s_waitcnt vmcnt(0)")
    if pad2:
        A("s_and_b32 s6, s2, %d" % (255 & ~pwg)); A("s_cmp_lg_u32 s6, %d" % pwv); A("s_cbranch_scc1 L_end")
        A("s_lshr_b32 s6, %d, s%d" % (pw, sWAVE)); A("s_and_b32 s6, s6, 1"); A("s_cbranch_scc0 L_end")
        A("s_cmp_lg_u32 s%d, 7" % sWAVE); A("s_cbranch_scc1 L_pad6")
        A("s_mov_b32 s18, 0x310000"); A("buffer_load_dword v58, off, %s, s18 sc1" % srd("WS")); A("s_waitcnt vmcnt(0)"); A("v_readfirstlane_b32 s16, v58")
        A("s_add_u32 s16, s16, %d" % pad2); A("s_mov_b32 s7, 0")
        A("L_pad5:"); A("s_memrealtime s[18:19]"); A("s_add_u32 s7, s7, 1"); A("s_cmp_gt_u32 s7, 0x4000"); A("s_cbranch_scc1 L_pad6"); A("s_waitcnt lgkmcnt(0)"); A("s_sub_u32 s18, s18, s16"); A("s_cmp_lt_i32 s18, 0"); A("s_cbranch_scc1 L_pad5")
        A("L_pad6:"); A("s_barrier")
    if pad:
        A("s_waitcnt lgkmcnt(0)"); A("s_add_u32 s16, s16, %d" % pad)
        A("L_pad:"); A("s_memrealtime s[18:19]"); A("s_waitcnt lgkmcnt(0)"); A("s_sub_u32 s18, s18, s16"); A("s_cmp_lt_i32 s18, 0"); A("s_cbranch_scc1 L_pad")
    if stamps:
        A("s_waitcnt vmcnt(0)")
        stamp(NST - 1)
        A("s_waitcnt lgkmcnt(0)")
        A("s_lshl_b32 s%d, s2, 3" % sT0); A("s_add_u32 s%d, s%d, s%d" % (sT0, sT0, sWAVE)); A("s_mul_i32 s%d, s%d, %d" % (sT0, sT0, NST * 8)); A("s_add_u32 s%d, s%d, 0x%x" % (sT0, sT0, WS_STAMP))
        A("s_mov_b64 exec, 1")
        for k in range(NST):
            A("v_mov_b32 v2, s%d" % (16 + 2 * k)); A("v_mov_b32 v3, s%d" % (17 + 2 * k))
            A("buffer_store_dwordx2 v[2:3], off, %s, s%d offset:%d" % (srd("WS"), sT0, k * 8)); A("s_nop 1")
    A("L_end:")
    A("s_endpgm")
    body = A.finalize()
    hdr = open("recurrent_scan__gqa_block_cached__mixer_token_mlp__decode.s.ref").read().split("; Override launch")[0]
    s = hdr + "; @launch grid=(256,1,1) block=(512,1,1) lds=%d\n" % LDS_BYTES
    s += '.amdgcn_target "amdgcn-amd-amdhsa--gfx950"\n.text\n.globl %s\n.p2align 8\n.type %s,@function\n%s:\n' % (NAME, NAME, NAME)
    s += body
    s += '.section .rodata,"a"\n.p2align 6\n.amdhsa_kernel %s\n  .amdhsa_next_free_vgpr 256\n  .amdhsa_next_free_sgpr 102\n  .amdhsa_accum_offset 256\n' % NAME
    s += "  .amdhsa_group_segment_fixed_size 0\n  .amdhsa_kernarg_size 104\n  .amdhsa_user_sgpr_count 2\n  .amdhsa_user_sgpr_kernarg_segment_ptr 1\n  .amdhsa_system_sgpr_workgroup_id_x 1\n.end_amdhsa_kernel\n"
    return s, A

if __name__ == "__main__":
    out = sys.argv[1]
    kw = {}
    for p in sys.argv[2:]:
        k, v = p.split("=")
        kw[k] = int(v) if v.lstrip("-").isdigit() else v.replace("+", " ")
    s, A = gen(**kw)
    open(out, "w").write(s)
    print("wrote", out, "instructions", len(A.ins), "nops", A.nops, "lds", LDS_BYTES)
```
